```python
import torch

def _softmax(x, axis=-1):
    return torch.softmax(x, dim=axis)

def _gelu(x):
    return torch.nn.functional.gelu(x, approximate='tanh')

def _silu(x):
    return torch.nn.functional.silu(x)

def _sigmoid(x):
    return torch.sigmoid(x)

def _layernorm(x, axis=-1, eps=1e-05):
    m = x.mean(dim=axis, keepdim=True)
    v = x.var(dim=axis, keepdim=True, unbiased=False)
    return (x - m) / torch.sqrt(v + eps)

def _scatter_add(tgt, idx, src, axis=0):
    return tgt.clone().index_add_(axis, idx, src)

def _segment_sum(src, seg, n):
    out = torch.zeros((n,) + src.shape[1:], dtype=src.dtype)
    return out.index_add_(0, seg, src)

def _pad(x, pw):
    flat = tuple((v for pair in reversed(pw) for v in pair))
    return torch.nn.functional.pad(x, flat)
kernel_name = 'gather_scatter__tensor_product_equiv_equiformer__graph'

def setup_inputs():

    _w = lambda a: (lambda t: t.to(torch.bfloat16) if t.is_floating_point() else t)(torch.as_tensor(a))
    N, deg, C, De = (12500, 64, 64, max(16, 1))
    E = N * deg
    src = (lambda lo, hi, *s: torch.randint(lo, hi, s))(0, N, E).to(torch.int64)
    dst = (lambda lo, hi, *s: torch.randint(lo, hi, s))(0, N, E).to(torch.int64)
    rvec = (lambda *s: torch.randn(*s, dtype=torch.bfloat16) * 0.05)(E, 3).to(float)
    rn = (torch.linalg.norm(rvec, dim=-1, keepdim=True) + 1e-06).to(float)
    rhat = (rvec / rn).to(float)
    eps = torch.zeros((3, 3, 3), dtype=float)
    eps[0, 1, 2] = eps[1, 2, 0] = eps[2, 0, 1] = 1.0
    eps[0, 2, 1] = eps[2, 1, 0] = eps[1, 0, 2] = -1.0
    return {'x': _w((lambda *s: torch.randn(*s, dtype=torch.bfloat16) * 0.2)(N, 4 * C).to(float)), 'rhat': _w(rhat), 'e_attr': _w((lambda *s: torch.randn(*s, dtype=torch.bfloat16) * 0.2)(E, De).to(float)), 'src': _w(src), 'dst': _w(dst), 'w_rad': _w((lambda *s: torch.randn(*s, dtype=torch.bfloat16) * 0.2)(De, 5 * C).to(float)), 'w_si0': _w((lambda *s: torch.randn(*s, dtype=torch.bfloat16) * 0.2)(2 * C, C).to(float)), 'w_si1': _w((lambda *s: torch.randn(*s, dtype=torch.bfloat16) * 0.05)(3 * C, C).to(float)), 'cg_eps': _w(eps)}

def reference(x, rhat, e_attr, src, dst, w_rad, w_si0, w_si1, cg_eps):
    N = x.shape[0]
    C = w_si0.shape[1]
    E = rhat.shape[0]
    x0 = x[:, :C].clone()
    x1 = x[:, C:].reshape(N, 3, C)
    R = (e_attr @ w_rad).reshape(E, 5, C)
    f0 = x0[src]
    f1 = x1[src]
    Y1 = rhat
    p00_0 = f0 * R[:, 0, :]
    p11_0 = torch.einsum('ejc,ej->ec', f1, Y1) * R[:, 1, :]
    p01_1 = torch.einsum('ec,ej->ejc', f0, Y1) * R[:, 2, :][:, None, :]
    p10_1 = f1 * R[:, 3, :][:, None, :]
    p11_1 = torch.einsum('ijk,ekc,ej->eic', cg_eps, f1, Y1) * R[:, 4, :][:, None, :]
    m0 = torch.concatenate([p00_0, p11_0], axis=-1) @ w_si0
    m1 = torch.einsum('ejp,pc->ejc', torch.concatenate([p01_1, p10_1, p11_1], axis=-1), w_si1)
    agg0 = _segment_sum(m0, dst, N)
    agg1 = _segment_sum(m1.reshape(E, 3 * C), dst, N).reshape(N, 3, C)
    gate = _sigmoid(agg0)
    out1 = agg1 * gate[:, None, :]
    return torch.concatenate([agg0, out1.reshape(N, 3 * C)], axis=-1)
```

```python
import re

TRANS = ("v_exp_f32", "v_log_f32", "v_rcp_f32", "v_rsq_f32", "v_sqrt_f32", "v_sin_f32", "v_cos_f32",
         "v_rcp_iflag_f32")


def _split_ops(s):
    out, depth, cur = [], 0, ""
    for ch in s:
        if ch in "[(":
            depth += 1
        if ch in "])":
            depth -= 1
        if ch == "," and depth == 0:
            out.append(cur.strip())
            cur = ""
        else:
            cur += ch
    if cur.strip():
        out.append(cur.strip())
    return out


_REG = re.compile(r"^-?\|?(?:abs\()?([vsa])(?:(\d+)|\[(\d+):(\d+)\])")


def regs_of(op):
    tok = op.split()[0] if op.split() else ""
    m = _REG.match(tok)
    if m:
        k = m.group(1)
        if m.group(2) is not None:
            return {k + m.group(2)}
        return {k + str(i) for i in range(int(m.group(3)), int(m.group(4)) + 1)}
    t = tok.lstrip("-")
    if t in ("vcc", "vcc_lo", "vcc_hi"):
        return {"vcc"}
    if t in ("exec", "exec_lo", "exec_hi"):
        return {"exec"}
    if t == "m0":
        return {"m0"}
    return set()


class Ins:
    def __init__(self, text):
        self.text = text
        t = text.split(";")[0].strip()
        self.label = None
        self.op = None
        self.defs, self.uses = set(), set()
        self.kind = None
        self.target = None
        self.mA = self.mB = self.mC = set()
        self.dpp = False
        self.ldsdma = False
        self.widestore = set()
        self.lanesel = set()
        self.ws = 1
        if not t or t.startswith("."):
            self.ws = 0
            return
        if t.endswith(":"):
            self.label = t[:-1]
            self.ws = 0
            return
        parts = t.split(None, 1)
        op = self.op = parts[0]
        ops = _split_ops(parts[1]) if len(parts) > 1 else []
        R = [regs_of(o) for o in ops]
        allr = lambda lst: set().union(*lst) if lst else set()
        if op == "s_nop":
            self.kind = "nop"
            self.ws = int(ops[0], 0) + 1
        elif op.startswith("v_mfma"):
            self.kind = "mfma"
            self.defs = R[0]
            self.mA, self.mB, self.mC = R[1], R[2], R[3]
            self.uses = R[1] | R[2] | R[3]
        elif op.startswith("v_"):
            self.kind = "valu"
            self.dpp = "_dpp" in op
            if op.startswith("v_cmp"):
                self.defs = R[0]
                self.uses = allr(R[1:])
            elif op in ("v_readlane_b32", "v_readfirstlane_b32"):
                self.defs = R[0]
                self.uses = allr(R[1:])
                if len(R) > 2:
                    self.lanesel = R[2]
            elif op.startswith(("v_add_co", "v_sub_co", "v_addc_co", "v_subb_co", "v_subrev_co")):
                self.defs = R[0] | R[1]
                self.uses = allr(R[2:])
            elif op.startswith("v_swap"):
                self.defs = R[0] | R[1]
                self.uses = R[0] | R[1]
            else:
                self.defs = R[0]
                self.uses = allr(R[1:])
                if op.startswith(("v_fmac", "v_dot2c", "v_writelane")) or self.dpp:
                    self.uses |= R[0]
                if op.startswith("v_cndmask") and len(ops) == 3:
                    self.uses |= {"vcc"}
        elif op.startswith("ds_"):
            self.kind = "ds"
            if op.startswith(("ds_read", "ds_bpermute", "ds_permute", "ds_swizzle")) or "_rtn" in op:
                self.defs = R[0]
                self.uses = allr(R[1:])
            else:
                self.uses = allr(R)
        elif op.startswith(("buffer_", "global_")):
            self.kind = "vmem"
            words = t.split()
            self.ldsdma = "lds" in words
            if "load" in op and not self.ldsdma:
                self.defs = R[0]
                self.uses = allr(R[1:])
            else:
                self.uses = allr(R)
                if "store" in op and (op.endswith("x3") or op.endswith("x4")):
                    self.widestore = R[0]
            if self.ldsdma:
                self.uses |= {"m0"}
        elif op.startswith("s_"):
            self.kind = "salu"
            if op.startswith(("s_cbranch", "s_branch")):
                self.kind = "branch"
                self.target = ops[0]
            elif op.startswith(("s_cmp", "s_bitcmp", "s_waitcnt", "s_barrier", "s_endpgm", "s_setprio",
                                "s_set_gpr_idx_off", "s_sleep")):
                self.uses = allr(R)
            elif op == "s_set_gpr_idx_on":
                self.uses = allr(R)
                self.defs = {"m0"}
            elif "saveexec" in op:
                self.defs = R[0] | {"exec"}
                self.uses = allr(R[1:])
            else:
                self.defs = R[0] if R else set()
                self.uses = allr(R[1:])
        else:
            raise ValueError("cannot parse: " + text)


def _isv(s):
    return {r for r in s if r[0] == "v" and r != "vcc"}


def _iss(s):
    return {r for r in s if r[0] == "s" or r == "vcc"}


def need(p, c):
    n = 0
    if p.kind == "valu":
        pv, ps = _isv(p.defs), _iss(p.defs)
        if c.kind == "valu":
            if c.dpp and pv & c.uses:
                n = max(n, 2)
            if c.op in ("v_readlane_b32", "v_readfirstlane_b32") and pv & c.uses:
                n = max(n, 1)
            if c.op.startswith("v_permlane") and pv & (c.uses | c.defs):
                n = max(n, 2)
            if ps & c.uses:
                n = max(n, 2)
            if ps & c.lanesel:
                n = max(n, 4)
            if p.op.startswith(TRANS) and pv & c.uses:
                n = max(n, 1)
            if "exec" in p.defs:
                n = max(n, 5)
        if c.kind == "mfma" and pv & c.uses:
            n = max(n, 2)
        if c.kind == "vmem" and ps & c.uses:
            n = max(n, 5)
        if c.kind in ("salu", "branch") and ps & c.uses:
            n = max(n, 1)
    if p.kind == "mfma":
        if c.kind == "mfma":
            if p.defs & (c.mA | c.mB):
                n = max(n, 8)
            if p.defs & c.mC and p.defs != c.mC:
                n = max(n, 6)
            if p.defs & c.defs and p.defs != c.mC:
                n = max(n, 8)
        elif c.kind in ("valu", "ds", "vmem"):
            if p.defs & (c.uses | c.defs):
                n = max(n, 8)
            if c.kind == "valu" and p.mC & c.defs:
                n = max(n, 3)
    if p.kind == "salu" and "m0" in p.defs and c.ldsdma:
        n = max(n, 1)
    if p.widestore and c.kind in ("valu", "mfma") and p.widestore & c.defs:
        n = max(n, 2)
    if p.widestore and c.kind in ("ds", "vmem") and p.widestore & c.defs:
        n = max(n, 1)
    return n


MAXWS = 8


def fix_hazards(lines):
    ins = [Ins(l) for l in lines]
    inserted = 0
    while True:
        labels = {x.label: i for i, x in enumerate(ins) if x.label}
        jumps = {}
        for i, x in enumerate(ins):
            if x.target in labels:
                jumps.setdefault(labels[x.target], []).append(i)

        def preds(i):
            out = []
            if i > 0 and ins[i - 1].op not in ("s_branch", "s_endpgm"):
                out.append(i - 1)
            out += jumps.get(i, [])
            return out

        changed = False
        for i, c in enumerate(ins):
            if c.kind in (None, "nop"):
                continue
            worst = 0
            stack = [(j, 0) for j in preds(i)]
            seen = {}
            while stack:
                j, d = stack.pop()
                if d >= MAXWS or seen.get(j, 99) <= d:
                    continue
                seen[j] = d
                p = ins[j]
                if p.kind:
                    worst = max(worst, need(p, c) - d)
                for k in preds(j):
                    stack.append((k, d + p.ws))
            if worst > 0:
                ins.insert(i, Ins("    s_nop %d" % (worst - 1)))
                inserted += 1
                changed = True
                break
        if not changed:
            break
    return [x.text for x in ins], inserted


class Asm:
    def __init__(self):
        self.lines = []

    def __call__(self, text):
        for l in text.split("\n"):
            l = l.strip()
            if not l:
                continue
            if l.endswith(":") or l.startswith("."):
                self.lines.append(l)
            else:
                self.lines.append("    " + l)

    def label(self, name):
        self.lines.append(name + ":")

    def comment(self, c):
        self.lines.append("    ; " + c)

    def finish(self):
        return fix_hazards(self.lines)


def vr(base, n=1):
    return "v%d" % base if n == 1 else "v[%d:%d]" % (base, base + n - 1)


def sr(base, n=1):
    return "s%d" % base if n == 1 else "s[%d:%d]" % (base, base + n - 1)
```

```python
import os
import sys

sys.path.insert(0, os.path.dirname(os.path.abspath(__file__)))
from asmlib import Asm, vr, sr

NAME = "gather_scatter__tensor_product_equiv_equiformer__graph"
N, E = 12500, 800000
CHUNK, W = 3200, 250
NPB = 49
NBIN = 256

WS_TAB = 0
WS_WTAB = 0x40000
WS_WSI = 0x48000
WS_META = 0x100000
WS_XP = 0xB00000
WS_EP = 0x1200000
WS_P = 0x2B00000
P_NODE = 784
P_HALF = NPB * P_NODE
P_WG = 0x13000
WS_ACC = 0x4000000
XHALF = N * 256

OPT = dict(a.split("=") for a in sys.argv[2:] if "=" in a)


def opt(name, default):
    return type(default)(OPT.get(name, default))


def srd(a, d, b, off, size):
    a(f"s_add_u32 s{d}, s{b}, {off}")
    a(f"s_addc_u32 s{d+1}, s{b+1}, 0")
    a(f"s_mov_b32 s{d+2}, {size}")
    a(f"s_mov_b32 s{d+3}, 0x20000")


def scan64(a, v):
    for sh in (1, 2, 4, 8):
        a(f"v_add_u32_dpp v{v}, v{v}, v{v} row_shr:{sh} row_mask:0xf bank_mask:0xf bound_ctrl:1")
    a(f"v_add_u32_dpp v{v}, v{v}, v{v} row_bcast:15 row_mask:0xa bank_mask:0xf")
    a(f"v_add_u32_dpp v{v}, v{v}, v{v} row_bcast:31 row_mask:0xc bank_mask:0xf")


K1_ERAW = 0
K1_MS = 102400
K1_INV = K1_MS + 38400
K1_HIST = K1_INV + 6400
K1_LDS = 152 * 1024


def kernel1():
    a = Asm()
    NT = " nt" if opt("k1nt", 1) else ""
    ST = {0: "", 1: " nt", 2: " sc1"}[opt("k1st", 0)]
    a("s_cmp_ge_u32 s2, 255")
    a("s_cbranch_scc1 K1_end")
    a("s_load_dwordx8 s[4:11], s[0:1], 0")
    a("s_load_dwordx8 s[52:59], s[0:1], 32")
    a("s_load_dwordx2 s[14:15], s[0:1], 88")
    a("v_lshlrev_b32 v1, 4, v0")
    a("v_mul_u32_u24 v2, 24, v0")
    a("v_and_b32 v3, 63, v0")
    a("v_lshlrev_b32 v3, 4, v3")
    a("v_lshrrev_b32 v40, 6, v0")
    a("v_readfirstlane_b32 s3, v40")
    a("s_cmp_ge_u32 s2, 250")
    a("s_cbranch_scc1 K1_prep")
    a("s_mul_i32 s60, s2, 12800")
    a("s_mul_i32 s61, s2, 19200")
    a("s_mul_i32 s62, s2, 25600")
    a("s_mul_i32 s63, s2, 102400")
    a("s_mul_i32 s64, s2, 38400")
    a("s_lshl_b32 s65, s2, 10")
    a("s_waitcnt lgkmcnt(0)")
    srd(a, 16, 52, "s60", 12800)
    a(f"buffer_load_dwordx4 v[4:7], v1, s[16:19], 0 offen{NT}")
    srd(a, 20, 10, "s60", 12800)
    a(f"buffer_load_dwordx4 v[8:11], v1, s[20:23], 0 offen{NT}")
    srd(a, 24, 6, "s61", 19200)
    a(f"buffer_load_dwordx4 v[12:15], v2, s[24:27], 0 offen{NT}")
    a(f"buffer_load_dwordx2 v[16:17], v2, s[24:27], 0 offen offset:16{NT}")
    srd(a, 28, 4, "s62", 25600)
    a("s_mov_b32 s66, 16384")
    a(f"buffer_load_dwordx4 v[20:23], v1, s[28:31], 0 offen{NT}")
    a(f"buffer_load_dwordx4 v[24:27], v1, s[28:31], s66 offen{NT}")
    srd(a, 32, 8, "s63", 102400)
    a("s_lshl_b32 s67, s3, 10")
    for k in range(6):
        a("s_mov_b32 m0, s67")
        a(f"buffer_load_dwordx4 v3, s[32:35], s67 offen{NT} lds")
        a("s_add_u32 s67, s67, 16384")
    a("s_cmp_ge_u32 s3, 4")
    a("s_cbranch_scc1 K1_noe7")
    a("s_mov_b32 m0, s67")
    a(f"buffer_load_dwordx4 v3, s[32:35], s67 offen{NT} lds")
    a.label("K1_noe7")
    a("v_lshlrev_b32 v41, 2, v0")
    a("v_mov_b32 v42, 0")
    a("s_cbranch_scc1 K1_nozero")
    a(f"v_add_u32 v41, {K1_HIST}, v41")
    a("ds_write_b32 v41, v42")
    a.label("K1_nozero")
    a("s_add_u32 s68, s64, %d" % WS_META)
    srd(a, 36, 14, "s68", 38400)
    a("s_add_u32 s68, s63, %d" % WS_EP)
    srd(a, 40, 14, "s68", 102400)
    srd(a, 44, 14, WS_XP, 2 * XHALF)
    srd(a, 48, 14, "s65", 1024)
    a("v_cmp_gt_u32 vcc, 800, v0")
    a("s_mov_b64 s[70:71], vcc")
    a("v_mov_b32 v43, 1")
    a("s_waitcnt lgkmcnt(0)")
    a("s_barrier")
    a("s_waitcnt vmcnt(11)")
    a("s_mov_b64 exec, s[70:71]")
    a("s_cbranch_execz K1_skip_rank")
    for i in range(4):
        a(f"v_mul_u32_u24 v{28+i}, 21400, v{4+i}")
        a(f"v_lshrrev_b32 v{28+i}, 20, v{28+i}")
        a(f"v_mul_u32_u24 v{36+i}, 49, v{28+i}")
        a(f"v_sub_u32 v{36+i}, v{4+i}, v{36+i}")
        a(f"v_lshlrev_b32 v{28+i}, 2, v{28+i}")
        a(f"v_add_u32 v{28+i}, {K1_HIST}, v{28+i}")
        a(f"ds_add_rtn_u32 v{32+i}, v{28+i}, v43")
    a.label("K1_skip_rank")
    a("s_mov_b64 exec, -1")
    a("s_waitcnt lgkmcnt(0)")
    a("s_barrier")
    a("s_cmp_lg_u32 s3, 0")
    a("s_cbranch_scc1 K1_noscan")
    a(f"v_add_u32 v41, {K1_HIST}, v3")
    a("ds_read_b128 v[44:47], v41")
    a("s_waitcnt lgkmcnt(0)")
    a("v_add_u32 v49, v44, v45")
    a("v_add_u32 v50, v49, v46")
    a("v_add_u32 v51, v50, v47")
    a("v_mov_b32 v52, v51")
    scan64(a, 52)
    a("v_sub_u32 v52, v52, v51")
    a("v_add_u32 v53, v52, v44")
    a("v_add_u32 v54, v52, v49")
    a("v_add_u32 v55, v52, v50")
    a("ds_write_b128 v41, v[52:55]")
    for i in range(4):
        a(f"v_lshl_or_b32 v{56+i}, v{44+i}, 16, v{52+i}")
    a("buffer_store_dwordx4 v[56:59], v3, s[48:51], 0 offen")
    a("s_waitcnt lgkmcnt(0)")
    a.label("K1_noscan")
    a("v_lshrrev_b32 v60, 5, v0")
    a("s_mul_i32 s69, s2, 50")
    a("v_add_u32 v60, s69, v60")
    a("v_lshlrev_b32 v60, 8, v60")
    a("v_bfe_u32 v61, v0, 3, 2")
    a("v_lshl_add_u32 v60, v61, 6, v60")
    a("v_and_b32 v61, 3, v0")
    a("v_lshl_add_u32 v60, v61, 4, v60")
    a("v_bfe_u32 v61, v0, 2, 1")
    a(f"v_mul_u32_u24 v61, {XHALF}, v61")
    a("v_add_u32 v60, v60, v61")
    a("v_add_u32 v61, 8192, v60")
    a("v_cmp_gt_u32 vcc, 576, v0")
    a("v_mov_b32 v62, 0x80000000")
    a("v_cndmask_b32 v61, v62, v61, vcc")
    a("s_barrier")
    a("s_mov_b64 exec, s[70:71]")
    a("s_cbranch_execz K1_skip_scatter")
    for i in range(4):
        a(f"ds_read_b32 v{28+i}, v{28+i}")
    a("s_waitcnt vmcnt(8)")
    a("s_mov_b32 s72, 0x80000000")
    a("s_mov_b32 s73, 0xffff0000")
    for i in range(4):
        a(f"v_lshl_or_b32 v{8+i}, v{8+i}, 8, v{36+i}")
        a(f"v_or_b32 v{8+i}, s72, v{8+i}")
    a("v_lshlrev_b32 v44, 16, v13")
    a("v_alignbit_b32 v45, v14, v13, 16")
    a("v_and_b32 v46, s73, v14")
    a("v_lshlrev_b32 v47, 16, v16")
    a("v_alignbit_b32 v48, v17, v16, 16")
    a("v_and_b32 v49, s73, v17")
    w1 = [12, 45, 15, 48]
    w2 = [44, 46, 47, 49]
    a("v_lshlrev_b32 v50, 2, v0")
    a("s_waitcnt lgkmcnt(0)")
    for i in range(4):
        a(f"v_add_u32 v{32+i}, v{32+i}, v{28+i}")
        a(f"v_mul_u32_u24 v{28+i}, 12, v{32+i}")
        a(f"v_add_u32 v{28+i}, {K1_MS}, v{28+i}")
        a(f"ds_write2_b32 v{28+i}, v{8+i}, v{w1[i]} offset0:0 offset1:1")
        a(f"ds_write_b32 v{28+i}, v{w2[i]} offset:8")
        a(f"v_lshlrev_b32 v{32+i}, 1, v{32+i}")
        a(f"v_add_u32 v{32+i}, {K1_INV}, v{32+i}")
        a(f"v_add_u32 v{52+i}, {i}, v50")
        a(f"ds_write_b16 v{32+i}, v{52+i}")
    a.label("K1_skip_scatter")
    a("s_mov_b64 exec, -1")
    a("s_waitcnt vmcnt(6)")
    a(f"buffer_store_dwordx4 v[20:23], v60, s[44:47], 0 offen{ST}")
    a(f"buffer_store_dwordx4 v[24:27], v61, s[44:47], 0 offen{ST}")
    a("s_waitcnt lgkmcnt(0)")
    a("s_barrier")
    a(f"v_add_u32 v41, {K1_MS}, v1")
    a("ds_read_b128 v[4:7], v41")
    a("ds_read_b128 v[8:11], v41 offset:16384")
    a("ds_read_b128 v[12:15], v41 offset:32768")
    a("v_and_b32 v42, 0x3fe, v0")
    a(f"v_add_u32 v42, {K1_INV}, v42")
    for k in range(7):
        a(f"ds_read_u16 v{28+k}, v42 offset:{1024*k}")
    a("v_and_b32 v43, 1, v0")
    a("v_lshlrev_b32 v43, 4, v43")
    a("s_mov_b32 s74, 32768")
    a("s_waitcnt lgkmcnt(7)")
    a(f"buffer_store_dwordx4 v[4:7], v1, s[36:39], 0 offen{ST}")
    a(f"buffer_store_dwordx4 v[8:11], v1, s[36:39], s66 offen{ST}")
    a(f"buffer_store_dwordx4 v[12:15], v1, s[36:39], s74 offen{ST}")
    a("s_waitcnt lgkmcnt(0)")
    for k in range(7):
        a(f"v_lshl_add_u32 v{28+k}, v{28+k}, 5, v43")
    a("s_waitcnt vmcnt(5)")
    a("s_barrier")
    for k in range(6):
        a(f"ds_read_b128 v[{64+4*k}:{67+4*k}], v{28+k}")
    a("s_mov_b32 s75, 0")
    for k in range(6):
        a(f"s_waitcnt lgkmcnt({5-k})")
        a(f"buffer_store_dwordx4 v[{64+4*k}:{67+4*k}], v1, s[40:43], s75 offen{ST}")
        a("s_add_u32 s75, s75, 16384")
    a("s_cmp_ge_u32 s3, 4")
    a("s_cbranch_scc1 K1_end")
    a("ds_read_b128 v[88:91], v34")
    a("s_waitcnt lgkmcnt(0)")
    a(f"buffer_store_dwordx4 v[88:91], v1, s[40:43], s75 offen{ST}")
    a("s_endpgm")

    a.label("K1_prep")
    a("s_waitcnt lgkmcnt(0)")
    srd(a, 16, 54, 0, 16 * 320 * 2)
    srd(a, 20, 56, 0, 128 * 64 * 2)
    srd(a, 24, 58, 0, 192 * 64 * 2)
    srd(a, 28, 14, WS_WTAB, 20480)
    srd(a, 32, 14, WS_WSI, 40960)
    a("s_sub_u32 s60, s2, 250")
    a("s_lshl_b32 s60, s60, 10")
    a("v_add_u32 v4, s60, v0")
    a("v_and_b32 v5, 3, v4")
    a("v_bfe_u32 v6, v4, 2, 4")
    a("v_bfe_u32 v7, v4, 6, 2")
    a("v_lshrrev_b32 v8, 8, v4")
    a("v_cmp_le_u32 vcc, 10, v8")
    a("v_cndmask_b32 v9, 0, 1, vcc")
    a("v_mul_u32_u24 v10, 10, v9")
    a("v_sub_u32 v10, v8, v10")
    a("v_lshl_add_u32 v11, v7, 2, v5")
    a("v_mul_u32_u24 v11, 320, v11")
    a("v_lshrrev_b32 v12, 1, v10")
    a("v_lshl_add_u32 v11, v12, 6, v11")
    a("v_lshl_add_u32 v11, v9, 5, v11")
    a("v_and_b32 v12, 1, v10")
    a("v_lshl_add_u32 v11, v12, 4, v11")
    a("v_add_u32 v11, v11, v6")
    a("v_lshlrev_b32 v11, 1, v11")
    a("buffer_load_ushort v13, v11, s[16:19], 0 offen")
    a("v_mov_b32 v30, 0x80000000")
    for t in range(2):
        b = 32 + 8 * t
        a(f"v_add_u32 v14, {20*t}, v8")
        a("v_mul_u32_u24 v15, 26, v14")
        a("v_lshrrev_b32 v15, 8, v15")
        a("v_mul_u32_u24 v16, 10, v15")
        a("v_sub_u32 v16, v14, v16")
        a("v_lshrrev_b32 v17, 1, v16")
        a("v_and_b32 v18, 1, v16")
        a("v_lshl_add_u32 v19, v7, 2, v5")
        a("v_lshl_add_u32 v19, v18, 5, v19")
        a("v_lshl_add_u32 v19, v17, 6, v19")
        a("v_lshrrev_b32 v20, 1, v15")
        a("v_and_b32 v21, 1, v15")
        a("v_lshrrev_b32 v22, 2, v6")
        a("v_lshlrev_b32 v22, 3, v22")
        a("v_lshl_add_u32 v22, v20, 5, v22")
        a("v_lshl_add_u32 v22, v21, 2, v22")
        a("v_and_b32 v23, 3, v6")
        a("v_add_u32 v22, v22, v23")
        a("v_lshl_add_u32 v22, v19, 6, v22")
        a("v_lshlrev_b32 v22, 1, v22")
        a("v_subrev_u32 v23, 16384, v22")
        a("v_cmp_gt_u32 vcc, 2, v17")
        a("v_cndmask_b32 v24, v30, v22, vcc")
        a("v_cndmask_b32 v25, v23, v30, vcc")
        a(f"buffer_load_ushort v{b}, v24, s[20:23], 0 offen")
        a(f"buffer_load_ushort v{b+1}, v24, s[20:23], 0 offen offset:2048")
        a(f"buffer_load_ushort v{b+2}, v25, s[24:27], 0 offen")
        a(f"buffer_load_ushort v{b+3}, v25, s[24:27], 0 offen offset:2048")
    a("v_lshlrev_b32 v4, 2, v4")
    a("s_mov_b32 s61, 20480")
    a("s_waitcnt vmcnt(0)")
    a("v_lshlrev_b32 v13, 16, v13")
    a("buffer_store_dword v13, v4, s[28:31], 0 offen")
    for t in range(2):
        b = 32 + 8 * t
        a(f"v_or_b32 v{b}, v{b}, v{b+2}")
        a(f"v_or_b32 v{b+1}, v{b+1}, v{b+3}")
        a(f"v_lshl_or_b32 v{b}, v{b+1}, 16, v{b}")
        a(f"buffer_store_dword v{b}, v4, s[32:35], {'0' if t == 0 else 's61'} offen")
    a.label("K1_end")
    a("s_endpgm")
    return a


CAP = 3392
SLOWCAP = 256
MAXSTEPS = 142
MAXWSTEPS = 20
L_E = 0
L_RING = 32 + CAP * 32
RING_W = 6336
SUBB = 2112
L_SA = L_RING
L_SB = L_SA + MAXSTEPS * 128
L_MISC = L_SB + MAXSTEPS * 256
L_CNT = L_MISC
L_FLAG = L_MISC + 256
L_WSUM = L_MISC + 272
K2_LDS = 163840
assert L_WSUM + 16 <= K2_LDS and L_RING + 8 * RING_W <= L_MISC

ACC = 0
WR = 88
B0 = 128
B1 = 144
GS, G0, G1, G2, N0, N2 = 160, 164, 168, 172, 176, 180
SEL = 184
M0R = 188
MBR = 198
W1C, W2C = 218, 219
Y = 220
REP = 223
XA = 224
XOFF, QQ8, BAE, BAO, POFF, NST = 228, 229, 230, 231, 232, 233
T0 = 234
TID, LANE = 243, 244
NVGPR = 248

S_WAVE = 3
R_XP, R_EP, R_MT, R_TB, R_P, R_W, R_OUT, R_ACC = 4, 8, 12, 16, 20, 24, 28, 32
S_NN, S_T, S_R0, S_LEN, S_CAP = 36, 37, 38, 39, 40
S_NODE0, S_NNW, S_STEP0, S_NS = 41, 42, 43, 44
S_STEP, S_REM, S_NODE, S_PHASE, S_TAB0, S_TAB1, S_RB, S_POFF, S_D = 45, 46, 47, 48, 49, 50, 51, 52, 53
S_MASK = 64
S_LAST = 78
S_NEND = 79

TPATH = [0, 1, 2, 2, 2, 3, 3, 3, 4, 4, 4]
P0, P1 = 0, 1
P2 = [2, 3, 4]
P3 = [5, 6, 7]
P4 = [8, 9, 10]


def acc(t, cq):
    return ACC + 4 * (2 * t + cq)


def mfma_list(bp):
    B = B0 if bp == 0 else B1
    out = []
    if bp == 0:
        for cq in range(2):
            out.append((P0, cq, GS, B + 4 * cq, True))
        for cq in range(2):
            out.append((P3[0], cq, GS, B + 8 + 4 * cq, True))
        for j, g in enumerate((G0, G1, G2)):
            for cq in range(2):
                out.append((P2[j], cq, g, B + 4 * cq, True))
        for t, g in ((P1, G0), (P4[2], G1), (P4[1], G2)):
            for cq in range(2):
                out.append((t, cq, g, B + 8 + 4 * cq, True))
    else:
        for cq in range(2):
            out.append((P3[1], cq, GS, B + 4 * cq, True))
        for cq in range(2):
            out.append((P3[2], cq, GS, B + 8 + 4 * cq, True))
        for t, g, off, fl in ((P4[0], N2, 0, True), (P1, G1, 0, False), (P4[2], N0, 0, False),
                              (P4[0], G1, 8, False), (P1, G2, 8, False), (P4[1], N0, 8, False)):
            for cq in range(2):
                out.append((t, cq, g, B + off + 4 * cq, fl))
    return out


def emit_mfma(a, m, first):
    t, cq, A, B, fl = m
    d = vr(acc(t, cq), 4)
    c = "0" if (first and fl) else d
    a(f"v_mfma_f32_16x16x32_bf16 {d}, {vr(A,4)}, {vr(B,4)}, {c}")


def b_reads(a, k, pos):
    B = B0 if k < 2 else B1
    hf = k & 1
    for u in range(4):
        ad = BAE if u % 2 == 0 else BAO
        a(f"ds_read_b64_tr_b16 {vr(B + 4*u + 2*hf, 2)}, v{ad} offset:{pos*SUBB + u*32}")


def dma(a, k, pos):
    hf, bp = k & 1, k >> 1
    so = S_TAB0 if bp == 0 else S_TAB1
    for s in range(2):
        a(f"s_add_u32 m0, s{S_RB}, {pos*SUBB + s*1088}")
        a(f"buffer_load_dwordx4 v{XA + 2*hf + s}, s[{R_XP}:{R_XP+3}], s{so} offen lds")


def dma_addresses(a, tag):
    a(f"s_lshr_b32 s54, s{S_D}, 1")
    a("s_set_gpr_idx_on s54, gpr_idx(SRC0)")
    a(f"v_mov_b32 v{REP}, v{M0R}")
    a("s_set_gpr_idx_off")
    a(f"s_bitcmp1_b32 s{S_D}, 0")
    a(f"s_cbranch_scc1 {tag}_odd")
    a(f"v_mov_b32_dpp v{REP}, v{REP} row_shr:4 row_mask:0xf bank_mask:0xa")
    a(f"s_branch {tag}_done")
    a.label(f"{tag}_odd")
    a(f"v_mov_b32_dpp v{REP}, v{REP} row_shl:4 row_mask:0xf bank_mask:0x5")
    a.label(f"{tag}_done")


def dma_addresses2(a):
    for q in range(4):
        a(f"v_add_u32_dpp v{XA+q}, v{REP}, v{XOFF} quad_perm:[{q},{q},{q},{q}] row_mask:0xf bank_mask:0xf")


def meta_fetch(a, tag, sreg):
    a(f"s_bitcmp1_b32 s{sreg}, 0")
    a(f"s_cbranch_scc1 {tag}_odd")
    a(f"s_set_gpr_idx_on s{sreg}, gpr_idx(SRC0)")
    a(f"v_mov_b32 v{W1C}, v{MBR}")
    a(f"v_mov_b32 v{W2C}, v{MBR+1}")
    a("s_set_gpr_idx_off")
    a(f"s_branch {tag}_done")
    a.label(f"{tag}_odd")
    a(f"v_mov_b32_dpp v{W1C}, v{W1C} quad_perm:[2,3,2,3] row_mask:0xf bank_mask:0xf")
    a(f"v_mov_b32_dpp v{W2C}, v{W2C} quad_perm:[2,3,2,3] row_mask:0xf bank_mask:0xf")
    a.label(f"{tag}_done")


def meta_unpack(a):
    return [
        f"v_lshlrev_b32_sdwa v{T0+5}, 3, v{W2C} dst_sel:DWORD dst_unused:UNUSED_PAD src0_sel:DWORD src1_sel:WORD_0",
        f"v_lshlrev_b32 v{Y}, 16, v{W1C}",
        f"v_and_b32 v{Y+1}, 0xffff0000, v{W1C}",
        f"v_add_u32_dpp v{T0+6}, v{T0+5}, v{QQ8} quad_perm:[0,0,0,0] row_mask:0xf bank_mask:0xf",
        f"v_add_u32_dpp v{T0+7}, v{T0+5}, v{QQ8} quad_perm:[1,1,1,1] row_mask:0xf bank_mask:0xf",
        f"v_and_b32 v{Y+2}, 0xffff0000, v{W2C}",
    ]


def e_reads(a):
    a(f"ds_read_b64_tr_b16 {vr(GS,2)}, v{T0+6}")
    a(f"ds_read_b64_tr_b16 {vr(GS+2,2)}, v{T0+7}")


def gbuild(aa):
    hf, rl = aa >> 1, 2 * (aa & 1)
    lo, hi = T0, T0 + 1
    out = [f"v_lshlrev_b32 v{lo}, 16, v{GS+aa}", f"v_and_b32 v{hi}, 0xffff0000, v{GS+aa}"]
    for j, (g, ng) in enumerate(((G0, N0), (G1, None), (G2, N2))):
        pl, ph = (T0 + 2, T0 + 3) if j % 2 == 0 else (T0 + 4, T0 + 8)
        out.append(f"v_mul_f32_dpp v{pl}, v{Y+j}, v{lo} row_newbcast:{4*rl+hf} row_mask:0xf bank_mask:0xf")
        out.append(f"v_mul_f32_dpp v{ph}, v{Y+j}, v{hi} row_newbcast:{4*(rl+1)+hf} row_mask:0xf bank_mask:0xf")
        out.append(f"v_cvt_pk_bf16_f32 v{g+aa}, v{pl}, v{ph}")
        if ng is not None:
            out.append(f"v_cvt_pk_bf16_f32 v{ng+aa}, -v{pl}, -v{ph}")
    return out


def step_body(a, rho, first):
    tag = f"S{rho}{'f' if first else 'n'}"
    x = 3 if first else 0
    p = lambda k: (rho + k) % 3
    a.label(tag)
    a(f"s_add_u32 s{S_D}, s{S_STEP}, 1")
    a(f"s_cmp_lt_u32 s{S_D}, s{S_NS}")
    a(f"s_cbranch_scc1 {tag}_nowrap")
    a(f"s_mov_b32 s{S_D}, 0")
    a(f"s_add_u32 s{S_TAB0}, s{S_TAB0}, {XHALF}")
    a(f"s_add_u32 s{S_TAB1}, s{S_TAB1}, {XHALF}")
    a.label(f"{tag}_nowrap")
    dma_addresses(a, tag + "_a")
    for l in gbuild(0)[:2]:
        a(l)
    dma_addresses2(a)
    for l in gbuild(0)[2:] + gbuild(1):
        a(l)
    a(f"s_waitcnt vmcnt({4+x})")
    b_reads(a, 1, p(1))
    for l in gbuild(2) + gbuild(3):
        a(l)
    a("s_waitcnt lgkmcnt(0)")
    dma(a, 0, p(1))
    a(f"s_waitcnt vmcnt({4+x})")
    b_reads(a, 2, p(2))
    m0, m1 = mfma_list(0), mfma_list(1)
    for m in m0[:8]:
        emit_mfma(a, m, first)
    a("s_waitcnt lgkmcnt(0)")
    dma(a, 1, p(2))
    a(f"s_waitcnt vmcnt({4+x})")
    b_reads(a, 3, p(0))
    meta_fetch(a, tag + "_m", S_D)
    up = meta_unpack(a)
    for i, m in enumerate(m0[8:]):
        emit_mfma(a, m, first)
        if i < len(up):
            a(up[i])
    a("s_waitcnt lgkmcnt(0)")
    dma(a, 2, p(0))
    for m in m1[:8]:
        emit_mfma(a, m, first)
    a("s_waitcnt vmcnt(4)")
    b_reads(a, 0, p(1))
    e_reads(a)
    for m in m1[8:]:
        emit_mfma(a, m, first)
    a("s_waitcnt lgkmcnt(0)")
    dma(a, 3, p(1))
    a(f"s_mov_b32 s{S_STEP}, s{S_D}")
    a(f"s_sub_u32 s{S_REM}, s{S_REM}, 1")
    a(f"s_cmp_lg_u32 s{S_REM}, 0")
    a(f"s_cbranch_scc1 S{(rho+1)%3}n")
    if first:
        a(f"s_branch EP{(rho+1)%3}")


def epilogue(a, rho):
    a.label(f"EP{rho}")
    order = [P0, P3[0], P2[0], P2[1], P2[2], P3[1], P3[2], P4[0], P1, P4[2], P4[1]]
    for t in order:
        pth = TPATH[t]
        for r in range(4):
            for cq in range(2):
                d, w = acc(t, cq), WR + 4 * (2 * pth + cq)
                if r == 0:
                    a(f"v_mul_f32 v{d}, v{d}, v{w}")
                else:
                    a(f"v_fmac_f32 v{d}, v{d+r}, v{w+r}")
        n = "-" if t == P4[2] else ""
        a(f"v_cvt_pk_bf16_f32 v{B1+t}, {n}v{acc(t,0)}, {n}v{acc(t,1)}")
        if t == P0:
            a(f"v_mov_b32 v{B1+11}, 0")
    for i in (1, 0, 2):
        a(f"v_mfma_f32_16x16x32_bf16 {vr(G0+4*i,4)}, {vr(SEL,4)}, {vr(B1+4*i,4)}, 0")
    a(f"s_mul_i32 s55, s{S_NODE}, {P_NODE}")
    a(f"s_add_u32 s55, s55, s{S_POFF}")
    a(f"s_add_u32 s{S_NODE}, s{S_NODE}, 1")
    a(f"s_cmp_lt_u32 s{S_NODE}, s{S_NEND}")
    a(f"s_cselect_b32 s56, 0, 1")
    a(f"s_cselect_b32 s{S_NODE}, s{S_NODE}, s{S_NODE0}")
    a(f"v_readlane_b32 s{S_REM}, v{NST}, s{S_NODE}")
    for i in (1, 0, 2):
        a(f"v_cvt_pk_bf16_f32 v{T0+i}, v{G0+4*i}, v{G0+4*i+1}")
    for i in (1, 0, 2):
        a(f"buffer_store_dword v{T0+i}, v{POFF}, s[{R_P}:{R_P+3}], s55 offen offset:{256*i}")
    a("s_cmp_eq_u32 s56, 0")
    a(f"s_cbranch_scc1 S{rho}f")
    a(f"s_cmp_lg_u32 s{S_PHASE}, 0")
    a("s_cbranch_scc1 TAIL")
    a(f"s_mov_b32 s{S_PHASE}, 1")
    a(f"s_mov_b32 s{S_POFF}, {P_HALF}")
    a("s_mov_b32 s57, 10240")
    a(f"v_lshlrev_b32 v{T0+4}, 4, v{LANE}")
    for pc in range(10):
        if pc % 4 == 0 and pc:
            a("s_add_u32 s57, s57, 4096")
        a(f"buffer_load_dwordx4 {vr(WR+4*pc,4)}, v{T0+4}, s[{R_W}:{R_W+3}], s57 offen offset:{(pc%4)*1024}")
    a(f"s_branch S{rho}f")


def kernel2():
    a = Asm()
    a("s_cmp_ge_u32 s2, 256")
    a("s_cbranch_scc1 K2_end")
    a("s_load_dwordx2 s[54:55], s[0:1], 72")
    a("s_load_dwordx2 s[56:57], s[0:1], 88")
    a(f"v_mov_b32 v{TID}, v0")
    a(f"v_and_b32 v{LANE}, 63, v0")
    a("v_lshrrev_b32 v1, 6, v0")
    a(f"v_readfirstlane_b32 s{S_WAVE}, v1")
    a("s_cmp_eq_u32 s2, 255")
    a(f"s_cselect_b32 s{S_NN}, {N - 255*NPB}, {NPB}")
    a("s_waitcnt lgkmcnt(0)")
    srd(a, R_TB, 56, WS_TAB, W * 1024)
    srd(a, R_W, 56, WS_WTAB, 0x12000)
    srd(a, R_MT, 56, WS_META, E * 12)
    srd(a, R_EP, 56, WS_EP, E * 32)
    srd(a, R_XP, 56, WS_XP, 2 * XHALF)
    a(f"s_mul_i32 s59, s2, {P_WG}")
    a(f"s_add_u32 s59, s59, {WS_P}")
    srd(a, R_P, 56, "s59", 2 * P_HALF)
    a("s_lshl_b32 s59, s2, 16")
    a(f"s_add_u32 s59, s59, {WS_ACC}")
    srd(a, R_ACC, 56, "s59", 65536)
    a(f"s_mul_i32 s59, s2, {NPB*512}")
    a(f"s_lshl_b32 s60, s{S_NN}, 9")
    srd(a, R_OUT, 54, "s59", "s60")
    a(f"s_mul_i32 s{S_RB}, s{S_WAVE}, {RING_W}")
    a(f"s_add_u32 s{S_RB}, s{S_RB}, {L_RING}")
    a(f"s_mov_b32 s{S_R0}, 0")
    a(f"s_mov_b32 s{S_CAP}, {CAP}")
    L = LANE
    a(f"v_bfe_u32 v3, v{L}, 4, 1")
    a(f"v_and_b32 v4, 7, v{L}")
    a("v_lshlrev_b32 v5, 1, v3")
    a("v_xor_b32 v4, v4, v5")
    a("v_lshlrev_b32 v4, 4, v4")
    a(f"v_or_b32 v{XOFF}, 0x80000000, v4")
    a(f"v_and_b32 v4, 3, v{L}")
    a(f"v_lshlrev_b32 v{QQ8}, 3, v4")
    a(f"v_bfe_u32 v5, v{L}, 3, 1")
    a("v_mul_u32_u24 v5, 1088, v5")
    a(f"v_lshrrev_b32 v6, 4, v{L}")
    a("v_lshl_add_u32 v5, v6, 8, v5")
    a(f"v_bfe_u32 v7, v{L}, 2, 1")
    a("v_lshl_add_u32 v5, v7, 7, v5")
    a(f"v_add_u32 v5, v5, v{QQ8}")
    a(f"v_add_u32 v5, s{S_RB}, v5")
    a("v_lshlrev_b32 v7, 5, v3")
    a(f"v_add_u32 v{BAE}, v5, v7")
    a(f"v_sub_u32 v{BAO}, v5, v7")
    a(f"v_and_b32 v7, 15, v{L}")
    a("v_lshlrev_b32 v8, 2, v7")
    a(f"v_lshl_add_u32 v{POFF}, v6, 6, v8")
    a("v_and_b32 v8, 1, v7")
    a("v_lshlrev_b32 v8, 4, v8")
    a("v_mov_b32 v9, 0x3f80")
    a("v_lshlrev_b32 v8, v8, v9")
    a("v_and_b32 v9, 14, v7")
    for i in range(4):
        a(f"v_cmp_eq_u32 vcc, {4*i}, v9")
        a(f"v_cndmask_b32 v{SEL+i}, 0, v8, vcc")

    a.label("ROUND")
    a(f"v_and_b32 v2, 255, v{TID}")
    a("v_lshlrev_b32 v3, 10, v2")
    a("s_lshl_b32 s58, s2, 2")
    a(f"buffer_load_dword v4, v3, s[{R_TB}:{R_TB+3}], s58 offen")
    a(f"v_lshlrev_b32 v5, 4, v{LANE}")
    a("s_mov_b32 s57, 0")
    for pc in range(10):
        if pc % 4 == 0 and pc:
            a("s_add_u32 s57, s57, 4096")
        a(f"buffer_load_dwordx4 {vr(WR+4*pc,4)}, v5, s[{R_W}:{R_W+3}], s57 offen offset:{(pc%4)*1024}")
    a(f"v_lshlrev_b32 v6, 2, v{TID}")
    a("v_mov_b32 v7, 0")
    a(f"v_add_u32 v8, {L_MISC}, v6")
    a(f"v_cmp_gt_u32 vcc, 68, v{TID}")
    a("s_and_saveexec_b64 s[58:59], vcc")
    a("ds_write_b32 v8, v7")
    a(f"v_cmp_gt_u32 vcc, 8, v{TID}")
    a("s_and_b64 exec, exec, vcc")
    a("ds_write_b32 v6, v7")
    a("s_mov_b64 exec, -1")
    a("s_waitcnt vmcnt(10)")
    a("v_lshrrev_b32 v9, 16, v4")
    a("v_and_b32 v10, 0xffff, v4")
    a("v_mov_b32 v11, v9")
    scan64(a, 11)
    a("v_readlane_b32 s58, v11, 63")
    a(f"s_and_b32 s59, s{S_WAVE}, 3")
    a("s_lshl_b32 s60, s59, 2")
    a(f"s_add_u32 s60, s60, {L_WSUM}")
    a("v_mov_b32 v12, s60")
    a("v_mov_b32 v13, s58")
    a("ds_write_b32 v12, v13")
    a("v_sub_u32 v11, v11, v9")
    a("v_mul_u32_u24 v14, 3200, v2")
    a("v_add_u32 v14, v14, v10")
    a(f"v_lshrrev_b32 v15, 8, v{TID}")
    a("v_add_u32 v14, v14, v15")
    a(f"v_mov_b32 v12, {L_WSUM}")
    a("s_waitcnt lgkmcnt(0)")
    a("s_barrier")
    a("ds_read_b128 v[16:19], v12")
    a("s_waitcnt lgkmcnt(0)")
    for i in range(4):
        a(f"v_readfirstlane_b32 s{60+i}, v{16+i}")
    a("s_add_u32 s61, s61, s60")
    a("s_add_u32 s62, s62, s61")
    a(f"s_add_u32 s{S_T}, s63, s62")
    a("s_cmp_eq_u32 s59, 0")
    a("s_cselect_b32 s58, 0, s60")
    a("s_cmp_eq_u32 s59, 2")
    a("s_cselect_b32 s58, s61, s58")
    a("s_cmp_eq_u32 s59, 3")
    a("s_cselect_b32 s58, s62, s58")
    a(f"s_sub_u32 s{S_LEN}, s{S_T}, s{S_R0}")
    a(f"s_cmp_le_u32 s{S_LEN}, s{S_CAP}")
    a(f"s_cselect_b32 s{S_LAST}, 1, 0")
    a(f"s_min_u32 s{S_LEN}, s{S_LEN}, s{S_CAP}")
    a(f"s_sub_u32 s58, s58, s{S_R0}")
    a("v_add_u32 v11, s58, v11")
    a("v_add_u32 v11, v11, v15")
    a(f"v_lshl_add_u32 v12, v11, 2, v7")
    a(f"v_add_u32 v12, {L_SA}, v12")
    a.label("MAPL")
    a("v_cmp_lt_u32 vcc, v15, v9")
    a("s_and_b64 exec, exec, vcc")
    a("s_cbranch_execz MAPD")
    a(f"v_cmp_gt_u32 vcc, s{S_LEN}, v11")
    a("s_and_saveexec_b64 s[58:59], vcc")
    a("ds_write_b32 v12, v14")
    a("s_mov_b64 exec, s[58:59]")
    a("v_add_u32 v15, 2, v15")
    a("v_add_u32 v11, 2, v11")
    a("v_add_u32 v14, 2, v14")
    a("v_add_u32 v12, 8, v12")
    a("s_branch MAPL")
    a.label("MAPD")
    a("s_mov_b64 exec, -1")
    a(f"v_add_u32 v12, {L_SA}, v6")
    a(f"v_lshrrev_b32 v13, 1, v{LANE}")
    a(f"s_lshl_b32 s58, s{S_WAVE}, 5")
    a("v_add_u32 v13, s58, v13")
    a(f"v_lshl_add_u32 v14, v13, 2, v7")
    a(f"v_add_u32 v14, {L_SA}, v14")
    a(f"v_and_b32 v15, 1, v{LANE}")
    a("v_lshlrev_b32 v15, 4, v15")
    a("v_mov_b32 v16, 0x80000000")
    a("s_waitcnt lgkmcnt(0)")
    a("s_barrier")
    for k in range(7):
        a(f"ds_read_b32 v{20+k}, v12 offset:{2048*k}")
    for k in range(14):
        a(f"ds_read_b32 v{28+k}, v14 offset:{1024*k}")
    MREC = 44
    for k in range(7):
        a(f"v_add_u32 v17, {512*k}, v{TID}")
        a(f"v_cmp_gt_u32 s[{S_MASK+2*k}:{S_MASK+2*k+1}], s{S_LEN}, v17")
        a(f"s_waitcnt lgkmcnt({min(15, 20-k)})")
        a(f"v_mul_u32_u24 v{20+k}, 12, v{20+k}")
        a(f"v_cndmask_b32 v{20+k}, v16, v{20+k}, s[{S_MASK+2*k}:{S_MASK+2*k+1}]")
    for k in range(7):
        a(f"buffer_load_dwordx3 {vr(MREC+4*k,3)}, v{20+k}, s[{R_MT}:{R_MT+3}], 0 offen")
    a("s_waitcnt lgkmcnt(0)")
    a(f"s_lshl_b32 s58, s{S_WAVE}, 10")
    a(f"s_add_u32 s58, s58, {L_E + 32}")
    for k in range(14):
        if k == 13:
            a(f"s_cmp_ge_u32 s{S_WAVE}, 2")
            a("s_cbranch_scc1 NOE14")
        a(f"v_cmp_gt_u32 vcc, s{S_LEN}, v13")
        a(f"v_lshl_add_u32 v{28+k}, v{28+k}, 5, v15")
        a("v_add_u32 v13, 256, v13")
        a(f"v_cndmask_b32 v{28+k}, v16, v{28+k}, vcc")
        a("s_mov_b32 m0, s58")
        a("s_add_u32 s58, s58, 8192")
        a(f"buffer_load_dwordx4 v{28+k}, s[{R_EP}:{R_EP+3}], 0 offen lds")
    a.label("NOE14")
    a("v_mov_b32 v17, 1")
    for k in range(7):
        a(f"s_waitcnt vmcnt({13 + 6 - k})")
        a(f"v_and_b32 v{20+k}, 0xff, v{MREC+4*k}")
        a(f"v_lshlrev_b32 v{20+k}, 2, v{20+k}")
        a(f"v_add_u32 v18, {L_CNT}, v{20+k}")
        a(f"s_mov_b64 exec, s[{S_MASK+2*k}:{S_MASK+2*k+1}]")
        a(f"ds_add_rtn_u32 v{MREC+4*k+3}, v18, v17")
        a("s_mov_b64 exec, -1")
    a(f"v_lshlrev_b32 v12, 2, v{LANE}")
    a(f"v_add_u32 v12, {L_CNT}, v12")
    a(f"v_lshlrev_b32 v13, 4, v{TID}")
    a(f"v_add_u32 v13, {L_SA}, v13")
    for i in range(4):
        a(f"v_mov_b32 v{28+i}, 0")
    a("s_waitcnt lgkmcnt(0)")
    a("s_barrier")
    a("ds_read_b32 v14, v12")
    nz = MAXSTEPS * 384 // 16
    for k in range(6):
        a(f"ds_write_b128 v13, v[28:31] offset:{8192*k}")
    a(f"v_cmp_gt_u32 vcc, {nz - 6*512}, v{TID}")
    a("s_mov_b64 exec, vcc")
    a(f"ds_write_b128 v13, v[28:31] offset:{8192*6}")
    a("s_mov_b64 exec, -1")
    a("s_waitcnt lgkmcnt(6)")
    a("v_add_u32 v14, 31, v14")
    a("v_lshrrev_b32 v14, 5, v14")
    a("v_max_u32 v14, 1, v14")
    a(f"v_cmp_gt_u32 vcc, s{S_NN}, v{LANE}")
    a(f"v_cndmask_b32 v{NST}, 0, v14, vcc")
    a("v_mad_u32_u24 v15, v14, 5, 4")
    a("v_cndmask_b32 v15, 0, v15, vcc")
    a(f"v_lshl_or_b32 v18, v15, 16, v{NST}")
    a("v_mov_b32 v19, v18")
    scan64(a, 19)
    a("v_readlane_b32 s58, v19, 63")
    a("v_sub_u32 v18, v19, v18")
    a("v_and_b32 v19, 0xffff, v19")
    a("v_lshrrev_b32 v32, 16, v18")
    a("v_and_b32 v18, 0xffff, v18")
    a("v_lshl_add_u32 v32, v32, 1, v15")
    a("v_lshlrev_b32 v32, 2, v32")
    a("s_lshr_b32 s59, s58, 16")
    a("s_and_b32 s58, s58, 0xffff")
    a(f"s_and_b32 s60, s{S_WAVE}, 3")
    a("s_lshl_b32 s60, s60, 1")
    a(f"s_lshr_b32 s61, s{S_WAVE}, 2")
    a("s_add_u32 s60, s60, s61")
    a("s_mul_i32 s60, s60, s59")
    a("s_add_u32 s61, s60, s59")
    a("v_cmp_le_u32 vcc, s60, v32")
    a("v_cmp_gt_u32 s[62:63], s61, v32")
    a("s_and_b64 vcc, vcc, s[62:63]")
    a(f"s_bcnt1_i32_b64 s{S_NNW}, vcc")
    a(f"s_ff1_i32_b64 s{S_NODE0}, vcc")
    a(f"s_max_i32 s{S_NODE0}, s{S_NODE0}, 0")
    a(f"s_add_u32 s{S_NEND}, s{S_NODE0}, s{S_NNW}")
    a(f"s_sub_u32 s60, s{S_NEND}, 1")
    a("s_max_i32 s60, s60, 0")
    a(f"v_readlane_b32 s{S_STEP0}, v18, s{S_NODE0}")
    a(f"v_readlane_b32 s{S_NS}, v19, s60")
    a(f"s_sub_u32 s{S_NS}, s{S_NS}, s{S_STEP0}")
    a(f"s_cmp_eq_u32 s{S_NNW}, 0")
    a(f"s_cselect_b32 s{S_NS}, 0, s{S_NS}")
    a(f"s_cmp_gt_u32 s{S_NS}, {MAXWSTEPS}")
    a("s_cselect_b32 s60, 1, 0")
    a(f"s_cmp_gt_u32 s58, {MAXSTEPS}")
    a("s_cselect_b32 s60, 1, s60")
    a("s_cmp_eq_u32 s60, 0")
    a("s_cbranch_scc1 NOFAIL")
    a(f"v_mov_b32 v33, {L_FLAG}")
    a("ds_write_b32 v33, v17")
    a.label("NOFAIL")
    for k in range(7):
        a(f"ds_bpermute_b32 v{20+k}, v{20+k}, v18")
    a(f"v_mov_b32 v33, {L_FLAG}")
    a("s_waitcnt lgkmcnt(0)")
    a("s_barrier")
    a("ds_read_b32 v34, v33")
    a(f"v_lshlrev_b32 v35, 2, v{TID}")
    a("v_add_u32 v35, 4, v35")
    for k in range(7):
        r = MREC + 4 * k
        a(f"v_lshl_add_u32 v{20+k}, v{20+k}, 5, v{r+3}")
        a(f"v_and_b32 v{r}, 0xffffff00, v{r}")
        a(f"v_add_u32 v36, {2048*k}, v35")
        a(f"v_or_b32 v{r+3}, v{r+2}, v36")
        a(f"v_mov_b32 v{r+2}, v{r+1}")
        a(f"v_lshlrev_b32 v{r+1}, 3, v{20+k}")
        a(f"v_add_u32 v{r+1}, {L_SB}, v{r+1}")
        a(f"v_lshlrev_b32 v{20+k}, 2, v{20+k}")
        a(f"v_add_u32 v{20+k}, {L_SA}, v{20+k}")
    a("s_waitcnt lgkmcnt(0)")
    a("v_readfirstlane_b32 s60, v34")
    a("s_cmp_eq_u32 s60, 0")
    a("s_cbranch_scc1 SCATTER")
    a(f"s_mov_b32 s{S_CAP}, {SLOWCAP}")
    a("s_waitcnt vmcnt(0)")
    a("s_barrier")
    a("s_branch ROUND")
    a.label("SCATTER")
    for k in range(7):
        r = MREC + 4 * k
        a(f"s_mov_b64 exec, s[{S_MASK+2*k}:{S_MASK+2*k+1}]")
        a(f"ds_write_b32 v{20+k}, v{r}")
        a(f"ds_write_b64 v{r+1}, {vr(r+2,2)}")
    a("s_mov_b64 exec, -1")
    a(f"v_lshrrev_b32 v4, 4, v{LANE}")
    a("v_lshlrev_b32 v4, 3, v4")
    a(f"s_lshl_b32 s58, s{S_STEP0}, 5")
    a("v_add_u32 v4, s58, v4")
    a(f"v_bfe_u32 v5, v{LANE}, 2, 1")
    a("v_lshl_add_u32 v6, v5, 5, v4")
    a(f"v_and_b32 v5, 3, v{LANE}")
    a("v_lshl_add_u32 v6, v5, 1, v6")
    a(f"v_bfe_u32 v5, v{LANE}, 3, 1")
    a("v_add_u32 v6, v6, v5")
    a("v_lshlrev_b32 v6, 2, v6")
    a(f"v_add_u32 v6, {L_SA}, v6")
    a(f"v_bfe_u32 v5, v{LANE}, 1, 1")
    a("v_lshl_add_u32 v8, v5, 5, v4")
    a(f"v_and_b32 v5, 1, v{LANE}")
    a("v_lshl_add_u32 v8, v5, 2, v8")
    a(f"v_bfe_u32 v5, v{LANE}, 2, 2")
    a("v_add_u32 v8, v8, v5")
    a("v_lshlrev_b32 v8, 3, v8")
    a(f"v_add_u32 v8, {L_SB}, v8")
    a("s_waitcnt lgkmcnt(0)")
    a("s_barrier")
    for s in range(10):
        a(f"ds_read_b32 v{M0R+s}, v6 offset:{256*s}")
        a(f"ds_read_b64 {vr(MBR+2*s,2)}, v8 offset:{512*s}")
    a(f"s_mov_b32 s{S_STEP}, 0")
    a(f"s_mov_b32 s{S_D}, 0")
    a(f"s_mov_b32 s{S_PHASE}, 0")
    a(f"s_mov_b32 s{S_POFF}, 0")
    a(f"s_mov_b32 s{S_TAB0}, 0")
    a(f"s_mov_b32 s{S_TAB1}, 128")
    a(f"s_mov_b32 s{S_NODE}, s{S_NODE0}")
    a(f"v_readlane_b32 s{S_REM}, v{NST}, s{S_NODE}")
    a("s_waitcnt vmcnt(0) lgkmcnt(0)")
    a("s_barrier")
    a(f"s_cmp_eq_u32 s{S_NNW}, 0")
    a("s_cbranch_scc1 TAIL")
    dma_addresses(a, "I_a")
    dma_addresses2(a)
    dma(a, 0, 0)
    dma(a, 1, 1)
    dma(a, 2, 2)
    meta_fetch(a, "I_m", S_D)
    for l in meta_unpack(a):
        a(l)
    e_reads(a)
    a("s_waitcnt vmcnt(4)")
    b_reads(a, 0, 0)
    a("v_mov_b32 v0, 0x80000000")
    a("s_waitcnt lgkmcnt(0)")
    dma(a, 3, 0)
    for i in range(3):
        a(f"buffer_store_dword v0, v0, s[{R_P}:{R_P+3}], 0 offen")
    a("s_branch S0f")
    for rho in range(3):
        step_body(a, rho, True)
        step_body(a, rho, False)
        epilogue(a, (rho + 1) % 3)

    a.label("TAIL")
    WF, PF, D = 0, 80, 188
    a(f"v_lshlrev_b32 v{T0}, 4, v{LANE}")
    a(f"s_and_b32 s54, s{S_WAVE}, 1")
    a("s_mul_i32 s55, s54, 20480")
    a(f"s_add_u32 s55, s55, {WS_WSI - WS_WTAB}")
    a("s_waitcnt vmcnt(0)")
    for f in range(20):
        if f % 4 == 0 and f:
            a("s_add_u32 s55, s55, 4096")
        a(f"buffer_load_dwordx4 {vr(WF+4*f,4)}, v{T0}, s[{R_W}:{R_W+3}], s55 offen offset:{(f%4)*1024}")
    a("s_barrier")
    a(f"s_lshl_b32 s55, s{S_WAVE}, 10")
    for k in range(10):
        if k == 9:
            a(f"s_cmp_ge_u32 s{S_WAVE}, 4")
            a("s_cbranch_scc1 NOP10")
        a("s_mov_b32 m0, s55")
        a(f"buffer_load_dwordx4 v{T0}, s[{R_P}:{R_P+3}], s55 offen sc1 lds")
        a("s_add_u32 s55, s55, 8192")
    a.label("NOP10")
    a(f"s_lshl_b32 s55, s{S_WAVE}, 13")
    a(f"s_cmp_eq_u32 s{S_R0}, 0")
    a("s_cbranch_scc1 ZEROD")
    for i in range(8):
        if i == 4:
            a("s_add_u32 s55, s55, 4096")
        a(f"buffer_load_dwordx4 {vr(D+4*i,4)}, v{T0}, s[{R_ACC}:{R_ACC+3}], s55 offen offset:{(i%4)*1024} sc1")
    a("s_branch HAVED")
    a.label("ZEROD")
    for i in range(32):
        a(f"v_mov_b32 v{D+i}, 0")
    a.label("HAVED")
    a(f"v_and_b32 v{T0+1}, 15, v{LANE}")
    a(f"s_lshr_b32 s56, s{S_WAVE}, 1")
    a("s_lshl_b32 s56, s56, 4")
    a(f"v_add_u32 v{T0+1}, s56, v{T0+1}")
    a(f"v_lshrrev_b32 v{T0+2}, 4, v{LANE}")
    a(f"v_lshlrev_b32 v{T0+2}, 4, v{T0+2}")
    a(f"v_mul_u32_u24 v{T0+3}, {P_NODE}, v{T0+1}")
    a(f"v_add_u32 v{T0+3}, v{T0+3}, v{T0+2}")
    a(f"v_lshl_add_u32 v{T0+4}, v{T0+1}, 9, v{T0+2}")
    a("s_lshl_b32 s54, s54, 6")
    a("s_waitcnt vmcnt(0)")
    a("s_barrier")
    seq = []
    for comp, ts in enumerate(([P0, P1], [P2[0], P3[0], P4[0]], [P2[1], P3[1], P4[1]], [P2[2], P3[2], P4[2]])):
        for t in ts:
            for h in range(2):
                seq.append((comp, t, h))
    for i, (comp, t, h) in enumerate(seq):
        a(f"ds_read_b128 {vr(PF+4*i,4)}, v{T0+3} offset:{h*P_HALF + t*64}")
        if i == 14:
            a("s_waitcnt lgkmcnt(7)")
    for i, (comp, t, h) in enumerate(seq):
        if i >= 8:
            a(f"s_waitcnt lgkmcnt({21 - i})")
        for mt in range(2):
            d = vr(D + 8 * comp + 4 * mt, 4)
            a(f"v_mfma_f32_16x16x32_bf16 {d}, {vr(WF + 4*(10*mt + 2*TPATH[t] + h),4)}, {vr(PF+4*i,4)}, {d}")
    a(f"s_cmp_eq_u32 s{S_LAST}, 0")
    a("s_cbranch_scc1 MORE")
    for i in range(8):
        a(f"v_mul_f32 v{i}, 0xbfb8aa3b, v{D+i}")
    for i in range(8):
        a(f"v_exp_f32 v{i}, v{i}")
    for i in range(8):
        a(f"v_add_f32 v{i}, 1.0, v{i}")
    for i in range(8):
        a(f"v_rcp_f32 v{i}, v{i}")
    for comp in range(4):
        if comp:
            for i in range(8):
                a(f"v_mul_f32 v{D+8*comp+i}, v{D+8*comp+i}, v{i}")
        for i in range(4):
            a(f"v_cvt_pk_bf16_f32 v{8+4*comp+i}, v{D+8*comp+2*i}, v{D+8*comp+2*i+1}")
        a(f"buffer_store_dwordx4 {vr(8+4*comp,4)}, v{T0+4}, s[{R_OUT}:{R_OUT+3}], s54 offen offset:{128*comp}")
    a("s_endpgm")
    a.label("MORE")
    a(f"s_lshl_b32 s55, s{S_WAVE}, 13")
    for i in range(8):
        if i == 4:
            a("s_add_u32 s55, s55, 4096")
        a(f"buffer_store_dwordx4 {vr(D+4*i,4)}, v{T0}, s[{R_ACC}:{R_ACC+3}], s55 offen offset:{(i%4)*1024}")
    a(f"s_add_u32 s{S_R0}, s{S_R0}, s{S_LEN}")
    a("s_waitcnt vmcnt(0)")
    a("s_barrier")
    a("s_branch ROUND")
    a.label("K2_end")
    a("s_endpgm")
    return a


def descriptor(name, nv, ns):
    return f""".amdhsa_kernel {name}
  .amdhsa_next_free_vgpr {nv}
  .amdhsa_next_free_sgpr {ns}
  .amdhsa_accum_offset {(nv + 3) // 4 * 4}
  .amdhsa_group_segment_fixed_size 0
  .amdhsa_kernarg_size 96
  .amdhsa_user_sgpr_count 2
  .amdhsa_user_sgpr_kernarg_segment_ptr 1
  .amdhsa_system_sgpr_workgroup_id_x 1
  .amdhsa_float_denorm_mode_32 3
.end_amdhsa_kernel
"""


def main():
    ref = open(os.path.join(os.path.dirname(os.path.abspath(__file__)), "..", "cdna_kernels", NAME + ".s.ref")).read()
    head = [l for l in ref.split("\n") if l.startswith(";") and "@launch" not in l and "Override" not in l
            and "grid=ceil" not in l]
    k1, k2 = "edge_sort_kernel", NAME + "_kernel"
    out = head + [
        f"; @launch kernel={k1} grid=(255,1,1) block=(1024,1,1) lds={K1_LDS}",
        f"; @launch kernel={k2} grid=(256,1,1) block=(512,1,1) lds={K2_LDS}",
        '.amdgcn_target "amdgcn-amd-amdhsa--gfx950"',
        ".text",
    ]
    for name, fn in ((k1, kernel1), (k2, kernel2)):
        lines, nops = fn().finish()
        print(name, "instructions:", len(lines), "nops inserted:", nops, file=sys.stderr)
        out += [f".globl {name}", ".p2align 8", f".type {name},@function", f"{name}:"] + lines
    out += ['.section .rodata,"a"', ".p2align 6", descriptor(k1, 96, 96), ".p2align 6", descriptor(k2, NVGPR, 96)]
    open(sys.argv[1], "w").write("\n".join(out))


if __name__ == "__main__":
    main()
```

```python
import re

TRANS = ("v_exp_f32", "v_log_f32", "v_rcp_f32", "v_rsq_f32", "v_sqrt_f32", "v_sin_f32", "v_cos_f32",
         "v_rcp_iflag_f32")


def _split_ops(s):
    out, depth, cur = [], 0, ""
    for ch in s:
        if ch in "[(":
            depth += 1
        if ch in "])":
            depth -= 1
        if ch == "," and depth == 0:
            out.append(cur.strip())
            cur = ""
        else:
            cur += ch
    if cur.strip():
        out.append(cur.strip())
    return out


_REG = re.compile(r"^-?\|?(?:abs\()?([vsa])(?:(\d+)|\[(\d+):(\d+)\])")


def regs_of(op):
    tok = op.split()[0] if op.split() else ""
    m = _REG.match(tok)
    if m:
        k = m.group(1)
        if m.group(2) is not None:
            return {k + m.group(2)}
        return {k + str(i) for i in range(int(m.group(3)), int(m.group(4)) + 1)}
    t = tok.lstrip("-")
    if t in ("vcc", "vcc_lo", "vcc_hi"):
        return {"vcc"}
    if t in ("exec", "exec_lo", "exec_hi"):
        return {"exec"}
    if t == "m0":
        return {"m0"}
    return set()


class Ins:
    def __init__(self, text):
        self.text = text
        t = text.split(";")[0].strip()
        self.label = None
        self.op = None
        self.defs, self.uses = set(), set()
        self.kind = None
        self.target = None
        self.mA = self.mB = self.mC = set()
        self.dpp = False
        self.dppsrc = set()
        self.ldsdma = False
        self.widestore = set()
        self.lanesel = set()
        self.ws = 1
        if not t or t.startswith("."):
            self.ws = 0
            return
        if t.endswith(":"):
            self.label = t[:-1]
            self.ws = 0
            return
        parts = t.split(None, 1)
        op = self.op = parts[0]
        ops = _split_ops(parts[1]) if len(parts) > 1 else []
        R = [regs_of(o) for o in ops]
        allr = lambda lst: set().union(*lst) if lst else set()
        if op == "s_nop":
            self.kind = "nop"
            self.ws = int(ops[0], 0) + 1
        elif op.startswith("v_mfma"):
            self.kind = "mfma"
            self.defs = R[0]
            self.mA, self.mB, self.mC = R[1], R[2], R[3]
            self.uses = R[1] | R[2] | R[3]
        elif op.startswith("v_"):
            self.kind = "valu"
            self.dpp = "_dpp" in op
            if self.dpp:
                self.dppsrc = R[1]
            if op.startswith("v_cmp"):
                self.defs = R[0]
                self.uses = allr(R[1:])
            elif op in ("v_readlane_b32", "v_readfirstlane_b32"):
                self.defs = R[0]
                self.uses = allr(R[1:])
                if len(R) > 2:
                    self.lanesel = R[2]
            elif op.startswith(("v_add_co", "v_sub_co", "v_addc_co", "v_subb_co", "v_subrev_co")):
                self.defs = R[0] | R[1]
                self.uses = allr(R[2:])
            elif op.startswith("v_swap"):
                self.defs = R[0] | R[1]
                self.uses = R[0] | R[1]
            else:
                self.defs = R[0]
                self.uses = allr(R[1:])
                if op.startswith(("v_fmac", "v_dot2c", "v_writelane")) or self.dpp:
                    self.uses |= R[0]
                if op.startswith("v_cndmask") and len(ops) == 3:
                    self.uses |= {"vcc"}
        elif op.startswith("ds_"):
            self.kind = "ds"
            if op.startswith(("ds_read", "ds_bpermute", "ds_permute", "ds_swizzle")) or "_rtn" in op:
                self.defs = R[0]
                self.uses = allr(R[1:])
            else:
                self.uses = allr(R)
        elif op.startswith(("buffer_", "global_")):
            self.kind = "vmem"
            words = t.split()
            self.ldsdma = "lds" in words
            if "load" in op and not self.ldsdma:
                self.defs = R[0]
                self.uses = allr(R[1:])
            else:
                self.uses = allr(R)
                if "store" in op and (op.endswith("x3") or op.endswith("x4")):
                    self.widestore = R[0]
            if self.ldsdma:
                self.uses |= {"m0"}
        elif op.startswith("s_"):
            self.kind = "salu"
            if op.startswith(("s_cbranch", "s_branch")):
                self.kind = "branch"
                self.target = ops[0]
            elif op.startswith(("s_cmp", "s_bitcmp", "s_waitcnt", "s_barrier", "s_endpgm", "s_setprio",
                                "s_set_gpr_idx_off", "s_sleep")):
                self.uses = allr(R)
            elif op == "s_set_gpr_idx_on":
                self.uses = allr(R)
                self.defs = {"m0"}
            elif "saveexec" in op:
                self.defs = R[0] | {"exec"}
                self.uses = allr(R[1:])
            else:
                self.defs = R[0] if R else set()
                self.uses = allr(R[1:])
        else:
            raise ValueError("cannot parse: " + text)


def _isv(s):
    return {r for r in s if r[0] == "v" and r != "vcc"}


def _iss(s):
    return {r for r in s if r[0] == "s" or r == "vcc"}


def need(p, c):
    n = 0
    if p.kind == "valu":
        pv, ps = _isv(p.defs), _iss(p.defs)
        if c.kind == "valu":
            if c.dpp and pv & c.dppsrc:
                n = max(n, 2)
            if c.op in ("v_readlane_b32", "v_readfirstlane_b32") and pv & c.uses:
                n = max(n, 1)
            if c.op.startswith("v_permlane") and pv & (c.uses | c.defs):
                n = max(n, 2)
            if ps & c.uses:
                n = max(n, 2)
            if ps & c.lanesel:
                n = max(n, 4)
            if p.op.startswith(TRANS) and pv & c.uses:
                n = max(n, 1)
            if "exec" in p.defs:
                n = max(n, 5)
        if c.kind == "mfma" and pv & c.uses:
            n = max(n, 2)
        if c.kind == "vmem" and ps & c.uses:
            n = max(n, 5)
        if c.kind in ("salu", "branch") and ps & c.uses:
            n = max(n, 1)
    if p.kind == "mfma":
        if c.kind == "mfma":
            if p.defs & (c.mA | c.mB):
                n = max(n, 8)
            if p.defs & c.mC and p.defs != c.mC:
                n = max(n, 6)
            if p.defs & c.defs and p.defs != c.mC:
                n = max(n, 8)
        elif c.kind in ("valu", "ds", "vmem"):
            if p.defs & (c.uses | c.defs):
                n = max(n, 8)
            if c.kind == "valu" and p.mC & c.defs:
                n = max(n, 3)
    if p.kind == "salu" and "m0" in p.defs and (c.ldsdma or (c.kind == "valu" and "m0" in c.uses)):
        n = max(n, 1)
    if p.widestore and c.kind in ("valu", "mfma") and p.widestore & c.defs:
        n = max(n, 2)
    if p.widestore and c.kind in ("ds", "vmem") and p.widestore & c.defs:
        n = max(n, 1)
    return n


MAXWS = 8


def fix_hazards(lines):
    ins = [Ins(l) for l in lines]
    inserted = 0
    while True:
        labels = {x.label: i for i, x in enumerate(ins) if x.label}
        jumps = {}
        for i, x in enumerate(ins):
            if x.target in labels:
                jumps.setdefault(labels[x.target], []).append(i)

        def preds(i):
            out = []
            if i > 0 and ins[i - 1].op not in ("s_branch", "s_endpgm"):
                out.append(i - 1)
            out += jumps.get(i, [])
            return out

        changed = False
        for i, c in enumerate(ins):
            if c.kind in (None, "nop"):
                continue
            worst = 0
            stack = [(j, 0) for j in preds(i)]
            seen = {}
            while stack:
                j, d = stack.pop()
                if d >= MAXWS or seen.get(j, 99) <= d:
                    continue
                seen[j] = d
                p = ins[j]
                if p.kind:
                    worst = max(worst, need(p, c) - d)
                for k in preds(j):
                    stack.append((k, d + p.ws))
            if worst > 0:
                ins.insert(i, Ins("    s_nop %d" % (worst - 1)))
                inserted += 1
                changed = True
                break
        if not changed:
            break
    return [x.text for x in ins], inserted


class Asm:
    def __init__(self):
        self.lines = []

    def __call__(self, text):
        for l in text.split("\n"):
            l = l.strip()
            if not l:
                continue
            if l.endswith(":") or l.startswith("."):
                self.lines.append(l)
            else:
                self.lines.append("    " + l)

    def label(self, name):
        self.lines.append(name + ":")

    def comment(self, c):
        self.lines.append("    ; " + c)

    def finish(self):
        return fix_hazards(self.lines)


def vr(base, n=1):
    return "v%d" % base if n == 1 else "v[%d:%d]" % (base, base + n - 1)


def sr(base, n=1):
    return "s%d" % base if n == 1 else "s[%d:%d]" % (base, base + n - 1)
```

```python
import os
import sys

sys.path.insert(0, os.path.dirname(os.path.abspath(__file__)))
from asmlib import Asm, vr, sr

NAME = "gather_scatter__tensor_product_equiv_equiformer__graph"
N, E = 12500, 800000
CHUNK, W = 3200, 250
NPB = 49
NBIN = 256

WS_TAB = 0
WS_WTAB = 0x40000
WS_WSI = 0x48000
WS_META = 0x100000
WS_XP = 0xB00000
WS_EP = 0x1200000
WS_P = 0x2B00000
P_NODE = 784
P_HALF = NPB * P_NODE
P_WG = 0x13000
WS_ACC = 0x4000000
XHALF = N * 256

OPT = dict(a.split("=") for a in sys.argv[2:] if "=" in a)


def opt(name, default):
    return type(default)(OPT.get(name, default))


PROF = opt("prof", 0)
WS_PROF = 0x6000000
S_PROF = 82


def stamp(a, i, real=False, late=False):
    if PROF and not (late and PROF == 2):
        a("s_waitcnt lgkmcnt(0)")
        a(("s_memrealtime" if real else "s_memtime") + " s[80:81]")
        a("s_waitcnt lgkmcnt(0)")
        a(f"s_mov_b32 s{S_PROF+i}, s80")


def prof_dump(a, wsreg, kern, nwave_shift, wavereg):
    if PROF:
        a(f"s_lshl_b32 s80, s2, {nwave_shift}")
        a(f"s_add_u32 s80, s80, s{wavereg}")
        a("s_lshl_b32 s80, s80, 6")
        a(f"s_add_u32 s80, s80, {WS_PROF + kern * 0x100000}")
        srd(a, 4, wsreg, "s80", 64)
        a("v_mov_b32 v0, 0")
        for i in range(16):
            a(f"v_mov_b32 v1, s{S_PROF+i}")
            a(f"buffer_store_dword v1, v0, s[4:7], 0 offen offset:{4*i}")


def srd(a, d, b, off, size):
    a(f"s_add_u32 s{d}, s{b}, {off}")
    a(f"s_addc_u32 s{d+1}, s{b+1}, 0")
    a(f"s_mov_b32 s{d+2}, {size}")
    a(f"s_mov_b32 s{d+3}, 0x20000")


def scan64(a, v):
    for sh in (1, 2, 4, 8):
        a(f"v_add_u32_dpp v{v}, v{v}, v{v} row_shr:{sh} row_mask:0xf bank_mask:0xf bound_ctrl:1")
    a(f"v_add_u32_dpp v{v}, v{v}, v{v} row_bcast:15 row_mask:0xa bank_mask:0xf")
    a(f"v_add_u32_dpp v{v}, v{v}, v{v} row_bcast:31 row_mask:0xc bank_mask:0xf")


K1_ERAW = 0
K1_MS = 102400
K1_INV = K1_MS + 38400
K1_HIST = K1_INV + 6400
K1_LDS = 152 * 1024


def kernel1():
    a = Asm()
    NT = " nt" if opt("k1nt", 1) else ""
    ST = {0: "", 1: " nt", 2: " sc1"}[opt("k1st", 0)]
    a("s_cmp_ge_u32 s2, 255")
    a("s_cbranch_scc1 K1_end")
    a("s_load_dwordx8 s[4:11], s[0:1], 0")
    a("s_load_dwordx8 s[52:59], s[0:1], 32")
    a("s_load_dwordx2 s[14:15], s[0:1], 88")
    a("v_lshlrev_b32 v1, 4, v0")
    a("v_mul_u32_u24 v2, 24, v0")
    a("v_and_b32 v3, 63, v0")
    a("v_lshlrev_b32 v3, 4, v3")
    a("v_lshrrev_b32 v40, 6, v0")
    a("v_readfirstlane_b32 s3, v40")
    a("s_cmp_ge_u32 s2, 250")
    a("s_cbranch_scc1 K1_prep")
    stamp(a, 0, True)
    stamp(a, 1)
    a("s_mul_i32 s60, s2, 12800")
    a("s_mul_i32 s61, s2, 19200")
    a("s_mul_i32 s62, s2, 25600")
    a("s_mul_i32 s63, s2, 102400")
    a("s_mul_i32 s64, s2, 38400")
    a("s_lshl_b32 s65, s2, 10")
    a("s_waitcnt lgkmcnt(0)")
    srd(a, 16, 52, "s60", 12800)
    a(f"buffer_load_dwordx4 v[4:7], v1, s[16:19], 0 offen{NT}")
    a("v_lshlrev_b32 v41, 2, v0")
    a("v_mov_b32 v42, 0")
    a("s_cmp_ge_u32 s3, 4")
    a("s_cbranch_scc1 K1_nozero")
    a(f"v_add_u32 v41, {K1_HIST}, v41")
    a("ds_write_b32 v41, v42")
    a.label("K1_nozero")
    srd(a, 20, 10, "s60", 12800)
    srd(a, 24, 6, "s61", 19200)
    srd(a, 28, 4, "s62", 25600)
    srd(a, 32, 8, "s63", 102400)
    a("s_mov_b32 s66, 16384")
    a("s_lshl_b32 s67, s3, 10")
    a("s_waitcnt lgkmcnt(0)")
    a("s_barrier")
    a(f"buffer_load_dwordx4 v[8:11], v1, s[20:23], 0 offen{NT}")
    a(f"buffer_load_dwordx4 v[12:15], v2, s[24:27], 0 offen{NT}")
    a(f"buffer_load_dwordx2 v[16:17], v2, s[24:27], 0 offen offset:16{NT}")
    if opt("k1b2", 1):
        a("s_barrier")
    a(f"buffer_load_dwordx4 v[20:23], v1, s[28:31], 0 offen{NT}")
    a(f"buffer_load_dwordx4 v[24:27], v1, s[28:31], s66 offen{NT}")
    for k in range(6):
        a("s_mov_b32 m0, s67")
        a(f"buffer_load_dwordx4 v3, s[32:35], s67 offen{NT} lds")
        a("s_add_u32 s67, s67, 16384")
    a("s_cmp_ge_u32 s3, 4")
    a("s_cbranch_scc1 K1_noe7")
    a("s_mov_b32 m0, s67")
    a(f"buffer_load_dwordx4 v3, s[32:35], s67 offen{NT} lds")
    a.label("K1_noe7")
    a("s_add_u32 s68, s64, %d" % WS_META)
    srd(a, 36, 14, "s68", 38400)
    a("s_add_u32 s68, s63, %d" % WS_EP)
    srd(a, 40, 14, "s68", 102400)
    srd(a, 44, 14, WS_XP, 2 * XHALF)
    srd(a, 48, 14, "s65", 1024)
    a("v_cmp_gt_u32 vcc, 800, v0")
    a("s_mov_b64 s[70:71], vcc")
    a("v_mov_b32 v43, 1")
    a("s_waitcnt vmcnt(11)")
    stamp(a, 2)
    a("s_mov_b64 exec, s[70:71]")
    a("s_cbranch_execz K1_skip_rank")
    for i in range(4):
        a(f"v_mul_u32_u24 v{28+i}, 21400, v{4+i}")
        a(f"v_lshrrev_b32 v{28+i}, 20, v{28+i}")
        a(f"v_mul_u32_u24 v{36+i}, 49, v{28+i}")
        a(f"v_sub_u32 v{36+i}, v{4+i}, v{36+i}")
        a(f"v_lshlrev_b32 v{28+i}, 2, v{28+i}")
        a(f"v_add_u32 v{28+i}, {K1_HIST}, v{28+i}")
        a(f"ds_add_rtn_u32 v{32+i}, v{28+i}, v43")
    a.label("K1_skip_rank")
    a("s_mov_b64 exec, -1")
    a("s_waitcnt lgkmcnt(0)")
    a("s_barrier")
    stamp(a, 3)
    a("s_cmp_lg_u32 s3, 0")
    a("s_cbranch_scc1 K1_noscan")
    a(f"v_add_u32 v41, {K1_HIST}, v3")
    a("ds_read_b128 v[44:47], v41")
    a("s_waitcnt lgkmcnt(0)")
    a("v_add_u32 v49, v44, v45")
    a("v_add_u32 v50, v49, v46")
    a("v_add_u32 v51, v50, v47")
    a("v_mov_b32 v52, v51")
    scan64(a, 52)
    a("v_sub_u32 v52, v52, v51")
    a("v_add_u32 v53, v52, v44")
    a("v_add_u32 v54, v52, v49")
    a("v_add_u32 v55, v52, v50")
    a("ds_write_b128 v41, v[52:55]")
    for i in range(4):
        a(f"v_lshl_or_b32 v{56+i}, v{44+i}, 16, v{52+i}")
    a("buffer_store_dwordx4 v[56:59], v3, s[48:51], 0 offen")
    a("s_waitcnt lgkmcnt(0)")
    a.label("K1_noscan")
    a("v_lshrrev_b32 v60, 5, v0")
    a("s_mul_i32 s69, s2, 50")
    a("v_add_u32 v60, s69, v60")
    a("v_lshlrev_b32 v60, 8, v60")
    a("v_bfe_u32 v61, v0, 3, 2")
    a("v_lshl_add_u32 v60, v61, 6, v60")
    a("v_and_b32 v61, 3, v0")
    a("v_lshl_add_u32 v60, v61, 4, v60")
    a("v_bfe_u32 v61, v0, 2, 1")
    a(f"v_mul_u32_u24 v61, {XHALF}, v61")
    a("v_add_u32 v60, v60, v61")
    a("v_add_u32 v61, 8192, v60")
    a("v_cmp_gt_u32 vcc, 576, v0")
    a("v_mov_b32 v62, 0x80000000")
    a("v_cndmask_b32 v61, v62, v61, vcc")
    a("s_barrier")
    a("s_mov_b64 exec, s[70:71]")
    a("s_cbranch_execz K1_skip_scatter")
    for i in range(4):
        a(f"ds_read_b32 v{28+i}, v{28+i}")
    a("s_waitcnt vmcnt(8)")
    a("s_mov_b32 s72, 0x80000000")
    a("s_mov_b32 s73, 0xffff0000")
    for i in range(4):
        a(f"v_lshl_or_b32 v{8+i}, v{8+i}, 8, v{36+i}")
        a(f"v_or_b32 v{8+i}, s72, v{8+i}")
    a("v_lshlrev_b32 v44, 16, v13")
    a("v_alignbit_b32 v45, v14, v13, 16")
    a("v_and_b32 v46, s73, v14")
    a("v_lshlrev_b32 v47, 16, v16")
    a("v_alignbit_b32 v48, v17, v16, 16")
    a("v_and_b32 v49, s73, v17")
    w1 = [12, 45, 15, 48]
    w2 = [44, 46, 47, 49]
    a("v_lshlrev_b32 v50, 2, v0")
    a("s_waitcnt lgkmcnt(0)")
    for i in range(4):
        a(f"v_add_u32 v{32+i}, v{32+i}, v{28+i}")
        a(f"v_mul_u32_u24 v{28+i}, 12, v{32+i}")
        a(f"v_add_u32 v{28+i}, {K1_MS}, v{28+i}")
        a(f"ds_write2_b32 v{28+i}, v{8+i}, v{w1[i]} offset0:0 offset1:1")
        a(f"ds_write_b32 v{28+i}, v{w2[i]} offset:8")
        a(f"v_lshlrev_b32 v{32+i}, 1, v{32+i}")
        a(f"v_add_u32 v{32+i}, {K1_INV}, v{32+i}")
        a(f"v_add_u32 v{52+i}, {i}, v50")
        a(f"ds_write_b16 v{32+i}, v{52+i}")
    a.label("K1_skip_scatter")
    a("s_mov_b64 exec, -1")
    a("s_waitcnt vmcnt(6)")
    a(f"buffer_store_dwordx4 v[20:23], v60, s[44:47], 0 offen{ST}")
    a(f"buffer_store_dwordx4 v[24:27], v61, s[44:47], 0 offen{ST}")
    a("s_waitcnt lgkmcnt(0)")
    a("s_barrier")
    stamp(a, 4)
    a(f"v_add_u32 v41, {K1_MS}, v1")
    a("ds_read_b128 v[4:7], v41")
    a("ds_read_b128 v[8:11], v41 offset:16384")
    a("ds_read_b128 v[12:15], v41 offset:32768")
    a("v_and_b32 v42, 0x3fe, v0")
    a(f"v_add_u32 v42, {K1_INV}, v42")
    for k in range(7):
        a(f"ds_read_u16 v{28+k}, v42 offset:{1024*k}")
    a("v_and_b32 v43, 1, v0")
    a("v_lshlrev_b32 v43, 4, v43")
    a("s_mov_b32 s74, 32768")
    a("s_waitcnt lgkmcnt(7)")
    a(f"buffer_store_dwordx4 v[4:7], v1, s[36:39], 0 offen{ST}")
    a(f"buffer_store_dwordx4 v[8:11], v1, s[36:39], s66 offen{ST}")
    a(f"buffer_store_dwordx4 v[12:15], v1, s[36:39], s74 offen{ST}")
    a("s_waitcnt lgkmcnt(0)")
    for k in range(7):
        a(f"v_lshl_add_u32 v{28+k}, v{28+k}, 5, v43")
    stamp(a, 5)
    a("s_waitcnt vmcnt(5)")
    a("s_barrier")
    stamp(a, 6)
    for k in range(6):
        a(f"ds_read_b128 v[{64+4*k}:{67+4*k}], v{28+k}")
    a("s_mov_b32 s75, 0")
    for k in range(6):
        a(f"s_waitcnt lgkmcnt({5-k})")
        a(f"buffer_store_dwordx4 v[{64+4*k}:{67+4*k}], v1, s[40:43], s75 offen{ST}")
        a("s_add_u32 s75, s75, 16384")
    a("s_cmp_ge_u32 s3, 4")
    a("s_cbranch_scc1 K1_fin")
    a("ds_read_b128 v[88:91], v34")
    a("s_waitcnt lgkmcnt(0)")
    a(f"buffer_store_dwordx4 v[88:91], v1, s[40:43], s75 offen{ST}")
    a.label("K1_fin")
    stamp(a, 7)
    if PROF:
        a("s_waitcnt vmcnt(0)")
    stamp(a, 8)
    stamp(a, 15, True)
    prof_dump(a, 14, 0, 4, 3)
    a("s_endpgm")

    a.label("K1_prep")
    a("s_waitcnt lgkmcnt(0)")
    srd(a, 16, 54, 0, 16 * 320 * 2)
    srd(a, 20, 56, 0, 128 * 64 * 2)
    srd(a, 24, 58, 0, 192 * 64 * 2)
    srd(a, 28, 14, WS_WTAB, 20480)
    srd(a, 32, 14, WS_WSI, 40960)
    a("s_sub_u32 s60, s2, 250")
    a("s_lshl_b32 s60, s60, 10")
    a("v_add_u32 v4, s60, v0")
    a("v_and_b32 v5, 3, v4")
    a("v_bfe_u32 v6, v4, 2, 4")
    a("v_bfe_u32 v7, v4, 6, 2")
    a("v_lshrrev_b32 v8, 8, v4")
    a("v_cmp_le_u32 vcc, 10, v8")
    a("v_cndmask_b32 v9, 0, 1, vcc")
    a("v_mul_u32_u24 v10, 10, v9")
    a("v_sub_u32 v10, v8, v10")
    a("v_lshl_add_u32 v11, v7, 2, v5")
    a("v_mul_u32_u24 v11, 320, v11")
    a("v_lshrrev_b32 v12, 1, v10")
    a("v_lshl_add_u32 v11, v12, 6, v11")
    a("v_lshl_add_u32 v11, v9, 5, v11")
    a("v_and_b32 v12, 1, v10")
    a("v_lshl_add_u32 v11, v12, 4, v11")
    a("v_add_u32 v11, v11, v6")
    a("v_lshlrev_b32 v11, 1, v11")
    a("buffer_load_ushort v13, v11, s[16:19], 0 offen")
    a("v_mov_b32 v30, 0x80000000")
    for t in range(2):
        b = 32 + 8 * t
        a(f"v_add_u32 v14, {20*t}, v8")
        a("v_mul_u32_u24 v15, 26, v14")
        a("v_lshrrev_b32 v15, 8, v15")
        a("v_mul_u32_u24 v16, 10, v15")
        a("v_sub_u32 v16, v14, v16")
        a("v_lshrrev_b32 v17, 1, v16")
        a("v_and_b32 v18, 1, v16")
        a("v_lshl_add_u32 v19, v7, 2, v5")
        a("v_lshl_add_u32 v19, v18, 5, v19")
        a("v_lshl_add_u32 v19, v17, 6, v19")
        a("v_lshrrev_b32 v20, 1, v15")
        a("v_and_b32 v21, 1, v15")
        a("v_lshrrev_b32 v22, 2, v6")
        a("v_lshlrev_b32 v22, 3, v22")
        a("v_lshl_add_u32 v22, v20, 5, v22")
        a("v_lshl_add_u32 v22, v21, 2, v22")
        a("v_and_b32 v23, 3, v6")
        a("v_add_u32 v22, v22, v23")
        a("v_lshl_add_u32 v22, v19, 6, v22")
        a("v_lshlrev_b32 v22, 1, v22")
        a("v_subrev_u32 v23, 16384, v22")
        a("v_cmp_gt_u32 vcc, 2, v17")
        a("v_cndmask_b32 v24, v30, v22, vcc")
        a("v_cndmask_b32 v25, v23, v30, vcc")
        a(f"buffer_load_ushort v{b}, v24, s[20:23], 0 offen")
        a(f"buffer_load_ushort v{b+1}, v24, s[20:23], 0 offen offset:2048")
        a(f"buffer_load_ushort v{b+2}, v25, s[24:27], 0 offen")
        a(f"buffer_load_ushort v{b+3}, v25, s[24:27], 0 offen offset:2048")
    a("v_lshlrev_b32 v4, 2, v4")
    a("s_mov_b32 s61, 20480")
    a("s_waitcnt vmcnt(0)")
    a("v_lshlrev_b32 v13, 16, v13")
    a("buffer_store_dword v13, v4, s[28:31], 0 offen")
    for t in range(2):
        b = 32 + 8 * t
        a(f"v_or_b32 v{b}, v{b}, v{b+2}")
        a(f"v_or_b32 v{b+1}, v{b+1}, v{b+3}")
        a(f"v_lshl_or_b32 v{b}, v{b+1}, 16, v{b}")
        a(f"buffer_store_dword v{b}, v4, s[32:35], {'0' if t == 0 else 's61'} offen")
    a.label("K1_end")
    a("s_endpgm")
    return a


CAP = 3392
SLOWCAP = 256
MAXSTEPS = 142
MAXWSTEPS = 20
L_E = 0
L_RING = 32 + CAP * 32
RING_W = 6336
SUBB = 2112
L_SA = L_RING
L_SB = L_SA + MAXSTEPS * 128
L_MISC = L_SB + MAXSTEPS * 256
L_CNT = L_MISC
L_FLAG = L_MISC + 256
L_WSUM = L_MISC + 272
K2_LDS = 163840
assert L_WSUM + 16 <= K2_LDS and L_RING + 8 * RING_W <= L_MISC

ACC = 0
WR = 88
B0 = 128
B1 = 144
GS, G0, G1, G2, N0, N2 = 160, 164, 168, 172, 176, 180
SEL = 184
M0R = 188
MBR = 198
W1C, W2C = 218, 219
Y = 220
REP = 223
XA = 224
XOFF, QQ8, BAE, BAO, POFF, NST = 228, 229, 230, 231, 232, 233
UH, UL, PT, T8, EA = 234, 238, 242, 246, 247
T0 = 234
TID, LANE = 249, 250
NVGPR = 252

S_WAVE = 3
R_XP, R_EP, R_MT, R_TB, R_P, R_W, R_OUT, R_ACC = 4, 8, 12, 16, 20, 24, 28, 32
S_NN, S_T, S_R0, S_LEN, S_CAP = 36, 37, 38, 39, 40
S_NODE0, S_NNW, S_STEP0, S_NS = 41, 42, 43, 44
S_D1, S_REM, S_NODE, S_PHASE, S_TAB0, S_TAB1, S_RB, S_POFF, S_D2 = 45, 46, 47, 48, 49, 50, 51, 52, 53
S_HI, S_SGN, S_BUMP = 100, 101, 58
S_MASK = 64
S_LAST = 78
S_NEND = 79
S_EM0 = 53

TPATH = [0, 1, 2, 2, 2, 3, 3, 3, 4, 4, 4]
P0, P1 = 0, 1
P2 = [2, 3, 4]
P3 = [5, 6, 7]
P4 = [8, 9, 10]


def acc(t, cq):
    return ACC + 4 * (2 * t + cq)


def mfma_list():
    out = []
    for t, A, B, fl in ((P2[0], G0, B0, 1), (P1, G0, B0 + 8, 1), (P0, GS, B0, 1), (P3[0], GS, B0 + 8, 1),
                        (P2[2], G2, B0, 1), (P4[1], G2, B0 + 8, 1), (P2[1], G1, B0, 1), (P4[2], G1, B0 + 8, 1),
                        (P4[2], N0, B1, 0), (P4[1], N0, B1 + 8, 0), (P3[1], GS, B1, 1), (P3[2], GS, B1 + 8, 1),
                        (P4[0], N2, B1, 1), (P1, G2, B1 + 8, 0), (P1, G1, B1, 0), (P4[0], G1, B1 + 8, 0)):
        for cq in range(2):
            out.append((t, cq, A, B + 4 * cq, fl))
    return out


def emit_mfma(a, m, first):
    t, cq, A, B, fl = m
    if opt("nomfma", 0):
        return
    d = vr(acc(t, cq), 4)
    c = "0" if (first and fl) else d
    a(f"v_mfma_f32_16x16x32_bf16 {d}, {vr(A,4)}, {vr(B,4)}, {c}")


def b_reads(k, pos):
    B = B0 if k < 2 else B1
    hf = k & 1
    return [f"ds_read_b64_tr_b16 {vr(B + 4*u + 2*hf, 2)}, v{BAE if u % 2 == 0 else BAO} offset:{pos*SUBB + u*32}"
            for u in range(4)]


def vmwait(n):
    return [] if opt("nowait", 0) else [f"s_waitcnt vmcnt({n})"]


def dma(k, pos):
    if opt("nodma", 0):
        return [[], [], [], []]
    hf, bp = k & 1, k >> 1
    so = S_TAB0 if bp == 0 else S_TAB1
    out = []
    for s in range(2):
        out.append([f"s_add_u32 m0, s{S_RB}, {pos*SUBB + s*1088}"])
        out.append([f"buffer_load_dwordx4 v{XA + 2*hf + s}, s[{R_XP}:{R_XP+3}], s{so} offen lds"])
    return out


def w0_fetch(sreg):
    return [f"s_lshr_b32 s54, s{sreg}, 1",
            "s_set_gpr_idx_on s54, gpr_idx(SRC0)",
            f"v_mov_b32 v{REP}, v{M0R}",
            "s_set_gpr_idx_off"]


def w0_rep(tag, sreg):
    return [f"s_bitcmp1_b32 s{sreg}, 0",
            f"s_cbranch_scc1 {tag}_odd",
            f"v_mov_b32_dpp v{REP}, v{REP} row_shr:4 row_mask:0xf bank_mask:0xa",
            f"s_branch {tag}_done",
            f"{tag}_odd:",
            f"v_mov_b32_dpp v{REP}, v{REP} row_shl:4 row_mask:0xf bank_mask:0x5",
            f"{tag}_done:"]


def x_addr(q):
    return f"v_add_u32_dpp v{XA+q}, v{REP}, v{XOFF} quad_perm:[{q},{q},{q},{q}] row_mask:0xf bank_mask:0xf"


def meta_fetch(tag, sreg):
    return [f"s_bitcmp1_b32 s{sreg}, 0",
            f"s_cbranch_scc1 {tag}_odd",
            f"s_set_gpr_idx_on s{sreg}, gpr_idx(SRC0)",
            f"v_mov_b32 v{W1C}, v{MBR}",
            f"v_mov_b32 v{W2C}, v{MBR+1}",
            "s_set_gpr_idx_off",
            f"s_branch {tag}_done",
            f"{tag}_odd:",
            f"v_mov_b32_dpp v{W1C}, v{W1C} quad_perm:[2,3,2,3] row_mask:0xf bank_mask:0xf",
            f"v_mov_b32_dpp v{W2C}, v{W2C} quad_perm:[2,3,2,3] row_mask:0xf bank_mask:0xf",
            f"{tag}_done:"]


M_T8 = f"v_lshlrev_b32_sdwa v{T8}, 3, v{W2C} dst_sel:DWORD dst_unused:UNUSED_PAD src0_sel:DWORD src1_sel:WORD_0"
M_Y = [f"v_lshlrev_b32 v{Y}, 16, v{W1C}", f"v_and_b32 v{Y+1}, s{S_HI}, v{W1C}", f"v_and_b32 v{Y+2}, s{S_HI}, v{W2C}"]
M_EA = [f"v_add_u32_dpp v{EA+h}, v{T8}, v{QQ8} quad_perm:[{h},{h},{h},{h}] row_mask:0xf bank_mask:0xf"
        for h in range(2)]


def e_reads(dst):
    return [f"ds_read_b64_tr_b16 {vr(dst + 2*h, 2)}, v{EA+h}" for h in range(2)]


def unpack(aa):
    return [f"v_lshlrev_b32 v{UL+aa}, 16, v{UH+aa}", f"v_and_b32 v{UH+aa}, s{S_HI}, v{UH+aa}"]


def gb(j, aa):
    if opt("nog", 0):
        return []
    hf, rl = aa >> 1, 2 * (aa & 1)
    pl = PT + 2 * (aa & 1)
    return [f"v_mul_f32_dpp v{pl}, v{Y+j}, v{UL+aa} row_newbcast:{4*rl+hf} row_mask:0xf bank_mask:0xf",
            f"v_mul_f32_dpp v{pl+1}, v{Y+j}, v{UH+aa} row_newbcast:{4*(rl+1)+hf} row_mask:0xf bank_mask:0xf",
            f"v_cvt_pk_bf16_f32 v{(G0, G1, G2)[j]+aa}, v{pl}, v{pl+1}"]


def neg(dst, src):
    return [f"v_xor_b32 v{dst+i}, s{S_SGN}, v{src+i}" for i in range(4)]


def next_index(dst, src):
    return [f"s_add_u32 s{dst}, s{src}, 1",
            f"s_cmp_lt_u32 s{dst}, s{S_NS}",
            f"s_cselect_b32 s{dst}, s{dst}, 0",
            f"s_cselect_b32 s{S_BUMP}, 0, {XHALF}"]


BUMP = [f"s_add_u32 s{S_TAB0}, s{S_TAB0}, s{S_BUMP}", f"s_add_u32 s{S_TAB1}, s{S_TAB1}, s{S_BUMP}"]


def step_body(a, var, rho, first):
    tag = f"{var}S{rho}{'f' if first else 'n'}"
    x = 3 if first else 0
    p = lambda k: (rho + k) % 3
    F = [[] for _ in range(32)]

    def spread(slot, lst, per=2):
        for i, l in enumerate(lst):
            F[slot + i // per].append(l)

    def event(slot, n, k, pos):
        r = b_reads(k, pos)
        F[slot] += vmwait(n) + r[:2]
        F[slot + 1] += r[2:]

    def refill(slot, k, pos, wait="lgkmcnt(0)"):
        d = dma(k, pos)
        F[slot - 1] += d[0]
        F[slot] += [f"s_waitcnt {wait}"] + d[1] + d[2]
        F[slot + 1] += d[3]

    n0, n2 = neg(N0, G0), neg(N2, G2)
    spread(0, gb(2, 2) + gb(2, 3) + gb(1, 0) + gb(1, 1) + gb(1, 2) + gb(1, 3))
    event(0, 4 + x, 2, p(2))
    refill(4, 1, p(2))
    event(8, 4 + x, 3, p(0))
    F[9] += meta_fetch(tag + "_m", S_D1)
    spread(10, [M_T8, n0[0], M_Y[0], n0[1]] + M_EA)
    refill(12, 2, p(0))
    F[13] += e_reads(UH)
    spread(13, [n0[2], n0[3], M_Y[1], M_Y[2]])
    F[14] += next_index(S_D2, S_D1)
    F[15] += w0_fetch(S_D2) + [n2[0]]
    event(16, 4 + x, 0, p(1))
    F[16] += w0_rep(tag + "_a", S_D2) + [n2[1]]
    F[17] += ["s_waitcnt lgkmcnt(4)"]
    spread(17, unpack(0) + unpack(1) + [n2[2], n2[3]] + unpack(2) + unpack(3) + [x_addr(0), x_addr(1)])
    refill(20, 3, p(1))
    spread(23, gb(0, 0) + gb(0, 1) + gb(0, 2) + gb(0, 3) + gb(2, 0) + gb(2, 1))
    F[22] += BUMP
    F[23] += e_reads(GS)
    event(24, 4, 1, p(2))
    F[26] += [x_addr(2)]
    F[27] += [x_addr(3)]
    refill(28, 0, p(2))
    F[30] += [f"s_mov_b32 s{S_D1}, s{S_D2}", f"s_sub_u32 s{S_REM}, s{S_REM}, 1"]
    F[31] += [f"s_cmp_lg_u32 s{S_REM}, 0"]
    if var == "A" and opt("prio", 1):
        lo, hi = opt("prlo", 0), opt("prhi", 2)
        G = []
        for l in F[9]:
            if l.startswith("s_set_gpr_idx_on"):
                G.append(f"s_setprio {lo}")
            G.append(l)
            if l.endswith("_m_odd:"):
                G.append(f"s_setprio {hi}")
        F[9] = G
    a.label(tag)
    for i, m in enumerate(mfma_list()):
        emit_mfma(a, m, first)
        for l in F[i]:
            if opt("nods", 0) and (l.startswith("ds_") or l.startswith("s_waitcnt lgkm")):
                continue
            if opt("nobr", 0) and (l.startswith(("s_cbranch", "s_branch", "s_bitcmp")) or "row_shl" in l
                                   or "[2,3,2,3]" in l):
                continue
            if opt("novalu", 0) and l.startswith("v_"):
                continue
            if opt("noidx", 0) and l.startswith("s_set_gpr"):
                continue
            a(l)
    a(f"s_cbranch_scc1 {var}S{(rho+1)%3}n")
    if first:
        a(f"s_branch {var}EP{(rho+1)%3}")


def pipeline_start(a):
    def run(lst):
        for l in lst:
            a(l)

    def dma_now(k, pos):
        for g in dma(k, pos):
            run(g)

    run(w0_fetch(S_D1) + w0_rep("I_a", S_D1) + [x_addr(q) for q in range(4)])
    dma_now(0, 0)
    dma_now(1, 1)
    dma_now(2, 2)
    run(meta_fetch("I_m", S_D1) + [M_T8] + M_Y + M_EA + e_reads(UH) + e_reads(GS))
    run(["s_waitcnt vmcnt(4)"] + b_reads(0, 0) + ["s_waitcnt lgkmcnt(0)"])
    dma_now(3, 0)
    run(next_index(S_D1, S_D1) + BUMP + w0_fetch(S_D1) + w0_rep("I_b", S_D1) + [x_addr(q) for q in range(4)])
    run(["s_waitcnt vmcnt(4)"] + b_reads(1, 1))
    for aa in range(4):
        run(unpack(aa))
    run(gb(0, 0) + gb(0, 1) + gb(0, 2) + gb(0, 3) + gb(2, 0) + gb(2, 1))
    a("v_mov_b32 v0, 0x80000000")
    a("s_waitcnt lgkmcnt(0)")
    dma_now(0, 1)
    for i in range(3):
        a(f"buffer_store_dword v0, v0, s[{R_P}:{R_P+3}], 0 offen")
    if opt("prio", 1):
        a(f"s_cmp_lt_u32 s{S_WAVE}, 4")
        a("s_cbranch_scc1 AS0f")
        a("s_setprio 1")
        a("s_branch BS0f")
    else:
        a("s_branch AS0f")


def epilogue(a, var, rho):
    a.label(f"{var}EP{rho}")
    order = [P2[0], P0, P3[0], P2[2], P2[1], P4[2], P4[1], P3[1], P3[2], P1, P4[0]]
    book = [f"s_mul_i32 s55, s{S_NODE}, {P_NODE}",
            f"s_add_u32 s55, s55, s{S_POFF}",
            f"s_add_u32 s{S_NODE}, s{S_NODE}, 1",
            f"s_cmp_lt_u32 s{S_NODE}, s{S_NEND}",
            "s_cselect_b32 s56, 0, 1",
            f"s_cselect_b32 s{S_NODE}, s{S_NODE}, s{S_NODE0}",
            f"v_readlane_b32 s{S_REM}, v{NST}, s{S_NODE}",
            "s_cmp_eq_u32 s56, 0"]
    for t in order:
        pth = TPATH[t]
        for r in range(0 if opt("noep", 0) else 4):
            for cq in range(2):
                d, w = acc(t, cq), WR + 4 * (2 * pth + cq)
                if r == 0:
                    a(f"v_mul_f32 v{d}, v{d}, v{w}")
                else:
                    a(f"v_fmac_f32 v{d}, v{d+r}, v{w+r}")
        n = "-" if t == P4[2] else ""
        a(f"v_cvt_pk_bf16_f32 v{B1+t}, {n}v{acc(t,0)}, {n}v{acc(t,1)}")
        if t == P0:
            a(f"v_mov_b32 v{B1+11}, 0")
        if t == P1:
            a(f"v_mfma_f32_16x16x32_bf16 {vr(20,4)}, {vr(SEL,4)}, {vr(B1+4,4)}, 0")
    a(book[0])
    a(f"v_mfma_f32_16x16x32_bf16 {vr(16,4)}, {vr(SEL,4)}, {vr(B1,4)}, 0")
    a(f"v_mfma_f32_16x16x32_bf16 {vr(24,4)}, {vr(SEL,4)}, {vr(B1+8,4)}, 0")
    a(f"v_cvt_pk_bf16_f32 v65, v20, v21")
    for l in book[1:]:
        a(l)
    a(f"buffer_store_dword v65, v{POFF}, s[{R_P}:{R_P+3}], s55 offen offset:256")
    for i in (0, 2):
        a(f"v_cvt_pk_bf16_f32 v{64+i}, v{16+4*i}, v{17+4*i}")
    for i in (0, 2):
        a(f"buffer_store_dword v{64+i}, v{POFF}, s[{R_P}:{R_P+3}], s55 offen offset:{256*i}")
    a(f"s_cbranch_scc1 {var}S{rho}f")
    a(f"s_cmp_lg_u32 s{S_PHASE}, 0")
    a("s_cbranch_scc1 TAIL")
    stamp(a, 7, late=True)
    a(f"s_mov_b32 s{S_PHASE}, 1")
    a(f"s_mov_b32 s{S_POFF}, {P_HALF}")
    a("s_mov_b32 s57, 10240")
    a(f"v_lshlrev_b32 v67, 4, v{LANE}")
    for pc in range(10):
        if pc % 4 == 0 and pc:
            a("s_add_u32 s57, s57, 4096")
        a(f"buffer_load_dwordx4 {vr(WR+4*pc,4)}, v67, s[{R_W}:{R_W+3}], s57 offen offset:{(pc%4)*1024}")
    a(f"s_branch {var}S{rho}f")


def kernel2():
    a = Asm()
    a("s_cmp_ge_u32 s2, 256")
    a("s_cbranch_scc1 K2_end")
    if opt("xcdmap", 1):
        a("s_and_b32 s3, s2, 7")
        a("s_lshl_b32 s3, s3, 5")
        a("s_lshr_b32 s2, s2, 3")
        a("s_or_b32 s2, s2, s3")
    a("s_load_dwordx2 s[54:55], s[0:1], 72")
    a("s_load_dwordx2 s[56:57], s[0:1], 88")
    a(f"v_mov_b32 v{TID}, v0")
    a(f"v_and_b32 v{LANE}, 63, v0")
    a("v_lshrrev_b32 v1, 6, v0")
    a(f"v_readfirstlane_b32 s{S_WAVE}, v1")
    a("s_cmp_eq_u32 s2, 255")
    a(f"s_cselect_b32 s{S_NN}, {N - 255*NPB}, {NPB}")
    stamp(a, 0, True)
    stamp(a, 1)
    a("s_waitcnt lgkmcnt(0)")
    if PROF:
        a("s_mov_b64 s[98:99], s[56:57]")
    srd(a, R_TB, 56, WS_TAB, W * 1024)
    srd(a, R_W, 56, WS_WTAB, 0x12000)
    srd(a, R_MT, 56, WS_META, E * 12)
    srd(a, R_EP, 56, WS_EP, E * 32)
    srd(a, R_XP, 56, WS_XP, 2 * XHALF)
    a(f"s_mul_i32 s59, s2, {P_WG}")
    a(f"s_add_u32 s59, s59, {WS_P}")
    srd(a, R_P, 56, "s59", 2 * P_HALF)
    a("s_lshl_b32 s59, s2, 16")
    a(f"s_add_u32 s59, s59, {WS_ACC}")
    srd(a, R_ACC, 56, "s59", 65536)
    a(f"s_mul_i32 s59, s2, {NPB*512}")
    a(f"s_lshl_b32 s60, s{S_NN}, 9")
    srd(a, R_OUT, 54, "s59", "s60")
    a(f"s_mul_i32 s{S_RB}, s{S_WAVE}, {RING_W}")
    a(f"s_add_u32 s{S_RB}, s{S_RB}, {L_RING}")
    a(f"s_mov_b32 s{S_R0}, 0")
    a(f"s_mov_b32 s{S_CAP}, {CAP}")
    a(f"s_mov_b32 s{S_HI}, 0xffff0000")
    a(f"s_mov_b32 s{S_SGN}, 0x80008000")
    L = LANE
    a(f"v_bfe_u32 v3, v{L}, 4, 1")
    a(f"v_and_b32 v4, 7, v{L}")
    a("v_lshlrev_b32 v5, 1, v3")
    a("v_xor_b32 v4, v4, v5")
    a("v_lshlrev_b32 v4, 4, v4")
    a(f"v_or_b32 v{XOFF}, 0x80000000, v4")
    a(f"v_and_b32 v4, 3, v{L}")
    a(f"v_lshlrev_b32 v{QQ8}, 3, v4")
    a(f"v_bfe_u32 v5, v{L}, 3, 1")
    a("v_mul_u32_u24 v5, 1088, v5")
    a(f"v_lshrrev_b32 v6, 4, v{L}")
    a("v_lshl_add_u32 v5, v6, 8, v5")
    a(f"v_bfe_u32 v7, v{L}, 2, 1")
    a("v_lshl_add_u32 v5, v7, 7, v5")
    a(f"v_add_u32 v5, v5, v{QQ8}")
    a(f"v_add_u32 v5, s{S_RB}, v5")
    a("v_lshlrev_b32 v7, 5, v3")
    a(f"v_add_u32 v{BAE}, v5, v7")
    a(f"v_sub_u32 v{BAO}, v5, v7")
    a(f"v_and_b32 v7, 15, v{L}")
    a("v_lshlrev_b32 v8, 2, v7")
    a(f"v_lshl_add_u32 v{POFF}, v6, 6, v8")
    a("v_and_b32 v8, 1, v7")
    a("v_lshlrev_b32 v8, 4, v8")
    a("v_mov_b32 v9, 0x3f80")
    a("v_lshlrev_b32 v8, v8, v9")
    a("v_and_b32 v9, 14, v7")
    for i in range(4):
        a(f"v_cmp_eq_u32 vcc, {4*i}, v9")
        a(f"v_cndmask_b32 v{SEL+i}, 0, v8, vcc")

    a.label("ROUND")
    a(f"v_and_b32 v2, 255, v{TID}")
    a("v_lshlrev_b32 v3, 10, v2")
    a("s_lshl_b32 s58, s2, 2")
    a(f"buffer_load_dword v4, v3, s[{R_TB}:{R_TB+3}], s58 offen")
    a(f"v_lshlrev_b32 v5, 4, v{LANE}")
    a("s_mov_b32 s57, 0")
    for pc in range(10):
        if pc % 4 == 0 and pc:
            a("s_add_u32 s57, s57, 4096")
        a(f"buffer_load_dwordx4 {vr(WR+4*pc,4)}, v5, s[{R_W}:{R_W+3}], s57 offen offset:{(pc%4)*1024}")
    a(f"v_lshlrev_b32 v6, 2, v{TID}")
    a("v_mov_b32 v7, 0")
    a(f"v_add_u32 v8, {L_MISC}, v6")
    a(f"v_cmp_gt_u32 vcc, 68, v{TID}")
    a("s_and_saveexec_b64 s[58:59], vcc")
    a("ds_write_b32 v8, v7")
    a(f"v_cmp_gt_u32 vcc, 8, v{TID}")
    a("s_and_b64 exec, exec, vcc")
    a("ds_write_b32 v6, v7")
    a("s_mov_b64 exec, -1")
    a("s_waitcnt vmcnt(10)")
    stamp(a, 2)
    a("v_lshrrev_b32 v9, 16, v4")
    a("v_and_b32 v10, 0xffff, v4")
    a("v_mov_b32 v11, v9")
    scan64(a, 11)
    a("v_readlane_b32 s58, v11, 63")
    a(f"s_and_b32 s59, s{S_WAVE}, 3")
    a("s_lshl_b32 s60, s59, 2")
    a(f"s_add_u32 s60, s60, {L_WSUM}")
    a("v_mov_b32 v12, s60")
    a("v_mov_b32 v13, s58")
    a("ds_write_b32 v12, v13")
    a("v_sub_u32 v11, v11, v9")
    a("v_mul_u32_u24 v14, 3200, v2")
    a("v_add_u32 v14, v14, v10")
    a(f"v_lshrrev_b32 v15, 8, v{TID}")
    a("v_add_u32 v14, v14, v15")
    a(f"v_mov_b32 v12, {L_WSUM}")
    a("s_waitcnt lgkmcnt(0)")
    a("s_barrier")
    a("ds_read_b128 v[16:19], v12")
    a("s_waitcnt lgkmcnt(0)")
    for i in range(4):
        a(f"v_readfirstlane_b32 s{60+i}, v{16+i}")
    a("s_add_u32 s61, s61, s60")
    a("s_add_u32 s62, s62, s61")
    a(f"s_add_u32 s{S_T}, s63, s62")
    a("s_cmp_eq_u32 s59, 0")
    a("s_cselect_b32 s58, 0, s60")
    a("s_cmp_eq_u32 s59, 2")
    a("s_cselect_b32 s58, s61, s58")
    a("s_cmp_eq_u32 s59, 3")
    a("s_cselect_b32 s58, s62, s58")
    a(f"s_sub_u32 s{S_LEN}, s{S_T}, s{S_R0}")
    a(f"s_cmp_le_u32 s{S_LEN}, s{S_CAP}")
    a(f"s_cselect_b32 s{S_LAST}, 1, 0")
    a(f"s_min_u32 s{S_LEN}, s{S_LEN}, s{S_CAP}")
    a(f"s_sub_u32 s58, s58, s{S_R0}")
    a("v_add_u32 v11, s58, v11")
    a("v_add_u32 v11, v11, v15")
    a(f"v_lshl_add_u32 v12, v11, 2, v7")
    a(f"v_add_u32 v12, {L_SA}, v12")
    a.label("MAPL")
    a("v_cmp_lt_u32 vcc, v15, v9")
    a("s_and_b64 exec, exec, vcc")
    a("s_cbranch_execz MAPD")
    a(f"v_cmp_gt_u32 vcc, s{S_LEN}, v11")
    a("s_and_saveexec_b64 s[58:59], vcc")
    a("ds_write_b32 v12, v14")
    a("s_mov_b64 exec, s[58:59]")
    a("v_add_u32 v15, 2, v15")
    a("v_add_u32 v11, 2, v11")
    a("v_add_u32 v14, 2, v14")
    a("v_add_u32 v12, 8, v12")
    a("s_branch MAPL")
    a.label("MAPD")
    a("s_mov_b64 exec, -1")
    a(f"v_add_u32 v12, {L_SA}, v6")
    a(f"v_lshrrev_b32 v13, 1, v{LANE}")
    a(f"s_lshl_b32 s58, s{S_WAVE}, 5")
    a("v_add_u32 v13, s58, v13")
    a(f"v_lshl_add_u32 v14, v13, 2, v7")
    a(f"v_add_u32 v14, {L_SA}, v14")
    a(f"v_and_b32 v15, 1, v{LANE}")
    a("v_lshlrev_b32 v15, 4, v15")
    a("v_mov_b32 v16, 0x80000000")
    a("s_waitcnt lgkmcnt(0)")
    a("s_barrier")
    stamp(a, 3)
    for k in range(7):
        a(f"ds_read_b32 v{20+k}, v12 offset:{2048*k}")
    for k in range(14):
        a(f"ds_read_b32 v{28+k}, v14 offset:{1024*k}")
    MREC = 44
    for k in range(7):
        a(f"v_add_u32 v17, {512*k}, v{TID}")
        a(f"v_cmp_gt_u32 s[{S_MASK+2*k}:{S_MASK+2*k+1}], s{S_LEN}, v17")
        a(f"s_waitcnt lgkmcnt({min(15, 20-k)})")
        a(f"v_mul_u32_u24 v{20+k}, 12, v{20+k}")
        a(f"v_cndmask_b32 v{20+k}, v16, v{20+k}, s[{S_MASK+2*k}:{S_MASK+2*k+1}]")
    if PROF == 2:
        stamp(a, 7)
    for k in range(7):
        a(f"buffer_load_dwordx3 {vr(MREC+4*k,3)}, v{20+k}, s[{R_MT}:{R_MT+3}], 0 offen")
    a("s_waitcnt lgkmcnt(0)")
    a(f"s_lshl_b32 s{S_EM0}, s{S_WAVE}, 10")
    a(f"s_add_u32 s{S_EM0}, s{S_EM0}, {L_E + 32}")
    EREG = 128
    for k in range(14):
        a(f"v_cmp_gt_u32 vcc, s{S_LEN}, v13")
        a(f"v_lshl_add_u32 v{28+k}, v{28+k}, 5, v15")
        a("v_add_u32 v13, 256, v13")
        a(f"v_cndmask_b32 v{EREG+k}, v16, v{28+k}, vcc")
    eb = [int(c) for c in opt("eb", "4433")]

    def e_batch(i):
        for k in range(sum(eb[:i]), sum(eb[:i + 1])):
            if k == 13:
                a(f"s_cmp_ge_u32 s{S_WAVE}, 2")
                a("s_cbranch_scc1 NOE14")
            a(f"s_mov_b32 m0, s{S_EM0}")
            a(f"s_add_u32 s{S_EM0}, s{S_EM0}, 8192")
            a(f"buffer_load_dwordx4 v{EREG+k}, s[{R_EP}:{R_EP+3}], 0 offen lds")
            if k == 13:
                a.label("NOE14")

    if PROF == 2:
        stamp(a, 8)
    e_batch(0)
    if PROF == 2:
        stamp(a, 9)
    a("v_mov_b32 v17, 1")
    for k in range(7):
        a(f"s_waitcnt vmcnt({min(eb[0], 13) + 6 - k})")
        if PROF == 2 and k in (0, 6):
            stamp(a, 10 if k == 0 else 11)
        a(f"v_and_b32 v{20+k}, 0xff, v{MREC+4*k}")
        a(f"v_lshlrev_b32 v{20+k}, 2, v{20+k}")
        a(f"v_add_u32 v18, {L_CNT}, v{20+k}")
        a(f"s_mov_b64 exec, s[{S_MASK+2*k}:{S_MASK+2*k+1}]")
        a(f"ds_add_rtn_u32 v{MREC+4*k+3}, v18, v17")
        a("s_mov_b64 exec, -1")
    a(f"v_lshlrev_b32 v12, 2, v{LANE}")
    a(f"v_add_u32 v12, {L_CNT}, v12")
    a(f"v_lshlrev_b32 v13, 4, v{TID}")
    a(f"v_add_u32 v13, {L_SA}, v13")
    for i in range(4):
        a(f"v_mov_b32 v{28+i}, 0")
    a("s_waitcnt lgkmcnt(0)")
    a("s_barrier")
    stamp(a, 4)
    e_batch(1)
    a("ds_read_b32 v14, v12")
    nz = MAXSTEPS * 384 // 16
    for k in range(6):
        a(f"ds_write_b128 v13, v[28:31] offset:{8192*k}")
    a(f"v_cmp_gt_u32 vcc, {nz - 6*512}, v{TID}")
    a("s_mov_b64 exec, vcc")
    a(f"ds_write_b128 v13, v[28:31] offset:{8192*6}")
    a("s_mov_b64 exec, -1")
    a("s_waitcnt lgkmcnt(6)")
    a("v_add_u32 v14, 31, v14")
    a("v_lshrrev_b32 v14, 5, v14")
    a("v_max_u32 v14, 1, v14")
    a(f"v_cmp_gt_u32 vcc, s{S_NN}, v{LANE}")
    a(f"v_cndmask_b32 v{NST}, 0, v14, vcc")
    a("v_mad_u32_u24 v15, v14, 5, 4")
    a("v_cndmask_b32 v15, 0, v15, vcc")
    a(f"v_lshl_or_b32 v18, v15, 16, v{NST}")
    a("v_mov_b32 v19, v18")
    scan64(a, 19)
    a("v_readlane_b32 s58, v19, 63")
    a("v_sub_u32 v18, v19, v18")
    a("v_and_b32 v19, 0xffff, v19")
    a("v_lshrrev_b32 v32, 16, v18")
    a("v_and_b32 v18, 0xffff, v18")
    a("v_lshl_add_u32 v32, v32, 1, v15")
    a("v_lshlrev_b32 v32, 2, v32")
    a("s_lshr_b32 s59, s58, 16")
    a("s_and_b32 s58, s58, 0xffff")
    a(f"s_and_b32 s60, s{S_WAVE}, 3")
    a("s_lshl_b32 s60, s60, 1")
    a(f"s_lshr_b32 s61, s{S_WAVE}, 2")
    a("s_add_u32 s60, s60, s61")
    a("s_mul_i32 s60, s60, s59")
    a("s_add_u32 s61, s60, s59")
    a("v_cmp_le_u32 vcc, s60, v32")
    a("v_cmp_gt_u32 s[62:63], s61, v32")
    a("s_and_b64 vcc, vcc, s[62:63]")
    a(f"s_bcnt1_i32_b64 s{S_NNW}, vcc")
    a(f"s_ff1_i32_b64 s{S_NODE0}, vcc")
    a(f"s_max_i32 s{S_NODE0}, s{S_NODE0}, 0")
    a(f"s_add_u32 s{S_NEND}, s{S_NODE0}, s{S_NNW}")
    a(f"s_sub_u32 s60, s{S_NEND}, 1")
    a("s_max_i32 s60, s60, 0")
    a(f"v_readlane_b32 s{S_STEP0}, v18, s{S_NODE0}")
    a(f"v_readlane_b32 s{S_NS}, v19, s60")
    a(f"s_sub_u32 s{S_NS}, s{S_NS}, s{S_STEP0}")
    a(f"s_cmp_eq_u32 s{S_NNW}, 0")
    a(f"s_cselect_b32 s{S_NS}, 0, s{S_NS}")
    a(f"s_cmp_gt_u32 s{S_NS}, {MAXWSTEPS}")
    a("s_cselect_b32 s60, 1, 0")
    a(f"s_cmp_gt_u32 s58, {MAXSTEPS}")
    a("s_cselect_b32 s60, 1, s60")
    a("s_cmp_eq_u32 s60, 0")
    a("s_cbranch_scc1 NOFAIL")
    a(f"v_mov_b32 v33, {L_FLAG}")
    a("ds_write_b32 v33, v17")
    a.label("NOFAIL")
    for k in range(7):
        a(f"ds_bpermute_b32 v{20+k}, v{20+k}, v18")
    a(f"v_mov_b32 v33, {L_FLAG}")
    a("s_waitcnt lgkmcnt(0)")
    a("s_barrier")
    a("ds_read_b32 v34, v33")
    a(f"v_lshlrev_b32 v35, 2, v{TID}")
    a("v_add_u32 v35, 4, v35")
    for k in range(7):
        r = MREC + 4 * k
        a(f"v_lshl_add_u32 v{20+k}, v{20+k}, 5, v{r+3}")
        a(f"v_and_b32 v{r}, 0xffffff00, v{r}")
        a(f"v_add_u32 v36, {2048*k}, v35")
        a(f"v_or_b32 v{r+3}, v{r+2}, v36")
        a(f"v_mov_b32 v{r+2}, v{r+1}")
        a(f"v_lshlrev_b32 v{r+1}, 3, v{20+k}")
        a(f"v_add_u32 v{r+1}, {L_SB}, v{r+1}")
        a(f"v_lshlrev_b32 v{20+k}, 2, v{20+k}")
        a(f"v_add_u32 v{20+k}, {L_SA}, v{20+k}")
    a("s_waitcnt lgkmcnt(0)")
    a("v_readfirstlane_b32 s60, v34")
    a("s_cmp_eq_u32 s60, 0")
    a("s_cbranch_scc1 SCATTER")
    a(f"s_mov_b32 s{S_CAP}, {SLOWCAP}")
    a("s_waitcnt vmcnt(0)")
    a("s_barrier")
    a("s_branch ROUND")
    a.label("SCATTER")
    e_batch(2)
    for k in range(7):
        r = MREC + 4 * k
        a(f"s_mov_b64 exec, s[{S_MASK+2*k}:{S_MASK+2*k+1}]")
        a(f"ds_write_b32 v{20+k}, v{r}")
        a(f"ds_write_b64 v{r+1}, {vr(r+2,2)}")
    a("s_mov_b64 exec, -1")
    a(f"v_lshrrev_b32 v4, 4, v{LANE}")
    a("v_lshlrev_b32 v4, 3, v4")
    a(f"s_lshl_b32 s58, s{S_STEP0}, 5")
    a("v_add_u32 v4, s58, v4")
    a(f"v_bfe_u32 v5, v{LANE}, 2, 1")
    a("v_lshl_add_u32 v6, v5, 5, v4")
    a(f"v_and_b32 v5, 3, v{LANE}")
    a("v_lshl_add_u32 v6, v5, 1, v6")
    a(f"v_bfe_u32 v5, v{LANE}, 3, 1")
    a("v_add_u32 v6, v6, v5")
    a("v_lshlrev_b32 v6, 2, v6")
    a(f"v_add_u32 v6, {L_SA}, v6")
    a(f"v_bfe_u32 v5, v{LANE}, 1, 1")
    a("v_lshl_add_u32 v8, v5, 5, v4")
    a(f"v_and_b32 v5, 1, v{LANE}")
    a("v_lshl_add_u32 v8, v5, 2, v8")
    a(f"v_bfe_u32 v5, v{LANE}, 2, 2")
    a("v_add_u32 v8, v8, v5")
    a("v_lshlrev_b32 v8, 3, v8")
    a(f"v_add_u32 v8, {L_SB}, v8")
    a("s_waitcnt lgkmcnt(0)")
    a("s_barrier")
    e_batch(3)
    for s in range(10):
        a(f"ds_read_b32 v{M0R+s}, v6 offset:{256*s}")
        a(f"ds_read_b64 {vr(MBR+2*s,2)}, v8 offset:{512*s}")
    a(f"s_mov_b32 s{S_D1}, 0")
    a(f"s_mov_b32 s{S_PHASE}, 0")
    a(f"s_mov_b32 s{S_POFF}, 0")
    a(f"s_mov_b32 s{S_TAB0}, 0")
    a(f"s_mov_b32 s{S_TAB1}, 128")
    a(f"s_mov_b32 s{S_NODE}, s{S_NODE0}")
    a(f"v_readlane_b32 s{S_REM}, v{NST}, s{S_NODE}")
    stamp(a, 5)
    a("s_waitcnt vmcnt(0) lgkmcnt(0)")
    a("s_barrier")
    stamp(a, 6)
    if PROF:
        a(f"s_mov_b32 s{S_PROF+12}, s{S_NS}")
        a(f"s_mov_b32 s{S_PROF+13}, s{S_NNW}")
    a(f"s_cmp_eq_u32 s{S_NNW}, 0")
    a("s_cbranch_scc1 TAIL")
    pipeline_start(a)
    for var in ("AB" if opt("prio", 1) else "A"):
        for rho in range(3):
            step_body(a, var, rho, True)
            step_body(a, var, rho, False)
            epilogue(a, var, (rho + 1) % 3)

    a.label("TAIL")
    a("s_setprio 0")
    WF, PF, D = 0, 80, 188
    stamp(a, 8, late=True)
    a(f"v_lshlrev_b32 v{T0}, 4, v{LANE}")
    a(f"s_and_b32 s54, s{S_WAVE}, 1")
    a("s_mul_i32 s55, s54, 20480")
    a(f"s_add_u32 s55, s55, {WS_WSI - WS_WTAB}")
    a("s_waitcnt vmcnt(0)")
    for f in range(20):
        if f % 4 == 0 and f:
            a("s_add_u32 s55, s55, 4096")
        a(f"buffer_load_dwordx4 {vr(WF+4*f,4)}, v{T0}, s[{R_W}:{R_W+3}], s55 offen offset:{(f%4)*1024}")
    a("s_barrier")
    stamp(a, 9, late=True)
    a(f"s_lshl_b32 s55, s{S_WAVE}, 10")
    for k in range(10):
        if k == 9:
            a(f"s_cmp_ge_u32 s{S_WAVE}, 4")
            a("s_cbranch_scc1 NOP10")
        a("s_mov_b32 m0, s55")
        a(f"buffer_load_dwordx4 v{T0}, s[{R_P}:{R_P+3}], s55 offen sc1 lds")
        a("s_add_u32 s55, s55, 8192")
    a.label("NOP10")
    a(f"s_lshl_b32 s55, s{S_WAVE}, 13")
    a(f"s_cmp_eq_u32 s{S_R0}, 0")
    a("s_cbranch_scc1 ZEROD")
    for i in range(8):
        if i == 4:
            a("s_add_u32 s55, s55, 4096")
        a(f"buffer_load_dwordx4 {vr(D+4*i,4)}, v{T0}, s[{R_ACC}:{R_ACC+3}], s55 offen offset:{(i%4)*1024} sc1")
    a("s_branch HAVED")
    a.label("ZEROD")
    for i in range(32):
        a(f"v_mov_b32 v{D+i}, 0")
    a.label("HAVED")
    a(f"v_and_b32 v{T0+1}, 15, v{LANE}")
    a(f"s_lshr_b32 s56, s{S_WAVE}, 1")
    a("s_lshl_b32 s56, s56, 4")
    a(f"v_add_u32 v{T0+1}, s56, v{T0+1}")
    a(f"v_lshrrev_b32 v{T0+2}, 4, v{LANE}")
    a(f"v_lshlrev_b32 v{T0+2}, 4, v{T0+2}")
    a(f"v_mul_u32_u24 v{T0+3}, {P_NODE}, v{T0+1}")
    a(f"v_add_u32 v{T0+3}, v{T0+3}, v{T0+2}")
    a(f"v_lshl_add_u32 v{T0+4}, v{T0+1}, 9, v{T0+2}")
    a("s_lshl_b32 s54, s54, 6")
    a("s_waitcnt vmcnt(0)")
    a("s_barrier")
    stamp(a, 10, late=True)
    seq = []
    for comp, ts in enumerate(([P0, P1], [P2[0], P3[0], P4[0]], [P2[1], P3[1], P4[1]], [P2[2], P3[2], P4[2]])):
        for t in ts:
            for h in range(2):
                seq.append((comp, t, h))
    for i, (comp, t, h) in enumerate(seq):
        a(f"ds_read_b128 {vr(PF+4*i,4)}, v{T0+3} offset:{h*P_HALF + t*64}")
        if i == 14:
            a("s_waitcnt lgkmcnt(7)")
    for i, (comp, t, h) in enumerate(seq):
        if i >= 8:
            a(f"s_waitcnt lgkmcnt({21 - i})")
        for mt in range(2):
            d = vr(D + 8 * comp + 4 * mt, 4)
            a(f"v_mfma_f32_16x16x32_bf16 {d}, {vr(WF + 4*(10*mt + 2*TPATH[t] + h),4)}, {vr(PF+4*i,4)}, {d}")
    a(f"s_cmp_eq_u32 s{S_LAST}, 0")
    a("s_cbranch_scc1 MORE")
    for i in range(8):
        a(f"v_mul_f32 v{i}, 0xbfb8aa3b, v{D+i}")
    for i in range(8):
        a(f"v_exp_f32 v{i}, v{i}")
    for i in range(8):
        a(f"v_add_f32 v{i}, 1.0, v{i}")
    for i in range(8):
        a(f"v_rcp_f32 v{i}, v{i}")
    for comp in range(4):
        if comp:
            for i in range(8):
                a(f"v_mul_f32 v{D+8*comp+i}, v{D+8*comp+i}, v{i}")
        for i in range(4):
            a(f"v_cvt_pk_bf16_f32 v{8+4*comp+i}, v{D+8*comp+2*i}, v{D+8*comp+2*i+1}")
        a(f"buffer_store_dwordx4 {vr(8+4*comp,4)}, v{T0+4}, s[{R_OUT}:{R_OUT+3}], s54 offen offset:{128*comp}")
    if PROF:
        a("s_waitcnt vmcnt(0)")
    stamp(a, 11, late=True)
    stamp(a, 15, True)
    prof_dump(a, 98, 1, 3, S_WAVE)
    a("s_endpgm")
    a.label("MORE")
    a(f"s_lshl_b32 s55, s{S_WAVE}, 13")
    for i in range(8):
        if i == 4:
            a("s_add_u32 s55, s55, 4096")
        a(f"buffer_store_dwordx4 {vr(D+4*i,4)}, v{T0}, s[{R_ACC}:{R_ACC+3}], s55 offen offset:{(i%4)*1024}")
    a(f"s_add_u32 s{S_R0}, s{S_R0}, s{S_LEN}")
    a("s_waitcnt vmcnt(0)")
    a("s_barrier")
    a("s_branch ROUND")
    a.label("K2_end")
    a("s_endpgm")
    return a


def descriptor(name, nv, ns):
    return f""".amdhsa_kernel {name}
  .amdhsa_next_free_vgpr {nv}
  .amdhsa_next_free_sgpr {ns}
  .amdhsa_accum_offset {(nv + 3) // 4 * 4}
  .amdhsa_group_segment_fixed_size 0
  .amdhsa_kernarg_size 96
  .amdhsa_user_sgpr_count 2
  .amdhsa_user_sgpr_kernarg_segment_ptr 1
  .amdhsa_system_sgpr_workgroup_id_x 1
  .amdhsa_float_denorm_mode_32 3
.end_amdhsa_kernel
"""


def main():
    ref = open(os.path.join(os.path.dirname(os.path.abspath(__file__)), "..", "cdna_kernels", NAME + ".s.ref")).read()
    head = [l for l in ref.split("\n") if l.startswith(";") and "@launch" not in l and "Override" not in l
            and "grid=ceil" not in l]
    k1, k2 = "edge_sort_kernel", NAME + "_kernel"
    out = head + [
        f"; @launch kernel={k1} grid=(255,1,1) block=(1024,1,1) lds={K1_LDS}",
        f"; @launch kernel={k2} grid=(256,1,1) block=(512,1,1) lds={K2_LDS}",
        '.amdgcn_target "amdgcn-amd-amdhsa--gfx950"',
        ".text",
    ]
    for name, fn in ((k1, kernel1), (k2, kernel2)):
        lines, nops = fn().finish()
        print(name, "instructions:", len(lines), "nops inserted:", nops, file=sys.stderr)
        out += [f".globl {name}", ".p2align 8", f".type {name},@function", f"{name}:"] + lines
    out += ['.section .rodata,"a"', ".p2align 6", descriptor(k1, 96, 102), ".p2align 6", descriptor(k2, NVGPR, 102)]
    open(sys.argv[1], "w").write("\n".join(out))


if __name__ == "__main__":
    main()
```

```python
import os
import sys

sys.path.insert(0, os.path.dirname(os.path.abspath(__file__)))
from asmlib import Asm, vr, sr

NAME = "gather_scatter__tensor_product_equiv_equiformer__graph"
N, E = 12500, 800000
CHUNK, W = 3200, 250
NPB = 49
NBIN = 256

WS_TAB = 0
WS_WTAB = 0x40000
WS_WSI = 0x48000
WS_META = 0x100000
WS_XP = 0xB00000
WS_EP = 0x1200000
WS_P = 0x2B00000
P_NODE = 784
P_HALF = NPB * P_NODE
P_WG = 0x13000
WS_ACC = 0x4000000
XHALF = N * 256

OPT = dict(a.split("=") for a in sys.argv[2:] if "=" in a)


def opt(name, default):
    return type(default)(OPT.get(name, default))


PROF = opt("prof", 0)
WS_PROF = 0x6000000
S_PROF = 82


def stamp(a, i, real=False, late=False):
    if PROF and not (late and PROF == 2):
        a("s_waitcnt lgkmcnt(0)")
        a(("s_memrealtime" if real else "s_memtime") + " s[80:81]")
        a("s_waitcnt lgkmcnt(0)")
        a(f"s_mov_b32 s{S_PROF+i}, s80")


def prof_dump(a, wsreg, kern, nwave_shift, wavereg):
    if PROF:
        a(f"s_lshl_b32 s80, s2, {nwave_shift}")
        a(f"s_add_u32 s80, s80, s{wavereg}")
        a("s_lshl_b32 s80, s80, 6")
        a(f"s_add_u32 s80, s80, {WS_PROF + kern * 0x100000}")
        srd(a, 4, wsreg, "s80", 64)
        a("v_mov_b32 v0, 0")
        for i in range(16):
            a(f"v_mov_b32 v1, s{S_PROF+i}")
            a(f"buffer_store_dword v1, v0, s[4:7], 0 offen offset:{4*i}")


def srd(a, d, b, off, size):
    a(f"s_add_u32 s{d}, s{b}, {off}")
    a(f"s_addc_u32 s{d+1}, s{b+1}, 0")
    a(f"s_mov_b32 s{d+2}, {size}")
    a(f"s_mov_b32 s{d+3}, 0x20000")


def scan64(a, v):
    for sh in (1, 2, 4, 8):
        a(f"v_add_u32_dpp v{v}, v{v}, v{v} row_shr:{sh} row_mask:0xf bank_mask:0xf bound_ctrl:1")
    a(f"v_add_u32_dpp v{v}, v{v}, v{v} row_bcast:15 row_mask:0xa bank_mask:0xf")
    a(f"v_add_u32_dpp v{v}, v{v}, v{v} row_bcast:31 row_mask:0xc bank_mask:0xf")


K1_ERAW = 0
K1_MS = 102400
K1_INV = K1_MS + 38400
K1_HIST = K1_INV + 6400
K1_LDS = 152 * 1024


def kernel1():
    a = Asm()
    NT = " nt" if opt("k1nt", 1) else ""
    ST = {0: "", 1: " nt", 2: " sc1"}[opt("k1st", 0)]
    a("s_cmp_ge_u32 s2, 255")
    a("s_cbranch_scc1 K1_end")
    a("s_load_dwordx8 s[4:11], s[0:1], 0")
    a("s_load_dwordx8 s[52:59], s[0:1], 32")
    a("s_load_dwordx2 s[14:15], s[0:1], 88")
    a("v_lshlrev_b32 v1, 4, v0")
    a("v_mul_u32_u24 v2, 24, v0")
    a("v_and_b32 v3, 63, v0")
    a("v_lshlrev_b32 v3, 4, v3")
    a("v_lshrrev_b32 v40, 6, v0")
    a("v_readfirstlane_b32 s3, v40")
    a("s_cmp_ge_u32 s2, 250")
    a("s_cbranch_scc1 K1_prep")
    stamp(a, 0, True)
    stamp(a, 1)
    a("s_mul_i32 s60, s2, 12800")
    a("s_mul_i32 s61, s2, 19200")
    a("s_mul_i32 s62, s2, 25600")
    a("s_mul_i32 s63, s2, 102400")
    a("s_mul_i32 s64, s2, 38400")
    a("s_lshl_b32 s65, s2, 10")
    a("s_waitcnt lgkmcnt(0)")
    srd(a, 16, 52, "s60", 12800)
    a(f"buffer_load_dwordx4 v[4:7], v1, s[16:19], 0 offen{NT}")
    a("v_lshlrev_b32 v41, 2, v0")
    a("v_mov_b32 v42, 0")
    a("s_cmp_ge_u32 s3, 4")
    a("s_cbranch_scc1 K1_nozero")
    a(f"v_add_u32 v41, {K1_HIST}, v41")
    a("ds_write_b32 v41, v42")
    a.label("K1_nozero")
    srd(a, 20, 10, "s60", 12800)
    srd(a, 24, 6, "s61", 19200)
    srd(a, 28, 4, "s62", 25600)
    srd(a, 32, 8, "s63", 102400)
    a("s_mov_b32 s66, 16384")
    a("s_lshl_b32 s67, s3, 10")
    a("s_waitcnt lgkmcnt(0)")
    a("s_barrier")
    a(f"buffer_load_dwordx4 v[8:11], v1, s[20:23], 0 offen{NT}")
    a(f"buffer_load_dwordx4 v[12:15], v2, s[24:27], 0 offen{NT}")
    a(f"buffer_load_dwordx2 v[16:17], v2, s[24:27], 0 offen offset:16{NT}")
    if opt("k1b2", 1):
        a("s_barrier")
    a(f"buffer_load_dwordx4 v[20:23], v1, s[28:31], 0 offen{NT}")
    a(f"buffer_load_dwordx4 v[24:27], v1, s[28:31], s66 offen{NT}")
    for k in range(6):
        a("s_mov_b32 m0, s67")
        a(f"buffer_load_dwordx4 v3, s[32:35], s67 offen{NT} lds")
        a("s_add_u32 s67, s67, 16384")
    a("s_cmp_ge_u32 s3, 4")
    a("s_cbranch_scc1 K1_noe7")
    a("s_mov_b32 m0, s67")
    a(f"buffer_load_dwordx4 v3, s[32:35], s67 offen{NT} lds")
    a.label("K1_noe7")
    a("s_add_u32 s68, s64, %d" % WS_META)
    srd(a, 36, 14, "s68", 38400)
    a("s_add_u32 s68, s63, %d" % WS_EP)
    srd(a, 40, 14, "s68", 102400)
    srd(a, 44, 14, WS_XP, 2 * XHALF)
    srd(a, 48, 14, "s65", 1024)
    a("v_cmp_gt_u32 vcc, 800, v0")
    a("s_mov_b64 s[70:71], vcc")
    a("v_mov_b32 v43, 1")
    a("s_waitcnt vmcnt(11)")
    stamp(a, 2)
    a("s_mov_b64 exec, s[70:71]")
    a("s_cbranch_execz K1_skip_rank")
    for i in range(4):
        a(f"v_mul_u32_u24 v{28+i}, 21400, v{4+i}")
        a(f"v_lshrrev_b32 v{28+i}, 20, v{28+i}")
        a(f"v_mul_u32_u24 v{36+i}, 49, v{28+i}")
        a(f"v_sub_u32 v{36+i}, v{4+i}, v{36+i}")
        a(f"v_lshlrev_b32 v{28+i}, 2, v{28+i}")
        a(f"v_add_u32 v{28+i}, {K1_HIST}, v{28+i}")
        a(f"ds_add_rtn_u32 v{32+i}, v{28+i}, v43")
    a.label("K1_skip_rank")
    a("s_mov_b64 exec, -1")
    a("s_waitcnt lgkmcnt(0)")
    a("s_barrier")
    stamp(a, 3)
    a("s_cmp_lg_u32 s3, 0")
    a("s_cbranch_scc1 K1_noscan")
    a(f"v_add_u32 v41, {K1_HIST}, v3")
    a("ds_read_b128 v[44:47], v41")
    a("s_waitcnt lgkmcnt(0)")
    a("v_add_u32 v49, v44, v45")
    a("v_add_u32 v50, v49, v46")
    a("v_add_u32 v51, v50, v47")
    a("v_mov_b32 v52, v51")
    scan64(a, 52)
    a("v_sub_u32 v52, v52, v51")
    a("v_add_u32 v53, v52, v44")
    a("v_add_u32 v54, v52, v49")
    a("v_add_u32 v55, v52, v50")
    a("ds_write_b128 v41, v[52:55]")
    for i in range(4):
        a(f"v_lshl_or_b32 v{56+i}, v{44+i}, 16, v{52+i}")
    a("buffer_store_dwordx4 v[56:59], v3, s[48:51], 0 offen")
    a("s_waitcnt lgkmcnt(0)")
    a.label("K1_noscan")
    a("v_lshrrev_b32 v60, 5, v0")
    a("s_mul_i32 s69, s2, 50")
    a("v_add_u32 v60, s69, v60")
    a("v_lshlrev_b32 v60, 8, v60")
    a("v_bfe_u32 v61, v0, 3, 2")
    a("v_lshl_add_u32 v60, v61, 6, v60")
    a("v_and_b32 v61, 3, v0")
    a("v_lshl_add_u32 v60, v61, 4, v60")
    a("v_bfe_u32 v61, v0, 2, 1")
    a(f"v_mul_u32_u24 v61, {XHALF}, v61")
    a("v_add_u32 v60, v60, v61")
    a("v_add_u32 v61, 8192, v60")
    a("v_cmp_gt_u32 vcc, 576, v0")
    a("v_mov_b32 v62, 0x80000000")
    a("v_cndmask_b32 v61, v62, v61, vcc")
    a("s_barrier")
    a("s_mov_b64 exec, s[70:71]")
    a("s_cbranch_execz K1_skip_scatter")
    for i in range(4):
        a(f"ds_read_b32 v{28+i}, v{28+i}")
    a("s_waitcnt vmcnt(8)")
    a("s_mov_b32 s72, 0x80000000")
    a("s_mov_b32 s73, 0xffff0000")
    for i in range(4):
        a(f"v_lshl_or_b32 v{8+i}, v{8+i}, 8, v{36+i}")
        a(f"v_or_b32 v{8+i}, s72, v{8+i}")
    a("v_lshlrev_b32 v44, 16, v13")
    a("v_alignbit_b32 v45, v14, v13, 16")
    a("v_and_b32 v46, s73, v14")
    a("v_lshlrev_b32 v47, 16, v16")
    a("v_alignbit_b32 v48, v17, v16, 16")
    a("v_and_b32 v49, s73, v17")
    w1 = [12, 45, 15, 48]
    w2 = [44, 46, 47, 49]
    a("v_lshlrev_b32 v50, 2, v0")
    a("s_waitcnt lgkmcnt(0)")
    for i in range(4):
        a(f"v_add_u32 v{32+i}, v{32+i}, v{28+i}")
        a(f"v_mul_u32_u24 v{28+i}, 12, v{32+i}")
        a(f"v_add_u32 v{28+i}, {K1_MS}, v{28+i}")
        a(f"ds_write2_b32 v{28+i}, v{8+i}, v{w1[i]} offset0:0 offset1:1")
        a(f"ds_write_b32 v{28+i}, v{w2[i]} offset:8")
        a(f"v_lshlrev_b32 v{32+i}, 1, v{32+i}")
        a(f"v_add_u32 v{32+i}, {K1_INV}, v{32+i}")
        a(f"v_add_u32 v{52+i}, {i}, v50")
        a(f"ds_write_b16 v{32+i}, v{52+i}")
    a.label("K1_skip_scatter")
    a("s_mov_b64 exec, -1")
    a("s_waitcnt vmcnt(6)")
    a(f"buffer_store_dwordx4 v[20:23], v60, s[44:47], 0 offen{ST}")
    a(f"buffer_store_dwordx4 v[24:27], v61, s[44:47], 0 offen{ST}")
    a("s_waitcnt lgkmcnt(0)")
    a("s_barrier")
    stamp(a, 4)
    a(f"v_add_u32 v41, {K1_MS}, v1")
    a("ds_read_b128 v[4:7], v41")
    a("ds_read_b128 v[8:11], v41 offset:16384")
    a("ds_read_b128 v[12:15], v41 offset:32768")
    a("v_and_b32 v42, 0x3fe, v0")
    a(f"v_add_u32 v42, {K1_INV}, v42")
    for k in range(7):
        a(f"ds_read_u16 v{28+k}, v42 offset:{1024*k}")
    a("v_and_b32 v43, 1, v0")
    a("v_lshlrev_b32 v43, 4, v43")
    a("s_mov_b32 s74, 32768")
    a("s_waitcnt lgkmcnt(7)")
    a(f"buffer_store_dwordx4 v[4:7], v1, s[36:39], 0 offen{ST}")
    a(f"buffer_store_dwordx4 v[8:11], v1, s[36:39], s66 offen{ST}")
    a(f"buffer_store_dwordx4 v[12:15], v1, s[36:39], s74 offen{ST}")
    a("s_waitcnt lgkmcnt(0)")
    for k in range(7):
        a(f"v_lshl_add_u32 v{28+k}, v{28+k}, 5, v43")
    stamp(a, 5)
    a("s_waitcnt vmcnt(5)")
    a("s_barrier")
    stamp(a, 6)
    for k in range(6):
        a(f"ds_read_b128 v[{64+4*k}:{67+4*k}], v{28+k}")
    a("s_mov_b32 s75, 0")
    for k in range(6):
        a(f"s_waitcnt lgkmcnt({5-k})")
        a(f"buffer_store_dwordx4 v[{64+4*k}:{67+4*k}], v1, s[40:43], s75 offen{ST}")
        a("s_add_u32 s75, s75, 16384")
    a("s_cmp_ge_u32 s3, 4")
    a("s_cbranch_scc1 K1_fin")
    a("ds_read_b128 v[88:91], v34")
    a("s_waitcnt lgkmcnt(0)")
    a(f"buffer_store_dwordx4 v[88:91], v1, s[40:43], s75 offen{ST}")
    a.label("K1_fin")
    stamp(a, 7)
    if PROF:
        a("s_waitcnt vmcnt(0)")
    stamp(a, 8)
    stamp(a, 15, True)
    prof_dump(a, 14, 0, 4, 3)
    a("s_endpgm")

    a.label("K1_prep")
    a("s_waitcnt lgkmcnt(0)")
    srd(a, 16, 54, 0, 16 * 320 * 2)
    srd(a, 20, 56, 0, 128 * 64 * 2)
    srd(a, 24, 58, 0, 192 * 64 * 2)
    srd(a, 28, 14, WS_WTAB, 20480)
    srd(a, 32, 14, WS_WSI, 40960)
    a("s_sub_u32 s60, s2, 250")
    a("s_lshl_b32 s60, s60, 10")
    a("v_add_u32 v4, s60, v0")
    a("v_and_b32 v5, 3, v4")
    a("v_bfe_u32 v6, v4, 2, 4")
    a("v_bfe_u32 v7, v4, 6, 2")
    a("v_lshrrev_b32 v8, 8, v4")
    a("v_cmp_le_u32 vcc, 10, v8")
    a("v_cndmask_b32 v9, 0, 1, vcc")
    a("v_mul_u32_u24 v10, 10, v9")
    a("v_sub_u32 v10, v8, v10")
    a("v_lshl_add_u32 v11, v7, 2, v5")
    a("v_mul_u32_u24 v11, 320, v11")
    a("v_lshrrev_b32 v12, 1, v10")
    a("v_lshl_add_u32 v11, v12, 6, v11")
    a("v_lshl_add_u32 v11, v9, 5, v11")
    a("v_and_b32 v12, 1, v10")
    a("v_lshl_add_u32 v11, v12, 4, v11")
    a("v_add_u32 v11, v11, v6")
    a("v_lshlrev_b32 v11, 1, v11")
    a("buffer_load_ushort v13, v11, s[16:19], 0 offen")
    a("v_mov_b32 v30, 0x80000000")
    for t in range(2):
        b = 32 + 8 * t
        a(f"v_add_u32 v14, {20*t}, v8")
        a("v_mul_u32_u24 v15, 26, v14")
        a("v_lshrrev_b32 v15, 8, v15")
        a("v_mul_u32_u24 v16, 10, v15")
        a("v_sub_u32 v16, v14, v16")
        a("v_lshrrev_b32 v17, 1, v16")
        a("v_and_b32 v18, 1, v16")
        a("v_lshl_add_u32 v19, v7, 2, v5")
        a("v_lshl_add_u32 v19, v18, 5, v19")
        a("v_lshl_add_u32 v19, v17, 6, v19")
        a("v_lshrrev_b32 v20, 1, v15")
        a("v_and_b32 v21, 1, v15")
        a("v_lshrrev_b32 v22, 2, v6")
        a("v_lshlrev_b32 v22, 3, v22")
        a("v_lshl_add_u32 v22, v20, 5, v22")
        a("v_lshl_add_u32 v22, v21, 2, v22")
        a("v_and_b32 v23, 3, v6")
        a("v_add_u32 v22, v22, v23")
        a("v_lshl_add_u32 v22, v19, 6, v22")
        a("v_lshlrev_b32 v22, 1, v22")
        a("v_subrev_u32 v23, 16384, v22")
        a("v_cmp_gt_u32 vcc, 2, v17")
        a("v_cndmask_b32 v24, v30, v22, vcc")
        a("v_cndmask_b32 v25, v23, v30, vcc")
        a(f"buffer_load_ushort v{b}, v24, s[20:23], 0 offen")
        a(f"buffer_load_ushort v{b+1}, v24, s[20:23], 0 offen offset:2048")
        a(f"buffer_load_ushort v{b+2}, v25, s[24:27], 0 offen")
        a(f"buffer_load_ushort v{b+3}, v25, s[24:27], 0 offen offset:2048")
    a("v_lshlrev_b32 v4, 2, v4")
    a("s_mov_b32 s61, 20480")
    a("s_waitcnt vmcnt(0)")
    a("v_lshlrev_b32 v13, 16, v13")
    a("buffer_store_dword v13, v4, s[28:31], 0 offen")
    for t in range(2):
        b = 32 + 8 * t
        a(f"v_or_b32 v{b}, v{b}, v{b+2}")
        a(f"v_or_b32 v{b+1}, v{b+1}, v{b+3}")
        a(f"v_lshl_or_b32 v{b}, v{b+1}, 16, v{b}")
        a(f"buffer_store_dword v{b}, v4, s[32:35], {'0' if t == 0 else 's61'} offen")
    a.label("K1_end")
    a("s_endpgm")
    return a


CAP = 3392
SLOWCAP = 256
MAXSTEPS = 142
MAXWSTEPS = 20
L_E = 0
L_RING = 32 + CAP * 32
RING_W = 6336
SUBB = 2112
L_SA = L_RING
L_SB = L_SA + MAXSTEPS * 128
L_MISC = L_SB + MAXSTEPS * 256
L_CNT = L_MISC
L_FLAG = L_MISC + 256
L_WSUM = L_MISC + 272
K2_LDS = 163840
assert L_WSUM + 16 <= K2_LDS and L_RING + 8 * RING_W <= L_MISC

ACC = 0
WR = 88
B0 = 128
B1 = 144
GS, G0, G1, G2, N0, N2 = 160, 164, 168, 172, 176, 180
SEL = 184
M0R = 188
MBR = 198
W1C, W2C = 218, 219
Y = 220
REP = 223
XA = 224
XOFF, QQ8, BAE, BAO, POFF, NST = 228, 229, 230, 231, 232, 233
UH, UL, PT, T8, EA = 234, 238, 242, 246, 247
T0 = 234
TID, LANE = 249, 250
NVGPR = 252

S_WAVE = 3
R_XP, R_EP, R_MT, R_TB, R_P, R_W, R_OUT, R_ACC = 4, 8, 12, 16, 20, 24, 28, 32
S_NN, S_T, S_R0, S_LEN, S_CAP = 36, 37, 38, 39, 40
S_NODE0, S_NNW, S_STEP0, S_NS = 41, 42, 43, 44
S_D1, S_REM, S_NODE, S_PHASE, S_TAB0, S_TAB1, S_RB, S_POFF, S_D2 = 45, 46, 47, 48, 49, 50, 51, 52, 53
S_HI, S_SGN, S_BUMP = 100, 101, 58
S_MASK = 64
S_LAST = 78
S_NEND = 79
S_EM0 = 53

TPATH = [0, 1, 2, 2, 2, 3, 3, 3, 4, 4, 4]
P0, P1 = 0, 1
P2 = [2, 3, 4]
P3 = [5, 6, 7]
P4 = [8, 9, 10]


def acc(t, cq):
    return ACC + 4 * (2 * t + cq)


def mfma_list():
    out = []
    for t, A, B, fl in ((P2[0], G0, B0, 1), (P1, G0, B0 + 8, 1), (P0, GS, B0, 1), (P3[0], GS, B0 + 8, 1),
                        (P2[2], G2, B0, 1), (P4[1], G2, B0 + 8, 1), (P2[1], G1, B0, 1), (P4[2], G1, B0 + 8, 1),
                        (P4[2], N0, B1, 0), (P4[1], N0, B1 + 8, 0), (P3[1], GS, B1, 1), (P3[2], GS, B1 + 8, 1),
                        (P4[0], N2, B1, 1), (P1, G2, B1 + 8, 0), (P1, G1, B1, 0), (P4[0], G1, B1 + 8, 0)):
        for cq in range(2):
            out.append((t, cq, A, B + 4 * cq, fl))
    return out


def emit_mfma(a, m, first):
    t, cq, A, B, fl = m
    if opt("nomfma", 0):
        return
    d = vr(acc(t, cq), 4)
    c = "0" if (first and fl) else d
    a(f"v_mfma_f32_16x16x32_bf16 {d}, {vr(A,4)}, {vr(B,4)}, {c}")


def b_reads(k, pos):
    B = B0 if k < 2 else B1
    hf = k & 1
    return [f"ds_read_b64_tr_b16 {vr(B + 4*u + 2*hf, 2)}, v{BAE if u % 2 == 0 else BAO} offset:{pos*SUBB + u*32}"
            for u in range(4)]


def vmwait(n):
    return [] if opt("nowait", 0) else [f"s_waitcnt vmcnt({n})"]


def dma(k, pos):
    if opt("nodma", 0):
        return [[], [], [], []]
    hf, bp = k & 1, k >> 1
    so = S_TAB0 if bp == 0 else S_TAB1
    out = []
    for s in range(2):
        out.append([f"s_add_u32 m0, s{S_RB}, {pos*SUBB + s*1088}"])
        out.append([f"buffer_load_dwordx4 v{XA + 2*hf + s}, s[{R_XP}:{R_XP+3}], s{so} offen lds"])
    return out


def w0_fetch(sreg):
    return [f"s_lshr_b32 s54, s{sreg}, 1",
            "s_set_gpr_idx_on s54, gpr_idx(SRC0)",
            f"v_mov_b32 v{REP}, v{M0R}",
            "s_set_gpr_idx_off"]


def w0_rep(tag, sreg):
    return [f"s_bitcmp1_b32 s{sreg}, 0",
            f"s_cbranch_scc1 {tag}_odd",
            f"v_mov_b32_dpp v{REP}, v{REP} row_shr:4 row_mask:0xf bank_mask:0xa",
            f"s_branch {tag}_done",
            f"{tag}_odd:",
            f"v_mov_b32_dpp v{REP}, v{REP} row_shl:4 row_mask:0xf bank_mask:0x5",
            f"{tag}_done:"]


def x_addr(q):
    return f"v_add_u32_dpp v{XA+q}, v{REP}, v{XOFF} quad_perm:[{q},{q},{q},{q}] row_mask:0xf bank_mask:0xf"


def meta_fetch(tag, sreg):
    return [f"s_bitcmp1_b32 s{sreg}, 0",
            f"s_cbranch_scc1 {tag}_odd",
            f"s_set_gpr_idx_on s{sreg}, gpr_idx(SRC0)",
            f"v_mov_b32 v{W1C}, v{MBR}",
            f"v_mov_b32 v{W2C}, v{MBR+1}",
            "s_set_gpr_idx_off",
            f"s_branch {tag}_done",
            f"{tag}_odd:",
            f"v_mov_b32_dpp v{W1C}, v{W1C} quad_perm:[2,3,2,3] row_mask:0xf bank_mask:0xf",
            f"v_mov_b32_dpp v{W2C}, v{W2C} quad_perm:[2,3,2,3] row_mask:0xf bank_mask:0xf",
            f"{tag}_done:"]


M_T8 = f"v_lshlrev_b32_sdwa v{T8}, 3, v{W2C} dst_sel:DWORD dst_unused:UNUSED_PAD src0_sel:DWORD src1_sel:WORD_0"
M_Y = [f"v_lshlrev_b32 v{Y}, 16, v{W1C}", f"v_and_b32 v{Y+1}, s{S_HI}, v{W1C}", f"v_and_b32 v{Y+2}, s{S_HI}, v{W2C}"]
M_EA = [f"v_add_u32_dpp v{EA+h}, v{T8}, v{QQ8} quad_perm:[{h},{h},{h},{h}] row_mask:0xf bank_mask:0xf"
        for h in range(2)]


def e_reads(dst):
    return [f"ds_read_b64_tr_b16 {vr(dst + 2*h, 2)}, v{EA+h}" for h in range(2)]


def unpack(aa):
    return [f"v_lshlrev_b32 v{UL+aa}, 16, v{UH+aa}", f"v_and_b32 v{UH+aa}, s{S_HI}, v{UH+aa}"]


def gb(j, aa):
    if opt("nog", 0):
        return []
    hf, rl = aa >> 1, 2 * (aa & 1)
    pl = PT + 2 * (aa & 1)
    return [f"v_mul_f32_dpp v{pl}, v{Y+j}, v{UL+aa} row_newbcast:{4*rl+hf} row_mask:0xf bank_mask:0xf",
            f"v_mul_f32_dpp v{pl+1}, v{Y+j}, v{UH+aa} row_newbcast:{4*(rl+1)+hf} row_mask:0xf bank_mask:0xf",
            f"v_cvt_pk_bf16_f32 v{(G0, G1, G2)[j]+aa}, v{pl}, v{pl+1}"]


def neg(dst, src):
    return [f"v_xor_b32 v{dst+i}, s{S_SGN}, v{src+i}" for i in range(4)]


def next_index(dst, src):
    return [f"s_add_u32 s{dst}, s{src}, 1",
            f"s_cmp_lt_u32 s{dst}, s{S_NS}",
            f"s_cselect_b32 s{dst}, s{dst}, 0",
            f"s_cselect_b32 s{S_BUMP}, 0, {XHALF}"]


BUMP = [f"s_add_u32 s{S_TAB0}, s{S_TAB0}, s{S_BUMP}", f"s_add_u32 s{S_TAB1}, s{S_TAB1}, s{S_BUMP}"]


def step_body(a, var, rho, first):
    tag = f"{var}S{rho}{'f' if first else 'n'}"
    x = 3 if first else 0
    p = lambda k: (rho + k) % 3
    F = [[] for _ in range(32)]

    def spread(slot, lst, per=2):
        for i, l in enumerate(lst):
            F[slot + i // per].append(l)

    def event(slot, n, k, pos):
        r = b_reads(k, pos)
        F[slot] += vmwait(n) + r[:2]
        F[slot + 1] += r[2:]

    def refill(slot, k, pos, wait="lgkmcnt(0)"):
        d = dma(k, pos)
        F[slot - 1] += d[0]
        F[slot] += [f"s_waitcnt {wait}"] + d[1] + d[2]
        F[slot + 1] += d[3]

    n0, n2 = neg(N0, G0), neg(N2, G2)
    spread(0, gb(2, 2) + gb(2, 3) + gb(1, 0) + gb(1, 1) + gb(1, 2) + gb(1, 3))
    event(0, 4 + x, 2, p(2))
    refill(4, 1, p(2))
    event(8, 4 + x, 3, p(0))
    F[9] += meta_fetch(tag + "_m", S_D1)
    spread(10, [M_T8, n0[0], M_Y[0], n0[1]] + M_EA)
    refill(12, 2, p(0))
    F[13] += e_reads(UH)
    spread(13, [n0[2], n0[3], M_Y[1], M_Y[2]])
    F[14] += next_index(S_D2, S_D1)
    F[15] += w0_fetch(S_D2) + [n2[0]]
    event(16, 4 + x, 0, p(1))
    F[16] += w0_rep(tag + "_a", S_D2) + [n2[1]]
    F[17] += ["s_waitcnt lgkmcnt(4)"]
    spread(17, unpack(0) + unpack(1) + [n2[2], n2[3]] + unpack(2) + unpack(3) + [x_addr(0), x_addr(1)])
    refill(20, 3, p(1))
    spread(23, gb(0, 0) + gb(0, 1) + gb(0, 2) + gb(0, 3) + gb(2, 0) + gb(2, 1))
    F[22] += BUMP
    F[23] += e_reads(GS)
    event(24, 4, 1, p(2))
    F[26] += [x_addr(2)]
    F[27] += [x_addr(3)]
    refill(28, 0, p(2))
    F[30] += [f"s_mov_b32 s{S_D1}, s{S_D2}", f"s_sub_u32 s{S_REM}, s{S_REM}, 1"]
    F[31] += [f"s_cmp_lg_u32 s{S_REM}, 0"]
    if var == "A" and opt("prio", 1):
        lo, hi = opt("prlo", 0), opt("prhi", 2)
        G = []
        for l in F[9]:
            if l.startswith("s_set_gpr_idx_on"):
                G.append(f"s_setprio {lo}")
            G.append(l)
            if l.endswith("_m_odd:"):
                G.append(f"s_setprio {hi}")
        F[9] = G
    a.label(tag)
    for i, m in enumerate(mfma_list()):
        emit_mfma(a, m, first)
        for l in F[i]:
            if opt("nods", 0) and (l.startswith("ds_") or l.startswith("s_waitcnt lgkm")):
                continue
            if opt("nobr", 0) and (l.startswith(("s_cbranch", "s_branch", "s_bitcmp")) or "row_shl" in l
                                   or "[2,3,2,3]" in l):
                continue
            if opt("novalu", 0) and l.startswith("v_"):
                continue
            if opt("noidx", 0) and l.startswith("s_set_gpr"):
                continue
            a(l)
    a(f"s_cbranch_scc1 {var}S{(rho+1)%3}n")
    if first:
        a(f"s_branch {var}EP{(rho+1)%3}")


def pipeline_start(a):
    def run(lst):
        for l in lst:
            a(l)

    def dma_now(k, pos):
        for g in dma(k, pos):
            run(g)

    run(w0_fetch(S_D1) + w0_rep("I_a", S_D1) + [x_addr(q) for q in range(4)])
    dma_now(0, 0)
    dma_now(1, 1)
    dma_now(2, 2)
    run(meta_fetch("I_m", S_D1) + [M_T8] + M_Y + M_EA + e_reads(UH) + e_reads(GS))
    run(["s_waitcnt vmcnt(4)"] + b_reads(0, 0) + ["s_waitcnt lgkmcnt(0)"])
    dma_now(3, 0)
    run(next_index(S_D1, S_D1) + BUMP + w0_fetch(S_D1) + w0_rep("I_b", S_D1) + [x_addr(q) for q in range(4)])
    run(["s_waitcnt vmcnt(4)"] + b_reads(1, 1))
    for aa in range(4):
        run(unpack(aa))
    run(gb(0, 0) + gb(0, 1) + gb(0, 2) + gb(0, 3) + gb(2, 0) + gb(2, 1))
    a("v_mov_b32 v0, 0x80000000")
    a("s_waitcnt lgkmcnt(0)")
    dma_now(0, 1)
    for i in range(3):
        a(f"buffer_store_dword v0, v0, s[{R_P}:{R_P+3}], 0 offen")
    if opt("prio", 1):
        a(f"s_cmp_lt_u32 s{S_WAVE}, 4")
        a("s_cbranch_scc1 AS0f")
        a("s_setprio 1")
        a("s_branch BS0f")
    else:
        a("s_branch AS0f")


def epilogue(a, var, rho):
    a.label(f"{var}EP{rho}")
    order = [P2[0], P0, P3[0], P2[2], P2[1], P4[2], P4[1], P3[1], P3[2], P1, P4[0]]
    book = [f"s_mul_i32 s55, s{S_NODE}, {P_NODE}",
            f"s_add_u32 s55, s55, s{S_POFF}",
            f"s_add_u32 s{S_NODE}, s{S_NODE}, 1",
            f"s_cmp_lt_u32 s{S_NODE}, s{S_NEND}",
            "s_cselect_b32 s56, 0, 1",
            f"s_cselect_b32 s{S_NODE}, s{S_NODE}, s{S_NODE0}",
            f"v_readlane_b32 s{S_REM}, v{NST}, s{S_NODE}",
            "s_cmp_eq_u32 s56, 0"]
    for t in order:
        pth = TPATH[t]
        for r in range(0 if opt("noep", 0) else 4):
            for cq in range(2):
                d, w = acc(t, cq), WR + 4 * (2 * pth + cq)
                if r == 0:
                    a(f"v_mul_f32 v{d}, v{d}, v{w}")
                else:
                    a(f"v_fmac_f32 v{d}, v{d+r}, v{w+r}")
        n = "-" if t == P4[2] else ""
        a(f"v_cvt_pk_bf16_f32 v{B1+t}, {n}v{acc(t,0)}, {n}v{acc(t,1)}")
        if t == P0:
            a(f"v_mov_b32 v{B1+11}, 0")
        if t == P1:
            a(f"v_mfma_f32_16x16x32_bf16 {vr(20,4)}, {vr(SEL,4)}, {vr(B1+4,4)}, 0")
    a(book[0])
    a(f"v_mfma_f32_16x16x32_bf16 {vr(16,4)}, {vr(SEL,4)}, {vr(B1,4)}, 0")
    a(f"v_mfma_f32_16x16x32_bf16 {vr(24,4)}, {vr(SEL,4)}, {vr(B1+8,4)}, 0")
    a(f"v_cvt_pk_bf16_f32 v65, v20, v21")
    for l in book[1:]:
        a(l)
    a(f"buffer_store_dword v65, v{POFF}, s[{R_P}:{R_P+3}], s55 offen offset:256")
    for i in (0, 2):
        a(f"v_cvt_pk_bf16_f32 v{64+i}, v{16+4*i}, v{17+4*i}")
    for i in (0, 2):
        a(f"buffer_store_dword v{64+i}, v{POFF}, s[{R_P}:{R_P+3}], s55 offen offset:{256*i}")
    a(f"s_cbranch_scc1 {var}S{rho}f")
    a(f"s_cmp_lg_u32 s{S_PHASE}, 0")
    a("s_cbranch_scc1 TAIL")
    stamp(a, 7, late=True)
    a(f"s_mov_b32 s{S_PHASE}, 1")
    a(f"s_mov_b32 s{S_POFF}, {P_HALF}")
    a("s_mov_b32 s57, 10240")
    a(f"v_lshlrev_b32 v67, 4, v{LANE}")
    for pc in range(10):
        if pc % 4 == 0 and pc:
            a("s_add_u32 s57, s57, 4096")
        a(f"buffer_load_dwordx4 {vr(WR+4*pc,4)}, v67, s[{R_W}:{R_W+3}], s57 offen offset:{(pc%4)*1024}")
    a(f"s_branch {var}S{rho}f")


def kernel2():
    a = Asm()
    a("s_cmp_ge_u32 s2, 256")
    a("s_cbranch_scc1 K2_end")
    if opt("xcdmap", 1) == 2:
        a("s_load_dwordx2 s[54:55], s[0:1], 80")
        a("s_getreg_b32 s58, hwreg(HW_REG_XCC_ID, 0, 3)")
        a("v_lshrrev_b32 v1, 6, v0")
        a("v_readfirstlane_b32 s3, v1")
        a(f"v_mov_b32 v3, {L_WSUM}")
        a("s_cmp_lg_u32 s3, 0")
        a("s_cbranch_scc1 CLAIMED")
        a("s_waitcnt lgkmcnt(0)")
        srd(a, 4, 54, 0, 256)
        a("s_mov_b64 exec, 1")
        a.label("CLAIM")
        a("v_mov_b32 v1, 1")
        a("s_lshl_b32 s59, s58, 5")
        a("v_mov_b32 v2, s59")
        a("buffer_atomic_add v1, v2, s[4:7], 0 offen sc0")
        a("s_add_u32 s58, s58, 1")
        a("s_and_b32 s58, s58, 7")
        a("s_waitcnt vmcnt(0)")
        a("v_readfirstlane_b32 s60, v1")
        a("s_cmp_ge_u32 s60, 32")
        a("s_cbranch_scc1 CLAIM")
        a("v_add_u32 v1, v1, v2")
        a("ds_write_b32 v3, v1")
        a("s_mov_b64 exec, -1")
        a.label("CLAIMED")
        a("s_waitcnt lgkmcnt(0)")
        a("s_barrier")
        a("ds_read_b32 v1, v3")
        a("s_waitcnt lgkmcnt(0)")
        a("v_readfirstlane_b32 s2, v1")
        a("s_and_b32 s2, s2, 255")
        a("s_barrier")
    if opt("xcdmap", 1) == 1:
        a("s_and_b32 s3, s2, 7")
        a("s_lshl_b32 s3, s3, 5")
        a("s_lshr_b32 s2, s2, 3")
        a("s_or_b32 s2, s2, s3")
    a("s_load_dwordx2 s[54:55], s[0:1], 72")
    a("s_load_dwordx2 s[56:57], s[0:1], 88")
    a(f"v_mov_b32 v{TID}, v0")
    a(f"v_and_b32 v{LANE}, 63, v0")
    a("v_lshrrev_b32 v1, 6, v0")
    a(f"v_readfirstlane_b32 s{S_WAVE}, v1")
    a("s_cmp_eq_u32 s2, 255")
    a(f"s_cselect_b32 s{S_NN}, {N - 255*NPB}, {NPB}")
    stamp(a, 0, True)
    stamp(a, 1)
    a("s_waitcnt lgkmcnt(0)")
    if PROF:
        a("s_mov_b64 s[98:99], s[56:57]")
    srd(a, R_TB, 56, WS_TAB, W * 1024)
    srd(a, R_W, 56, WS_WTAB, 0x12000)
    srd(a, R_MT, 56, WS_META, E * 12)
    srd(a, R_EP, 56, WS_EP, E * 32)
    srd(a, R_XP, 56, WS_XP, 2 * XHALF)
    a(f"s_mul_i32 s59, s2, {P_WG}")
    a(f"s_add_u32 s59, s59, {WS_P}")
    srd(a, R_P, 56, "s59", 2 * P_HALF)
    a("s_lshl_b32 s59, s2, 16")
    a(f"s_add_u32 s59, s59, {WS_ACC}")
    srd(a, R_ACC, 56, "s59", 65536)
    a(f"s_mul_i32 s59, s2, {NPB*512}")
    a(f"s_lshl_b32 s60, s{S_NN}, 9")
    srd(a, R_OUT, 54, "s59", "s60")
    a(f"s_mul_i32 s{S_RB}, s{S_WAVE}, {RING_W}")
    a(f"s_add_u32 s{S_RB}, s{S_RB}, {L_RING}")
    a(f"s_mov_b32 s{S_R0}, 0")
    a(f"s_mov_b32 s{S_CAP}, {CAP}")
    a(f"s_mov_b32 s{S_HI}, 0xffff0000")
    a(f"s_mov_b32 s{S_SGN}, 0x80008000")
    L = LANE
    a(f"v_bfe_u32 v3, v{L}, 4, 1")
    a(f"v_and_b32 v4, 7, v{L}")
    a("v_lshlrev_b32 v5, 1, v3")
    a("v_xor_b32 v4, v4, v5")
    a("v_lshlrev_b32 v4, 4, v4")
    a(f"v_or_b32 v{XOFF}, 0x80000000, v4")
    a(f"v_and_b32 v4, 3, v{L}")
    a(f"v_lshlrev_b32 v{QQ8}, 3, v4")
    a(f"v_bfe_u32 v5, v{L}, 3, 1")
    a("v_mul_u32_u24 v5, 1088, v5")
    a(f"v_lshrrev_b32 v6, 4, v{L}")
    a("v_lshl_add_u32 v5, v6, 8, v5")
    a(f"v_bfe_u32 v7, v{L}, 2, 1")
    a("v_lshl_add_u32 v5, v7, 7, v5")
    a(f"v_add_u32 v5, v5, v{QQ8}")
    a(f"v_add_u32 v5, s{S_RB}, v5")
    a("v_lshlrev_b32 v7, 5, v3")
    a(f"v_add_u32 v{BAE}, v5, v7")
    a(f"v_sub_u32 v{BAO}, v5, v7")
    a(f"v_and_b32 v7, 15, v{L}")
    a("v_lshlrev_b32 v8, 2, v7")
    a(f"v_lshl_add_u32 v{POFF}, v6, 6, v8")
    a("v_and_b32 v8, 1, v7")
    a("v_lshlrev_b32 v8, 4, v8")
    a("v_mov_b32 v9, 0x3f80")
    a("v_lshlrev_b32 v8, v8, v9")
    a("v_and_b32 v9, 14, v7")
    for i in range(4):
        a(f"v_cmp_eq_u32 vcc, {4*i}, v9")
        a(f"v_cndmask_b32 v{SEL+i}, 0, v8, vcc")

    a.label("ROUND")
    a(f"v_and_b32 v2, 255, v{TID}")
    a("v_lshlrev_b32 v3, 10, v2")
    a("s_lshl_b32 s58, s2, 2")
    a(f"buffer_load_dword v4, v3, s[{R_TB}:{R_TB+3}], s58 offen")
    a(f"v_lshlrev_b32 v5, 4, v{LANE}")
    a("s_mov_b32 s57, 0")
    for pc in range(10):
        if pc % 4 == 0 and pc:
            a("s_add_u32 s57, s57, 4096")
        a(f"buffer_load_dwordx4 {vr(WR+4*pc,4)}, v5, s[{R_W}:{R_W+3}], s57 offen offset:{(pc%4)*1024}")
    a(f"v_lshlrev_b32 v6, 2, v{TID}")
    a("v_mov_b32 v7, 0")
    a(f"v_add_u32 v8, {L_MISC}, v6")
    a(f"v_cmp_gt_u32 vcc, 68, v{TID}")
    a("s_and_saveexec_b64 s[58:59], vcc")
    a("ds_write_b32 v8, v7")
    a(f"v_cmp_gt_u32 vcc, 8, v{TID}")
    a("s_and_b64 exec, exec, vcc")
    a("ds_write_b32 v6, v7")
    a("s_mov_b64 exec, -1")
    a("s_waitcnt vmcnt(10)")
    stamp(a, 2)
    a("v_lshrrev_b32 v9, 16, v4")
    a("v_and_b32 v10, 0xffff, v4")
    a("v_mov_b32 v11, v9")
    scan64(a, 11)
    a("v_readlane_b32 s58, v11, 63")
    a(f"s_and_b32 s59, s{S_WAVE}, 3")
    a("s_lshl_b32 s60, s59, 2")
    a(f"s_add_u32 s60, s60, {L_WSUM}")
    a("v_mov_b32 v12, s60")
    a("v_mov_b32 v13, s58")
    a("ds_write_b32 v12, v13")
    a("v_sub_u32 v11, v11, v9")
    a("v_mul_u32_u24 v14, 3200, v2")
    a("v_add_u32 v14, v14, v10")
    a(f"v_lshrrev_b32 v15, 8, v{TID}")
    a("v_add_u32 v14, v14, v15")
    a(f"v_mov_b32 v12, {L_WSUM}")
    a("s_waitcnt lgkmcnt(0)")
    a("s_barrier")
    a("ds_read_b128 v[16:19], v12")
    a("s_waitcnt lgkmcnt(0)")
    for i in range(4):
        a(f"v_readfirstlane_b32 s{60+i}, v{16+i}")
    a("s_add_u32 s61, s61, s60")
    a("s_add_u32 s62, s62, s61")
    a(f"s_add_u32 s{S_T}, s63, s62")
    a("s_cmp_eq_u32 s59, 0")
    a("s_cselect_b32 s58, 0, s60")
    a("s_cmp_eq_u32 s59, 2")
    a("s_cselect_b32 s58, s61, s58")
    a("s_cmp_eq_u32 s59, 3")
    a("s_cselect_b32 s58, s62, s58")
    a(f"s_sub_u32 s{S_LEN}, s{S_T}, s{S_R0}")
    a(f"s_cmp_le_u32 s{S_LEN}, s{S_CAP}")
    a(f"s_cselect_b32 s{S_LAST}, 1, 0")
    a(f"s_min_u32 s{S_LEN}, s{S_LEN}, s{S_CAP}")
    a(f"s_sub_u32 s58, s58, s{S_R0}")
    a("v_add_u32 v11, s58, v11")
    a("v_add_u32 v11, v11, v15")
    a(f"v_lshl_add_u32 v12, v11, 2, v7")
    a(f"v_add_u32 v12, {L_SA}, v12")
    a.label("MAPL")
    a("v_cmp_lt_u32 vcc, v15, v9")
    a("s_and_b64 exec, exec, vcc")
    a("s_cbranch_execz MAPD")
    a(f"v_cmp_gt_u32 vcc, s{S_LEN}, v11")
    a("s_and_saveexec_b64 s[58:59], vcc")
    a("ds_write_b32 v12, v14")
    a("s_mov_b64 exec, s[58:59]")
    a("v_add_u32 v15, 2, v15")
    a("v_add_u32 v11, 2, v11")
    a("v_add_u32 v14, 2, v14")
    a("v_add_u32 v12, 8, v12")
    a("s_branch MAPL")
    a.label("MAPD")
    a("s_mov_b64 exec, -1")
    a(f"v_add_u32 v12, {L_SA}, v6")
    a(f"v_lshrrev_b32 v13, 1, v{LANE}")
    a(f"s_lshl_b32 s58, s{S_WAVE}, 5")
    a("v_add_u32 v13, s58, v13")
    a(f"v_lshl_add_u32 v14, v13, 2, v7")
    a(f"v_add_u32 v14, {L_SA}, v14")
    a(f"v_and_b32 v15, 1, v{LANE}")
    a("v_lshlrev_b32 v15, 4, v15")
    a("v_mov_b32 v16, 0x80000000")
    a("s_waitcnt lgkmcnt(0)")
    a("s_barrier")
    stamp(a, 3)
    for k in range(7):
        a(f"ds_read_b32 v{20+k}, v12 offset:{2048*k}")
    for k in range(14):
        a(f"ds_read_b32 v{28+k}, v14 offset:{1024*k}")
    MREC = 44
    for k in range(7):
        a(f"v_add_u32 v17, {512*k}, v{TID}")
        a(f"v_cmp_gt_u32 s[{S_MASK+2*k}:{S_MASK+2*k+1}], s{S_LEN}, v17")
        a(f"s_waitcnt lgkmcnt({min(15, 20-k)})")
        a(f"v_mul_u32_u24 v{20+k}, 12, v{20+k}")
        a(f"v_cndmask_b32 v{20+k}, v16, v{20+k}, s[{S_MASK+2*k}:{S_MASK+2*k+1}]")
    if PROF == 2:
        stamp(a, 7)
    for k in range(7):
        a(f"buffer_load_dwordx3 {vr(MREC+4*k,3)}, v{20+k}, s[{R_MT}:{R_MT+3}], 0 offen")
    a("s_waitcnt lgkmcnt(0)")
    a(f"s_lshl_b32 s{S_EM0}, s{S_WAVE}, 10")
    a(f"s_add_u32 s{S_EM0}, s{S_EM0}, {L_E + 32}")
    EREG = 128
    for k in range(14):
        a(f"v_cmp_gt_u32 vcc, s{S_LEN}, v13")
        a(f"v_lshl_add_u32 v{28+k}, v{28+k}, 5, v15")
        a("v_add_u32 v13, 256, v13")
        a(f"v_cndmask_b32 v{EREG+k}, v16, v{28+k}, vcc")
    eb = [int(c) for c in opt("eb", "4433")]

    def e_batch(i):
        for k in range(sum(eb[:i]), sum(eb[:i + 1])):
            if k == 13:
                a(f"s_cmp_ge_u32 s{S_WAVE}, 2")
                a("s_cbranch_scc1 NOE14")
            a(f"s_mov_b32 m0, s{S_EM0}")
            a(f"s_add_u32 s{S_EM0}, s{S_EM0}, 8192")
            a(f"buffer_load_dwordx4 v{EREG+k}, s[{R_EP}:{R_EP+3}], 0 offen lds")
            if k == 13:
                a.label("NOE14")

    if PROF == 2:
        stamp(a, 8)
    e_batch(0)
    if PROF == 2:
        stamp(a, 9)
    a("v_mov_b32 v17, 1")
    for k in range(7):
        a(f"s_waitcnt vmcnt({min(eb[0], 13) + 6 - k})")
        if PROF == 2 and k in (0, 6):
            stamp(a, 10 if k == 0 else 11)
        a(f"v_and_b32 v{20+k}, 0xff, v{MREC+4*k}")
        a(f"v_lshlrev_b32 v{20+k}, 2, v{20+k}")
        a(f"v_add_u32 v18, {L_CNT}, v{20+k}")
        a(f"s_mov_b64 exec, s[{S_MASK+2*k}:{S_MASK+2*k+1}]")
        a(f"ds_add_rtn_u32 v{MREC+4*k+3}, v18, v17")
        a("s_mov_b64 exec, -1")
    a(f"v_lshlrev_b32 v12, 2, v{LANE}")
    a(f"v_add_u32 v12, {L_CNT}, v12")
    a(f"v_lshlrev_b32 v13, 4, v{TID}")
    a(f"v_add_u32 v13, {L_SA}, v13")
    for i in range(4):
        a(f"v_mov_b32 v{28+i}, 0")
    a("s_waitcnt lgkmcnt(0)")
    a("s_barrier")
    stamp(a, 4)
    e_batch(1)
    a("ds_read_b32 v14, v12")
    nz = MAXSTEPS * 384 // 16
    for k in range(6):
        a(f"ds_write_b128 v13, v[28:31] offset:{8192*k}")
    a(f"v_cmp_gt_u32 vcc, {nz - 6*512}, v{TID}")
    a("s_mov_b64 exec, vcc")
    a(f"ds_write_b128 v13, v[28:31] offset:{8192*6}")
    a("s_mov_b64 exec, -1")
    a("s_waitcnt lgkmcnt(6)")
    a("v_add_u32 v14, 31, v14")
    a("v_lshrrev_b32 v14, 5, v14")
    a("v_max_u32 v14, 1, v14")
    a(f"v_cmp_gt_u32 vcc, s{S_NN}, v{LANE}")
    a(f"v_cndmask_b32 v{NST}, 0, v14, vcc")
    a("v_mad_u32_u24 v15, v14, 5, 4")
    a("v_cndmask_b32 v15, 0, v15, vcc")
    a(f"v_lshl_or_b32 v18, v15, 16, v{NST}")
    a("v_mov_b32 v19, v18")
    scan64(a, 19)
    a("v_readlane_b32 s58, v19, 63")
    a("v_sub_u32 v18, v19, v18")
    a("v_and_b32 v19, 0xffff, v19")
    a("v_lshrrev_b32 v32, 16, v18")
    a("v_and_b32 v18, 0xffff, v18")
    a("v_lshl_add_u32 v32, v32, 1, v15")
    a("v_lshlrev_b32 v32, 2, v32")
    a("s_lshr_b32 s59, s58, 16")
    a("s_and_b32 s58, s58, 0xffff")
    a(f"s_and_b32 s60, s{S_WAVE}, 3")
    a("s_lshl_b32 s60, s60, 1")
    a(f"s_lshr_b32 s61, s{S_WAVE}, 2")
    a("s_add_u32 s60, s60, s61")
    a("s_mul_i32 s60, s60, s59")
    a("s_add_u32 s61, s60, s59")
    a("v_cmp_le_u32 vcc, s60, v32")
    a("v_cmp_gt_u32 s[62:63], s61, v32")
    a("s_and_b64 vcc, vcc, s[62:63]")
    a(f"s_bcnt1_i32_b64 s{S_NNW}, vcc")
    a(f"s_ff1_i32_b64 s{S_NODE0}, vcc")
    a(f"s_max_i32 s{S_NODE0}, s{S_NODE0}, 0")
    a(f"s_add_u32 s{S_NEND}, s{S_NODE0}, s{S_NNW}")
    a(f"s_sub_u32 s60, s{S_NEND}, 1")
    a("s_max_i32 s60, s60, 0")
    a(f"v_readlane_b32 s{S_STEP0}, v18, s{S_NODE0}")
    a(f"v_readlane_b32 s{S_NS}, v19, s60")
    a(f"s_sub_u32 s{S_NS}, s{S_NS}, s{S_STEP0}")
    a(f"s_cmp_eq_u32 s{S_NNW}, 0")
    a(f"s_cselect_b32 s{S_NS}, 0, s{S_NS}")
    a(f"s_cmp_gt_u32 s{S_NS}, {MAXWSTEPS}")
    a("s_cselect_b32 s60, 1, 0")
    a(f"s_cmp_gt_u32 s58, {MAXSTEPS}")
    a("s_cselect_b32 s60, 1, s60")
    a("s_cmp_eq_u32 s60, 0")
    a("s_cbranch_scc1 NOFAIL")
    a(f"v_mov_b32 v33, {L_FLAG}")
    a("ds_write_b32 v33, v17")
    a.label("NOFAIL")
    for k in range(7):
        a(f"ds_bpermute_b32 v{20+k}, v{20+k}, v18")
    a(f"v_mov_b32 v33, {L_FLAG}")
    a("s_waitcnt lgkmcnt(0)")
    a("s_barrier")
    a("ds_read_b32 v34, v33")
    a(f"v_lshlrev_b32 v35, 2, v{TID}")
    a("v_add_u32 v35, 4, v35")
    for k in range(7):
        r = MREC + 4 * k
        a(f"v_lshl_add_u32 v{20+k}, v{20+k}, 5, v{r+3}")
        a(f"v_and_b32 v{r}, 0xffffff00, v{r}")
        a(f"v_add_u32 v36, {2048*k}, v35")
        a(f"v_or_b32 v{r+3}, v{r+2}, v36")
        a(f"v_mov_b32 v{r+2}, v{r+1}")
        a(f"v_lshlrev_b32 v{r+1}, 3, v{20+k}")
        a(f"v_add_u32 v{r+1}, {L_SB}, v{r+1}")
        a(f"v_lshlrev_b32 v{20+k}, 2, v{20+k}")
        a(f"v_add_u32 v{20+k}, {L_SA}, v{20+k}")
    a("s_waitcnt lgkmcnt(0)")
    a("v_readfirstlane_b32 s60, v34")
    a("s_cmp_eq_u32 s60, 0")
    a("s_cbranch_scc1 SCATTER")
    a(f"s_mov_b32 s{S_CAP}, {SLOWCAP}")
    a("s_waitcnt vmcnt(0)")
    a("s_barrier")
    a("s_branch ROUND")
    a.label("SCATTER")
    e_batch(2)
    for k in range(7):
        r = MREC + 4 * k
        a(f"s_mov_b64 exec, s[{S_MASK+2*k}:{S_MASK+2*k+1}]")
        a(f"ds_write_b32 v{20+k}, v{r}")
        a(f"ds_write_b64 v{r+1}, {vr(r+2,2)}")
    a("s_mov_b64 exec, -1")
    a(f"v_lshrrev_b32 v4, 4, v{LANE}")
    a("v_lshlrev_b32 v4, 3, v4")
    a(f"s_lshl_b32 s58, s{S_STEP0}, 5")
    a("v_add_u32 v4, s58, v4")
    a(f"v_bfe_u32 v5, v{LANE}, 2, 1")
    a("v_lshl_add_u32 v6, v5, 5, v4")
    a(f"v_and_b32 v5, 3, v{LANE}")
    a("v_lshl_add_u32 v6, v5, 1, v6")
    a(f"v_bfe_u32 v5, v{LANE}, 3, 1")
    a("v_add_u32 v6, v6, v5")
    a("v_lshlrev_b32 v6, 2, v6")
    a(f"v_add_u32 v6, {L_SA}, v6")
    a(f"v_bfe_u32 v5, v{LANE}, 1, 1")
    a("v_lshl_add_u32 v8, v5, 5, v4")
    a(f"v_and_b32 v5, 1, v{LANE}")
    a("v_lshl_add_u32 v8, v5, 2, v8")
    a(f"v_bfe_u32 v5, v{LANE}, 2, 2")
    a("v_add_u32 v8, v8, v5")
    a("v_lshlrev_b32 v8, 3, v8")
    a(f"v_add_u32 v8, {L_SB}, v8")
    a("s_waitcnt lgkmcnt(0)")
    a("s_barrier")
    e_batch(3)
    for s in range(10):
        a(f"ds_read_b32 v{M0R+s}, v6 offset:{256*s}")
        a(f"ds_read_b64 {vr(MBR+2*s,2)}, v8 offset:{512*s}")
    a(f"s_mov_b32 s{S_D1}, 0")
    a(f"s_mov_b32 s{S_PHASE}, 0")
    a(f"s_mov_b32 s{S_POFF}, 0")
    a(f"s_mov_b32 s{S_TAB0}, 0")
    a(f"s_mov_b32 s{S_TAB1}, 128")
    a(f"s_mov_b32 s{S_NODE}, s{S_NODE0}")
    a(f"v_readlane_b32 s{S_REM}, v{NST}, s{S_NODE}")
    stamp(a, 5)
    a("s_waitcnt vmcnt(0) lgkmcnt(0)")
    a("s_barrier")
    stamp(a, 6)
    if PROF:
        a(f"s_mov_b32 s{S_PROF+12}, s{S_NS}")
        a(f"s_mov_b32 s{S_PROF+13}, s{S_NNW}")
    a(f"s_cmp_eq_u32 s{S_NNW}, 0")
    a("s_cbranch_scc1 TAIL")
    pipeline_start(a)
    for var in ("AB" if opt("prio", 1) else "A"):
        for rho in range(3):
            step_body(a, var, rho, True)
            step_body(a, var, rho, False)
            epilogue(a, var, (rho + 1) % 3)

    a.label("TAIL")
    a("s_setprio 0")
    WF, PF, D = 0, 80, 188
    stamp(a, 8, late=True)
    a(f"v_lshlrev_b32 v{T0}, 4, v{LANE}")
    a(f"s_and_b32 s54, s{S_WAVE}, 1")
    a("s_mul_i32 s55, s54, 20480")
    a(f"s_add_u32 s55, s55, {WS_WSI - WS_WTAB}")
    a("s_waitcnt vmcnt(0)")
    for f in range(20):
        if f % 4 == 0 and f:
            a("s_add_u32 s55, s55, 4096")
        a(f"buffer_load_dwordx4 {vr(WF+4*f,4)}, v{T0}, s[{R_W}:{R_W+3}], s55 offen offset:{(f%4)*1024}")
    a("s_barrier")
    stamp(a, 9, late=True)
    a(f"s_lshl_b32 s55, s{S_WAVE}, 10")
    for k in range(10):
        if k == 9:
            a(f"s_cmp_ge_u32 s{S_WAVE}, 4")
            a("s_cbranch_scc1 NOP10")
        a("s_mov_b32 m0, s55")
        a(f"buffer_load_dwordx4 v{T0}, s[{R_P}:{R_P+3}], s55 offen sc1 lds")
        a("s_add_u32 s55, s55, 8192")
    a.label("NOP10")
    a(f"s_lshl_b32 s55, s{S_WAVE}, 13")
    a(f"s_cmp_eq_u32 s{S_R0}, 0")
    a("s_cbranch_scc1 ZEROD")
    for i in range(8):
        if i == 4:
            a("s_add_u32 s55, s55, 4096")
        a(f"buffer_load_dwordx4 {vr(D+4*i,4)}, v{T0}, s[{R_ACC}:{R_ACC+3}], s55 offen offset:{(i%4)*1024} sc1")
    a("s_branch HAVED")
    a.label("ZEROD")
    for i in range(32):
        a(f"v_mov_b32 v{D+i}, 0")
    a.label("HAVED")
    a(f"v_and_b32 v{T0+1}, 15, v{LANE}")
    a(f"s_lshr_b32 s56, s{S_WAVE}, 1")
    a("s_lshl_b32 s56, s56, 4")
    a(f"v_add_u32 v{T0+1}, s56, v{T0+1}")
    a(f"v_lshrrev_b32 v{T0+2}, 4, v{LANE}")
    a(f"v_lshlrev_b32 v{T0+2}, 4, v{T0+2}")
    a(f"v_mul_u32_u24 v{T0+3}, {P_NODE}, v{T0+1}")
    a(f"v_add_u32 v{T0+3}, v{T0+3}, v{T0+2}")
    a(f"v_lshl_add_u32 v{T0+4}, v{T0+1}, 9, v{T0+2}")
    a("s_lshl_b32 s54, s54, 6")
    a("s_waitcnt vmcnt(0)")
    a("s_barrier")
    stamp(a, 10, late=True)
    seq = []
    for comp, ts in enumerate(([P0, P1], [P2[0], P3[0], P4[0]], [P2[1], P3[1], P4[1]], [P2[2], P3[2], P4[2]])):
        for t in ts:
            for h in range(2):
                seq.append((comp, t, h))
    for i, (comp, t, h) in enumerate(seq):
        a(f"ds_read_b128 {vr(PF+4*i,4)}, v{T0+3} offset:{h*P_HALF + t*64}")
        if i == 14:
            a("s_waitcnt lgkmcnt(7)")
    for i, (comp, t, h) in enumerate(seq):
        if i >= 8:
            a(f"s_waitcnt lgkmcnt({21 - i})")
        for mt in range(2):
            d = vr(D + 8 * comp + 4 * mt, 4)
            a(f"v_mfma_f32_16x16x32_bf16 {d}, {vr(WF + 4*(10*mt + 2*TPATH[t] + h),4)}, {vr(PF+4*i,4)}, {d}")
    a(f"s_cmp_eq_u32 s{S_LAST}, 0")
    a("s_cbranch_scc1 MORE")
    for i in range(8):
        a(f"v_mul_f32 v{i}, 0xbfb8aa3b, v{D+i}")
    for i in range(8):
        a(f"v_exp_f32 v{i}, v{i}")
    for i in range(8):
        a(f"v_add_f32 v{i}, 1.0, v{i}")
    for i in range(8):
        a(f"v_rcp_f32 v{i}, v{i}")
    for comp in range(4):
        if comp:
            for i in range(8):
                a(f"v_mul_f32 v{D+8*comp+i}, v{D+8*comp+i}, v{i}")
        for i in range(4):
            a(f"v_cvt_pk_bf16_f32 v{8+4*comp+i}, v{D+8*comp+2*i}, v{D+8*comp+2*i+1}")
        a(f"buffer_store_dwordx4 {vr(8+4*comp,4)}, v{T0+4}, s[{R_OUT}:{R_OUT+3}], s54 offen offset:{128*comp}")
    if PROF:
        a("s_waitcnt vmcnt(0)")
    stamp(a, 11, late=True)
    stamp(a, 15, True)
    prof_dump(a, 98, 1, 3, S_WAVE)
    a("s_endpgm")
    a.label("MORE")
    a(f"s_lshl_b32 s55, s{S_WAVE}, 13")
    for i in range(8):
        if i == 4:
            a("s_add_u32 s55, s55, 4096")
        a(f"buffer_store_dwordx4 {vr(D+4*i,4)}, v{T0}, s[{R_ACC}:{R_ACC+3}], s55 offen offset:{(i%4)*1024}")
    a(f"s_add_u32 s{S_R0}, s{S_R0}, s{S_LEN}")
    a("s_waitcnt vmcnt(0)")
    a("s_barrier")
    a("s_branch ROUND")
    a.label("K2_end")
    a("s_endpgm")
    return a


def descriptor(name, nv, ns):
    return f""".amdhsa_kernel {name}
  .amdhsa_next_free_vgpr {nv}
  .amdhsa_next_free_sgpr {ns}
  .amdhsa_accum_offset {(nv + 3) // 4 * 4}
  .amdhsa_group_segment_fixed_size 0
  .amdhsa_kernarg_size 96
  .amdhsa_user_sgpr_count 2
  .amdhsa_user_sgpr_kernarg_segment_ptr 1
  .amdhsa_system_sgpr_workgroup_id_x 1
  .amdhsa_float_denorm_mode_32 3
.end_amdhsa_kernel
"""


def main():
    ref = open(os.path.join(os.path.dirname(os.path.abspath(__file__)), "..", "cdna_kernels", NAME + ".s.ref")).read()
    head = [l for l in ref.split("\n") if l.startswith(";") and "@launch" not in l and "Override" not in l
            and "grid=ceil" not in l]
    k1, k2 = "edge_sort_kernel", NAME + "_kernel"
    out = head + [
        f"; @launch kernel={k1} grid=(255,1,1) block=(1024,1,1) lds={K1_LDS}",
        f"; @launch kernel={k2} grid=(256,1,1) block=(512,1,1) lds={K2_LDS}",
        '.amdgcn_target "amdgcn-amd-amdhsa--gfx950"',
        ".text",
    ]
    for name, fn in ((k1, kernel1), (k2, kernel2)):
        lines, nops = fn().finish()
        print(name, "instructions:", len(lines), "nops inserted:", nops, file=sys.stderr)
        out += [f".globl {name}", ".p2align 8", f".type {name},@function", f"{name}:"] + lines
    out += ['.section .rodata,"a"', ".p2align 6", descriptor(k1, 96, 102), ".p2align 6", descriptor(k2, NVGPR, 102)]
    open(sys.argv[1], "w").write("\n".join(out))


if __name__ == "__main__":
    main()
```

```python
import os
import sys

sys.path.insert(0, os.path.dirname(os.path.abspath(__file__)))
from asmlib import Asm, vr, sr

NAME = "gather_scatter__tensor_product_equiv_equiformer__graph"
N, E = 12500, 800000
CHUNK, W = 3200, 250
NPB = 49
NBIN = 256

WS_TAB = 0
WS_WTAB = 0x40000
WS_WSI = 0x48000
WS_META = 0x100000
WS_XP = 0xB00000
WS_EP = 0x1200000
WS_P = 0x2B00000
P_NODE = 784
P_HALF = NPB * P_NODE
P_WG = 0x13000
WS_ACC = 0x4000000
XHALF = N * 256

OPT = dict(a.split("=") for a in sys.argv[2:] if "=" in a)


def opt(name, default):
    return type(default)(OPT.get(name, default))


PROF = opt("prof", 0)
WS_PROF = 0x6000000
S_PROF = 82


def stamp(a, i, real=False, late=False):
    if PROF and not (late and PROF == 2):
        a("s_waitcnt lgkmcnt(0)")
        a(("s_memrealtime" if real or PROF == 3 else "s_memtime") + " s[80:81]")
        a("s_waitcnt lgkmcnt(0)")
        a(f"s_mov_b32 s{S_PROF+i}, s80")


def prof_dump(a, wsreg, kern, nwave_shift, wavereg):
    if PROF:
        a(f"s_lshl_b32 s80, s2, {nwave_shift}")
        a(f"s_add_u32 s80, s80, s{wavereg}")
        a("s_lshl_b32 s80, s80, 6")
        a(f"s_add_u32 s80, s80, {WS_PROF + kern * 0x100000}")
        srd(a, 4, wsreg, "s80", 64)
        a("v_mov_b32 v0, 0")
        for i in range(16):
            a(f"v_mov_b32 v1, s{S_PROF+i}")
            a(f"buffer_store_dword v1, v0, s[4:7], 0 offen offset:{4*i}")


def srd(a, d, b, off, size):
    a(f"s_add_u32 s{d}, s{b}, {off}")
    a(f"s_addc_u32 s{d+1}, s{b+1}, 0")
    a(f"s_mov_b32 s{d+2}, {size}")
    a(f"s_mov_b32 s{d+3}, 0x20000")


def scan64(a, v):
    for sh in (1, 2, 4, 8):
        a(f"v_add_u32_dpp v{v}, v{v}, v{v} row_shr:{sh} row_mask:0xf bank_mask:0xf bound_ctrl:1")
    a(f"v_add_u32_dpp v{v}, v{v}, v{v} row_bcast:15 row_mask:0xa bank_mask:0xf")
    a(f"v_add_u32_dpp v{v}, v{v}, v{v} row_bcast:31 row_mask:0xc bank_mask:0xf")


K1_ERAW = 0
K1_MS = 102400
K1_INV = K1_MS + 38400
K1_HIST = K1_INV + 6400
K1_LDS = 152 * 1024


def kernel1():
    a = Asm()
    NT = " nt" if opt("k1nt", 1) else ""
    ST = {0: "", 1: " nt", 2: " sc1"}[opt("k1st", 0)]
    a("s_cmp_ge_u32 s2, 255")
    a("s_cbranch_scc1 K1_end")
    a("s_load_dwordx8 s[4:11], s[0:1], 0")
    a("s_load_dwordx8 s[52:59], s[0:1], 32")
    a("s_load_dwordx2 s[14:15], s[0:1], 88")
    a("v_lshlrev_b32 v1, 4, v0")
    a("v_mul_u32_u24 v2, 24, v0")
    a("v_and_b32 v3, 63, v0")
    a("v_lshlrev_b32 v3, 4, v3")
    a("v_lshrrev_b32 v40, 6, v0")
    a("v_readfirstlane_b32 s3, v40")
    a("s_cmp_ge_u32 s2, 250")
    a("s_cbranch_scc1 K1_prep")
    stamp(a, 0, True)
    stamp(a, 1)
    a("s_mul_i32 s60, s2, 12800")
    a("s_mul_i32 s61, s2, 19200")
    a("s_mul_i32 s62, s2, 25600")
    a("s_mul_i32 s63, s2, 102400")
    a("s_mul_i32 s64, s2, 38400")
    a("s_lshl_b32 s65, s2, 10")
    a("s_waitcnt lgkmcnt(0)")
    srd(a, 16, 52, "s60", 12800)
    a(f"buffer_load_dwordx4 v[4:7], v1, s[16:19], 0 offen{NT}")
    a("v_lshlrev_b32 v41, 2, v0")
    a("v_mov_b32 v42, 0")
    a("s_cmp_ge_u32 s3, 4")
    a("s_cbranch_scc1 K1_nozero")
    a(f"v_add_u32 v41, {K1_HIST}, v41")
    a("ds_write_b32 v41, v42")
    a.label("K1_nozero")
    srd(a, 20, 10, "s60", 12800)
    srd(a, 24, 6, "s61", 19200)
    srd(a, 28, 4, "s62", 25600)
    srd(a, 32, 8, "s63", 102400)
    a("s_mov_b32 s66, 16384")
    a("s_lshl_b32 s67, s3, 10")
    a("s_waitcnt lgkmcnt(0)")
    a("s_barrier")
    a(f"buffer_load_dwordx4 v[8:11], v1, s[20:23], 0 offen{NT}")
    a(f"buffer_load_dwordx4 v[12:15], v2, s[24:27], 0 offen{NT}")
    a(f"buffer_load_dwordx2 v[16:17], v2, s[24:27], 0 offen offset:16{NT}")
    if opt("k1b2", 1):
        a("s_barrier")
    a(f"buffer_load_dwordx4 v[20:23], v1, s[28:31], 0 offen{NT}")
    a(f"buffer_load_dwordx4 v[24:27], v1, s[28:31], s66 offen{NT}")
    for k in range(6):
        a("s_mov_b32 m0, s67")
        a(f"buffer_load_dwordx4 v3, s[32:35], s67 offen{NT} lds")
        a("s_add_u32 s67, s67, 16384")
    a("s_cmp_ge_u32 s3, 4")
    a("s_cbranch_scc1 K1_noe7")
    a("s_mov_b32 m0, s67")
    a(f"buffer_load_dwordx4 v3, s[32:35], s67 offen{NT} lds")
    a.label("K1_noe7")
    a("s_add_u32 s68, s64, %d" % WS_META)
    srd(a, 36, 14, "s68", 38400)
    a("s_add_u32 s68, s63, %d" % WS_EP)
    srd(a, 40, 14, "s68", 102400)
    srd(a, 44, 14, WS_XP, 2 * XHALF)
    srd(a, 48, 14, "s65", 1024)
    a("v_cmp_gt_u32 vcc, 800, v0")
    a("s_mov_b64 s[70:71], vcc")
    a("v_mov_b32 v43, 1")
    a("s_waitcnt vmcnt(11)")
    stamp(a, 2)
    a("s_mov_b64 exec, s[70:71]")
    a("s_cbranch_execz K1_skip_rank")
    for i in range(4):
        a(f"v_mul_u32_u24 v{28+i}, 21400, v{4+i}")
        a(f"v_lshrrev_b32 v{28+i}, 20, v{28+i}")
        a(f"v_mul_u32_u24 v{36+i}, 49, v{28+i}")
        a(f"v_sub_u32 v{36+i}, v{4+i}, v{36+i}")
        a(f"v_lshlrev_b32 v{28+i}, 2, v{28+i}")
        a(f"v_add_u32 v{28+i}, {K1_HIST}, v{28+i}")
        a(f"ds_add_rtn_u32 v{32+i}, v{28+i}, v43")
    a.label("K1_skip_rank")
    a("s_mov_b64 exec, -1")
    a("s_waitcnt lgkmcnt(0)")
    a("s_barrier")
    stamp(a, 3)
    a("s_cmp_lg_u32 s3, 0")
    a("s_cbranch_scc1 K1_noscan")
    a(f"v_add_u32 v41, {K1_HIST}, v3")
    a("ds_read_b128 v[44:47], v41")
    a("s_waitcnt lgkmcnt(0)")
    a("v_add_u32 v49, v44, v45")
    a("v_add_u32 v50, v49, v46")
    a("v_add_u32 v51, v50, v47")
    a("v_mov_b32 v52, v51")
    scan64(a, 52)
    a("v_sub_u32 v52, v52, v51")
    a("v_add_u32 v53, v52, v44")
    a("v_add_u32 v54, v52, v49")
    a("v_add_u32 v55, v52, v50")
    a("ds_write_b128 v41, v[52:55]")
    for i in range(4):
        a(f"v_lshl_or_b32 v{56+i}, v{44+i}, 16, v{52+i}")
    a("buffer_store_dwordx4 v[56:59], v3, s[48:51], 0 offen")
    a("s_waitcnt lgkmcnt(0)")
    a.label("K1_noscan")
    a("v_lshrrev_b32 v60, 5, v0")
    a("s_mul_i32 s69, s2, 50")
    a("v_add_u32 v60, s69, v60")
    a("v_lshlrev_b32 v60, 8, v60")
    a("v_bfe_u32 v61, v0, 3, 2")
    a("v_lshl_add_u32 v60, v61, 6, v60")
    a("v_and_b32 v61, 3, v0")
    a("v_lshl_add_u32 v60, v61, 4, v60")
    a("v_bfe_u32 v61, v0, 2, 1")
    a(f"v_mul_u32_u24 v61, {XHALF}, v61")
    a("v_add_u32 v60, v60, v61")
    a("v_add_u32 v61, 8192, v60")
    a("v_cmp_gt_u32 vcc, 576, v0")
    a("v_mov_b32 v62, 0x80000000")
    a("v_cndmask_b32 v61, v62, v61, vcc")
    a("s_barrier")
    a("s_mov_b64 exec, s[70:71]")
    a("s_cbranch_execz K1_skip_scatter")
    for i in range(4):
        a(f"ds_read_b32 v{28+i}, v{28+i}")
    a("s_waitcnt vmcnt(8)")
    a("s_mov_b32 s72, 0x80000000")
    a("s_mov_b32 s73, 0xffff0000")
    for i in range(4):
        a(f"v_lshl_or_b32 v{8+i}, v{8+i}, 8, v{36+i}")
        a(f"v_or_b32 v{8+i}, s72, v{8+i}")
    a("v_lshlrev_b32 v44, 16, v13")
    a("v_alignbit_b32 v45, v14, v13, 16")
    a("v_and_b32 v46, s73, v14")
    a("v_lshlrev_b32 v47, 16, v16")
    a("v_alignbit_b32 v48, v17, v16, 16")
    a("v_and_b32 v49, s73, v17")
    w1 = [12, 45, 15, 48]
    w2 = [44, 46, 47, 49]
    a("v_lshlrev_b32 v50, 2, v0")
    a("s_waitcnt lgkmcnt(0)")
    for i in range(4):
        a(f"v_add_u32 v{32+i}, v{32+i}, v{28+i}")
        a(f"v_mul_u32_u24 v{28+i}, 12, v{32+i}")
        a(f"v_add_u32 v{28+i}, {K1_MS}, v{28+i}")
        a(f"ds_write2_b32 v{28+i}, v{8+i}, v{w1[i]} offset0:0 offset1:1")
        a(f"ds_write_b32 v{28+i}, v{w2[i]} offset:8")
        a(f"v_lshlrev_b32 v{32+i}, 1, v{32+i}")
        a(f"v_add_u32 v{32+i}, {K1_INV}, v{32+i}")
        a(f"v_add_u32 v{52+i}, {i}, v50")
        a(f"ds_write_b16 v{32+i}, v{52+i}")
    a.label("K1_skip_scatter")
    a("s_mov_b64 exec, -1")
    a("s_waitcnt vmcnt(6)")
    a(f"buffer_store_dwordx4 v[20:23], v60, s[44:47], 0 offen{ST}")
    a(f"buffer_store_dwordx4 v[24:27], v61, s[44:47], 0 offen{ST}")
    a("s_waitcnt lgkmcnt(0)")
    a("s_barrier")
    stamp(a, 4)
    a(f"v_add_u32 v41, {K1_MS}, v1")
    a("ds_read_b128 v[4:7], v41")
    a("ds_read_b128 v[8:11], v41 offset:16384")
    a("ds_read_b128 v[12:15], v41 offset:32768")
    a("v_and_b32 v42, 0x3fe, v0")
    a(f"v_add_u32 v42, {K1_INV}, v42")
    for k in range(7):
        a(f"ds_read_u16 v{28+k}, v42 offset:{1024*k}")
    a("v_and_b32 v43, 1, v0")
    a("v_lshlrev_b32 v43, 4, v43")
    a("s_mov_b32 s74, 32768")
    a("s_waitcnt lgkmcnt(7)")
    a(f"buffer_store_dwordx4 v[4:7], v1, s[36:39], 0 offen{ST}")
    a(f"buffer_store_dwordx4 v[8:11], v1, s[36:39], s66 offen{ST}")
    a(f"buffer_store_dwordx4 v[12:15], v1, s[36:39], s74 offen{ST}")
    a("s_waitcnt lgkmcnt(0)")
    for k in range(7):
        a(f"v_lshl_add_u32 v{28+k}, v{28+k}, 5, v43")
    stamp(a, 5)
    a("s_waitcnt vmcnt(5)")
    a("s_barrier")
    stamp(a, 6)
    for k in range(6):
        a(f"ds_read_b128 v[{64+4*k}:{67+4*k}], v{28+k}")
    a("s_mov_b32 s75, 0")
    for k in range(6):
        a(f"s_waitcnt lgkmcnt({5-k})")
        a(f"buffer_store_dwordx4 v[{64+4*k}:{67+4*k}], v1, s[40:43], s75 offen{ST}")
        a("s_add_u32 s75, s75, 16384")
    a("s_cmp_ge_u32 s3, 4")
    a("s_cbranch_scc1 K1_fin")
    a("ds_read_b128 v[88:91], v34")
    a("s_waitcnt lgkmcnt(0)")
    a(f"buffer_store_dwordx4 v[88:91], v1, s[40:43], s75 offen{ST}")
    a.label("K1_fin")
    stamp(a, 7)
    if PROF:
        a("s_waitcnt vmcnt(0)")
    stamp(a, 8)
    stamp(a, 15, True)
    prof_dump(a, 14, 0, 4, 3)
    a("s_endpgm")

    a.label("K1_prep")
    a("s_waitcnt lgkmcnt(0)")
    srd(a, 16, 54, 0, 16 * 320 * 2)
    srd(a, 20, 56, 0, 128 * 64 * 2)
    srd(a, 24, 58, 0, 192 * 64 * 2)
    srd(a, 28, 14, WS_WTAB, 20480)
    srd(a, 32, 14, WS_WSI, 40960)
    a("s_sub_u32 s60, s2, 250")
    a("s_lshl_b32 s60, s60, 10")
    a("v_add_u32 v4, s60, v0")
    a("v_and_b32 v5, 3, v4")
    a("v_bfe_u32 v6, v4, 2, 4")
    a("v_bfe_u32 v7, v4, 6, 2")
    a("v_lshrrev_b32 v8, 8, v4")
    a("v_cmp_le_u32 vcc, 10, v8")
    a("v_cndmask_b32 v9, 0, 1, vcc")
    a("v_mul_u32_u24 v10, 10, v9")
    a("v_sub_u32 v10, v8, v10")
    a("v_lshl_add_u32 v11, v7, 2, v5")
    a("v_mul_u32_u24 v11, 320, v11")
    a("v_lshrrev_b32 v12, 1, v10")
    a("v_lshl_add_u32 v11, v12, 6, v11")
    a("v_lshl_add_u32 v11, v9, 5, v11")
    a("v_and_b32 v12, 1, v10")
    a("v_lshl_add_u32 v11, v12, 4, v11")
    a("v_add_u32 v11, v11, v6")
    a("v_lshlrev_b32 v11, 1, v11")
    a("buffer_load_ushort v13, v11, s[16:19], 0 offen")
    a("v_mov_b32 v30, 0x80000000")
    for t in range(2):
        b = 32 + 8 * t
        a(f"v_add_u32 v14, {20*t}, v8")
        a("v_mul_u32_u24 v15, 26, v14")
        a("v_lshrrev_b32 v15, 8, v15")
        a("v_mul_u32_u24 v16, 10, v15")
        a("v_sub_u32 v16, v14, v16")
        a("v_lshrrev_b32 v17, 1, v16")
        a("v_and_b32 v18, 1, v16")
        a("v_lshl_add_u32 v19, v7, 2, v5")
        a("v_lshl_add_u32 v19, v18, 5, v19")
        a("v_lshl_add_u32 v19, v17, 6, v19")
        a("v_lshrrev_b32 v20, 1, v15")
        a("v_and_b32 v21, 1, v15")
        a("v_lshrrev_b32 v22, 2, v6")
        a("v_lshlrev_b32 v22, 3, v22")
        a("v_lshl_add_u32 v22, v20, 5, v22")
        a("v_lshl_add_u32 v22, v21, 2, v22")
        a("v_and_b32 v23, 3, v6")
        a("v_add_u32 v22, v22, v23")
        a("v_lshl_add_u32 v22, v19, 6, v22")
        a("v_lshlrev_b32 v22, 1, v22")
        a("v_subrev_u32 v23, 16384, v22")
        a("v_cmp_gt_u32 vcc, 2, v17")
        a("v_cndmask_b32 v24, v30, v22, vcc")
        a("v_cndmask_b32 v25, v23, v30, vcc")
        a(f"buffer_load_ushort v{b}, v24, s[20:23], 0 offen")
        a(f"buffer_load_ushort v{b+1}, v24, s[20:23], 0 offen offset:2048")
        a(f"buffer_load_ushort v{b+2}, v25, s[24:27], 0 offen")
        a(f"buffer_load_ushort v{b+3}, v25, s[24:27], 0 offen offset:2048")
    a("v_lshlrev_b32 v4, 2, v4")
    a("s_mov_b32 s61, 20480")
    a("s_waitcnt vmcnt(0)")
    a("v_lshlrev_b32 v13, 16, v13")
    a("buffer_store_dword v13, v4, s[28:31], 0 offen")
    for t in range(2):
        b = 32 + 8 * t
        a(f"v_or_b32 v{b}, v{b}, v{b+2}")
        a(f"v_or_b32 v{b+1}, v{b+1}, v{b+3}")
        a(f"v_lshl_or_b32 v{b}, v{b+1}, 16, v{b}")
        a(f"buffer_store_dword v{b}, v4, s[32:35], {'0' if t == 0 else 's61'} offen")
    a.label("K1_end")
    a("s_endpgm")
    return a


CAP = 3392
SLOWCAP = 256
MAXSTEPS = 142
MAXWSTEPS = 20
L_E = 0
L_RING = 32 + CAP * 32
RING_W = 6336
SUBB = 2112
L_SA = L_RING
L_SB = L_SA + MAXSTEPS * 128
L_MISC = L_SB + MAXSTEPS * 256
L_CNT = L_MISC
L_FLAG = L_MISC + 256
L_WSUM = L_MISC + 272
K2_LDS = 163840
assert L_WSUM + 16 <= K2_LDS and L_RING + 8 * RING_W <= L_MISC

ACC = 0
WR = 88
B0 = 128
B1 = 144
GS, G0, G1, G2, N0, N2 = 160, 164, 168, 172, 176, 180
SEL = 184
M0R = 188
MBR = 198
W1C, W2C = 218, 219
Y = 220
REP = 223
XA = 224
XOFF, QQ8, BAE, BAO, POFF, NST = 228, 229, 230, 231, 232, 233
UH, UL, PT, T8, EA = 234, 238, 242, 246, 247
T0 = 234
TID, LANE = 249, 250
NVGPR = 252

S_WAVE = 3
R_XP, R_EP, R_MT, R_TB, R_P, R_W, R_OUT, R_ACC = 4, 8, 12, 16, 20, 24, 28, 32
S_NN, S_T, S_R0, S_LEN, S_CAP = 36, 37, 38, 39, 40
S_NODE0, S_NNW, S_STEP0, S_NS = 41, 42, 43, 44
S_D1, S_REM, S_NODE, S_PHASE, S_TAB0, S_TAB1, S_RB, S_POFF, S_D2 = 45, 46, 47, 48, 49, 50, 51, 52, 53
S_HI, S_SGN, S_BUMP = 100, 101, 58
S_MASK = 64
S_LAST = 78
S_NEND = 79
S_EM0 = 53

TPATH = [0, 1, 2, 2, 2, 3, 3, 3, 4, 4, 4]
P0, P1 = 0, 1
P2 = [2, 3, 4]
P3 = [5, 6, 7]
P4 = [8, 9, 10]


def acc(t, cq):
    return ACC + 4 * (2 * t + cq)


def mfma_list():
    out = []
    for t, A, B, fl in ((P2[0], G0, B0, 1), (P1, G0, B0 + 8, 1), (P0, GS, B0, 1), (P3[0], GS, B0 + 8, 1),
                        (P2[2], G2, B0, 1), (P4[1], G2, B0 + 8, 1), (P2[1], G1, B0, 1), (P4[2], G1, B0 + 8, 1),
                        (P4[2], N0, B1, 0), (P4[1], N0, B1 + 8, 0), (P3[1], GS, B1, 1), (P3[2], GS, B1 + 8, 1),
                        (P4[0], N2, B1, 1), (P1, G2, B1 + 8, 0), (P1, G1, B1, 0), (P4[0], G1, B1 + 8, 0)):
        for cq in range(2):
            out.append((t, cq, A, B + 4 * cq, fl))
    return out


def emit_mfma(a, m, first):
    t, cq, A, B, fl = m
    if opt("nomfma", 0):
        return
    d = vr(acc(t, cq), 4)
    c = "0" if (first and fl) else d
    a(f"v_mfma_f32_16x16x32_bf16 {d}, {vr(A,4)}, {vr(B,4)}, {c}")


def b_reads(k, pos):
    B = B0 if k < 2 else B1
    hf = k & 1
    return [f"ds_read_b64_tr_b16 {vr(B + 4*u + 2*hf, 2)}, v{BAE if u % 2 == 0 else BAO} offset:{pos*SUBB + u*32}"
            for u in range(4)]


def vmwait(n):
    return [] if opt("nowait", 0) else [f"s_waitcnt vmcnt({n})"]


def dma(k, pos):
    if opt("nodma", 0):
        return [[], [], [], []]
    hf, bp = k & 1, k >> 1
    so = S_TAB0 if bp == 0 else S_TAB1
    out = []
    for s in range(2):
        out.append([f"s_add_u32 m0, s{S_RB}, {pos*SUBB + s*1088}"])
        out.append([f"buffer_load_dwordx4 v{XA + 2*hf + s}, s[{R_XP}:{R_XP+3}], s{so} offen lds"])
    return out


def w0_fetch(sreg):
    return [f"s_lshr_b32 s54, s{sreg}, 1",
            "s_set_gpr_idx_on s54, gpr_idx(SRC0)",
            f"v_mov_b32 v{REP}, v{M0R}",
            "s_set_gpr_idx_off"]


def w0_rep(tag, sreg):
    return [f"s_bitcmp1_b32 s{sreg}, 0",
            f"s_cbranch_scc1 {tag}_odd",
            f"v_mov_b32_dpp v{REP}, v{REP} row_shr:4 row_mask:0xf bank_mask:0xa",
            f"s_branch {tag}_done",
            f"{tag}_odd:",
            f"v_mov_b32_dpp v{REP}, v{REP} row_shl:4 row_mask:0xf bank_mask:0x5",
            f"{tag}_done:"]


def x_addr(q):
    return f"v_add_u32_dpp v{XA+q}, v{REP}, v{XOFF} quad_perm:[{q},{q},{q},{q}] row_mask:0xf bank_mask:0xf"


def meta_fetch(tag, sreg):
    return [f"s_bitcmp1_b32 s{sreg}, 0",
            f"s_cbranch_scc1 {tag}_odd",
            f"s_set_gpr_idx_on s{sreg}, gpr_idx(SRC0)",
            f"v_mov_b32 v{W1C}, v{MBR}",
            f"v_mov_b32 v{W2C}, v{MBR+1}",
            "s_set_gpr_idx_off",
            f"s_branch {tag}_done",
            f"{tag}_odd:",
            f"v_mov_b32_dpp v{W1C}, v{W1C} quad_perm:[2,3,2,3] row_mask:0xf bank_mask:0xf",
            f"v_mov_b32_dpp v{W2C}, v{W2C} quad_perm:[2,3,2,3] row_mask:0xf bank_mask:0xf",
            f"{tag}_done:"]


M_T8 = f"v_lshlrev_b32_sdwa v{T8}, 3, v{W2C} dst_sel:DWORD dst_unused:UNUSED_PAD src0_sel:DWORD src1_sel:WORD_0"
M_Y = [f"v_lshlrev_b32 v{Y}, 16, v{W1C}", f"v_and_b32 v{Y+1}, s{S_HI}, v{W1C}", f"v_and_b32 v{Y+2}, s{S_HI}, v{W2C}"]
M_EA = [f"v_add_u32_dpp v{EA+h}, v{T8}, v{QQ8} quad_perm:[{h},{h},{h},{h}] row_mask:0xf bank_mask:0xf"
        for h in range(2)]


def e_reads(dst):
    return [f"ds_read_b64_tr_b16 {vr(dst + 2*h, 2)}, v{EA+h}" for h in range(2)]


def unpack(aa):
    return [f"v_lshlrev_b32 v{UL+aa}, 16, v{UH+aa}", f"v_and_b32 v{UH+aa}, s{S_HI}, v{UH+aa}"]


def gb(j, aa):
    if opt("nog", 0):
        return []
    hf, rl = aa >> 1, 2 * (aa & 1)
    pl = PT + 2 * (aa & 1)
    return [f"v_mul_f32_dpp v{pl}, v{Y+j}, v{UL+aa} row_newbcast:{4*rl+hf} row_mask:0xf bank_mask:0xf",
            f"v_mul_f32_dpp v{pl+1}, v{Y+j}, v{UH+aa} row_newbcast:{4*(rl+1)+hf} row_mask:0xf bank_mask:0xf",
            f"v_cvt_pk_bf16_f32 v{(G0, G1, G2)[j]+aa}, v{pl}, v{pl+1}"]


def neg(dst, src):
    return [f"v_xor_b32 v{dst+i}, s{S_SGN}, v{src+i}" for i in range(4)]


def next_index(dst, src):
    return [f"s_add_u32 s{dst}, s{src}, 1",
            f"s_cmp_lt_u32 s{dst}, s{S_NS}",
            f"s_cselect_b32 s{dst}, s{dst}, 0",
            f"s_cselect_b32 s{S_BUMP}, 0, {XHALF}"]


BUMP = [f"s_add_u32 s{S_TAB0}, s{S_TAB0}, s{S_BUMP}", f"s_add_u32 s{S_TAB1}, s{S_TAB1}, s{S_BUMP}"]


def step_body(a, var, rho, first):
    tag = f"{var}S{rho}{'f' if first else 'n'}"
    x = 3 if first else 0
    p = lambda k: (rho + k) % 3
    F = [[] for _ in range(32)]

    def spread(slot, lst, per=2):
        for i, l in enumerate(lst):
            F[slot + i // per].append(l)

    def event(slot, n, k, pos):
        r = b_reads(k, pos)
        F[slot] += vmwait(n) + r[:2]
        F[slot + 1] += r[2:]

    def refill(slot, k, pos, wait="lgkmcnt(0)"):
        d = dma(k, pos)
        F[slot - 1] += d[0]
        F[slot] += [f"s_waitcnt {wait}"] + d[1] + d[2]
        F[slot + 1] += d[3]

    n0, n2 = neg(N0, G0), neg(N2, G2)
    spread(0, gb(2, 2) + gb(2, 3) + gb(1, 0) + gb(1, 1) + gb(1, 2) + gb(1, 3))
    event(0, 4 + x, 2, p(2))
    refill(4, 1, p(2))
    event(8, 4 + x, 3, p(0))
    F[9] += meta_fetch(tag + "_m", S_D1)
    spread(10, [M_T8, n0[0], M_Y[0], n0[1]] + M_EA)
    refill(12, 2, p(0))
    F[13] += e_reads(UH)
    spread(13, [n0[2], n0[3], M_Y[1], M_Y[2]])
    F[14] += next_index(S_D2, S_D1)
    F[15] += w0_fetch(S_D2) + [n2[0]]
    event(16, 4 + x, 0, p(1))
    F[16] += w0_rep(tag + "_a", S_D2) + [n2[1]]
    F[17] += ["s_waitcnt lgkmcnt(4)"]
    spread(17, unpack(0) + unpack(1) + [n2[2], n2[3]] + unpack(2) + unpack(3) + [x_addr(0), x_addr(1)])
    refill(20, 3, p(1))
    spread(23, gb(0, 0) + gb(0, 1) + gb(0, 2) + gb(0, 3) + gb(2, 0) + gb(2, 1))
    F[22] += BUMP
    F[23] += e_reads(GS)
    event(24, 4, 1, p(2))
    F[26] += [x_addr(2)]
    F[27] += [x_addr(3)]
    refill(28, 0, p(2))
    F[30] += [f"s_mov_b32 s{S_D1}, s{S_D2}", f"s_sub_u32 s{S_REM}, s{S_REM}, 1"]
    F[31] += [f"s_cmp_lg_u32 s{S_REM}, 0"]
    if var == "A" and opt("prio", 1):
        lo, hi = opt("prlo", 0), opt("prhi", 2)
        G = []
        for l in F[9]:
            if l.startswith("s_set_gpr_idx_on"):
                G.append(f"s_setprio {lo}")
            G.append(l)
            if l.endswith("_m_odd:"):
                G.append(f"s_setprio {hi}")
        F[9] = G
    a.label(tag)
    for i, m in enumerate(mfma_list()):
        emit_mfma(a, m, first)
        for l in F[i]:
            if opt("nods", 0) and (l.startswith("ds_") or l.startswith("s_waitcnt lgkm")):
                continue
            if opt("nobr", 0) and (l.startswith(("s_cbranch", "s_branch", "s_bitcmp")) or "row_shl" in l
                                   or "[2,3,2,3]" in l):
                continue
            if opt("novalu", 0) and l.startswith("v_"):
                continue
            if opt("noidx", 0) and l.startswith("s_set_gpr"):
                continue
            a(l)
    a(f"s_cbranch_scc1 {var}S{(rho+1)%3}n")
    if first:
        a(f"s_branch {var}EP{(rho+1)%3}")


def pipeline_start(a):
    def run(lst):
        for l in lst:
            a(l)

    def dma_now(k, pos):
        for g in dma(k, pos):
            run(g)

    run(w0_fetch(S_D1) + w0_rep("I_a", S_D1) + [x_addr(q) for q in range(4)])
    dma_now(0, 0)
    dma_now(1, 1)
    dma_now(2, 2)
    run(meta_fetch("I_m", S_D1) + [M_T8] + M_Y + M_EA + e_reads(UH) + e_reads(GS))
    run(["s_waitcnt vmcnt(4)"] + b_reads(0, 0) + ["s_waitcnt lgkmcnt(0)"])
    dma_now(3, 0)
    run(next_index(S_D1, S_D1) + BUMP + w0_fetch(S_D1) + w0_rep("I_b", S_D1) + [x_addr(q) for q in range(4)])
    run(["s_waitcnt vmcnt(4)"] + b_reads(1, 1))
    for aa in range(4):
        run(unpack(aa))
    run(gb(0, 0) + gb(0, 1) + gb(0, 2) + gb(0, 3) + gb(2, 0) + gb(2, 1))
    a("v_mov_b32 v0, 0x80000000")
    a("s_waitcnt lgkmcnt(0)")
    dma_now(0, 1)
    for i in range(3):
        a(f"buffer_store_dword v0, v0, s[{R_P}:{R_P+3}], 0 offen")
    if opt("prio", 1):
        a(f"s_cmp_lt_u32 s{S_WAVE}, 4")
        a("s_cbranch_scc1 AS0f")
        a("s_setprio 1")
        a("s_branch BS0f")
    else:
        a("s_branch AS0f")


def epilogue(a, var, rho):
    a.label(f"{var}EP{rho}")
    order = [P2[0], P0, P3[0], P2[2], P2[1], P4[2], P4[1], P3[1], P3[2], P1, P4[0]]
    book = [f"s_mul_i32 s55, s{S_NODE}, {P_NODE}",
            f"s_add_u32 s55, s55, s{S_POFF}",
            f"s_add_u32 s{S_NODE}, s{S_NODE}, 1",
            f"s_cmp_lt_u32 s{S_NODE}, s{S_NEND}",
            "s_cselect_b32 s56, 0, 1",
            f"s_cselect_b32 s{S_NODE}, s{S_NODE}, s{S_NODE0}",
            f"v_readlane_b32 s{S_REM}, v{NST}, s{S_NODE}",
            "s_cmp_eq_u32 s56, 0"]
    for t in order:
        pth = TPATH[t]
        for r in range(0 if opt("noep", 0) else 4):
            for cq in range(2):
                d, w = acc(t, cq), WR + 4 * (2 * pth + cq)
                if r == 0:
                    a(f"v_mul_f32 v{d}, v{d}, v{w}")
                else:
                    a(f"v_fmac_f32 v{d}, v{d+r}, v{w+r}")
        n = "-" if t == P4[2] else ""
        a(f"v_cvt_pk_bf16_f32 v{B1+t}, {n}v{acc(t,0)}, {n}v{acc(t,1)}")
        if t == P0:
            a(f"v_mov_b32 v{B1+11}, 0")
        if t == P1:
            a(f"v_mfma_f32_16x16x32_bf16 {vr(20,4)}, {vr(SEL,4)}, {vr(B1+4,4)}, 0")
    a(book[0])
    a(f"v_mfma_f32_16x16x32_bf16 {vr(16,4)}, {vr(SEL,4)}, {vr(B1,4)}, 0")
    a(f"v_mfma_f32_16x16x32_bf16 {vr(24,4)}, {vr(SEL,4)}, {vr(B1+8,4)}, 0")
    a(f"v_cvt_pk_bf16_f32 v65, v20, v21")
    for l in book[1:]:
        a(l)
    a(f"buffer_store_dword v65, v{POFF}, s[{R_P}:{R_P+3}], s55 offen offset:256")
    for i in (0, 2):
        a(f"v_cvt_pk_bf16_f32 v{64+i}, v{16+4*i}, v{17+4*i}")
    for i in (0, 2):
        a(f"buffer_store_dword v{64+i}, v{POFF}, s[{R_P}:{R_P+3}], s55 offen offset:{256*i}")
    a(f"s_cbranch_scc1 {var}S{rho}f")
    a(f"s_cmp_lg_u32 s{S_PHASE}, 0")
    a("s_cbranch_scc1 TAIL")
    stamp(a, 7, late=True)
    a(f"s_mov_b32 s{S_PHASE}, 1")
    a(f"s_mov_b32 s{S_POFF}, {P_HALF}")
    a("s_mov_b32 s57, 10240")
    a(f"v_lshlrev_b32 v67, 4, v{LANE}")
    for pc in range(10):
        if pc % 4 == 0 and pc:
            a("s_add_u32 s57, s57, 4096")
        a(f"buffer_load_dwordx4 {vr(WR+4*pc,4)}, v67, s[{R_W}:{R_W+3}], s57 offen offset:{(pc%4)*1024}")
    a(f"s_branch {var}S{rho}f")


def kernel2():
    a = Asm()
    a("s_cmp_ge_u32 s2, 256")
    a("s_cbranch_scc1 K2_end")
    if opt("xcdmap", 1) == 2:
        a("s_load_dwordx2 s[54:55], s[0:1], 80")
        a("s_getreg_b32 s58, hwreg(HW_REG_XCC_ID, 0, 3)")
        a("v_lshrrev_b32 v1, 6, v0")
        a("v_readfirstlane_b32 s3, v1")
        a(f"v_mov_b32 v3, {L_WSUM}")
        a("s_cmp_lg_u32 s3, 0")
        a("s_cbranch_scc1 CLAIMED")
        a("s_waitcnt lgkmcnt(0)")
        srd(a, 4, 54, 0, 256)
        a("s_mov_b64 exec, 1")
        a.label("CLAIM")
        a("v_mov_b32 v1, 1")
        a("s_lshl_b32 s59, s58, 5")
        a("v_mov_b32 v2, s59")
        a("buffer_atomic_add v1, v2, s[4:7], 0 offen sc0")
        a("s_add_u32 s58, s58, 1")
        a("s_and_b32 s58, s58, 7")
        a("s_waitcnt vmcnt(0)")
        a("v_readfirstlane_b32 s60, v1")
        a("s_cmp_ge_u32 s60, 32")
        a("s_cbranch_scc1 CLAIM")
        a("v_add_u32 v1, v1, v2")
        a("ds_write_b32 v3, v1")
        a("s_mov_b64 exec, -1")
        a.label("CLAIMED")
        a("s_waitcnt lgkmcnt(0)")
        a("s_barrier")
        a("ds_read_b32 v1, v3")
        a("s_waitcnt lgkmcnt(0)")
        a("v_readfirstlane_b32 s2, v1")
        a("s_and_b32 s2, s2, 255")
        a("s_barrier")
    if opt("xcdmap", 1) == 1:
        a("s_and_b32 s3, s2, 7")
        a("s_lshl_b32 s3, s3, 5")
        a("s_lshr_b32 s2, s2, 3")
        a("s_or_b32 s2, s2, s3")
    a("s_load_dwordx2 s[54:55], s[0:1], 72")
    a("s_load_dwordx2 s[56:57], s[0:1], 88")
    a(f"v_mov_b32 v{TID}, v0")
    a(f"v_and_b32 v{LANE}, 63, v0")
    a("v_lshrrev_b32 v1, 6, v0")
    a(f"v_readfirstlane_b32 s{S_WAVE}, v1")
    a("s_cmp_eq_u32 s2, 255")
    a(f"s_cselect_b32 s{S_NN}, {N - 255*NPB}, {NPB}")
    stamp(a, 0, True)
    stamp(a, 1)
    a("s_waitcnt lgkmcnt(0)")
    if PROF:
        a("s_mov_b64 s[98:99], s[56:57]")
    srd(a, R_TB, 56, WS_TAB, W * 1024)
    srd(a, R_W, 56, WS_WTAB, 0x12000)
    srd(a, R_MT, 56, WS_META, E * 12)
    srd(a, R_EP, 56, WS_EP, E * 32)
    srd(a, R_XP, 56, WS_XP, 2 * XHALF)
    a(f"s_mul_i32 s59, s2, {P_WG}")
    a(f"s_add_u32 s59, s59, {WS_P}")
    srd(a, R_P, 56, "s59", 2 * P_HALF)
    a("s_lshl_b32 s59, s2, 16")
    a(f"s_add_u32 s59, s59, {WS_ACC}")
    srd(a, R_ACC, 56, "s59", 65536)
    a(f"s_mul_i32 s59, s2, {NPB*512}")
    a(f"s_lshl_b32 s60, s{S_NN}, 9")
    srd(a, R_OUT, 54, "s59", "s60")
    a(f"s_mul_i32 s{S_RB}, s{S_WAVE}, {RING_W}")
    a(f"s_add_u32 s{S_RB}, s{S_RB}, {L_RING}")
    a(f"s_mov_b32 s{S_R0}, 0")
    a(f"s_mov_b32 s{S_CAP}, {CAP}")
    a(f"s_mov_b32 s{S_HI}, 0xffff0000")
    a(f"s_mov_b32 s{S_SGN}, 0x80008000")
    L = LANE
    a(f"v_bfe_u32 v3, v{L}, 4, 1")
    a(f"v_and_b32 v4, 7, v{L}")
    a("v_lshlrev_b32 v5, 1, v3")
    a("v_xor_b32 v4, v4, v5")
    a("v_lshlrev_b32 v4, 4, v4")
    a(f"v_or_b32 v{XOFF}, 0x80000000, v4")
    a(f"v_and_b32 v4, 3, v{L}")
    a(f"v_lshlrev_b32 v{QQ8}, 3, v4")
    a(f"v_bfe_u32 v5, v{L}, 3, 1")
    a("v_mul_u32_u24 v5, 1088, v5")
    a(f"v_lshrrev_b32 v6, 4, v{L}")
    a("v_lshl_add_u32 v5, v6, 8, v5")
    a(f"v_bfe_u32 v7, v{L}, 2, 1")
    a("v_lshl_add_u32 v5, v7, 7, v5")
    a(f"v_add_u32 v5, v5, v{QQ8}")
    a(f"v_add_u32 v5, s{S_RB}, v5")
    a("v_lshlrev_b32 v7, 5, v3")
    a(f"v_add_u32 v{BAE}, v5, v7")
    a(f"v_sub_u32 v{BAO}, v5, v7")
    a(f"v_and_b32 v7, 15, v{L}")
    a("v_lshlrev_b32 v8, 2, v7")
    a(f"v_lshl_add_u32 v{POFF}, v6, 6, v8")
    a("v_and_b32 v8, 1, v7")
    a("v_lshlrev_b32 v8, 4, v8")
    a("v_mov_b32 v9, 0x3f80")
    a("v_lshlrev_b32 v8, v8, v9")
    a("v_and_b32 v9, 14, v7")
    for i in range(4):
        a(f"v_cmp_eq_u32 vcc, {4*i}, v9")
        a(f"v_cndmask_b32 v{SEL+i}, 0, v8, vcc")

    a.label("ROUND")
    a(f"v_and_b32 v2, 255, v{TID}")
    a("v_lshlrev_b32 v3, 10, v2")
    a("s_lshl_b32 s58, s2, 2")
    a(f"buffer_load_dword v4, v3, s[{R_TB}:{R_TB+3}], s58 offen")
    a(f"v_lshlrev_b32 v5, 4, v{LANE}")
    a("s_mov_b32 s57, 0")
    for pc in range(10):
        if pc % 4 == 0 and pc:
            a("s_add_u32 s57, s57, 4096")
        a(f"buffer_load_dwordx4 {vr(WR+4*pc,4)}, v5, s[{R_W}:{R_W+3}], s57 offen offset:{(pc%4)*1024}")
    a(f"v_lshlrev_b32 v6, 2, v{TID}")
    a("v_mov_b32 v7, 0")
    a(f"v_add_u32 v8, {L_MISC}, v6")
    a(f"v_cmp_gt_u32 vcc, 68, v{TID}")
    a("s_and_saveexec_b64 s[58:59], vcc")
    a("ds_write_b32 v8, v7")
    a(f"v_cmp_gt_u32 vcc, 8, v{TID}")
    a("s_and_b64 exec, exec, vcc")
    a("ds_write_b32 v6, v7")
    a("s_mov_b64 exec, -1")
    a("s_waitcnt vmcnt(10)")
    stamp(a, 2)
    a("v_lshrrev_b32 v9, 16, v4")
    a("v_and_b32 v10, 0xffff, v4")
    a("v_mov_b32 v11, v9")
    scan64(a, 11)
    a("v_readlane_b32 s58, v11, 63")
    a(f"s_and_b32 s59, s{S_WAVE}, 3")
    a("s_lshl_b32 s60, s59, 2")
    a(f"s_add_u32 s60, s60, {L_WSUM}")
    a("v_mov_b32 v12, s60")
    a("v_mov_b32 v13, s58")
    a("ds_write_b32 v12, v13")
    a("v_sub_u32 v11, v11, v9")
    a("v_mul_u32_u24 v14, 3200, v2")
    a("v_add_u32 v14, v14, v10")
    a(f"v_lshrrev_b32 v15, 8, v{TID}")
    a("v_add_u32 v14, v14, v15")
    a(f"v_mov_b32 v12, {L_WSUM}")
    a("s_waitcnt lgkmcnt(0)")
    a("s_barrier")
    a("ds_read_b128 v[16:19], v12")
    a("s_waitcnt lgkmcnt(0)")
    for i in range(4):
        a(f"v_readfirstlane_b32 s{60+i}, v{16+i}")
    a("s_add_u32 s61, s61, s60")
    a("s_add_u32 s62, s62, s61")
    a(f"s_add_u32 s{S_T}, s63, s62")
    a("s_cmp_eq_u32 s59, 0")
    a("s_cselect_b32 s58, 0, s60")
    a("s_cmp_eq_u32 s59, 2")
    a("s_cselect_b32 s58, s61, s58")
    a("s_cmp_eq_u32 s59, 3")
    a("s_cselect_b32 s58, s62, s58")
    a(f"s_sub_u32 s{S_LEN}, s{S_T}, s{S_R0}")
    a(f"s_cmp_le_u32 s{S_LEN}, s{S_CAP}")
    a(f"s_cselect_b32 s{S_LAST}, 1, 0")
    a(f"s_min_u32 s{S_LEN}, s{S_LEN}, s{S_CAP}")
    a(f"s_sub_u32 s58, s58, s{S_R0}")
    a("v_add_u32 v11, s58, v11")
    a("v_add_u32 v11, v11, v15")
    a(f"v_lshl_add_u32 v12, v11, 2, v7")
    a(f"v_add_u32 v12, {L_SA}, v12")
    a.label("MAPL")
    a("v_cmp_lt_u32 vcc, v15, v9")
    a("s_and_b64 exec, exec, vcc")
    a("s_cbranch_execz MAPD")
    a(f"v_cmp_gt_u32 vcc, s{S_LEN}, v11")
    a("s_and_saveexec_b64 s[58:59], vcc")
    a("ds_write_b32 v12, v14")
    a("s_mov_b64 exec, s[58:59]")
    a("v_add_u32 v15, 2, v15")
    a("v_add_u32 v11, 2, v11")
    a("v_add_u32 v14, 2, v14")
    a("v_add_u32 v12, 8, v12")
    a("s_branch MAPL")
    a.label("MAPD")
    a("s_mov_b64 exec, -1")
    a(f"v_add_u32 v12, {L_SA}, v6")
    a(f"v_lshrrev_b32 v13, 1, v{LANE}")
    a(f"s_lshl_b32 s58, s{S_WAVE}, 5")
    a("v_add_u32 v13, s58, v13")
    a(f"v_lshl_add_u32 v14, v13, 2, v7")
    a(f"v_add_u32 v14, {L_SA}, v14")
    a(f"v_and_b32 v15, 1, v{LANE}")
    a("v_lshlrev_b32 v15, 4, v15")
    a("v_mov_b32 v16, 0x80000000")
    a("s_waitcnt lgkmcnt(0)")
    a("s_barrier")
    stamp(a, 3)
    for k in range(7):
        a(f"ds_read_b32 v{20+k}, v12 offset:{2048*k}")
    for k in range(14):
        a(f"ds_read_b32 v{28+k}, v14 offset:{1024*k}")
    MREC = 44
    for k in range(7):
        a(f"v_add_u32 v17, {512*k}, v{TID}")
        a(f"v_cmp_gt_u32 s[{S_MASK+2*k}:{S_MASK+2*k+1}], s{S_LEN}, v17")
        a(f"s_waitcnt lgkmcnt({min(15, 20-k)})")
        a(f"v_mul_u32_u24 v{20+k}, 12, v{20+k}")
        a(f"v_cndmask_b32 v{20+k}, v16, v{20+k}, s[{S_MASK+2*k}:{S_MASK+2*k+1}]")
    if PROF == 2:
        stamp(a, 7)
    for k in range(7):
        a(f"buffer_load_dwordx3 {vr(MREC+4*k,3)}, v{20+k}, s[{R_MT}:{R_MT+3}], 0 offen")
    a("s_waitcnt lgkmcnt(0)")
    a(f"s_lshl_b32 s{S_EM0}, s{S_WAVE}, 10")
    a(f"s_add_u32 s{S_EM0}, s{S_EM0}, {L_E + 32}")
    EREG = 128
    for k in range(14):
        a(f"v_cmp_gt_u32 vcc, s{S_LEN}, v13")
        a(f"v_lshl_add_u32 v{28+k}, v{28+k}, 5, v15")
        a("v_add_u32 v13, 256, v13")
        a(f"v_cndmask_b32 v{EREG+k}, v16, v{28+k}, vcc")
    eb = [int(c) for c in opt("eb", "4433")]

    def e_batch(i):
        for k in range(sum(eb[:i]), sum(eb[:i + 1])):
            if k == 13:
                a(f"s_cmp_ge_u32 s{S_WAVE}, 2")
                a("s_cbranch_scc1 NOE14")
            a(f"s_mov_b32 m0, s{S_EM0}")
            a(f"s_add_u32 s{S_EM0}, s{S_EM0}, 8192")
            a(f"buffer_load_dwordx4 v{EREG+k}, s[{R_EP}:{R_EP+3}], 0 offen lds")
            if k == 13:
                a.label("NOE14")

    if PROF == 2:
        stamp(a, 8)
    e_batch(0)
    if PROF == 2:
        stamp(a, 9)
    a("v_mov_b32 v17, 1")
    for k in range(7):
        a(f"s_waitcnt vmcnt({min(eb[0], 13) + 6 - k})")
        if PROF == 2 and k in (0, 6):
            stamp(a, 10 if k == 0 else 11)
        a(f"v_and_b32 v{20+k}, 0xff, v{MREC+4*k}")
        a(f"v_lshlrev_b32 v{20+k}, 2, v{20+k}")
        a(f"v_add_u32 v18, {L_CNT}, v{20+k}")
        a(f"s_mov_b64 exec, s[{S_MASK+2*k}:{S_MASK+2*k+1}]")
        a(f"ds_add_rtn_u32 v{MREC+4*k+3}, v18, v17")
        a("s_mov_b64 exec, -1")
    a(f"v_lshlrev_b32 v12, 2, v{LANE}")
    a(f"v_add_u32 v12, {L_CNT}, v12")
    a(f"v_lshlrev_b32 v13, 4, v{TID}")
    a(f"v_add_u32 v13, {L_SA}, v13")
    for i in range(4):
        a(f"v_mov_b32 v{28+i}, 0")
    a("s_waitcnt lgkmcnt(0)")
    a("s_barrier")
    stamp(a, 4)
    e_batch(1)
    a("ds_read_b32 v14, v12")
    nz = MAXSTEPS * 384 // 16
    for k in range(6):
        a(f"ds_write_b128 v13, v[28:31] offset:{8192*k}")
    a(f"v_cmp_gt_u32 vcc, {nz - 6*512}, v{TID}")
    a("s_mov_b64 exec, vcc")
    a(f"ds_write_b128 v13, v[28:31] offset:{8192*6}")
    a("s_mov_b64 exec, -1")
    a("s_waitcnt lgkmcnt(6)")
    a("v_add_u32 v14, 31, v14")
    a("v_lshrrev_b32 v14, 5, v14")
    a("v_max_u32 v14, 1, v14")
    a(f"v_cmp_gt_u32 vcc, s{S_NN}, v{LANE}")
    a(f"v_cndmask_b32 v{NST}, 0, v14, vcc")
    a("v_mad_u32_u24 v15, v14, 5, 4")
    a("v_cndmask_b32 v15, 0, v15, vcc")
    a(f"v_lshl_or_b32 v18, v15, 16, v{NST}")
    a("v_mov_b32 v19, v18")
    scan64(a, 19)
    a("v_readlane_b32 s58, v19, 63")
    a("v_sub_u32 v18, v19, v18")
    a("v_and_b32 v19, 0xffff, v19")
    a("v_lshrrev_b32 v32, 16, v18")
    a("v_and_b32 v18, 0xffff, v18")
    a("v_lshl_add_u32 v32, v32, 1, v15")
    a("v_lshlrev_b32 v32, 2, v32")
    a("s_lshr_b32 s59, s58, 16")
    a("s_and_b32 s58, s58, 0xffff")
    a(f"s_and_b32 s60, s{S_WAVE}, 3")
    a("s_lshl_b32 s60, s60, 1")
    a(f"s_lshr_b32 s61, s{S_WAVE}, 2")
    a("s_add_u32 s60, s60, s61")
    a("s_mul_i32 s60, s60, s59")
    a("s_add_u32 s61, s60, s59")
    a("v_cmp_le_u32 vcc, s60, v32")
    a("v_cmp_gt_u32 s[62:63], s61, v32")
    a("s_and_b64 vcc, vcc, s[62:63]")
    a(f"s_bcnt1_i32_b64 s{S_NNW}, vcc")
    a(f"s_ff1_i32_b64 s{S_NODE0}, vcc")
    a(f"s_max_i32 s{S_NODE0}, s{S_NODE0}, 0")
    a(f"s_add_u32 s{S_NEND}, s{S_NODE0}, s{S_NNW}")
    a(f"s_sub_u32 s60, s{S_NEND}, 1")
    a("s_max_i32 s60, s60, 0")
    a(f"v_readlane_b32 s{S_STEP0}, v18, s{S_NODE0}")
    a(f"v_readlane_b32 s{S_NS}, v19, s60")
    a(f"s_sub_u32 s{S_NS}, s{S_NS}, s{S_STEP0}")
    a(f"s_cmp_eq_u32 s{S_NNW}, 0")
    a(f"s_cselect_b32 s{S_NS}, 0, s{S_NS}")
    a(f"s_cmp_gt_u32 s{S_NS}, {MAXWSTEPS}")
    a("s_cselect_b32 s60, 1, 0")
    a(f"s_cmp_gt_u32 s58, {MAXSTEPS}")
    a("s_cselect_b32 s60, 1, s60")
    a("s_cmp_eq_u32 s60, 0")
    a("s_cbranch_scc1 NOFAIL")
    a(f"v_mov_b32 v33, {L_FLAG}")
    a("ds_write_b32 v33, v17")
    a.label("NOFAIL")
    for k in range(7):
        a(f"ds_bpermute_b32 v{20+k}, v{20+k}, v18")
    a(f"v_mov_b32 v33, {L_FLAG}")
    a("s_waitcnt lgkmcnt(0)")
    a("s_barrier")
    a("ds_read_b32 v34, v33")
    a(f"v_lshlrev_b32 v35, 2, v{TID}")
    a("v_add_u32 v35, 4, v35")
    for k in range(7):
        r = MREC + 4 * k
        a(f"v_lshl_add_u32 v{20+k}, v{20+k}, 5, v{r+3}")
        a(f"v_and_b32 v{r}, 0xffffff00, v{r}")
        a(f"v_add_u32 v36, {2048*k}, v35")
        a(f"v_or_b32 v{r+3}, v{r+2}, v36")
        a(f"v_mov_b32 v{r+2}, v{r+1}")
        a(f"v_lshlrev_b32 v{r+1}, 3, v{20+k}")
        a(f"v_add_u32 v{r+1}, {L_SB}, v{r+1}")
        a(f"v_lshlrev_b32 v{20+k}, 2, v{20+k}")
        a(f"v_add_u32 v{20+k}, {L_SA}, v{20+k}")
    a("s_waitcnt lgkmcnt(0)")
    a("v_readfirstlane_b32 s60, v34")
    a("s_cmp_eq_u32 s60, 0")
    a("s_cbranch_scc1 SCATTER")
    a(f"s_mov_b32 s{S_CAP}, {SLOWCAP}")
    a("s_waitcnt vmcnt(0)")
    a("s_barrier")
    a("s_branch ROUND")
    a.label("SCATTER")
    e_batch(2)
    for k in range(7):
        r = MREC + 4 * k
        a(f"s_mov_b64 exec, s[{S_MASK+2*k}:{S_MASK+2*k+1}]")
        a(f"ds_write_b32 v{20+k}, v{r}")
        a(f"ds_write_b64 v{r+1}, {vr(r+2,2)}")
    a("s_mov_b64 exec, -1")
    a(f"v_lshrrev_b32 v4, 4, v{LANE}")
    a("v_lshlrev_b32 v4, 3, v4")
    a(f"s_lshl_b32 s58, s{S_STEP0}, 5")
    a("v_add_u32 v4, s58, v4")
    a(f"v_bfe_u32 v5, v{LANE}, 2, 1")
    a("v_lshl_add_u32 v6, v5, 5, v4")
    a(f"v_and_b32 v5, 3, v{LANE}")
    a("v_lshl_add_u32 v6, v5, 1, v6")
    a(f"v_bfe_u32 v5, v{LANE}, 3, 1")
    a("v_add_u32 v6, v6, v5")
    a("v_lshlrev_b32 v6, 2, v6")
    a(f"v_add_u32 v6, {L_SA}, v6")
    a(f"v_bfe_u32 v5, v{LANE}, 1, 1")
    a("v_lshl_add_u32 v8, v5, 5, v4")
    a(f"v_and_b32 v5, 1, v{LANE}")
    a("v_lshl_add_u32 v8, v5, 2, v8")
    a(f"v_bfe_u32 v5, v{LANE}, 2, 2")
    a("v_add_u32 v8, v8, v5")
    a("v_lshlrev_b32 v8, 3, v8")
    a(f"v_add_u32 v8, {L_SB}, v8")
    a("s_waitcnt lgkmcnt(0)")
    a("s_barrier")
    e_batch(3)
    for s in range(10):
        a(f"ds_read_b32 v{M0R+s}, v6 offset:{256*s}")
        a(f"ds_read_b64 {vr(MBR+2*s,2)}, v8 offset:{512*s}")
    a(f"s_mov_b32 s{S_D1}, 0")
    a(f"s_mov_b32 s{S_PHASE}, 0")
    a(f"s_mov_b32 s{S_POFF}, 0")
    a(f"s_mov_b32 s{S_TAB0}, 0")
    a(f"s_mov_b32 s{S_TAB1}, 128")
    a(f"s_mov_b32 s{S_NODE}, s{S_NODE0}")
    a(f"v_readlane_b32 s{S_REM}, v{NST}, s{S_NODE}")
    stamp(a, 5)
    a("s_waitcnt vmcnt(0) lgkmcnt(0)")
    a("s_barrier")
    stamp(a, 6)
    if PROF:
        a(f"s_mov_b32 s{S_PROF+12}, s{S_NS}")
        a(f"s_mov_b32 s{S_PROF+13}, s{S_NNW}")
    a(f"s_cmp_eq_u32 s{S_NNW}, 0")
    a("s_cbranch_scc1 TAIL")
    pipeline_start(a)
    for var in ("AB" if opt("prio", 1) else "A"):
        for rho in range(3):
            step_body(a, var, rho, True)
            step_body(a, var, rho, False)
            epilogue(a, var, (rho + 1) % 3)

    a.label("TAIL")
    a("s_setprio 0")
    WF, PF, D = 0, 80, 188
    stamp(a, 8, late=True)
    a(f"v_lshlrev_b32 v{T0}, 4, v{LANE}")
    a(f"s_and_b32 s54, s{S_WAVE}, 1")
    a("s_mul_i32 s55, s54, 20480")
    a(f"s_add_u32 s55, s55, {WS_WSI - WS_WTAB}")
    a("s_waitcnt vmcnt(0)")
    for f in range(20):
        if f % 4 == 0 and f:
            a("s_add_u32 s55, s55, 4096")
        a(f"buffer_load_dwordx4 {vr(WF+4*f,4)}, v{T0}, s[{R_W}:{R_W+3}], s55 offen offset:{(f%4)*1024}")
    a("s_barrier")
    stamp(a, 9, late=True)
    a(f"s_lshl_b32 s55, s{S_WAVE}, 10")
    for k in range(10):
        if k == 9:
            a(f"s_cmp_ge_u32 s{S_WAVE}, 4")
            a("s_cbranch_scc1 NOP10")
        a("s_mov_b32 m0, s55")
        a(f"buffer_load_dwordx4 v{T0}, s[{R_P}:{R_P+3}], s55 offen sc1 lds")
        a("s_add_u32 s55, s55, 8192")
    a.label("NOP10")
    a(f"s_lshl_b32 s55, s{S_WAVE}, 13")
    a(f"s_cmp_eq_u32 s{S_R0}, 0")
    a("s_cbranch_scc1 ZEROD")
    for i in range(8):
        if i == 4:
            a("s_add_u32 s55, s55, 4096")
        a(f"buffer_load_dwordx4 {vr(D+4*i,4)}, v{T0}, s[{R_ACC}:{R_ACC+3}], s55 offen offset:{(i%4)*1024} sc1")
    a("s_branch HAVED")
    a.label("ZEROD")
    for i in range(32):
        a(f"v_mov_b32 v{D+i}, 0")
    a.label("HAVED")
    a(f"v_and_b32 v{T0+1}, 15, v{LANE}")
    a(f"s_lshr_b32 s56, s{S_WAVE}, 1")
    a("s_lshl_b32 s56, s56, 4")
    a(f"v_add_u32 v{T0+1}, s56, v{T0+1}")
    a(f"v_lshrrev_b32 v{T0+2}, 4, v{LANE}")
    a(f"v_lshlrev_b32 v{T0+2}, 4, v{T0+2}")
    a(f"v_mul_u32_u24 v{T0+3}, {P_NODE}, v{T0+1}")
    a(f"v_add_u32 v{T0+3}, v{T0+3}, v{T0+2}")
    a(f"v_lshl_add_u32 v{T0+4}, v{T0+1}, 9, v{T0+2}")
    a("s_lshl_b32 s54, s54, 6")
    a("s_waitcnt vmcnt(0)")
    a("s_barrier")
    stamp(a, 10, late=True)
    seq = []
    for comp, ts in enumerate(([P0, P1], [P2[0], P3[0], P4[0]], [P2[1], P3[1], P4[1]], [P2[2], P3[2], P4[2]])):
        for t in ts:
            for h in range(2):
                seq.append((comp, t, h))
    for i, (comp, t, h) in enumerate(seq):
        a(f"ds_read_b128 {vr(PF+4*i,4)}, v{T0+3} offset:{h*P_HALF + t*64}")
        if i == 14:
            a("s_waitcnt lgkmcnt(7)")
    for i, (comp, t, h) in enumerate(seq):
        if i >= 8:
            a(f"s_waitcnt lgkmcnt({21 - i})")
        for mt in range(2):
            d = vr(D + 8 * comp + 4 * mt, 4)
            a(f"v_mfma_f32_16x16x32_bf16 {d}, {vr(WF + 4*(10*mt + 2*TPATH[t] + h),4)}, {vr(PF+4*i,4)}, {d}")
    a(f"s_cmp_eq_u32 s{S_LAST}, 0")
    a("s_cbranch_scc1 MORE")
    for i in range(8):
        a(f"v_mul_f32 v{i}, 0xbfb8aa3b, v{D+i}")
    for i in range(8):
        a(f"v_exp_f32 v{i}, v{i}")
    for i in range(8):
        a(f"v_add_f32 v{i}, 1.0, v{i}")
    for i in range(8):
        a(f"v_rcp_f32 v{i}, v{i}")
    for comp in range(4):
        if comp:
            for i in range(8):
                a(f"v_mul_f32 v{D+8*comp+i}, v{D+8*comp+i}, v{i}")
        for i in range(4):
            a(f"v_cvt_pk_bf16_f32 v{8+4*comp+i}, v{D+8*comp+2*i}, v{D+8*comp+2*i+1}")
        a(f"buffer_store_dwordx4 {vr(8+4*comp,4)}, v{T0+4}, s[{R_OUT}:{R_OUT+3}], s54 offen offset:{128*comp}")
    if PROF:
        a("s_waitcnt vmcnt(0)")
    stamp(a, 11, late=True)
    stamp(a, 15, True)
    prof_dump(a, 98, 1, 3, S_WAVE)
    if PROF == 3:
        a("s_load_dwordx2 s[54:55], s[0:1], 80")
        a("s_min_u32 s80, s2, 249")
        a("s_lshl_b32 s80, s80, 10")
        a(f"s_add_u32 s80, s80, {WS_PROF}")
        srd(a, 4, 98, "s80", 64)
        a("v_mov_b32 v0, 0")
        a("buffer_load_dword v2, v0, s[4:7], 0 offen")
        a("buffer_load_dword v3, v0, s[4:7], 0 offen offset:8")
        a("buffer_load_dword v4, v0, s[4:7], 0 offen offset:24")
        a("buffer_load_dword v5, v0, s[4:7], 0 offen offset:60")
        a("s_waitcnt vmcnt(0) lgkmcnt(0)")
        srd(a, 4, 54, 0, 256)
        a("v_not_b32 v2, v2")
        a("s_mov_b64 exec, 1")
        for i in range(4):
            a(f"buffer_atomic_umax v{2+i}, v0, s[4:7], 0 offen offset:{4*i}")
        a(f"v_not_b32 v2, s{S_PROF}")
        a("buffer_atomic_umax v2, v0, s[4:7], 0 offen offset:16")
        for i, st in enumerate((0, 2, 3, 4, 6, 7, 8, 9, 10, 15)):
            a(f"v_mov_b32 v{3+i}, s{S_PROF+st}")
            a(f"buffer_atomic_umax v{3+i}, v0, s[4:7], 0 offen offset:{20+4*i}")
    a("s_endpgm")
    a.label("MORE")
    a(f"s_lshl_b32 s55, s{S_WAVE}, 13")
    for i in range(8):
        if i == 4:
            a("s_add_u32 s55, s55, 4096")
        a(f"buffer_store_dwordx4 {vr(D+4*i,4)}, v{T0}, s[{R_ACC}:{R_ACC+3}], s55 offen offset:{(i%4)*1024}")
    a(f"s_add_u32 s{S_R0}, s{S_R0}, s{S_LEN}")
    a("s_waitcnt vmcnt(0)")
    a("s_barrier")
    a("s_branch ROUND")
    a.label("K2_end")
    a("s_endpgm")
    return a


def descriptor(name, nv, ns):
    return f""".amdhsa_kernel {name}
  .amdhsa_next_free_vgpr {nv}
  .amdhsa_next_free_sgpr {ns}
  .amdhsa_accum_offset {(nv + 3) // 4 * 4}
  .amdhsa_group_segment_fixed_size 0
  .amdhsa_kernarg_size 96
  .amdhsa_user_sgpr_count 2
  .amdhsa_user_sgpr_kernarg_segment_ptr 1
  .amdhsa_system_sgpr_workgroup_id_x 1
  .amdhsa_float_denorm_mode_32 3
.end_amdhsa_kernel
"""


def main():
    ref = open(os.path.join(os.path.dirname(os.path.abspath(__file__)), "..", "cdna_kernels", NAME + ".s.ref")).read()
    head = [l for l in ref.split("\n") if l.startswith(";") and "@launch" not in l and "Override" not in l
            and "grid=ceil" not in l]
    k1, k2 = "edge_sort_kernel", NAME + "_kernel"
    out = head + [
        f"; @launch kernel={k1} grid=(255,1,1) block=(1024,1,1) lds={K1_LDS}",
        f"; @launch kernel={k2} grid=(256,1,1) block=(512,1,1) lds={K2_LDS}",
        '.amdgcn_target "amdgcn-amd-amdhsa--gfx950"',
        ".text",
    ]
    for name, fn in ((k1, kernel1), (k2, kernel2)):
        lines, nops = fn().finish()
        print(name, "instructions:", len(lines), "nops inserted:", nops, file=sys.stderr)
        out += [f".globl {name}", ".p2align 8", f".type {name},@function", f"{name}:"] + lines
    out += ['.section .rodata,"a"', ".p2align 6", descriptor(k1, 96, 102), ".p2align 6", descriptor(k2, NVGPR, 102)]
    open(sys.argv[1], "w").write("\n".join(out))


if __name__ == "__main__":
    main()
```

```python
import os
import sys

sys.path.insert(0, os.path.dirname(os.path.abspath(__file__)))
from asmlib import Asm, vr, sr

NAME = "gather_scatter__tensor_product_equiv_equiformer__graph"
N, E = 12500, 800000
CHUNK, W = 3200, 250
NPB = 49
NBIN = 256

WS_TAB = 0
WS_WTAB = 0x40000
WS_WSI = 0x48000
WS_META = 0x100000
WS_XP = 0xB00000
WS_EP = 0x1200000
WS_P = 0x2B00000
P_NODE = 784
P_HALF = NPB * P_NODE
P_WG = 0x13000
WS_ACC = 0x4000000
XHALF = N * 256

OPT = dict(a.split("=") for a in sys.argv[2:] if "=" in a)


def opt(name, default):
    return type(default)(OPT.get(name, default))


PROF = opt("prof", 0)
WS_PROF = 0x6000000
S_PROF = 82


def stamp(a, i, real=False, late=False):
    if PROF and not (late and PROF == 2):
        a("s_waitcnt lgkmcnt(0)")
        a(("s_memrealtime" if real or PROF == 3 else "s_memtime") + " s[80:81]")
        a("s_waitcnt lgkmcnt(0)")
        a(f"s_mov_b32 s{S_PROF+i}, s80")
        if PROF == 4 and i == 7:
            a("s_memtime s[80:81]")


def prof_dump(a, wsreg, kern, nwave_shift, wavereg):
    if PROF:
        a(f"s_lshl_b32 s80, s2, {nwave_shift}")
        a(f"s_add_u32 s80, s80, s{wavereg}")
        a("s_lshl_b32 s80, s80, 6")
        a(f"s_add_u32 s80, s80, {WS_PROF + kern * 0x100000}")
        srd(a, 4, wsreg, "s80", 64)
        a("v_mov_b32 v0, 0")
        for i in range(16):
            a(f"v_mov_b32 v1, s{S_PROF+i}")
            a(f"buffer_store_dword v1, v0, s[4:7], 0 offen offset:{4*i}")


def srd(a, d, b, off, size):
    a(f"s_add_u32 s{d}, s{b}, {off}")
    a(f"s_addc_u32 s{d+1}, s{b+1}, 0")
    a(f"s_mov_b32 s{d+2}, {size}")
    a(f"s_mov_b32 s{d+3}, 0x20000")


def scan64(a, v):
    for sh in (1, 2, 4, 8):
        a(f"v_add_u32_dpp v{v}, v{v}, v{v} row_shr:{sh} row_mask:0xf bank_mask:0xf bound_ctrl:1")
    a(f"v_add_u32_dpp v{v}, v{v}, v{v} row_bcast:15 row_mask:0xa bank_mask:0xf")
    a(f"v_add_u32_dpp v{v}, v{v}, v{v} row_bcast:31 row_mask:0xc bank_mask:0xf")


K1_ERAW = 0
K1_MS = 102400
K1_INV = K1_MS + 38400
K1_HIST = K1_INV + 6400
K1_LDS = 152 * 1024


def kernel1():
    a = Asm()
    NT = " nt" if opt("k1nt", 1) else ""
    ST = {0: "", 1: " nt", 2: " sc1"}[opt("k1st", 0)]
    a("s_cmp_ge_u32 s2, 255")
    a("s_cbranch_scc1 K1_end")
    a("s_load_dwordx8 s[4:11], s[0:1], 0")
    a("s_load_dwordx8 s[52:59], s[0:1], 32")
    a("s_load_dwordx2 s[14:15], s[0:1], 88")
    a("v_lshlrev_b32 v1, 4, v0")
    a("v_mul_u32_u24 v2, 24, v0")
    a("v_and_b32 v3, 63, v0")
    a("v_lshlrev_b32 v3, 4, v3")
    a("v_lshrrev_b32 v40, 6, v0")
    a("v_readfirstlane_b32 s3, v40")
    a("s_cmp_ge_u32 s2, 250")
    a("s_cbranch_scc1 K1_prep")
    stamp(a, 0, True)
    stamp(a, 1)
    a("s_mul_i32 s60, s2, 12800")
    a("s_mul_i32 s61, s2, 19200")
    a("s_mul_i32 s62, s2, 25600")
    a("s_mul_i32 s63, s2, 102400")
    a("s_mul_i32 s64, s2, 38400")
    a("s_lshl_b32 s65, s2, 10")
    a("s_waitcnt lgkmcnt(0)")
    srd(a, 16, 52, "s60", 12800)
    a(f"buffer_load_dwordx4 v[4:7], v1, s[16:19], 0 offen{NT}")
    a("v_lshlrev_b32 v41, 2, v0")
    a("v_mov_b32 v42, 0")
    a("s_cmp_ge_u32 s3, 4")
    a("s_cbranch_scc1 K1_nozero")
    a(f"v_add_u32 v41, {K1_HIST}, v41")
    a("ds_write_b32 v41, v42")
    a.label("K1_nozero")
    srd(a, 20, 10, "s60", 12800)
    srd(a, 24, 6, "s61", 19200)
    srd(a, 28, 4, "s62", 25600)
    srd(a, 32, 8, "s63", 102400)
    a("s_mov_b32 s66, 16384")
    a("s_lshl_b32 s67, s3, 10")
    a("s_waitcnt lgkmcnt(0)")
    a("s_barrier")
    a(f"buffer_load_dwordx4 v[8:11], v1, s[20:23], 0 offen{NT}")
    a(f"buffer_load_dwordx4 v[12:15], v2, s[24:27], 0 offen{NT}")
    a(f"buffer_load_dwordx2 v[16:17], v2, s[24:27], 0 offen offset:16{NT}")
    if opt("k1b2", 1):
        a("s_barrier")
    a(f"buffer_load_dwordx4 v[20:23], v1, s[28:31], 0 offen{NT}")
    a(f"buffer_load_dwordx4 v[24:27], v1, s[28:31], s66 offen{NT}")
    for k in range(6):
        a("s_mov_b32 m0, s67")
        a(f"buffer_load_dwordx4 v3, s[32:35], s67 offen{NT} lds")
        a("s_add_u32 s67, s67, 16384")
    a("s_cmp_ge_u32 s3, 4")
    a("s_cbranch_scc1 K1_noe7")
    a("s_mov_b32 m0, s67")
    a(f"buffer_load_dwordx4 v3, s[32:35], s67 offen{NT} lds")
    a.label("K1_noe7")
    a("s_add_u32 s68, s64, %d" % WS_META)
    srd(a, 36, 14, "s68", 38400)
    a("s_add_u32 s68, s63, %d" % WS_EP)
    srd(a, 40, 14, "s68", 102400)
    srd(a, 44, 14, WS_XP, 2 * XHALF)
    srd(a, 48, 14, "s65", 1024)
    a("v_cmp_gt_u32 vcc, 800, v0")
    a("s_mov_b64 s[70:71], vcc")
    a("v_mov_b32 v43, 1")
    a("s_waitcnt vmcnt(11)")
    stamp(a, 2)
    a("s_mov_b64 exec, s[70:71]")
    a("s_cbranch_execz K1_skip_rank")
    for i in range(4):
        a(f"v_mul_u32_u24 v{28+i}, 21400, v{4+i}")
        a(f"v_lshrrev_b32 v{28+i}, 20, v{28+i}")
        a(f"v_mul_u32_u24 v{36+i}, 49, v{28+i}")
        a(f"v_sub_u32 v{36+i}, v{4+i}, v{36+i}")
        a(f"v_lshlrev_b32 v{28+i}, 2, v{28+i}")
        a(f"v_add_u32 v{28+i}, {K1_HIST}, v{28+i}")
        a(f"ds_add_rtn_u32 v{32+i}, v{28+i}, v43")
    a.label("K1_skip_rank")
    a("s_mov_b64 exec, -1")
    a("s_waitcnt lgkmcnt(0)")
    a("s_barrier")
    stamp(a, 3)
    a("s_cmp_lg_u32 s3, 0")
    a("s_cbranch_scc1 K1_noscan")
    a(f"v_add_u32 v41, {K1_HIST}, v3")
    a("ds_read_b128 v[44:47], v41")
    a("s_waitcnt lgkmcnt(0)")
    a("v_add_u32 v49, v44, v45")
    a("v_add_u32 v50, v49, v46")
    a("v_add_u32 v51, v50, v47")
    a("v_mov_b32 v52, v51")
    scan64(a, 52)
    a("v_sub_u32 v52, v52, v51")
    a("v_add_u32 v53, v52, v44")
    a("v_add_u32 v54, v52, v49")
    a("v_add_u32 v55, v52, v50")
    a("ds_write_b128 v41, v[52:55]")
    for i in range(4):
        a(f"v_lshl_or_b32 v{56+i}, v{44+i}, 16, v{52+i}")
    a("buffer_store_dwordx4 v[56:59], v3, s[48:51], 0 offen")
    a("s_waitcnt lgkmcnt(0)")
    a.label("K1_noscan")
    a("v_lshrrev_b32 v60, 5, v0")
    a("s_mul_i32 s69, s2, 50")
    a("v_add_u32 v60, s69, v60")
    a("v_lshlrev_b32 v60, 8, v60")
    a("v_bfe_u32 v61, v0, 3, 2")
    a("v_lshl_add_u32 v60, v61, 6, v60")
    a("v_and_b32 v61, 3, v0")
    a("v_lshl_add_u32 v60, v61, 4, v60")
    a("v_bfe_u32 v61, v0, 2, 1")
    a(f"v_mul_u32_u24 v61, {XHALF}, v61")
    a("v_add_u32 v60, v60, v61")
    a("v_add_u32 v61, 8192, v60")
    a("v_cmp_gt_u32 vcc, 576, v0")
    a("v_mov_b32 v62, 0x80000000")
    a("v_cndmask_b32 v61, v62, v61, vcc")
    a("s_barrier")
    a("s_mov_b64 exec, s[70:71]")
    a("s_cbranch_execz K1_skip_scatter")
    for i in range(4):
        a(f"ds_read_b32 v{28+i}, v{28+i}")
    a("s_waitcnt vmcnt(8)")
    a("s_mov_b32 s72, 0x80000000")
    a("s_mov_b32 s73, 0xffff0000")
    for i in range(4):
        a(f"v_lshl_or_b32 v{8+i}, v{8+i}, 8, v{36+i}")
        a(f"v_or_b32 v{8+i}, s72, v{8+i}")
    a("v_lshlrev_b32 v44, 16, v13")
    a("v_alignbit_b32 v45, v14, v13, 16")
    a("v_and_b32 v46, s73, v14")
    a("v_lshlrev_b32 v47, 16, v16")
    a("v_alignbit_b32 v48, v17, v16, 16")
    a("v_and_b32 v49, s73, v17")
    w1 = [12, 45, 15, 48]
    w2 = [44, 46, 47, 49]
    a("v_lshlrev_b32 v50, 2, v0")
    a("s_waitcnt lgkmcnt(0)")
    for i in range(4):
        a(f"v_add_u32 v{32+i}, v{32+i}, v{28+i}")
        a(f"v_mul_u32_u24 v{28+i}, 12, v{32+i}")
        a(f"v_add_u32 v{28+i}, {K1_MS}, v{28+i}")
        a(f"ds_write2_b32 v{28+i}, v{8+i}, v{w1[i]} offset0:0 offset1:1")
        a(f"ds_write_b32 v{28+i}, v{w2[i]} offset:8")
        a(f"v_lshlrev_b32 v{32+i}, 1, v{32+i}")
        a(f"v_add_u32 v{32+i}, {K1_INV}, v{32+i}")
        a(f"v_add_u32 v{52+i}, {i}, v50")
        a(f"ds_write_b16 v{32+i}, v{52+i}")
    a.label("K1_skip_scatter")
    a("s_mov_b64 exec, -1")
    a("s_waitcnt vmcnt(6)")
    a(f"buffer_store_dwordx4 v[20:23], v60, s[44:47], 0 offen{ST}")
    a(f"buffer_store_dwordx4 v[24:27], v61, s[44:47], 0 offen{ST}")
    a("s_waitcnt lgkmcnt(0)")
    a("s_barrier")
    stamp(a, 4)
    a(f"v_add_u32 v41, {K1_MS}, v1")
    a("ds_read_b128 v[4:7], v41")
    a("ds_read_b128 v[8:11], v41 offset:16384")
    a("ds_read_b128 v[12:15], v41 offset:32768")
    a("v_and_b32 v42, 0x3fe, v0")
    a(f"v_add_u32 v42, {K1_INV}, v42")
    for k in range(7):
        a(f"ds_read_u16 v{28+k}, v42 offset:{1024*k}")
    a("v_and_b32 v43, 1, v0")
    a("v_lshlrev_b32 v43, 4, v43")
    a("s_mov_b32 s74, 32768")
    a("s_waitcnt lgkmcnt(7)")
    a(f"buffer_store_dwordx4 v[4:7], v1, s[36:39], 0 offen{ST}")
    a(f"buffer_store_dwordx4 v[8:11], v1, s[36:39], s66 offen{ST}")
    a(f"buffer_store_dwordx4 v[12:15], v1, s[36:39], s74 offen{ST}")
    a("s_waitcnt lgkmcnt(0)")
    for k in range(7):
        a(f"v_lshl_add_u32 v{28+k}, v{28+k}, 5, v43")
    stamp(a, 5)
    a("s_waitcnt vmcnt(5)")
    a("s_barrier")
    stamp(a, 6)
    for k in range(6):
        a(f"ds_read_b128 v[{64+4*k}:{67+4*k}], v{28+k}")
    a("s_mov_b32 s75, 0")
    for k in range(6):
        a(f"s_waitcnt lgkmcnt({5-k})")
        a(f"buffer_store_dwordx4 v[{64+4*k}:{67+4*k}], v1, s[40:43], s75 offen{ST}")
        a("s_add_u32 s75, s75, 16384")
    a("s_cmp_ge_u32 s3, 4")
    a("s_cbranch_scc1 K1_fin")
    a("ds_read_b128 v[88:91], v34")
    a("s_waitcnt lgkmcnt(0)")
    a(f"buffer_store_dwordx4 v[88:91], v1, s[40:43], s75 offen{ST}")
    a.label("K1_fin")
    stamp(a, 7)
    if PROF:
        a("s_waitcnt vmcnt(0)")
    stamp(a, 8)
    stamp(a, 15, True)
    prof_dump(a, 14, 0, 4, 3)
    a("s_endpgm")

    a.label("K1_prep")
    a("s_waitcnt lgkmcnt(0)")
    srd(a, 16, 54, 0, 16 * 320 * 2)
    srd(a, 20, 56, 0, 128 * 64 * 2)
    srd(a, 24, 58, 0, 192 * 64 * 2)
    srd(a, 28, 14, WS_WTAB, 20480)
    srd(a, 32, 14, WS_WSI, 40960)
    a("s_sub_u32 s60, s2, 250")
    a("s_lshl_b32 s60, s60, 10")
    a("v_add_u32 v4, s60, v0")
    a("v_and_b32 v5, 3, v4")
    a("v_bfe_u32 v6, v4, 2, 4")
    a("v_bfe_u32 v7, v4, 6, 2")
    a("v_lshrrev_b32 v8, 8, v4")
    a("v_cmp_le_u32 vcc, 10, v8")
    a("v_cndmask_b32 v9, 0, 1, vcc")
    a("v_mul_u32_u24 v10, 10, v9")
    a("v_sub_u32 v10, v8, v10")
    a("v_lshl_add_u32 v11, v7, 2, v5")
    a("v_mul_u32_u24 v11, 320, v11")
    a("v_lshrrev_b32 v12, 1, v10")
    a("v_lshl_add_u32 v11, v12, 6, v11")
    a("v_lshl_add_u32 v11, v9, 5, v11")
    a("v_and_b32 v12, 1, v10")
    a("v_lshl_add_u32 v11, v12, 4, v11")
    a("v_add_u32 v11, v11, v6")
    a("v_lshlrev_b32 v11, 1, v11")
    a("buffer_load_ushort v13, v11, s[16:19], 0 offen")
    a("v_mov_b32 v30, 0x80000000")
    for t in range(2):
        b = 32 + 8 * t
        a(f"v_add_u32 v14, {20*t}, v8")
        a("v_mul_u32_u24 v15, 26, v14")
        a("v_lshrrev_b32 v15, 8, v15")
        a("v_mul_u32_u24 v16, 10, v15")
        a("v_sub_u32 v16, v14, v16")
        a("v_lshrrev_b32 v17, 1, v16")
        a("v_and_b32 v18, 1, v16")
        a("v_lshl_add_u32 v19, v7, 2, v5")
        a("v_lshl_add_u32 v19, v18, 5, v19")
        a("v_lshl_add_u32 v19, v17, 6, v19")
        a("v_lshrrev_b32 v20, 1, v15")
        a("v_and_b32 v21, 1, v15")
        a("v_lshrrev_b32 v22, 2, v6")
        a("v_lshlrev_b32 v22, 3, v22")
        a("v_lshl_add_u32 v22, v20, 5, v22")
        a("v_lshl_add_u32 v22, v21, 2, v22")
        a("v_and_b32 v23, 3, v6")
        a("v_add_u32 v22, v22, v23")
        a("v_lshl_add_u32 v22, v19, 6, v22")
        a("v_lshlrev_b32 v22, 1, v22")
        a("v_subrev_u32 v23, 16384, v22")
        a("v_cmp_gt_u32 vcc, 2, v17")
        a("v_cndmask_b32 v24, v30, v22, vcc")
        a("v_cndmask_b32 v25, v23, v30, vcc")
        a(f"buffer_load_ushort v{b}, v24, s[20:23], 0 offen")
        a(f"buffer_load_ushort v{b+1}, v24, s[20:23], 0 offen offset:2048")
        a(f"buffer_load_ushort v{b+2}, v25, s[24:27], 0 offen")
        a(f"buffer_load_ushort v{b+3}, v25, s[24:27], 0 offen offset:2048")
    a("v_lshlrev_b32 v4, 2, v4")
    a("s_mov_b32 s61, 20480")
    a("s_waitcnt vmcnt(0)")
    a("v_lshlrev_b32 v13, 16, v13")
    a("buffer_store_dword v13, v4, s[28:31], 0 offen")
    for t in range(2):
        b = 32 + 8 * t
        a(f"v_or_b32 v{b}, v{b}, v{b+2}")
        a(f"v_or_b32 v{b+1}, v{b+1}, v{b+3}")
        a(f"v_lshl_or_b32 v{b}, v{b+1}, 16, v{b}")
        a(f"buffer_store_dword v{b}, v4, s[32:35], {'0' if t == 0 else 's61'} offen")
    a.label("K1_end")
    a("s_endpgm")
    return a


CAP = 3392
SLOWCAP = 256
MAXSTEPS = 142
MAXWSTEPS = 20
L_E = 0
L_RING = 32 + CAP * 32
RING_W = 6336
SUBB = 2112
L_SA = L_RING
L_SB = L_SA + MAXSTEPS * 128
L_MISC = L_SB + MAXSTEPS * 256
L_CNT = L_MISC
L_FLAG = L_MISC + 256
L_WSUM = L_MISC + 272
K2_LDS = 163840
assert L_WSUM + 16 <= K2_LDS and L_RING + 8 * RING_W <= L_MISC

ACC = 0
WR = 88
B0 = 128
B1 = 144
GS, G0, G1, G2, N0, N2 = 160, 164, 168, 172, 176, 180
SEL = 184
M0R = 188
MBR = 198
W1C, W2C = 218, 219
Y = 220
REP = 223
XA = 224
XOFF, QQ8, BAE, BAO, POFF, NST = 228, 229, 230, 231, 232, 233
UH, UL, PT, T8, EA = 234, 238, 242, 246, 247
T0 = 234
TID, LANE = 249, 250
PFA, PFD = 252, 253
NVGPR = 256

S_WAVE = 3
R_XP, R_EP, R_MT, R_TB, R_P, R_W, R_OUT, R_ACC = 4, 8, 12, 16, 20, 24, 28, 32
S_NN, S_T, S_R0, S_LEN, S_CAP = 36, 37, 38, 39, 40
S_NODE0, S_NNW, S_STEP0, S_NS = 41, 42, 43, 44
S_D1, S_REM, S_NODE, S_PHASE, S_TAB0, S_TAB1, S_RB, S_POFF, S_D2 = 45, 46, 47, 48, 49, 50, 51, 52, 53
S_HI, S_SGN, S_BUMP = 100, 101, 58
S_MASK = 64
S_LAST = 78
S_NEND = 79
S_EM0 = 53
S_PFN = 59

TPATH = [0, 1, 2, 2, 2, 3, 3, 3, 4, 4, 4]
P0, P1 = 0, 1
P2 = [2, 3, 4]
P3 = [5, 6, 7]
P4 = [8, 9, 10]


def acc(t, cq):
    return ACC + 4 * (2 * t + cq)


def mfma_list():
    out = []
    for t, A, B, fl in ((P2[0], G0, B0, 1), (P1, G0, B0 + 8, 1), (P0, GS, B0, 1), (P3[0], GS, B0 + 8, 1),
                        (P2[2], G2, B0, 1), (P4[1], G2, B0 + 8, 1), (P2[1], G1, B0, 1), (P4[2], G1, B0 + 8, 1),
                        (P4[2], N0, B1, 0), (P4[1], N0, B1 + 8, 0), (P3[1], GS, B1, 1), (P3[2], GS, B1 + 8, 1),
                        (P4[0], N2, B1, 1), (P1, G2, B1 + 8, 0), (P1, G1, B1, 0), (P4[0], G1, B1 + 8, 0)):
        for cq in range(2):
            out.append((t, cq, A, B + 4 * cq, fl))
    return out


def emit_mfma(a, m, first):
    t, cq, A, B, fl = m
    if opt("nomfma", 0):
        return
    d = vr(acc(t, cq), 4)
    c = "0" if (first and fl) else d
    a(f"v_mfma_f32_16x16x32_bf16 {d}, {vr(A,4)}, {vr(B,4)}, {c}")


def b_reads(k, pos):
    B = B0 if k < 2 else B1
    hf = k & 1
    return [f"ds_read_b64_tr_b16 {vr(B + 4*u + 2*hf, 2)}, v{BAE if u % 2 == 0 else BAO} offset:{pos*SUBB + u*32}"
            for u in range(4)]


def vmwait(n):
    return [] if opt("nowait", 0) else [f"s_waitcnt vmcnt({n})"]


def dma(k, pos):
    if opt("nodma", 0):
        return [[], [], [], []]
    hf, bp = k & 1, k >> 1
    so = S_TAB0 if bp == 0 else S_TAB1
    out = []
    for s in range(2):
        out.append([f"s_add_u32 m0, s{S_RB}, {pos*SUBB + s*1088}"])
        out.append([f"buffer_load_dwordx4 v{XA + 2*hf + s}, s[{R_XP}:{R_XP+3}], s{so} offen lds"])
    return out


def w0_fetch(sreg):
    return [f"s_lshr_b32 s54, s{sreg}, 1",
            "s_set_gpr_idx_on s54, gpr_idx(SRC0)",
            f"v_mov_b32 v{REP}, v{M0R}",
            "s_set_gpr_idx_off"]


def w0_rep(tag, sreg):
    return [f"s_bitcmp1_b32 s{sreg}, 0",
            f"s_cbranch_scc1 {tag}_odd",
            f"v_mov_b32_dpp v{REP}, v{REP} row_shr:4 row_mask:0xf bank_mask:0xa",
            f"s_branch {tag}_done",
            f"{tag}_odd:",
            f"v_mov_b32_dpp v{REP}, v{REP} row_shl:4 row_mask:0xf bank_mask:0x5",
            f"{tag}_done:"]


def x_addr(q):
    return f"v_add_u32_dpp v{XA+q}, v{REP}, v{XOFF} quad_perm:[{q},{q},{q},{q}] row_mask:0xf bank_mask:0xf"


def meta_fetch(tag, sreg):
    return [f"s_bitcmp1_b32 s{sreg}, 0",
            f"s_cbranch_scc1 {tag}_odd",
            f"s_set_gpr_idx_on s{sreg}, gpr_idx(SRC0)",
            f"v_mov_b32 v{W1C}, v{MBR}",
            f"v_mov_b32 v{W2C}, v{MBR+1}",
            "s_set_gpr_idx_off",
            f"s_branch {tag}_done",
            f"{tag}_odd:",
            f"v_mov_b32_dpp v{W1C}, v{W1C} quad_perm:[2,3,2,3] row_mask:0xf bank_mask:0xf",
            f"v_mov_b32_dpp v{W2C}, v{W2C} quad_perm:[2,3,2,3] row_mask:0xf bank_mask:0xf",
            f"{tag}_done:"]


M_T8 = f"v_lshlrev_b32_sdwa v{T8}, 3, v{W2C} dst_sel:DWORD dst_unused:UNUSED_PAD src0_sel:DWORD src1_sel:WORD_0"
M_Y = [f"v_lshlrev_b32 v{Y}, 16, v{W1C}", f"v_and_b32 v{Y+1}, s{S_HI}, v{W1C}", f"v_and_b32 v{Y+2}, s{S_HI}, v{W2C}"]
M_EA = [f"v_add_u32_dpp v{EA+h}, v{T8}, v{QQ8} quad_perm:[{h},{h},{h},{h}] row_mask:0xf bank_mask:0xf"
        for h in range(2)]


def e_reads(dst):
    return [f"ds_read_b64_tr_b16 {vr(dst + 2*h, 2)}, v{EA+h}" for h in range(2)]


def unpack(aa):
    return [f"v_lshlrev_b32 v{UL+aa}, 16, v{UH+aa}", f"v_and_b32 v{UH+aa}, s{S_HI}, v{UH+aa}"]


def gb(j, aa):
    if opt("nog", 0):
        return []
    hf, rl = aa >> 1, 2 * (aa & 1)
    pl = PT + 2 * (aa & 1)
    return [f"v_mul_f32_dpp v{pl}, v{Y+j}, v{UL+aa} row_newbcast:{4*rl+hf} row_mask:0xf bank_mask:0xf",
            f"v_mul_f32_dpp v{pl+1}, v{Y+j}, v{UH+aa} row_newbcast:{4*(rl+1)+hf} row_mask:0xf bank_mask:0xf",
            f"v_cvt_pk_bf16_f32 v{(G0, G1, G2)[j]+aa}, v{pl}, v{pl+1}"]


def neg(dst, src):
    return [f"v_xor_b32 v{dst+i}, s{S_SGN}, v{src+i}" for i in range(4)]


def next_index(dst, src):
    return [f"s_add_u32 s{dst}, s{src}, 1",
            f"s_cmp_lt_u32 s{dst}, s{S_NS}",
            f"s_cselect_b32 s{dst}, s{dst}, 0",
            f"s_cselect_b32 s{S_BUMP}, 0, {XHALF}"]


BUMP = [f"s_add_u32 s{S_TAB0}, s{S_TAB0}, s{S_BUMP}", f"s_add_u32 s{S_TAB1}, s{S_TAB1}, s{S_BUMP}"]


def step_body(a, var, rho, first):
    tag = f"{var}S{rho}{'f' if first else 'n'}"
    x = 3 if first else 0
    p = lambda k: (rho + k) % 3
    F = [[] for _ in range(32)]

    def spread(slot, lst, per=2):
        for i, l in enumerate(lst):
            F[slot + i // per].append(l)

    def event(slot, n, k, pos):
        r = b_reads(k, pos)
        F[slot] += vmwait(n) + r[:2]
        F[slot + 1] += r[2:]

    def refill(slot, k, pos, wait="lgkmcnt(0)"):
        d = dma(k, pos)
        F[slot - 1] += d[0]
        F[slot] += [f"s_waitcnt {wait}"] + d[1] + d[2]
        F[slot + 1] += d[3]

    n0, n2 = neg(N0, G0), neg(N2, G2)
    spread(0, gb(2, 2) + gb(2, 3) + gb(1, 0) + gb(1, 1) + gb(1, 2) + gb(1, 3))
    event(0, 4 + x, 2, p(2))
    refill(4, 1, p(2))
    event(8, 4 + x, 3, p(0))
    F[9] += meta_fetch(tag + "_m", S_D1)
    spread(10, [M_T8, n0[0], M_Y[0], n0[1]] + M_EA)
    refill(12, 2, p(0))
    F[13] += e_reads(UH)
    spread(13, [n0[2], n0[3], M_Y[1], M_Y[2]])
    F[14] += next_index(S_D2, S_D1)
    F[15] += w0_fetch(S_D2) + [n2[0]]
    event(16, 4 + x, 0, p(1))
    F[16] += w0_rep(tag + "_a", S_D2) + [n2[1]]
    F[17] += ["s_waitcnt lgkmcnt(4)"]
    spread(17, unpack(0) + unpack(1) + [n2[2], n2[3]] + unpack(2) + unpack(3) + [x_addr(0), x_addr(1)])
    refill(20, 3, p(1))
    spread(23, gb(0, 0) + gb(0, 1) + gb(0, 2) + gb(0, 3) + gb(2, 0) + gb(2, 1))
    F[22] += BUMP
    F[23] += e_reads(GS)
    event(24, 4, 1, p(2))
    F[26] += [x_addr(2)]
    F[27] += [x_addr(3)]
    refill(28, 0, p(2))
    F[30] += [f"s_mov_b32 s{S_D1}, s{S_D2}", f"s_sub_u32 s{S_REM}, s{S_REM}, 1"]
    F[31] += [f"s_cmp_lg_u32 s{S_REM}, 0"]
    if PROF == 4:
        F[29] += ["s_memtime s[80:81]"]
        F[6] += ["s_mov_b32 m0, s96", "s_add_u32 s96, s96, 1", "v_writelane_b32 v251, s80, m0"]
    if var == "A" and opt("prio", 1):
        lo, hi = opt("prlo", 0), opt("prhi", 2)
        G = []
        for l in F[9]:
            if l.startswith("s_set_gpr_idx_on"):
                G.append(f"s_setprio {lo}")
            G.append(l)
            if l.endswith("_m_odd:"):
                G.append(f"s_setprio {hi}")
        F[9] = G
    a.label(tag)
    for i, m in enumerate(mfma_list()):
        emit_mfma(a, m, first)
        for l in F[i]:
            if opt("nods", 0) and (l.startswith("ds_") or l.startswith("s_waitcnt lgkm")):
                continue
            if opt("nobr", 0) and (l.startswith(("s_cbranch", "s_branch", "s_bitcmp")) or "row_shl" in l
                                   or "[2,3,2,3]" in l):
                continue
            if opt("novalu", 0) and l.startswith("v_"):
                continue
            if opt("noidx", 0) and l.startswith("s_set_gpr"):
                continue
            a(l)
    a(f"s_cbranch_scc1 {var}S{(rho+1)%3}n")
    if first:
        a(f"s_branch {var}EP{(rho+1)%3}")


def pipeline_start(a):
    def run(lst):
        for l in lst:
            a(l)

    def dma_now(k, pos):
        for g in dma(k, pos):
            run(g)

    run(w0_fetch(S_D1) + w0_rep("I_a", S_D1) + [x_addr(q) for q in range(4)])
    dma_now(0, 0)
    dma_now(1, 1)
    dma_now(2, 2)
    run(meta_fetch("I_m", S_D1) + [M_T8] + M_Y + M_EA + e_reads(UH) + e_reads(GS))
    run(["s_waitcnt vmcnt(4)"] + b_reads(0, 0) + ["s_waitcnt lgkmcnt(0)"])
    dma_now(3, 0)
    run(next_index(S_D1, S_D1) + BUMP + w0_fetch(S_D1) + w0_rep("I_b", S_D1) + [x_addr(q) for q in range(4)])
    run(["s_waitcnt vmcnt(4)"] + b_reads(1, 1))
    for aa in range(4):
        run(unpack(aa))
    run(gb(0, 0) + gb(0, 1) + gb(0, 2) + gb(0, 3) + gb(2, 0) + gb(2, 1))
    a("v_mov_b32 v0, 0x80000000")
    if PROF == 4:
        a("s_memtime s[80:81]")
        a("s_mov_b32 s96, 0")
        a("v_mov_b32 v251, 0")
    a("s_waitcnt lgkmcnt(0)")
    dma_now(0, 1)
    for i in range(3):
        a(f"buffer_store_dword v0, v0, s[{R_P}:{R_P+3}], 0 offen")
    if opt("prio", 1):
        a(f"s_cmp_lt_u32 s{S_WAVE}, 4")
        a("s_cbranch_scc1 AS0f")
        a("s_setprio 1")
        a("s_branch BS0f")
    else:
        a("s_branch AS0f")


def epilogue(a, var, rho):
    a.label(f"{var}EP{rho}")
    order = [P2[0], P0, P3[0], P2[2], P2[1], P4[2], P4[1], P3[1], P3[2], P1, P4[0]]
    book = [f"s_mul_i32 s55, s{S_NODE}, {P_NODE}",
            f"s_add_u32 s55, s55, s{S_POFF}",
            f"s_add_u32 s{S_NODE}, s{S_NODE}, 1",
            f"s_cmp_lt_u32 s{S_NODE}, s{S_NEND}",
            "s_cselect_b32 s56, 0, 1",
            f"s_cselect_b32 s{S_NODE}, s{S_NODE}, s{S_NODE0}",
            f"v_readlane_b32 s{S_REM}, v{NST}, s{S_NODE}",
            "s_cmp_eq_u32 s56, 0"]
    for t in order:
        pth = TPATH[t]
        for r in range(0 if opt("noep", 0) else 4):
            for cq in range(2):
                d, w = acc(t, cq), WR + 4 * (2 * pth + cq)
                if r == 0:
                    a(f"v_mul_f32 v{d}, v{d}, v{w}")
                else:
                    a(f"v_fmac_f32 v{d}, v{d+r}, v{w+r}")
        n = "-" if t == P4[2] else ""
        a(f"v_cvt_pk_bf16_f32 v{B1+t}, {n}v{acc(t,0)}, {n}v{acc(t,1)}")
        if t == P0:
            a(f"v_mov_b32 v{B1+11}, 0")
        if t == P1:
            a(f"v_mfma_f32_16x16x32_bf16 {vr(20,4)}, {vr(SEL,4)}, {vr(B1+4,4)}, 0")
    a(book[0])
    a(f"v_mfma_f32_16x16x32_bf16 {vr(16,4)}, {vr(SEL,4)}, {vr(B1,4)}, 0")
    a(f"v_mfma_f32_16x16x32_bf16 {vr(24,4)}, {vr(SEL,4)}, {vr(B1+8,4)}, 0")
    a(f"v_cvt_pk_bf16_f32 v65, v20, v21")
    for l in book[1:]:
        a(l)
    a(f"buffer_store_dword v65, v{POFF}, s[{R_P}:{R_P+3}], s55 offen offset:256")
    for i in (0, 2):
        a(f"v_cvt_pk_bf16_f32 v{64+i}, v{16+4*i}, v{17+4*i}")
    for i in (0, 2):
        a(f"buffer_store_dword v{64+i}, v{POFF}, s[{R_P}:{R_P+3}], s55 offen offset:{256*i}")
    pfn = opt("pfn", 1)
    if pfn:
        a(f"s_cbranch_scc0 {var}EP{rho}_end")
        a(f"s_cmp_lg_u32 s{S_NODE}, s{S_PFN}")
        a(f"s_cbranch_scc1 {var}S{rho}f")
        a(f"s_mov_b32 s{S_PFN}, -1")
        a(f"s_mov_b32 s57, {XHALF}")
        for i in range(opt("pfi", 1)):
            a(f"buffer_load_dword v{PFD}, v{PFA}, s[{R_XP}:{R_XP+3}], s57 offen")
            a(f"s_add_u32 s57, s57, {64*128}")
        a(f"s_branch {var}S{rho}f")
        a.label(f"{var}EP{rho}_end")
    else:
        a(f"s_cbranch_scc1 {var}S{rho}f")
    a(f"s_cmp_lg_u32 s{S_PHASE}, 0")
    a("s_cbranch_scc1 TAIL")
    stamp(a, 7, late=True)
    a(f"s_mov_b32 s{S_PHASE}, 1")
    a(f"s_mov_b32 s{S_POFF}, {P_HALF}")
    a("s_mov_b32 s57, 10240")
    a(f"v_lshlrev_b32 v67, 4, v{LANE}")
    for pc in range(10):
        if pc % 4 == 0 and pc:
            a("s_add_u32 s57, s57, 4096")
        a(f"buffer_load_dwordx4 {vr(WR+4*pc,4)}, v67, s[{R_W}:{R_W+3}], s57 offen offset:{(pc%4)*1024}")
    a(f"s_branch {var}S{rho}f")


def kernel2():
    a = Asm()
    a("s_cmp_ge_u32 s2, 256")
    a("s_cbranch_scc1 K2_end")
    if opt("xcdmap", 1) == 2:
        a("s_load_dwordx2 s[54:55], s[0:1], 80")
        a("s_getreg_b32 s58, hwreg(HW_REG_XCC_ID, 0, 3)")
        a("v_lshrrev_b32 v1, 6, v0")
        a("v_readfirstlane_b32 s3, v1")
        a(f"v_mov_b32 v3, {L_WSUM}")
        a("s_cmp_lg_u32 s3, 0")
        a("s_cbranch_scc1 CLAIMED")
        a("s_waitcnt lgkmcnt(0)")
        srd(a, 4, 54, 0, 256)
        a("s_mov_b64 exec, 1")
        a.label("CLAIM")
        a("v_mov_b32 v1, 1")
        a("s_lshl_b32 s59, s58, 5")
        a("v_mov_b32 v2, s59")
        a("buffer_atomic_add v1, v2, s[4:7], 0 offen sc0")
        a("s_add_u32 s58, s58, 1")
        a("s_and_b32 s58, s58, 7")
        a("s_waitcnt vmcnt(0)")
        a("v_readfirstlane_b32 s60, v1")
        a("s_cmp_ge_u32 s60, 32")
        a("s_cbranch_scc1 CLAIM")
        a("v_add_u32 v1, v1, v2")
        a("ds_write_b32 v3, v1")
        a("s_mov_b64 exec, -1")
        a.label("CLAIMED")
        a("s_waitcnt lgkmcnt(0)")
        a("s_barrier")
        a("ds_read_b32 v1, v3")
        a("s_waitcnt lgkmcnt(0)")
        a("v_readfirstlane_b32 s2, v1")
        a("s_and_b32 s2, s2, 255")
        a("s_barrier")
    if opt("xcdmap", 1) == 1:
        a("s_and_b32 s3, s2, 7")
        a("s_lshl_b32 s3, s3, 5")
        a("s_lshr_b32 s2, s2, 3")
        a("s_or_b32 s2, s2, s3")
    a("s_load_dwordx2 s[54:55], s[0:1], 72")
    a("s_load_dwordx2 s[56:57], s[0:1], 88")
    a(f"v_mov_b32 v{TID}, v0")
    a(f"v_and_b32 v{LANE}, 63, v0")
    a("v_lshrrev_b32 v1, 6, v0")
    a(f"v_readfirstlane_b32 s{S_WAVE}, v1")
    a("s_cmp_eq_u32 s2, 255")
    a(f"s_cselect_b32 s{S_NN}, {N - 255*NPB}, {NPB}")
    stamp(a, 0, True)
    stamp(a, 1)
    a("s_waitcnt lgkmcnt(0)")
    if PROF:
        a("s_mov_b64 s[98:99], s[56:57]")
    srd(a, R_TB, 56, WS_TAB, W * 1024)
    srd(a, R_W, 56, WS_WTAB, 0x12000)
    srd(a, R_MT, 56, WS_META, E * 12)
    srd(a, R_EP, 56, WS_EP, E * 32)
    srd(a, R_XP, 56, WS_XP, 2 * XHALF)
    a(f"s_mul_i32 s59, s2, {P_WG}")
    a(f"s_add_u32 s59, s59, {WS_P}")
    srd(a, R_P, 56, "s59", 2 * P_HALF)
    a("s_lshl_b32 s59, s2, 16")
    a(f"s_add_u32 s59, s59, {WS_ACC}")
    srd(a, R_ACC, 56, "s59", 65536)
    a(f"s_mul_i32 s59, s2, {NPB*512}")
    a(f"s_lshl_b32 s60, s{S_NN}, 9")
    srd(a, R_OUT, 54, "s59", "s60")
    a(f"s_mul_i32 s{S_RB}, s{S_WAVE}, {RING_W}")
    a(f"s_add_u32 s{S_RB}, s{S_RB}, {L_RING}")
    a(f"s_mov_b32 s{S_R0}, 0")
    a(f"s_mov_b32 s{S_CAP}, {CAP}")
    a(f"s_mov_b32 s{S_HI}, 0xffff0000")
    a(f"s_mov_b32 s{S_SGN}, 0x80008000")
    L = LANE
    a(f"v_bfe_u32 v3, v{L}, 4, 1")
    a(f"v_and_b32 v4, 7, v{L}")
    a("v_lshlrev_b32 v5, 1, v3")
    a("v_xor_b32 v4, v4, v5")
    a("v_lshlrev_b32 v4, 4, v4")
    a(f"v_or_b32 v{XOFF}, 0x80000000, v4")
    a(f"v_and_b32 v4, 3, v{L}")
    a(f"v_lshlrev_b32 v{QQ8}, 3, v4")
    a(f"v_bfe_u32 v5, v{L}, 3, 1")
    a("v_mul_u32_u24 v5, 1088, v5")
    a(f"v_lshrrev_b32 v6, 4, v{L}")
    a("v_lshl_add_u32 v5, v6, 8, v5")
    a(f"v_bfe_u32 v7, v{L}, 2, 1")
    a("v_lshl_add_u32 v5, v7, 7, v5")
    a(f"v_add_u32 v5, v5, v{QQ8}")
    a(f"v_add_u32 v5, s{S_RB}, v5")
    a("v_lshlrev_b32 v7, 5, v3")
    a(f"v_add_u32 v{BAE}, v5, v7")
    a(f"v_sub_u32 v{BAO}, v5, v7")
    a(f"v_and_b32 v7, 15, v{L}")
    a("v_lshlrev_b32 v8, 2, v7")
    a(f"v_lshl_add_u32 v{POFF}, v6, 6, v8")
    a("v_and_b32 v8, 1, v7")
    a("v_lshlrev_b32 v8, 4, v8")
    a("v_mov_b32 v9, 0x3f80")
    a("v_lshlrev_b32 v8, v8, v9")
    a("v_and_b32 v9, 14, v7")
    for i in range(4):
        a(f"v_cmp_eq_u32 vcc, {4*i}, v9")
        a(f"v_cndmask_b32 v{SEL+i}, 0, v8, vcc")

    a.label("ROUND")
    a(f"v_and_b32 v2, 255, v{TID}")
    a("v_lshlrev_b32 v3, 10, v2")
    a("s_lshl_b32 s58, s2, 2")
    a(f"buffer_load_dword v4, v3, s[{R_TB}:{R_TB+3}], s58 offen")
    a(f"v_lshlrev_b32 v5, 4, v{LANE}")
    a("s_mov_b32 s57, 0")
    for pc in range(10):
        if pc % 4 == 0 and pc:
            a("s_add_u32 s57, s57, 4096")
        a(f"buffer_load_dwordx4 {vr(WR+4*pc,4)}, v5, s[{R_W}:{R_W+3}], s57 offen offset:{(pc%4)*1024}")
    a(f"v_lshlrev_b32 v6, 2, v{TID}")
    a("v_mov_b32 v7, 0")
    a(f"v_add_u32 v8, {L_MISC}, v6")
    a(f"v_cmp_gt_u32 vcc, 68, v{TID}")
    a("s_and_saveexec_b64 s[58:59], vcc")
    a("ds_write_b32 v8, v7")
    a(f"v_cmp_gt_u32 vcc, 8, v{TID}")
    a("s_and_b64 exec, exec, vcc")
    a("ds_write_b32 v6, v7")
    a("s_mov_b64 exec, -1")
    a("s_waitcnt vmcnt(10)")
    stamp(a, 2)
    a("v_lshrrev_b32 v9, 16, v4")
    a("v_and_b32 v10, 0xffff, v4")
    a("v_mov_b32 v11, v9")
    scan64(a, 11)
    a("v_readlane_b32 s58, v11, 63")
    a(f"s_and_b32 s59, s{S_WAVE}, 3")
    a("s_lshl_b32 s60, s59, 2")
    a(f"s_add_u32 s60, s60, {L_WSUM}")
    a("v_mov_b32 v12, s60")
    a("v_mov_b32 v13, s58")
    a("ds_write_b32 v12, v13")
    a("v_sub_u32 v11, v11, v9")
    a("v_mul_u32_u24 v14, 3200, v2")
    a("v_add_u32 v14, v14, v10")
    a(f"v_lshrrev_b32 v15, 8, v{TID}")
    a("v_add_u32 v14, v14, v15")
    a(f"v_mov_b32 v12, {L_WSUM}")
    a("s_waitcnt lgkmcnt(0)")
    a("s_barrier")
    a("ds_read_b128 v[16:19], v12")
    a("s_waitcnt lgkmcnt(0)")
    for i in range(4):
        a(f"v_readfirstlane_b32 s{60+i}, v{16+i}")
    a("s_add_u32 s61, s61, s60")
    a("s_add_u32 s62, s62, s61")
    a(f"s_add_u32 s{S_T}, s63, s62")
    a("s_cmp_eq_u32 s59, 0")
    a("s_cselect_b32 s58, 0, s60")
    a("s_cmp_eq_u32 s59, 2")
    a("s_cselect_b32 s58, s61, s58")
    a("s_cmp_eq_u32 s59, 3")
    a("s_cselect_b32 s58, s62, s58")
    a(f"s_sub_u32 s{S_LEN}, s{S_T}, s{S_R0}")
    a(f"s_cmp_le_u32 s{S_LEN}, s{S_CAP}")
    a(f"s_cselect_b32 s{S_LAST}, 1, 0")
    a(f"s_min_u32 s{S_LEN}, s{S_LEN}, s{S_CAP}")
    a(f"s_sub_u32 s58, s58, s{S_R0}")
    a("v_add_u32 v11, s58, v11")
    a("v_add_u32 v11, v11, v15")
    a(f"v_lshl_add_u32 v12, v11, 2, v7")
    a(f"v_add_u32 v12, {L_SA}, v12")
    a.label("MAPL")
    a("v_cmp_lt_u32 vcc, v15, v9")
    a("s_and_b64 exec, exec, vcc")
    a("s_cbranch_execz MAPD")
    a(f"v_cmp_gt_u32 vcc, s{S_LEN}, v11")
    a("s_and_saveexec_b64 s[58:59], vcc")
    a("ds_write_b32 v12, v14")
    a("s_mov_b64 exec, s[58:59]")
    a("v_add_u32 v15, 2, v15")
    a("v_add_u32 v11, 2, v11")
    a("v_add_u32 v14, 2, v14")
    a("v_add_u32 v12, 8, v12")
    a("s_branch MAPL")
    a.label("MAPD")
    a("s_mov_b64 exec, -1")
    a(f"v_add_u32 v12, {L_SA}, v6")
    a(f"v_lshrrev_b32 v13, 1, v{LANE}")
    a(f"s_lshl_b32 s58, s{S_WAVE}, 5")
    a("v_add_u32 v13, s58, v13")
    a(f"v_lshl_add_u32 v14, v13, 2, v7")
    a(f"v_add_u32 v14, {L_SA}, v14")
    a(f"v_and_b32 v15, 1, v{LANE}")
    a("v_lshlrev_b32 v15, 4, v15")
    a("v_mov_b32 v16, 0x80000000")
    a("s_waitcnt lgkmcnt(0)")
    a("s_barrier")
    stamp(a, 3)
    for k in range(7):
        a(f"ds_read_b32 v{20+k}, v12 offset:{2048*k}")
    for k in range(14):
        a(f"ds_read_b32 v{28+k}, v14 offset:{1024*k}")
    MREC = 44
    for k in range(7):
        a(f"v_add_u32 v17, {512*k}, v{TID}")
        a(f"v_cmp_gt_u32 s[{S_MASK+2*k}:{S_MASK+2*k+1}], s{S_LEN}, v17")
        a(f"s_waitcnt lgkmcnt({min(15, 20-k)})")
        a(f"v_mul_u32_u24 v{20+k}, 12, v{20+k}")
        a(f"v_cndmask_b32 v{20+k}, v16, v{20+k}, s[{S_MASK+2*k}:{S_MASK+2*k+1}]")
    if PROF == 2:
        stamp(a, 7)
    for k in range(7):
        a(f"buffer_load_dwordx3 {vr(MREC+4*k,3)}, v{20+k}, s[{R_MT}:{R_MT+3}], 0 offen")
    a("s_waitcnt lgkmcnt(0)")
    a(f"s_lshl_b32 s{S_EM0}, s{S_WAVE}, 10")
    a(f"s_add_u32 s{S_EM0}, s{S_EM0}, {L_E + 32}")
    EREG = 128
    for k in range(14):
        a(f"v_cmp_gt_u32 vcc, s{S_LEN}, v13")
        a(f"v_lshl_add_u32 v{28+k}, v{28+k}, 5, v15")
        a("v_add_u32 v13, 256, v13")
        a(f"v_cndmask_b32 v{EREG+k}, v16, v{28+k}, vcc")
    eb = [int(c) for c in opt("eb", "4433")]

    def e_batch(i):
        for k in range(sum(eb[:i]), sum(eb[:i + 1])):
            if k == 13:
                a(f"s_cmp_ge_u32 s{S_WAVE}, 2")
                a("s_cbranch_scc1 NOE14")
            a(f"s_mov_b32 m0, s{S_EM0}")
            a(f"s_add_u32 s{S_EM0}, s{S_EM0}, 8192")
            a(f"buffer_load_dwordx4 v{EREG+k}, s[{R_EP}:{R_EP+3}], 0 offen lds")
            if k == 13:
                a.label("NOE14")

    if PROF == 2:
        stamp(a, 8)
    e_batch(0)
    if PROF == 2:
        stamp(a, 9)
    a("v_mov_b32 v17, 1")
    for k in range(7):
        a(f"s_waitcnt vmcnt({min(eb[0], 13) + 6 - k})")
        if PROF == 2 and k in (0, 6):
            stamp(a, 10 if k == 0 else 11)
        a(f"v_and_b32 v{20+k}, 0xff, v{MREC+4*k}")
        a(f"v_lshlrev_b32 v{20+k}, 2, v{20+k}")
        a(f"v_add_u32 v18, {L_CNT}, v{20+k}")
        a(f"s_mov_b64 exec, s[{S_MASK+2*k}:{S_MASK+2*k+1}]")
        a(f"ds_add_rtn_u32 v{MREC+4*k+3}, v18, v17")
        a("s_mov_b64 exec, -1")
    a(f"v_lshlrev_b32 v12, 2, v{LANE}")
    a(f"v_add_u32 v12, {L_CNT}, v12")
    a(f"v_lshlrev_b32 v13, 4, v{TID}")
    a(f"v_add_u32 v13, {L_SA}, v13")
    for i in range(4):
        a(f"v_mov_b32 v{28+i}, 0")
    a("s_waitcnt lgkmcnt(0)")
    a("s_barrier")
    stamp(a, 4)
    e_batch(1)
    a("ds_read_b32 v14, v12")
    nz = MAXSTEPS * 384 // 16
    for k in range(6):
        a(f"ds_write_b128 v13, v[28:31] offset:{8192*k}")
    a(f"v_cmp_gt_u32 vcc, {nz - 6*512}, v{TID}")
    a("s_mov_b64 exec, vcc")
    a(f"ds_write_b128 v13, v[28:31] offset:{8192*6}")
    a("s_mov_b64 exec, -1")
    a("s_waitcnt lgkmcnt(6)")
    a("v_add_u32 v14, 31, v14")
    a("v_lshrrev_b32 v14, 5, v14")
    a("v_max_u32 v14, 1, v14")
    a(f"v_cmp_gt_u32 vcc, s{S_NN}, v{LANE}")
    a(f"v_cndmask_b32 v{NST}, 0, v14, vcc")
    a("v_mad_u32_u24 v15, v14, 5, 4")
    a("v_cndmask_b32 v15, 0, v15, vcc")
    a(f"v_lshl_or_b32 v18, v15, 16, v{NST}")
    a("v_mov_b32 v19, v18")
    scan64(a, 19)
    a("v_readlane_b32 s58, v19, 63")
    a("v_sub_u32 v18, v19, v18")
    a("v_and_b32 v19, 0xffff, v19")
    a("v_lshrrev_b32 v32, 16, v18")
    a("v_and_b32 v18, 0xffff, v18")
    a("v_lshl_add_u32 v32, v32, 1, v15")
    a("v_lshlrev_b32 v32, 2, v32")
    a("s_lshr_b32 s59, s58, 16")
    a("s_and_b32 s58, s58, 0xffff")
    a(f"s_and_b32 s60, s{S_WAVE}, 3")
    a("s_lshl_b32 s60, s60, 1")
    a(f"s_lshr_b32 s61, s{S_WAVE}, 2")
    a("s_add_u32 s60, s60, s61")
    a("s_mul_i32 s60, s60, s59")
    a("s_add_u32 s61, s60, s59")
    a("v_cmp_le_u32 vcc, s60, v32")
    a("v_cmp_gt_u32 s[62:63], s61, v32")
    a("s_and_b64 vcc, vcc, s[62:63]")
    a(f"s_bcnt1_i32_b64 s{S_NNW}, vcc")
    a(f"s_ff1_i32_b64 s{S_NODE0}, vcc")
    a(f"s_max_i32 s{S_NODE0}, s{S_NODE0}, 0")
    a(f"s_add_u32 s{S_NEND}, s{S_NODE0}, s{S_NNW}")
    a(f"s_sub_u32 s60, s{S_NEND}, 1")
    a("s_max_i32 s60, s60, 0")
    a(f"v_readlane_b32 s{S_STEP0}, v18, s{S_NODE0}")
    a(f"v_readlane_b32 s{S_NS}, v19, s60")
    a(f"s_sub_u32 s{S_NS}, s{S_NS}, s{S_STEP0}")
    a(f"s_cmp_eq_u32 s{S_NNW}, 0")
    a(f"s_cselect_b32 s{S_NS}, 0, s{S_NS}")
    a(f"s_cmp_gt_u32 s{S_NS}, {MAXWSTEPS}")
    a("s_cselect_b32 s60, 1, 0")
    a(f"s_cmp_gt_u32 s58, {MAXSTEPS}")
    a("s_cselect_b32 s60, 1, s60")
    a("s_cmp_eq_u32 s60, 0")
    a("s_cbranch_scc1 NOFAIL")
    a(f"v_mov_b32 v33, {L_FLAG}")
    a("ds_write_b32 v33, v17")
    a.label("NOFAIL")
    for k in range(7):
        a(f"ds_bpermute_b32 v{20+k}, v{20+k}, v18")
    a(f"v_mov_b32 v33, {L_FLAG}")
    a("s_waitcnt lgkmcnt(0)")
    a("s_barrier")
    a("ds_read_b32 v34, v33")
    a(f"v_lshlrev_b32 v35, 2, v{TID}")
    a("v_add_u32 v35, 4, v35")
    for k in range(7):
        r = MREC + 4 * k
        a(f"v_lshl_add_u32 v{20+k}, v{20+k}, 5, v{r+3}")
        a(f"v_and_b32 v{r}, 0xffffff00, v{r}")
        a(f"v_add_u32 v36, {2048*k}, v35")
        a(f"v_or_b32 v{r+3}, v{r+2}, v36")
        a(f"v_mov_b32 v{r+2}, v{r+1}")
        a(f"v_lshlrev_b32 v{r+1}, 3, v{20+k}")
        a(f"v_add_u32 v{r+1}, {L_SB}, v{r+1}")
        a(f"v_lshlrev_b32 v{20+k}, 2, v{20+k}")
        a(f"v_add_u32 v{20+k}, {L_SA}, v{20+k}")
    a("s_waitcnt lgkmcnt(0)")
    a("v_readfirstlane_b32 s60, v34")
    a("s_cmp_eq_u32 s60, 0")
    a("s_cbranch_scc1 SCATTER")
    a(f"s_mov_b32 s{S_CAP}, {SLOWCAP}")
    a("s_waitcnt vmcnt(0)")
    a("s_barrier")
    a("s_branch ROUND")
    a.label("SCATTER")
    e_batch(2)
    for k in range(7):
        r = MREC + 4 * k
        a(f"s_mov_b64 exec, s[{S_MASK+2*k}:{S_MASK+2*k+1}]")
        a(f"ds_write_b32 v{20+k}, v{r}")
        a(f"ds_write_b64 v{r+1}, {vr(r+2,2)}")
    a("s_mov_b64 exec, -1")
    a(f"v_lshrrev_b32 v4, 4, v{LANE}")
    a("v_lshlrev_b32 v4, 3, v4")
    a(f"s_lshl_b32 s58, s{S_STEP0}, 5")
    a("v_add_u32 v4, s58, v4")
    a(f"v_bfe_u32 v5, v{LANE}, 2, 1")
    a("v_lshl_add_u32 v6, v5, 5, v4")
    a(f"v_and_b32 v5, 3, v{LANE}")
    a("v_lshl_add_u32 v6, v5, 1, v6")
    a(f"v_bfe_u32 v5, v{LANE}, 3, 1")
    a("v_add_u32 v6, v6, v5")
    a("v_lshlrev_b32 v6, 2, v6")
    a(f"v_add_u32 v6, {L_SA}, v6")
    a(f"v_bfe_u32 v5, v{LANE}, 1, 1")
    a("v_lshl_add_u32 v8, v5, 5, v4")
    a(f"v_and_b32 v5, 1, v{LANE}")
    a("v_lshl_add_u32 v8, v5, 2, v8")
    a(f"v_bfe_u32 v5, v{LANE}, 2, 2")
    a("v_add_u32 v8, v8, v5")
    a("v_lshlrev_b32 v8, 3, v8")
    a(f"v_add_u32 v8, {L_SB}, v8")
    a("s_waitcnt lgkmcnt(0)")
    a("s_barrier")
    e_batch(3)
    for s in range(10):
        a(f"ds_read_b32 v{M0R+s}, v6 offset:{256*s}")
        a(f"ds_read_b64 {vr(MBR+2*s,2)}, v8 offset:{512*s}")
    a(f"s_mov_b32 s{S_D1}, 0")
    a(f"s_sub_u32 s{S_PFN}, s{S_NEND}, {max(1, opt('pfn', 1))}")
    a("s_and_b32 s54, s2, 31")
    a("s_lshl_b32 s54, s54, 3")
    a(f"s_add_u32 s54, s54, s{S_WAVE}")
    a("s_mul_i32 s54, s54, 98")
    a(f"v_add_u32 v{PFA}, s54, v{LANE}")
    a(f"v_lshlrev_b32 v{PFA}, 7, v{PFA}")
    for i in range(opt("pf0", 0)):
        a(f"buffer_load_dword v{PFD}, v{PFA}, s[{R_XP}:{R_XP+3}], 0 offen" if i == 0 else
          f"s_mov_b32 s54, 8192\nbuffer_load_dword v{PFD}, v{PFA}, s[{R_XP}:{R_XP+3}], s54 offen")
    a(f"s_mov_b32 s{S_PHASE}, 0")
    a(f"s_mov_b32 s{S_POFF}, 0")
    a(f"s_mov_b32 s{S_TAB0}, 0")
    a(f"s_mov_b32 s{S_TAB1}, 128")
    a(f"s_mov_b32 s{S_NODE}, s{S_NODE0}")
    a(f"v_readlane_b32 s{S_REM}, v{NST}, s{S_NODE}")
    stamp(a, 5)
    a(f"s_waitcnt vmcnt({opt('pf0', 0)}) lgkmcnt(0)")
    a("s_barrier")
    stamp(a, 6)
    if PROF:
        a(f"s_mov_b32 s{S_PROF+12}, s{S_NS}")
        a(f"s_mov_b32 s{S_PROF+13}, s{S_NNW}")
    a(f"s_cmp_eq_u32 s{S_NNW}, 0")
    a("s_cbranch_scc1 TAIL")
    pipeline_start(a)
    for var in ("AB" if opt("prio", 1) else "A"):
        for rho in range(3):
            step_body(a, var, rho, True)
            step_body(a, var, rho, False)
            epilogue(a, var, (rho + 1) % 3)

    a.label("TAIL")
    a("s_setprio 0")
    WF, PF, D = 0, 80, 188
    stamp(a, 8, late=True)
    a(f"v_lshlrev_b32 v{T0}, 4, v{LANE}")
    a(f"s_and_b32 s54, s{S_WAVE}, 1")
    a("s_mul_i32 s55, s54, 20480")
    a(f"s_add_u32 s55, s55, {WS_WSI - WS_WTAB}")
    a("s_waitcnt vmcnt(0)")
    for f in range(20):
        if f % 4 == 0 and f:
            a("s_add_u32 s55, s55, 4096")
        a(f"buffer_load_dwordx4 {vr(WF+4*f,4)}, v{T0}, s[{R_W}:{R_W+3}], s55 offen offset:{(f%4)*1024}")
    a("s_barrier")
    stamp(a, 9, late=True)
    a(f"s_lshl_b32 s55, s{S_WAVE}, 10")
    for k in range(10):
        if k == 9:
            a(f"s_cmp_ge_u32 s{S_WAVE}, 4")
            a("s_cbranch_scc1 NOP10")
        a("s_mov_b32 m0, s55")
        a(f"buffer_load_dwordx4 v{T0}, s[{R_P}:{R_P+3}], s55 offen sc1 lds")
        a("s_add_u32 s55, s55, 8192")
    a.label("NOP10")
    a(f"s_lshl_b32 s55, s{S_WAVE}, 13")
    a(f"s_cmp_eq_u32 s{S_R0}, 0")
    a("s_cbranch_scc1 ZEROD")
    for i in range(8):
        if i == 4:
            a("s_add_u32 s55, s55, 4096")
        a(f"buffer_load_dwordx4 {vr(D+4*i,4)}, v{T0}, s[{R_ACC}:{R_ACC+3}], s55 offen offset:{(i%4)*1024} sc1")
    a("s_branch HAVED")
    a.label("ZEROD")
    for i in range(32):
        a(f"v_mov_b32 v{D+i}, 0")
    a.label("HAVED")
    a(f"v_and_b32 v{T0+1}, 15, v{LANE}")
    a(f"s_lshr_b32 s56, s{S_WAVE}, 1")
    a("s_lshl_b32 s56, s56, 4")
    a(f"v_add_u32 v{T0+1}, s56, v{T0+1}")
    a(f"v_lshrrev_b32 v{T0+2}, 4, v{LANE}")
    a(f"v_lshlrev_b32 v{T0+2}, 4, v{T0+2}")
    a(f"v_mul_u32_u24 v{T0+3}, {P_NODE}, v{T0+1}")
    a(f"v_add_u32 v{T0+3}, v{T0+3}, v{T0+2}")
    a(f"v_lshl_add_u32 v{T0+4}, v{T0+1}, 9, v{T0+2}")
    a("s_lshl_b32 s54, s54, 6")
    a("s_waitcnt vmcnt(0)")
    a("s_barrier")
    stamp(a, 10, late=True)
    seq = []
    for comp, ts in enumerate(([P0, P1], [P2[0], P3[0], P4[0]], [P2[1], P3[1], P4[1]], [P2[2], P3[2], P4[2]])):
        for t in ts:
            for h in range(2):
                seq.append((comp, t, h))
    for i, (comp, t, h) in enumerate(seq):
        a(f"ds_read_b128 {vr(PF+4*i,4)}, v{T0+3} offset:{h*P_HALF + t*64}")
        if i == 14:
            a("s_waitcnt lgkmcnt(7)")
    for i, (comp, t, h) in enumerate(seq):
        if i >= 8:
            a(f"s_waitcnt lgkmcnt({21 - i})")
        for mt in range(2):
            d = vr(D + 8 * comp + 4 * mt, 4)
            a(f"v_mfma_f32_16x16x32_bf16 {d}, {vr(WF + 4*(10*mt + 2*TPATH[t] + h),4)}, {vr(PF+4*i,4)}, {d}")
    a(f"s_cmp_eq_u32 s{S_LAST}, 0")
    a("s_cbranch_scc1 MORE")
    for i in range(8):
        a(f"v_mul_f32 v{i}, 0xbfb8aa3b, v{D+i}")
    for i in range(8):
        a(f"v_exp_f32 v{i}, v{i}")
    for i in range(8):
        a(f"v_add_f32 v{i}, 1.0, v{i}")
    for i in range(8):
        a(f"v_rcp_f32 v{i}, v{i}")
    for comp in range(4):
        if comp:
            for i in range(8):
                a(f"v_mul_f32 v{D+8*comp+i}, v{D+8*comp+i}, v{i}")
        for i in range(4):
            a(f"v_cvt_pk_bf16_f32 v{8+4*comp+i}, v{D+8*comp+2*i}, v{D+8*comp+2*i+1}")
        a(f"buffer_store_dwordx4 {vr(8+4*comp,4)}, v{T0+4}, s[{R_OUT}:{R_OUT+3}], s54 offen offset:{128*comp}")
    if PROF:
        a("s_waitcnt vmcnt(0)")
    stamp(a, 11, late=True)
    stamp(a, 15, True)
    prof_dump(a, 98, 1, 3, S_WAVE)
    if PROF == 4:
        a("s_lshl_b32 s80, s2, 3")
        a(f"s_add_u32 s80, s80, s{S_WAVE}")
        a("s_lshl_b32 s80, s80, 8")
        a(f"s_add_u32 s80, s80, {WS_PROF + 0x200000}")
        srd(a, 4, 98, "s80", 256)
        a(f"v_lshlrev_b32 v0, 2, v{LANE}")
        a("buffer_store_dword v251, v0, s[4:7], 0 offen")
    if PROF == 3:
        a("s_load_dwordx2 s[54:55], s[0:1], 80")
        a("s_min_u32 s80, s2, 249")
        a("s_lshl_b32 s80, s80, 10")
        a(f"s_add_u32 s80, s80, {WS_PROF}")
        srd(a, 4, 98, "s80", 64)
        a("v_mov_b32 v0, 0")
        a("buffer_load_dword v2, v0, s[4:7], 0 offen")
        a("buffer_load_dword v3, v0, s[4:7], 0 offen offset:8")
        a("buffer_load_dword v4, v0, s[4:7], 0 offen offset:24")
        a("buffer_load_dword v5, v0, s[4:7], 0 offen offset:60")
        a("s_waitcnt vmcnt(0) lgkmcnt(0)")
        srd(a, 4, 54, 0, 256)
        a("v_not_b32 v2, v2")
        a("s_mov_b64 exec, 1")
        for i in range(4):
            a(f"buffer_atomic_umax v{2+i}, v0, s[4:7], 0 offen offset:{4*i}")
        a(f"v_not_b32 v2, s{S_PROF}")
        a("buffer_atomic_umax v2, v0, s[4:7], 0 offen offset:16")
        for i, st in enumerate((0, 2, 3, 4, 6, 7, 8, 9, 10, 15)):
            a(f"v_mov_b32 v{3+i}, s{S_PROF+st}")
            a(f"buffer_atomic_umax v{3+i}, v0, s[4:7], 0 offen offset:{20+4*i}")
    a("s_endpgm")
    a.label("MORE")
    a(f"s_lshl_b32 s55, s{S_WAVE}, 13")
    for i in range(8):
        if i == 4:
            a("s_add_u32 s55, s55, 4096")
        a(f"buffer_store_dwordx4 {vr(D+4*i,4)}, v{T0}, s[{R_ACC}:{R_ACC+3}], s55 offen offset:{(i%4)*1024}")
    a(f"s_add_u32 s{S_R0}, s{S_R0}, s{S_LEN}")
    a("s_waitcnt vmcnt(0)")
    a("s_barrier")
    a("s_branch ROUND")
    a.label("K2_end")
    a("s_endpgm")
    return a


def descriptor(name, nv, ns):
    return f""".amdhsa_kernel {name}
  .amdhsa_next_free_vgpr {nv}
  .amdhsa_next_free_sgpr {ns}
  .amdhsa_accum_offset {(nv + 3) // 4 * 4}
  .amdhsa_group_segment_fixed_size 0
  .amdhsa_kernarg_size 96
  .amdhsa_user_sgpr_count 2
  .amdhsa_user_sgpr_kernarg_segment_ptr 1
  .amdhsa_system_sgpr_workgroup_id_x 1
  .amdhsa_float_denorm_mode_32 3
.end_amdhsa_kernel
"""


def main():
    ref = open(os.path.join(os.path.dirname(os.path.abspath(__file__)), "..", "cdna_kernels", NAME + ".s.ref")).read()
    head = [l for l in ref.split("\n") if l.startswith(";") and "@launch" not in l and "Override" not in l
            and "grid=ceil" not in l]
    k1, k2 = "edge_sort_kernel", NAME + "_kernel"
    out = head + [
        f"; @launch kernel={k1} grid=(255,1,1) block=(1024,1,1) lds={K1_LDS}",
        f"; @launch kernel={k2} grid=(256,1,1) block=(512,1,1) lds={K2_LDS}",
        '.amdgcn_target "amdgcn-amd-amdhsa--gfx950"',
        ".text",
    ]
    for name, fn in ((k1, kernel1), (k2, kernel2)):
        lines, nops = fn().finish()
        print(name, "instructions:", len(lines), "nops inserted:", nops, file=sys.stderr)
        out += [f".globl {name}", ".p2align 8", f".type {name},@function", f"{name}:"] + lines
    out += ['.section .rodata,"a"', ".p2align 6", descriptor(k1, 96, 102), ".p2align 6", descriptor(k2, NVGPR, 102)]
    open(sys.argv[1], "w").write("\n".join(out))


if __name__ == "__main__":
    main()
```

```python
import os
import sys

sys.path.insert(0, os.path.dirname(os.path.abspath(__file__)))
from asmlib import Asm, vr, sr

NAME = "gather_scatter__tensor_product_equiv_equiformer__graph"
N, E = 12500, 800000
CHUNK, W = 3200, 250
NPB = 49
NBIN = 256

WS_TAB = 0
WS_WTAB = 0x40000
WS_WSI = 0x48000
WS_META = 0x100000
WS_XP = 0xB00000
WS_EP = 0x1200000
WS_P = 0x2B00000
P_NODE = 784
P_HALF = NPB * P_NODE
P_WG = 0x13000
WS_ACC = 0x4000000
XHALF = N * 256

OPT = dict(a.split("=") for a in sys.argv[2:] if "=" in a)


def opt(name, default):
    return type(default)(OPT.get(name, default))


PROF = opt("prof", 0)
WS_PROF = 0x6000000
S_PROF = 82


def stamp(a, i, real=False, late=False):
    if PROF == 5 and i not in (0, 15, 6, 9):
        return
    if PROF and not (late and PROF == 2):
        a("s_waitcnt lgkmcnt(0)")
        a(("s_memrealtime" if real or PROF in (3, 5) else "s_memtime") + " s[80:81]")
        a("s_waitcnt lgkmcnt(0)")
        a(f"s_mov_b32 s{S_PROF+i}, s80")
        if PROF == 4 and i == 7:
            a("s_memtime s[80:81]")


def prof_dump(a, wsreg, kern, nwave_shift, wavereg):
    if PROF:
        a(f"s_lshl_b32 s80, s2, {nwave_shift}")
        a(f"s_add_u32 s80, s80, s{wavereg}")
        a("s_lshl_b32 s80, s80, 6")
        a(f"s_add_u32 s80, s80, {WS_PROF + kern * 0x100000}")
        srd(a, 4, wsreg, "s80", 64)
        a("v_mov_b32 v0, 0")
        for i in range(16):
            if opt("egx", 0) and i in (10, 11, 12, 13, 14):
                continue
            a(f"v_mov_b32 v1, s{S_PROF+i}")
            a(f"buffer_store_dword v1, v0, s[4:7], 0 offen offset:{4*i}")


def srd(a, d, b, off, size):
    a(f"s_add_u32 s{d}, s{b}, {off}")
    a(f"s_addc_u32 s{d+1}, s{b+1}, 0")
    a(f"s_mov_b32 s{d+2}, {size}")
    a(f"s_mov_b32 s{d+3}, 0x20000")


def scan64(a, v):
    for sh in (1, 2, 4, 8):
        a(f"v_add_u32_dpp v{v}, v{v}, v{v} row_shr:{sh} row_mask:0xf bank_mask:0xf bound_ctrl:1")
    a(f"v_add_u32_dpp v{v}, v{v}, v{v} row_bcast:15 row_mask:0xa bank_mask:0xf")
    a(f"v_add_u32_dpp v{v}, v{v}, v{v} row_bcast:31 row_mask:0xc bank_mask:0xf")


K1_ERAW = 0
K1_MS = 102400
K1_INV = K1_MS + 38400
K1_HIST = K1_INV + 6400
K1_LDS = 152 * 1024


def kernel1():
    a = Asm()
    NT = " nt" if opt("k1nt", 1) else ""
    ST = {0: "", 1: " nt", 2: " sc1"}[opt("k1st", 2)]
    a("s_cmp_ge_u32 s2, 255")
    a("s_cbranch_scc1 K1_end")
    a("s_load_dwordx8 s[4:11], s[0:1], 0")
    a("s_load_dwordx8 s[52:59], s[0:1], 32")
    a("s_load_dwordx2 s[14:15], s[0:1], 88")
    a("v_lshlrev_b32 v1, 4, v0")
    a("v_mul_u32_u24 v2, 24, v0")
    a("v_and_b32 v3, 63, v0")
    a("v_lshlrev_b32 v3, 4, v3")
    a("v_lshrrev_b32 v40, 6, v0")
    a("v_readfirstlane_b32 s3, v40")
    a("s_cmp_ge_u32 s2, 250")
    a("s_cbranch_scc1 K1_prep")
    stamp(a, 0, True)
    stamp(a, 1)
    a("s_mul_i32 s60, s2, 12800")
    a("s_mul_i32 s61, s2, 19200")
    a("s_mul_i32 s62, s2, 25600")
    a("s_mul_i32 s63, s2, 102400")
    a("s_mul_i32 s64, s2, 38400")
    a("s_lshl_b32 s65, s2, 10")
    a("s_waitcnt lgkmcnt(0)")
    srd(a, 16, 52, "s60", 12800)
    a(f"buffer_load_dwordx4 v[4:7], v1, s[16:19], 0 offen{NT}")
    a("v_lshlrev_b32 v41, 2, v0")
    a("v_mov_b32 v42, 0")
    a("s_cmp_ge_u32 s3, 4")
    a("s_cbranch_scc1 K1_nozero")
    a(f"v_add_u32 v41, {K1_HIST}, v41")
    a("ds_write_b32 v41, v42")
    a.label("K1_nozero")
    srd(a, 20, 10, "s60", 12800)
    srd(a, 24, 6, "s61", 19200)
    srd(a, 28, 4, "s62", 25600)
    srd(a, 32, 8, "s63", 102400)
    a("s_mov_b32 s66, 16384")
    a("s_lshl_b32 s67, s3, 10")
    a("s_waitcnt lgkmcnt(0)")
    a("s_barrier")
    a(f"buffer_load_dwordx4 v[8:11], v1, s[20:23], 0 offen{NT}")
    RNT = NT if opt("rnt", 1) else ""
    a(f"buffer_load_dwordx4 v[12:15], v2, s[24:27], 0 offen{RNT}")
    a(f"buffer_load_dwordx2 v[16:17], v2, s[24:27], 0 offen offset:16{RNT}")
    if opt("k1b2", 1):
        a("s_barrier")
    a(f"buffer_load_dwordx4 v[20:23], v1, s[28:31], 0 offen{NT}")
    a(f"buffer_load_dwordx4 v[24:27], v1, s[28:31], s66 offen{NT}")
    for k in range(6):
        a("s_mov_b32 m0, s67")
        a(f"buffer_load_dwordx4 v3, s[32:35], s67 offen{NT} lds")
        a("s_add_u32 s67, s67, 16384")
    a("s_cmp_ge_u32 s3, 4")
    a("s_cbranch_scc1 K1_noe7")
    a("s_mov_b32 m0, s67")
    a(f"buffer_load_dwordx4 v3, s[32:35], s67 offen{NT} lds")
    a.label("K1_noe7")
    a("s_add_u32 s68, s64, %d" % WS_META)
    srd(a, 36, 14, "s68", 38400)
    a("s_add_u32 s68, s63, %d" % WS_EP)
    srd(a, 40, 14, "s68", 102400)
    srd(a, 44, 14, WS_XP, 2 * XHALF)
    srd(a, 48, 14, "s65", 1024)
    a("v_cmp_gt_u32 vcc, 800, v0")
    a("s_mov_b64 s[70:71], vcc")
    a("v_mov_b32 v43, 1")
    a("s_waitcnt vmcnt(11)")
    stamp(a, 2)
    a("s_mov_b64 exec, s[70:71]")
    a("s_cbranch_execz K1_skip_rank")
    for i in range(4):
        a(f"v_mul_u32_u24 v{28+i}, 21400, v{4+i}")
        a(f"v_lshrrev_b32 v{28+i}, 20, v{28+i}")
        a(f"v_mul_u32_u24 v{36+i}, 49, v{28+i}")
        a(f"v_sub_u32 v{36+i}, v{4+i}, v{36+i}")
        a(f"v_lshlrev_b32 v{28+i}, 2, v{28+i}")
        a(f"v_add_u32 v{28+i}, {K1_HIST}, v{28+i}")
        a(f"ds_add_rtn_u32 v{32+i}, v{28+i}, v43")
    a.label("K1_skip_rank")
    a("s_mov_b64 exec, -1")
    a("s_waitcnt lgkmcnt(0)")
    a("s_barrier")
    stamp(a, 3)
    a("s_cmp_lg_u32 s3, 0")
    a("s_cbranch_scc1 K1_noscan")
    a(f"v_add_u32 v41, {K1_HIST}, v3")
    a("ds_read_b128 v[44:47], v41")
    a("s_waitcnt lgkmcnt(0)")
    a("v_add_u32 v49, v44, v45")
    a("v_add_u32 v50, v49, v46")
    a("v_add_u32 v51, v50, v47")
    a("v_mov_b32 v52, v51")
    scan64(a, 52)
    a("v_sub_u32 v52, v52, v51")
    a("v_add_u32 v53, v52, v44")
    a("v_add_u32 v54, v52, v49")
    a("v_add_u32 v55, v52, v50")
    a("ds_write_b128 v41, v[52:55]")
    for i in range(4):
        a(f"v_lshl_or_b32 v{56+i}, v{44+i}, 16, v{52+i}")
    a("buffer_store_dwordx4 v[56:59], v3, s[48:51], 0 offen")
    a("s_waitcnt lgkmcnt(0)")
    a.label("K1_noscan")
    a("v_lshrrev_b32 v60, 5, v0")
    a("s_mul_i32 s69, s2, 50")
    a("v_add_u32 v60, s69, v60")
    a("v_lshlrev_b32 v60, 8, v60")
    a("v_bfe_u32 v61, v0, 3, 2")
    a("v_lshl_add_u32 v60, v61, 6, v60")
    a("v_and_b32 v61, 3, v0")
    a("v_lshl_add_u32 v60, v61, 4, v60")
    a("v_bfe_u32 v61, v0, 2, 1")
    a(f"v_mul_u32_u24 v61, {XHALF}, v61")
    a("v_add_u32 v60, v60, v61")
    a("v_add_u32 v61, 8192, v60")
    a("v_cmp_gt_u32 vcc, 576, v0")
    a("v_mov_b32 v62, 0x80000000")
    a("v_cndmask_b32 v61, v62, v61, vcc")
    a("s_barrier")
    a("s_mov_b64 exec, s[70:71]")
    a("s_cbranch_execz K1_skip_scatter")
    for i in range(4):
        a(f"ds_read_b32 v{28+i}, v{28+i}")
    a("s_waitcnt vmcnt(8)")
    a("s_mov_b32 s72, 0x80000000")
    a("s_mov_b32 s73, 0xffff0000")
    for i in range(4):
        a(f"v_lshl_or_b32 v{8+i}, v{8+i}, 8, v{36+i}")
        a(f"v_or_b32 v{8+i}, s72, v{8+i}")
    a("v_lshlrev_b32 v44, 16, v13")
    a("v_alignbit_b32 v45, v14, v13, 16")
    a("v_and_b32 v46, s73, v14")
    a("v_lshlrev_b32 v47, 16, v16")
    a("v_alignbit_b32 v48, v17, v16, 16")
    a("v_and_b32 v49, s73, v17")
    w1 = [12, 45, 15, 48]
    w2 = [44, 46, 47, 49]
    a("v_lshlrev_b32 v50, 2, v0")
    a("s_waitcnt lgkmcnt(0)")
    for i in range(4):
        a(f"v_add_u32 v{32+i}, v{32+i}, v{28+i}")
        a(f"v_mul_u32_u24 v{28+i}, 12, v{32+i}")
        a(f"v_add_u32 v{28+i}, {K1_MS}, v{28+i}")
        a(f"ds_write2_b32 v{28+i}, v{8+i}, v{w1[i]} offset0:0 offset1:1")
        a(f"ds_write_b32 v{28+i}, v{w2[i]} offset:8")
        a(f"v_lshlrev_b32 v{32+i}, 1, v{32+i}")
        a(f"v_add_u32 v{32+i}, {K1_INV}, v{32+i}")
        a(f"v_add_u32 v{52+i}, {i}, v50")
        a(f"ds_write_b16 v{32+i}, v{52+i}")
    a.label("K1_skip_scatter")
    a("s_mov_b64 exec, -1")
    a("s_waitcnt vmcnt(6)")
    a(f"buffer_store_dwordx4 v[20:23], v60, s[44:47], 0 offen{ST}")
    a(f"buffer_store_dwordx4 v[24:27], v61, s[44:47], 0 offen{ST}")
    a("s_waitcnt lgkmcnt(0)")
    a("s_barrier")
    stamp(a, 4)
    a(f"v_add_u32 v41, {K1_MS}, v1")
    a("ds_read_b128 v[4:7], v41")
    a("ds_read_b128 v[8:11], v41 offset:16384")
    a("ds_read_b128 v[12:15], v41 offset:32768")
    a("v_and_b32 v42, 0x3fe, v0")
    a(f"v_add_u32 v42, {K1_INV}, v42")
    for k in range(7):
        a(f"ds_read_u16 v{28+k}, v42 offset:{1024*k}")
    a("v_and_b32 v43, 1, v0")
    a("v_lshlrev_b32 v43, 4, v43")
    a("s_mov_b32 s74, 32768")
    a("s_waitcnt lgkmcnt(7)")
    a(f"buffer_store_dwordx4 v[4:7], v1, s[36:39], 0 offen{ST}")
    a(f"buffer_store_dwordx4 v[8:11], v1, s[36:39], s66 offen{ST}")
    a(f"buffer_store_dwordx4 v[12:15], v1, s[36:39], s74 offen{ST}")
    a("s_waitcnt lgkmcnt(0)")
    for k in range(7):
        a(f"v_lshl_add_u32 v{28+k}, v{28+k}, 5, v43")
    stamp(a, 5)
    a("s_waitcnt vmcnt(5)")
    a("s_barrier")
    stamp(a, 6)
    for k in range(6):
        a(f"ds_read_b128 v[{64+4*k}:{67+4*k}], v{28+k}")
    a("s_mov_b32 s75, 0")
    for k in range(6):
        a(f"s_waitcnt lgkmcnt({5-k})")
        a(f"buffer_store_dwordx4 v[{64+4*k}:{67+4*k}], v1, s[40:43], s75 offen{ST}")
        a("s_add_u32 s75, s75, 16384")
    a("s_cmp_ge_u32 s3, 4")
    a("s_cbranch_scc1 K1_fin")
    a("ds_read_b128 v[88:91], v34")
    a("s_waitcnt lgkmcnt(0)")
    a(f"buffer_store_dwordx4 v[88:91], v1, s[40:43], s75 offen{ST}")
    a.label("K1_fin")
    stamp(a, 7)
    if PROF:
        a("s_waitcnt vmcnt(0)")
    stamp(a, 8)
    stamp(a, 15, True)
    prof_dump(a, 14, 0, 4, 3)
    a("s_endpgm")

    a.label("K1_prep")
    a("s_waitcnt lgkmcnt(0)")
    srd(a, 16, 54, 0, 16 * 320 * 2)
    srd(a, 20, 56, 0, 128 * 64 * 2)
    srd(a, 24, 58, 0, 192 * 64 * 2)
    srd(a, 28, 14, WS_WTAB, 20480)
    srd(a, 32, 14, WS_WSI, 40960)
    if opt("cpf", 0) & 2:
        a("s_getpc_b64 s[36:37]")
        a.label("K1_here")
        a("s_mov_b32 s38, K2_end-K1_here")
        a("s_mov_b32 s39, 0x20000")
        a("v_lshlrev_b32 v60, 7, v0")
        a("buffer_load_dword v61, v60, s[36:39], 0 offen")
    a("s_sub_u32 s60, s2, 250")
    a("s_lshl_b32 s60, s60, 10")
    a("v_add_u32 v4, s60, v0")
    a("v_and_b32 v5, 3, v4")
    a("v_bfe_u32 v6, v4, 2, 4")
    a("v_bfe_u32 v7, v4, 6, 2")
    a("v_lshrrev_b32 v8, 8, v4")
    a("v_cmp_le_u32 vcc, 10, v8")
    a("v_cndmask_b32 v9, 0, 1, vcc")
    a("v_mul_u32_u24 v10, 10, v9")
    a("v_sub_u32 v10, v8, v10")
    a("v_lshl_add_u32 v11, v7, 2, v5")
    a("v_mul_u32_u24 v11, 320, v11")
    a("v_lshrrev_b32 v12, 1, v10")
    a("v_lshl_add_u32 v11, v12, 6, v11")
    a("v_lshl_add_u32 v11, v9, 5, v11")
    a("v_and_b32 v12, 1, v10")
    a("v_lshl_add_u32 v11, v12, 4, v11")
    a("v_add_u32 v11, v11, v6")
    a("v_lshlrev_b32 v11, 1, v11")
    a("buffer_load_ushort v13, v11, s[16:19], 0 offen")
    a("v_mov_b32 v30, 0x80000000")
    for t in range(2):
        b = 32 + 8 * t
        a(f"v_add_u32 v14, {20*t}, v8")
        a("v_mul_u32_u24 v15, 26, v14")
        a("v_lshrrev_b32 v15, 8, v15")
        a("v_mul_u32_u24 v16, 10, v15")
        a("v_sub_u32 v16, v14, v16")
        a("v_lshrrev_b32 v17, 1, v16")
        a("v_and_b32 v18, 1, v16")
        a("v_lshl_add_u32 v19, v7, 2, v5")
        a("v_lshl_add_u32 v19, v18, 5, v19")
        a("v_lshl_add_u32 v19, v17, 6, v19")
        a("v_lshrrev_b32 v20, 1, v15")
        a("v_and_b32 v21, 1, v15")
        a("v_lshrrev_b32 v22, 2, v6")
        a("v_lshlrev_b32 v22, 3, v22")
        a("v_lshl_add_u32 v22, v20, 5, v22")
        a("v_lshl_add_u32 v22, v21, 2, v22")
        a("v_and_b32 v23, 3, v6")
        a("v_add_u32 v22, v22, v23")
        a("v_lshl_add_u32 v22, v19, 6, v22")
        a("v_lshlrev_b32 v22, 1, v22")
        a("v_subrev_u32 v23, 16384, v22")
        a("v_cmp_gt_u32 vcc, 2, v17")
        a("v_cndmask_b32 v24, v30, v22, vcc")
        a("v_cndmask_b32 v25, v23, v30, vcc")
        a(f"buffer_load_ushort v{b}, v24, s[20:23], 0 offen")
        a(f"buffer_load_ushort v{b+1}, v24, s[20:23], 0 offen offset:2048")
        a(f"buffer_load_ushort v{b+2}, v25, s[24:27], 0 offen")
        a(f"buffer_load_ushort v{b+3}, v25, s[24:27], 0 offen offset:2048")
    a("v_lshlrev_b32 v4, 2, v4")
    a("s_mov_b32 s61, 20480")
    a("s_waitcnt vmcnt(0)")
    a("v_lshlrev_b32 v13, 16, v13")
    a("buffer_store_dword v13, v4, s[28:31], 0 offen")
    for t in range(2):
        b = 32 + 8 * t
        a(f"v_or_b32 v{b}, v{b}, v{b+2}")
        a(f"v_or_b32 v{b+1}, v{b+1}, v{b+3}")
        a(f"v_lshl_or_b32 v{b}, v{b+1}, 16, v{b}")
        a(f"buffer_store_dword v{b}, v4, s[32:35], {'0' if t == 0 else 's61'} offen")
    a.label("K1_end")
    a("s_endpgm")
    return a


CAP = 3392
SLOWCAP = 256
MAXSTEPS = 142
MAXWSTEPS = 20
L_E = 0
L_RING = 32 + CAP * 32
RING_W = 6336
SUBB = 2112
L_SA = L_RING
L_SB = L_SA + MAXSTEPS * 128
L_MISC = L_SB + MAXSTEPS * 256
L_CNT = L_MISC
L_FLAG = L_MISC + 256
L_WSUM = L_MISC + 272
L_DUMMY = L_WSUM + 16
K2_LDS = 163840
assert L_DUMMY + 256 <= K2_LDS and L_RING + 8 * RING_W <= L_MISC

ACC = 0
WR = 88
B0 = 128
B1 = 144
GS, G0, G1, G2, N0, N2 = 160, 164, 168, 172, 176, 180
SEL = 184
M0R = 188
MBR = 198
GSP = (160, 252)
Y = 220
REP = 223
XA = 224
XOFF, QQ8, BAE, BAO, POFF, NST = 228, 230, 231, 232, 233, 234
U, PT, T8, EA = 236, 244, 235, 248
T0 = 236
TID, LANE = 250, 251
NVGPR = 256
XBIAS = 2048

S_WAVE = 3
R_XP, R_EP, R_MT, R_TB, R_P, R_W, R_OUT, R_ACC = 4, 8, 12, 16, 20, 24, 28, 32
S_NN, S_T, S_R0, S_LEN, S_CAP = 36, 37, 38, 39, 40
S_NODE0, S_NNW, S_STEP0, S_NS = 41, 42, 43, 44
S_D, S_REM, S_NODE, S_PHASE, S_TAB0, S_TAB1, S_RB, S_POFF = 45, 46, 47, 48, 49, 50, 51, 52
S_HI, S_SGN = 100, 101
S_MASK = 64
S_LAST = 78
S_NEND = 79
S_EM0 = 53
S_EVT = 59

TPATH = [0, 1, 2, 2, 2, 3, 3, 3, 4, 4, 4]
P0, P1 = 0, 1
P2 = [2, 3, 4]
P3 = [5, 6, 7]
P4 = [8, 9, 10]


def acc(t, cq):
    return ACC + 4 * (2 * t + cq)


def mfma_list():
    out = []
    for t, A, B, fl in ((P2[0], G0, B0, 1), (P1, G0, B0 + 8, 1), (P0, GS, B0, 1), (P3[0], GS, B0 + 8, 1),
                        (P2[2], G2, B0, 1), (P4[1], G2, B0 + 8, 1), (P2[1], G1, B0, 1), (P4[2], G1, B0 + 8, 1),
                        (P4[2], N0, B1, 0), (P4[1], N0, B1 + 8, 0), (P3[1], GS, B1, 1), (P3[2], GS, B1 + 8, 1),
                        (P4[0], N2, B1, 1), (P1, G2, B1 + 8, 0), (P1, G1, B1, 0), (P4[0], G1, B1 + 8, 0)):
        for cq in range(2):
            out.append((t, cq, A, B + 4 * cq, fl))
    return out


def emit_mfma(a, m, first, p0):
    t, cq, A, B, fl = m
    if A == GS:
        A = GSP[p0]
    if opt("nomfma", 0):
        return
    d = vr(acc(t, cq), 4)
    c = "0" if (first and fl) else d
    a(f"v_mfma_f32_16x16x32_bf16 {d}, {vr(A,4)}, {vr(B,4)}, {c}")


def b_reads(k, pos):
    B = B0 if k < 2 else B1
    hf = k & 1
    return [f"ds_read_b64_tr_b16 {vr(B + 4*u + 2*hf, 2)}, v{BAE if u % 2 == 0 else BAO} offset:{pos*SUBB + u*32}"
            for u in range(4)]


def vmwait(n):
    return [] if opt("nowait", 0) else [f"s_waitcnt vmcnt({n})"]


def dma(k, pos):
    if opt("nodma", 0):
        return [[], [], []]
    hf, bp = k & 1, k >> 1
    so = S_TAB0 if bp == 0 else S_TAB1
    pol = ["", " sc1", " nt", " sc0 sc1", " sc0"][opt("xpol", 0)]
    return [[f"s_add_u32 m0, s{S_RB}, {pos*SUBB}"],
            [f"buffer_load_dwordx4 v{XA + 2*hf}, s[{R_XP}:{R_XP+3}], s{so} offen{pol} lds"],
            [f"buffer_load_dwordx4 v{XA + 2*hf + 1}, s[{R_XP}:{R_XP+3}], s{so} offen offset:1088{pol} lds"]]


W0_FETCH = [f"s_lshr_b32 s54, s{S_D}, 1",
            "s_set_gpr_idx_on s54, gpr_idx(SRC0)",
            f"v_mov_b32 v{REP}, v{M0R}",
            "s_set_gpr_idx_off"]
W0_REP = [f"v_mov_b32_dpp v{REP}, v{REP} row_shr:4 row_mask:0xf bank_mask:0xa",
          f"v_mov_b32_dpp v{REP}, v{REP} row_shl:4 row_mask:0xf bank_mask:0x5"]
WRAP = [f"s_mov_b32 s{S_D}, 0",
        f"s_add_u32 s{S_TAB0}, s{S_TAB0}, {XHALF}",
        f"s_add_u32 s{S_TAB1}, s{S_TAB1}, {XHALF}"]


def x_addr(q):
    return f"v_add_u32_dpp v{XA+q}, v{REP}, v{XOFF + (q & 1)} quad_perm:[{q},{q},{q},{q}] row_mask:0xf bank_mask:0xf"


META_SET = [f"s_set_gpr_idx_on s{S_D}, gpr_idx(SRC1)",
            f"v_mad_u32_u16 v{T8}, 8, v{MBR+1}, 0",
            f"v_lshlrev_b32 v{Y}, 16, v{MBR}",
            f"v_and_b32 v{Y+1}, s{S_HI}, v{MBR}",
            f"v_and_b32 v{Y+2}, s{S_HI}, v{MBR+1}",
            "s_set_gpr_idx_off"]


def e_addr(p):
    return [f"v_add_u32_dpp v{EA+h}, v{T8}, v{QQ8} quad_perm:[{2*p+h},{2*p+h},{2*p+h},{2*p+h}] "
            "row_mask:0xf bank_mask:0xf" for h in range(2)]


def e_reads(dst):
    return [f"ds_read_b64_tr_b16 {vr(dst + 2*h, 2)}, v{EA+h}" for h in range(2)]


def unpack_valu(aa, p):
    return [f"v_lshlrev_b32 v{U+2*aa}, 16, v{GSP[p]+aa}", f"v_and_b32 v{U+2*aa+1}, s{S_HI}, v{GSP[p]+aa}"]


def gb(j, aa, p):
    if opt("nog", 0):
        return []
    hf, rl = aa >> 1, 2 * (aa & 1)
    pl = PT + 2 * (aa & 1)
    return [f"v_mul_f32_dpp v{pl}, v{Y+j}, v{U+2*aa} row_newbcast:{4*rl+2*p+hf} row_mask:0xf bank_mask:0xf",
            f"v_mul_f32_dpp v{pl+1}, v{Y+j}, v{U+2*aa+1} row_newbcast:{4*rl+4+2*p+hf} row_mask:0xf bank_mask:0xf",
            f"v_cvt_pk_bf16_f32 v{(G0, G1, G2)[j]+aa}, v{pl}, v{pl+1}"]


def neg(dst, src):
    return [f"v_xor_b32 v{dst+i}, s{S_SGN}, v{src+i}" for i in range(4)]


def body_name(rho, first, p0, p1):
    return f"S{rho}{'f' if first else 'n'}{p0}{p1}"


def goto_next(a, rho, first, p1):
    if p1 == 1:
        a(f"s_branch {body_name(rho, first, 1, 0)}")
    else:
        a(f"s_cmp_lg_u32 s{S_D}, 0")
        a(f"s_cbranch_scc1 {body_name(rho, first, 0, 1)}")
        a(f"s_branch {body_name(rho, first, 0, 0)}")


def step_body(a, rho, first, p0, p1):
    tag = body_name(rho, first, p0, p1)
    x = 3 if first else 0
    p = lambda k: (rho + k) % 3
    F = [[] for _ in range(32)]
    cold = []

    def spread(slot, lst, per=2):
        for i, l in enumerate(lst):
            F[slot + i // per].append(l)

    def event(slot, n, k, pos):
        r = b_reads(k, pos)
        F[slot] += vmwait(n) + r[:2]
        F[slot + 1] += r[2:]

    def refill(slot, k, pos):
        d = dma(k, pos)
        F[slot - 1] += d[0]
        F[slot] += ["s_waitcnt lgkmcnt(0)"] + d[1]
        F[slot + 1] += d[2]

    n0, n2 = neg(N0, G0), neg(N2, G2)
    spread(0, gb(2, 2, p0) + gb(2, 3, p0) + gb(1, 0, p0) + gb(1, 1, p0) + gb(1, 2, p0) + gb(1, 3, p0))
    event(0, 4 + x, 2, p(2))
    refill(4, 1, p(2))
    event(8, 4 + x, 3, p(0))
    if p1 == 0:
        F[9] += META_SET
        spread(10, n0[:2] + e_addr(p1))
        spread(13, n0[2:] + n2)
    else:
        spread(9, n0[:2] + e_addr(p1) + n0[2:])
        spread(13, n2)
    refill(12, 2, p(0))
    q1 = 1 - p0
    F[13] += e_reads(GSP[q1])
    event(16, 4 + x, 0, p(1))
    F[17] += ["s_waitcnt lgkmcnt(4)"]
    spread(17, unpack_valu(0, q1) + unpack_valu(1, q1) + unpack_valu(2, q1) + unpack_valu(3, q1))
    refill(20, 3, p(1))
    F[21] += [f"s_add_u32 s{S_D}, s{S_D}, 1", f"s_cmp_lt_u32 s{S_D}, s{S_NS}", f"s_cbranch_scc0 {tag}_w"]
    if p1 == 1:
        F[21] += [f"{tag}_b:"] + W0_FETCH
        F[22] += [W0_REP[0]]
        cold += [f"{tag}_w:"] + WRAP + [f"s_branch {tag}_b"]
    else:
        F[21] += W0_FETCH + [W0_REP[1], f"{tag}_b:"]
        cold += [f"{tag}_w:"] + WRAP + W0_FETCH + [W0_REP[0], f"s_branch {tag}_b"]
    g = gb(0, 0, p1) + gb(0, 1, p1) + gb(0, 2, p1) + gb(0, 3, p1) + gb(2, 0, p1) + gb(2, 1, p1)
    spread(22, g[:1] + [None], 2)
    spread(23, g[1:3])
    spread(24, [x_addr(0), g[3], x_addr(1), g[4]] + g[5:9] + [x_addr(2), g[9], x_addr(3)], 2)
    spread(28, g[10:12], 1)
    spread(29, g[12:], 2)
    if q1 != p1:
        F[24] += [f"v_mov_b32 v{GSP[p1]+i}, v{GSP[q1]+i}" for i in range(4)]
    event(24, 4, 1, p(2))
    refill(28, 0, p(2))
    F[31] += [f"s_sub_u32 s{S_REM}, s{S_REM}, 1"]
    if PROF == 4:
        F[29] += ["s_memtime s[80:81]"]
        F[6] += ["s_mov_b32 m0, s96", "s_add_u32 s96, s96, 1", "v_writelane_b32 v219, s80, m0"]
    a.label(tag)
    for i, m in enumerate(mfma_list()):
        emit_mfma(a, m, first, p0)
        for l in F[i]:
            if l is None:
                continue
            if opt("nods", 0) and (l.startswith("ds_") or l.startswith("s_waitcnt lgkm")):
                continue
            if opt("novalu", 0) and l.startswith("v_") and not l.startswith(("v_writelane", "v_mfma")):
                continue
            if opt("nolgkm", 0) and l.startswith("s_waitcnt lgkm"):
                continue
            if opt("nounp", 0) and l.startswith("v_mfma"):
                continue
            if opt("nodpp", 0) and l.startswith("v_mul_f32_dpp"):
                l = l.replace("_dpp", "").split(" row_")[0]
            if opt("nocvt", 0) and l.startswith("v_cvt"):
                l = l.replace("v_cvt_pk_bf16_f32", "v_and_b32")
            if opt("noidx", 0) and l.startswith(("s_set_gpr", "s_lshr")):
                continue
            a(l)
    nr = (rho + 1) % 3
    if p1 == 1:
        a(f"s_cbranch_scc0 {body_name(nr, False, 1, 0)}")
        a(f"s_branch EP{nr}{p1}")
    else:
        a(f"s_cbranch_scc1 EP{nr}{p1}")
        goto_next(a, nr, False, p1)
    for l in cold:
        a(l)


def load_w(a, h):
    a(f"s_mov_b32 s57, {10240*h}")
    a(f"v_lshlrev_b32 v67, 4, v{LANE}")
    for pc in range(10):
        if pc % 4 == 0 and pc:
            a("s_add_u32 s57, s57, 4096")
        a(f"buffer_load_dwordx4 {vr(WR+4*pc,4)}, v67, s[{R_W}:{R_W+3}], s57 offen offset:{(pc%4)*1024}")


def pipeline_start(a):
    def run(lst):
        for l in lst:
            a(l)

    def dma_now(k, pos):
        for g in dma(k, pos):
            run(g)

    run(W0_FETCH + [W0_REP[0]] + [x_addr(q) for q in range(4)])
    dma_now(0, 0)
    dma_now(1, 1)
    dma_now(2, 2)
    run(META_SET + e_addr(0))
    a(f"s_waitcnt vmcnt({0 if opt('nodma', 0) else 6})")
    a("s_barrier")
    stamp(a, 6)
    run(e_reads(GSP[0]))
    run(["s_waitcnt vmcnt(4)"] + b_reads(0, 0) + ["s_waitcnt lgkmcnt(0)"])
    dma_now(3, 0)
    for aa in range(4):
        run(unpack_valu(aa, 0))
    run([f"s_mov_b32 s{S_D}, 1", f"s_cmp_lt_u32 s{S_D}, s{S_NS}", "s_cbranch_scc0 I_w"] + W0_FETCH + [W0_REP[1]])
    a("s_branch I_b")
    run(["I_w:"] + WRAP + W0_FETCH + [W0_REP[0], "I_b:"])
    run([x_addr(q) for q in range(4)])
    run(["s_waitcnt vmcnt(4)"] + b_reads(1, 1))
    run(gb(0, 0, 0) + gb(0, 1, 0) + gb(0, 2, 0) + gb(0, 3, 0) + gb(2, 0, 0) + gb(2, 1, 0))
    if PROF == 4:
        a("s_memtime s[80:81]")
        a("s_mov_b32 s96, 0")
        a("v_mov_b32 v219, 0")
    a("s_waitcnt lgkmcnt(0)")
    dma_now(0, 1)
    load_w(a, 0)
    if opt("prio", 1):
        a(f"s_cmp_lt_u32 s{S_WAVE}, 4")
        a("s_cbranch_scc1 I_p")
        a("s_setprio 1")
        a.label("I_p")
    goto_next(a, 0, True, 0)


def epilogue(a, rho, p1):
    tag = f"EP{rho}{p1}"
    a.label(tag)
    order = [P2[0], P0, P3[0], P2[2], P2[1], P4[2], P4[1], P3[1], P3[2], P1, P4[0]]
    book = [f"s_mul_i32 s55, s{S_NODE}, {P_NODE}",
            f"s_add_u32 s55, s55, s{S_POFF}",
            f"s_add_u32 s{S_NODE}, s{S_NODE}, 1",
            f"s_cmp_lt_u32 s{S_NODE}, s{S_NEND}",
            f"s_cselect_b32 s56, s{S_NODE}, -2",
            f"s_cselect_b32 s{S_NODE}, s{S_NODE}, s{S_NODE0}",
            f"v_readlane_b32 s{S_REM}, v{NST}, s{S_NODE}",
            f"s_cmp_ge_u32 s56, s{S_EVT}"]
    if opt("prio", 1):
        a(f"s_cmp_lt_u32 s{S_WAVE}, 4")
        a(f"s_cbranch_scc0 {tag}_p")
        a(f"s_setprio {2 if int(opt('prpat', '110110')[2 * rho + p1]) else 0}")
        a.label(f"{tag}_p")
    for t in (order if opt("noep", 0) < 2 else []):
        pth = TPATH[t]
        for r in range(0 if opt("noep", 0) else 4):
            for cq in range(2):
                d, w = acc(t, cq), WR + 4 * (2 * pth + cq)
                if r == 0:
                    a(f"v_mul_f32 v{d}, v{d}, v{w}")
                else:
                    a(f"v_fmac_f32 v{d}, v{d+r}, v{w+r}")
        n = "-" if t == P4[2] else ""
        a(f"v_cvt_pk_bf16_f32 v{B1+t}, {n}v{acc(t,0)}, {n}v{acc(t,1)}")
        if t == P0:
            a(f"v_mov_b32 v{B1+11}, 0")
        if t == P1:
            a(f"v_mfma_f32_16x16x32_bf16 {vr(20,4)}, {vr(SEL,4)}, {vr(B1+4,4)}, 0")
    a(book[0])
    a(f"v_mfma_f32_16x16x32_bf16 {vr(16,4)}, {vr(SEL,4)}, {vr(B1,4)}, 0")
    a(f"v_mfma_f32_16x16x32_bf16 {vr(24,4)}, {vr(SEL,4)}, {vr(B1+8,4)}, 0")
    a(f"v_cvt_pk_bf16_f32 v65, v20, v21")
    for l in book[1:]:
        a(l)
    a(f"buffer_store_dword v65, v{POFF}, s[{R_P}:{R_P+3}], s55 offen offset:256")
    for i in (0, 2):
        a(f"v_cvt_pk_bf16_f32 v{64+i}, v{16+4*i}, v{17+4*i}")
    for i in (0, 2):
        a(f"buffer_store_dword v{64+i}, v{POFF}, s[{R_P}:{R_P+3}], s55 offen offset:{256*i}")
    if opt("egx", 0):
        a("s_cselect_b32 s57, 1, 0")
        a(f"s_cmp_lg_u32 s{S_PHASE}, 0")
        a(f"s_cbranch_scc1 {tag}_noeg")
        for i in range(2):
            a("v_mul_lo_u32 v218, v218, s97")
            a("v_add_u32 v218, 12345, v218")
            a("v_mul_hi_u32 v67, v218, s96")
            a("v_lshlrev_b32 v67, 5, v67")
            a(f"s_mov_b32 m0, {L_DUMMY}")
            a(f"buffer_load_dword v67, s[92:95], 0 offen{['', ' nt', ' sc1'][opt('egx', 0) - 1]} lds")
        a.label(f"{tag}_noeg")
        a("s_cmp_lg_u32 s57, 0")
    a(f"s_cbranch_scc1 {tag}_evt")
    a.label(f"{tag}_go")
    goto_next(a, rho, True, p1)
    a.label(f"{tag}_evt")
    a("s_cmp_eq_u32 s56, -2")
    a(f"s_cbranch_scc1 {tag}_end")
    a(f"s_mov_b32 s{S_EVT}, -2")
    a("s_and_b32 s54, s2, 31")
    a("s_lshl_b32 s54, s54, 3")
    a(f"s_add_u32 s54, s54, s{S_WAVE}")
    a(f"s_mul_i32 s54, s54, {98*128}")
    a(f"s_add_u32 s54, s54, {XHALF + XBIAS}")
    a(f"v_lshlrev_b32 v67, 7, v{LANE}")
    a(f"s_mov_b32 m0, {L_DUMMY}")
    a(f"buffer_load_dword v67, s[{R_XP}:{R_XP+3}], s54 offen lds")
    a(f"s_branch {tag}_go")
    a.label(f"{tag}_end")
    a(f"s_cmp_lg_u32 s{S_PHASE}, 0")
    a("s_cbranch_scc1 TAIL")
    stamp(a, 7, late=True)
    a(f"s_mov_b32 s{S_EVT}, -2")
    a(f"s_mov_b32 s{S_PHASE}, 1")
    a(f"s_mov_b32 s{S_POFF}, {P_HALF}")
    load_w(a, 1)
    a(f"s_branch {tag}_go")


def kernel2():
    a = Asm()
    a("s_cmp_ge_u32 s2, 256")
    a("s_cbranch_scc1 K2_end")
    if opt("xcdmap", 1) == 2:
        a("s_load_dwordx2 s[54:55], s[0:1], 80")
        a("s_getreg_b32 s58, hwreg(HW_REG_XCC_ID, 0, 3)")
        a("v_lshrrev_b32 v1, 6, v0")
        a("v_readfirstlane_b32 s3, v1")
        a(f"v_mov_b32 v3, {L_WSUM}")
        a("s_cmp_lg_u32 s3, 0")
        a("s_cbranch_scc1 CLAIMED")
        a("s_waitcnt lgkmcnt(0)")
        srd(a, 4, 54, 0, 256)
        a("s_mov_b64 exec, 1")
        a.label("CLAIM")
        a("v_mov_b32 v1, 1")
        a("s_lshl_b32 s59, s58, 5")
        a("v_mov_b32 v2, s59")
        a("buffer_atomic_add v1, v2, s[4:7], 0 offen sc0")
        a("s_add_u32 s58, s58, 1")
        a("s_and_b32 s58, s58, 7")
        a("s_waitcnt vmcnt(0)")
        a("v_readfirstlane_b32 s60, v1")
        a("s_cmp_ge_u32 s60, 32")
        a("s_cbranch_scc1 CLAIM")
        a("v_add_u32 v1, v1, v2")
        a("ds_write_b32 v3, v1")
        a("s_mov_b64 exec, -1")
        a.label("CLAIMED")
        a("s_waitcnt lgkmcnt(0)")
        a("s_barrier")
        a("ds_read_b32 v1, v3")
        a("s_waitcnt lgkmcnt(0)")
        a("v_readfirstlane_b32 s2, v1")
        a("s_and_b32 s2, s2, 255")
        a("s_barrier")
    if opt("xcdmap", 1) == 1:
        a("s_and_b32 s3, s2, 7")
        a("s_lshl_b32 s3, s3, 5")
        a("s_lshr_b32 s2, s2, 3")
        a("s_or_b32 s2, s2, s3")
    a(f"v_mov_b32 v{TID}, v0")
    a(f"s_mov_b32 s{S_R0}, 0")
    a(f"s_mov_b32 s{S_CAP}, {CAP}")
    stamp(a, 0, True)
    stamp(a, 1)
    a.label("ROUND")
    a("s_load_dwordx2 s[56:57], s[0:1], 88")
    a("s_load_dwordx2 s[54:55], s[0:1], 72")
    a(f"v_and_b32 v2, 255, v{TID}")
    a("v_lshlrev_b32 v3, 10, v2")
    a(f"v_and_b32 v{LANE}, 63, v{TID}")
    a(f"v_lshrrev_b32 v1, 6, v{TID}")
    a(f"v_readfirstlane_b32 s{S_WAVE}, v1")
    a("s_lshl_b32 s58, s2, 2")
    a("s_cmp_eq_u32 s2, 255")
    a(f"s_cselect_b32 s{S_NN}, {N - 255*NPB}, {NPB}")
    a("s_waitcnt lgkmcnt(0)")
    srd(a, R_TB, 56, WS_TAB, W * 1024)
    a(f"buffer_load_dword v20, v3, s[{R_TB}:{R_TB+3}], s58 offen")
    if opt("cpf", 0) & 1:
        a("s_getpc_b64 s[60:61]")
        a.label("K2_here")
        a("s_mov_b32 s62, K2_end-K2_here")
        a("s_mov_b32 s63, 0x20000")
        a(f"v_lshlrev_b32 v21, 7, v{TID}")
        a("buffer_load_dword v75, v21, s[60:63], 0 offen")
    if PROF:
        a("s_mov_b64 s[98:99], s[56:57]")
    if opt("egx", 0):
        a("s_load_dwordx2 s[92:93], s[0:1], 16")
        a("s_mov_b32 s94, 25600000")
        a("s_mov_b32 s95, 0x20000")
        a("s_mov_b32 s96, 800000")
        a("s_mov_b32 s97, 1664525")
        a(f"v_lshrrev_b32 v218, 1, v{TID}")
        a("s_lshl_b32 s59, s2, 8")
        a("v_add_u32 v218, s59, v218")
        a("s_mov_b32 s59, 0x9E3779B1")
        a("v_mul_lo_u32 v218, v218, s59")
        a("s_waitcnt lgkmcnt(0)")
    srd(a, R_W, 56, WS_WTAB, 0x12000)
    srd(a, R_MT, 56, WS_META, E * 12)
    srd(a, R_EP, 56, WS_EP, E * 32)
    srd(a, R_XP, 56, WS_XP - XBIAS, 2 * XHALF + XBIAS)
    a(f"s_mul_i32 s59, s2, {P_WG}")
    a(f"s_add_u32 s59, s59, {WS_P}")
    srd(a, R_P, 56, "s59", 2 * P_HALF)
    a("s_lshl_b32 s59, s2, 16")
    a(f"s_add_u32 s59, s59, {WS_ACC}")
    srd(a, R_ACC, 56, "s59", 65536)
    a(f"s_mul_i32 s59, s2, {NPB*512}")
    a(f"s_lshl_b32 s60, s{S_NN}, 9")
    srd(a, R_OUT, 54, "s59", "s60")
    a(f"s_mul_i32 s{S_RB}, s{S_WAVE}, {RING_W}")
    a(f"s_add_u32 s{S_RB}, s{S_RB}, {L_RING}")
    a(f"s_mov_b32 s{S_HI}, 0xffff0000")
    a(f"s_mov_b32 s{S_SGN}, 0x80008000")
    L = LANE
    a(f"v_bfe_u32 v3, v{L}, 4, 1")
    a(f"v_and_b32 v4, 7, v{L}")
    a("v_lshlrev_b32 v5, 1, v3")
    a("v_xor_b32 v4, v4, v5")
    a("v_lshlrev_b32 v4, 4, v4")
    a(f"v_add_u32 v{XOFF}, {0x80000000 + XBIAS}, v4")
    a(f"v_add_u32 v{XOFF+1}, {0x80000000 + XBIAS - 1088}, v4")
    a(f"v_and_b32 v4, 3, v{L}")
    a(f"v_lshlrev_b32 v{QQ8}, 3, v4")
    a(f"v_bfe_u32 v5, v{L}, 3, 1")
    a("v_mul_u32_u24 v5, 1088, v5")
    a(f"v_lshrrev_b32 v6, 4, v{L}")
    a("v_lshl_add_u32 v5, v6, 8, v5")
    a(f"v_bfe_u32 v7, v{L}, 2, 1")
    a("v_lshl_add_u32 v5, v7, 7, v5")
    a(f"v_add_u32 v5, v5, v{QQ8}")
    a(f"v_add_u32 v5, s{S_RB}, v5")
    a("v_lshlrev_b32 v7, 5, v3")
    a(f"v_add_u32 v{BAE}, v5, v7")
    a(f"v_sub_u32 v{BAO}, v5, v7")
    a(f"v_and_b32 v7, 15, v{L}")
    a("v_lshlrev_b32 v8, 2, v7")
    a(f"v_lshl_add_u32 v{POFF}, v6, 6, v8")
    a("v_and_b32 v8, 1, v7")
    a("v_lshlrev_b32 v8, 4, v8")
    a("v_mov_b32 v9, 0x3f80")
    a("v_lshlrev_b32 v8, v8, v9")
    a("v_and_b32 v9, 14, v7")
    for i in range(4):
        a(f"v_cmp_eq_u32 vcc, {4*i}, v9")
        a(f"v_cndmask_b32 v{SEL+i}, 0, v8, vcc")
    a(f"v_lshlrev_b32 v6, 2, v{TID}")
    a("v_mov_b32 v7, 0")
    a(f"v_add_u32 v8, {L_MISC}, v6")
    a(f"v_cmp_gt_u32 vcc, 68, v{TID}")
    a("s_and_saveexec_b64 s[58:59], vcc")
    a("ds_write_b32 v8, v7")
    a(f"v_cmp_gt_u32 vcc, 8, v{TID}")
    a("s_and_b64 exec, exec, vcc")
    a("ds_write_b32 v6, v7")
    a("s_mov_b64 exec, -1")
    a("v_mul_u32_u24 v14, 3200, v2")
    a(f"v_lshrrev_b32 v15, 8, v{TID}")
    a("v_mov_b32 v16, 0x80000000")
    a(f"s_waitcnt vmcnt({opt('cpf', 0) & 1})")
    stamp(a, 2)
    a("v_lshrrev_b32 v9, 16, v20")
    a("v_and_b32 v10, 0xffff, v20")
    a("v_add_u32 v14, v14, v10")
    NPF = opt("spf", 0) * 3
    if NPF:
        a("v_lshlrev_b32 v21, 7, v15")
        a("v_lshlrev_b32 v22, 5, v9")
        a("v_lshl_add_u32 v23, v14, 5, v21")
        a("v_cmp_lt_u32 vcc, v21, v22")
        a("v_add_u32 v24, 256, v21")
        a("v_cndmask_b32 v25, v16, v23, vcc")
        a("v_cmp_lt_u32 vcc, v24, v22")
        a("v_mul_u32_u24 v22, 12, v9")
        a("v_cndmask_b32 v26, v16, v23, vcc")
        a("v_mad_u32_u24 v23, v14, 12, v21")
        a("v_cmp_lt_u32 vcc, v21, v22")
        a("v_cndmask_b32 v27, v16, v23, vcc")
        a(f"buffer_load_dword v72, v27, s[{R_MT}:{R_MT+3}], 0 offen")
        a(f"buffer_load_dword v73, v25, s[{R_EP}:{R_EP+3}], 0 offen")
        a(f"buffer_load_dword v74, v26, s[{R_EP}:{R_EP+3}], 0 offen offset:256")
    a("v_mov_b32 v11, v9")
    scan64(a, 11)
    a("v_readlane_b32 s58, v11, 63")
    a(f"s_and_b32 s59, s{S_WAVE}, 3")
    a("s_lshl_b32 s60, s59, 2")
    a(f"s_add_u32 s60, s60, {L_WSUM}")
    a("v_mov_b32 v12, s60")
    a("v_mov_b32 v13, s58")
    a("ds_write_b32 v12, v13")
    a("v_sub_u32 v11, v11, v9")
    a(f"v_mov_b32 v12, {L_WSUM}")
    a("s_waitcnt lgkmcnt(0)")
    a("s_barrier")
    a("ds_read_b128 v[16:19], v12")
    a("s_waitcnt lgkmcnt(0)")
    for i in range(4):
        a(f"v_readfirstlane_b32 s{60+i}, v{16+i}")
    a("s_add_u32 s61, s61, s60")
    a("s_add_u32 s62, s62, s61")
    a(f"s_add_u32 s{S_T}, s63, s62")
    a("s_cmp_eq_u32 s59, 0")
    a("s_cselect_b32 s58, 0, s60")
    a("s_cmp_eq_u32 s59, 2")
    a("s_cselect_b32 s58, s61, s58")
    a("s_cmp_eq_u32 s59, 3")
    a("s_cselect_b32 s58, s62, s58")
    a(f"s_sub_u32 s{S_LEN}, s{S_T}, s{S_R0}")
    a(f"s_cmp_le_u32 s{S_LEN}, s{S_CAP}")
    a(f"s_cselect_b32 s{S_LAST}, 1, 0")
    a(f"s_min_u32 s{S_LEN}, s{S_LEN}, s{S_CAP}")
    a(f"s_sub_u32 s58, s58, s{S_R0}")
    a("v_add_u32 v11, s58, v11")
    a("v_sub_u32 v12, 0, v11")
    a("v_max_i32 v12, 0, v12")
    a(f"v_sub_u32 v13, s{S_LEN}, v11")
    a("v_min_i32 v13, v13, v9")
    a("v_add_u32 v12, v12, v15")
    a("v_sub_u32 v9, v13, v12")
    a("v_add_u32 v14, v14, v12")
    a("v_add_u32 v11, v11, v12")
    a("v_lshlrev_b32 v12, 2, v11")
    a(f"v_add_u32 v12, {L_SA}, v12")
    a.label("MAPL")
    for i in range(16):
        a(f"v_cmp_lt_i32 vcc, {2*i}, v9")
        if i:
            a("v_add_u32 v14, 2, v14")
        a("s_and_b64 exec, exec, vcc")
        if i % 4 == 0:
            a("s_cbranch_execz MAPD")
        a(f"ds_write_b32 v12, v14 offset:{8*i}")
    a("v_add_u32 v14, 2, v14")
    a("v_add_u32 v12, 128, v12")
    a("v_subrev_u32 v9, 32, v9")
    a("s_branch MAPL")
    a.label("MAPD")
    a("s_mov_b64 exec, -1")
    a(f"v_add_u32 v12, {L_SA}, v6")
    a(f"v_lshrrev_b32 v13, 1, v{LANE}")
    a(f"s_lshl_b32 s58, s{S_WAVE}, 5")
    a("v_add_u32 v13, s58, v13")
    a(f"v_lshl_add_u32 v14, v13, 2, v7")
    a(f"v_add_u32 v14, {L_SA}, v14")
    a(f"v_and_b32 v15, 1, v{LANE}")
    a("v_lshlrev_b32 v15, 4, v15")
    a("s_waitcnt lgkmcnt(0)")
    a("s_barrier")
    stamp(a, 3)
    for k in range(7):
        a(f"ds_read_b32 v{20+k}, v12 offset:{2048*k}")
    for k in range(14):
        a(f"ds_read_b32 v{28+k}, v14 offset:{1024*k}")
    MREC = 44
    EPOL = ["", " sc1", " nt"][opt("epol", 0)]
    for k in range(7):
        a(f"v_add_u32 v17, {512*k}, v{TID}")
        a(f"v_cmp_gt_u32 s[{S_MASK+2*k}:{S_MASK+2*k+1}], s{S_LEN}, v17")
        a(f"s_waitcnt lgkmcnt({min(15, 20-k)})")
        a(f"v_mul_u32_u24 v{20+k}, 12, v{20+k}")
        a(f"v_cndmask_b32 v{20+k}, v16, v{20+k}, s[{S_MASK+2*k}:{S_MASK+2*k+1}]")
    if PROF == 2:
        stamp(a, 7)
    for k in range(7):
        a(f"buffer_load_dwordx3 {vr(MREC+4*k,3)}, v{20+k}, s[{R_MT}:{R_MT+3}], 0 offen{EPOL}")
    a("s_waitcnt lgkmcnt(0)")
    a(f"s_lshl_b32 s{S_EM0}, s{S_WAVE}, 10")
    a(f"s_add_u32 s{S_EM0}, s{S_EM0}, {L_E + 32}")
    EREG = 128
    for k in range(14):
        a(f"v_cmp_gt_u32 vcc, s{S_LEN}, v13")
        a(f"v_lshl_add_u32 v{28+k}, v{28+k}, 5, v15")
        a("v_add_u32 v13, 256, v13")
        a(f"v_cndmask_b32 v{EREG+k}, v16, v{28+k}, vcc")
    eb = [int(c) for c in opt("eb", "2444")]

    def e_batch(i):
        for k in range(sum(eb[:i]), sum(eb[:i + 1])):
            if k == 13:
                a(f"s_cmp_ge_u32 s{S_WAVE}, 2")
                a("s_cbranch_scc1 NOE14")
            a(f"s_mov_b32 m0, s{S_EM0}")
            a(f"s_add_u32 s{S_EM0}, s{S_EM0}, 8192")
            a(f"buffer_load_dwordx4 v{EREG+k}, s[{R_EP}:{R_EP+3}], 0 offen{EPOL} lds")
            if k == 13:
                a.label("NOE14")

    if PROF == 2:
        stamp(a, 8)
    e_batch(0)
    if PROF == 2:
        stamp(a, 9)
    a("v_mov_b32 v17, 1")
    for k in range(7):
        a(f"s_waitcnt vmcnt({min(eb[0], 13) + 6 - k})")
        if PROF == 2 and k in (0, 6):
            stamp(a, 10 if k == 0 else 11)
        a(f"v_and_b32 v{20+k}, 0xff, v{MREC+4*k}")
        a(f"v_lshlrev_b32 v{20+k}, 2, v{20+k}")
        a(f"v_add_u32 v18, {L_CNT}, v{20+k}")
        a(f"s_mov_b64 exec, s[{S_MASK+2*k}:{S_MASK+2*k+1}]")
        a(f"ds_add_rtn_u32 v{MREC+4*k+3}, v18, v17")
        a("s_mov_b64 exec, -1")
    a(f"v_lshlrev_b32 v12, 2, v{LANE}")
    a(f"v_add_u32 v12, {L_CNT}, v12")
    a(f"v_lshlrev_b32 v13, 4, v{TID}")
    a(f"v_add_u32 v13, {L_SA}, v13")
    for i in range(4):
        a(f"v_mov_b32 v{28+i}, 0")
    a("s_waitcnt lgkmcnt(0)")
    a("s_barrier")
    stamp(a, 4)
    e_batch(1)
    a("ds_read_b32 v14, v12")
    nz = MAXSTEPS * 384 // 16
    for k in range(6):
        a(f"ds_write_b128 v13, v[28:31] offset:{8192*k}")
    a(f"v_cmp_gt_u32 vcc, {nz - 6*512}, v{TID}")
    a("s_mov_b64 exec, vcc")
    a(f"ds_write_b128 v13, v[28:31] offset:{8192*6}")
    a("s_mov_b64 exec, -1")
    a("s_waitcnt lgkmcnt(6)")
    a("v_add_u32 v14, 31, v14")
    a("v_lshrrev_b32 v14, 5, v14")
    a("v_max_u32 v14, 1, v14")
    a(f"v_cmp_gt_u32 vcc, s{S_NN}, v{LANE}")
    a(f"v_cndmask_b32 v{NST}, 0, v14, vcc")
    a("v_mad_u32_u24 v15, v14, 5, 4")
    a("v_cndmask_b32 v15, 0, v15, vcc")
    a(f"v_lshl_or_b32 v18, v15, 16, v{NST}")
    a(f"v_subrev_u32 v{NST}, 1, v{NST}")
    a("v_mov_b32 v19, v18")
    scan64(a, 19)
    a("v_readlane_b32 s58, v19, 63")
    a("v_sub_u32 v18, v19, v18")
    a("v_and_b32 v19, 0xffff, v19")
    a("v_lshrrev_b32 v32, 16, v18")
    a("v_and_b32 v18, 0xffff, v18")
    a("v_lshl_add_u32 v32, v32, 1, v15")
    a("v_lshlrev_b32 v32, 2, v32")
    a("s_lshr_b32 s59, s58, 16")
    a("s_and_b32 s58, s58, 0xffff")
    a(f"s_and_b32 s60, s{S_WAVE}, 3")
    a("s_lshl_b32 s60, s60, 1")
    a(f"s_lshr_b32 s61, s{S_WAVE}, 2")
    a("s_add_u32 s60, s60, s61")
    a("s_mul_i32 s60, s60, s59")
    a("s_add_u32 s61, s60, s59")
    a("v_cmp_le_u32 vcc, s60, v32")
    a("v_cmp_gt_u32 s[62:63], s61, v32")
    a("s_and_b64 vcc, vcc, s[62:63]")
    a(f"s_bcnt1_i32_b64 s{S_NNW}, vcc")
    a(f"s_ff1_i32_b64 s{S_NODE0}, vcc")
    a(f"s_max_i32 s{S_NODE0}, s{S_NODE0}, 0")
    a(f"s_add_u32 s{S_NEND}, s{S_NODE0}, s{S_NNW}")
    a(f"s_sub_u32 s60, s{S_NEND}, 1")
    a("s_max_i32 s60, s60, 0")
    a(f"v_readlane_b32 s{S_STEP0}, v18, s{S_NODE0}")
    a(f"v_readlane_b32 s{S_NS}, v19, s60")
    a(f"s_sub_u32 s{S_NS}, s{S_NS}, s{S_STEP0}")
    a(f"s_cmp_eq_u32 s{S_NNW}, 0")
    a(f"s_cselect_b32 s{S_NS}, 0, s{S_NS}")
    a(f"s_cmp_gt_u32 s{S_NS}, {MAXWSTEPS}")
    a("s_cselect_b32 s60, 1, 0")
    a(f"s_cmp_gt_u32 s58, {MAXSTEPS}")
    a("s_cselect_b32 s60, 1, s60")
    a("s_cmp_eq_u32 s60, 0")
    a("s_cbranch_scc1 NOFAIL")
    a(f"v_mov_b32 v33, {L_FLAG}")
    a("ds_write_b32 v33, v17")
    a.label("NOFAIL")
    for k in range(7):
        a(f"ds_bpermute_b32 v{20+k}, v{20+k}, v18")
    a(f"v_mov_b32 v33, {L_FLAG}")
    a("s_waitcnt lgkmcnt(0)")
    a("s_barrier")
    a("ds_read_b32 v34, v33")
    a(f"v_lshlrev_b32 v35, 2, v{TID}")
    a("v_add_u32 v35, 4, v35")
    for k in range(7):
        r = MREC + 4 * k
        a(f"v_lshl_add_u32 v{20+k}, v{20+k}, 5, v{r+3}")
        a(f"v_and_b32 v{r}, 0xffffff00, v{r}")
        a(f"v_add_u32 v36, {2048*k}, v35")
        a(f"v_or_b32 v{r+3}, v{r+2}, v36")
        a(f"v_mov_b32 v{r+2}, v{r+1}")
        a(f"v_lshlrev_b32 v{r+1}, 3, v{20+k}")
        a(f"v_add_u32 v{r+1}, {L_SB}, v{r+1}")
        a(f"v_lshlrev_b32 v{20+k}, 2, v{20+k}")
        a(f"v_add_u32 v{20+k}, {L_SA}, v{20+k}")
    a("s_waitcnt lgkmcnt(0)")
    a("v_readfirstlane_b32 s60, v34")
    a("s_cmp_eq_u32 s60, 0")
    a("s_cbranch_scc1 SCATTER")
    a(f"s_mov_b32 s{S_CAP}, {SLOWCAP}")
    a("s_waitcnt vmcnt(0)")
    a("s_barrier")
    a("s_branch ROUND")
    a.label("SCATTER")
    e_batch(2)
    for k in range(7):
        r = MREC + 4 * k
        a(f"s_mov_b64 exec, s[{S_MASK+2*k}:{S_MASK+2*k+1}]")
        a(f"ds_write_b32 v{20+k}, v{r}")
        a(f"ds_write_b64 v{r+1}, {vr(r+2,2)}")
    a("s_mov_b64 exec, -1")
    a(f"v_lshrrev_b32 v4, 4, v{LANE}")
    a("v_lshlrev_b32 v4, 3, v4")
    a(f"s_lshl_b32 s58, s{S_STEP0}, 5")
    a("v_add_u32 v4, s58, v4")
    a(f"v_bfe_u32 v5, v{LANE}, 2, 1")
    a("v_lshl_add_u32 v6, v5, 5, v4")
    a(f"v_and_b32 v5, 3, v{LANE}")
    a("v_lshl_add_u32 v6, v5, 1, v6")
    a(f"v_bfe_u32 v5, v{LANE}, 3, 1")
    a("v_add_u32 v6, v6, v5")
    a("v_lshlrev_b32 v6, 2, v6")
    a(f"v_add_u32 v6, {L_SA}, v6")
    a(f"v_bfe_u32 v5, v{LANE}, 1, 1")
    a("v_lshl_add_u32 v8, v5, 5, v4")
    a(f"v_and_b32 v5, 1, v{LANE}")
    a("v_lshl_add_u32 v8, v5, 2, v8")
    a(f"v_bfe_u32 v5, v{LANE}, 2, 2")
    a("v_add_u32 v8, v8, v5")
    a("v_lshlrev_b32 v8, 3, v8")
    a(f"v_add_u32 v8, {L_SB}, v8")
    a("s_waitcnt lgkmcnt(0)")
    a("s_barrier")
    e_batch(3)
    for s in range(10):
        a(f"ds_read_b32 v{M0R+s}, v6 offset:{256*s}")
        a(f"ds_read_b64 {vr(MBR+2*s,2)}, v8 offset:{512*s}")
    a(f"s_mov_b32 s{S_D}, 0")
    pfn = opt("pfn", 1)
    if pfn:
        a(f"s_sub_u32 s{S_EVT}, s{S_NEND}, {pfn}")
        a(f"s_max_i32 s{S_EVT}, s{S_EVT}, 0")
    else:
        a(f"s_mov_b32 s{S_EVT}, -2")
    a(f"s_mov_b32 s{S_PHASE}, 0")
    a(f"s_mov_b32 s{S_POFF}, 0")
    a(f"s_mov_b32 s{S_TAB0}, 0")
    a(f"s_mov_b32 s{S_TAB1}, 128")
    a(f"s_mov_b32 s{S_NODE}, s{S_NODE0}")
    a(f"v_readlane_b32 s{S_REM}, v{NST}, s{S_NODE}")
    stamp(a, 5)
    a("s_waitcnt lgkmcnt(0)")
    a("s_barrier")
    if PROF and not opt("egx", 0):
        a(f"s_mov_b32 s{S_PROF+12}, s{S_NS}")
        a(f"s_mov_b32 s{S_PROF+13}, s{S_NNW}")
    a(f"s_cmp_lg_u32 s{S_NNW}, 0")
    a("s_cbranch_scc1 START")
    a("s_waitcnt vmcnt(0)")
    a("s_barrier")
    stamp(a, 6)
    a("s_branch TAIL")
    a.label("START")
    pipeline_start(a)
    for rho in range(3):
        for p0, p1 in ((0, 1), (1, 0)):
            step_body(a, rho, True, p0, p1)
            step_body(a, rho, False, p0, p1)
            epilogue(a, (rho + 1) % 3, p1)
    for rho in range(3):
        step_body(a, rho, True, 0, 0)
        step_body(a, rho, False, 0, 0)

    a.label("TAIL")
    a("s_setprio 0")
    WF, PF, D = 0, 80, 188
    stamp(a, 8, late=True)
    a(f"v_lshlrev_b32 v{T0}, 4, v{LANE}")
    a(f"s_and_b32 s54, s{S_WAVE}, 1")
    a("s_mul_i32 s55, s54, 20480")
    a(f"s_add_u32 s55, s55, {WS_WSI - WS_WTAB}")
    a("s_waitcnt vmcnt(0)")
    for f in range(20):
        if f % 4 == 0 and f:
            a("s_add_u32 s55, s55, 4096")
        a(f"buffer_load_dwordx4 {vr(WF+4*f,4)}, v{T0}, s[{R_W}:{R_W+3}], s55 offen offset:{(f%4)*1024}")
    a("s_barrier")
    stamp(a, 9, late=True)
    a(f"s_lshl_b32 s55, s{S_WAVE}, 10")
    for k in range(10):
        if k == 9:
            a(f"s_cmp_ge_u32 s{S_WAVE}, 4")
            a("s_cbranch_scc1 NOP10")
        a("s_mov_b32 m0, s55")
        a(f"buffer_load_dwordx4 v{T0}, s[{R_P}:{R_P+3}], s55 offen sc1 lds")
        a("s_add_u32 s55, s55, 8192")
    a.label("NOP10")
    a(f"s_lshl_b32 s55, s{S_WAVE}, 13")
    a(f"s_cmp_eq_u32 s{S_R0}, 0")
    a("s_cbranch_scc1 ZEROD")
    for i in range(8):
        if i == 4:
            a("s_add_u32 s55, s55, 4096")
        a(f"buffer_load_dwordx4 {vr(D+4*i,4)}, v{T0}, s[{R_ACC}:{R_ACC+3}], s55 offen offset:{(i%4)*1024} sc1")
    a("s_branch HAVED")
    a.label("ZEROD")
    for i in range(32):
        a(f"v_mov_b32 v{D+i}, 0")
    a.label("HAVED")
    a(f"v_and_b32 v{T0+1}, 15, v{LANE}")
    a(f"s_lshr_b32 s56, s{S_WAVE}, 1")
    a("s_lshl_b32 s56, s56, 4")
    a(f"v_add_u32 v{T0+1}, s56, v{T0+1}")
    a(f"v_lshrrev_b32 v{T0+2}, 4, v{LANE}")
    a(f"v_lshlrev_b32 v{T0+2}, 4, v{T0+2}")
    a(f"v_mul_u32_u24 v{T0+3}, {P_NODE}, v{T0+1}")
    a(f"v_add_u32 v{T0+3}, v{T0+3}, v{T0+2}")
    a(f"v_lshl_add_u32 v{T0+4}, v{T0+1}, 9, v{T0+2}")
    a("s_lshl_b32 s54, s54, 6")
    a("s_waitcnt vmcnt(0)")
    a("s_barrier")
    stamp(a, 10, late=True)
    seq = []
    for comp, ts in enumerate(([P0, P1], [P2[0], P3[0], P4[0]], [P2[1], P3[1], P4[1]], [P2[2], P3[2], P4[2]])):
        for t in ts:
            for h in range(2):
                seq.append((comp, t, h))
    for i, (comp, t, h) in enumerate(seq):
        a(f"ds_read_b128 {vr(PF+4*i,4)}, v{T0+3} offset:{h*P_HALF + t*64}")
        if i == 14:
            a("s_waitcnt lgkmcnt(7)")
    for i, (comp, t, h) in enumerate(seq):
        if i >= 8:
            a(f"s_waitcnt lgkmcnt({21 - i})")
        for mt in range(2):
            d = vr(D + 8 * comp + 4 * mt, 4)
            a(f"v_mfma_f32_16x16x32_bf16 {d}, {vr(WF + 4*(10*mt + 2*TPATH[t] + h),4)}, {vr(PF+4*i,4)}, {d}")
    a(f"s_cmp_eq_u32 s{S_LAST}, 0")
    a("s_cbranch_scc1 MORE")
    for i in range(8):
        a(f"v_mul_f32 v{i}, 0xbfb8aa3b, v{D+i}")
    for i in range(8):
        a(f"v_exp_f32 v{i}, v{i}")
    for i in range(8):
        a(f"v_add_f32 v{i}, 1.0, v{i}")
    for i in range(8):
        a(f"v_rcp_f32 v{i}, v{i}")
    for comp in range(4):
        if comp:
            for i in range(8):
                a(f"v_mul_f32 v{D+8*comp+i}, v{D+8*comp+i}, v{i}")
        for i in range(4):
            a(f"v_cvt_pk_bf16_f32 v{8+4*comp+i}, v{D+8*comp+2*i}, v{D+8*comp+2*i+1}")
        a(f"buffer_store_dwordx4 {vr(8+4*comp,4)}, v{T0+4}, s[{R_OUT}:{R_OUT+3}], s54 offen offset:{128*comp}")
    if PROF:
        a("s_waitcnt vmcnt(0)")
    stamp(a, 11, late=True)
    stamp(a, 15, True)
    prof_dump(a, 98, 1, 3, S_WAVE)
    if PROF == 4:
        a("s_lshl_b32 s80, s2, 3")
        a(f"s_add_u32 s80, s80, s{S_WAVE}")
        a("s_lshl_b32 s80, s80, 8")
        a(f"s_add_u32 s80, s80, {WS_PROF + 0x200000}")
        srd(a, 4, 98, "s80", 256)
        a(f"v_lshlrev_b32 v0, 2, v{LANE}")
        a("buffer_store_dword v219, v0, s[4:7], 0 offen")
    if PROF == 3:
        a("s_load_dwordx2 s[54:55], s[0:1], 80")
        a("s_min_u32 s80, s2, 249")
        a("s_lshl_b32 s80, s80, 10")
        a(f"s_add_u32 s80, s80, {WS_PROF}")
        srd(a, 4, 98, "s80", 64)
        a("v_mov_b32 v0, 0")
        a("buffer_load_dword v2, v0, s[4:7], 0 offen")
        a("buffer_load_dword v3, v0, s[4:7], 0 offen offset:8")
        a("buffer_load_dword v4, v0, s[4:7], 0 offen offset:24")
        a("buffer_load_dword v5, v0, s[4:7], 0 offen offset:60")
        a("s_waitcnt vmcnt(0) lgkmcnt(0)")
        srd(a, 4, 54, 0, 256)
        a("v_not_b32 v2, v2")
        a("s_mov_b64 exec, 1")
        for i in range(4):
            a(f"buffer_atomic_umax v{2+i}, v0, s[4:7], 0 offen offset:{4*i}")
        a(f"v_not_b32 v2, s{S_PROF}")
        a("buffer_atomic_umax v2, v0, s[4:7], 0 offen offset:16")
        for i, st in enumerate((0, 2, 3, 4, 6, 7, 8, 9, 10, 15)):
            a(f"v_mov_b32 v{3+i}, s{S_PROF+st}")
            a(f"buffer_atomic_umax v{3+i}, v0, s[4:7], 0 offen offset:{20+4*i}")
    a("s_endpgm")
    a.label("MORE")
    a(f"s_lshl_b32 s55, s{S_WAVE}, 13")
    for i in range(8):
        if i == 4:
            a("s_add_u32 s55, s55, 4096")
        a(f"buffer_store_dwordx4 {vr(D+4*i,4)}, v{T0}, s[{R_ACC}:{R_ACC+3}], s55 offen offset:{(i%4)*1024}")
    a(f"s_add_u32 s{S_R0}, s{S_R0}, s{S_LEN}")
    a("s_waitcnt vmcnt(0)")
    a("s_barrier")
    a("s_branch ROUND")
    a.label("K2_end")
    a("s_endpgm")
    return a


def descriptor(name, nv, ns):
    return f""".amdhsa_kernel {name}
  .amdhsa_next_free_vgpr {nv}
  .amdhsa_next_free_sgpr {ns}
  .amdhsa_accum_offset {(nv + 3) // 4 * 4}
  .amdhsa_group_segment_fixed_size 0
  .amdhsa_kernarg_size 96
  .amdhsa_user_sgpr_count 2
  .amdhsa_user_sgpr_kernarg_segment_ptr 1
  .amdhsa_system_sgpr_workgroup_id_x 1
  .amdhsa_float_denorm_mode_32 3
.end_amdhsa_kernel
"""


def main():
    ref = open(os.path.join(os.path.dirname(os.path.abspath(__file__)), "..", "cdna_kernels", NAME + ".s.ref")).read()
    head = [l for l in ref.split("\n") if l.startswith(";") and "@launch" not in l and "Override" not in l
            and "grid=ceil" not in l]
    k1, k2 = "edge_sort_kernel", NAME + "_kernel"
    out = head + [
        f"; @launch kernel={k1} grid=(255,1,1) block=(1024,1,1) lds={K1_LDS}",
        f"; @launch kernel={k2} grid=(256,1,1) block=(512,1,1) lds={K2_LDS}",
        '.amdgcn_target "amdgcn-amd-amdhsa--gfx950"',
        ".text",
    ]
    for name, fn in ((k1, kernel1), (k2, kernel2)):
        lines, nops = fn().finish()
        print(name, "instructions:", len(lines), "nops inserted:", nops, file=sys.stderr)
        out += [f".globl {name}", ".p2align 8", f".type {name},@function", f"{name}:"] + lines
    out += ['.section .rodata,"a"', ".p2align 6", descriptor(k1, 96, 102), ".p2align 6", descriptor(k2, NVGPR, 102)]
    open(sys.argv[1], "w").write("\n".join(out))


if __name__ == "__main__":
    main()
```

```python
import os
import sys

sys.path.insert(0, os.path.dirname(os.path.abspath(__file__)))
from asmlib import Asm, vr, sr

NAME = "gather_scatter__tensor_product_equiv_equiformer__graph"
N, E = 12500, 800000
CHUNK, W = 3200, 250
NPB = 49
NBIN = 256

WS_TAB = 0
WS_WTAB = 0x40000
WS_WSI = 0x48000
WS_META = 0x100000
WS_XP = 0xB00000
WS_EP = 0x1200000
WS_P = 0x2B00000
P_NODE = 784
P_HALF = NPB * P_NODE
P_WG = 0x13000
WS_ACC = 0x4000000
XHALF = N * 256

OPT = dict(a.split("=") for a in sys.argv[2:] if "=" in a)


def opt(name, default):
    return type(default)(OPT.get(name, default))


PROF = opt("prof", 0)
WS_PROF = 0x6000000
S_PROF = 82


def stamp(a, i, real=False, late=False):
    if PROF == 5 and i not in (0, 15, 6, 9):
        return
    if PROF and not (late and PROF == 2):
        a("s_waitcnt lgkmcnt(0)")
        a(("s_memrealtime" if real or PROF in (3, 5) else "s_memtime") + " s[80:81]")
        a("s_waitcnt lgkmcnt(0)")
        a(f"s_mov_b32 s{S_PROF+i}, s80")
        if PROF == 4 and i == 7:
            a("s_memtime s[80:81]")


def prof_dump(a, wsreg, kern, nwave_shift, wavereg):
    if PROF:
        a(f"s_lshl_b32 s80, s2, {nwave_shift}")
        a(f"s_add_u32 s80, s80, s{wavereg}")
        a("s_lshl_b32 s80, s80, 6")
        a(f"s_add_u32 s80, s80, {WS_PROF + kern * 0x100000}")
        srd(a, 4, wsreg, "s80", 64)
        a("v_mov_b32 v0, 0")
        for i in range(16):
            if opt("egx", 0) and i in (10, 11, 12, 13, 14):
                continue
            a(f"v_mov_b32 v1, s{S_PROF+i}")
            a(f"buffer_store_dword v1, v0, s[4:7], 0 offen offset:{4*i}")


def srd(a, d, b, off, size):
    a(f"s_add_u32 s{d}, s{b}, {off}")
    a(f"s_addc_u32 s{d+1}, s{b+1}, 0")
    a(f"s_mov_b32 s{d+2}, {size}")
    a(f"s_mov_b32 s{d+3}, 0x20000")


def scan64(a, v):
    for sh in (1, 2, 4, 8):
        a(f"v_add_u32_dpp v{v}, v{v}, v{v} row_shr:{sh} row_mask:0xf bank_mask:0xf bound_ctrl:1")
    a(f"v_add_u32_dpp v{v}, v{v}, v{v} row_bcast:15 row_mask:0xa bank_mask:0xf")
    a(f"v_add_u32_dpp v{v}, v{v}, v{v} row_bcast:31 row_mask:0xc bank_mask:0xf")


K1_ERAW = 0
K1_MS = 102400
K1_INV = K1_MS + 38400
K1_HIST = K1_INV + 6400
K1_LDS = 152 * 1024


def kernel1():
    a = Asm()
    NT = " nt" if opt("k1nt", 1) else ""
    ST = {0: "", 1: " nt", 2: " sc1"}[opt("k1st", 2)]
    a("s_cmp_ge_u32 s2, 255")
    a("s_cbranch_scc1 K1_end")
    a("s_load_dwordx8 s[4:11], s[0:1], 0")
    a("s_load_dwordx8 s[52:59], s[0:1], 32")
    a("s_load_dwordx2 s[14:15], s[0:1], 88")
    a("v_lshlrev_b32 v1, 4, v0")
    a("v_mul_u32_u24 v2, 24, v0")
    a("v_and_b32 v3, 63, v0")
    a("v_lshlrev_b32 v3, 4, v3")
    a("v_lshrrev_b32 v40, 6, v0")
    a("v_readfirstlane_b32 s3, v40")
    a("s_cmp_ge_u32 s2, 250")
    a("s_cbranch_scc1 K1_prep")
    stamp(a, 0, True)
    stamp(a, 1)
    a("s_mul_i32 s60, s2, 12800")
    a("s_mul_i32 s61, s2, 19200")
    a("s_mul_i32 s62, s2, 25600")
    a("s_mul_i32 s63, s2, 102400")
    a("s_mul_i32 s64, s2, 38400")
    a("s_lshl_b32 s65, s2, 10")
    a("s_waitcnt lgkmcnt(0)")
    srd(a, 16, 52, "s60", 12800)
    a(f"buffer_load_dwordx4 v[4:7], v1, s[16:19], 0 offen{NT}")
    a("v_lshlrev_b32 v41, 2, v0")
    a("v_mov_b32 v42, 0")
    a("s_cmp_ge_u32 s3, 4")
    a("s_cbranch_scc1 K1_nozero")
    a(f"v_add_u32 v41, {K1_HIST}, v41")
    a("ds_write_b32 v41, v42")
    a.label("K1_nozero")
    srd(a, 20, 10, "s60", 12800)
    srd(a, 24, 6, "s61", 19200)
    srd(a, 28, 4, "s62", 25600)
    srd(a, 32, 8, "s63", 102400)
    a("s_mov_b32 s66, 16384")
    a("s_lshl_b32 s67, s3, 10")
    a("s_waitcnt lgkmcnt(0)")
    a("s_barrier")
    a(f"buffer_load_dwordx4 v[8:11], v1, s[20:23], 0 offen{NT}")
    RNT = NT if opt("rnt", 1) else ""
    a(f"buffer_load_dwordx4 v[12:15], v2, s[24:27], 0 offen{RNT}")
    a(f"buffer_load_dwordx2 v[16:17], v2, s[24:27], 0 offen offset:16{RNT}")
    if opt("k1b2", 1):
        a("s_barrier")
    a(f"buffer_load_dwordx4 v[20:23], v1, s[28:31], 0 offen{NT}")
    a(f"buffer_load_dwordx4 v[24:27], v1, s[28:31], s66 offen{NT}")
    for k in range(6):
        a("s_mov_b32 m0, s67")
        a(f"buffer_load_dwordx4 v3, s[32:35], s67 offen{NT} lds")
        a("s_add_u32 s67, s67, 16384")
    a("s_cmp_ge_u32 s3, 4")
    a("s_cbranch_scc1 K1_noe7")
    a("s_mov_b32 m0, s67")
    a(f"buffer_load_dwordx4 v3, s[32:35], s67 offen{NT} lds")
    a.label("K1_noe7")
    a("s_add_u32 s68, s64, %d" % WS_META)
    srd(a, 36, 14, "s68", 38400)
    a("s_add_u32 s68, s63, %d" % WS_EP)
    srd(a, 40, 14, "s68", 102400)
    srd(a, 44, 14, WS_XP, 2 * XHALF)
    srd(a, 48, 14, "s65", 1024)
    a("v_cmp_gt_u32 vcc, 800, v0")
    a("s_mov_b64 s[70:71], vcc")
    a("v_mov_b32 v43, 1")
    a("s_waitcnt vmcnt(11)")
    stamp(a, 2)
    a("s_mov_b64 exec, s[70:71]")
    a("s_cbranch_execz K1_skip_rank")
    for i in range(4):
        a(f"v_mul_u32_u24 v{28+i}, 21400, v{4+i}")
        a(f"v_lshrrev_b32 v{28+i}, 20, v{28+i}")
        a(f"v_mul_u32_u24 v{36+i}, 49, v{28+i}")
        a(f"v_sub_u32 v{36+i}, v{4+i}, v{36+i}")
        a(f"v_lshlrev_b32 v{28+i}, 2, v{28+i}")
        a(f"v_add_u32 v{28+i}, {K1_HIST}, v{28+i}")
        a(f"ds_add_rtn_u32 v{32+i}, v{28+i}, v43")
    a.label("K1_skip_rank")
    a("s_mov_b64 exec, -1")
    a("s_waitcnt lgkmcnt(0)")
    a("s_barrier")
    stamp(a, 3)
    a("s_cmp_lg_u32 s3, 0")
    a("s_cbranch_scc1 K1_noscan")
    a(f"v_add_u32 v41, {K1_HIST}, v3")
    a("ds_read_b128 v[44:47], v41")
    a("s_waitcnt lgkmcnt(0)")
    a("v_add_u32 v49, v44, v45")
    a("v_add_u32 v50, v49, v46")
    a("v_add_u32 v51, v50, v47")
    a("v_mov_b32 v52, v51")
    scan64(a, 52)
    a("v_sub_u32 v52, v52, v51")
    a("v_add_u32 v53, v52, v44")
    a("v_add_u32 v54, v52, v49")
    a("v_add_u32 v55, v52, v50")
    a("ds_write_b128 v41, v[52:55]")
    for i in range(4):
        a(f"v_lshl_or_b32 v{56+i}, v{44+i}, 16, v{52+i}")
    a("buffer_store_dwordx4 v[56:59], v3, s[48:51], 0 offen")
    a("s_waitcnt lgkmcnt(0)")
    a.label("K1_noscan")
    a("v_lshrrev_b32 v60, 5, v0")
    a("s_mul_i32 s69, s2, 50")
    a("v_add_u32 v60, s69, v60")
    a("v_lshlrev_b32 v60, 8, v60")
    a("v_bfe_u32 v61, v0, 3, 2")
    a("v_lshl_add_u32 v60, v61, 6, v60")
    a("v_and_b32 v61, 3, v0")
    a("v_lshl_add_u32 v60, v61, 4, v60")
    a("v_bfe_u32 v61, v0, 2, 1")
    a(f"v_mul_u32_u24 v61, {XHALF}, v61")
    a("v_add_u32 v60, v60, v61")
    a("v_add_u32 v61, 8192, v60")
    a("v_cmp_gt_u32 vcc, 576, v0")
    a("v_mov_b32 v62, 0x80000000")
    a("v_cndmask_b32 v61, v62, v61, vcc")
    a("s_barrier")
    a("s_mov_b64 exec, s[70:71]")
    a("s_cbranch_execz K1_skip_scatter")
    for i in range(4):
        a(f"ds_read_b32 v{28+i}, v{28+i}")
    a("s_waitcnt vmcnt(8)")
    a("s_mov_b32 s72, 0x80000000")
    a("s_mov_b32 s73, 0xffff0000")
    for i in range(4):
        a(f"v_lshl_or_b32 v{8+i}, v{8+i}, 8, v{36+i}")
        a(f"v_or_b32 v{8+i}, s72, v{8+i}")
    a("v_lshlrev_b32 v44, 16, v13")
    a("v_alignbit_b32 v45, v14, v13, 16")
    a("v_and_b32 v46, s73, v14")
    a("v_lshlrev_b32 v47, 16, v16")
    a("v_alignbit_b32 v48, v17, v16, 16")
    a("v_and_b32 v49, s73, v17")
    w1 = [12, 45, 15, 48]
    w2 = [44, 46, 47, 49]
    a("v_lshlrev_b32 v50, 2, v0")
    a("s_waitcnt lgkmcnt(0)")
    for i in range(4):
        a(f"v_add_u32 v{32+i}, v{32+i}, v{28+i}")
        a(f"v_mul_u32_u24 v{28+i}, 12, v{32+i}")
        a(f"v_add_u32 v{28+i}, {K1_MS}, v{28+i}")
        a(f"ds_write2_b32 v{28+i}, v{8+i}, v{w1[i]} offset0:0 offset1:1")
        a(f"ds_write_b32 v{28+i}, v{w2[i]} offset:8")
        a(f"v_lshlrev_b32 v{32+i}, 1, v{32+i}")
        a(f"v_add_u32 v{32+i}, {K1_INV}, v{32+i}")
        a(f"v_add_u32 v{52+i}, {i}, v50")
        a(f"ds_write_b16 v{32+i}, v{52+i}")
    a.label("K1_skip_scatter")
    a("s_mov_b64 exec, -1")
    a("s_waitcnt vmcnt(6)")
    a(f"buffer_store_dwordx4 v[20:23], v60, s[44:47], 0 offen{ST}")
    a(f"buffer_store_dwordx4 v[24:27], v61, s[44:47], 0 offen{ST}")
    a("s_waitcnt lgkmcnt(0)")
    a("s_barrier")
    stamp(a, 4)
    a(f"v_add_u32 v41, {K1_MS}, v1")
    a("ds_read_b128 v[4:7], v41")
    a("ds_read_b128 v[8:11], v41 offset:16384")
    a("ds_read_b128 v[12:15], v41 offset:32768")
    a("v_and_b32 v42, 0x3fe, v0")
    a(f"v_add_u32 v42, {K1_INV}, v42")
    for k in range(7):
        a(f"ds_read_u16 v{28+k}, v42 offset:{1024*k}")
    a("v_and_b32 v43, 1, v0")
    a("v_lshlrev_b32 v43, 4, v43")
    a("s_mov_b32 s74, 32768")
    a("s_waitcnt lgkmcnt(7)")
    a(f"buffer_store_dwordx4 v[4:7], v1, s[36:39], 0 offen{ST}")
    a(f"buffer_store_dwordx4 v[8:11], v1, s[36:39], s66 offen{ST}")
    a(f"buffer_store_dwordx4 v[12:15], v1, s[36:39], s74 offen{ST}")
    a("s_waitcnt lgkmcnt(0)")
    for k in range(7):
        a(f"v_lshl_add_u32 v{28+k}, v{28+k}, 5, v43")
    stamp(a, 5)
    a("s_waitcnt vmcnt(5)")
    a("s_barrier")
    stamp(a, 6)
    for k in range(6):
        a(f"ds_read_b128 v[{64+4*k}:{67+4*k}], v{28+k}")
    a("s_mov_b32 s75, 0")
    for k in range(6):
        a(f"s_waitcnt lgkmcnt({5-k})")
        a(f"buffer_store_dwordx4 v[{64+4*k}:{67+4*k}], v1, s[40:43], s75 offen{ST}")
        a("s_add_u32 s75, s75, 16384")
    a("s_cmp_ge_u32 s3, 4")
    a("s_cbranch_scc1 K1_fin")
    a("ds_read_b128 v[88:91], v34")
    a("s_waitcnt lgkmcnt(0)")
    a(f"buffer_store_dwordx4 v[88:91], v1, s[40:43], s75 offen{ST}")
    a.label("K1_fin")
    stamp(a, 7)
    if PROF:
        a("s_waitcnt vmcnt(0)")
    stamp(a, 8)
    stamp(a, 15, True)
    prof_dump(a, 14, 0, 4, 3)
    a("s_endpgm")

    a.label("K1_prep")
    a("s_waitcnt lgkmcnt(0)")
    srd(a, 16, 54, 0, 16 * 320 * 2)
    srd(a, 20, 56, 0, 128 * 64 * 2)
    srd(a, 24, 58, 0, 192 * 64 * 2)
    srd(a, 28, 14, WS_WTAB, 20480)
    srd(a, 32, 14, WS_WSI, 40960)
    if opt("cpf", 0) & 2:
        a("s_getpc_b64 s[36:37]")
        a.label("K1_here")
        a("s_mov_b32 s38, K2_end-K1_here")
        a("s_mov_b32 s39, 0x20000")
        a("v_lshlrev_b32 v60, 7, v0")
        a("buffer_load_dword v61, v60, s[36:39], 0 offen")
    a("s_sub_u32 s60, s2, 250")
    a("s_lshl_b32 s60, s60, 10")
    a("v_add_u32 v4, s60, v0")
    a("v_and_b32 v5, 3, v4")
    a("v_bfe_u32 v6, v4, 2, 4")
    a("v_bfe_u32 v7, v4, 6, 2")
    a("v_lshrrev_b32 v8, 8, v4")
    a("v_cmp_le_u32 vcc, 10, v8")
    a("v_cndmask_b32 v9, 0, 1, vcc")
    a("v_mul_u32_u24 v10, 10, v9")
    a("v_sub_u32 v10, v8, v10")
    a("v_lshl_add_u32 v11, v7, 2, v5")
    a("v_mul_u32_u24 v11, 320, v11")
    a("v_lshrrev_b32 v12, 1, v10")
    a("v_lshl_add_u32 v11, v12, 6, v11")
    a("v_lshl_add_u32 v11, v9, 5, v11")
    a("v_and_b32 v12, 1, v10")
    a("v_lshl_add_u32 v11, v12, 4, v11")
    a("v_add_u32 v11, v11, v6")
    a("v_lshlrev_b32 v11, 1, v11")
    a("buffer_load_ushort v13, v11, s[16:19], 0 offen")
    a("v_mov_b32 v30, 0x80000000")
    for t in range(2):
        b = 32 + 8 * t
        a(f"v_add_u32 v14, {20*t}, v8")
        a("v_mul_u32_u24 v15, 26, v14")
        a("v_lshrrev_b32 v15, 8, v15")
        a("v_mul_u32_u24 v16, 10, v15")
        a("v_sub_u32 v16, v14, v16")
        a("v_lshrrev_b32 v17, 1, v16")
        a("v_and_b32 v18, 1, v16")
        a("v_lshl_add_u32 v19, v7, 2, v5")
        a("v_lshl_add_u32 v19, v18, 5, v19")
        a("v_lshl_add_u32 v19, v17, 6, v19")
        a("v_lshrrev_b32 v20, 1, v15")
        a("v_and_b32 v21, 1, v15")
        a("v_lshrrev_b32 v22, 2, v6")
        a("v_lshlrev_b32 v22, 3, v22")
        a("v_lshl_add_u32 v22, v20, 5, v22")
        a("v_lshl_add_u32 v22, v21, 2, v22")
        a("v_and_b32 v23, 3, v6")
        a("v_add_u32 v22, v22, v23")
        a("v_lshl_add_u32 v22, v19, 6, v22")
        a("v_lshlrev_b32 v22, 1, v22")
        a("v_subrev_u32 v23, 16384, v22")
        a("v_cmp_gt_u32 vcc, 2, v17")
        a("v_cndmask_b32 v24, v30, v22, vcc")
        a("v_cndmask_b32 v25, v23, v30, vcc")
        a(f"buffer_load_ushort v{b}, v24, s[20:23], 0 offen")
        a(f"buffer_load_ushort v{b+1}, v24, s[20:23], 0 offen offset:2048")
        a(f"buffer_load_ushort v{b+2}, v25, s[24:27], 0 offen")
        a(f"buffer_load_ushort v{b+3}, v25, s[24:27], 0 offen offset:2048")
    a("v_lshlrev_b32 v4, 2, v4")
    a("s_mov_b32 s61, 20480")
    a("s_waitcnt vmcnt(0)")
    a("v_lshlrev_b32 v13, 16, v13")
    a("buffer_store_dword v13, v4, s[28:31], 0 offen")
    for t in range(2):
        b = 32 + 8 * t
        a(f"v_or_b32 v{b}, v{b}, v{b+2}")
        a(f"v_or_b32 v{b+1}, v{b+1}, v{b+3}")
        a(f"v_lshl_or_b32 v{b}, v{b+1}, 16, v{b}")
        a(f"buffer_store_dword v{b}, v4, s[32:35], {'0' if t == 0 else 's61'} offen")
    a.label("K1_end")
    a("s_endpgm")
    return a


CAP = 3392
SLOWCAP = 256
MAXSTEPS = 142
MAXWSTEPS = 20
L_E = 0
L_RING = 32 + CAP * 32
RING_W = 6336
SUBB = 2112
L_SA = L_RING
L_SB = L_SA + MAXSTEPS * 128
L_MISC = L_SB + MAXSTEPS * 256
L_CNT = L_MISC
L_FLAG = L_MISC + 256
L_WSUM = L_MISC + 272
L_DUMMY = L_WSUM + 16
K2_LDS = 163840
assert L_DUMMY + 256 <= K2_LDS and L_RING + 8 * RING_W <= L_MISC

ACC = 0
WR = 88
B0 = 128
B1 = 144
GS, G0, G1, G2, N0, N2 = 160, 164, 168, 172, 176, 180
SEL = 184
M0R = 188
MBR = 198
GSP = (160, 252)
Y = 220
REP = 223
XA = 224
XOFF, QQ8, BAE, BAO, POFF, NST = 228, 230, 231, 232, 233, 234
U, PT, T8, EA = 236, 244, 235, 248
T0 = 236
TID, LANE = 250, 251
NVGPR = 256
XBIAS = 2048

S_WAVE = 3
R_XP, R_EP, R_MT, R_TB, R_P, R_W, R_OUT, R_ACC = 4, 8, 12, 16, 20, 24, 28, 32
S_NN, S_T, S_R0, S_LEN, S_CAP = 36, 37, 38, 39, 40
S_NODE0, S_NNW, S_STEP0, S_NS = 41, 42, 43, 44
S_D, S_REM, S_NODE, S_PHASE, S_TAB0, S_TAB1, S_RB, S_POFF = 45, 46, 47, 48, 49, 50, 51, 52
S_HI, S_SGN = 100, 101
S_MASK = 64
S_LAST = 78
S_NEND = 79
S_EM0 = 53
S_EVT = 59

TPATH = [0, 1, 2, 2, 2, 3, 3, 3, 4, 4, 4]
P0, P1 = 0, 1
P2 = [2, 3, 4]
P3 = [5, 6, 7]
P4 = [8, 9, 10]


def acc(t, cq):
    return ACC + 4 * (2 * t + cq)


def mfma_list():
    out = []
    for t, A, B, fl in ((P2[0], G0, B0, 1), (P1, G0, B0 + 8, 1), (P0, GS, B0, 1), (P3[0], GS, B0 + 8, 1),
                        (P2[2], G2, B0, 1), (P4[1], G2, B0 + 8, 1), (P2[1], G1, B0, 1), (P4[2], G1, B0 + 8, 1),
                        (P4[2], N0, B1, 0), (P4[1], N0, B1 + 8, 0), (P3[1], GS, B1, 1), (P3[2], GS, B1 + 8, 1),
                        (P4[0], N2, B1, 1), (P1, G2, B1 + 8, 0), (P1, G1, B1, 0), (P4[0], G1, B1 + 8, 0)):
        for cq in range(2):
            out.append((t, cq, A, B + 4 * cq, fl))
    return out


def emit_mfma(a, m, first, p0):
    t, cq, A, B, fl = m
    if A == GS:
        A = GSP[p0]
    if opt("nomfma", 0):
        return
    d = vr(acc(t, cq), 4)
    c = "0" if (first and fl) else d
    a(f"v_mfma_f32_16x16x32_bf16 {d}, {vr(A,4)}, {vr(B,4)}, {c}")


def b_reads(k, pos):
    B = B0 if k < 2 else B1
    hf = k & 1
    return [f"ds_read_b64_tr_b16 {vr(B + 4*u + 2*hf, 2)}, v{BAE if u % 2 == 0 else BAO} offset:{pos*SUBB + u*32}"
            for u in range(4)]


def vmwait(n):
    return [] if opt("nowait", 0) else [f"s_waitcnt vmcnt({n})"]


def dma(k, pos):
    if opt("nodma", 0):
        return [[], [], []]
    hf, bp = k & 1, k >> 1
    so = S_TAB0 if bp == 0 else S_TAB1
    pol = ["", " sc1", " nt", " sc0 sc1", " sc0"][opt("xpol", 0)]
    return [[f"s_add_u32 m0, s{S_RB}, {pos*SUBB}"],
            [f"buffer_load_dwordx4 v{XA + 2*hf}, s[{R_XP}:{R_XP+3}], s{so} offen{pol} lds"],
            [f"buffer_load_dwordx4 v{XA + 2*hf + 1}, s[{R_XP}:{R_XP+3}], s{so} offen offset:1088{pol} lds"]]


W0_FETCH = [f"s_lshr_b32 s54, s{S_D}, 1",
            "s_set_gpr_idx_on s54, gpr_idx(SRC0)",
            f"v_mov_b32 v{REP}, v{M0R}",
            "s_set_gpr_idx_off"]
W0_REP = [f"v_mov_b32_dpp v{REP}, v{REP} row_shr:4 row_mask:0xf bank_mask:0xa",
          f"v_mov_b32_dpp v{REP}, v{REP} row_shl:4 row_mask:0xf bank_mask:0x5"]
WRAP = [f"s_mov_b32 s{S_D}, 0",
        f"s_add_u32 s{S_TAB0}, s{S_TAB0}, {XHALF}",
        f"s_add_u32 s{S_TAB1}, s{S_TAB1}, {XHALF}"]


def x_addr(q):
    return f"v_add_u32_dpp v{XA+q}, v{REP}, v{XOFF + (q & 1)} quad_perm:[{q},{q},{q},{q}] row_mask:0xf bank_mask:0xf"


META_SET = [f"s_set_gpr_idx_on s{S_D}, gpr_idx(SRC1)",
            f"v_mad_u32_u16 v{T8}, 8, v{MBR+1}, 0",
            f"v_lshlrev_b32 v{Y}, 16, v{MBR}",
            f"v_and_b32 v{Y+1}, s{S_HI}, v{MBR}",
            f"v_and_b32 v{Y+2}, s{S_HI}, v{MBR+1}",
            "s_set_gpr_idx_off"]


def e_addr(p):
    return [f"v_add_u32_dpp v{EA+h}, v{T8}, v{QQ8} quad_perm:[{2*p+h},{2*p+h},{2*p+h},{2*p+h}] "
            "row_mask:0xf bank_mask:0xf" for h in range(2)]


def e_reads(dst):
    return [f"ds_read_b64_tr_b16 {vr(dst + 2*h, 2)}, v{EA+h}" for h in range(2)]


def unpack_valu(aa, p):
    return [f"v_lshlrev_b32 v{U+2*aa}, 16, v{GSP[p]+aa}", f"v_and_b32 v{U+2*aa+1}, s{S_HI}, v{GSP[p]+aa}"]


def gb(j, aa, p):
    if opt("nog", 0):
        return []
    hf, rl = aa >> 1, 2 * (aa & 1)
    pl = PT + 2 * (aa & 1)
    return [f"v_mul_f32_dpp v{pl}, v{Y+j}, v{U+2*aa} row_newbcast:{4*rl+2*p+hf} row_mask:0xf bank_mask:0xf",
            f"v_mul_f32_dpp v{pl+1}, v{Y+j}, v{U+2*aa+1} row_newbcast:{4*rl+4+2*p+hf} row_mask:0xf bank_mask:0xf",
            f"v_cvt_pk_bf16_f32 v{(G0, G1, G2)[j]+aa}, v{pl}, v{pl+1}"]


def neg(dst, src):
    return [f"v_xor_b32 v{dst+i}, s{S_SGN}, v{src+i}" for i in range(4)]


def body_name(rho, first, p0, p1):
    return f"S{rho}{'f' if first else 'n'}{p0}{p1}"


def goto_next(a, rho, first, p1):
    if p1 == 1:
        a(f"s_branch {body_name(rho, first, 1, 0)}")
    else:
        a(f"s_cmp_lg_u32 s{S_D}, 0")
        a(f"s_cbranch_scc1 {body_name(rho, first, 0, 1)}")
        a(f"s_branch {body_name(rho, first, 0, 0)}")


def step_body(a, rho, first, p0, p1):
    tag = body_name(rho, first, p0, p1)
    x = 3 if first else 0
    p = lambda k: (rho + k) % 3
    F = [[] for _ in range(32)]
    cold = []

    def spread(slot, lst, per=2):
        for i, l in enumerate(lst):
            F[slot + i // per].append(l)

    def event(slot, n, k, pos):
        r = b_reads(k, pos)
        F[slot] += vmwait(n) + r[:2]
        F[slot + 1] += r[2:]

    def refill(slot, k, pos):
        d = dma(k, pos)
        F[slot - 1] += d[0]
        F[slot] += ["s_waitcnt lgkmcnt(0)"] + d[1]
        F[slot + 1] += d[2]

    n0, n2 = neg(N0, G0), neg(N2, G2)
    spread(0, gb(2, 2, p0) + gb(2, 3, p0) + gb(1, 0, p0) + gb(1, 1, p0) + gb(1, 2, p0) + gb(1, 3, p0))
    event(0, 4 + x, 2, p(2))
    refill(4, 1, p(2))
    event(8, 4 + x, 3, p(0))
    if p1 == 0:
        F[9] += META_SET
        spread(10, n0[:2] + e_addr(p1))
        spread(13, n0[2:] + n2)
    else:
        spread(9, n0[:2] + e_addr(p1) + n0[2:])
        spread(13, n2)
    refill(12, 2, p(0))
    q1 = 1 - p0
    F[13] += e_reads(GSP[q1])
    event(16, 4 + x, 0, p(1))
    F[17] += ["s_waitcnt lgkmcnt(4)"]
    spread(17, unpack_valu(0, q1) + unpack_valu(1, q1) + unpack_valu(2, q1) + unpack_valu(3, q1))
    refill(20, 3, p(1))
    F[21] += [f"s_add_u32 s{S_D}, s{S_D}, 1", f"s_cmp_lt_u32 s{S_D}, s{S_NS}", f"s_cbranch_scc0 {tag}_w"]
    if p1 == 1:
        F[21] += [f"{tag}_b:"] + W0_FETCH
        F[22] += [W0_REP[0]]
        cold += [f"{tag}_w:"] + WRAP + [f"s_branch {tag}_b"]
    else:
        F[21] += W0_FETCH + [W0_REP[1], f"{tag}_b:"]
        cold += [f"{tag}_w:"] + WRAP + W0_FETCH + [W0_REP[0], f"s_branch {tag}_b"]
    g = gb(0, 0, p1) + gb(0, 1, p1) + gb(0, 2, p1) + gb(0, 3, p1) + gb(2, 0, p1) + gb(2, 1, p1)
    spread(22, g[:1] + [None], 2)
    spread(23, g[1:3])
    spread(24, [x_addr(0), g[3], x_addr(1), g[4]] + g[5:9] + [x_addr(2), g[9], x_addr(3)], 2)
    spread(28, g[10:12], 1)
    spread(29, g[12:], 2)
    if q1 != p1:
        F[24] += [f"v_mov_b32 v{GSP[p1]+i}, v{GSP[q1]+i}" for i in range(4)]
    event(24, 4, 1, p(2))
    refill(28, 0, p(2))
    F[31] += [f"s_sub_u32 s{S_REM}, s{S_REM}, 1"]
    if PROF == 4:
        F[29] += ["s_memtime s[80:81]"]
        F[6] += ["s_mov_b32 m0, s96", "s_add_u32 s96, s96, 1", "v_writelane_b32 v219, s80, m0"]
    a.label(tag)
    for i, m in enumerate(mfma_list()):
        emit_mfma(a, m, first, p0)
        for l in F[i]:
            if l is None:
                continue
            if opt("nods", 0) and (l.startswith("ds_") or l.startswith("s_waitcnt lgkm")):
                continue
            if opt("novalu", 0) and l.startswith("v_") and not l.startswith(("v_writelane", "v_mfma")):
                continue
            if opt("nolgkm", 0) and l.startswith("s_waitcnt lgkm"):
                continue
            if opt("nounp", 0) and l.startswith("v_mfma"):
                continue
            if opt("nodpp", 0) and l.startswith("v_mul_f32_dpp"):
                l = l.replace("_dpp", "").split(" row_")[0]
            if opt("nocvt", 0) and l.startswith("v_cvt"):
                l = l.replace("v_cvt_pk_bf16_f32", "v_and_b32")
            if opt("noidx", 0) and l.startswith(("s_set_gpr", "s_lshr")):
                continue
            a(l)
    nr = (rho + 1) % 3
    if p1 == 1:
        a(f"s_cbranch_scc0 {body_name(nr, False, 1, 0)}")
        a(f"s_branch EP{nr}{p1}")
    else:
        a(f"s_cbranch_scc1 EP{nr}{p1}")
        goto_next(a, nr, False, p1)
    for l in cold:
        a(l)


def load_w(a, h):
    a(f"s_mov_b32 s57, {10240*h}")
    a(f"v_lshlrev_b32 v67, 4, v{LANE}")
    for pc in range(10):
        if pc % 4 == 0 and pc:
            a("s_add_u32 s57, s57, 4096")
        a(f"buffer_load_dwordx4 {vr(WR+4*pc,4)}, v67, s[{R_W}:{R_W+3}], s57 offen offset:{(pc%4)*1024}")


def pipeline_start(a):
    def run(lst):
        for l in lst:
            a(l)

    def dma_now(k, pos):
        for g in dma(k, pos):
            run(g)

    run(W0_FETCH + [W0_REP[0]] + [x_addr(q) for q in range(4)])
    dma_now(0, 0)
    dma_now(1, 1)
    dma_now(2, 2)
    run(META_SET + e_addr(0))
    a(f"s_waitcnt vmcnt({0 if opt('nodma', 0) else 6})")
    a("s_barrier")
    stamp(a, 6)
    run(e_reads(GSP[0]))
    run(["s_waitcnt vmcnt(4)"] + b_reads(0, 0) + ["s_waitcnt lgkmcnt(0)"])
    dma_now(3, 0)
    for aa in range(4):
        run(unpack_valu(aa, 0))
    run([f"s_mov_b32 s{S_D}, 1", f"s_cmp_lt_u32 s{S_D}, s{S_NS}", "s_cbranch_scc0 I_w"] + W0_FETCH + [W0_REP[1]])
    a("s_branch I_b")
    run(["I_w:"] + WRAP + W0_FETCH + [W0_REP[0], "I_b:"])
    run([x_addr(q) for q in range(4)])
    run(["s_waitcnt vmcnt(4)"] + b_reads(1, 1))
    run(gb(0, 0, 0) + gb(0, 1, 0) + gb(0, 2, 0) + gb(0, 3, 0) + gb(2, 0, 0) + gb(2, 1, 0))
    if PROF == 4:
        a("s_memtime s[80:81]")
        a("s_mov_b32 s96, 0")
        a("v_mov_b32 v219, 0")
    a("s_waitcnt lgkmcnt(0)")
    dma_now(0, 1)
    load_w(a, 0)
    if opt("prio", 1):
        a(f"s_cmp_lt_u32 s{S_WAVE}, 4")
        a("s_cbranch_scc1 I_p")
        a("s_setprio 1")
        a.label("I_p")
    goto_next(a, 0, True, 0)


def epilogue(a, rho, p1):
    tag = f"EP{rho}{p1}"
    a.label(tag)
    order = [P2[0], P0, P3[0], P2[2], P2[1], P4[2], P4[1], P3[1], P3[2], P1, P4[0]]
    book = [f"s_mul_i32 s55, s{S_NODE}, {P_NODE}",
            f"s_add_u32 s55, s55, s{S_POFF}",
            f"s_add_u32 s{S_NODE}, s{S_NODE}, 1",
            f"s_cmp_lt_u32 s{S_NODE}, s{S_NEND}",
            f"s_cselect_b32 s56, s{S_NODE}, -2",
            f"s_cselect_b32 s{S_NODE}, s{S_NODE}, s{S_NODE0}",
            f"v_readlane_b32 s{S_REM}, v{NST}, s{S_NODE}",
            f"s_cmp_ge_u32 s56, s{S_EVT}"]
    if opt("prio", 1):
        a(f"s_cmp_lt_u32 s{S_WAVE}, 4")
        a(f"s_cbranch_scc0 {tag}_p")
        a(f"s_setprio {2 if int(opt('prpat', '110110')[2 * rho + p1]) else 0}")
        a.label(f"{tag}_p")
    for t in (order if opt("noep", 0) < 2 else []):
        pth = TPATH[t]
        for r in range(0 if opt("noep", 0) else 4):
            for cq in range(2):
                d, w = acc(t, cq), WR + 4 * (2 * pth + cq)
                if r == 0:
                    a(f"v_mul_f32 v{d}, v{d}, v{w}")
                else:
                    a(f"v_fmac_f32 v{d}, v{d+r}, v{w+r}")
        n = "-" if t == P4[2] else ""
        a(f"v_cvt_pk_bf16_f32 v{B1+t}, {n}v{acc(t,0)}, {n}v{acc(t,1)}")
        if t == P0:
            a(f"v_mov_b32 v{B1+11}, 0")
        if t == P1:
            a(f"v_mfma_f32_16x16x32_bf16 {vr(20,4)}, {vr(SEL,4)}, {vr(B1+4,4)}, 0")
    a(book[0])
    a(f"v_mfma_f32_16x16x32_bf16 {vr(16,4)}, {vr(SEL,4)}, {vr(B1,4)}, 0")
    a(f"v_mfma_f32_16x16x32_bf16 {vr(24,4)}, {vr(SEL,4)}, {vr(B1+8,4)}, 0")
    a(f"v_cvt_pk_bf16_f32 v65, v20, v21")
    for l in book[1:]:
        a(l)
    a(f"buffer_store_dword v65, v{POFF}, s[{R_P}:{R_P+3}], s55 offen offset:256")
    for i in (0, 2):
        a(f"v_cvt_pk_bf16_f32 v{64+i}, v{16+4*i}, v{17+4*i}")
    for i in (0, 2):
        a(f"buffer_store_dword v{64+i}, v{POFF}, s[{R_P}:{R_P+3}], s55 offen offset:{256*i}")
    if opt("egx", 0):
        a("s_cselect_b32 s57, 1, 0")
        a(f"s_cmp_lg_u32 s{S_PHASE}, 0")
        a(f"s_cbranch_scc1 {tag}_noeg")
        for i in range(2):
            a("v_mul_lo_u32 v218, v218, s97")
            a("v_add_u32 v218, 12345, v218")
            a("v_mul_hi_u32 v67, v218, s96")
            a("v_lshlrev_b32 v67, 5, v67")
            a(f"s_mov_b32 m0, {L_DUMMY}")
            a(f"buffer_load_dword v67, s[92:95], 0 offen{['', ' nt', ' sc1'][opt('egx', 0) - 1]} lds")
        a.label(f"{tag}_noeg")
        a("s_cmp_lg_u32 s57, 0")
    a(f"s_cbranch_scc1 {tag}_evt")
    a.label(f"{tag}_go")
    goto_next(a, rho, True, p1)
    a.label(f"{tag}_evt")
    a("s_cmp_eq_u32 s56, -2")
    a(f"s_cbranch_scc1 {tag}_end")
    a(f"s_mov_b32 s{S_EVT}, -2")
    a("s_and_b32 s54, s2, 31")
    a("s_lshl_b32 s54, s54, 3")
    a(f"s_add_u32 s54, s54, s{S_WAVE}")
    a(f"s_mul_i32 s54, s54, {98*128}")
    a(f"s_add_u32 s54, s54, {XHALF + XBIAS}")
    a(f"v_lshlrev_b32 v67, 7, v{LANE}")
    a(f"s_mov_b32 m0, {L_DUMMY}")
    a(f"buffer_load_dword v67, s[{R_XP}:{R_XP+3}], s54 offen lds")
    a(f"s_branch {tag}_go")
    a.label(f"{tag}_end")
    a(f"s_cmp_lg_u32 s{S_PHASE}, 0")
    a("s_cbranch_scc1 TAIL")
    stamp(a, 7, late=True)
    a(f"s_mov_b32 s{S_EVT}, -2")
    a(f"s_mov_b32 s{S_PHASE}, 1")
    a(f"s_mov_b32 s{S_POFF}, {P_HALF}")
    load_w(a, 1)
    a(f"s_branch {tag}_go")


def kernel2():
    a = Asm()
    a("s_cmp_ge_u32 s2, 256")
    a("s_cbranch_scc1 K2_end")
    if opt("xcdmap", 1) == 2:
        a("s_load_dwordx2 s[54:55], s[0:1], 80")
        a("s_getreg_b32 s58, hwreg(HW_REG_XCC_ID, 0, 3)")
        a("v_lshrrev_b32 v1, 6, v0")
        a("v_readfirstlane_b32 s3, v1")
        a(f"v_mov_b32 v3, {L_WSUM}")
        a("s_cmp_lg_u32 s3, 0")
        a("s_cbranch_scc1 CLAIMED")
        a("s_waitcnt lgkmcnt(0)")
        srd(a, 4, 54, 0, 256)
        a("s_mov_b64 exec, 1")
        a.label("CLAIM")
        a("v_mov_b32 v1, 1")
        a("s_lshl_b32 s59, s58, 5")
        a("v_mov_b32 v2, s59")
        a("buffer_atomic_add v1, v2, s[4:7], 0 offen sc0")
        a("s_add_u32 s58, s58, 1")
        a("s_and_b32 s58, s58, 7")
        a("s_waitcnt vmcnt(0)")
        a("v_readfirstlane_b32 s60, v1")
        a("s_cmp_ge_u32 s60, 32")
        a("s_cbranch_scc1 CLAIM")
        a("v_add_u32 v1, v1, v2")
        a("ds_write_b32 v3, v1")
        a("s_mov_b64 exec, -1")
        a.label("CLAIMED")
        a("s_waitcnt lgkmcnt(0)")
        a("s_barrier")
        a("ds_read_b32 v1, v3")
        a("s_waitcnt lgkmcnt(0)")
        a("v_readfirstlane_b32 s2, v1")
        a("s_and_b32 s2, s2, 255")
        a("s_barrier")
    if opt("xcdmap", 1) == 1:
        a("s_and_b32 s3, s2, 7")
        a("s_lshl_b32 s3, s3, 5")
        a("s_lshr_b32 s2, s2, 3")
        a("s_or_b32 s2, s2, s3")
    a(f"v_mov_b32 v{TID}, v0")
    a(f"s_mov_b32 s{S_R0}, 0")
    a(f"s_mov_b32 s{S_CAP}, {CAP}")
    stamp(a, 0, True)
    stamp(a, 1)
    a.label("ROUND")
    a("s_load_dwordx2 s[56:57], s[0:1], 88")
    a("s_load_dwordx2 s[54:55], s[0:1], 72")
    a(f"v_and_b32 v2, 255, v{TID}")
    a("v_lshlrev_b32 v3, 10, v2")
    a(f"v_and_b32 v{LANE}, 63, v{TID}")
    a(f"v_lshrrev_b32 v1, 6, v{TID}")
    a(f"v_readfirstlane_b32 s{S_WAVE}, v1")
    a("s_lshl_b32 s58, s2, 2")
    a("s_cmp_eq_u32 s2, 255")
    a(f"s_cselect_b32 s{S_NN}, {N - 255*NPB}, {NPB}")
    a("s_waitcnt lgkmcnt(0)")
    srd(a, R_TB, 56, WS_TAB, W * 1024)
    a(f"buffer_load_dword v20, v3, s[{R_TB}:{R_TB+3}], s58 offen")
    if opt("cpf", 0) & 1:
        a("s_getpc_b64 s[60:61]")
        a.label("K2_here")
        a("s_mov_b32 s62, K2_end-K2_here")
        a("s_mov_b32 s63, 0x20000")
        a(f"v_lshlrev_b32 v21, 7, v{TID}")
        a("buffer_load_dword v75, v21, s[60:63], 0 offen")
    if PROF:
        a("s_mov_b64 s[98:99], s[56:57]")
    if opt("egx", 0):
        a("s_load_dwordx2 s[92:93], s[0:1], 16")
        a("s_mov_b32 s94, 25600000")
        a("s_mov_b32 s95, 0x20000")
        a("s_mov_b32 s96, 800000")
        a("s_mov_b32 s97, 1664525")
        a(f"v_lshrrev_b32 v218, 1, v{TID}")
        a("s_lshl_b32 s59, s2, 8")
        a("v_add_u32 v218, s59, v218")
        a("s_mov_b32 s59, 0x9E3779B1")
        a("v_mul_lo_u32 v218, v218, s59")
        a("s_waitcnt lgkmcnt(0)")
    srd(a, R_W, 56, WS_WTAB, 0x12000)
    srd(a, R_MT, 56, WS_META, E * 12)
    srd(a, R_EP, 56, WS_EP, E * 32)
    srd(a, R_XP, 56, WS_XP - XBIAS, 2 * XHALF + XBIAS)
    a(f"s_mul_i32 s59, s2, {P_WG}")
    a(f"s_add_u32 s59, s59, {WS_P}")
    srd(a, R_P, 56, "s59", 2 * P_HALF)
    a("s_lshl_b32 s59, s2, 16")
    a(f"s_add_u32 s59, s59, {WS_ACC}")
    srd(a, R_ACC, 56, "s59", 65536)
    a(f"s_mul_i32 s59, s2, {NPB*512}")
    a(f"s_lshl_b32 s60, s{S_NN}, 9")
    srd(a, R_OUT, 54, "s59", "s60")
    a(f"s_mul_i32 s{S_RB}, s{S_WAVE}, {RING_W}")
    a(f"s_add_u32 s{S_RB}, s{S_RB}, {L_RING}")
    a(f"s_mov_b32 s{S_HI}, 0xffff0000")
    a(f"s_mov_b32 s{S_SGN}, 0x80008000")
    L = LANE
    a(f"v_bfe_u32 v3, v{L}, 4, 1")
    a(f"v_and_b32 v4, 7, v{L}")
    a("v_lshlrev_b32 v5, 1, v3")
    a("v_xor_b32 v4, v4, v5")
    a("v_lshlrev_b32 v4, 4, v4")
    a(f"v_add_u32 v{XOFF}, {0x80000000 + XBIAS}, v4")
    a(f"v_add_u32 v{XOFF+1}, {0x80000000 + XBIAS - 1088}, v4")
    a(f"v_and_b32 v4, 3, v{L}")
    a(f"v_lshlrev_b32 v{QQ8}, 3, v4")
    a(f"v_bfe_u32 v5, v{L}, 3, 1")
    a("v_mul_u32_u24 v5, 1088, v5")
    a(f"v_lshrrev_b32 v6, 4, v{L}")
    a("v_lshl_add_u32 v5, v6, 8, v5")
    a(f"v_bfe_u32 v7, v{L}, 2, 1")
    a("v_lshl_add_u32 v5, v7, 7, v5")
    a(f"v_add_u32 v5, v5, v{QQ8}")
    a(f"v_add_u32 v5, s{S_RB}, v5")
    a("v_lshlrev_b32 v7, 5, v3")
    a(f"v_add_u32 v{BAE}, v5, v7")
    a(f"v_sub_u32 v{BAO}, v5, v7")
    a(f"v_and_b32 v7, 15, v{L}")
    a("v_lshlrev_b32 v8, 2, v7")
    a(f"v_lshl_add_u32 v{POFF}, v6, 6, v8")
    a("v_and_b32 v8, 1, v7")
    a("v_lshlrev_b32 v8, 4, v8")
    a("v_mov_b32 v9, 0x3f80")
    a("v_lshlrev_b32 v8, v8, v9")
    a("v_and_b32 v9, 14, v7")
    for i in range(4):
        a(f"v_cmp_eq_u32 vcc, {4*i}, v9")
        a(f"v_cndmask_b32 v{SEL+i}, 0, v8, vcc")
    a(f"v_lshlrev_b32 v6, 2, v{TID}")
    a("v_mov_b32 v7, 0")
    a(f"v_add_u32 v8, {L_MISC}, v6")
    a(f"v_cmp_gt_u32 vcc, 68, v{TID}")
    a("s_and_saveexec_b64 s[58:59], vcc")
    a("ds_write_b32 v8, v7")
    a(f"v_cmp_gt_u32 vcc, 8, v{TID}")
    a("s_and_b64 exec, exec, vcc")
    a("ds_write_b32 v6, v7")
    a("s_mov_b64 exec, -1")
    a("v_mul_u32_u24 v14, 3200, v2")
    a(f"v_lshrrev_b32 v15, 8, v{TID}")
    a("v_mov_b32 v16, 0x80000000")
    a(f"s_waitcnt vmcnt({opt('cpf', 0) & 1})")
    stamp(a, 2)
    a("v_lshrrev_b32 v9, 16, v20")
    a("v_and_b32 v10, 0xffff, v20")
    a("v_add_u32 v14, v14, v10")
    NPF = opt("spf", 0) * 3
    if NPF:
        a("v_lshlrev_b32 v21, 7, v15")
        a("v_lshlrev_b32 v22, 5, v9")
        a("v_lshl_add_u32 v23, v14, 5, v21")
        a("v_cmp_lt_u32 vcc, v21, v22")
        a("v_add_u32 v24, 256, v21")
        a("v_cndmask_b32 v25, v16, v23, vcc")
        a("v_cmp_lt_u32 vcc, v24, v22")
        a("v_mul_u32_u24 v22, 12, v9")
        a("v_cndmask_b32 v26, v16, v23, vcc")
        a("v_mad_u32_u24 v23, v14, 12, v21")
        a("v_cmp_lt_u32 vcc, v21, v22")
        a("v_cndmask_b32 v27, v16, v23, vcc")
        a(f"buffer_load_dword v72, v27, s[{R_MT}:{R_MT+3}], 0 offen")
        a(f"buffer_load_dword v73, v25, s[{R_EP}:{R_EP+3}], 0 offen")
        a(f"buffer_load_dword v74, v26, s[{R_EP}:{R_EP+3}], 0 offen offset:256")
    a("v_mov_b32 v11, v9")
    scan64(a, 11)
    a("v_readlane_b32 s58, v11, 63")
    a(f"s_and_b32 s59, s{S_WAVE}, 3")
    a("s_lshl_b32 s60, s59, 2")
    a(f"s_add_u32 s60, s60, {L_WSUM}")
    a("v_mov_b32 v12, s60")
    a("v_mov_b32 v13, s58")
    a("ds_write_b32 v12, v13")
    a("v_sub_u32 v11, v11, v9")
    a(f"v_mov_b32 v12, {L_WSUM}")
    a("s_waitcnt lgkmcnt(0)")
    a("s_barrier")
    a("ds_read_b128 v[16:19], v12")
    a("s_waitcnt lgkmcnt(0)")
    for i in range(4):
        a(f"v_readfirstlane_b32 s{60+i}, v{16+i}")
    a("s_add_u32 s61, s61, s60")
    a("s_add_u32 s62, s62, s61")
    a(f"s_add_u32 s{S_T}, s63, s62")
    a("s_cmp_eq_u32 s59, 0")
    a("s_cselect_b32 s58, 0, s60")
    a("s_cmp_eq_u32 s59, 2")
    a("s_cselect_b32 s58, s61, s58")
    a("s_cmp_eq_u32 s59, 3")
    a("s_cselect_b32 s58, s62, s58")
    a(f"s_sub_u32 s{S_LEN}, s{S_T}, s{S_R0}")
    a(f"s_cmp_le_u32 s{S_LEN}, s{S_CAP}")
    a(f"s_cselect_b32 s{S_LAST}, 1, 0")
    a(f"s_min_u32 s{S_LEN}, s{S_LEN}, s{S_CAP}")
    a(f"s_sub_u32 s58, s58, s{S_R0}")
    a("v_add_u32 v11, s58, v11")
    a("v_sub_u32 v12, 0, v11")
    a("v_max_i32 v12, 0, v12")
    a(f"v_sub_u32 v13, s{S_LEN}, v11")
    a("v_min_i32 v13, v13, v9")
    a("v_add_u32 v12, v12, v15")
    a("v_sub_u32 v9, v13, v12")
    a("v_add_u32 v14, v14, v12")
    a("v_add_u32 v11, v11, v12")
    a("v_lshlrev_b32 v12, 2, v11")
    a(f"v_add_u32 v12, {L_SA}, v12")
    a.label("MAPL")
    for i in range(16):
        a(f"v_cmp_lt_i32 vcc, {2*i}, v9")
        if i:
            a("v_add_u32 v14, 2, v14")
        a("s_and_b64 exec, exec, vcc")
        if i % 4 == 0:
            a("s_cbranch_execz MAPD")
        a(f"ds_write_b32 v12, v14 offset:{8*i}")
    a("v_add_u32 v14, 2, v14")
    a("v_add_u32 v12, 128, v12")
    a("v_subrev_u32 v9, 32, v9")
    a("s_branch MAPL")
    a.label("MAPD")
    a("s_mov_b64 exec, -1")
    a(f"v_add_u32 v12, {L_SA}, v6")
    a(f"v_lshrrev_b32 v13, 1, v{LANE}")
    a(f"s_lshl_b32 s58, s{S_WAVE}, 5")
    a("v_add_u32 v13, s58, v13")
    a(f"v_lshl_add_u32 v14, v13, 2, v7")
    a(f"v_add_u32 v14, {L_SA}, v14")
    a(f"v_and_b32 v15, 1, v{LANE}")
    a("v_lshlrev_b32 v15, 4, v15")
    a("s_waitcnt lgkmcnt(0)")
    a("s_barrier")
    stamp(a, 3)
    for k in range(7):
        a(f"ds_read_b32 v{20+k}, v12 offset:{2048*k}")
    for k in range(14):
        a(f"ds_read_b32 v{28+k}, v14 offset:{1024*k}")
    MREC = 44
    EPOL = ["", " sc1", " nt"][opt("epol", 0)]
    for k in range(7):
        a(f"v_add_u32 v17, {512*k}, v{TID}")
        a(f"v_cmp_gt_u32 s[{S_MASK+2*k}:{S_MASK+2*k+1}], s{S_LEN}, v17")
        a(f"s_waitcnt lgkmcnt({min(15, 20-k)})")
        a(f"v_mul_u32_u24 v{20+k}, 12, v{20+k}")
        a(f"v_cndmask_b32 v{20+k}, v16, v{20+k}, s[{S_MASK+2*k}:{S_MASK+2*k+1}]")
    if PROF == 2:
        stamp(a, 7)
    for k in range(7):
        a(f"buffer_load_dwordx3 {vr(MREC+4*k,3)}, v{20+k}, s[{R_MT}:{R_MT+3}], 0 offen{EPOL}")
    a("s_waitcnt lgkmcnt(0)")
    a(f"s_lshl_b32 s{S_EM0}, s{S_WAVE}, 10")
    a(f"s_add_u32 s{S_EM0}, s{S_EM0}, {L_E + 32}")
    EREG = 128
    for k in range(14):
        a(f"v_cmp_gt_u32 vcc, s{S_LEN}, v13")
        a(f"v_lshl_add_u32 v{28+k}, v{28+k}, 5, v15")
        a("v_add_u32 v13, 256, v13")
        a(f"v_cndmask_b32 v{EREG+k}, v16, v{28+k}, vcc")
    eb = [int(c) for c in opt("eb", "2444")]

    def e_batch(i):
        for k in range(sum(eb[:i]), sum(eb[:i + 1])):
            if k == 13:
                a(f"s_cmp_ge_u32 s{S_WAVE}, 2")
                a("s_cbranch_scc1 NOE14")
            a(f"s_mov_b32 m0, s{S_EM0}")
            a(f"s_add_u32 s{S_EM0}, s{S_EM0}, 8192")
            a(f"buffer_load_dwordx4 v{EREG+k}, s[{R_EP}:{R_EP+3}], 0 offen{EPOL} lds")
            if k == 13:
                a.label("NOE14")

    if PROF == 2:
        stamp(a, 8)
    e_batch(0)
    if PROF == 2:
        stamp(a, 9)
    a("v_mov_b32 v17, 1")
    for k in range(7):
        a(f"s_waitcnt vmcnt({min(eb[0], 13) + 6 - k})")
        if PROF == 2 and k in (0, 6):
            stamp(a, 10 if k == 0 else 11)
        a(f"v_and_b32 v{20+k}, 0xff, v{MREC+4*k}")
        a(f"v_lshlrev_b32 v{20+k}, 2, v{20+k}")
        a(f"v_add_u32 v18, {L_CNT}, v{20+k}")
        a(f"s_mov_b64 exec, s[{S_MASK+2*k}:{S_MASK+2*k+1}]")
        a(f"ds_add_rtn_u32 v{MREC+4*k+3}, v18, v17")
        a("s_mov_b64 exec, -1")
    a(f"v_lshlrev_b32 v12, 2, v{LANE}")
    a(f"v_add_u32 v12, {L_CNT}, v12")
    a(f"v_lshlrev_b32 v13, 4, v{TID}")
    a(f"v_add_u32 v13, {L_SA}, v13")
    for i in range(4):
        a(f"v_mov_b32 v{28+i}, 0")
    a("s_waitcnt lgkmcnt(0)")
    a("s_barrier")
    stamp(a, 4)
    e_batch(1)
    a("ds_read_b32 v14, v12")
    nz = MAXSTEPS * 384 // 16
    for k in range(6):
        a(f"ds_write_b128 v13, v[28:31] offset:{8192*k}")
    a(f"v_cmp_gt_u32 vcc, {nz - 6*512}, v{TID}")
    a("s_mov_b64 exec, vcc")
    a(f"ds_write_b128 v13, v[28:31] offset:{8192*6}")
    a("s_mov_b64 exec, -1")
    a("s_waitcnt lgkmcnt(6)")
    a("v_add_u32 v14, 31, v14")
    a("v_lshrrev_b32 v14, 5, v14")
    a("v_max_u32 v14, 1, v14")
    a(f"v_cmp_gt_u32 vcc, s{S_NN}, v{LANE}")
    a(f"v_cndmask_b32 v{NST}, 0, v14, vcc")
    a("v_mad_u32_u24 v15, v14, 5, 4")
    a("v_cndmask_b32 v15, 0, v15, vcc")
    a(f"v_lshl_or_b32 v18, v15, 16, v{NST}")
    a(f"v_subrev_u32 v{NST}, 1, v{NST}")
    a("v_mov_b32 v19, v18")
    scan64(a, 19)
    a("v_readlane_b32 s58, v19, 63")
    a("v_sub_u32 v18, v19, v18")
    a("v_and_b32 v19, 0xffff, v19")
    a("v_lshrrev_b32 v32, 16, v18")
    a("v_and_b32 v18, 0xffff, v18")
    a("v_lshl_add_u32 v32, v32, 1, v15")
    a("v_lshlrev_b32 v32, 2, v32")
    a("s_lshr_b32 s59, s58, 16")
    a("s_and_b32 s58, s58, 0xffff")
    a(f"s_and_b32 s60, s{S_WAVE}, 3")
    a("s_lshl_b32 s60, s60, 1")
    a(f"s_lshr_b32 s61, s{S_WAVE}, 2")
    a("s_add_u32 s60, s60, s61")
    a("s_mul_i32 s60, s60, s59")
    a("s_add_u32 s61, s60, s59")
    a("v_cmp_le_u32 vcc, s60, v32")
    a("v_cmp_gt_u32 s[62:63], s61, v32")
    a("s_and_b64 vcc, vcc, s[62:63]")
    a(f"s_bcnt1_i32_b64 s{S_NNW}, vcc")
    a(f"s_ff1_i32_b64 s{S_NODE0}, vcc")
    a(f"s_max_i32 s{S_NODE0}, s{S_NODE0}, 0")
    a(f"s_add_u32 s{S_NEND}, s{S_NODE0}, s{S_NNW}")
    a(f"s_sub_u32 s60, s{S_NEND}, 1")
    a("s_max_i32 s60, s60, 0")
    a(f"v_readlane_b32 s{S_STEP0}, v18, s{S_NODE0}")
    a(f"v_readlane_b32 s{S_NS}, v19, s60")
    a(f"s_sub_u32 s{S_NS}, s{S_NS}, s{S_STEP0}")
    a(f"s_cmp_eq_u32 s{S_NNW}, 0")
    a(f"s_cselect_b32 s{S_NS}, 0, s{S_NS}")
    a(f"s_cmp_gt_u32 s{S_NS}, {MAXWSTEPS}")
    a("s_cselect_b32 s60, 1, 0")
    a(f"s_cmp_gt_u32 s58, {MAXSTEPS}")
    a("s_cselect_b32 s60, 1, s60")
    a("s_cmp_eq_u32 s60, 0")
    a("s_cbranch_scc1 NOFAIL")
    a(f"v_mov_b32 v33, {L_FLAG}")
    a("ds_write_b32 v33, v17")
    a.label("NOFAIL")
    for k in range(7):
        a(f"ds_bpermute_b32 v{20+k}, v{20+k}, v18")
    a(f"v_mov_b32 v33, {L_FLAG}")
    a("s_waitcnt lgkmcnt(0)")
    a("s_barrier")
    a("ds_read_b32 v34, v33")
    a(f"v_lshlrev_b32 v35, 2, v{TID}")
    a("v_add_u32 v35, 4, v35")
    for k in range(7):
        r = MREC + 4 * k
        a(f"v_lshl_add_u32 v{20+k}, v{20+k}, 5, v{r+3}")
        a(f"v_and_b32 v{r}, 0xffffff00, v{r}")
        a(f"v_add_u32 v36, {2048*k}, v35")
        a(f"v_or_b32 v{r+3}, v{r+2}, v36")
        a(f"v_mov_b32 v{r+2}, v{r+1}")
        a(f"v_lshlrev_b32 v{r+1}, 3, v{20+k}")
        a(f"v_add_u32 v{r+1}, {L_SB}, v{r+1}")
        a(f"v_lshlrev_b32 v{20+k}, 2, v{20+k}")
        a(f"v_add_u32 v{20+k}, {L_SA}, v{20+k}")
    a("s_waitcnt lgkmcnt(0)")
    a("v_readfirstlane_b32 s60, v34")
    a("s_cmp_eq_u32 s60, 0")
    a("s_cbranch_scc1 SCATTER")
    a(f"s_mov_b32 s{S_CAP}, {SLOWCAP}")
    a("s_waitcnt vmcnt(0)")
    a("s_barrier")
    a("s_branch ROUND")
    a.label("SCATTER")
    e_batch(2)
    for k in range(7):
        r = MREC + 4 * k
        a(f"s_mov_b64 exec, s[{S_MASK+2*k}:{S_MASK+2*k+1}]")
        a(f"ds_write_b32 v{20+k}, v{r}")
        a(f"ds_write_b64 v{r+1}, {vr(r+2,2)}")
    a("s_mov_b64 exec, -1")
    a(f"v_lshrrev_b32 v4, 4, v{LANE}")
    a("v_lshlrev_b32 v4, 3, v4")
    a(f"s_lshl_b32 s58, s{S_STEP0}, 5")
    a("v_add_u32 v4, s58, v4")
    a(f"v_bfe_u32 v5, v{LANE}, 2, 1")
    a("v_lshl_add_u32 v6, v5, 5, v4")
    a(f"v_and_b32 v5, 3, v{LANE}")
    a("v_lshl_add_u32 v6, v5, 1, v6")
    a(f"v_bfe_u32 v5, v{LANE}, 3, 1")
    a("v_add_u32 v6, v6, v5")
    a("v_lshlrev_b32 v6, 2, v6")
    a(f"v_add_u32 v6, {L_SA}, v6")
    a(f"v_bfe_u32 v5, v{LANE}, 1, 1")
    a("v_lshl_add_u32 v8, v5, 5, v4")
    a(f"v_and_b32 v5, 1, v{LANE}")
    a("v_lshl_add_u32 v8, v5, 2, v8")
    a(f"v_bfe_u32 v5, v{LANE}, 2, 2")
    a("v_add_u32 v8, v8, v5")
    a("v_lshlrev_b32 v8, 3, v8")
    a(f"v_add_u32 v8, {L_SB}, v8")
    a("s_waitcnt lgkmcnt(0)")
    a("s_barrier")
    e_batch(3)
    for s in range(10):
        a(f"ds_read_b32 v{M0R+s}, v6 offset:{256*s}")
        a(f"ds_read_b64 {vr(MBR+2*s,2)}, v8 offset:{512*s}")
    a(f"s_mov_b32 s{S_D}, 0")
    pfn = opt("pfn", 1)
    if pfn:
        a(f"s_sub_u32 s{S_EVT}, s{S_NEND}, {pfn}")
        a(f"s_max_i32 s{S_EVT}, s{S_EVT}, 0")
    else:
        a(f"s_mov_b32 s{S_EVT}, -2")
    a(f"s_mov_b32 s{S_PHASE}, 0")
    a(f"s_mov_b32 s{S_POFF}, 0")
    a(f"s_mov_b32 s{S_TAB0}, 0")
    a(f"s_mov_b32 s{S_TAB1}, 128")
    a(f"s_mov_b32 s{S_NODE}, s{S_NODE0}")
    a(f"v_readlane_b32 s{S_REM}, v{NST}, s{S_NODE}")
    stamp(a, 5)
    a("s_waitcnt lgkmcnt(0)")
    a("s_barrier")
    if PROF and not opt("egx", 0):
        a(f"s_mov_b32 s{S_PROF+12}, s{S_NS}")
        a(f"s_mov_b32 s{S_PROF+13}, s{S_NNW}")
    a(f"s_cmp_lg_u32 s{S_NNW}, 0")
    a("s_cbranch_scc1 START")
    a("s_waitcnt vmcnt(0)")
    a("s_barrier")
    stamp(a, 6)
    a("s_branch TAIL")
    a.label("START")
    pipeline_start(a)
    for rho in range(3):
        for p0, p1 in ((0, 1), (1, 0)):
            step_body(a, rho, True, p0, p1)
            step_body(a, rho, False, p0, p1)
            epilogue(a, (rho + 1) % 3, p1)
    for rho in range(3):
        step_body(a, rho, True, 0, 0)
        step_body(a, rho, False, 0, 0)

    a.label("TAIL")
    a("s_setprio 0")
    WF, PF, D = 0, 80, 188
    stamp(a, 8, late=True)
    a(f"v_lshlrev_b32 v{T0}, 4, v{LANE}")
    a(f"s_and_b32 s54, s{S_WAVE}, 1")
    a("s_mul_i32 s55, s54, 20480")
    a(f"s_add_u32 s55, s55, {WS_WSI - WS_WTAB}")
    a("s_waitcnt vmcnt(0)")
    for f in range(20):
        if f % 4 == 0 and f:
            a("s_add_u32 s55, s55, 4096")
        a(f"buffer_load_dwordx4 {vr(WF+4*f,4)}, v{T0}, s[{R_W}:{R_W+3}], s55 offen offset:{(f%4)*1024}")
    a("s_barrier")
    stamp(a, 9, late=True)
    a(f"s_lshl_b32 s55, s{S_WAVE}, 10")
    for k in range(10):
        if k == 9:
            a(f"s_cmp_ge_u32 s{S_WAVE}, 4")
            a("s_cbranch_scc1 NOP10")
        a("s_mov_b32 m0, s55")
        a(f"buffer_load_dwordx4 v{T0}, s[{R_P}:{R_P+3}], s55 offen sc1 lds")
        a("s_add_u32 s55, s55, 8192")
    a.label("NOP10")
    a(f"s_lshl_b32 s55, s{S_WAVE}, 13")
    a(f"s_cmp_eq_u32 s{S_R0}, 0")
    a("s_cbranch_scc1 ZEROD")
    for i in range(8):
        if i == 4:
            a("s_add_u32 s55, s55, 4096")
        a(f"buffer_load_dwordx4 {vr(D+4*i,4)}, v{T0}, s[{R_ACC}:{R_ACC+3}], s55 offen offset:{(i%4)*1024} sc1")
    a("s_branch HAVED")
    a.label("ZEROD")
    for i in range(32):
        a(f"v_mov_b32 v{D+i}, 0")
    a.label("HAVED")
    a(f"v_and_b32 v{T0+1}, 15, v{LANE}")
    a(f"s_lshr_b32 s56, s{S_WAVE}, 1")
    a("s_lshl_b32 s56, s56, 4")
    a(f"v_add_u32 v{T0+1}, s56, v{T0+1}")
    a(f"v_lshrrev_b32 v{T0+2}, 4, v{LANE}")
    a(f"v_lshlrev_b32 v{T0+2}, 4, v{T0+2}")
    a(f"v_mul_u32_u24 v{T0+3}, {P_NODE}, v{T0+1}")
    a(f"v_add_u32 v{T0+3}, v{T0+3}, v{T0+2}")
    a(f"v_lshl_add_u32 v{T0+4}, v{T0+1}, 9, v{T0+2}")
    a("s_lshl_b32 s54, s54, 6")
    a("s_waitcnt vmcnt(0)")
    a("s_barrier")
    stamp(a, 10, late=True)
    seq = []
    for comp, ts in enumerate(([P0, P1], [P2[0], P3[0], P4[0]], [P2[1], P3[1], P4[1]], [P2[2], P3[2], P4[2]])):
        for t in ts:
            for h in range(2):
                seq.append((comp, t, h))
    for i, (comp, t, h) in enumerate(seq):
        a(f"ds_read_b128 {vr(PF+4*i,4)}, v{T0+3} offset:{h*P_HALF + t*64}")
        if i == 14:
            a("s_waitcnt lgkmcnt(7)")
    for i, (comp, t, h) in enumerate(seq):
        if i >= 8:
            a(f"s_waitcnt lgkmcnt({21 - i})")
        for mt in range(2):
            d = vr(D + 8 * comp + 4 * mt, 4)
            a(f"v_mfma_f32_16x16x32_bf16 {d}, {vr(WF + 4*(10*mt + 2*TPATH[t] + h),4)}, {vr(PF+4*i,4)}, {d}")
    a(f"s_cmp_eq_u32 s{S_LAST}, 0")
    a("s_cbranch_scc1 MORE")
    for i in range(8):
        a(f"v_mul_f32 v{i}, 0xbfb8aa3b, v{D+i}")
    for i in range(8):
        a(f"v_exp_f32 v{i}, v{i}")
    for i in range(8):
        a(f"v_add_f32 v{i}, 1.0, v{i}")
    for i in range(8):
        a(f"v_rcp_f32 v{i}, v{i}")
    for comp in range(4):
        if comp:
            for i in range(8):
                a(f"v_mul_f32 v{D+8*comp+i}, v{D+8*comp+i}, v{i}")
        for i in range(4):
            a(f"v_cvt_pk_bf16_f32 v{8+4*comp+i}, v{D+8*comp+2*i}, v{D+8*comp+2*i+1}")
        a(f"buffer_store_dwordx4 {vr(8+4*comp,4)}, v{T0+4}, s[{R_OUT}:{R_OUT+3}], s54 offen offset:{128*comp}")
    if PROF:
        a("s_waitcnt vmcnt(0)")
    stamp(a, 11, late=True)
    stamp(a, 15, True)
    prof_dump(a, 98, 1, 3, S_WAVE)
    if opt("amp", 0):
        a("s_cmp_lg_u32 s2, 100")
        a("s_cbranch_scc1 K2_end")
        srd(a, 4, 98, WS_PROF + 100 * 1024, 64)
        a("v_mov_b32 v0, 0")
        a("buffer_load_dword v2, v0, s[4:7], 0 offen")
        a("buffer_load_dword v3, v0, s[4:7], 0 offen offset:60")
        a("s_waitcnt vmcnt(0)")
        a("v_readfirstlane_b32 s60, v2")
        a("v_readfirstlane_b32 s61, v3")
        lo, hi = {1: ("s60", f"s{S_PROF}"), 2: (f"s{S_PROF}", f"s{S_PROF+6}"), 3: (f"s{S_PROF+6}", f"s{S_PROF+9}"),
                  4: ("s60", "s61"), 5: ("s60", "s60")}[opt("amp", 0)]
        a(f"s_sub_u32 s62, {hi}, {lo}")
        a("s_min_u32 s62, s62, 10000")
        a("s_lshl_b32 s62, s62, 2")
        a("s_add_u32 s62, s62, 1000")
        a.label("AMPL")
        a("s_memrealtime s[80:81]")
        a("s_waitcnt lgkmcnt(0)")
        a(f"s_sub_u32 s63, s80, s{S_PROF+15}")
        a("s_cmp_lt_u32 s63, s62")
        a("s_cbranch_scc1 AMPL")
    if PROF == 4:
        a("s_lshl_b32 s80, s2, 3")
        a(f"s_add_u32 s80, s80, s{S_WAVE}")
        a("s_lshl_b32 s80, s80, 8")
        a(f"s_add_u32 s80, s80, {WS_PROF + 0x200000}")
        srd(a, 4, 98, "s80", 256)
        a(f"v_lshlrev_b32 v0, 2, v{LANE}")
        a("buffer_store_dword v219, v0, s[4:7], 0 offen")
    if PROF == 3:
        a("s_load_dwordx2 s[54:55], s[0:1], 80")
        a("s_min_u32 s80, s2, 249")
        a("s_lshl_b32 s80, s80, 10")
        a(f"s_add_u32 s80, s80, {WS_PROF}")
        srd(a, 4, 98, "s80", 64)
        a("v_mov_b32 v0, 0")
        a("buffer_load_dword v2, v0, s[4:7], 0 offen")
        a("buffer_load_dword v3, v0, s[4:7], 0 offen offset:8")
        a("buffer_load_dword v4, v0, s[4:7], 0 offen offset:24")
        a("buffer_load_dword v5, v0, s[4:7], 0 offen offset:60")
        a("s_waitcnt vmcnt(0) lgkmcnt(0)")
        srd(a, 4, 54, 0, 256)
        a("v_not_b32 v2, v2")
        a("s_mov_b64 exec, 1")
        for i in range(4):
            a(f"buffer_atomic_umax v{2+i}, v0, s[4:7], 0 offen offset:{4*i}")
        a(f"v_not_b32 v2, s{S_PROF}")
        a("buffer_atomic_umax v2, v0, s[4:7], 0 offen offset:16")
        for i, st in enumerate((0, 2, 3, 4, 6, 7, 8, 9, 10, 15)):
            a(f"v_mov_b32 v{3+i}, s{S_PROF+st}")
            a(f"buffer_atomic_umax v{3+i}, v0, s[4:7], 0 offen offset:{20+4*i}")
    a("s_endpgm")
    a.label("MORE")
    a(f"s_lshl_b32 s55, s{S_WAVE}, 13")
    for i in range(8):
        if i == 4:
            a("s_add_u32 s55, s55, 4096")
        a(f"buffer_store_dwordx4 {vr(D+4*i,4)}, v{T0}, s[{R_ACC}:{R_ACC+3}], s55 offen offset:{(i%4)*1024}")
    a(f"s_add_u32 s{S_R0}, s{S_R0}, s{S_LEN}")
    a("s_waitcnt vmcnt(0)")
    a("s_barrier")
    a("s_branch ROUND")
    a.label("K2_end")
    a("s_endpgm")
    return a


def descriptor(name, nv, ns):
    return f""".amdhsa_kernel {name}
  .amdhsa_next_free_vgpr {nv}
  .amdhsa_next_free_sgpr {ns}
  .amdhsa_accum_offset {(nv + 3) // 4 * 4}
  .amdhsa_group_segment_fixed_size 0
  .amdhsa_kernarg_size 96
  .amdhsa_user_sgpr_count 2
  .amdhsa_user_sgpr_kernarg_segment_ptr 1
  .amdhsa_system_sgpr_workgroup_id_x 1
  .amdhsa_float_denorm_mode_32 3
.end_amdhsa_kernel
"""


def main():
    ref = open(os.path.join(os.path.dirname(os.path.abspath(__file__)), "..", "cdna_kernels", NAME + ".s.ref")).read()
    head = [l for l in ref.split("\n") if l.startswith(";") and "@launch" not in l and "Override" not in l
            and "grid=ceil" not in l]
    k1, k2 = "edge_sort_kernel", NAME + "_kernel"
    out = head + [
        f"; @launch kernel={k1} grid=(255,1,1) block=(1024,1,1) lds={K1_LDS}",
        f"; @launch kernel={k2} grid=(256,1,1) block=(512,1,1) lds={K2_LDS}",
        '.amdgcn_target "amdgcn-amd-amdhsa--gfx950"',
        ".text",
    ]
    for name, fn in ((k1, kernel1), (k2, kernel2)):
        lines, nops = fn().finish()
        print(name, "instructions:", len(lines), "nops inserted:", nops, file=sys.stderr)
        out += [f".globl {name}", ".p2align 8", f".type {name},@function", f"{name}:"] + lines
    out += ['.section .rodata,"a"', ".p2align 6", descriptor(k1, 96, 102), ".p2align 6", descriptor(k2, NVGPR, 102)]
    open(sys.argv[1], "w").write("\n".join(out))


if __name__ == "__main__":
    main()
```

```python
import os
import sys

sys.path.insert(0, os.path.dirname(os.path.abspath(__file__)))
from asmlib import Asm, vr, sr

NAME = "gather_scatter__tensor_product_equiv_equiformer__graph"
N, E = 12500, 800000
CHUNK, W = 3200, 250
NPB = 49
NBIN = 256

WS_TAB = 0
WS_WTAB = 0x40000
WS_WSI = 0x48000
WS_META = 0x100000
WS_XP = 0xB00000
WS_EP = 0x1200000
WS_P = 0x2B00000
P_NODE = 784
P_HALF = NPB * P_NODE
P_WG = 0x13000
WS_ACC = 0x4000000
XHALF = N * 256

OPT = dict(a.split("=") for a in sys.argv[2:] if "=" in a)


def opt(name, default):
    return type(default)(OPT.get(name, default))


PROF = opt("prof", 0)
WS_PROF = 0x6000000
S_PROF = 82
FUSED = opt("fused", 0)


def preg(i):
    if FUSED:
        return {0: 82, 6: 83, 9: 90, 10: 91, 11: 92, 12: 93, 13: 94, 15: 95}.get(i)
    return S_PROF + i


def stamp(a, i, real=False, late=False, k1=False):
    if k1:
        i = {2: None, 4: None, 6: 10, 8: 11}[i]
        if i is None or PROF != 5:
            return
    elif PROF == 5 and i not in (0, 15, 6, 9):
        return
    if PROF and not (late and PROF == 2):
        a("s_waitcnt lgkmcnt(0)")
        a(("s_memrealtime" if real or PROF in (3, 5) else "s_memtime") + " s[80:81]")
        a("s_waitcnt lgkmcnt(0)")
        a(f"s_mov_b32 s{preg(i)}, s80")
        if PROF == 4 and i == 7:
            a("s_memrealtime s[80:81]" if opt("rt", 0) else "s_memtime s[80:81]")


def prof_dump(a, wsreg, kern, nwave_shift, wavereg):
    if PROF:
        a(f"s_lshl_b32 s80, s2, {nwave_shift}")
        a(f"s_add_u32 s80, s80, s{wavereg}")
        a("s_lshl_b32 s80, s80, 6")
        a(f"s_add_u32 s80, s80, {WS_PROF + kern * 0x100000}")
        srd(a, 4, wsreg, "s80", 64)
        a("v_mov_b32 v0, 0")
        for i in range(16):
            if preg(i) is None:
                continue
            a(f"v_mov_b32 v1, s{preg(i)}")
            a(f"buffer_store_dword v1, v0, s[4:7], 0 offen offset:{4*i}")


def srd(a, d, b, off, size):
    a(f"s_add_u32 s{d}, s{b}, {off}")
    a(f"s_addc_u32 s{d+1}, s{b+1}, 0")
    a(f"s_mov_b32 s{d+2}, {size}")
    a(f"s_mov_b32 s{d+3}, 0x20000")


def scan64(a, v):
    for sh in (1, 2, 4, 8):
        a(f"v_add_u32_dpp v{v}, v{v}, v{v} row_shr:{sh} row_mask:0xf bank_mask:0xf bound_ctrl:1")
    a(f"v_add_u32_dpp v{v}, v{v}, v{v} row_bcast:15 row_mask:0xa bank_mask:0xf")
    a(f"v_add_u32_dpp v{v}, v{v}, v{v} row_bcast:31 row_mask:0xc bank_mask:0xf")


K1_ERAW = 0
K1_MS = 102400
K1_INV = K1_MS + 38400
K1_HIST = K1_INV + 6400
K1_LDS = 152 * 1024


def prep_tables(a, ST):
    a("v_add_u32 v4, s60, v0")
    a("v_and_b32 v5, 3, v4")
    a("v_bfe_u32 v6, v4, 2, 4")
    a("v_bfe_u32 v7, v4, 6, 2")
    a("v_lshrrev_b32 v8, 8, v4")
    a("v_cmp_le_u32 vcc, 10, v8")
    a("v_cndmask_b32 v9, 0, 1, vcc")
    a("v_mul_u32_u24 v10, 10, v9")
    a("v_sub_u32 v10, v8, v10")
    a("v_lshl_add_u32 v11, v7, 2, v5")
    a("v_mul_u32_u24 v11, 320, v11")
    a("v_lshrrev_b32 v12, 1, v10")
    a("v_lshl_add_u32 v11, v12, 6, v11")
    a("v_lshl_add_u32 v11, v9, 5, v11")
    a("v_and_b32 v12, 1, v10")
    a("v_lshl_add_u32 v11, v12, 4, v11")
    a("v_add_u32 v11, v11, v6")
    a("v_lshlrev_b32 v11, 1, v11")
    a("buffer_load_ushort v13, v11, s[16:19], 0 offen")
    a("v_mov_b32 v30, 0x80000000")
    for t in range(2):
        b = 32 + 8 * t
        a(f"v_add_u32 v14, {20*t}, v8")
        a("v_mul_u32_u24 v15, 26, v14")
        a("v_lshrrev_b32 v15, 8, v15")
        a("v_mul_u32_u24 v16, 10, v15")
        a("v_sub_u32 v16, v14, v16")
        a("v_lshrrev_b32 v17, 1, v16")
        a("v_and_b32 v18, 1, v16")
        a("v_lshl_add_u32 v19, v7, 2, v5")
        a("v_lshl_add_u32 v19, v18, 5, v19")
        a("v_lshl_add_u32 v19, v17, 6, v19")
        a("v_lshrrev_b32 v20, 1, v15")
        a("v_and_b32 v21, 1, v15")
        a("v_lshrrev_b32 v22, 2, v6")
        a("v_lshlrev_b32 v22, 3, v22")
        a("v_lshl_add_u32 v22, v20, 5, v22")
        a("v_lshl_add_u32 v22, v21, 2, v22")
        a("v_and_b32 v23, 3, v6")
        a("v_add_u32 v22, v22, v23")
        a("v_lshl_add_u32 v22, v19, 6, v22")
        a("v_lshlrev_b32 v22, 1, v22")
        a("v_subrev_u32 v23, 16384, v22")
        a("v_cmp_gt_u32 vcc, 2, v17")
        a("v_cndmask_b32 v24, v30, v22, vcc")
        a("v_cndmask_b32 v25, v23, v30, vcc")
        a(f"buffer_load_ushort v{b}, v24, s[20:23], 0 offen")
        a(f"buffer_load_ushort v{b+1}, v24, s[20:23], 0 offen offset:2048")
        a(f"buffer_load_ushort v{b+2}, v25, s[24:27], 0 offen")
        a(f"buffer_load_ushort v{b+3}, v25, s[24:27], 0 offen offset:2048")
    a("v_lshlrev_b32 v4, 2, v4")
    a("s_mov_b32 s61, 20480")
    a("s_waitcnt vmcnt(0)")
    a("v_lshlrev_b32 v13, 16, v13")
    a("buffer_store_dword v13, v4, s[28:31], 0 offen" + ST)
    for t in range(2):
        b = 32 + 8 * t
        a(f"v_or_b32 v{b}, v{b}, v{b+2}")
        a(f"v_or_b32 v{b+1}, v{b+1}, v{b+3}")
        a(f"v_lshl_or_b32 v{b}, v{b+1}, 16, v{b}")
        a(f"buffer_store_dword v{b}, v4, s[32:35], {'0' if t == 0 else 's61'} offen{ST}")


def kernel1():
    a = Asm()
    NT = " nt" if opt("k1nt", 1) else ""
    ST = {0: "", 1: " nt", 2: " sc1"}[opt("k1st", 2)]
    a("s_cmp_ge_u32 s2, 255")
    a("s_cbranch_scc1 K1_end")
    a("s_load_dwordx8 s[4:11], s[0:1], 0")
    a("s_load_dwordx8 s[52:59], s[0:1], 32")
    a("s_load_dwordx2 s[14:15], s[0:1], 88")
    a("v_lshlrev_b32 v1, 4, v0")
    a("v_mul_u32_u24 v2, 24, v0")
    a("v_and_b32 v3, 63, v0")
    a("v_lshlrev_b32 v3, 4, v3")
    a("v_lshrrev_b32 v40, 6, v0")
    a("v_readfirstlane_b32 s3, v40")
    a("s_cmp_ge_u32 s2, 250")
    a("s_cbranch_scc1 K1_prep")
    stamp(a, 0, True)
    stamp(a, 1)
    a("s_mul_i32 s60, s2, 12800")
    a("s_mul_i32 s61, s2, 19200")
    a("s_mul_i32 s62, s2, 25600")
    a("s_mul_i32 s63, s2, 102400")
    a("s_mul_i32 s64, s2, 38400")
    a("s_lshl_b32 s65, s2, 10")
    a("s_waitcnt lgkmcnt(0)")
    srd(a, 16, 52, "s60", 12800)
    a(f"buffer_load_dwordx4 v[4:7], v1, s[16:19], 0 offen{NT}")
    a("v_lshlrev_b32 v41, 2, v0")
    a("v_mov_b32 v42, 0")
    a("s_cmp_ge_u32 s3, 4")
    a("s_cbranch_scc1 K1_nozero")
    a(f"v_add_u32 v41, {K1_HIST}, v41")
    a("ds_write_b32 v41, v42")
    a.label("K1_nozero")
    srd(a, 20, 10, "s60", 12800)
    srd(a, 24, 6, "s61", 19200)
    srd(a, 28, 4, "s62", 25600)
    srd(a, 32, 8, "s63", 102400)
    a("s_mov_b32 s66, 16384")
    a("s_lshl_b32 s67, s3, 10")
    kq = [int(c) for c in opt("kq", "00700")]

    def e_in(i):
        for k in range(sum(kq[:i]), sum(kq[:i + 1])):
            if k == 6:
                a("s_cmp_ge_u32 s3, 4")
                a("s_cbranch_scc1 K1_noe7")
            a("s_mov_b32 m0, s67")
            a(f"buffer_load_dwordx4 v3, s[32:35], s67 offen{NT} lds")
            a("s_add_u32 s67, s67, 16384")
            if k == 6:
                a.label("K1_noe7")

    def n_e(lo, hi):
        return min(sum(kq[:hi + 1]), 6) - min(sum(kq[:lo]), 6)

    e_in(0)
    a("s_waitcnt lgkmcnt(0)")
    a("s_barrier")
    RNT = NT if opt("rnt", 1) else ""
    a(f"buffer_load_dwordx4 v[8:11], v1, s[20:23], 0 offen{NT}")
    a(f"buffer_load_dwordx4 v[12:15], v2, s[24:27], 0 offen{RNT}")
    a(f"buffer_load_dwordx2 v[16:17], v2, s[24:27], 0 offen offset:16{RNT}")
    if opt("k1b2", 1):
        a("s_barrier")
    e_in(1)
    a(f"buffer_load_dwordx4 v[20:23], v1, s[28:31], 0 offen{NT}")
    a(f"buffer_load_dwordx4 v[24:27], v1, s[28:31], s66 offen{NT}")
    e_in(2)
    a("s_add_u32 s68, s64, %d" % WS_META)
    srd(a, 36, 14, "s68", 38400)
    a("s_add_u32 s68, s63, %d" % WS_EP)
    srd(a, 40, 14, "s68", 102400)
    srd(a, 44, 14, WS_XP, 2 * XHALF)
    srd(a, 48, 14, "s65", 1024)
    a("v_cmp_gt_u32 vcc, 800, v0")
    a("s_mov_b64 s[70:71], vcc")
    a("v_mov_b32 v43, 1")
    a(f"s_waitcnt vmcnt({5 + n_e(0, 2)})")
    stamp(a, 2)
    a("s_mov_b64 exec, s[70:71]")
    a("s_cbranch_execz K1_skip_rank")
    for i in range(4):
        a(f"v_mul_u32_u24 v{28+i}, 21400, v{4+i}")
        a(f"v_lshrrev_b32 v{28+i}, 20, v{28+i}")
        a(f"v_mul_u32_u24 v{36+i}, 49, v{28+i}")
        a(f"v_sub_u32 v{36+i}, v{4+i}, v{36+i}")
        a(f"v_lshlrev_b32 v{28+i}, 2, v{28+i}")
        a(f"v_add_u32 v{28+i}, {K1_HIST}, v{28+i}")
        a(f"ds_add_rtn_u32 v{32+i}, v{28+i}, v43")
    a.label("K1_skip_rank")
    a("s_mov_b64 exec, -1")
    a("s_waitcnt lgkmcnt(0)")
    a("s_barrier")
    stamp(a, 3)
    a("s_cmp_lg_u32 s3, 0")
    a("s_cbranch_scc1 K1_noscan")
    a(f"v_add_u32 v41, {K1_HIST}, v3")
    a("ds_read_b128 v[44:47], v41")
    a("s_waitcnt lgkmcnt(0)")
    a("v_add_u32 v49, v44, v45")
    a("v_add_u32 v50, v49, v46")
    a("v_add_u32 v51, v50, v47")
    a("v_mov_b32 v52, v51")
    scan64(a, 52)
    a("v_sub_u32 v52, v52, v51")
    a("v_add_u32 v53, v52, v44")
    a("v_add_u32 v54, v52, v49")
    a("v_add_u32 v55, v52, v50")
    a("ds_write_b128 v41, v[52:55]")
    for i in range(4):
        a(f"v_lshl_or_b32 v{56+i}, v{44+i}, 16, v{52+i}")
    a("buffer_store_dwordx4 v[56:59], v3, s[48:51], 0 offen")
    a("s_waitcnt lgkmcnt(0)")
    a.label("K1_noscan")
    e_in(3)
    a("v_lshrrev_b32 v60, 5, v0")
    a("s_mul_i32 s69, s2, 50")
    a("v_add_u32 v60, s69, v60")
    a("v_lshlrev_b32 v60, 8, v60")
    a("v_bfe_u32 v61, v0, 3, 2")
    a("v_lshl_add_u32 v60, v61, 6, v60")
    a("v_and_b32 v61, 3, v0")
    a("v_lshl_add_u32 v60, v61, 4, v60")
    a("v_bfe_u32 v61, v0, 2, 1")
    a(f"v_mul_u32_u24 v61, {XHALF}, v61")
    a("v_add_u32 v60, v60, v61")
    a("v_add_u32 v61, 8192, v60")
    a("v_cmp_gt_u32 vcc, 576, v0")
    a("v_mov_b32 v62, 0x80000000")
    a("v_cndmask_b32 v61, v62, v61, vcc")
    a("s_barrier")
    a("s_mov_b64 exec, s[70:71]")
    a("s_cbranch_execz K1_skip_scatter")
    for i in range(4):
        a(f"ds_read_b32 v{28+i}, v{28+i}")
    a(f"s_waitcnt vmcnt({2 + n_e(1, 3)})")
    a("s_mov_b32 s72, 0x80000000")
    a("s_mov_b32 s73, 0xffff0000")
    for i in range(4):
        a(f"v_lshl_or_b32 v{8+i}, v{8+i}, 8, v{36+i}")
        a(f"v_or_b32 v{8+i}, s72, v{8+i}")
    a("v_lshlrev_b32 v44, 16, v13")
    a("v_alignbit_b32 v45, v14, v13, 16")
    a("v_and_b32 v46, s73, v14")
    a("v_lshlrev_b32 v47, 16, v16")
    a("v_alignbit_b32 v48, v17, v16, 16")
    a("v_and_b32 v49, s73, v17")
    w1 = [12, 45, 15, 48]
    w2 = [44, 46, 47, 49]
    a("v_lshlrev_b32 v50, 2, v0")
    a("s_waitcnt lgkmcnt(0)")
    for i in range(4):
        a(f"v_add_u32 v{32+i}, v{32+i}, v{28+i}")
        a(f"v_mul_u32_u24 v{28+i}, 12, v{32+i}")
        a(f"v_add_u32 v{28+i}, {K1_MS}, v{28+i}")
        a(f"ds_write2_b32 v{28+i}, v{8+i}, v{w1[i]} offset0:0 offset1:1")
        a(f"ds_write_b32 v{28+i}, v{w2[i]} offset:8")
        a(f"v_lshlrev_b32 v{32+i}, 1, v{32+i}")
        a(f"v_add_u32 v{32+i}, {K1_INV}, v{32+i}")
        a(f"v_add_u32 v{52+i}, {i}, v50")
        a(f"ds_write_b16 v{32+i}, v{52+i}")
    a.label("K1_skip_scatter")
    a("s_mov_b64 exec, -1")
    a(f"s_waitcnt vmcnt({n_e(2, 3)})")
    a(f"buffer_store_dwordx4 v[20:23], v60, s[44:47], 0 offen{ST}")
    a(f"buffer_store_dwordx4 v[24:27], v61, s[44:47], 0 offen{ST}")
    e_in(4)
    a("s_waitcnt lgkmcnt(0)")
    a("s_barrier")
    stamp(a, 4)
    a(f"v_add_u32 v41, {K1_MS}, v1")
    a("ds_read_b128 v[4:7], v41")
    a("ds_read_b128 v[8:11], v41 offset:16384")
    a("ds_read_b128 v[12:15], v41 offset:32768")
    a("v_and_b32 v42, 0x3fe, v0")
    a(f"v_add_u32 v42, {K1_INV}, v42")
    for k in range(7):
        a(f"ds_read_u16 v{28+k}, v42 offset:{1024*k}")
    a("v_and_b32 v43, 1, v0")
    a("v_lshlrev_b32 v43, 4, v43")
    a("s_mov_b32 s74, 32768")
    a("s_waitcnt lgkmcnt(7)")
    a(f"buffer_store_dwordx4 v[4:7], v1, s[36:39], 0 offen{ST}")
    a(f"buffer_store_dwordx4 v[8:11], v1, s[36:39], s66 offen{ST}")
    a(f"buffer_store_dwordx4 v[12:15], v1, s[36:39], s74 offen{ST}")
    a("s_waitcnt lgkmcnt(0)")
    for k in range(7):
        a(f"v_lshl_add_u32 v{28+k}, v{28+k}, 5, v43")
    stamp(a, 5)
    a(f"s_waitcnt vmcnt({3 if kq[4] else 5})")
    a("s_barrier")
    stamp(a, 6)
    for k in range(6):
        a(f"ds_read_b128 v[{64+4*k}:{67+4*k}], v{28+k}")
    a("s_mov_b32 s75, 0")
    for k in range(6):
        a(f"s_waitcnt lgkmcnt({5-k})")
        a(f"buffer_store_dwordx4 v[{64+4*k}:{67+4*k}], v1, s[40:43], s75 offen{ST}")
        a("s_add_u32 s75, s75, 16384")
    a("s_cmp_ge_u32 s3, 4")
    a("s_cbranch_scc1 K1_fin")
    a("ds_read_b128 v[88:91], v34")
    a("s_waitcnt lgkmcnt(0)")
    a(f"buffer_store_dwordx4 v[88:91], v1, s[40:43], s75 offen{ST}")
    a.label("K1_fin")
    stamp(a, 7)
    if PROF:
        a("s_waitcnt vmcnt(0)")
    stamp(a, 8)
    stamp(a, 15, True)
    prof_dump(a, 14, 0, 4, 3)
    a("s_endpgm")

    a.label("K1_prep")
    a("s_waitcnt lgkmcnt(0)")
    srd(a, 16, 54, 0, 16 * 320 * 2)
    srd(a, 20, 56, 0, 128 * 64 * 2)
    srd(a, 24, 58, 0, 192 * 64 * 2)
    srd(a, 28, 14, WS_WTAB, 20480)
    srd(a, 32, 14, WS_WSI, 40960)
    if opt("cpf", 0) & 2:
        a("s_getpc_b64 s[36:37]")
        a.label("K1_here")
        a("s_mov_b32 s38, K2_end-K1_here")
        a("s_mov_b32 s39, 0x20000")
        a("v_lshlrev_b32 v60, 7, v0")
        a("buffer_load_dword v61, v60, s[36:39], 0 offen")
    a("s_sub_u32 s60, s2, 250")
    a("s_lshl_b32 s60, s60, 10")
    prep_tables(a, "")
    a.label("K1_end")
    a("s_endpgm")
    return a


CAP = 3392
SLOWCAP = 256
MAXSTEPS = 142
MAXWSTEPS = 20
L_E = 0
L_RING = 32 + CAP * 32
RING_W = 6336
SUBB = 2112
L_SA = L_RING
L_SB = L_SA + MAXSTEPS * 128
L_MISC = L_SB + MAXSTEPS * 256
L_CNT = L_MISC
L_FLAG = L_MISC + 256
L_WSUM = L_MISC + 272
L_DUMMY = L_WSUM + 16
K2_LDS = 163840
assert L_DUMMY + 256 <= K2_LDS and L_RING + 8 * RING_W <= L_MISC

ACC = 0
WR = 88
B0 = 128
B1 = 144
GS, G0, G1, G2, N0, N2 = 160, 164, 168, 172, 176, 180
SEL = 184
M0R = 188
MBR = 198
GSP = (160, 252)
Y = 220
REP = 223
XA = 224
XOFF, QQ8, BAE, BAO, POFF, NST = 228, 230, 231, 232, 233, 234
U, PT, T8, EA = 236, 244, 235, 248
T0 = 236
TID, LANE = 250, 251
NVGPR = 256
XBIAS = 2048

S_WAVE = 3
R_XP, R_EP, R_MT, R_TB, R_P, R_W, R_OUT, R_ACC = 4, 8, 12, 16, 20, 24, 28, 32
S_NN, S_T, S_R0, S_LEN, S_CAP = 36, 37, 38, 39, 40
S_NODE0, S_NNW, S_STEP0, S_NS = 41, 42, 43, 44
S_D, S_REM, S_NODE, S_PHASE, S_TAB0, S_TAB1, S_RB, S_POFF = 45, 46, 47, 48, 49, 50, 51, 52
S_HI, S_SGN = 100, 101
S_MASK = 64
S_LAST = 78
S_NEND = 79
S_EM0 = 57
S_EVT = 59
S_OLD = 53
R_DBG = 84
S_EB1, S_EB2 = 88, 89

PPOL = ["", " sc1", " nt", " sc0 sc1"][opt("ppol", 0)]
OPOL = ["", " sc1", " nt", " sc0 sc1"][opt("opol", 0)]

TPATH = [0, 1, 2, 2, 2, 3, 3, 3, 4, 4, 4]
P0, P1 = 0, 1
P2 = [2, 3, 4]
P3 = [5, 6, 7]
P4 = [8, 9, 10]


def acc(t, cq):
    return ACC + 4 * (2 * t + cq)


def mfma_list():
    out = []
    for t, A, B, fl in ((P2[0], G0, B0, 1), (P1, G0, B0 + 8, 1), (P0, GS, B0, 1), (P3[0], GS, B0 + 8, 1),
                        (P2[2], G2, B0, 1), (P4[1], G2, B0 + 8, 1), (P2[1], G1, B0, 1), (P4[2], G1, B0 + 8, 1),
                        (P4[2], N0, B1, 0), (P4[1], N0, B1 + 8, 0), (P3[1], GS, B1, 1), (P3[2], GS, B1 + 8, 1),
                        (P4[0], N2, B1, 1), (P1, G2, B1 + 8, 0), (P1, G1, B1, 0), (P4[0], G1, B1 + 8, 0)):
        for cq in range(2):
            out.append((t, cq, A, B + 4 * cq, fl))
    return out


def emit_mfma(a, m, first, p0, q0):
    t, cq, A, B, fl = m
    if A == GS:
        A = GSP[p0]
    if opt("nomfma", 0):
        return
    d = vr(acc(t, cq), 4)
    c = "0" if (first and fl) else d
    if q0:
        a(f"v_mfma_f32_16x16x16_bf16 {d}, {vr(A,2)}, {vr(B,2)}, {c}")
    else:
        a(f"v_mfma_f32_16x16x32_bf16 {d}, {vr(A,4)}, {vr(B,4)}, {c}")


def b_reads(k, pos):
    B = B0 if k < 2 else B1
    hf = k & 1
    return [f"ds_read_b64_tr_b16 {vr(B + 4*u + 2*hf, 2)}, v{BAE if u % 2 == 0 else BAO} offset:{pos*SUBB + u*32}"
            for u in range(4)]


def vmwait(n):
    return [] if opt("nowait", 0) else [f"s_waitcnt vmcnt({n})"]


def dma(k, pos):
    if opt("nodma", 0):
        return [[], [], []]
    hf, bp = k & 1, k >> 1
    so = S_TAB0 if bp == 0 else S_TAB1
    pol = ["", " sc1", " nt", " sc0 sc1", " sc0"][opt("xpol", 0)]
    return [[f"s_add_u32 m0, s{S_RB}, {pos*SUBB}"],
            [f"buffer_load_dwordx4 v{XA + 2*hf}, s[{R_XP}:{R_XP+3}], s{so} offen{pol} lds"],
            [f"buffer_load_dwordx4 v{XA + 2*hf + 1}, s[{R_XP}:{R_XP+3}], s{so} offen offset:1088{pol} lds"]]


W0_FETCH = [f"s_lshr_b32 s54, s{S_D}, 1",
            "s_set_gpr_idx_on s54, gpr_idx(SRC0)",
            f"v_mov_b32 v{REP}, v{M0R}",
            "s_set_gpr_idx_off"]
W0_REP = [f"v_mov_b32_dpp v{REP}, v{REP} row_shr:4 row_mask:0xf bank_mask:0xa",
          f"v_mov_b32_dpp v{REP}, v{REP} row_shl:4 row_mask:0xf bank_mask:0x5"]
WRAP = [f"s_mov_b32 s{S_D}, 0",
        f"s_add_u32 s{S_TAB0}, s{S_TAB0}, {XHALF}",
        f"s_add_u32 s{S_TAB1}, s{S_TAB1}, {XHALF}"]


def x_addr(q):
    return f"v_add_u32_dpp v{XA+q}, v{REP}, v{XOFF + (q & 1)} quad_perm:[{q},{q},{q},{q}] row_mask:0xf bank_mask:0xf"


META_SET = [f"s_set_gpr_idx_on s{S_D}, gpr_idx(SRC1)",
            f"v_mad_u32_u16 v{T8}, 8, v{MBR+1}, 0",
            f"v_lshlrev_b32 v{Y}, 16, v{MBR}",
            f"v_and_b32 v{Y+1}, s{S_HI}, v{MBR}",
            f"v_and_b32 v{Y+2}, s{S_HI}, v{MBR+1}",
            "s_set_gpr_idx_off"]


def e_addr(p):
    return [f"v_add_u32_dpp v{EA+h}, v{T8}, v{QQ8} quad_perm:[{2*p+h},{2*p+h},{2*p+h},{2*p+h}] "
            "row_mask:0xf bank_mask:0xf" for h in range(2)]


def e_reads(dst):
    return [f"ds_read_b64_tr_b16 {vr(dst + 2*h, 2)}, v{EA+h}" for h in range(2)]


def unpack_valu(aa, p):
    return [f"v_lshlrev_b32 v{U+2*aa}, 16, v{GSP[p]+aa}", f"v_and_b32 v{U+2*aa+1}, s{S_HI}, v{GSP[p]+aa}"]


def gb(j, aa, p):
    if opt("nog", 0):
        return []
    hf, rl = aa >> 1, 2 * (aa & 1)
    pl = PT + 2 * (aa & 1)
    return [f"v_mul_f32_dpp v{pl}, v{Y+j}, v{U+2*aa} row_newbcast:{4*rl+2*p+hf} row_mask:0xf bank_mask:0xf",
            f"v_mul_f32_dpp v{pl+1}, v{Y+j}, v{U+2*aa+1} row_newbcast:{4*rl+4+2*p+hf} row_mask:0xf bank_mask:0xf",
            f"v_cvt_pk_bf16_f32 v{(G0, G1, G2)[j]+aa}, v{pl}, v{pl+1}"]


def neg(dst, src):
    return [f"v_xor_b32 v{dst+i}, s{S_SGN}, v{src+i}" for i in range(4)]


SHORT = opt("short", 0)


def body_name(rho, kind, p0, p1):
    return f"S{rho}{kind}{p0}{p1}"


def goto_next(a, rho, kind, p1, fall=False):
    if p1 == 0:
        a(f"s_cmp_eq_u32 s{S_D}, 0")
        a(f"s_cbranch_scc1 {body_name(rho, kind, 0, 0)}")
    if not fall:
        a(f"s_branch {body_name(rho, kind, p1, 1 - p1)}")


def issue_cost(l):
    op = l.split()[0]
    if op.endswith(":"):
        return 0
    if op.startswith("v_"):
        return 5.3 if "_dpp" in op or op.startswith(("v_cvt_pk", "v_mad")) else 4.2
    return {"d": 8, "b": 14}.get(op[0], 4.1)


def step_body(a, rho, kind, p0, p1, fall, cold):
    tag = body_name(rho, kind, p0, p1)
    first = kind == "f"
    x = 3 if first else 0
    p = lambda k: (rho + k) % 3
    F = [[] for _ in range(32)]

    def event(slot, n, k, pos):
        F[slot] += vmwait(n)
        for i, r in enumerate(b_reads(k, pos)):
            F[slot + i].append(r)

    def refill(slot, k, pos):
        d = dma(k, pos)
        F[slot - 1] += d[0]
        F[slot] += [f"WAIT {k}"] + d[1]
        F[slot + 1] += d[2]

    event(0, 4 + x, 2, p(2))
    refill(5, 1, p(2))
    event(8, 4 + x, 3, p(0))
    refill(13, 2, p(0))
    event(16, 4 + x, 0, p(1))
    refill(21, 3, p(1))
    event(24, 4, 1, p(2))
    refill(29, 0, p(2))
    F[31] += [f"s_sub_u32 s{S_REM}, s{S_REM}, 1"]
    if PROF == 4:
        F[30] += ["s_memrealtime s[80:81]" if opt("rt", 0) else "s_memtime s[80:81]"]
        F[7] += ["s_mov_b32 m0, s96", "s_add_u32 s96, s96, 1", "v_writelane_b32 v219, s80, m0"]

    qb = 1 - p0
    n0, n2 = neg(N0, G0), neg(N2, G2)
    ea, er = e_addr(p1), e_reads(GSP[qb])
    step = [f"s_add_u32 s{S_D}, s{S_D}, 1", f"s_cmp_lt_u32 s{S_D}, s{S_NS}", f"s_cbranch_scc0 {tag}_w"]
    if p1 == 1:
        fetch = [step + [f"{tag}_b:"] + W0_FETCH]
        rep = [[W0_REP[0]]]
        cold += [f"{tag}_w:"] + WRAP + [f"s_branch {tag}_b"]
    else:
        fetch = [step + W0_FETCH + ["FILL", W0_REP[1], f"{tag}_b:"]]
        rep = []
        cold += [f"{tag}_w:"] + WRAP + W0_FETCH + ["FILL", W0_REP[0], f"s_branch {tag}_b"]
    one = lambda lst: [[l] for l in lst]
    g0 = gb(0, 0, p1) + gb(0, 1, p1) + gb(0, 2, p1) + gb(0, 3, p1)
    g2 = gb(2, 0, p1) + gb(2, 1, p1)
    V = [(0, 6, g) for g in one(gb(2, 2, p0) + gb(2, 3, p0))]
    V += [(0, 10, g) for g in one(gb(1, 0, p0) + gb(1, 1, p0) + gb(1, 2, p0) + gb(1, 3, p0))]
    if p1 == 0:
        V += [(7, 11, META_SET)]
    V += [(0, 14, g) for g in one(n0[:2])]
    V += [(0, 14, [ea[0]]), (0, 14, [ea[1]]), (11, 15, [er[0]]), (11, 15, [er[1]])]
    V += [(0, 14, g) for g in one(n0[2:])]
    V += [(0, 22, g) for g in one(n2)]
    up = sum((unpack_valu(aa, qb) for aa in range(4)), [])
    V += [(opt("upe", 15), 22, ["WAIT e", up[0]])] + [(0, 24, g) for g in one(up[1:])]
    nb = opt("nb", 7)
    V += [(16, 30, g) for g in one(g0[:nb])]
    V += [(22, 26, g) for g in fetch] + [(0, 30, [g0[nb]])] + [(0, 27, g) for g in rep]
    V += [(0, 30, g) for g in one(g0[nb+1:nb+3])]
    V += [(0, 28, [x_addr(0)]), (0, 28, [x_addr(1)])]
    V += [(0, 30, g) for g in one(g0[nb+3:])]
    V += [(0, 31, [x_addr(2)]), (0, 31, [x_addr(3)])]
    if qb != p1:
        V += [(24, 31, [f"v_mov_b32 v{GSP[p1]+i}, v{GSP[qb]+i}" for i in range(4)])]
    V += [(0, 31, g) for g in one(g2[:2])] + [(27, 31, [g2[2]])] + [(27, 31, g) for g in one(g2[3:])]
    filler = g0[nb] if p1 == 0 else None
    if filler:
        V = [v for v in V if v[2] != [filler]]
    cost = lambda grp: sum(issue_cost(l) for l in grp)
    total = sum(cost(f) for f in F) + sum(cost(v[2]) for v in V)
    out, cum, i = [], 0.0, 0
    for sl in range(32):
        cum += cost(F[sl])
        mine = []
        while i < len(V):
            e, late, grp = V[i]
            must = any(V[j][1] <= sl for j in range(i, len(V)))
            if sl < e:
                assert not must, (tag, sl, grp)
                break
            if not must and cum + cost(grp) / 2 > total * (sl + 1) / 32:
                break
            mine += grp
            cum += cost(grp)
            i += 1
        tail = [l for l in F[sl] if l.startswith("s_sub")]
        out.append(mine[:1] + [l for l in F[sl] if l not in tail] + mine[1:] + tail
                   if mine and not mine[0].startswith(("s_", "WAIT", "ds_")) else
                   [l for l in F[sl] if l not in tail] + mine + tail)
    assert i == len(V)
    flat = [(sl, l) for sl in range(32) for l in out[sl]]
    need = {"1": b_reads(2, p(2)), "2": b_reads(3, p(0)), "3": b_reads(0, p(1)), "0": None, "e": er}
    a.label(tag)
    ml = mfma_list()
    for sl in range(32):
        emit_mfma(a, ml[sl], first, p0, 0)
        for l in out[sl]:
            if l.startswith("WAIT"):
                pos = flat.index((sl, l))
                ds = [y for _, y in flat[:pos] if y.startswith("ds_")]
                want = need[l.split()[1]]
                n = 0 if want is None else len(ds) - 1 - max(k for k, y in enumerate(ds) if y in want)
                assert want is None or all(w in ds for w in want)
                l = f"s_waitcnt lgkmcnt({n})"
            if l == "FILL":
                l = filler
            if opt("nods", 0) and (l.startswith("ds_") or l.startswith("s_waitcnt lgkm")):
                continue
            if opt("novalu", 0) and l.startswith("v_") and not l.startswith(("v_writelane", "v_mfma")):
                continue
            a(l)
    for k, l in enumerate(cold):
        if l == "FILL":
            cold[k] = filler
    nr = (rho + 1) % 3
    if fall == "n":
        a(f"s_cbranch_scc1 EP{nr}{p1}")
        goto_next(a, nr, "n", p1, True)
    else:
        if p1 == 1:
            a(f"s_cbranch_scc0 {body_name(nr, 'n', 1, 0)}")
        else:
            a(f"s_cbranch_scc0 {tag}_c")
            cold += [f"{tag}_c:", f"s_cmp_lg_u32 s{S_D}, 0", f"s_cbranch_scc1 {body_name(nr, 'n', 0, 1)}",
                     f"s_branch {body_name(nr, 'n', 0, 0)}"]
        if fall != "e":
            a(f"s_branch EP{nr}{p1}")


def node_steps(lane):
    return [f"v_readlane_b32 s{S_REM}, v{NST}, s{lane}"]


def load_w(a, h):
    a(f"s_mov_b32 s57, {10240*h}")
    a(f"v_lshlrev_b32 v67, 4, v{LANE}")
    for pc in range(10):
        if pc % 4 == 0 and pc:
            a("s_add_u32 s57, s57, 4096")
        a(f"buffer_load_dwordx4 {vr(WR+4*pc,4)}, v67, s[{R_W}:{R_W+3}], s57 offen offset:{(pc%4)*1024}")


def pipeline_start(a):
    def run(lst):
        for l in lst:
            a(l)

    def dma_now(k, pos):
        for g in dma(k, pos):
            run(g)

    run(W0_FETCH + [W0_REP[0]] + [x_addr(q) for q in range(4)])
    dma_now(0, 0)
    dma_now(1, 1)
    dma_now(2, 2)
    run(META_SET + e_addr(0))
    a(f"s_waitcnt vmcnt({0 if opt('nodma', 0) else 6})")
    a("s_barrier")
    stamp(a, 6)
    run(e_reads(GSP[0]))
    run(["s_waitcnt vmcnt(4)"] + b_reads(0, 0) + ["s_waitcnt lgkmcnt(0)"])
    dma_now(3, 0)
    for aa in range(4):
        run(unpack_valu(aa, 0))
    run([f"s_mov_b32 s{S_D}, 1", f"s_cmp_lt_u32 s{S_D}, s{S_NS}", "s_cbranch_scc0 I_w"] + W0_FETCH + [W0_REP[1]])
    a("s_branch I_b")
    run(["I_w:"] + WRAP + W0_FETCH + [W0_REP[0], "I_b:"])
    run([x_addr(q) for q in range(4)])
    run(["s_waitcnt vmcnt(4)"] + b_reads(1, 1))
    run(gb(0, 0, 0) + gb(0, 1, 0) + gb(0, 2, 0) + gb(0, 3, 0) + gb(2, 0, 0) + gb(2, 1, 0))
    if PROF == 4:
        a("s_memrealtime s[80:81]" if opt("rt", 0) else "s_memtime s[80:81]")
        a("s_mov_b32 s96, 0")
        a("v_mov_b32 v219, 0")
    a("s_waitcnt lgkmcnt(0)")
    dma_now(0, 1)
    load_w(a, 0)
    if opt("prio", 1):
        a(f"s_cmp_lt_u32 s{S_WAVE}, 4")
        a("s_cbranch_scc1 I_p")
        a("s_setprio 1")
        a.label("I_p")
    goto_next(a, 0, "f", 0)


def epilogue(a, rho, p1, cold):
    tag = f"EP{rho}{p1}"
    a.label(tag)
    order = [P2[0], P0, P3[0], P2[2], P2[1], P4[2], P4[1], P3[1], P3[2], P1, P4[0]]
    book = [f"s_mul_i32 s55, s{S_NODE}, {P_NODE}",
            f"s_add_u32 s55, s55, s{S_POFF}",
            f"s_add_u32 s{S_NODE}, s{S_NODE}, 1",
            f"s_cmp_lt_u32 s{S_NODE}, s{S_NEND}",
            f"s_cselect_b32 s56, s{S_NODE}, -2",
            f"s_cselect_b32 s{S_NODE}, s{S_NODE}, s{S_NODE0}",
            *node_steps(S_NODE),
            f"s_cmp_ge_u32 s56, s{S_EVT}"]
    if opt("prio", 1):
        a(f"s_cmp_lt_u32 s{S_WAVE}, 4")
        a(f"s_cbranch_scc0 {tag}_p")
        a(f"s_setprio {2 if int(opt('prpat', '110110')[2 * rho + p1]) else 0}")
        a.label(f"{tag}_p")
    for t in (order if opt("noep", 0) < 2 else []):
        pth = TPATH[t]
        for r in range(0 if opt("noep", 0) else 4):
            for cq in range(2):
                d, w = acc(t, cq), WR + 4 * (2 * pth + cq)
                if r == 0:
                    a(f"v_mul_f32 v{d}, v{d}, v{w}")
                else:
                    a(f"v_fmac_f32 v{d}, v{d+r}, v{w+r}")
        n = "-" if t == P4[2] else ""
        a(f"v_cvt_pk_bf16_f32 v{B1+t}, {n}v{acc(t,0)}, {n}v{acc(t,1)}")
        if t == P0:
            a(f"v_mov_b32 v{B1+11}, 0")
        if t == P1:
            a(f"v_mfma_f32_16x16x32_bf16 {vr(20,4)}, {vr(SEL,4)}, {vr(B1+4,4)}, 0")
    a(book[0])
    a(f"v_mfma_f32_16x16x32_bf16 {vr(16,4)}, {vr(SEL,4)}, {vr(B1,4)}, 0")
    a(f"v_mfma_f32_16x16x32_bf16 {vr(24,4)}, {vr(SEL,4)}, {vr(B1+8,4)}, 0")
    a(f"v_cvt_pk_bf16_f32 v65, v20, v21")
    for l in book[1:]:
        a(l)
    a(f"buffer_store_dword v65, v{POFF}, s[{R_P}:{R_P+3}], s55 offen offset:256{PPOL}")
    for i in (0, 2):
        a(f"v_cvt_pk_bf16_f32 v{64+i}, v{16+4*i}, v{17+4*i}")
    for i in (0, 2):
        a(f"buffer_store_dword v{64+i}, v{POFF}, s[{R_P}:{R_P+3}], s55 offen offset:{256*i}{PPOL}")
    if opt("egx", 0):
        a("s_cselect_b32 s57, 1, 0")
        a(f"s_cmp_lg_u32 s{S_PHASE}, 0")
        a(f"s_cbranch_scc1 {tag}_noeg")
        for i in range(2):
            a("v_mul_lo_u32 v218, v218, s97")
            a("v_add_u32 v218, 12345, v218")
            a("v_mul_hi_u32 v67, v218, s96")
            a("v_lshlrev_b32 v67, 5, v67")
            a(f"s_mov_b32 m0, {L_DUMMY}")
            a(f"buffer_load_dword v67, s[92:95], 0 offen{['', ' nt', ' sc1'][opt('egx', 0) - 1]} lds")
        a.label(f"{tag}_noeg")
        a("s_cmp_lg_u32 s57, 0")
    a(f"s_cbranch_scc1 {tag}_evt")
    a.label(f"{tag}_go")
    goto_next(a, rho, "f", p1, True)
    c = Asm()
    c.label(f"{tag}_evt")
    c("s_cmp_eq_u32 s56, -2")
    c(f"s_cbranch_scc1 {tag}_end")
    c(f"s_mov_b32 s{S_EVT}, -2")
    c("s_and_b32 s54, s2, 31")
    c("s_lshl_b32 s54, s54, 3")
    c(f"s_add_u32 s54, s54, s{S_WAVE}")
    c(f"s_mul_i32 s54, s54, {98*128}")
    c(f"s_add_u32 s54, s54, {XHALF + XBIAS}")
    c(f"v_lshlrev_b32 v67, 7, v{LANE}")
    c(f"s_mov_b32 m0, {L_DUMMY}")
    c(f"buffer_load_dword v67, s[{R_XP}:{R_XP+3}], s54 offen lds")
    c(f"s_branch {tag}_go")
    c.label(f"{tag}_end")
    c(f"s_cmp_lg_u32 s{S_PHASE}, 0")
    c("s_cbranch_scc1 TAIL")
    stamp(c, 7, late=True)
    c(f"s_mov_b32 s{S_EVT}, -2")
    c(f"s_mov_b32 s{S_PHASE}, 1")
    c(f"s_mov_b32 s{S_POFF}, {P_HALF}")
    load_w(c, 1)
    c(f"s_branch {tag}_go")
    cold += c.lines


def signal(a, off, tag):
    a(f"s_cmp_lg_u32 s{S_WAVE}, 0")
    a(f"s_cbranch_scc1 {tag}")
    a("s_mov_b64 exec, 1")
    a("v_mov_b32 v110, 1")
    a("v_mov_b32 v111, 0")
    a(f"buffer_atomic_add v110, v111, s[{R_DBG}:{R_DBG+3}], 0 offen offset:{off} sc1")
    a("s_mov_b64 exec, -1")
    a.label(tag)


def poll(a, off, tag):
    a(f"s_cmp_lg_u32 s{S_WAVE}, 0")
    a(f"s_cbranch_scc1 {tag}_d")
    a("s_mov_b32 s62, 0x200000")
    a("v_mov_b32 v111, 0")
    a.label(f"{tag}_l")
    a(f"buffer_load_dword v110, v111, s[{R_DBG}:{R_DBG+3}], 0 offen offset:{off} sc1")
    a("s_sub_u32 s62, s62, 1")
    a(f"s_cbranch_scc1 {tag}_d")
    a("s_waitcnt vmcnt(0)")
    a("v_readfirstlane_b32 s63, v110")
    a("s_cmp_ge_u32 s63, 256")
    a(f"s_cbranch_scc1 {tag}_d")
    if opt("slp", 16):
        a(f"s_sleep {opt('slp', 16)}")
    a(f"s_branch {tag}_l")
    a.label(f"{tag}_d")


def part1(a):
    NT, ST = " nt", " sc1"
    D, SRC, RH, X, BA, RK, DL = 4, 12, 20, 32, 48, 56, 64
    a("s_load_dwordx8 s[4:11], s[0:1], 0")
    a("s_load_dwordx8 s[52:59], s[0:1], 32")
    a("s_load_dwordx4 s[12:15], s[0:1], 80")
    a("v_lshlrev_b32 v1, 4, v0")
    a("v_mul_u32_u24 v2, 24, v0")
    a("v_and_b32 v3, 63, v0")
    a("v_lshlrev_b32 v3, 4, v3")
    a("v_lshrrev_b32 v72, 6, v0")
    a(f"v_readfirstlane_b32 s{S_WAVE}, v72")
    a("s_mul_i32 s60, s2, 12800")
    a("s_mul_i32 s61, s2, 19200")
    a("s_mul_i32 s62, s2, 25600")
    a("s_mul_i32 s63, s2, 102400")
    a("s_mul_i32 s64, s2, 38400")
    a("s_lshl_b32 s65, s2, 10")
    a("s_mov_b32 s66, 8192")
    a("s_waitcnt lgkmcnt(0)")
    srd(a, R_DBG, 12, 0, 256)
    a("s_cmp_ge_u32 s2, 250")
    a("s_cbranch_scc1 P1_prep")
    srd(a, 16, 52, "s60", 12800)
    a(f"buffer_load_dwordx4 {vr(D,4)}, v1, s[16:19], 0 offen{NT}")
    a(f"buffer_load_dwordx4 {vr(D+4,4)}, v1, s[16:19], s66 offen{NT}")
    a("v_lshlrev_b32 v73, 2, v0")
    a("v_mov_b32 v74, 0")
    a(f"s_cmp_ge_u32 s{S_WAVE}, 4")
    a("s_cbranch_scc1 P1_nozero")
    a(f"v_add_u32 v73, {K1_HIST}, v73")
    a("ds_write_b32 v73, v74")
    a.label("P1_nozero")
    srd(a, 20, 10, "s60", 12800)
    srd(a, 24, 6, "s61", 19200)
    srd(a, 28, 4, "s62", 25600)
    srd(a, 32, 8, "s63", 102400)
    a("s_mov_b32 s69, 12288")
    a(f"s_lshl_b32 s67, s{S_WAVE}, 10")
    a("s_waitcnt lgkmcnt(0)")
    a("s_barrier")
    a(f"buffer_load_dwordx4 {vr(SRC,4)}, v1, s[20:23], 0 offen{NT}")
    a(f"buffer_load_dwordx4 {vr(SRC+4,4)}, v1, s[20:23], s66 offen{NT}")
    for r, so in ((0, "0"), (1, "s69")):
        a(f"buffer_load_dwordx4 {vr(RH+6*r,4)}, v2, s[24:27], {so} offen{NT}")
        a(f"buffer_load_dwordx2 {vr(RH+6*r+4,2)}, v2, s[24:27], {so} offen offset:16{NT}")
    a("s_mov_b32 s68, 0")
    for k in range(4):
        a(f"buffer_load_dwordx4 {vr(X+4*k,4)}, v1, s[28:31], s68 offen{NT}")
        a("s_add_u32 s68, s68, 8192")
    kb = [int(c, 16) for c in opt("kb", "d000")]

    def e_in(i):
        for k in range(sum(kb[:i]), sum(kb[:i + 1])):
            if k == 12:
                a(f"s_cmp_ge_u32 s{S_WAVE}, 4")
                a("s_cbranch_scc1 P1_noe13")
            a("s_mov_b32 m0, s67")
            a(f"buffer_load_dwordx4 v3, s[32:35], s67 offen{NT} lds")
            a("s_add_u32 s67, s67, 8192")
            if k == 12:
                a.label("P1_noe13")

    def n_e(i):
        return min(sum(kb[:i + 1]), 12)

    e_in(0)
    a("s_add_u32 s68, s64, %d" % WS_META)
    srd(a, 36, 14, "s68", 38400)
    a("s_add_u32 s68, s63, %d" % WS_EP)
    srd(a, 40, 14, "s68", 102400)
    srd(a, 44, 14, WS_XP, 2 * XHALF)
    srd(a, 48, 14, "s65", 1024)
    a("v_cmp_gt_u32 vcc, 288, v0")
    a("s_mov_b64 s[70:71], vcc")
    a("v_mov_b32 v75, 1")
    a(f"s_waitcnt vmcnt({10 + n_e(0)})")
    stamp(a, 2, k1=True)
    for i in range(8):
        if i == 4:
            a("s_mov_b64 exec, s[70:71]")
            a("s_cbranch_execz P1_skip_rank")
        a(f"v_mul_u32_u24 v{BA+i}, 21400, v{D+i}")
        a(f"v_lshrrev_b32 v{BA+i}, 20, v{BA+i}")
        a(f"v_mul_u32_u24 v{DL+i}, 49, v{BA+i}")
        a(f"v_sub_u32 v{DL+i}, v{D+i}, v{DL+i}")
        a(f"v_lshlrev_b32 v{BA+i}, 2, v{BA+i}")
        a(f"v_add_u32 v{BA+i}, {K1_HIST}, v{BA+i}")
        a(f"ds_add_rtn_u32 v{RK+i}, v{BA+i}, v75")
    a.label("P1_skip_rank")
    a("s_mov_b64 exec, -1")
    a("s_waitcnt lgkmcnt(0)")
    a("s_barrier")
    a(f"s_cmp_lg_u32 s{S_WAVE}, 0")
    a("s_cbranch_scc1 P1_noscan")
    a(f"v_add_u32 v73, {K1_HIST}, v3")
    a("ds_read_b128 v[76:79], v73")
    a("s_waitcnt lgkmcnt(0)")
    a("v_add_u32 v81, v76, v77")
    a("v_add_u32 v82, v81, v78")
    a("v_add_u32 v83, v82, v79")
    a("v_mov_b32 v84, v83")
    scan64(a, 84)
    a("v_sub_u32 v84, v84, v83")
    a("v_add_u32 v85, v84, v76")
    a("v_add_u32 v86, v84, v81")
    a("v_add_u32 v87, v84, v82")
    a("ds_write_b128 v73, v[84:87]")
    for i in range(4):
        a(f"v_lshl_or_b32 v{88+i}, v{76+i}, 16, v{84+i}")
    a(f"buffer_store_dwordx4 v[88:91], v3, s[48:51], 0 offen{ST}")
    a("s_waitcnt lgkmcnt(0)")
    a.label("P1_noscan")
    e_in(1)
    a("v_lshrrev_b32 v92, 5, v0")
    a("s_mul_i32 s69, s2, 50")
    a("v_add_u32 v92, s69, v92")
    a("v_lshlrev_b32 v92, 8, v92")
    a("v_bfe_u32 v93, v0, 3, 2")
    a("v_lshl_add_u32 v92, v93, 6, v92")
    a("v_and_b32 v93, 3, v0")
    a("v_lshl_add_u32 v92, v93, 4, v92")
    a("v_bfe_u32 v93, v0, 2, 1")
    a(f"v_mul_u32_u24 v93, {XHALF}, v93")
    a("v_add_u32 v92, v92, v93")
    a("v_cmp_gt_u32 vcc, 64, v0")
    a("v_mov_b32 v94, 0x80000000")
    a("v_cndmask_b32 v93, v94, v92, vcc")
    a("s_mov_b32 s72, 0x80000000")
    a("s_mov_b32 s73, 0xffff0000")
    a("v_lshlrev_b32 v95, 2, v0")
    a("s_barrier")
    for r in range(2):
        if r == 1:
            a("s_mov_b64 exec, s[70:71]")
            a("s_cbranch_execz P1_skip_scatter")
        for i in range(4):
            a(f"ds_read_b32 v{BA+4*r+i}, v{BA+4*r+i}")
        if r == 0:
            a(f"s_waitcnt vmcnt({4 + n_e(1)})")
        R = RH + 6 * r
        for i in range(4):
            a(f"v_lshl_or_b32 v{SRC+4*r+i}, v{SRC+4*r+i}, 8, v{DL+4*r+i}")
            a(f"v_or_b32 v{SRC+4*r+i}, s72, v{SRC+4*r+i}")
        a(f"v_lshlrev_b32 v76, 16, v{R+1}")
        a(f"v_alignbit_b32 v77, v{R+2}, v{R+1}, 16")
        a(f"v_and_b32 v78, s73, v{R+2}")
        a(f"v_lshlrev_b32 v79, 16, v{R+4}")
        a(f"v_alignbit_b32 v80, v{R+5}, v{R+4}, 16")
        a(f"v_and_b32 v81, s73, v{R+5}")
        w1 = [R, 77, R + 3, 80]
        w2 = [76, 78, 79, 81]
        a("s_waitcnt lgkmcnt(0)")
        for i in range(4):
            b, k = BA + 4 * r + i, RK + 4 * r + i
            a(f"v_add_u32 v{k}, v{k}, v{b}")
            a(f"v_mul_u32_u24 v{b}, 12, v{k}")
            a(f"v_add_u32 v{b}, {K1_MS}, v{b}")
            a(f"ds_write2_b32 v{b}, v{SRC+4*r+i}, v{w1[i]} offset0:0 offset1:1")
            a(f"ds_write_b32 v{b}, v{w2[i]} offset:8")
            a(f"v_lshlrev_b32 v{k}, 1, v{k}")
            a(f"v_add_u32 v{k}, {K1_INV}, v{k}")
            a(f"v_add_u32 v{82+i}, {2048*r + i}, v95")
            a(f"ds_write_b16 v{k}, v{82+i}")
    a.label("P1_skip_scatter")
    a("s_mov_b64 exec, -1")
    a(f"s_waitcnt vmcnt({n_e(1)})")
    a("s_mov_b32 s68, 0")
    for k in range(4):
        a(f"buffer_store_dwordx4 {vr(X+4*k,4)}, v{92 if k < 3 else 93}, s[44:47], s68 offen{ST}")
        a("s_add_u32 s68, s68, 4096")
    e_in(2)
    a("s_waitcnt lgkmcnt(0)")
    a("s_barrier")
    stamp(a, 4, k1=True)
    a(f"v_add_u32 v73, {K1_MS}, v1")
    for k in range(5):
        a(f"ds_read_b128 {vr(4+4*k,4)}, v73 offset:{8192*k}")
    a("v_and_b32 v74, 0x1fe, v0")
    a(f"v_add_u32 v74, {K1_INV}, v74")
    a("s_mov_b32 s68, 0")
    for k in range(5):
        a(f"s_waitcnt lgkmcnt({4-k})")
        a(f"buffer_store_dwordx4 {vr(4+4*k,4)}, v1, s[36:39], s68 offen{ST}")
        a("s_add_u32 s68, s68, 8192")
    for k in range(13):
        a(f"ds_read_u16 v{48+k}, v74 offset:{512*k}")
    e_in(3)
    a("v_and_b32 v75, 1, v0")
    a("v_lshlrev_b32 v75, 4, v75")
    a("s_waitcnt lgkmcnt(0)")
    for k in range(13):
        a(f"v_lshl_add_u32 v{48+k}, v{48+k}, 5, v75")
    a("s_waitcnt vmcnt(0)")
    a("s_barrier")
    stamp(a, 6, k1=True)
    if opt("siga", 0) == 0:
        signal(a, 0, "P1_sa")
    for k in range(12):
        a(f"ds_read_b128 {vr(128+4*k,4)}, v{48+k}")
    a("s_mov_b32 s68, 0")
    for k in range(12):
        a(f"s_waitcnt lgkmcnt({11-k})")
        a(f"buffer_store_dwordx4 {vr(128+4*k,4)}, v1, s[40:43], s68 offen{ST}")
        a("s_add_u32 s68, s68, 8192")
    a(f"s_cmp_ge_u32 s{S_WAVE}, 4")
    a("s_cbranch_scc1 P1_fin" if opt("siga", 0) == 0 else "s_cbranch_scc1 P1_fin2")
    a("ds_read_b128 v[176:179], v60")
    a("s_waitcnt lgkmcnt(0)")
    a(f"buffer_store_dwordx4 v[176:179], v1, s[40:43], s68 offen{ST}")
    a("s_branch P1_fin" if opt("siga", 0) == 0 else "s_branch P1_fin2")

    if opt("siga", 0) == 1:
        a.label("P1_fin2")
        signal(a, 0, "P1_sa")
        a(f"s_cmp_lg_u32 s{S_WAVE}, 0")
        a("s_cbranch_scc1 P1_fin")
        a("s_waitcnt vmcnt(1)")
        a("s_branch P1_fin3")
    if opt("siga", 0) == 2:
        a.label("P1_fin2")
        a("s_waitcnt vmcnt(0)")
        a("s_barrier")
        stamp(a, 8, k1=True)
        signal(a, 0, "P1_sa")
        a("s_branch P1_fin4")
    a.label("P1_prep")
    a("s_cmp_eq_u32 s2, 255")
    a("s_cbranch_scc1 P1_prepd")
    srd(a, 16, 54, 0, 16 * 320 * 2)
    srd(a, 20, 56, 0, 128 * 64 * 2)
    srd(a, 24, 58, 0, 192 * 64 * 2)
    srd(a, 28, 14, WS_WTAB, 20480)
    srd(a, 32, 14, WS_WSI, 40960)
    a("s_sub_u32 s60, s2, 250")
    a("s_lshl_b32 s60, s60, 10")
    for it in range(2):
        prep_tables(a, ST)
        a("s_add_u32 s60, s60, 512")
    a.label("P1_prepd")
    a("s_waitcnt vmcnt(0)")
    a("s_barrier")
    signal(a, 0, "P1_sa2")
    a.label("P1_fin")
    a("s_waitcnt vmcnt(0)")
    a.label("P1_fin3")
    a("s_barrier")
    stamp(a, 8, k1=True)
    a.label("P1_fin4")
    signal(a, 128, "P1_sb")


def kernel2():
    a = Asm()
    a("s_cmp_ge_u32 s2, 256")
    a("s_cbranch_scc1 K2_end")
    if opt("xcdmap", 1) == 2:
        a("s_load_dwordx2 s[54:55], s[0:1], 80")
        a("s_getreg_b32 s58, hwreg(HW_REG_XCC_ID, 0, 3)")
        a("v_lshrrev_b32 v1, 6, v0")
        a("v_readfirstlane_b32 s3, v1")
        a(f"v_mov_b32 v3, {L_WSUM}")
        a("s_cmp_lg_u32 s3, 0")
        a("s_cbranch_scc1 CLAIMED")
        a("s_waitcnt lgkmcnt(0)")
        srd(a, 4, 54, 0, 256)
        a("s_mov_b64 exec, 1")
        a.label("CLAIM")
        a("v_mov_b32 v1, 1")
        a("s_lshl_b32 s59, s58, 5")
        a("v_mov_b32 v2, s59")
        a("buffer_atomic_add v1, v2, s[4:7], 0 offen sc0")
        a("s_add_u32 s58, s58, 1")
        a("s_and_b32 s58, s58, 7")
        a("s_waitcnt vmcnt(0)")
        a("v_readfirstlane_b32 s60, v1")
        a("s_cmp_ge_u32 s60, 32")
        a("s_cbranch_scc1 CLAIM")
        a("v_add_u32 v1, v1, v2")
        a("ds_write_b32 v3, v1")
        a("s_mov_b64 exec, -1")
        a.label("CLAIMED")
        a("s_waitcnt lgkmcnt(0)")
        a("s_barrier")
        a("ds_read_b32 v1, v3")
        a("s_waitcnt lgkmcnt(0)")
        a("v_readfirstlane_b32 s2, v1")
        a("s_and_b32 s2, s2, 255")
        a("s_barrier")
    if opt("xcdmap", 1) == 1:
        a("s_and_b32 s3, s2, 7")
        a("s_lshl_b32 s3, s3, 5")
        a("s_lshr_b32 s2, s2, 3")
        a("s_or_b32 s2, s2, s3")
    a(f"v_mov_b32 v{TID}, v0")
    a(f"s_mov_b32 s{S_R0}, 0")
    a(f"s_mov_b32 s{S_CAP}, {CAP}")
    stamp(a, 0, True)
    stamp(a, 1)
    if FUSED:
        part1(a)
        a(f"s_mov_b32 s{S_R0}, 0")
        a(f"s_mov_b32 s{S_CAP}, {CAP}")
        poll(a, 0, "POLL_A")
        a("s_barrier")
    a.label("ROUND")
    a("s_load_dwordx2 s[56:57], s[0:1], 88")
    a("s_load_dwordx2 s[54:55], s[0:1], 72")
    a(f"v_and_b32 v2, 255, v{TID}")
    a("v_lshlrev_b32 v3, 10, v2")
    a(f"v_and_b32 v{LANE}, 63, v{TID}")
    a(f"v_lshrrev_b32 v1, 6, v{TID}")
    a(f"v_readfirstlane_b32 s{S_WAVE}, v1")
    a("s_lshl_b32 s58, s2, 2")
    a("s_cmp_eq_u32 s2, 255")
    a(f"s_cselect_b32 s{S_NN}, {N - 255*NPB}, {NPB}")
    a("s_waitcnt lgkmcnt(0)")
    srd(a, R_TB, 56, WS_TAB, W * 1024)
    a(f"buffer_load_dword v20, v3, s[{R_TB}:{R_TB+3}], s58 offen")
    if opt("cpf", 0) & 1:
        a("s_getpc_b64 s[60:61]")
        a.label("K2_here")
        a("s_mov_b32 s62, K2_end-K2_here")
        a("s_mov_b32 s63, 0x20000")
        a(f"v_lshlrev_b32 v21, 7, v{TID}")
        a("buffer_load_dword v75, v21, s[60:63], 0 offen")
    if PROF:
        a("s_mov_b64 s[98:99], s[56:57]")
    if opt("egx", 0):
        a("s_load_dwordx2 s[92:93], s[0:1], 16")
        a("s_mov_b32 s94, 25600000")
        a("s_mov_b32 s95, 0x20000")
        a("s_mov_b32 s96, 800000")
        a("s_mov_b32 s97, 1664525")
        a(f"v_lshrrev_b32 v218, 1, v{TID}")
        a("s_lshl_b32 s59, s2, 8")
        a("v_add_u32 v218, s59, v218")
        a("s_mov_b32 s59, 0x9E3779B1")
        a("v_mul_lo_u32 v218, v218, s59")
        a("s_waitcnt lgkmcnt(0)")
    srd(a, R_W, 56, WS_WTAB, 0x12000)
    srd(a, R_MT, 56, WS_META, E * 12)
    srd(a, R_EP, 56, WS_EP, E * 32)
    srd(a, R_XP, 56, WS_XP - XBIAS, 2 * XHALF + XBIAS)
    a(f"s_mul_i32 s59, s2, {P_WG}")
    a(f"s_add_u32 s59, s59, {WS_P}")
    srd(a, R_P, 56, "s59", 2 * P_HALF)
    a("s_lshl_b32 s59, s2, 16")
    a(f"s_add_u32 s59, s59, {WS_ACC}")
    srd(a, R_ACC, 56, "s59", 65536)
    a(f"s_mul_i32 s59, s2, {NPB*512}")
    a(f"s_lshl_b32 s60, s{S_NN}, 9")
    srd(a, R_OUT, 54, "s59", "s60")
    a(f"s_mul_i32 s{S_RB}, s{S_WAVE}, {RING_W}")
    a(f"s_add_u32 s{S_RB}, s{S_RB}, {L_RING}")
    a(f"s_mov_b32 s{S_HI}, 0xffff0000")
    a(f"s_mov_b32 s{S_SGN}, 0x80008000")
    L = LANE
    a(f"v_bfe_u32 v3, v{L}, 4, 1")
    a(f"v_and_b32 v4, 7, v{L}")
    a("v_lshlrev_b32 v5, 1, v3")
    a("v_xor_b32 v4, v4, v5")
    a("v_lshlrev_b32 v4, 4, v4")
    a(f"v_add_u32 v{XOFF}, {0x80000000 + XBIAS}, v4")
    a(f"v_add_u32 v{XOFF+1}, {0x80000000 + XBIAS - 1088}, v4")
    a(f"v_and_b32 v4, 3, v{L}")
    a(f"v_lshlrev_b32 v{QQ8}, 3, v4")
    a(f"v_bfe_u32 v5, v{L}, 3, 1")
    a("v_mul_u32_u24 v5, 1088, v5")
    a(f"v_lshrrev_b32 v6, 4, v{L}")
    a("v_lshl_add_u32 v5, v6, 8, v5")
    a(f"v_bfe_u32 v7, v{L}, 2, 1")
    a("v_lshl_add_u32 v5, v7, 7, v5")
    a(f"v_add_u32 v5, v5, v{QQ8}")
    a(f"v_add_u32 v5, s{S_RB}, v5")
    a("v_lshlrev_b32 v7, 5, v3")
    a(f"v_add_u32 v{BAE}, v5, v7")
    a(f"v_sub_u32 v{BAO}, v5, v7")
    a(f"v_and_b32 v7, 15, v{L}")
    a("v_lshlrev_b32 v8, 2, v7")
    a(f"v_lshl_add_u32 v{POFF}, v6, 6, v8")
    a("v_and_b32 v8, 1, v7")
    a("v_lshlrev_b32 v8, 4, v8")
    a("v_mov_b32 v9, 0x3f80")
    a("v_lshlrev_b32 v8, v8, v9")
    a("v_and_b32 v9, 14, v7")
    for i in range(4):
        a(f"v_cmp_eq_u32 vcc, {4*i}, v9")
        a(f"v_cndmask_b32 v{SEL+i}, 0, v8, vcc")
    a(f"v_lshlrev_b32 v6, 2, v{TID}")
    a("v_mov_b32 v7, 0")
    a(f"v_add_u32 v8, {L_MISC}, v6")
    a(f"v_cmp_gt_u32 vcc, 68, v{TID}")
    a("s_and_saveexec_b64 s[58:59], vcc")
    a("ds_write_b32 v8, v7")
    a(f"v_cmp_gt_u32 vcc, 8, v{TID}")
    a("s_and_b64 exec, exec, vcc")
    a("ds_write_b32 v6, v7")
    a("s_mov_b64 exec, -1")
    a("v_mul_u32_u24 v14, 3200, v2")
    a(f"v_lshrrev_b32 v15, 8, v{TID}")
    a("v_mov_b32 v16, 0x80000000")
    a(f"s_waitcnt vmcnt({opt('cpf', 0) & 1})")
    stamp(a, 2)
    a("v_lshrrev_b32 v9, 16, v20")
    a("v_and_b32 v10, 0xffff, v20")
    a("v_add_u32 v14, v14, v10")
    NPF = opt("spf", 0) * 3
    if NPF:
        a("v_lshlrev_b32 v21, 7, v15")
        a("v_lshlrev_b32 v22, 5, v9")
        a("v_lshl_add_u32 v23, v14, 5, v21")
        a("v_cmp_lt_u32 vcc, v21, v22")
        a("v_add_u32 v24, 256, v21")
        a("v_cndmask_b32 v25, v16, v23, vcc")
        a("v_cmp_lt_u32 vcc, v24, v22")
        a("v_mul_u32_u24 v22, 12, v9")
        a("v_cndmask_b32 v26, v16, v23, vcc")
        a("v_mad_u32_u24 v23, v14, 12, v21")
        a("v_cmp_lt_u32 vcc, v21, v22")
        a("v_cndmask_b32 v27, v16, v23, vcc")
        a(f"buffer_load_dword v72, v27, s[{R_MT}:{R_MT+3}], 0 offen")
        a(f"buffer_load_dword v73, v25, s[{R_EP}:{R_EP+3}], 0 offen")
        a(f"buffer_load_dword v74, v26, s[{R_EP}:{R_EP+3}], 0 offen offset:256")
    a("v_mov_b32 v11, v9")
    scan64(a, 11)
    a("v_readlane_b32 s58, v11, 63")
    a(f"s_and_b32 s59, s{S_WAVE}, 3")
    a("s_lshl_b32 s60, s59, 2")
    a(f"s_add_u32 s60, s60, {L_WSUM}")
    a("v_mov_b32 v12, s60")
    a("v_mov_b32 v13, s58")
    a("ds_write_b32 v12, v13")
    a("v_sub_u32 v11, v11, v9")
    a(f"v_mov_b32 v12, {L_WSUM}")
    a("s_waitcnt lgkmcnt(0)")
    a("s_barrier")
    a("ds_read_b128 v[16:19], v12")
    a("s_waitcnt lgkmcnt(0)")
    for i in range(4):
        a(f"v_readfirstlane_b32 s{60+i}, v{16+i}")
    a("s_add_u32 s61, s61, s60")
    a("s_add_u32 s62, s62, s61")
    a(f"s_add_u32 s{S_T}, s63, s62")
    a("s_cmp_eq_u32 s59, 0")
    a("s_cselect_b32 s58, 0, s60")
    a("s_cmp_eq_u32 s59, 2")
    a("s_cselect_b32 s58, s61, s58")
    a("s_cmp_eq_u32 s59, 3")
    a("s_cselect_b32 s58, s62, s58")
    a(f"s_sub_u32 s{S_LEN}, s{S_T}, s{S_R0}")
    a(f"s_cmp_le_u32 s{S_LEN}, s{S_CAP}")
    a(f"s_cselect_b32 s{S_LAST}, 1, 0")
    a(f"s_min_u32 s{S_LEN}, s{S_LEN}, s{S_CAP}")
    a(f"s_sub_u32 s58, s58, s{S_R0}")
    a("v_add_u32 v11, s58, v11")
    a("v_sub_u32 v12, 0, v11")
    a("v_max_i32 v12, 0, v12")
    a(f"v_sub_u32 v13, s{S_LEN}, v11")
    a("v_min_i32 v13, v13, v9")
    a("v_add_u32 v12, v12, v15")
    a("v_sub_u32 v9, v13, v12")
    a("v_add_u32 v14, v14, v12")
    a("v_add_u32 v11, v11, v12")
    a("v_lshlrev_b32 v12, 2, v11")
    a(f"v_add_u32 v12, {L_SA}, v12")
    a.label("MAPL")
    for i in range(16):
        a(f"v_cmp_lt_i32 vcc, {2*i}, v9")
        if i:
            a("v_add_u32 v14, 2, v14")
        a("s_and_b64 exec, exec, vcc")
        if i % 4 == 0:
            a("s_cbranch_execz MAPD")
        a(f"ds_write_b32 v12, v14 offset:{8*i}")
    a("v_add_u32 v14, 2, v14")
    a("v_add_u32 v12, 128, v12")
    a("v_subrev_u32 v9, 32, v9")
    a("s_branch MAPL")
    a.label("MAPD")
    a("s_mov_b64 exec, -1")
    a(f"v_add_u32 v12, {L_SA}, v6")
    a(f"v_lshrrev_b32 v13, 1, v{LANE}")
    a(f"s_lshl_b32 s58, s{S_WAVE}, 5")
    a("v_add_u32 v13, s58, v13")
    a(f"v_lshl_add_u32 v14, v13, 2, v7")
    a(f"v_add_u32 v14, {L_SA}, v14")
    a(f"v_and_b32 v15, 1, v{LANE}")
    a("v_lshlrev_b32 v15, 4, v15")
    a("s_waitcnt lgkmcnt(0)")
    a("s_barrier")
    stamp(a, 3)
    for k in range(7):
        a(f"ds_read_b32 v{20+k}, v12 offset:{2048*k}")
    for k in range(14):
        a(f"ds_read_b32 v{28+k}, v14 offset:{1024*k}")
    MREC = 44
    EPOL = ["", " sc1", " nt"][opt("epol", 0)]
    for k in range(7):
        a(f"v_add_u32 v17, {512*k}, v{TID}")
        a(f"v_cmp_gt_u32 s[{S_MASK+2*k}:{S_MASK+2*k+1}], s{S_LEN}, v17")
        a(f"s_waitcnt lgkmcnt({min(15, 20-k)})")
        a(f"v_mul_u32_u24 v{20+k}, 12, v{20+k}")
        a(f"v_cndmask_b32 v{20+k}, v16, v{20+k}, s[{S_MASK+2*k}:{S_MASK+2*k+1}]")
    if PROF == 2:
        stamp(a, 7)
    for k in range(7):
        a(f"buffer_load_dwordx3 {vr(MREC+4*k,3)}, v{20+k}, s[{R_MT}:{R_MT+3}], 0 offen{EPOL}")
    a("s_waitcnt lgkmcnt(0)")
    a(f"s_lshl_b32 s{S_EM0}, s{S_WAVE}, 10")
    a(f"s_add_u32 s{S_EM0}, s{S_EM0}, {L_E + 32}")
    EREG = 128
    for k in range(14):
        a(f"v_cmp_gt_u32 vcc, s{S_LEN}, v13")
        a(f"v_lshl_add_u32 v{28+k}, v{28+k}, 5, v15")
        a("v_add_u32 v13, 256, v13")
        a(f"v_cndmask_b32 v{EREG+k}, v16, v{28+k}, vcc")
    eb = [int(c) for c in opt("eb", "0554" if FUSED else "2444")]

    def e_batch(i, tag=""):
        for k in range(sum(eb[:i]), sum(eb[:i + 1])):
            if k == 13:
                a(f"s_cmp_ge_u32 s{S_WAVE}, 2")
                a("s_cbranch_scc1 NOE14")
            a(f"s_mov_b32 m0, s{S_EM0}")
            a(f"s_add_u32 s{S_EM0}, s{S_EM0}, 8192")
            a(f"buffer_load_dwordx4 v{EREG+k}, s[{R_EP}:{R_EP+3}], 0 offen{EPOL} lds")
            if k == 13:
                a.label("NOE14")

    if PROF == 2:
        stamp(a, 8)
    e_batch(0)
    if FUSED:
        a("v_mov_b32 v111, 0")
        a(f"buffer_load_dword v110, v111, s[{R_DBG}:{R_DBG+3}], 0 offen offset:128 sc1")
    if PROF == 2:
        stamp(a, 9)
    a("v_mov_b32 v17, 1")
    for k in range(7):
        a(f"s_waitcnt vmcnt({min(eb[0], 13) + 6 - k + FUSED})")
        if PROF == 2 and k in (0, 6):
            stamp(a, 10 if k == 0 else 11)
        a(f"v_and_b32 v{20+k}, 0xff, v{MREC+4*k}")
        a(f"v_lshlrev_b32 v{20+k}, 2, v{20+k}")
        a(f"v_add_u32 v18, {L_CNT}, v{20+k}")
        a(f"s_mov_b64 exec, s[{S_MASK+2*k}:{S_MASK+2*k+1}]")
        a(f"ds_add_rtn_u32 v{MREC+4*k+3}, v18, v17")
        a("s_mov_b64 exec, -1")
    a(f"v_lshlrev_b32 v12, 2, v{LANE}")
    a(f"v_add_u32 v12, {L_CNT}, v12")
    a(f"v_lshlrev_b32 v13, 4, v{TID}")
    a(f"v_add_u32 v13, {L_SA}, v13")
    for i in range(4):
        a(f"v_mov_b32 v{28+i}, 0")
    if FUSED:
        a("s_waitcnt vmcnt(0)")
        a("v_readfirstlane_b32 s60, v110")
    a("s_waitcnt lgkmcnt(0)")
    a("s_barrier")
    stamp(a, 4)
    if FUSED:
        a(f"s_lshr_b32 s{S_EB1}, s60, 8")
        a(f"s_mov_b32 s{S_EB2}, s{S_EB1}")
        a(f"s_cmp_eq_u32 s{S_EB1}, 0")
        a("s_cbranch_scc1 EB1_skip")
        e_batch(1)
        a("s_branch EB1_done")
        a.label("EB1_skip")
        a(f"buffer_load_dword v110, v111, s[{R_DBG}:{R_DBG+3}], 0 offen offset:128 sc1")
        a.label("EB1_done")
    else:
        e_batch(1)
    a("ds_read_b32 v14, v12")
    a("s_mov_b64 s[62:63], 0")
    nz = MAXSTEPS * 384 // 16
    for k in range(6):
        a(f"ds_write_b128 v13, v[28:31] offset:{8192*k}")
    a(f"v_cmp_gt_u32 vcc, {nz - 6*512}, v{TID}")
    a("s_mov_b64 exec, vcc")
    a(f"ds_write_b128 v13, v[28:31] offset:{8192*6}")
    a("s_mov_b64 exec, -1")
    a("s_waitcnt lgkmcnt(6)")
    a("v_add_u32 v14, 31, v14")
    a("v_bfe_u32 v33, v14, 4, 1")
    a("v_lshrrev_b32 v14, 5, v14")
    a("v_max_u32 v14, 1, v14")
    a("v_xor_b32 v33, 1, v33")
    a("v_cmp_lt_u32 vcc, 2, v14")
    a("v_mov_b32 v33, 0")
    a(f"v_cmp_gt_u32 vcc, s{S_NN}, v{LANE}")
    a("v_mad_u32_u24 v15, v14, 10, 6")
    a(f"v_mad_i32_i24 v15, v33, {-opt('shc', 3)}, v15")
    a("v_cndmask_b32 v15, 0, v15, vcc")
    a("v_cndmask_b32 v14, 0, v14, vcc")
    a("v_lshl_or_b32 v18, v15, 16, v14")
    a("v_subrev_u32 v14, 1, v14")
    a("v_mul_u32_u24 v33, 254, v33")
    a(f"v_add_u32 v{NST}, v14, v33")
    a("v_mov_b32 v19, v18")
    scan64(a, 19)
    a("v_readlane_b32 s58, v19, 63")
    a("v_sub_u32 v18, v19, v18")
    a("v_and_b32 v19, 0xffff, v19")
    a("v_lshrrev_b32 v32, 16, v18")
    a("v_and_b32 v18, 0xffff, v18")
    a("v_lshl_add_u32 v32, v32, 1, v15")
    a("v_lshlrev_b32 v32, 2, v32")
    a("s_lshr_b32 s59, s58, 16")
    a("s_and_b32 s58, s58, 0xffff")
    a(f"s_and_b32 s60, s{S_WAVE}, 3")
    a("s_lshl_b32 s60, s60, 1")
    a(f"s_lshr_b32 s61, s{S_WAVE}, 2")
    a("s_add_u32 s60, s60, s61")
    a("s_mul_i32 s60, s60, s59")
    a("s_add_u32 s61, s60, s59")
    a("v_cmp_le_u32 vcc, s60, v32")
    a("v_cmp_gt_u32 s[62:63], s61, v32")
    a("s_and_b64 vcc, vcc, s[62:63]")
    a(f"s_bcnt1_i32_b64 s{S_NNW}, vcc")
    a(f"s_ff1_i32_b64 s{S_NODE0}, vcc")
    a(f"s_max_i32 s{S_NODE0}, s{S_NODE0}, 0")
    a(f"s_add_u32 s{S_NEND}, s{S_NODE0}, s{S_NNW}")
    a(f"s_sub_u32 s60, s{S_NEND}, 1")
    a("s_max_i32 s60, s60, 0")
    a(f"v_readlane_b32 s{S_STEP0}, v18, s{S_NODE0}")
    a(f"v_readlane_b32 s{S_NS}, v19, s60")
    a(f"s_sub_u32 s{S_NS}, s{S_NS}, s{S_STEP0}")
    a(f"s_cmp_eq_u32 s{S_NNW}, 0")
    a(f"s_cselect_b32 s{S_NS}, 0, s{S_NS}")
    a(f"s_bitcmp1_b32 s{S_NS}, 0")
    a("s_cbranch_scc0 EVENNS")
    a("v_readlane_b32 s61, v14, s60")
    a("s_mov_b32 m0, s60")
    a(f"v_writelane_b32 v{NST}, s61, m0")
    a.label("EVENNS")
    a(f"s_cmp_gt_u32 s{S_NS}, {MAXWSTEPS}")
    a("s_cselect_b32 s60, 1, 0")
    a(f"s_cmp_gt_u32 s58, {MAXSTEPS}")
    a("s_cselect_b32 s60, 1, s60")
    a("s_cmp_eq_u32 s60, 0")
    a("s_cbranch_scc1 NOFAIL")
    a(f"v_mov_b32 v33, {L_FLAG}")
    a("ds_write_b32 v33, v17")
    a.label("NOFAIL")
    a(f"s_cmp_le_u32 s{S_NNW}, {opt('tmax', 7)}")
    a("s_cbranch_scc1 NOOLD")
    a(f"v_mov_b32 v33, {L_FLAG}")
    a("ds_write_b32 v33, v17 offset:4")
    a.label("NOOLD")
    for k in range(7):
        a(f"ds_bpermute_b32 v{20+k}, v{20+k}, v18")
    a(f"v_mov_b32 v33, {L_FLAG}")
    a("s_waitcnt lgkmcnt(0)")
    a("s_barrier")
    a("ds_read_b64 v[38:39], v33")
    a(f"v_lshlrev_b32 v35, 2, v{TID}")
    a("v_add_u32 v35, 4, v35")
    for k in range(7):
        r = MREC + 4 * k
        a(f"v_lshl_add_u32 v{20+k}, v{20+k}, 5, v{r+3}")
        a(f"v_and_b32 v{r}, 0xffffff00, v{r}")
        a(f"v_add_u32 v36, {2048*k}, v35")
        a(f"v_or_b32 v{r+3}, v{r+2}, v36")
        a(f"v_mov_b32 v{r+2}, v{r+1}")
        a(f"v_lshlrev_b32 v{r+1}, 3, v{20+k}")
        a(f"v_add_u32 v{r+1}, {L_SB}, v{r+1}")
        a(f"v_lshlrev_b32 v{20+k}, 2, v{20+k}")
        a(f"v_add_u32 v{20+k}, {L_SA}, v{20+k}")
    a("s_waitcnt lgkmcnt(0)")
    a("v_readfirstlane_b32 s60, v38")
    a(f"v_readfirstlane_b32 s{S_OLD}, v39")
    a("s_cmp_eq_u32 s60, 0")
    a("s_cbranch_scc1 SCATTER")
    a(f"s_mov_b32 s{S_CAP}, {SLOWCAP}")
    a("s_waitcnt vmcnt(0)")
    a("s_barrier")
    a("s_branch ROUND")
    a.label("SCATTER")
    if FUSED:
        a(f"s_cmp_lg_u32 s{S_EB1}, 0")
        a("s_cbranch_scc1 EB2_go")
        a("s_waitcnt vmcnt(0)")
        a("v_readfirstlane_b32 s60, v110")
        a(f"s_lshr_b32 s{S_EB2}, s60, 8")
        a(f"s_cmp_eq_u32 s{S_EB2}, 0")
        a("s_cbranch_scc1 EB2_skip")
        e_batch(1)
        a.label("EB2_go")
        e_batch(2)
        a.label("EB2_skip")
    else:
        e_batch(2)
    for k in range(7):
        r = MREC + 4 * k
        a(f"s_mov_b64 exec, s[{S_MASK+2*k}:{S_MASK+2*k+1}]")
        a(f"ds_write_b32 v{20+k}, v{r}")
        a(f"ds_write_b64 v{r+1}, {vr(r+2,2)}")
    a("s_mov_b64 exec, -1")
    a(f"v_lshrrev_b32 v4, 4, v{LANE}")
    a("v_lshlrev_b32 v4, 2, v4")
    a(f"s_lshl_b32 s58, s{S_STEP0}, 5")
    a("v_add_u32 v4, s58, v4")
    a(f"v_bfe_u32 v5, v{LANE}, 2, 1")
    a("v_lshl_add_u32 v6, v5, 5, v4")
    a(f"v_bfe_u32 v5, v{LANE}, 1, 1")
    a("v_lshl_add_u32 v6, v5, 4, v6")
    a(f"v_and_b32 v5, 1, v{LANE}")
    a("v_lshl_add_u32 v6, v5, 1, v6")
    a(f"v_bfe_u32 v5, v{LANE}, 3, 1")
    a("v_add_u32 v6, v6, v5")
    a("v_lshlrev_b32 v6, 2, v6")
    a(f"v_add_u32 v6, {L_SA}, v6")
    a(f"v_bfe_u32 v5, v{LANE}, 1, 1")
    a("v_lshl_add_u32 v8, v5, 5, v4")
    a(f"v_and_b32 v5, 1, v{LANE}")
    a("v_lshl_add_u32 v8, v5, 4, v8")
    a(f"v_bfe_u32 v5, v{LANE}, 2, 2")
    a("v_add_u32 v8, v8, v5")
    a("v_lshlrev_b32 v8, 3, v8")
    a(f"v_add_u32 v8, {L_SB}, v8")
    if FUSED:
        a(f"s_cmp_lg_u32 s{S_EB2}, 0")
        a("s_cbranch_scc1 EB3_nopoll")
        poll(a, 128, "POLL_B")
        a.label("EB3_nopoll")
    a("s_waitcnt lgkmcnt(0)")
    a("s_barrier")
    if FUSED:
        a(f"s_cmp_lg_u32 s{S_EB2}, 0")
        a("s_cbranch_scc1 EB3_go")
        e_batch(1)
        e_batch(2)
        a.label("EB3_go")
    e_batch(3)
    for s in range(10):
        a(f"ds_read_b32 v{M0R+s}, v6 offset:{256*s}")
        a(f"ds_read_b64 {vr(MBR+2*s,2)}, v8 offset:{512*s}")
    a(f"s_mov_b32 s{S_D}, 0")
    pfn = opt("pfn", 1)
    if pfn:
        a(f"s_sub_u32 s{S_EVT}, s{S_NEND}, {pfn}")
        a(f"s_max_i32 s{S_EVT}, s{S_EVT}, 0")
    else:
        a(f"s_mov_b32 s{S_EVT}, -2")
    a(f"s_mov_b32 s{S_PHASE}, 0")
    a(f"s_mov_b32 s{S_POFF}, 0")
    a(f"s_mov_b32 s{S_TAB0}, 0")
    a(f"s_mov_b32 s{S_TAB1}, 128")
    a(f"s_mov_b32 s{S_NODE}, s{S_NODE0}")
    for l in node_steps(S_NODE):
        a(l)
    stamp(a, 5)
    a("s_waitcnt lgkmcnt(0)")
    a("s_barrier")
    if PROF and not opt("egx", 0):
        a(f"s_mov_b32 s{preg(12)}, s{S_NS}")
        a(f"s_mov_b32 s{preg(13)}, s{S_NNW}")
    a(f"s_cmp_lg_u32 s{S_NNW}, 0")
    a("s_cbranch_scc1 START")
    a("s_waitcnt vmcnt(0)")
    a("s_barrier")
    stamp(a, 6)
    a("s_branch TAIL")
    a.label("START")
    pipeline_start(a)
    cold = []
    for par in range(2):
        for rho in (0, 2, 1):
            epilogue(a, rho, par, cold)
            step_body(a, rho, "f", par, 1 - par, "n", cold)
            step_body(a, (rho + 1) % 3, "n", 1 - par, par, "e" if rho != 1 else "", cold)
    for rho in range(3):
        step_body(a, rho, "f", 0, 0, "", cold)
        step_body(a, rho, "n", 0, 0, "", cold)
    for l in cold:
        a(l)

    a.label("TAIL")
    a("s_setprio 0")
    WF, PF, D = 0, 80, 188
    if PROF == 4:
        a("v_mov_b32 v183, v219")
    stamp(a, 8, late=True)
    a(f"v_lshlrev_b32 v{T0}, 4, v{LANE}")
    a(f"s_and_b32 s54, s{S_WAVE}, 1")
    a("s_mul_i32 s55, s54, 20480")
    a(f"s_add_u32 s55, s55, {WS_WSI - WS_WTAB}")
    a(f"v_mul_u32_u24 v{T0+5}, {P_NODE}, v{LANE}")
    a(f"v_add_u32 v{T0+6}, {P_HALF}, v{T0+5}")
    a(f"s_cmp_lg_u32 s{S_OLD}, 0")
    a("s_cbranch_scc1 T_OLD")
    a(f"s_cmp_eq_u32 s{S_NNW}, 0")
    a("s_cbranch_scc1 T_W")
    a(f"s_mul_i32 s56, s{S_NNW}, {P_NODE}")
    a(f"s_mul_i32 s57, s{S_NODE0}, {P_NODE}")
    a(f"s_add_u32 s60, s56, s{S_RB}")
    a(f"v_add_u32 v{T0+7}, s60, v{POFF}")
    a(f"s_sub_u32 s61, s{S_RB}, s57")
    a(f"v_add_u32 v{T0+5}, s61, v{T0+5}")
    a(f"s_sub_u32 s61, s{S_NEND}, 1")
    a("s_mov_b32 m0, s61")
    a(f"v_writelane_b32 v{T0+6}, s60, m0")
    a(f"s_mov_b32 s60, s{S_RB}")
    a("s_waitcnt vmcnt(3)")
    for i in range(3):
        a(f"ds_write_b32 v{T0+7}, v{64+i} offset:{256*i}")
    for k in range(6):
        a(f"v_cmp_gt_u32 vcc, s56, v{T0}")
        a("s_mov_b32 m0, s60")
        a("s_mov_b64 exec, vcc")
        a("s_cbranch_execz T_TAB")
        a(f"buffer_load_dwordx4 v{T0}, s[{R_P}:{R_P+3}], s57 offen sc1 lds")
        a("s_mov_b64 exec, -1")
        a("s_add_u32 s57, s57, 1024")
        a("s_add_u32 s60, s60, 1024")
        a("s_sub_u32 s56, s56, 1024")
        a("s_max_i32 s56, s56, 0")
    a("s_branch T_TAB")
    a.label("T_OLD")
    a("s_waitcnt vmcnt(0)")
    a.label("T_TAB")
    a("s_mov_b64 exec, -1")
    a(f"v_cmp_le_u32 vcc, s{S_NODE0}, v{LANE}")
    a(f"v_cmp_gt_u32 s[60:61], s{S_NEND}, v{LANE}")
    a(f"v_lshlrev_b32 v{T0+7}, 2, v{LANE}")
    a(f"v_add_u32 v{T0+7}, {L_CNT}, v{T0+7}")
    a("s_and_b64 exec, vcc, s[60:61]")
    a(f"ds_write_b32 v{T0+7}, v{T0+5}")
    a(f"ds_write_b32 v{T0+7}, v{T0+6} offset:{L_DUMMY - L_CNT}")
    a("s_mov_b64 exec, -1")
    a.label("T_W")
    for f in range(20):
        if f % 4 == 0 and f:
            a("s_add_u32 s55, s55, 4096")
        a(f"buffer_load_dwordx4 {vr(WF+4*f,4)}, v{T0}, s[{R_W}:{R_W+3}], s55 offen offset:{(f%4)*1024}")
    a("s_waitcnt lgkmcnt(0)")
    a("s_barrier")
    stamp(a, 9, late=True)
    a(f"s_lshl_b32 s55, s{S_WAVE}, 10")
    a(f"s_cmp_eq_u32 s{S_OLD}, 0")
    a("s_cbranch_scc1 T_H1")
    for k in range(5):
        a("s_mov_b32 m0, s55")
        a(f"buffer_load_dwordx4 v{T0}, s[{R_P}:{R_P+3}], s55 offen sc1 lds")
        a("s_add_u32 s55, s55, 8192")
    a(f"s_lshl_b32 s55, s{S_WAVE}, 10")
    a("s_waitcnt vmcnt(0)")
    a("s_barrier")
    a.label("T_H1")
    a(f"s_add_u32 s55, s55, {P_HALF}")
    for k in range(5):
        if k == 4:
            a(f"s_cmp_ge_u32 s{S_WAVE}, 6")
            a("s_cbranch_scc1 NOP10")
        a("s_mov_b32 m0, s55")
        a(f"buffer_load_dwordx4 v{T0}, s[{R_P}:{R_P+3}], s55 offen sc1 lds")
        a("s_add_u32 s55, s55, 8192")
    a.label("NOP10")
    a(f"s_lshl_b32 s55, s{S_WAVE}, 13")
    a(f"s_cmp_eq_u32 s{S_R0}, 0")
    a("s_cbranch_scc1 ZEROD")
    for i in range(8):
        if i == 4:
            a("s_add_u32 s55, s55, 4096")
        a(f"buffer_load_dwordx4 {vr(D+4*i,4)}, v{T0}, s[{R_ACC}:{R_ACC+3}], s55 offen offset:{(i%4)*1024} sc1")
    a("s_branch HAVED")
    a.label("ZEROD")
    for i in range(32):
        a(f"v_mov_b32 v{D+i}, 0")
    a.label("HAVED")
    a(f"v_and_b32 v{T0+1}, 15, v{LANE}")
    a(f"s_lshr_b32 s56, s{S_WAVE}, 1")
    a("s_lshl_b32 s56, s56, 4")
    a(f"v_add_u32 v{T0+1}, s56, v{T0+1}")
    a(f"v_lshrrev_b32 v{T0+2}, 4, v{LANE}")
    a(f"v_lshlrev_b32 v{T0+2}, 4, v{T0+2}")
    a(f"v_lshlrev_b32 v{T0+3}, 2, v{T0+1}")
    a(f"v_add_u32 v{T0+3}, {L_CNT}, v{T0+3}")
    a(f"ds_read_b32 v{T0+5}, v{T0+3}")
    a(f"ds_read_b32 v{T0+6}, v{T0+3} offset:{L_DUMMY - L_CNT}")
    a(f"v_lshl_add_u32 v{T0+4}, v{T0+1}, 9, v{T0+2}")
    a("s_lshl_b32 s54, s54, 6")
    a("s_waitcnt lgkmcnt(0)")
    a(f"v_add_u32 v{T0+5}, v{T0+5}, v{T0+2}")
    a(f"v_add_u32 v{T0+6}, v{T0+6}, v{T0+2}")
    a("s_waitcnt vmcnt(0)")
    a("s_barrier")
    stamp(a, 10, late=True)
    seq = []
    for comp, ts in enumerate(([P0, P1], [P2[0], P3[0], P4[0]], [P2[1], P3[1], P4[1]], [P2[2], P3[2], P4[2]])):
        for t in ts:
            for h in range(2):
                seq.append((comp, t, h))
    for i, (comp, t, h) in enumerate(seq):
        a(f"ds_read_b128 {vr(PF+4*i,4)}, v{T0+5+h} offset:{t*64}")
        if i == 14:
            a("s_waitcnt lgkmcnt(7)")
    for i, (comp, t, h) in enumerate(seq):
        if i >= 8:
            a(f"s_waitcnt lgkmcnt({21 - i})")
        for mt in range(2):
            d = vr(D + 8 * comp + 4 * mt, 4)
            a(f"v_mfma_f32_16x16x32_bf16 {d}, {vr(WF + 4*(10*mt + 2*TPATH[t] + h),4)}, {vr(PF+4*i,4)}, {d}")
    a(f"s_cmp_eq_u32 s{S_LAST}, 0")
    a("s_cbranch_scc1 MORE")
    for i in range(8):
        a(f"v_mul_f32 v{i}, 0xbfb8aa3b, v{D+i}")
    for i in range(8):
        a(f"v_exp_f32 v{i}, v{i}")
    for i in range(8):
        a(f"v_add_f32 v{i}, 1.0, v{i}")
    for i in range(8):
        a(f"v_rcp_f32 v{i}, v{i}")
    for comp in range(4):
        if comp:
            for i in range(8):
                a(f"v_mul_f32 v{D+8*comp+i}, v{D+8*comp+i}, v{i}")
        for i in range(4):
            a(f"v_cvt_pk_bf16_f32 v{8+4*comp+i}, v{D+8*comp+2*i}, v{D+8*comp+2*i+1}")
        a(f"buffer_store_dwordx4 {vr(8+4*comp,4)}, v{T0+4}, s[{R_OUT}:{R_OUT+3}], s54 offen offset:{128*comp}{OPOL}")
    if PROF:
        a("s_waitcnt vmcnt(0)")
    stamp(a, 11, late=True)
    stamp(a, 15, True)
    prof_dump(a, 98, 1, 3, S_WAVE)
    if opt("amp", 0):
        a("s_cmp_lg_u32 s2, 100")
        a("s_cbranch_scc1 K2_end")
        srd(a, 4, 98, WS_PROF + 100 * 1024, 64)
        a("v_mov_b32 v0, 0")
        a("buffer_load_dword v2, v0, s[4:7], 0 offen")
        a("buffer_load_dword v3, v0, s[4:7], 0 offen offset:60")
        a("s_waitcnt vmcnt(0)")
        a("v_readfirstlane_b32 s60, v2")
        a("v_readfirstlane_b32 s61, v3")
        lo, hi = {1: ("s60", f"s{S_PROF}"), 2: (f"s{S_PROF}", f"s{S_PROF+6}"), 3: (f"s{S_PROF+6}", f"s{S_PROF+9}"),
                  4: ("s60", "s61"), 5: ("s60", "s60")}[opt("amp", 0)]
        a(f"s_sub_u32 s62, {hi}, {lo}")
        a("s_min_u32 s62, s62, 10000")
        a("s_lshl_b32 s62, s62, 2")
        a("s_add_u32 s62, s62, 1000")
        a.label("AMPL")
        a("s_memrealtime s[80:81]")
        a("s_waitcnt lgkmcnt(0)")
        a(f"s_sub_u32 s63, s80, s{S_PROF+15}")
        a("s_cmp_lt_u32 s63, s62")
        a("s_cbranch_scc1 AMPL")
    if PROF == 4:
        a("s_lshl_b32 s80, s2, 3")
        a(f"s_add_u32 s80, s80, s{S_WAVE}")
        a("s_lshl_b32 s80, s80, 8")
        a(f"s_add_u32 s80, s80, {WS_PROF + 0x200000}")
        srd(a, 4, 98, "s80", 256)
        a(f"v_lshlrev_b32 v0, 2, v{LANE}")
        a("buffer_store_dword v183, v0, s[4:7], 0 offen")
    if PROF == 3:
        a("s_load_dwordx2 s[54:55], s[0:1], 80")
        a("s_min_u32 s80, s2, 249")
        a("s_lshl_b32 s80, s80, 10")
        a(f"s_add_u32 s80, s80, {WS_PROF}")
        srd(a, 4, 98, "s80", 64)
        a("v_mov_b32 v0, 0")
        a("buffer_load_dword v2, v0, s[4:7], 0 offen")
        a("buffer_load_dword v3, v0, s[4:7], 0 offen offset:8")
        a("buffer_load_dword v4, v0, s[4:7], 0 offen offset:24")
        a("buffer_load_dword v5, v0, s[4:7], 0 offen offset:60")
        a("s_waitcnt vmcnt(0) lgkmcnt(0)")
        srd(a, 4, 54, 0, 256)
        a("v_not_b32 v2, v2")
        a("s_mov_b64 exec, 1")
        for i in range(4):
            a(f"buffer_atomic_umax v{2+i}, v0, s[4:7], 0 offen offset:{4*i}")
        a(f"v_not_b32 v2, s{S_PROF}")
        a("buffer_atomic_umax v2, v0, s[4:7], 0 offen offset:16")
        for i, st in enumerate((0, 2, 3, 4, 6, 7, 8, 9, 10, 15)):
            a(f"v_mov_b32 v{3+i}, s{S_PROF+st}")
            a(f"buffer_atomic_umax v{3+i}, v0, s[4:7], 0 offen offset:{20+4*i}")
    a("s_endpgm")
    a.label("MORE")
    a(f"s_lshl_b32 s55, s{S_WAVE}, 13")
    for i in range(8):
        if i == 4:
            a("s_add_u32 s55, s55, 4096")
        a(f"buffer_store_dwordx4 {vr(D+4*i,4)}, v{T0}, s[{R_ACC}:{R_ACC+3}], s55 offen offset:{(i%4)*1024}")
    a(f"s_add_u32 s{S_R0}, s{S_R0}, s{S_LEN}")
    a("s_waitcnt vmcnt(0)")
    a("s_barrier")
    a("s_branch ROUND")
    a.label("K2_end")
    a("s_endpgm")
    return a


def descriptor(name, nv, ns):
    return f""".amdhsa_kernel {name}
  .amdhsa_next_free_vgpr {nv}
  .amdhsa_next_free_sgpr {ns}
  .amdhsa_accum_offset {(nv + 3) // 4 * 4}
  .amdhsa_group_segment_fixed_size 0
  .amdhsa_kernarg_size 96
  .amdhsa_user_sgpr_count 2
  .amdhsa_user_sgpr_kernarg_segment_ptr 1
  .amdhsa_system_sgpr_workgroup_id_x 1
  .amdhsa_float_denorm_mode_32 3
.end_amdhsa_kernel
"""


def main():
    ref = open(os.path.join(os.path.dirname(os.path.abspath(__file__)), "..", "cdna_kernels", NAME + ".s.ref")).read()
    head = [l for l in ref.split("\n") if l.startswith(";") and "@launch" not in l and "Override" not in l
            and "grid=ceil" not in l]
    k1, k2 = "edge_sort_kernel", NAME + "_kernel"
    out = head + ([] if FUSED else [f"; @launch kernel={k1} grid=(255,1,1) block=(1024,1,1) lds={K1_LDS}"]) + [
        f"; @launch kernel={k2} grid=(256,1,1) block=(512,1,1) lds={K2_LDS}",
        '.amdgcn_target "amdgcn-amd-amdhsa--gfx950"',
        ".text",
    ]
    for name, fn in ((k1, kernel1), (k2, kernel2))[FUSED:]:
        lines, nops = fn().finish()
        print(name, "instructions:", len(lines), "nops inserted:", nops, file=sys.stderr)
        out += [f".globl {name}", ".p2align 8", f".type {name},@function", f"{name}:"] + lines
    out += ['.section .rodata,"a"'] + ([] if FUSED else [".p2align 6", descriptor(k1, 96, 102)])
    out += [".p2align 6", descriptor(k2, NVGPR, 102)]
    open(sys.argv[1], "w").write("\n".join(out))


if __name__ == "__main__":
    main()
```

```python
import os
import sys

sys.path.insert(0, os.path.dirname(os.path.abspath(__file__)))
from asmlib import Asm, vr, sr

NAME = "gather_scatter__tensor_product_equiv_equiformer__graph"
N, E = 12500, 800000
CHUNK, W = 3200, 250
NPB = 49
NBIN = 256

WS_TAB = 0
WS_WTAB = 0x40000
WS_WSI = 0x48000
WS_META = 0x100000
WS_XP = 0xB00000
WS_EP = 0x1200000
WS_P = 0x2B00000
P_NODE = 784
P_HALF = NPB * P_NODE
P_WG = 0x13000
WS_ACC = 0x4000000
XHALF = N * 256

OPT = dict(a.split("=") for a in sys.argv[2:] if "=" in a)


def opt(name, default):
    return type(default)(OPT.get(name, default))


PROF = opt("prof", 0)
WS_PROF = 0x6000000
S_PROF = 82
FUSED = opt("fused", 0)


def preg(i):
    if FUSED:
        return {0: 82, 6: 83, 9: 90, 10: 91, 11: 92, 12: 93, 13: 94, 15: 95}.get(i)
    return S_PROF + i


def stamp(a, i, real=False, late=False, k1=False):
    if k1:
        i = {2: None, 4: None, 6: 10, 8: 11}[i]
        if i is None or PROF != 5:
            return
    elif PROF == 5 and i not in (0, 15, 6, 9):
        return
    if PROF and not (late and PROF == 2):
        a("s_waitcnt lgkmcnt(0)")
        a(("s_memrealtime" if real or PROF in (3, 5) else "s_memtime") + " s[80:81]")
        a("s_waitcnt lgkmcnt(0)")
        a(f"s_mov_b32 s{preg(i)}, s80")
        if PROF == 4 and i == 7:
            a("s_memrealtime s[80:81]" if opt("rt", 0) else "s_memtime s[80:81]")


def prof_dump(a, wsreg, kern, nwave_shift, wavereg):
    if PROF:
        a(f"s_lshl_b32 s80, s2, {nwave_shift}")
        a(f"s_add_u32 s80, s80, s{wavereg}")
        a("s_lshl_b32 s80, s80, 6")
        a(f"s_add_u32 s80, s80, {WS_PROF + kern * 0x100000}")
        srd(a, 4, wsreg, "s80", 64)
        a("v_mov_b32 v0, 0")
        for i in range(16):
            if preg(i) is None:
                continue
            a(f"v_mov_b32 v1, s{preg(i)}")
            a(f"buffer_store_dword v1, v0, s[4:7], 0 offen offset:{4*i}")


def srd(a, d, b, off, size):
    a(f"s_add_u32 s{d}, s{b}, {off}")
    a(f"s_addc_u32 s{d+1}, s{b+1}, 0")
    a(f"s_mov_b32 s{d+2}, {size}")
    a(f"s_mov_b32 s{d+3}, 0x20000")


def scan64(a, v):
    for sh in (1, 2, 4, 8):
        a(f"v_add_u32_dpp v{v}, v{v}, v{v} row_shr:{sh} row_mask:0xf bank_mask:0xf bound_ctrl:1")
    a(f"v_add_u32_dpp v{v}, v{v}, v{v} row_bcast:15 row_mask:0xa bank_mask:0xf")
    a(f"v_add_u32_dpp v{v}, v{v}, v{v} row_bcast:31 row_mask:0xc bank_mask:0xf")


K1_ERAW = 0
K1_MS = 102400
K1_INV = K1_MS + 38400
K1_HIST = K1_INV + 6400
K1_LDS = 152 * 1024


def prep_tables(a, ST):
    a("v_add_u32 v4, s60, v0")
    a("v_and_b32 v5, 3, v4")
    a("v_bfe_u32 v6, v4, 2, 4")
    a("v_bfe_u32 v7, v4, 6, 2")
    a("v_lshrrev_b32 v8, 8, v4")
    a("v_cmp_le_u32 vcc, 10, v8")
    a("v_cndmask_b32 v9, 0, 1, vcc")
    a("v_mul_u32_u24 v10, 10, v9")
    a("v_sub_u32 v10, v8, v10")
    a("v_lshl_add_u32 v11, v7, 2, v5")
    a("v_mul_u32_u24 v11, 320, v11")
    a("v_lshrrev_b32 v12, 1, v10")
    a("v_lshl_add_u32 v11, v12, 6, v11")
    a("v_lshl_add_u32 v11, v9, 5, v11")
    a("v_and_b32 v12, 1, v10")
    a("v_lshl_add_u32 v11, v12, 4, v11")
    a("v_add_u32 v11, v11, v6")
    a("v_lshlrev_b32 v11, 1, v11")
    a("buffer_load_ushort v13, v11, s[16:19], 0 offen")
    a("v_mov_b32 v30, 0x80000000")
    for t in range(2):
        b = 32 + 8 * t
        a(f"v_add_u32 v14, {20*t}, v8")
        a("v_mul_u32_u24 v15, 26, v14")
        a("v_lshrrev_b32 v15, 8, v15")
        a("v_mul_u32_u24 v16, 10, v15")
        a("v_sub_u32 v16, v14, v16")
        a("v_lshrrev_b32 v17, 1, v16")
        a("v_and_b32 v18, 1, v16")
        a("v_lshl_add_u32 v19, v7, 2, v5")
        a("v_lshl_add_u32 v19, v18, 5, v19")
        a("v_lshl_add_u32 v19, v17, 6, v19")
        a("v_lshrrev_b32 v20, 1, v15")
        a("v_and_b32 v21, 1, v15")
        a("v_lshrrev_b32 v22, 2, v6")
        a("v_lshlrev_b32 v22, 3, v22")
        a("v_lshl_add_u32 v22, v20, 5, v22")
        a("v_lshl_add_u32 v22, v21, 2, v22")
        a("v_and_b32 v23, 3, v6")
        a("v_add_u32 v22, v22, v23")
        a("v_lshl_add_u32 v22, v19, 6, v22")
        a("v_lshlrev_b32 v22, 1, v22")
        a("v_subrev_u32 v23, 16384, v22")
        a("v_cmp_gt_u32 vcc, 2, v17")
        a("v_cndmask_b32 v24, v30, v22, vcc")
        a("v_cndmask_b32 v25, v23, v30, vcc")
        a(f"buffer_load_ushort v{b}, v24, s[20:23], 0 offen")
        a(f"buffer_load_ushort v{b+1}, v24, s[20:23], 0 offen offset:2048")
        a(f"buffer_load_ushort v{b+2}, v25, s[24:27], 0 offen")
        a(f"buffer_load_ushort v{b+3}, v25, s[24:27], 0 offen offset:2048")
    a("v_lshlrev_b32 v4, 2, v4")
    a("s_mov_b32 s61, 20480")
    a("s_waitcnt vmcnt(0)")
    a("v_lshlrev_b32 v13, 16, v13")
    a("buffer_store_dword v13, v4, s[28:31], 0 offen" + ST)
    for t in range(2):
        b = 32 + 8 * t
        a(f"v_or_b32 v{b}, v{b}, v{b+2}")
        a(f"v_or_b32 v{b+1}, v{b+1}, v{b+3}")
        a(f"v_lshl_or_b32 v{b}, v{b+1}, 16, v{b}")
        a(f"buffer_store_dword v{b}, v4, s[32:35], {'0' if t == 0 else 's61'} offen{ST}")


def kernel1():
    a = Asm()
    NT = " nt" if opt("k1nt", 1) else ""
    ST = {0: "", 1: " nt", 2: " sc1"}[opt("k1st", 2)]
    a("s_cmp_ge_u32 s2, 255")
    a("s_cbranch_scc1 K1_end")
    a("s_load_dwordx8 s[4:11], s[0:1], 0")
    a("s_load_dwordx8 s[52:59], s[0:1], 32")
    a("s_load_dwordx2 s[14:15], s[0:1], 88")
    a("v_lshlrev_b32 v1, 4, v0")
    a("v_mul_u32_u24 v2, 24, v0")
    a("v_and_b32 v3, 63, v0")
    a("v_lshlrev_b32 v3, 4, v3")
    a("v_lshrrev_b32 v40, 6, v0")
    a("v_readfirstlane_b32 s3, v40")
    a("s_cmp_ge_u32 s2, 250")
    a("s_cbranch_scc1 K1_prep")
    stamp(a, 0, True)
    stamp(a, 1)
    a("s_mul_i32 s60, s2, 12800")
    a("s_mul_i32 s61, s2, 19200")
    a("s_mul_i32 s62, s2, 25600")
    a("s_mul_i32 s63, s2, 102400")
    a("s_mul_i32 s64, s2, 38400")
    a("s_lshl_b32 s65, s2, 10")
    a("s_waitcnt lgkmcnt(0)")
    srd(a, 16, 52, "s60", 12800)
    a(f"buffer_load_dwordx4 v[4:7], v1, s[16:19], 0 offen{NT}")
    a("v_lshlrev_b32 v41, 2, v0")
    a("v_mov_b32 v42, 0")
    a("s_cmp_ge_u32 s3, 4")
    a("s_cbranch_scc1 K1_nozero")
    a(f"v_add_u32 v41, {K1_HIST}, v41")
    a("ds_write_b32 v41, v42")
    a.label("K1_nozero")
    srd(a, 20, 10, "s60", 12800)
    srd(a, 24, 6, "s61", 19200)
    srd(a, 28, 4, "s62", 25600)
    srd(a, 32, 8, "s63", 102400)
    a("s_mov_b32 s66, 16384")
    a("s_lshl_b32 s67, s3, 10")
    kq = [int(c) for c in opt("kq", "00700")]

    def e_in(i):
        for k in range(sum(kq[:i]), sum(kq[:i + 1])):
            if k == 6:
                a("s_cmp_ge_u32 s3, 4")
                a("s_cbranch_scc1 K1_noe7")
            a("s_mov_b32 m0, s67")
            a(f"buffer_load_dwordx4 v3, s[32:35], s67 offen{NT} lds")
            a("s_add_u32 s67, s67, 16384")
            if k == 6:
                a.label("K1_noe7")

    def n_e(lo, hi):
        return min(sum(kq[:hi + 1]), 6) - min(sum(kq[:lo]), 6)

    e_in(0)
    a("s_waitcnt lgkmcnt(0)")
    a("s_barrier")
    RNT = NT if opt("rnt", 1) else ""
    a(f"buffer_load_dwordx4 v[8:11], v1, s[20:23], 0 offen{NT}")
    a(f"buffer_load_dwordx4 v[12:15], v2, s[24:27], 0 offen{RNT}")
    a(f"buffer_load_dwordx2 v[16:17], v2, s[24:27], 0 offen offset:16{RNT}")
    if opt("k1b2", 1):
        a("s_barrier")
    e_in(1)
    a(f"buffer_load_dwordx4 v[20:23], v1, s[28:31], 0 offen{NT}")
    a(f"buffer_load_dwordx4 v[24:27], v1, s[28:31], s66 offen{NT}")
    e_in(2)
    a("s_add_u32 s68, s64, %d" % WS_META)
    srd(a, 36, 14, "s68", 38400)
    a("s_add_u32 s68, s63, %d" % WS_EP)
    srd(a, 40, 14, "s68", 102400)
    srd(a, 44, 14, WS_XP, 2 * XHALF)
    srd(a, 48, 14, "s65", 1024)
    a("v_cmp_gt_u32 vcc, 800, v0")
    a("s_mov_b64 s[70:71], vcc")
    a("v_mov_b32 v43, 1")
    a(f"s_waitcnt vmcnt({5 + n_e(0, 2)})")
    stamp(a, 2)
    a("s_mov_b64 exec, s[70:71]")
    a("s_cbranch_execz K1_skip_rank")
    for i in range(4):
        a(f"v_mul_u32_u24 v{28+i}, 21400, v{4+i}")
        a(f"v_lshrrev_b32 v{28+i}, 20, v{28+i}")
        a(f"v_mul_u32_u24 v{36+i}, 49, v{28+i}")
        a(f"v_sub_u32 v{36+i}, v{4+i}, v{36+i}")
        a(f"v_lshlrev_b32 v{28+i}, 2, v{28+i}")
        a(f"v_add_u32 v{28+i}, {K1_HIST}, v{28+i}")
        a(f"ds_add_rtn_u32 v{32+i}, v{28+i}, v43")
    a.label("K1_skip_rank")
    a("s_mov_b64 exec, -1")
    a("s_waitcnt lgkmcnt(0)")
    a("s_barrier")
    stamp(a, 3)
    a("s_cmp_lg_u32 s3, 0")
    a("s_cbranch_scc1 K1_noscan")
    a(f"v_add_u32 v41, {K1_HIST}, v3")
    a("ds_read_b128 v[44:47], v41")
    a("s_waitcnt lgkmcnt(0)")
    a("v_add_u32 v49, v44, v45")
    a("v_add_u32 v50, v49, v46")
    a("v_add_u32 v51, v50, v47")
    a("v_mov_b32 v52, v51")
    scan64(a, 52)
    a("v_sub_u32 v52, v52, v51")
    a("v_add_u32 v53, v52, v44")
    a("v_add_u32 v54, v52, v49")
    a("v_add_u32 v55, v52, v50")
    a("ds_write_b128 v41, v[52:55]")
    for i in range(4):
        a(f"v_lshl_or_b32 v{56+i}, v{44+i}, 16, v{52+i}")
    a("buffer_store_dwordx4 v[56:59], v3, s[48:51], 0 offen")
    a("s_waitcnt lgkmcnt(0)")
    a.label("K1_noscan")
    e_in(3)
    a("v_lshrrev_b32 v60, 5, v0")
    a("s_mul_i32 s69, s2, 50")
    a("v_add_u32 v60, s69, v60")
    a("v_lshlrev_b32 v60, 8, v60")
    a("v_bfe_u32 v61, v0, 3, 2")
    a("v_lshl_add_u32 v60, v61, 6, v60")
    a("v_and_b32 v61, 3, v0")
    a("v_lshl_add_u32 v60, v61, 4, v60")
    a("v_bfe_u32 v61, v0, 2, 1")
    a(f"v_mul_u32_u24 v61, {XHALF}, v61")
    a("v_add_u32 v60, v60, v61")
    a("v_add_u32 v61, 8192, v60")
    a("v_cmp_gt_u32 vcc, 576, v0")
    a("v_mov_b32 v62, 0x80000000")
    a("v_cndmask_b32 v61, v62, v61, vcc")
    a("s_barrier")
    a("s_mov_b64 exec, s[70:71]")
    a("s_cbranch_execz K1_skip_scatter")
    for i in range(4):
        a(f"ds_read_b32 v{28+i}, v{28+i}")
    a(f"s_waitcnt vmcnt({2 + n_e(1, 3)})")
    a("s_mov_b32 s72, 0x80000000")
    a("s_mov_b32 s73, 0xffff0000")
    for i in range(4):
        a(f"v_lshl_or_b32 v{8+i}, v{8+i}, 8, v{36+i}")
        a(f"v_or_b32 v{8+i}, s72, v{8+i}")
    a("v_lshlrev_b32 v44, 16, v13")
    a("v_alignbit_b32 v45, v14, v13, 16")
    a("v_and_b32 v46, s73, v14")
    a("v_lshlrev_b32 v47, 16, v16")
    a("v_alignbit_b32 v48, v17, v16, 16")
    a("v_and_b32 v49, s73, v17")
    w1 = [12, 45, 15, 48]
    w2 = [44, 46, 47, 49]
    a("v_lshlrev_b32 v50, 2, v0")
    a("s_waitcnt lgkmcnt(0)")
    for i in range(4):
        a(f"v_add_u32 v{32+i}, v{32+i}, v{28+i}")
        a(f"v_mul_u32_u24 v{28+i}, 12, v{32+i}")
        a(f"v_add_u32 v{28+i}, {K1_MS}, v{28+i}")
        a(f"ds_write2_b32 v{28+i}, v{8+i}, v{w1[i]} offset0:0 offset1:1")
        a(f"ds_write_b32 v{28+i}, v{w2[i]} offset:8")
        a(f"v_lshlrev_b32 v{32+i}, 1, v{32+i}")
        a(f"v_add_u32 v{32+i}, {K1_INV}, v{32+i}")
        a(f"v_add_u32 v{52+i}, {i}, v50")
        a(f"ds_write_b16 v{32+i}, v{52+i}")
    a.label("K1_skip_scatter")
    a("s_mov_b64 exec, -1")
    a(f"s_waitcnt vmcnt({n_e(2, 3)})")
    a(f"buffer_store_dwordx4 v[20:23], v60, s[44:47], 0 offen{ST}")
    a(f"buffer_store_dwordx4 v[24:27], v61, s[44:47], 0 offen{ST}")
    e_in(4)
    a("s_waitcnt lgkmcnt(0)")
    a("s_barrier")
    stamp(a, 4)
    a(f"v_add_u32 v41, {K1_MS}, v1")
    a("ds_read_b128 v[4:7], v41")
    a("ds_read_b128 v[8:11], v41 offset:16384")
    a("ds_read_b128 v[12:15], v41 offset:32768")
    a("v_and_b32 v42, 0x3fe, v0")
    a(f"v_add_u32 v42, {K1_INV}, v42")
    for k in range(7):
        a(f"ds_read_u16 v{28+k}, v42 offset:{1024*k}")
    a("v_and_b32 v43, 1, v0")
    a("v_lshlrev_b32 v43, 4, v43")
    a("s_mov_b32 s74, 32768")
    a("s_waitcnt lgkmcnt(7)")
    a(f"buffer_store_dwordx4 v[4:7], v1, s[36:39], 0 offen{ST}")
    a(f"buffer_store_dwordx4 v[8:11], v1, s[36:39], s66 offen{ST}")
    a(f"buffer_store_dwordx4 v[12:15], v1, s[36:39], s74 offen{ST}")
    a("s_waitcnt lgkmcnt(0)")
    for k in range(7):
        a(f"v_lshl_add_u32 v{28+k}, v{28+k}, 5, v43")
    stamp(a, 5)
    a(f"s_waitcnt vmcnt({3 if kq[4] else 5})")
    a("s_barrier")
    stamp(a, 6)
    for k in range(6):
        a(f"ds_read_b128 v[{64+4*k}:{67+4*k}], v{28+k}")
    a("s_mov_b32 s75, 0")
    for k in range(6):
        a(f"s_waitcnt lgkmcnt({5-k})")
        a(f"buffer_store_dwordx4 v[{64+4*k}:{67+4*k}], v1, s[40:43], s75 offen{ST}")
        a("s_add_u32 s75, s75, 16384")
    a("s_cmp_ge_u32 s3, 4")
    a("s_cbranch_scc1 K1_fin")
    a("ds_read_b128 v[88:91], v34")
    a("s_waitcnt lgkmcnt(0)")
    a(f"buffer_store_dwordx4 v[88:91], v1, s[40:43], s75 offen{ST}")
    a.label("K1_fin")
    if opt("cpf", 2) & 4:
        a(f"s_cmp_ge_u32 s2, {opt('cpn', 8)}")
        a("s_cbranch_scc1 K1_nocpf")
        a("s_getpc_b64 s[76:77]")
        a.label("K1_here2")
        a("s_mov_b32 s78, K2_end-K1_here2")
        a("s_mov_b32 s79, 0x20000")
        a("v_lshlrev_b32 v60, 7, v0")
        a("buffer_load_dword v61, v60, s[76:79], 0 offen")
        a("s_waitcnt vmcnt(0)")
        a.label("K1_nocpf")
    stamp(a, 7)
    if PROF:
        a("s_waitcnt vmcnt(0)")
    stamp(a, 8)
    stamp(a, 15, True)
    prof_dump(a, 14, 0, 4, 3)
    a("s_endpgm")

    a.label("K1_prep")
    a("s_waitcnt lgkmcnt(0)")
    srd(a, 16, 54, 0, 16 * 320 * 2)
    srd(a, 20, 56, 0, 128 * 64 * 2)
    srd(a, 24, 58, 0, 192 * 64 * 2)
    srd(a, 28, 14, WS_WTAB, 20480)
    srd(a, 32, 14, WS_WSI, 40960)
    if opt("cpf", 2) & 2:
        a("s_getpc_b64 s[36:37]")
        a.label("K1_here")
        a("s_mov_b32 s38, K2_end-K1_here")
        a("s_mov_b32 s39, 0x20000")
        a("v_lshlrev_b32 v60, 7, v0")
        a("buffer_load_dword v61, v60, s[36:39], 0 offen")
    a("s_sub_u32 s60, s2, 250")
    a("s_lshl_b32 s60, s60, 10")
    prep_tables(a, "")
    a.label("K1_end")
    a("s_endpgm")
    return a


CAP = 3392
SLOWCAP = 256
MAXSTEPS = 142
MAXWSTEPS = 20
L_E = 0
L_RING = 32 + CAP * 32
RING_W = 6336
SUBB = 2112
L_SA = L_RING
L_SB = L_SA + MAXSTEPS * 128
L_MISC = L_SB + MAXSTEPS * 256
L_CNT = L_MISC
L_FLAG = L_MISC + 256
L_WSUM = L_MISC + 272
L_DUMMY = L_WSUM + 16
L_MAP = 94208
K2_LDS = 163840
assert L_MAP + CAP * 4 <= L_RING and L_DUMMY + 256 <= K2_LDS and L_RING + 8 * RING_W <= L_MISC

ACC = 0
WR = 88
B0 = 128
B1 = 144
GS, G0, G1, G2, N0, N2 = 160, 164, 168, 172, 176, 180
SEL = 184
M0R = 188
MBR = 198
GSP = (160, 252)
NID = 218
Y = 220
REP = 223
XA = 224
XOFF, QQ8, BAE, BAO, POFF, NST = 228, 230, 231, 232, 233, 234
U, PT, T8, EA = 236, 244, 235, 248
T0 = 236
TID, LANE = 250, 251
NVGPR = 256
XBIAS = 2048

S_WAVE = 3
R_XP, R_EP, R_MT, R_TB, R_P, R_W, R_OUT, R_ACC = 4, 8, 12, 16, 20, 24, 28, 32
S_NN, S_T, S_R0, S_LEN, S_CAP = 36, 37, 38, 39, 40
S_NODE0, S_NNW, S_STEP0, S_NS = 41, 42, 43, 44
S_D, S_REM, S_NODE, S_PHASE, S_TAB0, S_TAB1, S_RB, S_POFF = 45, 46, 47, 48, 49, 50, 51, 52
S_HI, S_SGN = 100, 101
S_MASK = 64
S_LAST = 78
S_NEND = 79
S_EM0 = 57
S_EVT = 59
S_OLD = 53
S_LEFT, S_PADR = 58, 63
S_NID = 58
NEWTAIL = opt('newtail', 0)
DRY = NEWTAIL and opt('dry', 0)
R_DBG = 84
S_EB1, S_EB2 = 88, 89

PPOL = ["", " sc1", " nt", " sc0 sc1"][opt("ppol", 0)]
OPOL = ["", " sc1", " nt", " sc0 sc1"][opt("opol", 0)]

TPATH = [0, 1, 2, 2, 2, 3, 3, 3, 4, 4, 4]
P0, P1 = 0, 1
P2 = [2, 3, 4]
P3 = [5, 6, 7]
P4 = [8, 9, 10]


def acc(t, cq):
    return ACC + 4 * (2 * t + cq)


def mfma_list():
    out = []
    for t, A, B, fl in ((P2[0], G0, B0, 1), (P1, G0, B0 + 8, 1), (P0, GS, B0, 1), (P3[0], GS, B0 + 8, 1),
                        (P2[2], G2, B0, 1), (P4[1], G2, B0 + 8, 1), (P2[1], G1, B0, 1), (P4[2], G1, B0 + 8, 1),
                        (P4[2], N0, B1, 0), (P4[1], N0, B1 + 8, 0), (P3[1], GS, B1, 1), (P3[2], GS, B1 + 8, 1),
                        (P4[0], N2, B1, 1), (P1, G2, B1 + 8, 0), (P1, G1, B1, 0), (P4[0], G1, B1 + 8, 0)):
        for cq in range(2):
            out.append((t, cq, A, B + 4 * cq, fl))
    if opt("chain", 1):
        n2, g2p1, g1p1, g1p4 = out[24:26], out[26:28], out[28:30], out[30:32]
        out[16], out[17] = out[17], out[16]
        out[24:32] = [g1p1[0], g2p1[0], g1p1[1], g2p1[1], n2[0], g1p4[0], n2[1], g1p4[1]]
    return out


def emit_mfma(a, m, first, p0, q0):
    t, cq, A, B, fl = m
    if A == GS:
        A = GSP[p0]
    if opt("nomfma", 0):
        return
    d = vr(acc(t, cq), 4)
    c = "0" if (first and fl) else d
    if q0:
        a(f"v_mfma_f32_16x16x16_bf16 {d}, {vr(A,2)}, {vr(B,2)}, {c}")
    else:
        a(f"v_mfma_f32_16x16x32_bf16 {d}, {vr(A,4)}, {vr(B,4)}, {c}")


def b_reads(k, pos):
    B = B0 if k < 2 else B1
    hf = k & 1
    return [f"ds_read_b64_tr_b16 {vr(B + 4*u + 2*hf, 2)}, v{BAE if u % 2 == 0 else BAO} offset:{pos*SUBB + u*32}"
            for u in range(4)]


def vmwait(n):
    return [] if opt("nowait", 0) else [f"s_waitcnt vmcnt({n})"]


def dma(k, pos):
    if opt("nodma", 0):
        return [[], [], []]
    hf, bp = k & 1, k >> 1
    so = S_TAB0 if bp == 0 else S_TAB1
    pol = ["", " sc1", " nt", " sc0 sc1", " sc0"][opt("xpol", 0)]
    return [[f"s_add_u32 m0, s{S_RB}, {pos*SUBB}"],
            [f"buffer_load_dwordx4 v{XA + 2*hf}, s[{R_XP}:{R_XP+3}], s{so} offen{pol} lds"],
            [f"buffer_load_dwordx4 v{XA + 2*hf + 1}, s[{R_XP}:{R_XP+3}], s{so} offen offset:1088{pol} lds"]]


W0_FETCH = [f"s_lshr_b32 s54, s{S_D}, 1",
            "s_set_gpr_idx_on s54, gpr_idx(SRC0)",
            f"v_mov_b32 v{REP}, v{M0R}",
            "s_set_gpr_idx_off"]
W0_REP = [f"v_mov_b32_dpp v{REP}, v{REP} row_shr:4 row_mask:0xf bank_mask:0xa",
          f"v_mov_b32_dpp v{REP}, v{REP} row_shl:4 row_mask:0xf bank_mask:0x5"]
WRAP = [f"s_mov_b32 s{S_D}, 0",
        f"s_add_u32 s{S_TAB0}, s{S_TAB0}, {XHALF}",
        f"s_add_u32 s{S_TAB1}, s{S_TAB1}, {XHALF}"]


def x_addr(q):
    return f"v_add_u32_dpp v{XA+q}, v{REP}, v{XOFF + (q & 1)} quad_perm:[{q},{q},{q},{q}] row_mask:0xf bank_mask:0xf"


META_SET = [f"s_set_gpr_idx_on s{S_D}, gpr_idx(SRC1)",
            f"v_mad_u32_u16 v{T8}, 8, v{MBR+1}, 0",
            f"v_lshlrev_b32 v{Y}, 16, v{MBR}",
            f"v_and_b32 v{Y+1}, s{S_HI}, v{MBR}",
            f"v_and_b32 v{Y+2}, s{S_HI}, v{MBR+1}",
            "s_set_gpr_idx_off"]


def e_addr(p):
    return [f"v_add_u32_dpp v{EA+h}, v{T8}, v{QQ8} quad_perm:[{2*p+h},{2*p+h},{2*p+h},{2*p+h}] "
            "row_mask:0xf bank_mask:0xf" for h in range(2)]


def e_reads(dst):
    return [f"ds_read_b64_tr_b16 {vr(dst + 2*h, 2)}, v{EA+h}" for h in range(2)]


def unpack_valu(aa, p):
    return [f"v_lshlrev_b32 v{U+2*aa}, 16, v{GSP[p]+aa}", f"v_and_b32 v{U+2*aa+1}, s{S_HI}, v{GSP[p]+aa}"]


def gb(j, aa, p):
    if opt("nog", 0):
        return []
    hf, rl = aa >> 1, 2 * (aa & 1)
    pl = PT + 2 * (aa & 1)
    return [f"v_mul_f32_dpp v{pl}, v{Y+j}, v{U+2*aa} row_newbcast:{4*rl+2*p+hf} row_mask:0xf bank_mask:0xf",
            f"v_mul_f32_dpp v{pl+1}, v{Y+j}, v{U+2*aa+1} row_newbcast:{4*rl+4+2*p+hf} row_mask:0xf bank_mask:0xf",
            f"v_cvt_pk_bf16_f32 v{(G0, G1, G2)[j]+aa}, v{pl}, v{pl+1}"]


def neg(dst, src):
    return [f"v_xor_b32 v{dst+i}, s{S_SGN}, v{src+i}" for i in range(4)]


SHORT = opt("short", 0)


def body_name(rho, kind, p0, p1):
    return f"S{rho}{kind}{p0}{p1}"


def goto_next(a, rho, kind, p1, fall=False):
    if p1 == 0:
        a(f"s_cmp_eq_u32 s{S_D}, 0")
        a(f"s_cbranch_scc1 {body_name(rho, kind, 0, 0)}")
    if not fall:
        a(f"s_branch {body_name(rho, kind, p1, 1 - p1)}")


def issue_cost(l):
    op = l.split()[0]
    if op.endswith(":"):
        return 0
    if op.startswith("v_"):
        return 5.3 if "_dpp" in op or op.startswith(("v_cvt_pk", "v_mad")) else 4.2
    return {"d": 8, "b": 14}.get(op[0], 4.1)


def step_body(a, rho, kind, p0, p1, fall, cold):
    tag = body_name(rho, kind, p0, p1)
    first = kind == "f"
    x = 3 if first else 0
    p = lambda k: (rho + k) % 3
    F = [[] for _ in range(32)]

    def event(slot, n, k, pos):
        F[slot] += vmwait(n)
        for i, r in enumerate(b_reads(k, pos)):
            F[slot + i].append(r)

    def refill(slot, k, pos):
        d = dma(k, pos)
        F[slot - 1] += d[0]
        F[slot] += [f"WAIT {k}"] + d[1]
        F[slot + 1] += d[2]

    event(0, 4 + x, 2, p(2))
    refill(5, 1, p(2))
    event(8, 4 + x, 3, p(0))
    refill(13, 2, p(0))
    event(16, 4 + x, 0, p(1))
    refill(21, 3, p(1))
    event(24, 4, 1, p(2))
    refill(29, 0, p(2))
    F[31] += [f"s_sub_u32 s{S_REM}, s{S_REM}, 1"]
    if PROF == 4:
        F[30] += ["s_memrealtime s[80:81]" if opt("rt", 0) else "s_memtime s[80:81]"]
        F[7] += ["s_mov_b32 m0, s96", "s_add_u32 s96, s96, 1", "v_writelane_b32 v219, s80, m0"]

    qb = 1 - p0
    n0, n2 = neg(N0, G0), neg(N2, G2)
    ea, er = e_addr(p1), e_reads(GSP[qb])
    step = [f"s_add_u32 s{S_D}, s{S_D}, 1", f"s_cmp_lt_u32 s{S_D}, s{S_NS}", f"s_cbranch_scc0 {tag}_w"]
    if p1 == 1:
        fetch = [step + [f"{tag}_b:"] + W0_FETCH]
        rep = [[W0_REP[0]]]
        cold += [f"{tag}_w:"] + WRAP + [f"s_branch {tag}_b"]
    else:
        fetch = [step + W0_FETCH + ["FILL", W0_REP[1], f"{tag}_b:"]]
        rep = []
        cold += [f"{tag}_w:"] + WRAP + W0_FETCH + ["FILL", W0_REP[0], f"s_branch {tag}_b"]
    one = lambda lst: [[l] for l in lst]
    g0 = gb(0, 0, p1) + gb(0, 1, p1) + gb(0, 2, p1) + gb(0, 3, p1)
    g2 = gb(2, 0, p1) + gb(2, 1, p1)
    V = [(0, 6, g) for g in one(gb(2, 2, p0) + gb(2, 3, p0))]
    V += [(0, 10, g) for g in one(gb(1, 0, p0) + gb(1, 1, p0) + gb(1, 2, p0) + gb(1, 3, p0))]
    if p1 == 0:
        V += [(7, 11, META_SET)]
    V += [(0, 14, g) for g in one(n0[:2])]
    V += [(0, 14, [ea[0]]), (0, 14, [ea[1]]), (11, 15, [er[0]]), (11, 15, [er[1]])]
    V += [(0, 14, g) for g in one(n0[2:])]
    V += [(0, 22, g) for g in one(n2)]
    up = sum((unpack_valu(aa, qb) for aa in range(4)), [])
    V += [(opt("upe", 15), 22, ["WAIT e", up[0]])] + [(0, 24, g) for g in one(up[1:])]
    nb = opt("nb", 7)
    V += [(16, 30, g) for g in one(g0[:nb])]
    V += [(22, 26, g) for g in fetch] + [(0, 30, [g0[nb]])] + [(0, 27, g) for g in rep]
    V += [(0, 30, g) for g in one(g0[nb+1:nb+3])]
    V += [(0, 28, [x_addr(0)]), (0, 28, [x_addr(1)])]
    V += [(0, 30, g) for g in one(g0[nb+3:])]
    V += [(0, 31, [x_addr(2)]), (0, 31, [x_addr(3)])]
    if qb != p1:
        V += [(24, 31, [f"v_mov_b32 v{GSP[p1]+i}, v{GSP[qb]+i}" for i in range(4)])]
    V += [(0, 31, g) for g in one(g2[:2])] + [(27, 31, [g2[2]])] + [(27, 31, g) for g in one(g2[3:])]
    filler = g0[nb] if p1 == 0 else None
    if filler:
        V = [v for v in V if v[2] != [filler]]
    cost = lambda grp: sum(issue_cost(l) for l in grp)
    total = sum(cost(f) for f in F) + sum(cost(v[2]) for v in V)
    out, cum, i = [], 0.0, 0
    for sl in range(32):
        cum += cost(F[sl])
        mine = []
        while i < len(V):
            e, late, grp = V[i]
            must = any(V[j][1] <= sl for j in range(i, len(V)))
            if sl < e:
                assert not must, (tag, sl, grp)
                break
            if not must and cum + cost(grp) / 2 > total * (sl + 1) / 32:
                break
            mine += grp
            cum += cost(grp)
            i += 1
        tail = [l for l in F[sl] if l.startswith("s_sub")]
        out.append(mine[:1] + [l for l in F[sl] if l not in tail] + mine[1:] + tail
                   if mine and not mine[0].startswith(("s_", "WAIT", "ds_")) else
                   [l for l in F[sl] if l not in tail] + mine + tail)
    assert i == len(V)
    if opt("sched", 0) == 0:
        F = [[] for _ in range(32)]

        def spread(slot, lst, per=2):
            for i, l in enumerate(lst):
                if l is not None:
                    F[slot + i // per].append(l)

        def event2(slot, n, k, pos):
            r = b_reads(k, pos)
            F[slot] += vmwait(n) + r[:2]
            F[slot + 1] += r[2:]

        spread(0, gb(2, 2, p0) + gb(2, 3, p0) + gb(1, 0, p0) + gb(1, 1, p0) + gb(1, 2, p0) + gb(1, 3, p0))
        event2(0, 4 + x, 2, p(2))
        refill(4, 1, p(2))
        event2(8, 4 + x, 3, p(0))
        if p1 == 0:
            F[9] += META_SET
            spread(10, n0[:2] + ea)
            spread(13, n0[2:] + n2)
        else:
            spread(9, n0[:2] + ea + n0[2:])
            spread(13, n2)
        refill(12, 2, p(0))
        F[13] += er
        event2(16, 4 + x, 0, p(1))
        F[17] += ["WAIT e"]
        spread(17, up)
        refill(20, 3, p(1))
        g = g0 + g2
        filler = g[0] if p1 == 0 else None
        F[21] += fetch[0]
        if p1 == 1:
            F[22] += rep[0] + [g[0]]
        spread(23 - (p1 == 0), g[1:3], 2 if p1 == 1 else 1)
        spread(24, [x_addr(0), g[3], x_addr(1), g[4]] + g[5:9] + [x_addr(2), g[9], x_addr(3)], 2)
        spread(28, g[10:12], 1)
        spread(29, g[12:], 2)
        if qb != p1:
            F[24] += [f"v_mov_b32 v{GSP[p1]+i}, v{GSP[qb]+i}" for i in range(4)]
        event2(24, 4, 1, p(2))
        refill(28, 0, p(2))
        if PROF == 4:
            F[29] += ["s_memrealtime s[80:81]" if opt("rt", 0) else "s_memtime s[80:81]"]
            F[6] += ["s_mov_b32 m0, s96", "s_add_u32 s96, s96, 1", "v_writelane_b32 v219, s80, m0"]
        if PROF == 6 and first:
            F[6] += ["s_sub_u32 s62, s62, s80", f"s_add_u32 s{S_PROF+14}, s{S_PROF+14}, s62"]
        F[31] += [f"s_sub_u32 s{S_REM}, s{S_REM}, 1"]
        out = F
    flat = [(sl, l) for sl in range(32) for l in out[sl]]
    need = {"1": b_reads(2, p(2)), "2": b_reads(3, p(0)), "3": b_reads(0, p(1)), "0": None, "e": er}
    a.label(tag)
    ml = mfma_list()
    for sl in range(32):
        emit_mfma(a, ml[sl], first, p0, 0)
        for l in out[sl]:
            if l.startswith("WAIT"):
                pos = flat.index((sl, l))
                ds = [y for _, y in flat[:pos] if y.startswith("ds_")]
                want = need[l.split()[1]]
                n = 0 if want is None else len(ds) - 1 - max(k for k, y in enumerate(ds) if y in want)
                assert want is None or all(w in ds for w in want)
                l = f"s_waitcnt lgkmcnt({n})"
            if l == "FILL":
                l = filler
            if opt("nods", 0) and (l.startswith("ds_") or l.startswith("s_waitcnt lgkm")):
                continue
            if opt("novalu", 0) and l.startswith("v_") and not l.startswith(("v_writelane", "v_mfma")):
                continue
            a(l)
    for k, l in enumerate(cold):
        if l == "FILL":
            cold[k] = filler
    nr = (rho + 1) % 3
    if fall == "n":
        a(f"s_cbranch_scc1 EP{nr}{p1}")
        goto_next(a, nr, "n", p1, True)
    else:
        if p1 == 1:
            a(f"s_cbranch_scc0 {body_name(nr, 'n', 1, 0)}")
        else:
            a(f"s_cbranch_scc0 {tag}_c")
            cold += [f"{tag}_c:", f"s_cmp_lg_u32 s{S_D}, 0", f"s_cbranch_scc1 {body_name(nr, 'n', 0, 1)}",
                     f"s_branch {body_name(nr, 'n', 0, 0)}"]
        if fall != "e":
            a(f"s_branch EP{nr}{p1}")


def node_steps(lane):
    return [f"v_readlane_b32 s{S_REM}, v{NST}, s{lane}"]


def load_w(a, h):
    a(f"s_mov_b32 s57, {10240*h}")
    a(f"v_lshlrev_b32 v67, 4, v{LANE}")
    for pc in range(10):
        if pc % 4 == 0 and pc:
            a("s_add_u32 s57, s57, 4096")
        a(f"buffer_load_dwordx4 {vr(WR+4*pc,4)}, v67, s[{R_W}:{R_W+3}], s57 offen offset:{(pc%4)*1024}")


def pipeline_start(a):
    def run(lst):
        for l in lst:
            a(l)

    def dma_now(k, pos):
        for g in dma(k, pos):
            run(g)

    run(W0_FETCH + [W0_REP[0]] + [x_addr(q) for q in range(4)])
    dma_now(0, 0)
    dma_now(1, 1)
    dma_now(2, 2)
    run(META_SET + e_addr(0))
    a(f"s_waitcnt vmcnt({0 if opt('nodma', 0) else 6})")
    a("s_barrier")
    stamp(a, 6)
    run(e_reads(GSP[0]))
    run(["s_waitcnt vmcnt(4)"] + b_reads(0, 0) + ["s_waitcnt lgkmcnt(0)"])
    dma_now(3, 0)
    for aa in range(4):
        run(unpack_valu(aa, 0))
    run([f"s_mov_b32 s{S_D}, 1", f"s_cmp_lt_u32 s{S_D}, s{S_NS}", "s_cbranch_scc0 I_w"] + W0_FETCH + [W0_REP[1]])
    a("s_branch I_b")
    run(["I_w:"] + WRAP + W0_FETCH + [W0_REP[0], "I_b:"])
    run([x_addr(q) for q in range(4)])
    run(["s_waitcnt vmcnt(4)"] + b_reads(1, 1))
    run(gb(0, 0, 0) + gb(0, 1, 0) + gb(0, 2, 0) + gb(0, 3, 0) + gb(2, 0, 0) + gb(2, 1, 0))
    if PROF == 6:
        a("s_mov_b32 s62, 0")
        a("s_mov_b32 s80, 0")
        a(f"s_mov_b32 s{S_PROF+14}, 0")
    if PROF == 4:
        a("s_memrealtime s[80:81]" if opt("rt", 0) else "s_memtime s[80:81]")
        a("s_mov_b32 s96, 0")
        a("v_mov_b32 v219, 0")
    a("s_waitcnt lgkmcnt(0)")
    dma_now(0, 1)
    load_w(a, 0)
    if opt("prio", 1) == 1:
        a(f"s_cmp_lt_u32 s{S_WAVE}, 4")
        a("s_cbranch_scc1 I_p")
        a("s_setprio 1")
        a.label("I_p")
    goto_next(a, 0, "f", 0)


def epilogue(a, rho, p1, cold):
    tag = f"EP{rho}{p1}"
    a.label(tag)
    if PROF == 6:
        a("s_memtime s[80:81]")
    order = [P2[0], P0, P3[0], P2[2], P2[1], P4[2], P4[1], P3[1], P3[2], P1, P4[0]]
    book = [f"s_mul_i32 s55, s{S_NODE}, {P_NODE}",
            f"s_add_u32 s55, s55, s{S_POFF}",
            f"s_add_u32 s{S_NODE}, s{S_NODE}, 1",
            f"s_cmp_lt_u32 s{S_NODE}, s{S_NEND}",
            f"s_cselect_b32 s56, s{S_NODE}, -2",
            f"s_cselect_b32 s{S_NODE}, s{S_NODE}, s{S_NODE0}",
            *node_steps(S_NODE),
            *([f"s_lshl1_add_u32 s54, s{S_REM}, 2", f"s_sub_u32 s{S_LEFT}, s{S_LEFT}, s54"]
              if opt("prio", 1) == 2 else []),
            f"s_cmp_ge_u32 s56, s{S_EVT}"]
    if opt("prio", 1) == 2:
        a(f"v_mov_b32 v{B1+12}, s{S_PADR}")
        a(f"v_mov_b32 v{B1+13}, s{S_LEFT}")
        a(f"ds_wrxchg_rtn_b32 v{B1+14}, v{B1+12}, v{B1+13}")
    if opt("prio", 1) == 1:
        a(f"s_cmp_lt_u32 s{S_WAVE}, 4")
        a(f"s_cbranch_scc0 {tag}_p")
        a(f"s_setprio {2 if int(opt('prpat', '110110')[2 * rho + p1]) else 0}")
        a.label(f"{tag}_p")
    fb = []
    if opt("prio", 1) == 2:
        fb = ["s_waitcnt lgkmcnt(0)",
              f"v_readfirstlane_b32 s57, v{B1+14}",
              f"s_xor_b32 s54, s57, s{S_LEFT}",
              "s_bitcmp1_b32 s54, 0",
              f"s_cbranch_scc0 {tag}_p",
              f"s_cmp_gt_u32 s{S_LEFT}, s57",
              "s_setprio 0",
              f"s_cbranch_scc0 {tag}_p",
              "s_setprio 2",
              f"{tag}_p:"]
    for t in (order if opt("noep", 0) < 2 else []):
        pth = TPATH[t]
        for r in range(0 if opt("noep", 0) else 4):
            for cq in range(2):
                d, w = acc(t, cq), WR + 4 * (2 * pth + cq)
                if r == 0:
                    a(f"v_mul_f32 v{d}, v{d}, v{w}")
                else:
                    a(f"v_fmac_f32 v{d}, v{d+r}, v{w+r}")
        n = "-" if t == P4[2] else ""
        a(f"v_cvt_pk_bf16_f32 v{B1+t}, {n}v{acc(t,0)}, {n}v{acc(t,1)}")
        if t == P0:
            a(f"v_mov_b32 v{B1+11}, 0")
        if t == P3[0]:
            for l in fb:
                a(l)
        if t == P1:
            a(f"v_mfma_f32_16x16x32_bf16 {vr(20,4)}, {vr(SEL,4)}, {vr(B1+4,4)}, 0")
    a(book[0])
    a(f"v_mfma_f32_16x16x32_bf16 {vr(16,4)}, {vr(SEL,4)}, {vr(B1,4)}, 0")
    a(f"v_mfma_f32_16x16x32_bf16 {vr(24,4)}, {vr(SEL,4)}, {vr(B1+8,4)}, 0")
    a(f"v_cvt_pk_bf16_f32 v65, v20, v21")
    for l in book[1:]:
        a(l)
    a(f"buffer_store_dword v65, v{POFF}, s[{R_P}:{R_P+3}], s55 offen offset:256{PPOL}")
    for i in (0, 2):
        a(f"v_cvt_pk_bf16_f32 v{64+i}, v{16+4*i}, v{17+4*i}")
    for i in (0, 2):
        a(f"buffer_store_dword v{64+i}, v{POFF}, s[{R_P}:{R_P+3}], s55 offen offset:{256*i}{PPOL}")
    if opt("egx", 0):
        a("s_cselect_b32 s57, 1, 0")
        a(f"s_cmp_lg_u32 s{S_PHASE}, 0")
        a(f"s_cbranch_scc1 {tag}_noeg")
        for i in range(2):
            a("v_mul_lo_u32 v218, v218, s97")
            a("v_add_u32 v218, 12345, v218")
            a("v_mul_hi_u32 v67, v218, s96")
            a("v_lshlrev_b32 v67, 5, v67")
            a(f"s_mov_b32 m0, {L_DUMMY}")
            a(f"buffer_load_dword v67, s[92:95], 0 offen{['', ' nt', ' sc1'][opt('egx', 0) - 1]} lds")
        a.label(f"{tag}_noeg")
        a("s_cmp_lg_u32 s57, 0")
    if PROF == 6:
        a("s_memtime s[62:63]")
    a(f"s_cbranch_scc1 {tag}_evt")
    a.label(f"{tag}_go")
    goto_next(a, rho, "f", p1, True)
    c = Asm()
    c.label(f"{tag}_evt")
    c("s_cmp_eq_u32 s56, -2")
    c(f"s_cbranch_scc1 {tag}_end")
    c(f"s_mov_b32 s{S_EVT}, -2")
    c("s_and_b32 s54, s2, 31")
    c("s_lshl_b32 s54, s54, 3")
    c(f"s_add_u32 s54, s54, s{S_WAVE}")
    c(f"s_mul_i32 s54, s54, {98*128}")
    c(f"s_add_u32 s54, s54, {XHALF + XBIAS}")
    c(f"v_lshlrev_b32 v67, 7, v{LANE}")
    c(f"s_mov_b32 m0, {L_DUMMY}")
    if opt("pfm", 64) < 64:
        c(f"s_bfm_b64 exec, {opt('pfm', 64)}, 0")
    c(f"buffer_load_dword v67, s[{R_XP}:{R_XP+3}], s54 offen lds")
    c("s_mov_b64 exec, -1")
    c(f"s_branch {tag}_go")
    c.label(f"{tag}_end")
    c(f"s_cmp_lg_u32 s{S_PHASE}, 0")
    c("s_cbranch_scc1 TAIL")
    if PROF not in (6, 7):
        stamp(c, 7, late=True)
    c(f"s_mov_b32 s{S_EVT}, -2")
    if opt("otlb", 0):
        c("v_mov_b32 v67, 0")
        c(f"s_mov_b32 m0, {L_DUMMY}")
        c(f"buffer_load_dword v67, s[{R_OUT}:{R_OUT+3}], 0 offen lds")
    c(f"s_mov_b32 s{S_PHASE}, 1")
    c(f"s_mov_b32 s{S_POFF}, {P_HALF}")
    load_w(c, 1)
    c(f"s_branch {tag}_go")
    cold += c.lines


def signal(a, off, tag):
    a(f"s_cmp_lg_u32 s{S_WAVE}, 0")
    a(f"s_cbranch_scc1 {tag}")
    a("s_mov_b64 exec, 1")
    a("v_mov_b32 v110, 1")
    a("v_mov_b32 v111, 0")
    a(f"buffer_atomic_add v110, v111, s[{R_DBG}:{R_DBG+3}], 0 offen offset:{off} sc1")
    a("s_mov_b64 exec, -1")
    a.label(tag)


def poll(a, off, tag):
    a(f"s_cmp_lg_u32 s{S_WAVE}, 0")
    a(f"s_cbranch_scc1 {tag}_d")
    a("s_mov_b32 s62, 0x200000")
    a("v_mov_b32 v111, 0")
    a.label(f"{tag}_l")
    a(f"buffer_load_dword v110, v111, s[{R_DBG}:{R_DBG+3}], 0 offen offset:{off} sc1")
    a("s_sub_u32 s62, s62, 1")
    a(f"s_cbranch_scc1 {tag}_d")
    a("s_waitcnt vmcnt(0)")
    a("v_readfirstlane_b32 s63, v110")
    a("s_cmp_ge_u32 s63, 256")
    a(f"s_cbranch_scc1 {tag}_d")
    if opt("slp", 16):
        a(f"s_sleep {opt('slp', 16)}")
    a(f"s_branch {tag}_l")
    a.label(f"{tag}_d")


def part1(a):
    NT, ST = " nt", " sc1"
    D, SRC, RH, X, BA, RK, DL = 4, 12, 20, 32, 48, 56, 64
    a("s_load_dwordx8 s[4:11], s[0:1], 0")
    a("s_load_dwordx8 s[52:59], s[0:1], 32")
    a("s_load_dwordx4 s[12:15], s[0:1], 80")
    a("v_lshlrev_b32 v1, 4, v0")
    a("v_mul_u32_u24 v2, 24, v0")
    a("v_and_b32 v3, 63, v0")
    a("v_lshlrev_b32 v3, 4, v3")
    a("v_lshrrev_b32 v72, 6, v0")
    a(f"v_readfirstlane_b32 s{S_WAVE}, v72")
    a("s_mul_i32 s60, s2, 12800")
    a("s_mul_i32 s61, s2, 19200")
    a("s_mul_i32 s62, s2, 25600")
    a("s_mul_i32 s63, s2, 102400")
    a("s_mul_i32 s64, s2, 38400")
    a("s_lshl_b32 s65, s2, 10")
    a("s_mov_b32 s66, 8192")
    a("s_waitcnt lgkmcnt(0)")
    srd(a, R_DBG, 12, 0, 256)
    a("s_cmp_ge_u32 s2, 250")
    a("s_cbranch_scc1 P1_prep")
    srd(a, 16, 52, "s60", 12800)
    a(f"buffer_load_dwordx4 {vr(D,4)}, v1, s[16:19], 0 offen{NT}")
    a(f"buffer_load_dwordx4 {vr(D+4,4)}, v1, s[16:19], s66 offen{NT}")
    a("v_lshlrev_b32 v73, 2, v0")
    a("v_mov_b32 v74, 0")
    a(f"s_cmp_ge_u32 s{S_WAVE}, 4")
    a("s_cbranch_scc1 P1_nozero")
    a(f"v_add_u32 v73, {K1_HIST}, v73")
    a("ds_write_b32 v73, v74")
    a.label("P1_nozero")
    srd(a, 20, 10, "s60", 12800)
    srd(a, 24, 6, "s61", 19200)
    srd(a, 28, 4, "s62", 25600)
    srd(a, 32, 8, "s63", 102400)
    a("s_mov_b32 s69, 12288")
    a(f"s_lshl_b32 s67, s{S_WAVE}, 10")
    a("s_waitcnt lgkmcnt(0)")
    a("s_barrier")
    a(f"buffer_load_dwordx4 {vr(SRC,4)}, v1, s[20:23], 0 offen{NT}")
    a(f"buffer_load_dwordx4 {vr(SRC+4,4)}, v1, s[20:23], s66 offen{NT}")
    for r, so in ((0, "0"), (1, "s69")):
        a(f"buffer_load_dwordx4 {vr(RH+6*r,4)}, v2, s[24:27], {so} offen{NT}")
        a(f"buffer_load_dwordx2 {vr(RH+6*r+4,2)}, v2, s[24:27], {so} offen offset:16{NT}")
    a("s_mov_b32 s68, 0")
    for k in range(4):
        a(f"buffer_load_dwordx4 {vr(X+4*k,4)}, v1, s[28:31], s68 offen{NT}")
        a("s_add_u32 s68, s68, 8192")
    kb = [int(c, 16) for c in opt("kb", "d000")]

    def e_in(i):
        for k in range(sum(kb[:i]), sum(kb[:i + 1])):
            if k == 12:
                a(f"s_cmp_ge_u32 s{S_WAVE}, 4")
                a("s_cbranch_scc1 P1_noe13")
            a("s_mov_b32 m0, s67")
            a(f"buffer_load_dwordx4 v3, s[32:35], s67 offen{NT} lds")
            a("s_add_u32 s67, s67, 8192")
            if k == 12:
                a.label("P1_noe13")

    def n_e(i):
        return min(sum(kb[:i + 1]), 12)

    e_in(0)
    a("s_add_u32 s68, s64, %d" % WS_META)
    srd(a, 36, 14, "s68", 38400)
    a("s_add_u32 s68, s63, %d" % WS_EP)
    srd(a, 40, 14, "s68", 102400)
    srd(a, 44, 14, WS_XP, 2 * XHALF)
    srd(a, 48, 14, "s65", 1024)
    a("v_cmp_gt_u32 vcc, 288, v0")
    a("s_mov_b64 s[70:71], vcc")
    a("v_mov_b32 v75, 1")
    a(f"s_waitcnt vmcnt({10 + n_e(0)})")
    stamp(a, 2, k1=True)
    for i in range(8):
        if i == 4:
            a("s_mov_b64 exec, s[70:71]")
            a("s_cbranch_execz P1_skip_rank")
        a(f"v_mul_u32_u24 v{BA+i}, 21400, v{D+i}")
        a(f"v_lshrrev_b32 v{BA+i}, 20, v{BA+i}")
        a(f"v_mul_u32_u24 v{DL+i}, 49, v{BA+i}")
        a(f"v_sub_u32 v{DL+i}, v{D+i}, v{DL+i}")
        a(f"v_lshlrev_b32 v{BA+i}, 2, v{BA+i}")
        a(f"v_add_u32 v{BA+i}, {K1_HIST}, v{BA+i}")
        a(f"ds_add_rtn_u32 v{RK+i}, v{BA+i}, v75")
    a.label("P1_skip_rank")
    a("s_mov_b64 exec, -1")
    a("s_waitcnt lgkmcnt(0)")
    a("s_barrier")
    a(f"s_cmp_lg_u32 s{S_WAVE}, 0")
    a("s_cbranch_scc1 P1_noscan")
    a(f"v_add_u32 v73, {K1_HIST}, v3")
    a("ds_read_b128 v[76:79], v73")
    a("s_waitcnt lgkmcnt(0)")
    a("v_add_u32 v81, v76, v77")
    a("v_add_u32 v82, v81, v78")
    a("v_add_u32 v83, v82, v79")
    a("v_mov_b32 v84, v83")
    scan64(a, 84)
    a("v_sub_u32 v84, v84, v83")
    a("v_add_u32 v85, v84, v76")
    a("v_add_u32 v86, v84, v81")
    a("v_add_u32 v87, v84, v82")
    a("ds_write_b128 v73, v[84:87]")
    for i in range(4):
        a(f"v_lshl_or_b32 v{88+i}, v{76+i}, 16, v{84+i}")
    a(f"buffer_store_dwordx4 v[88:91], v3, s[48:51], 0 offen{ST}")
    a("s_waitcnt lgkmcnt(0)")
    a.label("P1_noscan")
    e_in(1)
    a("v_lshrrev_b32 v92, 5, v0")
    a("s_mul_i32 s69, s2, 50")
    a("v_add_u32 v92, s69, v92")
    a("v_lshlrev_b32 v92, 8, v92")
    a("v_bfe_u32 v93, v0, 3, 2")
    a("v_lshl_add_u32 v92, v93, 6, v92")
    a("v_and_b32 v93, 3, v0")
    a("v_lshl_add_u32 v92, v93, 4, v92")
    a("v_bfe_u32 v93, v0, 2, 1")
    a(f"v_mul_u32_u24 v93, {XHALF}, v93")
    a("v_add_u32 v92, v92, v93")
    a("v_cmp_gt_u32 vcc, 64, v0")
    a("v_mov_b32 v94, 0x80000000")
    a("v_cndmask_b32 v93, v94, v92, vcc")
    a("s_mov_b32 s72, 0x80000000")
    a("s_mov_b32 s73, 0xffff0000")
    a("v_lshlrev_b32 v95, 2, v0")
    a("s_barrier")
    for r in range(2):
        if r == 1:
            a("s_mov_b64 exec, s[70:71]")
            a("s_cbranch_execz P1_skip_scatter")
        for i in range(4):
            a(f"ds_read_b32 v{BA+4*r+i}, v{BA+4*r+i}")
        if r == 0:
            a(f"s_waitcnt vmcnt({4 + n_e(1)})")
        R = RH + 6 * r
        for i in range(4):
            a(f"v_lshl_or_b32 v{SRC+4*r+i}, v{SRC+4*r+i}, 8, v{DL+4*r+i}")
            a(f"v_or_b32 v{SRC+4*r+i}, s72, v{SRC+4*r+i}")
        a(f"v_lshlrev_b32 v76, 16, v{R+1}")
        a(f"v_alignbit_b32 v77, v{R+2}, v{R+1}, 16")
        a(f"v_and_b32 v78, s73, v{R+2}")
        a(f"v_lshlrev_b32 v79, 16, v{R+4}")
        a(f"v_alignbit_b32 v80, v{R+5}, v{R+4}, 16")
        a(f"v_and_b32 v81, s73, v{R+5}")
        w1 = [R, 77, R + 3, 80]
        w2 = [76, 78, 79, 81]
        a("s_waitcnt lgkmcnt(0)")
        for i in range(4):
            b, k = BA + 4 * r + i, RK + 4 * r + i
            a(f"v_add_u32 v{k}, v{k}, v{b}")
            a(f"v_mul_u32_u24 v{b}, 12, v{k}")
            a(f"v_add_u32 v{b}, {K1_MS}, v{b}")
            a(f"ds_write2_b32 v{b}, v{SRC+4*r+i}, v{w1[i]} offset0:0 offset1:1")
            a(f"ds_write_b32 v{b}, v{w2[i]} offset:8")
            a(f"v_lshlrev_b32 v{k}, 1, v{k}")
            a(f"v_add_u32 v{k}, {K1_INV}, v{k}")
            a(f"v_add_u32 v{82+i}, {2048*r + i}, v95")
            a(f"ds_write_b16 v{k}, v{82+i}")
    a.label("P1_skip_scatter")
    a("s_mov_b64 exec, -1")
    a(f"s_waitcnt vmcnt({n_e(1)})")
    a("s_mov_b32 s68, 0")
    for k in range(4):
        a(f"buffer_store_dwordx4 {vr(X+4*k,4)}, v{92 if k < 3 else 93}, s[44:47], s68 offen{ST}")
        a("s_add_u32 s68, s68, 4096")
    e_in(2)
    a("s_waitcnt lgkmcnt(0)")
    a("s_barrier")
    stamp(a, 4, k1=True)
    a(f"v_add_u32 v73, {K1_MS}, v1")
    for k in range(5):
        a(f"ds_read_b128 {vr(4+4*k,4)}, v73 offset:{8192*k}")
    a("v_and_b32 v74, 0x1fe, v0")
    a(f"v_add_u32 v74, {K1_INV}, v74")
    a("s_mov_b32 s68, 0")
    for k in range(5):
        a(f"s_waitcnt lgkmcnt({4-k})")
        a(f"buffer_store_dwordx4 {vr(4+4*k,4)}, v1, s[36:39], s68 offen{ST}")
        a("s_add_u32 s68, s68, 8192")
    for k in range(13):
        a(f"ds_read_u16 v{48+k}, v74 offset:{512*k}")
    e_in(3)
    a("v_and_b32 v75, 1, v0")
    a("v_lshlrev_b32 v75, 4, v75")
    a("s_waitcnt lgkmcnt(0)")
    for k in range(13):
        a(f"v_lshl_add_u32 v{48+k}, v{48+k}, 5, v75")
    a("s_waitcnt vmcnt(0)")
    a("s_barrier")
    stamp(a, 6, k1=True)
    if opt("siga", 0) == 0:
        signal(a, 0, "P1_sa")
    for k in range(12):
        a(f"ds_read_b128 {vr(128+4*k,4)}, v{48+k}")
    a("s_mov_b32 s68, 0")
    for k in range(12):
        a(f"s_waitcnt lgkmcnt({11-k})")
        a(f"buffer_store_dwordx4 {vr(128+4*k,4)}, v1, s[40:43], s68 offen{ST}")
        a("s_add_u32 s68, s68, 8192")
    a(f"s_cmp_ge_u32 s{S_WAVE}, 4")
    a("s_cbranch_scc1 P1_fin" if opt("siga", 0) == 0 else "s_cbranch_scc1 P1_fin2")
    a("ds_read_b128 v[176:179], v60")
    a("s_waitcnt lgkmcnt(0)")
    a(f"buffer_store_dwordx4 v[176:179], v1, s[40:43], s68 offen{ST}")
    a("s_branch P1_fin" if opt("siga", 0) == 0 else "s_branch P1_fin2")

    if opt("siga", 0) == 1:
        a.label("P1_fin2")
        signal(a, 0, "P1_sa")
        a(f"s_cmp_lg_u32 s{S_WAVE}, 0")
        a("s_cbranch_scc1 P1_fin")
        a("s_waitcnt vmcnt(1)")
        a("s_branch P1_fin3")
    if opt("siga", 0) == 2:
        a.label("P1_fin2")
        a("s_waitcnt vmcnt(0)")
        a("s_barrier")
        stamp(a, 8, k1=True)
        signal(a, 0, "P1_sa")
        a("s_branch P1_fin4")
    a.label("P1_prep")
    a("s_cmp_eq_u32 s2, 255")
    a("s_cbranch_scc1 P1_prepd")
    srd(a, 16, 54, 0, 16 * 320 * 2)
    srd(a, 20, 56, 0, 128 * 64 * 2)
    srd(a, 24, 58, 0, 192 * 64 * 2)
    srd(a, 28, 14, WS_WTAB, 20480)
    srd(a, 32, 14, WS_WSI, 40960)
    a("s_sub_u32 s60, s2, 250")
    a("s_lshl_b32 s60, s60, 10")
    for it in range(2):
        prep_tables(a, ST)
        a("s_add_u32 s60, s60, 512")
    a.label("P1_prepd")
    a("s_waitcnt vmcnt(0)")
    a("s_barrier")
    signal(a, 0, "P1_sa2")
    a.label("P1_fin")
    a("s_waitcnt vmcnt(0)")
    a.label("P1_fin3")
    a("s_barrier")
    stamp(a, 8, k1=True)
    a.label("P1_fin4")
    signal(a, 128, "P1_sb")


BAL = opt("bal", 1)


def meta_set_addresses(a):
    a(f"v_lshrrev_b32 v164, 4, v{LANE}")
    a("v_lshlrev_b32 v164, 2, v164")
    a(f"v_bfe_u32 v165, v{LANE}, 2, 1")
    a("v_lshl_add_u32 v160, v165, 5, v164")
    a(f"v_bfe_u32 v165, v{LANE}, 1, 1")
    a("v_lshl_add_u32 v160, v165, 4, v160")
    a("v_lshl_add_u32 v161, v165, 5, v164")
    a(f"v_and_b32 v165, 1, v{LANE}")
    a("v_lshl_add_u32 v160, v165, 1, v160")
    a("v_lshl_add_u32 v161, v165, 4, v161")
    a(f"v_bfe_u32 v165, v{LANE}, 3, 1")
    a("v_add_u32 v160, v160, v165")
    a(f"v_bfe_u32 v165, v{LANE}, 2, 2")
    a("v_add_u32 v161, v161, v165")
    a(f"v_mov_b32 v162, {L_SB}")
    a(f"v_mov_b32 v163, {L_SA}")
    a("v_lshl_add_u32 v160, v160, 2, v163")
    a("v_lshl_add_u32 v161, v161, 3, v162")


def balanced_partition(a):
    L = LANE
    a("v_add_u32 v14, 31, v14")
    a("v_lshrrev_b32 v14, 5, v14")
    a("v_max_u32 v14, 1, v14")
    a(f"v_cmp_gt_u32 s[60:61], s{S_NN}, v{L}")
    a("v_cndmask_b32 v14, 0, v14, s[60:61]")
    a("v_cmp_lt_u32 vcc, 2, v14")
    a("s_andn2_b64 s[60:61], s[60:61], vcc")
    a("s_bcnt1_i32_b64 s62, vcc")
    a("s_bcnt1_i32_b64 s63, s[60:61]")
    a("v_mbcnt_lo_u32_b32 v32, vcc_lo, 0")
    a("v_mbcnt_hi_u32_b32 v32, vcc_hi, v32")
    a("v_mov_b32 v33, s62")
    a("v_mbcnt_lo_u32_b32 v33, s60, v33")
    a("v_mbcnt_hi_u32_b32 v33, s61, v33")
    a("v_cndmask_b32 v32, v33, v32, vcc")
    a(f"v_cmp_gt_u32 vcc, s{S_NN}, v{L}")
    a(f"v_cndmask_b32 v32, v{L}, v32, vcc")
    a("v_lshlrev_b32 v32, 2, v32")
    a(f"v_lshl_or_b32 v33, v{L}, 8, v14")
    a("ds_permute_b32 v34, v32, v33")
    a(f"v_mad_u32_u24 v36, v{L}, s{S_NN}, 7")
    a("v_lshrrev_b32 v36, 3, v36")
    a("s_mul_i32 s58, s62, 10")
    a(f"s_mul_i32 s59, s{S_NN}, 26")
    a("s_add_u32 s58, s58, s59")
    a(f"v_mad_u32_u24 v37, v{L}, s58, 40")
    a("v_mul_u32_u24 v40, 208, v36")
    a("v_sub_u32 v37, v37, v40")
    a("v_max_i32 v37, 0, v37")
    a("v_mul_u32_u24 v37, 3277, v37")
    a("v_lshrrev_b32 v37, 18, v37")
    a("v_subrev_u32 v40, s63, v36")
    a("v_max_i32 v37, v37, v40")
    a("v_min_u32 v37, s62, v37")
    a("v_min_u32 v37, v37, v36")
    for sh in (1, 2, 4, 8):
        a(f"v_max_u32_dpp v37, v37, v37 row_shr:{sh} row_mask:0xf bank_mask:0xf bound_ctrl:1")
    a("v_sub_u32 v40, v36, v37")
    for sh in (1, 2, 4, 8):
        a(f"v_max_u32_dpp v40, v40, v40 row_shr:{sh} row_mask:0xf bank_mask:0xf bound_ctrl:1")
    a("v_sub_u32 v37, v36, v40")
    a("v_lshl_or_b32 v37, v36, 8, v37")
    a(f"s_cmp_eq_u32 s{S_NN}, {NPB}")
    a(f"s_mov_b32 s58, {-(-8*65536 // (N - 255*NPB))}")
    a(f"s_cmov_b32 s58, {-(-8*65536 // NPB)}")
    a(f"v_mul_u32_u24 v40, s58, v{L}")
    a("v_lshrrev_b32 v40, 16, v40")
    a("v_min_u32 v40, 7, v40")
    a("v_lshlrev_b32 v40, 2, v40")
    a("ds_bpermute_b32 v41, v40, v37")
    a("ds_bpermute_b32 v42, v40, v37 offset:4")
    a(f"s_and_b32 s60, s{S_WAVE}, 3")
    a("s_lshl_b32 s60, s60, 1")
    a(f"s_lshr_b32 s61, s{S_WAVE}, 2")
    a("s_add_u32 s59, s60, s61")
    a(f"s_mul_i32 s60, s59, s{S_NN}")
    a(f"s_add_u32 s61, s60, s{S_NN}")
    a("s_add_u32 s60, s60, 7")
    a("s_add_u32 s61, s61, 7")
    a(f"s_lshr_b32 s{S_NODE0}, s60, 3")
    a(f"s_lshr_b32 s{S_NEND}, s61, 3")
    a(f"s_sub_u32 s{S_NNW}, s{S_NEND}, s{S_NODE0}")
    a("s_waitcnt lgkmcnt(0)")
    a("v_lshrrev_b32 v43, 8, v41")
    PP = L
    if opt("mir", 1):
        PP = 33
        a("v_lshrrev_b32 v33, 8, v42")
        a("v_add3_u32 v33, v33, v43, -1")
        a(f"v_sub_u32 v33, v33, v{L}")
        a("v_and_b32 v40, 4, v40")
        a("v_cmp_eq_u32 vcc, 0, v40")
        a(f"v_cndmask_b32 v33, v33, v{L}, vcc")
    a("v_and_b32 v41, 0xff, v41")
    a("v_and_b32 v42, 0xff, v42")
    a(f"v_sub_u32 v43, v{PP}, v43")
    a("v_add_u32 v43, v43, v41")
    a(f"v_sub_u32 v40, v{PP}, v42")
    a("v_add_u32 v40, s62, v40")
    a("v_cmp_lt_u32 vcc, v43, v42")
    a("v_cndmask_b32 v40, v40, v43, vcc")
    a(f"v_cmp_gt_u32 vcc, s{S_NN}, v{L}")
    a(f"v_cndmask_b32 v40, v{L}, v40, vcc")
    a("v_lshlrev_b32 v40, 2, v40")
    a("ds_bpermute_b32 v41, v40, v34")
    a("s_waitcnt lgkmcnt(0)")
    a("v_and_b32 v14, 0xff, v41")
    a(f"v_subrev_u32 v{NST}, 1, v14")
    a(f"v_lshrrev_b32 v{NID}, 8, v41")
    a(f"v_lshlrev_b32 v41, 2, v{NID}")
    a("v_mov_b32 v19, v14")
    scan64(a, 19)
    a("v_sub_u32 v42, v19, v14")
    a("ds_permute_b32 v18, v41, v42")
    a("v_min_u32 v36, 63, v36")
    a("v_lshlrev_b32 v36, 2, v36")
    a("ds_bpermute_b32 v43, v36, v42")
    a("v_readlane_b32 s58, v19, 63")
    a("s_waitcnt lgkmcnt(0)")
    a("v_mov_b32 v40, v43")
    a("v_sub_u32_dpp v40, v43, v43 row_shl:1 row_mask:0xf bank_mask:0xf")
    a(f"v_readlane_b32 s{S_STEP0}, v43, s59")
    a(f"v_cmp_lt_u32 vcc, {MAXWSTEPS}, v40")
    a(f"v_readlane_b32 s{S_NS}, v40, s59")
    a("s_and_b32 s60, vcc_lo, 0xff")


def kernel2():
    a = Asm()
    a("s_cmp_ge_u32 s2, 256")
    a("s_cbranch_scc1 K2_end")
    if opt("xcdmap", 1) == 2:
        a("s_load_dwordx2 s[54:55], s[0:1], 80")
        a("s_getreg_b32 s58, hwreg(HW_REG_XCC_ID, 0, 3)")
        a("v_lshrrev_b32 v1, 6, v0")
        a("v_readfirstlane_b32 s3, v1")
        a(f"v_mov_b32 v3, {L_WSUM}")
        a("s_cmp_lg_u32 s3, 0")
        a("s_cbranch_scc1 CLAIMED")
        a("s_waitcnt lgkmcnt(0)")
        srd(a, 4, 54, 0, 256)
        a("s_mov_b64 exec, 1")
        a.label("CLAIM")
        a("v_mov_b32 v1, 1")
        a("s_lshl_b32 s59, s58, 5")
        a("v_mov_b32 v2, s59")
        a("buffer_atomic_add v1, v2, s[4:7], 0 offen sc0")
        a("s_add_u32 s58, s58, 1")
        a("s_and_b32 s58, s58, 7")
        a("s_waitcnt vmcnt(0)")
        a("v_readfirstlane_b32 s60, v1")
        a("s_cmp_ge_u32 s60, 32")
        a("s_cbranch_scc1 CLAIM")
        a("v_add_u32 v1, v1, v2")
        a("ds_write_b32 v3, v1")
        a("s_mov_b64 exec, -1")
        a.label("CLAIMED")
        a("s_waitcnt lgkmcnt(0)")
        a("s_barrier")
        a("ds_read_b32 v1, v3")
        a("s_waitcnt lgkmcnt(0)")
        a("v_readfirstlane_b32 s2, v1")
        a("s_and_b32 s2, s2, 255")
        a("s_barrier")
    if opt("xcdmap", 1) == 1:
        a("s_and_b32 s3, s2, 7")
        a("s_lshl_b32 s3, s3, 5")
        a("s_lshr_b32 s2, s2, 3")
        a("s_or_b32 s2, s2, s3")
    a(f"v_mov_b32 v{TID}, v0")
    a(f"s_mov_b32 s{S_R0}, 0")
    a(f"s_mov_b32 s{S_CAP}, {CAP}")
    stamp(a, 0, True)
    stamp(a, 1)
    if FUSED:
        part1(a)
        a(f"s_mov_b32 s{S_R0}, 0")
        a(f"s_mov_b32 s{S_CAP}, {CAP}")
        poll(a, 0, "POLL_A")
        a("s_barrier")
    a.label("ROUND")
    a("s_load_dwordx2 s[56:57], s[0:1], 88")
    a("s_load_dwordx2 s[54:55], s[0:1], 72")
    a(f"v_and_b32 v2, 255, v{TID}")
    a("v_lshlrev_b32 v3, 10, v2")
    a(f"v_and_b32 v{LANE}, 63, v{TID}")
    a(f"v_lshrrev_b32 v1, 6, v{TID}")
    a(f"v_readfirstlane_b32 s{S_WAVE}, v1")
    a("s_lshl_b32 s58, s2, 2")
    a("s_cmp_eq_u32 s2, 255")
    a(f"s_cselect_b32 s{S_NN}, {N - 255*NPB}, {NPB}")
    a("s_waitcnt lgkmcnt(0)")
    srd(a, R_TB, 56, WS_TAB, W * 1024)
    a(f"buffer_load_dword v20, v3, s[{R_TB}:{R_TB+3}], s58 offen")
    if opt("cpf", 2) & 1:
        a("s_getpc_b64 s[60:61]")
        a.label("K2_here")
        a("s_mov_b32 s62, K2_end-K2_here")
        a("s_mov_b32 s63, 0x20000")
        a(f"v_lshlrev_b32 v21, 7, v{TID}")
        a("buffer_load_dword v75, v21, s[60:63], 0 offen")
    if PROF:
        a("s_mov_b64 s[98:99], s[56:57]")
    if opt("egx", 0):
        a("s_load_dwordx2 s[92:93], s[0:1], 16")
        a("s_mov_b32 s94, 25600000")
        a("s_mov_b32 s95, 0x20000")
        a("s_mov_b32 s96, 800000")
        a("s_mov_b32 s97, 1664525")
        a(f"v_lshrrev_b32 v218, 1, v{TID}")
        a("s_lshl_b32 s59, s2, 8")
        a("v_add_u32 v218, s59, v218")
        a("s_mov_b32 s59, 0x9E3779B1")
        a("v_mul_lo_u32 v218, v218, s59")
        a("s_waitcnt lgkmcnt(0)")
    srd(a, R_W, 56, WS_WTAB, 0x12000)
    srd(a, R_MT, 56, WS_META, E * 12)
    srd(a, R_EP, 56, WS_EP, E * 32)
    srd(a, R_XP, 56, WS_XP - XBIAS, 2 * XHALF + XBIAS)
    a(f"s_mul_i32 s59, s2, {P_WG}")
    a(f"s_add_u32 s59, s59, {WS_P}")
    srd(a, R_P, 56, "s59", 2 * P_HALF)
    a("s_lshl_b32 s59, s2, 16")
    a(f"s_add_u32 s59, s59, {WS_ACC}")
    srd(a, R_ACC, 56, "s59", 65536)
    a(f"s_mul_i32 s59, s2, {NPB*512}")
    a(f"s_lshl_b32 s60, s{S_NN}, 9")
    srd(a, R_OUT, 54, "s59", "s60")
    a(f"s_mul_i32 s{S_RB}, s{S_WAVE}, {RING_W}")
    a(f"s_add_u32 s{S_RB}, s{S_RB}, {L_RING}")
    a(f"s_mov_b32 s{S_HI}, 0xffff0000")
    a(f"s_mov_b32 s{S_SGN}, 0x80008000")
    L = LANE
    a(f"v_bfe_u32 v3, v{L}, 4, 1")
    a(f"v_and_b32 v4, 7, v{L}")
    a("v_lshlrev_b32 v5, 1, v3")
    a("v_xor_b32 v4, v4, v5")
    a("v_lshlrev_b32 v4, 4, v4")
    a(f"v_add_u32 v{XOFF}, {0x80000000 + XBIAS}, v4")
    a(f"v_add_u32 v{XOFF+1}, {0x80000000 + XBIAS - 1088}, v4")
    a(f"v_and_b32 v4, 3, v{L}")
    a(f"v_lshlrev_b32 v{QQ8}, 3, v4")
    a(f"v_bfe_u32 v5, v{L}, 3, 1")
    a("v_mul_u32_u24 v5, 1088, v5")
    a(f"v_lshrrev_b32 v6, 4, v{L}")
    a("v_lshl_add_u32 v5, v6, 8, v5")
    a(f"v_bfe_u32 v7, v{L}, 2, 1")
    a("v_lshl_add_u32 v5, v7, 7, v5")
    a(f"v_add_u32 v5, v5, v{QQ8}")
    a(f"v_add_u32 v5, s{S_RB}, v5")
    a("v_lshlrev_b32 v7, 5, v3")
    a(f"v_add_u32 v{BAE}, v5, v7")
    a(f"v_sub_u32 v{BAO}, v5, v7")
    a(f"v_and_b32 v7, 15, v{L}")
    a("v_lshlrev_b32 v8, 2, v7")
    a(f"v_lshl_add_u32 v{POFF}, v6, 6, v8")
    a("v_and_b32 v8, 1, v7")
    a("v_lshlrev_b32 v8, 4, v8")
    a("v_mov_b32 v9, 0x3f80")
    a("v_lshlrev_b32 v8, v8, v9")
    a("v_and_b32 v9, 14, v7")
    for i in range(4):
        a(f"v_cmp_eq_u32 vcc, {4*i}, v9")
        a(f"v_cndmask_b32 v{SEL+i}, 0, v8, vcc")
    a(f"v_lshlrev_b32 v6, 2, v{TID}")
    a("v_mov_b32 v7, 0")
    a(f"v_add_u32 v8, {L_MISC}, v6")
    a(f"v_cmp_gt_u32 vcc, 68, v{TID}")
    a("s_and_saveexec_b64 s[58:59], vcc")
    a("ds_write_b32 v8, v7")
    a(f"v_cmp_gt_u32 vcc, 8, v{TID}")
    a("s_and_b64 exec, exec, vcc")
    a("ds_write_b32 v6, v7")
    a("s_mov_b64 exec, -1")
    a(f"v_lshlrev_b32 v13, 4, v{TID}")
    a(f"v_add_u32 v13, {L_SA}, v13")
    for i in range(4):
        a(f"v_mov_b32 v{28+i}, 0")
    nz = MAXSTEPS * 384 // 16
    for k in range(6):
        a(f"ds_write_b128 v13, v[28:31] offset:{8192*k}")
    a(f"v_cmp_gt_u32 vcc, {nz - 6*512}, v{TID}")
    a("s_mov_b64 exec, vcc")
    a(f"ds_write_b128 v13, v[28:31] offset:{8192*6}")
    a("s_mov_b64 exec, -1")
    a("v_mul_u32_u24 v14, 3200, v2")
    a(f"v_lshrrev_b32 v15, 8, v{TID}")
    a("v_mov_b32 v16, 0x80000000")
    a(f"s_waitcnt vmcnt({opt('cpf', 2) & 1})")
    stamp(a, 2)
    a("v_lshrrev_b32 v9, 16, v20")
    a("v_and_b32 v10, 0xffff, v20")
    a("v_add_u32 v14, v14, v10")
    NPF = opt("spf", 0) * 3
    if NPF:
        a("v_lshlrev_b32 v21, 7, v15")
        a("v_lshlrev_b32 v22, 5, v9")
        a("v_lshl_add_u32 v23, v14, 5, v21")
        a("v_cmp_lt_u32 vcc, v21, v22")
        a("v_add_u32 v24, 256, v21")
        a("v_cndmask_b32 v25, v16, v23, vcc")
        a("v_cmp_lt_u32 vcc, v24, v22")
        a("v_mul_u32_u24 v22, 12, v9")
        a("v_cndmask_b32 v26, v16, v23, vcc")
        a("v_mad_u32_u24 v23, v14, 12, v21")
        a("v_cmp_lt_u32 vcc, v21, v22")
        a("v_cndmask_b32 v27, v16, v23, vcc")
        a(f"buffer_load_dword v72, v27, s[{R_MT}:{R_MT+3}], 0 offen")
        a(f"buffer_load_dword v73, v25, s[{R_EP}:{R_EP+3}], 0 offen")
        a(f"buffer_load_dword v74, v26, s[{R_EP}:{R_EP+3}], 0 offen offset:256")
    a("v_mov_b32 v11, v9")
    scan64(a, 11)
    a("v_readlane_b32 s58, v11, 63")
    a(f"s_and_b32 s59, s{S_WAVE}, 3")
    a("s_lshl_b32 s60, s59, 2")
    a(f"s_add_u32 s60, s60, {L_WSUM}")
    a("v_mov_b32 v12, s60")
    a("v_mov_b32 v13, s58")
    a("ds_write_b32 v12, v13")
    a("v_sub_u32 v11, v11, v9")
    a(f"v_mov_b32 v12, {L_WSUM}")
    a("s_waitcnt lgkmcnt(0)")
    a("s_barrier")
    a("ds_read_b128 v[16:19], v12")
    a("s_waitcnt lgkmcnt(0)")
    for i in range(4):
        a(f"v_readfirstlane_b32 s{60+i}, v{16+i}")
    a("s_add_u32 s61, s61, s60")
    a("s_add_u32 s62, s62, s61")
    a(f"s_add_u32 s{S_T}, s63, s62")
    a("s_cmp_eq_u32 s59, 0")
    a("s_cselect_b32 s58, 0, s60")
    a("s_cmp_eq_u32 s59, 2")
    a("s_cselect_b32 s58, s61, s58")
    a("s_cmp_eq_u32 s59, 3")
    a("s_cselect_b32 s58, s62, s58")
    a(f"s_sub_u32 s{S_LEN}, s{S_T}, s{S_R0}")
    a(f"s_cmp_le_u32 s{S_LEN}, s{S_CAP}")
    a(f"s_cselect_b32 s{S_LAST}, 1, 0")
    a(f"s_min_u32 s{S_LEN}, s{S_LEN}, s{S_CAP}")
    a(f"s_sub_u32 s58, s58, s{S_R0}")
    a("v_add_u32 v11, s58, v11")
    a("v_sub_u32 v12, 0, v11")
    a("v_max_i32 v12, 0, v12")
    a(f"v_sub_u32 v13, s{S_LEN}, v11")
    a("v_min_i32 v13, v13, v9")
    a("v_add_u32 v12, v12, v15")
    a("v_sub_u32 v9, v13, v12")
    a("v_add_u32 v14, v14, v12")
    a("v_add_u32 v11, v11, v12")
    a("v_lshlrev_b32 v12, 2, v11")
    a(f"v_add_u32 v12, {L_MAP}, v12")
    a.label("MAPL")
    for i in range(16):
        a(f"v_cmp_lt_i32 vcc, {2*i}, v9")
        if i:
            a("v_add_u32 v14, 2, v14")
        a("s_and_b64 exec, exec, vcc")
        if i % 4 == 0:
            a("s_cbranch_execz MAPD")
        a(f"ds_write_b32 v12, v14 offset:{8*i}")
    a("v_add_u32 v14, 2, v14")
    a("v_add_u32 v12, 128, v12")
    a("v_subrev_u32 v9, 32, v9")
    a("s_branch MAPL")
    a.label("MAPD")
    a("s_mov_b64 exec, -1")
    a(f"v_add_u32 v12, {L_MAP}, v6")
    a(f"v_lshrrev_b32 v13, 1, v{LANE}")
    a(f"s_lshl_b32 s58, s{S_WAVE}, 5")
    a("v_add_u32 v13, s58, v13")
    a(f"v_lshl_add_u32 v14, v13, 2, v7")
    a(f"v_add_u32 v14, {L_MAP}, v14")
    a(f"v_and_b32 v15, 1, v{LANE}")
    a("v_lshlrev_b32 v15, 4, v15")
    a("s_waitcnt lgkmcnt(0)")
    a("s_barrier")
    stamp(a, 3)
    for k in range(7):
        a(f"ds_read_b32 v{20+k}, v12 offset:{2048*k}")
    for k in range(14):
        a(f"ds_read_b32 v{28+k}, v14 offset:{1024*k}")
    MREC = 44
    EPOL = ["", " sc1", " nt"][opt("epol", 0)]
    for k in range(7):
        a(f"v_add_u32 v17, {512*k}, v{TID}")
        a(f"v_cmp_gt_u32 s[{S_MASK+2*k}:{S_MASK+2*k+1}], s{S_LEN}, v17")
        a(f"s_waitcnt lgkmcnt({min(15, 20-k)})")
        a(f"v_mul_u32_u24 v{20+k}, 12, v{20+k}")
        a(f"v_cndmask_b32 v{20+k}, v16, v{20+k}, s[{S_MASK+2*k}:{S_MASK+2*k+1}]")
    if PROF == 2:
        stamp(a, 7)
    for k in range(7):
        a(f"buffer_load_dwordx3 {vr(MREC+4*k,3)}, v{20+k}, s[{R_MT}:{R_MT+3}], 0 offen{EPOL}")
    a("s_waitcnt lgkmcnt(0)")
    a(f"s_lshl_b32 s{S_EM0}, s{S_WAVE}, 10")
    a(f"s_add_u32 s{S_EM0}, s{S_EM0}, {L_E + 32}")
    EREG = 128
    for k in range(14):
        a(f"v_cmp_gt_u32 vcc, s{S_LEN}, v13")
        a(f"v_lshl_add_u32 v{28+k}, v{28+k}, 5, v15")
        a("v_add_u32 v13, 256, v13")
        a(f"v_cndmask_b32 v{EREG+k}, v16, v{28+k}, vcc")
    eb = [int(c) for c in opt("eb", "0554" if FUSED else "3551")]

    assert sum(eb[:1]) <= 10

    def e_batch(i, tag=""):
        for k in range(sum(eb[:i]), sum(eb[:i + 1])):
            if k == 13:
                a(f"s_cmp_ge_u32 s{S_WAVE}, 2")
                a("s_cbranch_scc1 NOE14")
            a(f"s_mov_b32 m0, s{S_EM0}")
            a(f"s_add_u32 s{S_EM0}, s{S_EM0}, 8192")
            a(f"buffer_load_dwordx4 v{EREG+k}, s[{R_EP}:{R_EP+3}], 0 offen{EPOL} lds")
            if k == 13:
                a.label("NOE14")

    if PROF == 2:
        stamp(a, 8)
    e_batch(0)
    if FUSED:
        a("v_mov_b32 v111, 0")
        a(f"buffer_load_dword v110, v111, s[{R_DBG}:{R_DBG+3}], 0 offen offset:128 sc1")
    if PROF == 2:
        stamp(a, 9)
    a("v_mov_b32 v17, 1")
    for k in range(7):
        a(f"s_waitcnt vmcnt({min(eb[0], 13) + 6 - k + FUSED})")
        if PROF == 2 and k in (0, 6):
            stamp(a, 10 if k == 0 else 11)
        a(f"v_and_b32 v{20+k}, 0xff, v{MREC+4*k}")
        a(f"v_lshlrev_b32 v{20+k}, 2, v{20+k}")
        a(f"v_add_u32 v18, {L_CNT}, v{20+k}")
        a(f"s_mov_b64 exec, s[{S_MASK+2*k}:{S_MASK+2*k+1}]")
        a(f"ds_add_rtn_u32 v{MREC+4*k+3}, v18, v17")
        a("s_mov_b64 exec, -1")
    a(f"v_lshlrev_b32 v12, 2, v{LANE}")
    a(f"v_add_u32 v12, {L_CNT}, v12")
    a(f"v_lshlrev_b32 v35, 2, v{TID}")
    a("v_add_u32 v35, 4, v35")
    RP = 144
    for k in range(7):
        r = MREC + 4 * k
        a(f"v_and_b32 v{r}, 0xffffff00, v{r}")
        a(f"v_add_u32 v36, {2048*k}, v35")
        a(f"v_or_b32 v{RP+2*k+1}, v{r+2}, v36")
        a(f"v_mov_b32 v{RP+2*k}, v{r+1}")
    meta_set_addresses(a)
    if FUSED:
        a("s_waitcnt vmcnt(0)")
        a("v_readfirstlane_b32 s60, v110")
    a("s_waitcnt lgkmcnt(0)")
    a("s_barrier")
    stamp(a, 4)
    if FUSED:
        a(f"s_lshr_b32 s{S_EB1}, s60, 8")
        a(f"s_mov_b32 s{S_EB2}, s{S_EB1}")
        a(f"s_cmp_eq_u32 s{S_EB1}, 0")
        a("s_cbranch_scc1 EB1_skip")
        e_batch(1)
        a("s_branch EB1_done")
        a.label("EB1_skip")
        a(f"buffer_load_dword v110, v111, s[{R_DBG}:{R_DBG+3}], 0 offen offset:128 sc1")
        a.label("EB1_done")
    else:
        e_batch(1)
    a("ds_read_b32 v14, v12")
    a("s_waitcnt lgkmcnt(0)")
    if BAL:
        balanced_partition(a)
    else:
        a("v_add_u32 v14, 31, v14")
        a("v_lshrrev_b32 v14, 5, v14")
        a("v_max_u32 v14, 1, v14")
        a(f"v_cmp_gt_u32 vcc, s{S_NN}, v{LANE}")
        a(f"v_mad_u32_u24 v15, v14, 10, {opt('epc', 6)}")
        a("v_cndmask_b32 v15, 0, v15, vcc")
        a("v_cndmask_b32 v14, 0, v14, vcc")
        a("v_lshl_or_b32 v18, v15, 16, v14")
        a(f"v_subrev_u32 v{NST}, 1, v14")
        a("v_mov_b32 v19, v18")
        scan64(a, 19)
        a("v_readlane_b32 s58, v19, 63")
        a("v_sub_u32 v18, v19, v18")
        a("v_and_b32 v19, 0xffff, v19")
        a("v_lshrrev_b32 v32, 16, v18")
        a("v_and_b32 v18, 0xffff, v18")
        a("v_lshl_add_u32 v32, v32, 1, v15")
        a("v_lshlrev_b32 v32, 2, v32")
        a("s_lshr_b32 s59, s58, 16")
        a("s_and_b32 s58, s58, 0xffff")
        a(f"s_and_b32 s60, s{S_WAVE}, 3")
        a("s_lshl_b32 s60, s60, 1")
        a(f"s_lshr_b32 s61, s{S_WAVE}, 2")
        a("s_add_u32 s60, s60, s61")
        a("s_mul_i32 s60, s60, s59")
        a("s_add_u32 s61, s60, s59")
        a("v_cmp_le_u32 vcc, s60, v32")
        a("v_cmp_gt_u32 s[62:63], s61, v32")
        a("s_and_b64 vcc, vcc, s[62:63]")
        a(f"s_bcnt1_i32_b64 s{S_NNW}, vcc")
        a(f"s_ff1_i32_b64 s{S_NODE0}, vcc")
        a(f"s_max_i32 s{S_NODE0}, s{S_NODE0}, 0")
        a(f"s_add_u32 s{S_NEND}, s{S_NODE0}, s{S_NNW}")
        a(f"s_sub_u32 s60, s{S_NEND}, 1")
        a("s_max_i32 s60, s60, 0")
        a(f"v_readlane_b32 s{S_STEP0}, v18, s{S_NODE0}")
        a(f"v_readlane_b32 s{S_NS}, v19, s60")
        a(f"s_sub_u32 s{S_NS}, s{S_NS}, s{S_STEP0}")
    assert BAL
    for k in range(7):
        a(f"ds_bpermute_b32 v{20+k}, v{20+k}, v18")
    a(f"s_lshl_b32 s59, s{S_STEP0}, 7")
    a("v_add_u32 v160, s59, v160")
    a("s_lshl_b32 s59, s59, 1")
    a("v_add_u32 v161, s59, v161")
    a(f"s_cmp_gt_u32 s58, {MAXSTEPS}")
    a("s_cselect_b32 s60, 1, s60")
    a("s_cmp_eq_u32 s60, 0")
    a("s_cbranch_scc1 SCATTER")
    a(f"s_mov_b32 s{S_CAP}, {SLOWCAP}")
    a("s_waitcnt vmcnt(0) lgkmcnt(0)")
    a("s_barrier")
    a("s_branch ROUND")
    a.label("SCATTER")
    if FUSED:
        a(f"s_cmp_lg_u32 s{S_EB1}, 0")
        a("s_cbranch_scc1 EB2_go")
        a("s_waitcnt vmcnt(0)")
        a("v_readfirstlane_b32 s60, v110")
        a(f"s_lshr_b32 s{S_EB2}, s60, 8")
        a(f"s_cmp_eq_u32 s{S_EB2}, 0")
        a("s_cbranch_scc1 EB2_skip")
        e_batch(1)
        a.label("EB2_go")
        e_batch(2)
        a.label("EB2_skip")
    else:
        e_batch(2)
    for k in range(7):
        r = MREC + 4 * k
        a(f"s_waitcnt lgkmcnt({6 - k + 2 * k if 6 + k <= 15 else 15})")
        a(f"v_lshl_add_u32 v{20+k}, v{20+k}, 5, v{r+3}")
        a(f"v_lshl_add_u32 v{r+1}, v{20+k}, 3, v162")
        a(f"v_lshl_add_u32 v{20+k}, v{20+k}, 2, v163")
        a(f"s_mov_b64 exec, s[{S_MASK+2*k}:{S_MASK+2*k+1}]")
        a(f"ds_write_b32 v{20+k}, v{r}")
        a(f"ds_write_b64 v{r+1}, {vr(RP+2*k,2)}")
        a("s_mov_b64 exec, -1")
    if FUSED:
        a(f"s_cmp_lg_u32 s{S_EB2}, 0")
        a("s_cbranch_scc1 EB3_nopoll")
        poll(a, 128, "POLL_B")
        a.label("EB3_nopoll")
    a("s_waitcnt lgkmcnt(0)")
    a("s_barrier")
    if FUSED:
        a(f"s_cmp_lg_u32 s{S_EB2}, 0")
        a("s_cbranch_scc1 EB3_go")
        e_batch(1)
        e_batch(2)
        a.label("EB3_go")
    e_batch(3)
    for s in range(10):
        a(f"ds_read_b32 v{M0R+s}, v160 offset:{256*s}")
        a(f"ds_read_b64 {vr(MBR+2*s,2)}, v161 offset:{512*s}")
    a(f"s_mov_b32 s{S_D}, 0")
    pfn = opt("pfn", 0)
    if pfn:
        a(f"s_sub_u32 s{S_EVT}, s{S_NEND}, {pfn}")
        a(f"s_max_i32 s{S_EVT}, s{S_EVT}, 0")
    else:
        a(f"s_mov_b32 s{S_EVT}, -2")
    a(f"s_mov_b32 s{S_PHASE}, 0")
    a(f"s_mov_b32 s{S_POFF}, 0")
    a(f"s_mov_b32 s{S_TAB0}, 0")
    a(f"s_mov_b32 s{S_TAB1}, 128")
    a(f"s_mov_b32 s{S_NODE}, s{S_NODE0}")
    for l in node_steps(S_NODE):
        a(l)
    if opt("prio", 1) == 2:
        a(f"s_lshr_b32 s54, s{S_WAVE}, 2")
        a(f"s_lshl2_add_u32 s{S_LEFT}, s{S_NS}, s54")
        a(f"s_add_u32 s{S_LEFT}, s{S_LEFT}, 256")
        a(f"s_lshl1_add_u32 s54, s{S_REM}, 2")
        a(f"s_sub_u32 s{S_LEFT}, s{S_LEFT}, s54")
        a(f"s_and_b32 s54, s{S_WAVE}, 3")
        a(f"s_lshl2_add_u32 s{S_PADR}, s54, {L_CNT + 240}")
    stamp(a, 5)
    a("s_waitcnt lgkmcnt(0)")
    a("s_barrier")
    if PROF and not opt("egx", 0):
        a(f"s_mov_b32 s{preg(12)}, s{S_NS}")
        a(f"s_mov_b32 s{preg(13)}, s{S_NNW}")
    a(f"s_cmp_lg_u32 s{S_NNW}, 0")
    a("s_cbranch_scc1 START")
    a("s_waitcnt vmcnt(0)")
    a("s_barrier")
    stamp(a, 6)
    a("s_branch TAIL")
    a.label("START")
    pipeline_start(a)
    cold = []
    for par in range(2):
        for rho in (0, 2, 1):
            epilogue(a, rho, par, cold)
            step_body(a, rho, "f", par, 1 - par, "n", cold)
            step_body(a, (rho + 1) % 3, "n", 1 - par, par, "e" if rho != 1 else "", cold)
    for rho in range(3):
        step_body(a, rho, "f", 0, 0, "", cold)
        step_body(a, rho, "n", 0, 0, "", cold)
    for l in cold:
        a(l)

    a.label("TAIL")
    a("s_setprio 0")
    WF, PF, D = 0, 80, 188
    if PROF == 4:
        a("v_mov_b32 v183, v219")
    stamp(a, 8, late=True)
    a(f"v_and_b32 v{T0+1}, 15, v{LANE}")
    a(f"s_lshr_b32 s56, s{S_WAVE}, 1")
    a("s_lshl_b32 s56, s56, 4")
    a(f"v_add_u32 v{T0+1}, s56, v{T0+1}")
    a(f"v_lshlrev_b32 v{T0+2}, 2, v{T0+1}")
    a(f"ds_bpermute_b32 v{T0+4}, v{T0+2}, v{NID}")
    a(f"v_lshrrev_b32 v{T0+2}, 4, v{LANE}")
    a(f"v_lshlrev_b32 v{T0+2}, 4, v{T0+2}")
    a("s_waitcnt lgkmcnt(0)")
    a(f"v_lshl_add_u32 v{T0+4}, v{T0+4}, 9, v{T0+2}")
    a(f"v_lshlrev_b32 v{T0}, 4, v{LANE}")
    a(f"s_and_b32 s54, s{S_WAVE}, 1")
    a("s_mul_i32 s55, s54, 20480")
    a(f"s_add_u32 s55, s55, {WS_WSI - WS_WTAB}")
    if NEWTAIL:
        def prework(tag):
            a(f"s_mul_i32 s56, s{S_NNW}, {P_NODE}")
            a(f"s_mul_i32 s57, s{S_NODE0}, {P_NODE}")
            a(f"s_mov_b32 s60, s{S_RB}")
            for k in range(6):
                a(f"v_cmp_gt_u32 vcc, s56, v{T0}")
                a("s_mov_b32 m0, s60")
                a("s_mov_b64 exec, vcc")
                a(f"s_cbranch_execz {tag}")
                a(f"buffer_load_dwordx4 v{T0}, s[{R_P}:{R_P+3}], s57 offen sc1 lds")
                a("s_mov_b64 exec, -1")
                a("s_add_u32 s57, s57, 1024")
                a("s_add_u32 s60, s60, 1024")
                a("s_sub_u32 s56, s56, 1024")
                a("s_max_i32 s56, s56, 0")
            a.label(tag)
            a("s_mov_b64 exec, -1")
            for f in range(20):
                if f % 4 == 0 and f:
                    a("s_add_u32 s55, s55, 4096")
                a(f"buffer_load_dwordx4 {vr(WF+4*f,4)}, v{T0}, s[{R_W}:{R_W+3}], s55 offen offset:{(f%4)*1024}")

        a(f"v_mov_b32 v{T0+5}, {L_CNT + 224}")
        a(f"v_mov_b32 v{T0+6}, 1")
        a(f"s_mul_i32 s56, s{S_NNW}, {P_NODE}")
        a(f"s_add_u32 s60, s56, s{S_RB}")
        a(f"v_add_u32 v{T0+7}, s60, v{POFF}")
        a("s_mov_b64 exec, 1")
        a(f"ds_add_rtn_u32 v{T0+6}, v{T0+5}, v{T0+6}")
        a("s_mov_b64 exec, -1")
        a(f"s_cmp_eq_u32 s{S_NNW}, 0")
        a("s_cbranch_scc1 T_NOREC")
        a("s_waitcnt vmcnt(3)")
        for i in range(3):
            a(f"ds_write_b32 v{T0+7}, v{64+i} offset:{256*i}")
        a.label("T_NOREC")
        a("s_waitcnt lgkmcnt(0)")
        a(f"v_readfirstlane_b32 s{S_OLD}, v{T0+6}")
        a(f"s_cmp_ge_u32 s{S_OLD}, {opt('tlast', 7)}")
        a("s_cbranch_scc1 T_BAR")
        if DRY:
            a("s_mov_b32 s62, 1")
            a(f"s_cmp_eq_u32 s{S_OLD}, 0")
            a("s_cbranch_scc1 T_MM")
            a.label("T_RET")
        prework("T_P1")
        a.label("T_BAR")
        a("s_barrier")
        stamp(a, 9, late=True)
        a(f"s_lshl_b32 s61, s{S_WAVE}, 10")
        a(f"s_add_u32 s61, s61, {P_HALF}")
        for k in range(5):
            if k == 4:
                a(f"s_cmp_ge_u32 s{S_WAVE}, 6")
                a("s_cbranch_scc1 NOP10")
            a("s_mov_b32 m0, s61")
            a(f"buffer_load_dwordx4 v{T0}, s[{R_P}:{R_P+3}], s61 offen sc1 lds")
            a("s_add_u32 s61, s61, 8192")
        a.label("NOP10")
        a(f"s_cmp_lt_u32 s{S_OLD}, {opt('tlast', 7)}")
        a("s_cbranch_scc1 T_DONE")
        prework("T_P2")
        a.label("T_DONE")
    else:
        a("s_waitcnt vmcnt(0)")
        for f in range(20):
            if f % 4 == 0 and f:
                a("s_add_u32 s55, s55, 4096")
            a(f"buffer_load_dwordx4 {vr(WF+4*f,4)}, v{T0}, s[{R_W}:{R_W+3}], s55 offen offset:{(f%4)*1024}")
        a("s_barrier")
        stamp(a, 9, late=True)
        a(f"s_lshl_b32 s55, s{S_WAVE}, 10")
        for k in range(10):
            if k == 9:
                a(f"s_cmp_ge_u32 s{S_WAVE}, 4")
                a("s_cbranch_scc1 NOP10")
            a("s_mov_b32 m0, s55")
            a(f"buffer_load_dwordx4 v{T0}, s[{R_P}:{R_P+3}], s55 offen sc1 lds")
            a("s_add_u32 s55, s55, 8192")
        a.label("NOP10")
    a(f"v_lshlrev_b32 v{T0+8}, 1, v{T0+4}")
    a(f"s_lshl_b32 s57, s54, 9")
    a(f"s_cmp_eq_u32 s{S_R0}, 0")
    a("s_cbranch_scc1 ZEROD")
    for i in range(8):
        a(f"buffer_load_dwordx4 {vr(D+4*i,4)}, v{T0+8}, s[{R_ACC}:{R_ACC+3}], s57 offen offset:{(i//2)*128 + (i%2)*16} sc1")
    a("s_branch HAVED")
    a.label("ZEROD")
    for i in range(32):
        a(f"v_mov_b32 v{D+i}, 0")
    a.label("HAVED")
    if NEWTAIL:
        t = T0 + 9
        a(f"s_cmp_eq_u32 s{S_NN}, {NPB}")
        a(f"s_mov_b32 s58, {-(-8*65536 // (N - 255*NPB))}")
        a(f"s_cmov_b32 s58, {-(-8*65536 // NPB)}")
        a(f"v_mul_u32_u24 v{T0+3}, s58, v{T0+1}")
        a(f"v_lshrrev_b32 v{T0+3}, 16, v{T0+3}")
        a(f"v_min_u32 v{T0+3}, 7, v{T0+3}")
        a(f"v_mad_u32_u24 v{T0+5}, v{T0+3}, s{S_NN}, 7")
        a(f"v_add_u32 v{T0+6}, s{S_NN}, v{T0+5}")
        a(f"v_lshrrev_b32 v{T0+5}, 3, v{T0+5}")
        a(f"v_lshrrev_b32 v{T0+6}, 3, v{T0+6}")
        a(f"v_lshrrev_b32 v{t}, 1, v{T0+3}")
        a(f"v_and_b32 v{T0+3}, 1, v{T0+3}")
        a(f"v_lshl_add_u32 v{t}, v{T0+3}, 2, v{t}")
        a(f"v_mul_u32_u24 v{t}, {RING_W}, v{t}")
        a(f"v_add_u32 v{t}, {L_RING}, v{t}")
        a(f"v_add_u32 v{t}, v{t}, v{T0+2}")
        a(f"v_sub_u32 v{T0+5}, v{T0+1}, v{T0+5}")
        a(f"s_movk_i32 s58, {P_NODE}")
        a(f"v_mad_u32_u24 v{T0+5}, v{T0+5}, s58, v{t}")
        a(f"v_add_u32 v{t+1}, 1, v{T0+1}")
        a(f"v_cmp_eq_u32 vcc, v{t+1}, v{T0+6}")
        a(f"v_mad_u32_u24 v{T0+6}, v{T0+1}, s58, v{T0+2}")
        a(f"v_add_u32 v{T0+6}, {P_HALF}, v{T0+6}")
        a(f"v_add_u32 v{t}, {P_NODE}, v{T0+5}")
        a(f"v_cndmask_b32 v{T0+6}, v{T0+6}, v{t}, vcc")
        a("s_lshl_b32 s54, s54, 6")
    else:
        a(f"v_mul_u32_u24 v{T0+5}, {P_NODE}, v{T0+1}")
        a(f"v_add_u32 v{T0+5}, v{T0+5}, v{T0+2}")
        a(f"v_add_u32 v{T0+6}, {P_HALF}, v{T0+5}")
        a("s_lshl_b32 s54, s54, 6")
    a("s_mov_b32 s62, 0")
    a("s_waitcnt vmcnt(0)")
    a("s_barrier")
    stamp(a, 10, late=True)
    a.label("T_MM")
    seq = []
    for comp, ts in enumerate(([P0, P1], [P2[0], P3[0], P4[0]], [P2[1], P3[1], P4[1]], [P2[2], P3[2], P4[2]])):
        for t in ts:
            for h in range(2):
                seq.append((comp, t, h))
    for i, (comp, t, h) in enumerate(seq):
        a(f"ds_read_b128 {vr(PF+4*i,4)}, v{T0+5+h} offset:{t*64}")
        if i == 14:
            a("s_waitcnt lgkmcnt(7)")
    for i, (comp, t, h) in enumerate(seq):
        if i >= 8:
            a(f"s_waitcnt lgkmcnt({21 - i})")
        for mt in range(2):
            d = vr(D + 8 * comp + 4 * mt, 4)
            a(f"v_mfma_f32_16x16x32_bf16 {d}, {vr(WF + 4*(10*mt + 2*TPATH[t] + h),4)}, {vr(PF+4*i,4)}, {d}")
    if PROF == 7:
        stamp(a, 4)
    a(f"s_or_b32 s63, s{S_LAST}, s62")
    a("s_cbranch_scc0 MORE")
    for i in range(8):
        a(f"v_mul_f32 v{i}, 0xbfb8aa3b, v{D+i}")
    for i in range(8):
        a(f"v_exp_f32 v{i}, v{i}")
    for i in range(8):
        a(f"v_add_f32 v{i}, 1.0, v{i}")
    for i in range(8):
        a(f"v_rcp_f32 v{i}, v{i}")
    a("s_cmp_lg_u32 s62, 0")
    for comp in range(4):
        if comp:
            for i in range(8):
                a(f"v_mul_f32 v{D+8*comp+i}, v{D+8*comp+i}, v{i}")
        for i in range(4):
            a(f"v_cvt_pk_bf16_f32 v{8+4*comp+i}, v{D+8*comp+2*i}, v{D+8*comp+2*i+1}")
        if DRY:
            a(f"s_cbranch_scc1 {'T_RET' if comp == 3 else 'T_S%d' % comp}")
        a(f"buffer_store_dwordx4 {vr(8+4*comp,4)}, v{T0+4}, s[{R_OUT}:{R_OUT+3}], s54 offen offset:{128*comp}{OPOL}")
        if DRY and comp < 3:
            a.label(f"T_S{comp}")
    if PROF == 7:
        stamp(a, 7)
    if PROF:
        a("s_waitcnt vmcnt(0)")
    stamp(a, 11, late=True)
    stamp(a, 15, True)
    prof_dump(a, 98, 1, 3, S_WAVE)
    if opt("amp", 0):
        a("s_cmp_lg_u32 s2, 100")
        a("s_cbranch_scc1 K2_end")
        srd(a, 4, 98, WS_PROF + 100 * 1024, 64)
        a("v_mov_b32 v0, 0")
        a("buffer_load_dword v2, v0, s[4:7], 0 offen")
        a("buffer_load_dword v3, v0, s[4:7], 0 offen offset:60")
        a("s_waitcnt vmcnt(0)")
        a("v_readfirstlane_b32 s60, v2")
        a("v_readfirstlane_b32 s61, v3")
        lo, hi = {1: ("s60", f"s{S_PROF}"), 2: (f"s{S_PROF}", f"s{S_PROF+6}"), 3: (f"s{S_PROF+6}", f"s{S_PROF+9}"),
                  4: ("s60", "s61"), 5: ("s60", "s60")}[opt("amp", 0)]
        a(f"s_sub_u32 s62, {hi}, {lo}")
        a("s_min_u32 s62, s62, 10000")
        a("s_lshl_b32 s62, s62, 2")
        a("s_add_u32 s62, s62, 1000")
        a.label("AMPL")
        a("s_memrealtime s[80:81]")
        a("s_waitcnt lgkmcnt(0)")
        a(f"s_sub_u32 s63, s80, s{S_PROF+15}")
        a("s_cmp_lt_u32 s63, s62")
        a("s_cbranch_scc1 AMPL")
    if PROF == 4:
        a("s_lshl_b32 s80, s2, 3")
        a(f"s_add_u32 s80, s80, s{S_WAVE}")
        a("s_lshl_b32 s80, s80, 8")
        a(f"s_add_u32 s80, s80, {WS_PROF + 0x200000}")
        srd(a, 4, 98, "s80", 256)
        a(f"v_lshlrev_b32 v0, 2, v{LANE}")
        a("buffer_store_dword v183, v0, s[4:7], 0 offen")
    if PROF == 3:
        a("s_load_dwordx2 s[54:55], s[0:1], 80")
        a("s_min_u32 s80, s2, 249")
        a("s_lshl_b32 s80, s80, 10")
        a(f"s_add_u32 s80, s80, {WS_PROF}")
        srd(a, 4, 98, "s80", 64)
        a("v_mov_b32 v0, 0")
        a("buffer_load_dword v2, v0, s[4:7], 0 offen")
        a("buffer_load_dword v3, v0, s[4:7], 0 offen offset:8")
        a("buffer_load_dword v4, v0, s[4:7], 0 offen offset:24")
        a("buffer_load_dword v5, v0, s[4:7], 0 offen offset:60")
        a("s_waitcnt vmcnt(0) lgkmcnt(0)")
        srd(a, 4, 54, 0, 256)
        a("v_not_b32 v2, v2")
        a("s_mov_b64 exec, 1")
        for i in range(4):
            a(f"buffer_atomic_umax v{2+i}, v0, s[4:7], 0 offen offset:{4*i}")
        a(f"v_not_b32 v2, s{S_PROF}")
        a("buffer_atomic_umax v2, v0, s[4:7], 0 offen offset:16")
        for i, st in enumerate((0, 2, 3, 4, 6, 7, 8, 9, 10, 15)):
            a(f"v_mov_b32 v{3+i}, s{S_PROF+st}")
            a(f"buffer_atomic_umax v{3+i}, v0, s[4:7], 0 offen offset:{20+4*i}")
    a("s_endpgm")
    a.label("MORE")
    for i in range(8):
        a(f"buffer_store_dwordx4 {vr(D+4*i,4)}, v{T0+8}, s[{R_ACC}:{R_ACC+3}], s57 offen offset:{(i//2)*128 + (i%2)*16}")
    a(f"s_add_u32 s{S_R0}, s{S_R0}, s{S_LEN}")
    a("s_waitcnt vmcnt(0)")
    a("s_barrier")
    a("s_branch ROUND")
    a.label("K2_end")
    a("s_endpgm")
    return a


def descriptor(name, nv, ns):
    return f""".amdhsa_kernel {name}
  .amdhsa_next_free_vgpr {nv}
  .amdhsa_next_free_sgpr {ns}
  .amdhsa_accum_offset {(nv + 3) // 4 * 4}
  .amdhsa_group_segment_fixed_size 0
  .amdhsa_kernarg_size 96
  .amdhsa_user_sgpr_count 2
  .amdhsa_user_sgpr_kernarg_segment_ptr 1
  .amdhsa_system_sgpr_workgroup_id_x 1
  .amdhsa_float_denorm_mode_32 3
.end_amdhsa_kernel
"""


def main():
    ref = open(os.path.join(os.path.dirname(os.path.abspath(__file__)), "..", "cdna_kernels", NAME + ".s.ref")).read()
    head = [l for l in ref.split("\n") if l.startswith(";") and "@launch" not in l and "Override" not in l
            and "grid=ceil" not in l]
    k1, k2 = "edge_sort_kernel", NAME + "_kernel"
    out = head + ([] if FUSED else [f"; @launch kernel={k1} grid=(255,1,1) block=(1024,1,1) lds={K1_LDS}"]) + [
        f"; @launch kernel={k2} grid=(256,1,1) block=(512,1,1) lds={K2_LDS}",
        '.amdgcn_target "amdgcn-amd-amdhsa--gfx950"',
        ".text",
    ]
    for name, fn in ((k1, kernel1), (k2, kernel2))[FUSED:]:
        lines, nops = fn().finish()
        print(name, "instructions:", len(lines), "nops inserted:", nops, file=sys.stderr)
        out += [f".globl {name}", ".p2align 8", f".type {name},@function", f"{name}:"] + lines
    out += ['.section .rodata,"a"'] + ([] if FUSED else [".p2align 6", descriptor(k1, 96, 102)])
    out += [".p2align 6", descriptor(k2, NVGPR, 102)]
    open(sys.argv[1], "w").write("\n".join(out))


if __name__ == "__main__":
    main()
```

```python
import os
import sys

sys.path.insert(0, os.path.dirname(os.path.abspath(__file__)))
from asmlib import Asm, vr, sr

NAME = "gather_scatter__tensor_product_equiv_equiformer__graph"
N, E = 12500, 800000
CHUNK, W = 3200, 250
NPB = 49
NBIN = 256

WS_TAB = 0
WS_WTAB = 0x40000
WS_WSI = 0x48000
WS_META = 0x100000
WS_XP = 0xB00000
WS_EP = 0x1200000
WS_P = 0x2B00000
P_NODE = 784
P_HALF = NPB * P_NODE
P_WG = 0x13000
WS_ACC = 0x4000000
XHALF = N * 256

OPT = dict(a.split("=") for a in sys.argv[2:] if "=" in a)


def opt(name, default):
    return type(default)(OPT.get(name, default))


PROF = opt("prof", 0)
WS_PROF = 0x6000000
S_PROF = 82
FUSED = opt("fused", 0)


def preg(i):
    if FUSED:
        return {0: 82, 6: 83, 9: 90, 10: 91, 11: 92, 12: 93, 13: 94, 15: 95}.get(i)
    return S_PROF + i


def stamp(a, i, real=False, late=False, k1=False):
    if k1:
        i = {2: None, 4: None, 6: 10, 8: 11}[i]
        if i is None or PROF != 5:
            return
    elif PROF == 5 and i not in (0, 15, 6, 9):
        return
    if PROF and not (late and PROF == 2):
        a("s_waitcnt lgkmcnt(0)")
        a(("s_memrealtime" if real or PROF in (3, 5) else "s_memtime") + " s[80:81]")
        a("s_waitcnt lgkmcnt(0)")
        a(f"s_mov_b32 s{preg(i)}, s80")
        if PROF == 4 and i == 7:
            a("s_memrealtime s[80:81]" if opt("rt", 0) else "s_memtime s[80:81]")


def prof_dump(a, wsreg, kern, nwave_shift, wavereg):
    if PROF:
        a(f"s_lshl_b32 s80, s2, {nwave_shift}")
        a(f"s_add_u32 s80, s80, s{wavereg}")
        a("s_lshl_b32 s80, s80, 6")
        a(f"s_add_u32 s80, s80, {WS_PROF + kern * 0x100000}")
        srd(a, 4, wsreg, "s80", 64)
        a("v_mov_b32 v0, 0")
        for i in range(16):
            if preg(i) is None:
                continue
            a(f"v_mov_b32 v1, s{preg(i)}")
            a(f"buffer_store_dword v1, v0, s[4:7], 0 offen offset:{4*i}")


def srd(a, d, b, off, size):
    a(f"s_add_u32 s{d}, s{b}, {off}")
    a(f"s_addc_u32 s{d+1}, s{b+1}, 0")
    a(f"s_mov_b32 s{d+2}, {size}")
    a(f"s_mov_b32 s{d+3}, 0x20000")


def scan64(a, v):
    for sh in (1, 2, 4, 8):
        a(f"v_add_u32_dpp v{v}, v{v}, v{v} row_shr:{sh} row_mask:0xf bank_mask:0xf bound_ctrl:1")
    a(f"v_add_u32_dpp v{v}, v{v}, v{v} row_bcast:15 row_mask:0xa bank_mask:0xf")
    a(f"v_add_u32_dpp v{v}, v{v}, v{v} row_bcast:31 row_mask:0xc bank_mask:0xf")


K1_ERAW = 0
K1_MS = 102400
K1_INV = K1_MS + 38400
K1_HIST = K1_INV + 6400
K1_LDS = 152 * 1024


def prep_tables(a, ST):
    a("v_add_u32 v4, s60, v0")
    a("v_and_b32 v5, 3, v4")
    a("v_bfe_u32 v6, v4, 2, 4")
    a("v_bfe_u32 v7, v4, 6, 2")
    a("v_lshrrev_b32 v8, 8, v4")
    a("v_cmp_le_u32 vcc, 10, v8")
    a("v_cndmask_b32 v9, 0, 1, vcc")
    a("v_mul_u32_u24 v10, 10, v9")
    a("v_sub_u32 v10, v8, v10")
    a("v_lshl_add_u32 v11, v7, 2, v5")
    a("v_mul_u32_u24 v11, 320, v11")
    a("v_lshrrev_b32 v12, 1, v10")
    a("v_lshl_add_u32 v11, v12, 6, v11")
    a("v_lshl_add_u32 v11, v9, 5, v11")
    a("v_and_b32 v12, 1, v10")
    a("v_lshl_add_u32 v11, v12, 4, v11")
    a("v_add_u32 v11, v11, v6")
    a("v_lshlrev_b32 v11, 1, v11")
    a("buffer_load_ushort v13, v11, s[16:19], 0 offen")
    a("v_mov_b32 v30, 0x80000000")
    for t in range(2):
        b = 32 + 8 * t
        a(f"v_add_u32 v14, {20*t}, v8")
        a("v_mul_u32_u24 v15, 26, v14")
        a("v_lshrrev_b32 v15, 8, v15")
        a("v_mul_u32_u24 v16, 10, v15")
        a("v_sub_u32 v16, v14, v16")
        a("v_lshrrev_b32 v17, 1, v16")
        a("v_and_b32 v18, 1, v16")
        a("v_lshl_add_u32 v19, v7, 2, v5")
        a("v_lshl_add_u32 v19, v18, 5, v19")
        a("v_lshl_add_u32 v19, v17, 6, v19")
        a("v_lshrrev_b32 v20, 1, v15")
        a("v_and_b32 v21, 1, v15")
        a("v_lshrrev_b32 v22, 2, v6")
        a("v_lshlrev_b32 v22, 3, v22")
        a("v_lshl_add_u32 v22, v20, 5, v22")
        a("v_lshl_add_u32 v22, v21, 2, v22")
        a("v_and_b32 v23, 3, v6")
        a("v_add_u32 v22, v22, v23")
        a("v_lshl_add_u32 v22, v19, 6, v22")
        a("v_lshlrev_b32 v22, 1, v22")
        a("v_subrev_u32 v23, 16384, v22")
        a("v_cmp_gt_u32 vcc, 2, v17")
        a("v_cndmask_b32 v24, v30, v22, vcc")
        a("v_cndmask_b32 v25, v23, v30, vcc")
        a(f"buffer_load_ushort v{b}, v24, s[20:23], 0 offen")
        a(f"buffer_load_ushort v{b+1}, v24, s[20:23], 0 offen offset:2048")
        a(f"buffer_load_ushort v{b+2}, v25, s[24:27], 0 offen")
        a(f"buffer_load_ushort v{b+3}, v25, s[24:27], 0 offen offset:2048")
    a("v_lshlrev_b32 v4, 2, v4")
    a("s_mov_b32 s61, 20480")
    a("s_waitcnt vmcnt(0)")
    a("v_lshlrev_b32 v13, 16, v13")
    a("buffer_store_dword v13, v4, s[28:31], 0 offen" + ST)
    for t in range(2):
        b = 32 + 8 * t
        a(f"v_or_b32 v{b}, v{b}, v{b+2}")
        a(f"v_or_b32 v{b+1}, v{b+1}, v{b+3}")
        a(f"v_lshl_or_b32 v{b}, v{b+1}, 16, v{b}")
        a(f"buffer_store_dword v{b}, v4, s[32:35], {'0' if t == 0 else 's61'} offen{ST}")


def kernel1():
    a = Asm()
    NT = " nt" if opt("k1nt", 1) else ""
    ST = {0: "", 1: " nt", 2: " sc1"}[opt("k1st", 2)]
    a("s_cmp_ge_u32 s2, 255")
    a("s_cbranch_scc1 K1_end")
    a("s_load_dwordx8 s[4:11], s[0:1], 0")
    a("s_load_dwordx8 s[52:59], s[0:1], 32")
    a("s_load_dwordx2 s[14:15], s[0:1], 88")
    a("v_lshlrev_b32 v1, 4, v0")
    a("v_mul_u32_u24 v2, 24, v0")
    a("v_and_b32 v3, 63, v0")
    a("v_lshlrev_b32 v3, 4, v3")
    a("v_lshrrev_b32 v40, 6, v0")
    a("v_readfirstlane_b32 s3, v40")
    a("s_cmp_ge_u32 s2, 250")
    a("s_cbranch_scc1 K1_prep")
    stamp(a, 0, True)
    stamp(a, 1)
    a("s_mul_i32 s60, s2, 12800")
    a("s_mul_i32 s61, s2, 19200")
    a("s_mul_i32 s62, s2, 25600")
    a("s_mul_i32 s63, s2, 102400")
    a("s_mul_i32 s64, s2, 38400")
    a("s_lshl_b32 s65, s2, 10")
    a("s_waitcnt lgkmcnt(0)")
    srd(a, 16, 52, "s60", 12800)
    a(f"buffer_load_dwordx4 v[4:7], v1, s[16:19], 0 offen{NT}")
    a("v_lshlrev_b32 v41, 2, v0")
    a("v_mov_b32 v42, 0")
    a("s_cmp_ge_u32 s3, 4")
    a("s_cbranch_scc1 K1_nozero")
    a(f"v_add_u32 v41, {K1_HIST}, v41")
    a("ds_write_b32 v41, v42")
    a.label("K1_nozero")
    srd(a, 20, 10, "s60", 12800)
    srd(a, 24, 6, "s61", 19200)
    srd(a, 28, 4, "s62", 25600)
    srd(a, 32, 8, "s63", 102400)
    a("s_mov_b32 s66, 16384")
    a("s_lshl_b32 s67, s3, 10")
    kq = [int(c) for c in opt("kq", "00700")]

    def e_in(i):
        for k in range(sum(kq[:i]), sum(kq[:i + 1])):
            if k == 6:
                a("s_cmp_ge_u32 s3, 4")
                a("s_cbranch_scc1 K1_noe7")
            a("s_mov_b32 m0, s67")
            a(f"buffer_load_dwordx4 v3, s[32:35], s67 offen{NT} lds")
            a("s_add_u32 s67, s67, 16384")
            if k == 6:
                a.label("K1_noe7")

    def n_e(lo, hi):
        return min(sum(kq[:hi + 1]), 6) - min(sum(kq[:lo]), 6)

    e_in(0)
    a("s_waitcnt lgkmcnt(0)")
    a("s_barrier")
    RNT = NT if opt("rnt", 1) else ""
    a(f"buffer_load_dwordx4 v[8:11], v1, s[20:23], 0 offen{NT}")
    a(f"buffer_load_dwordx4 v[12:15], v2, s[24:27], 0 offen{RNT}")
    a(f"buffer_load_dwordx2 v[16:17], v2, s[24:27], 0 offen offset:16{RNT}")
    if opt("k1b2", 1):
        a("s_barrier")
    e_in(1)
    a(f"buffer_load_dwordx4 v[20:23], v1, s[28:31], 0 offen{NT}")
    a(f"buffer_load_dwordx4 v[24:27], v1, s[28:31], s66 offen{NT}")
    e_in(2)
    a("s_add_u32 s68, s64, %d" % WS_META)
    srd(a, 36, 14, "s68", 38400)
    a("s_add_u32 s68, s63, %d" % WS_EP)
    srd(a, 40, 14, "s68", 102400)
    srd(a, 44, 14, WS_XP, 2 * XHALF)
    srd(a, 48, 14, "s65", 1024)
    a("v_cmp_gt_u32 vcc, 800, v0")
    a("s_mov_b64 s[70:71], vcc")
    a("v_mov_b32 v43, 1")
    a(f"s_waitcnt vmcnt({5 + n_e(0, 2)})")
    stamp(a, 2)
    a("s_mov_b64 exec, s[70:71]")
    a("s_cbranch_execz K1_skip_rank")
    for i in range(4):
        a(f"v_mul_u32_u24 v{28+i}, 21400, v{4+i}")
        a(f"v_lshrrev_b32 v{28+i}, 20, v{28+i}")
        a(f"v_mul_u32_u24 v{36+i}, 49, v{28+i}")
        a(f"v_sub_u32 v{36+i}, v{4+i}, v{36+i}")
        a(f"v_lshlrev_b32 v{28+i}, 2, v{28+i}")
        a(f"v_add_u32 v{28+i}, {K1_HIST}, v{28+i}")
        a(f"ds_add_rtn_u32 v{32+i}, v{28+i}, v43")
    a.label("K1_skip_rank")
    a("s_mov_b64 exec, -1")
    a("s_waitcnt lgkmcnt(0)")
    a("s_barrier")
    stamp(a, 3)
    a("s_cmp_lg_u32 s3, 0")
    a("s_cbranch_scc1 K1_noscan")
    a(f"v_add_u32 v41, {K1_HIST}, v3")
    a("ds_read_b128 v[44:47], v41")
    a("s_waitcnt lgkmcnt(0)")
    a("v_add_u32 v49, v44, v45")
    a("v_add_u32 v50, v49, v46")
    a("v_add_u32 v51, v50, v47")
    a("v_mov_b32 v52, v51")
    scan64(a, 52)
    a("v_sub_u32 v52, v52, v51")
    a("v_add_u32 v53, v52, v44")
    a("v_add_u32 v54, v52, v49")
    a("v_add_u32 v55, v52, v50")
    a("ds_write_b128 v41, v[52:55]")
    for i in range(4):
        a(f"v_lshl_or_b32 v{56+i}, v{44+i}, 16, v{52+i}")
    a("buffer_store_dwordx4 v[56:59], v3, s[48:51], 0 offen")
    a("s_waitcnt lgkmcnt(0)")
    a.label("K1_noscan")
    e_in(3)
    a("v_lshrrev_b32 v60, 5, v0")
    a("s_mul_i32 s69, s2, 50")
    a("v_add_u32 v60, s69, v60")
    a("v_lshlrev_b32 v60, 8, v60")
    a("v_bfe_u32 v61, v0, 3, 2")
    a("v_lshl_add_u32 v60, v61, 6, v60")
    a("v_and_b32 v61, 3, v0")
    a("v_lshl_add_u32 v60, v61, 4, v60")
    a("v_bfe_u32 v61, v0, 2, 1")
    a(f"v_mul_u32_u24 v61, {XHALF}, v61")
    a("v_add_u32 v60, v60, v61")
    a("v_add_u32 v61, 8192, v60")
    a("v_cmp_gt_u32 vcc, 576, v0")
    a("v_mov_b32 v62, 0x80000000")
    a("v_cndmask_b32 v61, v62, v61, vcc")
    a("s_barrier")
    a("s_mov_b64 exec, s[70:71]")
    a("s_cbranch_execz K1_skip_scatter")
    for i in range(4):
        a(f"ds_read_b32 v{28+i}, v{28+i}")
    a(f"s_waitcnt vmcnt({2 + n_e(1, 3)})")
    a("s_mov_b32 s72, 0x80000000")
    a("s_mov_b32 s73, 0xffff0000")
    for i in range(4):
        a(f"v_lshl_or_b32 v{8+i}, v{8+i}, 8, v{36+i}")
        a(f"v_or_b32 v{8+i}, s72, v{8+i}")
    a("v_lshlrev_b32 v44, 16, v13")
    a("v_alignbit_b32 v45, v14, v13, 16")
    a("v_and_b32 v46, s73, v14")
    a("v_lshlrev_b32 v47, 16, v16")
    a("v_alignbit_b32 v48, v17, v16, 16")
    a("v_and_b32 v49, s73, v17")
    w1 = [12, 45, 15, 48]
    w2 = [44, 46, 47, 49]
    a("v_lshlrev_b32 v50, 2, v0")
    a("s_waitcnt lgkmcnt(0)")
    for i in range(4):
        a(f"v_add_u32 v{32+i}, v{32+i}, v{28+i}")
        a(f"v_mul_u32_u24 v{28+i}, 12, v{32+i}")
        a(f"v_add_u32 v{28+i}, {K1_MS}, v{28+i}")
        a(f"ds_write2_b32 v{28+i}, v{8+i}, v{w1[i]} offset0:0 offset1:1")
        a(f"ds_write_b32 v{28+i}, v{w2[i]} offset:8")
        a(f"v_lshlrev_b32 v{32+i}, 1, v{32+i}")
        a(f"v_add_u32 v{32+i}, {K1_INV}, v{32+i}")
        a(f"v_add_u32 v{52+i}, {i}, v50")
        a(f"ds_write_b16 v{32+i}, v{52+i}")
    a.label("K1_skip_scatter")
    a("s_mov_b64 exec, -1")
    a(f"s_waitcnt vmcnt({n_e(2, 3)})")
    a(f"buffer_store_dwordx4 v[20:23], v60, s[44:47], 0 offen{ST}")
    a(f"buffer_store_dwordx4 v[24:27], v61, s[44:47], 0 offen{ST}")
    e_in(4)
    a("s_waitcnt lgkmcnt(0)")
    a("s_barrier")
    stamp(a, 4)
    a(f"v_add_u32 v41, {K1_MS}, v1")
    a("ds_read_b128 v[4:7], v41")
    a("ds_read_b128 v[8:11], v41 offset:16384")
    a("ds_read_b128 v[12:15], v41 offset:32768")
    a("v_and_b32 v42, 0x3fe, v0")
    a(f"v_add_u32 v42, {K1_INV}, v42")
    for k in range(7):
        a(f"ds_read_u16 v{28+k}, v42 offset:{1024*k}")
    a("v_and_b32 v43, 1, v0")
    a("v_lshlrev_b32 v43, 4, v43")
    a("s_mov_b32 s74, 32768")
    a("s_waitcnt lgkmcnt(7)")
    a(f"buffer_store_dwordx4 v[4:7], v1, s[36:39], 0 offen{ST}")
    a(f"buffer_store_dwordx4 v[8:11], v1, s[36:39], s66 offen{ST}")
    a(f"buffer_store_dwordx4 v[12:15], v1, s[36:39], s74 offen{ST}")
    a("s_waitcnt lgkmcnt(0)")
    for k in range(7):
        a(f"v_lshl_add_u32 v{28+k}, v{28+k}, 5, v43")
    stamp(a, 5)
    a(f"s_waitcnt vmcnt({3 if kq[4] else 5})")
    a("s_barrier")
    stamp(a, 6)
    for k in range(6):
        a(f"ds_read_b128 v[{64+4*k}:{67+4*k}], v{28+k}")
    a("s_mov_b32 s75, 0")
    for k in range(6):
        a(f"s_waitcnt lgkmcnt({5-k})")
        a(f"buffer_store_dwordx4 v[{64+4*k}:{67+4*k}], v1, s[40:43], s75 offen{ST}")
        a("s_add_u32 s75, s75, 16384")
    a("s_cmp_ge_u32 s3, 4")
    a("s_cbranch_scc1 K1_fin")
    a("ds_read_b128 v[88:91], v34")
    a("s_waitcnt lgkmcnt(0)")
    a(f"buffer_store_dwordx4 v[88:91], v1, s[40:43], s75 offen{ST}")
    a.label("K1_fin")
    if opt("cpf", 2) & 4:
        a(f"s_cmp_ge_u32 s2, {opt('cpn', 8)}")
        a("s_cbranch_scc1 K1_nocpf")
        a("s_getpc_b64 s[76:77]")
        a.label("K1_here2")
        a("s_mov_b32 s78, K2_end-K1_here2")
        a("s_mov_b32 s79, 0x20000")
        a("v_lshlrev_b32 v60, 7, v0")
        a("buffer_load_dword v61, v60, s[76:79], 0 offen")
        a("s_waitcnt vmcnt(0)")
        a.label("K1_nocpf")
    stamp(a, 7)
    if PROF:
        a("s_waitcnt vmcnt(0)")
    stamp(a, 8)
    stamp(a, 15, True)
    prof_dump(a, 14, 0, 4, 3)
    a("s_endpgm")

    a.label("K1_prep")
    a("s_waitcnt lgkmcnt(0)")
    srd(a, 16, 54, 0, 16 * 320 * 2)
    srd(a, 20, 56, 0, 128 * 64 * 2)
    srd(a, 24, 58, 0, 192 * 64 * 2)
    srd(a, 28, 14, WS_WTAB, 20480)
    srd(a, 32, 14, WS_WSI, 40960)
    if opt("cpf", 2) & 2:
        a("s_getpc_b64 s[36:37]")
        a.label("K1_here")
        a("s_mov_b32 s38, K2_end-K1_here")
        a("s_mov_b32 s39, 0x20000")
        a("v_lshlrev_b32 v60, 7, v0")
        a("buffer_load_dword v61, v60, s[36:39], 0 offen")
    a("s_sub_u32 s60, s2, 250")
    a("s_lshl_b32 s60, s60, 10")
    prep_tables(a, "")
    a.label("K1_end")
    a("s_endpgm")
    return a


CAP = 3392
SLOWCAP = 256
MAXSTEPS = 142
MAXWSTEPS = 20
L_E = 0
L_RING = 32 + CAP * 32
RING_W = 6336
SUBB = 2112
L_SA = L_RING
L_SB = L_SA + MAXSTEPS * 128
L_MISC = L_SB + MAXSTEPS * 256
L_CNT = L_MISC
L_FLAG = L_MISC + 256
L_WSUM = L_MISC + 272
L_DUMMY = L_WSUM + 16
L_MAP = 94208
K2_LDS = 163840
assert L_MAP + CAP * 4 <= L_RING and L_DUMMY + 256 <= K2_LDS and L_RING + 8 * RING_W <= L_MISC

ACC = 0
WR = 88
B0 = 128
B1 = 144
GS, G0, G1, G2, N0, N2 = 160, 164, 168, 172, 176, 180
SEL = 184
M0R = 188
MBR = 198
GSP = (160, 252)
NID = 218
Y = 220
REP = 223
XA = 224
XOFF, QQ8, BAE, BAO, POFF, NST = 228, 230, 231, 232, 233, 234
U, PT, T8, EA = 236, 244, 235, 248
T0 = 236
TID, LANE = 250, 251
NVGPR = 256
XBIAS = 2048

S_WAVE = 3
R_XP, R_EP, R_MT, R_TB, R_P, R_W, R_OUT, R_ACC = 4, 8, 12, 16, 20, 24, 28, 32
S_NN, S_T, S_R0, S_LEN, S_CAP = 36, 37, 38, 39, 40
S_NODE0, S_NNW, S_STEP0, S_NS = 41, 42, 43, 44
S_D, S_REM, S_NODE, S_PHASE, S_TAB0, S_TAB1, S_RB, S_POFF = 45, 46, 47, 48, 49, 50, 51, 52
S_HI, S_SGN = 100, 101
S_MASK = 64
S_LAST = 78
S_NEND = 79
S_EM0 = 57
S_EVT = 59
S_OLD = 53
S_LEFT, S_PADR = 58, 63
S_PAT = 58
NEWTAIL = opt('newtail', 0)
DRY = NEWTAIL and opt('dry', 0)
R_DBG = 84
S_EB1, S_EB2 = 88, 89

PPOL = ["", " sc1", " nt", " sc0 sc1"][opt("ppol", 0)]
OPOL = ["", " sc1", " nt", " sc0 sc1"][opt("opol", 0)]

TPATH = [0, 1, 2, 2, 2, 3, 3, 3, 4, 4, 4]
P0, P1 = 0, 1
P2 = [2, 3, 4]
P3 = [5, 6, 7]
P4 = [8, 9, 10]


def acc(t, cq):
    return ACC + 4 * (2 * t + cq)


def mfma_list():
    out = []
    for t, A, B, fl in ((P2[0], G0, B0, 1), (P1, G0, B0 + 8, 1), (P0, GS, B0, 1), (P3[0], GS, B0 + 8, 1),
                        (P2[2], G2, B0, 1), (P4[1], G2, B0 + 8, 1), (P2[1], G1, B0, 1), (P4[2], G1, B0 + 8, 1),
                        (P4[2], N0, B1, 0), (P4[1], N0, B1 + 8, 0), (P3[1], GS, B1, 1), (P3[2], GS, B1 + 8, 1),
                        (P4[0], N2, B1, 1), (P1, G2, B1 + 8, 0), (P1, G1, B1, 0), (P4[0], G1, B1 + 8, 0)):
        for cq in range(2):
            out.append((t, cq, A, B + 4 * cq, fl))
    if opt("chain", 1):
        n2, g2p1, g1p1, g1p4 = out[24:26], out[26:28], out[28:30], out[30:32]
        out[16], out[17] = out[17], out[16]
        out[24:32] = [g1p1[0], g2p1[0], g1p1[1], g2p1[1], n2[0], g1p4[0], n2[1], g1p4[1]]
    return out


def emit_mfma(a, m, first, p0, q0):
    t, cq, A, B, fl = m
    if A == GS:
        A = GSP[p0]
    if opt("nomfma", 0):
        return
    d = vr(acc(t, cq), 4)
    c = "0" if (first and fl) else d
    if q0:
        a(f"v_mfma_f32_16x16x16_bf16 {d}, {vr(A,2)}, {vr(B,2)}, {c}")
    else:
        a(f"v_mfma_f32_16x16x32_bf16 {d}, {vr(A,4)}, {vr(B,4)}, {c}")


def b_reads(k, pos):
    B = B0 if k < 2 else B1
    hf = k & 1
    return [f"ds_read_b64_tr_b16 {vr(B + 4*u + 2*hf, 2)}, v{BAE if u % 2 == 0 else BAO} offset:{pos*SUBB + u*32}"
            for u in range(4)]


def vmwait(n):
    return [] if opt("nowait", 0) else [f"s_waitcnt vmcnt({n})"]


def dma(k, pos):
    if opt("nodma", 0):
        return [[], [], []]
    hf, bp = k & 1, k >> 1
    so = S_TAB0 if bp == 0 else S_TAB1
    pol = ["", " sc1", " nt", " sc0 sc1", " sc0"][opt("xpol", 0)]
    return [[f"s_add_u32 m0, s{S_RB}, {pos*SUBB}"],
            [f"buffer_load_dwordx4 v{XA + 2*hf}, s[{R_XP}:{R_XP+3}], s{so} offen{pol} lds"],
            [f"buffer_load_dwordx4 v{XA + 2*hf + 1}, s[{R_XP}:{R_XP+3}], s{so} offen offset:1088{pol} lds"]]


W0_FETCH = [f"s_lshr_b32 s54, s{S_D}, 1",
            "s_set_gpr_idx_on s54, gpr_idx(SRC0)",
            f"v_mov_b32 v{REP}, v{M0R}",
            "s_set_gpr_idx_off"]
W0_REP = [f"v_mov_b32_dpp v{REP}, v{REP} row_shr:4 row_mask:0xf bank_mask:0xa",
          f"v_mov_b32_dpp v{REP}, v{REP} row_shl:4 row_mask:0xf bank_mask:0x5"]
WRAP = [f"s_mov_b32 s{S_D}, 0",
        f"s_add_u32 s{S_TAB0}, s{S_TAB0}, {XHALF}",
        f"s_add_u32 s{S_TAB1}, s{S_TAB1}, {XHALF}"]


def x_addr(q):
    return f"v_add_u32_dpp v{XA+q}, v{REP}, v{XOFF + (q & 1)} quad_perm:[{q},{q},{q},{q}] row_mask:0xf bank_mask:0xf"


META_SET = [f"s_set_gpr_idx_on s{S_D}, gpr_idx(SRC1)",
            f"v_mad_u32_u16 v{T8}, 8, v{MBR+1}, 0",
            f"v_lshlrev_b32 v{Y}, 16, v{MBR}",
            f"v_and_b32 v{Y+1}, s{S_HI}, v{MBR}",
            f"v_and_b32 v{Y+2}, s{S_HI}, v{MBR+1}",
            "s_set_gpr_idx_off"]


def e_addr(p):
    return [f"v_add_u32_dpp v{EA+h}, v{T8}, v{QQ8} quad_perm:[{2*p+h},{2*p+h},{2*p+h},{2*p+h}] "
            "row_mask:0xf bank_mask:0xf" for h in range(2)]


def e_reads(dst):
    return [f"ds_read_b64_tr_b16 {vr(dst + 2*h, 2)}, v{EA+h}" for h in range(2)]


def unpack_valu(aa, p):
    return [f"v_lshlrev_b32 v{U+2*aa}, 16, v{GSP[p]+aa}", f"v_and_b32 v{U+2*aa+1}, s{S_HI}, v{GSP[p]+aa}"]


def gb(j, aa, p):
    if opt("nog", 0):
        return []
    hf, rl = aa >> 1, 2 * (aa & 1)
    pl = PT + 2 * (aa & 1)
    return [f"v_mul_f32_dpp v{pl}, v{Y+j}, v{U+2*aa} row_newbcast:{4*rl+2*p+hf} row_mask:0xf bank_mask:0xf",
            f"v_mul_f32_dpp v{pl+1}, v{Y+j}, v{U+2*aa+1} row_newbcast:{4*rl+4+2*p+hf} row_mask:0xf bank_mask:0xf",
            f"v_cvt_pk_bf16_f32 v{(G0, G1, G2)[j]+aa}, v{pl}, v{pl+1}"]


def neg(dst, src):
    return [f"v_xor_b32 v{dst+i}, s{S_SGN}, v{src+i}" for i in range(4)]


SHORT = opt("short", 0)


def body_name(rho, kind, p0, p1):
    return f"S{rho}{kind}{p0}{p1}"


def goto_next(a, rho, kind, p1, fall=False):
    if p1 == 0:
        a(f"s_cmp_eq_u32 s{S_D}, 0")
        a(f"s_cbranch_scc1 {body_name(rho, kind, 0, 0)}")
    if not fall:
        a(f"s_branch {body_name(rho, kind, p1, 1 - p1)}")


def issue_cost(l):
    op = l.split()[0]
    if op.endswith(":"):
        return 0
    if op.startswith("v_"):
        return 5.3 if "_dpp" in op or op.startswith(("v_cvt_pk", "v_mad")) else 4.2
    return {"d": 8, "b": 14}.get(op[0], 4.1)


def step_body(a, rho, kind, p0, p1, fall, cold):
    tag = body_name(rho, kind, p0, p1)
    first = kind == "f"
    x = 3 if first else 0
    p = lambda k: (rho + k) % 3
    F = [[] for _ in range(32)]

    def event(slot, n, k, pos):
        F[slot] += vmwait(n)
        for i, r in enumerate(b_reads(k, pos)):
            F[slot + i].append(r)

    def refill(slot, k, pos):
        d = dma(k, pos)
        F[slot - 1] += d[0]
        F[slot] += [f"WAIT {k}"] + d[1]
        F[slot + 1] += d[2]

    event(0, 4 + x, 2, p(2))
    refill(5, 1, p(2))
    event(8, 4 + x, 3, p(0))
    refill(13, 2, p(0))
    event(16, 4 + x, 0, p(1))
    refill(21, 3, p(1))
    event(24, 4, 1, p(2))
    refill(29, 0, p(2))
    F[31] += [f"s_sub_u32 s{S_REM}, s{S_REM}, 1"]
    if PROF == 4:
        F[30] += ["s_memrealtime s[80:81]" if opt("rt", 0) else "s_memtime s[80:81]"]
        F[7] += ["s_mov_b32 m0, s96", "s_add_u32 s96, s96, 1", "v_writelane_b32 v219, s80, m0"]

    qb = 1 - p0
    n0, n2 = neg(N0, G0), neg(N2, G2)
    ea, er = e_addr(p1), e_reads(GSP[qb])
    step = [f"s_add_u32 s{S_D}, s{S_D}, 1", f"s_cmp_lt_u32 s{S_D}, s{S_NS}", f"s_cbranch_scc0 {tag}_w"]
    if p1 == 1:
        fetch = [step + [f"{tag}_b:"] + W0_FETCH]
        rep = [[W0_REP[0]]]
        cold += [f"{tag}_w:"] + WRAP + [f"s_branch {tag}_b"]
    else:
        fetch = [step + W0_FETCH + ["FILL", W0_REP[1], f"{tag}_b:"]]
        rep = []
        cold += [f"{tag}_w:"] + WRAP + W0_FETCH + ["FILL", W0_REP[0], f"s_branch {tag}_b"]
    one = lambda lst: [[l] for l in lst]
    g0 = gb(0, 0, p1) + gb(0, 1, p1) + gb(0, 2, p1) + gb(0, 3, p1)
    g2 = gb(2, 0, p1) + gb(2, 1, p1)
    V = [(0, 6, g) for g in one(gb(2, 2, p0) + gb(2, 3, p0))]
    V += [(0, 10, g) for g in one(gb(1, 0, p0) + gb(1, 1, p0) + gb(1, 2, p0) + gb(1, 3, p0))]
    if p1 == 0:
        V += [(7, 11, META_SET)]
    V += [(0, 14, g) for g in one(n0[:2])]
    V += [(0, 14, [ea[0]]), (0, 14, [ea[1]]), (11, 15, [er[0]]), (11, 15, [er[1]])]
    V += [(0, 14, g) for g in one(n0[2:])]
    V += [(0, 22, g) for g in one(n2)]
    up = sum((unpack_valu(aa, qb) for aa in range(4)), [])
    V += [(opt("upe", 15), 22, ["WAIT e", up[0]])] + [(0, 24, g) for g in one(up[1:])]
    nb = opt("nb", 7)
    V += [(16, 30, g) for g in one(g0[:nb])]
    V += [(22, 26, g) for g in fetch] + [(0, 30, [g0[nb]])] + [(0, 27, g) for g in rep]
    V += [(0, 30, g) for g in one(g0[nb+1:nb+3])]
    V += [(0, 28, [x_addr(0)]), (0, 28, [x_addr(1)])]
    V += [(0, 30, g) for g in one(g0[nb+3:])]
    V += [(0, 31, [x_addr(2)]), (0, 31, [x_addr(3)])]
    if qb != p1:
        V += [(24, 31, [f"v_mov_b32 v{GSP[p1]+i}, v{GSP[qb]+i}" for i in range(4)])]
    V += [(0, 31, g) for g in one(g2[:2])] + [(27, 31, [g2[2]])] + [(27, 31, g) for g in one(g2[3:])]
    filler = g0[nb] if p1 == 0 else None
    if filler:
        V = [v for v in V if v[2] != [filler]]
    cost = lambda grp: sum(issue_cost(l) for l in grp)
    total = sum(cost(f) for f in F) + sum(cost(v[2]) for v in V)
    out, cum, i = [], 0.0, 0
    for sl in range(32):
        cum += cost(F[sl])
        mine = []
        while i < len(V):
            e, late, grp = V[i]
            must = any(V[j][1] <= sl for j in range(i, len(V)))
            if sl < e:
                assert not must, (tag, sl, grp)
                break
            if not must and cum + cost(grp) / 2 > total * (sl + 1) / 32:
                break
            mine += grp
            cum += cost(grp)
            i += 1
        tail = [l for l in F[sl] if l.startswith("s_sub")]
        out.append(mine[:1] + [l for l in F[sl] if l not in tail] + mine[1:] + tail
                   if mine and not mine[0].startswith(("s_", "WAIT", "ds_")) else
                   [l for l in F[sl] if l not in tail] + mine + tail)
    assert i == len(V)
    if opt("sched", 0) == 0:
        F = [[] for _ in range(32)]

        def spread(slot, lst, per=2):
            for i, l in enumerate(lst):
                if l is not None:
                    F[slot + i // per].append(l)

        def event2(slot, n, k, pos):
            r = b_reads(k, pos)
            F[slot] += vmwait(n) + r[:2]
            F[slot + 1] += r[2:]

        spread(0, gb(2, 2, p0) + gb(2, 3, p0) + gb(1, 0, p0) + gb(1, 1, p0) + gb(1, 2, p0) + gb(1, 3, p0))
        event2(0, 4 + x, 2, p(2))
        refill(4, 1, p(2))
        event2(8, 4 + x, 3, p(0))
        if p1 == 0:
            F[9] += META_SET
            spread(10, n0[:2] + ea)
            spread(13, n0[2:] + n2)
        else:
            spread(9, n0[:2] + ea + n0[2:])
            spread(13, n2)
        refill(12, 2, p(0))
        F[13] += er
        event2(16, 4 + x, 0, p(1))
        F[17] += ["WAIT e"]
        spread(17, up)
        refill(20, 3, p(1))
        g = g0 + g2
        filler = g[0] if p1 == 0 else None
        F[21] += fetch[0]
        if p1 == 1:
            F[22] += rep[0] + [g[0]]
        spread(23 - (p1 == 0), g[1:3], 2 if p1 == 1 else 1)
        spread(24, [x_addr(0), g[3], x_addr(1), g[4]] + g[5:9] + [x_addr(2), g[9], x_addr(3)], 2)
        spread(28, g[10:12], 1)
        spread(29, g[12:], 2)
        if qb != p1:
            F[24] += [f"v_mov_b32 v{GSP[p1]+i}, v{GSP[qb]+i}" for i in range(4)]
        event2(24, 4, 1, p(2))
        refill(28, 0, p(2))
        if PROF == 4:
            F[29] += ["s_memrealtime s[80:81]" if opt("rt", 0) else "s_memtime s[80:81]"]
            F[6] += ["s_mov_b32 m0, s96", "s_add_u32 s96, s96, 1", "v_writelane_b32 v219, s80, m0"]
        if PROF == 6 and first:
            F[6] += ["s_sub_u32 s62, s62, s80", f"s_add_u32 s{S_PROF+14}, s{S_PROF+14}, s62"]
        F[31] += [f"s_sub_u32 s{S_REM}, s{S_REM}, 1"]
        out = F
    flat = [(sl, l) for sl in range(32) for l in out[sl]]
    need = {"1": b_reads(2, p(2)), "2": b_reads(3, p(0)), "3": b_reads(0, p(1)), "0": None, "e": er}
    a.label(tag)
    ml = mfma_list()
    for sl in range(32):
        emit_mfma(a, ml[sl], first, p0, 0)
        for l in out[sl]:
            if l.startswith("WAIT"):
                pos = flat.index((sl, l))
                ds = [y for _, y in flat[:pos] if y.startswith("ds_")]
                want = need[l.split()[1]]
                n = 0 if want is None else len(ds) - 1 - max(k for k, y in enumerate(ds) if y in want)
                assert want is None or all(w in ds for w in want)
                l = f"s_waitcnt lgkmcnt({n})"
            if l == "FILL":
                l = filler
            if opt("nods", 0) and (l.startswith("ds_") or l.startswith("s_waitcnt lgkm")):
                continue
            if opt("novalu", 0) and l.startswith("v_") and not l.startswith(("v_writelane", "v_mfma")):
                continue
            a(l)
    for k, l in enumerate(cold):
        if l == "FILL":
            cold[k] = filler
    nr = (rho + 1) % 3
    if fall == "n":
        a(f"s_cbranch_scc1 EP{nr}{p1}")
        goto_next(a, nr, "n", p1, True)
    else:
        if p1 == 1:
            a(f"s_cbranch_scc0 {body_name(nr, 'n', 1, 0)}")
        else:
            a(f"s_cbranch_scc0 {tag}_c")
            cold += [f"{tag}_c:", f"s_cmp_lg_u32 s{S_D}, 0", f"s_cbranch_scc1 {body_name(nr, 'n', 0, 1)}",
                     f"s_branch {body_name(nr, 'n', 0, 0)}"]
        if fall != "e":
            a(f"s_branch EP{nr}{p1}")


def node_steps(lane):
    return [f"v_readlane_b32 s{S_REM}, v{NST}, s{lane}"]


def load_w(a, h):
    a(f"s_mov_b32 s57, {10240*h}")
    a(f"v_lshlrev_b32 v67, 4, v{LANE}")
    for pc in range(10):
        if pc % 4 == 0 and pc:
            a("s_add_u32 s57, s57, 4096")
        a(f"buffer_load_dwordx4 {vr(WR+4*pc,4)}, v67, s[{R_W}:{R_W+3}], s57 offen offset:{(pc%4)*1024}")


def pipeline_start(a):
    def run(lst):
        for l in lst:
            a(l)

    def dma_now(k, pos):
        for g in dma(k, pos):
            run(g)

    run(W0_FETCH + [W0_REP[0]] + [x_addr(q) for q in range(4)])
    dma_now(0, 0)
    dma_now(1, 1)
    dma_now(2, 2)
    run(META_SET + e_addr(0))
    a(f"s_waitcnt vmcnt({0 if opt('nodma', 0) else 6})")
    a("s_barrier")
    stamp(a, 6)
    run(e_reads(GSP[0]))
    run(["s_waitcnt vmcnt(4)"] + b_reads(0, 0) + ["s_waitcnt lgkmcnt(0)"])
    dma_now(3, 0)
    for aa in range(4):
        run(unpack_valu(aa, 0))
    run([f"s_mov_b32 s{S_D}, 1", f"s_cmp_lt_u32 s{S_D}, s{S_NS}", "s_cbranch_scc0 I_w"] + W0_FETCH + [W0_REP[1]])
    a("s_branch I_b")
    run(["I_w:"] + WRAP + W0_FETCH + [W0_REP[0], "I_b:"])
    run([x_addr(q) for q in range(4)])
    run(["s_waitcnt vmcnt(4)"] + b_reads(1, 1))
    run(gb(0, 0, 0) + gb(0, 1, 0) + gb(0, 2, 0) + gb(0, 3, 0) + gb(2, 0, 0) + gb(2, 1, 0))
    if PROF == 6:
        a("s_mov_b32 s62, 0")
        a("s_mov_b32 s80, 0")
        a(f"s_mov_b32 s{S_PROF+14}, 0")
    if PROF == 4:
        a("s_memrealtime s[80:81]" if opt("rt", 0) else "s_memtime s[80:81]")
        a("s_mov_b32 s96, 0")
        a("v_mov_b32 v219, 0")
    a("s_waitcnt lgkmcnt(0)")
    dma_now(0, 1)
    load_w(a, 0)
    if opt("prio", 3) == 3:
        pat = opt("pat", "111110101010")
        a(f"s_mov_b32 s{S_PAT}, {int(pat[::-1], 2)}")
        a(f"s_cmp_eq_u32 s{S_NNW}, 7")
        a(f"s_cmov_b32 s{S_PAT}, {int(opt('pat7', '11111101010100')[::-1], 2)}")
        a(f"s_setprio {2 * int(pat[0])}")
    if opt("prio", 3) in (1, 3):
        a(f"s_cmp_lt_u32 s{S_WAVE}, 4")
        a("s_cbranch_scc1 I_p")
        a("s_setprio 1")
        a.label("I_p")
    goto_next(a, 0, "f", 0)


def epilogue(a, rho, p1, cold):
    tag = f"EP{rho}{p1}"
    a.label(tag)
    if PROF == 6:
        a("s_memtime s[80:81]")
    order = [P2[0], P0, P3[0], P2[2], P2[1], P4[2], P4[1], P3[1], P3[2], P1, P4[0]]
    book = [f"s_mul_i32 s55, s{S_NODE}, {P_NODE}",
            f"s_add_u32 s55, s55, s{S_POFF}",
            f"s_add_u32 s{S_NODE}, s{S_NODE}, 1",
            f"s_cmp_lt_u32 s{S_NODE}, s{S_NEND}",
            f"s_cselect_b32 s56, s{S_NODE}, -2",
            f"s_cselect_b32 s{S_NODE}, s{S_NODE}, s{S_NODE0}",
            *node_steps(S_NODE),
            *([f"s_lshl1_add_u32 s54, s{S_REM}, 2", f"s_sub_u32 s{S_LEFT}, s{S_LEFT}, s54"]
              if opt("prio", 3) == 2 else []),
            f"s_cmp_ge_u32 s56, s{S_EVT}"]
    if opt("prio", 3) == 2:
        a(f"v_mov_b32 v{B1+12}, s{S_PADR}")
        a(f"v_mov_b32 v{B1+13}, s{S_LEFT}")
        a(f"ds_wrxchg_rtn_b32 v{B1+14}, v{B1+12}, v{B1+13}")
    if opt("prio", 3) == 3:
        a(f"s_cmp_lt_u32 s{S_WAVE}, 4")
        a(f"s_cbranch_scc0 {tag}_p")
        a(f"s_lshr_b32 s{S_PAT}, s{S_PAT}, 1")
        a(f"s_bitcmp1_b32 s{S_PAT}, 0")
        a("s_setprio 0")
        a(f"s_cbranch_scc0 {tag}_p")
        a("s_setprio 2")
        a.label(f"{tag}_p")
    if opt("prio", 3) == 1:
        a(f"s_cmp_lt_u32 s{S_WAVE}, 4")
        a(f"s_cbranch_scc0 {tag}_p")
        a(f"s_setprio {2 if int(opt('prpat', '110110')[2 * rho + p1]) else 0}")
        a.label(f"{tag}_p")
    fb = []
    if opt("prio", 3) == 2:
        fb = ["s_waitcnt lgkmcnt(0)",
              f"v_readfirstlane_b32 s57, v{B1+14}",
              f"s_xor_b32 s54, s57, s{S_LEFT}",
              "s_bitcmp1_b32 s54, 0",
              f"s_cbranch_scc0 {tag}_p",
              f"s_cmp_gt_u32 s{S_LEFT}, s57",
              "s_setprio 0",
              f"s_cbranch_scc0 {tag}_p",
              "s_setprio 2",
              f"{tag}_p:"]
    for t in (order if opt("noep", 0) < 2 else []):
        pth = TPATH[t]
        for r in range(0 if opt("noep", 0) else 4):
            for cq in range(2):
                d, w = acc(t, cq), WR + 4 * (2 * pth + cq)
                if r == 0:
                    a(f"v_mul_f32 v{d}, v{d}, v{w}")
                else:
                    a(f"v_fmac_f32 v{d}, v{d+r}, v{w+r}")
        n = "-" if t == P4[2] else ""
        a(f"v_cvt_pk_bf16_f32 v{B1+t}, {n}v{acc(t,0)}, {n}v{acc(t,1)}")
        if t == P0:
            a(f"v_mov_b32 v{B1+11}, 0")
        if t == P3[0]:
            for l in fb:
                a(l)
        if t == P1:
            a(f"v_mfma_f32_16x16x32_bf16 {vr(20,4)}, {vr(SEL,4)}, {vr(B1+4,4)}, 0")
    a(book[0])
    a(f"v_mfma_f32_16x16x32_bf16 {vr(16,4)}, {vr(SEL,4)}, {vr(B1,4)}, 0")
    a(f"v_mfma_f32_16x16x32_bf16 {vr(24,4)}, {vr(SEL,4)}, {vr(B1+8,4)}, 0")
    a(f"v_cvt_pk_bf16_f32 v65, v20, v21")
    for l in book[1:]:
        a(l)
    a(f"buffer_store_dword v65, v{POFF}, s[{R_P}:{R_P+3}], s55 offen offset:256{PPOL}")
    for i in (0, 2):
        a(f"v_cvt_pk_bf16_f32 v{64+i}, v{16+4*i}, v{17+4*i}")
    for i in (0, 2):
        a(f"buffer_store_dword v{64+i}, v{POFF}, s[{R_P}:{R_P+3}], s55 offen offset:{256*i}{PPOL}")
    if opt("egx", 0):
        a("s_cselect_b32 s57, 1, 0")
        a(f"s_cmp_lg_u32 s{S_PHASE}, 0")
        a(f"s_cbranch_scc1 {tag}_noeg")
        for i in range(2):
            a("v_mul_lo_u32 v218, v218, s97")
            a("v_add_u32 v218, 12345, v218")
            a("v_mul_hi_u32 v67, v218, s96")
            a("v_lshlrev_b32 v67, 5, v67")
            a(f"s_mov_b32 m0, {L_DUMMY}")
            a(f"buffer_load_dword v67, s[92:95], 0 offen{['', ' nt', ' sc1'][opt('egx', 0) - 1]} lds")
        a.label(f"{tag}_noeg")
        a("s_cmp_lg_u32 s57, 0")
    if PROF == 6:
        a("s_memtime s[62:63]")
    a(f"s_cbranch_scc1 {tag}_evt")
    a.label(f"{tag}_go")
    goto_next(a, rho, "f", p1, True)
    c = Asm()
    c.label(f"{tag}_evt")
    c("s_cmp_eq_u32 s56, -2")
    c(f"s_cbranch_scc1 {tag}_end")
    c(f"s_mov_b32 s{S_EVT}, -2")
    c("s_and_b32 s54, s2, 31")
    c("s_lshl_b32 s54, s54, 3")
    c(f"s_add_u32 s54, s54, s{S_WAVE}")
    c(f"s_mul_i32 s54, s54, {98*128}")
    c(f"s_add_u32 s54, s54, {XHALF + XBIAS}")
    c(f"v_lshlrev_b32 v67, 7, v{LANE}")
    c(f"s_mov_b32 m0, {L_DUMMY}")
    if opt("pfm", 64) < 64:
        c(f"s_bfm_b64 exec, {opt('pfm', 64)}, 0")
    c(f"buffer_load_dword v67, s[{R_XP}:{R_XP+3}], s54 offen lds")
    c("s_mov_b64 exec, -1")
    c(f"s_branch {tag}_go")
    c.label(f"{tag}_end")
    c(f"s_cmp_lg_u32 s{S_PHASE}, 0")
    c("s_cbranch_scc1 TAIL")
    if PROF not in (6, 7):
        stamp(c, 7, late=True)
    c(f"s_mov_b32 s{S_EVT}, -2")
    if opt("otlb", 0):
        c("v_mov_b32 v67, 0")
        c(f"s_mov_b32 m0, {L_DUMMY}")
        c(f"buffer_load_dword v67, s[{R_OUT}:{R_OUT+3}], 0 offen lds")
    c(f"s_mov_b32 s{S_PHASE}, 1")
    c(f"s_mov_b32 s{S_POFF}, {P_HALF}")
    load_w(c, 1)
    c(f"s_branch {tag}_go")
    cold += c.lines


def signal(a, off, tag):
    a(f"s_cmp_lg_u32 s{S_WAVE}, 0")
    a(f"s_cbranch_scc1 {tag}")
    a("s_mov_b64 exec, 1")
    a("v_mov_b32 v110, 1")
    a("v_mov_b32 v111, 0")
    a(f"buffer_atomic_add v110, v111, s[{R_DBG}:{R_DBG+3}], 0 offen offset:{off} sc1")
    a("s_mov_b64 exec, -1")
    a.label(tag)


def poll(a, off, tag):
    a(f"s_cmp_lg_u32 s{S_WAVE}, 0")
    a(f"s_cbranch_scc1 {tag}_d")
    a("s_mov_b32 s62, 0x200000")
    a("v_mov_b32 v111, 0")
    a.label(f"{tag}_l")
    a(f"buffer_load_dword v110, v111, s[{R_DBG}:{R_DBG+3}], 0 offen offset:{off} sc1")
    a("s_sub_u32 s62, s62, 1")
    a(f"s_cbranch_scc1 {tag}_d")
    a("s_waitcnt vmcnt(0)")
    a("v_readfirstlane_b32 s63, v110")
    a("s_cmp_ge_u32 s63, 256")
    a(f"s_cbranch_scc1 {tag}_d")
    if opt("slp", 16):
        a(f"s_sleep {opt('slp', 16)}")
    a(f"s_branch {tag}_l")
    a.label(f"{tag}_d")


def part1(a):
    NT, ST = " nt", " sc1"
    D, SRC, RH, X, BA, RK, DL = 4, 12, 20, 32, 48, 56, 64
    a("s_load_dwordx8 s[4:11], s[0:1], 0")
    a("s_load_dwordx8 s[52:59], s[0:1], 32")
    a("s_load_dwordx4 s[12:15], s[0:1], 80")
    a("v_lshlrev_b32 v1, 4, v0")
    a("v_mul_u32_u24 v2, 24, v0")
    a("v_and_b32 v3, 63, v0")
    a("v_lshlrev_b32 v3, 4, v3")
    a("v_lshrrev_b32 v72, 6, v0")
    a(f"v_readfirstlane_b32 s{S_WAVE}, v72")
    a("s_mul_i32 s60, s2, 12800")
    a("s_mul_i32 s61, s2, 19200")
    a("s_mul_i32 s62, s2, 25600")
    a("s_mul_i32 s63, s2, 102400")
    a("s_mul_i32 s64, s2, 38400")
    a("s_lshl_b32 s65, s2, 10")
    a("s_mov_b32 s66, 8192")
    a("s_waitcnt lgkmcnt(0)")
    srd(a, R_DBG, 12, 0, 256)
    a("s_cmp_ge_u32 s2, 250")
    a("s_cbranch_scc1 P1_prep")
    srd(a, 16, 52, "s60", 12800)
    a(f"buffer_load_dwordx4 {vr(D,4)}, v1, s[16:19], 0 offen{NT}")
    a(f"buffer_load_dwordx4 {vr(D+4,4)}, v1, s[16:19], s66 offen{NT}")
    a("v_lshlrev_b32 v73, 2, v0")
    a("v_mov_b32 v74, 0")
    a(f"s_cmp_ge_u32 s{S_WAVE}, 4")
    a("s_cbranch_scc1 P1_nozero")
    a(f"v_add_u32 v73, {K1_HIST}, v73")
    a("ds_write_b32 v73, v74")
    a.label("P1_nozero")
    srd(a, 20, 10, "s60", 12800)
    srd(a, 24, 6, "s61", 19200)
    srd(a, 28, 4, "s62", 25600)
    srd(a, 32, 8, "s63", 102400)
    a("s_mov_b32 s69, 12288")
    a(f"s_lshl_b32 s67, s{S_WAVE}, 10")
    a("s_waitcnt lgkmcnt(0)")
    a("s_barrier")
    a(f"buffer_load_dwordx4 {vr(SRC,4)}, v1, s[20:23], 0 offen{NT}")
    a(f"buffer_load_dwordx4 {vr(SRC+4,4)}, v1, s[20:23], s66 offen{NT}")
    for r, so in ((0, "0"), (1, "s69")):
        a(f"buffer_load_dwordx4 {vr(RH+6*r,4)}, v2, s[24:27], {so} offen{NT}")
        a(f"buffer_load_dwordx2 {vr(RH+6*r+4,2)}, v2, s[24:27], {so} offen offset:16{NT}")
    a("s_mov_b32 s68, 0")
    for k in range(4):
        a(f"buffer_load_dwordx4 {vr(X+4*k,4)}, v1, s[28:31], s68 offen{NT}")
        a("s_add_u32 s68, s68, 8192")
    kb = [int(c, 16) for c in opt("kb", "d000")]

    def e_in(i):
        for k in range(sum(kb[:i]), sum(kb[:i + 1])):
            if k == 12:
                a(f"s_cmp_ge_u32 s{S_WAVE}, 4")
                a("s_cbranch_scc1 P1_noe13")
            a("s_mov_b32 m0, s67")
            a(f"buffer_load_dwordx4 v3, s[32:35], s67 offen{NT} lds")
            a("s_add_u32 s67, s67, 8192")
            if k == 12:
                a.label("P1_noe13")

    def n_e(i):
        return min(sum(kb[:i + 1]), 12)

    e_in(0)
    a("s_add_u32 s68, s64, %d" % WS_META)
    srd(a, 36, 14, "s68", 38400)
    a("s_add_u32 s68, s63, %d" % WS_EP)
    srd(a, 40, 14, "s68", 102400)
    srd(a, 44, 14, WS_XP, 2 * XHALF)
    srd(a, 48, 14, "s65", 1024)
    a("v_cmp_gt_u32 vcc, 288, v0")
    a("s_mov_b64 s[70:71], vcc")
    a("v_mov_b32 v75, 1")
    a(f"s_waitcnt vmcnt({10 + n_e(0)})")
    stamp(a, 2, k1=True)
    for i in range(8):
        if i == 4:
            a("s_mov_b64 exec, s[70:71]")
            a("s_cbranch_execz P1_skip_rank")
        a(f"v_mul_u32_u24 v{BA+i}, 21400, v{D+i}")
        a(f"v_lshrrev_b32 v{BA+i}, 20, v{BA+i}")
        a(f"v_mul_u32_u24 v{DL+i}, 49, v{BA+i}")
        a(f"v_sub_u32 v{DL+i}, v{D+i}, v{DL+i}")
        a(f"v_lshlrev_b32 v{BA+i}, 2, v{BA+i}")
        a(f"v_add_u32 v{BA+i}, {K1_HIST}, v{BA+i}")
        a(f"ds_add_rtn_u32 v{RK+i}, v{BA+i}, v75")
    a.label("P1_skip_rank")
    a("s_mov_b64 exec, -1")
    a("s_waitcnt lgkmcnt(0)")
    a("s_barrier")
    a(f"s_cmp_lg_u32 s{S_WAVE}, 0")
    a("s_cbranch_scc1 P1_noscan")
    a(f"v_add_u32 v73, {K1_HIST}, v3")
    a("ds_read_b128 v[76:79], v73")
    a("s_waitcnt lgkmcnt(0)")
    a("v_add_u32 v81, v76, v77")
    a("v_add_u32 v82, v81, v78")
    a("v_add_u32 v83, v82, v79")
    a("v_mov_b32 v84, v83")
    scan64(a, 84)
    a("v_sub_u32 v84, v84, v83")
    a("v_add_u32 v85, v84, v76")
    a("v_add_u32 v86, v84, v81")
    a("v_add_u32 v87, v84, v82")
    a("ds_write_b128 v73, v[84:87]")
    for i in range(4):
        a(f"v_lshl_or_b32 v{88+i}, v{76+i}, 16, v{84+i}")
    a(f"buffer_store_dwordx4 v[88:91], v3, s[48:51], 0 offen{ST}")
    a("s_waitcnt lgkmcnt(0)")
    a.label("P1_noscan")
    e_in(1)
    a("v_lshrrev_b32 v92, 5, v0")
    a("s_mul_i32 s69, s2, 50")
    a("v_add_u32 v92, s69, v92")
    a("v_lshlrev_b32 v92, 8, v92")
    a("v_bfe_u32 v93, v0, 3, 2")
    a("v_lshl_add_u32 v92, v93, 6, v92")
    a("v_and_b32 v93, 3, v0")
    a("v_lshl_add_u32 v92, v93, 4, v92")
    a("v_bfe_u32 v93, v0, 2, 1")
    a(f"v_mul_u32_u24 v93, {XHALF}, v93")
    a("v_add_u32 v92, v92, v93")
    a("v_cmp_gt_u32 vcc, 64, v0")
    a("v_mov_b32 v94, 0x80000000")
    a("v_cndmask_b32 v93, v94, v92, vcc")
    a("s_mov_b32 s72, 0x80000000")
    a("s_mov_b32 s73, 0xffff0000")
    a("v_lshlrev_b32 v95, 2, v0")
    a("s_barrier")
    for r in range(2):
        if r == 1:
            a("s_mov_b64 exec, s[70:71]")
            a("s_cbranch_execz P1_skip_scatter")
        for i in range(4):
            a(f"ds_read_b32 v{BA+4*r+i}, v{BA+4*r+i}")
        if r == 0:
            a(f"s_waitcnt vmcnt({4 + n_e(1)})")
        R = RH + 6 * r
        for i in range(4):
            a(f"v_lshl_or_b32 v{SRC+4*r+i}, v{SRC+4*r+i}, 8, v{DL+4*r+i}")
            a(f"v_or_b32 v{SRC+4*r+i}, s72, v{SRC+4*r+i}")
        a(f"v_lshlrev_b32 v76, 16, v{R+1}")
        a(f"v_alignbit_b32 v77, v{R+2}, v{R+1}, 16")
        a(f"v_and_b32 v78, s73, v{R+2}")
        a(f"v_lshlrev_b32 v79, 16, v{R+4}")
        a(f"v_alignbit_b32 v80, v{R+5}, v{R+4}, 16")
        a(f"v_and_b32 v81, s73, v{R+5}")
        w1 = [R, 77, R + 3, 80]
        w2 = [76, 78, 79, 81]
        a("s_waitcnt lgkmcnt(0)")
        for i in range(4):
            b, k = BA + 4 * r + i, RK + 4 * r + i
            a(f"v_add_u32 v{k}, v{k}, v{b}")
            a(f"v_mul_u32_u24 v{b}, 12, v{k}")
            a(f"v_add_u32 v{b}, {K1_MS}, v{b}")
            a(f"ds_write2_b32 v{b}, v{SRC+4*r+i}, v{w1[i]} offset0:0 offset1:1")
            a(f"ds_write_b32 v{b}, v{w2[i]} offset:8")
            a(f"v_lshlrev_b32 v{k}, 1, v{k}")
            a(f"v_add_u32 v{k}, {K1_INV}, v{k}")
            a(f"v_add_u32 v{82+i}, {2048*r + i}, v95")
            a(f"ds_write_b16 v{k}, v{82+i}")
    a.label("P1_skip_scatter")
    a("s_mov_b64 exec, -1")
    a(f"s_waitcnt vmcnt({n_e(1)})")
    a("s_mov_b32 s68, 0")
    for k in range(4):
        a(f"buffer_store_dwordx4 {vr(X+4*k,4)}, v{92 if k < 3 else 93}, s[44:47], s68 offen{ST}")
        a("s_add_u32 s68, s68, 4096")
    e_in(2)
    a("s_waitcnt lgkmcnt(0)")
    a("s_barrier")
    stamp(a, 4, k1=True)
    a(f"v_add_u32 v73, {K1_MS}, v1")
    for k in range(5):
        a(f"ds_read_b128 {vr(4+4*k,4)}, v73 offset:{8192*k}")
    a("v_and_b32 v74, 0x1fe, v0")
    a(f"v_add_u32 v74, {K1_INV}, v74")
    a("s_mov_b32 s68, 0")
    for k in range(5):
        a(f"s_waitcnt lgkmcnt({4-k})")
        a(f"buffer_store_dwordx4 {vr(4+4*k,4)}, v1, s[36:39], s68 offen{ST}")
        a("s_add_u32 s68, s68, 8192")
    for k in range(13):
        a(f"ds_read_u16 v{48+k}, v74 offset:{512*k}")
    e_in(3)
    a("v_and_b32 v75, 1, v0")
    a("v_lshlrev_b32 v75, 4, v75")
    a("s_waitcnt lgkmcnt(0)")
    for k in range(13):
        a(f"v_lshl_add_u32 v{48+k}, v{48+k}, 5, v75")
    a("s_waitcnt vmcnt(0)")
    a("s_barrier")
    stamp(a, 6, k1=True)
    if opt("siga", 0) == 0:
        signal(a, 0, "P1_sa")
    for k in range(12):
        a(f"ds_read_b128 {vr(128+4*k,4)}, v{48+k}")
    a("s_mov_b32 s68, 0")
    for k in range(12):
        a(f"s_waitcnt lgkmcnt({11-k})")
        a(f"buffer_store_dwordx4 {vr(128+4*k,4)}, v1, s[40:43], s68 offen{ST}")
        a("s_add_u32 s68, s68, 8192")
    a(f"s_cmp_ge_u32 s{S_WAVE}, 4")
    a("s_cbranch_scc1 P1_fin" if opt("siga", 0) == 0 else "s_cbranch_scc1 P1_fin2")
    a("ds_read_b128 v[176:179], v60")
    a("s_waitcnt lgkmcnt(0)")
    a(f"buffer_store_dwordx4 v[176:179], v1, s[40:43], s68 offen{ST}")
    a("s_branch P1_fin" if opt("siga", 0) == 0 else "s_branch P1_fin2")

    if opt("siga", 0) == 1:
        a.label("P1_fin2")
        signal(a, 0, "P1_sa")
        a(f"s_cmp_lg_u32 s{S_WAVE}, 0")
        a("s_cbranch_scc1 P1_fin")
        a("s_waitcnt vmcnt(1)")
        a("s_branch P1_fin3")
    if opt("siga", 0) == 2:
        a.label("P1_fin2")
        a("s_waitcnt vmcnt(0)")
        a("s_barrier")
        stamp(a, 8, k1=True)
        signal(a, 0, "P1_sa")
        a("s_branch P1_fin4")
    a.label("P1_prep")
    a("s_cmp_eq_u32 s2, 255")
    a("s_cbranch_scc1 P1_prepd")
    srd(a, 16, 54, 0, 16 * 320 * 2)
    srd(a, 20, 56, 0, 128 * 64 * 2)
    srd(a, 24, 58, 0, 192 * 64 * 2)
    srd(a, 28, 14, WS_WTAB, 20480)
    srd(a, 32, 14, WS_WSI, 40960)
    a("s_sub_u32 s60, s2, 250")
    a("s_lshl_b32 s60, s60, 10")
    for it in range(2):
        prep_tables(a, ST)
        a("s_add_u32 s60, s60, 512")
    a.label("P1_prepd")
    a("s_waitcnt vmcnt(0)")
    a("s_barrier")
    signal(a, 0, "P1_sa2")
    a.label("P1_fin")
    a("s_waitcnt vmcnt(0)")
    a.label("P1_fin3")
    a("s_barrier")
    stamp(a, 8, k1=True)
    a.label("P1_fin4")
    signal(a, 128, "P1_sb")


BAL = opt("bal", 1)


def meta_set_addresses(a):
    a(f"v_lshrrev_b32 v164, 4, v{LANE}")
    a("v_lshlrev_b32 v164, 2, v164")
    a(f"v_bfe_u32 v165, v{LANE}, 2, 1")
    a("v_lshl_add_u32 v160, v165, 5, v164")
    a(f"v_bfe_u32 v165, v{LANE}, 1, 1")
    a("v_lshl_add_u32 v160, v165, 4, v160")
    a("v_lshl_add_u32 v161, v165, 5, v164")
    a(f"v_and_b32 v165, 1, v{LANE}")
    a("v_lshl_add_u32 v160, v165, 1, v160")
    a("v_lshl_add_u32 v161, v165, 4, v161")
    a(f"v_bfe_u32 v165, v{LANE}, 3, 1")
    a("v_add_u32 v160, v160, v165")
    a(f"v_bfe_u32 v165, v{LANE}, 2, 2")
    a("v_add_u32 v161, v161, v165")
    a(f"v_mov_b32 v162, {L_SB}")
    a(f"v_mov_b32 v163, {L_SA}")
    a("v_lshl_add_u32 v160, v160, 2, v163")
    a("v_lshl_add_u32 v161, v161, 3, v162")


def balanced_partition(a):
    L = LANE
    a("v_add_u32 v14, 31, v14")
    a("v_lshrrev_b32 v14, 5, v14")
    a("v_max_u32 v14, 1, v14")
    a(f"v_cmp_gt_u32 s[60:61], s{S_NN}, v{L}")
    a("v_cndmask_b32 v14, 0, v14, s[60:61]")
    a("v_cmp_lt_u32 vcc, 2, v14")
    a("s_andn2_b64 s[60:61], s[60:61], vcc")
    a("s_bcnt1_i32_b64 s62, vcc")
    a("s_bcnt1_i32_b64 s63, s[60:61]")
    a("v_mbcnt_lo_u32_b32 v32, vcc_lo, 0")
    a("v_mbcnt_hi_u32_b32 v32, vcc_hi, v32")
    a("v_mov_b32 v33, s62")
    a("v_mbcnt_lo_u32_b32 v33, s60, v33")
    a("v_mbcnt_hi_u32_b32 v33, s61, v33")
    a("v_cndmask_b32 v32, v33, v32, vcc")
    a(f"v_cmp_gt_u32 vcc, s{S_NN}, v{L}")
    a(f"v_cndmask_b32 v32, v{L}, v32, vcc")
    a("v_lshlrev_b32 v32, 2, v32")
    a(f"v_lshl_or_b32 v33, v{L}, 8, v14")
    a("ds_permute_b32 v34, v32, v33")
    a(f"v_mad_u32_u24 v36, v{L}, s{S_NN}, 7")
    a("v_lshrrev_b32 v36, 3, v36")
    a("s_mul_i32 s58, s62, 10")
    a(f"s_mul_i32 s59, s{S_NN}, 26")
    a("s_add_u32 s58, s58, s59")
    a(f"v_mad_u32_u24 v37, v{L}, s58, 40")
    a("v_mul_u32_u24 v40, 208, v36")
    a("v_sub_u32 v37, v37, v40")
    a("v_max_i32 v37, 0, v37")
    a("v_mul_u32_u24 v37, 3277, v37")
    a("v_lshrrev_b32 v37, 18, v37")
    a("v_subrev_u32 v40, s63, v36")
    a("v_max_i32 v37, v37, v40")
    a("v_min_u32 v37, s62, v37")
    a("v_min_u32 v37, v37, v36")
    for sh in (1, 2, 4, 8):
        a(f"v_max_u32_dpp v37, v37, v37 row_shr:{sh} row_mask:0xf bank_mask:0xf bound_ctrl:1")
    a("v_sub_u32 v40, v36, v37")
    for sh in (1, 2, 4, 8):
        a(f"v_max_u32_dpp v40, v40, v40 row_shr:{sh} row_mask:0xf bank_mask:0xf bound_ctrl:1")
    a("v_sub_u32 v37, v36, v40")
    a("v_lshl_or_b32 v37, v36, 8, v37")
    a(f"s_cmp_eq_u32 s{S_NN}, {NPB}")
    a(f"s_mov_b32 s58, {-(-8*65536 // (N - 255*NPB))}")
    a(f"s_cmov_b32 s58, {-(-8*65536 // NPB)}")
    a(f"v_mul_u32_u24 v40, s58, v{L}")
    a("v_lshrrev_b32 v40, 16, v40")
    a("v_min_u32 v40, 7, v40")
    a("v_lshlrev_b32 v40, 2, v40")
    a("ds_bpermute_b32 v41, v40, v37")
    a("ds_bpermute_b32 v42, v40, v37 offset:4")
    a(f"s_and_b32 s60, s{S_WAVE}, 3")
    a("s_lshl_b32 s60, s60, 1")
    a(f"s_lshr_b32 s61, s{S_WAVE}, 2")
    a("s_add_u32 s59, s60, s61")
    a(f"s_mul_i32 s60, s59, s{S_NN}")
    a(f"s_add_u32 s61, s60, s{S_NN}")
    a("s_add_u32 s60, s60, 7")
    a("s_add_u32 s61, s61, 7")
    a(f"s_lshr_b32 s{S_NODE0}, s60, 3")
    a(f"s_lshr_b32 s{S_NEND}, s61, 3")
    a(f"s_sub_u32 s{S_NNW}, s{S_NEND}, s{S_NODE0}")
    a("s_waitcnt lgkmcnt(0)")
    a("v_lshrrev_b32 v43, 8, v41")
    PP = L
    if opt("mir", 1):
        PP = 33
        a("v_lshrrev_b32 v33, 8, v42")
        a("v_add3_u32 v33, v33, v43, -1")
        a(f"v_sub_u32 v33, v33, v{L}")
        a("v_and_b32 v40, 4, v40")
        a("v_cmp_eq_u32 vcc, 0, v40")
        a(f"v_cndmask_b32 v33, v33, v{L}, vcc")
    a("v_and_b32 v41, 0xff, v41")
    a("v_and_b32 v42, 0xff, v42")
    a(f"v_sub_u32 v43, v{PP}, v43")
    a("v_add_u32 v43, v43, v41")
    a(f"v_sub_u32 v40, v{PP}, v42")
    a("v_add_u32 v40, s62, v40")
    a("v_cmp_lt_u32 vcc, v43, v42")
    a("v_cndmask_b32 v40, v40, v43, vcc")
    a(f"v_cmp_gt_u32 vcc, s{S_NN}, v{L}")
    a(f"v_cndmask_b32 v40, v{L}, v40, vcc")
    a("v_lshlrev_b32 v40, 2, v40")
    a("ds_bpermute_b32 v41, v40, v34")
    a("s_waitcnt lgkmcnt(0)")
    a("v_and_b32 v14, 0xff, v41")
    a(f"v_subrev_u32 v{NST}, 1, v14")
    a(f"v_lshrrev_b32 v{NID}, 8, v41")
    a(f"v_lshlrev_b32 v41, 2, v{NID}")
    a("v_mov_b32 v19, v14")
    scan64(a, 19)
    a("v_sub_u32 v42, v19, v14")
    a("ds_permute_b32 v18, v41, v42")
    a("v_min_u32 v36, 63, v36")
    a("v_lshlrev_b32 v36, 2, v36")
    a("ds_bpermute_b32 v43, v36, v42")
    a("v_readlane_b32 s58, v19, 63")
    a("s_waitcnt lgkmcnt(0)")
    a("v_mov_b32 v40, v43")
    a("v_sub_u32_dpp v40, v43, v43 row_shl:1 row_mask:0xf bank_mask:0xf")
    a(f"v_readlane_b32 s{S_STEP0}, v43, s59")
    a(f"v_cmp_lt_u32 vcc, {MAXWSTEPS}, v40")
    a(f"v_readlane_b32 s{S_NS}, v40, s59")
    a("s_and_b32 s60, vcc_lo, 0xff")


def kernel2():
    a = Asm()
    a("s_cmp_ge_u32 s2, 256")
    a("s_cbranch_scc1 K2_end")
    if opt("xcdmap", 1) == 2:
        a("s_load_dwordx2 s[54:55], s[0:1], 80")
        a("s_getreg_b32 s58, hwreg(HW_REG_XCC_ID, 0, 3)")
        a("v_lshrrev_b32 v1, 6, v0")
        a("v_readfirstlane_b32 s3, v1")
        a(f"v_mov_b32 v3, {L_WSUM}")
        a("s_cmp_lg_u32 s3, 0")
        a("s_cbranch_scc1 CLAIMED")
        a("s_waitcnt lgkmcnt(0)")
        srd(a, 4, 54, 0, 256)
        a("s_mov_b64 exec, 1")
        a.label("CLAIM")
        a("v_mov_b32 v1, 1")
        a("s_lshl_b32 s59, s58, 5")
        a("v_mov_b32 v2, s59")
        a("buffer_atomic_add v1, v2, s[4:7], 0 offen sc0")
        a("s_add_u32 s58, s58, 1")
        a("s_and_b32 s58, s58, 7")
        a("s_waitcnt vmcnt(0)")
        a("v_readfirstlane_b32 s60, v1")
        a("s_cmp_ge_u32 s60, 32")
        a("s_cbranch_scc1 CLAIM")
        a("v_add_u32 v1, v1, v2")
        a("ds_write_b32 v3, v1")
        a("s_mov_b64 exec, -1")
        a.label("CLAIMED")
        a("s_waitcnt lgkmcnt(0)")
        a("s_barrier")
        a("ds_read_b32 v1, v3")
        a("s_waitcnt lgkmcnt(0)")
        a("v_readfirstlane_b32 s2, v1")
        a("s_and_b32 s2, s2, 255")
        a("s_barrier")
    if opt("xcdmap", 1) == 1:
        a("s_and_b32 s3, s2, 7")
        a("s_lshl_b32 s3, s3, 5")
        a("s_lshr_b32 s2, s2, 3")
        a("s_or_b32 s2, s2, s3")
    a(f"v_mov_b32 v{TID}, v0")
    a(f"s_mov_b32 s{S_R0}, 0")
    a(f"s_mov_b32 s{S_CAP}, {CAP}")
    stamp(a, 0, True)
    stamp(a, 1)
    if FUSED:
        part1(a)
        a(f"s_mov_b32 s{S_R0}, 0")
        a(f"s_mov_b32 s{S_CAP}, {CAP}")
        poll(a, 0, "POLL_A")
        a("s_barrier")
    a.label("ROUND")
    a("s_load_dwordx2 s[56:57], s[0:1], 88")
    a("s_load_dwordx2 s[54:55], s[0:1], 72")
    a(f"v_and_b32 v2, 255, v{TID}")
    a("v_lshlrev_b32 v3, 10, v2")
    a(f"v_and_b32 v{LANE}, 63, v{TID}")
    a(f"v_lshrrev_b32 v1, 6, v{TID}")
    a(f"v_readfirstlane_b32 s{S_WAVE}, v1")
    a("s_lshl_b32 s58, s2, 2")
    a("s_cmp_eq_u32 s2, 255")
    a(f"s_cselect_b32 s{S_NN}, {N - 255*NPB}, {NPB}")
    a("s_waitcnt lgkmcnt(0)")
    srd(a, R_TB, 56, WS_TAB, W * 1024)
    DSH = opt("dsh", 1)
    if DSH:
        a(f"s_cmp_ge_u32 s{S_WAVE}, 4")
        a("s_cbranch_scc1 NODESC")
    a(f"buffer_load_dword v20, v3, s[{R_TB}:{R_TB+3}], s58 offen")
    if DSH:
        a.label("NODESC")
    if opt("cpf", 2) & 1:
        a("s_getpc_b64 s[60:61]")
        a.label("K2_here")
        a("s_mov_b32 s62, K2_end-K2_here")
        a("s_mov_b32 s63, 0x20000")
        a(f"v_lshlrev_b32 v21, 7, v{TID}")
        a("buffer_load_dword v75, v21, s[60:63], 0 offen")
    if PROF:
        a("s_mov_b64 s[98:99], s[56:57]")
    if opt("egx", 0):
        a("s_load_dwordx2 s[92:93], s[0:1], 16")
        a("s_mov_b32 s94, 25600000")
        a("s_mov_b32 s95, 0x20000")
        a("s_mov_b32 s96, 800000")
        a("s_mov_b32 s97, 1664525")
        a(f"v_lshrrev_b32 v218, 1, v{TID}")
        a("s_lshl_b32 s59, s2, 8")
        a("v_add_u32 v218, s59, v218")
        a("s_mov_b32 s59, 0x9E3779B1")
        a("v_mul_lo_u32 v218, v218, s59")
        a("s_waitcnt lgkmcnt(0)")
    srd(a, R_W, 56, WS_WTAB, 0x12000)
    srd(a, R_MT, 56, WS_META, E * 12)
    srd(a, R_EP, 56, WS_EP, E * 32)
    srd(a, R_XP, 56, WS_XP - XBIAS, 2 * XHALF + XBIAS)
    a(f"s_mul_i32 s59, s2, {P_WG}")
    a(f"s_add_u32 s59, s59, {WS_P}")
    srd(a, R_P, 56, "s59", 2 * P_HALF)
    a("s_lshl_b32 s59, s2, 16")
    a(f"s_add_u32 s59, s59, {WS_ACC}")
    srd(a, R_ACC, 56, "s59", 65536)
    a(f"s_mul_i32 s59, s2, {NPB*512}")
    a(f"s_lshl_b32 s60, s{S_NN}, 9")
    srd(a, R_OUT, 54, "s59", "s60")
    a(f"s_mul_i32 s{S_RB}, s{S_WAVE}, {RING_W}")
    a(f"s_add_u32 s{S_RB}, s{S_RB}, {L_RING}")
    a(f"s_mov_b32 s{S_HI}, 0xffff0000")
    a(f"s_mov_b32 s{S_SGN}, 0x80008000")
    L = LANE
    a(f"v_bfe_u32 v3, v{L}, 4, 1")
    a(f"v_and_b32 v4, 7, v{L}")
    a("v_lshlrev_b32 v5, 1, v3")
    a("v_xor_b32 v4, v4, v5")
    a("v_lshlrev_b32 v4, 4, v4")
    a(f"v_add_u32 v{XOFF}, {0x80000000 + XBIAS}, v4")
    a(f"v_add_u32 v{XOFF+1}, {0x80000000 + XBIAS - 1088}, v4")
    a(f"v_and_b32 v4, 3, v{L}")
    a(f"v_lshlrev_b32 v{QQ8}, 3, v4")
    a(f"v_bfe_u32 v5, v{L}, 3, 1")
    a("v_mul_u32_u24 v5, 1088, v5")
    a(f"v_lshrrev_b32 v6, 4, v{L}")
    a("v_lshl_add_u32 v5, v6, 8, v5")
    a(f"v_bfe_u32 v7, v{L}, 2, 1")
    a("v_lshl_add_u32 v5, v7, 7, v5")
    a(f"v_add_u32 v5, v5, v{QQ8}")
    a(f"v_add_u32 v5, s{S_RB}, v5")
    a("v_lshlrev_b32 v7, 5, v3")
    a(f"v_add_u32 v{BAE}, v5, v7")
    a(f"v_sub_u32 v{BAO}, v5, v7")
    a(f"v_and_b32 v7, 15, v{L}")
    a("v_lshlrev_b32 v8, 2, v7")
    a(f"v_lshl_add_u32 v{POFF}, v6, 6, v8")
    a("v_and_b32 v8, 1, v7")
    a("v_lshlrev_b32 v8, 4, v8")
    a("v_mov_b32 v9, 0x3f80")
    a("v_lshlrev_b32 v8, v8, v9")
    a("v_and_b32 v9, 14, v7")
    for i in range(4):
        a(f"v_cmp_eq_u32 vcc, {4*i}, v9")
        a(f"v_cndmask_b32 v{SEL+i}, 0, v8, vcc")
    a(f"v_lshlrev_b32 v6, 2, v{TID}")
    a("v_mov_b32 v7, 0")
    a(f"v_add_u32 v8, {L_MISC}, v6")
    a(f"v_cmp_gt_u32 vcc, 68, v{TID}")
    a("s_and_saveexec_b64 s[58:59], vcc")
    a("ds_write_b32 v8, v7")
    a(f"v_cmp_gt_u32 vcc, 8, v{TID}")
    a("s_and_b64 exec, exec, vcc")
    a("ds_write_b32 v6, v7")
    a("s_mov_b64 exec, -1")
    a(f"v_lshlrev_b32 v13, 4, v{TID}")
    a(f"v_add_u32 v13, {L_SA}, v13")
    for i in range(4):
        a(f"v_mov_b32 v{28+i}, 0")
    nz = MAXSTEPS * 384 // 16
    for k in range(6):
        a(f"ds_write_b128 v13, v[28:31] offset:{8192*k}")
    a(f"v_cmp_gt_u32 vcc, {nz - 6*512}, v{TID}")
    a("s_mov_b64 exec, vcc")
    a(f"ds_write_b128 v13, v[28:31] offset:{8192*6}")
    a("s_mov_b64 exec, -1")
    a("v_mul_u32_u24 v14, 3200, v2")
    a(f"v_lshrrev_b32 v15, 8, v{TID}")
    a("v_mov_b32 v16, 0x80000000")
    a(f"s_and_b32 s59, s{S_WAVE}, 3")
    a("v_lshlrev_b32 v22, 3, v2")
    a("v_add_u32 v22, 1024, v22")
    if DSH:
        a(f"s_cmp_ge_u32 s{S_WAVE}, 4")
        a("s_cbranch_scc1 NOSCAN")
    a(f"s_waitcnt vmcnt({opt('cpf', 2) & 1})")
    stamp(a, 2)
    a("v_lshrrev_b32 v9, 16, v20")
    a("v_mov_b32 v21, v9")
    scan64(a, 21)
    a("v_readlane_b32 s58, v21, 63")
    a("s_lshl_b32 s60, s59, 2")
    a(f"s_add_u32 s60, s60, {L_WSUM}")
    a("v_mov_b32 v12, s60")
    a("v_mov_b32 v13, s58")
    a("ds_write_b32 v12, v13")
    a("v_sub_u32 v21, v21, v9")
    if DSH:
        a("ds_write_b64 v22, v[20:21]")
        a.label("NOSCAN")
    a(f"v_mov_b32 v12, {L_WSUM}")
    a("s_waitcnt lgkmcnt(0)")
    a("s_barrier")
    a("ds_read_b128 v[16:19], v12")
    if DSH:
        a("ds_read_b64 v[20:21], v22")
    a("s_waitcnt lgkmcnt(0)")
    a("v_lshrrev_b32 v9, 16, v20")
    a("v_and_b32 v10, 0xffff, v20")
    a("v_add_u32 v14, v14, v10")
    a("v_mov_b32 v11, v21")
    for i in range(4):
        a(f"v_readfirstlane_b32 s{60+i}, v{16+i}")
    a("s_add_u32 s61, s61, s60")
    a("s_add_u32 s62, s62, s61")
    a(f"s_add_u32 s{S_T}, s63, s62")
    a("s_cmp_eq_u32 s59, 0")
    a("s_cselect_b32 s58, 0, s60")
    a("s_cmp_eq_u32 s59, 2")
    a("s_cselect_b32 s58, s61, s58")
    a("s_cmp_eq_u32 s59, 3")
    a("s_cselect_b32 s58, s62, s58")
    a("v_mov_b32 v16, 0x80000000")
    a(f"s_sub_u32 s{S_LEN}, s{S_T}, s{S_R0}")
    a(f"s_cmp_le_u32 s{S_LEN}, s{S_CAP}")
    a(f"s_cselect_b32 s{S_LAST}, 1, 0")
    a(f"s_min_u32 s{S_LEN}, s{S_LEN}, s{S_CAP}")
    a(f"s_sub_u32 s58, s58, s{S_R0}")
    a("v_add_u32 v11, s58, v11")
    a("v_sub_u32 v12, 0, v11")
    a("v_max_i32 v12, 0, v12")
    a(f"v_sub_u32 v13, s{S_LEN}, v11")
    a("v_min_i32 v13, v13, v9")
    a("v_add_u32 v12, v12, v15")
    a("v_sub_u32 v9, v13, v12")
    a("v_add_u32 v14, v14, v12")
    a("v_add_u32 v11, v11, v12")
    a("v_lshlrev_b32 v12, 2, v11")
    a(f"v_add_u32 v12, {L_MAP}, v12")
    a.label("MAPL")
    for i in range(16):
        a(f"v_cmp_lt_i32 vcc, {2*i}, v9")
        if i:
            a("v_add_u32 v14, 2, v14")
        a("s_and_b64 exec, exec, vcc")
        if i % 4 == 0:
            a("s_cbranch_execz MAPD")
        a(f"ds_write_b32 v12, v14 offset:{8*i}")
    a("v_add_u32 v14, 2, v14")
    a("v_add_u32 v12, 128, v12")
    a("v_subrev_u32 v9, 32, v9")
    a("s_branch MAPL")
    a.label("MAPD")
    a("s_mov_b64 exec, -1")
    a(f"v_add_u32 v12, {L_MAP}, v6")
    a(f"v_lshrrev_b32 v13, 1, v{LANE}")
    a(f"s_lshl_b32 s58, s{S_WAVE}, 5")
    a("v_add_u32 v13, s58, v13")
    a(f"v_lshl_add_u32 v14, v13, 2, v7")
    a(f"v_add_u32 v14, {L_MAP}, v14")
    a(f"v_and_b32 v15, 1, v{LANE}")
    a("v_lshlrev_b32 v15, 4, v15")
    a("s_waitcnt lgkmcnt(0)")
    a("s_barrier")
    stamp(a, 3)
    for k in range(7):
        a(f"ds_read_b32 v{20+k}, v12 offset:{2048*k}")
    for k in range(14):
        a(f"ds_read_b32 v{28+k}, v14 offset:{1024*k}")
    MREC = 44
    EPOL = ["", " sc1", " nt"][opt("epol", 0)]
    for k in range(7):
        a(f"v_add_u32 v17, {512*k}, v{TID}")
        a(f"v_cmp_gt_u32 s[{S_MASK+2*k}:{S_MASK+2*k+1}], s{S_LEN}, v17")
        a(f"s_waitcnt lgkmcnt({min(15, 20-k)})")
        a(f"v_mul_u32_u24 v{20+k}, 12, v{20+k}")
        a(f"v_cndmask_b32 v{20+k}, v16, v{20+k}, s[{S_MASK+2*k}:{S_MASK+2*k+1}]")
    if PROF == 2:
        stamp(a, 7)
    for k in range(7):
        a(f"buffer_load_dwordx3 {vr(MREC+4*k,3)}, v{20+k}, s[{R_MT}:{R_MT+3}], 0 offen{EPOL}")
    a("s_waitcnt lgkmcnt(0)")
    a(f"s_lshl_b32 s{S_EM0}, s{S_WAVE}, 10")
    a(f"s_add_u32 s{S_EM0}, s{S_EM0}, {L_E + 32}")
    EREG = 128
    for k in range(14):
        a(f"v_cmp_gt_u32 vcc, s{S_LEN}, v13")
        a(f"v_lshl_add_u32 v{28+k}, v{28+k}, 5, v15")
        a("v_add_u32 v13, 256, v13")
        a(f"v_cndmask_b32 v{EREG+k}, v16, v{28+k}, vcc")
    eb = [int(c) for c in opt("eb", "0554" if FUSED else "3551")]

    assert sum(eb[:1]) <= 10

    def e_batch(i, tag=""):
        for k in range(sum(eb[:i]), sum(eb[:i + 1])):
            if k == 13:
                a(f"s_cmp_ge_u32 s{S_WAVE}, 2")
                a("s_cbranch_scc1 NOE14")
            a(f"s_mov_b32 m0, s{S_EM0}")
            a(f"s_add_u32 s{S_EM0}, s{S_EM0}, 8192")
            a(f"buffer_load_dwordx4 v{EREG+k}, s[{R_EP}:{R_EP+3}], 0 offen{EPOL} lds")
            if k == 13:
                a.label("NOE14")

    if PROF == 2:
        stamp(a, 8)
    e_batch(0)
    if FUSED:
        a("v_mov_b32 v111, 0")
        a(f"buffer_load_dword v110, v111, s[{R_DBG}:{R_DBG+3}], 0 offen offset:128 sc1")
    if PROF == 2:
        stamp(a, 9)
    a("v_mov_b32 v17, 1")
    for k in range(7):
        a(f"s_waitcnt vmcnt({min(eb[0], 13) + 6 - k + FUSED})")
        if PROF == 2 and k in (0, 6):
            stamp(a, 10 if k == 0 else 11)
        a(f"v_and_b32 v{20+k}, 0xff, v{MREC+4*k}")
        a(f"v_lshlrev_b32 v{20+k}, 2, v{20+k}")
        a(f"v_add_u32 v18, {L_CNT}, v{20+k}")
        a(f"s_mov_b64 exec, s[{S_MASK+2*k}:{S_MASK+2*k+1}]")
        a(f"ds_add_rtn_u32 v{MREC+4*k+3}, v18, v17")
        a("s_mov_b64 exec, -1")
    a(f"v_lshlrev_b32 v12, 2, v{LANE}")
    a(f"v_add_u32 v12, {L_CNT}, v12")
    a(f"v_lshlrev_b32 v35, 2, v{TID}")
    a("v_add_u32 v35, 4, v35")
    RP = 144
    for k in range(7):
        r = MREC + 4 * k
        a(f"v_and_b32 v{r}, 0xffffff00, v{r}")
        a(f"v_add_u32 v36, {2048*k}, v35")
        a(f"v_or_b32 v{RP+2*k+1}, v{r+2}, v36")
        a(f"v_mov_b32 v{RP+2*k}, v{r+1}")
    meta_set_addresses(a)
    if FUSED:
        a("s_waitcnt vmcnt(0)")
        a("v_readfirstlane_b32 s60, v110")
    a("s_waitcnt lgkmcnt(0)")
    a("s_barrier")
    stamp(a, 4)
    if FUSED:
        a(f"s_lshr_b32 s{S_EB1}, s60, 8")
        a(f"s_mov_b32 s{S_EB2}, s{S_EB1}")
        a(f"s_cmp_eq_u32 s{S_EB1}, 0")
        a("s_cbranch_scc1 EB1_skip")
        e_batch(1)
        a("s_branch EB1_done")
        a.label("EB1_skip")
        a(f"buffer_load_dword v110, v111, s[{R_DBG}:{R_DBG+3}], 0 offen offset:128 sc1")
        a.label("EB1_done")
    else:
        e_batch(1)
    a("ds_read_b32 v14, v12")
    a("s_waitcnt lgkmcnt(0)")
    if BAL:
        balanced_partition(a)
    else:
        a("v_add_u32 v14, 31, v14")
        a("v_lshrrev_b32 v14, 5, v14")
        a("v_max_u32 v14, 1, v14")
        a(f"v_cmp_gt_u32 vcc, s{S_NN}, v{LANE}")
        a(f"v_mad_u32_u24 v15, v14, 10, {opt('epc', 6)}")
        a("v_cndmask_b32 v15, 0, v15, vcc")
        a("v_cndmask_b32 v14, 0, v14, vcc")
        a("v_lshl_or_b32 v18, v15, 16, v14")
        a(f"v_subrev_u32 v{NST}, 1, v14")
        a("v_mov_b32 v19, v18")
        scan64(a, 19)
        a("v_readlane_b32 s58, v19, 63")
        a("v_sub_u32 v18, v19, v18")
        a("v_and_b32 v19, 0xffff, v19")
        a("v_lshrrev_b32 v32, 16, v18")
        a("v_and_b32 v18, 0xffff, v18")
        a("v_lshl_add_u32 v32, v32, 1, v15")
        a("v_lshlrev_b32 v32, 2, v32")
        a("s_lshr_b32 s59, s58, 16")
        a("s_and_b32 s58, s58, 0xffff")
        a(f"s_and_b32 s60, s{S_WAVE}, 3")
        a("s_lshl_b32 s60, s60, 1")
        a(f"s_lshr_b32 s61, s{S_WAVE}, 2")
        a("s_add_u32 s60, s60, s61")
        a("s_mul_i32 s60, s60, s59")
        a("s_add_u32 s61, s60, s59")
        a("v_cmp_le_u32 vcc, s60, v32")
        a("v_cmp_gt_u32 s[62:63], s61, v32")
        a("s_and_b64 vcc, vcc, s[62:63]")
        a(f"s_bcnt1_i32_b64 s{S_NNW}, vcc")
        a(f"s_ff1_i32_b64 s{S_NODE0}, vcc")
        a(f"s_max_i32 s{S_NODE0}, s{S_NODE0}, 0")
        a(f"s_add_u32 s{S_NEND}, s{S_NODE0}, s{S_NNW}")
        a(f"s_sub_u32 s60, s{S_NEND}, 1")
        a("s_max_i32 s60, s60, 0")
        a(f"v_readlane_b32 s{S_STEP0}, v18, s{S_NODE0}")
        a(f"v_readlane_b32 s{S_NS}, v19, s60")
        a(f"s_sub_u32 s{S_NS}, s{S_NS}, s{S_STEP0}")
    assert BAL
    for k in range(7):
        a(f"ds_bpermute_b32 v{20+k}, v{20+k}, v18")
    a(f"s_lshl_b32 s59, s{S_STEP0}, 7")
    a("v_add_u32 v160, s59, v160")
    a("s_lshl_b32 s59, s59, 1")
    a("v_add_u32 v161, s59, v161")
    a(f"s_cmp_gt_u32 s58, {MAXSTEPS}")
    a("s_cselect_b32 s60, 1, s60")
    a("s_cmp_eq_u32 s60, 0")
    a("s_cbranch_scc1 SCATTER")
    a(f"s_mov_b32 s{S_CAP}, {SLOWCAP}")
    a("s_waitcnt vmcnt(0) lgkmcnt(0)")
    a("s_barrier")
    a("s_branch ROUND")
    a.label("SCATTER")
    if FUSED:
        a(f"s_cmp_lg_u32 s{S_EB1}, 0")
        a("s_cbranch_scc1 EB2_go")
        a("s_waitcnt vmcnt(0)")
        a("v_readfirstlane_b32 s60, v110")
        a(f"s_lshr_b32 s{S_EB2}, s60, 8")
        a(f"s_cmp_eq_u32 s{S_EB2}, 0")
        a("s_cbranch_scc1 EB2_skip")
        e_batch(1)
        a.label("EB2_go")
        e_batch(2)
        a.label("EB2_skip")
    else:
        e_batch(2)
    for k in range(7):
        r = MREC + 4 * k
        a(f"s_waitcnt lgkmcnt({6 - k + 2 * k if 6 + k <= 15 else 15})")
        a(f"v_lshl_add_u32 v{20+k}, v{20+k}, 5, v{r+3}")
        a(f"v_lshl_add_u32 v{r+1}, v{20+k}, 3, v162")
        a(f"v_lshl_add_u32 v{20+k}, v{20+k}, 2, v163")
        a(f"s_mov_b64 exec, s[{S_MASK+2*k}:{S_MASK+2*k+1}]")
        a(f"ds_write_b32 v{20+k}, v{r}")
        a(f"ds_write_b64 v{r+1}, {vr(RP+2*k,2)}")
        a("s_mov_b64 exec, -1")
    if FUSED:
        a(f"s_cmp_lg_u32 s{S_EB2}, 0")
        a("s_cbranch_scc1 EB3_nopoll")
        poll(a, 128, "POLL_B")
        a.label("EB3_nopoll")
    a("s_waitcnt lgkmcnt(0)")
    a("s_barrier")
    if FUSED:
        a(f"s_cmp_lg_u32 s{S_EB2}, 0")
        a("s_cbranch_scc1 EB3_go")
        e_batch(1)
        e_batch(2)
        a.label("EB3_go")
    e_batch(3)
    for s in range(10):
        a(f"ds_read_b32 v{M0R+s}, v160 offset:{256*s}")
        a(f"ds_read_b64 {vr(MBR+2*s,2)}, v161 offset:{512*s}")
    a(f"s_mov_b32 s{S_D}, 0")
    pfn = opt("pfn", 0)
    if pfn:
        a(f"s_sub_u32 s{S_EVT}, s{S_NEND}, {pfn}")
        a(f"s_max_i32 s{S_EVT}, s{S_EVT}, 0")
    else:
        a(f"s_mov_b32 s{S_EVT}, -2")
    a(f"s_mov_b32 s{S_PHASE}, 0")
    a(f"s_mov_b32 s{S_POFF}, 0")
    a(f"s_mov_b32 s{S_TAB0}, 0")
    a(f"s_mov_b32 s{S_TAB1}, 128")
    a(f"s_mov_b32 s{S_NODE}, s{S_NODE0}")
    for l in node_steps(S_NODE):
        a(l)
    if opt("prio", 3) == 2:
        a(f"s_lshr_b32 s54, s{S_WAVE}, 2")
        a(f"s_lshl2_add_u32 s{S_LEFT}, s{S_NS}, s54")
        a(f"s_add_u32 s{S_LEFT}, s{S_LEFT}, 256")
        a(f"s_lshl1_add_u32 s54, s{S_REM}, 2")
        a(f"s_sub_u32 s{S_LEFT}, s{S_LEFT}, s54")
        a(f"s_and_b32 s54, s{S_WAVE}, 3")
        a(f"s_lshl2_add_u32 s{S_PADR}, s54, {L_CNT + 240}")
    stamp(a, 5)
    a("s_waitcnt lgkmcnt(0)")
    a("s_barrier")
    if PROF and not opt("egx", 0):
        a(f"s_mov_b32 s{preg(12)}, s{S_NS}")
        a(f"s_mov_b32 s{preg(13)}, s{S_NNW}")
    a(f"s_cmp_lg_u32 s{S_NNW}, 0")
    a("s_cbranch_scc1 START")
    a("s_waitcnt vmcnt(0)")
    a("s_barrier")
    stamp(a, 6)
    a("s_branch TAIL")
    a.label("START")
    pipeline_start(a)
    cold = []
    for par in range(2):
        for rho in (0, 2, 1):
            epilogue(a, rho, par, cold)
            step_body(a, rho, "f", par, 1 - par, "n", cold)
            step_body(a, (rho + 1) % 3, "n", 1 - par, par, "e" if rho != 1 else "", cold)
    for rho in range(3):
        step_body(a, rho, "f", 0, 0, "", cold)
        step_body(a, rho, "n", 0, 0, "", cold)
    for l in cold:
        a(l)

    a.label("TAIL")
    a("s_setprio 0")
    WF, PF, D = 0, 80, 188
    if PROF == 4:
        a("v_mov_b32 v183, v219")
    stamp(a, 8, late=True)
    a(f"v_and_b32 v{T0+1}, 15, v{LANE}")
    a(f"s_lshr_b32 s56, s{S_WAVE}, 1")
    a("s_lshl_b32 s56, s56, 4")
    a(f"v_add_u32 v{T0+1}, s56, v{T0+1}")
    a(f"v_lshlrev_b32 v{T0+2}, 2, v{T0+1}")
    a(f"ds_bpermute_b32 v{T0+4}, v{T0+2}, v{NID}")
    a(f"v_lshrrev_b32 v{T0+2}, 4, v{LANE}")
    a(f"v_lshlrev_b32 v{T0+2}, 4, v{T0+2}")
    a("s_waitcnt lgkmcnt(0)")
    a(f"v_lshl_add_u32 v{T0+4}, v{T0+4}, 9, v{T0+2}")
    a(f"v_lshlrev_b32 v{T0}, 4, v{LANE}")
    a(f"s_and_b32 s54, s{S_WAVE}, 1")
    a("s_mul_i32 s55, s54, 20480")
    a(f"s_add_u32 s55, s55, {WS_WSI - WS_WTAB}")
    if NEWTAIL:
        def prework(tag):
            a(f"s_mul_i32 s56, s{S_NNW}, {P_NODE}")
            a(f"s_mul_i32 s57, s{S_NODE0}, {P_NODE}")
            a(f"s_mov_b32 s60, s{S_RB}")
            for k in range(6):
                a(f"v_cmp_gt_u32 vcc, s56, v{T0}")
                a("s_mov_b32 m0, s60")
                a("s_mov_b64 exec, vcc")
                a(f"s_cbranch_execz {tag}")
                a(f"buffer_load_dwordx4 v{T0}, s[{R_P}:{R_P+3}], s57 offen sc1 lds")
                a("s_mov_b64 exec, -1")
                a("s_add_u32 s57, s57, 1024")
                a("s_add_u32 s60, s60, 1024")
                a("s_sub_u32 s56, s56, 1024")
                a("s_max_i32 s56, s56, 0")
            a.label(tag)
            a("s_mov_b64 exec, -1")
            for f in range(20):
                if f % 4 == 0 and f:
                    a("s_add_u32 s55, s55, 4096")
                a(f"buffer_load_dwordx4 {vr(WF+4*f,4)}, v{T0}, s[{R_W}:{R_W+3}], s55 offen offset:{(f%4)*1024}")

        a(f"v_mov_b32 v{T0+5}, {L_CNT + 224}")
        a(f"v_mov_b32 v{T0+6}, 1")
        a(f"s_mul_i32 s56, s{S_NNW}, {P_NODE}")
        a(f"s_add_u32 s60, s56, s{S_RB}")
        a(f"v_add_u32 v{T0+7}, s60, v{POFF}")
        a("s_mov_b64 exec, 1")
        a(f"ds_add_rtn_u32 v{T0+6}, v{T0+5}, v{T0+6}")
        a("s_mov_b64 exec, -1")
        a(f"s_cmp_eq_u32 s{S_NNW}, 0")
        a("s_cbranch_scc1 T_NOREC")
        a("s_waitcnt vmcnt(3)")
        for i in range(3):
            a(f"ds_write_b32 v{T0+7}, v{64+i} offset:{256*i}")
        a.label("T_NOREC")
        a("s_waitcnt lgkmcnt(0)")
        a(f"v_readfirstlane_b32 s{S_OLD}, v{T0+6}")
        a(f"s_cmp_ge_u32 s{S_OLD}, {opt('tlast', 7)}")
        a("s_cbranch_scc1 T_BAR")
        if DRY:
            a("s_mov_b32 s62, 1")
            a(f"s_cmp_eq_u32 s{S_OLD}, 0")
            a("s_cbranch_scc1 T_MM")
            a.label("T_RET")
        prework("T_P1")
        a.label("T_BAR")
        a("s_barrier")
        stamp(a, 9, late=True)
        a(f"s_lshl_b32 s61, s{S_WAVE}, 10")
        a(f"s_add_u32 s61, s61, {P_HALF}")
        for k in range(5):
            if k == 4:
                a(f"s_cmp_ge_u32 s{S_WAVE}, 6")
                a("s_cbranch_scc1 NOP10")
            a("s_mov_b32 m0, s61")
            a(f"buffer_load_dwordx4 v{T0}, s[{R_P}:{R_P+3}], s61 offen sc1 lds")
            a("s_add_u32 s61, s61, 8192")
        a.label("NOP10")
        a(f"s_cmp_lt_u32 s{S_OLD}, {opt('tlast', 7)}")
        a("s_cbranch_scc1 T_DONE")
        prework("T_P2")
        a.label("T_DONE")
    else:
        a("s_waitcnt vmcnt(0)")
        for f in range(20):
            if f % 4 == 0 and f:
                a("s_add_u32 s55, s55, 4096")
            a(f"buffer_load_dwordx4 {vr(WF+4*f,4)}, v{T0}, s[{R_W}:{R_W+3}], s55 offen offset:{(f%4)*1024}")
        a("s_barrier")
        stamp(a, 9, late=True)
        a(f"s_lshl_b32 s55, s{S_WAVE}, 10")
        for k in range(10):
            if k == 9:
                a(f"s_cmp_ge_u32 s{S_WAVE}, 4")
                a("s_cbranch_scc1 NOP10")
            a("s_mov_b32 m0, s55")
            a(f"buffer_load_dwordx4 v{T0}, s[{R_P}:{R_P+3}], s55 offen sc1 lds")
            a("s_add_u32 s55, s55, 8192")
        a.label("NOP10")
    a(f"v_lshlrev_b32 v{T0+8}, 1, v{T0+4}")
    a(f"s_lshl_b32 s57, s54, 9")
    a(f"s_cmp_eq_u32 s{S_R0}, 0")
    a("s_cbranch_scc1 ZEROD")
    for i in range(8):
        a(f"buffer_load_dwordx4 {vr(D+4*i,4)}, v{T0+8}, s[{R_ACC}:{R_ACC+3}], s57 offen offset:{(i//2)*128 + (i%2)*16} sc1")
    a("s_branch HAVED")
    a.label("ZEROD")
    for i in range(32):
        a(f"v_mov_b32 v{D+i}, 0")
    a.label("HAVED")
    if NEWTAIL:
        t = T0 + 9
        a(f"s_cmp_eq_u32 s{S_NN}, {NPB}")
        a(f"s_mov_b32 s58, {-(-8*65536 // (N - 255*NPB))}")
        a(f"s_cmov_b32 s58, {-(-8*65536 // NPB)}")
        a(f"v_mul_u32_u24 v{T0+3}, s58, v{T0+1}")
        a(f"v_lshrrev_b32 v{T0+3}, 16, v{T0+3}")
        a(f"v_min_u32 v{T0+3}, 7, v{T0+3}")
        a(f"v_mad_u32_u24 v{T0+5}, v{T0+3}, s{S_NN}, 7")
        a(f"v_add_u32 v{T0+6}, s{S_NN}, v{T0+5}")
        a(f"v_lshrrev_b32 v{T0+5}, 3, v{T0+5}")
        a(f"v_lshrrev_b32 v{T0+6}, 3, v{T0+6}")
        a(f"v_lshrrev_b32 v{t}, 1, v{T0+3}")
        a(f"v_and_b32 v{T0+3}, 1, v{T0+3}")
        a(f"v_lshl_add_u32 v{t}, v{T0+3}, 2, v{t}")
        a(f"v_mul_u32_u24 v{t}, {RING_W}, v{t}")
        a(f"v_add_u32 v{t}, {L_RING}, v{t}")
        a(f"v_add_u32 v{t}, v{t}, v{T0+2}")
        a(f"v_sub_u32 v{T0+5}, v{T0+1}, v{T0+5}")
        a(f"s_movk_i32 s58, {P_NODE}")
        a(f"v_mad_u32_u24 v{T0+5}, v{T0+5}, s58, v{t}")
        a(f"v_add_u32 v{t+1}, 1, v{T0+1}")
        a(f"v_cmp_eq_u32 vcc, v{t+1}, v{T0+6}")
        a(f"v_mad_u32_u24 v{T0+6}, v{T0+1}, s58, v{T0+2}")
        a(f"v_add_u32 v{T0+6}, {P_HALF}, v{T0+6}")
        a(f"v_add_u32 v{t}, {P_NODE}, v{T0+5}")
        a(f"v_cndmask_b32 v{T0+6}, v{T0+6}, v{t}, vcc")
        a("s_lshl_b32 s54, s54, 6")
    else:
        a(f"v_mul_u32_u24 v{T0+5}, {P_NODE}, v{T0+1}")
        a(f"v_add_u32 v{T0+5}, v{T0+5}, v{T0+2}")
        a(f"v_add_u32 v{T0+6}, {P_HALF}, v{T0+5}")
        a("s_lshl_b32 s54, s54, 6")
    a("s_mov_b32 s62, 0")
    a("s_waitcnt vmcnt(0)")
    a("s_barrier")
    stamp(a, 10, late=True)
    a.label("T_MM")
    seq = []
    for comp, ts in enumerate(([P0, P1], [P2[0], P3[0], P4[0]], [P2[1], P3[1], P4[1]], [P2[2], P3[2], P4[2]])):
        for t in ts:
            for h in range(2):
                seq.append((comp, t, h))
    for i, (comp, t, h) in enumerate(seq):
        a(f"ds_read_b128 {vr(PF+4*i,4)}, v{T0+5+h} offset:{t*64}")
        if i == 14:
            a("s_waitcnt lgkmcnt(7)")
    for i, (comp, t, h) in enumerate(seq):
        if i >= 8:
            a(f"s_waitcnt lgkmcnt({21 - i})")
        for mt in range(2):
            d = vr(D + 8 * comp + 4 * mt, 4)
            a(f"v_mfma_f32_16x16x32_bf16 {d}, {vr(WF + 4*(10*mt + 2*TPATH[t] + h),4)}, {vr(PF+4*i,4)}, {d}")
    if PROF == 7:
        stamp(a, 4)
    a(f"s_or_b32 s63, s{S_LAST}, s62")
    a("s_cbranch_scc0 MORE")
    for i in range(8):
        a(f"v_mul_f32 v{i}, 0xbfb8aa3b, v{D+i}")
    for i in range(8):
        a(f"v_exp_f32 v{i}, v{i}")
    for i in range(8):
        a(f"v_add_f32 v{i}, 1.0, v{i}")
    for i in range(8):
        a(f"v_rcp_f32 v{i}, v{i}")
    a("s_cmp_lg_u32 s62, 0")
    for comp in range(4):
        if comp:
            for i in range(8):
                a(f"v_mul_f32 v{D+8*comp+i}, v{D+8*comp+i}, v{i}")
        for i in range(4):
            a(f"v_cvt_pk_bf16_f32 v{8+4*comp+i}, v{D+8*comp+2*i}, v{D+8*comp+2*i+1}")
        if DRY:
            a(f"s_cbranch_scc1 {'T_RET' if comp == 3 else 'T_S%d' % comp}")
        a(f"buffer_store_dwordx4 {vr(8+4*comp,4)}, v{T0+4}, s[{R_OUT}:{R_OUT+3}], s54 offen offset:{128*comp}{OPOL}")
        if DRY and comp < 3:
            a.label(f"T_S{comp}")
    if PROF == 7:
        stamp(a, 7)
    if PROF:
        a("s_waitcnt vmcnt(0)")
    stamp(a, 11, late=True)
    stamp(a, 15, True)
    prof_dump(a, 98, 1, 3, S_WAVE)
    if opt("amp", 0):
        a("s_cmp_lg_u32 s2, 100")
        a("s_cbranch_scc1 K2_end")
        srd(a, 4, 98, WS_PROF + 100 * 1024, 64)
        a("v_mov_b32 v0, 0")
        a("buffer_load_dword v2, v0, s[4:7], 0 offen")
        a("buffer_load_dword v3, v0, s[4:7], 0 offen offset:60")
        a("s_waitcnt vmcnt(0)")
        a("v_readfirstlane_b32 s60, v2")
        a("v_readfirstlane_b32 s61, v3")
        lo, hi = {1: ("s60", f"s{S_PROF}"), 2: (f"s{S_PROF}", f"s{S_PROF+6}"), 3: (f"s{S_PROF+6}", f"s{S_PROF+9}"),
                  4: ("s60", "s61"), 5: ("s60", "s60")}[opt("amp", 0)]
        a(f"s_sub_u32 s62, {hi}, {lo}")
        a("s_min_u32 s62, s62, 10000")
        a("s_lshl_b32 s62, s62, 2")
        a("s_add_u32 s62, s62, 1000")
        a.label("AMPL")
        a("s_memrealtime s[80:81]")
        a("s_waitcnt lgkmcnt(0)")
        a(f"s_sub_u32 s63, s80, s{S_PROF+15}")
        a("s_cmp_lt_u32 s63, s62")
        a("s_cbranch_scc1 AMPL")
    if PROF == 4:
        a("s_lshl_b32 s80, s2, 3")
        a(f"s_add_u32 s80, s80, s{S_WAVE}")
        a("s_lshl_b32 s80, s80, 8")
        a(f"s_add_u32 s80, s80, {WS_PROF + 0x200000}")
        srd(a, 4, 98, "s80", 256)
        a(f"v_lshlrev_b32 v0, 2, v{LANE}")
        a("buffer_store_dword v183, v0, s[4:7], 0 offen")
    if PROF == 3:
        a("s_load_dwordx2 s[54:55], s[0:1], 80")
        a("s_min_u32 s80, s2, 249")
        a("s_lshl_b32 s80, s80, 10")
        a(f"s_add_u32 s80, s80, {WS_PROF}")
        srd(a, 4, 98, "s80", 64)
        a("v_mov_b32 v0, 0")
        a("buffer_load_dword v2, v0, s[4:7], 0 offen")
        a("buffer_load_dword v3, v0, s[4:7], 0 offen offset:8")
        a("buffer_load_dword v4, v0, s[4:7], 0 offen offset:24")
        a("buffer_load_dword v5, v0, s[4:7], 0 offen offset:60")
        a("s_waitcnt vmcnt(0) lgkmcnt(0)")
        srd(a, 4, 54, 0, 256)
        a("v_not_b32 v2, v2")
        a("s_mov_b64 exec, 1")
        for i in range(4):
            a(f"buffer_atomic_umax v{2+i}, v0, s[4:7], 0 offen offset:{4*i}")
        a(f"v_not_b32 v2, s{S_PROF}")
        a("buffer_atomic_umax v2, v0, s[4:7], 0 offen offset:16")
        for i, st in enumerate((0, 2, 3, 4, 6, 7, 8, 9, 10, 15)):
            a(f"v_mov_b32 v{3+i}, s{S_PROF+st}")
            a(f"buffer_atomic_umax v{3+i}, v0, s[4:7], 0 offen offset:{20+4*i}")
    a("s_endpgm")
    a.label("MORE")
    for i in range(8):
        a(f"buffer_store_dwordx4 {vr(D+4*i,4)}, v{T0+8}, s[{R_ACC}:{R_ACC+3}], s57 offen offset:{(i//2)*128 + (i%2)*16}")
    a(f"s_add_u32 s{S_R0}, s{S_R0}, s{S_LEN}")
    a("s_waitcnt vmcnt(0)")
    a("s_barrier")
    a("s_branch ROUND")
    a.label("K2_end")
    a("s_endpgm")
    return a


def descriptor(name, nv, ns):
    return f""".amdhsa_kernel {name}
  .amdhsa_next_free_vgpr {nv}
  .amdhsa_next_free_sgpr {ns}
  .amdhsa_accum_offset {(nv + 3) // 4 * 4}
  .amdhsa_group_segment_fixed_size 0
  .amdhsa_kernarg_size 96
  .amdhsa_user_sgpr_count 2
  .amdhsa_user_sgpr_kernarg_segment_ptr 1
  .amdhsa_system_sgpr_workgroup_id_x 1
  .amdhsa_float_denorm_mode_32 3
.end_amdhsa_kernel
"""


def main():
    ref = open(os.path.join(os.path.dirname(os.path.abspath(__file__)), "..", "cdna_kernels", NAME + ".s.ref")).read()
    head = [l for l in ref.split("\n") if l.startswith(";") and "@launch" not in l and "Override" not in l
            and "grid=ceil" not in l]
    k1, k2 = "edge_sort_kernel", NAME + "_kernel"
    out = head + ([] if FUSED else [f"; @launch kernel={k1} grid=(255,1,1) block=(1024,1,1) lds={K1_LDS}"]) + [
        f"; @launch kernel={k2} grid=(256,1,1) block=(512,1,1) lds={K2_LDS}",
        '.amdgcn_target "amdgcn-amd-amdhsa--gfx950"',
        ".text",
    ]
    for name, fn in ((k1, kernel1), (k2, kernel2))[FUSED:]:
        lines, nops = fn().finish()
        print(name, "instructions:", len(lines), "nops inserted:", nops, file=sys.stderr)
        out += [f".globl {name}", ".p2align 8", f".type {name},@function", f"{name}:"] + lines
    out += ['.section .rodata,"a"'] + ([] if FUSED else [".p2align 6", descriptor(k1, 96, 102)])
    out += [".p2align 6", descriptor(k2, NVGPR, 102)]
    open(sys.argv[1], "w").write("\n".join(out))


if __name__ == "__main__":
    main()
```

```python
import os
import sys

sys.path.insert(0, os.path.dirname(os.path.abspath(__file__)))
from asmlib import Asm, vr, sr

NAME = "gather_scatter__tensor_product_equiv_equiformer__graph"
N, E = 12500, 800000
CHUNK, W = 3200, 250
NPB = 49
NBIN = 256

WS_TAB = 0
WS_WTAB = 0x40000
WS_WSI = 0x48000
WS_META = 0x100000
WS_XP = 0xB00000
WS_EP = 0x1200000
WS_P = 0x2B00000
P_NODE = 784
P_HALF = NPB * P_NODE
P_WG = 0x13000
WS_ACC = 0x4000000
XHALF = N * 256

OPT = dict(a.split("=") for a in sys.argv[2:] if "=" in a)


def opt(name, default):
    return type(default)(OPT.get(name, default))


PROF = opt("prof", 0)
WS_PROF = 0x6000000
S_PROF = 82
FUSED = opt("fused", 0)


def preg(i):
    if FUSED:
        return {0: 82, 6: 83, 9: 90, 10: 91, 11: 92, 12: 93, 13: 94, 15: 95}.get(i)
    return S_PROF + i


def stamp(a, i, real=False, late=False, k1=False):
    if k1:
        i = {2: None, 4: None, 6: 10, 8: 11}[i]
        if i is None or PROF != 5:
            return
    elif PROF == 5 and i not in (0, 15, 6, 9):
        return
    if PROF and not (late and PROF == 2):
        a("s_waitcnt lgkmcnt(0)")
        a(("s_memrealtime" if real or PROF in (3, 5) else "s_memtime") + " s[80:81]")
        a("s_waitcnt lgkmcnt(0)")
        a(f"s_mov_b32 s{preg(i)}, s80")
        if PROF == 4 and i == 7:
            a("s_memrealtime s[80:81]" if opt("rt", 0) else "s_memtime s[80:81]")


def prof_dump(a, wsreg, kern, nwave_shift, wavereg):
    if PROF:
        a(f"s_lshl_b32 s80, s2, {nwave_shift}")
        a(f"s_add_u32 s80, s80, s{wavereg}")
        a("s_lshl_b32 s80, s80, 6")
        a(f"s_add_u32 s80, s80, {WS_PROF + kern * 0x100000}")
        srd(a, 4, wsreg, "s80", 64)
        a("v_mov_b32 v0, 0")
        for i in range(16):
            if preg(i) is None:
                continue
            a(f"v_mov_b32 v1, s{preg(i)}")
            a(f"buffer_store_dword v1, v0, s[4:7], 0 offen offset:{4*i}")


def srd(a, d, b, off, size):
    a(f"s_add_u32 s{d}, s{b}, {off}")
    a(f"s_addc_u32 s{d+1}, s{b+1}, 0")
    a(f"s_mov_b32 s{d+2}, {size}")
    a(f"s_mov_b32 s{d+3}, 0x20000")


def scan64(a, v):
    for sh in (1, 2, 4, 8):
        a(f"v_add_u32_dpp v{v}, v{v}, v{v} row_shr:{sh} row_mask:0xf bank_mask:0xf bound_ctrl:1")
    a(f"v_add_u32_dpp v{v}, v{v}, v{v} row_bcast:15 row_mask:0xa bank_mask:0xf")
    a(f"v_add_u32_dpp v{v}, v{v}, v{v} row_bcast:31 row_mask:0xc bank_mask:0xf")


K1_ERAW = 0
K1_MS = 102400
K1_INV = K1_MS + 38400
K1_HIST = K1_INV + 6400
K1_LDS = 152 * 1024


def prep_tables(a, ST):
    a("v_add_u32 v4, s60, v0")
    a("v_and_b32 v5, 3, v4")
    a("v_bfe_u32 v6, v4, 2, 4")
    a("v_bfe_u32 v7, v4, 6, 2")
    a("v_lshrrev_b32 v8, 8, v4")
    a("v_cmp_le_u32 vcc, 10, v8")
    a("v_cndmask_b32 v9, 0, 1, vcc")
    a("v_mul_u32_u24 v10, 10, v9")
    a("v_sub_u32 v10, v8, v10")
    a("v_lshl_add_u32 v11, v7, 2, v5")
    a("v_mul_u32_u24 v11, 320, v11")
    a("v_lshrrev_b32 v12, 1, v10")
    a("v_lshl_add_u32 v11, v12, 6, v11")
    a("v_lshl_add_u32 v11, v9, 5, v11")
    a("v_and_b32 v12, 1, v10")
    a("v_lshl_add_u32 v11, v12, 4, v11")
    a("v_add_u32 v11, v11, v6")
    a("v_lshlrev_b32 v11, 1, v11")
    a("buffer_load_ushort v13, v11, s[16:19], 0 offen")
    a("v_mov_b32 v30, 0x80000000")
    for t in range(2):
        b = 32 + 8 * t
        a(f"v_add_u32 v14, {20*t}, v8")
        a("v_mul_u32_u24 v15, 26, v14")
        a("v_lshrrev_b32 v15, 8, v15")
        a("v_mul_u32_u24 v16, 10, v15")
        a("v_sub_u32 v16, v14, v16")
        a("v_lshrrev_b32 v17, 1, v16")
        a("v_and_b32 v18, 1, v16")
        a("v_lshl_add_u32 v19, v7, 2, v5")
        a("v_lshl_add_u32 v19, v18, 5, v19")
        a("v_lshl_add_u32 v19, v17, 6, v19")
        a("v_lshrrev_b32 v20, 1, v15")
        a("v_and_b32 v21, 1, v15")
        a("v_lshrrev_b32 v22, 2, v6")
        a("v_lshlrev_b32 v22, 3, v22")
        a("v_lshl_add_u32 v22, v20, 5, v22")
        a("v_lshl_add_u32 v22, v21, 2, v22")
        a("v_and_b32 v23, 3, v6")
        a("v_add_u32 v22, v22, v23")
        a("v_lshl_add_u32 v22, v19, 6, v22")
        a("v_lshlrev_b32 v22, 1, v22")
        a("v_subrev_u32 v23, 16384, v22")
        a("v_cmp_gt_u32 vcc, 2, v17")
        a("v_cndmask_b32 v24, v30, v22, vcc")
        a("v_cndmask_b32 v25, v23, v30, vcc")
        a(f"buffer_load_ushort v{b}, v24, s[20:23], 0 offen")
        a(f"buffer_load_ushort v{b+1}, v24, s[20:23], 0 offen offset:2048")
        a(f"buffer_load_ushort v{b+2}, v25, s[24:27], 0 offen")
        a(f"buffer_load_ushort v{b+3}, v25, s[24:27], 0 offen offset:2048")
    a("v_lshlrev_b32 v4, 2, v4")
    a("s_mov_b32 s61, 20480")
    a("s_waitcnt vmcnt(0)")
    a("v_lshlrev_b32 v13, 16, v13")
    a("buffer_store_dword v13, v4, s[28:31], 0 offen" + ST)
    for t in range(2):
        b = 32 + 8 * t
        a(f"v_or_b32 v{b}, v{b}, v{b+2}")
        a(f"v_or_b32 v{b+1}, v{b+1}, v{b+3}")
        a(f"v_lshl_or_b32 v{b}, v{b+1}, 16, v{b}")
        a(f"buffer_store_dword v{b}, v4, s[32:35], {'0' if t == 0 else 's61'} offen{ST}")


def kernel1():
    a = Asm()
    NT = " nt" if opt("k1nt", 1) else ""
    ST = {0: "", 1: " nt", 2: " sc1"}[opt("k1st", 2)]
    a("s_cmp_ge_u32 s2, 255")
    a("s_cbranch_scc1 K1_end")
    a("s_load_dwordx8 s[4:11], s[0:1], 0")
    a("s_load_dwordx8 s[52:59], s[0:1], 32")
    a("s_load_dwordx2 s[14:15], s[0:1], 88")
    a("v_lshlrev_b32 v1, 4, v0")
    a("v_mul_u32_u24 v2, 24, v0")
    a("v_and_b32 v3, 63, v0")
    a("v_lshlrev_b32 v3, 4, v3")
    a("v_lshrrev_b32 v40, 6, v0")
    a("v_readfirstlane_b32 s3, v40")
    a("s_cmp_ge_u32 s2, 250")
    a("s_cbranch_scc1 K1_prep")
    stamp(a, 0, True)
    stamp(a, 1)
    a("s_mul_i32 s60, s2, 12800")
    a("s_mul_i32 s61, s2, 19200")
    a("s_mul_i32 s62, s2, 25600")
    a("s_mul_i32 s63, s2, 102400")
    a("s_mul_i32 s64, s2, 38400")
    a("s_lshl_b32 s65, s2, 10")
    a("s_waitcnt lgkmcnt(0)")
    srd(a, 16, 52, "s60", 12800)
    a(f"buffer_load_dwordx4 v[4:7], v1, s[16:19], 0 offen{NT}")
    a("v_lshlrev_b32 v41, 2, v0")
    a("v_mov_b32 v42, 0")
    a("s_cmp_ge_u32 s3, 4")
    a("s_cbranch_scc1 K1_nozero")
    a(f"v_add_u32 v41, {K1_HIST}, v41")
    a("ds_write_b32 v41, v42")
    a.label("K1_nozero")
    srd(a, 20, 10, "s60", 12800)
    srd(a, 24, 6, "s61", 19200)
    srd(a, 28, 4, "s62", 25600)
    srd(a, 32, 8, "s63", 102400)
    a("s_mov_b32 s66, 16384")
    a("s_lshl_b32 s67, s3, 10")
    kq = [int(c) for c in opt("kq", "00700")]

    def e_in(i):
        for k in range(sum(kq[:i]), sum(kq[:i + 1])):
            if k == 6:
                a("s_cmp_ge_u32 s3, 4")
                a("s_cbranch_scc1 K1_noe7")
            a("s_mov_b32 m0, s67")
            a(f"buffer_load_dwordx4 v3, s[32:35], s67 offen{NT} lds")
            a("s_add_u32 s67, s67, 16384")
            if k == 6:
                a.label("K1_noe7")

    def n_e(lo, hi):
        return min(sum(kq[:hi + 1]), 6) - min(sum(kq[:lo]), 6)

    e_in(0)
    a("s_waitcnt lgkmcnt(0)")
    a("s_barrier")
    RNT = NT if opt("rnt", 1) else ""
    a(f"buffer_load_dwordx4 v[8:11], v1, s[20:23], 0 offen{NT}")
    a(f"buffer_load_dwordx4 v[12:15], v2, s[24:27], 0 offen{RNT}")
    a(f"buffer_load_dwordx2 v[16:17], v2, s[24:27], 0 offen offset:16{RNT}")
    if opt("k1b2", 1):
        a("s_barrier")
    e_in(1)
    a(f"buffer_load_dwordx4 v[20:23], v1, s[28:31], 0 offen{NT}")
    a(f"buffer_load_dwordx4 v[24:27], v1, s[28:31], s66 offen{NT}")
    e_in(2)
    a("s_add_u32 s68, s64, %d" % WS_META)
    srd(a, 36, 14, "s68", 38400)
    a("s_add_u32 s68, s63, %d" % WS_EP)
    srd(a, 40, 14, "s68", 102400)
    srd(a, 44, 14, WS_XP, 2 * XHALF)
    srd(a, 48, 14, "s65", 1024)
    a("v_cmp_gt_u32 vcc, 800, v0")
    a("s_mov_b64 s[70:71], vcc")
    a("v_mov_b32 v43, 1")
    a(f"s_waitcnt vmcnt({5 + n_e(0, 2)})")
    stamp(a, 2)
    a("s_mov_b64 exec, s[70:71]")
    a("s_cbranch_execz K1_skip_rank")
    for i in range(4):
        a(f"v_mul_u32_u24 v{28+i}, 21400, v{4+i}")
        a(f"v_lshrrev_b32 v{28+i}, 20, v{28+i}")
        a(f"v_mul_u32_u24 v{36+i}, 49, v{28+i}")
        a(f"v_sub_u32 v{36+i}, v{4+i}, v{36+i}")
        a(f"v_lshlrev_b32 v{28+i}, 2, v{28+i}")
        a(f"v_add_u32 v{28+i}, {K1_HIST}, v{28+i}")
        a(f"ds_add_rtn_u32 v{32+i}, v{28+i}, v43")
    a.label("K1_skip_rank")
    a("s_mov_b64 exec, -1")
    a("s_waitcnt lgkmcnt(0)")
    a("s_barrier")
    stamp(a, 3)
    a("s_cmp_lg_u32 s3, 0")
    a("s_cbranch_scc1 K1_noscan")
    a(f"v_add_u32 v41, {K1_HIST}, v3")
    a("ds_read_b128 v[44:47], v41")
    a("s_waitcnt lgkmcnt(0)")
    a("v_add_u32 v49, v44, v45")
    a("v_add_u32 v50, v49, v46")
    a("v_add_u32 v51, v50, v47")
    a("v_mov_b32 v52, v51")
    scan64(a, 52)
    a("v_sub_u32 v52, v52, v51")
    a("v_add_u32 v53, v52, v44")
    a("v_add_u32 v54, v52, v49")
    a("v_add_u32 v55, v52, v50")
    a("ds_write_b128 v41, v[52:55]")
    for i in range(4):
        a(f"v_lshl_or_b32 v{56+i}, v{44+i}, 16, v{52+i}")
    a("buffer_store_dwordx4 v[56:59], v3, s[48:51], 0 offen")
    a("s_waitcnt lgkmcnt(0)")
    a.label("K1_noscan")
    e_in(3)
    a("v_lshrrev_b32 v60, 5, v0")
    a("s_mul_i32 s69, s2, 50")
    a("v_add_u32 v60, s69, v60")
    a("v_lshlrev_b32 v60, 8, v60")
    a("v_bfe_u32 v61, v0, 3, 2")
    a("v_lshl_add_u32 v60, v61, 6, v60")
    a("v_and_b32 v61, 3, v0")
    a("v_lshl_add_u32 v60, v61, 4, v60")
    a("v_bfe_u32 v61, v0, 2, 1")
    a(f"v_mul_u32_u24 v61, {XHALF}, v61")
    a("v_add_u32 v60, v60, v61")
    a("v_add_u32 v61, 8192, v60")
    a("v_cmp_gt_u32 vcc, 576, v0")
    a("v_mov_b32 v62, 0x80000000")
    a("v_cndmask_b32 v61, v62, v61, vcc")
    a("s_barrier")
    a("s_mov_b64 exec, s[70:71]")
    a("s_cbranch_execz K1_skip_scatter")
    for i in range(4):
        a(f"ds_read_b32 v{28+i}, v{28+i}")
    a(f"s_waitcnt vmcnt({2 + n_e(1, 3)})")
    a("s_mov_b32 s72, 0x80000000")
    a("s_mov_b32 s73, 0xffff0000")
    for i in range(4):
        a(f"v_lshl_or_b32 v{8+i}, v{8+i}, 8, v{36+i}")
        a(f"v_or_b32 v{8+i}, s72, v{8+i}")
    a("v_lshlrev_b32 v44, 16, v13")
    a("v_alignbit_b32 v45, v14, v13, 16")
    a("v_and_b32 v46, s73, v14")
    a("v_lshlrev_b32 v47, 16, v16")
    a("v_alignbit_b32 v48, v17, v16, 16")
    a("v_and_b32 v49, s73, v17")
    w1 = [12, 45, 15, 48]
    w2 = [44, 46, 47, 49]
    a("v_lshlrev_b32 v50, 2, v0")
    a("s_waitcnt lgkmcnt(0)")
    for i in range(4):
        a(f"v_add_u32 v{32+i}, v{32+i}, v{28+i}")
        a(f"v_mul_u32_u24 v{28+i}, 12, v{32+i}")
        a(f"v_add_u32 v{28+i}, {K1_MS}, v{28+i}")
        a(f"ds_write2_b32 v{28+i}, v{8+i}, v{w1[i]} offset0:0 offset1:1")
        a(f"ds_write_b32 v{28+i}, v{w2[i]} offset:8")
        a(f"v_lshlrev_b32 v{32+i}, 1, v{32+i}")
        a(f"v_add_u32 v{32+i}, {K1_INV}, v{32+i}")
        a(f"v_add_u32 v{52+i}, {i}, v50")
        a(f"ds_write_b16 v{32+i}, v{52+i}")
    a.label("K1_skip_scatter")
    a("s_mov_b64 exec, -1")
    a(f"s_waitcnt vmcnt({n_e(2, 3)})")
    a(f"buffer_store_dwordx4 v[20:23], v60, s[44:47], 0 offen{ST}")
    a(f"buffer_store_dwordx4 v[24:27], v61, s[44:47], 0 offen{ST}")
    e_in(4)
    a("s_waitcnt lgkmcnt(0)")
    a("s_barrier")
    stamp(a, 4)
    a(f"v_add_u32 v41, {K1_MS}, v1")
    a("ds_read_b128 v[4:7], v41")
    a("ds_read_b128 v[8:11], v41 offset:16384")
    a("ds_read_b128 v[12:15], v41 offset:32768")
    a("v_and_b32 v42, 0x3fe, v0")
    a(f"v_add_u32 v42, {K1_INV}, v42")
    for k in range(7):
        a(f"ds_read_u16 v{28+k}, v42 offset:{1024*k}")
    a("v_and_b32 v43, 1, v0")
    a("v_lshlrev_b32 v43, 4, v43")
    a("s_mov_b32 s74, 32768")
    a("s_waitcnt lgkmcnt(7)")
    a(f"buffer_store_dwordx4 v[4:7], v1, s[36:39], 0 offen{ST}")
    a(f"buffer_store_dwordx4 v[8:11], v1, s[36:39], s66 offen{ST}")
    a(f"buffer_store_dwordx4 v[12:15], v1, s[36:39], s74 offen{ST}")
    a("s_waitcnt lgkmcnt(0)")
    for k in range(7):
        a(f"v_lshl_add_u32 v{28+k}, v{28+k}, 5, v43")
    stamp(a, 5)
    a(f"s_waitcnt vmcnt({3 if kq[4] else 5})")
    a("s_barrier")
    stamp(a, 6)
    for k in range(6):
        a(f"ds_read_b128 v[{64+4*k}:{67+4*k}], v{28+k}")
    a("s_mov_b32 s75, 0")
    for k in range(6):
        a(f"s_waitcnt lgkmcnt({5-k})")
        a(f"buffer_store_dwordx4 v[{64+4*k}:{67+4*k}], v1, s[40:43], s75 offen{ST}")
        a("s_add_u32 s75, s75, 16384")
    a("s_cmp_ge_u32 s3, 4")
    a("s_cbranch_scc1 K1_fin")
    a("ds_read_b128 v[88:91], v34")
    a("s_waitcnt lgkmcnt(0)")
    a(f"buffer_store_dwordx4 v[88:91], v1, s[40:43], s75 offen{ST}")
    a.label("K1_fin")
    if opt("cpf", 2) & 4:
        a(f"s_cmp_ge_u32 s2, {opt('cpn', 8)}")
        a("s_cbranch_scc1 K1_nocpf")
        a("s_getpc_b64 s[76:77]")
        a.label("K1_here2")
        a("s_mov_b32 s78, K2_end-K1_here2")
        a("s_mov_b32 s79, 0x20000")
        a("v_lshlrev_b32 v60, 7, v0")
        a("buffer_load_dword v61, v60, s[76:79], 0 offen")
        a("s_waitcnt vmcnt(0)")
        a.label("K1_nocpf")
    stamp(a, 7)
    if PROF:
        a("s_waitcnt vmcnt(0)")
    stamp(a, 8)
    stamp(a, 15, True)
    prof_dump(a, 14, 0, 4, 3)
    a("s_endpgm")

    a.label("K1_prep")
    a("s_waitcnt lgkmcnt(0)")
    srd(a, 16, 54, 0, 16 * 320 * 2)
    srd(a, 20, 56, 0, 128 * 64 * 2)
    srd(a, 24, 58, 0, 192 * 64 * 2)
    srd(a, 28, 14, WS_WTAB, 20480)
    srd(a, 32, 14, WS_WSI, 40960)
    if opt("cpf", 2) & 2:
        a("s_getpc_b64 s[36:37]")
        a.label("K1_here")
        a("s_mov_b32 s38, K2_end-K1_here")
        a("s_mov_b32 s39, 0x20000")
        a("v_lshlrev_b32 v60, 7, v0")
        a("buffer_load_dword v61, v60, s[36:39], 0 offen")
    a("s_sub_u32 s60, s2, 250")
    a("s_lshl_b32 s60, s60, 10")
    prep_tables(a, "")
    a.label("K1_end")
    a("s_endpgm")
    return a


CAP = 3392
SLOWCAP = 256
MAXSTEPS = 142
MAXWSTEPS = 20
L_E = 0
L_RING = 32 + CAP * 32
RING_W = 6336
SUBB = 2112
L_SA = L_RING
L_SB = L_SA + MAXSTEPS * 128
L_MISC = L_SB + MAXSTEPS * 256
L_CNT = L_MISC
L_FLAG = L_MISC + 256
L_WSUM = L_MISC + 272
L_DUMMY = L_WSUM + 16
L_MAP = 94208
K2_LDS = 163840
assert L_MAP + CAP * 4 <= L_RING and L_DUMMY + 256 <= K2_LDS and L_RING + 8 * RING_W <= L_MISC

ACC = 0
WR = 88
B0 = 128
B1 = 144
GS, G0, G1, G2, N0, N2 = 160, 164, 168, 172, 176, 180
SEL = 184
M0R = 188
MBR = 198
GSP = (160, 252)
NID = 218
Y = 220
REP = 223
XA = 224
XOFF, QQ8, BAE, BAO, POFF, NST = 228, 230, 231, 232, 233, 234
U, PT, T8, EA = 236, 244, 235, 248
T0 = 236
TID, LANE = 250, 251
NVGPR = 256
XBIAS = 2048

S_WAVE = 3
R_XP, R_EP, R_MT, R_TB, R_P, R_W, R_OUT, R_ACC = 4, 8, 12, 16, 20, 24, 28, 32
S_NN, S_T, S_R0, S_LEN, S_CAP = 36, 37, 38, 39, 40
S_NODE0, S_NNW, S_STEP0, S_NS = 41, 42, 43, 44
S_D, S_REM, S_NODE, S_PHASE, S_TAB0, S_TAB1, S_RB, S_POFF = 45, 46, 47, 48, 49, 50, 51, 52
S_HI, S_SGN = 100, 101
S_MASK = 64
S_LAST = 78
S_NEND = 79
S_EM0 = 57
S_EVT = 59
S_OLD = 53
S_LEFT, S_PADR = 58, 63
S_PAT = 58
NEWTAIL = opt('newtail', 0)
DRY = NEWTAIL and opt('dry', 0)
R_DBG = 84
S_EB1, S_EB2 = 88, 89

PPOL = ["", " sc1", " nt", " sc0 sc1"][opt("ppol", 0)]
OPOL = ["", " sc1", " nt", " sc0 sc1"][opt("opol", 0)]

VC = opt("vc", 0)
HI = "v219" if VC else f"s{S_HI}"
SGN = f"v{TID}" if VC else f"s{S_SGN}"

TPATH = [0, 1, 2, 2, 2, 3, 3, 3, 4, 4, 4]
P0, P1 = 0, 1
P2 = [2, 3, 4]
P3 = [5, 6, 7]
P4 = [8, 9, 10]


def acc(t, cq):
    return ACC + 4 * (2 * t + cq)


def mfma_list():
    out = []
    for t, A, B, fl in ((P2[0], G0, B0, 1), (P1, G0, B0 + 8, 1), (P0, GS, B0, 1), (P3[0], GS, B0 + 8, 1),
                        (P2[2], G2, B0, 1), (P4[1], G2, B0 + 8, 1), (P2[1], G1, B0, 1), (P4[2], G1, B0 + 8, 1),
                        (P4[2], N0, B1, 0), (P4[1], N0, B1 + 8, 0), (P3[1], GS, B1, 1), (P3[2], GS, B1 + 8, 1),
                        (P4[0], N2, B1, 1), (P1, G2, B1 + 8, 0), (P1, G1, B1, 0), (P4[0], G1, B1 + 8, 0)):
        for cq in range(2):
            out.append((t, cq, A, B + 4 * cq, fl))
    if opt("chain", 1):
        n2, g2p1, g1p1, g1p4 = out[24:26], out[26:28], out[28:30], out[30:32]
        out[16], out[17] = out[17], out[16]
        out[24:32] = [g1p1[0], g2p1[0], g1p1[1], g2p1[1], n2[0], g1p4[0], n2[1], g1p4[1]]
    return out


def emit_mfma(a, m, first, p0, q0):
    t, cq, A, B, fl = m
    if A == GS:
        A = GSP[p0]
    if opt("nomfma", 0):
        return
    d = vr(acc(t, cq), 4)
    c = "0" if (first and fl) else d
    if q0:
        a(f"v_mfma_f32_16x16x16_bf16 {d}, {vr(A,2)}, {vr(B,2)}, {c}")
    else:
        a(f"v_mfma_f32_16x16x32_bf16 {d}, {vr(A,4)}, {vr(B,4)}, {c}")


def b_reads(k, pos):
    B = B0 if k < 2 else B1
    hf = k & 1
    return [f"ds_read_b64_tr_b16 {vr(B + 4*u + 2*hf, 2)}, v{BAE if u % 2 == 0 else BAO} offset:{pos*SUBB + u*32}"
            for u in range(4)]


def vmwait(n):
    return [] if opt("nowait", 0) else [f"s_waitcnt vmcnt({n})"]


def dma(k, pos):
    if opt("nodma", 0):
        return [[], [], []]
    hf, bp = k & 1, k >> 1
    so = S_TAB0 if bp == 0 else S_TAB1
    pol = ["", " sc1", " nt", " sc0 sc1", " sc0"][opt("xpol", 0)]
    return [[f"s_add_u32 m0, s{S_RB}, {pos*SUBB}"],
            [f"buffer_load_dwordx4 v{XA + 2*hf}, s[{R_XP}:{R_XP+3}], s{so} offen{pol} lds"],
            [f"buffer_load_dwordx4 v{XA + 2*hf + 1}, s[{R_XP}:{R_XP+3}], s{so} offen offset:1088{pol} lds"]]


W0_FETCH = [f"s_lshr_b32 s54, s{S_D}, 1",
            "s_set_gpr_idx_on s54, gpr_idx(SRC0)",
            f"v_mov_b32 v{REP}, v{M0R}",
            "s_set_gpr_idx_off"]
W0_REP = [f"v_mov_b32_dpp v{REP}, v{REP} row_shr:4 row_mask:0xf bank_mask:0xa",
          f"v_mov_b32_dpp v{REP}, v{REP} row_shl:4 row_mask:0xf bank_mask:0x5"]
WRAP = [f"s_mov_b32 s{S_D}, 0",
        f"s_add_u32 s{S_TAB0}, s{S_TAB0}, {XHALF}",
        f"s_add_u32 s{S_TAB1}, s{S_TAB1}, {XHALF}"]


def x_addr(q):
    return f"v_add_u32_dpp v{XA+q}, v{REP}, v{XOFF + (q & 1)} quad_perm:[{q},{q},{q},{q}] row_mask:0xf bank_mask:0xf"


META_SET = [f"s_set_gpr_idx_on s{S_D}, gpr_idx(SRC1)",
            f"v_mad_u32_u16 v{T8}, 8, v{MBR+1}, 0",
            f"v_lshlrev_b32 v{Y}, 16, v{MBR}",
            f"v_and_b32 v{Y+1}, {HI}, v{MBR}",
            f"v_and_b32 v{Y+2}, {HI}, v{MBR+1}",
            "s_set_gpr_idx_off"]


def e_addr(p):
    return [f"v_add_u32_dpp v{EA+h}, v{T8}, v{QQ8} quad_perm:[{2*p+h},{2*p+h},{2*p+h},{2*p+h}] "
            "row_mask:0xf bank_mask:0xf" for h in range(2)]


def e_reads(dst):
    return [f"ds_read_b64_tr_b16 {vr(dst + 2*h, 2)}, v{EA+h}" for h in range(2)]


def unpack_valu(aa, p):
    return [f"v_lshlrev_b32 v{U+2*aa}, 16, v{GSP[p]+aa}", f"v_and_b32 v{U+2*aa+1}, {HI}, v{GSP[p]+aa}"]


def gb(j, aa, p):
    if opt("nog", 0):
        return []
    hf, rl = aa >> 1, 2 * (aa & 1)
    pl = PT + 2 * (aa & 1)
    return [f"v_mul_f32_dpp v{pl}, v{Y+j}, v{U+2*aa} row_newbcast:{4*rl+2*p+hf} row_mask:0xf bank_mask:0xf",
            f"v_mul_f32_dpp v{pl+1}, v{Y+j}, v{U+2*aa+1} row_newbcast:{4*rl+4+2*p+hf} row_mask:0xf bank_mask:0xf",
            f"v_cvt_pk_bf16_f32 v{(G0, G1, G2)[j]+aa}, v{pl}, v{pl+1}"]


def neg(dst, src):
    return [f"v_xor_b32 v{dst+i}, {SGN}, v{src+i}" for i in range(4)]


SHORT = opt("short", 0)


def body_name(rho, kind, p0, p1):
    return f"S{rho}{kind}{p0}{p1}"


def goto_next(a, rho, kind, p1, fall=False):
    if p1 == 0:
        a(f"s_cmp_eq_u32 s{S_D}, 0")
        a(f"s_cbranch_scc1 {body_name(rho, kind, 0, 0)}")
    if not fall:
        a(f"s_branch {body_name(rho, kind, p1, 1 - p1)}")


def issue_cost(l):
    op = l.split()[0]
    if op.endswith(":"):
        return 0
    if op.startswith("v_"):
        return 5.3 if "_dpp" in op or op.startswith(("v_cvt_pk", "v_mad")) else 4.2
    return {"d": 8, "b": 14}.get(op[0], 4.1)


def step_body(a, rho, kind, p0, p1, fall, cold):
    tag = body_name(rho, kind, p0, p1)
    first = kind == "f"
    x = 3 if first else 0
    p = lambda k: (rho + k) % 3
    F = [[] for _ in range(32)]

    def event(slot, n, k, pos):
        F[slot] += vmwait(n)
        for i, r in enumerate(b_reads(k, pos)):
            F[slot + i].append(r)

    def refill(slot, k, pos):
        d = dma(k, pos)
        F[slot - 1] += d[0]
        F[slot] += [f"WAIT {k}"] + d[1]
        F[slot + 1] += d[2]

    event(0, 4 + x, 2, p(2))
    refill(5, 1, p(2))
    event(8, 4 + x, 3, p(0))
    refill(13, 2, p(0))
    event(16, 4 + x, 0, p(1))
    refill(21, 3, p(1))
    event(24, 4, 1, p(2))
    refill(29, 0, p(2))
    F[31] += [f"s_sub_u32 s{S_REM}, s{S_REM}, 1"]
    if PROF == 4:
        F[30] += ["s_memrealtime s[80:81]" if opt("rt", 0) else "s_memtime s[80:81]"]
        F[7] += ["s_mov_b32 m0, s96", "s_add_u32 s96, s96, 1", "v_writelane_b32 v219, s80, m0"]

    qb = 1 - p0
    n0, n2 = neg(N0, G0), neg(N2, G2)
    ea, er = e_addr(p1), e_reads(GSP[qb])
    step = [f"s_add_u32 s{S_D}, s{S_D}, 1", f"s_cmp_lt_u32 s{S_D}, s{S_NS}", f"s_cbranch_scc0 {tag}_w"]
    if p1 == 1:
        fetch = [step + [f"{tag}_b:"] + W0_FETCH]
        rep = [[W0_REP[0]]]
        cold += [f"{tag}_w:"] + WRAP + [f"s_branch {tag}_b"]
    else:
        fetch = [step + W0_FETCH + ["FILL", W0_REP[1], f"{tag}_b:"]]
        rep = []
        cold += [f"{tag}_w:"] + WRAP + W0_FETCH + ["FILL", W0_REP[0], f"s_branch {tag}_b"]
    one = lambda lst: [[l] for l in lst]
    g0 = gb(0, 0, p1) + gb(0, 1, p1) + gb(0, 2, p1) + gb(0, 3, p1)
    g2 = gb(2, 0, p1) + gb(2, 1, p1)
    V = [(0, 6, g) for g in one(gb(2, 2, p0) + gb(2, 3, p0))]
    V += [(0, 10, g) for g in one(gb(1, 0, p0) + gb(1, 1, p0) + gb(1, 2, p0) + gb(1, 3, p0))]
    if p1 == 0:
        V += [(7, 11, META_SET)]
    V += [(0, 14, g) for g in one(n0[:2])]
    V += [(0, 14, [ea[0]]), (0, 14, [ea[1]]), (11, 15, [er[0]]), (11, 15, [er[1]])]
    V += [(0, 14, g) for g in one(n0[2:])]
    V += [(0, 22, g) for g in one(n2)]
    up = sum((unpack_valu(aa, qb) for aa in range(4)), [])
    V += [(opt("upe", 15), 22, ["WAIT e", up[0]])] + [(0, 24, g) for g in one(up[1:])]
    nb = opt("nb", 7)
    V += [(16, 30, g) for g in one(g0[:nb])]
    V += [(22, 26, g) for g in fetch] + [(0, 30, [g0[nb]])] + [(0, 27, g) for g in rep]
    V += [(0, 30, g) for g in one(g0[nb+1:nb+3])]
    V += [(0, 28, [x_addr(0)]), (0, 28, [x_addr(1)])]
    V += [(0, 30, g) for g in one(g0[nb+3:])]
    V += [(0, 31, [x_addr(2)]), (0, 31, [x_addr(3)])]
    if qb != p1:
        V += [(24, 31, [f"v_mov_b32 v{GSP[p1]+i}, v{GSP[qb]+i}" for i in range(4)])]
    V += [(0, 31, g) for g in one(g2[:2])] + [(27, 31, [g2[2]])] + [(27, 31, g) for g in one(g2[3:])]
    filler = g0[nb] if p1 == 0 else None
    if filler:
        V = [v for v in V if v[2] != [filler]]
    cost = lambda grp: sum(issue_cost(l) for l in grp)
    total = sum(cost(f) for f in F) + sum(cost(v[2]) for v in V)
    out, cum, i = [], 0.0, 0
    for sl in range(32):
        cum += cost(F[sl])
        mine = []
        while i < len(V):
            e, late, grp = V[i]
            must = any(V[j][1] <= sl for j in range(i, len(V)))
            if sl < e:
                assert not must, (tag, sl, grp)
                break
            if not must and cum + cost(grp) / 2 > total * (sl + 1) / 32:
                break
            mine += grp
            cum += cost(grp)
            i += 1
        tail = [l for l in F[sl] if l.startswith("s_sub")]
        out.append(mine[:1] + [l for l in F[sl] if l not in tail] + mine[1:] + tail
                   if mine and not mine[0].startswith(("s_", "WAIT", "ds_")) else
                   [l for l in F[sl] if l not in tail] + mine + tail)
    assert i == len(V)
    if opt("sched", 0) == 0:
        F = [[] for _ in range(32)]

        def spread(slot, lst, per=2):
            for i, l in enumerate(lst):
                if l is not None:
                    F[slot + i // per].append(l)

        def event2(slot, n, k, pos):
            r = b_reads(k, pos)
            F[slot] += vmwait(n) + r[:2]
            F[slot + 1] += r[2:]

        spread(0, gb(2, 2, p0) + gb(2, 3, p0) + gb(1, 0, p0) + gb(1, 1, p0) + gb(1, 2, p0) + gb(1, 3, p0))
        event2(0, 4 + x, 2, p(2))
        refill(4, 1, p(2))
        event2(8, 4 + x, 3, p(0))
        if p1 == 0:
            F[9] += META_SET
            spread(10, n0[:2] + ea)
            spread(13, n0[2:] + n2)
        else:
            spread(9, n0[:2] + ea + n0[2:])
            spread(13, n2)
        refill(12, 2, p(0))
        F[13] += er
        event2(16, 4 + x, 0, p(1))
        F[17] += ["WAIT e"]
        spread(17, up)
        refill(20, 3, p(1))
        g = g0 + g2
        filler = g[0] if p1 == 0 else None
        F[21] += fetch[0]
        if p1 == 1:
            F[22] += rep[0] + [g[0]]
        spread(23 - (p1 == 0), g[1:3], 2 if p1 == 1 else 1)
        spread(24, [x_addr(0), g[3], x_addr(1), g[4]] + g[5:9] + [x_addr(2), g[9], x_addr(3)], 2)
        spread(28, g[10:12], 1)
        spread(29, g[12:], 2)
        if qb != p1:
            F[24] += [f"v_mov_b32 v{GSP[p1]+i}, v{GSP[qb]+i}" for i in range(4)]
        event2(24, 4, 1, p(2))
        refill(28, 0, p(2))
        if PROF == 4:
            F[29] += ["s_memrealtime s[80:81]" if opt("rt", 0) else "s_memtime s[80:81]"]
            F[6] += ["s_mov_b32 m0, s96", "s_add_u32 s96, s96, 1", "v_writelane_b32 v219, s80, m0"]
        if PROF == 6 and first:
            F[6] += ["s_sub_u32 s62, s62, s80", f"s_add_u32 s{S_PROF+14}, s{S_PROF+14}, s62"]
        F[31] += [f"s_sub_u32 s{S_REM}, s{S_REM}, 1"]
        out = F
    flat = [(sl, l) for sl in range(32) for l in out[sl]]
    need = {"1": b_reads(2, p(2)), "2": b_reads(3, p(0)), "3": b_reads(0, p(1)), "0": None, "e": er}
    a.label(tag)
    ml = mfma_list()
    for sl in range(32):
        emit_mfma(a, ml[sl], first, p0, 0)
        for l in out[sl]:
            if l.startswith("WAIT"):
                pos = flat.index((sl, l))
                ds = [y for _, y in flat[:pos] if y.startswith("ds_")]
                want = need[l.split()[1]]
                n = 0 if want is None else len(ds) - 1 - max(k for k, y in enumerate(ds) if y in want)
                assert want is None or all(w in ds for w in want)
                l = f"s_waitcnt lgkmcnt({n})"
            if l == "FILL":
                l = filler
            if opt("nods", 0) and (l.startswith("ds_") or l.startswith("s_waitcnt lgkm")):
                continue
            if opt("novalu", 0) and l.startswith("v_") and not l.startswith(("v_writelane", "v_mfma")):
                continue
            a(l)
    for k, l in enumerate(cold):
        if l == "FILL":
            cold[k] = filler
    nr = (rho + 1) % 3
    if fall == "n":
        a(f"s_cbranch_scc1 EP{nr}{p1}")
        goto_next(a, nr, "n", p1, True)
    else:
        if p1 == 1:
            a(f"s_cbranch_scc0 {body_name(nr, 'n', 1, 0)}")
        else:
            a(f"s_cbranch_scc0 {tag}_c")
            cold += [f"{tag}_c:", f"s_cmp_lg_u32 s{S_D}, 0", f"s_cbranch_scc1 {body_name(nr, 'n', 0, 1)}",
                     f"s_branch {body_name(nr, 'n', 0, 0)}"]
        if fall != "e":
            a(f"s_branch EP{nr}{p1}")


def node_steps(lane):
    return [f"v_readlane_b32 s{S_REM}, v{NST}, s{lane}"]


def load_w(a, h):
    a(f"s_mov_b32 s57, {10240*h}")
    a(f"v_lshlrev_b32 v67, 4, v{LANE}")
    for pc in range(10):
        if pc % 4 == 0 and pc:
            a("s_add_u32 s57, s57, 4096")
        a(f"buffer_load_dwordx4 {vr(WR+4*pc,4)}, v67, s[{R_W}:{R_W+3}], s57 offen offset:{(pc%4)*1024}")


def pipeline_start(a):
    def run(lst):
        for l in lst:
            a(l)

    def dma_now(k, pos):
        for g in dma(k, pos):
            run(g)

    if VC:
        a("v_mov_b32 v219, 0xffff0000")
        a(f"v_mov_b32 v{TID}, 0x80008000")
    run(W0_FETCH + [W0_REP[0]] + [x_addr(q) for q in range(4)])
    dma_now(0, 0)
    dma_now(1, 1)
    dma_now(2, 2)
    run(META_SET + e_addr(0))
    a(f"s_waitcnt vmcnt({0 if opt('nodma', 0) else 6})")
    a("s_barrier")
    stamp(a, 6)
    run(e_reads(GSP[0]))
    run(["s_waitcnt vmcnt(4)"] + b_reads(0, 0) + ["s_waitcnt lgkmcnt(0)"])
    dma_now(3, 0)
    for aa in range(4):
        run(unpack_valu(aa, 0))
    run([f"s_mov_b32 s{S_D}, 1", f"s_cmp_lt_u32 s{S_D}, s{S_NS}", "s_cbranch_scc0 I_w"] + W0_FETCH + [W0_REP[1]])
    a("s_branch I_b")
    run(["I_w:"] + WRAP + W0_FETCH + [W0_REP[0], "I_b:"])
    run([x_addr(q) for q in range(4)])
    run(["s_waitcnt vmcnt(4)"] + b_reads(1, 1))
    run(gb(0, 0, 0) + gb(0, 1, 0) + gb(0, 2, 0) + gb(0, 3, 0) + gb(2, 0, 0) + gb(2, 1, 0))
    if PROF == 6:
        a("s_mov_b32 s62, 0")
        a("s_mov_b32 s80, 0")
        a(f"s_mov_b32 s{S_PROF+14}, 0")
    if PROF == 4:
        a("s_memrealtime s[80:81]" if opt("rt", 0) else "s_memtime s[80:81]")
        a("s_mov_b32 s96, 0")
        a("v_mov_b32 v219, 0")
    a("s_waitcnt lgkmcnt(0)")
    dma_now(0, 1)
    load_w(a, 0)
    if opt("prio", 3) == 3:
        pat = opt("pat", "111110101010")
        a(f"s_mov_b32 s{S_PAT}, {int(pat[::-1], 2)}")
        a(f"s_cmp_eq_u32 s{S_NNW}, 7")
        a(f"s_cmov_b32 s{S_PAT}, {int(opt('pat7', '11111101010100')[::-1], 2)}")
        a(f"s_setprio {2 * int(pat[0])}")
    if opt("prio", 3) in (1, 3):
        a(f"s_cmp_lt_u32 s{S_WAVE}, 4")
        a("s_cbranch_scc1 I_p")
        a("s_setprio 1")
        a.label("I_p")
    goto_next(a, 0, "f", 0)


def epilogue(a, rho, p1, cold):
    tag = f"EP{rho}{p1}"
    a.label(tag)
    if PROF == 6:
        a("s_memtime s[80:81]")
    order = [P2[0], P0, P3[0], P2[2], P2[1], P4[2], P4[1], P3[1], P3[2], P1, P4[0]]
    book = [f"s_mul_i32 s55, s{S_NODE}, {P_NODE}",
            f"s_add_u32 s55, s55, s{S_POFF}",
            f"s_add_u32 s{S_NODE}, s{S_NODE}, 1",
            f"s_cmp_lt_u32 s{S_NODE}, s{S_NEND}",
            f"s_cselect_b32 s56, s{S_NODE}, -2",
            f"s_cselect_b32 s{S_NODE}, s{S_NODE}, s{S_NODE0}",
            *node_steps(S_NODE),
            *([f"s_lshl1_add_u32 s54, s{S_REM}, 2", f"s_sub_u32 s{S_LEFT}, s{S_LEFT}, s54"]
              if opt("prio", 3) == 2 else []),
            f"s_cmp_ge_u32 s56, s{S_EVT}"]
    if opt("prio", 3) == 2:
        a(f"v_mov_b32 v{B1+12}, s{S_PADR}")
        a(f"v_mov_b32 v{B1+13}, s{S_LEFT}")
        a(f"ds_wrxchg_rtn_b32 v{B1+14}, v{B1+12}, v{B1+13}")
    EPP = opt("epp", 0)

    def pattern_prio():
        if EPP:
            a("s_setprio 1")
        a(f"s_cmp_lt_u32 s{S_WAVE}, 4")
        a(f"s_cbranch_scc0 {tag}_p")
        a(f"s_lshr_b32 s{S_PAT}, s{S_PAT}, 1")
        a(f"s_bitcmp1_b32 s{S_PAT}, 0")
        a("s_setprio 0")
        a(f"s_cbranch_scc0 {tag}_p")
        a("s_setprio 2")
        a.label(f"{tag}_p")

    if opt("prio", 3) == 3:
        if EPP:
            a(f"s_setprio {3 if EPP == 1 else 0}")
        else:
            pattern_prio()
    if opt("prio", 3) == 1:
        a(f"s_cmp_lt_u32 s{S_WAVE}, 4")
        a(f"s_cbranch_scc0 {tag}_p")
        a(f"s_setprio {2 if int(opt('prpat', '110110')[2 * rho + p1]) else 0}")
        a.label(f"{tag}_p")
    fb = []
    if opt("prio", 3) == 2:
        fb = ["s_waitcnt lgkmcnt(0)",
              f"v_readfirstlane_b32 s57, v{B1+14}",
              f"s_xor_b32 s54, s57, s{S_LEFT}",
              "s_bitcmp1_b32 s54, 0",
              f"s_cbranch_scc0 {tag}_p",
              f"s_cmp_gt_u32 s{S_LEFT}, s57",
              "s_setprio 0",
              f"s_cbranch_scc0 {tag}_p",
              "s_setprio 2",
              f"{tag}_p:"]
    for t in (order if opt("noep", 0) < 2 else []):
        pth = TPATH[t]
        for r in range(0 if opt("noep", 0) else 4):
            for cq in range(2):
                d, w = acc(t, cq), WR + 4 * (2 * pth + cq)
                if r == 0:
                    a(f"v_mul_f32 v{d}, v{d}, v{w}")
                else:
                    a(f"v_fmac_f32 v{d}, v{d+r}, v{w+r}")
        n = "-" if t == P4[2] else ""
        a(f"v_cvt_pk_bf16_f32 v{B1+t}, {n}v{acc(t,0)}, {n}v{acc(t,1)}")
        if t == P0:
            a(f"v_mov_b32 v{B1+11}, 0")
        if t == P3[0]:
            for l in fb:
                a(l)
        if t == P1:
            a(f"v_mfma_f32_16x16x32_bf16 {vr(20,4)}, {vr(SEL,4)}, {vr(B1+4,4)}, 0")
    if opt("prio", 3) == 3 and EPP:
        pattern_prio()
    a(book[0])
    a(f"v_mfma_f32_16x16x32_bf16 {vr(16,4)}, {vr(SEL,4)}, {vr(B1,4)}, 0")
    a(f"v_mfma_f32_16x16x32_bf16 {vr(24,4)}, {vr(SEL,4)}, {vr(B1+8,4)}, 0")
    a(f"v_cvt_pk_bf16_f32 v65, v20, v21")
    for l in book[1:]:
        a(l)
    a(f"buffer_store_dword v65, v{POFF}, s[{R_P}:{R_P+3}], s55 offen offset:256{PPOL}")
    for i in (0, 2):
        a(f"v_cvt_pk_bf16_f32 v{64+i}, v{16+4*i}, v{17+4*i}")
    for i in (0, 2):
        a(f"buffer_store_dword v{64+i}, v{POFF}, s[{R_P}:{R_P+3}], s55 offen offset:{256*i}{PPOL}")
    if opt("egx", 0):
        a("s_cselect_b32 s57, 1, 0")
        a(f"s_cmp_lg_u32 s{S_PHASE}, 0")
        a(f"s_cbranch_scc1 {tag}_noeg")
        for i in range(2):
            a("v_mul_lo_u32 v218, v218, s97")
            a("v_add_u32 v218, 12345, v218")
            a("v_mul_hi_u32 v67, v218, s96")
            a("v_lshlrev_b32 v67, 5, v67")
            a(f"s_mov_b32 m0, {L_DUMMY}")
            a(f"buffer_load_dword v67, s[92:95], 0 offen{['', ' nt', ' sc1'][opt('egx', 0) - 1]} lds")
        a.label(f"{tag}_noeg")
        a("s_cmp_lg_u32 s57, 0")
    if PROF == 6:
        a("s_memtime s[62:63]")
    a(f"s_cbranch_scc1 {tag}_evt")
    a.label(f"{tag}_go")
    goto_next(a, rho, "f", p1, True)
    c = Asm()
    c.label(f"{tag}_evt")
    c("s_cmp_eq_u32 s56, -2")
    c(f"s_cbranch_scc1 {tag}_end")
    c(f"s_mov_b32 s{S_EVT}, -2")
    c("s_and_b32 s54, s2, 31")
    c("s_lshl_b32 s54, s54, 3")
    c(f"s_add_u32 s54, s54, s{S_WAVE}")
    c(f"s_mul_i32 s54, s54, {98*128}")
    c(f"s_add_u32 s54, s54, {XHALF + XBIAS}")
    c(f"v_lshlrev_b32 v67, 7, v{LANE}")
    c(f"s_mov_b32 m0, {L_DUMMY}")
    if opt("pfm", 64) < 64:
        c(f"s_bfm_b64 exec, {opt('pfm', 64)}, 0")
    c(f"buffer_load_dword v67, s[{R_XP}:{R_XP+3}], s54 offen lds")
    c("s_mov_b64 exec, -1")
    c(f"s_branch {tag}_go")
    c.label(f"{tag}_end")
    c(f"s_cmp_lg_u32 s{S_PHASE}, 0")
    c("s_cbranch_scc1 TAIL")
    if PROF not in (6, 7):
        stamp(c, 7, late=True)
    c(f"s_mov_b32 s{S_EVT}, -2")
    if opt("otlb", 0):
        c("v_mov_b32 v67, 0")
        c(f"s_mov_b32 m0, {L_DUMMY}")
        c(f"buffer_load_dword v67, s[{R_OUT}:{R_OUT+3}], 0 offen lds")
    c(f"s_mov_b32 s{S_PHASE}, 1")
    c(f"s_mov_b32 s{S_POFF}, {P_HALF}")
    load_w(c, 1)
    c(f"s_branch {tag}_go")
    cold += c.lines


def signal(a, off, tag):
    a(f"s_cmp_lg_u32 s{S_WAVE}, 0")
    a(f"s_cbranch_scc1 {tag}")
    a("s_mov_b64 exec, 1")
    a("v_mov_b32 v110, 1")
    a("v_mov_b32 v111, 0")
    a(f"buffer_atomic_add v110, v111, s[{R_DBG}:{R_DBG+3}], 0 offen offset:{off} sc1")
    a("s_mov_b64 exec, -1")
    a.label(tag)


def poll(a, off, tag):
    a(f"s_cmp_lg_u32 s{S_WAVE}, 0")
    a(f"s_cbranch_scc1 {tag}_d")
    a("s_mov_b32 s62, 0x200000")
    a("v_mov_b32 v111, 0")
    a.label(f"{tag}_l")
    a(f"buffer_load_dword v110, v111, s[{R_DBG}:{R_DBG+3}], 0 offen offset:{off} sc1")
    a("s_sub_u32 s62, s62, 1")
    a(f"s_cbranch_scc1 {tag}_d")
    a("s_waitcnt vmcnt(0)")
    a("v_readfirstlane_b32 s63, v110")
    a("s_cmp_ge_u32 s63, 256")
    a(f"s_cbranch_scc1 {tag}_d")
    if opt("slp", 16):
        a(f"s_sleep {opt('slp', 16)}")
    a(f"s_branch {tag}_l")
    a.label(f"{tag}_d")


def part1(a):
    NT, ST = " nt", " sc1"
    D, SRC, RH, X, BA, RK, DL = 4, 12, 20, 32, 48, 56, 64
    a("s_load_dwordx8 s[4:11], s[0:1], 0")
    a("s_load_dwordx8 s[52:59], s[0:1], 32")
    a("s_load_dwordx4 s[12:15], s[0:1], 80")
    a("v_lshlrev_b32 v1, 4, v0")
    a("v_mul_u32_u24 v2, 24, v0")
    a("v_and_b32 v3, 63, v0")
    a("v_lshlrev_b32 v3, 4, v3")
    a("v_lshrrev_b32 v72, 6, v0")
    a(f"v_readfirstlane_b32 s{S_WAVE}, v72")
    a("s_mul_i32 s60, s2, 12800")
    a("s_mul_i32 s61, s2, 19200")
    a("s_mul_i32 s62, s2, 25600")
    a("s_mul_i32 s63, s2, 102400")
    a("s_mul_i32 s64, s2, 38400")
    a("s_lshl_b32 s65, s2, 10")
    a("s_mov_b32 s66, 8192")
    a("s_waitcnt lgkmcnt(0)")
    srd(a, R_DBG, 12, 0, 256)
    a("s_cmp_ge_u32 s2, 250")
    a("s_cbranch_scc1 P1_prep")
    srd(a, 16, 52, "s60", 12800)
    a(f"buffer_load_dwordx4 {vr(D,4)}, v1, s[16:19], 0 offen{NT}")
    a(f"buffer_load_dwordx4 {vr(D+4,4)}, v1, s[16:19], s66 offen{NT}")
    a("v_lshlrev_b32 v73, 2, v0")
    a("v_mov_b32 v74, 0")
    a(f"s_cmp_ge_u32 s{S_WAVE}, 4")
    a("s_cbranch_scc1 P1_nozero")
    a(f"v_add_u32 v73, {K1_HIST}, v73")
    a("ds_write_b32 v73, v74")
    a.label("P1_nozero")
    srd(a, 20, 10, "s60", 12800)
    srd(a, 24, 6, "s61", 19200)
    srd(a, 28, 4, "s62", 25600)
    srd(a, 32, 8, "s63", 102400)
    a("s_mov_b32 s69, 12288")
    a(f"s_lshl_b32 s67, s{S_WAVE}, 10")
    a("s_waitcnt lgkmcnt(0)")
    a("s_barrier")
    a(f"buffer_load_dwordx4 {vr(SRC,4)}, v1, s[20:23], 0 offen{NT}")
    a(f"buffer_load_dwordx4 {vr(SRC+4,4)}, v1, s[20:23], s66 offen{NT}")
    for r, so in ((0, "0"), (1, "s69")):
        a(f"buffer_load_dwordx4 {vr(RH+6*r,4)}, v2, s[24:27], {so} offen{NT}")
        a(f"buffer_load_dwordx2 {vr(RH+6*r+4,2)}, v2, s[24:27], {so} offen offset:16{NT}")
    a("s_mov_b32 s68, 0")
    for k in range(4):
        a(f"buffer_load_dwordx4 {vr(X+4*k,4)}, v1, s[28:31], s68 offen{NT}")
        a("s_add_u32 s68, s68, 8192")
    kb = [int(c, 16) for c in opt("kb", "d000")]

    def e_in(i):
        for k in range(sum(kb[:i]), sum(kb[:i + 1])):
            if k == 12:
                a(f"s_cmp_ge_u32 s{S_WAVE}, 4")
                a("s_cbranch_scc1 P1_noe13")
            a("s_mov_b32 m0, s67")
            a(f"buffer_load_dwordx4 v3, s[32:35], s67 offen{NT} lds")
            a("s_add_u32 s67, s67, 8192")
            if k == 12:
                a.label("P1_noe13")

    def n_e(i):
        return min(sum(kb[:i + 1]), 12)

    e_in(0)
    a("s_add_u32 s68, s64, %d" % WS_META)
    srd(a, 36, 14, "s68", 38400)
    a("s_add_u32 s68, s63, %d" % WS_EP)
    srd(a, 40, 14, "s68", 102400)
    srd(a, 44, 14, WS_XP, 2 * XHALF)
    srd(a, 48, 14, "s65", 1024)
    a("v_cmp_gt_u32 vcc, 288, v0")
    a("s_mov_b64 s[70:71], vcc")
    a("v_mov_b32 v75, 1")
    a(f"s_waitcnt vmcnt({10 + n_e(0)})")
    stamp(a, 2, k1=True)
    for i in range(8):
        if i == 4:
            a("s_mov_b64 exec, s[70:71]")
            a("s_cbranch_execz P1_skip_rank")
        a(f"v_mul_u32_u24 v{BA+i}, 21400, v{D+i}")
        a(f"v_lshrrev_b32 v{BA+i}, 20, v{BA+i}")
        a(f"v_mul_u32_u24 v{DL+i}, 49, v{BA+i}")
        a(f"v_sub_u32 v{DL+i}, v{D+i}, v{DL+i}")
        a(f"v_lshlrev_b32 v{BA+i}, 2, v{BA+i}")
        a(f"v_add_u32 v{BA+i}, {K1_HIST}, v{BA+i}")
        a(f"ds_add_rtn_u32 v{RK+i}, v{BA+i}, v75")
    a.label("P1_skip_rank")
    a("s_mov_b64 exec, -1")
    a("s_waitcnt lgkmcnt(0)")
    a("s_barrier")
    a(f"s_cmp_lg_u32 s{S_WAVE}, 0")
    a("s_cbranch_scc1 P1_noscan")
    a(f"v_add_u32 v73, {K1_HIST}, v3")
    a("ds_read_b128 v[76:79], v73")
    a("s_waitcnt lgkmcnt(0)")
    a("v_add_u32 v81, v76, v77")
    a("v_add_u32 v82, v81, v78")
    a("v_add_u32 v83, v82, v79")
    a("v_mov_b32 v84, v83")
    scan64(a, 84)
    a("v_sub_u32 v84, v84, v83")
    a("v_add_u32 v85, v84, v76")
    a("v_add_u32 v86, v84, v81")
    a("v_add_u32 v87, v84, v82")
    a("ds_write_b128 v73, v[84:87]")
    for i in range(4):
        a(f"v_lshl_or_b32 v{88+i}, v{76+i}, 16, v{84+i}")
    a(f"buffer_store_dwordx4 v[88:91], v3, s[48:51], 0 offen{ST}")
    a("s_waitcnt lgkmcnt(0)")
    a.label("P1_noscan")
    e_in(1)
    a("v_lshrrev_b32 v92, 5, v0")
    a("s_mul_i32 s69, s2, 50")
    a("v_add_u32 v92, s69, v92")
    a("v_lshlrev_b32 v92, 8, v92")
    a("v_bfe_u32 v93, v0, 3, 2")
    a("v_lshl_add_u32 v92, v93, 6, v92")
    a("v_and_b32 v93, 3, v0")
    a("v_lshl_add_u32 v92, v93, 4, v92")
    a("v_bfe_u32 v93, v0, 2, 1")
    a(f"v_mul_u32_u24 v93, {XHALF}, v93")
    a("v_add_u32 v92, v92, v93")
    a("v_cmp_gt_u32 vcc, 64, v0")
    a("v_mov_b32 v94, 0x80000000")
    a("v_cndmask_b32 v93, v94, v92, vcc")
    a("s_mov_b32 s72, 0x80000000")
    a("s_mov_b32 s73, 0xffff0000")
    a("v_lshlrev_b32 v95, 2, v0")
    a("s_barrier")
    for r in range(2):
        if r == 1:
            a("s_mov_b64 exec, s[70:71]")
            a("s_cbranch_execz P1_skip_scatter")
        for i in range(4):
            a(f"ds_read_b32 v{BA+4*r+i}, v{BA+4*r+i}")
        if r == 0:
            a(f"s_waitcnt vmcnt({4 + n_e(1)})")
        R = RH + 6 * r
        for i in range(4):
            a(f"v_lshl_or_b32 v{SRC+4*r+i}, v{SRC+4*r+i}, 8, v{DL+4*r+i}")
            a(f"v_or_b32 v{SRC+4*r+i}, s72, v{SRC+4*r+i}")
        a(f"v_lshlrev_b32 v76, 16, v{R+1}")
        a(f"v_alignbit_b32 v77, v{R+2}, v{R+1}, 16")
        a(f"v_and_b32 v78, s73, v{R+2}")
        a(f"v_lshlrev_b32 v79, 16, v{R+4}")
        a(f"v_alignbit_b32 v80, v{R+5}, v{R+4}, 16")
        a(f"v_and_b32 v81, s73, v{R+5}")
        w1 = [R, 77, R + 3, 80]
        w2 = [76, 78, 79, 81]
        a("s_waitcnt lgkmcnt(0)")
        for i in range(4):
            b, k = BA + 4 * r + i, RK + 4 * r + i
            a(f"v_add_u32 v{k}, v{k}, v{b}")
            a(f"v_mul_u32_u24 v{b}, 12, v{k}")
            a(f"v_add_u32 v{b}, {K1_MS}, v{b}")
            a(f"ds_write2_b32 v{b}, v{SRC+4*r+i}, v{w1[i]} offset0:0 offset1:1")
            a(f"ds_write_b32 v{b}, v{w2[i]} offset:8")
            a(f"v_lshlrev_b32 v{k}, 1, v{k}")
            a(f"v_add_u32 v{k}, {K1_INV}, v{k}")
            a(f"v_add_u32 v{82+i}, {2048*r + i}, v95")
            a(f"ds_write_b16 v{k}, v{82+i}")
    a.label("P1_skip_scatter")
    a("s_mov_b64 exec, -1")
    a(f"s_waitcnt vmcnt({n_e(1)})")
    a("s_mov_b32 s68, 0")
    for k in range(4):
        a(f"buffer_store_dwordx4 {vr(X+4*k,4)}, v{92 if k < 3 else 93}, s[44:47], s68 offen{ST}")
        a("s_add_u32 s68, s68, 4096")
    e_in(2)
    a("s_waitcnt lgkmcnt(0)")
    a("s_barrier")
    stamp(a, 4, k1=True)
    a(f"v_add_u32 v73, {K1_MS}, v1")
    for k in range(5):
        a(f"ds_read_b128 {vr(4+4*k,4)}, v73 offset:{8192*k}")
    a("v_and_b32 v74, 0x1fe, v0")
    a(f"v_add_u32 v74, {K1_INV}, v74")
    a("s_mov_b32 s68, 0")
    for k in range(5):
        a(f"s_waitcnt lgkmcnt({4-k})")
        a(f"buffer_store_dwordx4 {vr(4+4*k,4)}, v1, s[36:39], s68 offen{ST}")
        a("s_add_u32 s68, s68, 8192")
    for k in range(13):
        a(f"ds_read_u16 v{48+k}, v74 offset:{512*k}")
    e_in(3)
    a("v_and_b32 v75, 1, v0")
    a("v_lshlrev_b32 v75, 4, v75")
    a("s_waitcnt lgkmcnt(0)")
    for k in range(13):
        a(f"v_lshl_add_u32 v{48+k}, v{48+k}, 5, v75")
    a("s_waitcnt vmcnt(0)")
    a("s_barrier")
    stamp(a, 6, k1=True)
    if opt("siga", 0) == 0:
        signal(a, 0, "P1_sa")
    for k in range(12):
        a(f"ds_read_b128 {vr(128+4*k,4)}, v{48+k}")
    a("s_mov_b32 s68, 0")
    for k in range(12):
        a(f"s_waitcnt lgkmcnt({11-k})")
        a(f"buffer_store_dwordx4 {vr(128+4*k,4)}, v1, s[40:43], s68 offen{ST}")
        a("s_add_u32 s68, s68, 8192")
    a(f"s_cmp_ge_u32 s{S_WAVE}, 4")
    a("s_cbranch_scc1 P1_fin" if opt("siga", 0) == 0 else "s_cbranch_scc1 P1_fin2")
    a("ds_read_b128 v[176:179], v60")
    a("s_waitcnt lgkmcnt(0)")
    a(f"buffer_store_dwordx4 v[176:179], v1, s[40:43], s68 offen{ST}")
    a("s_branch P1_fin" if opt("siga", 0) == 0 else "s_branch P1_fin2")

    if opt("siga", 0) == 1:
        a.label("P1_fin2")
        signal(a, 0, "P1_sa")
        a(f"s_cmp_lg_u32 s{S_WAVE}, 0")
        a("s_cbranch_scc1 P1_fin")
        a("s_waitcnt vmcnt(1)")
        a("s_branch P1_fin3")
    if opt("siga", 0) == 2:
        a.label("P1_fin2")
        a("s_waitcnt vmcnt(0)")
        a("s_barrier")
        stamp(a, 8, k1=True)
        signal(a, 0, "P1_sa")
        a("s_branch P1_fin4")
    a.label("P1_prep")
    a("s_cmp_eq_u32 s2, 255")
    a("s_cbranch_scc1 P1_prepd")
    srd(a, 16, 54, 0, 16 * 320 * 2)
    srd(a, 20, 56, 0, 128 * 64 * 2)
    srd(a, 24, 58, 0, 192 * 64 * 2)
    srd(a, 28, 14, WS_WTAB, 20480)
    srd(a, 32, 14, WS_WSI, 40960)
    a("s_sub_u32 s60, s2, 250")
    a("s_lshl_b32 s60, s60, 10")
    for it in range(2):
        prep_tables(a, ST)
        a("s_add_u32 s60, s60, 512")
    a.label("P1_prepd")
    a("s_waitcnt vmcnt(0)")
    a("s_barrier")
    signal(a, 0, "P1_sa2")
    a.label("P1_fin")
    a("s_waitcnt vmcnt(0)")
    a.label("P1_fin3")
    a("s_barrier")
    stamp(a, 8, k1=True)
    a.label("P1_fin4")
    signal(a, 128, "P1_sb")


BAL = opt("bal", 1)


def meta_set_addresses(a):
    a(f"v_lshrrev_b32 v164, 4, v{LANE}")
    a("v_lshlrev_b32 v164, 2, v164")
    a(f"v_bfe_u32 v165, v{LANE}, 2, 1")
    a("v_lshl_add_u32 v160, v165, 5, v164")
    a(f"v_bfe_u32 v165, v{LANE}, 1, 1")
    a("v_lshl_add_u32 v160, v165, 4, v160")
    a("v_lshl_add_u32 v161, v165, 5, v164")
    a(f"v_and_b32 v165, 1, v{LANE}")
    a("v_lshl_add_u32 v160, v165, 1, v160")
    a("v_lshl_add_u32 v161, v165, 4, v161")
    a(f"v_bfe_u32 v165, v{LANE}, 3, 1")
    a("v_add_u32 v160, v160, v165")
    a(f"v_bfe_u32 v165, v{LANE}, 2, 2")
    a("v_add_u32 v161, v161, v165")
    a(f"v_mov_b32 v162, {L_SB}")
    a(f"v_mov_b32 v163, {L_SA}")
    a("v_lshl_add_u32 v160, v160, 2, v163")
    a("v_lshl_add_u32 v161, v161, 3, v162")


def balanced_partition(a):
    L = LANE
    a("v_add_u32 v14, 31, v14")
    a("v_lshrrev_b32 v14, 5, v14")
    a("v_max_u32 v14, 1, v14")
    a(f"v_cmp_gt_u32 s[60:61], s{S_NN}, v{L}")
    a("v_cndmask_b32 v14, 0, v14, s[60:61]")
    a("v_cmp_lt_u32 vcc, 2, v14")
    a("s_andn2_b64 s[60:61], s[60:61], vcc")
    a("s_bcnt1_i32_b64 s62, vcc")
    a("s_bcnt1_i32_b64 s63, s[60:61]")
    a("v_mbcnt_lo_u32_b32 v32, vcc_lo, 0")
    a("v_mbcnt_hi_u32_b32 v32, vcc_hi, v32")
    a("v_mov_b32 v33, s62")
    a("v_mbcnt_lo_u32_b32 v33, s60, v33")
    a("v_mbcnt_hi_u32_b32 v33, s61, v33")
    a("v_cndmask_b32 v32, v33, v32, vcc")
    a(f"v_cmp_gt_u32 vcc, s{S_NN}, v{L}")
    a(f"v_cndmask_b32 v32, v{L}, v32, vcc")
    a("v_lshlrev_b32 v32, 2, v32")
    a(f"v_lshl_or_b32 v33, v{L}, 8, v14")
    a("ds_permute_b32 v34, v32, v33")
    a(f"v_mad_u32_u24 v36, v{L}, s{S_NN}, 7")
    a("v_lshrrev_b32 v36, 3, v36")
    a("s_mul_i32 s58, s62, 10")
    a(f"s_mul_i32 s59, s{S_NN}, 26")
    a("s_add_u32 s58, s58, s59")
    a(f"v_mad_u32_u24 v37, v{L}, s58, 40")
    a("v_mul_u32_u24 v40, 208, v36")
    a("v_sub_u32 v37, v37, v40")
    a("v_max_i32 v37, 0, v37")
    a("v_mul_u32_u24 v37, 3277, v37")
    a("v_lshrrev_b32 v37, 18, v37")
    a("v_subrev_u32 v40, s63, v36")
    a("v_max_i32 v37, v37, v40")
    a("v_min_u32 v37, s62, v37")
    a("v_min_u32 v37, v37, v36")
    for sh in (1, 2, 4, 8):
        a(f"v_max_u32_dpp v37, v37, v37 row_shr:{sh} row_mask:0xf bank_mask:0xf bound_ctrl:1")
    a("v_sub_u32 v40, v36, v37")
    for sh in (1, 2, 4, 8):
        a(f"v_max_u32_dpp v40, v40, v40 row_shr:{sh} row_mask:0xf bank_mask:0xf bound_ctrl:1")
    a("v_sub_u32 v37, v36, v40")
    a("v_lshl_or_b32 v37, v36, 8, v37")
    a(f"s_cmp_eq_u32 s{S_NN}, {NPB}")
    a(f"s_mov_b32 s58, {-(-8*65536 // (N - 255*NPB))}")
    a(f"s_cmov_b32 s58, {-(-8*65536 // NPB)}")
    a(f"v_mul_u32_u24 v40, s58, v{L}")
    a("v_lshrrev_b32 v40, 16, v40")
    a("v_min_u32 v40, 7, v40")
    a("v_lshlrev_b32 v40, 2, v40")
    a("ds_bpermute_b32 v41, v40, v37")
    a("ds_bpermute_b32 v42, v40, v37 offset:4")
    a(f"s_and_b32 s60, s{S_WAVE}, 3")
    a("s_lshl_b32 s60, s60, 1")
    a(f"s_lshr_b32 s61, s{S_WAVE}, 2")
    a("s_add_u32 s59, s60, s61")
    a(f"s_mul_i32 s60, s59, s{S_NN}")
    a(f"s_add_u32 s61, s60, s{S_NN}")
    a("s_add_u32 s60, s60, 7")
    a("s_add_u32 s61, s61, 7")
    a(f"s_lshr_b32 s{S_NODE0}, s60, 3")
    a(f"s_lshr_b32 s{S_NEND}, s61, 3")
    a(f"s_sub_u32 s{S_NNW}, s{S_NEND}, s{S_NODE0}")
    a("s_waitcnt lgkmcnt(0)")
    a("v_lshrrev_b32 v43, 8, v41")
    PP = L
    if opt("mir", 1):
        PP = 33
        a("v_lshrrev_b32 v33, 8, v42")
        a("v_add3_u32 v33, v33, v43, -1")
        a(f"v_sub_u32 v33, v33, v{L}")
        a("v_and_b32 v40, 4, v40")
        a("v_cmp_eq_u32 vcc, 0, v40")
        a(f"v_cndmask_b32 v33, v33, v{L}, vcc")
    a("v_and_b32 v41, 0xff, v41")
    a("v_and_b32 v42, 0xff, v42")
    a(f"v_sub_u32 v43, v{PP}, v43")
    a("v_add_u32 v43, v43, v41")
    a(f"v_sub_u32 v40, v{PP}, v42")
    a("v_add_u32 v40, s62, v40")
    a("v_cmp_lt_u32 vcc, v43, v42")
    a("v_cndmask_b32 v40, v40, v43, vcc")
    a(f"v_cmp_gt_u32 vcc, s{S_NN}, v{L}")
    a(f"v_cndmask_b32 v40, v{L}, v40, vcc")
    a("v_lshlrev_b32 v40, 2, v40")
    a("ds_bpermute_b32 v41, v40, v34")
    a("s_waitcnt lgkmcnt(0)")
    a("v_and_b32 v14, 0xff, v41")
    a(f"v_subrev_u32 v{NST}, 1, v14")
    a(f"v_lshrrev_b32 v{NID}, 8, v41")
    a(f"v_lshlrev_b32 v41, 2, v{NID}")
    a("v_mov_b32 v19, v14")
    scan64(a, 19)
    a("v_sub_u32 v42, v19, v14")
    a("ds_permute_b32 v18, v41, v42")
    a("v_min_u32 v36, 63, v36")
    a("v_lshlrev_b32 v36, 2, v36")
    a("ds_bpermute_b32 v43, v36, v42")
    a("v_readlane_b32 s58, v19, 63")
    a("s_waitcnt lgkmcnt(0)")
    a("v_mov_b32 v40, v43")
    a("v_sub_u32_dpp v40, v43, v43 row_shl:1 row_mask:0xf bank_mask:0xf")
    a(f"v_readlane_b32 s{S_STEP0}, v43, s59")
    a(f"v_cmp_lt_u32 vcc, {MAXWSTEPS}, v40")
    a(f"v_readlane_b32 s{S_NS}, v40, s59")
    a("s_and_b32 s60, vcc_lo, 0xff")


def kernel2():
    a = Asm()
    a("s_cmp_ge_u32 s2, 256")
    a("s_cbranch_scc1 K2_end")
    if opt("xcdmap", 1) == 2:
        a("s_load_dwordx2 s[54:55], s[0:1], 80")
        a("s_getreg_b32 s58, hwreg(HW_REG_XCC_ID, 0, 3)")
        a("v_lshrrev_b32 v1, 6, v0")
        a("v_readfirstlane_b32 s3, v1")
        a(f"v_mov_b32 v3, {L_WSUM}")
        a("s_cmp_lg_u32 s3, 0")
        a("s_cbranch_scc1 CLAIMED")
        a("s_waitcnt lgkmcnt(0)")
        srd(a, 4, 54, 0, 256)
        a("s_mov_b64 exec, 1")
        a.label("CLAIM")
        a("v_mov_b32 v1, 1")
        a("s_lshl_b32 s59, s58, 5")
        a("v_mov_b32 v2, s59")
        a("buffer_atomic_add v1, v2, s[4:7], 0 offen sc0")
        a("s_add_u32 s58, s58, 1")
        a("s_and_b32 s58, s58, 7")
        a("s_waitcnt vmcnt(0)")
        a("v_readfirstlane_b32 s60, v1")
        a("s_cmp_ge_u32 s60, 32")
        a("s_cbranch_scc1 CLAIM")
        a("v_add_u32 v1, v1, v2")
        a("ds_write_b32 v3, v1")
        a("s_mov_b64 exec, -1")
        a.label("CLAIMED")
        a("s_waitcnt lgkmcnt(0)")
        a("s_barrier")
        a("ds_read_b32 v1, v3")
        a("s_waitcnt lgkmcnt(0)")
        a("v_readfirstlane_b32 s2, v1")
        a("s_and_b32 s2, s2, 255")
        a("s_barrier")
    if opt("xcdmap", 1) == 1:
        a("s_and_b32 s3, s2, 7")
        a("s_lshl_b32 s3, s3, 5")
        a("s_lshr_b32 s2, s2, 3")
        a("s_or_b32 s2, s2, s3")
    a(f"v_mov_b32 v{TID}, v0")
    a(f"s_mov_b32 s{S_R0}, 0")
    a(f"s_mov_b32 s{S_CAP}, {CAP}")
    stamp(a, 0, True)
    stamp(a, 1)
    if FUSED:
        part1(a)
        a(f"s_mov_b32 s{S_R0}, 0")
        a(f"s_mov_b32 s{S_CAP}, {CAP}")
        poll(a, 0, "POLL_A")
        a("s_barrier")
    a.label("ROUND")
    a("s_load_dwordx2 s[56:57], s[0:1], 88")
    a("s_load_dwordx2 s[54:55], s[0:1], 72")
    a(f"v_and_b32 v2, 255, v{TID}")
    a("v_lshlrev_b32 v3, 10, v2")
    a(f"v_and_b32 v{LANE}, 63, v{TID}")
    a(f"v_lshrrev_b32 v1, 6, v{TID}")
    a(f"v_readfirstlane_b32 s{S_WAVE}, v1")
    a("s_lshl_b32 s58, s2, 2")
    a("s_cmp_eq_u32 s2, 255")
    a(f"s_cselect_b32 s{S_NN}, {N - 255*NPB}, {NPB}")
    a("s_waitcnt lgkmcnt(0)")
    srd(a, R_TB, 56, WS_TAB, W * 1024)
    DSH = opt("dsh", 1)
    if DSH:
        a(f"s_cmp_ge_u32 s{S_WAVE}, 4")
        a("s_cbranch_scc1 NODESC")
    a(f"buffer_load_dword v20, v3, s[{R_TB}:{R_TB+3}], s58 offen")
    if DSH:
        a.label("NODESC")
    if opt("cpf", 2) & 1:
        a("s_getpc_b64 s[60:61]")
        a.label("K2_here")
        a("s_mov_b32 s62, K2_end-K2_here")
        a("s_mov_b32 s63, 0x20000")
        a(f"v_lshlrev_b32 v21, 7, v{TID}")
        a("buffer_load_dword v75, v21, s[60:63], 0 offen")
    if PROF:
        a("s_mov_b64 s[98:99], s[56:57]")
    if opt("egx", 0):
        a("s_load_dwordx2 s[92:93], s[0:1], 16")
        a("s_mov_b32 s94, 25600000")
        a("s_mov_b32 s95, 0x20000")
        a("s_mov_b32 s96, 800000")
        a("s_mov_b32 s97, 1664525")
        a(f"v_lshrrev_b32 v218, 1, v{TID}")
        a("s_lshl_b32 s59, s2, 8")
        a("v_add_u32 v218, s59, v218")
        a("s_mov_b32 s59, 0x9E3779B1")
        a("v_mul_lo_u32 v218, v218, s59")
        a("s_waitcnt lgkmcnt(0)")
    srd(a, R_W, 56, WS_WTAB, 0x12000)
    srd(a, R_MT, 56, WS_META, E * 12)
    srd(a, R_EP, 56, WS_EP, E * 32)
    srd(a, R_XP, 56, WS_XP - XBIAS, 2 * XHALF + XBIAS)
    a(f"s_mul_i32 s59, s2, {P_WG}")
    a(f"s_add_u32 s59, s59, {WS_P}")
    srd(a, R_P, 56, "s59", 2 * P_HALF)
    a("s_lshl_b32 s59, s2, 16")
    a(f"s_add_u32 s59, s59, {WS_ACC}")
    srd(a, R_ACC, 56, "s59", 65536)
    a(f"s_mul_i32 s59, s2, {NPB*512}")
    a(f"s_lshl_b32 s60, s{S_NN}, 9")
    srd(a, R_OUT, 54, "s59", "s60")
    a(f"s_mul_i32 s{S_RB}, s{S_WAVE}, {RING_W}")
    a(f"s_add_u32 s{S_RB}, s{S_RB}, {L_RING}")
    a(f"s_mov_b32 s{S_HI}, 0xffff0000")
    a(f"s_mov_b32 s{S_SGN}, 0x80008000")
    L = LANE
    a(f"v_bfe_u32 v3, v{L}, 4, 1")
    a(f"v_and_b32 v4, 7, v{L}")
    a("v_lshlrev_b32 v5, 1, v3")
    a("v_xor_b32 v4, v4, v5")
    a("v_lshlrev_b32 v4, 4, v4")
    a(f"v_add_u32 v{XOFF}, {0x80000000 + XBIAS}, v4")
    a(f"v_add_u32 v{XOFF+1}, {0x80000000 + XBIAS - 1088}, v4")
    a(f"v_and_b32 v4, 3, v{L}")
    a(f"v_lshlrev_b32 v{QQ8}, 3, v4")
    a(f"v_bfe_u32 v5, v{L}, 3, 1")
    a("v_mul_u32_u24 v5, 1088, v5")
    a(f"v_lshrrev_b32 v6, 4, v{L}")
    a("v_lshl_add_u32 v5, v6, 8, v5")
    a(f"v_bfe_u32 v7, v{L}, 2, 1")
    a("v_lshl_add_u32 v5, v7, 7, v5")
    a(f"v_add_u32 v5, v5, v{QQ8}")
    a(f"v_add_u32 v5, s{S_RB}, v5")
    a("v_lshlrev_b32 v7, 5, v3")
    a(f"v_add_u32 v{BAE}, v5, v7")
    a(f"v_sub_u32 v{BAO}, v5, v7")
    a(f"v_and_b32 v7, 15, v{L}")
    a("v_lshlrev_b32 v8, 2, v7")
    a(f"v_lshl_add_u32 v{POFF}, v6, 6, v8")
    a("v_and_b32 v8, 1, v7")
    a("v_lshlrev_b32 v8, 4, v8")
    a("v_mov_b32 v9, 0x3f80")
    a("v_lshlrev_b32 v8, v8, v9")
    a("v_and_b32 v9, 14, v7")
    for i in range(4):
        a(f"v_cmp_eq_u32 vcc, {4*i}, v9")
        a(f"v_cndmask_b32 v{SEL+i}, 0, v8, vcc")
    a(f"v_lshlrev_b32 v6, 2, v{TID}")
    a("v_mov_b32 v7, 0")
    a(f"v_add_u32 v8, {L_MISC}, v6")
    a(f"v_cmp_gt_u32 vcc, 68, v{TID}")
    a("s_and_saveexec_b64 s[58:59], vcc")
    a("ds_write_b32 v8, v7")
    a(f"v_cmp_gt_u32 vcc, 8, v{TID}")
    a("s_and_b64 exec, exec, vcc")
    a("ds_write_b32 v6, v7")
    a("s_mov_b64 exec, -1")
    a(f"v_lshlrev_b32 v13, 4, v{TID}")
    a(f"v_add_u32 v13, {L_SA}, v13")
    for i in range(4):
        a(f"v_mov_b32 v{28+i}, 0")
    nz = MAXSTEPS * 384 // 16
    for k in range(6):
        a(f"ds_write_b128 v13, v[28:31] offset:{8192*k}")
    a(f"v_cmp_gt_u32 vcc, {nz - 6*512}, v{TID}")
    a("s_mov_b64 exec, vcc")
    a(f"ds_write_b128 v13, v[28:31] offset:{8192*6}")
    a("s_mov_b64 exec, -1")
    a("v_mul_u32_u24 v14, 3200, v2")
    a(f"v_lshrrev_b32 v15, 8, v{TID}")
    a("v_mov_b32 v16, 0x80000000")
    a(f"s_and_b32 s59, s{S_WAVE}, 3")
    a("v_lshlrev_b32 v22, 3, v2")
    a("v_add_u32 v22, 1024, v22")
    if DSH:
        a(f"s_cmp_ge_u32 s{S_WAVE}, 4")
        a("s_cbranch_scc1 NOSCAN")
    a(f"s_waitcnt vmcnt({opt('cpf', 2) & 1})")
    stamp(a, 2)
    a("v_lshrrev_b32 v9, 16, v20")
    a("v_mov_b32 v21, v9")
    scan64(a, 21)
    a("v_readlane_b32 s58, v21, 63")
    a("s_lshl_b32 s60, s59, 2")
    a(f"s_add_u32 s60, s60, {L_WSUM}")
    a("v_mov_b32 v12, s60")
    a("v_mov_b32 v13, s58")
    a("ds_write_b32 v12, v13")
    a("v_sub_u32 v21, v21, v9")
    if DSH:
        a("ds_write_b64 v22, v[20:21]")
        a.label("NOSCAN")
    a(f"v_mov_b32 v12, {L_WSUM}")
    a("s_waitcnt lgkmcnt(0)")
    a("s_barrier")
    a("ds_read_b128 v[16:19], v12")
    if DSH:
        a("ds_read_b64 v[20:21], v22")
    a("s_waitcnt lgkmcnt(0)")
    a("v_lshrrev_b32 v9, 16, v20")
    a("v_and_b32 v10, 0xffff, v20")
    a("v_add_u32 v14, v14, v10")
    a("v_mov_b32 v11, v21")
    for i in range(4):
        a(f"v_readfirstlane_b32 s{60+i}, v{16+i}")
    a("s_add_u32 s61, s61, s60")
    a("s_add_u32 s62, s62, s61")
    a(f"s_add_u32 s{S_T}, s63, s62")
    a("s_cmp_eq_u32 s59, 0")
    a("s_cselect_b32 s58, 0, s60")
    a("s_cmp_eq_u32 s59, 2")
    a("s_cselect_b32 s58, s61, s58")
    a("s_cmp_eq_u32 s59, 3")
    a("s_cselect_b32 s58, s62, s58")
    a("v_mov_b32 v16, 0x80000000")
    a(f"s_sub_u32 s{S_LEN}, s{S_T}, s{S_R0}")
    a(f"s_cmp_le_u32 s{S_LEN}, s{S_CAP}")
    a(f"s_cselect_b32 s{S_LAST}, 1, 0")
    a(f"s_min_u32 s{S_LEN}, s{S_LEN}, s{S_CAP}")
    a(f"s_sub_u32 s58, s58, s{S_R0}")
    a("v_add_u32 v11, s58, v11")
    a("v_sub_u32 v12, 0, v11")
    a("v_max_i32 v12, 0, v12")
    a(f"v_sub_u32 v13, s{S_LEN}, v11")
    a("v_min_i32 v13, v13, v9")
    a("v_add_u32 v12, v12, v15")
    a("v_sub_u32 v9, v13, v12")
    a("v_add_u32 v14, v14, v12")
    a("v_add_u32 v11, v11, v12")
    a("v_lshlrev_b32 v12, 2, v11")
    a(f"v_add_u32 v12, {L_MAP}, v12")
    a.label("MAPL")
    for i in range(16):
        a(f"v_cmp_lt_i32 vcc, {2*i}, v9")
        if i:
            a("v_add_u32 v14, 2, v14")
        a("s_and_b64 exec, exec, vcc")
        if i % 4 == 0:
            a("s_cbranch_execz MAPD")
        a(f"ds_write_b32 v12, v14 offset:{8*i}")
    a("v_add_u32 v14, 2, v14")
    a("v_add_u32 v12, 128, v12")
    a("v_subrev_u32 v9, 32, v9")
    a("s_branch MAPL")
    a.label("MAPD")
    a("s_mov_b64 exec, -1")
    a(f"v_add_u32 v12, {L_MAP}, v6")
    a(f"v_lshrrev_b32 v13, 1, v{LANE}")
    a(f"s_lshl_b32 s58, s{S_WAVE}, 5")
    a("v_add_u32 v13, s58, v13")
    a(f"v_lshl_add_u32 v14, v13, 2, v7")
    a(f"v_add_u32 v14, {L_MAP}, v14")
    a(f"v_and_b32 v15, 1, v{LANE}")
    a("v_lshlrev_b32 v15, 4, v15")
    a("s_waitcnt lgkmcnt(0)")
    a("s_barrier")
    stamp(a, 3)
    for k in range(7):
        a(f"ds_read_b32 v{20+k}, v12 offset:{2048*k}")
    for k in range(14):
        a(f"ds_read_b32 v{28+k}, v14 offset:{1024*k}")
    MREC = 44
    EPOL = ["", " sc1", " nt"][opt("epol", 0)]
    for k in range(7):
        a(f"v_add_u32 v17, {512*k}, v{TID}")
        a(f"v_cmp_gt_u32 s[{S_MASK+2*k}:{S_MASK+2*k+1}], s{S_LEN}, v17")
        a(f"s_waitcnt lgkmcnt({min(15, 20-k)})")
        a(f"v_mul_u32_u24 v{20+k}, 12, v{20+k}")
        a(f"v_cndmask_b32 v{20+k}, v16, v{20+k}, s[{S_MASK+2*k}:{S_MASK+2*k+1}]")
    if PROF == 2:
        stamp(a, 7)
    for k in range(7):
        a(f"buffer_load_dwordx3 {vr(MREC+4*k,3)}, v{20+k}, s[{R_MT}:{R_MT+3}], 0 offen{EPOL}")
    a("s_waitcnt lgkmcnt(0)")
    a(f"s_lshl_b32 s{S_EM0}, s{S_WAVE}, 10")
    a(f"s_add_u32 s{S_EM0}, s{S_EM0}, {L_E + 32}")
    EREG = 128
    for k in range(14):
        a(f"v_cmp_gt_u32 vcc, s{S_LEN}, v13")
        a(f"v_lshl_add_u32 v{28+k}, v{28+k}, 5, v15")
        a("v_add_u32 v13, 256, v13")
        a(f"v_cndmask_b32 v{EREG+k}, v16, v{28+k}, vcc")
    eb = [int(c) for c in opt("eb", "0554" if FUSED else "3551")]

    assert sum(eb[:1]) <= 10

    def e_batch(i, tag=""):
        for k in range(sum(eb[:i]), sum(eb[:i + 1])):
            if k == 13:
                a(f"s_cmp_ge_u32 s{S_WAVE}, 2")
                a("s_cbranch_scc1 NOE14")
            a(f"s_mov_b32 m0, s{S_EM0}")
            a(f"s_add_u32 s{S_EM0}, s{S_EM0}, 8192")
            a(f"buffer_load_dwordx4 v{EREG+k}, s[{R_EP}:{R_EP+3}], 0 offen{EPOL} lds")
            if k == 13:
                a.label("NOE14")

    if PROF == 2:
        stamp(a, 8)
    e_batch(0)
    if FUSED:
        a("v_mov_b32 v111, 0")
        a(f"buffer_load_dword v110, v111, s[{R_DBG}:{R_DBG+3}], 0 offen offset:128 sc1")
    if PROF == 2:
        stamp(a, 9)
    a("v_mov_b32 v17, 1")
    for k in range(7):
        a(f"s_waitcnt vmcnt({min(eb[0], 13) + 6 - k + FUSED})")
        if PROF == 2 and k in (0, 6):
            stamp(a, 10 if k == 0 else 11)
        a(f"v_and_b32 v{20+k}, 0xff, v{MREC+4*k}")
        a(f"v_lshlrev_b32 v{20+k}, 2, v{20+k}")
        a(f"v_add_u32 v18, {L_CNT}, v{20+k}")
        a(f"s_mov_b64 exec, s[{S_MASK+2*k}:{S_MASK+2*k+1}]")
        a(f"ds_add_rtn_u32 v{MREC+4*k+3}, v18, v17")
        a("s_mov_b64 exec, -1")
    a(f"v_lshlrev_b32 v12, 2, v{LANE}")
    a(f"v_add_u32 v12, {L_CNT}, v12")
    a(f"v_lshlrev_b32 v35, 2, v{TID}")
    a("v_add_u32 v35, 4, v35")
    RP = 144
    for k in range(7):
        r = MREC + 4 * k
        a(f"v_and_b32 v{r}, 0xffffff00, v{r}")
        a(f"v_add_u32 v36, {2048*k}, v35")
        a(f"v_or_b32 v{RP+2*k+1}, v{r+2}, v36")
        a(f"v_mov_b32 v{RP+2*k}, v{r+1}")
    meta_set_addresses(a)
    if FUSED:
        a("s_waitcnt vmcnt(0)")
        a("v_readfirstlane_b32 s60, v110")
    a("s_waitcnt lgkmcnt(0)")
    a("s_barrier")
    stamp(a, 4)
    if FUSED:
        a(f"s_lshr_b32 s{S_EB1}, s60, 8")
        a(f"s_mov_b32 s{S_EB2}, s{S_EB1}")
        a(f"s_cmp_eq_u32 s{S_EB1}, 0")
        a("s_cbranch_scc1 EB1_skip")
        e_batch(1)
        a("s_branch EB1_done")
        a.label("EB1_skip")
        a(f"buffer_load_dword v110, v111, s[{R_DBG}:{R_DBG+3}], 0 offen offset:128 sc1")
        a.label("EB1_done")
    else:
        e_batch(1)
    a("ds_read_b32 v14, v12")
    a("s_waitcnt lgkmcnt(0)")
    if BAL:
        balanced_partition(a)
    else:
        a("v_add_u32 v14, 31, v14")
        a("v_lshrrev_b32 v14, 5, v14")
        a("v_max_u32 v14, 1, v14")
        a(f"v_cmp_gt_u32 vcc, s{S_NN}, v{LANE}")
        a(f"v_mad_u32_u24 v15, v14, 10, {opt('epc', 6)}")
        a("v_cndmask_b32 v15, 0, v15, vcc")
        a("v_cndmask_b32 v14, 0, v14, vcc")
        a("v_lshl_or_b32 v18, v15, 16, v14")
        a(f"v_subrev_u32 v{NST}, 1, v14")
        a("v_mov_b32 v19, v18")
        scan64(a, 19)
        a("v_readlane_b32 s58, v19, 63")
        a("v_sub_u32 v18, v19, v18")
        a("v_and_b32 v19, 0xffff, v19")
        a("v_lshrrev_b32 v32, 16, v18")
        a("v_and_b32 v18, 0xffff, v18")
        a("v_lshl_add_u32 v32, v32, 1, v15")
        a("v_lshlrev_b32 v32, 2, v32")
        a("s_lshr_b32 s59, s58, 16")
        a("s_and_b32 s58, s58, 0xffff")
        a(f"s_and_b32 s60, s{S_WAVE}, 3")
        a("s_lshl_b32 s60, s60, 1")
        a(f"s_lshr_b32 s61, s{S_WAVE}, 2")
        a("s_add_u32 s60, s60, s61")
        a("s_mul_i32 s60, s60, s59")
        a("s_add_u32 s61, s60, s59")
        a("v_cmp_le_u32 vcc, s60, v32")
        a("v_cmp_gt_u32 s[62:63], s61, v32")
        a("s_and_b64 vcc, vcc, s[62:63]")
        a(f"s_bcnt1_i32_b64 s{S_NNW}, vcc")
        a(f"s_ff1_i32_b64 s{S_NODE0}, vcc")
        a(f"s_max_i32 s{S_NODE0}, s{S_NODE0}, 0")
        a(f"s_add_u32 s{S_NEND}, s{S_NODE0}, s{S_NNW}")
        a(f"s_sub_u32 s60, s{S_NEND}, 1")
        a("s_max_i32 s60, s60, 0")
        a(f"v_readlane_b32 s{S_STEP0}, v18, s{S_NODE0}")
        a(f"v_readlane_b32 s{S_NS}, v19, s60")
        a(f"s_sub_u32 s{S_NS}, s{S_NS}, s{S_STEP0}")
    assert BAL
    for k in range(7):
        a(f"ds_bpermute_b32 v{20+k}, v{20+k}, v18")
    a(f"s_lshl_b32 s59, s{S_STEP0}, 7")
    a("v_add_u32 v160, s59, v160")
    a("s_lshl_b32 s59, s59, 1")
    a("v_add_u32 v161, s59, v161")
    a(f"s_cmp_gt_u32 s58, {MAXSTEPS}")
    a("s_cselect_b32 s60, 1, s60")
    a("s_cmp_eq_u32 s60, 0")
    a("s_cbranch_scc1 SCATTER")
    a(f"s_mov_b32 s{S_CAP}, {SLOWCAP}")
    a("s_waitcnt vmcnt(0) lgkmcnt(0)")
    a("s_barrier")
    a("s_branch ROUND")
    a.label("SCATTER")
    if FUSED:
        a(f"s_cmp_lg_u32 s{S_EB1}, 0")
        a("s_cbranch_scc1 EB2_go")
        a("s_waitcnt vmcnt(0)")
        a("v_readfirstlane_b32 s60, v110")
        a(f"s_lshr_b32 s{S_EB2}, s60, 8")
        a(f"s_cmp_eq_u32 s{S_EB2}, 0")
        a("s_cbranch_scc1 EB2_skip")
        e_batch(1)
        a.label("EB2_go")
        e_batch(2)
        a.label("EB2_skip")
    else:
        e_batch(2)
    for k in range(7):
        r = MREC + 4 * k
        a(f"s_waitcnt lgkmcnt({6 - k + 2 * k if 6 + k <= 15 else 15})")
        a(f"v_lshl_add_u32 v{20+k}, v{20+k}, 5, v{r+3}")
        a(f"v_lshl_add_u32 v{r+1}, v{20+k}, 3, v162")
        a(f"v_lshl_add_u32 v{20+k}, v{20+k}, 2, v163")
        a(f"s_mov_b64 exec, s[{S_MASK+2*k}:{S_MASK+2*k+1}]")
        a(f"ds_write_b32 v{20+k}, v{r}")
        a(f"ds_write_b64 v{r+1}, {vr(RP+2*k,2)}")
        a("s_mov_b64 exec, -1")
    if FUSED:
        a(f"s_cmp_lg_u32 s{S_EB2}, 0")
        a("s_cbranch_scc1 EB3_nopoll")
        poll(a, 128, "POLL_B")
        a.label("EB3_nopoll")
    a("s_waitcnt lgkmcnt(0)")
    a("s_barrier")
    if FUSED:
        a(f"s_cmp_lg_u32 s{S_EB2}, 0")
        a("s_cbranch_scc1 EB3_go")
        e_batch(1)
        e_batch(2)
        a.label("EB3_go")
    e_batch(3)
    for s in range(10):
        a(f"ds_read_b32 v{M0R+s}, v160 offset:{256*s}")
        a(f"ds_read_b64 {vr(MBR+2*s,2)}, v161 offset:{512*s}")
    a(f"s_mov_b32 s{S_D}, 0")
    pfn = opt("pfn", 0)
    if pfn:
        a(f"s_sub_u32 s{S_EVT}, s{S_NEND}, {pfn}")
        a(f"s_max_i32 s{S_EVT}, s{S_EVT}, 0")
    else:
        a(f"s_mov_b32 s{S_EVT}, -2")
    a(f"s_mov_b32 s{S_PHASE}, 0")
    a(f"s_mov_b32 s{S_POFF}, 0")
    a(f"s_mov_b32 s{S_TAB0}, 0")
    a(f"s_mov_b32 s{S_TAB1}, 128")
    a(f"s_mov_b32 s{S_NODE}, s{S_NODE0}")
    for l in node_steps(S_NODE):
        a(l)
    if opt("prio", 3) == 2:
        a(f"s_lshr_b32 s54, s{S_WAVE}, 2")
        a(f"s_lshl2_add_u32 s{S_LEFT}, s{S_NS}, s54")
        a(f"s_add_u32 s{S_LEFT}, s{S_LEFT}, 256")
        a(f"s_lshl1_add_u32 s54, s{S_REM}, 2")
        a(f"s_sub_u32 s{S_LEFT}, s{S_LEFT}, s54")
        a(f"s_and_b32 s54, s{S_WAVE}, 3")
        a(f"s_lshl2_add_u32 s{S_PADR}, s54, {L_CNT + 240}")
    stamp(a, 5)
    a("s_waitcnt lgkmcnt(0)")
    a("s_barrier")
    if PROF and not opt("egx", 0):
        a(f"s_mov_b32 s{preg(12)}, s{S_NS}")
        a(f"s_mov_b32 s{preg(13)}, s{S_NNW}")
    a(f"s_cmp_lg_u32 s{S_NNW}, 0")
    a("s_cbranch_scc1 START")
    a("s_waitcnt vmcnt(0)")
    a("s_barrier")
    stamp(a, 6)
    a("s_branch TAIL")
    a.label("START")
    pipeline_start(a)
    cold = []
    for par in range(2):
        for rho in (0, 2, 1):
            epilogue(a, rho, par, cold)
            step_body(a, rho, "f", par, 1 - par, "n", cold)
            step_body(a, (rho + 1) % 3, "n", 1 - par, par, "e" if rho != 1 else "", cold)
    for rho in range(3):
        step_body(a, rho, "f", 0, 0, "", cold)
        step_body(a, rho, "n", 0, 0, "", cold)
    for l in cold:
        a(l)

    a.label("TAIL")
    a("s_setprio 0")
    WF, PF, D = 0, 80, 188
    if PROF == 4:
        a("v_mov_b32 v183, v219")
    stamp(a, 8, late=True)
    a(f"v_and_b32 v{T0+1}, 15, v{LANE}")
    a(f"s_lshr_b32 s56, s{S_WAVE}, 1")
    a("s_lshl_b32 s56, s56, 4")
    a(f"v_add_u32 v{T0+1}, s56, v{T0+1}")
    a(f"v_lshlrev_b32 v{T0+2}, 2, v{T0+1}")
    a(f"ds_bpermute_b32 v{T0+4}, v{T0+2}, v{NID}")
    a(f"v_lshrrev_b32 v{T0+2}, 4, v{LANE}")
    a(f"v_lshlrev_b32 v{T0+2}, 4, v{T0+2}")
    a("s_waitcnt lgkmcnt(0)")
    a(f"v_lshl_add_u32 v{T0+4}, v{T0+4}, 9, v{T0+2}")
    a(f"v_lshlrev_b32 v{T0}, 4, v{LANE}")
    a(f"s_and_b32 s54, s{S_WAVE}, 1")
    a("s_mul_i32 s55, s54, 20480")
    a(f"s_add_u32 s55, s55, {WS_WSI - WS_WTAB}")
    if NEWTAIL:
        def prework(tag):
            a(f"s_mul_i32 s56, s{S_NNW}, {P_NODE}")
            a(f"s_mul_i32 s57, s{S_NODE0}, {P_NODE}")
            a(f"s_mov_b32 s60, s{S_RB}")
            for k in range(6):
                a(f"v_cmp_gt_u32 vcc, s56, v{T0}")
                a("s_mov_b32 m0, s60")
                a("s_mov_b64 exec, vcc")
                a(f"s_cbranch_execz {tag}")
                a(f"buffer_load_dwordx4 v{T0}, s[{R_P}:{R_P+3}], s57 offen sc1 lds")
                a("s_mov_b64 exec, -1")
                a("s_add_u32 s57, s57, 1024")
                a("s_add_u32 s60, s60, 1024")
                a("s_sub_u32 s56, s56, 1024")
                a("s_max_i32 s56, s56, 0")
            a.label(tag)
            a("s_mov_b64 exec, -1")
            for f in range(20):
                if f % 4 == 0 and f:
                    a("s_add_u32 s55, s55, 4096")
                a(f"buffer_load_dwordx4 {vr(WF+4*f,4)}, v{T0}, s[{R_W}:{R_W+3}], s55 offen offset:{(f%4)*1024}")

        a(f"v_mov_b32 v{T0+5}, {L_CNT + 224}")
        a(f"v_mov_b32 v{T0+6}, 1")
        a(f"s_mul_i32 s56, s{S_NNW}, {P_NODE}")
        a(f"s_add_u32 s60, s56, s{S_RB}")
        a(f"v_add_u32 v{T0+7}, s60, v{POFF}")
        a("s_mov_b64 exec, 1")
        a(f"ds_add_rtn_u32 v{T0+6}, v{T0+5}, v{T0+6}")
        a("s_mov_b64 exec, -1")
        a(f"s_cmp_eq_u32 s{S_NNW}, 0")
        a("s_cbranch_scc1 T_NOREC")
        a("s_waitcnt vmcnt(3)")
        for i in range(3):
            a(f"ds_write_b32 v{T0+7}, v{64+i} offset:{256*i}")
        a.label("T_NOREC")
        a("s_waitcnt lgkmcnt(0)")
        a(f"v_readfirstlane_b32 s{S_OLD}, v{T0+6}")
        a(f"s_cmp_ge_u32 s{S_OLD}, {opt('tlast', 7)}")
        a("s_cbranch_scc1 T_BAR")
        if DRY:
            a("s_mov_b32 s62, 1")
            a(f"s_cmp_eq_u32 s{S_OLD}, 0")
            a("s_cbranch_scc1 T_MM")
            a.label("T_RET")
        prework("T_P1")
        a.label("T_BAR")
        a("s_barrier")
        stamp(a, 9, late=True)
        a(f"s_lshl_b32 s61, s{S_WAVE}, 10")
        a(f"s_add_u32 s61, s61, {P_HALF}")
        for k in range(5):
            if k == 4:
                a(f"s_cmp_ge_u32 s{S_WAVE}, 6")
                a("s_cbranch_scc1 NOP10")
            a("s_mov_b32 m0, s61")
            a(f"buffer_load_dwordx4 v{T0}, s[{R_P}:{R_P+3}], s61 offen sc1 lds")
            a("s_add_u32 s61, s61, 8192")
        a.label("NOP10")
        a(f"s_cmp_lt_u32 s{S_OLD}, {opt('tlast', 7)}")
        a("s_cbranch_scc1 T_DONE")
        prework("T_P2")
        a.label("T_DONE")
    else:
        a("s_waitcnt vmcnt(0)")
        for f in range(20):
            if f % 4 == 0 and f:
                a("s_add_u32 s55, s55, 4096")
            a(f"buffer_load_dwordx4 {vr(WF+4*f,4)}, v{T0}, s[{R_W}:{R_W+3}], s55 offen offset:{(f%4)*1024}")
        a("s_barrier")
        stamp(a, 9, late=True)
        a(f"s_lshl_b32 s55, s{S_WAVE}, 10")
        for k in range(10):
            if k == 9:
                a(f"s_cmp_ge_u32 s{S_WAVE}, 4")
                a("s_cbranch_scc1 NOP10")
            a("s_mov_b32 m0, s55")
            a(f"buffer_load_dwordx4 v{T0}, s[{R_P}:{R_P+3}], s55 offen sc1 lds")
            a("s_add_u32 s55, s55, 8192")
        a.label("NOP10")
    a(f"v_lshlrev_b32 v{T0+8}, 1, v{T0+4}")
    a(f"s_lshl_b32 s57, s54, 9")
    a(f"s_cmp_eq_u32 s{S_R0}, 0")
    a("s_cbranch_scc1 ZEROD")
    for i in range(8):
        a(f"buffer_load_dwordx4 {vr(D+4*i,4)}, v{T0+8}, s[{R_ACC}:{R_ACC+3}], s57 offen offset:{(i//2)*128 + (i%2)*16} sc1")
    a("s_branch HAVED")
    a.label("ZEROD")
    for i in range(32):
        a(f"v_mov_b32 v{D+i}, 0")
    a.label("HAVED")
    if NEWTAIL:
        t = T0 + 9
        a(f"s_cmp_eq_u32 s{S_NN}, {NPB}")
        a(f"s_mov_b32 s58, {-(-8*65536 // (N - 255*NPB))}")
        a(f"s_cmov_b32 s58, {-(-8*65536 // NPB)}")
        a(f"v_mul_u32_u24 v{T0+3}, s58, v{T0+1}")
        a(f"v_lshrrev_b32 v{T0+3}, 16, v{T0+3}")
        a(f"v_min_u32 v{T0+3}, 7, v{T0+3}")
        a(f"v_mad_u32_u24 v{T0+5}, v{T0+3}, s{S_NN}, 7")
        a(f"v_add_u32 v{T0+6}, s{S_NN}, v{T0+5}")
        a(f"v_lshrrev_b32 v{T0+5}, 3, v{T0+5}")
        a(f"v_lshrrev_b32 v{T0+6}, 3, v{T0+6}")
        a(f"v_lshrrev_b32 v{t}, 1, v{T0+3}")
        a(f"v_and_b32 v{T0+3}, 1, v{T0+3}")
        a(f"v_lshl_add_u32 v{t}, v{T0+3}, 2, v{t}")
        a(f"v_mul_u32_u24 v{t}, {RING_W}, v{t}")
        a(f"v_add_u32 v{t}, {L_RING}, v{t}")
        a(f"v_add_u32 v{t}, v{t}, v{T0+2}")
        a(f"v_sub_u32 v{T0+5}, v{T0+1}, v{T0+5}")
        a(f"s_movk_i32 s58, {P_NODE}")
        a(f"v_mad_u32_u24 v{T0+5}, v{T0+5}, s58, v{t}")
        a(f"v_add_u32 v{t+1}, 1, v{T0+1}")
        a(f"v_cmp_eq_u32 vcc, v{t+1}, v{T0+6}")
        a(f"v_mad_u32_u24 v{T0+6}, v{T0+1}, s58, v{T0+2}")
        a(f"v_add_u32 v{T0+6}, {P_HALF}, v{T0+6}")
        a(f"v_add_u32 v{t}, {P_NODE}, v{T0+5}")
        a(f"v_cndmask_b32 v{T0+6}, v{T0+6}, v{t}, vcc")
        a("s_lshl_b32 s54, s54, 6")
    else:
        a(f"v_mul_u32_u24 v{T0+5}, {P_NODE}, v{T0+1}")
        a(f"v_add_u32 v{T0+5}, v{T0+5}, v{T0+2}")
        a(f"v_add_u32 v{T0+6}, {P_HALF}, v{T0+5}")
        a("s_lshl_b32 s54, s54, 6")
    a("s_mov_b32 s62, 0")
    a("s_waitcnt vmcnt(0)")
    a("s_barrier")
    stamp(a, 10, late=True)
    a.label("T_MM")
    seq = []
    for comp, ts in enumerate(([P0, P1], [P2[0], P3[0], P4[0]], [P2[1], P3[1], P4[1]], [P2[2], P3[2], P4[2]])):
        for t in ts:
            for h in range(2):
                seq.append((comp, t, h))
    for i, (comp, t, h) in enumerate(seq):
        a(f"ds_read_b128 {vr(PF+4*i,4)}, v{T0+5+h} offset:{t*64}")
        if i == 14:
            a("s_waitcnt lgkmcnt(7)")
    for i, (comp, t, h) in enumerate(seq):
        if i >= 8:
            a(f"s_waitcnt lgkmcnt({21 - i})")
        for mt in range(2):
            d = vr(D + 8 * comp + 4 * mt, 4)
            a(f"v_mfma_f32_16x16x32_bf16 {d}, {vr(WF + 4*(10*mt + 2*TPATH[t] + h),4)}, {vr(PF+4*i,4)}, {d}")
    if PROF == 7:
        stamp(a, 4)
    a(f"s_or_b32 s63, s{S_LAST}, s62")
    a("s_cbranch_scc0 MORE")
    for i in range(8):
        a(f"v_mul_f32 v{i}, 0xbfb8aa3b, v{D+i}")
    for i in range(8):
        a(f"v_exp_f32 v{i}, v{i}")
    for i in range(8):
        a(f"v_add_f32 v{i}, 1.0, v{i}")
    for i in range(8):
        a(f"v_rcp_f32 v{i}, v{i}")
    a("s_cmp_lg_u32 s62, 0")
    for comp in range(4):
        if comp:
            for i in range(8):
                a(f"v_mul_f32 v{D+8*comp+i}, v{D+8*comp+i}, v{i}")
        for i in range(4):
            a(f"v_cvt_pk_bf16_f32 v{8+4*comp+i}, v{D+8*comp+2*i}, v{D+8*comp+2*i+1}")
        if DRY:
            a(f"s_cbranch_scc1 {'T_RET' if comp == 3 else 'T_S%d' % comp}")
        a(f"buffer_store_dwordx4 {vr(8+4*comp,4)}, v{T0+4}, s[{R_OUT}:{R_OUT+3}], s54 offen offset:{128*comp}{OPOL}")
        if DRY and comp < 3:
            a.label(f"T_S{comp}")
    if PROF == 7:
        stamp(a, 7)
    if PROF:
        a("s_waitcnt vmcnt(0)")
    stamp(a, 11, late=True)
    stamp(a, 15, True)
    prof_dump(a, 98, 1, 3, S_WAVE)
    if opt("amp", 0):
        a("s_cmp_lg_u32 s2, 100")
        a("s_cbranch_scc1 K2_end")
        srd(a, 4, 98, WS_PROF + 100 * 1024, 64)
        a("v_mov_b32 v0, 0")
        a("buffer_load_dword v2, v0, s[4:7], 0 offen")
        a("buffer_load_dword v3, v0, s[4:7], 0 offen offset:60")
        a("s_waitcnt vmcnt(0)")
        a("v_readfirstlane_b32 s60, v2")
        a("v_readfirstlane_b32 s61, v3")
        lo, hi = {1: ("s60", f"s{S_PROF}"), 2: (f"s{S_PROF}", f"s{S_PROF+6}"), 3: (f"s{S_PROF+6}", f"s{S_PROF+9}"),
                  4: ("s60", "s61"), 5: ("s60", "s60")}[opt("amp", 0)]
        a(f"s_sub_u32 s62, {hi}, {lo}")
        a("s_min_u32 s62, s62, 10000")
        a("s_lshl_b32 s62, s62, 2")
        a("s_add_u32 s62, s62, 1000")
        a.label("AMPL")
        a("s_memrealtime s[80:81]")
        a("s_waitcnt lgkmcnt(0)")
        a(f"s_sub_u32 s63, s80, s{S_PROF+15}")
        a("s_cmp_lt_u32 s63, s62")
        a("s_cbranch_scc1 AMPL")
    if PROF == 4:
        a("s_lshl_b32 s80, s2, 3")
        a(f"s_add_u32 s80, s80, s{S_WAVE}")
        a("s_lshl_b32 s80, s80, 8")
        a(f"s_add_u32 s80, s80, {WS_PROF + 0x200000}")
        srd(a, 4, 98, "s80", 256)
        a(f"v_lshlrev_b32 v0, 2, v{LANE}")
        a("buffer_store_dword v183, v0, s[4:7], 0 offen")
    if PROF == 3:
        a("s_load_dwordx2 s[54:55], s[0:1], 80")
        a("s_min_u32 s80, s2, 249")
        a("s_lshl_b32 s80, s80, 10")
        a(f"s_add_u32 s80, s80, {WS_PROF}")
        srd(a, 4, 98, "s80", 64)
        a("v_mov_b32 v0, 0")
        a("buffer_load_dword v2, v0, s[4:7], 0 offen")
        a("buffer_load_dword v3, v0, s[4:7], 0 offen offset:8")
        a("buffer_load_dword v4, v0, s[4:7], 0 offen offset:24")
        a("buffer_load_dword v5, v0, s[4:7], 0 offen offset:60")
        a("s_waitcnt vmcnt(0) lgkmcnt(0)")
        srd(a, 4, 54, 0, 256)
        a("v_not_b32 v2, v2")
        a("s_mov_b64 exec, 1")
        for i in range(4):
            a(f"buffer_atomic_umax v{2+i}, v0, s[4:7], 0 offen offset:{4*i}")
        a(f"v_not_b32 v2, s{S_PROF}")
        a("buffer_atomic_umax v2, v0, s[4:7], 0 offen offset:16")
        for i, st in enumerate((0, 2, 3, 4, 6, 7, 8, 9, 10, 15)):
            a(f"v_mov_b32 v{3+i}, s{S_PROF+st}")
            a(f"buffer_atomic_umax v{3+i}, v0, s[4:7], 0 offen offset:{20+4*i}")
    a("s_endpgm")
    a.label("MORE")
    for i in range(8):
        a(f"buffer_store_dwordx4 {vr(D+4*i,4)}, v{T0+8}, s[{R_ACC}:{R_ACC+3}], s57 offen offset:{(i//2)*128 + (i%2)*16}")
    a(f"s_lshl_b32 s54, s{S_WAVE}, 6")
    a(f"v_add_u32 v{TID}, s54, v{LANE}")
    a(f"s_add_u32 s{S_R0}, s{S_R0}, s{S_LEN}")
    a("s_waitcnt vmcnt(0)")
    a("s_barrier")
    a("s_branch ROUND")
    a.label("K2_end")
    a("s_endpgm")
    return a


def descriptor(name, nv, ns):
    return f""".amdhsa_kernel {name}
  .amdhsa_next_free_vgpr {nv}
  .amdhsa_next_free_sgpr {ns}
  .amdhsa_accum_offset {(nv + 3) // 4 * 4}
  .amdhsa_group_segment_fixed_size 0
  .amdhsa_kernarg_size 96
  .amdhsa_user_sgpr_count 2
  .amdhsa_user_sgpr_kernarg_segment_ptr 1
  .amdhsa_system_sgpr_workgroup_id_x 1
  .amdhsa_float_denorm_mode_32 3
.end_amdhsa_kernel
"""


def main():
    ref = open(os.path.join(os.path.dirname(os.path.abspath(__file__)), "..", "cdna_kernels", NAME + ".s.ref")).read()
    head = [l for l in ref.split("\n") if l.startswith(";") and "@launch" not in l and "Override" not in l
            and "grid=ceil" not in l]
    k1, k2 = "edge_sort_kernel", NAME + "_kernel"
    out = head + ([] if FUSED else [f"; @launch kernel={k1} grid=(255,1,1) block=(1024,1,1) lds={K1_LDS}"]) + [
        f"; @launch kernel={k2} grid=(256,1,1) block=(512,1,1) lds={K2_LDS}",
        ";",
        "; edge_sort_kernel: each workgroup sorts 3200 edges by destination bin (49 nodes) through LDS and writes",
        ";   the edge attributes, a 12-byte record (source row, node in bin, rhat) and a segment table to d_ws;",
        ";   it also splits x into two 32-channel tables and lays out the weights for the second kernel.",
        "; main kernel: one workgroup per bin. It stages the bin's edges in LDS, sorts them by node, and for each",
        ";   node and channel half accumulates T[k, a, b, c] = sum_e e[k] * (1, rhat)[a] * x[src][b, c] with MFMA",
        ";   (x rows gathered by LDS-DMA), contracts k with w_rad, then applies w_si0 / w_si1 and the gate.",
        ";   Bins that exceed the LDS capacity are processed in several rounds.",
        '.amdgcn_target "amdgcn-amd-amdhsa--gfx950"',
        ".text",
    ]
    for name, fn in ((k1, kernel1), (k2, kernel2))[FUSED:]:
        lines, nops = fn().finish()
        print(name, "instructions:", len(lines), "nops inserted:", nops, file=sys.stderr)
        out += [f".globl {name}", ".p2align 8", f".type {name},@function", f"{name}:"] + lines
    out += ['.section .rodata,"a"'] + ([] if FUSED else [".p2align 6", descriptor(k1, 96, 102)])
    out += [".p2align 6", descriptor(k2, NVGPR, 102)]
    open(sys.argv[1], "w").write("\n".join(out))


if __name__ == "__main__":
    main()
```

```python
import os
import sys

sys.path.insert(0, os.path.dirname(os.path.abspath(__file__)))
from asmlib import Asm, vr, sr

NAME = "gather_scatter__tensor_product_equiv_equiformer__graph"
N, E = 12500, 800000
CHUNK, W = 3200, 250
NPB = 49
NBIN = 256

WS_TAB = 0
WS_WTAB = 0x40000
WS_WSI = 0x48000
WS_META = 0x100000
WS_XP = 0xB00000
WS_EP = 0x1200000
WS_P = 0x2B00000
P_NODE = 784
P_HALF = NPB * P_NODE
P_WG = 0x13000
WS_ACC = 0x4000000
XHALF = N * 256

OPT = dict(a.split("=") for a in sys.argv[2:] if "=" in a)


def opt(name, default):
    return type(default)(OPT.get(name, default))


PROF = opt("prof", 0)
WS_PROF = 0x6000000
S_PROF = 82
FUSED = opt("fused", 0)


def preg(i):
    if FUSED:
        return {0: 82, 6: 83, 9: 90, 10: 91, 11: 92, 12: 93, 13: 94, 15: 95}.get(i)
    return S_PROF + i


def stamp(a, i, real=False, late=False, k1=False):
    if k1:
        i = {2: None, 4: None, 6: 10, 8: 11}[i]
        if i is None or PROF != 5:
            return
    elif PROF == 5 and i not in (0, 15, 6, 9):
        return
    if PROF and not (late and PROF == 2):
        a("s_waitcnt lgkmcnt(0)")
        a(("s_memrealtime" if real or PROF in (3, 5) else "s_memtime") + " s[80:81]")
        a("s_waitcnt lgkmcnt(0)")
        a(f"s_mov_b32 s{preg(i)}, s80")
        if PROF == 4 and i == 7:
            a("s_memrealtime s[80:81]" if opt("rt", 0) else "s_memtime s[80:81]")


def prof_dump(a, wsreg, kern, nwave_shift, wavereg):
    if PROF:
        a(f"s_lshl_b32 s80, s2, {nwave_shift}")
        a(f"s_add_u32 s80, s80, s{wavereg}")
        a("s_lshl_b32 s80, s80, 6")
        a(f"s_add_u32 s80, s80, {WS_PROF + kern * 0x100000}")
        srd(a, 4, wsreg, "s80", 64)
        a("v_mov_b32 v0, 0")
        for i in range(16):
            if preg(i) is None:
                continue
            a(f"v_mov_b32 v1, s{preg(i)}")
            a(f"buffer_store_dword v1, v0, s[4:7], 0 offen offset:{4*i}")


def srd(a, d, b, off, size):
    a(f"s_add_u32 s{d}, s{b}, {off}")
    a(f"s_addc_u32 s{d+1}, s{b+1}, 0")
    a(f"s_mov_b32 s{d+2}, {size}")
    a(f"s_mov_b32 s{d+3}, 0x20000")


def scan64(a, v):
    for sh in (1, 2, 4, 8):
        a(f"v_add_u32_dpp v{v}, v{v}, v{v} row_shr:{sh} row_mask:0xf bank_mask:0xf bound_ctrl:1")
    a(f"v_add_u32_dpp v{v}, v{v}, v{v} row_bcast:15 row_mask:0xa bank_mask:0xf")
    a(f"v_add_u32_dpp v{v}, v{v}, v{v} row_bcast:31 row_mask:0xc bank_mask:0xf")


K1_ERAW = 0
K1_MS = 102400
K1_INV = K1_MS + 38400
K1_HIST = K1_INV + 6400
K1_LDS = 152 * 1024


def prep_tables(a, ST):
    a("v_add_u32 v4, s60, v0")
    a("v_and_b32 v5, 3, v4")
    a("v_bfe_u32 v6, v4, 2, 4")
    a("v_bfe_u32 v7, v4, 6, 2")
    a("v_lshrrev_b32 v8, 8, v4")
    a("v_cmp_le_u32 vcc, 10, v8")
    a("v_cndmask_b32 v9, 0, 1, vcc")
    a("v_mul_u32_u24 v10, 10, v9")
    a("v_sub_u32 v10, v8, v10")
    a("v_lshl_add_u32 v11, v7, 2, v5")
    a("v_mul_u32_u24 v11, 320, v11")
    a("v_lshrrev_b32 v12, 1, v10")
    a("v_lshl_add_u32 v11, v12, 6, v11")
    a("v_lshl_add_u32 v11, v9, 5, v11")
    a("v_and_b32 v12, 1, v10")
    a("v_lshl_add_u32 v11, v12, 4, v11")
    a("v_add_u32 v11, v11, v6")
    a("v_lshlrev_b32 v11, 1, v11")
    a("buffer_load_ushort v13, v11, s[16:19], 0 offen")
    a("v_mov_b32 v30, 0x80000000")
    for t in range(2):
        b = 32 + 8 * t
        a(f"v_add_u32 v14, {20*t}, v8")
        a("v_mul_u32_u24 v15, 26, v14")
        a("v_lshrrev_b32 v15, 8, v15")
        a("v_mul_u32_u24 v16, 10, v15")
        a("v_sub_u32 v16, v14, v16")
        a("v_lshrrev_b32 v17, 1, v16")
        a("v_and_b32 v18, 1, v16")
        a("v_lshl_add_u32 v19, v7, 2, v5")
        a("v_lshl_add_u32 v19, v18, 5, v19")
        a("v_lshl_add_u32 v19, v17, 6, v19")
        a("v_lshrrev_b32 v20, 1, v15")
        a("v_and_b32 v21, 1, v15")
        a("v_lshrrev_b32 v22, 2, v6")
        a("v_lshlrev_b32 v22, 3, v22")
        a("v_lshl_add_u32 v22, v20, 5, v22")
        a("v_lshl_add_u32 v22, v21, 2, v22")
        a("v_and_b32 v23, 3, v6")
        a("v_add_u32 v22, v22, v23")
        a("v_lshl_add_u32 v22, v19, 6, v22")
        a("v_lshlrev_b32 v22, 1, v22")
        a("v_subrev_u32 v23, 16384, v22")
        a("v_cmp_gt_u32 vcc, 2, v17")
        a("v_cndmask_b32 v24, v30, v22, vcc")
        a("v_cndmask_b32 v25, v23, v30, vcc")
        a(f"buffer_load_ushort v{b}, v24, s[20:23], 0 offen")
        a(f"buffer_load_ushort v{b+1}, v24, s[20:23], 0 offen offset:2048")
        a(f"buffer_load_ushort v{b+2}, v25, s[24:27], 0 offen")
        a(f"buffer_load_ushort v{b+3}, v25, s[24:27], 0 offen offset:2048")
    a("v_lshlrev_b32 v4, 2, v4")
    a("s_mov_b32 s61, 20480")
    a("s_waitcnt vmcnt(0)")
    a("v_lshlrev_b32 v13, 16, v13")
    a("buffer_store_dword v13, v4, s[28:31], 0 offen" + ST)
    for t in range(2):
        b = 32 + 8 * t
        a(f"v_or_b32 v{b}, v{b}, v{b+2}")
        a(f"v_or_b32 v{b+1}, v{b+1}, v{b+3}")
        a(f"v_lshl_or_b32 v{b}, v{b+1}, 16, v{b}")
        a(f"buffer_store_dword v{b}, v4, s[32:35], {'0' if t == 0 else 's61'} offen{ST}")


def kernel1():
    a = Asm()
    NT = " nt" if opt("k1nt", 1) else ""
    ST = {0: "", 1: " nt", 2: " sc1"}[opt("k1st", 2)]
    a("s_cmp_ge_u32 s2, 255")
    a("s_cbranch_scc1 K1_end")
    a("s_load_dwordx8 s[4:11], s[0:1], 0")
    a("s_load_dwordx8 s[52:59], s[0:1], 32")
    a("s_load_dwordx2 s[14:15], s[0:1], 88")
    a("v_lshlrev_b32 v1, 4, v0")
    a("v_mul_u32_u24 v2, 24, v0")
    a("v_and_b32 v3, 63, v0")
    a("v_lshlrev_b32 v3, 4, v3")
    a("v_lshrrev_b32 v40, 6, v0")
    a("v_readfirstlane_b32 s3, v40")
    a("s_cmp_ge_u32 s2, 250")
    a("s_cbranch_scc1 K1_prep")
    stamp(a, 0, True)
    stamp(a, 1)
    a("s_mul_i32 s60, s2, 12800")
    a("s_mul_i32 s61, s2, 19200")
    a("s_mul_i32 s62, s2, 25600")
    a("s_mul_i32 s63, s2, 102400")
    a("s_mul_i32 s64, s2, 38400")
    a("s_lshl_b32 s65, s2, 10")
    a("s_waitcnt lgkmcnt(0)")
    srd(a, 16, 52, "s60", 12800)
    a(f"buffer_load_dwordx4 v[4:7], v1, s[16:19], 0 offen{NT}")
    a("v_lshlrev_b32 v41, 2, v0")
    a("v_mov_b32 v42, 0")
    a("s_cmp_ge_u32 s3, 4")
    a("s_cbranch_scc1 K1_nozero")
    a(f"v_add_u32 v41, {K1_HIST}, v41")
    a("ds_write_b32 v41, v42")
    a.label("K1_nozero")
    srd(a, 20, 10, "s60", 12800)
    srd(a, 24, 6, "s61", 19200)
    srd(a, 28, 4, "s62", 25600)
    srd(a, 32, 8, "s63", 102400)
    a("s_mov_b32 s66, 16384")
    a("s_lshl_b32 s67, s3, 10")
    kq = [int(c) for c in opt("kq", "00700")]

    def e_in(i):
        for k in range(sum(kq[:i]), sum(kq[:i + 1])):
            if k == 6:
                a("s_cmp_ge_u32 s3, 4")
                a("s_cbranch_scc1 K1_noe7")
            a("s_mov_b32 m0, s67")
            a(f"buffer_load_dwordx4 v3, s[32:35], s67 offen{NT} lds")
            a("s_add_u32 s67, s67, 16384")
            if k == 6:
                a.label("K1_noe7")

    def n_e(lo, hi):
        return min(sum(kq[:hi + 1]), 6) - min(sum(kq[:lo]), 6)

    e_in(0)
    a("s_waitcnt lgkmcnt(0)")
    a("s_barrier")
    RNT = NT if opt("rnt", 1) else ""
    a(f"buffer_load_dwordx4 v[8:11], v1, s[20:23], 0 offen{NT}")
    a(f"buffer_load_dwordx4 v[12:15], v2, s[24:27], 0 offen{RNT}")
    a(f"buffer_load_dwordx2 v[16:17], v2, s[24:27], 0 offen offset:16{RNT}")
    if opt("k1b2", 1):
        a("s_barrier")
    e_in(1)
    a(f"buffer_load_dwordx4 v[20:23], v1, s[28:31], 0 offen{NT}")
    a(f"buffer_load_dwordx4 v[24:27], v1, s[28:31], s66 offen{NT}")
    e_in(2)
    a("s_add_u32 s68, s64, %d" % WS_META)
    srd(a, 36, 14, "s68", 38400)
    a("s_add_u32 s68, s63, %d" % WS_EP)
    srd(a, 40, 14, "s68", 102400)
    srd(a, 44, 14, WS_XP, 2 * XHALF)
    srd(a, 48, 14, "s65", 1024)
    a("v_cmp_gt_u32 vcc, 800, v0")
    a("s_mov_b64 s[70:71], vcc")
    a("v_mov_b32 v43, 1")
    a(f"s_waitcnt vmcnt({5 + n_e(0, 2)})")
    stamp(a, 2)
    a("s_mov_b64 exec, s[70:71]")
    a("s_cbranch_execz K1_skip_rank")
    for i in range(4):
        a(f"v_mul_u32_u24 v{28+i}, 21400, v{4+i}")
        a(f"v_lshrrev_b32 v{28+i}, 20, v{28+i}")
        a(f"v_mul_u32_u24 v{36+i}, 49, v{28+i}")
        a(f"v_sub_u32 v{36+i}, v{4+i}, v{36+i}")
        a(f"v_lshlrev_b32 v{28+i}, 2, v{28+i}")
        a(f"v_add_u32 v{28+i}, {K1_HIST}, v{28+i}")
        a(f"ds_add_rtn_u32 v{32+i}, v{28+i}, v43")
    a.label("K1_skip_rank")
    a("s_mov_b64 exec, -1")
    a("s_waitcnt lgkmcnt(0)")
    a("s_barrier")
    stamp(a, 3)
    a("s_cmp_lg_u32 s3, 0")
    a("s_cbranch_scc1 K1_noscan")
    a(f"v_add_u32 v41, {K1_HIST}, v3")
    a("ds_read_b128 v[44:47], v41")
    a("s_waitcnt lgkmcnt(0)")
    a("v_add_u32 v49, v44, v45")
    a("v_add_u32 v50, v49, v46")
    a("v_add_u32 v51, v50, v47")
    a("v_mov_b32 v52, v51")
    scan64(a, 52)
    a("v_sub_u32 v52, v52, v51")
    a("v_add_u32 v53, v52, v44")
    a("v_add_u32 v54, v52, v49")
    a("v_add_u32 v55, v52, v50")
    a("ds_write_b128 v41, v[52:55]")
    for i in range(4):
        a(f"v_lshl_or_b32 v{56+i}, v{44+i}, 16, v{52+i}")
    a("buffer_store_dwordx4 v[56:59], v3, s[48:51], 0 offen")
    a("s_waitcnt lgkmcnt(0)")
    a.label("K1_noscan")
    e_in(3)
    a("v_lshrrev_b32 v60, 5, v0")
    a("s_mul_i32 s69, s2, 50")
    a("v_add_u32 v60, s69, v60")
    a("v_lshlrev_b32 v60, 8, v60")
    a("v_bfe_u32 v61, v0, 3, 2")
    a("v_lshl_add_u32 v60, v61, 6, v60")
    a("v_and_b32 v61, 3, v0")
    a("v_lshl_add_u32 v60, v61, 4, v60")
    a("v_bfe_u32 v61, v0, 2, 1")
    a(f"v_mul_u32_u24 v61, {XHALF}, v61")
    a("v_add_u32 v60, v60, v61")
    a("v_add_u32 v61, 8192, v60")
    a("v_cmp_gt_u32 vcc, 576, v0")
    a("v_mov_b32 v62, 0x80000000")
    a("v_cndmask_b32 v61, v62, v61, vcc")
    a("s_barrier")
    a("s_mov_b64 exec, s[70:71]")
    a("s_cbranch_execz K1_skip_scatter")
    for i in range(4):
        a(f"ds_read_b32 v{28+i}, v{28+i}")
    a(f"s_waitcnt vmcnt({2 + n_e(1, 3)})")
    a("s_mov_b32 s72, 0x80000000")
    a("s_mov_b32 s73, 0xffff0000")
    for i in range(4):
        a(f"v_lshl_or_b32 v{8+i}, v{8+i}, 8, v{36+i}")
        a(f"v_or_b32 v{8+i}, s72, v{8+i}")
    a("v_lshlrev_b32 v44, 16, v13")
    a("v_alignbit_b32 v45, v14, v13, 16")
    a("v_and_b32 v46, s73, v14")
    a("v_lshlrev_b32 v47, 16, v16")
    a("v_alignbit_b32 v48, v17, v16, 16")
    a("v_and_b32 v49, s73, v17")
    w1 = [12, 45, 15, 48]
    w2 = [44, 46, 47, 49]
    a("v_lshlrev_b32 v50, 2, v0")
    a("s_waitcnt lgkmcnt(0)")
    for i in range(4):
        a(f"v_add_u32 v{32+i}, v{32+i}, v{28+i}")
        a(f"v_mul_u32_u24 v{28+i}, 12, v{32+i}")
        a(f"v_add_u32 v{28+i}, {K1_MS}, v{28+i}")
        a(f"ds_write2_b32 v{28+i}, v{8+i}, v{w1[i]} offset0:0 offset1:1")
        a(f"ds_write_b32 v{28+i}, v{w2[i]} offset:8")
        a(f"v_lshlrev_b32 v{32+i}, 1, v{32+i}")
        a(f"v_add_u32 v{32+i}, {K1_INV}, v{32+i}")
        a(f"v_add_u32 v{52+i}, {i}, v50")
        a(f"ds_write_b16 v{32+i}, v{52+i}")
    a.label("K1_skip_scatter")
    a("s_mov_b64 exec, -1")
    a(f"s_waitcnt vmcnt({n_e(2, 3)})")
    a(f"buffer_store_dwordx4 v[20:23], v60, s[44:47], 0 offen{ST}")
    a(f"buffer_store_dwordx4 v[24:27], v61, s[44:47], 0 offen{ST}")
    e_in(4)
    a("s_waitcnt lgkmcnt(0)")
    a("s_barrier")
    stamp(a, 4)
    a(f"v_add_u32 v41, {K1_MS}, v1")
    a("ds_read_b128 v[4:7], v41")
    a("ds_read_b128 v[8:11], v41 offset:16384")
    a("ds_read_b128 v[12:15], v41 offset:32768")
    a("v_and_b32 v42, 0x3fe, v0")
    a(f"v_add_u32 v42, {K1_INV}, v42")
    for k in range(7):
        a(f"ds_read_u16 v{28+k}, v42 offset:{1024*k}")
    a("v_and_b32 v43, 1, v0")
    a("v_lshlrev_b32 v43, 4, v43")
    a("s_mov_b32 s74, 32768")
    a("s_waitcnt lgkmcnt(7)")
    a(f"buffer_store_dwordx4 v[4:7], v1, s[36:39], 0 offen{ST}")
    a(f"buffer_store_dwordx4 v[8:11], v1, s[36:39], s66 offen{ST}")
    a(f"buffer_store_dwordx4 v[12:15], v1, s[36:39], s74 offen{ST}")
    a("s_waitcnt lgkmcnt(0)")
    for k in range(7):
        a(f"v_lshl_add_u32 v{28+k}, v{28+k}, 5, v43")
    stamp(a, 5)
    a(f"s_waitcnt vmcnt({3 if kq[4] else 5})")
    a("s_barrier")
    stamp(a, 6)
    for k in range(6):
        a(f"ds_read_b128 v[{64+4*k}:{67+4*k}], v{28+k}")
    a("s_mov_b32 s75, 0")
    for k in range(6):
        a(f"s_waitcnt lgkmcnt({5-k})")
        a(f"buffer_store_dwordx4 v[{64+4*k}:{67+4*k}], v1, s[40:43], s75 offen{ST}")
        a("s_add_u32 s75, s75, 16384")
    a("s_cmp_ge_u32 s3, 4")
    a("s_cbranch_scc1 K1_fin")
    a("ds_read_b128 v[88:91], v34")
    a("s_waitcnt lgkmcnt(0)")
    a(f"buffer_store_dwordx4 v[88:91], v1, s[40:43], s75 offen{ST}")
    a.label("K1_fin")
    if opt("cpf", 2) & 4:
        a(f"s_cmp_ge_u32 s2, {opt('cpn', 8)}")
        a("s_cbranch_scc1 K1_nocpf")
        a("s_getpc_b64 s[76:77]")
        a.label("K1_here2")
        a("s_mov_b32 s78, K2_end-K1_here2")
        a("s_mov_b32 s79, 0x20000")
        a("v_lshlrev_b32 v60, 7, v0")
        a("buffer_load_dword v61, v60, s[76:79], 0 offen")
        a("s_waitcnt vmcnt(0)")
        a.label("K1_nocpf")
    stamp(a, 7)
    if PROF:
        a("s_waitcnt vmcnt(0)")
    stamp(a, 8)
    stamp(a, 15, True)
    prof_dump(a, 14, 0, 4, 3)
    a("s_endpgm")

    a.label("K1_prep")
    a("s_waitcnt lgkmcnt(0)")
    srd(a, 16, 54, 0, 16 * 320 * 2)
    srd(a, 20, 56, 0, 128 * 64 * 2)
    srd(a, 24, 58, 0, 192 * 64 * 2)
    srd(a, 28, 14, WS_WTAB, 20480)
    srd(a, 32, 14, WS_WSI, 40960)
    if opt("cpf", 2) & 2:
        a("s_getpc_b64 s[36:37]")
        a.label("K1_here")
        a("s_mov_b32 s38, K2_end-K1_here")
        a("s_mov_b32 s39, 0x20000")
        a("v_lshlrev_b32 v60, 7, v0")
        a("buffer_load_dword v61, v60, s[36:39], 0 offen")
    a("s_sub_u32 s60, s2, 250")
    a("s_lshl_b32 s60, s60, 10")
    prep_tables(a, "")
    a.label("K1_end")
    a("s_endpgm")
    return a


CAP = 3392
SLOWCAP = 256
MAXSTEPS = 142
MAXWSTEPS = 20
L_E = 0
L_RING = 32 + CAP * 32
RING_W = 6336
SUBB = 2112
L_SA = L_RING
L_SB = L_SA + MAXSTEPS * 128
L_MISC = L_SB + MAXSTEPS * 256
L_CNT = L_MISC
L_FLAG = L_MISC + 256
L_WSUM = L_MISC + 272
L_DUMMY = L_WSUM + 16
L_MAP = 94208
K2_LDS = 163840
assert L_MAP + CAP * 4 <= L_RING and L_DUMMY + 256 <= K2_LDS and L_RING + 8 * RING_W <= L_MISC

ACC = 0
WR = 88
B0 = 128
B1 = 144
GS, G0, G1, G2, N0, N2 = 160, 164, 168, 172, 176, 180
SEL = 184
M0R = 188
MBR = 198
GSP = (160, 252)
NID = 218
Y = 220
REP = 223
XA = 224
XOFF, QQ8, BAE, BAO, POFF, NST = 228, 230, 231, 232, 233, 234
U, PT, T8, EA = 236, 244, 235, 248
T0 = 236
TID, LANE = 250, 251
NVGPR = 256
XBIAS = 2048

S_WAVE = 3
R_XP, R_EP, R_MT, R_TB, R_P, R_W, R_OUT, R_ACC = 4, 8, 12, 16, 20, 24, 28, 32
S_NN, S_T, S_R0, S_LEN, S_CAP = 36, 37, 38, 39, 40
S_NODE0, S_NNW, S_STEP0, S_NS = 41, 42, 43, 44
S_D, S_REM, S_NODE, S_PHASE, S_TAB0, S_TAB1, S_RB, S_POFF = 45, 46, 47, 48, 49, 50, 51, 52
S_HI, S_SGN = 100, 101
S_MASK = 64
S_LAST = 78
S_NEND = 79
S_EM0 = 57
S_EVT = 59
S_OLD = 53
S_LEFT, S_PADR = 58, 63
S_PAT = 58
S_EGN = 63
NEWTAIL = opt('newtail', 0)
DRY = NEWTAIL and opt('dry', 0)
R_DBG = 76
R_FLG = 84
S_EB1, S_EB2, S_TAG = 88, 89, 96

PPOL = ["", " sc1", " nt", " sc0 sc1"][opt("ppol", 0)]
OPOL = ["", " sc1", " nt", " sc0 sc1"][opt("opol", 0)]

VC = opt("vc", 0)
HI = "v219" if VC else f"s{S_HI}"
SGN = f"v{TID}" if VC else f"s{S_SGN}"

TPATH = [0, 1, 2, 2, 2, 3, 3, 3, 4, 4, 4]
P0, P1 = 0, 1
P2 = [2, 3, 4]
P3 = [5, 6, 7]
P4 = [8, 9, 10]


def acc(t, cq):
    return ACC + 4 * (2 * t + cq)


def mfma_list():
    out = []
    for t, A, B, fl in ((P2[0], G0, B0, 1), (P1, G0, B0 + 8, 1), (P0, GS, B0, 1), (P3[0], GS, B0 + 8, 1),
                        (P2[2], G2, B0, 1), (P4[1], G2, B0 + 8, 1), (P2[1], G1, B0, 1), (P4[2], G1, B0 + 8, 1),
                        (P4[2], N0, B1, 0), (P4[1], N0, B1 + 8, 0), (P3[1], GS, B1, 1), (P3[2], GS, B1 + 8, 1),
                        (P4[0], N2, B1, 1), (P1, G2, B1 + 8, 0), (P1, G1, B1, 0), (P4[0], G1, B1 + 8, 0)):
        for cq in range(2):
            out.append((t, cq, A, B + 4 * cq, fl))
    if opt("chain", 1):
        n2, g2p1, g1p1, g1p4 = out[24:26], out[26:28], out[28:30], out[30:32]
        out[16], out[17] = out[17], out[16]
        out[24:32] = [g1p1[0], g2p1[0], g1p1[1], g2p1[1], n2[0], g1p4[0], n2[1], g1p4[1]]
    return out


def emit_mfma(a, m, first, p0, q0):
    t, cq, A, B, fl = m
    if A == GS:
        A = GSP[p0]
    if opt("nomfma", 0):
        return
    d = vr(acc(t, cq), 4)
    c = "0" if (first and fl) else d
    if q0:
        a(f"v_mfma_f32_16x16x16_bf16 {d}, {vr(A,2)}, {vr(B,2)}, {c}")
    else:
        a(f"v_mfma_f32_16x16x32_bf16 {d}, {vr(A,4)}, {vr(B,4)}, {c}")


def b_reads(k, pos):
    B = B0 if k < 2 else B1
    hf = k & 1
    return [f"ds_read_b64_tr_b16 {vr(B + 4*u + 2*hf, 2)}, v{BAE if u % 2 == 0 else BAO} offset:{pos*SUBB + u*32}"
            for u in range(4)]


def vmwait(n):
    return [] if opt("nowait", 0) else [f"s_waitcnt vmcnt({n})"]


def dma(k, pos):
    if opt("nodma", 0):
        return [[], [], []]
    hf, bp = k & 1, k >> 1
    so = S_TAB0 if bp == 0 else S_TAB1
    pol = ["", " sc1", " nt", " sc0 sc1", " sc0"][opt("xpol", 0)]
    return [[f"s_add_u32 m0, s{S_RB}, {pos*SUBB}"],
            [f"buffer_load_dwordx4 v{XA + 2*hf}, s[{R_XP}:{R_XP+3}], s{so} offen{pol} lds"],
            [f"buffer_load_dwordx4 v{XA + 2*hf + 1}, s[{R_XP}:{R_XP+3}], s{so} offen offset:1088{pol} lds"]]


W0_FETCH = [f"s_lshr_b32 s54, s{S_D}, 1",
            "s_set_gpr_idx_on s54, gpr_idx(SRC0)",
            f"v_mov_b32 v{REP}, v{M0R}",
            "s_set_gpr_idx_off"]
W0_REP = [f"v_mov_b32_dpp v{REP}, v{REP} row_shr:4 row_mask:0xf bank_mask:0xa",
          f"v_mov_b32_dpp v{REP}, v{REP} row_shl:4 row_mask:0xf bank_mask:0x5"]
WRAP = [f"s_mov_b32 s{S_D}, 0",
        f"s_add_u32 s{S_TAB0}, s{S_TAB0}, {XHALF}",
        f"s_add_u32 s{S_TAB1}, s{S_TAB1}, {XHALF}"]


def x_addr(q):
    return f"v_add_u32_dpp v{XA+q}, v{REP}, v{XOFF + (q & 1)} quad_perm:[{q},{q},{q},{q}] row_mask:0xf bank_mask:0xf"


META_SET = [f"s_set_gpr_idx_on s{S_D}, gpr_idx(SRC1)",
            f"v_mad_u32_u16 v{T8}, 8, v{MBR+1}, 0",
            f"v_lshlrev_b32 v{Y}, 16, v{MBR}",
            f"v_and_b32 v{Y+1}, {HI}, v{MBR}",
            f"v_and_b32 v{Y+2}, {HI}, v{MBR+1}",
            "s_set_gpr_idx_off"]


def e_addr(p):
    return [f"v_add_u32_dpp v{EA+h}, v{T8}, v{QQ8} quad_perm:[{2*p+h},{2*p+h},{2*p+h},{2*p+h}] "
            "row_mask:0xf bank_mask:0xf" for h in range(2)]


def e_reads(dst):
    return [f"ds_read_b64_tr_b16 {vr(dst + 2*h, 2)}, v{EA+h}" for h in range(2)]


def unpack_valu(aa, p):
    return [f"v_lshlrev_b32 v{U+2*aa}, 16, v{GSP[p]+aa}", f"v_and_b32 v{U+2*aa+1}, {HI}, v{GSP[p]+aa}"]


def gb(j, aa, p):
    if opt("nog", 0):
        return []
    hf, rl = aa >> 1, 2 * (aa & 1)
    pl = PT + 2 * (aa & 1)
    return [f"v_mul_f32_dpp v{pl}, v{Y+j}, v{U+2*aa} row_newbcast:{4*rl+2*p+hf} row_mask:0xf bank_mask:0xf",
            f"v_mul_f32_dpp v{pl+1}, v{Y+j}, v{U+2*aa+1} row_newbcast:{4*rl+4+2*p+hf} row_mask:0xf bank_mask:0xf",
            f"v_cvt_pk_bf16_f32 v{(G0, G1, G2)[j]+aa}, v{pl}, v{pl+1}"]


def neg(dst, src):
    return [f"v_xor_b32 v{dst+i}, {SGN}, v{src+i}" for i in range(4)]


SHORT = opt("short", 0)


def body_name(rho, kind, p0, p1):
    return f"S{rho}{kind}{p0}{p1}"


def goto_next(a, rho, kind, p1, fall=False):
    if p1 == 0:
        a(f"s_cmp_eq_u32 s{S_D}, 0")
        a(f"s_cbranch_scc1 {body_name(rho, kind, 0, 0)}")
    if not fall:
        a(f"s_branch {body_name(rho, kind, p1, 1 - p1)}")


def issue_cost(l):
    op = l.split()[0]
    if op.endswith(":"):
        return 0
    if op.startswith("v_"):
        return 5.3 if "_dpp" in op or op.startswith(("v_cvt_pk", "v_mad")) else 4.2
    return {"d": 8, "b": 14}.get(op[0], 4.1)


def step_body(a, rho, kind, p0, p1, fall, cold):
    tag = body_name(rho, kind, p0, p1)
    first = kind == "f"
    x = 3 if first else 0
    p = lambda k: (rho + k) % 3
    F = [[] for _ in range(32)]

    def event(slot, n, k, pos):
        F[slot] += vmwait(n)
        for i, r in enumerate(b_reads(k, pos)):
            F[slot + i].append(r)

    def refill(slot, k, pos):
        d = dma(k, pos)
        F[slot - 1] += d[0]
        F[slot] += [f"WAIT {k}"] + d[1]
        F[slot + 1] += d[2]

    event(0, 4 + x, 2, p(2))
    refill(5, 1, p(2))
    event(8, 4 + x, 3, p(0))
    refill(13, 2, p(0))
    event(16, 4 + x, 0, p(1))
    refill(21, 3, p(1))
    event(24, 4, 1, p(2))
    refill(29, 0, p(2))
    F[31] += [f"s_sub_u32 s{S_REM}, s{S_REM}, 1"]
    if PROF == 4:
        F[30] += ["s_memrealtime s[80:81]" if opt("rt", 0) else "s_memtime s[80:81]"]
        F[7] += ["s_mov_b32 m0, s96", "s_add_u32 s96, s96, 1", "v_writelane_b32 v219, s80, m0"]

    qb = 1 - p0
    n0, n2 = neg(N0, G0), neg(N2, G2)
    ea, er = e_addr(p1), e_reads(GSP[qb])
    step = [f"s_add_u32 s{S_D}, s{S_D}, 1", f"s_cmp_lt_u32 s{S_D}, s{S_NS}", f"s_cbranch_scc0 {tag}_w"]
    if p1 == 1:
        fetch = [step + [f"{tag}_b:"] + W0_FETCH]
        rep = [[W0_REP[0]]]
        cold += [f"{tag}_w:"] + WRAP + [f"s_branch {tag}_b"]
    else:
        fetch = [step + W0_FETCH + ["FILL", W0_REP[1], f"{tag}_b:"]]
        rep = []
        cold += [f"{tag}_w:"] + WRAP + W0_FETCH + ["FILL", W0_REP[0], f"s_branch {tag}_b"]
    one = lambda lst: [[l] for l in lst]
    g0 = gb(0, 0, p1) + gb(0, 1, p1) + gb(0, 2, p1) + gb(0, 3, p1)
    g2 = gb(2, 0, p1) + gb(2, 1, p1)
    V = [(0, 6, g) for g in one(gb(2, 2, p0) + gb(2, 3, p0))]
    V += [(0, 10, g) for g in one(gb(1, 0, p0) + gb(1, 1, p0) + gb(1, 2, p0) + gb(1, 3, p0))]
    if p1 == 0:
        V += [(7, 11, META_SET)]
    V += [(0, 14, g) for g in one(n0[:2])]
    V += [(0, 14, [ea[0]]), (0, 14, [ea[1]]), (11, 15, [er[0]]), (11, 15, [er[1]])]
    V += [(0, 14, g) for g in one(n0[2:])]
    V += [(0, 22, g) for g in one(n2)]
    up = sum((unpack_valu(aa, qb) for aa in range(4)), [])
    V += [(opt("upe", 15), 22, ["WAIT e", up[0]])] + [(0, 24, g) for g in one(up[1:])]
    nb = opt("nb", 7)
    V += [(16, 30, g) for g in one(g0[:nb])]
    V += [(22, 26, g) for g in fetch] + [(0, 30, [g0[nb]])] + [(0, 27, g) for g in rep]
    V += [(0, 30, g) for g in one(g0[nb+1:nb+3])]
    V += [(0, 28, [x_addr(0)]), (0, 28, [x_addr(1)])]
    V += [(0, 30, g) for g in one(g0[nb+3:])]
    V += [(0, 31, [x_addr(2)]), (0, 31, [x_addr(3)])]
    if qb != p1:
        V += [(24, 31, [f"v_mov_b32 v{GSP[p1]+i}, v{GSP[qb]+i}" for i in range(4)])]
    V += [(0, 31, g) for g in one(g2[:2])] + [(27, 31, [g2[2]])] + [(27, 31, g) for g in one(g2[3:])]
    filler = g0[nb] if p1 == 0 else None
    if filler:
        V = [v for v in V if v[2] != [filler]]
    cost = lambda grp: sum(issue_cost(l) for l in grp)
    total = sum(cost(f) for f in F) + sum(cost(v[2]) for v in V)
    out, cum, i = [], 0.0, 0
    for sl in range(32):
        cum += cost(F[sl])
        mine = []
        while i < len(V):
            e, late, grp = V[i]
            must = any(V[j][1] <= sl for j in range(i, len(V)))
            if sl < e:
                assert not must, (tag, sl, grp)
                break
            if not must and cum + cost(grp) / 2 > total * (sl + 1) / 32:
                break
            mine += grp
            cum += cost(grp)
            i += 1
        tail = [l for l in F[sl] if l.startswith("s_sub")]
        out.append(mine[:1] + [l for l in F[sl] if l not in tail] + mine[1:] + tail
                   if mine and not mine[0].startswith(("s_", "WAIT", "ds_")) else
                   [l for l in F[sl] if l not in tail] + mine + tail)
    assert i == len(V)
    if opt("sched", 0) == 0:
        F = [[] for _ in range(32)]

        def spread(slot, lst, per=2):
            for i, l in enumerate(lst):
                if l is not None:
                    F[slot + i // per].append(l)

        def event2(slot, n, k, pos):
            r = b_reads(k, pos)
            F[slot] += vmwait(n) + r[:2]
            F[slot + 1] += r[2:]

        spread(0, gb(2, 2, p0) + gb(2, 3, p0) + gb(1, 0, p0) + gb(1, 1, p0) + gb(1, 2, p0) + gb(1, 3, p0))
        event2(0, 4 + x, 2, p(2))
        refill(4, 1, p(2))
        event2(8, 4 + x, 3, p(0))
        if p1 == 0:
            F[9] += META_SET
            spread(10, n0[:2] + ea)
            spread(13, n0[2:] + n2)
        else:
            spread(9, n0[:2] + ea + n0[2:])
            spread(13, n2)
        refill(12, 2, p(0))
        F[13] += er
        event2(16, 4 + x, 0, p(1))
        F[17] += ["WAIT e"]
        spread(17, up)
        refill(20, 3, p(1))
        g = g0 + g2
        filler = g[0] if p1 == 0 else None
        F[21] += fetch[0]
        if p1 == 1:
            F[22] += rep[0] + [g[0]]
        spread(23 - (p1 == 0), g[1:3], 2 if p1 == 1 else 1)
        spread(24, [x_addr(0), g[3], x_addr(1), g[4]] + g[5:9] + [x_addr(2), g[9], x_addr(3)], 2)
        spread(28, g[10:12], 1)
        spread(29, g[12:], 2)
        if qb != p1:
            F[24] += [f"v_mov_b32 v{GSP[p1]+i}, v{GSP[qb]+i}" for i in range(4)]
        event2(24, 4, 1, p(2))
        refill(28, 0, p(2))
        if PROF == 4:
            F[29] += ["s_memrealtime s[80:81]" if opt("rt", 0) else "s_memtime s[80:81]"]
            F[6] += ["s_mov_b32 m0, s96", "s_add_u32 s96, s96, 1", "v_writelane_b32 v219, s80, m0"]
        if PROF == 6 and first:
            F[6] += ["s_sub_u32 s62, s62, s80", f"s_add_u32 s{S_PROF+14}, s{S_PROF+14}, s62"]
        F[31] += [f"s_sub_u32 s{S_REM}, s{S_REM}, 1"]
        out = F
    flat = [(sl, l) for sl in range(32) for l in out[sl]]
    need = {"1": b_reads(2, p(2)), "2": b_reads(3, p(0)), "3": b_reads(0, p(1)), "0": None, "e": er}
    a.label(tag)
    ml = mfma_list()
    for sl in range(32):
        emit_mfma(a, ml[sl], first, p0, 0)
        for l in out[sl]:
            if l.startswith("WAIT"):
                pos = flat.index((sl, l))
                ds = [y for _, y in flat[:pos] if y.startswith("ds_")]
                want = need[l.split()[1]]
                n = 0 if want is None else len(ds) - 1 - max(k for k, y in enumerate(ds) if y in want)
                assert want is None or all(w in ds for w in want)
                l = f"s_waitcnt lgkmcnt({n})"
            if l == "FILL":
                l = filler
            if opt("nods", 0) and (l.startswith("ds_") or l.startswith("s_waitcnt lgkm")):
                continue
            if opt("novalu", 0) and l.startswith("v_") and not l.startswith(("v_writelane", "v_mfma")):
                continue
            a(l)
    for k, l in enumerate(cold):
        if l == "FILL":
            cold[k] = filler
    nr = (rho + 1) % 3
    if fall == "n":
        a(f"s_cbranch_scc1 EP{nr}{p1}")
        goto_next(a, nr, "n", p1, True)
    else:
        if p1 == 1:
            a(f"s_cbranch_scc0 {body_name(nr, 'n', 1, 0)}")
        else:
            a(f"s_cbranch_scc0 {tag}_c")
            cold += [f"{tag}_c:", f"s_cmp_lg_u32 s{S_D}, 0", f"s_cbranch_scc1 {body_name(nr, 'n', 0, 1)}",
                     f"s_branch {body_name(nr, 'n', 0, 0)}"]
        if fall != "e":
            a(f"s_branch EP{nr}{p1}")


def node_steps(lane):
    return [f"v_readlane_b32 s{S_REM}, v{NST}, s{lane}"]


def load_w(a, h):
    a(f"s_mov_b32 s57, {10240*h}")
    a(f"v_lshlrev_b32 v67, 4, v{LANE}")
    for pc in range(10):
        if pc % 4 == 0 and pc:
            a("s_add_u32 s57, s57, 4096")
        a(f"buffer_load_dwordx4 {vr(WR+4*pc,4)}, v67, s[{R_W}:{R_W+3}], s57 offen offset:{(pc%4)*1024}")


def pipeline_start(a):
    def run(lst):
        for l in lst:
            a(l)

    def dma_now(k, pos):
        for g in dma(k, pos):
            run(g)

    if VC:
        a("v_mov_b32 v219, 0xffff0000")
        a(f"v_mov_b32 v{TID}, 0x80008000")
    run(W0_FETCH + [W0_REP[0]] + [x_addr(q) for q in range(4)])
    dma_now(0, 0)
    dma_now(1, 1)
    dma_now(2, 2)
    run(META_SET + e_addr(0))
    a(f"s_waitcnt vmcnt({0 if opt('nodma', 0) else 6})")
    a("s_barrier")
    stamp(a, 6)
    run(e_reads(GSP[0]))
    run(["s_waitcnt vmcnt(4)"] + b_reads(0, 0) + ["s_waitcnt lgkmcnt(0)"])
    dma_now(3, 0)
    for aa in range(4):
        run(unpack_valu(aa, 0))
    run([f"s_mov_b32 s{S_D}, 1", f"s_cmp_lt_u32 s{S_D}, s{S_NS}", "s_cbranch_scc0 I_w"] + W0_FETCH + [W0_REP[1]])
    a("s_branch I_b")
    run(["I_w:"] + WRAP + W0_FETCH + [W0_REP[0], "I_b:"])
    run([x_addr(q) for q in range(4)])
    run(["s_waitcnt vmcnt(4)"] + b_reads(1, 1))
    run(gb(0, 0, 0) + gb(0, 1, 0) + gb(0, 2, 0) + gb(0, 3, 0) + gb(2, 0, 0) + gb(2, 1, 0))
    if PROF == 6:
        a("s_mov_b32 s62, 0")
        a("s_mov_b32 s80, 0")
        a(f"s_mov_b32 s{S_PROF+14}, 0")
    if PROF == 4:
        a("s_memrealtime s[80:81]" if opt("rt", 0) else "s_memtime s[80:81]")
        a("s_mov_b32 s96, 0")
        a("v_mov_b32 v219, 0")
    a("s_waitcnt lgkmcnt(0)")
    dma_now(0, 1)
    load_w(a, 0)
    if opt("prio", 3) == 3:
        pat = opt("pat", "111110101010")
        a(f"s_mov_b32 s{S_PAT}, {int(pat[::-1], 2)}")
        a(f"s_cmp_eq_u32 s{S_NNW}, 7")
        a(f"s_cmov_b32 s{S_PAT}, {int(opt('pat7', '11111101010100')[::-1], 2)}")
        a(f"s_setprio {2 * int(pat[0])}")
    if opt("prio", 3) in (1, 3):
        a(f"s_cmp_lt_u32 s{S_WAVE}, 4")
        a("s_cbranch_scc1 I_p")
        a("s_setprio 1")
        a.label("I_p")
    goto_next(a, 0, "f", 0)


def epilogue(a, rho, p1, cold):
    tag = f"EP{rho}{p1}"
    a.label(tag)
    if PROF == 6:
        a("s_memtime s[80:81]")
    order = [P2[0], P0, P3[0], P2[2], P2[1], P4[2], P4[1], P3[1], P3[2], P1, P4[0]]
    book = [f"s_mul_i32 s55, s{S_NODE}, {P_NODE}",
            f"s_add_u32 s55, s55, s{S_POFF}",
            f"s_add_u32 s{S_NODE}, s{S_NODE}, 1",
            f"s_cmp_lt_u32 s{S_NODE}, s{S_NEND}",
            f"s_cselect_b32 s56, s{S_NODE}, -2",
            f"s_cselect_b32 s{S_NODE}, s{S_NODE}, s{S_NODE0}",
            *node_steps(S_NODE),
            *([f"s_lshl1_add_u32 s54, s{S_REM}, 2", f"s_sub_u32 s{S_LEFT}, s{S_LEFT}, s54"]
              if opt("prio", 3) == 2 else []),
            f"s_cmp_ge_u32 s56, s{S_EVT}"]
    if opt("prio", 3) == 2:
        a(f"v_mov_b32 v{B1+12}, s{S_PADR}")
        a(f"v_mov_b32 v{B1+13}, s{S_LEFT}")
        a(f"ds_wrxchg_rtn_b32 v{B1+14}, v{B1+12}, v{B1+13}")
    EPP = opt("epp", 0)

    def pattern_prio():
        if EPP:
            a("s_setprio 1")
        a(f"s_cmp_lt_u32 s{S_WAVE}, 4")
        a(f"s_cbranch_scc0 {tag}_p")
        a(f"s_lshr_b32 s{S_PAT}, s{S_PAT}, 1")
        a(f"s_bitcmp1_b32 s{S_PAT}, 0")
        a("s_setprio 0")
        a(f"s_cbranch_scc0 {tag}_p")
        a("s_setprio 2")
        a.label(f"{tag}_p")

    EG = opt("eg", 0)
    if opt("prio", 3) == 3:
        if EG:
            a(f"s_cmp_ge_u32 s{S_NODE}, s{S_EGN}")
            a(f"s_cbranch_scc1 {tag}_eg")
            cold += [f"{tag}_eg:",
                     f"s_sub_u32 s54, s{S_NS}, s{S_D}",
                     f"s_cmp_ge_u32 s{S_TAB0}, {2*XHALF}",
                     "s_cselect_b32 s54, 0, s54",
                     f"s_lshr_b32 s57, s{S_WAVE}, 2",
                     "s_lshl1_add_u32 s54, s54, s57",
                     "s_add_u32 s54, s54, 2",
                     f"s_and_b32 s57, s{S_WAVE}, 3",
                     f"s_lshl2_add_u32 s57, s57, {L_CNT + 240}",
                     f"v_mov_b32 v{B1+12}, s57",
                     f"v_mov_b32 v{B1+13}, s54",
                     f"ds_wrxchg_rtn_b32 v{B1+14}, v{B1+12}, v{B1+13}",
                     "s_waitcnt lgkmcnt(0)",
                     f"v_readfirstlane_b32 s57, v{B1+14}",
                     "s_cmp_eq_u32 s57, 0",
                     "s_cselect_b32 s57, 1000, s57",
                     "s_xor_b32 s55, s57, s54",
                     "s_bitcmp1_b32 s55, 0",
                     "s_cselect_b32 s55, 1, 0",
                     "s_cmp_eq_u32 s57, 1000",
                     "s_cselect_b32 s55, 1, s55",
                     "s_cmp_eq_u32 s55, 0",
                     f"s_cbranch_scc1 {tag}_p",
                     "s_cmp_gt_u32 s54, s57",
                     "s_setprio 0",
                     f"s_cbranch_scc0 {tag}_p",
                     "s_setprio 3",
                     f"s_branch {tag}_p"]
        if EPP:
            a(f"s_setprio {3 if EPP == 1 else 0}")
        else:
            pattern_prio()
    if opt("prio", 3) == 1:
        a(f"s_cmp_lt_u32 s{S_WAVE}, 4")
        a(f"s_cbranch_scc0 {tag}_p")
        a(f"s_setprio {2 if int(opt('prpat', '110110')[2 * rho + p1]) else 0}")
        a.label(f"{tag}_p")
    fb = []
    if opt("prio", 3) == 2:
        fb = ["s_waitcnt lgkmcnt(0)",
              f"v_readfirstlane_b32 s57, v{B1+14}",
              f"s_xor_b32 s54, s57, s{S_LEFT}",
              "s_bitcmp1_b32 s54, 0",
              f"s_cbranch_scc0 {tag}_p",
              f"s_cmp_gt_u32 s{S_LEFT}, s57",
              "s_setprio 0",
              f"s_cbranch_scc0 {tag}_p",
              "s_setprio 2",
              f"{tag}_p:"]
    for t in (order if opt("noep", 0) < 2 else []):
        pth = TPATH[t]
        for r in range(0 if opt("noep", 0) else 4):
            for cq in range(2):
                d, w = acc(t, cq), WR + 4 * (2 * pth + cq)
                if r == 0:
                    a(f"v_mul_f32 v{d}, v{d}, v{w}")
                else:
                    a(f"v_fmac_f32 v{d}, v{d+r}, v{w+r}")
        n = "-" if t == P4[2] else ""
        a(f"v_cvt_pk_bf16_f32 v{B1+t}, {n}v{acc(t,0)}, {n}v{acc(t,1)}")
        if t == P0:
            a(f"v_mov_b32 v{B1+11}, 0")
        if t == P3[0]:
            for l in fb:
                a(l)
        if t == P1:
            a(f"v_mfma_f32_16x16x32_bf16 {vr(20,4)}, {vr(SEL,4)}, {vr(B1+4,4)}, 0")
    if opt("prio", 3) == 3 and EPP:
        pattern_prio()
    a(book[0])
    a(f"v_mfma_f32_16x16x32_bf16 {vr(16,4)}, {vr(SEL,4)}, {vr(B1,4)}, 0")
    a(f"v_mfma_f32_16x16x32_bf16 {vr(24,4)}, {vr(SEL,4)}, {vr(B1+8,4)}, 0")
    a(f"v_cvt_pk_bf16_f32 v65, v20, v21")
    for l in book[1:]:
        a(l)
    a(f"buffer_store_dword v65, v{POFF}, s[{R_P}:{R_P+3}], s55 offen offset:256{PPOL}")
    for i in (0, 2):
        a(f"v_cvt_pk_bf16_f32 v{64+i}, v{16+4*i}, v{17+4*i}")
    for i in (0, 2):
        a(f"buffer_store_dword v{64+i}, v{POFF}, s[{R_P}:{R_P+3}], s55 offen offset:{256*i}{PPOL}")
    if opt("egx", 0):
        a("s_cselect_b32 s57, 1, 0")
        a(f"s_cmp_lg_u32 s{S_PHASE}, 0")
        a(f"s_cbranch_scc1 {tag}_noeg")
        for i in range(2):
            a("v_mul_lo_u32 v218, v218, s97")
            a("v_add_u32 v218, 12345, v218")
            a("v_mul_hi_u32 v67, v218, s96")
            a("v_lshlrev_b32 v67, 5, v67")
            a(f"s_mov_b32 m0, {L_DUMMY}")
            a(f"buffer_load_dword v67, s[92:95], 0 offen{['', ' nt', ' sc1'][opt('egx', 0) - 1]} lds")
        a.label(f"{tag}_noeg")
        a("s_cmp_lg_u32 s57, 0")
    if PROF == 6:
        a("s_memtime s[62:63]")
    a(f"s_cbranch_scc1 {tag}_evt")
    a.label(f"{tag}_go")
    goto_next(a, rho, "f", p1, True)
    c = Asm()
    c.label(f"{tag}_evt")
    c("s_cmp_eq_u32 s56, -2")
    c(f"s_cbranch_scc1 {tag}_end")
    c(f"s_mov_b32 s{S_EVT}, -2")
    c("s_and_b32 s54, s2, 31")
    c("s_lshl_b32 s54, s54, 3")
    c(f"s_add_u32 s54, s54, s{S_WAVE}")
    c(f"s_mul_i32 s54, s54, {98*128}")
    c(f"s_add_u32 s54, s54, {XHALF + XBIAS}")
    c(f"v_lshlrev_b32 v67, 7, v{LANE}")
    c(f"s_mov_b32 m0, {L_DUMMY}")
    if opt("pfm", 64) < 64:
        c(f"s_bfm_b64 exec, {opt('pfm', 64)}, 0")
    c(f"buffer_load_dword v67, s[{R_XP}:{R_XP+3}], s54 offen lds")
    c("s_mov_b64 exec, -1")
    c(f"s_branch {tag}_go")
    c.label(f"{tag}_end")
    c(f"s_cmp_lg_u32 s{S_PHASE}, 0")
    c("s_cbranch_scc1 TAIL")
    if PROF not in (6, 7):
        stamp(c, 7, late=True)
    c(f"s_mov_b32 s{S_EVT}, -2")
    if opt("otlb", 0):
        c("v_mov_b32 v67, 0")
        c(f"s_mov_b32 m0, {L_DUMMY}")
        c(f"buffer_load_dword v67, s[{R_OUT}:{R_OUT+3}], 0 offen lds")
    if opt("eg", 0):
        c(f"s_sub_u32 s{S_EGN}, s{S_NEND}, {opt('eg', 0) + 1}")
        c(f"s_max_i32 s{S_EGN}, s{S_EGN}, 0")
    c(f"s_mov_b32 s{S_PHASE}, 1")
    c(f"s_mov_b32 s{S_POFF}, {P_HALF}")
    load_w(c, 1)
    c(f"s_branch {tag}_go")
    cold += c.lines


NREP = opt("nrep", 16)
WS_FLAG = 0x60000


def get_nonce(a, tag):
    a("s_mov_b32 s62, 0x100000")
    a("v_mov_b32 v111, 0")
    a.label(f"{tag}_l")
    a(f"buffer_load_dword v110, v111, s[{R_DBG}:{R_DBG+3}], 0 offen sc1")
    a("s_sub_u32 s62, s62, 1")
    a(f"s_cbranch_scc1 {tag}_d")
    a("s_waitcnt vmcnt(0)")
    a(f"v_readfirstlane_b32 s{S_TAG}, v110")
    a(f"s_cmp_eq_u32 s{S_TAG}, 0")
    a(f"s_cbranch_scc1 {tag}_l")
    a.label(f"{tag}_d")


def signal(a, which, tag, wave=0):
    a(f"s_cmp_lg_u32 s{S_WAVE}, {wave}")
    a(f"s_cbranch_scc1 {tag}")
    a(f"s_cmp_lg_u32 s{S_TAG}, 0")
    a(f"s_cbranch_scc1 {tag}_n_d")
    get_nonce(a, tag + "_n")
    a("v_and_b32 v111, 63, v0")
    a("v_lshlrev_b32 v111, 10, v111")
    a(f"v_mov_b32 v110, s{S_TAG}")
    a("s_lshl_b32 s62, s2, 2")
    a(f"s_add_u32 s62, s62, {which * NREP * 1024}")
    a(f"s_bfm_b64 exec, {NREP}, 0")
    a(f"buffer_store_dword v110, v111, s[{R_FLG}:{R_FLG+3}], s62 offen sc1")
    a("s_mov_b64 exec, -1")
    a.label(tag)


def flag_load(a, which):
    a(f"s_and_b32 s62, s2, {NREP - 1}")
    a("s_lshl_b32 s62, s62, 10")
    a(f"s_add_u32 s62, s62, {which * NREP * 1024}")
    a(f"v_lshlrev_b32 v111, 4, v{LANE}")
    a(f"buffer_load_dwordx4 v[112:115], v111, s[{R_FLG}:{R_FLG+3}], s62 offen sc1")


def flag_test(a):
    a(f"v_xor_b32 v112, s{S_TAG}, v112")
    a(f"v_xor_b32 v113, s{S_TAG}, v113")
    a(f"v_xor_b32 v114, s{S_TAG}, v114")
    a(f"v_xor_b32 v115, s{S_TAG}, v115")
    a("v_or3_b32 v112, v112, v113, v114")
    a("v_or_b32 v112, v112, v115")
    a("v_cmp_ne_u32 vcc, 0, v112")
    a("s_cmp_eq_u64 vcc, 0")


def poll(a, which, tag):
    a(f"s_cmp_lg_u32 s{S_WAVE}, 0")
    a(f"s_cbranch_scc1 {tag}_d")
    a("s_mov_b32 s61, 0x100000")
    a.label(f"{tag}_l")
    flag_load(a, which)
    a("s_sub_u32 s61, s61, 1")
    a(f"s_cbranch_scc1 {tag}_d")
    a("s_waitcnt vmcnt(0)")
    flag_test(a)
    a(f"s_cbranch_scc1 {tag}_d")
    if opt("slp", 4):
        a(f"s_sleep {opt('slp', 4)}")
    a(f"s_branch {tag}_l")
    a.label(f"{tag}_d")


def part1(a):
    NT, ST = " nt", " sc1"
    D, SRC, RH, X, BA, RK, DL = 4, 12, 20, 32, 48, 56, 64
    a("s_load_dwordx8 s[4:11], s[0:1], 0")
    a("s_load_dwordx8 s[52:59], s[0:1], 32")
    a("s_load_dwordx4 s[12:15], s[0:1], 80")
    a("v_lshlrev_b32 v1, 4, v0")
    a("v_mul_u32_u24 v2, 24, v0")
    a("v_and_b32 v3, 63, v0")
    a("v_lshlrev_b32 v3, 4, v3")
    a("v_lshrrev_b32 v72, 6, v0")
    a(f"v_readfirstlane_b32 s{S_WAVE}, v72")
    a("s_mul_i32 s60, s2, 12800")
    a("s_mul_i32 s61, s2, 19200")
    a("s_mul_i32 s62, s2, 25600")
    a("s_mul_i32 s63, s2, 102400")
    a("s_mul_i32 s64, s2, 38400")
    a("s_lshl_b32 s65, s2, 10")
    a("s_mov_b32 s66, 8192")
    a("s_waitcnt lgkmcnt(0)")
    srd(a, R_DBG, 12, 0, 256)
    srd(a, R_FLG, 14, WS_FLAG, 2 * NREP * 1024)
    a(f"v_and_b32 v{LANE}, 63, v0")
    a(f"s_or_b32 s74, s2, s{S_WAVE}")
    a("s_cbranch_scc1 P1_notag")
    a("s_memrealtime s[74:75]")
    a("s_waitcnt lgkmcnt(0)")
    a("s_or_b32 s74, s74, 1")
    a("v_mov_b32 v110, s74")
    a("v_mov_b32 v111, 0")
    a("s_mov_b64 exec, 1")
    a(f"buffer_store_dword v110, v111, s[{R_DBG}:{R_DBG+3}], 0 offen sc1")
    a("s_mov_b64 exec, -1")
    a.label("P1_notag")
    a(f"s_mov_b32 s{S_TAG}, 0")
    a("s_cmp_ge_u32 s2, 250")
    a("s_cbranch_scc1 P1_prep")
    srd(a, 16, 52, "s60", 12800)
    a(f"buffer_load_dwordx4 {vr(D,4)}, v1, s[16:19], 0 offen{NT}")
    a(f"buffer_load_dwordx4 {vr(D+4,4)}, v1, s[16:19], s66 offen{NT}")
    a("v_lshlrev_b32 v73, 2, v0")
    a("v_mov_b32 v74, 0")
    a(f"s_cmp_ge_u32 s{S_WAVE}, 4")
    a("s_cbranch_scc1 P1_nozero")
    a(f"v_add_u32 v73, {K1_HIST}, v73")
    a("ds_write_b32 v73, v74")
    a.label("P1_nozero")
    srd(a, 20, 10, "s60", 12800)
    srd(a, 24, 6, "s61", 19200)
    srd(a, 28, 4, "s62", 25600)
    srd(a, 32, 8, "s63", 102400)
    a("s_mov_b32 s69, 12288")
    a(f"s_lshl_b32 s67, s{S_WAVE}, 10")
    a("s_waitcnt lgkmcnt(0)")
    a("s_barrier")
    a(f"buffer_load_dwordx4 {vr(SRC,4)}, v1, s[20:23], 0 offen{NT}")
    a(f"buffer_load_dwordx4 {vr(SRC+4,4)}, v1, s[20:23], s66 offen{NT}")
    for r, so in ((0, "0"), (1, "s69")):
        a(f"buffer_load_dwordx4 {vr(RH+6*r,4)}, v2, s[24:27], {so} offen{NT}")
        a(f"buffer_load_dwordx2 {vr(RH+6*r+4,2)}, v2, s[24:27], {so} offen offset:16{NT}")
    a("s_mov_b32 s68, 0")
    for k in range(4):
        a(f"buffer_load_dwordx4 {vr(X+4*k,4)}, v1, s[28:31], s68 offen{NT}")
        a("s_add_u32 s68, s68, 8192")
    kb = [int(c, 16) for c in opt("kb", "d000")]

    def e_in(i):
        for k in range(sum(kb[:i]), sum(kb[:i + 1])):
            if k == 12:
                a(f"s_cmp_ge_u32 s{S_WAVE}, 4")
                a("s_cbranch_scc1 P1_noe13")
            a("s_mov_b32 m0, s67")
            a(f"buffer_load_dwordx4 v3, s[32:35], s67 offen{NT} lds")
            a("s_add_u32 s67, s67, 8192")
            if k == 12:
                a.label("P1_noe13")

    def n_e(i):
        return min(sum(kb[:i + 1]), 12)

    e_in(0)
    a("s_add_u32 s68, s64, %d" % WS_META)
    srd(a, 36, 14, "s68", 38400)
    a("s_add_u32 s68, s63, %d" % WS_EP)
    srd(a, 40, 14, "s68", 102400)
    srd(a, 44, 14, WS_XP, 2 * XHALF)
    srd(a, 48, 14, "s65", 1024)
    a("v_cmp_gt_u32 vcc, 288, v0")
    a("s_mov_b64 s[70:71], vcc")
    a("v_mov_b32 v75, 1")
    a(f"s_waitcnt vmcnt({10 + n_e(0)})")
    stamp(a, 2, k1=True)
    for i in range(8):
        if i == 4:
            a("s_mov_b64 exec, s[70:71]")
            a("s_cbranch_execz P1_skip_rank")
        a(f"v_mul_u32_u24 v{BA+i}, 21400, v{D+i}")
        a(f"v_lshrrev_b32 v{BA+i}, 20, v{BA+i}")
        a(f"v_mul_u32_u24 v{DL+i}, 49, v{BA+i}")
        a(f"v_sub_u32 v{DL+i}, v{D+i}, v{DL+i}")
        a(f"v_lshlrev_b32 v{BA+i}, 2, v{BA+i}")
        a(f"v_add_u32 v{BA+i}, {K1_HIST}, v{BA+i}")
        a(f"ds_add_rtn_u32 v{RK+i}, v{BA+i}, v75")
    a.label("P1_skip_rank")
    a("s_mov_b64 exec, -1")
    a("s_waitcnt lgkmcnt(0)")
    a("s_barrier")
    a(f"s_cmp_lg_u32 s{S_WAVE}, 0")
    a("s_cbranch_scc1 P1_noscan")
    a(f"v_add_u32 v73, {K1_HIST}, v3")
    a("ds_read_b128 v[76:79], v73")
    a("s_waitcnt lgkmcnt(0)")
    a("v_add_u32 v81, v76, v77")
    a("v_add_u32 v82, v81, v78")
    a("v_add_u32 v83, v82, v79")
    a("v_mov_b32 v84, v83")
    scan64(a, 84)
    a("v_sub_u32 v84, v84, v83")
    a("v_add_u32 v85, v84, v76")
    a("v_add_u32 v86, v84, v81")
    a("v_add_u32 v87, v84, v82")
    a("ds_write_b128 v73, v[84:87]")
    for i in range(4):
        a(f"v_lshl_or_b32 v{88+i}, v{76+i}, 16, v{84+i}")
    a(f"buffer_store_dwordx4 v[88:91], v3, s[48:51], 0 offen{ST}")
    a("s_waitcnt lgkmcnt(0)")
    a.label("P1_noscan")
    e_in(1)
    a("v_lshrrev_b32 v92, 5, v0")
    a("s_mul_i32 s69, s2, 50")
    a("v_add_u32 v92, s69, v92")
    a("v_lshlrev_b32 v92, 8, v92")
    a("v_bfe_u32 v93, v0, 3, 2")
    a("v_lshl_add_u32 v92, v93, 6, v92")
    a("v_and_b32 v93, 3, v0")
    a("v_lshl_add_u32 v92, v93, 4, v92")
    a("v_bfe_u32 v93, v0, 2, 1")
    a(f"v_mul_u32_u24 v93, {XHALF}, v93")
    a("v_add_u32 v92, v92, v93")
    a("v_cmp_gt_u32 vcc, 64, v0")
    a("v_mov_b32 v94, 0x80000000")
    a("v_cndmask_b32 v93, v94, v92, vcc")
    a("s_mov_b32 s72, 0x80000000")
    a("s_mov_b32 s73, 0xffff0000")
    a("v_lshlrev_b32 v95, 2, v0")
    a("s_barrier")
    for r in range(2):
        if r == 1:
            a("s_mov_b64 exec, s[70:71]")
            a("s_cbranch_execz P1_skip_scatter")
        for i in range(4):
            a(f"ds_read_b32 v{BA+4*r+i}, v{BA+4*r+i}")
        if r == 0:
            a(f"s_waitcnt vmcnt({4 + n_e(1)})")
        R = RH + 6 * r
        for i in range(4):
            a(f"v_lshl_or_b32 v{SRC+4*r+i}, v{SRC+4*r+i}, 8, v{DL+4*r+i}")
            a(f"v_or_b32 v{SRC+4*r+i}, s72, v{SRC+4*r+i}")
        a(f"v_lshlrev_b32 v76, 16, v{R+1}")
        a(f"v_alignbit_b32 v77, v{R+2}, v{R+1}, 16")
        a(f"v_and_b32 v78, s73, v{R+2}")
        a(f"v_lshlrev_b32 v79, 16, v{R+4}")
        a(f"v_alignbit_b32 v80, v{R+5}, v{R+4}, 16")
        a(f"v_and_b32 v81, s73, v{R+5}")
        w1 = [R, 77, R + 3, 80]
        w2 = [76, 78, 79, 81]
        a("s_waitcnt lgkmcnt(0)")
        for i in range(4):
            b, k = BA + 4 * r + i, RK + 4 * r + i
            a(f"v_add_u32 v{k}, v{k}, v{b}")
            a(f"v_mul_u32_u24 v{b}, 12, v{k}")
            a(f"v_add_u32 v{b}, {K1_MS}, v{b}")
            a(f"ds_write2_b32 v{b}, v{SRC+4*r+i}, v{w1[i]} offset0:0 offset1:1")
            a(f"ds_write_b32 v{b}, v{w2[i]} offset:8")
            a(f"v_lshlrev_b32 v{k}, 1, v{k}")
            a(f"v_add_u32 v{k}, {K1_INV}, v{k}")
            a(f"v_add_u32 v{82+i}, {2048*r + i}, v95")
            a(f"ds_write_b16 v{k}, v{82+i}")
    a.label("P1_skip_scatter")
    a("s_mov_b64 exec, -1")
    a(f"s_waitcnt vmcnt({n_e(1)})")
    a("s_mov_b32 s68, 0")
    for k in range(4):
        a(f"buffer_store_dwordx4 {vr(X+4*k,4)}, v{92 if k < 3 else 93}, s[44:47], s68 offen{ST}")
        a("s_add_u32 s68, s68, 4096")
    e_in(2)
    a("s_waitcnt lgkmcnt(0)")
    a("s_barrier")
    stamp(a, 4, k1=True)
    a(f"v_add_u32 v73, {K1_MS}, v1")
    for k in range(5):
        a(f"ds_read_b128 {vr(4+4*k,4)}, v73 offset:{8192*k}")
    a("v_and_b32 v74, 0x1fe, v0")
    a(f"v_add_u32 v74, {K1_INV}, v74")
    a("s_mov_b32 s68, 0")
    for k in range(5):
        a(f"s_waitcnt lgkmcnt({4-k})")
        a(f"buffer_store_dwordx4 {vr(4+4*k,4)}, v1, s[36:39], s68 offen{ST}")
        a("s_add_u32 s68, s68, 8192")
    for k in range(13):
        a(f"ds_read_u16 v{48+k}, v74 offset:{512*k}")
    a("v_mov_b32 v111, 0")
    a(f"buffer_load_dword v110, v111, s[{R_DBG}:{R_DBG+3}], 0 offen sc1")
    e_in(3)
    a("v_and_b32 v75, 1, v0")
    a("v_lshlrev_b32 v75, 4, v75")
    a("s_waitcnt lgkmcnt(0)")
    for k in range(13):
        a(f"v_lshl_add_u32 v{48+k}, v{48+k}, 5, v75")
    if opt("siga", 0) == 3:
        a(f"s_waitcnt vmcnt({12 - n_e(2)})")
        a(f"v_readfirstlane_b32 s{S_TAG}, v110")
        a("s_barrier")
        stamp(a, 6, k1=True)
        signal(a, 0, "P1_sa", wave=7)
    a("s_waitcnt vmcnt(0)")
    if opt("siga", 0) == 0:
        a(f"v_readfirstlane_b32 s{S_TAG}, v110")
    a("s_barrier")
    if opt("siga", 0) == 0:
        stamp(a, 6, k1=True)
        signal(a, 0, "P1_sa", wave=7)
    for k in range(12):
        a(f"ds_read_b128 {vr(128+4*k,4)}, v{48+k}")
    a("s_mov_b32 s68, 0")
    for k in range(12):
        a(f"s_waitcnt lgkmcnt({11-k})")
        a(f"buffer_store_dwordx4 {vr(128+4*k,4)}, v1, s[40:43], s68 offen{ST}")
        a("s_add_u32 s68, s68, 8192")
    a(f"s_cmp_ge_u32 s{S_WAVE}, 4")
    a("s_cbranch_scc1 P1_fin" if opt("siga", 0) in (0, 3) else "s_cbranch_scc1 P1_fin2")
    a("ds_read_b128 v[176:179], v60")
    a("s_waitcnt lgkmcnt(0)")
    a(f"buffer_store_dwordx4 v[176:179], v1, s[40:43], s68 offen{ST}")
    a("s_branch P1_fin" if opt("siga", 0) in (0, 3) else "s_branch P1_fin2")

    if opt("siga", 0) == 1:
        a.label("P1_fin2")
        signal(a, 0, "P1_sa")
        a(f"s_cmp_lg_u32 s{S_WAVE}, 0")
        a("s_cbranch_scc1 P1_fin")
        a("s_waitcnt vmcnt(1)")
        a("s_branch P1_fin3")
    if opt("siga", 0) == 2:
        a.label("P1_fin2")
        a("s_waitcnt vmcnt(0)")
        a("s_barrier")
        stamp(a, 8, k1=True)
        signal(a, 0, "P1_sa")
        a("s_branch P1_fin4")
    a.label("P1_prep")
    a("s_cmp_eq_u32 s2, 255")
    a("s_cbranch_scc1 P1_prepd")
    srd(a, 16, 54, 0, 16 * 320 * 2)
    srd(a, 20, 56, 0, 128 * 64 * 2)
    srd(a, 24, 58, 0, 192 * 64 * 2)
    srd(a, 28, 14, WS_WTAB, 20480)
    srd(a, 32, 14, WS_WSI, 40960)
    a("s_sub_u32 s60, s2, 250")
    a("s_lshl_b32 s60, s60, 10")
    for it in range(2):
        prep_tables(a, ST)
        a("s_add_u32 s60, s60, 512")
    a.label("P1_prepd")
    a("s_waitcnt vmcnt(0)")
    a("s_barrier")
    signal(a, 0, "P1_sa2")
    a.label("P1_fin")
    a("s_waitcnt vmcnt(0)")
    a.label("P1_fin3")
    a("s_barrier")
    stamp(a, 8, k1=True)
    a.label("P1_fin4")
    signal(a, 1, "P1_sb")


BAL = opt("bal", 1)


def meta_set_addresses(a):
    a(f"v_lshrrev_b32 v164, 4, v{LANE}")
    a("v_lshlrev_b32 v164, 2, v164")
    a(f"v_bfe_u32 v165, v{LANE}, 2, 1")
    a("v_lshl_add_u32 v160, v165, 5, v164")
    a(f"v_bfe_u32 v165, v{LANE}, 1, 1")
    a("v_lshl_add_u32 v160, v165, 4, v160")
    a("v_lshl_add_u32 v161, v165, 5, v164")
    a(f"v_and_b32 v165, 1, v{LANE}")
    a("v_lshl_add_u32 v160, v165, 1, v160")
    a("v_lshl_add_u32 v161, v165, 4, v161")
    a(f"v_bfe_u32 v165, v{LANE}, 3, 1")
    a("v_add_u32 v160, v160, v165")
    a(f"v_bfe_u32 v165, v{LANE}, 2, 2")
    a("v_add_u32 v161, v161, v165")
    a(f"v_mov_b32 v162, {L_SB}")
    a(f"v_mov_b32 v163, {L_SA}")
    a("v_lshl_add_u32 v160, v160, 2, v163")
    a("v_lshl_add_u32 v161, v161, 3, v162")


def balanced_partition(a):
    L = LANE
    a("v_add_u32 v14, 31, v14")
    a("v_lshrrev_b32 v14, 5, v14")
    a("v_max_u32 v14, 1, v14")
    a(f"v_cmp_gt_u32 s[60:61], s{S_NN}, v{L}")
    a("v_cndmask_b32 v14, 0, v14, s[60:61]")
    a("v_cmp_lt_u32 vcc, 2, v14")
    a("s_andn2_b64 s[60:61], s[60:61], vcc")
    a("s_bcnt1_i32_b64 s62, vcc")
    a("s_bcnt1_i32_b64 s63, s[60:61]")
    a("v_mbcnt_lo_u32_b32 v32, vcc_lo, 0")
    a("v_mbcnt_hi_u32_b32 v32, vcc_hi, v32")
    a("v_mov_b32 v33, s62")
    a("v_mbcnt_lo_u32_b32 v33, s60, v33")
    a("v_mbcnt_hi_u32_b32 v33, s61, v33")
    a("v_cndmask_b32 v32, v33, v32, vcc")
    a(f"v_cmp_gt_u32 vcc, s{S_NN}, v{L}")
    a(f"v_cndmask_b32 v32, v{L}, v32, vcc")
    a("v_lshlrev_b32 v32, 2, v32")
    a(f"v_lshl_or_b32 v33, v{L}, 8, v14")
    a("ds_permute_b32 v34, v32, v33")
    a(f"v_mad_u32_u24 v36, v{L}, s{S_NN}, 7")
    a("v_lshrrev_b32 v36, 3, v36")
    a("s_mul_i32 s58, s62, 10")
    a(f"s_mul_i32 s59, s{S_NN}, 26")
    a("s_add_u32 s58, s58, s59")
    a(f"v_mad_u32_u24 v37, v{L}, s58, 40")
    a("v_mul_u32_u24 v40, 208, v36")
    a("v_sub_u32 v37, v37, v40")
    a("v_max_i32 v37, 0, v37")
    a("v_mul_u32_u24 v37, 3277, v37")
    a("v_lshrrev_b32 v37, 18, v37")
    a("v_subrev_u32 v40, s63, v36")
    a("v_max_i32 v37, v37, v40")
    a("v_min_u32 v37, s62, v37")
    a("v_min_u32 v37, v37, v36")
    for sh in (1, 2, 4, 8):
        a(f"v_max_u32_dpp v37, v37, v37 row_shr:{sh} row_mask:0xf bank_mask:0xf bound_ctrl:1")
    a("v_sub_u32 v40, v36, v37")
    for sh in (1, 2, 4, 8):
        a(f"v_max_u32_dpp v40, v40, v40 row_shr:{sh} row_mask:0xf bank_mask:0xf bound_ctrl:1")
    a("v_sub_u32 v37, v36, v40")
    a("v_lshl_or_b32 v37, v36, 8, v37")
    a(f"s_cmp_eq_u32 s{S_NN}, {NPB}")
    a(f"s_mov_b32 s58, {-(-8*65536 // (N - 255*NPB))}")
    a(f"s_cmov_b32 s58, {-(-8*65536 // NPB)}")
    a(f"v_mul_u32_u24 v40, s58, v{L}")
    a("v_lshrrev_b32 v40, 16, v40")
    a("v_min_u32 v40, 7, v40")
    a("v_lshlrev_b32 v40, 2, v40")
    a("ds_bpermute_b32 v41, v40, v37")
    a("ds_bpermute_b32 v42, v40, v37 offset:4")
    a(f"s_and_b32 s60, s{S_WAVE}, 3")
    a("s_lshl_b32 s60, s60, 1")
    a(f"s_lshr_b32 s61, s{S_WAVE}, 2")
    a("s_add_u32 s59, s60, s61")
    a(f"s_mul_i32 s60, s59, s{S_NN}")
    a(f"s_add_u32 s61, s60, s{S_NN}")
    a("s_add_u32 s60, s60, 7")
    a("s_add_u32 s61, s61, 7")
    a(f"s_lshr_b32 s{S_NODE0}, s60, 3")
    a(f"s_lshr_b32 s{S_NEND}, s61, 3")
    a(f"s_sub_u32 s{S_NNW}, s{S_NEND}, s{S_NODE0}")
    a("s_waitcnt lgkmcnt(0)")
    a("v_lshrrev_b32 v43, 8, v41")
    PP = L
    if opt("mir", 1):
        PP = 33
        a("v_lshrrev_b32 v33, 8, v42")
        a("v_add3_u32 v33, v33, v43, -1")
        a(f"v_sub_u32 v33, v33, v{L}")
        a("v_and_b32 v40, 4, v40")
        a("v_cmp_eq_u32 vcc, 0, v40")
        a(f"v_cndmask_b32 v33, v33, v{L}, vcc")
    a("v_and_b32 v41, 0xff, v41")
    a("v_and_b32 v42, 0xff, v42")
    a(f"v_sub_u32 v43, v{PP}, v43")
    a("v_add_u32 v43, v43, v41")
    a(f"v_sub_u32 v40, v{PP}, v42")
    a("v_add_u32 v40, s62, v40")
    a("v_cmp_lt_u32 vcc, v43, v42")
    a("v_cndmask_b32 v40, v40, v43, vcc")
    a(f"v_cmp_gt_u32 vcc, s{S_NN}, v{L}")
    a(f"v_cndmask_b32 v40, v{L}, v40, vcc")
    a("v_lshlrev_b32 v40, 2, v40")
    a("ds_bpermute_b32 v41, v40, v34")
    a("s_waitcnt lgkmcnt(0)")
    a("v_and_b32 v14, 0xff, v41")
    a(f"v_subrev_u32 v{NST}, 1, v14")
    a(f"v_lshrrev_b32 v{NID}, 8, v41")
    a(f"v_lshlrev_b32 v41, 2, v{NID}")
    a("v_mov_b32 v19, v14")
    scan64(a, 19)
    a("v_sub_u32 v42, v19, v14")
    a("ds_permute_b32 v18, v41, v42")
    a("v_min_u32 v36, 63, v36")
    a("v_lshlrev_b32 v36, 2, v36")
    a("ds_bpermute_b32 v43, v36, v42")
    a("v_readlane_b32 s58, v19, 63")
    a("s_waitcnt lgkmcnt(0)")
    a("v_mov_b32 v40, v43")
    a("v_sub_u32_dpp v40, v43, v43 row_shl:1 row_mask:0xf bank_mask:0xf")
    a(f"v_readlane_b32 s{S_STEP0}, v43, s59")
    a(f"v_cmp_lt_u32 vcc, {MAXWSTEPS}, v40")
    a(f"v_readlane_b32 s{S_NS}, v40, s59")
    a("s_and_b32 s60, vcc_lo, 0xff")


def kernel2():
    a = Asm()
    a("s_cmp_ge_u32 s2, 256")
    a("s_cbranch_scc1 K2_end")
    if opt("xcdmap", 1) == 2:
        a("s_load_dwordx2 s[54:55], s[0:1], 80")
        a("s_getreg_b32 s58, hwreg(HW_REG_XCC_ID, 0, 3)")
        a("v_lshrrev_b32 v1, 6, v0")
        a("v_readfirstlane_b32 s3, v1")
        a(f"v_mov_b32 v3, {L_WSUM}")
        a("s_cmp_lg_u32 s3, 0")
        a("s_cbranch_scc1 CLAIMED")
        a("s_waitcnt lgkmcnt(0)")
        srd(a, 4, 54, 0, 256)
        a("s_mov_b64 exec, 1")
        a.label("CLAIM")
        a("v_mov_b32 v1, 1")
        a("s_lshl_b32 s59, s58, 5")
        a("v_mov_b32 v2, s59")
        a("buffer_atomic_add v1, v2, s[4:7], 0 offen sc0")
        a("s_add_u32 s58, s58, 1")
        a("s_and_b32 s58, s58, 7")
        a("s_waitcnt vmcnt(0)")
        a("v_readfirstlane_b32 s60, v1")
        a("s_cmp_ge_u32 s60, 32")
        a("s_cbranch_scc1 CLAIM")
        a("v_add_u32 v1, v1, v2")
        a("ds_write_b32 v3, v1")
        a("s_mov_b64 exec, -1")
        a.label("CLAIMED")
        a("s_waitcnt lgkmcnt(0)")
        a("s_barrier")
        a("ds_read_b32 v1, v3")
        a("s_waitcnt lgkmcnt(0)")
        a("v_readfirstlane_b32 s2, v1")
        a("s_and_b32 s2, s2, 255")
        a("s_barrier")
    if opt("xcdmap", 1) == 1:
        a("s_and_b32 s3, s2, 7")
        a("s_lshl_b32 s3, s3, 5")
        a("s_lshr_b32 s2, s2, 3")
        a("s_or_b32 s2, s2, s3")
    a(f"v_mov_b32 v{TID}, v0")
    a(f"s_mov_b32 s{S_R0}, 0")
    a(f"s_mov_b32 s{S_CAP}, {CAP}")
    stamp(a, 0, True)
    stamp(a, 1)
    if FUSED:
        part1(a)
        a(f"s_mov_b32 s{S_R0}, 0")
        a(f"s_mov_b32 s{S_CAP}, {CAP}")
        poll(a, 0, "POLL_A")
        a(f"v_mov_b32 v110, {L_DUMMY}")
        a(f"v_mov_b32 v111, s{S_TAG}")
        a(f"s_cmp_lg_u32 s{S_WAVE}, 0")
        a("s_cbranch_scc1 TAG_W")
        a("ds_write_b32 v110, v111")
        a("s_waitcnt lgkmcnt(0)")
        a.label("TAG_W")
        a("s_barrier")
        a("ds_read_b32 v111, v110")
        a("s_waitcnt lgkmcnt(0)")
        a(f"v_readfirstlane_b32 s{S_TAG}, v111")
    a.label("ROUND")
    a("s_load_dwordx2 s[56:57], s[0:1], 88")
    a("s_load_dwordx2 s[54:55], s[0:1], 72")
    a(f"v_and_b32 v2, 255, v{TID}")
    a("v_lshlrev_b32 v3, 10, v2")
    a(f"v_and_b32 v{LANE}, 63, v{TID}")
    a(f"v_lshrrev_b32 v1, 6, v{TID}")
    a(f"v_readfirstlane_b32 s{S_WAVE}, v1")
    a("s_lshl_b32 s58, s2, 2")
    a("s_cmp_eq_u32 s2, 255")
    a(f"s_cselect_b32 s{S_NN}, {N - 255*NPB}, {NPB}")
    a("s_waitcnt lgkmcnt(0)")
    srd(a, R_TB, 56, WS_TAB, W * 1024)
    DSH = opt("dsh", 1)
    if DSH:
        a(f"s_cmp_ge_u32 s{S_WAVE}, 4")
        a("s_cbranch_scc1 NODESC")
    a(f"buffer_load_dword v20, v3, s[{R_TB}:{R_TB+3}], s58 offen")
    if DSH:
        a.label("NODESC")
    if opt("cpf", 2) & 1:
        a("s_getpc_b64 s[60:61]")
        a.label("K2_here")
        a("s_mov_b32 s62, K2_end-K2_here")
        a("s_mov_b32 s63, 0x20000")
        a(f"v_lshlrev_b32 v21, 7, v{TID}")
        a("buffer_load_dword v75, v21, s[60:63], 0 offen")
    if PROF:
        a("s_mov_b64 s[98:99], s[56:57]")
    if opt("egx", 0):
        a("s_load_dwordx2 s[92:93], s[0:1], 16")
        a("s_mov_b32 s94, 25600000")
        a("s_mov_b32 s95, 0x20000")
        a("s_mov_b32 s96, 800000")
        a("s_mov_b32 s97, 1664525")
        a(f"v_lshrrev_b32 v218, 1, v{TID}")
        a("s_lshl_b32 s59, s2, 8")
        a("v_add_u32 v218, s59, v218")
        a("s_mov_b32 s59, 0x9E3779B1")
        a("v_mul_lo_u32 v218, v218, s59")
        a("s_waitcnt lgkmcnt(0)")
    srd(a, R_W, 56, WS_WTAB, 0x12000)
    srd(a, R_MT, 56, WS_META, E * 12)
    srd(a, R_EP, 56, WS_EP, E * 32)
    srd(a, R_XP, 56, WS_XP - XBIAS, 2 * XHALF + XBIAS)
    a(f"s_mul_i32 s59, s2, {P_WG}")
    a(f"s_add_u32 s59, s59, {WS_P}")
    srd(a, R_P, 56, "s59", 2 * P_HALF)
    a("s_lshl_b32 s59, s2, 16")
    a(f"s_add_u32 s59, s59, {WS_ACC}")
    srd(a, R_ACC, 56, "s59", 65536)
    a(f"s_mul_i32 s59, s2, {NPB*512}")
    a(f"s_lshl_b32 s60, s{S_NN}, 9")
    srd(a, R_OUT, 54, "s59", "s60")
    a(f"s_mul_i32 s{S_RB}, s{S_WAVE}, {RING_W}")
    a(f"s_add_u32 s{S_RB}, s{S_RB}, {L_RING}")
    a(f"s_mov_b32 s{S_HI}, 0xffff0000")
    a(f"s_mov_b32 s{S_SGN}, 0x80008000")
    L = LANE
    a(f"v_bfe_u32 v3, v{L}, 4, 1")
    a(f"v_and_b32 v4, 7, v{L}")
    a("v_lshlrev_b32 v5, 1, v3")
    a("v_xor_b32 v4, v4, v5")
    a("v_lshlrev_b32 v4, 4, v4")
    a(f"v_add_u32 v{XOFF}, {0x80000000 + XBIAS}, v4")
    a(f"v_add_u32 v{XOFF+1}, {0x80000000 + XBIAS - 1088}, v4")
    a(f"v_and_b32 v4, 3, v{L}")
    a(f"v_lshlrev_b32 v{QQ8}, 3, v4")
    a(f"v_bfe_u32 v5, v{L}, 3, 1")
    a("v_mul_u32_u24 v5, 1088, v5")
    a(f"v_lshrrev_b32 v6, 4, v{L}")
    a("v_lshl_add_u32 v5, v6, 8, v5")
    a(f"v_bfe_u32 v7, v{L}, 2, 1")
    a("v_lshl_add_u32 v5, v7, 7, v5")
    a(f"v_add_u32 v5, v5, v{QQ8}")
    a(f"v_add_u32 v5, s{S_RB}, v5")
    a("v_lshlrev_b32 v7, 5, v3")
    a(f"v_add_u32 v{BAE}, v5, v7")
    a(f"v_sub_u32 v{BAO}, v5, v7")
    a(f"v_and_b32 v7, 15, v{L}")
    a("v_lshlrev_b32 v8, 2, v7")
    a(f"v_lshl_add_u32 v{POFF}, v6, 6, v8")
    a("v_and_b32 v8, 1, v7")
    a("v_lshlrev_b32 v8, 4, v8")
    a("v_mov_b32 v9, 0x3f80")
    a("v_lshlrev_b32 v8, v8, v9")
    a("v_and_b32 v9, 14, v7")
    for i in range(4):
        a(f"v_cmp_eq_u32 vcc, {4*i}, v9")
        a(f"v_cndmask_b32 v{SEL+i}, 0, v8, vcc")
    a(f"v_lshlrev_b32 v6, 2, v{TID}")
    a("v_mov_b32 v7, 0")
    a(f"v_add_u32 v8, {L_MISC}, v6")
    a(f"v_cmp_gt_u32 vcc, 68, v{TID}")
    a("s_and_saveexec_b64 s[58:59], vcc")
    a("ds_write_b32 v8, v7")
    a(f"v_cmp_gt_u32 vcc, 8, v{TID}")
    a("s_and_b64 exec, exec, vcc")
    a("ds_write_b32 v6, v7")
    a("s_mov_b64 exec, -1")
    a(f"v_lshlrev_b32 v13, 4, v{TID}")
    a(f"v_add_u32 v13, {L_SA}, v13")
    for i in range(4):
        a(f"v_mov_b32 v{28+i}, 0")
    nz = MAXSTEPS * 384 // 16
    for k in range(6):
        a(f"ds_write_b128 v13, v[28:31] offset:{8192*k}")
    a(f"v_cmp_gt_u32 vcc, {nz - 6*512}, v{TID}")
    a("s_mov_b64 exec, vcc")
    a(f"ds_write_b128 v13, v[28:31] offset:{8192*6}")
    a("s_mov_b64 exec, -1")
    a("v_mul_u32_u24 v14, 3200, v2")
    a(f"v_lshrrev_b32 v15, 8, v{TID}")
    a("v_mov_b32 v16, 0x80000000")
    a(f"s_and_b32 s59, s{S_WAVE}, 3")
    a("v_lshlrev_b32 v22, 3, v2")
    a("v_add_u32 v22, 1024, v22")
    if DSH:
        a(f"s_cmp_ge_u32 s{S_WAVE}, 4")
        a("s_cbranch_scc1 NOSCAN")
    a(f"s_waitcnt vmcnt({opt('cpf', 2) & 1})")
    stamp(a, 2)
    a("v_lshrrev_b32 v9, 16, v20")
    a("v_mov_b32 v21, v9")
    scan64(a, 21)
    a("v_readlane_b32 s58, v21, 63")
    a("s_lshl_b32 s60, s59, 2")
    a(f"s_add_u32 s60, s60, {L_WSUM}")
    a("v_mov_b32 v12, s60")
    a("v_mov_b32 v13, s58")
    a("ds_write_b32 v12, v13")
    a("v_sub_u32 v21, v21, v9")
    if DSH:
        a("ds_write_b64 v22, v[20:21]")
        a.label("NOSCAN")
    a(f"v_mov_b32 v12, {L_WSUM}")
    a("s_waitcnt lgkmcnt(0)")
    a("s_barrier")
    a("ds_read_b128 v[16:19], v12")
    if DSH:
        a("ds_read_b64 v[20:21], v22")
    a("s_waitcnt lgkmcnt(0)")
    a("v_lshrrev_b32 v9, 16, v20")
    a("v_and_b32 v10, 0xffff, v20")
    a("v_add_u32 v14, v14, v10")
    a("v_mov_b32 v11, v21")
    for i in range(4):
        a(f"v_readfirstlane_b32 s{60+i}, v{16+i}")
    a("s_add_u32 s61, s61, s60")
    a("s_add_u32 s62, s62, s61")
    a(f"s_add_u32 s{S_T}, s63, s62")
    a("s_cmp_eq_u32 s59, 0")
    a("s_cselect_b32 s58, 0, s60")
    a("s_cmp_eq_u32 s59, 2")
    a("s_cselect_b32 s58, s61, s58")
    a("s_cmp_eq_u32 s59, 3")
    a("s_cselect_b32 s58, s62, s58")
    a("v_mov_b32 v16, 0x80000000")
    a(f"s_sub_u32 s{S_LEN}, s{S_T}, s{S_R0}")
    a(f"s_cmp_le_u32 s{S_LEN}, s{S_CAP}")
    a(f"s_cselect_b32 s{S_LAST}, 1, 0")
    a(f"s_min_u32 s{S_LEN}, s{S_LEN}, s{S_CAP}")
    a(f"s_sub_u32 s58, s58, s{S_R0}")
    a("v_add_u32 v11, s58, v11")
    a("v_sub_u32 v12, 0, v11")
    a("v_max_i32 v12, 0, v12")
    a(f"v_sub_u32 v13, s{S_LEN}, v11")
    a("v_min_i32 v13, v13, v9")
    a("v_add_u32 v12, v12, v15")
    a("v_sub_u32 v9, v13, v12")
    a("v_add_u32 v14, v14, v12")
    a("v_add_u32 v11, v11, v12")
    a("v_lshlrev_b32 v12, 2, v11")
    a(f"v_add_u32 v12, {L_MAP}, v12")
    a.label("MAPL")
    for i in range(16):
        a(f"v_cmp_lt_i32 vcc, {2*i}, v9")
        if i:
            a("v_add_u32 v14, 2, v14")
        a("s_and_b64 exec, exec, vcc")
        if i % 4 == 0:
            a("s_cbranch_execz MAPD")
        a(f"ds_write_b32 v12, v14 offset:{8*i}")
    a("v_add_u32 v14, 2, v14")
    a("v_add_u32 v12, 128, v12")
    a("v_subrev_u32 v9, 32, v9")
    a("s_branch MAPL")
    a.label("MAPD")
    a("s_mov_b64 exec, -1")
    a(f"v_add_u32 v12, {L_MAP}, v6")
    a(f"v_lshrrev_b32 v13, 1, v{LANE}")
    a(f"s_lshl_b32 s58, s{S_WAVE}, 5")
    a("v_add_u32 v13, s58, v13")
    a(f"v_lshl_add_u32 v14, v13, 2, v7")
    a(f"v_add_u32 v14, {L_MAP}, v14")
    a(f"v_and_b32 v15, 1, v{LANE}")
    a("v_lshlrev_b32 v15, 4, v15")
    a("s_waitcnt lgkmcnt(0)")
    a("s_barrier")
    stamp(a, 3)
    for k in range(7):
        a(f"ds_read_b32 v{20+k}, v12 offset:{2048*k}")
    for k in range(14):
        a(f"ds_read_b32 v{28+k}, v14 offset:{1024*k}")
    MREC = 44
    EPOL = ["", " sc1", " nt"][opt("epol", 0)]
    for k in range(7):
        a(f"v_add_u32 v17, {512*k}, v{TID}")
        a(f"v_cmp_gt_u32 s[{S_MASK+2*k}:{S_MASK+2*k+1}], s{S_LEN}, v17")
        a(f"s_waitcnt lgkmcnt({min(15, 20-k)})")
        a(f"v_mul_u32_u24 v{20+k}, 12, v{20+k}")
        a(f"v_cndmask_b32 v{20+k}, v16, v{20+k}, s[{S_MASK+2*k}:{S_MASK+2*k+1}]")
    if PROF == 2:
        stamp(a, 7)
    for k in range(7):
        a(f"buffer_load_dwordx3 {vr(MREC+4*k,3)}, v{20+k}, s[{R_MT}:{R_MT+3}], 0 offen{EPOL}")
    a("s_waitcnt lgkmcnt(0)")
    a(f"s_lshl_b32 s{S_EM0}, s{S_WAVE}, 10")
    a(f"s_add_u32 s{S_EM0}, s{S_EM0}, {L_E + 32}")
    EREG = 128
    for k in range(14):
        a(f"v_cmp_gt_u32 vcc, s{S_LEN}, v13")
        a(f"v_lshl_add_u32 v{28+k}, v{28+k}, 5, v15")
        a("v_add_u32 v13, 256, v13")
        a(f"v_cndmask_b32 v{EREG+k}, v16, v{28+k}, vcc")
    eb = [int(c, 16) for c in opt("eb", "0554" if FUSED else "3551")]

    assert sum(eb[:1]) <= 10

    def e_batch(i, tag=""):
        for k in range(sum(eb[:i]), sum(eb[:i + 1])):
            if k == 13:
                a(f"s_cmp_ge_u32 s{S_WAVE}, 2")
                a("s_cbranch_scc1 NOE14")
            a(f"s_mov_b32 m0, s{S_EM0}")
            a(f"s_add_u32 s{S_EM0}, s{S_EM0}, 8192")
            a(f"buffer_load_dwordx4 v{EREG+k}, s[{R_EP}:{R_EP+3}], 0 offen{EPOL} lds")
            if k == 13:
                a.label("NOE14")

    if PROF == 2:
        stamp(a, 8)
    e_batch(0)
    FK = opt("fk", 0)
    if FUSED and FK == 0:
        flag_load(a, 1)
    if PROF == 2:
        stamp(a, 9)
    a("v_mov_b32 v17, 1")
    for k in range(7):
        a(f"s_waitcnt vmcnt({min(eb[0], 13) + 6 - k + (FUSED and k >= FK)})")
        if FUSED and FK and k == FK - 1:
            flag_load(a, 1)
        if PROF == 2 and k in (0, 6):
            stamp(a, 10 if k == 0 else 11)
        a(f"v_and_b32 v{20+k}, 0xff, v{MREC+4*k}")
        a(f"v_lshlrev_b32 v{20+k}, 2, v{20+k}")
        a(f"v_add_u32 v18, {L_CNT}, v{20+k}")
        a(f"s_mov_b64 exec, s[{S_MASK+2*k}:{S_MASK+2*k+1}]")
        a(f"ds_add_rtn_u32 v{MREC+4*k+3}, v18, v17")
        a("s_mov_b64 exec, -1")
    a(f"v_lshlrev_b32 v12, 2, v{LANE}")
    a(f"v_add_u32 v12, {L_CNT}, v12")
    a(f"v_lshlrev_b32 v35, 2, v{TID}")
    a("v_add_u32 v35, 4, v35")
    RP = 144
    for k in range(7):
        r = MREC + 4 * k
        a(f"v_and_b32 v{r}, 0xffffff00, v{r}")
        a(f"v_add_u32 v36, {2048*k}, v35")
        a(f"v_or_b32 v{RP+2*k+1}, v{r+2}, v36")
        a(f"v_mov_b32 v{RP+2*k}, v{r+1}")
    meta_set_addresses(a)
    if FUSED:
        a("s_waitcnt vmcnt(0)")
        flag_test(a)
        a(f"s_cselect_b32 s{S_EB1}, 1, 0")
    a("s_waitcnt lgkmcnt(0)")
    a("s_barrier")
    stamp(a, 4)
    if FUSED:
        a(f"s_mov_b32 s{S_EB2}, s{S_EB1}")
        a(f"s_cmp_eq_u32 s{S_EB1}, 0")
        a("s_cbranch_scc1 EB1_skip")
        e_batch(1)
        a("s_branch EB1_done")
        a.label("EB1_skip")
        flag_load(a, 1)
        a.label("EB1_done")
    else:
        e_batch(1)
    a("ds_read_b32 v14, v12")
    a("s_waitcnt lgkmcnt(0)")
    if BAL:
        balanced_partition(a)
    else:
        a("v_add_u32 v14, 31, v14")
        a("v_lshrrev_b32 v14, 5, v14")
        a("v_max_u32 v14, 1, v14")
        a(f"v_cmp_gt_u32 vcc, s{S_NN}, v{LANE}")
        a(f"v_mad_u32_u24 v15, v14, 10, {opt('epc', 6)}")
        a("v_cndmask_b32 v15, 0, v15, vcc")
        a("v_cndmask_b32 v14, 0, v14, vcc")
        a("v_lshl_or_b32 v18, v15, 16, v14")
        a(f"v_subrev_u32 v{NST}, 1, v14")
        a("v_mov_b32 v19, v18")
        scan64(a, 19)
        a("v_readlane_b32 s58, v19, 63")
        a("v_sub_u32 v18, v19, v18")
        a("v_and_b32 v19, 0xffff, v19")
        a("v_lshrrev_b32 v32, 16, v18")
        a("v_and_b32 v18, 0xffff, v18")
        a("v_lshl_add_u32 v32, v32, 1, v15")
        a("v_lshlrev_b32 v32, 2, v32")
        a("s_lshr_b32 s59, s58, 16")
        a("s_and_b32 s58, s58, 0xffff")
        a(f"s_and_b32 s60, s{S_WAVE}, 3")
        a("s_lshl_b32 s60, s60, 1")
        a(f"s_lshr_b32 s61, s{S_WAVE}, 2")
        a("s_add_u32 s60, s60, s61")
        a("s_mul_i32 s60, s60, s59")
        a("s_add_u32 s61, s60, s59")
        a("v_cmp_le_u32 vcc, s60, v32")
        a("v_cmp_gt_u32 s[62:63], s61, v32")
        a("s_and_b64 vcc, vcc, s[62:63]")
        a(f"s_bcnt1_i32_b64 s{S_NNW}, vcc")
        a(f"s_ff1_i32_b64 s{S_NODE0}, vcc")
        a(f"s_max_i32 s{S_NODE0}, s{S_NODE0}, 0")
        a(f"s_add_u32 s{S_NEND}, s{S_NODE0}, s{S_NNW}")
        a(f"s_sub_u32 s60, s{S_NEND}, 1")
        a("s_max_i32 s60, s60, 0")
        a(f"v_readlane_b32 s{S_STEP0}, v18, s{S_NODE0}")
        a(f"v_readlane_b32 s{S_NS}, v19, s60")
        a(f"s_sub_u32 s{S_NS}, s{S_NS}, s{S_STEP0}")
    assert BAL
    for k in range(7):
        a(f"ds_bpermute_b32 v{20+k}, v{20+k}, v18")
    a(f"s_lshl_b32 s59, s{S_STEP0}, 7")
    a("v_add_u32 v160, s59, v160")
    a("s_lshl_b32 s59, s59, 1")
    a("v_add_u32 v161, s59, v161")
    a(f"s_cmp_gt_u32 s58, {MAXSTEPS}")
    a("s_cselect_b32 s60, 1, s60")
    a("s_cmp_eq_u32 s60, 0")
    a("s_cbranch_scc1 SCATTER")
    a(f"s_mov_b32 s{S_CAP}, {SLOWCAP}")
    a("s_waitcnt vmcnt(0) lgkmcnt(0)")
    a("s_barrier")
    a("s_branch ROUND")
    a.label("SCATTER")
    if FUSED:
        a(f"s_cmp_lg_u32 s{S_EB1}, 0")
        a("s_cbranch_scc1 EB2_go")
        a("s_waitcnt vmcnt(0)")
        flag_test(a)
        a(f"s_cselect_b32 s{S_EB2}, 1, 0")
        a("s_cbranch_scc0 EB2_skip")
        e_batch(1)
        a.label("EB2_go")
        e_batch(2)
        a.label("EB2_skip")
    else:
        e_batch(2)
    for k in range(7):
        r = MREC + 4 * k
        a(f"s_waitcnt lgkmcnt({6 - k + 2 * k if 6 + k <= 15 else 15})")
        a(f"v_lshl_add_u32 v{20+k}, v{20+k}, 5, v{r+3}")
        a(f"v_lshl_add_u32 v{r+1}, v{20+k}, 3, v162")
        a(f"v_lshl_add_u32 v{20+k}, v{20+k}, 2, v163")
        a(f"s_mov_b64 exec, s[{S_MASK+2*k}:{S_MASK+2*k+1}]")
        a(f"ds_write_b32 v{20+k}, v{r}")
        a(f"ds_write_b64 v{r+1}, {vr(RP+2*k,2)}")
        a("s_mov_b64 exec, -1")
    if FUSED:
        a(f"s_cmp_lg_u32 s{S_EB2}, 0")
        a("s_cbranch_scc1 EB3_nopoll")
        poll(a, 1, "POLL_B")
        a.label("EB3_nopoll")
    a("s_waitcnt lgkmcnt(0)")
    a("s_barrier")
    if FUSED:
        a(f"s_cmp_lg_u32 s{S_EB2}, 0")
        a("s_cbranch_scc1 EB3_go")
        e_batch(1)
        e_batch(2)
        a.label("EB3_go")
    e_batch(3)
    for s in range(10):
        a(f"ds_read_b32 v{M0R+s}, v160 offset:{256*s}")
        a(f"ds_read_b64 {vr(MBR+2*s,2)}, v161 offset:{512*s}")
    a(f"s_mov_b32 s{S_D}, 0")
    pfn = opt("pfn", 0)
    if pfn:
        a(f"s_sub_u32 s{S_EVT}, s{S_NEND}, {pfn}")
        a(f"s_max_i32 s{S_EVT}, s{S_EVT}, 0")
    else:
        a(f"s_mov_b32 s{S_EVT}, -2")
    a(f"s_mov_b32 s{S_PHASE}, 0")
    if opt("eg", 0):
        a(f"s_mov_b32 s{S_EGN}, -1")
    a(f"s_mov_b32 s{S_POFF}, 0")
    a(f"s_mov_b32 s{S_TAB0}, 0")
    a(f"s_mov_b32 s{S_TAB1}, 128")
    a(f"s_mov_b32 s{S_NODE}, s{S_NODE0}")
    for l in node_steps(S_NODE):
        a(l)
    if opt("prio", 3) == 2:
        a(f"s_lshr_b32 s54, s{S_WAVE}, 2")
        a(f"s_lshl2_add_u32 s{S_LEFT}, s{S_NS}, s54")
        a(f"s_add_u32 s{S_LEFT}, s{S_LEFT}, 256")
        a(f"s_lshl1_add_u32 s54, s{S_REM}, 2")
        a(f"s_sub_u32 s{S_LEFT}, s{S_LEFT}, s54")
        a(f"s_and_b32 s54, s{S_WAVE}, 3")
        a(f"s_lshl2_add_u32 s{S_PADR}, s54, {L_CNT + 240}")
    stamp(a, 5)
    a("s_waitcnt lgkmcnt(0)")
    a("s_barrier")
    if PROF and not opt("egx", 0):
        a(f"s_mov_b32 s{preg(12)}, s{S_NS}")
        a(f"s_mov_b32 s{preg(13)}, s{S_NNW}")
    a(f"s_cmp_lg_u32 s{S_NNW}, 0")
    a("s_cbranch_scc1 START")
    a("s_waitcnt vmcnt(0)")
    a("s_barrier")
    stamp(a, 6)
    a("s_branch TAIL")
    a.label("START")
    pipeline_start(a)
    cold = []
    for par in range(2):
        for rho in (0, 2, 1):
            epilogue(a, rho, par, cold)
            step_body(a, rho, "f", par, 1 - par, "n", cold)
            step_body(a, (rho + 1) % 3, "n", 1 - par, par, "e" if rho != 1 else "", cold)
    for rho in range(3):
        step_body(a, rho, "f", 0, 0, "", cold)
        step_body(a, rho, "n", 0, 0, "", cold)
    for l in cold:
        a(l)

    a.label("TAIL")
    a("s_setprio 0")
    WF, PF, D = 0, 80, 188
    if PROF == 4:
        a("v_mov_b32 v183, v219")
    stamp(a, 8, late=True)
    a(f"v_and_b32 v{T0+1}, 15, v{LANE}")
    a(f"s_lshr_b32 s56, s{S_WAVE}, 1")
    a("s_lshl_b32 s56, s56, 4")
    a(f"v_add_u32 v{T0+1}, s56, v{T0+1}")
    a(f"v_lshlrev_b32 v{T0+2}, 2, v{T0+1}")
    a(f"ds_bpermute_b32 v{T0+4}, v{T0+2}, v{NID}")
    a(f"v_lshrrev_b32 v{T0+2}, 4, v{LANE}")
    a(f"v_lshlrev_b32 v{T0+2}, 4, v{T0+2}")
    a("s_waitcnt lgkmcnt(0)")
    a(f"v_lshl_add_u32 v{T0+4}, v{T0+4}, 9, v{T0+2}")
    a(f"v_lshlrev_b32 v{T0}, 4, v{LANE}")
    a(f"s_and_b32 s54, s{S_WAVE}, 1")
    a("s_mul_i32 s55, s54, 20480")
    a(f"s_add_u32 s55, s55, {WS_WSI - WS_WTAB}")
    if NEWTAIL:
        def prework(tag):
            a(f"s_mul_i32 s56, s{S_NNW}, {P_NODE}")
            a(f"s_mul_i32 s57, s{S_NODE0}, {P_NODE}")
            a(f"s_mov_b32 s60, s{S_RB}")
            for k in range(6):
                a(f"v_cmp_gt_u32 vcc, s56, v{T0}")
                a("s_mov_b32 m0, s60")
                a("s_mov_b64 exec, vcc")
                a(f"s_cbranch_execz {tag}")
                a(f"buffer_load_dwordx4 v{T0}, s[{R_P}:{R_P+3}], s57 offen sc1 lds")
                a("s_mov_b64 exec, -1")
                a("s_add_u32 s57, s57, 1024")
                a("s_add_u32 s60, s60, 1024")
                a("s_sub_u32 s56, s56, 1024")
                a("s_max_i32 s56, s56, 0")
            a.label(tag)
            a("s_mov_b64 exec, -1")
            for f in range(20):
                if f % 4 == 0 and f:
                    a("s_add_u32 s55, s55, 4096")
                a(f"buffer_load_dwordx4 {vr(WF+4*f,4)}, v{T0}, s[{R_W}:{R_W+3}], s55 offen offset:{(f%4)*1024}")

        a(f"v_mov_b32 v{T0+5}, {L_CNT + 224}")
        a(f"v_mov_b32 v{T0+6}, 1")
        a(f"s_mul_i32 s56, s{S_NNW}, {P_NODE}")
        a(f"s_add_u32 s60, s56, s{S_RB}")
        a(f"v_add_u32 v{T0+7}, s60, v{POFF}")
        a("s_mov_b64 exec, 1")
        a(f"ds_add_rtn_u32 v{T0+6}, v{T0+5}, v{T0+6}")
        a("s_mov_b64 exec, -1")
        a(f"s_cmp_eq_u32 s{S_NNW}, 0")
        a("s_cbranch_scc1 T_NOREC")
        a("s_waitcnt vmcnt(3)")
        for i in range(3):
            a(f"ds_write_b32 v{T0+7}, v{64+i} offset:{256*i}")
        a.label("T_NOREC")
        a("s_waitcnt lgkmcnt(0)")
        a(f"v_readfirstlane_b32 s{S_OLD}, v{T0+6}")
        a(f"s_cmp_ge_u32 s{S_OLD}, {opt('tlast', 7)}")
        a("s_cbranch_scc1 T_BAR")
        if DRY:
            a("s_mov_b32 s62, 1")
            a(f"s_cmp_eq_u32 s{S_OLD}, 0")
            a("s_cbranch_scc1 T_MM")
            a.label("T_RET")
        prework("T_P1")
        a.label("T_BAR")
        a("s_barrier")
        stamp(a, 9, late=True)
        a(f"s_lshl_b32 s61, s{S_WAVE}, 10")
        a(f"s_add_u32 s61, s61, {P_HALF}")
        for k in range(5):
            if k == 4:
                a(f"s_cmp_ge_u32 s{S_WAVE}, 6")
                a("s_cbranch_scc1 NOP10")
            a("s_mov_b32 m0, s61")
            a(f"buffer_load_dwordx4 v{T0}, s[{R_P}:{R_P+3}], s61 offen sc1 lds")
            a("s_add_u32 s61, s61, 8192")
        a.label("NOP10")
        a(f"s_cmp_lt_u32 s{S_OLD}, {opt('tlast', 7)}")
        a("s_cbranch_scc1 T_DONE")
        prework("T_P2")
        a.label("T_DONE")
    else:
        a("s_waitcnt vmcnt(0)")
        for f in range(20):
            if f % 4 == 0 and f:
                a("s_add_u32 s55, s55, 4096")
            a(f"buffer_load_dwordx4 {vr(WF+4*f,4)}, v{T0}, s[{R_W}:{R_W+3}], s55 offen offset:{(f%4)*1024}")
        a("s_barrier")
        stamp(a, 9, late=True)
        a(f"s_lshl_b32 s55, s{S_WAVE}, 10")
        for k in range(10):
            if k == 9:
                a(f"s_cmp_ge_u32 s{S_WAVE}, 4")
                a("s_cbranch_scc1 NOP10")
            a("s_mov_b32 m0, s55")
            a(f"buffer_load_dwordx4 v{T0}, s[{R_P}:{R_P+3}], s55 offen sc1 lds")
            a("s_add_u32 s55, s55, 8192")
        a.label("NOP10")
    a(f"v_lshlrev_b32 v{T0+8}, 1, v{T0+4}")
    a(f"s_lshl_b32 s57, s54, 9")
    a(f"s_cmp_eq_u32 s{S_R0}, 0")
    a("s_cbranch_scc1 ZEROD")
    for i in range(8):
        a(f"buffer_load_dwordx4 {vr(D+4*i,4)}, v{T0+8}, s[{R_ACC}:{R_ACC+3}], s57 offen offset:{(i//2)*128 + (i%2)*16} sc1")
    a("s_branch HAVED")
    a.label("ZEROD")
    for i in range(32):
        a(f"v_mov_b32 v{D+i}, 0")
    a.label("HAVED")
    if NEWTAIL:
        t = T0 + 9
        a(f"s_cmp_eq_u32 s{S_NN}, {NPB}")
        a(f"s_mov_b32 s58, {-(-8*65536 // (N - 255*NPB))}")
        a(f"s_cmov_b32 s58, {-(-8*65536 // NPB)}")
        a(f"v_mul_u32_u24 v{T0+3}, s58, v{T0+1}")
        a(f"v_lshrrev_b32 v{T0+3}, 16, v{T0+3}")
        a(f"v_min_u32 v{T0+3}, 7, v{T0+3}")
        a(f"v_mad_u32_u24 v{T0+5}, v{T0+3}, s{S_NN}, 7")
        a(f"v_add_u32 v{T0+6}, s{S_NN}, v{T0+5}")
        a(f"v_lshrrev_b32 v{T0+5}, 3, v{T0+5}")
        a(f"v_lshrrev_b32 v{T0+6}, 3, v{T0+6}")
        a(f"v_lshrrev_b32 v{t}, 1, v{T0+3}")
        a(f"v_and_b32 v{T0+3}, 1, v{T0+3}")
        a(f"v_lshl_add_u32 v{t}, v{T0+3}, 2, v{t}")
        a(f"v_mul_u32_u24 v{t}, {RING_W}, v{t}")
        a(f"v_add_u32 v{t}, {L_RING}, v{t}")
        a(f"v_add_u32 v{t}, v{t}, v{T0+2}")
        a(f"v_sub_u32 v{T0+5}, v{T0+1}, v{T0+5}")
        a(f"s_movk_i32 s58, {P_NODE}")
        a(f"v_mad_u32_u24 v{T0+5}, v{T0+5}, s58, v{t}")
        a(f"v_add_u32 v{t+1}, 1, v{T0+1}")
        a(f"v_cmp_eq_u32 vcc, v{t+1}, v{T0+6}")
        a(f"v_mad_u32_u24 v{T0+6}, v{T0+1}, s58, v{T0+2}")
        a(f"v_add_u32 v{T0+6}, {P_HALF}, v{T0+6}")
        a(f"v_add_u32 v{t}, {P_NODE}, v{T0+5}")
        a(f"v_cndmask_b32 v{T0+6}, v{T0+6}, v{t}, vcc")
        a("s_lshl_b32 s54, s54, 6")
    else:
        a(f"v_mul_u32_u24 v{T0+5}, {P_NODE}, v{T0+1}")
        a(f"v_add_u32 v{T0+5}, v{T0+5}, v{T0+2}")
        a(f"v_add_u32 v{T0+6}, {P_HALF}, v{T0+5}")
        a("s_lshl_b32 s54, s54, 6")
    a("s_mov_b32 s62, 0")
    a("s_waitcnt vmcnt(0)")
    a("s_barrier")
    stamp(a, 10, late=True)
    a.label("T_MM")
    seq = []
    for comp, ts in enumerate(([P0, P1], [P2[0], P3[0], P4[0]], [P2[1], P3[1], P4[1]], [P2[2], P3[2], P4[2]])):
        for t in ts:
            for h in range(2):
                seq.append((comp, t, h))
    for i, (comp, t, h) in enumerate(seq):
        a(f"ds_read_b128 {vr(PF+4*i,4)}, v{T0+5+h} offset:{t*64}")
        if i == 14:
            a("s_waitcnt lgkmcnt(7)")
    for i, (comp, t, h) in enumerate(seq):
        if i >= 8:
            a(f"s_waitcnt lgkmcnt({21 - i})")
        for mt in range(2):
            d = vr(D + 8 * comp + 4 * mt, 4)
            a(f"v_mfma_f32_16x16x32_bf16 {d}, {vr(WF + 4*(10*mt + 2*TPATH[t] + h),4)}, {vr(PF+4*i,4)}, {d}")
    if PROF == 7:
        stamp(a, 4)
    a(f"s_or_b32 s63, s{S_LAST}, s62")
    a("s_cbranch_scc0 MORE")
    for i in range(8):
        a(f"v_mul_f32 v{i}, 0xbfb8aa3b, v{D+i}")
    for i in range(8):
        a(f"v_exp_f32 v{i}, v{i}")
    for i in range(8):
        a(f"v_add_f32 v{i}, 1.0, v{i}")
    for i in range(8):
        a(f"v_rcp_f32 v{i}, v{i}")
    a("s_cmp_lg_u32 s62, 0")
    for comp in range(4):
        if comp:
            for i in range(8):
                a(f"v_mul_f32 v{D+8*comp+i}, v{D+8*comp+i}, v{i}")
        for i in range(4):
            a(f"v_cvt_pk_bf16_f32 v{8+4*comp+i}, v{D+8*comp+2*i}, v{D+8*comp+2*i+1}")
        if DRY:
            a(f"s_cbranch_scc1 {'T_RET' if comp == 3 else 'T_S%d' % comp}")
        a(f"buffer_store_dwordx4 {vr(8+4*comp,4)}, v{T0+4}, s[{R_OUT}:{R_OUT+3}], s54 offen offset:{128*comp}{OPOL}")
        if DRY and comp < 3:
            a.label(f"T_S{comp}")
    if PROF == 7:
        stamp(a, 7)
    if PROF:
        a("s_waitcnt vmcnt(0)")
    stamp(a, 11, late=True)
    stamp(a, 15, True)
    prof_dump(a, 98, 1, 3, S_WAVE)
    if opt("amp", 0):
        a("s_cmp_lg_u32 s2, 100")
        a("s_cbranch_scc1 K2_end")
        srd(a, 4, 98, WS_PROF + 100 * 1024, 64)
        a("v_mov_b32 v0, 0")
        a("buffer_load_dword v2, v0, s[4:7], 0 offen")
        a("buffer_load_dword v3, v0, s[4:7], 0 offen offset:60")
        a("s_waitcnt vmcnt(0)")
        a("v_readfirstlane_b32 s60, v2")
        a("v_readfirstlane_b32 s61, v3")
        lo, hi = {1: ("s60", f"s{S_PROF}"), 2: (f"s{S_PROF}", f"s{S_PROF+6}"), 3: (f"s{S_PROF+6}", f"s{S_PROF+9}"),
                  4: ("s60", "s61"), 5: ("s60", "s60")}[opt("amp", 0)]
        a(f"s_sub_u32 s62, {hi}, {lo}")
        a("s_min_u32 s62, s62, 10000")
        a("s_lshl_b32 s62, s62, 2")
        a("s_add_u32 s62, s62, 1000")
        a.label("AMPL")
        a("s_memrealtime s[80:81]")
        a("s_waitcnt lgkmcnt(0)")
        a(f"s_sub_u32 s63, s80, s{S_PROF+15}")
        a("s_cmp_lt_u32 s63, s62")
        a("s_cbranch_scc1 AMPL")
    if PROF == 4:
        a("s_lshl_b32 s80, s2, 3")
        a(f"s_add_u32 s80, s80, s{S_WAVE}")
        a("s_lshl_b32 s80, s80, 8")
        a(f"s_add_u32 s80, s80, {WS_PROF + 0x200000}")
        srd(a, 4, 98, "s80", 256)
        a(f"v_lshlrev_b32 v0, 2, v{LANE}")
        a("buffer_store_dword v183, v0, s[4:7], 0 offen")
    if PROF == 3:
        a("s_load_dwordx2 s[54:55], s[0:1], 80")
        a("s_min_u32 s80, s2, 249")
        a("s_lshl_b32 s80, s80, 10")
        a(f"s_add_u32 s80, s80, {WS_PROF}")
        srd(a, 4, 98, "s80", 64)
        a("v_mov_b32 v0, 0")
        a("buffer_load_dword v2, v0, s[4:7], 0 offen")
        a("buffer_load_dword v3, v0, s[4:7], 0 offen offset:8")
        a("buffer_load_dword v4, v0, s[4:7], 0 offen offset:24")
        a("buffer_load_dword v5, v0, s[4:7], 0 offen offset:60")
        a("s_waitcnt vmcnt(0) lgkmcnt(0)")
        srd(a, 4, 54, 0, 256)
        a("v_not_b32 v2, v2")
        a("s_mov_b64 exec, 1")
        for i in range(4):
            a(f"buffer_atomic_umax v{2+i}, v0, s[4:7], 0 offen offset:{4*i}")
        a(f"v_not_b32 v2, s{S_PROF}")
        a("buffer_atomic_umax v2, v0, s[4:7], 0 offen offset:16")
        for i, st in enumerate((0, 2, 3, 4, 6, 7, 8, 9, 10, 15)):
            a(f"v_mov_b32 v{3+i}, s{S_PROF+st}")
            a(f"buffer_atomic_umax v{3+i}, v0, s[4:7], 0 offen offset:{20+4*i}")
    a("s_endpgm")
    a.label("MORE")
    for i in range(8):
        a(f"buffer_store_dwordx4 {vr(D+4*i,4)}, v{T0+8}, s[{R_ACC}:{R_ACC+3}], s57 offen offset:{(i//2)*128 + (i%2)*16}")
    a(f"s_lshl_b32 s54, s{S_WAVE}, 6")
    a(f"v_add_u32 v{TID}, s54, v{LANE}")
    a(f"s_add_u32 s{S_R0}, s{S_R0}, s{S_LEN}")
    a("s_waitcnt vmcnt(0)")
    a("s_barrier")
    a("s_branch ROUND")
    a.label("K2_end")
    a("s_endpgm")
    return a


def descriptor(name, nv, ns):
    return f""".amdhsa_kernel {name}
  .amdhsa_next_free_vgpr {nv}
  .amdhsa_next_free_sgpr {ns}
  .amdhsa_accum_offset {(nv + 3) // 4 * 4}
  .amdhsa_group_segment_fixed_size 0
  .amdhsa_kernarg_size 96
  .amdhsa_user_sgpr_count 2
  .amdhsa_user_sgpr_kernarg_segment_ptr 1
  .amdhsa_system_sgpr_workgroup_id_x 1
  .amdhsa_float_denorm_mode_32 3
.end_amdhsa_kernel
"""


def main():
    ref = open(os.path.join(os.path.dirname(os.path.abspath(__file__)), "..", "cdna_kernels", NAME + ".s.ref")).read()
    head = [l for l in ref.split("\n") if l.startswith(";") and "@launch" not in l and "Override" not in l
            and "grid=ceil" not in l]
    k1, k2 = "edge_sort_kernel", NAME + "_kernel"
    out = head + ([] if FUSED else [f"; @launch kernel={k1} grid=(255,1,1) block=(1024,1,1) lds={K1_LDS}"]) + [
        f"; @launch kernel={k2} grid=(256,1,1) block=(512,1,1) lds={K2_LDS}",
        ";",
        "; edge_sort_kernel: each workgroup sorts 3200 edges by destination bin (49 nodes) through LDS and writes",
        ";   the edge attributes, a 12-byte record (source row, node in bin, rhat) and a segment table to d_ws;",
        ";   it also splits x into two 32-channel tables and lays out the weights for the second kernel.",
        "; main kernel: one workgroup per bin. It stages the bin's edges in LDS, sorts them by node, and for each",
        ";   node and channel half accumulates T[k, a, b, c] = sum_e e[k] * (1, rhat)[a] * x[src][b, c] with MFMA",
        ";   (x rows gathered by LDS-DMA), contracts k with w_rad, then applies w_si0 / w_si1 and the gate.",
        ";   Bins that exceed the LDS capacity are processed in several rounds.",
        '.amdgcn_target "amdgcn-amd-amdhsa--gfx950"',
        ".text",
    ]
    for name, fn in ((k1, kernel1), (k2, kernel2))[FUSED:]:
        lines, nops = fn().finish()
        print(name, "instructions:", len(lines), "nops inserted:", nops, file=sys.stderr)
        out += [f".globl {name}", ".p2align 8", f".type {name},@function", f"{name}:"] + lines
    out += ['.section .rodata,"a"'] + ([] if FUSED else [".p2align 6", descriptor(k1, 96, 102)])
    out += [".p2align 6", descriptor(k2, NVGPR, 102)]
    open(sys.argv[1], "w").write("\n".join(out))


if __name__ == "__main__":
    main()
```

```python
import os
import sys

sys.path.insert(0, os.path.dirname(os.path.abspath(__file__)))
from asmlib import Asm, vr, sr

NAME = "gather_scatter__tensor_product_equiv_equiformer__graph"
N, E = 12500, 800000
CHUNK, W = 3200, 250
NPB = 49
NBIN = 256

WS_TAB = 0
WS_WTAB = 0x40000
WS_WSI = 0x48000
WS_META = 0x100000
WS_XP = 0xB00000
WS_EP = 0x1200000
WS_P = 0x2B00000
P_NODE = 784
P_HALF = NPB * P_NODE
P_WG = 0x13000
WS_ACC = 0x4000000
XHALF = N * 256

OPT = dict(a.split("=") for a in sys.argv[2:] if "=" in a)


def opt(name, default):
    return type(default)(OPT.get(name, default))


PROF = opt("prof", 0)
WS_PROF = 0x6000000
S_PROF = 82
FUSED = opt("fused", 0)


def preg(i):
    if FUSED:
        return {0: 82, 6: 83, 9: 90, 10: 91, 11: 92, 12: 93, 13: 94, 15: 95}.get(i)
    return S_PROF + i


def stamp(a, i, real=False, late=False, k1=False):
    if k1:
        i = {2: None, 4: None, 6: 10, 8: 11}[i]
        if i is None or PROF != 5:
            return
    elif PROF == 5 and i not in (0, 15, 6, 9):
        return
    if PROF and not (late and PROF == 2):
        a("s_waitcnt lgkmcnt(0)")
        a(("s_memrealtime" if real or PROF in (3, 5) else "s_memtime") + " s[80:81]")
        a("s_waitcnt lgkmcnt(0)")
        a(f"s_mov_b32 s{preg(i)}, s80")
        if PROF == 4 and i == 7:
            a("s_memrealtime s[80:81]" if opt("rt", 0) else "s_memtime s[80:81]")


def prof_dump(a, wsreg, kern, nwave_shift, wavereg):
    if PROF:
        a(f"s_lshl_b32 s80, s2, {nwave_shift}")
        a(f"s_add_u32 s80, s80, s{wavereg}")
        a("s_lshl_b32 s80, s80, 6")
        a(f"s_add_u32 s80, s80, {WS_PROF + kern * 0x100000}")
        srd(a, 4, wsreg, "s80", 64)
        a("v_mov_b32 v0, 0")
        for i in range(16):
            if preg(i) is None:
                continue
            a(f"v_mov_b32 v1, s{preg(i)}")
            a(f"buffer_store_dword v1, v0, s[4:7], 0 offen offset:{4*i}")


def srd(a, d, b, off, size):
    a(f"s_add_u32 s{d}, s{b}, {off}")
    a(f"s_addc_u32 s{d+1}, s{b+1}, 0")
    a(f"s_mov_b32 s{d+2}, {size}")
    a(f"s_mov_b32 s{d+3}, 0x20000")


def scan64(a, v):
    for sh in (1, 2, 4, 8):
        a(f"v_add_u32_dpp v{v}, v{v}, v{v} row_shr:{sh} row_mask:0xf bank_mask:0xf bound_ctrl:1")
    a(f"v_add_u32_dpp v{v}, v{v}, v{v} row_bcast:15 row_mask:0xa bank_mask:0xf")
    a(f"v_add_u32_dpp v{v}, v{v}, v{v} row_bcast:31 row_mask:0xc bank_mask:0xf")


K1_ERAW = 0
K1_MS = 102400
K1_INV = K1_MS + 38400
K1_HIST = K1_INV + 6400
K1_LDS = 152 * 1024


def prep_tables(a, ST):
    a("v_add_u32 v4, s60, v0")
    a("v_and_b32 v5, 3, v4")
    a("v_bfe_u32 v6, v4, 2, 4")
    a("v_bfe_u32 v7, v4, 6, 2")
    a("v_lshrrev_b32 v8, 8, v4")
    a("v_cmp_le_u32 vcc, 10, v8")
    a("v_cndmask_b32 v9, 0, 1, vcc")
    a("v_mul_u32_u24 v10, 10, v9")
    a("v_sub_u32 v10, v8, v10")
    a("v_lshl_add_u32 v11, v7, 2, v5")
    a("v_mul_u32_u24 v11, 320, v11")
    a("v_lshrrev_b32 v12, 1, v10")
    a("v_lshl_add_u32 v11, v12, 6, v11")
    a("v_lshl_add_u32 v11, v9, 5, v11")
    a("v_and_b32 v12, 1, v10")
    a("v_lshl_add_u32 v11, v12, 4, v11")
    a("v_add_u32 v11, v11, v6")
    a("v_lshlrev_b32 v11, 1, v11")
    a("buffer_load_ushort v13, v11, s[16:19], 0 offen")
    a("v_mov_b32 v30, 0x80000000")
    for t in range(2):
        b = 32 + 8 * t
        a(f"v_add_u32 v14, {20*t}, v8")
        a("v_mul_u32_u24 v15, 26, v14")
        a("v_lshrrev_b32 v15, 8, v15")
        a("v_mul_u32_u24 v16, 10, v15")
        a("v_sub_u32 v16, v14, v16")
        a("v_lshrrev_b32 v17, 1, v16")
        a("v_and_b32 v18, 1, v16")
        a("v_lshl_add_u32 v19, v7, 2, v5")
        a("v_lshl_add_u32 v19, v18, 5, v19")
        a("v_lshl_add_u32 v19, v17, 6, v19")
        a("v_lshrrev_b32 v20, 1, v15")
        a("v_and_b32 v21, 1, v15")
        a("v_lshrrev_b32 v22, 2, v6")
        a("v_lshlrev_b32 v22, 3, v22")
        a("v_lshl_add_u32 v22, v20, 5, v22")
        a("v_lshl_add_u32 v22, v21, 2, v22")
        a("v_and_b32 v23, 3, v6")
        a("v_add_u32 v22, v22, v23")
        a("v_lshl_add_u32 v22, v19, 6, v22")
        a("v_lshlrev_b32 v22, 1, v22")
        a("v_subrev_u32 v23, 16384, v22")
        a("v_cmp_gt_u32 vcc, 2, v17")
        a("v_cndmask_b32 v24, v30, v22, vcc")
        a("v_cndmask_b32 v25, v23, v30, vcc")
        a(f"buffer_load_ushort v{b}, v24, s[20:23], 0 offen")
        a(f"buffer_load_ushort v{b+1}, v24, s[20:23], 0 offen offset:2048")
        a(f"buffer_load_ushort v{b+2}, v25, s[24:27], 0 offen")
        a(f"buffer_load_ushort v{b+3}, v25, s[24:27], 0 offen offset:2048")
    a("v_lshlrev_b32 v4, 2, v4")
    a("s_mov_b32 s61, 20480")
    a("s_waitcnt vmcnt(0)")
    a("v_lshlrev_b32 v13, 16, v13")
    a("buffer_store_dword v13, v4, s[28:31], 0 offen" + ST)
    for t in range(2):
        b = 32 + 8 * t
        a(f"v_or_b32 v{b}, v{b}, v{b+2}")
        a(f"v_or_b32 v{b+1}, v{b+1}, v{b+3}")
        a(f"v_lshl_or_b32 v{b}, v{b+1}, 16, v{b}")
        a(f"buffer_store_dword v{b}, v4, s[32:35], {'0' if t == 0 else 's61'} offen{ST}")


def kernel1():
    a = Asm()
    NT = " nt" if opt("k1nt", 1) else ""
    ST = {0: "", 1: " nt", 2: " sc1"}[opt("k1st", 2)]
    a("s_cmp_ge_u32 s2, 255")
    a("s_cbranch_scc1 K1_end")
    a("s_load_dwordx8 s[4:11], s[0:1], 0")
    a("s_load_dwordx8 s[52:59], s[0:1], 32")
    a("s_load_dwordx2 s[14:15], s[0:1], 88")
    a("v_lshlrev_b32 v1, 4, v0")
    a("v_mul_u32_u24 v2, 24, v0")
    a("v_and_b32 v3, 63, v0")
    a("v_lshlrev_b32 v3, 4, v3")
    a("v_lshrrev_b32 v40, 6, v0")
    a("v_readfirstlane_b32 s3, v40")
    a("s_cmp_ge_u32 s2, 250")
    a("s_cbranch_scc1 K1_prep")
    stamp(a, 0, True)
    stamp(a, 1)
    a("s_mul_i32 s60, s2, 12800")
    a("s_mul_i32 s61, s2, 19200")
    a("s_mul_i32 s62, s2, 25600")
    a("s_mul_i32 s63, s2, 102400")
    a("s_mul_i32 s64, s2, 38400")
    a("s_lshl_b32 s65, s2, 10")
    a("s_waitcnt lgkmcnt(0)")
    srd(a, 16, 52, "s60", 12800)
    a(f"buffer_load_dwordx4 v[4:7], v1, s[16:19], 0 offen{NT}")
    a("v_lshlrev_b32 v41, 2, v0")
    a("v_mov_b32 v42, 0")
    a("s_cmp_ge_u32 s3, 4")
    a("s_cbranch_scc1 K1_nozero")
    a(f"v_add_u32 v41, {K1_HIST}, v41")
    a("ds_write_b32 v41, v42")
    a.label("K1_nozero")
    srd(a, 20, 10, "s60", 12800)
    srd(a, 24, 6, "s61", 19200)
    srd(a, 28, 4, "s62", 25600)
    srd(a, 32, 8, "s63", 102400)
    a("s_mov_b32 s66, 16384")
    a("s_lshl_b32 s67, s3, 10")
    kq = [int(c) for c in opt("kq", "00700")]

    def e_in(i):
        for k in range(sum(kq[:i]), sum(kq[:i + 1])):
            if k == 6:
                a("s_cmp_ge_u32 s3, 4")
                a("s_cbranch_scc1 K1_noe7")
            a("s_mov_b32 m0, s67")
            a(f"buffer_load_dwordx4 v3, s[32:35], s67 offen{NT} lds")
            a("s_add_u32 s67, s67, 16384")
            if k == 6:
                a.label("K1_noe7")

    def n_e(lo, hi):
        return min(sum(kq[:hi + 1]), 6) - min(sum(kq[:lo]), 6)

    e_in(0)
    a("s_waitcnt lgkmcnt(0)")
    a("s_barrier")
    RNT = NT if opt("rnt", 1) else ""
    a(f"buffer_load_dwordx4 v[8:11], v1, s[20:23], 0 offen{NT}")
    a(f"buffer_load_dwordx4 v[12:15], v2, s[24:27], 0 offen{RNT}")
    a(f"buffer_load_dwordx2 v[16:17], v2, s[24:27], 0 offen offset:16{RNT}")
    if opt("k1b2", 1):
        a("s_barrier")
    e_in(1)
    a(f"buffer_load_dwordx4 v[20:23], v1, s[28:31], 0 offen{NT}")
    a(f"buffer_load_dwordx4 v[24:27], v1, s[28:31], s66 offen{NT}")
    e_in(2)
    a("s_add_u32 s68, s64, %d" % WS_META)
    srd(a, 36, 14, "s68", 38400)
    a("s_add_u32 s68, s63, %d" % WS_EP)
    srd(a, 40, 14, "s68", 102400)
    srd(a, 44, 14, WS_XP, 2 * XHALF)
    srd(a, 48, 14, "s65", 1024)
    a("v_cmp_gt_u32 vcc, 800, v0")
    a("s_mov_b64 s[70:71], vcc")
    a("v_mov_b32 v43, 1")
    a(f"s_waitcnt vmcnt({5 + n_e(0, 2)})")
    stamp(a, 2)
    a("s_mov_b64 exec, s[70:71]")
    a("s_cbranch_execz K1_skip_rank")
    for i in range(4):
        a(f"v_mul_u32_u24 v{28+i}, 21400, v{4+i}")
        a(f"v_lshrrev_b32 v{28+i}, 20, v{28+i}")
        a(f"v_mul_u32_u24 v{36+i}, 49, v{28+i}")
        a(f"v_sub_u32 v{36+i}, v{4+i}, v{36+i}")
        a(f"v_lshlrev_b32 v{28+i}, 2, v{28+i}")
        a(f"v_add_u32 v{28+i}, {K1_HIST}, v{28+i}")
        a(f"ds_add_rtn_u32 v{32+i}, v{28+i}, v43")
    a.label("K1_skip_rank")
    a("s_mov_b64 exec, -1")
    a("s_waitcnt lgkmcnt(0)")
    a("s_barrier")
    stamp(a, 3)
    a("s_cmp_lg_u32 s3, 0")
    a("s_cbranch_scc1 K1_noscan")
    a(f"v_add_u32 v41, {K1_HIST}, v3")
    a("ds_read_b128 v[44:47], v41")
    a("s_waitcnt lgkmcnt(0)")
    a("v_add_u32 v49, v44, v45")
    a("v_add_u32 v50, v49, v46")
    a("v_add_u32 v51, v50, v47")
    a("v_mov_b32 v52, v51")
    scan64(a, 52)
    a("v_sub_u32 v52, v52, v51")
    a("v_add_u32 v53, v52, v44")
    a("v_add_u32 v54, v52, v49")
    a("v_add_u32 v55, v52, v50")
    a("ds_write_b128 v41, v[52:55]")
    for i in range(4):
        a(f"v_lshl_or_b32 v{56+i}, v{44+i}, 16, v{52+i}")
    a("buffer_store_dwordx4 v[56:59], v3, s[48:51], 0 offen")
    a("s_waitcnt lgkmcnt(0)")
    a.label("K1_noscan")
    e_in(3)
    a("v_lshrrev_b32 v60, 5, v0")
    a("s_mul_i32 s69, s2, 50")
    a("v_add_u32 v60, s69, v60")
    a("v_lshlrev_b32 v60, 8, v60")
    a("v_bfe_u32 v61, v0, 3, 2")
    a("v_lshl_add_u32 v60, v61, 6, v60")
    a("v_and_b32 v61, 3, v0")
    a("v_lshl_add_u32 v60, v61, 4, v60")
    a("v_bfe_u32 v61, v0, 2, 1")
    a(f"v_mul_u32_u24 v61, {XHALF}, v61")
    a("v_add_u32 v60, v60, v61")
    a("v_add_u32 v61, 8192, v60")
    a("v_cmp_gt_u32 vcc, 576, v0")
    a("v_mov_b32 v62, 0x80000000")
    a("v_cndmask_b32 v61, v62, v61, vcc")
    a("s_barrier")
    a("s_mov_b64 exec, s[70:71]")
    a("s_cbranch_execz K1_skip_scatter")
    for i in range(4):
        a(f"ds_read_b32 v{28+i}, v{28+i}")
    a(f"s_waitcnt vmcnt({2 + n_e(1, 3)})")
    a("s_mov_b32 s72, 0x80000000")
    a("s_mov_b32 s73, 0xffff0000")
    for i in range(4):
        a(f"v_lshl_or_b32 v{8+i}, v{8+i}, 8, v{36+i}")
        a(f"v_or_b32 v{8+i}, s72, v{8+i}")
    a("v_lshlrev_b32 v44, 16, v13")
    a("v_alignbit_b32 v45, v14, v13, 16")
    a("v_and_b32 v46, s73, v14")
    a("v_lshlrev_b32 v47, 16, v16")
    a("v_alignbit_b32 v48, v17, v16, 16")
    a("v_and_b32 v49, s73, v17")
    w1 = [12, 45, 15, 48]
    w2 = [44, 46, 47, 49]
    a("v_lshlrev_b32 v50, 2, v0")
    a("s_waitcnt lgkmcnt(0)")
    for i in range(4):
        a(f"v_add_u32 v{32+i}, v{32+i}, v{28+i}")
        a(f"v_mul_u32_u24 v{28+i}, 12, v{32+i}")
        a(f"v_add_u32 v{28+i}, {K1_MS}, v{28+i}")
        a(f"ds_write2_b32 v{28+i}, v{8+i}, v{w1[i]} offset0:0 offset1:1")
        a(f"ds_write_b32 v{28+i}, v{w2[i]} offset:8")
        a(f"v_lshlrev_b32 v{32+i}, 1, v{32+i}")
        a(f"v_add_u32 v{32+i}, {K1_INV}, v{32+i}")
        a(f"v_add_u32 v{52+i}, {i}, v50")
        a(f"ds_write_b16 v{32+i}, v{52+i}")
    a.label("K1_skip_scatter")
    a("s_mov_b64 exec, -1")
    a(f"s_waitcnt vmcnt({n_e(2, 3)})")
    a(f"buffer_store_dwordx4 v[20:23], v60, s[44:47], 0 offen{ST}")
    a(f"buffer_store_dwordx4 v[24:27], v61, s[44:47], 0 offen{ST}")
    e_in(4)
    a("s_waitcnt lgkmcnt(0)")
    a("s_barrier")
    stamp(a, 4)
    a(f"v_add_u32 v41, {K1_MS}, v1")
    a("ds_read_b128 v[4:7], v41")
    a("ds_read_b128 v[8:11], v41 offset:16384")
    a("ds_read_b128 v[12:15], v41 offset:32768")
    a("v_and_b32 v42, 0x3fe, v0")
    a(f"v_add_u32 v42, {K1_INV}, v42")
    for k in range(7):
        a(f"ds_read_u16 v{28+k}, v42 offset:{1024*k}")
    a("v_and_b32 v43, 1, v0")
    a("v_lshlrev_b32 v43, 4, v43")
    a("s_mov_b32 s74, 32768")
    a("s_waitcnt lgkmcnt(7)")
    a(f"buffer_store_dwordx4 v[4:7], v1, s[36:39], 0 offen{ST}")
    a(f"buffer_store_dwordx4 v[8:11], v1, s[36:39], s66 offen{ST}")
    a(f"buffer_store_dwordx4 v[12:15], v1, s[36:39], s74 offen{ST}")
    a("s_waitcnt lgkmcnt(0)")
    for k in range(7):
        a(f"v_lshl_add_u32 v{28+k}, v{28+k}, 5, v43")
    stamp(a, 5)
    a(f"s_waitcnt vmcnt({3 if kq[4] else 5})")
    a("s_barrier")
    stamp(a, 6)
    for k in range(6):
        a(f"ds_read_b128 v[{64+4*k}:{67+4*k}], v{28+k}")
    a("s_mov_b32 s75, 0")
    for k in range(6):
        a(f"s_waitcnt lgkmcnt({5-k})")
        a(f"buffer_store_dwordx4 v[{64+4*k}:{67+4*k}], v1, s[40:43], s75 offen{ST}")
        a("s_add_u32 s75, s75, 16384")
    a("s_cmp_ge_u32 s3, 4")
    a("s_cbranch_scc1 K1_fin")
    a("ds_read_b128 v[88:91], v34")
    a("s_waitcnt lgkmcnt(0)")
    a(f"buffer_store_dwordx4 v[88:91], v1, s[40:43], s75 offen{ST}")
    a.label("K1_fin")
    if opt("cpf", 2) & 4:
        a(f"s_cmp_ge_u32 s2, {opt('cpn', 8)}")
        a("s_cbranch_scc1 K1_nocpf")
        a("s_getpc_b64 s[76:77]")
        a.label("K1_here2")
        a("s_mov_b32 s78, K2_end-K1_here2")
        a("s_mov_b32 s79, 0x20000")
        a("v_lshlrev_b32 v60, 7, v0")
        a("buffer_load_dword v61, v60, s[76:79], 0 offen")
        a("s_waitcnt vmcnt(0)")
        a.label("K1_nocpf")
    stamp(a, 7)
    if PROF:
        a("s_waitcnt vmcnt(0)")
    stamp(a, 8)
    stamp(a, 15, True)
    prof_dump(a, 14, 0, 4, 3)
    a("s_endpgm")

    a.label("K1_prep")
    a("s_waitcnt lgkmcnt(0)")
    srd(a, 16, 54, 0, 16 * 320 * 2)
    srd(a, 20, 56, 0, 128 * 64 * 2)
    srd(a, 24, 58, 0, 192 * 64 * 2)
    srd(a, 28, 14, WS_WTAB, 20480)
    srd(a, 32, 14, WS_WSI, 40960)
    if opt("cpf", 2) & 2:
        a("s_getpc_b64 s[36:37]")
        a.label("K1_here")
        a("s_mov_b32 s38, K2_end-K1_here")
        a("s_mov_b32 s39, 0x20000")
        a("v_lshlrev_b32 v60, 7, v0")
        a("buffer_load_dword v61, v60, s[36:39], 0 offen")
    a("s_sub_u32 s60, s2, 250")
    a("s_lshl_b32 s60, s60, 10")
    prep_tables(a, "")
    a.label("K1_end")
    a("s_endpgm")
    return a


CAP = 3392
SLOWCAP = 256
MAXSTEPS = 142
MAXWSTEPS = 20
L_E = 0
L_RING = 32 + CAP * 32
RING_W = 6336
SUBB = 2112
L_SA = L_RING
L_SB = L_SA + MAXSTEPS * 128
L_MISC = L_SB + MAXSTEPS * 256
L_CNT = L_MISC
L_FLAG = L_MISC + 256
L_WSUM = L_MISC + 272
L_DUMMY = L_WSUM + 16
L_MAP = 94208
K2_LDS = 163840
assert L_MAP + CAP * 4 <= L_RING and L_DUMMY + 256 <= K2_LDS and L_RING + 8 * RING_W <= L_MISC

ACC = 0
WR = 88
B0 = 128
B1 = 144
GS, G0, G1, G2, N0, N2 = 160, 164, 168, 172, 176, 180
SEL = 184
M0R = 188
MBR = 198
GSP = (160, 252)
NID = 218
Y = 220
REP = 223
XA = 224
XOFF, QQ8, BAE, BAO, POFF, NST = 228, 230, 231, 232, 233, 234
U, PT, T8, EA = 236, 244, 235, 248
T0 = 236
TID, LANE = 250, 251
NVGPR = 256
XBIAS = 2048

S_WAVE = 3
R_XP, R_EP, R_MT, R_TB, R_P, R_W, R_OUT, R_ACC = 4, 8, 12, 16, 20, 24, 28, 32
S_NN, S_T, S_R0, S_LEN, S_CAP = 36, 37, 38, 39, 40
S_NODE0, S_NNW, S_STEP0, S_NS = 41, 42, 43, 44
S_D, S_REM, S_NODE, S_PHASE, S_TAB0, S_TAB1, S_RB, S_POFF = 45, 46, 47, 48, 49, 50, 51, 52
S_HI, S_SGN = 100, 101
S_MASK = 64
S_LAST = 78
S_NEND = 79
S_EM0 = 57
S_EVT = 59
S_OLD = 53
S_LEFT, S_PADR = 58, 63
S_PAT = 58
S_EGN = 63
NEWTAIL = opt('newtail', 0)
DRY = NEWTAIL and opt('dry', 0)
R_DBG = 76
R_FLG = 84
S_EB1, S_EB2, S_TAG = 88, 89, 96

PPOL = ["", " sc1", " nt", " sc0 sc1"][opt("ppol", 0)]
OPOL = ["", " sc1", " nt", " sc0 sc1"][opt("opol", 0)]

VC = opt("vc", 0)
HI = "v219" if VC else f"s{S_HI}"
SGN = f"v{TID}" if VC else f"s{S_SGN}"

TPATH = [0, 1, 2, 2, 2, 3, 3, 3, 4, 4, 4]
P0, P1 = 0, 1
P2 = [2, 3, 4]
P3 = [5, 6, 7]
P4 = [8, 9, 10]


def acc(t, cq):
    return ACC + 4 * (2 * t + cq)


def mfma_list():
    out = []
    for t, A, B, fl in ((P2[0], G0, B0, 1), (P1, G0, B0 + 8, 1), (P0, GS, B0, 1), (P3[0], GS, B0 + 8, 1),
                        (P2[2], G2, B0, 1), (P4[1], G2, B0 + 8, 1), (P2[1], G1, B0, 1), (P4[2], G1, B0 + 8, 1),
                        (P4[2], N0, B1, 0), (P4[1], N0, B1 + 8, 0), (P3[1], GS, B1, 1), (P3[2], GS, B1 + 8, 1),
                        (P4[0], N2, B1, 1), (P1, G2, B1 + 8, 0), (P1, G1, B1, 0), (P4[0], G1, B1 + 8, 0)):
        for cq in range(2):
            out.append((t, cq, A, B + 4 * cq, fl))
    if opt("chain", 1):
        n2, g2p1, g1p1, g1p4 = out[24:26], out[26:28], out[28:30], out[30:32]
        out[16], out[17] = out[17], out[16]
        out[24:32] = [g1p1[0], g2p1[0], g1p1[1], g2p1[1], n2[0], g1p4[0], n2[1], g1p4[1]]
    return out


def emit_mfma(a, m, first, p0, q0):
    t, cq, A, B, fl = m
    if A == GS:
        A = GSP[p0]
    if opt("nomfma", 0):
        return
    d = vr(acc(t, cq), 4)
    c = "0" if (first and fl) else d
    if q0:
        a(f"v_mfma_f32_16x16x16_bf16 {d}, {vr(A,2)}, {vr(B,2)}, {c}")
    else:
        a(f"v_mfma_f32_16x16x32_bf16 {d}, {vr(A,4)}, {vr(B,4)}, {c}")


def b_reads(k, pos):
    B = B0 if k < 2 else B1
    hf = k & 1
    return [f"ds_read_b64_tr_b16 {vr(B + 4*u + 2*hf, 2)}, v{BAE if u % 2 == 0 else BAO} offset:{pos*SUBB + u*32}"
            for u in range(4)]


def vmwait(n):
    return [] if opt("nowait", 0) else [f"s_waitcnt vmcnt({n})"]


def dma(k, pos):
    if opt("nodma", 0):
        return [[], [], []]
    hf, bp = k & 1, k >> 1
    so = S_TAB0 if bp == 0 else S_TAB1
    pol = ["", " sc1", " nt", " sc0 sc1", " sc0"][opt("xpol", 0)]
    return [[f"s_add_u32 m0, s{S_RB}, {pos*SUBB}"],
            [f"buffer_load_dwordx4 v{XA + 2*hf}, s[{R_XP}:{R_XP+3}], s{so} offen{pol} lds"],
            [f"buffer_load_dwordx4 v{XA + 2*hf + 1}, s[{R_XP}:{R_XP+3}], s{so} offen offset:1088{pol} lds"]]


W0_FETCH = [f"s_lshr_b32 s54, s{S_D}, 1",
            "s_set_gpr_idx_on s54, gpr_idx(SRC0)",
            f"v_mov_b32 v{REP}, v{M0R}",
            "s_set_gpr_idx_off"]
W0_REP = [f"v_mov_b32_dpp v{REP}, v{REP} row_shr:4 row_mask:0xf bank_mask:0xa",
          f"v_mov_b32_dpp v{REP}, v{REP} row_shl:4 row_mask:0xf bank_mask:0x5"]
WRAP = [f"s_mov_b32 s{S_D}, 0",
        f"s_add_u32 s{S_TAB0}, s{S_TAB0}, {XHALF}",
        f"s_add_u32 s{S_TAB1}, s{S_TAB1}, {XHALF}"]


def x_addr(q):
    return f"v_add_u32_dpp v{XA+q}, v{REP}, v{XOFF + (q & 1)} quad_perm:[{q},{q},{q},{q}] row_mask:0xf bank_mask:0xf"


META_SET = [f"s_set_gpr_idx_on s{S_D}, gpr_idx(SRC1)",
            f"v_mad_u32_u16 v{T8}, 8, v{MBR+1}, 0",
            f"v_lshlrev_b32 v{Y}, 16, v{MBR}",
            f"v_and_b32 v{Y+1}, {HI}, v{MBR}",
            f"v_and_b32 v{Y+2}, {HI}, v{MBR+1}",
            "s_set_gpr_idx_off"]


def e_addr(p):
    return [f"v_add_u32_dpp v{EA+h}, v{T8}, v{QQ8} quad_perm:[{2*p+h},{2*p+h},{2*p+h},{2*p+h}] "
            "row_mask:0xf bank_mask:0xf" for h in range(2)]


def e_reads(dst):
    return [f"ds_read_b64_tr_b16 {vr(dst + 2*h, 2)}, v{EA+h}" for h in range(2)]


def unpack_valu(aa, p):
    return [f"v_lshlrev_b32 v{U+2*aa}, 16, v{GSP[p]+aa}", f"v_and_b32 v{U+2*aa+1}, {HI}, v{GSP[p]+aa}"]


def gb(j, aa, p):
    if opt("nog", 0):
        return []
    hf, rl = aa >> 1, 2 * (aa & 1)
    pl = PT + 2 * (aa & 1)
    return [f"v_mul_f32_dpp v{pl}, v{Y+j}, v{U+2*aa} row_newbcast:{4*rl+2*p+hf} row_mask:0xf bank_mask:0xf",
            f"v_mul_f32_dpp v{pl+1}, v{Y+j}, v{U+2*aa+1} row_newbcast:{4*rl+4+2*p+hf} row_mask:0xf bank_mask:0xf",
            f"v_cvt_pk_bf16_f32 v{(G0, G1, G2)[j]+aa}, v{pl}, v{pl+1}"]


def neg(dst, src):
    return [f"v_xor_b32 v{dst+i}, {SGN}, v{src+i}" for i in range(4)]


SHORT = opt("short", 0)


def body_name(rho, kind, p0, p1):
    return f"S{rho}{kind}{p0}{p1}"


def goto_next(a, rho, kind, p1, fall=False):
    if p1 == 0:
        a(f"s_cmp_eq_u32 s{S_D}, 0")
        a(f"s_cbranch_scc1 {body_name(rho, kind, 0, 0)}")
    if not fall:
        a(f"s_branch {body_name(rho, kind, p1, 1 - p1)}")


def issue_cost(l):
    op = l.split()[0]
    if op.endswith(":"):
        return 0
    if op.startswith("v_"):
        return 5.3 if "_dpp" in op or op.startswith(("v_cvt_pk", "v_mad")) else 4.2
    return {"d": 8, "b": 14}.get(op[0], 4.1)


def step_body(a, rho, kind, p0, p1, fall, cold):
    tag = body_name(rho, kind, p0, p1)
    first = kind == "f"
    x = 3 if first else 0
    p = lambda k: (rho + k) % 3
    F = [[] for _ in range(32)]

    def event(slot, n, k, pos):
        F[slot] += vmwait(n)
        for i, r in enumerate(b_reads(k, pos)):
            F[slot + i].append(r)

    def refill(slot, k, pos):
        d = dma(k, pos)
        F[slot - 1] += d[0]
        F[slot] += [f"WAIT {k}"] + d[1]
        F[slot + 1] += d[2]

    event(0, 4 + x, 2, p(2))
    refill(5, 1, p(2))
    event(8, 4 + x, 3, p(0))
    refill(13, 2, p(0))
    event(16, 4 + x, 0, p(1))
    refill(21, 3, p(1))
    event(24, 4, 1, p(2))
    refill(29, 0, p(2))
    F[31] += [f"s_sub_u32 s{S_REM}, s{S_REM}, 1"]
    if PROF == 4:
        F[30] += ["s_memrealtime s[80:81]" if opt("rt", 0) else "s_memtime s[80:81]"]
        F[7] += ["s_mov_b32 m0, s96", "s_add_u32 s96, s96, 1", "v_writelane_b32 v219, s80, m0"]

    qb = 1 - p0
    n0, n2 = neg(N0, G0), neg(N2, G2)
    ea, er = e_addr(p1), e_reads(GSP[qb])
    step = [f"s_add_u32 s{S_D}, s{S_D}, 1", f"s_cmp_lt_u32 s{S_D}, s{S_NS}", f"s_cbranch_scc0 {tag}_w"]
    if p1 == 1:
        fetch = [step + [f"{tag}_b:"] + W0_FETCH]
        rep = [[W0_REP[0]]]
        cold += [f"{tag}_w:"] + WRAP + [f"s_branch {tag}_b"]
    else:
        fetch = [step + W0_FETCH + ["FILL", W0_REP[1], f"{tag}_b:"]]
        rep = []
        cold += [f"{tag}_w:"] + WRAP + W0_FETCH + ["FILL", W0_REP[0], f"s_branch {tag}_b"]
    one = lambda lst: [[l] for l in lst]
    g0 = gb(0, 0, p1) + gb(0, 1, p1) + gb(0, 2, p1) + gb(0, 3, p1)
    g2 = gb(2, 0, p1) + gb(2, 1, p1)
    V = [(0, 6, g) for g in one(gb(2, 2, p0) + gb(2, 3, p0))]
    V += [(0, 10, g) for g in one(gb(1, 0, p0) + gb(1, 1, p0) + gb(1, 2, p0) + gb(1, 3, p0))]
    if p1 == 0:
        V += [(7, 11, META_SET)]
    V += [(0, 14, g) for g in one(n0[:2])]
    V += [(0, 14, [ea[0]]), (0, 14, [ea[1]]), (11, 15, [er[0]]), (11, 15, [er[1]])]
    V += [(0, 14, g) for g in one(n0[2:])]
    V += [(0, 22, g) for g in one(n2)]
    up = sum((unpack_valu(aa, qb) for aa in range(4)), [])
    V += [(opt("upe", 15), 22, ["WAIT e", up[0]])] + [(0, 24, g) for g in one(up[1:])]
    nb = opt("nb", 7)
    V += [(16, 30, g) for g in one(g0[:nb])]
    V += [(22, 26, g) for g in fetch] + [(0, 30, [g0[nb]])] + [(0, 27, g) for g in rep]
    V += [(0, 30, g) for g in one(g0[nb+1:nb+3])]
    V += [(0, 28, [x_addr(0)]), (0, 28, [x_addr(1)])]
    V += [(0, 30, g) for g in one(g0[nb+3:])]
    V += [(0, 31, [x_addr(2)]), (0, 31, [x_addr(3)])]
    if qb != p1:
        V += [(24, 31, [f"v_mov_b32 v{GSP[p1]+i}, v{GSP[qb]+i}" for i in range(4)])]
    V += [(0, 31, g) for g in one(g2[:2])] + [(27, 31, [g2[2]])] + [(27, 31, g) for g in one(g2[3:])]
    filler = g0[nb] if p1 == 0 else None
    if filler:
        V = [v for v in V if v[2] != [filler]]
    cost = lambda grp: sum(issue_cost(l) for l in grp)
    total = sum(cost(f) for f in F) + sum(cost(v[2]) for v in V)
    out, cum, i = [], 0.0, 0
    for sl in range(32):
        cum += cost(F[sl])
        mine = []
        while i < len(V):
            e, late, grp = V[i]
            must = any(V[j][1] <= sl for j in range(i, len(V)))
            if sl < e:
                assert not must, (tag, sl, grp)
                break
            if not must and cum + cost(grp) / 2 > total * (sl + 1) / 32:
                break
            mine += grp
            cum += cost(grp)
            i += 1
        tail = [l for l in F[sl] if l.startswith("s_sub")]
        out.append(mine[:1] + [l for l in F[sl] if l not in tail] + mine[1:] + tail
                   if mine and not mine[0].startswith(("s_", "WAIT", "ds_")) else
                   [l for l in F[sl] if l not in tail] + mine + tail)
    assert i == len(V)
    if opt("sched", 0) == 0:
        F = [[] for _ in range(32)]

        def spread(slot, lst, per=2):
            for i, l in enumerate(lst):
                if l is not None:
                    F[slot + i // per].append(l)

        def event2(slot, n, k, pos):
            r = b_reads(k, pos)
            F[slot] += vmwait(n) + r[:2]
            F[slot + 1] += r[2:]

        spread(0, gb(2, 2, p0) + gb(2, 3, p0) + gb(1, 0, p0) + gb(1, 1, p0) + gb(1, 2, p0) + gb(1, 3, p0))
        event2(0, 4 + x, 2, p(2))
        refill(4, 1, p(2))
        event2(8, 4 + x, 3, p(0))
        if p1 == 0:
            F[9] += META_SET
            spread(10, n0[:2] + ea)
            spread(13, n0[2:] + n2)
        else:
            spread(9, n0[:2] + ea + n0[2:])
            spread(13, n2)
        refill(12, 2, p(0))
        F[13] += er
        event2(16, 4 + x, 0, p(1))
        F[17] += ["WAIT e"]
        spread(17, up)
        refill(20, 3, p(1))
        g = g0 + g2
        filler = g[0] if p1 == 0 else None
        F[21] += fetch[0]
        if p1 == 1:
            F[22] += rep[0] + [g[0]]
        spread(23 - (p1 == 0), g[1:3], 2 if p1 == 1 else 1)
        spread(24, [x_addr(0), g[3], x_addr(1), g[4]] + g[5:9] + [x_addr(2), g[9], x_addr(3)], 2)
        spread(28, g[10:12], 1)
        spread(29, g[12:], 2)
        if qb != p1:
            F[24] += [f"v_mov_b32 v{GSP[p1]+i}, v{GSP[qb]+i}" for i in range(4)]
        event2(24, 4, 1, p(2))
        refill(28, 0, p(2))
        if PROF == 4:
            F[29] += ["s_memrealtime s[80:81]" if opt("rt", 0) else "s_memtime s[80:81]"]
            F[6] += ["s_mov_b32 m0, s96", "s_add_u32 s96, s96, 1", "v_writelane_b32 v219, s80, m0"]
        if PROF == 6 and first:
            F[6] += ["s_sub_u32 s62, s62, s80", f"s_add_u32 s{S_PROF+14}, s{S_PROF+14}, s62"]
        F[31] += [f"s_sub_u32 s{S_REM}, s{S_REM}, 1"]
        out = F
    flat = [(sl, l) for sl in range(32) for l in out[sl]]
    need = {"1": b_reads(2, p(2)), "2": b_reads(3, p(0)), "3": b_reads(0, p(1)), "0": None, "e": er}
    a.label(tag)
    ml = mfma_list()
    for sl in range(32):
        emit_mfma(a, ml[sl], first, p0, 0)
        for l in out[sl]:
            if l.startswith("WAIT"):
                pos = flat.index((sl, l))
                ds = [y for _, y in flat[:pos] if y.startswith("ds_")]
                want = need[l.split()[1]]
                n = 0 if want is None else len(ds) - 1 - max(k for k, y in enumerate(ds) if y in want)
                assert want is None or all(w in ds for w in want)
                l = f"s_waitcnt lgkmcnt({n})"
            if l == "FILL":
                l = filler
            if opt("nods", 0) and (l.startswith("ds_") or l.startswith("s_waitcnt lgkm")):
                continue
            if opt("novalu", 0) and l.startswith("v_") and not l.startswith(("v_writelane", "v_mfma")):
                continue
            a(l)
    for k, l in enumerate(cold):
        if l == "FILL":
            cold[k] = filler
    nr = (rho + 1) % 3
    if fall == "n":
        a(f"s_cbranch_scc1 EP{nr}{p1}")
        goto_next(a, nr, "n", p1, True)
    else:
        if p1 == 1:
            a(f"s_cbranch_scc0 {body_name(nr, 'n', 1, 0)}")
        else:
            a(f"s_cbranch_scc0 {tag}_c")
            cold += [f"{tag}_c:", f"s_cmp_lg_u32 s{S_D}, 0", f"s_cbranch_scc1 {body_name(nr, 'n', 0, 1)}",
                     f"s_branch {body_name(nr, 'n', 0, 0)}"]
        if fall != "e":
            a(f"s_branch EP{nr}{p1}")


def node_steps(lane):
    return [f"v_readlane_b32 s{S_REM}, v{NST}, s{lane}"]


def load_w(a, h):
    a(f"s_mov_b32 s57, {10240*h}")
    a(f"v_lshlrev_b32 v67, 4, v{LANE}")
    for pc in range(10):
        if pc % 4 == 0 and pc:
            a("s_add_u32 s57, s57, 4096")
        a(f"buffer_load_dwordx4 {vr(WR+4*pc,4)}, v67, s[{R_W}:{R_W+3}], s57 offen offset:{(pc%4)*1024}")


def pipeline_start(a):
    def run(lst):
        for l in lst:
            a(l)

    def dma_now(k, pos):
        for g in dma(k, pos):
            run(g)

    if VC:
        a("v_mov_b32 v219, 0xffff0000")
        a(f"v_mov_b32 v{TID}, 0x80008000")
    run(W0_FETCH + [W0_REP[0]] + [x_addr(q) for q in range(4)])
    dma_now(0, 0)
    dma_now(1, 1)
    dma_now(2, 2)
    run(META_SET + e_addr(0))
    a(f"s_waitcnt vmcnt({0 if opt('nodma', 0) else 6})")
    a("s_barrier")
    stamp(a, 6)
    run(e_reads(GSP[0]))
    run(["s_waitcnt vmcnt(4)"] + b_reads(0, 0) + ["s_waitcnt lgkmcnt(0)"])
    dma_now(3, 0)
    for aa in range(4):
        run(unpack_valu(aa, 0))
    run([f"s_mov_b32 s{S_D}, 1", f"s_cmp_lt_u32 s{S_D}, s{S_NS}", "s_cbranch_scc0 I_w"] + W0_FETCH + [W0_REP[1]])
    a("s_branch I_b")
    run(["I_w:"] + WRAP + W0_FETCH + [W0_REP[0], "I_b:"])
    run([x_addr(q) for q in range(4)])
    run(["s_waitcnt vmcnt(4)"] + b_reads(1, 1))
    run(gb(0, 0, 0) + gb(0, 1, 0) + gb(0, 2, 0) + gb(0, 3, 0) + gb(2, 0, 0) + gb(2, 1, 0))
    if PROF == 6:
        a("s_mov_b32 s62, 0")
        a("s_mov_b32 s80, 0")
        a(f"s_mov_b32 s{S_PROF+14}, 0")
    if PROF == 4:
        a("s_memrealtime s[80:81]" if opt("rt", 0) else "s_memtime s[80:81]")
        a("s_mov_b32 s96, 0")
        a("v_mov_b32 v219, 0")
    a("s_waitcnt lgkmcnt(0)")
    dma_now(0, 1)
    load_w(a, 0)
    if opt("prio", 3) == 3:
        pat = opt("pat", "111110101010")
        a(f"s_mov_b32 s{S_PAT}, {int(pat[::-1], 2)}")
        a(f"s_cmp_eq_u32 s{S_NNW}, 7")
        a(f"s_cmov_b32 s{S_PAT}, {int(opt('pat7', '11111101010100')[::-1], 2)}")
        a(f"s_setprio {2 * int(pat[0])}")
    if opt("prio", 3) in (1, 3):
        a(f"s_cmp_lt_u32 s{S_WAVE}, 4")
        a("s_cbranch_scc1 I_p")
        a("s_setprio 1")
        a.label("I_p")
    goto_next(a, 0, "f", 0)


def epilogue(a, rho, p1, cold):
    tag = f"EP{rho}{p1}"
    a.label(tag)
    if PROF == 6:
        a("s_memtime s[80:81]")
    order = [P2[0], P0, P3[0], P2[2], P2[1], P4[2], P4[1], P3[1], P3[2], P1, P4[0]]
    book = [f"s_mul_i32 s55, s{S_NODE}, {P_NODE}",
            f"s_add_u32 s55, s55, s{S_POFF}",
            f"s_add_u32 s{S_NODE}, s{S_NODE}, 1",
            f"s_cmp_lt_u32 s{S_NODE}, s{S_NEND}",
            f"s_cselect_b32 s56, s{S_NODE}, -2",
            f"s_cselect_b32 s{S_NODE}, s{S_NODE}, s{S_NODE0}",
            *node_steps(S_NODE),
            *([f"s_lshl1_add_u32 s54, s{S_REM}, 2", f"s_sub_u32 s{S_LEFT}, s{S_LEFT}, s54"]
              if opt("prio", 3) == 2 else []),
            f"s_cmp_ge_u32 s56, s{S_EVT}"]
    if opt("prio", 3) == 2:
        a(f"v_mov_b32 v{B1+12}, s{S_PADR}")
        a(f"v_mov_b32 v{B1+13}, s{S_LEFT}")
        a(f"ds_wrxchg_rtn_b32 v{B1+14}, v{B1+12}, v{B1+13}")
    EPP = opt("epp", 0)

    def pattern_prio():
        if EPP:
            a("s_setprio 1")
        a(f"s_cmp_lt_u32 s{S_WAVE}, 4")
        a(f"s_cbranch_scc0 {tag}_p")
        a(f"s_lshr_b32 s{S_PAT}, s{S_PAT}, 1")
        a(f"s_bitcmp1_b32 s{S_PAT}, 0")
        a("s_setprio 0")
        a(f"s_cbranch_scc0 {tag}_p")
        a("s_setprio 2")
        a.label(f"{tag}_p")

    EG = opt("eg", 0)
    if opt("prio", 3) == 3:
        if EG:
            a(f"s_cmp_ge_u32 s{S_NODE}, s{S_EGN}")
            a(f"s_cbranch_scc1 {tag}_eg")
            cold += [f"{tag}_eg:",
                     f"s_sub_u32 s54, s{S_NS}, s{S_D}",
                     f"s_cmp_ge_u32 s{S_TAB0}, {2*XHALF}",
                     "s_cselect_b32 s54, 0, s54",
                     f"s_lshr_b32 s57, s{S_WAVE}, 2",
                     "s_lshl1_add_u32 s54, s54, s57",
                     "s_add_u32 s54, s54, 2",
                     f"s_and_b32 s57, s{S_WAVE}, 3",
                     f"s_lshl2_add_u32 s57, s57, {L_CNT + 240}",
                     f"v_mov_b32 v{B1+12}, s57",
                     f"v_mov_b32 v{B1+13}, s54",
                     f"ds_wrxchg_rtn_b32 v{B1+14}, v{B1+12}, v{B1+13}",
                     "s_waitcnt lgkmcnt(0)",
                     f"v_readfirstlane_b32 s57, v{B1+14}",
                     "s_cmp_eq_u32 s57, 0",
                     "s_cselect_b32 s57, 1000, s57",
                     "s_xor_b32 s55, s57, s54",
                     "s_bitcmp1_b32 s55, 0",
                     "s_cselect_b32 s55, 1, 0",
                     "s_cmp_eq_u32 s57, 1000",
                     "s_cselect_b32 s55, 1, s55",
                     "s_cmp_eq_u32 s55, 0",
                     f"s_cbranch_scc1 {tag}_p",
                     "s_cmp_gt_u32 s54, s57",
                     "s_setprio 0",
                     f"s_cbranch_scc0 {tag}_p",
                     "s_setprio 3",
                     f"s_branch {tag}_p"]
        if EPP:
            a(f"s_setprio {3 if EPP == 1 else 0}")
        else:
            pattern_prio()
    if opt("prio", 3) == 1:
        a(f"s_cmp_lt_u32 s{S_WAVE}, 4")
        a(f"s_cbranch_scc0 {tag}_p")
        a(f"s_setprio {2 if int(opt('prpat', '110110')[2 * rho + p1]) else 0}")
        a.label(f"{tag}_p")
    fb = []
    if opt("prio", 3) == 2:
        fb = ["s_waitcnt lgkmcnt(0)",
              f"v_readfirstlane_b32 s57, v{B1+14}",
              f"s_xor_b32 s54, s57, s{S_LEFT}",
              "s_bitcmp1_b32 s54, 0",
              f"s_cbranch_scc0 {tag}_p",
              f"s_cmp_gt_u32 s{S_LEFT}, s57",
              "s_setprio 0",
              f"s_cbranch_scc0 {tag}_p",
              "s_setprio 2",
              f"{tag}_p:"]
    for t in (order if opt("noep", 0) < 2 else []):
        pth = TPATH[t]
        for r in range(0 if opt("noep", 0) else 4):
            for cq in range(2):
                d, w = acc(t, cq), WR + 4 * (2 * pth + cq)
                if r == 0:
                    a(f"v_mul_f32 v{d}, v{d}, v{w}")
                else:
                    a(f"v_fmac_f32 v{d}, v{d+r}, v{w+r}")
        n = "-" if t == P4[2] else ""
        a(f"v_cvt_pk_bf16_f32 v{B1+t}, {n}v{acc(t,0)}, {n}v{acc(t,1)}")
        if t == P0:
            a(f"v_mov_b32 v{B1+11}, 0")
        if t == P3[0]:
            for l in fb:
                a(l)
        if t == P1:
            a(f"v_mfma_f32_16x16x32_bf16 {vr(20,4)}, {vr(SEL,4)}, {vr(B1+4,4)}, 0")
    if opt("prio", 3) == 3 and EPP:
        pattern_prio()
    a(book[0])
    a(f"v_mfma_f32_16x16x32_bf16 {vr(16,4)}, {vr(SEL,4)}, {vr(B1,4)}, 0")
    a(f"v_mfma_f32_16x16x32_bf16 {vr(24,4)}, {vr(SEL,4)}, {vr(B1+8,4)}, 0")
    a(f"v_cvt_pk_bf16_f32 v65, v20, v21")
    for l in book[1:]:
        a(l)
    a(f"buffer_store_dword v65, v{POFF}, s[{R_P}:{R_P+3}], s55 offen offset:256{PPOL}")
    for i in (0, 2):
        a(f"v_cvt_pk_bf16_f32 v{64+i}, v{16+4*i}, v{17+4*i}")
    for i in (0, 2):
        a(f"buffer_store_dword v{64+i}, v{POFF}, s[{R_P}:{R_P+3}], s55 offen offset:{256*i}{PPOL}")
    if opt("egx", 0):
        a("s_cselect_b32 s57, 1, 0")
        a(f"s_cmp_lg_u32 s{S_PHASE}, 0")
        a(f"s_cbranch_scc1 {tag}_noeg")
        for i in range(2):
            a("v_mul_lo_u32 v218, v218, s97")
            a("v_add_u32 v218, 12345, v218")
            a("v_mul_hi_u32 v67, v218, s96")
            a("v_lshlrev_b32 v67, 5, v67")
            a(f"s_mov_b32 m0, {L_DUMMY}")
            a(f"buffer_load_dword v67, s[92:95], 0 offen{['', ' nt', ' sc1'][opt('egx', 0) - 1]} lds")
        a.label(f"{tag}_noeg")
        a("s_cmp_lg_u32 s57, 0")
    if PROF == 6:
        a("s_memtime s[62:63]")
    a(f"s_cbranch_scc1 {tag}_evt")
    a.label(f"{tag}_go")
    goto_next(a, rho, "f", p1, True)
    c = Asm()
    c.label(f"{tag}_evt")
    c("s_cmp_eq_u32 s56, -2")
    c(f"s_cbranch_scc1 {tag}_end")
    c(f"s_mov_b32 s{S_EVT}, -2")
    c("s_and_b32 s54, s2, 31")
    c("s_lshl_b32 s54, s54, 3")
    c(f"s_add_u32 s54, s54, s{S_WAVE}")
    c(f"s_mul_i32 s54, s54, {98*128}")
    c(f"s_add_u32 s54, s54, {XHALF + XBIAS}")
    c(f"v_lshlrev_b32 v67, 7, v{LANE}")
    c(f"s_mov_b32 m0, {L_DUMMY}")
    if opt("pfm", 64) < 64:
        c(f"s_bfm_b64 exec, {opt('pfm', 64)}, 0")
    c(f"buffer_load_dword v67, s[{R_XP}:{R_XP+3}], s54 offen lds")
    c("s_mov_b64 exec, -1")
    c(f"s_branch {tag}_go")
    c.label(f"{tag}_end")
    c(f"s_cmp_lg_u32 s{S_PHASE}, 0")
    c("s_cbranch_scc1 TAIL")
    if PROF not in (6, 7):
        stamp(c, 7, late=True)
    c(f"s_mov_b32 s{S_EVT}, -2")
    if opt("otlb", 0):
        c("v_mov_b32 v67, 0")
        c(f"s_mov_b32 m0, {L_DUMMY}")
        c(f"buffer_load_dword v67, s[{R_OUT}:{R_OUT+3}], 0 offen lds")
    if opt("eg", 0):
        c(f"s_sub_u32 s{S_EGN}, s{S_NEND}, {opt('eg', 0) + 1}")
        c(f"s_max_i32 s{S_EGN}, s{S_EGN}, 0")
    c(f"s_mov_b32 s{S_PHASE}, 1")
    c(f"s_mov_b32 s{S_POFF}, {P_HALF}")
    load_w(c, 1)
    c(f"s_branch {tag}_go")
    cold += c.lines


NREP = opt("nrep", 16)
WS_FLAG = 0x60000


def get_nonce(a, tag):
    a("s_mov_b32 s62, 0x100000")
    a("v_mov_b32 v111, 0")
    a.label(f"{tag}_l")
    a(f"buffer_load_dword v110, v111, s[{R_DBG}:{R_DBG+3}], 0 offen sc1")
    a("s_sub_u32 s62, s62, 1")
    a(f"s_cbranch_scc1 {tag}_d")
    a("s_waitcnt vmcnt(0)")
    a(f"v_readfirstlane_b32 s{S_TAG}, v110")
    a(f"s_cmp_eq_u32 s{S_TAG}, 0")
    a(f"s_cbranch_scc1 {tag}_l")
    a.label(f"{tag}_d")


def signal(a, which, tag, wave=0):
    a(f"s_cmp_lg_u32 s{S_WAVE}, {wave}")
    a(f"s_cbranch_scc1 {tag}")
    a(f"s_cmp_lg_u32 s{S_TAG}, 0")
    a(f"s_cbranch_scc1 {tag}_n_d")
    get_nonce(a, tag + "_n")
    a("v_and_b32 v111, 63, v0")
    a("v_lshlrev_b32 v111, 10, v111")
    a(f"v_mov_b32 v110, s{S_TAG}")
    a("s_lshl_b32 s62, s2, 2")
    a(f"s_add_u32 s62, s62, {which * NREP * 1024}")
    a(f"s_bfm_b64 exec, {NREP}, 0")
    a(f"buffer_store_dword v110, v111, s[{R_FLG}:{R_FLG+3}], s62 offen sc1")
    a("s_mov_b64 exec, -1")
    a.label(tag)


def flag_load(a, which):
    a(f"s_and_b32 s62, s2, {NREP - 1}")
    a("s_lshl_b32 s62, s62, 10")
    a(f"s_add_u32 s62, s62, {which * NREP * 1024}")
    a(f"v_lshlrev_b32 v111, 4, v{LANE}")
    a(f"buffer_load_dwordx4 v[112:115], v111, s[{R_FLG}:{R_FLG+3}], s62 offen sc1")


def flag_test(a):
    a(f"v_xor_b32 v112, s{S_TAG}, v112")
    a(f"v_xor_b32 v113, s{S_TAG}, v113")
    a(f"v_xor_b32 v114, s{S_TAG}, v114")
    a(f"v_xor_b32 v115, s{S_TAG}, v115")
    a("v_or3_b32 v112, v112, v113, v114")
    a("v_or_b32 v112, v112, v115")
    a("v_cmp_ne_u32 vcc, 0, v112")
    a("s_cmp_eq_u64 vcc, 0")


def poll(a, which, tag):
    a(f"s_cmp_lg_u32 s{S_WAVE}, 0")
    a(f"s_cbranch_scc1 {tag}_d")
    a("s_mov_b32 s61, 0x100000")
    a.label(f"{tag}_l")
    flag_load(a, which)
    a("s_sub_u32 s61, s61, 1")
    a(f"s_cbranch_scc1 {tag}_d")
    a("s_waitcnt vmcnt(0)")
    flag_test(a)
    a(f"s_cbranch_scc1 {tag}_d")
    if opt("slp", 4):
        a(f"s_sleep {opt('slp', 4)}")
    a(f"s_branch {tag}_l")
    a.label(f"{tag}_d")


def part1(a):
    NT, ST = " nt", " sc1"
    D, SRC, RH, X, BA, RK, DL = 4, 12, 20, 32, 48, 56, 64
    a("s_load_dwordx8 s[4:11], s[0:1], 0")
    a("s_load_dwordx8 s[52:59], s[0:1], 32")
    a("s_load_dwordx4 s[12:15], s[0:1], 80")
    a("v_lshlrev_b32 v1, 4, v0")
    a("v_mul_u32_u24 v2, 24, v0")
    a("v_and_b32 v3, 63, v0")
    a("v_lshlrev_b32 v3, 4, v3")
    a("v_lshrrev_b32 v72, 6, v0")
    a(f"v_readfirstlane_b32 s{S_WAVE}, v72")
    a("s_mul_i32 s60, s2, 12800")
    a("s_mul_i32 s61, s2, 19200")
    a("s_mul_i32 s62, s2, 25600")
    a("s_mul_i32 s63, s2, 102400")
    a("s_mul_i32 s64, s2, 38400")
    a("s_lshl_b32 s65, s2, 10")
    a("s_mov_b32 s66, 8192")
    a("s_waitcnt lgkmcnt(0)")
    srd(a, R_DBG, 12, 0, 256)
    srd(a, R_FLG, 14, WS_FLAG, 2 * NREP * 1024)
    a(f"v_and_b32 v{LANE}, 63, v0")
    a(f"s_or_b32 s74, s2, s{S_WAVE}")
    a("s_cbranch_scc1 P1_notag")
    a("s_memrealtime s[74:75]")
    a("s_waitcnt lgkmcnt(0)")
    a("s_or_b32 s74, s74, 1")
    a("v_mov_b32 v110, s74")
    a("v_mov_b32 v111, 0")
    a("s_mov_b64 exec, 1")
    a(f"buffer_store_dword v110, v111, s[{R_DBG}:{R_DBG+3}], 0 offen sc1")
    a("s_mov_b64 exec, -1")
    a.label("P1_notag")
    a(f"s_mov_b32 s{S_TAG}, 0")
    a("s_cmp_ge_u32 s2, 250")
    a("s_cbranch_scc1 P1_prep")
    if opt("cpf", 2) & 8:
        a("s_getpc_b64 s[36:37]")
        a.label("P1_here2")
        a("s_mov_b32 s38, K2_end-P1_here2")
        a("s_mov_b32 s39, 0x20000")
        a("v_lshlrev_b32 v60, 7, v0")
        a("s_and_b32 s75, s2, 31")
        a("s_cbranch_scc1 P1_nocp")
        a("buffer_load_dword v61, v60, s[36:39], 0 offen")
        a.label("P1_nocp")
    srd(a, 16, 52, "s60", 12800)
    a(f"buffer_load_dwordx4 {vr(D,4)}, v1, s[16:19], 0 offen{NT}")
    a(f"buffer_load_dwordx4 {vr(D+4,4)}, v1, s[16:19], s66 offen{NT}")
    a("v_lshlrev_b32 v73, 2, v0")
    a("v_mov_b32 v74, 0")
    a(f"s_cmp_ge_u32 s{S_WAVE}, 4")
    a("s_cbranch_scc1 P1_nozero")
    a(f"v_add_u32 v73, {K1_HIST}, v73")
    a("ds_write_b32 v73, v74")
    a.label("P1_nozero")
    srd(a, 20, 10, "s60", 12800)
    srd(a, 24, 6, "s61", 19200)
    srd(a, 28, 4, "s62", 25600)
    srd(a, 32, 8, "s63", 102400)
    a("s_mov_b32 s69, 12288")
    a(f"s_lshl_b32 s67, s{S_WAVE}, 10")
    a("s_waitcnt lgkmcnt(0)")
    a("s_barrier")
    a(f"buffer_load_dwordx4 {vr(SRC,4)}, v1, s[20:23], 0 offen{NT}")
    a(f"buffer_load_dwordx4 {vr(SRC+4,4)}, v1, s[20:23], s66 offen{NT}")
    for r, so in ((0, "0"), (1, "s69")):
        a(f"buffer_load_dwordx4 {vr(RH+6*r,4)}, v2, s[24:27], {so} offen{NT}")
        a(f"buffer_load_dwordx2 {vr(RH+6*r+4,2)}, v2, s[24:27], {so} offen offset:16{NT}")
    a("s_mov_b32 s68, 0")
    for k in range(4):
        a(f"buffer_load_dwordx4 {vr(X+4*k,4)}, v1, s[28:31], s68 offen{NT}")
        a("s_add_u32 s68, s68, 8192")
    kb = [int(c, 16) for c in opt("kb", "d000")]

    def e_in(i):
        for k in range(sum(kb[:i]), sum(kb[:i + 1])):
            if k == 12:
                a(f"s_cmp_ge_u32 s{S_WAVE}, 4")
                a("s_cbranch_scc1 P1_noe13")
            a("s_mov_b32 m0, s67")
            a(f"buffer_load_dwordx4 v3, s[32:35], s67 offen{NT} lds")
            a("s_add_u32 s67, s67, 8192")
            if k == 12:
                a.label("P1_noe13")

    def n_e(i):
        return min(sum(kb[:i + 1]), 12)

    e_in(0)
    a("s_add_u32 s68, s64, %d" % WS_META)
    srd(a, 36, 14, "s68", 38400)
    a("s_add_u32 s68, s63, %d" % WS_EP)
    srd(a, 40, 14, "s68", 102400)
    srd(a, 44, 14, WS_XP, 2 * XHALF)
    srd(a, 48, 14, "s65", 1024)
    a("v_cmp_gt_u32 vcc, 288, v0")
    a("s_mov_b64 s[70:71], vcc")
    a("v_mov_b32 v75, 1")
    a(f"s_waitcnt vmcnt({10 + n_e(0)})")
    stamp(a, 2, k1=True)
    for i in range(8):
        if i == 4:
            a("s_mov_b64 exec, s[70:71]")
            a("s_cbranch_execz P1_skip_rank")
        a(f"v_mul_u32_u24 v{BA+i}, 21400, v{D+i}")
        a(f"v_lshrrev_b32 v{BA+i}, 20, v{BA+i}")
        a(f"v_mul_u32_u24 v{DL+i}, 49, v{BA+i}")
        a(f"v_sub_u32 v{DL+i}, v{D+i}, v{DL+i}")
        a(f"v_lshlrev_b32 v{BA+i}, 2, v{BA+i}")
        a(f"v_add_u32 v{BA+i}, {K1_HIST}, v{BA+i}")
        a(f"ds_add_rtn_u32 v{RK+i}, v{BA+i}, v75")
    a.label("P1_skip_rank")
    a("s_mov_b64 exec, -1")
    a("s_waitcnt lgkmcnt(0)")
    a("s_barrier")
    a(f"s_cmp_lg_u32 s{S_WAVE}, 0")
    a("s_cbranch_scc1 P1_noscan")
    a(f"v_add_u32 v73, {K1_HIST}, v3")
    a("ds_read_b128 v[76:79], v73")
    a("s_waitcnt lgkmcnt(0)")
    a("v_add_u32 v81, v76, v77")
    a("v_add_u32 v82, v81, v78")
    a("v_add_u32 v83, v82, v79")
    a("v_mov_b32 v84, v83")
    scan64(a, 84)
    a("v_sub_u32 v84, v84, v83")
    a("v_add_u32 v85, v84, v76")
    a("v_add_u32 v86, v84, v81")
    a("v_add_u32 v87, v84, v82")
    a("ds_write_b128 v73, v[84:87]")
    for i in range(4):
        a(f"v_lshl_or_b32 v{88+i}, v{76+i}, 16, v{84+i}")
    a(f"buffer_store_dwordx4 v[88:91], v3, s[48:51], 0 offen{ST}")
    a("s_waitcnt lgkmcnt(0)")
    a.label("P1_noscan")
    e_in(1)
    a("v_lshrrev_b32 v92, 5, v0")
    a("s_mul_i32 s69, s2, 50")
    a("v_add_u32 v92, s69, v92")
    a("v_lshlrev_b32 v92, 8, v92")
    a("v_bfe_u32 v93, v0, 3, 2")
    a("v_lshl_add_u32 v92, v93, 6, v92")
    a("v_and_b32 v93, 3, v0")
    a("v_lshl_add_u32 v92, v93, 4, v92")
    a("v_bfe_u32 v93, v0, 2, 1")
    a(f"v_mul_u32_u24 v93, {XHALF}, v93")
    a("v_add_u32 v92, v92, v93")
    a("v_cmp_gt_u32 vcc, 64, v0")
    a("v_mov_b32 v94, 0x80000000")
    a("v_cndmask_b32 v93, v94, v92, vcc")
    a("s_mov_b32 s72, 0x80000000")
    a("s_mov_b32 s73, 0xffff0000")
    a("v_lshlrev_b32 v95, 2, v0")
    a("s_barrier")
    for r in range(2):
        if r == 1:
            a("s_mov_b64 exec, s[70:71]")
            a("s_cbranch_execz P1_skip_scatter")
        for i in range(4):
            a(f"ds_read_b32 v{BA+4*r+i}, v{BA+4*r+i}")
        if r == 0:
            a(f"s_waitcnt vmcnt({4 + n_e(1)})")
        R = RH + 6 * r
        for i in range(4):
            a(f"v_lshl_or_b32 v{SRC+4*r+i}, v{SRC+4*r+i}, 8, v{DL+4*r+i}")
            a(f"v_or_b32 v{SRC+4*r+i}, s72, v{SRC+4*r+i}")
        a(f"v_lshlrev_b32 v76, 16, v{R+1}")
        a(f"v_alignbit_b32 v77, v{R+2}, v{R+1}, 16")
        a(f"v_and_b32 v78, s73, v{R+2}")
        a(f"v_lshlrev_b32 v79, 16, v{R+4}")
        a(f"v_alignbit_b32 v80, v{R+5}, v{R+4}, 16")
        a(f"v_and_b32 v81, s73, v{R+5}")
        w1 = [R, 77, R + 3, 80]
        w2 = [76, 78, 79, 81]
        a("s_waitcnt lgkmcnt(0)")
        for i in range(4):
            b, k = BA + 4 * r + i, RK + 4 * r + i
            a(f"v_add_u32 v{k}, v{k}, v{b}")
            a(f"v_mul_u32_u24 v{b}, 12, v{k}")
            a(f"v_add_u32 v{b}, {K1_MS}, v{b}")
            a(f"ds_write2_b32 v{b}, v{SRC+4*r+i}, v{w1[i]} offset0:0 offset1:1")
            a(f"ds_write_b32 v{b}, v{w2[i]} offset:8")
            a(f"v_lshlrev_b32 v{k}, 1, v{k}")
            a(f"v_add_u32 v{k}, {K1_INV}, v{k}")
            a(f"v_add_u32 v{82+i}, {2048*r + i}, v95")
            a(f"ds_write_b16 v{k}, v{82+i}")
    a.label("P1_skip_scatter")
    a("s_mov_b64 exec, -1")
    a(f"s_waitcnt vmcnt({n_e(1)})")
    a("s_mov_b32 s68, 0")
    for k in range(4):
        a(f"buffer_store_dwordx4 {vr(X+4*k,4)}, v{92 if k < 3 else 93}, s[44:47], s68 offen{ST}")
        a("s_add_u32 s68, s68, 4096")
    e_in(2)
    a("s_waitcnt lgkmcnt(0)")
    a("s_barrier")
    stamp(a, 4, k1=True)
    a(f"v_add_u32 v73, {K1_MS}, v1")
    for k in range(5):
        a(f"ds_read_b128 {vr(4+4*k,4)}, v73 offset:{8192*k}")
    a("v_and_b32 v74, 0x1fe, v0")
    a(f"v_add_u32 v74, {K1_INV}, v74")
    a("s_mov_b32 s68, 0")
    for k in range(5):
        a(f"s_waitcnt lgkmcnt({4-k})")
        a(f"buffer_store_dwordx4 {vr(4+4*k,4)}, v1, s[36:39], s68 offen{ST}")
        a("s_add_u32 s68, s68, 8192")
    for k in range(13):
        a(f"ds_read_u16 v{48+k}, v74 offset:{512*k}")
    a("v_mov_b32 v111, 0")
    a(f"buffer_load_dword v110, v111, s[{R_DBG}:{R_DBG+3}], 0 offen sc1")
    e_in(3)
    a("v_and_b32 v75, 1, v0")
    a("v_lshlrev_b32 v75, 4, v75")
    a("s_waitcnt lgkmcnt(0)")
    for k in range(13):
        a(f"v_lshl_add_u32 v{48+k}, v{48+k}, 5, v75")
    if opt("siga", 0) == 3:
        a(f"s_waitcnt vmcnt({12 - n_e(2)})")
        a(f"v_readfirstlane_b32 s{S_TAG}, v110")
        a("s_barrier")
        stamp(a, 6, k1=True)
        signal(a, 0, "P1_sa", wave=7)
    a("s_waitcnt vmcnt(0)")
    if opt("siga", 0) == 0:
        a(f"v_readfirstlane_b32 s{S_TAG}, v110")
    a("s_barrier")
    if opt("siga", 0) == 0:
        stamp(a, 6, k1=True)
        signal(a, 0, "P1_sa", wave=7)
    for k in range(12):
        a(f"ds_read_b128 {vr(128+4*k,4)}, v{48+k}")
    a("s_mov_b32 s68, 0")
    for k in range(12):
        a(f"s_waitcnt lgkmcnt({11-k})")
        a(f"buffer_store_dwordx4 {vr(128+4*k,4)}, v1, s[40:43], s68 offen{ST}")
        a("s_add_u32 s68, s68, 8192")
    a(f"s_cmp_ge_u32 s{S_WAVE}, 4")
    a("s_cbranch_scc1 P1_fin" if opt("siga", 0) in (0, 3) else "s_cbranch_scc1 P1_fin2")
    a("ds_read_b128 v[176:179], v60")
    a("s_waitcnt lgkmcnt(0)")
    a(f"buffer_store_dwordx4 v[176:179], v1, s[40:43], s68 offen{ST}")
    a("s_branch P1_fin" if opt("siga", 0) in (0, 3) else "s_branch P1_fin2")

    if opt("siga", 0) == 1:
        a.label("P1_fin2")
        signal(a, 0, "P1_sa")
        a(f"s_cmp_lg_u32 s{S_WAVE}, 0")
        a("s_cbranch_scc1 P1_fin")
        a("s_waitcnt vmcnt(1)")
        a("s_branch P1_fin3")
    if opt("siga", 0) == 2:
        a.label("P1_fin2")
        a("s_waitcnt vmcnt(0)")
        a("s_barrier")
        stamp(a, 8, k1=True)
        signal(a, 0, "P1_sa")
        a("s_branch P1_fin4")
    a.label("P1_prep")
    if opt("cpf", 2) & 2:
        a("s_getpc_b64 s[36:37]")
        a.label("P1_here")
        a("s_mov_b32 s38, K2_end-P1_here")
        a("s_mov_b32 s39, 0x20000")
        a("v_lshlrev_b32 v60, 7, v0")
        a("buffer_load_dword v61, v60, s[36:39], 0 offen")
    a("s_cmp_eq_u32 s2, 255")
    a("s_cbranch_scc1 P1_prepd")
    srd(a, 16, 54, 0, 16 * 320 * 2)
    srd(a, 20, 56, 0, 128 * 64 * 2)
    srd(a, 24, 58, 0, 192 * 64 * 2)
    srd(a, 28, 14, WS_WTAB, 20480)
    srd(a, 32, 14, WS_WSI, 40960)
    a("s_sub_u32 s60, s2, 250")
    a("s_lshl_b32 s60, s60, 10")
    for it in range(2):
        prep_tables(a, ST)
        a("s_add_u32 s60, s60, 512")
    a.label("P1_prepd")
    a("s_waitcnt vmcnt(0)")
    a("s_barrier")
    signal(a, 0, "P1_sa2")
    a.label("P1_fin")
    a("s_waitcnt vmcnt(0)")
    a.label("P1_fin3")
    a("s_barrier")
    stamp(a, 8, k1=True)
    a.label("P1_fin4")
    signal(a, 1, "P1_sb")


BAL = opt("bal", 1)


def meta_set_addresses(a):
    a(f"v_lshrrev_b32 v164, 4, v{LANE}")
    a("v_lshlrev_b32 v164, 2, v164")
    a(f"v_bfe_u32 v165, v{LANE}, 2, 1")
    a("v_lshl_add_u32 v160, v165, 5, v164")
    a(f"v_bfe_u32 v165, v{LANE}, 1, 1")
    a("v_lshl_add_u32 v160, v165, 4, v160")
    a("v_lshl_add_u32 v161, v165, 5, v164")
    a(f"v_and_b32 v165, 1, v{LANE}")
    a("v_lshl_add_u32 v160, v165, 1, v160")
    a("v_lshl_add_u32 v161, v165, 4, v161")
    a(f"v_bfe_u32 v165, v{LANE}, 3, 1")
    a("v_add_u32 v160, v160, v165")
    a(f"v_bfe_u32 v165, v{LANE}, 2, 2")
    a("v_add_u32 v161, v161, v165")
    a(f"v_mov_b32 v162, {L_SB}")
    a(f"v_mov_b32 v163, {L_SA}")
    a("v_lshl_add_u32 v160, v160, 2, v163")
    a("v_lshl_add_u32 v161, v161, 3, v162")


def balanced_partition(a):
    L = LANE
    a("v_add_u32 v14, 31, v14")
    a("v_lshrrev_b32 v14, 5, v14")
    a("v_max_u32 v14, 1, v14")
    a(f"v_cmp_gt_u32 s[60:61], s{S_NN}, v{L}")
    a("v_cndmask_b32 v14, 0, v14, s[60:61]")
    a("v_cmp_lt_u32 vcc, 2, v14")
    a("s_andn2_b64 s[60:61], s[60:61], vcc")
    a("s_bcnt1_i32_b64 s62, vcc")
    a("s_bcnt1_i32_b64 s63, s[60:61]")
    a("v_mbcnt_lo_u32_b32 v32, vcc_lo, 0")
    a("v_mbcnt_hi_u32_b32 v32, vcc_hi, v32")
    a("v_mov_b32 v33, s62")
    a("v_mbcnt_lo_u32_b32 v33, s60, v33")
    a("v_mbcnt_hi_u32_b32 v33, s61, v33")
    a("v_cndmask_b32 v32, v33, v32, vcc")
    a(f"v_cmp_gt_u32 vcc, s{S_NN}, v{L}")
    a(f"v_cndmask_b32 v32, v{L}, v32, vcc")
    a("v_lshlrev_b32 v32, 2, v32")
    a(f"v_lshl_or_b32 v33, v{L}, 8, v14")
    a("ds_permute_b32 v34, v32, v33")
    a(f"v_mad_u32_u24 v36, v{L}, s{S_NN}, 7")
    a("v_lshrrev_b32 v36, 3, v36")
    a("s_mul_i32 s58, s62, 10")
    a(f"s_mul_i32 s59, s{S_NN}, 26")
    a("s_add_u32 s58, s58, s59")
    a(f"v_mad_u32_u24 v37, v{L}, s58, 40")
    a("v_mul_u32_u24 v40, 208, v36")
    a("v_sub_u32 v37, v37, v40")
    a("v_max_i32 v37, 0, v37")
    a("v_mul_u32_u24 v37, 3277, v37")
    a("v_lshrrev_b32 v37, 18, v37")
    a("v_subrev_u32 v40, s63, v36")
    a("v_max_i32 v37, v37, v40")
    a("v_min_u32 v37, s62, v37")
    a("v_min_u32 v37, v37, v36")
    for sh in (1, 2, 4, 8):
        a(f"v_max_u32_dpp v37, v37, v37 row_shr:{sh} row_mask:0xf bank_mask:0xf bound_ctrl:1")
    a("v_sub_u32 v40, v36, v37")
    for sh in (1, 2, 4, 8):
        a(f"v_max_u32_dpp v40, v40, v40 row_shr:{sh} row_mask:0xf bank_mask:0xf bound_ctrl:1")
    a("v_sub_u32 v37, v36, v40")
    a("v_lshl_or_b32 v37, v36, 8, v37")
    a(f"s_cmp_eq_u32 s{S_NN}, {NPB}")
    a(f"s_mov_b32 s58, {-(-8*65536 // (N - 255*NPB))}")
    a(f"s_cmov_b32 s58, {-(-8*65536 // NPB)}")
    a(f"v_mul_u32_u24 v40, s58, v{L}")
    a("v_lshrrev_b32 v40, 16, v40")
    a("v_min_u32 v40, 7, v40")
    a("v_lshlrev_b32 v40, 2, v40")
    a("ds_bpermute_b32 v41, v40, v37")
    a("ds_bpermute_b32 v42, v40, v37 offset:4")
    a(f"s_and_b32 s60, s{S_WAVE}, 3")
    a("s_lshl_b32 s60, s60, 1")
    a(f"s_lshr_b32 s61, s{S_WAVE}, 2")
    a("s_add_u32 s59, s60, s61")
    a(f"s_mul_i32 s60, s59, s{S_NN}")
    a(f"s_add_u32 s61, s60, s{S_NN}")
    a("s_add_u32 s60, s60, 7")
    a("s_add_u32 s61, s61, 7")
    a(f"s_lshr_b32 s{S_NODE0}, s60, 3")
    a(f"s_lshr_b32 s{S_NEND}, s61, 3")
    a(f"s_sub_u32 s{S_NNW}, s{S_NEND}, s{S_NODE0}")
    a("s_waitcnt lgkmcnt(0)")
    a("v_lshrrev_b32 v43, 8, v41")
    PP = L
    if opt("mir", 1):
        PP = 33
        a("v_lshrrev_b32 v33, 8, v42")
        a("v_add3_u32 v33, v33, v43, -1")
        a(f"v_sub_u32 v33, v33, v{L}")
        a("v_and_b32 v40, 4, v40")
        a("v_cmp_eq_u32 vcc, 0, v40")
        a(f"v_cndmask_b32 v33, v33, v{L}, vcc")
    a("v_and_b32 v41, 0xff, v41")
    a("v_and_b32 v42, 0xff, v42")
    a(f"v_sub_u32 v43, v{PP}, v43")
    a("v_add_u32 v43, v43, v41")
    a(f"v_sub_u32 v40, v{PP}, v42")
    a("v_add_u32 v40, s62, v40")
    a("v_cmp_lt_u32 vcc, v43, v42")
    a("v_cndmask_b32 v40, v40, v43, vcc")
    a(f"v_cmp_gt_u32 vcc, s{S_NN}, v{L}")
    a(f"v_cndmask_b32 v40, v{L}, v40, vcc")
    a("v_lshlrev_b32 v40, 2, v40")
    a("ds_bpermute_b32 v41, v40, v34")
    a("s_waitcnt lgkmcnt(0)")
    a("v_and_b32 v14, 0xff, v41")
    a(f"v_subrev_u32 v{NST}, 1, v14")
    a(f"v_lshrrev_b32 v{NID}, 8, v41")
    a(f"v_lshlrev_b32 v41, 2, v{NID}")
    a("v_mov_b32 v19, v14")
    scan64(a, 19)
    a("v_sub_u32 v42, v19, v14")
    a("ds_permute_b32 v18, v41, v42")
    a("v_min_u32 v36, 63, v36")
    a("v_lshlrev_b32 v36, 2, v36")
    a("ds_bpermute_b32 v43, v36, v42")
    a("v_readlane_b32 s58, v19, 63")
    a("s_waitcnt lgkmcnt(0)")
    a("v_mov_b32 v40, v43")
    a("v_sub_u32_dpp v40, v43, v43 row_shl:1 row_mask:0xf bank_mask:0xf")
    a(f"v_readlane_b32 s{S_STEP0}, v43, s59")
    a(f"v_cmp_lt_u32 vcc, {MAXWSTEPS}, v40")
    a(f"v_readlane_b32 s{S_NS}, v40, s59")
    a("s_and_b32 s60, vcc_lo, 0xff")


def kernel2():
    a = Asm()
    a("s_cmp_ge_u32 s2, 256")
    a("s_cbranch_scc1 K2_end")
    if opt("xcdmap", 1) == 2:
        a("s_load_dwordx2 s[54:55], s[0:1], 80")
        a("s_getreg_b32 s58, hwreg(HW_REG_XCC_ID, 0, 3)")
        a("v_lshrrev_b32 v1, 6, v0")
        a("v_readfirstlane_b32 s3, v1")
        a(f"v_mov_b32 v3, {L_WSUM}")
        a("s_cmp_lg_u32 s3, 0")
        a("s_cbranch_scc1 CLAIMED")
        a("s_waitcnt lgkmcnt(0)")
        srd(a, 4, 54, 0, 256)
        a("s_mov_b64 exec, 1")
        a.label("CLAIM")
        a("v_mov_b32 v1, 1")
        a("s_lshl_b32 s59, s58, 5")
        a("v_mov_b32 v2, s59")
        a("buffer_atomic_add v1, v2, s[4:7], 0 offen sc0")
        a("s_add_u32 s58, s58, 1")
        a("s_and_b32 s58, s58, 7")
        a("s_waitcnt vmcnt(0)")
        a("v_readfirstlane_b32 s60, v1")
        a("s_cmp_ge_u32 s60, 32")
        a("s_cbranch_scc1 CLAIM")
        a("v_add_u32 v1, v1, v2")
        a("ds_write_b32 v3, v1")
        a("s_mov_b64 exec, -1")
        a.label("CLAIMED")
        a("s_waitcnt lgkmcnt(0)")
        a("s_barrier")
        a("ds_read_b32 v1, v3")
        a("s_waitcnt lgkmcnt(0)")
        a("v_readfirstlane_b32 s2, v1")
        a("s_and_b32 s2, s2, 255")
        a("s_barrier")
    if opt("xcdmap", 1) == 1:
        a("s_and_b32 s3, s2, 7")
        a("s_lshl_b32 s3, s3, 5")
        a("s_lshr_b32 s2, s2, 3")
        a("s_or_b32 s2, s2, s3")
    a(f"v_mov_b32 v{TID}, v0")
    a(f"s_mov_b32 s{S_R0}, 0")
    a(f"s_mov_b32 s{S_CAP}, {CAP}")
    stamp(a, 0, True)
    stamp(a, 1)
    if FUSED:
        part1(a)
        a(f"s_mov_b32 s{S_R0}, 0")
        a(f"s_mov_b32 s{S_CAP}, {CAP}")
        poll(a, 0, "POLL_A")
        a(f"v_mov_b32 v110, {L_DUMMY}")
        a(f"v_mov_b32 v111, s{S_TAG}")
        a(f"s_cmp_lg_u32 s{S_WAVE}, 0")
        a("s_cbranch_scc1 TAG_W")
        a("ds_write_b32 v110, v111")
        a("s_waitcnt lgkmcnt(0)")
        a.label("TAG_W")
        a("s_barrier")
        a("ds_read_b32 v111, v110")
        a("s_waitcnt lgkmcnt(0)")
        a(f"v_readfirstlane_b32 s{S_TAG}, v111")
    a.label("ROUND")
    a("s_load_dwordx2 s[56:57], s[0:1], 88")
    a("s_load_dwordx2 s[54:55], s[0:1], 72")
    a(f"v_and_b32 v2, 255, v{TID}")
    a("v_lshlrev_b32 v3, 10, v2")
    a(f"v_and_b32 v{LANE}, 63, v{TID}")
    a(f"v_lshrrev_b32 v1, 6, v{TID}")
    a(f"v_readfirstlane_b32 s{S_WAVE}, v1")
    a("s_lshl_b32 s58, s2, 2")
    a("s_cmp_eq_u32 s2, 255")
    a(f"s_cselect_b32 s{S_NN}, {N - 255*NPB}, {NPB}")
    a("s_waitcnt lgkmcnt(0)")
    srd(a, R_TB, 56, WS_TAB, W * 1024)
    DSH = opt("dsh", 1)
    if DSH:
        a(f"s_cmp_ge_u32 s{S_WAVE}, 4")
        a("s_cbranch_scc1 NODESC")
    a(f"buffer_load_dword v20, v3, s[{R_TB}:{R_TB+3}], s58 offen")
    if DSH:
        a.label("NODESC")
    if opt("cpf", 2) & 1:
        a("s_getpc_b64 s[60:61]")
        a.label("K2_here")
        a("s_mov_b32 s62, K2_end-K2_here")
        a("s_mov_b32 s63, 0x20000")
        a(f"v_lshlrev_b32 v21, 7, v{TID}")
        a("buffer_load_dword v75, v21, s[60:63], 0 offen")
    if PROF:
        a("s_mov_b64 s[98:99], s[56:57]")
    if opt("egx", 0):
        a("s_load_dwordx2 s[92:93], s[0:1], 16")
        a("s_mov_b32 s94, 25600000")
        a("s_mov_b32 s95, 0x20000")
        a("s_mov_b32 s96, 800000")
        a("s_mov_b32 s97, 1664525")
        a(f"v_lshrrev_b32 v218, 1, v{TID}")
        a("s_lshl_b32 s59, s2, 8")
        a("v_add_u32 v218, s59, v218")
        a("s_mov_b32 s59, 0x9E3779B1")
        a("v_mul_lo_u32 v218, v218, s59")
        a("s_waitcnt lgkmcnt(0)")
    srd(a, R_W, 56, WS_WTAB, 0x12000)
    srd(a, R_MT, 56, WS_META, E * 12)
    srd(a, R_EP, 56, WS_EP, E * 32)
    srd(a, R_XP, 56, WS_XP - XBIAS, 2 * XHALF + XBIAS)
    a(f"s_mul_i32 s59, s2, {P_WG}")
    a(f"s_add_u32 s59, s59, {WS_P}")
    srd(a, R_P, 56, "s59", 2 * P_HALF)
    a("s_lshl_b32 s59, s2, 16")
    a(f"s_add_u32 s59, s59, {WS_ACC}")
    srd(a, R_ACC, 56, "s59", 65536)
    a(f"s_mul_i32 s59, s2, {NPB*512}")
    a(f"s_lshl_b32 s60, s{S_NN}, 9")
    srd(a, R_OUT, 54, "s59", "s60")
    a(f"s_mul_i32 s{S_RB}, s{S_WAVE}, {RING_W}")
    a(f"s_add_u32 s{S_RB}, s{S_RB}, {L_RING}")
    a(f"s_mov_b32 s{S_HI}, 0xffff0000")
    a(f"s_mov_b32 s{S_SGN}, 0x80008000")
    L = LANE
    a(f"v_bfe_u32 v3, v{L}, 4, 1")
    a(f"v_and_b32 v4, 7, v{L}")
    a("v_lshlrev_b32 v5, 1, v3")
    a("v_xor_b32 v4, v4, v5")
    a("v_lshlrev_b32 v4, 4, v4")
    a(f"v_add_u32 v{XOFF}, {0x80000000 + XBIAS}, v4")
    a(f"v_add_u32 v{XOFF+1}, {0x80000000 + XBIAS - 1088}, v4")
    a(f"v_and_b32 v4, 3, v{L}")
    a(f"v_lshlrev_b32 v{QQ8}, 3, v4")
    a(f"v_bfe_u32 v5, v{L}, 3, 1")
    a("v_mul_u32_u24 v5, 1088, v5")
    a(f"v_lshrrev_b32 v6, 4, v{L}")
    a("v_lshl_add_u32 v5, v6, 8, v5")
    a(f"v_bfe_u32 v7, v{L}, 2, 1")
    a("v_lshl_add_u32 v5, v7, 7, v5")
    a(f"v_add_u32 v5, v5, v{QQ8}")
    a(f"v_add_u32 v5, s{S_RB}, v5")
    a("v_lshlrev_b32 v7, 5, v3")
    a(f"v_add_u32 v{BAE}, v5, v7")
    a(f"v_sub_u32 v{BAO}, v5, v7")
    a(f"v_and_b32 v7, 15, v{L}")
    a("v_lshlrev_b32 v8, 2, v7")
    a(f"v_lshl_add_u32 v{POFF}, v6, 6, v8")
    a("v_and_b32 v8, 1, v7")
    a("v_lshlrev_b32 v8, 4, v8")
    a("v_mov_b32 v9, 0x3f80")
    a("v_lshlrev_b32 v8, v8, v9")
    a("v_and_b32 v9, 14, v7")
    for i in range(4):
        a(f"v_cmp_eq_u32 vcc, {4*i}, v9")
        a(f"v_cndmask_b32 v{SEL+i}, 0, v8, vcc")
    a(f"v_lshlrev_b32 v6, 2, v{TID}")
    a("v_mov_b32 v7, 0")
    a(f"v_add_u32 v8, {L_MISC}, v6")
    a(f"v_cmp_gt_u32 vcc, 68, v{TID}")
    a("s_and_saveexec_b64 s[58:59], vcc")
    a("ds_write_b32 v8, v7")
    a(f"v_cmp_gt_u32 vcc, 8, v{TID}")
    a("s_and_b64 exec, exec, vcc")
    a("ds_write_b32 v6, v7")
    a("s_mov_b64 exec, -1")
    a(f"v_lshlrev_b32 v13, 4, v{TID}")
    a(f"v_add_u32 v13, {L_SA}, v13")
    for i in range(4):
        a(f"v_mov_b32 v{28+i}, 0")
    nz = MAXSTEPS * 384 // 16
    for k in range(6):
        a(f"ds_write_b128 v13, v[28:31] offset:{8192*k}")
    a(f"v_cmp_gt_u32 vcc, {nz - 6*512}, v{TID}")
    a("s_mov_b64 exec, vcc")
    a(f"ds_write_b128 v13, v[28:31] offset:{8192*6}")
    a("s_mov_b64 exec, -1")
    a("v_mul_u32_u24 v14, 3200, v2")
    a(f"v_lshrrev_b32 v15, 8, v{TID}")
    a("v_mov_b32 v16, 0x80000000")
    a(f"s_and_b32 s59, s{S_WAVE}, 3")
    a("v_lshlrev_b32 v22, 3, v2")
    a("v_add_u32 v22, 1024, v22")
    if DSH:
        a(f"s_cmp_ge_u32 s{S_WAVE}, 4")
        a("s_cbranch_scc1 NOSCAN")
    a(f"s_waitcnt vmcnt({opt('cpf', 2) & 1})")
    stamp(a, 2)
    a("v_lshrrev_b32 v9, 16, v20")
    a("v_mov_b32 v21, v9")
    scan64(a, 21)
    a("v_readlane_b32 s58, v21, 63")
    a("s_lshl_b32 s60, s59, 2")
    a(f"s_add_u32 s60, s60, {L_WSUM}")
    a("v_mov_b32 v12, s60")
    a("v_mov_b32 v13, s58")
    a("ds_write_b32 v12, v13")
    a("v_sub_u32 v21, v21, v9")
    if DSH:
        a("ds_write_b64 v22, v[20:21]")
        a.label("NOSCAN")
    a(f"v_mov_b32 v12, {L_WSUM}")
    a("s_waitcnt lgkmcnt(0)")
    a("s_barrier")
    a("ds_read_b128 v[16:19], v12")
    if DSH:
        a("ds_read_b64 v[20:21], v22")
    a("s_waitcnt lgkmcnt(0)")
    a("v_lshrrev_b32 v9, 16, v20")
    a("v_and_b32 v10, 0xffff, v20")
    a("v_add_u32 v14, v14, v10")
    a("v_mov_b32 v11, v21")
    for i in range(4):
        a(f"v_readfirstlane_b32 s{60+i}, v{16+i}")
    a("s_add_u32 s61, s61, s60")
    a("s_add_u32 s62, s62, s61")
    a(f"s_add_u32 s{S_T}, s63, s62")
    a("s_cmp_eq_u32 s59, 0")
    a("s_cselect_b32 s58, 0, s60")
    a("s_cmp_eq_u32 s59, 2")
    a("s_cselect_b32 s58, s61, s58")
    a("s_cmp_eq_u32 s59, 3")
    a("s_cselect_b32 s58, s62, s58")
    a("v_mov_b32 v16, 0x80000000")
    a(f"s_sub_u32 s{S_LEN}, s{S_T}, s{S_R0}")
    a(f"s_cmp_le_u32 s{S_LEN}, s{S_CAP}")
    a(f"s_cselect_b32 s{S_LAST}, 1, 0")
    a(f"s_min_u32 s{S_LEN}, s{S_LEN}, s{S_CAP}")
    a(f"s_sub_u32 s58, s58, s{S_R0}")
    a("v_add_u32 v11, s58, v11")
    a("v_sub_u32 v12, 0, v11")
    a("v_max_i32 v12, 0, v12")
    a(f"v_sub_u32 v13, s{S_LEN}, v11")
    a("v_min_i32 v13, v13, v9")
    a("v_add_u32 v12, v12, v15")
    a("v_sub_u32 v9, v13, v12")
    a("v_add_u32 v14, v14, v12")
    a("v_add_u32 v11, v11, v12")
    a("v_lshlrev_b32 v12, 2, v11")
    a(f"v_add_u32 v12, {L_MAP}, v12")
    a.label("MAPL")
    for i in range(16):
        a(f"v_cmp_lt_i32 vcc, {2*i}, v9")
        if i:
            a("v_add_u32 v14, 2, v14")
        a("s_and_b64 exec, exec, vcc")
        if i % 4 == 0:
            a("s_cbranch_execz MAPD")
        a(f"ds_write_b32 v12, v14 offset:{8*i}")
    a("v_add_u32 v14, 2, v14")
    a("v_add_u32 v12, 128, v12")
    a("v_subrev_u32 v9, 32, v9")
    a("s_branch MAPL")
    a.label("MAPD")
    a("s_mov_b64 exec, -1")
    a(f"v_add_u32 v12, {L_MAP}, v6")
    a(f"v_lshrrev_b32 v13, 1, v{LANE}")
    a(f"s_lshl_b32 s58, s{S_WAVE}, 5")
    a("v_add_u32 v13, s58, v13")
    a(f"v_lshl_add_u32 v14, v13, 2, v7")
    a(f"v_add_u32 v14, {L_MAP}, v14")
    a(f"v_and_b32 v15, 1, v{LANE}")
    a("v_lshlrev_b32 v15, 4, v15")
    a("s_waitcnt lgkmcnt(0)")
    a("s_barrier")
    stamp(a, 3)
    for k in range(7):
        a(f"ds_read_b32 v{20+k}, v12 offset:{2048*k}")
    for k in range(14):
        a(f"ds_read_b32 v{28+k}, v14 offset:{1024*k}")
    MREC = 44
    EPOL = ["", " sc1", " nt"][opt("epol", 0)]
    for k in range(7):
        a(f"v_add_u32 v17, {512*k}, v{TID}")
        a(f"v_cmp_gt_u32 s[{S_MASK+2*k}:{S_MASK+2*k+1}], s{S_LEN}, v17")
        a(f"s_waitcnt lgkmcnt({min(15, 20-k)})")
        a(f"v_mul_u32_u24 v{20+k}, 12, v{20+k}")
        a(f"v_cndmask_b32 v{20+k}, v16, v{20+k}, s[{S_MASK+2*k}:{S_MASK+2*k+1}]")
    if PROF == 2:
        stamp(a, 7)
    for k in range(7):
        a(f"buffer_load_dwordx3 {vr(MREC+4*k,3)}, v{20+k}, s[{R_MT}:{R_MT+3}], 0 offen{EPOL}")
    a("s_waitcnt lgkmcnt(0)")
    a(f"s_lshl_b32 s{S_EM0}, s{S_WAVE}, 10")
    a(f"s_add_u32 s{S_EM0}, s{S_EM0}, {L_E + 32}")
    EREG = 128
    for k in range(14):
        a(f"v_cmp_gt_u32 vcc, s{S_LEN}, v13")
        a(f"v_lshl_add_u32 v{28+k}, v{28+k}, 5, v15")
        a("v_add_u32 v13, 256, v13")
        a(f"v_cndmask_b32 v{EREG+k}, v16, v{28+k}, vcc")
    eb = [int(c, 16) for c in opt("eb", "0554" if FUSED else "3551")]

    assert sum(eb[:1]) <= 10

    def e_batch(i, tag=""):
        for k in range(sum(eb[:i]), sum(eb[:i + 1])):
            if k == 13:
                a(f"s_cmp_ge_u32 s{S_WAVE}, 2")
                a("s_cbranch_scc1 NOE14")
            a(f"s_mov_b32 m0, s{S_EM0}")
            a(f"s_add_u32 s{S_EM0}, s{S_EM0}, 8192")
            a(f"buffer_load_dwordx4 v{EREG+k}, s[{R_EP}:{R_EP+3}], 0 offen{EPOL} lds")
            if k == 13:
                a.label("NOE14")

    if PROF == 2:
        stamp(a, 8)
    e_batch(0)
    FK = opt("fk", 0)
    if FUSED and FK == 0:
        flag_load(a, 1)
    if PROF == 2:
        stamp(a, 9)
    a("v_mov_b32 v17, 1")
    for k in range(7):
        a(f"s_waitcnt vmcnt({min(eb[0], 13) + 6 - k + (FUSED and k >= FK)})")
        if FUSED and FK and k == FK - 1:
            flag_load(a, 1)
        if PROF == 2 and k in (0, 6):
            stamp(a, 10 if k == 0 else 11)
        a(f"v_and_b32 v{20+k}, 0xff, v{MREC+4*k}")
        a(f"v_lshlrev_b32 v{20+k}, 2, v{20+k}")
        a(f"v_add_u32 v18, {L_CNT}, v{20+k}")
        a(f"s_mov_b64 exec, s[{S_MASK+2*k}:{S_MASK+2*k+1}]")
        a(f"ds_add_rtn_u32 v{MREC+4*k+3}, v18, v17")
        a("s_mov_b64 exec, -1")
    a(f"v_lshlrev_b32 v12, 2, v{LANE}")
    a(f"v_add_u32 v12, {L_CNT}, v12")
    a(f"v_lshlrev_b32 v35, 2, v{TID}")
    a("v_add_u32 v35, 4, v35")
    RP = 144
    for k in range(7):
        r = MREC + 4 * k
        a(f"v_and_b32 v{r}, 0xffffff00, v{r}")
        a(f"v_add_u32 v36, {2048*k}, v35")
        a(f"v_or_b32 v{RP+2*k+1}, v{r+2}, v36")
        a(f"v_mov_b32 v{RP+2*k}, v{r+1}")
    meta_set_addresses(a)
    if FUSED:
        a("s_waitcnt vmcnt(0)")
        flag_test(a)
        a(f"s_cselect_b32 s{S_EB1}, 1, 0")
    a("s_waitcnt lgkmcnt(0)")
    a("s_barrier")
    stamp(a, 4)
    if FUSED:
        a(f"s_mov_b32 s{S_EB2}, s{S_EB1}")
        a(f"s_cmp_eq_u32 s{S_EB1}, 0")
        a("s_cbranch_scc1 EB1_skip")
        e_batch(1)
        a("s_branch EB1_done")
        a.label("EB1_skip")
        flag_load(a, 1)
        a.label("EB1_done")
    else:
        e_batch(1)
    a("ds_read_b32 v14, v12")
    a("s_waitcnt lgkmcnt(0)")
    if BAL:
        balanced_partition(a)
    else:
        a("v_add_u32 v14, 31, v14")
        a("v_lshrrev_b32 v14, 5, v14")
        a("v_max_u32 v14, 1, v14")
        a(f"v_cmp_gt_u32 vcc, s{S_NN}, v{LANE}")
        a(f"v_mad_u32_u24 v15, v14, 10, {opt('epc', 6)}")
        a("v_cndmask_b32 v15, 0, v15, vcc")
        a("v_cndmask_b32 v14, 0, v14, vcc")
        a("v_lshl_or_b32 v18, v15, 16, v14")
        a(f"v_subrev_u32 v{NST}, 1, v14")
        a("v_mov_b32 v19, v18")
        scan64(a, 19)
        a("v_readlane_b32 s58, v19, 63")
        a("v_sub_u32 v18, v19, v18")
        a("v_and_b32 v19, 0xffff, v19")
        a("v_lshrrev_b32 v32, 16, v18")
        a("v_and_b32 v18, 0xffff, v18")
        a("v_lshl_add_u32 v32, v32, 1, v15")
        a("v_lshlrev_b32 v32, 2, v32")
        a("s_lshr_b32 s59, s58, 16")
        a("s_and_b32 s58, s58, 0xffff")
        a(f"s_and_b32 s60, s{S_WAVE}, 3")
        a("s_lshl_b32 s60, s60, 1")
        a(f"s_lshr_b32 s61, s{S_WAVE}, 2")
        a("s_add_u32 s60, s60, s61")
        a("s_mul_i32 s60, s60, s59")
        a("s_add_u32 s61, s60, s59")
        a("v_cmp_le_u32 vcc, s60, v32")
        a("v_cmp_gt_u32 s[62:63], s61, v32")
        a("s_and_b64 vcc, vcc, s[62:63]")
        a(f"s_bcnt1_i32_b64 s{S_NNW}, vcc")
        a(f"s_ff1_i32_b64 s{S_NODE0}, vcc")
        a(f"s_max_i32 s{S_NODE0}, s{S_NODE0}, 0")
        a(f"s_add_u32 s{S_NEND}, s{S_NODE0}, s{S_NNW}")
        a(f"s_sub_u32 s60, s{S_NEND}, 1")
        a("s_max_i32 s60, s60, 0")
        a(f"v_readlane_b32 s{S_STEP0}, v18, s{S_NODE0}")
        a(f"v_readlane_b32 s{S_NS}, v19, s60")
        a(f"s_sub_u32 s{S_NS}, s{S_NS}, s{S_STEP0}")
    assert BAL
    for k in range(7):
        a(f"ds_bpermute_b32 v{20+k}, v{20+k}, v18")
    a(f"s_lshl_b32 s59, s{S_STEP0}, 7")
    a("v_add_u32 v160, s59, v160")
    a("s_lshl_b32 s59, s59, 1")
    a("v_add_u32 v161, s59, v161")
    a(f"s_cmp_gt_u32 s58, {MAXSTEPS}")
    a("s_cselect_b32 s60, 1, s60")
    a("s_cmp_eq_u32 s60, 0")
    a("s_cbranch_scc1 SCATTER")
    a(f"s_mov_b32 s{S_CAP}, {SLOWCAP}")
    a("s_waitcnt vmcnt(0) lgkmcnt(0)")
    a("s_barrier")
    a("s_branch ROUND")
    a.label("SCATTER")
    if FUSED:
        a(f"s_cmp_lg_u32 s{S_EB1}, 0")
        a("s_cbranch_scc1 EB2_go")
        a("s_waitcnt vmcnt(0)")
        flag_test(a)
        a(f"s_cselect_b32 s{S_EB2}, 1, 0")
        a("s_cbranch_scc0 EB2_skip")
        e_batch(1)
        a.label("EB2_go")
        e_batch(2)
        a.label("EB2_skip")
    else:
        e_batch(2)
    for k in range(7):
        r = MREC + 4 * k
        a(f"s_waitcnt lgkmcnt({6 - k + 2 * k if 6 + k <= 15 else 15})")
        a(f"v_lshl_add_u32 v{20+k}, v{20+k}, 5, v{r+3}")
        a(f"v_lshl_add_u32 v{r+1}, v{20+k}, 3, v162")
        a(f"v_lshl_add_u32 v{20+k}, v{20+k}, 2, v163")
        a(f"s_mov_b64 exec, s[{S_MASK+2*k}:{S_MASK+2*k+1}]")
        a(f"ds_write_b32 v{20+k}, v{r}")
        a(f"ds_write_b64 v{r+1}, {vr(RP+2*k,2)}")
        a("s_mov_b64 exec, -1")
    if FUSED:
        a(f"s_cmp_lg_u32 s{S_EB2}, 0")
        a("s_cbranch_scc1 EB3_nopoll")
        poll(a, 1, "POLL_B")
        a.label("EB3_nopoll")
    a("s_waitcnt lgkmcnt(0)")
    a("s_barrier")
    if FUSED:
        a(f"s_cmp_lg_u32 s{S_EB2}, 0")
        a("s_cbranch_scc1 EB3_go")
        e_batch(1)
        e_batch(2)
        a.label("EB3_go")
    e_batch(3)
    for s in range(10):
        a(f"ds_read_b32 v{M0R+s}, v160 offset:{256*s}")
        a(f"ds_read_b64 {vr(MBR+2*s,2)}, v161 offset:{512*s}")
    a(f"s_mov_b32 s{S_D}, 0")
    pfn = opt("pfn", 0)
    if pfn:
        a(f"s_sub_u32 s{S_EVT}, s{S_NEND}, {pfn}")
        a(f"s_max_i32 s{S_EVT}, s{S_EVT}, 0")
    else:
        a(f"s_mov_b32 s{S_EVT}, -2")
    a(f"s_mov_b32 s{S_PHASE}, 0")
    if opt("eg", 0):
        a(f"s_mov_b32 s{S_EGN}, -1")
    a(f"s_mov_b32 s{S_POFF}, 0")
    a(f"s_mov_b32 s{S_TAB0}, 0")
    a(f"s_mov_b32 s{S_TAB1}, 128")
    a(f"s_mov_b32 s{S_NODE}, s{S_NODE0}")
    for l in node_steps(S_NODE):
        a(l)
    if opt("prio", 3) == 2:
        a(f"s_lshr_b32 s54, s{S_WAVE}, 2")
        a(f"s_lshl2_add_u32 s{S_LEFT}, s{S_NS}, s54")
        a(f"s_add_u32 s{S_LEFT}, s{S_LEFT}, 256")
        a(f"s_lshl1_add_u32 s54, s{S_REM}, 2")
        a(f"s_sub_u32 s{S_LEFT}, s{S_LEFT}, s54")
        a(f"s_and_b32 s54, s{S_WAVE}, 3")
        a(f"s_lshl2_add_u32 s{S_PADR}, s54, {L_CNT + 240}")
    stamp(a, 5)
    a("s_waitcnt lgkmcnt(0)")
    a("s_barrier")
    if PROF and not opt("egx", 0):
        a(f"s_mov_b32 s{preg(12)}, s{S_NS}")
        a(f"s_mov_b32 s{preg(13)}, s{S_NNW}")
    a(f"s_cmp_lg_u32 s{S_NNW}, 0")
    a("s_cbranch_scc1 START")
    a("s_waitcnt vmcnt(0)")
    a("s_barrier")
    stamp(a, 6)
    a("s_branch TAIL")
    a.label("START")
    pipeline_start(a)
    cold = []
    for par in range(2):
        for rho in (0, 2, 1):
            epilogue(a, rho, par, cold)
            step_body(a, rho, "f", par, 1 - par, "n", cold)
            step_body(a, (rho + 1) % 3, "n", 1 - par, par, "e" if rho != 1 else "", cold)
    for rho in range(3):
        step_body(a, rho, "f", 0, 0, "", cold)
        step_body(a, rho, "n", 0, 0, "", cold)
    for l in cold:
        a(l)

    a.label("TAIL")
    a("s_setprio 0")
    WF, PF, D = 0, 80, 188
    if PROF == 4:
        a("v_mov_b32 v183, v219")
    stamp(a, 8, late=True)
    a(f"v_and_b32 v{T0+1}, 15, v{LANE}")
    a(f"s_lshr_b32 s56, s{S_WAVE}, 1")
    a("s_lshl_b32 s56, s56, 4")
    a(f"v_add_u32 v{T0+1}, s56, v{T0+1}")
    a(f"v_lshlrev_b32 v{T0+2}, 2, v{T0+1}")
    a(f"ds_bpermute_b32 v{T0+4}, v{T0+2}, v{NID}")
    a(f"v_lshrrev_b32 v{T0+2}, 4, v{LANE}")
    a(f"v_lshlrev_b32 v{T0+2}, 4, v{T0+2}")
    a("s_waitcnt lgkmcnt(0)")
    a(f"v_lshl_add_u32 v{T0+4}, v{T0+4}, 9, v{T0+2}")
    a(f"v_lshlrev_b32 v{T0}, 4, v{LANE}")
    a(f"s_and_b32 s54, s{S_WAVE}, 1")
    a("s_mul_i32 s55, s54, 20480")
    a(f"s_add_u32 s55, s55, {WS_WSI - WS_WTAB}")
    if NEWTAIL:
        def prework(tag):
            a(f"s_mul_i32 s56, s{S_NNW}, {P_NODE}")
            a(f"s_mul_i32 s57, s{S_NODE0}, {P_NODE}")
            a(f"s_mov_b32 s60, s{S_RB}")
            for k in range(6):
                a(f"v_cmp_gt_u32 vcc, s56, v{T0}")
                a("s_mov_b32 m0, s60")
                a("s_mov_b64 exec, vcc")
                a(f"s_cbranch_execz {tag}")
                a(f"buffer_load_dwordx4 v{T0}, s[{R_P}:{R_P+3}], s57 offen sc1 lds")
                a("s_mov_b64 exec, -1")
                a("s_add_u32 s57, s57, 1024")
                a("s_add_u32 s60, s60, 1024")
                a("s_sub_u32 s56, s56, 1024")
                a("s_max_i32 s56, s56, 0")
            a.label(tag)
            a("s_mov_b64 exec, -1")
            for f in range(20):
                if f % 4 == 0 and f:
                    a("s_add_u32 s55, s55, 4096")
                a(f"buffer_load_dwordx4 {vr(WF+4*f,4)}, v{T0}, s[{R_W}:{R_W+3}], s55 offen offset:{(f%4)*1024}")

        a(f"v_mov_b32 v{T0+5}, {L_CNT + 224}")
        a(f"v_mov_b32 v{T0+6}, 1")
        a(f"s_mul_i32 s56, s{S_NNW}, {P_NODE}")
        a(f"s_add_u32 s60, s56, s{S_RB}")
        a(f"v_add_u32 v{T0+7}, s60, v{POFF}")
        a("s_mov_b64 exec, 1")
        a(f"ds_add_rtn_u32 v{T0+6}, v{T0+5}, v{T0+6}")
        a("s_mov_b64 exec, -1")
        a(f"s_cmp_eq_u32 s{S_NNW}, 0")
        a("s_cbranch_scc1 T_NOREC")
        a("s_waitcnt vmcnt(3)")
        for i in range(3):
            a(f"ds_write_b32 v{T0+7}, v{64+i} offset:{256*i}")
        a.label("T_NOREC")
        a("s_waitcnt lgkmcnt(0)")
        a(f"v_readfirstlane_b32 s{S_OLD}, v{T0+6}")
        a(f"s_cmp_ge_u32 s{S_OLD}, {opt('tlast', 7)}")
        a("s_cbranch_scc1 T_BAR")
        if DRY:
            a("s_mov_b32 s62, 1")
            a(f"s_cmp_eq_u32 s{S_OLD}, 0")
            a("s_cbranch_scc1 T_MM")
            a.label("T_RET")
        prework("T_P1")
        a.label("T_BAR")
        a("s_barrier")
        stamp(a, 9, late=True)
        a(f"s_lshl_b32 s61, s{S_WAVE}, 10")
        a(f"s_add_u32 s61, s61, {P_HALF}")
        for k in range(5):
            if k == 4:
                a(f"s_cmp_ge_u32 s{S_WAVE}, 6")
                a("s_cbranch_scc1 NOP10")
            a("s_mov_b32 m0, s61")
            a(f"buffer_load_dwordx4 v{T0}, s[{R_P}:{R_P+3}], s61 offen sc1 lds")
            a("s_add_u32 s61, s61, 8192")
        a.label("NOP10")
        a(f"s_cmp_lt_u32 s{S_OLD}, {opt('tlast', 7)}")
        a("s_cbranch_scc1 T_DONE")
        prework("T_P2")
        a.label("T_DONE")
    else:
        a("s_waitcnt vmcnt(0)")
        for f in range(20):
            if f % 4 == 0 and f:
                a("s_add_u32 s55, s55, 4096")
            a(f"buffer_load_dwordx4 {vr(WF+4*f,4)}, v{T0}, s[{R_W}:{R_W+3}], s55 offen offset:{(f%4)*1024}")
        a("s_barrier")
        stamp(a, 9, late=True)
        a(f"s_lshl_b32 s55, s{S_WAVE}, 10")
        for k in range(10):
            if k == 9:
                a(f"s_cmp_ge_u32 s{S_WAVE}, 4")
                a("s_cbranch_scc1 NOP10")
            a("s_mov_b32 m0, s55")
            a(f"buffer_load_dwordx4 v{T0}, s[{R_P}:{R_P+3}], s55 offen sc1 lds")
            a("s_add_u32 s55, s55, 8192")
        a.label("NOP10")
    a(f"v_lshlrev_b32 v{T0+8}, 1, v{T0+4}")
    a(f"s_lshl_b32 s57, s54, 9")
    a(f"s_cmp_eq_u32 s{S_R0}, 0")
    a("s_cbranch_scc1 ZEROD")
    for i in range(8):
        a(f"buffer_load_dwordx4 {vr(D+4*i,4)}, v{T0+8}, s[{R_ACC}:{R_ACC+3}], s57 offen offset:{(i//2)*128 + (i%2)*16} sc1")
    a("s_branch HAVED")
    a.label("ZEROD")
    for i in range(32):
        a(f"v_mov_b32 v{D+i}, 0")
    a.label("HAVED")
    if NEWTAIL:
        t = T0 + 9
        a(f"s_cmp_eq_u32 s{S_NN}, {NPB}")
        a(f"s_mov_b32 s58, {-(-8*65536 // (N - 255*NPB))}")
        a(f"s_cmov_b32 s58, {-(-8*65536 // NPB)}")
        a(f"v_mul_u32_u24 v{T0+3}, s58, v{T0+1}")
        a(f"v_lshrrev_b32 v{T0+3}, 16, v{T0+3}")
        a(f"v_min_u32 v{T0+3}, 7, v{T0+3}")
        a(f"v_mad_u32_u24 v{T0+5}, v{T0+3}, s{S_NN}, 7")
        a(f"v_add_u32 v{T0+6}, s{S_NN}, v{T0+5}")
        a(f"v_lshrrev_b32 v{T0+5}, 3, v{T0+5}")
        a(f"v_lshrrev_b32 v{T0+6}, 3, v{T0+6}")
        a(f"v_lshrrev_b32 v{t}, 1, v{T0+3}")
        a(f"v_and_b32 v{T0+3}, 1, v{T0+3}")
        a(f"v_lshl_add_u32 v{t}, v{T0+3}, 2, v{t}")
        a(f"v_mul_u32_u24 v{t}, {RING_W}, v{t}")
        a(f"v_add_u32 v{t}, {L_RING}, v{t}")
        a(f"v_add_u32 v{t}, v{t}, v{T0+2}")
        a(f"v_sub_u32 v{T0+5}, v{T0+1}, v{T0+5}")
        a(f"s_movk_i32 s58, {P_NODE}")
        a(f"v_mad_u32_u24 v{T0+5}, v{T0+5}, s58, v{t}")
        a(f"v_add_u32 v{t+1}, 1, v{T0+1}")
        a(f"v_cmp_eq_u32 vcc, v{t+1}, v{T0+6}")
        a(f"v_mad_u32_u24 v{T0+6}, v{T0+1}, s58, v{T0+2}")
        a(f"v_add_u32 v{T0+6}, {P_HALF}, v{T0+6}")
        a(f"v_add_u32 v{t}, {P_NODE}, v{T0+5}")
        a(f"v_cndmask_b32 v{T0+6}, v{T0+6}, v{t}, vcc")
        a("s_lshl_b32 s54, s54, 6")
    else:
        a(f"v_mul_u32_u24 v{T0+5}, {P_NODE}, v{T0+1}")
        a(f"v_add_u32 v{T0+5}, v{T0+5}, v{T0+2}")
        a(f"v_add_u32 v{T0+6}, {P_HALF}, v{T0+5}")
        a("s_lshl_b32 s54, s54, 6")
    a("s_mov_b32 s62, 0")
    a("s_waitcnt vmcnt(0)")
    a("s_barrier")
    stamp(a, 10, late=True)
    a.label("T_MM")
    seq = []
    for comp, ts in enumerate(([P0, P1], [P2[0], P3[0], P4[0]], [P2[1], P3[1], P4[1]], [P2[2], P3[2], P4[2]])):
        for t in ts:
            for h in range(2):
                seq.append((comp, t, h))
    for i, (comp, t, h) in enumerate(seq):
        a(f"ds_read_b128 {vr(PF+4*i,4)}, v{T0+5+h} offset:{t*64}")
        if i == 14:
            a("s_waitcnt lgkmcnt(7)")
    for i, (comp, t, h) in enumerate(seq):
        if i >= 8:
            a(f"s_waitcnt lgkmcnt({21 - i})")
        for mt in range(2):
            d = vr(D + 8 * comp + 4 * mt, 4)
            a(f"v_mfma_f32_16x16x32_bf16 {d}, {vr(WF + 4*(10*mt + 2*TPATH[t] + h),4)}, {vr(PF+4*i,4)}, {d}")
    if PROF == 7:
        stamp(a, 4)
    a(f"s_or_b32 s63, s{S_LAST}, s62")
    a("s_cbranch_scc0 MORE")
    for i in range(8):
        a(f"v_mul_f32 v{i}, 0xbfb8aa3b, v{D+i}")
    for i in range(8):
        a(f"v_exp_f32 v{i}, v{i}")
    for i in range(8):
        a(f"v_add_f32 v{i}, 1.0, v{i}")
    for i in range(8):
        a(f"v_rcp_f32 v{i}, v{i}")
    a("s_cmp_lg_u32 s62, 0")
    for comp in range(4):
        if comp:
            for i in range(8):
                a(f"v_mul_f32 v{D+8*comp+i}, v{D+8*comp+i}, v{i}")
        for i in range(4):
            a(f"v_cvt_pk_bf16_f32 v{8+4*comp+i}, v{D+8*comp+2*i}, v{D+8*comp+2*i+1}")
        if DRY:
            a(f"s_cbranch_scc1 {'T_RET' if comp == 3 else 'T_S%d' % comp}")
        a(f"buffer_store_dwordx4 {vr(8+4*comp,4)}, v{T0+4}, s[{R_OUT}:{R_OUT+3}], s54 offen offset:{128*comp}{OPOL}")
        if DRY and comp < 3:
            a.label(f"T_S{comp}")
    if PROF == 7:
        stamp(a, 7)
    if PROF:
        a("s_waitcnt vmcnt(0)")
    stamp(a, 11, late=True)
    stamp(a, 15, True)
    prof_dump(a, 98, 1, 3, S_WAVE)
    if opt("amp", 0):
        a("s_cmp_lg_u32 s2, 100")
        a("s_cbranch_scc1 K2_end")
        srd(a, 4, 98, WS_PROF + 100 * 1024, 64)
        a("v_mov_b32 v0, 0")
        a("buffer_load_dword v2, v0, s[4:7], 0 offen")
        a("buffer_load_dword v3, v0, s[4:7], 0 offen offset:60")
        a("s_waitcnt vmcnt(0)")
        a("v_readfirstlane_b32 s60, v2")
        a("v_readfirstlane_b32 s61, v3")
        lo, hi = {1: ("s60", f"s{S_PROF}"), 2: (f"s{S_PROF}", f"s{S_PROF+6}"), 3: (f"s{S_PROF+6}", f"s{S_PROF+9}"),
                  4: ("s60", "s61"), 5: ("s60", "s60")}[opt("amp", 0)]
        a(f"s_sub_u32 s62, {hi}, {lo}")
        a("s_min_u32 s62, s62, 10000")
        a("s_lshl_b32 s62, s62, 2")
        a("s_add_u32 s62, s62, 1000")
        a.label("AMPL")
        a("s_memrealtime s[80:81]")
        a("s_waitcnt lgkmcnt(0)")
        a(f"s_sub_u32 s63, s80, s{S_PROF+15}")
        a("s_cmp_lt_u32 s63, s62")
        a("s_cbranch_scc1 AMPL")
    if PROF == 4:
        a("s_lshl_b32 s80, s2, 3")
        a(f"s_add_u32 s80, s80, s{S_WAVE}")
        a("s_lshl_b32 s80, s80, 8")
        a(f"s_add_u32 s80, s80, {WS_PROF + 0x200000}")
        srd(a, 4, 98, "s80", 256)
        a(f"v_lshlrev_b32 v0, 2, v{LANE}")
        a("buffer_store_dword v183, v0, s[4:7], 0 offen")
    if PROF == 3:
        a("s_load_dwordx2 s[54:55], s[0:1], 80")
        a("s_min_u32 s80, s2, 249")
        a("s_lshl_b32 s80, s80, 10")
        a(f"s_add_u32 s80, s80, {WS_PROF}")
        srd(a, 4, 98, "s80", 64)
        a("v_mov_b32 v0, 0")
        a("buffer_load_dword v2, v0, s[4:7], 0 offen")
        a("buffer_load_dword v3, v0, s[4:7], 0 offen offset:8")
        a("buffer_load_dword v4, v0, s[4:7], 0 offen offset:24")
        a("buffer_load_dword v5, v0, s[4:7], 0 offen offset:60")
        a("s_waitcnt vmcnt(0) lgkmcnt(0)")
        srd(a, 4, 54, 0, 256)
        a("v_not_b32 v2, v2")
        a("s_mov_b64 exec, 1")
        for i in range(4):
            a(f"buffer_atomic_umax v{2+i}, v0, s[4:7], 0 offen offset:{4*i}")
        a(f"v_not_b32 v2, s{S_PROF}")
        a("buffer_atomic_umax v2, v0, s[4:7], 0 offen offset:16")
        for i, st in enumerate((0, 2, 3, 4, 6, 7, 8, 9, 10, 15)):
            a(f"v_mov_b32 v{3+i}, s{S_PROF+st}")
            a(f"buffer_atomic_umax v{3+i}, v0, s[4:7], 0 offen offset:{20+4*i}")
    a("s_endpgm")
    a.label("MORE")
    for i in range(8):
        a(f"buffer_store_dwordx4 {vr(D+4*i,4)}, v{T0+8}, s[{R_ACC}:{R_ACC+3}], s57 offen offset:{(i//2)*128 + (i%2)*16}")
    a(f"s_lshl_b32 s54, s{S_WAVE}, 6")
    a(f"v_add_u32 v{TID}, s54, v{LANE}")
    a(f"s_add_u32 s{S_R0}, s{S_R0}, s{S_LEN}")
    a("s_waitcnt vmcnt(0)")
    a("s_barrier")
    a("s_branch ROUND")
    a.label("K2_end")
    a("s_endpgm")
    return a


def descriptor(name, nv, ns):
    return f""".amdhsa_kernel {name}
  .amdhsa_next_free_vgpr {nv}
  .amdhsa_next_free_sgpr {ns}
  .amdhsa_accum_offset {(nv + 3) // 4 * 4}
  .amdhsa_group_segment_fixed_size 0
  .amdhsa_kernarg_size 96
  .amdhsa_user_sgpr_count 2
  .amdhsa_user_sgpr_kernarg_segment_ptr 1
  .amdhsa_system_sgpr_workgroup_id_x 1
  .amdhsa_float_denorm_mode_32 3
.end_amdhsa_kernel
"""


def main():
    ref = open(os.path.join(os.path.dirname(os.path.abspath(__file__)), "..", "cdna_kernels", NAME + ".s.ref")).read()
    head = [l for l in ref.split("\n") if l.startswith(";") and "@launch" not in l and "Override" not in l
            and "grid=ceil" not in l]
    k1, k2 = "edge_sort_kernel", NAME + "_kernel"
    out = head + ([] if FUSED else [f"; @launch kernel={k1} grid=(255,1,1) block=(1024,1,1) lds={K1_LDS}"]) + [
        f"; @launch kernel={k2} grid=(256,1,1) block=(512,1,1) lds={K2_LDS}",
        ";",
        "; edge_sort_kernel: each workgroup sorts 3200 edges by destination bin (49 nodes) through LDS and writes",
        ";   the edge attributes, a 12-byte record (source row, node in bin, rhat) and a segment table to d_ws;",
        ";   it also splits x into two 32-channel tables and lays out the weights for the second kernel.",
        "; main kernel: one workgroup per bin. It stages the bin's edges in LDS, sorts them by node, and for each",
        ";   node and channel half accumulates T[k, a, b, c] = sum_e e[k] * (1, rhat)[a] * x[src][b, c] with MFMA",
        ";   (x rows gathered by LDS-DMA), contracts k with w_rad, then applies w_si0 / w_si1 and the gate.",
        ";   Bins that exceed the LDS capacity are processed in several rounds.",
        '.amdgcn_target "amdgcn-amd-amdhsa--gfx950"',
        ".text",
    ]
    for name, fn in ((k1, kernel1), (k2, kernel2))[FUSED:]:
        lines, nops = fn().finish()
        print(name, "instructions:", len(lines), "nops inserted:", nops, file=sys.stderr)
        out += [f".globl {name}", ".p2align 8", f".type {name},@function", f"{name}:"] + lines
    out += ['.section .rodata,"a"'] + ([] if FUSED else [".p2align 6", descriptor(k1, 96, 102)])
    out += [".p2align 6", descriptor(k2, NVGPR, 102)]
    open(sys.argv[1], "w").write("\n".join(out))


if __name__ == "__main__":
    main()
```

```python
import os
import sys

sys.path.insert(0, os.path.dirname(os.path.abspath(__file__)))
from asmlib import Asm, vr, sr

NAME = "gather_scatter__tensor_product_equiv_equiformer__graph"
N, E = 12500, 800000
CHUNK, W = 3200, 250
NPB = 49
NBIN = 256

WS_TAB = 0
WS_WTAB = 0x40000
WS_WSI = 0x48000
WS_META = 0x100000
WS_XP = 0xB00000
WS_EP = 0x1200000
WS_P = 0x2B00000
P_NODE = 784
P_HALF = NPB * P_NODE
P_WG = 0x13000
WS_ACC = 0x4000000
XHALF = N * 256

OPT = dict(a.split("=") for a in sys.argv[2:] if "=" in a)


def opt(name, default):
    return type(default)(OPT.get(name, default))


PROF = opt("prof", 0)
WS_PROF = 0x6000000
S_PROF = 82
FUSED = opt("fused", 1)


def preg(i):
    if FUSED:
        return {0: 82, 6: 83, 9: 90, 10: 91, 11: 92, 12: 93, 13: 94, 15: 95}.get(i)
    return S_PROF + i


def stamp(a, i, real=False, late=False, k1=False):
    if k1:
        i = {2: None, 4: None, 6: 10, 8: 11}[i]
        if i is None or PROF != 5:
            return
    elif PROF == 5 and i not in (0, 15, 6, 9):
        return
    if PROF and not (late and PROF == 2):
        a("s_waitcnt lgkmcnt(0)")
        a(("s_memrealtime" if real or PROF in (3, 5) else "s_memtime") + " s[80:81]")
        a("s_waitcnt lgkmcnt(0)")
        a(f"s_mov_b32 s{preg(i)}, s80")
        if PROF == 4 and i == 7:
            a("s_memrealtime s[80:81]" if opt("rt", 0) else "s_memtime s[80:81]")


def prof_dump(a, wsreg, kern, nwave_shift, wavereg):
    if PROF:
        a(f"s_lshl_b32 s80, s2, {nwave_shift}")
        a(f"s_add_u32 s80, s80, s{wavereg}")
        a("s_lshl_b32 s80, s80, 6")
        a(f"s_add_u32 s80, s80, {WS_PROF + kern * 0x100000}")
        srd(a, 4, wsreg, "s80", 64)
        a("v_mov_b32 v0, 0")
        for i in range(16):
            if preg(i) is None:
                continue
            a(f"v_mov_b32 v1, s{preg(i)}")
            a(f"buffer_store_dword v1, v0, s[4:7], 0 offen offset:{4*i}")


def srd(a, d, b, off, size):
    a(f"s_add_u32 s{d}, s{b}, {off}")
    a(f"s_addc_u32 s{d+1}, s{b+1}, 0")
    a(f"s_mov_b32 s{d+2}, {size}")
    a(f"s_mov_b32 s{d+3}, 0x20000")


def scan64(a, v):
    for sh in (1, 2, 4, 8):
        a(f"v_add_u32_dpp v{v}, v{v}, v{v} row_shr:{sh} row_mask:0xf bank_mask:0xf bound_ctrl:1")
    a(f"v_add_u32_dpp v{v}, v{v}, v{v} row_bcast:15 row_mask:0xa bank_mask:0xf")
    a(f"v_add_u32_dpp v{v}, v{v}, v{v} row_bcast:31 row_mask:0xc bank_mask:0xf")


K1_ERAW = 0
K1_MS = 102400
K1_INV = K1_MS + 38400
K1_HIST = K1_INV + 6400
K1_LDS = 152 * 1024


def prep_tables(a, ST):
    a("v_add_u32 v4, s60, v0")
    a("v_and_b32 v5, 3, v4")
    a("v_bfe_u32 v6, v4, 2, 4")
    a("v_bfe_u32 v7, v4, 6, 2")
    a("v_lshrrev_b32 v8, 8, v4")
    a("v_cmp_le_u32 vcc, 10, v8")
    a("v_cndmask_b32 v9, 0, 1, vcc")
    a("v_mul_u32_u24 v10, 10, v9")
    a("v_sub_u32 v10, v8, v10")
    a("v_lshl_add_u32 v11, v7, 2, v5")
    a("v_mul_u32_u24 v11, 320, v11")
    a("v_lshrrev_b32 v12, 1, v10")
    a("v_lshl_add_u32 v11, v12, 6, v11")
    a("v_lshl_add_u32 v11, v9, 5, v11")
    a("v_and_b32 v12, 1, v10")
    a("v_lshl_add_u32 v11, v12, 4, v11")
    a("v_add_u32 v11, v11, v6")
    a("v_lshlrev_b32 v11, 1, v11")
    a("buffer_load_ushort v13, v11, s[16:19], 0 offen")
    a("v_mov_b32 v30, 0x80000000")
    for t in range(2):
        b = 32 + 8 * t
        a(f"v_add_u32 v14, {20*t}, v8")
        a("v_mul_u32_u24 v15, 26, v14")
        a("v_lshrrev_b32 v15, 8, v15")
        a("v_mul_u32_u24 v16, 10, v15")
        a("v_sub_u32 v16, v14, v16")
        a("v_lshrrev_b32 v17, 1, v16")
        a("v_and_b32 v18, 1, v16")
        a("v_lshl_add_u32 v19, v7, 2, v5")
        a("v_lshl_add_u32 v19, v18, 5, v19")
        a("v_lshl_add_u32 v19, v17, 6, v19")
        a("v_lshrrev_b32 v20, 1, v15")
        a("v_and_b32 v21, 1, v15")
        a("v_lshrrev_b32 v22, 2, v6")
        a("v_lshlrev_b32 v22, 3, v22")
        a("v_lshl_add_u32 v22, v20, 5, v22")
        a("v_lshl_add_u32 v22, v21, 2, v22")
        a("v_and_b32 v23, 3, v6")
        a("v_add_u32 v22, v22, v23")
        a("v_lshl_add_u32 v22, v19, 6, v22")
        a("v_lshlrev_b32 v22, 1, v22")
        a("v_subrev_u32 v23, 16384, v22")
        a("v_cmp_gt_u32 vcc, 2, v17")
        a("v_cndmask_b32 v24, v30, v22, vcc")
        a("v_cndmask_b32 v25, v23, v30, vcc")
        a(f"buffer_load_ushort v{b}, v24, s[20:23], 0 offen")
        a(f"buffer_load_ushort v{b+1}, v24, s[20:23], 0 offen offset:2048")
        a(f"buffer_load_ushort v{b+2}, v25, s[24:27], 0 offen")
        a(f"buffer_load_ushort v{b+3}, v25, s[24:27], 0 offen offset:2048")
    a("v_lshlrev_b32 v4, 2, v4")
    a("s_mov_b32 s61, 20480")
    a("s_waitcnt vmcnt(0)")
    a("v_lshlrev_b32 v13, 16, v13")
    a("buffer_store_dword v13, v4, s[28:31], 0 offen" + ST)
    for t in range(2):
        b = 32 + 8 * t
        a(f"v_or_b32 v{b}, v{b}, v{b+2}")
        a(f"v_or_b32 v{b+1}, v{b+1}, v{b+3}")
        a(f"v_lshl_or_b32 v{b}, v{b+1}, 16, v{b}")
        a(f"buffer_store_dword v{b}, v4, s[32:35], {'0' if t == 0 else 's61'} offen{ST}")


def kernel1():
    a = Asm()
    NT = " nt" if opt("k1nt", 1) else ""
    ST = {0: "", 1: " nt", 2: " sc1"}[opt("k1st", 2)]
    a("s_cmp_ge_u32 s2, 255")
    a("s_cbranch_scc1 K1_end")
    a("s_load_dwordx8 s[4:11], s[0:1], 0")
    a("s_load_dwordx8 s[52:59], s[0:1], 32")
    a("s_load_dwordx2 s[14:15], s[0:1], 88")
    a("v_lshlrev_b32 v1, 4, v0")
    a("v_mul_u32_u24 v2, 24, v0")
    a("v_and_b32 v3, 63, v0")
    a("v_lshlrev_b32 v3, 4, v3")
    a("v_lshrrev_b32 v40, 6, v0")
    a("v_readfirstlane_b32 s3, v40")
    a("s_cmp_ge_u32 s2, 250")
    a("s_cbranch_scc1 K1_prep")
    stamp(a, 0, True)
    stamp(a, 1)
    a("s_mul_i32 s60, s2, 12800")
    a("s_mul_i32 s61, s2, 19200")
    a("s_mul_i32 s62, s2, 25600")
    a("s_mul_i32 s63, s2, 102400")
    a("s_mul_i32 s64, s2, 38400")
    a("s_lshl_b32 s65, s2, 10")
    a("s_waitcnt lgkmcnt(0)")
    srd(a, 16, 52, "s60", 12800)
    a(f"buffer_load_dwordx4 v[4:7], v1, s[16:19], 0 offen{NT}")
    a("v_lshlrev_b32 v41, 2, v0")
    a("v_mov_b32 v42, 0")
    a("s_cmp_ge_u32 s3, 4")
    a("s_cbranch_scc1 K1_nozero")
    a(f"v_add_u32 v41, {K1_HIST}, v41")
    a("ds_write_b32 v41, v42")
    a.label("K1_nozero")
    srd(a, 20, 10, "s60", 12800)
    srd(a, 24, 6, "s61", 19200)
    srd(a, 28, 4, "s62", 25600)
    srd(a, 32, 8, "s63", 102400)
    a("s_mov_b32 s66, 16384")
    a("s_lshl_b32 s67, s3, 10")
    kq = [int(c) for c in opt("kq", "00700")]

    def e_in(i):
        for k in range(sum(kq[:i]), sum(kq[:i + 1])):
            if k == 6:
                a("s_cmp_ge_u32 s3, 4")
                a("s_cbranch_scc1 K1_noe7")
            a("s_mov_b32 m0, s67")
            a(f"buffer_load_dwordx4 v3, s[32:35], s67 offen{NT} lds")
            a("s_add_u32 s67, s67, 16384")
            if k == 6:
                a.label("K1_noe7")

    def n_e(lo, hi):
        return min(sum(kq[:hi + 1]), 6) - min(sum(kq[:lo]), 6)

    e_in(0)
    a("s_waitcnt lgkmcnt(0)")
    a("s_barrier")
    RNT = NT if opt("rnt", 1) else ""
    a(f"buffer_load_dwordx4 v[8:11], v1, s[20:23], 0 offen{NT}")
    a(f"buffer_load_dwordx4 v[12:15], v2, s[24:27], 0 offen{RNT}")
    a(f"buffer_load_dwordx2 v[16:17], v2, s[24:27], 0 offen offset:16{RNT}")
    if opt("k1b2", 1):
        a("s_barrier")
    e_in(1)
    a(f"buffer_load_dwordx4 v[20:23], v1, s[28:31], 0 offen{NT}")
    a(f"buffer_load_dwordx4 v[24:27], v1, s[28:31], s66 offen{NT}")
    e_in(2)
    a("s_add_u32 s68, s64, %d" % WS_META)
    srd(a, 36, 14, "s68", 38400)
    a("s_add_u32 s68, s63, %d" % WS_EP)
    srd(a, 40, 14, "s68", 102400)
    srd(a, 44, 14, WS_XP, 2 * XHALF)
    srd(a, 48, 14, "s65", 1024)
    a("v_cmp_gt_u32 vcc, 800, v0")
    a("s_mov_b64 s[70:71], vcc")
    a("v_mov_b32 v43, 1")
    a(f"s_waitcnt vmcnt({5 + n_e(0, 2)})")
    stamp(a, 2)
    a("s_mov_b64 exec, s[70:71]")
    a("s_cbranch_execz K1_skip_rank")
    for i in range(4):
        a(f"v_mul_u32_u24 v{28+i}, 21400, v{4+i}")
        a(f"v_lshrrev_b32 v{28+i}, 20, v{28+i}")
        a(f"v_mul_u32_u24 v{36+i}, 49, v{28+i}")
        a(f"v_sub_u32 v{36+i}, v{4+i}, v{36+i}")
        a(f"v_lshlrev_b32 v{28+i}, 2, v{28+i}")
        a(f"v_add_u32 v{28+i}, {K1_HIST}, v{28+i}")
        a(f"ds_add_rtn_u32 v{32+i}, v{28+i}, v43")
    a.label("K1_skip_rank")
    a("s_mov_b64 exec, -1")
    a("s_waitcnt lgkmcnt(0)")
    a("s_barrier")
    stamp(a, 3)
    a("s_cmp_lg_u32 s3, 0")
    a("s_cbranch_scc1 K1_noscan")
    a(f"v_add_u32 v41, {K1_HIST}, v3")
    a("ds_read_b128 v[44:47], v41")
    a("s_waitcnt lgkmcnt(0)")
    a("v_add_u32 v49, v44, v45")
    a("v_add_u32 v50, v49, v46")
    a("v_add_u32 v51, v50, v47")
    a("v_mov_b32 v52, v51")
    scan64(a, 52)
    a("v_sub_u32 v52, v52, v51")
    a("v_add_u32 v53, v52, v44")
    a("v_add_u32 v54, v52, v49")
    a("v_add_u32 v55, v52, v50")
    a("ds_write_b128 v41, v[52:55]")
    for i in range(4):
        a(f"v_lshl_or_b32 v{56+i}, v{44+i}, 16, v{52+i}")
    a("buffer_store_dwordx4 v[56:59], v3, s[48:51], 0 offen")
    a("s_waitcnt lgkmcnt(0)")
    a.label("K1_noscan")
    e_in(3)
    a("v_lshrrev_b32 v60, 5, v0")
    a("s_mul_i32 s69, s2, 50")
    a("v_add_u32 v60, s69, v60")
    a("v_lshlrev_b32 v60, 8, v60")
    a("v_bfe_u32 v61, v0, 3, 2")
    a("v_lshl_add_u32 v60, v61, 6, v60")
    a("v_and_b32 v61, 3, v0")
    a("v_lshl_add_u32 v60, v61, 4, v60")
    a("v_bfe_u32 v61, v0, 2, 1")
    a(f"v_mul_u32_u24 v61, {XHALF}, v61")
    a("v_add_u32 v60, v60, v61")
    a("v_add_u32 v61, 8192, v60")
    a("v_cmp_gt_u32 vcc, 576, v0")
    a("v_mov_b32 v62, 0x80000000")
    a("v_cndmask_b32 v61, v62, v61, vcc")
    a("s_barrier")
    a("s_mov_b64 exec, s[70:71]")
    a("s_cbranch_execz K1_skip_scatter")
    for i in range(4):
        a(f"ds_read_b32 v{28+i}, v{28+i}")
    a(f"s_waitcnt vmcnt({2 + n_e(1, 3)})")
    a("s_mov_b32 s72, 0x80000000")
    a("s_mov_b32 s73, 0xffff0000")
    for i in range(4):
        a(f"v_lshl_or_b32 v{8+i}, v{8+i}, 8, v{36+i}")
        a(f"v_or_b32 v{8+i}, s72, v{8+i}")
    a("v_lshlrev_b32 v44, 16, v13")
    a("v_alignbit_b32 v45, v14, v13, 16")
    a("v_and_b32 v46, s73, v14")
    a("v_lshlrev_b32 v47, 16, v16")
    a("v_alignbit_b32 v48, v17, v16, 16")
    a("v_and_b32 v49, s73, v17")
    w1 = [12, 45, 15, 48]
    w2 = [44, 46, 47, 49]
    a("v_lshlrev_b32 v50, 2, v0")
    a("s_waitcnt lgkmcnt(0)")
    for i in range(4):
        a(f"v_add_u32 v{32+i}, v{32+i}, v{28+i}")
        a(f"v_mul_u32_u24 v{28+i}, 12, v{32+i}")
        a(f"v_add_u32 v{28+i}, {K1_MS}, v{28+i}")
        a(f"ds_write2_b32 v{28+i}, v{8+i}, v{w1[i]} offset0:0 offset1:1")
        a(f"ds_write_b32 v{28+i}, v{w2[i]} offset:8")
        a(f"v_lshlrev_b32 v{32+i}, 1, v{32+i}")
        a(f"v_add_u32 v{32+i}, {K1_INV}, v{32+i}")
        a(f"v_add_u32 v{52+i}, {i}, v50")
        a(f"ds_write_b16 v{32+i}, v{52+i}")
    a.label("K1_skip_scatter")
    a("s_mov_b64 exec, -1")
    a(f"s_waitcnt vmcnt({n_e(2, 3)})")
    a(f"buffer_store_dwordx4 v[20:23], v60, s[44:47], 0 offen{ST}")
    a(f"buffer_store_dwordx4 v[24:27], v61, s[44:47], 0 offen{ST}")
    e_in(4)
    a("s_waitcnt lgkmcnt(0)")
    a("s_barrier")
    stamp(a, 4)
    a(f"v_add_u32 v41, {K1_MS}, v1")
    a("ds_read_b128 v[4:7], v41")
    a("ds_read_b128 v[8:11], v41 offset:16384")
    a("ds_read_b128 v[12:15], v41 offset:32768")
    a("v_and_b32 v42, 0x3fe, v0")
    a(f"v_add_u32 v42, {K1_INV}, v42")
    for k in range(7):
        a(f"ds_read_u16 v{28+k}, v42 offset:{1024*k}")
    a("v_and_b32 v43, 1, v0")
    a("v_lshlrev_b32 v43, 4, v43")
    a("s_mov_b32 s74, 32768")
    a("s_waitcnt lgkmcnt(7)")
    a(f"buffer_store_dwordx4 v[4:7], v1, s[36:39], 0 offen{ST}")
    a(f"buffer_store_dwordx4 v[8:11], v1, s[36:39], s66 offen{ST}")
    a(f"buffer_store_dwordx4 v[12:15], v1, s[36:39], s74 offen{ST}")
    a("s_waitcnt lgkmcnt(0)")
    for k in range(7):
        a(f"v_lshl_add_u32 v{28+k}, v{28+k}, 5, v43")
    stamp(a, 5)
    a(f"s_waitcnt vmcnt({3 if kq[4] else 5})")
    a("s_barrier")
    stamp(a, 6)
    for k in range(6):
        a(f"ds_read_b128 v[{64+4*k}:{67+4*k}], v{28+k}")
    a("s_mov_b32 s75, 0")
    for k in range(6):
        a(f"s_waitcnt lgkmcnt({5-k})")
        a(f"buffer_store_dwordx4 v[{64+4*k}:{67+4*k}], v1, s[40:43], s75 offen{ST}")
        a("s_add_u32 s75, s75, 16384")
    a("s_cmp_ge_u32 s3, 4")
    a("s_cbranch_scc1 K1_fin")
    a("ds_read_b128 v[88:91], v34")
    a("s_waitcnt lgkmcnt(0)")
    a(f"buffer_store_dwordx4 v[88:91], v1, s[40:43], s75 offen{ST}")
    a.label("K1_fin")
    if opt("cpf", 2) & 4:
        a(f"s_cmp_ge_u32 s2, {opt('cpn', 8)}")
        a("s_cbranch_scc1 K1_nocpf")
        a("s_getpc_b64 s[76:77]")
        a.label("K1_here2")
        a("s_mov_b32 s78, K2_end-K1_here2")
        a("s_mov_b32 s79, 0x20000")
        a("v_lshlrev_b32 v60, 7, v0")
        a("buffer_load_dword v61, v60, s[76:79], 0 offen")
        a("s_waitcnt vmcnt(0)")
        a.label("K1_nocpf")
    stamp(a, 7)
    if PROF:
        a("s_waitcnt vmcnt(0)")
    stamp(a, 8)
    stamp(a, 15, True)
    prof_dump(a, 14, 0, 4, 3)
    a("s_endpgm")

    a.label("K1_prep")
    a("s_waitcnt lgkmcnt(0)")
    srd(a, 16, 54, 0, 16 * 320 * 2)
    srd(a, 20, 56, 0, 128 * 64 * 2)
    srd(a, 24, 58, 0, 192 * 64 * 2)
    srd(a, 28, 14, WS_WTAB, 20480)
    srd(a, 32, 14, WS_WSI, 40960)
    if opt("cpf", 2) & 2:
        a("s_getpc_b64 s[36:37]")
        a.label("K1_here")
        a("s_mov_b32 s38, K2_end-K1_here")
        a("s_mov_b32 s39, 0x20000")
        a("v_lshlrev_b32 v60, 7, v0")
        a("buffer_load_dword v61, v60, s[36:39], 0 offen")
    a("s_sub_u32 s60, s2, 250")
    a("s_lshl_b32 s60, s60, 10")
    prep_tables(a, "")
    a.label("K1_end")
    a("s_endpgm")
    return a


CAP = 3392
SLOWCAP = 256
MAXSTEPS = 142
MAXWSTEPS = 20
L_E = 0
L_RING = 32 + CAP * 32
RING_W = 6336
SUBB = 2112
L_SA = L_RING
L_SB = L_SA + MAXSTEPS * 128
L_MISC = L_SB + MAXSTEPS * 256
L_CNT = L_MISC
L_FLAG = L_MISC + 256
L_WSUM = L_MISC + 272
L_DUMMY = L_WSUM + 16
L_MAP = 94208
K2_LDS = 163840
assert L_MAP + CAP * 4 <= L_RING and L_DUMMY + 256 <= K2_LDS and L_RING + 8 * RING_W <= L_MISC

ACC = 0
WR = 88
B0 = 128
B1 = 144
GS, G0, G1, G2, N0, N2 = 160, 164, 168, 172, 176, 180
SEL = 184
M0R = 188
MBR = 198
GSP = (160, 252)
NID = 218
Y = 220
REP = 223
XA = 224
XOFF, QQ8, BAE, BAO, POFF, NST = 228, 230, 231, 232, 233, 234
U, PT, T8, EA = 236, 244, 235, 248
T0 = 236
TID, LANE = 250, 251
NVGPR = 256
XBIAS = 2048

S_WAVE = 3
R_XP, R_EP, R_MT, R_TB, R_P, R_W, R_OUT, R_ACC = 4, 8, 12, 16, 20, 24, 28, 32
S_NN, S_T, S_R0, S_LEN, S_CAP = 36, 37, 38, 39, 40
S_NODE0, S_NNW, S_STEP0, S_NS = 41, 42, 43, 44
S_D, S_REM, S_NODE, S_PHASE, S_TAB0, S_TAB1, S_RB, S_POFF = 45, 46, 47, 48, 49, 50, 51, 52
S_HI, S_SGN = 100, 101
S_MASK = 64
S_LAST = 78
S_NEND = 79
S_EM0 = 57
S_EVT = 59
S_OLD = 53
S_LEFT, S_PADR = 58, 63
S_PAT = 58
S_EGN = 63
NEWTAIL = opt('newtail', 0)
DRY = NEWTAIL and opt('dry', 0)
R_DBG = 76
R_FLG = 84
S_EB1, S_EB2, S_TAG = 88, 89, 96

PPOL = ["", " sc1", " nt", " sc0 sc1"][opt("ppol", 0)]
OPOL = ["", " sc1", " nt", " sc0 sc1"][opt("opol", 0)]

VC = opt("vc", 0)
HI = "v219" if VC else f"s{S_HI}"
SGN = f"v{TID}" if VC else f"s{S_SGN}"

TPATH = [0, 1, 2, 2, 2, 3, 3, 3, 4, 4, 4]
P0, P1 = 0, 1
P2 = [2, 3, 4]
P3 = [5, 6, 7]
P4 = [8, 9, 10]


def acc(t, cq):
    return ACC + 4 * (2 * t + cq)


def mfma_list():
    out = []
    for t, A, B, fl in ((P2[0], G0, B0, 1), (P1, G0, B0 + 8, 1), (P0, GS, B0, 1), (P3[0], GS, B0 + 8, 1),
                        (P2[2], G2, B0, 1), (P4[1], G2, B0 + 8, 1), (P2[1], G1, B0, 1), (P4[2], G1, B0 + 8, 1),
                        (P4[2], N0, B1, 0), (P4[1], N0, B1 + 8, 0), (P3[1], GS, B1, 1), (P3[2], GS, B1 + 8, 1),
                        (P4[0], N2, B1, 1), (P1, G2, B1 + 8, 0), (P1, G1, B1, 0), (P4[0], G1, B1 + 8, 0)):
        for cq in range(2):
            out.append((t, cq, A, B + 4 * cq, fl))
    if opt("chain", 1):
        n2, g2p1, g1p1, g1p4 = out[24:26], out[26:28], out[28:30], out[30:32]
        out[16], out[17] = out[17], out[16]
        out[24:32] = [g1p1[0], g2p1[0], g1p1[1], g2p1[1], n2[0], g1p4[0], n2[1], g1p4[1]]
    return out


def emit_mfma(a, m, first, p0, q0):
    t, cq, A, B, fl = m
    if A == GS:
        A = GSP[p0]
    if opt("nomfma", 0):
        return
    d = vr(acc(t, cq), 4)
    c = "0" if (first and fl) else d
    if q0:
        a(f"v_mfma_f32_16x16x16_bf16 {d}, {vr(A,2)}, {vr(B,2)}, {c}")
    else:
        a(f"v_mfma_f32_16x16x32_bf16 {d}, {vr(A,4)}, {vr(B,4)}, {c}")


def b_reads(k, pos):
    B = B0 if k < 2 else B1
    hf = k & 1
    return [f"ds_read_b64_tr_b16 {vr(B + 4*u + 2*hf, 2)}, v{BAE if u % 2 == 0 else BAO} offset:{pos*SUBB + u*32}"
            for u in range(4)]


def vmwait(n):
    return [] if opt("nowait", 0) else [f"s_waitcnt vmcnt({n})"]


def dma(k, pos):
    if opt("nodma", 0):
        return [[], [], []]
    hf, bp = k & 1, k >> 1
    so = S_TAB0 if bp == 0 else S_TAB1
    pol = ["", " sc1", " nt", " sc0 sc1", " sc0"][opt("xpol", 1)]
    return [[f"s_add_u32 m0, s{S_RB}, {pos*SUBB}"],
            [f"buffer_load_dwordx4 v{XA + 2*hf}, s[{R_XP}:{R_XP+3}], s{so} offen{pol} lds"],
            [f"buffer_load_dwordx4 v{XA + 2*hf + 1}, s[{R_XP}:{R_XP+3}], s{so} offen offset:1088{pol} lds"]]


W0_FETCH = [f"s_lshr_b32 s54, s{S_D}, 1",
            "s_set_gpr_idx_on s54, gpr_idx(SRC0)",
            f"v_mov_b32 v{REP}, v{M0R}",
            "s_set_gpr_idx_off"]
W0_REP = [f"v_mov_b32_dpp v{REP}, v{REP} row_shr:4 row_mask:0xf bank_mask:0xa",
          f"v_mov_b32_dpp v{REP}, v{REP} row_shl:4 row_mask:0xf bank_mask:0x5"]
WRAP = [f"s_mov_b32 s{S_D}, 0",
        f"s_add_u32 s{S_TAB0}, s{S_TAB0}, {XHALF}",
        f"s_add_u32 s{S_TAB1}, s{S_TAB1}, {XHALF}"]


def x_addr(q):
    return f"v_add_u32_dpp v{XA+q}, v{REP}, v{XOFF + (q & 1)} quad_perm:[{q},{q},{q},{q}] row_mask:0xf bank_mask:0xf"


META_SET = [f"s_set_gpr_idx_on s{S_D}, gpr_idx(SRC1)",
            f"v_mad_u32_u16 v{T8}, 8, v{MBR+1}, 0",
            f"v_lshlrev_b32 v{Y}, 16, v{MBR}",
            f"v_and_b32 v{Y+1}, {HI}, v{MBR}",
            f"v_and_b32 v{Y+2}, {HI}, v{MBR+1}",
            "s_set_gpr_idx_off"]


def e_addr(p):
    return [f"v_add_u32_dpp v{EA+h}, v{T8}, v{QQ8} quad_perm:[{2*p+h},{2*p+h},{2*p+h},{2*p+h}] "
            "row_mask:0xf bank_mask:0xf" for h in range(2)]


def e_reads(dst):
    return [f"ds_read_b64_tr_b16 {vr(dst + 2*h, 2)}, v{EA+h}" for h in range(2)]


def unpack_valu(aa, p):
    return [f"v_lshlrev_b32 v{U+2*aa}, 16, v{GSP[p]+aa}", f"v_and_b32 v{U+2*aa+1}, {HI}, v{GSP[p]+aa}"]


def gb(j, aa, p):
    if opt("nog", 0):
        return []
    hf, rl = aa >> 1, 2 * (aa & 1)
    pl = PT + 2 * (aa & 1)
    return [f"v_mul_f32_dpp v{pl}, v{Y+j}, v{U+2*aa} row_newbcast:{4*rl+2*p+hf} row_mask:0xf bank_mask:0xf",
            f"v_mul_f32_dpp v{pl+1}, v{Y+j}, v{U+2*aa+1} row_newbcast:{4*rl+4+2*p+hf} row_mask:0xf bank_mask:0xf",
            f"v_cvt_pk_bf16_f32 v{(G0, G1, G2)[j]+aa}, v{pl}, v{pl+1}"]


def neg(dst, src):
    return [f"v_xor_b32 v{dst+i}, {SGN}, v{src+i}" for i in range(4)]


SHORT = opt("short", 0)


def body_name(rho, kind, p0, p1):
    return f"S{rho}{kind}{p0}{p1}"


def goto_next(a, rho, kind, p1, fall=False):
    if p1 == 0:
        a(f"s_cmp_eq_u32 s{S_D}, 0")
        a(f"s_cbranch_scc1 {body_name(rho, kind, 0, 0)}")
    if not fall:
        a(f"s_branch {body_name(rho, kind, p1, 1 - p1)}")


def issue_cost(l):
    op = l.split()[0]
    if op.endswith(":"):
        return 0
    if op.startswith("v_"):
        return 5.3 if "_dpp" in op or op.startswith(("v_cvt_pk", "v_mad")) else 4.2
    return {"d": 8, "b": 14}.get(op[0], 4.1)


def step_body(a, rho, kind, p0, p1, fall, cold):
    tag = body_name(rho, kind, p0, p1)
    first = kind == "f"
    x = 3 if first else 0
    p = lambda k: (rho + k) % 3
    F = [[] for _ in range(32)]

    def event(slot, n, k, pos):
        F[slot] += vmwait(n)
        for i, r in enumerate(b_reads(k, pos)):
            F[slot + i].append(r)

    def refill(slot, k, pos):
        d = dma(k, pos)
        F[slot - 1] += d[0]
        F[slot] += [f"WAIT {k}"] + d[1]
        F[slot + 1] += d[2]

    event(0, 4 + x, 2, p(2))
    refill(5, 1, p(2))
    event(8, 4 + x, 3, p(0))
    refill(13, 2, p(0))
    event(16, 4 + x, 0, p(1))
    refill(21, 3, p(1))
    event(24, 4, 1, p(2))
    refill(29, 0, p(2))
    F[31] += [f"s_sub_u32 s{S_REM}, s{S_REM}, 1"]
    if PROF == 4:
        F[30] += ["s_memrealtime s[80:81]" if opt("rt", 0) else "s_memtime s[80:81]"]
        F[7] += ["s_mov_b32 m0, s96", "s_add_u32 s96, s96, 1", "v_writelane_b32 v219, s80, m0"]

    qb = 1 - p0
    n0, n2 = neg(N0, G0), neg(N2, G2)
    ea, er = e_addr(p1), e_reads(GSP[qb])
    step = [f"s_add_u32 s{S_D}, s{S_D}, 1", f"s_cmp_lt_u32 s{S_D}, s{S_NS}", f"s_cbranch_scc0 {tag}_w"]
    if p1 == 1:
        fetch = [step + [f"{tag}_b:"] + W0_FETCH]
        rep = [[W0_REP[0]]]
        cold += [f"{tag}_w:"] + WRAP + [f"s_branch {tag}_b"]
    else:
        fetch = [step + W0_FETCH + ["FILL", W0_REP[1], f"{tag}_b:"]]
        rep = []
        cold += [f"{tag}_w:"] + WRAP + W0_FETCH + ["FILL", W0_REP[0], f"s_branch {tag}_b"]
    one = lambda lst: [[l] for l in lst]
    g0 = gb(0, 0, p1) + gb(0, 1, p1) + gb(0, 2, p1) + gb(0, 3, p1)
    g2 = gb(2, 0, p1) + gb(2, 1, p1)
    V = [(0, 6, g) for g in one(gb(2, 2, p0) + gb(2, 3, p0))]
    V += [(0, 10, g) for g in one(gb(1, 0, p0) + gb(1, 1, p0) + gb(1, 2, p0) + gb(1, 3, p0))]
    if p1 == 0:
        V += [(7, 11, META_SET)]
    V += [(0, 14, g) for g in one(n0[:2])]
    V += [(0, 14, [ea[0]]), (0, 14, [ea[1]]), (11, 15, [er[0]]), (11, 15, [er[1]])]
    V += [(0, 14, g) for g in one(n0[2:])]
    V += [(0, 22, g) for g in one(n2)]
    up = sum((unpack_valu(aa, qb) for aa in range(4)), [])
    V += [(opt("upe", 15), 22, ["WAIT e", up[0]])] + [(0, 24, g) for g in one(up[1:])]
    nb = opt("nb", 7)
    V += [(16, 30, g) for g in one(g0[:nb])]
    V += [(22, 26, g) for g in fetch] + [(0, 30, [g0[nb]])] + [(0, 27, g) for g in rep]
    V += [(0, 30, g) for g in one(g0[nb+1:nb+3])]
    V += [(0, 28, [x_addr(0)]), (0, 28, [x_addr(1)])]
    V += [(0, 30, g) for g in one(g0[nb+3:])]
    V += [(0, 31, [x_addr(2)]), (0, 31, [x_addr(3)])]
    if qb != p1:
        V += [(24, 31, [f"v_mov_b32 v{GSP[p1]+i}, v{GSP[qb]+i}" for i in range(4)])]
    V += [(0, 31, g) for g in one(g2[:2])] + [(27, 31, [g2[2]])] + [(27, 31, g) for g in one(g2[3:])]
    filler = g0[nb] if p1 == 0 else None
    if filler:
        V = [v for v in V if v[2] != [filler]]
    cost = lambda grp: sum(issue_cost(l) for l in grp)
    total = sum(cost(f) for f in F) + sum(cost(v[2]) for v in V)
    out, cum, i = [], 0.0, 0
    for sl in range(32):
        cum += cost(F[sl])
        mine = []
        while i < len(V):
            e, late, grp = V[i]
            must = any(V[j][1] <= sl for j in range(i, len(V)))
            if sl < e:
                assert not must, (tag, sl, grp)
                break
            if not must and cum + cost(grp) / 2 > total * (sl + 1) / 32:
                break
            mine += grp
            cum += cost(grp)
            i += 1
        tail = [l for l in F[sl] if l.startswith("s_sub")]
        out.append(mine[:1] + [l for l in F[sl] if l not in tail] + mine[1:] + tail
                   if mine and not mine[0].startswith(("s_", "WAIT", "ds_")) else
                   [l for l in F[sl] if l not in tail] + mine + tail)
    assert i == len(V)
    if opt("sched", 0) == 0:
        F = [[] for _ in range(32)]

        def spread(slot, lst, per=2):
            for i, l in enumerate(lst):
                if l is not None:
                    F[slot + i // per].append(l)

        def event2(slot, n, k, pos):
            r = b_reads(k, pos)
            F[slot] += vmwait(n) + r[:2]
            F[slot + 1] += r[2:]

        spread(0, gb(2, 2, p0) + gb(2, 3, p0) + gb(1, 0, p0) + gb(1, 1, p0) + gb(1, 2, p0) + gb(1, 3, p0))
        event2(0, 4 + x, 2, p(2))
        refill(4, 1, p(2))
        event2(8, 4 + x, 3, p(0))
        if p1 == 0:
            F[9] += META_SET
            spread(10, n0[:2] + ea)
            spread(13, n0[2:] + n2)
        else:
            spread(9, n0[:2] + ea + n0[2:])
            spread(13, n2)
        refill(12, 2, p(0))
        F[13] += er
        event2(16, 4 + x, 0, p(1))
        F[17] += ["WAIT e"]
        spread(17, up)
        refill(20, 3, p(1))
        g = g0 + g2
        filler = g[0] if p1 == 0 else None
        F[21] += fetch[0]
        if p1 == 1:
            F[22] += rep[0] + [g[0]]
        spread(23 - (p1 == 0), g[1:3], 2 if p1 == 1 else 1)
        spread(24, [x_addr(0), g[3], x_addr(1), g[4]] + g[5:9] + [x_addr(2), g[9], x_addr(3)], 2)
        spread(28, g[10:12], 1)
        spread(29, g[12:], 2)
        if qb != p1:
            F[24] += [f"v_mov_b32 v{GSP[p1]+i}, v{GSP[qb]+i}" for i in range(4)]
        event2(24, 4, 1, p(2))
        refill(28, 0, p(2))
        if PROF == 4:
            F[29] += ["s_memrealtime s[80:81]" if opt("rt", 0) else "s_memtime s[80:81]"]
            F[6] += ["s_mov_b32 m0, s96", "s_add_u32 s96, s96, 1", "v_writelane_b32 v219, s80, m0"]
        if PROF == 6 and first:
            F[6] += ["s_sub_u32 s62, s62, s80", f"s_add_u32 s{S_PROF+14}, s{S_PROF+14}, s62"]
        F[31] += [f"s_sub_u32 s{S_REM}, s{S_REM}, 1"]
        out = F
    flat = [(sl, l) for sl in range(32) for l in out[sl]]
    need = {"1": b_reads(2, p(2)), "2": b_reads(3, p(0)), "3": b_reads(0, p(1)), "0": None, "e": er}
    a.label(tag)
    ml = mfma_list()
    for sl in range(32):
        emit_mfma(a, ml[sl], first, p0, 0)
        for l in out[sl]:
            if l.startswith("WAIT"):
                pos = flat.index((sl, l))
                ds = [y for _, y in flat[:pos] if y.startswith("ds_")]
                want = need[l.split()[1]]
                n = 0 if want is None else len(ds) - 1 - max(k for k, y in enumerate(ds) if y in want)
                assert want is None or all(w in ds for w in want)
                l = f"s_waitcnt lgkmcnt({n})"
            if l == "FILL":
                l = filler
            if opt("nods", 0) and (l.startswith("ds_") or l.startswith("s_waitcnt lgkm")):
                continue
            if opt("novalu", 0) and l.startswith("v_") and not l.startswith(("v_writelane", "v_mfma")):
                continue
            a(l)
    for k, l in enumerate(cold):
        if l == "FILL":
            cold[k] = filler
    nr = (rho + 1) % 3
    if fall == "n":
        a(f"s_cbranch_scc1 EP{nr}{p1}")
        goto_next(a, nr, "n", p1, True)
    else:
        if p1 == 1:
            a(f"s_cbranch_scc0 {body_name(nr, 'n', 1, 0)}")
        else:
            a(f"s_cbranch_scc0 {tag}_c")
            cold += [f"{tag}_c:", f"s_cmp_lg_u32 s{S_D}, 0", f"s_cbranch_scc1 {body_name(nr, 'n', 0, 1)}",
                     f"s_branch {body_name(nr, 'n', 0, 0)}"]
        if fall != "e":
            a(f"s_branch EP{nr}{p1}")


def node_steps(lane):
    return [f"v_readlane_b32 s{S_REM}, v{NST}, s{lane}"]


def load_w(a, h):
    a(f"s_mov_b32 s57, {10240*h}")
    a(f"v_lshlrev_b32 v67, 4, v{LANE}")
    for pc in range(10):
        if pc % 4 == 0 and pc:
            a("s_add_u32 s57, s57, 4096")
        a(f"buffer_load_dwordx4 {vr(WR+4*pc,4)}, v67, s[{R_W}:{R_W+3}], s57 offen offset:{(pc%4)*1024}")


def pipeline_start(a):
    def run(lst):
        for l in lst:
            a(l)

    def dma_now(k, pos):
        for g in dma(k, pos):
            run(g)

    if VC:
        a("v_mov_b32 v219, 0xffff0000")
        a(f"v_mov_b32 v{TID}, 0x80008000")
    run(W0_FETCH + [W0_REP[0]] + [x_addr(q) for q in range(4)])
    dma_now(0, 0)
    dma_now(1, 1)
    dma_now(2, 2)
    run(META_SET + e_addr(0))
    a(f"s_waitcnt vmcnt({0 if opt('nodma', 0) else 6})")
    a("s_barrier")
    stamp(a, 6)
    run(e_reads(GSP[0]))
    run(["s_waitcnt vmcnt(4)"] + b_reads(0, 0) + ["s_waitcnt lgkmcnt(0)"])
    dma_now(3, 0)
    for aa in range(4):
        run(unpack_valu(aa, 0))
    run([f"s_mov_b32 s{S_D}, 1", f"s_cmp_lt_u32 s{S_D}, s{S_NS}", "s_cbranch_scc0 I_w"] + W0_FETCH + [W0_REP[1]])
    a("s_branch I_b")
    run(["I_w:"] + WRAP + W0_FETCH + [W0_REP[0], "I_b:"])
    run([x_addr(q) for q in range(4)])
    run(["s_waitcnt vmcnt(4)"] + b_reads(1, 1))
    run(gb(0, 0, 0) + gb(0, 1, 0) + gb(0, 2, 0) + gb(0, 3, 0) + gb(2, 0, 0) + gb(2, 1, 0))
    if PROF == 6:
        a("s_mov_b32 s62, 0")
        a("s_mov_b32 s80, 0")
        a(f"s_mov_b32 s{S_PROF+14}, 0")
    if PROF == 4:
        a("s_memrealtime s[80:81]" if opt("rt", 0) else "s_memtime s[80:81]")
        a("s_mov_b32 s96, 0")
        a("v_mov_b32 v219, 0")
    a("s_waitcnt lgkmcnt(0)")
    dma_now(0, 1)
    load_w(a, 0)
    if opt("prio", 3) == 3:
        pat = opt("pat", "111110101010")
        a(f"s_mov_b32 s{S_PAT}, {int(pat[::-1], 2)}")
        a(f"s_cmp_eq_u32 s{S_NNW}, 7")
        a(f"s_cmov_b32 s{S_PAT}, {int(opt('pat7', '11111101010100')[::-1], 2)}")
        a(f"s_setprio {2 * int(pat[0])}")
    if opt("prio", 3) in (1, 3):
        a(f"s_cmp_lt_u32 s{S_WAVE}, 4")
        a("s_cbranch_scc1 I_p")
        a("s_setprio 1")
        a.label("I_p")
    goto_next(a, 0, "f", 0)


def epilogue(a, rho, p1, cold):
    tag = f"EP{rho}{p1}"
    a.label(tag)
    if PROF == 6:
        a("s_memtime s[80:81]")
    order = [P2[0], P0, P3[0], P2[2], P2[1], P4[2], P4[1], P3[1], P3[2], P1, P4[0]]
    book = [f"s_mul_i32 s55, s{S_NODE}, {P_NODE}",
            f"s_add_u32 s55, s55, s{S_POFF}",
            f"s_add_u32 s{S_NODE}, s{S_NODE}, 1",
            f"s_cmp_lt_u32 s{S_NODE}, s{S_NEND}",
            f"s_cselect_b32 s56, s{S_NODE}, -2",
            f"s_cselect_b32 s{S_NODE}, s{S_NODE}, s{S_NODE0}",
            *node_steps(S_NODE),
            *([f"s_lshl1_add_u32 s54, s{S_REM}, 2", f"s_sub_u32 s{S_LEFT}, s{S_LEFT}, s54"]
              if opt("prio", 3) == 2 else []),
            f"s_cmp_ge_u32 s56, s{S_EVT}"]
    if opt("prio", 3) == 2:
        a(f"v_mov_b32 v{B1+12}, s{S_PADR}")
        a(f"v_mov_b32 v{B1+13}, s{S_LEFT}")
        a(f"ds_wrxchg_rtn_b32 v{B1+14}, v{B1+12}, v{B1+13}")
    EPP = opt("epp", 0)

    def pattern_prio():
        if EPP:
            a("s_setprio 1")
        a(f"s_cmp_lt_u32 s{S_WAVE}, 4")
        a(f"s_cbranch_scc0 {tag}_p")
        a(f"s_lshr_b32 s{S_PAT}, s{S_PAT}, 1")
        a(f"s_bitcmp1_b32 s{S_PAT}, 0")
        a("s_setprio 0")
        a(f"s_cbranch_scc0 {tag}_p")
        a("s_setprio 2")
        a.label(f"{tag}_p")

    EG = opt("eg", 0)
    if opt("prio", 3) == 3:
        if EG:
            a(f"s_cmp_ge_u32 s{S_NODE}, s{S_EGN}")
            a(f"s_cbranch_scc1 {tag}_eg")
            cold += [f"{tag}_eg:",
                     f"s_sub_u32 s54, s{S_NS}, s{S_D}",
                     f"s_cmp_ge_u32 s{S_TAB0}, {2*XHALF}",
                     "s_cselect_b32 s54, 0, s54",
                     f"s_lshr_b32 s57, s{S_WAVE}, 2",
                     "s_lshl1_add_u32 s54, s54, s57",
                     "s_add_u32 s54, s54, 2",
                     f"s_and_b32 s57, s{S_WAVE}, 3",
                     f"s_lshl2_add_u32 s57, s57, {L_CNT + 240}",
                     f"v_mov_b32 v{B1+12}, s57",
                     f"v_mov_b32 v{B1+13}, s54",
                     f"ds_wrxchg_rtn_b32 v{B1+14}, v{B1+12}, v{B1+13}",
                     "s_waitcnt lgkmcnt(0)",
                     f"v_readfirstlane_b32 s57, v{B1+14}",
                     "s_cmp_eq_u32 s57, 0",
                     "s_cselect_b32 s57, 1000, s57",
                     "s_xor_b32 s55, s57, s54",
                     "s_bitcmp1_b32 s55, 0",
                     "s_cselect_b32 s55, 1, 0",
                     "s_cmp_eq_u32 s57, 1000",
                     "s_cselect_b32 s55, 1, s55",
                     "s_cmp_eq_u32 s55, 0",
                     f"s_cbranch_scc1 {tag}_p",
                     "s_cmp_gt_u32 s54, s57",
                     "s_setprio 0",
                     f"s_cbranch_scc0 {tag}_p",
                     "s_setprio 3",
                     f"s_branch {tag}_p"]
        if EPP:
            a(f"s_setprio {3 if EPP == 1 else 0}")
        else:
            pattern_prio()
    if opt("prio", 3) == 1:
        a(f"s_cmp_lt_u32 s{S_WAVE}, 4")
        a(f"s_cbranch_scc0 {tag}_p")
        a(f"s_setprio {2 if int(opt('prpat', '110110')[2 * rho + p1]) else 0}")
        a.label(f"{tag}_p")
    fb = []
    if opt("prio", 3) == 2:
        fb = ["s_waitcnt lgkmcnt(0)",
              f"v_readfirstlane_b32 s57, v{B1+14}",
              f"s_xor_b32 s54, s57, s{S_LEFT}",
              "s_bitcmp1_b32 s54, 0",
              f"s_cbranch_scc0 {tag}_p",
              f"s_cmp_gt_u32 s{S_LEFT}, s57",
              "s_setprio 0",
              f"s_cbranch_scc0 {tag}_p",
              "s_setprio 2",
              f"{tag}_p:"]
    for t in (order if opt("noep", 0) < 2 else []):
        pth = TPATH[t]
        for r in range(0 if opt("noep", 0) else 4):
            for cq in range(2):
                d, w = acc(t, cq), WR + 4 * (2 * pth + cq)
                if r == 0:
                    a(f"v_mul_f32 v{d}, v{d}, v{w}")
                else:
                    a(f"v_fmac_f32 v{d}, v{d+r}, v{w+r}")
        n = "-" if t == P4[2] else ""
        a(f"v_cvt_pk_bf16_f32 v{B1+t}, {n}v{acc(t,0)}, {n}v{acc(t,1)}")
        if t == P0:
            a(f"v_mov_b32 v{B1+11}, 0")
        if t == P3[0]:
            for l in fb:
                a(l)
        if t == P1:
            a(f"v_mfma_f32_16x16x32_bf16 {vr(20,4)}, {vr(SEL,4)}, {vr(B1+4,4)}, 0")
    if opt("prio", 3) == 3 and EPP:
        pattern_prio()
    a(book[0])
    a(f"v_mfma_f32_16x16x32_bf16 {vr(16,4)}, {vr(SEL,4)}, {vr(B1,4)}, 0")
    a(f"v_mfma_f32_16x16x32_bf16 {vr(24,4)}, {vr(SEL,4)}, {vr(B1+8,4)}, 0")
    a(f"v_cvt_pk_bf16_f32 v65, v20, v21")
    for l in book[1:]:
        a(l)
    a(f"buffer_store_dword v65, v{POFF}, s[{R_P}:{R_P+3}], s55 offen offset:256{PPOL}")
    for i in (0, 2):
        a(f"v_cvt_pk_bf16_f32 v{64+i}, v{16+4*i}, v{17+4*i}")
    for i in (0, 2):
        a(f"buffer_store_dword v{64+i}, v{POFF}, s[{R_P}:{R_P+3}], s55 offen offset:{256*i}{PPOL}")
    if opt("egx", 0):
        a("s_cselect_b32 s57, 1, 0")
        a(f"s_cmp_lg_u32 s{S_PHASE}, 0")
        a(f"s_cbranch_scc1 {tag}_noeg")
        for i in range(2):
            a("v_mul_lo_u32 v218, v218, s97")
            a("v_add_u32 v218, 12345, v218")
            a("v_mul_hi_u32 v67, v218, s96")
            a("v_lshlrev_b32 v67, 5, v67")
            a(f"s_mov_b32 m0, {L_DUMMY}")
            a(f"buffer_load_dword v67, s[92:95], 0 offen{['', ' nt', ' sc1'][opt('egx', 0) - 1]} lds")
        a.label(f"{tag}_noeg")
        a("s_cmp_lg_u32 s57, 0")
    if PROF == 6:
        a("s_memtime s[62:63]")
    a(f"s_cbranch_scc1 {tag}_evt")
    a.label(f"{tag}_go")
    goto_next(a, rho, "f", p1, True)
    c = Asm()
    c.label(f"{tag}_evt")
    c("s_cmp_eq_u32 s56, -2")
    c(f"s_cbranch_scc1 {tag}_end")
    c(f"s_mov_b32 s{S_EVT}, -2")
    c("s_and_b32 s54, s2, 31")
    c("s_lshl_b32 s54, s54, 3")
    c(f"s_add_u32 s54, s54, s{S_WAVE}")
    c(f"s_mul_i32 s54, s54, {98*128}")
    c(f"s_add_u32 s54, s54, {XHALF + XBIAS}")
    c(f"v_lshlrev_b32 v67, 7, v{LANE}")
    c(f"s_mov_b32 m0, {L_DUMMY}")
    if opt("pfm", 64) < 64:
        c(f"s_bfm_b64 exec, {opt('pfm', 64)}, 0")
    c(f"buffer_load_dword v67, s[{R_XP}:{R_XP+3}], s54 offen lds")
    c("s_mov_b64 exec, -1")
    c(f"s_branch {tag}_go")
    c.label(f"{tag}_end")
    c(f"s_cmp_lg_u32 s{S_PHASE}, 0")
    c("s_cbranch_scc1 TAIL")
    if PROF not in (6, 7):
        stamp(c, 7, late=True)
    c(f"s_mov_b32 s{S_EVT}, -2")
    if opt("otlb", 0):
        c("v_mov_b32 v67, 0")
        c(f"s_mov_b32 m0, {L_DUMMY}")
        c(f"buffer_load_dword v67, s[{R_OUT}:{R_OUT+3}], 0 offen lds")
    if opt("eg", 0):
        c(f"s_sub_u32 s{S_EGN}, s{S_NEND}, {opt('eg', 0) + 1}")
        c(f"s_max_i32 s{S_EGN}, s{S_EGN}, 0")
    c(f"s_mov_b32 s{S_PHASE}, 1")
    c(f"s_mov_b32 s{S_POFF}, {P_HALF}")
    load_w(c, 1)
    c(f"s_branch {tag}_go")
    cold += c.lines


NREP = opt("nrep", 16)
WS_FLAG = 0x60000


def get_nonce(a, tag):
    a("s_mov_b32 s62, 0x100000")
    a("v_mov_b32 v111, 0")
    a.label(f"{tag}_l")
    a(f"buffer_load_dword v110, v111, s[{R_DBG}:{R_DBG+3}], 0 offen sc1")
    a("s_sub_u32 s62, s62, 1")
    a(f"s_cbranch_scc1 {tag}_d")
    a("s_waitcnt vmcnt(0)")
    a(f"v_readfirstlane_b32 s{S_TAG}, v110")
    a(f"s_cmp_eq_u32 s{S_TAG}, 0")
    a(f"s_cbranch_scc1 {tag}_l")
    a.label(f"{tag}_d")


def signal(a, which, tag, wave=0):
    a(f"s_cmp_lg_u32 s{S_WAVE}, {wave}")
    a(f"s_cbranch_scc1 {tag}")
    a(f"s_cmp_lg_u32 s{S_TAG}, 0")
    a(f"s_cbranch_scc1 {tag}_n_d")
    get_nonce(a, tag + "_n")
    a("v_and_b32 v111, 63, v0")
    a("v_lshlrev_b32 v111, 10, v111")
    a(f"v_mov_b32 v110, s{S_TAG}")
    a("s_lshl_b32 s62, s2, 2")
    a(f"s_add_u32 s62, s62, {which * NREP * 1024}")
    a(f"s_bfm_b64 exec, {NREP}, 0")
    a(f"buffer_store_dword v110, v111, s[{R_FLG}:{R_FLG+3}], s62 offen sc1")
    a("s_mov_b64 exec, -1")
    a.label(tag)


def flag_load(a, which):
    a(f"s_and_b32 s62, s2, {NREP - 1}")
    a("s_lshl_b32 s62, s62, 10")
    a(f"s_add_u32 s62, s62, {which * NREP * 1024}")
    a(f"v_lshlrev_b32 v111, 4, v{LANE}")
    a(f"buffer_load_dwordx4 v[112:115], v111, s[{R_FLG}:{R_FLG+3}], s62 offen sc1")


def flag_test(a):
    a(f"v_xor_b32 v112, s{S_TAG}, v112")
    a(f"v_xor_b32 v113, s{S_TAG}, v113")
    a(f"v_xor_b32 v114, s{S_TAG}, v114")
    a(f"v_xor_b32 v115, s{S_TAG}, v115")
    a("v_or3_b32 v112, v112, v113, v114")
    a("v_or_b32 v112, v112, v115")
    a("v_cmp_ne_u32 vcc, 0, v112")
    a("s_cmp_eq_u64 vcc, 0")


def poll(a, which, tag):
    a(f"s_cmp_lg_u32 s{S_WAVE}, 0")
    a(f"s_cbranch_scc1 {tag}_d")
    a("s_mov_b32 s61, 0x100000")
    a.label(f"{tag}_l")
    flag_load(a, which)
    a("s_sub_u32 s61, s61, 1")
    a(f"s_cbranch_scc1 {tag}_d")
    a("s_waitcnt vmcnt(0)")
    flag_test(a)
    a(f"s_cbranch_scc1 {tag}_d")
    if opt("slp", 0):
        a(f"s_sleep {opt('slp', 0)}")
    a(f"s_branch {tag}_l")
    a.label(f"{tag}_d")


def part1(a):
    NT, ST = " nt", " sc1"
    D, SRC, RH, X, BA, RK, DL = 4, 12, 20, 32, 48, 56, 64
    a("s_load_dwordx8 s[4:11], s[0:1], 0")
    a("s_load_dwordx8 s[52:59], s[0:1], 32")
    a("s_load_dwordx4 s[12:15], s[0:1], 80")
    a("v_lshlrev_b32 v1, 4, v0")
    a("v_mul_u32_u24 v2, 24, v0")
    a("v_and_b32 v3, 63, v0")
    a("v_lshlrev_b32 v3, 4, v3")
    a("v_lshrrev_b32 v72, 6, v0")
    a(f"v_readfirstlane_b32 s{S_WAVE}, v72")
    a("s_mul_i32 s60, s2, 12800")
    a("s_mul_i32 s61, s2, 19200")
    a("s_mul_i32 s62, s2, 25600")
    a("s_mul_i32 s63, s2, 102400")
    a("s_mul_i32 s64, s2, 38400")
    a("s_lshl_b32 s65, s2, 10")
    a("s_mov_b32 s66, 8192")
    a("s_waitcnt lgkmcnt(0)")
    srd(a, R_DBG, 12, 0, 256)
    srd(a, R_FLG, 14, WS_FLAG, 2 * NREP * 1024)
    a(f"v_and_b32 v{LANE}, 63, v0")
    a(f"s_or_b32 s74, s2, s{S_WAVE}")
    a("s_cbranch_scc1 P1_notag")
    a("s_memrealtime s[74:75]")
    a("s_waitcnt lgkmcnt(0)")
    a("s_or_b32 s74, s74, 1")
    a("v_mov_b32 v110, s74")
    a("v_mov_b32 v111, 0")
    a("s_mov_b64 exec, 1")
    a(f"buffer_store_dword v110, v111, s[{R_DBG}:{R_DBG+3}], 0 offen sc1")
    a("s_mov_b64 exec, -1")
    a.label("P1_notag")
    a(f"s_mov_b32 s{S_TAG}, 0")
    a("s_cmp_ge_u32 s2, 250")
    a("s_cbranch_scc1 P1_prep")
    if opt("cpf", 2) & 8:
        a("s_getpc_b64 s[36:37]")
        a.label("P1_here2")
        a("s_mov_b32 s38, K2_end-P1_here2")
        a("s_mov_b32 s39, 0x20000")
        a("v_lshlrev_b32 v60, 7, v0")
        a("s_and_b32 s75, s2, 31")
        a("s_cbranch_scc1 P1_nocp")
        a("buffer_load_dword v61, v60, s[36:39], 0 offen")
        a.label("P1_nocp")
    srd(a, 16, 52, "s60", 12800)
    a(f"buffer_load_dwordx4 {vr(D,4)}, v1, s[16:19], 0 offen{NT}")
    a(f"buffer_load_dwordx4 {vr(D+4,4)}, v1, s[16:19], s66 offen{NT}")
    a("v_lshlrev_b32 v73, 2, v0")
    a("v_mov_b32 v74, 0")
    a(f"s_cmp_ge_u32 s{S_WAVE}, 4")
    a("s_cbranch_scc1 P1_nozero")
    a(f"v_add_u32 v73, {K1_HIST}, v73")
    a("ds_write_b32 v73, v74")
    a.label("P1_nozero")
    srd(a, 20, 10, "s60", 12800)
    srd(a, 24, 6, "s61", 19200)
    srd(a, 28, 4, "s62", 25600)
    srd(a, 32, 8, "s63", 102400)
    a("s_mov_b32 s69, 12288")
    a(f"s_lshl_b32 s67, s{S_WAVE}, 10")
    a("s_waitcnt lgkmcnt(0)")
    a("s_barrier")
    a(f"buffer_load_dwordx4 {vr(SRC,4)}, v1, s[20:23], 0 offen{NT}")
    a(f"buffer_load_dwordx4 {vr(SRC+4,4)}, v1, s[20:23], s66 offen{NT}")
    for r, so in ((0, "0"), (1, "s69")):
        a(f"buffer_load_dwordx4 {vr(RH+6*r,4)}, v2, s[24:27], {so} offen{NT}")
        a(f"buffer_load_dwordx2 {vr(RH+6*r+4,2)}, v2, s[24:27], {so} offen offset:16{NT}")
    a("s_mov_b32 s68, 0")
    for k in range(4):
        a(f"buffer_load_dwordx4 {vr(X+4*k,4)}, v1, s[28:31], s68 offen{NT}")
        a("s_add_u32 s68, s68, 8192")
    kb = [int(c, 16) for c in opt("kb", "d000")]

    def e_in(i):
        for k in range(sum(kb[:i]), sum(kb[:i + 1])):
            if k == 12:
                a(f"s_cmp_ge_u32 s{S_WAVE}, 4")
                a("s_cbranch_scc1 P1_noe13")
            a("s_mov_b32 m0, s67")
            a(f"buffer_load_dwordx4 v3, s[32:35], s67 offen{NT} lds")
            a("s_add_u32 s67, s67, 8192")
            if k == 12:
                a.label("P1_noe13")

    def n_e(i):
        return min(sum(kb[:i + 1]), 12)

    e_in(0)
    a("s_add_u32 s68, s64, %d" % WS_META)
    srd(a, 36, 14, "s68", 38400)
    a("s_add_u32 s68, s63, %d" % WS_EP)
    srd(a, 40, 14, "s68", 102400)
    srd(a, 44, 14, WS_XP, 2 * XHALF)
    srd(a, 48, 14, "s65", 1024)
    a("v_cmp_gt_u32 vcc, 288, v0")
    a("s_mov_b64 s[70:71], vcc")
    a("v_mov_b32 v75, 1")
    a(f"s_waitcnt vmcnt({10 + n_e(0)})")
    stamp(a, 2, k1=True)
    for i in range(8):
        if i == 4:
            a("s_mov_b64 exec, s[70:71]")
            a("s_cbranch_execz P1_skip_rank")
        a(f"v_mul_u32_u24 v{BA+i}, 21400, v{D+i}")
        a(f"v_lshrrev_b32 v{BA+i}, 20, v{BA+i}")
        a(f"v_mul_u32_u24 v{DL+i}, 49, v{BA+i}")
        a(f"v_sub_u32 v{DL+i}, v{D+i}, v{DL+i}")
        a(f"v_lshlrev_b32 v{BA+i}, 2, v{BA+i}")
        a(f"v_add_u32 v{BA+i}, {K1_HIST}, v{BA+i}")
        a(f"ds_add_rtn_u32 v{RK+i}, v{BA+i}, v75")
    a.label("P1_skip_rank")
    a("s_mov_b64 exec, -1")
    a("s_waitcnt lgkmcnt(0)")
    a("s_barrier")
    a(f"s_cmp_lg_u32 s{S_WAVE}, 0")
    a("s_cbranch_scc1 P1_noscan")
    a(f"v_add_u32 v73, {K1_HIST}, v3")
    a("ds_read_b128 v[76:79], v73")
    a("s_waitcnt lgkmcnt(0)")
    a("v_add_u32 v81, v76, v77")
    a("v_add_u32 v82, v81, v78")
    a("v_add_u32 v83, v82, v79")
    a("v_mov_b32 v84, v83")
    scan64(a, 84)
    a("v_sub_u32 v84, v84, v83")
    a("v_add_u32 v85, v84, v76")
    a("v_add_u32 v86, v84, v81")
    a("v_add_u32 v87, v84, v82")
    a("ds_write_b128 v73, v[84:87]")
    for i in range(4):
        a(f"v_lshl_or_b32 v{88+i}, v{76+i}, 16, v{84+i}")
    a(f"buffer_store_dwordx4 v[88:91], v3, s[48:51], 0 offen{ST}")
    a("s_waitcnt lgkmcnt(0)")
    a.label("P1_noscan")
    e_in(1)
    a("v_lshrrev_b32 v92, 5, v0")
    a("s_mul_i32 s69, s2, 50")
    a("v_add_u32 v92, s69, v92")
    a("v_lshlrev_b32 v92, 8, v92")
    a("v_bfe_u32 v93, v0, 3, 2")
    a("v_lshl_add_u32 v92, v93, 6, v92")
    a("v_and_b32 v93, 3, v0")
    a("v_lshl_add_u32 v92, v93, 4, v92")
    a("v_bfe_u32 v93, v0, 2, 1")
    a(f"v_mul_u32_u24 v93, {XHALF}, v93")
    a("v_add_u32 v92, v92, v93")
    a("v_cmp_gt_u32 vcc, 64, v0")
    a("v_mov_b32 v94, 0x80000000")
    a("v_cndmask_b32 v93, v94, v92, vcc")
    a("s_mov_b32 s72, 0x80000000")
    a("s_mov_b32 s73, 0xffff0000")
    a("v_lshlrev_b32 v95, 2, v0")
    a("s_barrier")
    for r in range(2):
        if r == 1:
            a("s_mov_b64 exec, s[70:71]")
            a("s_cbranch_execz P1_skip_scatter")
        for i in range(4):
            a(f"ds_read_b32 v{BA+4*r+i}, v{BA+4*r+i}")
        if r == 0:
            a(f"s_waitcnt vmcnt({4 + n_e(1)})")
        R = RH + 6 * r
        for i in range(4):
            a(f"v_lshl_or_b32 v{SRC+4*r+i}, v{SRC+4*r+i}, 8, v{DL+4*r+i}")
            a(f"v_or_b32 v{SRC+4*r+i}, s72, v{SRC+4*r+i}")
        a(f"v_lshlrev_b32 v76, 16, v{R+1}")
        a(f"v_alignbit_b32 v77, v{R+2}, v{R+1}, 16")
        a(f"v_and_b32 v78, s73, v{R+2}")
        a(f"v_lshlrev_b32 v79, 16, v{R+4}")
        a(f"v_alignbit_b32 v80, v{R+5}, v{R+4}, 16")
        a(f"v_and_b32 v81, s73, v{R+5}")
        w1 = [R, 77, R + 3, 80]
        w2 = [76, 78, 79, 81]
        a("s_waitcnt lgkmcnt(0)")
        for i in range(4):
            b, k = BA + 4 * r + i, RK + 4 * r + i
            a(f"v_add_u32 v{k}, v{k}, v{b}")
            a(f"v_mul_u32_u24 v{b}, 12, v{k}")
            a(f"v_add_u32 v{b}, {K1_MS}, v{b}")
            a(f"ds_write2_b32 v{b}, v{SRC+4*r+i}, v{w1[i]} offset0:0 offset1:1")
            a(f"ds_write_b32 v{b}, v{w2[i]} offset:8")
            a(f"v_lshlrev_b32 v{k}, 1, v{k}")
            a(f"v_add_u32 v{k}, {K1_INV}, v{k}")
            a(f"v_add_u32 v{82+i}, {2048*r + i}, v95")
            a(f"ds_write_b16 v{k}, v{82+i}")
    a.label("P1_skip_scatter")
    a("s_mov_b64 exec, -1")
    a(f"s_waitcnt vmcnt({n_e(1)})")
    a("s_mov_b32 s68, 0")
    for k in range(4):
        a(f"buffer_store_dwordx4 {vr(X+4*k,4)}, v{92 if k < 3 else 93}, s[44:47], s68 offen{ST}")
        a("s_add_u32 s68, s68, 4096")
    e_in(2)
    a("s_waitcnt lgkmcnt(0)")
    a("s_barrier")
    stamp(a, 4, k1=True)
    a(f"v_add_u32 v73, {K1_MS}, v1")
    for k in range(5):
        a(f"ds_read_b128 {vr(4+4*k,4)}, v73 offset:{8192*k}")
    a("v_and_b32 v74, 0x1fe, v0")
    a(f"v_add_u32 v74, {K1_INV}, v74")
    a("s_mov_b32 s68, 0")
    for k in range(5):
        a(f"s_waitcnt lgkmcnt({4-k})")
        a(f"buffer_store_dwordx4 {vr(4+4*k,4)}, v1, s[36:39], s68 offen{ST}")
        a("s_add_u32 s68, s68, 8192")
    for k in range(13):
        a(f"ds_read_u16 v{48+k}, v74 offset:{512*k}")
    a("v_mov_b32 v111, 0")
    a(f"buffer_load_dword v110, v111, s[{R_DBG}:{R_DBG+3}], 0 offen sc1")
    e_in(3)
    a("v_and_b32 v75, 1, v0")
    a("v_lshlrev_b32 v75, 4, v75")
    a("s_waitcnt lgkmcnt(0)")
    for k in range(13):
        a(f"v_lshl_add_u32 v{48+k}, v{48+k}, 5, v75")
    if opt("siga", 0) == 3:
        a(f"s_waitcnt vmcnt({12 - n_e(2)})")
        a(f"v_readfirstlane_b32 s{S_TAG}, v110")
        a("s_barrier")
        stamp(a, 6, k1=True)
        signal(a, 0, "P1_sa", wave=7)
    a("s_waitcnt vmcnt(0)")
    if opt("siga", 0) == 0:
        a(f"v_readfirstlane_b32 s{S_TAG}, v110")
    a("s_barrier")
    if opt("siga", 0) == 0:
        stamp(a, 6, k1=True)
        signal(a, 0, "P1_sa", wave=7)
    for k in range(12):
        a(f"ds_read_b128 {vr(128+4*k,4)}, v{48+k}")
    a("s_mov_b32 s68, 0")
    for k in range(12):
        a(f"s_waitcnt lgkmcnt({11-k})")
        a(f"buffer_store_dwordx4 {vr(128+4*k,4)}, v1, s[40:43], s68 offen{ST}")
        a("s_add_u32 s68, s68, 8192")
    a(f"s_cmp_ge_u32 s{S_WAVE}, 4")
    a("s_cbranch_scc1 P1_fin" if opt("siga", 0) in (0, 3) else "s_cbranch_scc1 P1_fin2")
    a("ds_read_b128 v[176:179], v60")
    a("s_waitcnt lgkmcnt(0)")
    a(f"buffer_store_dwordx4 v[176:179], v1, s[40:43], s68 offen{ST}")
    a("s_branch P1_fin" if opt("siga", 0) in (0, 3) else "s_branch P1_fin2")

    if opt("siga", 0) == 1:
        a.label("P1_fin2")
        signal(a, 0, "P1_sa")
        a(f"s_cmp_lg_u32 s{S_WAVE}, 0")
        a("s_cbranch_scc1 P1_fin")
        a("s_waitcnt vmcnt(1)")
        a("s_branch P1_fin3")
    if opt("siga", 0) == 2:
        a.label("P1_fin2")
        a("s_waitcnt vmcnt(0)")
        a("s_barrier")
        stamp(a, 8, k1=True)
        signal(a, 0, "P1_sa")
        a("s_branch P1_fin4")
    a.label("P1_prep")
    if opt("cpf", 2) & 2:
        a("s_getpc_b64 s[36:37]")
        a.label("P1_here")
        a("s_mov_b32 s38, K2_end-P1_here")
        a("s_mov_b32 s39, 0x20000")
        a("v_lshlrev_b32 v60, 7, v0")
        a("buffer_load_dword v61, v60, s[36:39], 0 offen")
    a("s_cmp_eq_u32 s2, 255")
    a("s_cbranch_scc1 P1_prepd")
    srd(a, 16, 54, 0, 16 * 320 * 2)
    srd(a, 20, 56, 0, 128 * 64 * 2)
    srd(a, 24, 58, 0, 192 * 64 * 2)
    srd(a, 28, 14, WS_WTAB, 20480)
    srd(a, 32, 14, WS_WSI, 40960)
    a("s_sub_u32 s60, s2, 250")
    a("s_lshl_b32 s60, s60, 10")
    for it in range(2):
        prep_tables(a, ST)
        a("s_add_u32 s60, s60, 512")
    a.label("P1_prepd")
    a("s_waitcnt vmcnt(0)")
    a("s_barrier")
    signal(a, 0, "P1_sa2")
    a.label("P1_fin")
    a("s_waitcnt vmcnt(0)")
    a.label("P1_fin3")
    a("s_barrier")
    stamp(a, 8, k1=True)
    a.label("P1_fin4")
    signal(a, 1, "P1_sb")


BAL = opt("bal", 1)


def meta_set_addresses(a):
    a(f"v_lshrrev_b32 v164, 4, v{LANE}")
    a("v_lshlrev_b32 v164, 2, v164")
    a(f"v_bfe_u32 v165, v{LANE}, 2, 1")
    a("v_lshl_add_u32 v160, v165, 5, v164")
    a(f"v_bfe_u32 v165, v{LANE}, 1, 1")
    a("v_lshl_add_u32 v160, v165, 4, v160")
    a("v_lshl_add_u32 v161, v165, 5, v164")
    a(f"v_and_b32 v165, 1, v{LANE}")
    a("v_lshl_add_u32 v160, v165, 1, v160")
    a("v_lshl_add_u32 v161, v165, 4, v161")
    a(f"v_bfe_u32 v165, v{LANE}, 3, 1")
    a("v_add_u32 v160, v160, v165")
    a(f"v_bfe_u32 v165, v{LANE}, 2, 2")
    a("v_add_u32 v161, v161, v165")
    a(f"v_mov_b32 v162, {L_SB}")
    a(f"v_mov_b32 v163, {L_SA}")
    a("v_lshl_add_u32 v160, v160, 2, v163")
    a("v_lshl_add_u32 v161, v161, 3, v162")


def balanced_partition(a):
    L = LANE
    a("v_add_u32 v14, 31, v14")
    a("v_lshrrev_b32 v14, 5, v14")
    a("v_max_u32 v14, 1, v14")
    a(f"v_cmp_gt_u32 s[60:61], s{S_NN}, v{L}")
    a("v_cndmask_b32 v14, 0, v14, s[60:61]")
    a("v_cmp_lt_u32 vcc, 2, v14")
    a("s_andn2_b64 s[60:61], s[60:61], vcc")
    a("s_bcnt1_i32_b64 s62, vcc")
    a("s_bcnt1_i32_b64 s63, s[60:61]")
    a("v_mbcnt_lo_u32_b32 v32, vcc_lo, 0")
    a("v_mbcnt_hi_u32_b32 v32, vcc_hi, v32")
    a("v_mov_b32 v33, s62")
    a("v_mbcnt_lo_u32_b32 v33, s60, v33")
    a("v_mbcnt_hi_u32_b32 v33, s61, v33")
    a("v_cndmask_b32 v32, v33, v32, vcc")
    a(f"v_cmp_gt_u32 vcc, s{S_NN}, v{L}")
    a(f"v_cndmask_b32 v32, v{L}, v32, vcc")
    a("v_lshlrev_b32 v32, 2, v32")
    a(f"v_lshl_or_b32 v33, v{L}, 8, v14")
    a("ds_permute_b32 v34, v32, v33")
    a(f"v_mad_u32_u24 v36, v{L}, s{S_NN}, 7")
    a("v_lshrrev_b32 v36, 3, v36")
    a("s_mul_i32 s58, s62, 10")
    a(f"s_mul_i32 s59, s{S_NN}, 26")
    a("s_add_u32 s58, s58, s59")
    a(f"v_mad_u32_u24 v37, v{L}, s58, 40")
    a("v_mul_u32_u24 v40, 208, v36")
    a("v_sub_u32 v37, v37, v40")
    a("v_max_i32 v37, 0, v37")
    a("v_mul_u32_u24 v37, 3277, v37")
    a("v_lshrrev_b32 v37, 18, v37")
    a("v_subrev_u32 v40, s63, v36")
    a("v_max_i32 v37, v37, v40")
    a("v_min_u32 v37, s62, v37")
    a("v_min_u32 v37, v37, v36")
    for sh in (1, 2, 4, 8):
        a(f"v_max_u32_dpp v37, v37, v37 row_shr:{sh} row_mask:0xf bank_mask:0xf bound_ctrl:1")
    a("v_sub_u32 v40, v36, v37")
    for sh in (1, 2, 4, 8):
        a(f"v_max_u32_dpp v40, v40, v40 row_shr:{sh} row_mask:0xf bank_mask:0xf bound_ctrl:1")
    a("v_sub_u32 v37, v36, v40")
    a("v_lshl_or_b32 v37, v36, 8, v37")
    a(f"s_cmp_eq_u32 s{S_NN}, {NPB}")
    a(f"s_mov_b32 s58, {-(-8*65536 // (N - 255*NPB))}")
    a(f"s_cmov_b32 s58, {-(-8*65536 // NPB)}")
    a(f"v_mul_u32_u24 v40, s58, v{L}")
    a("v_lshrrev_b32 v40, 16, v40")
    a("v_min_u32 v40, 7, v40")
    a("v_lshlrev_b32 v40, 2, v40")
    a("ds_bpermute_b32 v41, v40, v37")
    a("ds_bpermute_b32 v42, v40, v37 offset:4")
    a(f"s_and_b32 s60, s{S_WAVE}, 3")
    a("s_lshl_b32 s60, s60, 1")
    a(f"s_lshr_b32 s61, s{S_WAVE}, 2")
    a("s_add_u32 s59, s60, s61")
    a(f"s_mul_i32 s60, s59, s{S_NN}")
    a(f"s_add_u32 s61, s60, s{S_NN}")
    a("s_add_u32 s60, s60, 7")
    a("s_add_u32 s61, s61, 7")
    a(f"s_lshr_b32 s{S_NODE0}, s60, 3")
    a(f"s_lshr_b32 s{S_NEND}, s61, 3")
    a(f"s_sub_u32 s{S_NNW}, s{S_NEND}, s{S_NODE0}")
    a("s_waitcnt lgkmcnt(0)")
    a("v_lshrrev_b32 v43, 8, v41")
    PP = L
    if opt("mir", 1):
        PP = 33
        a("v_lshrrev_b32 v33, 8, v42")
        a("v_add3_u32 v33, v33, v43, -1")
        a(f"v_sub_u32 v33, v33, v{L}")
        a("v_and_b32 v40, 4, v40")
        a("v_cmp_eq_u32 vcc, 0, v40")
        a(f"v_cndmask_b32 v33, v33, v{L}, vcc")
    a("v_and_b32 v41, 0xff, v41")
    a("v_and_b32 v42, 0xff, v42")
    a(f"v_sub_u32 v43, v{PP}, v43")
    a("v_add_u32 v43, v43, v41")
    a(f"v_sub_u32 v40, v{PP}, v42")
    a("v_add_u32 v40, s62, v40")
    a("v_cmp_lt_u32 vcc, v43, v42")
    a("v_cndmask_b32 v40, v40, v43, vcc")
    a(f"v_cmp_gt_u32 vcc, s{S_NN}, v{L}")
    a(f"v_cndmask_b32 v40, v{L}, v40, vcc")
    a("v_lshlrev_b32 v40, 2, v40")
    a("ds_bpermute_b32 v41, v40, v34")
    a("s_waitcnt lgkmcnt(0)")
    a("v_and_b32 v14, 0xff, v41")
    a(f"v_subrev_u32 v{NST}, 1, v14")
    a(f"v_lshrrev_b32 v{NID}, 8, v41")
    a(f"v_lshlrev_b32 v41, 2, v{NID}")
    a("v_mov_b32 v19, v14")
    scan64(a, 19)
    a("v_sub_u32 v42, v19, v14")
    a("ds_permute_b32 v18, v41, v42")
    a("v_min_u32 v36, 63, v36")
    a("v_lshlrev_b32 v36, 2, v36")
    a("ds_bpermute_b32 v43, v36, v42")
    a("v_readlane_b32 s58, v19, 63")
    a("s_waitcnt lgkmcnt(0)")
    a("v_mov_b32 v40, v43")
    a("v_sub_u32_dpp v40, v43, v43 row_shl:1 row_mask:0xf bank_mask:0xf")
    a(f"v_readlane_b32 s{S_STEP0}, v43, s59")
    a(f"v_cmp_lt_u32 vcc, {MAXWSTEPS}, v40")
    a(f"v_readlane_b32 s{S_NS}, v40, s59")
    a("s_and_b32 s60, vcc_lo, 0xff")


def kernel2():
    a = Asm()
    a("s_cmp_ge_u32 s2, 256")
    a("s_cbranch_scc1 K2_end")
    if opt("xcdmap", 1) == 2:
        a("s_load_dwordx2 s[54:55], s[0:1], 80")
        a("s_getreg_b32 s58, hwreg(HW_REG_XCC_ID, 0, 3)")
        a("v_lshrrev_b32 v1, 6, v0")
        a("v_readfirstlane_b32 s3, v1")
        a(f"v_mov_b32 v3, {L_WSUM}")
        a("s_cmp_lg_u32 s3, 0")
        a("s_cbranch_scc1 CLAIMED")
        a("s_waitcnt lgkmcnt(0)")
        srd(a, 4, 54, 0, 256)
        a("s_mov_b64 exec, 1")
        a.label("CLAIM")
        a("v_mov_b32 v1, 1")
        a("s_lshl_b32 s59, s58, 5")
        a("v_mov_b32 v2, s59")
        a("buffer_atomic_add v1, v2, s[4:7], 0 offen sc0")
        a("s_add_u32 s58, s58, 1")
        a("s_and_b32 s58, s58, 7")
        a("s_waitcnt vmcnt(0)")
        a("v_readfirstlane_b32 s60, v1")
        a("s_cmp_ge_u32 s60, 32")
        a("s_cbranch_scc1 CLAIM")
        a("v_add_u32 v1, v1, v2")
        a("ds_write_b32 v3, v1")
        a("s_mov_b64 exec, -1")
        a.label("CLAIMED")
        a("s_waitcnt lgkmcnt(0)")
        a("s_barrier")
        a("ds_read_b32 v1, v3")
        a("s_waitcnt lgkmcnt(0)")
        a("v_readfirstlane_b32 s2, v1")
        a("s_and_b32 s2, s2, 255")
        a("s_barrier")
    if opt("xcdmap", 1) == 1:
        a("s_and_b32 s3, s2, 7")
        a("s_lshl_b32 s3, s3, 5")
        a("s_lshr_b32 s2, s2, 3")
        a("s_or_b32 s2, s2, s3")
    a(f"v_mov_b32 v{TID}, v0")
    a(f"s_mov_b32 s{S_R0}, 0")
    a(f"s_mov_b32 s{S_CAP}, {CAP}")
    stamp(a, 0, True)
    stamp(a, 1)
    if FUSED:
        part1(a)
        a(f"s_mov_b32 s{S_R0}, 0")
        a(f"s_mov_b32 s{S_CAP}, {CAP}")
        a("s_load_dwordx2 s[56:57], s[0:1], 88")
        a("s_load_dwordx2 s[54:55], s[0:1], 72")
        poll(a, 0, "POLL_A")
        a(f"v_mov_b32 v110, {L_DUMMY}")
        a(f"v_mov_b32 v111, s{S_TAG}")
        a(f"s_cmp_lg_u32 s{S_WAVE}, 0")
        a("s_cbranch_scc1 TAG_W")
        a("ds_write_b32 v110, v111")
        a("s_waitcnt lgkmcnt(0)")
        a.label("TAG_W")
        a("s_barrier")
        a("ds_read_b32 v111, v110")
        a("s_waitcnt lgkmcnt(0)")
        a(f"v_readfirstlane_b32 s{S_TAG}, v111")
        a("s_branch ROUND0")
    a.label("ROUND")
    a("s_load_dwordx2 s[56:57], s[0:1], 88")
    a("s_load_dwordx2 s[54:55], s[0:1], 72")
    a.label("ROUND0")
    a(f"v_and_b32 v2, 255, v{TID}")
    a("v_lshlrev_b32 v3, 10, v2")
    a(f"v_and_b32 v{LANE}, 63, v{TID}")
    a(f"v_lshrrev_b32 v1, 6, v{TID}")
    a(f"v_readfirstlane_b32 s{S_WAVE}, v1")
    a("s_lshl_b32 s58, s2, 2")
    a("s_cmp_eq_u32 s2, 255")
    a(f"s_cselect_b32 s{S_NN}, {N - 255*NPB}, {NPB}")
    a("s_waitcnt lgkmcnt(0)")
    srd(a, R_TB, 56, WS_TAB, W * 1024)
    DSH = opt("dsh", 1)
    if DSH:
        a(f"s_cmp_ge_u32 s{S_WAVE}, 4")
        a("s_cbranch_scc1 NODESC")
    a(f"buffer_load_dword v20, v3, s[{R_TB}:{R_TB+3}], s58 offen")
    if DSH:
        a.label("NODESC")
    if opt("cpf", 2) & 1:
        a("s_getpc_b64 s[60:61]")
        a.label("K2_here")
        a("s_mov_b32 s62, K2_end-K2_here")
        a("s_mov_b32 s63, 0x20000")
        a(f"v_lshlrev_b32 v21, 7, v{TID}")
        a("buffer_load_dword v75, v21, s[60:63], 0 offen")
    if PROF:
        a("s_mov_b64 s[98:99], s[56:57]")
    if opt("egx", 0):
        a("s_load_dwordx2 s[92:93], s[0:1], 16")
        a("s_mov_b32 s94, 25600000")
        a("s_mov_b32 s95, 0x20000")
        a("s_mov_b32 s96, 800000")
        a("s_mov_b32 s97, 1664525")
        a(f"v_lshrrev_b32 v218, 1, v{TID}")
        a("s_lshl_b32 s59, s2, 8")
        a("v_add_u32 v218, s59, v218")
        a("s_mov_b32 s59, 0x9E3779B1")
        a("v_mul_lo_u32 v218, v218, s59")
        a("s_waitcnt lgkmcnt(0)")
    srd(a, R_W, 56, WS_WTAB, 0x12000)
    srd(a, R_MT, 56, WS_META, E * 12)
    srd(a, R_EP, 56, WS_EP, E * 32)
    srd(a, R_XP, 56, WS_XP - XBIAS, 2 * XHALF + XBIAS)
    a(f"s_mul_i32 s59, s2, {P_WG}")
    a(f"s_add_u32 s59, s59, {WS_P}")
    srd(a, R_P, 56, "s59", 2 * P_HALF)
    a("s_lshl_b32 s59, s2, 16")
    a(f"s_add_u32 s59, s59, {WS_ACC}")
    srd(a, R_ACC, 56, "s59", 65536)
    a(f"s_mul_i32 s59, s2, {NPB*512}")
    a(f"s_lshl_b32 s60, s{S_NN}, 9")
    srd(a, R_OUT, 54, "s59", "s60")
    a(f"s_mul_i32 s{S_RB}, s{S_WAVE}, {RING_W}")
    a(f"s_add_u32 s{S_RB}, s{S_RB}, {L_RING}")
    a(f"s_mov_b32 s{S_HI}, 0xffff0000")
    a(f"s_mov_b32 s{S_SGN}, 0x80008000")
    L = LANE
    a(f"v_bfe_u32 v3, v{L}, 4, 1")
    a(f"v_and_b32 v4, 7, v{L}")
    a("v_lshlrev_b32 v5, 1, v3")
    a("v_xor_b32 v4, v4, v5")
    a("v_lshlrev_b32 v4, 4, v4")
    a(f"v_add_u32 v{XOFF}, {0x80000000 + XBIAS}, v4")
    a(f"v_add_u32 v{XOFF+1}, {0x80000000 + XBIAS - 1088}, v4")
    a(f"v_and_b32 v4, 3, v{L}")
    a(f"v_lshlrev_b32 v{QQ8}, 3, v4")
    a(f"v_bfe_u32 v5, v{L}, 3, 1")
    a("v_mul_u32_u24 v5, 1088, v5")
    a(f"v_lshrrev_b32 v6, 4, v{L}")
    a("v_lshl_add_u32 v5, v6, 8, v5")
    a(f"v_bfe_u32 v7, v{L}, 2, 1")
    a("v_lshl_add_u32 v5, v7, 7, v5")
    a(f"v_add_u32 v5, v5, v{QQ8}")
    a(f"v_add_u32 v5, s{S_RB}, v5")
    a("v_lshlrev_b32 v7, 5, v3")
    a(f"v_add_u32 v{BAE}, v5, v7")
    a(f"v_sub_u32 v{BAO}, v5, v7")
    a(f"v_and_b32 v7, 15, v{L}")
    a("v_lshlrev_b32 v8, 2, v7")
    a(f"v_lshl_add_u32 v{POFF}, v6, 6, v8")
    a("v_and_b32 v8, 1, v7")
    a("v_lshlrev_b32 v8, 4, v8")
    a("v_mov_b32 v9, 0x3f80")
    a("v_lshlrev_b32 v8, v8, v9")
    a("v_and_b32 v9, 14, v7")
    for i in range(4):
        a(f"v_cmp_eq_u32 vcc, {4*i}, v9")
        a(f"v_cndmask_b32 v{SEL+i}, 0, v8, vcc")
    a(f"v_lshlrev_b32 v6, 2, v{TID}")
    a("v_mov_b32 v7, 0")
    a(f"v_add_u32 v8, {L_MISC}, v6")
    a(f"v_cmp_gt_u32 vcc, 68, v{TID}")
    a("s_and_saveexec_b64 s[58:59], vcc")
    a("ds_write_b32 v8, v7")
    a(f"v_cmp_gt_u32 vcc, 8, v{TID}")
    a("s_and_b64 exec, exec, vcc")
    a("ds_write_b32 v6, v7")
    a("s_mov_b64 exec, -1")
    a(f"v_lshlrev_b32 v13, 4, v{TID}")
    a(f"v_add_u32 v13, {L_SA}, v13")
    for i in range(4):
        a(f"v_mov_b32 v{28+i}, 0")
    nz = MAXSTEPS * 384 // 16
    for k in range(6):
        a(f"ds_write_b128 v13, v[28:31] offset:{8192*k}")
    a(f"v_cmp_gt_u32 vcc, {nz - 6*512}, v{TID}")
    a("s_mov_b64 exec, vcc")
    a(f"ds_write_b128 v13, v[28:31] offset:{8192*6}")
    a("s_mov_b64 exec, -1")
    a("v_mul_u32_u24 v14, 3200, v2")
    a(f"v_lshrrev_b32 v15, 8, v{TID}")
    a("v_mov_b32 v16, 0x80000000")
    a(f"s_and_b32 s59, s{S_WAVE}, 3")
    a("v_lshlrev_b32 v22, 3, v2")
    a("v_add_u32 v22, 1024, v22")
    if DSH:
        a(f"s_cmp_ge_u32 s{S_WAVE}, 4")
        a("s_cbranch_scc1 NOSCAN")
    a(f"s_waitcnt vmcnt({opt('cpf', 2) & 1})")
    stamp(a, 2)
    a("v_lshrrev_b32 v9, 16, v20")
    a("v_mov_b32 v21, v9")
    scan64(a, 21)
    a("v_readlane_b32 s58, v21, 63")
    a("s_lshl_b32 s60, s59, 2")
    a(f"s_add_u32 s60, s60, {L_WSUM}")
    a("v_mov_b32 v12, s60")
    a("v_mov_b32 v13, s58")
    a("ds_write_b32 v12, v13")
    a("v_sub_u32 v21, v21, v9")
    if DSH:
        a("ds_write_b64 v22, v[20:21]")
        a.label("NOSCAN")
    a(f"v_mov_b32 v12, {L_WSUM}")
    a("s_waitcnt lgkmcnt(0)")
    a("s_barrier")
    a("ds_read_b128 v[16:19], v12")
    if DSH:
        a("ds_read_b64 v[20:21], v22")
    a("s_waitcnt lgkmcnt(0)")
    a("v_lshrrev_b32 v9, 16, v20")
    a("v_and_b32 v10, 0xffff, v20")
    a("v_add_u32 v14, v14, v10")
    a("v_mov_b32 v11, v21")
    for i in range(4):
        a(f"v_readfirstlane_b32 s{60+i}, v{16+i}")
    a("s_add_u32 s61, s61, s60")
    a("s_add_u32 s62, s62, s61")
    a(f"s_add_u32 s{S_T}, s63, s62")
    a("s_cmp_eq_u32 s59, 0")
    a("s_cselect_b32 s58, 0, s60")
    a("s_cmp_eq_u32 s59, 2")
    a("s_cselect_b32 s58, s61, s58")
    a("s_cmp_eq_u32 s59, 3")
    a("s_cselect_b32 s58, s62, s58")
    a("v_mov_b32 v16, 0x80000000")
    a(f"s_sub_u32 s{S_LEN}, s{S_T}, s{S_R0}")
    a(f"s_cmp_le_u32 s{S_LEN}, s{S_CAP}")
    a(f"s_cselect_b32 s{S_LAST}, 1, 0")
    a(f"s_min_u32 s{S_LEN}, s{S_LEN}, s{S_CAP}")
    a(f"s_sub_u32 s58, s58, s{S_R0}")
    a("v_add_u32 v11, s58, v11")
    a("v_sub_u32 v12, 0, v11")
    a("v_max_i32 v12, 0, v12")
    a(f"v_sub_u32 v13, s{S_LEN}, v11")
    a("v_min_i32 v13, v13, v9")
    a("v_add_u32 v12, v12, v15")
    a("v_sub_u32 v9, v13, v12")
    a("v_add_u32 v14, v14, v12")
    a("v_add_u32 v11, v11, v12")
    a("v_lshlrev_b32 v12, 2, v11")
    a(f"v_add_u32 v12, {L_MAP}, v12")
    a.label("MAPL")
    for i in range(16):
        a(f"v_cmp_lt_i32 vcc, {2*i}, v9")
        if i:
            a("v_add_u32 v14, 2, v14")
        a("s_and_b64 exec, exec, vcc")
        if i % 4 == 0:
            a("s_cbranch_execz MAPD")
        a(f"ds_write_b32 v12, v14 offset:{8*i}")
    a("v_add_u32 v14, 2, v14")
    a("v_add_u32 v12, 128, v12")
    a("v_subrev_u32 v9, 32, v9")
    a("s_branch MAPL")
    a.label("MAPD")
    a("s_mov_b64 exec, -1")
    a(f"v_add_u32 v12, {L_MAP}, v6")
    a(f"v_lshrrev_b32 v13, 1, v{LANE}")
    a(f"s_lshl_b32 s58, s{S_WAVE}, 5")
    a("v_add_u32 v13, s58, v13")
    a(f"v_lshl_add_u32 v14, v13, 2, v7")
    a(f"v_add_u32 v14, {L_MAP}, v14")
    a(f"v_and_b32 v15, 1, v{LANE}")
    a("v_lshlrev_b32 v15, 4, v15")
    a("s_waitcnt lgkmcnt(0)")
    a("s_barrier")
    stamp(a, 3)
    for k in range(7):
        a(f"ds_read_b32 v{20+k}, v12 offset:{2048*k}")
    for k in range(14):
        a(f"ds_read_b32 v{28+k}, v14 offset:{1024*k}")
    MREC = 44
    EPOL = ["", " sc1", " nt"][opt("epol", 1)]
    for k in range(7):
        a(f"v_add_u32 v17, {512*k}, v{TID}")
        a(f"v_cmp_gt_u32 s[{S_MASK+2*k}:{S_MASK+2*k+1}], s{S_LEN}, v17")
        a(f"s_waitcnt lgkmcnt({min(15, 20-k)})")
        a(f"v_mul_u32_u24 v{20+k}, 12, v{20+k}")
        a(f"v_cndmask_b32 v{20+k}, v16, v{20+k}, s[{S_MASK+2*k}:{S_MASK+2*k+1}]")
    if PROF == 2:
        stamp(a, 7)
    for k in range(7):
        a(f"buffer_load_dwordx3 {vr(MREC+4*k,3)}, v{20+k}, s[{R_MT}:{R_MT+3}], 0 offen{EPOL}")
    a("s_waitcnt lgkmcnt(0)")
    a(f"s_lshl_b32 s{S_EM0}, s{S_WAVE}, 10")
    a(f"s_add_u32 s{S_EM0}, s{S_EM0}, {L_E + 32}")
    EREG = 128
    for k in range(14):
        a(f"v_cmp_gt_u32 vcc, s{S_LEN}, v13")
        a(f"v_lshl_add_u32 v{28+k}, v{28+k}, 5, v15")
        a("v_add_u32 v13, 256, v13")
        a(f"v_cndmask_b32 v{EREG+k}, v16, v{28+k}, vcc")
    eb = [int(c, 16) for c in opt("eb", "0554" if FUSED else "3551")]

    assert sum(eb[:1]) <= 10

    def e_batch(i, tag=""):
        for k in range(sum(eb[:i]), sum(eb[:i + 1])):
            if k == 13:
                a(f"s_cmp_ge_u32 s{S_WAVE}, 2")
                a("s_cbranch_scc1 NOE14")
            a(f"s_mov_b32 m0, s{S_EM0}")
            a(f"s_add_u32 s{S_EM0}, s{S_EM0}, 8192")
            a(f"buffer_load_dwordx4 v{EREG+k}, s[{R_EP}:{R_EP+3}], 0 offen{EPOL} lds")
            if k == 13:
                a.label("NOE14")

    if PROF == 2:
        stamp(a, 8)
    e_batch(0)
    FK = opt("fk", 0)
    if FUSED and FK == 0:
        flag_load(a, 1)
    if PROF == 2:
        stamp(a, 9)
    a("v_mov_b32 v17, 1")
    for k in range(7):
        a(f"s_waitcnt vmcnt({min(eb[0], 13) + 6 - k + (FUSED and k >= FK)})")
        if FUSED and FK and k == FK - 1:
            flag_load(a, 1)
        if PROF == 2 and k in (0, 6):
            stamp(a, 10 if k == 0 else 11)
        a(f"v_and_b32 v{20+k}, 0xff, v{MREC+4*k}")
        a(f"v_lshlrev_b32 v{20+k}, 2, v{20+k}")
        a(f"v_add_u32 v18, {L_CNT}, v{20+k}")
        a(f"s_mov_b64 exec, s[{S_MASK+2*k}:{S_MASK+2*k+1}]")
        a(f"ds_add_rtn_u32 v{MREC+4*k+3}, v18, v17")
        a("s_mov_b64 exec, -1")
    a(f"v_lshlrev_b32 v12, 2, v{LANE}")
    a(f"v_add_u32 v12, {L_CNT}, v12")
    a(f"v_lshlrev_b32 v35, 2, v{TID}")
    a("v_add_u32 v35, 4, v35")
    RP = 144
    for k in range(7):
        r = MREC + 4 * k
        a(f"v_and_b32 v{r}, 0xffffff00, v{r}")
        a(f"v_add_u32 v36, {2048*k}, v35")
        a(f"v_or_b32 v{RP+2*k+1}, v{r+2}, v36")
        a(f"v_mov_b32 v{RP+2*k}, v{r+1}")
    meta_set_addresses(a)
    if FUSED:
        a("s_waitcnt vmcnt(0)")
        flag_test(a)
        a(f"s_cselect_b32 s{S_EB1}, 1, 0")
    a("s_waitcnt lgkmcnt(0)")
    a("s_barrier")
    stamp(a, 4)
    if FUSED:
        a(f"s_mov_b32 s{S_EB2}, s{S_EB1}")
        a(f"s_cmp_eq_u32 s{S_EB1}, 0")
        a("s_cbranch_scc1 EB1_skip")
        e_batch(1)
        a("s_branch EB1_done")
        a.label("EB1_skip")
        flag_load(a, 1)
        a.label("EB1_done")
    else:
        e_batch(1)
    a("ds_read_b32 v14, v12")
    a("s_waitcnt lgkmcnt(0)")
    if BAL:
        balanced_partition(a)
    else:
        a("v_add_u32 v14, 31, v14")
        a("v_lshrrev_b32 v14, 5, v14")
        a("v_max_u32 v14, 1, v14")
        a(f"v_cmp_gt_u32 vcc, s{S_NN}, v{LANE}")
        a(f"v_mad_u32_u24 v15, v14, 10, {opt('epc', 6)}")
        a("v_cndmask_b32 v15, 0, v15, vcc")
        a("v_cndmask_b32 v14, 0, v14, vcc")
        a("v_lshl_or_b32 v18, v15, 16, v14")
        a(f"v_subrev_u32 v{NST}, 1, v14")
        a("v_mov_b32 v19, v18")
        scan64(a, 19)
        a("v_readlane_b32 s58, v19, 63")
        a("v_sub_u32 v18, v19, v18")
        a("v_and_b32 v19, 0xffff, v19")
        a("v_lshrrev_b32 v32, 16, v18")
        a("v_and_b32 v18, 0xffff, v18")
        a("v_lshl_add_u32 v32, v32, 1, v15")
        a("v_lshlrev_b32 v32, 2, v32")
        a("s_lshr_b32 s59, s58, 16")
        a("s_and_b32 s58, s58, 0xffff")
        a(f"s_and_b32 s60, s{S_WAVE}, 3")
        a("s_lshl_b32 s60, s60, 1")
        a(f"s_lshr_b32 s61, s{S_WAVE}, 2")
        a("s_add_u32 s60, s60, s61")
        a("s_mul_i32 s60, s60, s59")
        a("s_add_u32 s61, s60, s59")
        a("v_cmp_le_u32 vcc, s60, v32")
        a("v_cmp_gt_u32 s[62:63], s61, v32")
        a("s_and_b64 vcc, vcc, s[62:63]")
        a(f"s_bcnt1_i32_b64 s{S_NNW}, vcc")
        a(f"s_ff1_i32_b64 s{S_NODE0}, vcc")
        a(f"s_max_i32 s{S_NODE0}, s{S_NODE0}, 0")
        a(f"s_add_u32 s{S_NEND}, s{S_NODE0}, s{S_NNW}")
        a(f"s_sub_u32 s60, s{S_NEND}, 1")
        a("s_max_i32 s60, s60, 0")
        a(f"v_readlane_b32 s{S_STEP0}, v18, s{S_NODE0}")
        a(f"v_readlane_b32 s{S_NS}, v19, s60")
        a(f"s_sub_u32 s{S_NS}, s{S_NS}, s{S_STEP0}")
    assert BAL
    for k in range(7):
        a(f"ds_bpermute_b32 v{20+k}, v{20+k}, v18")
    a(f"s_lshl_b32 s59, s{S_STEP0}, 7")
    a("v_add_u32 v160, s59, v160")
    a("s_lshl_b32 s59, s59, 1")
    a("v_add_u32 v161, s59, v161")
    a(f"s_cmp_gt_u32 s58, {MAXSTEPS}")
    a("s_cselect_b32 s60, 1, s60")
    a("s_cmp_eq_u32 s60, 0")
    a("s_cbranch_scc1 SCATTER")
    a(f"s_mov_b32 s{S_CAP}, {SLOWCAP}")
    a("s_waitcnt vmcnt(0) lgkmcnt(0)")
    a("s_barrier")
    a("s_branch ROUND")
    a.label("SCATTER")
    if FUSED:
        a(f"s_cmp_lg_u32 s{S_EB1}, 0")
        a("s_cbranch_scc1 EB2_go")
        a("s_waitcnt vmcnt(0)")
        flag_test(a)
        a(f"s_cselect_b32 s{S_EB2}, 1, 0")
        a("s_cbranch_scc0 EB2_skip")
        e_batch(1)
        a.label("EB2_go")
        e_batch(2)
        a.label("EB2_skip")
    else:
        e_batch(2)
    for k in range(7):
        r = MREC + 4 * k
        a(f"s_waitcnt lgkmcnt({6 - k + 2 * k if 6 + k <= 15 else 15})")
        a(f"v_lshl_add_u32 v{20+k}, v{20+k}, 5, v{r+3}")
        a(f"v_lshl_add_u32 v{r+1}, v{20+k}, 3, v162")
        a(f"v_lshl_add_u32 v{20+k}, v{20+k}, 2, v163")
        a(f"s_mov_b64 exec, s[{S_MASK+2*k}:{S_MASK+2*k+1}]")
        a(f"ds_write_b32 v{20+k}, v{r}")
        a(f"ds_write_b64 v{r+1}, {vr(RP+2*k,2)}")
        a("s_mov_b64 exec, -1")
    if FUSED:
        a(f"s_cmp_lg_u32 s{S_EB2}, 0")
        a("s_cbranch_scc1 EB3_nopoll")
        poll(a, 1, "POLL_B")
        a.label("EB3_nopoll")
    a("s_waitcnt lgkmcnt(0)")
    a("s_barrier")
    if FUSED:
        a(f"s_cmp_lg_u32 s{S_EB2}, 0")
        a("s_cbranch_scc1 EB3_go")
        e_batch(1)
        e_batch(2)
        a.label("EB3_go")
    e_batch(3)
    for s in range(10):
        a(f"ds_read_b32 v{M0R+s}, v160 offset:{256*s}")
        a(f"ds_read_b64 {vr(MBR+2*s,2)}, v161 offset:{512*s}")
    a(f"s_mov_b32 s{S_D}, 0")
    pfn = opt("pfn", 0)
    if pfn:
        a(f"s_sub_u32 s{S_EVT}, s{S_NEND}, {pfn}")
        a(f"s_max_i32 s{S_EVT}, s{S_EVT}, 0")
    else:
        a(f"s_mov_b32 s{S_EVT}, -2")
    a(f"s_mov_b32 s{S_PHASE}, 0")
    if opt("eg", 0):
        a(f"s_mov_b32 s{S_EGN}, -1")
    a(f"s_mov_b32 s{S_POFF}, 0")
    a(f"s_mov_b32 s{S_TAB0}, 0")
    a(f"s_mov_b32 s{S_TAB1}, 128")
    a(f"s_mov_b32 s{S_NODE}, s{S_NODE0}")
    for l in node_steps(S_NODE):
        a(l)
    if opt("prio", 3) == 2:
        a(f"s_lshr_b32 s54, s{S_WAVE}, 2")
        a(f"s_lshl2_add_u32 s{S_LEFT}, s{S_NS}, s54")
        a(f"s_add_u32 s{S_LEFT}, s{S_LEFT}, 256")
        a(f"s_lshl1_add_u32 s54, s{S_REM}, 2")
        a(f"s_sub_u32 s{S_LEFT}, s{S_LEFT}, s54")
        a(f"s_and_b32 s54, s{S_WAVE}, 3")
        a(f"s_lshl2_add_u32 s{S_PADR}, s54, {L_CNT + 240}")
    stamp(a, 5)
    a("s_waitcnt lgkmcnt(0)")
    a("s_barrier")
    if PROF and not opt("egx", 0):
        a(f"s_mov_b32 s{preg(12)}, s{S_NS}")
        a(f"s_mov_b32 s{preg(13)}, s{S_NNW}")
    a(f"s_cmp_lg_u32 s{S_NNW}, 0")
    a("s_cbranch_scc1 START")
    a("s_waitcnt vmcnt(0)")
    a("s_barrier")
    stamp(a, 6)
    a("s_branch TAIL")
    a.label("START")
    pipeline_start(a)
    cold = []
    for par in range(2):
        for rho in (0, 2, 1):
            epilogue(a, rho, par, cold)
            step_body(a, rho, "f", par, 1 - par, "n", cold)
            step_body(a, (rho + 1) % 3, "n", 1 - par, par, "e" if rho != 1 else "", cold)
    for rho in range(3):
        step_body(a, rho, "f", 0, 0, "", cold)
        step_body(a, rho, "n", 0, 0, "", cold)
    for l in cold:
        a(l)

    a.label("TAIL")
    a("s_setprio 0")
    WF, PF, D = 0, 80, 188
    if PROF == 4:
        a("v_mov_b32 v183, v219")
    stamp(a, 8, late=True)
    a(f"v_and_b32 v{T0+1}, 15, v{LANE}")
    a(f"s_lshr_b32 s56, s{S_WAVE}, 1")
    a("s_lshl_b32 s56, s56, 4")
    a(f"v_add_u32 v{T0+1}, s56, v{T0+1}")
    a(f"v_lshlrev_b32 v{T0+2}, 2, v{T0+1}")
    a(f"ds_bpermute_b32 v{T0+4}, v{T0+2}, v{NID}")
    a(f"v_lshrrev_b32 v{T0+2}, 4, v{LANE}")
    a(f"v_lshlrev_b32 v{T0+2}, 4, v{T0+2}")
    a("s_waitcnt lgkmcnt(0)")
    a(f"v_lshl_add_u32 v{T0+4}, v{T0+4}, 9, v{T0+2}")
    a(f"v_lshlrev_b32 v{T0}, 4, v{LANE}")
    a(f"s_and_b32 s54, s{S_WAVE}, 1")
    a("s_mul_i32 s55, s54, 20480")
    a(f"s_add_u32 s55, s55, {WS_WSI - WS_WTAB}")
    if NEWTAIL:
        def prework(tag):
            a(f"s_mul_i32 s56, s{S_NNW}, {P_NODE}")
            a(f"s_mul_i32 s57, s{S_NODE0}, {P_NODE}")
            a(f"s_mov_b32 s60, s{S_RB}")
            for k in range(6):
                a(f"v_cmp_gt_u32 vcc, s56, v{T0}")
                a("s_mov_b32 m0, s60")
                a("s_mov_b64 exec, vcc")
                a(f"s_cbranch_execz {tag}")
                a(f"buffer_load_dwordx4 v{T0}, s[{R_P}:{R_P+3}], s57 offen sc1 lds")
                a("s_mov_b64 exec, -1")
                a("s_add_u32 s57, s57, 1024")
                a("s_add_u32 s60, s60, 1024")
                a("s_sub_u32 s56, s56, 1024")
                a("s_max_i32 s56, s56, 0")
            a.label(tag)
            a("s_mov_b64 exec, -1")
            for f in range(20):
                if f % 4 == 0 and f:
                    a("s_add_u32 s55, s55, 4096")
                a(f"buffer_load_dwordx4 {vr(WF+4*f,4)}, v{T0}, s[{R_W}:{R_W+3}], s55 offen offset:{(f%4)*1024}")

        a(f"v_mov_b32 v{T0+5}, {L_CNT + 224}")
        a(f"v_mov_b32 v{T0+6}, 1")
        a(f"s_mul_i32 s56, s{S_NNW}, {P_NODE}")
        a(f"s_add_u32 s60, s56, s{S_RB}")
        a(f"v_add_u32 v{T0+7}, s60, v{POFF}")
        a("s_mov_b64 exec, 1")
        a(f"ds_add_rtn_u32 v{T0+6}, v{T0+5}, v{T0+6}")
        a("s_mov_b64 exec, -1")
        a(f"s_cmp_eq_u32 s{S_NNW}, 0")
        a("s_cbranch_scc1 T_NOREC")
        a("s_waitcnt vmcnt(3)")
        for i in range(3):
            a(f"ds_write_b32 v{T0+7}, v{64+i} offset:{256*i}")
        a.label("T_NOREC")
        a("s_waitcnt lgkmcnt(0)")
        a(f"v_readfirstlane_b32 s{S_OLD}, v{T0+6}")
        a(f"s_cmp_ge_u32 s{S_OLD}, {opt('tlast', 7)}")
        a("s_cbranch_scc1 T_BAR")
        if DRY:
            a("s_mov_b32 s62, 1")
            a(f"s_cmp_eq_u32 s{S_OLD}, 0")
            a("s_cbranch_scc1 T_MM")
            a.label("T_RET")
        prework("T_P1")
        a.label("T_BAR")
        a("s_barrier")
        stamp(a, 9, late=True)
        a(f"s_lshl_b32 s61, s{S_WAVE}, 10")
        a(f"s_add_u32 s61, s61, {P_HALF}")
        for k in range(5):
            if k == 4:
                a(f"s_cmp_ge_u32 s{S_WAVE}, 6")
                a("s_cbranch_scc1 NOP10")
            a("s_mov_b32 m0, s61")
            a(f"buffer_load_dwordx4 v{T0}, s[{R_P}:{R_P+3}], s61 offen sc1 lds")
            a("s_add_u32 s61, s61, 8192")
        a.label("NOP10")
        a(f"s_cmp_lt_u32 s{S_OLD}, {opt('tlast', 7)}")
        a("s_cbranch_scc1 T_DONE")
        prework("T_P2")
        a.label("T_DONE")
    else:
        a("s_waitcnt vmcnt(0)")
        for f in range(20):
            if f % 4 == 0 and f:
                a("s_add_u32 s55, s55, 4096")
            a(f"buffer_load_dwordx4 {vr(WF+4*f,4)}, v{T0}, s[{R_W}:{R_W+3}], s55 offen offset:{(f%4)*1024}")
        a("s_barrier")
        stamp(a, 9, late=True)
        a(f"s_lshl_b32 s55, s{S_WAVE}, 10")
        for k in range(10):
            if k == 9:
                a(f"s_cmp_ge_u32 s{S_WAVE}, 4")
                a("s_cbranch_scc1 NOP10")
            a("s_mov_b32 m0, s55")
            a(f"buffer_load_dwordx4 v{T0}, s[{R_P}:{R_P+3}], s55 offen sc1 lds")
            a("s_add_u32 s55, s55, 8192")
        a.label("NOP10")
    a(f"v_lshlrev_b32 v{T0+8}, 1, v{T0+4}")
    a(f"s_lshl_b32 s57, s54, 9")
    a(f"s_cmp_eq_u32 s{S_R0}, 0")
    a("s_cbranch_scc1 ZEROD")
    for i in range(8):
        a(f"buffer_load_dwordx4 {vr(D+4*i,4)}, v{T0+8}, s[{R_ACC}:{R_ACC+3}], s57 offen offset:{(i//2)*128 + (i%2)*16} sc1")
    a("s_branch HAVED")
    a.label("ZEROD")
    for i in range(32):
        a(f"v_mov_b32 v{D+i}, 0")
    a.label("HAVED")
    if NEWTAIL:
        t = T0 + 9
        a(f"s_cmp_eq_u32 s{S_NN}, {NPB}")
        a(f"s_mov_b32 s58, {-(-8*65536 // (N - 255*NPB))}")
        a(f"s_cmov_b32 s58, {-(-8*65536 // NPB)}")
        a(f"v_mul_u32_u24 v{T0+3}, s58, v{T0+1}")
        a(f"v_lshrrev_b32 v{T0+3}, 16, v{T0+3}")
        a(f"v_min_u32 v{T0+3}, 7, v{T0+3}")
        a(f"v_mad_u32_u24 v{T0+5}, v{T0+3}, s{S_NN}, 7")
        a(f"v_add_u32 v{T0+6}, s{S_NN}, v{T0+5}")
        a(f"v_lshrrev_b32 v{T0+5}, 3, v{T0+5}")
        a(f"v_lshrrev_b32 v{T0+6}, 3, v{T0+6}")
        a(f"v_lshrrev_b32 v{t}, 1, v{T0+3}")
        a(f"v_and_b32 v{T0+3}, 1, v{T0+3}")
        a(f"v_lshl_add_u32 v{t}, v{T0+3}, 2, v{t}")
        a(f"v_mul_u32_u24 v{t}, {RING_W}, v{t}")
        a(f"v_add_u32 v{t}, {L_RING}, v{t}")
        a(f"v_add_u32 v{t}, v{t}, v{T0+2}")
        a(f"v_sub_u32 v{T0+5}, v{T0+1}, v{T0+5}")
        a(f"s_movk_i32 s58, {P_NODE}")
        a(f"v_mad_u32_u24 v{T0+5}, v{T0+5}, s58, v{t}")
        a(f"v_add_u32 v{t+1}, 1, v{T0+1}")
        a(f"v_cmp_eq_u32 vcc, v{t+1}, v{T0+6}")
        a(f"v_mad_u32_u24 v{T0+6}, v{T0+1}, s58, v{T0+2}")
        a(f"v_add_u32 v{T0+6}, {P_HALF}, v{T0+6}")
        a(f"v_add_u32 v{t}, {P_NODE}, v{T0+5}")
        a(f"v_cndmask_b32 v{T0+6}, v{T0+6}, v{t}, vcc")
        a("s_lshl_b32 s54, s54, 6")
    else:
        a(f"v_mul_u32_u24 v{T0+5}, {P_NODE}, v{T0+1}")
        a(f"v_add_u32 v{T0+5}, v{T0+5}, v{T0+2}")
        a(f"v_add_u32 v{T0+6}, {P_HALF}, v{T0+5}")
        a("s_lshl_b32 s54, s54, 6")
    a("s_mov_b32 s62, 0")
    a("s_waitcnt vmcnt(0)")
    a("s_barrier")
    stamp(a, 10, late=True)
    a.label("T_MM")
    seq = []
    for comp, ts in enumerate(([P0, P1], [P2[0], P3[0], P4[0]], [P2[1], P3[1], P4[1]], [P2[2], P3[2], P4[2]])):
        for t in ts:
            for h in range(2):
                seq.append((comp, t, h))
    for i, (comp, t, h) in enumerate(seq):
        a(f"ds_read_b128 {vr(PF+4*i,4)}, v{T0+5+h} offset:{t*64}")
        if i == 14:
            a("s_waitcnt lgkmcnt(7)")
    for i, (comp, t, h) in enumerate(seq):
        if i >= 8:
            a(f"s_waitcnt lgkmcnt({21 - i})")
        for mt in range(2):
            d = vr(D + 8 * comp + 4 * mt, 4)
            a(f"v_mfma_f32_16x16x32_bf16 {d}, {vr(WF + 4*(10*mt + 2*TPATH[t] + h),4)}, {vr(PF+4*i,4)}, {d}")
    if PROF == 7:
        stamp(a, 4)
    a(f"s_or_b32 s63, s{S_LAST}, s62")
    a("s_cbranch_scc0 MORE")
    for i in range(8):
        a(f"v_mul_f32 v{i}, 0xbfb8aa3b, v{D+i}")
    for i in range(8):
        a(f"v_exp_f32 v{i}, v{i}")
    for i in range(8):
        a(f"v_add_f32 v{i}, 1.0, v{i}")
    for i in range(8):
        a(f"v_rcp_f32 v{i}, v{i}")
    a("s_cmp_lg_u32 s62, 0")
    for comp in range(4):
        if comp:
            for i in range(8):
                a(f"v_mul_f32 v{D+8*comp+i}, v{D+8*comp+i}, v{i}")
        for i in range(4):
            a(f"v_cvt_pk_bf16_f32 v{8+4*comp+i}, v{D+8*comp+2*i}, v{D+8*comp+2*i+1}")
        if DRY:
            a(f"s_cbranch_scc1 {'T_RET' if comp == 3 else 'T_S%d' % comp}")
        a(f"buffer_store_dwordx4 {vr(8+4*comp,4)}, v{T0+4}, s[{R_OUT}:{R_OUT+3}], s54 offen offset:{128*comp}{OPOL}")
        if DRY and comp < 3:
            a.label(f"T_S{comp}")
    if PROF == 7:
        stamp(a, 7)
    if PROF:
        a("s_waitcnt vmcnt(0)")
    stamp(a, 11, late=True)
    stamp(a, 15, True)
    prof_dump(a, 98, 1, 3, S_WAVE)
    if opt("amp", 0):
        a("s_cmp_lg_u32 s2, 100")
        a("s_cbranch_scc1 K2_end")
        srd(a, 4, 98, WS_PROF + 100 * 1024, 64)
        a("v_mov_b32 v0, 0")
        a("buffer_load_dword v2, v0, s[4:7], 0 offen")
        a("buffer_load_dword v3, v0, s[4:7], 0 offen offset:60")
        a("s_waitcnt vmcnt(0)")
        a("v_readfirstlane_b32 s60, v2")
        a("v_readfirstlane_b32 s61, v3")
        lo, hi = {1: ("s60", f"s{S_PROF}"), 2: (f"s{S_PROF}", f"s{S_PROF+6}"), 3: (f"s{S_PROF+6}", f"s{S_PROF+9}"),
                  4: ("s60", "s61"), 5: ("s60", "s60")}[opt("amp", 0)]
        a(f"s_sub_u32 s62, {hi}, {lo}")
        a("s_min_u32 s62, s62, 10000")
        a("s_lshl_b32 s62, s62, 2")
        a("s_add_u32 s62, s62, 1000")
        a.label("AMPL")
        a("s_memrealtime s[80:81]")
        a("s_waitcnt lgkmcnt(0)")
        a(f"s_sub_u32 s63, s80, s{S_PROF+15}")
        a("s_cmp_lt_u32 s63, s62")
        a("s_cbranch_scc1 AMPL")
    if PROF == 4:
        a("s_lshl_b32 s80, s2, 3")
        a(f"s_add_u32 s80, s80, s{S_WAVE}")
        a("s_lshl_b32 s80, s80, 8")
        a(f"s_add_u32 s80, s80, {WS_PROF + 0x200000}")
        srd(a, 4, 98, "s80", 256)
        a(f"v_lshlrev_b32 v0, 2, v{LANE}")
        a("buffer_store_dword v183, v0, s[4:7], 0 offen")
    if PROF == 3:
        a("s_load_dwordx2 s[54:55], s[0:1], 80")
        a("s_min_u32 s80, s2, 249")
        a("s_lshl_b32 s80, s80, 10")
        a(f"s_add_u32 s80, s80, {WS_PROF}")
        srd(a, 4, 98, "s80", 64)
        a("v_mov_b32 v0, 0")
        a("buffer_load_dword v2, v0, s[4:7], 0 offen")
        a("buffer_load_dword v3, v0, s[4:7], 0 offen offset:8")
        a("buffer_load_dword v4, v0, s[4:7], 0 offen offset:24")
        a("buffer_load_dword v5, v0, s[4:7], 0 offen offset:60")
        a("s_waitcnt vmcnt(0) lgkmcnt(0)")
        srd(a, 4, 54, 0, 256)
        a("v_not_b32 v2, v2")
        a("s_mov_b64 exec, 1")
        for i in range(4):
            a(f"buffer_atomic_umax v{2+i}, v0, s[4:7], 0 offen offset:{4*i}")
        a(f"v_not_b32 v2, s{S_PROF}")
        a("buffer_atomic_umax v2, v0, s[4:7], 0 offen offset:16")
        for i, st in enumerate((0, 2, 3, 4, 6, 7, 8, 9, 10, 15)):
            a(f"v_mov_b32 v{3+i}, s{S_PROF+st}")
            a(f"buffer_atomic_umax v{3+i}, v0, s[4:7], 0 offen offset:{20+4*i}")
    a("s_endpgm")
    a.label("MORE")
    for i in range(8):
        a(f"buffer_store_dwordx4 {vr(D+4*i,4)}, v{T0+8}, s[{R_ACC}:{R_ACC+3}], s57 offen offset:{(i//2)*128 + (i%2)*16}")
    a(f"s_lshl_b32 s54, s{S_WAVE}, 6")
    a(f"v_add_u32 v{TID}, s54, v{LANE}")
    a(f"s_add_u32 s{S_R0}, s{S_R0}, s{S_LEN}")
    a("s_waitcnt vmcnt(0)")
    a("s_barrier")
    a("s_branch ROUND")
    a.label("K2_end")
    a("s_endpgm")
    return a


def descriptor(name, nv, ns):
    return f""".amdhsa_kernel {name}
  .amdhsa_next_free_vgpr {nv}
  .amdhsa_next_free_sgpr {ns}
  .amdhsa_accum_offset {(nv + 3) // 4 * 4}
  .amdhsa_group_segment_fixed_size 0
  .amdhsa_kernarg_size 96
  .amdhsa_user_sgpr_count 2
  .amdhsa_user_sgpr_kernarg_segment_ptr 1
  .amdhsa_system_sgpr_workgroup_id_x 1
  .amdhsa_float_denorm_mode_32 3
.end_amdhsa_kernel
"""


def main():
    ref = open(os.path.join(os.path.dirname(os.path.abspath(__file__)), "..", "cdna_kernels", NAME + ".s.ref")).read()
    head = [l for l in ref.split("\n") if l.startswith(";") and "@launch" not in l and "Override" not in l
            and "grid=ceil" not in l]
    k1, k2 = "edge_sort_kernel", NAME + "_kernel"
    out = head + ([] if FUSED else [f"; @launch kernel={k1} grid=(255,1,1) block=(1024,1,1) lds={K1_LDS}"]) + [
        f"; @launch kernel={k2} grid=(256,1,1) block=(512,1,1) lds={K2_LDS}",
        ";",
        "; Part 1: each workgroup sorts 3200 edges by destination bin (49 nodes) through LDS and writes the edge",
        ";   attributes, a 12-byte record (source row, node in bin, rhat) and a segment table to d_ws; it also splits",
        ";   x into two 32-channel tables and lays out the weights. Completion is published with tagged flags.",
        "; Part 2: one workgroup per bin. It stages the bin's edges in LDS, sorts them by node, and for each node",
        ";   and channel half accumulates T[k, a, b, c] = sum_e e[k] * (1, rhat)[a] * x[src][b, c] with MFMA",
        ";   (x rows gathered by LDS-DMA), contracts k with w_rad, then applies w_si0 / w_si1 and the gate.",
        ";   Bins that exceed the LDS capacity are processed in several rounds.",
        '.amdgcn_target "amdgcn-amd-amdhsa--gfx950"',
        ".text",
    ]
    for name, fn in ((k1, kernel1), (k2, kernel2))[FUSED:]:
        lines, nops = fn().finish()
        print(name, "instructions:", len(lines), "nops inserted:", nops, file=sys.stderr)
        out += [f".globl {name}", ".p2align 8", f".type {name},@function", f"{name}:"] + lines
    out += ['.section .rodata,"a"'] + ([] if FUSED else [".p2align 6", descriptor(k1, 96, 102)])
    out += [".p2align 6", descriptor(k2, NVGPR, 102)]
    open(sys.argv[1], "w").write("\n".join(out))


if __name__ == "__main__":
    main()
```

```python
import os
import sys

sys.path.insert(0, os.path.dirname(os.path.abspath(__file__)))
from asmlib import Asm, vr, sr

NAME = "gather_scatter__tensor_product_equiv_equiformer__graph"
N, E = 12500, 800000
CHUNK, W = 3200, 250
NPB = 49
NBIN = 256

WS_TAB = 0
WS_WTAB = 0x40000
WS_WSI = 0x48000
WS_META = 0x100000
WS_XP = 0xB00000
WS_EP = 0x1200000
WS_P = 0x2B00000
P_NODE = 784
P_HALF = NPB * P_NODE
P_WG = 0x13000
WS_ACC = 0x4000000
XHALF = N * 256

OPT = dict(a.split("=") for a in sys.argv[2:] if "=" in a)


def opt(name, default):
    return type(default)(OPT.get(name, default))


PROF = opt("prof", 0)
WS_PROF = 0x6000000
S_PROF = 82
FUSED = opt("fused", 1)


def preg(i):
    if FUSED:
        return {0: 82, 6: 83, 9: 90, 10: 91, 11: 92, 12: 93, 13: 94, 15: 95}.get(i)
    return S_PROF + i


def stamp(a, i, real=False, late=False, k1=False):
    if k1:
        i = {2: None, 4: None, 6: 10, 8: 11}[i]
        if i is None or PROF != 5:
            return
    elif PROF == 5 and i not in (0, 15, 6, 9):
        return
    if PROF and not (late and PROF == 2):
        a("s_waitcnt lgkmcnt(0)")
        a(("s_memrealtime" if real or PROF in (3, 5) else "s_memtime") + " s[80:81]")
        a("s_waitcnt lgkmcnt(0)")
        a(f"s_mov_b32 s{preg(i)}, s80")
        if PROF == 4 and i == 7:
            a("s_memrealtime s[80:81]" if opt("rt", 0) else "s_memtime s[80:81]")


def prof_dump(a, wsreg, kern, nwave_shift, wavereg):
    if PROF:
        a(f"s_lshl_b32 s80, s2, {nwave_shift}")
        a(f"s_add_u32 s80, s80, s{wavereg}")
        a("s_lshl_b32 s80, s80, 6")
        a(f"s_add_u32 s80, s80, {WS_PROF + kern * 0x100000}")
        srd(a, 4, wsreg, "s80", 64)
        a("v_mov_b32 v0, 0")
        for i in range(16):
            if preg(i) is None:
                continue
            a(f"v_mov_b32 v1, s{preg(i)}")
            a(f"buffer_store_dword v1, v0, s[4:7], 0 offen offset:{4*i}")


def srd(a, d, b, off, size):
    a(f"s_add_u32 s{d}, s{b}, {off}")
    a(f"s_addc_u32 s{d+1}, s{b+1}, 0")
    a(f"s_mov_b32 s{d+2}, {size}")
    a(f"s_mov_b32 s{d+3}, 0x20000")


def scan64(a, v):
    for sh in (1, 2, 4, 8):
        a(f"v_add_u32_dpp v{v}, v{v}, v{v} row_shr:{sh} row_mask:0xf bank_mask:0xf bound_ctrl:1")
    a(f"v_add_u32_dpp v{v}, v{v}, v{v} row_bcast:15 row_mask:0xa bank_mask:0xf")
    a(f"v_add_u32_dpp v{v}, v{v}, v{v} row_bcast:31 row_mask:0xc bank_mask:0xf")


K1_ERAW = 0
K1_MS = 102400
K1_INV = K1_MS + 38400
K1_HIST = K1_INV + 6400
K1_LDS = 152 * 1024


def prep_tables(a, ST):
    a("v_add_u32 v4, s60, v0")
    a("v_and_b32 v5, 3, v4")
    a("v_bfe_u32 v6, v4, 2, 4")
    a("v_bfe_u32 v7, v4, 6, 2")
    a("v_lshrrev_b32 v8, 8, v4")
    a("v_cmp_le_u32 vcc, 10, v8")
    a("v_cndmask_b32 v9, 0, 1, vcc")
    a("v_mul_u32_u24 v10, 10, v9")
    a("v_sub_u32 v10, v8, v10")
    a("v_lshl_add_u32 v11, v7, 2, v5")
    a("v_mul_u32_u24 v11, 320, v11")
    a("v_lshrrev_b32 v12, 1, v10")
    a("v_lshl_add_u32 v11, v12, 6, v11")
    a("v_lshl_add_u32 v11, v9, 5, v11")
    a("v_and_b32 v12, 1, v10")
    a("v_lshl_add_u32 v11, v12, 4, v11")
    a("v_add_u32 v11, v11, v6")
    a("v_lshlrev_b32 v11, 1, v11")
    a("buffer_load_ushort v13, v11, s[16:19], 0 offen")
    a("v_mov_b32 v30, 0x80000000")
    for t in range(2):
        b = 32 + 8 * t
        a(f"v_add_u32 v14, {20*t}, v8")
        a("v_mul_u32_u24 v15, 26, v14")
        a("v_lshrrev_b32 v15, 8, v15")
        a("v_mul_u32_u24 v16, 10, v15")
        a("v_sub_u32 v16, v14, v16")
        a("v_lshrrev_b32 v17, 1, v16")
        a("v_and_b32 v18, 1, v16")
        a("v_lshl_add_u32 v19, v7, 2, v5")
        a("v_lshl_add_u32 v19, v18, 5, v19")
        a("v_lshl_add_u32 v19, v17, 6, v19")
        a("v_lshrrev_b32 v20, 1, v15")
        a("v_and_b32 v21, 1, v15")
        a("v_lshrrev_b32 v22, 2, v6")
        a("v_lshlrev_b32 v22, 3, v22")
        a("v_lshl_add_u32 v22, v20, 5, v22")
        a("v_lshl_add_u32 v22, v21, 2, v22")
        a("v_and_b32 v23, 3, v6")
        a("v_add_u32 v22, v22, v23")
        a("v_lshl_add_u32 v22, v19, 6, v22")
        a("v_lshlrev_b32 v22, 1, v22")
        a("v_subrev_u32 v23, 16384, v22")
        a("v_cmp_gt_u32 vcc, 2, v17")
        a("v_cndmask_b32 v24, v30, v22, vcc")
        a("v_cndmask_b32 v25, v23, v30, vcc")
        a(f"buffer_load_ushort v{b}, v24, s[20:23], 0 offen")
        a(f"buffer_load_ushort v{b+1}, v24, s[20:23], 0 offen offset:2048")
        a(f"buffer_load_ushort v{b+2}, v25, s[24:27], 0 offen")
        a(f"buffer_load_ushort v{b+3}, v25, s[24:27], 0 offen offset:2048")
    a("v_lshlrev_b32 v4, 2, v4")
    a("s_mov_b32 s61, 20480")
    a("s_waitcnt vmcnt(0)")
    a("v_lshlrev_b32 v13, 16, v13")
    a("buffer_store_dword v13, v4, s[28:31], 0 offen" + ST)
    for t in range(2):
        b = 32 + 8 * t
        a(f"v_or_b32 v{b}, v{b}, v{b+2}")
        a(f"v_or_b32 v{b+1}, v{b+1}, v{b+3}")
        a(f"v_lshl_or_b32 v{b}, v{b+1}, 16, v{b}")
        a(f"buffer_store_dword v{b}, v4, s[32:35], {'0' if t == 0 else 's61'} offen{ST}")


def kernel1():
    a = Asm()
    NT = " nt" if opt("k1nt", 1) else ""
    ST = {0: "", 1: " nt", 2: " sc1"}[opt("k1st", 2)]
    a("s_cmp_ge_u32 s2, 255")
    a("s_cbranch_scc1 K1_end")
    a("s_load_dwordx8 s[4:11], s[0:1], 0")
    a("s_load_dwordx8 s[52:59], s[0:1], 32")
    a("s_load_dwordx2 s[14:15], s[0:1], 88")
    a("v_lshlrev_b32 v1, 4, v0")
    a("v_mul_u32_u24 v2, 24, v0")
    a("v_and_b32 v3, 63, v0")
    a("v_lshlrev_b32 v3, 4, v3")
    a("v_lshrrev_b32 v40, 6, v0")
    a("v_readfirstlane_b32 s3, v40")
    a("s_cmp_ge_u32 s2, 250")
    a("s_cbranch_scc1 K1_prep")
    stamp(a, 0, True)
    stamp(a, 1)
    a("s_mul_i32 s60, s2, 12800")
    a("s_mul_i32 s61, s2, 19200")
    a("s_mul_i32 s62, s2, 25600")
    a("s_mul_i32 s63, s2, 102400")
    a("s_mul_i32 s64, s2, 38400")
    a("s_lshl_b32 s65, s2, 10")
    a("s_waitcnt lgkmcnt(0)")
    srd(a, 16, 52, "s60", 12800)
    a(f"buffer_load_dwordx4 v[4:7], v1, s[16:19], 0 offen{NT}")
    a("v_lshlrev_b32 v41, 2, v0")
    a("v_mov_b32 v42, 0")
    a("s_cmp_ge_u32 s3, 4")
    a("s_cbranch_scc1 K1_nozero")
    a(f"v_add_u32 v41, {K1_HIST}, v41")
    a("ds_write_b32 v41, v42")
    a.label("K1_nozero")
    srd(a, 20, 10, "s60", 12800)
    srd(a, 24, 6, "s61", 19200)
    srd(a, 28, 4, "s62", 25600)
    srd(a, 32, 8, "s63", 102400)
    a("s_mov_b32 s66, 16384")
    a("s_lshl_b32 s67, s3, 10")
    kq = [int(c) for c in opt("kq", "00700")]

    def e_in(i):
        for k in range(sum(kq[:i]), sum(kq[:i + 1])):
            if k == 6:
                a("s_cmp_ge_u32 s3, 4")
                a("s_cbranch_scc1 K1_noe7")
            a("s_mov_b32 m0, s67")
            a(f"buffer_load_dwordx4 v3, s[32:35], s67 offen{NT} lds")
            a("s_add_u32 s67, s67, 16384")
            if k == 6:
                a.label("K1_noe7")

    def n_e(lo, hi):
        return min(sum(kq[:hi + 1]), 6) - min(sum(kq[:lo]), 6)

    e_in(0)
    a("s_waitcnt lgkmcnt(0)")
    a("s_barrier")
    RNT = NT if opt("rnt", 1) else ""
    a(f"buffer_load_dwordx4 v[8:11], v1, s[20:23], 0 offen{NT}")
    a(f"buffer_load_dwordx4 v[12:15], v2, s[24:27], 0 offen{RNT}")
    a(f"buffer_load_dwordx2 v[16:17], v2, s[24:27], 0 offen offset:16{RNT}")
    if opt("k1b2", 1):
        a("s_barrier")
    e_in(1)
    a(f"buffer_load_dwordx4 v[20:23], v1, s[28:31], 0 offen{NT}")
    a(f"buffer_load_dwordx4 v[24:27], v1, s[28:31], s66 offen{NT}")
    e_in(2)
    a("s_add_u32 s68, s64, %d" % WS_META)
    srd(a, 36, 14, "s68", 38400)
    a("s_add_u32 s68, s63, %d" % WS_EP)
    srd(a, 40, 14, "s68", 102400)
    srd(a, 44, 14, WS_XP, 2 * XHALF)
    srd(a, 48, 14, "s65", 1024)
    a("v_cmp_gt_u32 vcc, 800, v0")
    a("s_mov_b64 s[70:71], vcc")
    a("v_mov_b32 v43, 1")
    a(f"s_waitcnt vmcnt({5 + n_e(0, 2)})")
    stamp(a, 2)
    a("s_mov_b64 exec, s[70:71]")
    a("s_cbranch_execz K1_skip_rank")
    for i in range(4):
        a(f"v_mul_u32_u24 v{28+i}, 21400, v{4+i}")
        a(f"v_lshrrev_b32 v{28+i}, 20, v{28+i}")
        a(f"v_mul_u32_u24 v{36+i}, 49, v{28+i}")
        a(f"v_sub_u32 v{36+i}, v{4+i}, v{36+i}")
        a(f"v_lshlrev_b32 v{28+i}, 2, v{28+i}")
        a(f"v_add_u32 v{28+i}, {K1_HIST}, v{28+i}")
        a(f"ds_add_rtn_u32 v{32+i}, v{28+i}, v43")
    a.label("K1_skip_rank")
    a("s_mov_b64 exec, -1")
    a("s_waitcnt lgkmcnt(0)")
    a("s_barrier")
    stamp(a, 3)
    a("s_cmp_lg_u32 s3, 0")
    a("s_cbranch_scc1 K1_noscan")
    a(f"v_add_u32 v41, {K1_HIST}, v3")
    a("ds_read_b128 v[44:47], v41")
    a("s_waitcnt lgkmcnt(0)")
    a("v_add_u32 v49, v44, v45")
    a("v_add_u32 v50, v49, v46")
    a("v_add_u32 v51, v50, v47")
    a("v_mov_b32 v52, v51")
    scan64(a, 52)
    a("v_sub_u32 v52, v52, v51")
    a("v_add_u32 v53, v52, v44")
    a("v_add_u32 v54, v52, v49")
    a("v_add_u32 v55, v52, v50")
    a("ds_write_b128 v41, v[52:55]")
    for i in range(4):
        a(f"v_lshl_or_b32 v{56+i}, v{44+i}, 16, v{52+i}")
    a("buffer_store_dwordx4 v[56:59], v3, s[48:51], 0 offen")
    a("s_waitcnt lgkmcnt(0)")
    a.label("K1_noscan")
    e_in(3)
    a("v_lshrrev_b32 v60, 5, v0")
    a("s_mul_i32 s69, s2, 50")
    a("v_add_u32 v60, s69, v60")
    a("v_lshlrev_b32 v60, 8, v60")
    a("v_bfe_u32 v61, v0, 3, 2")
    a("v_lshl_add_u32 v60, v61, 6, v60")
    a("v_and_b32 v61, 3, v0")
    a("v_lshl_add_u32 v60, v61, 4, v60")
    a("v_bfe_u32 v61, v0, 2, 1")
    a(f"v_mul_u32_u24 v61, {XHALF}, v61")
    a("v_add_u32 v60, v60, v61")
    a("v_add_u32 v61, 8192, v60")
    a("v_cmp_gt_u32 vcc, 576, v0")
    a("v_mov_b32 v62, 0x80000000")
    a("v_cndmask_b32 v61, v62, v61, vcc")
    a("s_barrier")
    a("s_mov_b64 exec, s[70:71]")
    a("s_cbranch_execz K1_skip_scatter")
    for i in range(4):
        a(f"ds_read_b32 v{28+i}, v{28+i}")
    a(f"s_waitcnt vmcnt({2 + n_e(1, 3)})")
    a("s_mov_b32 s72, 0x80000000")
    a("s_mov_b32 s73, 0xffff0000")
    for i in range(4):
        a(f"v_lshl_or_b32 v{8+i}, v{8+i}, 8, v{36+i}")
        a(f"v_or_b32 v{8+i}, s72, v{8+i}")
    a("v_lshlrev_b32 v44, 16, v13")
    a("v_alignbit_b32 v45, v14, v13, 16")
    a("v_and_b32 v46, s73, v14")
    a("v_lshlrev_b32 v47, 16, v16")
    a("v_alignbit_b32 v48, v17, v16, 16")
    a("v_and_b32 v49, s73, v17")
    w1 = [12, 45, 15, 48]
    w2 = [44, 46, 47, 49]
    a("v_lshlrev_b32 v50, 2, v0")
    a("s_waitcnt lgkmcnt(0)")
    for i in range(4):
        a(f"v_add_u32 v{32+i}, v{32+i}, v{28+i}")
        a(f"v_mul_u32_u24 v{28+i}, 12, v{32+i}")
        a(f"v_add_u32 v{28+i}, {K1_MS}, v{28+i}")
        a(f"ds_write2_b32 v{28+i}, v{8+i}, v{w1[i]} offset0:0 offset1:1")
        a(f"ds_write_b32 v{28+i}, v{w2[i]} offset:8")
        a(f"v_lshlrev_b32 v{32+i}, 1, v{32+i}")
        a(f"v_add_u32 v{32+i}, {K1_INV}, v{32+i}")
        a(f"v_add_u32 v{52+i}, {i}, v50")
        a(f"ds_write_b16 v{32+i}, v{52+i}")
    a.label("K1_skip_scatter")
    a("s_mov_b64 exec, -1")
    a(f"s_waitcnt vmcnt({n_e(2, 3)})")
    a(f"buffer_store_dwordx4 v[20:23], v60, s[44:47], 0 offen{ST}")
    a(f"buffer_store_dwordx4 v[24:27], v61, s[44:47], 0 offen{ST}")
    e_in(4)
    a("s_waitcnt lgkmcnt(0)")
    a("s_barrier")
    stamp(a, 4)
    a(f"v_add_u32 v41, {K1_MS}, v1")
    a("ds_read_b128 v[4:7], v41")
    a("ds_read_b128 v[8:11], v41 offset:16384")
    a("ds_read_b128 v[12:15], v41 offset:32768")
    a("v_and_b32 v42, 0x3fe, v0")
    a(f"v_add_u32 v42, {K1_INV}, v42")
    for k in range(7):
        a(f"ds_read_u16 v{28+k}, v42 offset:{1024*k}")
    a("v_and_b32 v43, 1, v0")
    a("v_lshlrev_b32 v43, 4, v43")
    a("s_mov_b32 s74, 32768")
    a("s_waitcnt lgkmcnt(7)")
    a(f"buffer_store_dwordx4 v[4:7], v1, s[36:39], 0 offen{ST}")
    a(f"buffer_store_dwordx4 v[8:11], v1, s[36:39], s66 offen{ST}")
    a(f"buffer_store_dwordx4 v[12:15], v1, s[36:39], s74 offen{ST}")
    a("s_waitcnt lgkmcnt(0)")
    for k in range(7):
        a(f"v_lshl_add_u32 v{28+k}, v{28+k}, 5, v43")
    stamp(a, 5)
    a(f"s_waitcnt vmcnt({3 if kq[4] else 5})")
    a("s_barrier")
    stamp(a, 6)
    for k in range(6):
        a(f"ds_read_b128 v[{64+4*k}:{67+4*k}], v{28+k}")
    a("s_mov_b32 s75, 0")
    for k in range(6):
        a(f"s_waitcnt lgkmcnt({5-k})")
        a(f"buffer_store_dwordx4 v[{64+4*k}:{67+4*k}], v1, s[40:43], s75 offen{ST}")
        a("s_add_u32 s75, s75, 16384")
    a("s_cmp_ge_u32 s3, 4")
    a("s_cbranch_scc1 K1_fin")
    a("ds_read_b128 v[88:91], v34")
    a("s_waitcnt lgkmcnt(0)")
    a(f"buffer_store_dwordx4 v[88:91], v1, s[40:43], s75 offen{ST}")
    a.label("K1_fin")
    if opt("cpf", 2) & 4:
        a(f"s_cmp_ge_u32 s2, {opt('cpn', 8)}")
        a("s_cbranch_scc1 K1_nocpf")
        a("s_getpc_b64 s[76:77]")
        a.label("K1_here2")
        a("s_mov_b32 s78, K2_end-K1_here2")
        a("s_mov_b32 s79, 0x20000")
        a("v_lshlrev_b32 v60, 7, v0")
        a("buffer_load_dword v61, v60, s[76:79], 0 offen")
        a("s_waitcnt vmcnt(0)")
        a.label("K1_nocpf")
    stamp(a, 7)
    if PROF:
        a("s_waitcnt vmcnt(0)")
    stamp(a, 8)
    stamp(a, 15, True)
    prof_dump(a, 14, 0, 4, 3)
    a("s_endpgm")

    a.label("K1_prep")
    a("s_waitcnt lgkmcnt(0)")
    srd(a, 16, 54, 0, 16 * 320 * 2)
    srd(a, 20, 56, 0, 128 * 64 * 2)
    srd(a, 24, 58, 0, 192 * 64 * 2)
    srd(a, 28, 14, WS_WTAB, 20480)
    srd(a, 32, 14, WS_WSI, 40960)
    if opt("cpf", 2) & 2:
        a("s_getpc_b64 s[36:37]")
        a.label("K1_here")
        a("s_mov_b32 s38, K2_end-K1_here")
        a("s_mov_b32 s39, 0x20000")
        a("v_lshlrev_b32 v60, 7, v0")
        a("buffer_load_dword v61, v60, s[36:39], 0 offen")
    a("s_sub_u32 s60, s2, 250")
    a("s_lshl_b32 s60, s60, 10")
    prep_tables(a, "")
    a.label("K1_end")
    a("s_endpgm")
    return a


CAP = 3392
SLOWCAP = 256
MAXSTEPS = 142
MAXWSTEPS = 20
L_E = 0
L_RING = 32 + CAP * 32
RING_W = 6336
SUBB = 2112
L_SA = L_RING
L_SB = L_SA + MAXSTEPS * 128
L_MISC = L_SB + MAXSTEPS * 256
L_CNT = L_MISC
L_FLAG = L_MISC + 256
L_WSUM = L_MISC + 272
L_DUMMY = L_WSUM + 16
L_MAP = 94208
K2_LDS = 163840
assert L_MAP + CAP * 4 <= L_RING and L_DUMMY + 256 <= K2_LDS and L_RING + 8 * RING_W <= L_MISC

ACC = 0
WR = 88
B0 = 128
B1 = 144
GS, G0, G1, G2, N0, N2 = 160, 164, 168, 172, 176, 180
SEL = 184
M0R = 188
MBR = 198
GSP = (160, 252)
NID = 218
Y = 220
REP = 223
XA = 224
XOFF, QQ8, BAE, BAO, POFF, NST = 228, 230, 231, 232, 233, 234
U, PT, T8, EA = 236, 244, 235, 248
T0 = 236
TID, LANE = 250, 251
NVGPR = 256
XBIAS = 2048

S_WAVE = 3
R_XP, R_EP, R_MT, R_TB, R_P, R_W, R_OUT, R_ACC = 4, 8, 12, 16, 20, 24, 28, 32
S_NN, S_T, S_R0, S_LEN, S_CAP = 36, 37, 38, 39, 40
S_NODE0, S_NNW, S_STEP0, S_NS = 41, 42, 43, 44
S_D, S_REM, S_NODE, S_PHASE, S_TAB0, S_TAB1, S_RB, S_POFF = 45, 46, 47, 48, 49, 50, 51, 52
S_HI, S_SGN = 100, 101
S_MASK = 64
S_LAST = 78
S_NEND = 79
S_EM0 = 57
S_EVT = 59
S_OLD = 53
S_LEFT, S_PADR = 58, 63
S_PAT = 58
S_EGN = 63
NEWTAIL = opt('newtail', 0)
DRY = NEWTAIL and opt('dry', 0)
R_DBG = 76
R_FLG = 84
S_EB1, S_EB2, S_TAG = 88, 89, 96

PPOL = ["", " sc1", " nt", " sc0 sc1"][opt("ppol", 0)]
OPOL = ["", " sc1", " nt", " sc0 sc1"][opt("opol", 0)]

VC = opt("vc", 0)
HI = "v219" if VC else f"s{S_HI}"
SGN = f"v{TID}" if VC else f"s{S_SGN}"

TPATH = [0, 1, 2, 2, 2, 3, 3, 3, 4, 4, 4]
P0, P1 = 0, 1
P2 = [2, 3, 4]
P3 = [5, 6, 7]
P4 = [8, 9, 10]


def acc(t, cq):
    return ACC + 4 * (2 * t + cq)


def mfma_list():
    out = []
    for t, A, B, fl in ((P2[0], G0, B0, 1), (P1, G0, B0 + 8, 1), (P0, GS, B0, 1), (P3[0], GS, B0 + 8, 1),
                        (P2[2], G2, B0, 1), (P4[1], G2, B0 + 8, 1), (P2[1], G1, B0, 1), (P4[2], G1, B0 + 8, 1),
                        (P4[2], N0, B1, 0), (P4[1], N0, B1 + 8, 0), (P3[1], GS, B1, 1), (P3[2], GS, B1 + 8, 1),
                        (P4[0], N2, B1, 1), (P1, G2, B1 + 8, 0), (P1, G1, B1, 0), (P4[0], G1, B1 + 8, 0)):
        for cq in range(2):
            out.append((t, cq, A, B + 4 * cq, fl))
    if opt("chain", 1):
        n2, g2p1, g1p1, g1p4 = out[24:26], out[26:28], out[28:30], out[30:32]
        out[16], out[17] = out[17], out[16]
        out[24:32] = [g1p1[0], g2p1[0], g1p1[1], g2p1[1], n2[0], g1p4[0], n2[1], g1p4[1]]
    return out


def emit_mfma(a, m, first, p0, q0):
    t, cq, A, B, fl = m
    if A == GS:
        A = GSP[p0]
    if opt("nomfma", 0):
        return
    d = vr(acc(t, cq), 4)
    c = "0" if (first and fl) else d
    if q0:
        a(f"v_mfma_f32_16x16x16_bf16 {d}, {vr(A,2)}, {vr(B,2)}, {c}")
    else:
        a(f"v_mfma_f32_16x16x32_bf16 {d}, {vr(A,4)}, {vr(B,4)}, {c}")


def b_reads(k, pos):
    B = B0 if k < 2 else B1
    hf = k & 1
    return [f"ds_read_b64_tr_b16 {vr(B + 4*u + 2*hf, 2)}, v{BAE if u % 2 == 0 else BAO} offset:{pos*SUBB + u*32}"
            for u in range(4)]


def vmwait(n):
    return [] if opt("nowait", 0) else [f"s_waitcnt vmcnt({n})"]


def dma(k, pos):
    if opt("nodma", 0):
        return [[], [], []]
    hf, bp = k & 1, k >> 1
    so = S_TAB0 if bp == 0 else S_TAB1
    pol = ["", " sc1", " nt", " sc0 sc1", " sc0"][opt("xpol", 1)]
    return [[f"s_add_u32 m0, s{S_RB}, {pos*SUBB}"],
            [f"buffer_load_dwordx4 v{XA + 2*hf}, s[{R_XP}:{R_XP+3}], s{so} offen{pol} lds"],
            [f"buffer_load_dwordx4 v{XA + 2*hf + 1}, s[{R_XP}:{R_XP+3}], s{so} offen offset:1088{pol} lds"]]


W0_FETCH = [f"s_lshr_b32 s54, s{S_D}, 1",
            "s_set_gpr_idx_on s54, gpr_idx(SRC0)",
            f"v_mov_b32 v{REP}, v{M0R}",
            "s_set_gpr_idx_off"]
W0_REP = [f"v_mov_b32_dpp v{REP}, v{REP} row_shr:4 row_mask:0xf bank_mask:0xa",
          f"v_mov_b32_dpp v{REP}, v{REP} row_shl:4 row_mask:0xf bank_mask:0x5"]
WRAP = [f"s_mov_b32 s{S_D}, 0",
        f"s_add_u32 s{S_TAB0}, s{S_TAB0}, {XHALF}",
        f"s_add_u32 s{S_TAB1}, s{S_TAB1}, {XHALF}"]


def x_addr(q):
    return f"v_add_u32_dpp v{XA+q}, v{REP}, v{XOFF + (q & 1)} quad_perm:[{q},{q},{q},{q}] row_mask:0xf bank_mask:0xf"


META_SET = [f"s_set_gpr_idx_on s{S_D}, gpr_idx(SRC1)",
            f"v_mad_u32_u16 v{T8}, 8, v{MBR+1}, 0",
            f"v_lshlrev_b32 v{Y}, 16, v{MBR}",
            f"v_and_b32 v{Y+1}, {HI}, v{MBR}",
            f"v_and_b32 v{Y+2}, {HI}, v{MBR+1}",
            "s_set_gpr_idx_off"]


def e_addr(p):
    return [f"v_add_u32_dpp v{EA+h}, v{T8}, v{QQ8} quad_perm:[{2*p+h},{2*p+h},{2*p+h},{2*p+h}] "
            "row_mask:0xf bank_mask:0xf" for h in range(2)]


def e_reads(dst):
    return [f"ds_read_b64_tr_b16 {vr(dst + 2*h, 2)}, v{EA+h}" for h in range(2)]


def unpack_valu(aa, p):
    return [f"v_lshlrev_b32 v{U+2*aa}, 16, v{GSP[p]+aa}", f"v_and_b32 v{U+2*aa+1}, {HI}, v{GSP[p]+aa}"]


def gb(j, aa, p):
    if opt("nog", 0):
        return []
    hf, rl = aa >> 1, 2 * (aa & 1)
    pl = PT + 2 * (aa & 1)
    return [f"v_mul_f32_dpp v{pl}, v{Y+j}, v{U+2*aa} row_newbcast:{4*rl+2*p+hf} row_mask:0xf bank_mask:0xf",
            f"v_mul_f32_dpp v{pl+1}, v{Y+j}, v{U+2*aa+1} row_newbcast:{4*rl+4+2*p+hf} row_mask:0xf bank_mask:0xf",
            f"v_cvt_pk_bf16_f32 v{(G0, G1, G2)[j]+aa}, v{pl}, v{pl+1}"]


def neg(dst, src):
    return [f"v_xor_b32 v{dst+i}, {SGN}, v{src+i}" for i in range(4)]


SHORT = opt("short", 0)


def body_name(rho, kind, p0, p1):
    return f"S{rho}{kind}{p0}{p1}"


def goto_next(a, rho, kind, p1, fall=False):
    if p1 == 0:
        a(f"s_cmp_eq_u32 s{S_D}, 0")
        a(f"s_cbranch_scc1 {body_name(rho, kind, 0, 0)}")
    if not fall:
        a(f"s_branch {body_name(rho, kind, p1, 1 - p1)}")


def issue_cost(l):
    op = l.split()[0]
    if op.endswith(":"):
        return 0
    if op.startswith("v_"):
        return 5.3 if "_dpp" in op or op.startswith(("v_cvt_pk", "v_mad")) else 4.2
    return {"d": 8, "b": 14}.get(op[0], 4.1)


def step_body(a, rho, kind, p0, p1, fall, cold):
    tag = body_name(rho, kind, p0, p1)
    first = kind == "f"
    x = 3 if first else 0
    p = lambda k: (rho + k) % 3
    F = [[] for _ in range(32)]

    def event(slot, n, k, pos):
        F[slot] += vmwait(n)
        for i, r in enumerate(b_reads(k, pos)):
            F[slot + i].append(r)

    def refill(slot, k, pos):
        d = dma(k, pos)
        F[slot - 1] += d[0]
        F[slot] += [f"WAIT {k}"] + d[1]
        F[slot + opt("xg", 0)] += d[2]

    event(0, 4 + x, 2, p(2))
    refill(5, 1, p(2))
    event(8, 4 + x, 3, p(0))
    refill(13, 2, p(0))
    event(16, 4 + x, 0, p(1))
    refill(21, 3, p(1))
    event(24, 4, 1, p(2))
    refill(29, 0, p(2))
    F[31] += [f"s_sub_u32 s{S_REM}, s{S_REM}, 1"]
    if PROF == 4:
        F[30] += ["s_memrealtime s[80:81]" if opt("rt", 0) else "s_memtime s[80:81]"]
        F[7] += ["s_mov_b32 m0, s96", "s_add_u32 s96, s96, 1", "v_writelane_b32 v219, s80, m0"]

    qb = 1 - p0
    n0, n2 = neg(N0, G0), neg(N2, G2)
    ea, er = e_addr(p1), e_reads(GSP[qb])
    step = [f"s_add_u32 s{S_D}, s{S_D}, 1", f"s_cmp_lt_u32 s{S_D}, s{S_NS}", f"s_cbranch_scc0 {tag}_w"]
    if p1 == 1:
        fetch = [step + [f"{tag}_b:"] + W0_FETCH]
        rep = [[W0_REP[0]]]
        cold += [f"{tag}_w:"] + WRAP + [f"s_branch {tag}_b"]
    else:
        fetch = [step + W0_FETCH + ["FILL", W0_REP[1], f"{tag}_b:"]]
        rep = []
        cold += [f"{tag}_w:"] + WRAP + W0_FETCH + ["FILL", W0_REP[0], f"s_branch {tag}_b"]
    one = lambda lst: [[l] for l in lst]
    g0 = gb(0, 0, p1) + gb(0, 1, p1) + gb(0, 2, p1) + gb(0, 3, p1)
    g2 = gb(2, 0, p1) + gb(2, 1, p1)
    V = [(0, 6, g) for g in one(gb(2, 2, p0) + gb(2, 3, p0))]
    V += [(0, 10, g) for g in one(gb(1, 0, p0) + gb(1, 1, p0) + gb(1, 2, p0) + gb(1, 3, p0))]
    if p1 == 0:
        V += [(7, 11, META_SET)]
    V += [(0, 14, g) for g in one(n0[:2])]
    V += [(0, 14, [ea[0]]), (0, 14, [ea[1]]), (11, 15, [er[0]]), (11, 15, [er[1]])]
    V += [(0, 14, g) for g in one(n0[2:])]
    V += [(0, 22, g) for g in one(n2)]
    up = sum((unpack_valu(aa, qb) for aa in range(4)), [])
    V += [(opt("upe", 15), 22, ["WAIT e", up[0]])] + [(0, 24, g) for g in one(up[1:])]
    nb = opt("nb", 7)
    V += [(16, 30, g) for g in one(g0[:nb])]
    V += [(22, 26, g) for g in fetch] + [(0, 30, [g0[nb]])] + [(0, 27, g) for g in rep]
    V += [(0, 30, g) for g in one(g0[nb+1:nb+3])]
    V += [(0, 28, [x_addr(0)]), (0, 28, [x_addr(1)])]
    V += [(0, 30, g) for g in one(g0[nb+3:])]
    V += [(0, 31, [x_addr(2)]), (0, 31, [x_addr(3)])]
    if qb != p1:
        V += [(24, 31, [f"v_mov_b32 v{GSP[p1]+i}, v{GSP[qb]+i}" for i in range(4)])]
    V += [(0, 31, g) for g in one(g2[:2])] + [(27, 31, [g2[2]])] + [(27, 31, g) for g in one(g2[3:])]
    filler = g0[nb] if p1 == 0 else None
    if filler:
        V = [v for v in V if v[2] != [filler]]
    cost = lambda grp: sum(issue_cost(l) for l in grp)
    total = sum(cost(f) for f in F) + sum(cost(v[2]) for v in V)
    out, cum, i = [], 0.0, 0
    for sl in range(32):
        cum += cost(F[sl])
        mine = []
        while i < len(V):
            e, late, grp = V[i]
            must = any(V[j][1] <= sl for j in range(i, len(V)))
            if sl < e:
                assert not must, (tag, sl, grp)
                break
            if not must and cum + cost(grp) / 2 > total * (sl + 1) / 32:
                break
            mine += grp
            cum += cost(grp)
            i += 1
        tail = [l for l in F[sl] if l.startswith("s_sub")]
        out.append(mine[:1] + [l for l in F[sl] if l not in tail] + mine[1:] + tail
                   if mine and not mine[0].startswith(("s_", "WAIT", "ds_")) else
                   [l for l in F[sl] if l not in tail] + mine + tail)
    assert i == len(V)
    if opt("sched", 2) == 0:
        F = [[] for _ in range(32)]

        def spread(slot, lst, per=2):
            for i, l in enumerate(lst):
                if l is not None:
                    F[slot + i // per].append(l)

        def event2(slot, n, k, pos):
            r = b_reads(k, pos)
            nd = opt("nd", 4)
            if opt("dsf", 0):
                FIRST[slot] += vmwait(n) + r[:nd]
            else:
                F[slot] += vmwait(n) + r[:nd]
            F[slot + 1] += r[nd:]

        FIRST = [[] for _ in range(32)]
        ev2 = opt("ev2", 8)
        spread(0, gb(2, 2, p0) + gb(2, 3, p0) + gb(1, 0, p0) + gb(1, 1, p0) + gb(1, 2, p0) + gb(1, 3, p0))
        rs = opt("rs", 2)
        event2(0, 4 + x, 2, p(2))
        refill(rs, 1, p(2))
        if ev2 == 8:
            event2(8, 4 + x, 3, p(0))
        if p1 == 0:
            F[9] += META_SET
            spread(10, n0[:2] + ea)
            spread(13, n0[2:] + n2)
        else:
            spread(9, n0[:2] + ea + n0[2:])
            spread(13, n2)
        if ev2 == 8:
            refill(8 + max(rs, opt("rs2", 3)), 2, p(0))
            F[opt("es", 13)] += er
        else:
            event2(ev2, 4 + x, 3, p(0))
            F[ev2] += er
            refill(ev2 + rs, 2, p(0))
        event2(16, 4 + x, 0, p(1))
        F[17] += ["WAIT e"]
        spread(17, up)
        refill(16 + rs, 3, p(1))
        g = g0 + g2
        filler = g[0] if p1 == 0 else None
        F[21] += fetch[0]
        if p1 == 1:
            F[22] += rep[0] + [g[0]]
        spread(23 - (p1 == 0), g[1:3], 2 if p1 == 1 else 1)
        spread(24, [x_addr(0), g[3], x_addr(1), g[4]] + g[5:9] + [x_addr(2), g[9], x_addr(3)], 2)
        spread(28, g[10:12], 1)
        spread(29, g[12:], 2)
        if qb != p1:
            F[24] += [f"v_mov_b32 v{GSP[p1]+i}, v{GSP[qb]+i}" for i in range(4)]
        event2(24, 4, 1, p(2))
        refill(24 + rs, 0, p(2))
        if PROF == 4:
            F[29] += ["s_memrealtime s[80:81]" if opt("rt", 0) else "s_memtime s[80:81]"]
            F[6] += ["s_mov_b32 m0, s96", "s_add_u32 s96, s96, 1", "v_writelane_b32 v219, s80, m0"]
        if PROF == 6 and first:
            F[6] += ["s_sub_u32 s62, s62, s80", f"s_add_u32 s{S_PROF+14}, s{S_PROF+14}, s62"]
        F[31] += [f"s_sub_u32 s{S_REM}, s{S_REM}, 1"]
        F = [FIRST[i] + F[i] for i in range(32)]
        gf = opt("gf", 1)
        out = [sum(F[i - gf + 1:i + 1], []) if i % gf == gf - 1 else [] for i in range(32)]
    if opt("sched", 2) == 2:
        F = [[] for _ in range(32)]
        ev = [int(c) for c in opt("ev", "0,8,16,24").split(",")]
        rs = opt("rs", 2)
        for slot, n, k, pos, k2 in ((ev[0], 4 + x, 2, p(2), 1), (ev[1], 4 + x, 3, p(0), 2),
                                    (ev[2], 4 + x, 0, p(1), 3), (ev[3], 4, 1, p(2), 0)):
            F[slot] += vmwait(n) + b_reads(k, pos)
            refill(slot + rs, k2, pos)
        nb = opt("nb2", 3)
        filler = g0[nb] if p1 == 0 else None
        V = [(0, g) for g in one(gb(2, 2, p0) + gb(2, 3, p0) + gb(1, 0, p0) + gb(1, 1, p0) + gb(1, 2, p0) + gb(1, 3, p0))]
        if p1 == 0:
            V += [(0, META_SET)]
        V += [(0, g) for g in one(n0[:2] + [ea[0]])] + [(0, [ea[1]] + er)]
        V += [(0, g) for g in one(n0[2:] + n2)]
        V += [(0, ["WAIT e", up[0]])] + [(0, g) for g in one(up[1:])]
        V += [(0, g) for g in one(g0[:nb])] + [(ev[2] + rs + 1, g) for g in fetch]
        if p1 == 1:
            V += [(0, [g0[nb]])] + [(0, g) for g in rep]
        V += [(0, g) for g in one(g0[nb+1:nb+3] + [x_addr(0), x_addr(1)] + g0[nb+3:] + [x_addr(2), x_addr(3)])]
        if qb != p1:
            V += [(24, [f"v_mov_b32 v{GSP[p1]+i}, v{GSP[qb]+i}" for i in range(4)])]
        V += [(0, g) for g in one(g2[:2])] + [(27, [g2[2]])] + [(0, g) for g in one(g2[3:])]
        nv = lambda grp: sum(l.startswith("v_") or l == "FILL" for l in grp)
        wt = [opt("cw", 1.0) if any(l[0] in "db" for l in F[sl]) else 1.0 for sl in range(32)]
        tot = sum(nv(g) for _, g in V)
        out, done, i = [], 0, 0
        for sl in range(32):
            mine = []
            while i < len(V) and V[i][0] <= sl and (sl == 31 or done + nv(V[i][1]) / 2 <= tot * sum(wt[:sl+1]) / sum(wt)):
                if V[i][1] is META_SET and any(l.startswith("s_add_u32 m0") for l in F[sl]):
                    out_m0 = [l for l in F[sl] if l.startswith("s_add_u32 m0")]
                    F[sl] = [l for l in F[sl] if l not in out_m0]
                    mine += V[i][1] + out_m0
                else:
                    mine += V[i][1]
                done += nv(V[i][1])
                i += 1
            if any(l.startswith("s_set_gpr_idx_on") for l in mine) and any(l.startswith("buffer") for l in F[sl]):
                out.append(F[sl] + mine)
            else:
                out.append(mine + F[sl])
        out[31] += [f"s_sub_u32 s{S_REM}, s{S_REM}, 1"]
        order = [l for o in out for l in o]
        at = lambda l: next(k for k, o in enumerate(out) if l in o)
        assert at(gb(2, 3, p0)[2]) < 7 and at(gb(1, 3, p0)[2]) < 11 and at(n0[3]) < 15 and at(n2[3]) < 27
        assert order.index(x_addr(1)) < order.index(dma(0, p(2))[1][0])
        if PROF == 6 and first:
            out[6] += ["s_sub_u32 s62, s62, s80", f"s_add_u32 s{S_PROF+14}, s{S_PROF+14}, s62"]
    flat = [(sl, l) for sl in range(32) for l in out[sl]]
    need = {"1": b_reads(2, p(2)), "2": b_reads(3, p(0)), "3": b_reads(0, p(1)), "0": None, "e": er}
    a.label(tag)
    ml = mfma_list()
    for sl in range(32):
        emit_mfma(a, ml[sl], first, p0, 0)
        for l in out[sl]:
            if l.startswith("WAIT"):
                pos = flat.index((sl, l))
                ds = [y for _, y in flat[:pos] if y.startswith("ds_")]
                want = need[l.split()[1]]
                n = 0 if want is None else len(ds) - 1 - max(k for k, y in enumerate(ds) if y in want)
                assert want is None or all(w in ds for w in want)
                l = f"s_waitcnt lgkmcnt({n})"
            if l == "FILL":
                l = filler
            if opt("nods", 0) and (l.startswith("ds_") or l.startswith("s_waitcnt lgkm")):
                continue
            if opt("novalu", 0) and l.startswith("v_") and not l.startswith(("v_writelane", "v_mfma")):
                continue
            a(l)
    for k, l in enumerate(cold):
        if l == "FILL":
            cold[k] = filler
    nr = (rho + 1) % 3
    if fall == "n":
        a(f"s_cbranch_scc1 EP{nr}{p1}")
        goto_next(a, nr, "n", p1, True)
    else:
        if p1 == 1:
            a(f"s_cbranch_scc0 {body_name(nr, 'n', 1, 0)}")
        else:
            a(f"s_cbranch_scc0 {tag}_c")
            cold += [f"{tag}_c:", f"s_cmp_lg_u32 s{S_D}, 0", f"s_cbranch_scc1 {body_name(nr, 'n', 0, 1)}",
                     f"s_branch {body_name(nr, 'n', 0, 0)}"]
        if fall != "e":
            a(f"s_branch EP{nr}{p1}")


def node_steps(lane):
    return [f"v_readlane_b32 s{S_REM}, v{NST}, s{lane}"]


def load_w(a, h):
    a(f"s_mov_b32 s57, {10240*h}")
    a(f"v_lshlrev_b32 v67, 4, v{LANE}")
    for pc in range(10):
        if pc % 4 == 0 and pc:
            a("s_add_u32 s57, s57, 4096")
        a(f"buffer_load_dwordx4 {vr(WR+4*pc,4)}, v67, s[{R_W}:{R_W+3}], s57 offen offset:{(pc%4)*1024}")


def pipeline_start(a):
    def run(lst):
        for l in lst:
            a(l)

    def dma_now(k, pos):
        for g in dma(k, pos):
            run(g)

    if VC:
        a("v_mov_b32 v219, 0xffff0000")
        a(f"v_mov_b32 v{TID}, 0x80008000")
    run(W0_FETCH + [W0_REP[0]] + [x_addr(q) for q in range(4)])
    dma_now(0, 0)
    dma_now(1, 1)
    dma_now(2, 2)
    run(META_SET + e_addr(0))
    a(f"s_waitcnt vmcnt({0 if opt('nodma', 0) else 6})")
    a("s_barrier")
    stamp(a, 6)
    run(e_reads(GSP[0]))
    run(["s_waitcnt vmcnt(4)"] + b_reads(0, 0) + ["s_waitcnt lgkmcnt(0)"])
    dma_now(3, 0)
    for aa in range(4):
        run(unpack_valu(aa, 0))
    run([f"s_mov_b32 s{S_D}, 1", f"s_cmp_lt_u32 s{S_D}, s{S_NS}", "s_cbranch_scc0 I_w"] + W0_FETCH + [W0_REP[1]])
    a("s_branch I_b")
    run(["I_w:"] + WRAP + W0_FETCH + [W0_REP[0], "I_b:"])
    run([x_addr(q) for q in range(4)])
    run(["s_waitcnt vmcnt(4)"] + b_reads(1, 1))
    run(gb(0, 0, 0) + gb(0, 1, 0) + gb(0, 2, 0) + gb(0, 3, 0) + gb(2, 0, 0) + gb(2, 1, 0))
    if PROF == 6:
        a("s_mov_b32 s62, 0")
        a("s_mov_b32 s80, 0")
        a(f"s_mov_b32 s{S_PROF+14}, 0")
    if PROF == 4:
        a("s_memrealtime s[80:81]" if opt("rt", 0) else "s_memtime s[80:81]")
        a("s_mov_b32 s96, 0")
        a("v_mov_b32 v219, 0")
    a("s_waitcnt lgkmcnt(0)")
    dma_now(0, 1)
    load_w(a, 0)
    if opt("prio", 3) == 3:
        pat = opt("pat", "110100000000")
        a(f"s_mov_b32 s{S_PAT}, {int(pat[::-1], 2)}")
        a(f"s_cmp_eq_u32 s{S_NNW}, 7")
        a(f"s_cmov_b32 s{S_PAT}, {int(opt('pat7', '11010100000000')[::-1], 2)}")
        a(f"s_setprio {2 * int(pat[0])}")
    if opt("prio", 3) in (1, 3):
        a(f"s_cmp_lt_u32 s{S_WAVE}, 4")
        a("s_cbranch_scc1 I_p")
        a("s_setprio 1")
        a.label("I_p")
    goto_next(a, 0, "f", 0)


def epilogue(a, rho, p1, cold):
    tag = f"EP{rho}{p1}"
    a.label(tag)
    if PROF == 6:
        a("s_memtime s[80:81]")
    order = [P2[0], P0, P3[0], P2[2], P2[1], P4[2], P4[1], P3[1], P3[2], P1, P4[0]]
    book = [f"s_mul_i32 s55, s{S_NODE}, {P_NODE}",
            f"s_add_u32 s55, s55, s{S_POFF}",
            f"s_add_u32 s{S_NODE}, s{S_NODE}, 1",
            f"s_cmp_lt_u32 s{S_NODE}, s{S_NEND}",
            f"s_cselect_b32 s56, s{S_NODE}, -2",
            f"s_cselect_b32 s{S_NODE}, s{S_NODE}, s{S_NODE0}",
            *node_steps(S_NODE),
            *([f"s_lshl1_add_u32 s54, s{S_REM}, 2", f"s_sub_u32 s{S_LEFT}, s{S_LEFT}, s54"]
              if opt("prio", 3) == 2 else []),
            f"s_cmp_ge_u32 s56, s{S_EVT}"]
    if opt("prio", 3) == 2:
        a(f"v_mov_b32 v{B1+12}, s{S_PADR}")
        a(f"v_mov_b32 v{B1+13}, s{S_LEFT}")
        a(f"ds_wrxchg_rtn_b32 v{B1+14}, v{B1+12}, v{B1+13}")
    EPP = opt("epp", 2)

    def pattern_prio():
        if EPP:
            a("s_setprio 1")
        a(f"s_cmp_lt_u32 s{S_WAVE}, 4")
        a(f"s_cbranch_scc0 {tag}_p")
        a(f"s_lshr_b32 s{S_PAT}, s{S_PAT}, 1")
        a(f"s_bitcmp1_b32 s{S_PAT}, 0")
        a("s_setprio 0")
        a(f"s_cbranch_scc0 {tag}_p")
        a("s_setprio 2")
        a.label(f"{tag}_p")

    EG = opt("eg", 0)
    if opt("prio", 3) == 3:
        if EG:
            a(f"s_cmp_ge_u32 s{S_NODE}, s{S_EGN}")
            a(f"s_cbranch_scc1 {tag}_eg")
            cold += [f"{tag}_eg:",
                     f"s_sub_u32 s54, s{S_NS}, s{S_D}",
                     f"s_cmp_ge_u32 s{S_TAB0}, {2*XHALF}",
                     "s_cselect_b32 s54, 0, s54",
                     f"s_lshr_b32 s57, s{S_WAVE}, 2",
                     "s_lshl1_add_u32 s54, s54, s57",
                     "s_add_u32 s54, s54, 2",
                     f"s_and_b32 s57, s{S_WAVE}, 3",
                     f"s_lshl2_add_u32 s57, s57, {L_CNT + 240}",
                     f"v_mov_b32 v{B1+12}, s57",
                     f"v_mov_b32 v{B1+13}, s54",
                     f"ds_wrxchg_rtn_b32 v{B1+14}, v{B1+12}, v{B1+13}",
                     "s_waitcnt lgkmcnt(0)",
                     f"v_readfirstlane_b32 s57, v{B1+14}",
                     "s_cmp_eq_u32 s57, 0",
                     "s_cselect_b32 s57, 1000, s57",
                     "s_xor_b32 s55, s57, s54",
                     "s_bitcmp1_b32 s55, 0",
                     "s_cselect_b32 s55, 1, 0",
                     "s_cmp_eq_u32 s57, 1000",
                     "s_cselect_b32 s55, 1, s55",
                     "s_cmp_eq_u32 s55, 0",
                     f"s_cbranch_scc1 {tag}_p",
                     "s_cmp_gt_u32 s54, s57",
                     "s_setprio 0",
                     f"s_cbranch_scc0 {tag}_p",
                     "s_setprio 3",
                     f"s_branch {tag}_p"]
        if EPP:
            a(f"s_setprio {3 if EPP == 1 else 0}")
        else:
            pattern_prio()
    if opt("prio", 3) == 1:
        a(f"s_cmp_lt_u32 s{S_WAVE}, 4")
        a(f"s_cbranch_scc0 {tag}_p")
        a(f"s_setprio {2 if int(opt('prpat', '110110')[2 * rho + p1]) else 0}")
        a.label(f"{tag}_p")
    fb = []
    if opt("prio", 3) == 2:
        fb = ["s_waitcnt lgkmcnt(0)",
              f"v_readfirstlane_b32 s57, v{B1+14}",
              f"s_xor_b32 s54, s57, s{S_LEFT}",
              "s_bitcmp1_b32 s54, 0",
              f"s_cbranch_scc0 {tag}_p",
              f"s_cmp_gt_u32 s{S_LEFT}, s57",
              "s_setprio 0",
              f"s_cbranch_scc0 {tag}_p",
              "s_setprio 2",
              f"{tag}_p:"]
    eo = opt("eo", 1)
    groups = [order[i:i + eo] for i in range(0, len(order), eo)] if opt("noep", 0) < 2 else []
    for grp in groups:
        for r in range(0 if opt("noep", 0) else 4):
            for t in grp:
                for cq in range(2):
                    d, w = acc(t, cq), WR + 4 * (2 * TPATH[t] + cq)
                    if r == 0:
                        a(f"v_mul_f32 v{d}, v{d}, v{w}")
                    else:
                        a(f"v_fmac_f32 v{d}, v{d+r}, v{w+r}")
        for t in grp:
            n = "-" if t == P4[2] else ""
            a(f"v_cvt_pk_bf16_f32 v{B1+t}, {n}v{acc(t,0)}, {n}v{acc(t,1)}")
            if t == P0:
                a(f"v_mov_b32 v{B1+11}, 0")
            if t == P3[0]:
                for l in fb:
                    a(l)
        if P1 in grp:
            a(f"v_mfma_f32_16x16x32_bf16 {vr(20,4)}, {vr(SEL,4)}, {vr(B1+4,4)}, 0")
    if opt("prio", 3) == 3 and EPP:
        pattern_prio()
    a(book[0])
    a(f"v_mfma_f32_16x16x32_bf16 {vr(16,4)}, {vr(SEL,4)}, {vr(B1,4)}, 0")
    a(f"v_mfma_f32_16x16x32_bf16 {vr(24,4)}, {vr(SEL,4)}, {vr(B1+8,4)}, 0")
    a(f"v_cvt_pk_bf16_f32 v65, v20, v21")
    for l in book[1:]:
        a(l)
    a(f"buffer_store_dword v65, v{POFF}, s[{R_P}:{R_P+3}], s55 offen offset:256{PPOL}")
    for i in (0, 2):
        a(f"v_cvt_pk_bf16_f32 v{64+i}, v{16+4*i}, v{17+4*i}")
    for i in (0, 2):
        a(f"buffer_store_dword v{64+i}, v{POFF}, s[{R_P}:{R_P+3}], s55 offen offset:{256*i}{PPOL}")
    if opt("egx", 0):
        a("s_cselect_b32 s57, 1, 0")
        a(f"s_cmp_lg_u32 s{S_PHASE}, 0")
        a(f"s_cbranch_scc1 {tag}_noeg")
        for i in range(2):
            a("v_mul_lo_u32 v218, v218, s97")
            a("v_add_u32 v218, 12345, v218")
            a("v_mul_hi_u32 v67, v218, s96")
            a("v_lshlrev_b32 v67, 5, v67")
            a(f"s_mov_b32 m0, {L_DUMMY}")
            a(f"buffer_load_dword v67, s[92:95], 0 offen{['', ' nt', ' sc1'][opt('egx', 0) - 1]} lds")
        a.label(f"{tag}_noeg")
        a("s_cmp_lg_u32 s57, 0")
    if PROF == 6:
        a("s_memtime s[62:63]")
    a(f"s_cbranch_scc1 {tag}_evt")
    a.label(f"{tag}_go")
    goto_next(a, rho, "f", p1, True)
    c = Asm()
    c.label(f"{tag}_evt")
    c("s_cmp_eq_u32 s56, -2")
    c(f"s_cbranch_scc1 {tag}_end")
    c(f"s_mov_b32 s{S_EVT}, -2")
    c("s_and_b32 s54, s2, 31")
    c("s_lshl_b32 s54, s54, 3")
    c(f"s_add_u32 s54, s54, s{S_WAVE}")
    c(f"s_mul_i32 s54, s54, {98*128}")
    c(f"s_add_u32 s54, s54, {XHALF + XBIAS}")
    c(f"v_lshlrev_b32 v67, 7, v{LANE}")
    c(f"s_mov_b32 m0, {L_DUMMY}")
    if opt("pfm", 64) < 64:
        c(f"s_bfm_b64 exec, {opt('pfm', 64)}, 0")
    c(f"buffer_load_dword v67, s[{R_XP}:{R_XP+3}], s54 offen lds")
    c("s_mov_b64 exec, -1")
    c(f"s_branch {tag}_go")
    c.label(f"{tag}_end")
    c(f"s_cmp_lg_u32 s{S_PHASE}, 0")
    c("s_cbranch_scc1 TAIL")
    if PROF not in (6, 7):
        stamp(c, 7, late=True)
    c(f"s_mov_b32 s{S_EVT}, -2")
    if opt("otlb", 0):
        c("v_mov_b32 v67, 0")
        c(f"s_mov_b32 m0, {L_DUMMY}")
        c(f"buffer_load_dword v67, s[{R_OUT}:{R_OUT+3}], 0 offen lds")
    if opt("eg", 0):
        c(f"s_sub_u32 s{S_EGN}, s{S_NEND}, {opt('eg', 0) + 1}")
        c(f"s_max_i32 s{S_EGN}, s{S_EGN}, 0")
    c(f"s_mov_b32 s{S_PHASE}, 1")
    c(f"s_mov_b32 s{S_POFF}, {P_HALF}")
    load_w(c, 1)
    c(f"s_branch {tag}_go")
    cold += c.lines


NREP = opt("nrep", 16)
WS_FLAG = 0x60000


def get_nonce(a, tag):
    a("s_mov_b32 s62, 0x100000")
    a("v_mov_b32 v111, 0")
    a.label(f"{tag}_l")
    a(f"buffer_load_dword v110, v111, s[{R_DBG}:{R_DBG+3}], 0 offen sc1")
    a("s_sub_u32 s62, s62, 1")
    a(f"s_cbranch_scc1 {tag}_d")
    a("s_waitcnt vmcnt(0)")
    a(f"v_readfirstlane_b32 s{S_TAG}, v110")
    a(f"s_cmp_eq_u32 s{S_TAG}, 0")
    a(f"s_cbranch_scc1 {tag}_l")
    a.label(f"{tag}_d")


def signal(a, which, tag, wave=0):
    a(f"s_cmp_lg_u32 s{S_WAVE}, {wave}")
    a(f"s_cbranch_scc1 {tag}")
    a(f"s_cmp_lg_u32 s{S_TAG}, 0")
    a(f"s_cbranch_scc1 {tag}_n_d")
    get_nonce(a, tag + "_n")
    a("v_and_b32 v111, 63, v0")
    a("v_lshlrev_b32 v111, 10, v111")
    a(f"v_mov_b32 v110, s{S_TAG}")
    a("s_lshl_b32 s62, s2, 2")
    a(f"s_add_u32 s62, s62, {which * NREP * 1024}")
    a(f"s_bfm_b64 exec, {NREP}, 0")
    a(f"buffer_store_dword v110, v111, s[{R_FLG}:{R_FLG+3}], s62 offen sc1")
    a("s_mov_b64 exec, -1")
    a.label(tag)


def flag_load(a, which, mask=None):
    if opt("repx", 0):
        a(f"s_lshr_b32 s62, s2, {8 - (NREP - 1).bit_length()}")
    else:
        a(f"s_and_b32 s62, s2, {NREP - 1}")
    a("s_lshl_b32 s62, s62, 10")
    a(f"s_add_u32 s62, s62, {which * NREP * 1024}")
    a(f"v_lshlrev_b32 v111, 4, v{LANE}")
    if mask:
        a(f"s_mov_b64 exec, {mask}")
    a(f"buffer_load_dwordx4 v[112:115], v111, s[{R_FLG}:{R_FLG+3}], s62 offen sc1")
    if mask:
        a("s_mov_b64 exec, -1")


def flag_test(a):
    a(f"v_xor_b32 v112, s{S_TAG}, v112")
    a(f"v_xor_b32 v113, s{S_TAG}, v113")
    a(f"v_xor_b32 v114, s{S_TAG}, v114")
    a(f"v_xor_b32 v115, s{S_TAG}, v115")
    a("v_or3_b32 v112, v112, v113, v114")
    a("v_or_b32 v112, v112, v115")
    a("v_cmp_ne_u32 vcc, 0, v112")
    a("s_cmp_eq_u64 vcc, 0")


def poll(a, which, tag):
    a(f"s_cmp_lg_u32 s{S_WAVE}, 0")
    a(f"s_cbranch_scc1 {tag}_d")
    a("s_mov_b32 s61, 0x100000")
    a.label(f"{tag}_l")
    flag_load(a, which)
    a("s_sub_u32 s61, s61, 1")
    a(f"s_cbranch_scc1 {tag}_d")
    a("s_waitcnt vmcnt(0)")
    flag_test(a)
    a(f"s_cbranch_scc1 {tag}_d")
    if opt("slp", 0):
        a(f"s_sleep {opt('slp', 0)}")
    a(f"s_branch {tag}_l")
    a.label(f"{tag}_d")


def part1(a):
    NT, ST = " nt", " sc1"
    D, SRC, RH, X, BA, RK, DL = 4, 12, 20, 32, 48, 56, 64
    a("s_load_dwordx8 s[4:11], s[0:1], 0")
    a("s_load_dwordx8 s[52:59], s[0:1], 32")
    a("s_load_dwordx4 s[12:15], s[0:1], 80")
    a("v_lshlrev_b32 v1, 4, v0")
    a("v_mul_u32_u24 v2, 24, v0")
    a("v_and_b32 v3, 63, v0")
    a("v_lshlrev_b32 v3, 4, v3")
    a("v_lshrrev_b32 v72, 6, v0")
    a(f"v_readfirstlane_b32 s{S_WAVE}, v72")
    a("s_mul_i32 s60, s2, 12800")
    a("s_mul_i32 s61, s2, 19200")
    a("s_mul_i32 s62, s2, 25600")
    a("s_mul_i32 s63, s2, 102400")
    a("s_mul_i32 s64, s2, 38400")
    a("s_lshl_b32 s65, s2, 10")
    a("s_mov_b32 s66, 8192")
    a("s_waitcnt lgkmcnt(0)")
    srd(a, R_DBG, 12, 0, 256)
    srd(a, R_FLG, 14, WS_FLAG, 2 * NREP * 1024)
    a(f"v_and_b32 v{LANE}, 63, v0")
    a(f"s_or_b32 s74, s2, s{S_WAVE}")
    a("s_cbranch_scc1 P1_notag")
    a("s_memrealtime s[74:75]")
    a("s_waitcnt lgkmcnt(0)")
    a("s_or_b32 s74, s74, 1")
    a("v_mov_b32 v110, s74")
    a("v_mov_b32 v111, 0")
    a("s_mov_b64 exec, 1")
    a(f"buffer_store_dword v110, v111, s[{R_DBG}:{R_DBG+3}], 0 offen sc1")
    a("s_mov_b64 exec, -1")
    a.label("P1_notag")
    a(f"s_mov_b32 s{S_TAG}, 0")
    a("s_cmp_ge_u32 s2, 250")
    a("s_cbranch_scc1 P1_prep")
    if opt("cpf", 2) & 8:
        a("s_getpc_b64 s[36:37]")
        a.label("P1_here2")
        a("s_mov_b32 s38, K2_end-P1_here2")
        a("s_mov_b32 s39, 0x20000")
        a("v_lshlrev_b32 v60, 7, v0")
        a("s_and_b32 s75, s2, 31")
        a("s_cbranch_scc1 P1_nocp")
        a("buffer_load_dword v61, v60, s[36:39], 0 offen")
        a.label("P1_nocp")
    srd(a, 16, 52, "s60", 12800)
    a(f"buffer_load_dwordx4 {vr(D,4)}, v1, s[16:19], 0 offen{NT}")
    a(f"buffer_load_dwordx4 {vr(D+4,4)}, v1, s[16:19], s66 offen{NT}")
    a("v_lshlrev_b32 v73, 2, v0")
    a("v_mov_b32 v74, 0")
    a(f"s_cmp_ge_u32 s{S_WAVE}, 4")
    a("s_cbranch_scc1 P1_nozero")
    a(f"v_add_u32 v73, {K1_HIST}, v73")
    a("ds_write_b32 v73, v74")
    a.label("P1_nozero")
    srd(a, 20, 10, "s60", 12800)
    srd(a, 24, 6, "s61", 19200)
    srd(a, 28, 4, "s62", 25600)
    srd(a, 32, 8, "s63", 102400)
    a("s_mov_b32 s69, 12288")
    a(f"s_lshl_b32 s67, s{S_WAVE}, 10")
    a("s_waitcnt lgkmcnt(0)")
    a("s_barrier")
    a(f"buffer_load_dwordx4 {vr(SRC,4)}, v1, s[20:23], 0 offen{NT}")
    a(f"buffer_load_dwordx4 {vr(SRC+4,4)}, v1, s[20:23], s66 offen{NT}")
    for r, so in ((0, "0"), (1, "s69")):
        a(f"buffer_load_dwordx4 {vr(RH+6*r,4)}, v2, s[24:27], {so} offen{NT}")
        a(f"buffer_load_dwordx2 {vr(RH+6*r+4,2)}, v2, s[24:27], {so} offen offset:16{NT}")
    a("s_mov_b32 s68, 0")
    for k in range(4):
        a(f"buffer_load_dwordx4 {vr(X+4*k,4)}, v1, s[28:31], s68 offen{NT}")
        a("s_add_u32 s68, s68, 8192")
    kb = [int(c, 16) for c in opt("kb", "d000")]

    def e_in(i):
        for k in range(sum(kb[:i]), sum(kb[:i + 1])):
            if k == 12:
                a(f"s_cmp_ge_u32 s{S_WAVE}, 4")
                a("s_cbranch_scc1 P1_noe13")
            a("s_mov_b32 m0, s67")
            a(f"buffer_load_dwordx4 v3, s[32:35], s67 offen{NT} lds")
            a("s_add_u32 s67, s67, 8192")
            if k == 12:
                a.label("P1_noe13")

    def n_e(i):
        return min(sum(kb[:i + 1]), 12)

    e_in(0)
    a("s_add_u32 s68, s64, %d" % WS_META)
    srd(a, 36, 14, "s68", 38400)
    a("s_add_u32 s68, s63, %d" % WS_EP)
    srd(a, 40, 14, "s68", 102400)
    srd(a, 44, 14, WS_XP, 2 * XHALF)
    srd(a, 48, 14, "s65", 1024)
    a("v_cmp_gt_u32 vcc, 288, v0")
    a("s_mov_b64 s[70:71], vcc")
    a("v_mov_b32 v75, 1")
    a(f"s_waitcnt vmcnt({10 + n_e(0)})")
    stamp(a, 2, k1=True)
    for i in range(8):
        if i == 4:
            a("s_mov_b64 exec, s[70:71]")
            a("s_cbranch_execz P1_skip_rank")
        a(f"v_mul_u32_u24 v{BA+i}, 21400, v{D+i}")
        a(f"v_lshrrev_b32 v{BA+i}, 20, v{BA+i}")
        a(f"v_mul_u32_u24 v{DL+i}, 49, v{BA+i}")
        a(f"v_sub_u32 v{DL+i}, v{D+i}, v{DL+i}")
        a(f"v_lshlrev_b32 v{BA+i}, 2, v{BA+i}")
        a(f"v_add_u32 v{BA+i}, {K1_HIST}, v{BA+i}")
        a(f"ds_add_rtn_u32 v{RK+i}, v{BA+i}, v75")
    a.label("P1_skip_rank")
    a("s_mov_b64 exec, -1")
    a("s_waitcnt lgkmcnt(0)")
    a("s_barrier")
    a(f"s_cmp_lg_u32 s{S_WAVE}, 0")
    a("s_cbranch_scc1 P1_noscan")
    a(f"v_add_u32 v73, {K1_HIST}, v3")
    a("ds_read_b128 v[76:79], v73")
    a("s_waitcnt lgkmcnt(0)")
    a("v_add_u32 v81, v76, v77")
    a("v_add_u32 v82, v81, v78")
    a("v_add_u32 v83, v82, v79")
    a("v_mov_b32 v84, v83")
    scan64(a, 84)
    a("v_sub_u32 v84, v84, v83")
    a("v_add_u32 v85, v84, v76")
    a("v_add_u32 v86, v84, v81")
    a("v_add_u32 v87, v84, v82")
    a("ds_write_b128 v73, v[84:87]")
    for i in range(4):
        a(f"v_lshl_or_b32 v{88+i}, v{76+i}, 16, v{84+i}")
    a(f"buffer_store_dwordx4 v[88:91], v3, s[48:51], 0 offen{ST}")
    a("s_waitcnt lgkmcnt(0)")
    a.label("P1_noscan")
    e_in(1)
    a("v_lshrrev_b32 v92, 5, v0")
    a("s_mul_i32 s69, s2, 50")
    a("v_add_u32 v92, s69, v92")
    a("v_lshlrev_b32 v92, 8, v92")
    a("v_bfe_u32 v93, v0, 3, 2")
    a("v_lshl_add_u32 v92, v93, 6, v92")
    a("v_and_b32 v93, 3, v0")
    a("v_lshl_add_u32 v92, v93, 4, v92")
    a("v_bfe_u32 v93, v0, 2, 1")
    a(f"v_mul_u32_u24 v93, {XHALF}, v93")
    a("v_add_u32 v92, v92, v93")
    a("v_cmp_gt_u32 vcc, 64, v0")
    a("v_mov_b32 v94, 0x80000000")
    a("v_cndmask_b32 v93, v94, v92, vcc")
    a("s_mov_b32 s72, 0x80000000")
    a("s_mov_b32 s73, 0xffff0000")
    a("v_lshlrev_b32 v95, 2, v0")
    a("s_barrier")
    for r in range(2):
        if r == 1:
            a("s_mov_b64 exec, s[70:71]")
            a("s_cbranch_execz P1_skip_scatter")
        for i in range(4):
            a(f"ds_read_b32 v{BA+4*r+i}, v{BA+4*r+i}")
        if r == 0:
            a(f"s_waitcnt vmcnt({4 + n_e(1)})")
        R = RH + 6 * r
        for i in range(4):
            a(f"v_lshl_or_b32 v{SRC+4*r+i}, v{SRC+4*r+i}, 8, v{DL+4*r+i}")
            a(f"v_or_b32 v{SRC+4*r+i}, s72, v{SRC+4*r+i}")
        a(f"v_lshlrev_b32 v76, 16, v{R+1}")
        a(f"v_alignbit_b32 v77, v{R+2}, v{R+1}, 16")
        a(f"v_and_b32 v78, s73, v{R+2}")
        a(f"v_lshlrev_b32 v79, 16, v{R+4}")
        a(f"v_alignbit_b32 v80, v{R+5}, v{R+4}, 16")
        a(f"v_and_b32 v81, s73, v{R+5}")
        w1 = [R, 77, R + 3, 80]
        w2 = [76, 78, 79, 81]
        a("s_waitcnt lgkmcnt(0)")
        for i in range(4):
            b, k = BA + 4 * r + i, RK + 4 * r + i
            a(f"v_add_u32 v{k}, v{k}, v{b}")
            a(f"v_mul_u32_u24 v{b}, 12, v{k}")
            a(f"v_add_u32 v{b}, {K1_MS}, v{b}")
            a(f"ds_write2_b32 v{b}, v{SRC+4*r+i}, v{w1[i]} offset0:0 offset1:1")
            a(f"ds_write_b32 v{b}, v{w2[i]} offset:8")
            a(f"v_lshlrev_b32 v{k}, 1, v{k}")
            a(f"v_add_u32 v{k}, {K1_INV}, v{k}")
            a(f"v_add_u32 v{82+i}, {2048*r + i}, v95")
            a(f"ds_write_b16 v{k}, v{82+i}")
    a.label("P1_skip_scatter")
    a("s_mov_b64 exec, -1")
    a(f"s_waitcnt vmcnt({n_e(1)})")
    a("s_mov_b32 s68, 0")
    for k in range(4):
        a(f"buffer_store_dwordx4 {vr(X+4*k,4)}, v{92 if k < 3 else 93}, s[44:47], s68 offen{ST}")
        a("s_add_u32 s68, s68, 4096")
    e_in(2)
    a("s_waitcnt lgkmcnt(0)")
    a("s_barrier")
    stamp(a, 4, k1=True)
    a(f"v_add_u32 v73, {K1_MS}, v1")
    for k in range(5):
        a(f"ds_read_b128 {vr(4+4*k,4)}, v73 offset:{8192*k}")
    a("v_and_b32 v74, 0x1fe, v0")
    a(f"v_add_u32 v74, {K1_INV}, v74")
    a("s_mov_b32 s68, 0")
    for k in range(5):
        a(f"s_waitcnt lgkmcnt({4-k})")
        a(f"buffer_store_dwordx4 {vr(4+4*k,4)}, v1, s[36:39], s68 offen{ST}")
        a("s_add_u32 s68, s68, 8192")
    for k in range(13):
        a(f"ds_read_u16 v{48+k}, v74 offset:{512*k}")
    a("v_mov_b32 v111, 0")
    a(f"buffer_load_dword v110, v111, s[{R_DBG}:{R_DBG+3}], 0 offen sc1")
    e_in(3)
    a("v_and_b32 v75, 1, v0")
    a("v_lshlrev_b32 v75, 4, v75")
    a("s_waitcnt lgkmcnt(0)")
    for k in range(13):
        a(f"v_lshl_add_u32 v{48+k}, v{48+k}, 5, v75")
    if opt("siga", 0) == 3:
        a(f"s_waitcnt vmcnt({12 - n_e(2)})")
        a(f"v_readfirstlane_b32 s{S_TAG}, v110")
        a("s_barrier")
        stamp(a, 6, k1=True)
        signal(a, 0, "P1_sa", wave=7)
    a("s_waitcnt vmcnt(0)")
    if opt("siga", 0) == 0:
        a(f"v_readfirstlane_b32 s{S_TAG}, v110")
    a("s_barrier")
    if opt("siga", 0) == 0:
        stamp(a, 6, k1=True)
        signal(a, 0, "P1_sa", wave=7)
    for k in range(12):
        a(f"ds_read_b128 {vr(128+4*k,4)}, v{48+k}")
    a("s_mov_b32 s68, 0")
    for k in range(12):
        a(f"s_waitcnt lgkmcnt({11-k})")
        a(f"buffer_store_dwordx4 {vr(128+4*k,4)}, v1, s[40:43], s68 offen{ST}")
        a("s_add_u32 s68, s68, 8192")
    a(f"s_cmp_ge_u32 s{S_WAVE}, 4")
    a("s_cbranch_scc1 P1_fin" if opt("siga", 0) in (0, 3) else "s_cbranch_scc1 P1_fin2")
    a("ds_read_b128 v[176:179], v60")
    a("s_waitcnt lgkmcnt(0)")
    a(f"buffer_store_dwordx4 v[176:179], v1, s[40:43], s68 offen{ST}")
    a("s_branch P1_fin" if opt("siga", 0) in (0, 3) else "s_branch P1_fin2")

    if opt("siga", 0) == 1:
        a.label("P1_fin2")
        signal(a, 0, "P1_sa")
        a(f"s_cmp_lg_u32 s{S_WAVE}, 0")
        a("s_cbranch_scc1 P1_fin")
        a("s_waitcnt vmcnt(1)")
        a("s_branch P1_fin3")
    if opt("siga", 0) == 2:
        a.label("P1_fin2")
        a("s_waitcnt vmcnt(0)")
        a("s_barrier")
        stamp(a, 8, k1=True)
        signal(a, 0, "P1_sa")
        a("s_branch P1_fin4")
    a.label("P1_prep")
    if opt("cpf", 2) & 2:
        a("s_getpc_b64 s[36:37]")
        a.label("P1_here")
        a("s_mov_b32 s38, K2_end-P1_here")
        a("s_mov_b32 s39, 0x20000")
        a("v_lshlrev_b32 v60, 7, v0")
        a("buffer_load_dword v61, v60, s[36:39], 0 offen")
    a("s_cmp_eq_u32 s2, 255")
    a("s_cbranch_scc1 P1_prepd")
    srd(a, 16, 54, 0, 16 * 320 * 2)
    srd(a, 20, 56, 0, 128 * 64 * 2)
    srd(a, 24, 58, 0, 192 * 64 * 2)
    srd(a, 28, 14, WS_WTAB, 20480)
    srd(a, 32, 14, WS_WSI, 40960)
    a("s_sub_u32 s60, s2, 250")
    a("s_lshl_b32 s60, s60, 10")
    for it in range(2):
        prep_tables(a, ST)
        a("s_add_u32 s60, s60, 512")
    a.label("P1_prepd")
    a("s_waitcnt vmcnt(0)")
    a("s_barrier")
    signal(a, 0, "P1_sa2")
    a.label("P1_fin")
    a("s_waitcnt vmcnt(0)")
    a.label("P1_fin3")
    a("s_barrier")
    stamp(a, 8, k1=True)
    a.label("P1_fin4")
    signal(a, 1, "P1_sb")


BAL = opt("bal", 1)


def meta_set_addresses(a):
    a(f"v_lshrrev_b32 v164, 4, v{LANE}")
    a("v_lshlrev_b32 v164, 2, v164")
    a(f"v_bfe_u32 v165, v{LANE}, 2, 1")
    a("v_lshl_add_u32 v160, v165, 5, v164")
    a(f"v_bfe_u32 v165, v{LANE}, 1, 1")
    a("v_lshl_add_u32 v160, v165, 4, v160")
    a("v_lshl_add_u32 v161, v165, 5, v164")
    a(f"v_and_b32 v165, 1, v{LANE}")
    a("v_lshl_add_u32 v160, v165, 1, v160")
    a("v_lshl_add_u32 v161, v165, 4, v161")
    a(f"v_bfe_u32 v165, v{LANE}, 3, 1")
    a("v_add_u32 v160, v160, v165")
    a(f"v_bfe_u32 v165, v{LANE}, 2, 2")
    a("v_add_u32 v161, v161, v165")
    a(f"v_mov_b32 v162, {L_SB}")
    a(f"v_mov_b32 v163, {L_SA}")
    a("v_lshl_add_u32 v160, v160, 2, v163")
    a("v_lshl_add_u32 v161, v161, 3, v162")


def balanced_partition(a):
    L = LANE
    a("v_add_u32 v14, 31, v14")
    a("v_lshrrev_b32 v14, 5, v14")
    a("v_max_u32 v14, 1, v14")
    a(f"v_cmp_gt_u32 s[60:61], s{S_NN}, v{L}")
    a("v_cndmask_b32 v14, 0, v14, s[60:61]")
    a("v_cmp_lt_u32 vcc, 2, v14")
    a("s_andn2_b64 s[60:61], s[60:61], vcc")
    a("s_bcnt1_i32_b64 s62, vcc")
    a("s_bcnt1_i32_b64 s63, s[60:61]")
    a("v_mbcnt_lo_u32_b32 v32, vcc_lo, 0")
    a("v_mbcnt_hi_u32_b32 v32, vcc_hi, v32")
    a("v_mov_b32 v33, s62")
    a("v_mbcnt_lo_u32_b32 v33, s60, v33")
    a("v_mbcnt_hi_u32_b32 v33, s61, v33")
    a("v_cndmask_b32 v32, v33, v32, vcc")
    a(f"v_cmp_gt_u32 vcc, s{S_NN}, v{L}")
    a(f"v_cndmask_b32 v32, v{L}, v32, vcc")
    a("v_lshlrev_b32 v32, 2, v32")
    a(f"v_lshl_or_b32 v33, v{L}, 8, v14")
    a("ds_permute_b32 v34, v32, v33")
    a(f"v_mad_u32_u24 v36, v{L}, s{S_NN}, 7")
    a("v_lshrrev_b32 v36, 3, v36")
    a("s_mul_i32 s58, s62, 10")
    a(f"s_mul_i32 s59, s{S_NN}, 26")
    a("s_add_u32 s58, s58, s59")
    a(f"v_mad_u32_u24 v37, v{L}, s58, 40")
    a("v_mul_u32_u24 v40, 208, v36")
    a("v_sub_u32 v37, v37, v40")
    a("v_max_i32 v37, 0, v37")
    a("v_mul_u32_u24 v37, 3277, v37")
    a("v_lshrrev_b32 v37, 18, v37")
    a("v_subrev_u32 v40, s63, v36")
    a("v_max_i32 v37, v37, v40")
    a("v_min_u32 v37, s62, v37")
    a("v_min_u32 v37, v37, v36")
    for sh in (1, 2, 4, 8):
        a(f"v_max_u32_dpp v37, v37, v37 row_shr:{sh} row_mask:0xf bank_mask:0xf bound_ctrl:1")
    a("v_sub_u32 v40, v36, v37")
    for sh in (1, 2, 4, 8):
        a(f"v_max_u32_dpp v40, v40, v40 row_shr:{sh} row_mask:0xf bank_mask:0xf bound_ctrl:1")
    a("v_sub_u32 v37, v36, v40")
    a("v_lshl_or_b32 v37, v36, 8, v37")
    a(f"s_cmp_eq_u32 s{S_NN}, {NPB}")
    a(f"s_mov_b32 s58, {-(-8*65536 // (N - 255*NPB))}")
    a(f"s_cmov_b32 s58, {-(-8*65536 // NPB)}")
    a(f"v_mul_u32_u24 v40, s58, v{L}")
    a("v_lshrrev_b32 v40, 16, v40")
    a("v_min_u32 v40, 7, v40")
    a("v_lshlrev_b32 v40, 2, v40")
    a("ds_bpermute_b32 v41, v40, v37")
    a("ds_bpermute_b32 v42, v40, v37 offset:4")
    a(f"s_and_b32 s60, s{S_WAVE}, 3")
    a("s_lshl_b32 s60, s60, 1")
    a(f"s_lshr_b32 s61, s{S_WAVE}, 2")
    a("s_add_u32 s59, s60, s61")
    a(f"s_mul_i32 s60, s59, s{S_NN}")
    a(f"s_add_u32 s61, s60, s{S_NN}")
    a("s_add_u32 s60, s60, 7")
    a("s_add_u32 s61, s61, 7")
    a(f"s_lshr_b32 s{S_NODE0}, s60, 3")
    a(f"s_lshr_b32 s{S_NEND}, s61, 3")
    a(f"s_sub_u32 s{S_NNW}, s{S_NEND}, s{S_NODE0}")
    a("s_waitcnt lgkmcnt(0)")
    a("v_lshrrev_b32 v43, 8, v41")
    PP = L
    if opt("mir", 1):
        PP = 33
        a("v_lshrrev_b32 v33, 8, v42")
        a("v_add3_u32 v33, v33, v43, -1")
        a(f"v_sub_u32 v33, v33, v{L}")
        a("v_and_b32 v40, 4, v40")
        a("v_cmp_eq_u32 vcc, 0, v40")
        a(f"v_cndmask_b32 v33, v33, v{L}, vcc")
    a("v_and_b32 v41, 0xff, v41")
    a("v_and_b32 v42, 0xff, v42")
    a(f"v_sub_u32 v43, v{PP}, v43")
    a("v_add_u32 v43, v43, v41")
    a(f"v_sub_u32 v40, v{PP}, v42")
    a("v_add_u32 v40, s62, v40")
    a("v_cmp_lt_u32 vcc, v43, v42")
    a("v_cndmask_b32 v40, v40, v43, vcc")
    a(f"v_cmp_gt_u32 vcc, s{S_NN}, v{L}")
    a(f"v_cndmask_b32 v40, v{L}, v40, vcc")
    a("v_lshlrev_b32 v40, 2, v40")
    a("ds_bpermute_b32 v41, v40, v34")
    a("s_waitcnt lgkmcnt(0)")
    a("v_and_b32 v14, 0xff, v41")
    a(f"v_subrev_u32 v{NST}, 1, v14")
    a(f"v_lshrrev_b32 v{NID}, 8, v41")
    a(f"v_lshlrev_b32 v41, 2, v{NID}")
    a("v_mov_b32 v19, v14")
    scan64(a, 19)
    a("v_sub_u32 v42, v19, v14")
    a("ds_permute_b32 v18, v41, v42")
    a("v_min_u32 v36, 63, v36")
    a("v_lshlrev_b32 v36, 2, v36")
    a("ds_bpermute_b32 v43, v36, v42")
    a("v_readlane_b32 s58, v19, 63")
    a("s_waitcnt lgkmcnt(0)")
    a("v_mov_b32 v40, v43")
    a("v_sub_u32_dpp v40, v43, v43 row_shl:1 row_mask:0xf bank_mask:0xf")
    a(f"v_readlane_b32 s{S_STEP0}, v43, s59")
    a(f"v_cmp_lt_u32 vcc, {MAXWSTEPS}, v40")
    a(f"v_readlane_b32 s{S_NS}, v40, s59")
    a("s_and_b32 s60, vcc_lo, 0xff")


def kernel2():
    a = Asm()
    a("s_cmp_ge_u32 s2, 256")
    a("s_cbranch_scc1 K2_end")
    if opt("xcdmap", 1) == 2:
        a("s_load_dwordx2 s[54:55], s[0:1], 80")
        a("s_getreg_b32 s58, hwreg(HW_REG_XCC_ID, 0, 3)")
        a("v_lshrrev_b32 v1, 6, v0")
        a("v_readfirstlane_b32 s3, v1")
        a(f"v_mov_b32 v3, {L_WSUM}")
        a("s_cmp_lg_u32 s3, 0")
        a("s_cbranch_scc1 CLAIMED")
        a("s_waitcnt lgkmcnt(0)")
        srd(a, 4, 54, 0, 256)
        a("s_mov_b64 exec, 1")
        a.label("CLAIM")
        a("v_mov_b32 v1, 1")
        a("s_lshl_b32 s59, s58, 5")
        a("v_mov_b32 v2, s59")
        a("buffer_atomic_add v1, v2, s[4:7], 0 offen sc0")
        a("s_add_u32 s58, s58, 1")
        a("s_and_b32 s58, s58, 7")
        a("s_waitcnt vmcnt(0)")
        a("v_readfirstlane_b32 s60, v1")
        a("s_cmp_ge_u32 s60, 32")
        a("s_cbranch_scc1 CLAIM")
        a("v_add_u32 v1, v1, v2")
        a("ds_write_b32 v3, v1")
        a("s_mov_b64 exec, -1")
        a.label("CLAIMED")
        a("s_waitcnt lgkmcnt(0)")
        a("s_barrier")
        a("ds_read_b32 v1, v3")
        a("s_waitcnt lgkmcnt(0)")
        a("v_readfirstlane_b32 s2, v1")
        a("s_and_b32 s2, s2, 255")
        a("s_barrier")
    if opt("xcdmap", 1) == 1:
        a("s_and_b32 s3, s2, 7")
        a("s_lshl_b32 s3, s3, 5")
        a("s_lshr_b32 s2, s2, 3")
        a("s_or_b32 s2, s2, s3")
    a(f"v_mov_b32 v{TID}, v0")
    a(f"s_mov_b32 s{S_R0}, 0")
    a(f"s_mov_b32 s{S_CAP}, {CAP}")
    stamp(a, 0, True)
    stamp(a, 1)
    if FUSED:
        part1(a)
        a(f"s_mov_b32 s{S_R0}, 0")
        a(f"s_mov_b32 s{S_CAP}, {CAP}")
        a("s_load_dwordx2 s[56:57], s[0:1], 88")
        a("s_load_dwordx2 s[54:55], s[0:1], 72")
        poll(a, 0, "POLL_A")
        a(f"v_mov_b32 v110, {L_DUMMY}")
        a(f"v_mov_b32 v111, s{S_TAG}")
        a(f"s_cmp_lg_u32 s{S_WAVE}, 0")
        a("s_cbranch_scc1 TAG_W")
        a("ds_write_b32 v110, v111")
        a("s_waitcnt lgkmcnt(0)")
        a.label("TAG_W")
        a("s_barrier")
        a("ds_read_b32 v111, v110")
        a("s_waitcnt lgkmcnt(0)")
        a(f"v_readfirstlane_b32 s{S_TAG}, v111")
        a("s_branch ROUND0")
    a.label("ROUND")
    a("s_load_dwordx2 s[56:57], s[0:1], 88")
    a("s_load_dwordx2 s[54:55], s[0:1], 72")
    a.label("ROUND0")
    a(f"v_and_b32 v2, 255, v{TID}")
    a("v_lshlrev_b32 v3, 10, v2")
    a(f"v_and_b32 v{LANE}, 63, v{TID}")
    a(f"v_lshrrev_b32 v1, 6, v{TID}")
    a(f"v_readfirstlane_b32 s{S_WAVE}, v1")
    a("s_lshl_b32 s58, s2, 2")
    a("s_cmp_eq_u32 s2, 255")
    a(f"s_cselect_b32 s{S_NN}, {N - 255*NPB}, {NPB}")
    a("s_waitcnt lgkmcnt(0)")
    srd(a, R_TB, 56, WS_TAB, W * 1024)
    DSH = opt("dsh", 1)
    if DSH:
        a(f"s_cmp_ge_u32 s{S_WAVE}, 4")
        a("s_cbranch_scc1 NODESC")
    a(f"buffer_load_dword v20, v3, s[{R_TB}:{R_TB+3}], s58 offen")
    if DSH:
        a.label("NODESC")
    if opt("cpf", 2) & 1:
        a("s_getpc_b64 s[60:61]")
        a.label("K2_here")
        a("s_mov_b32 s62, K2_end-K2_here")
        a("s_mov_b32 s63, 0x20000")
        a(f"v_lshlrev_b32 v21, 7, v{TID}")
        a("buffer_load_dword v75, v21, s[60:63], 0 offen")
    if PROF:
        a("s_mov_b64 s[98:99], s[56:57]")
    if opt("egx", 0):
        a("s_load_dwordx2 s[92:93], s[0:1], 16")
        a("s_mov_b32 s94, 25600000")
        a("s_mov_b32 s95, 0x20000")
        a("s_mov_b32 s96, 800000")
        a("s_mov_b32 s97, 1664525")
        a(f"v_lshrrev_b32 v218, 1, v{TID}")
        a("s_lshl_b32 s59, s2, 8")
        a("v_add_u32 v218, s59, v218")
        a("s_mov_b32 s59, 0x9E3779B1")
        a("v_mul_lo_u32 v218, v218, s59")
        a("s_waitcnt lgkmcnt(0)")
    srd(a, R_W, 56, WS_WTAB, 0x12000)
    srd(a, R_MT, 56, WS_META, E * 12)
    srd(a, R_EP, 56, WS_EP, E * 32)
    srd(a, R_XP, 56, WS_XP - XBIAS, 2 * XHALF + XBIAS)
    if opt("pf00", 0):
        a("s_and_b32 s59, s2, 31")
        a("s_lshl_b32 s59, s59, 3")
        a(f"s_add_u32 s59, s59, s{S_WAVE}")
        a(f"s_mul_i32 s59, s59, {98*128}")
        a(f"s_add_u32 s59, s59, {XBIAS}")
        a(f"v_lshlrev_b32 v76, 7, v{LANE}")
        if opt("pf00", 0) < 64:
            a(f"s_bfm_b64 exec, {opt('pf00', 0)}, 0")
        a(f"buffer_load_dword v77, v76, s[{R_XP}:{R_XP+3}], s59 offen")
        a("s_mov_b64 exec, -1")
    a(f"s_mul_i32 s59, s2, {P_WG}")
    a(f"s_add_u32 s59, s59, {WS_P}")
    srd(a, R_P, 56, "s59", 2 * P_HALF)
    a("s_lshl_b32 s59, s2, 16")
    a(f"s_add_u32 s59, s59, {WS_ACC}")
    srd(a, R_ACC, 56, "s59", 65536)
    a(f"s_mul_i32 s59, s2, {NPB*512}")
    a(f"s_lshl_b32 s60, s{S_NN}, 9")
    srd(a, R_OUT, 54, "s59", "s60")
    a(f"s_mul_i32 s{S_RB}, s{S_WAVE}, {RING_W}")
    a(f"s_add_u32 s{S_RB}, s{S_RB}, {L_RING}")
    a(f"s_mov_b32 s{S_HI}, 0xffff0000")
    a(f"s_mov_b32 s{S_SGN}, 0x80008000")
    L = LANE
    a(f"v_bfe_u32 v3, v{L}, 4, 1")
    a(f"v_and_b32 v4, 7, v{L}")
    a("v_lshlrev_b32 v5, 1, v3")
    a("v_xor_b32 v4, v4, v5")
    a("v_lshlrev_b32 v4, 4, v4")
    a(f"v_add_u32 v{XOFF}, {0x80000000 + XBIAS}, v4")
    a(f"v_add_u32 v{XOFF+1}, {0x80000000 + XBIAS - 1088}, v4")
    a(f"v_and_b32 v4, 3, v{L}")
    a(f"v_lshlrev_b32 v{QQ8}, 3, v4")
    a(f"v_bfe_u32 v5, v{L}, 3, 1")
    a("v_mul_u32_u24 v5, 1088, v5")
    a(f"v_lshrrev_b32 v6, 4, v{L}")
    a("v_lshl_add_u32 v5, v6, 8, v5")
    a(f"v_bfe_u32 v7, v{L}, 2, 1")
    a("v_lshl_add_u32 v5, v7, 7, v5")
    a(f"v_add_u32 v5, v5, v{QQ8}")
    a(f"v_add_u32 v5, s{S_RB}, v5")
    a("v_lshlrev_b32 v7, 5, v3")
    a(f"v_add_u32 v{BAE}, v5, v7")
    a(f"v_sub_u32 v{BAO}, v5, v7")
    a(f"v_and_b32 v7, 15, v{L}")
    a("v_lshlrev_b32 v8, 2, v7")
    a(f"v_lshl_add_u32 v{POFF}, v6, 6, v8")
    a("v_and_b32 v8, 1, v7")
    a("v_lshlrev_b32 v8, 4, v8")
    a("v_mov_b32 v9, 0x3f80")
    a("v_lshlrev_b32 v8, v8, v9")
    a("v_and_b32 v9, 14, v7")
    for i in range(4):
        a(f"v_cmp_eq_u32 vcc, {4*i}, v9")
        a(f"v_cndmask_b32 v{SEL+i}, 0, v8, vcc")
    a(f"v_lshlrev_b32 v6, 2, v{TID}")
    a("v_mov_b32 v7, 0")
    a(f"v_add_u32 v8, {L_MISC}, v6")
    a(f"v_cmp_gt_u32 vcc, 68, v{TID}")
    a("s_and_saveexec_b64 s[58:59], vcc")
    a("ds_write_b32 v8, v7")
    a(f"v_cmp_gt_u32 vcc, 8, v{TID}")
    a("s_and_b64 exec, exec, vcc")
    a("ds_write_b32 v6, v7")
    a("s_mov_b64 exec, -1")
    a(f"v_lshlrev_b32 v13, 4, v{TID}")
    a(f"v_add_u32 v13, {L_SA}, v13")
    for i in range(4):
        a(f"v_mov_b32 v{28+i}, 0")
    nz = MAXSTEPS * 384 // 16
    for k in range(6):
        a(f"ds_write_b128 v13, v[28:31] offset:{8192*k}")
    a(f"v_cmp_gt_u32 vcc, {nz - 6*512}, v{TID}")
    a("s_mov_b64 exec, vcc")
    a(f"ds_write_b128 v13, v[28:31] offset:{8192*6}")
    a("s_mov_b64 exec, -1")
    a("v_mul_u32_u24 v14, 3200, v2")
    a(f"v_lshrrev_b32 v15, 8, v{TID}")
    a("v_mov_b32 v16, 0x80000000")
    a(f"s_and_b32 s59, s{S_WAVE}, 3")
    a("v_lshlrev_b32 v22, 3, v2")
    a("v_add_u32 v22, 1024, v22")
    if DSH:
        a(f"s_cmp_ge_u32 s{S_WAVE}, 4")
        a("s_cbranch_scc1 NOSCAN")
    a(f"s_waitcnt vmcnt({(opt('cpf', 2) & 1) + (opt('pf00', 0) > 0)})")
    stamp(a, 2)
    a("v_lshrrev_b32 v9, 16, v20")
    a("v_mov_b32 v21, v9")
    scan64(a, 21)
    a("v_readlane_b32 s58, v21, 63")
    a("s_lshl_b32 s60, s59, 2")
    a(f"s_add_u32 s60, s60, {L_WSUM}")
    a("v_mov_b32 v12, s60")
    a("v_mov_b32 v13, s58")
    a("ds_write_b32 v12, v13")
    a("v_sub_u32 v21, v21, v9")
    if DSH:
        a("ds_write_b64 v22, v[20:21]")
        a.label("NOSCAN")
    a(f"v_mov_b32 v12, {L_WSUM}")
    a("s_waitcnt lgkmcnt(0)")
    a("s_barrier")
    a("ds_read_b128 v[16:19], v12")
    if DSH:
        a("ds_read_b64 v[20:21], v22")
    a("s_waitcnt lgkmcnt(0)")
    a("v_lshrrev_b32 v9, 16, v20")
    a("v_and_b32 v10, 0xffff, v20")
    a("v_add_u32 v14, v14, v10")
    a("v_mov_b32 v11, v21")
    for i in range(4):
        a(f"v_readfirstlane_b32 s{60+i}, v{16+i}")
    a("s_add_u32 s61, s61, s60")
    a("s_add_u32 s62, s62, s61")
    a(f"s_add_u32 s{S_T}, s63, s62")
    a("s_cmp_eq_u32 s59, 0")
    a("s_cselect_b32 s58, 0, s60")
    a("s_cmp_eq_u32 s59, 2")
    a("s_cselect_b32 s58, s61, s58")
    a("s_cmp_eq_u32 s59, 3")
    a("s_cselect_b32 s58, s62, s58")
    a("v_mov_b32 v16, 0x80000000")
    a(f"s_sub_u32 s{S_LEN}, s{S_T}, s{S_R0}")
    a(f"s_cmp_le_u32 s{S_LEN}, s{S_CAP}")
    a(f"s_cselect_b32 s{S_LAST}, 1, 0")
    a(f"s_min_u32 s{S_LEN}, s{S_LEN}, s{S_CAP}")
    a(f"s_sub_u32 s58, s58, s{S_R0}")
    a("v_add_u32 v11, s58, v11")
    a("v_sub_u32 v12, 0, v11")
    a("v_max_i32 v12, 0, v12")
    a(f"v_sub_u32 v13, s{S_LEN}, v11")
    a("v_min_i32 v13, v13, v9")
    a("v_add_u32 v12, v12, v15")
    a("v_sub_u32 v9, v13, v12")
    a("v_add_u32 v14, v14, v12")
    a("v_add_u32 v11, v11, v12")
    a("v_lshlrev_b32 v12, 2, v11")
    a(f"v_add_u32 v12, {L_MAP}, v12")
    a.label("MAPL")
    for i in range(16):
        a(f"v_cmp_lt_i32 vcc, {2*i}, v9")
        if i:
            a("v_add_u32 v14, 2, v14")
        a("s_and_b64 exec, exec, vcc")
        if i % 4 == 0:
            a("s_cbranch_execz MAPD")
        a(f"ds_write_b32 v12, v14 offset:{8*i}")
    a("v_add_u32 v14, 2, v14")
    a("v_add_u32 v12, 128, v12")
    a("v_subrev_u32 v9, 32, v9")
    a("s_branch MAPL")
    a.label("MAPD")
    a("s_mov_b64 exec, -1")
    a(f"v_add_u32 v12, {L_MAP}, v6")
    a(f"v_lshrrev_b32 v13, 1, v{LANE}")
    a(f"s_lshl_b32 s58, s{S_WAVE}, 5")
    a("v_add_u32 v13, s58, v13")
    a(f"v_lshl_add_u32 v14, v13, 2, v7")
    a(f"v_add_u32 v14, {L_MAP}, v14")
    a(f"v_and_b32 v15, 1, v{LANE}")
    a("v_lshlrev_b32 v15, 4, v15")
    a("s_waitcnt lgkmcnt(0)")
    a("s_barrier")
    stamp(a, 3)
    for k in range(7):
        a(f"ds_read_b32 v{20+k}, v12 offset:{2048*k}")
    for k in range(14):
        a(f"ds_read_b32 v{28+k}, v14 offset:{1024*k}")
    MREC = 44
    EPOL = ["", " sc1", " nt"][opt("epol", 1)]
    for k in range(7):
        a(f"v_add_u32 v17, {512*k}, v{TID}")
        a(f"v_cmp_gt_u32 s[{S_MASK+2*k}:{S_MASK+2*k+1}], s{S_LEN}, v17")
        a(f"s_waitcnt lgkmcnt({min(15, 20-k)})")
        a(f"v_mul_u32_u24 v{20+k}, 12, v{20+k}")
        a(f"v_cndmask_b32 v{20+k}, v16, v{20+k}, s[{S_MASK+2*k}:{S_MASK+2*k+1}]")
    if PROF == 2:
        stamp(a, 7)
    for k in range(7):
        a(f"buffer_load_dwordx3 {vr(MREC+4*k,3)}, v{20+k}, s[{R_MT}:{R_MT+3}], 0 offen{EPOL}")
    a("s_waitcnt lgkmcnt(0)")
    a(f"s_lshl_b32 s{S_EM0}, s{S_WAVE}, 10")
    a(f"s_add_u32 s{S_EM0}, s{S_EM0}, {L_E + 32}")
    EREG = 128
    for k in range(14):
        a(f"v_cmp_gt_u32 vcc, s{S_LEN}, v13")
        a(f"v_lshl_add_u32 v{28+k}, v{28+k}, 5, v15")
        a("v_add_u32 v13, 256, v13")
        a(f"v_cndmask_b32 v{EREG+k}, v16, v{28+k}, vcc")
    eb = [int(c, 16) for c in opt("eb", "0554" if FUSED else "3551")]

    assert sum(eb[:1]) <= 10

    def e_batch(i, tag=""):
        for k in range(sum(eb[:i]), sum(eb[:i + 1])):
            if k == 13:
                a(f"s_cmp_ge_u32 s{S_WAVE}, 2")
                a("s_cbranch_scc1 NOE14")
            a(f"s_mov_b32 m0, s{S_EM0}")
            a(f"s_add_u32 s{S_EM0}, s{S_EM0}, 8192")
            a(f"buffer_load_dwordx4 v{EREG+k}, s[{R_EP}:{R_EP+3}], 0 offen{EPOL} lds")
            if k == 13:
                a.label("NOE14")

    if PROF == 2:
        stamp(a, 8)
    e_batch(0)
    FK = opt("fk", 0)
    ONEW = opt("onew", 0)
    if FUSED and FK == 0:
        if ONEW:
            a(f"s_cmp_eq_u32 s{S_WAVE}, 0")
            a("s_cselect_b64 s[60:61], -1, 1")
            flag_load(a, 1, "s[60:61]")
        else:
            flag_load(a, 1)
    if PROF == 2:
        stamp(a, 9)
    a("v_mov_b32 v17, 1")
    for k in range(7):
        a(f"s_waitcnt vmcnt({min(eb[0], 13) + 6 - k + (FUSED and k >= FK)})")
        if FUSED and FK and k == FK - 1:
            flag_load(a, 1)
        if PROF == 2 and k in (0, 6):
            stamp(a, 10 if k == 0 else 11)
        a(f"v_and_b32 v{20+k}, 0xff, v{MREC+4*k}")
        a(f"v_lshlrev_b32 v{20+k}, 2, v{20+k}")
        a(f"v_add_u32 v18, {L_CNT}, v{20+k}")
        a(f"s_mov_b64 exec, s[{S_MASK+2*k}:{S_MASK+2*k+1}]")
        a(f"ds_add_rtn_u32 v{MREC+4*k+3}, v18, v17")
        a("s_mov_b64 exec, -1")
    a(f"v_lshlrev_b32 v12, 2, v{LANE}")
    a(f"v_add_u32 v12, {L_CNT}, v12")
    a(f"v_lshlrev_b32 v35, 2, v{TID}")
    a("v_add_u32 v35, 4, v35")
    RP = 144
    for k in range(7):
        r = MREC + 4 * k
        a(f"v_and_b32 v{r}, 0xffffff00, v{r}")
        a(f"v_add_u32 v36, {2048*k}, v35")
        a(f"v_or_b32 v{RP+2*k+1}, v{r+2}, v36")
        a(f"v_mov_b32 v{RP+2*k}, v{r+1}")
    meta_set_addresses(a)
    if FUSED:
        a("s_waitcnt vmcnt(0)")
        flag_test(a)
        a(f"s_cselect_b32 s{S_EB1}, 1, 0")
        if ONEW:
            a(f"s_cmp_lg_u32 s{S_WAVE}, 0")
            a("s_cbranch_scc1 EB_nw")
            a(f"v_mov_b32 v110, {L_FLAG}")
            a(f"v_mov_b32 v112, s{S_EB1}")
            a("ds_write_b32 v110, v112")
            a.label("EB_nw")
    a("s_waitcnt lgkmcnt(0)")
    a("s_barrier")
    stamp(a, 4)
    if FUSED and ONEW:
        a(f"v_mov_b32 v110, {L_FLAG}")
        a("ds_read_b32 v112, v110")
        a("s_waitcnt lgkmcnt(0)")
        a(f"v_readfirstlane_b32 s{S_EB1}, v112")
    if FUSED:
        a(f"s_mov_b32 s{S_EB2}, s{S_EB1}")
        a(f"s_cmp_eq_u32 s{S_EB1}, 0")
        a("s_cbranch_scc1 EB1_skip")
        e_batch(1)
        a("s_branch EB1_done")
        a.label("EB1_skip")
        flag_load(a, 1)
        a.label("EB1_done")
    else:
        e_batch(1)
    a("ds_read_b32 v14, v12")
    a("s_waitcnt lgkmcnt(0)")
    if BAL:
        balanced_partition(a)
    else:
        a("v_add_u32 v14, 31, v14")
        a("v_lshrrev_b32 v14, 5, v14")
        a("v_max_u32 v14, 1, v14")
        a(f"v_cmp_gt_u32 vcc, s{S_NN}, v{LANE}")
        a(f"v_mad_u32_u24 v15, v14, 10, {opt('epc', 6)}")
        a("v_cndmask_b32 v15, 0, v15, vcc")
        a("v_cndmask_b32 v14, 0, v14, vcc")
        a("v_lshl_or_b32 v18, v15, 16, v14")
        a(f"v_subrev_u32 v{NST}, 1, v14")
        a("v_mov_b32 v19, v18")
        scan64(a, 19)
        a("v_readlane_b32 s58, v19, 63")
        a("v_sub_u32 v18, v19, v18")
        a("v_and_b32 v19, 0xffff, v19")
        a("v_lshrrev_b32 v32, 16, v18")
        a("v_and_b32 v18, 0xffff, v18")
        a("v_lshl_add_u32 v32, v32, 1, v15")
        a("v_lshlrev_b32 v32, 2, v32")
        a("s_lshr_b32 s59, s58, 16")
        a("s_and_b32 s58, s58, 0xffff")
        a(f"s_and_b32 s60, s{S_WAVE}, 3")
        a("s_lshl_b32 s60, s60, 1")
        a(f"s_lshr_b32 s61, s{S_WAVE}, 2")
        a("s_add_u32 s60, s60, s61")
        a("s_mul_i32 s60, s60, s59")
        a("s_add_u32 s61, s60, s59")
        a("v_cmp_le_u32 vcc, s60, v32")
        a("v_cmp_gt_u32 s[62:63], s61, v32")
        a("s_and_b64 vcc, vcc, s[62:63]")
        a(f"s_bcnt1_i32_b64 s{S_NNW}, vcc")
        a(f"s_ff1_i32_b64 s{S_NODE0}, vcc")
        a(f"s_max_i32 s{S_NODE0}, s{S_NODE0}, 0")
        a(f"s_add_u32 s{S_NEND}, s{S_NODE0}, s{S_NNW}")
        a(f"s_sub_u32 s60, s{S_NEND}, 1")
        a("s_max_i32 s60, s60, 0")
        a(f"v_readlane_b32 s{S_STEP0}, v18, s{S_NODE0}")
        a(f"v_readlane_b32 s{S_NS}, v19, s60")
        a(f"s_sub_u32 s{S_NS}, s{S_NS}, s{S_STEP0}")
    assert BAL
    for k in range(7):
        a(f"ds_bpermute_b32 v{20+k}, v{20+k}, v18")
    a(f"s_lshl_b32 s59, s{S_STEP0}, 7")
    a("v_add_u32 v160, s59, v160")
    a("s_lshl_b32 s59, s59, 1")
    a("v_add_u32 v161, s59, v161")
    a(f"s_cmp_gt_u32 s58, {MAXSTEPS}")
    a("s_cselect_b32 s60, 1, s60")
    a("s_cmp_eq_u32 s60, 0")
    a("s_cbranch_scc1 SCATTER")
    a(f"s_mov_b32 s{S_CAP}, {SLOWCAP}")
    a("s_waitcnt vmcnt(0) lgkmcnt(0)")
    a("s_barrier")
    a("s_branch ROUND")
    a.label("SCATTER")
    if FUSED:
        a(f"s_cmp_lg_u32 s{S_EB1}, 0")
        a("s_cbranch_scc1 EB2_go")
        a("s_waitcnt vmcnt(0)")
        flag_test(a)
        a(f"s_cselect_b32 s{S_EB2}, 1, 0")
        a("s_cbranch_scc0 EB2_skip")
        e_batch(1)
        a.label("EB2_go")
        e_batch(2)
        a.label("EB2_skip")
    else:
        e_batch(2)
    for k in range(7):
        r = MREC + 4 * k
        a(f"s_waitcnt lgkmcnt({6 - k + 2 * k if 6 + k <= 15 else 15})")
        a(f"v_lshl_add_u32 v{20+k}, v{20+k}, 5, v{r+3}")
        a(f"v_lshl_add_u32 v{r+1}, v{20+k}, 3, v162")
        a(f"v_lshl_add_u32 v{20+k}, v{20+k}, 2, v163")
        a(f"s_mov_b64 exec, s[{S_MASK+2*k}:{S_MASK+2*k+1}]")
        a(f"ds_write_b32 v{20+k}, v{r}")
        a(f"ds_write_b64 v{r+1}, {vr(RP+2*k,2)}")
        a("s_mov_b64 exec, -1")
    if FUSED:
        a(f"s_cmp_lg_u32 s{S_EB2}, 0")
        a("s_cbranch_scc1 EB3_nopoll")
        poll(a, 1, "POLL_B")
        a.label("EB3_nopoll")
    a("s_waitcnt lgkmcnt(0)")
    a("s_barrier")
    if FUSED:
        a(f"s_cmp_lg_u32 s{S_EB2}, 0")
        a("s_cbranch_scc1 EB3_go")
        e_batch(1)
        e_batch(2)
        a.label("EB3_go")
    e_batch(3)
    for s in range(10):
        a(f"ds_read_b32 v{M0R+s}, v160 offset:{256*s}")
        a(f"ds_read_b64 {vr(MBR+2*s,2)}, v161 offset:{512*s}")
    a(f"s_mov_b32 s{S_D}, 0")
    pfn = opt("pfn", 0)
    if pfn:
        a(f"s_sub_u32 s{S_EVT}, s{S_NEND}, {pfn}")
        a(f"s_max_i32 s{S_EVT}, s{S_EVT}, 0")
    else:
        a(f"s_mov_b32 s{S_EVT}, -2")
    a(f"s_mov_b32 s{S_PHASE}, 0")
    if opt("eg", 0):
        a(f"s_mov_b32 s{S_EGN}, -1")
    a(f"s_mov_b32 s{S_POFF}, 0")
    a(f"s_mov_b32 s{S_TAB0}, 0")
    a(f"s_mov_b32 s{S_TAB1}, 128")
    a(f"s_mov_b32 s{S_NODE}, s{S_NODE0}")
    for l in node_steps(S_NODE):
        a(l)
    if opt("prio", 3) == 2:
        a(f"s_lshr_b32 s54, s{S_WAVE}, 2")
        a(f"s_lshl2_add_u32 s{S_LEFT}, s{S_NS}, s54")
        a(f"s_add_u32 s{S_LEFT}, s{S_LEFT}, 256")
        a(f"s_lshl1_add_u32 s54, s{S_REM}, 2")
        a(f"s_sub_u32 s{S_LEFT}, s{S_LEFT}, s54")
        a(f"s_and_b32 s54, s{S_WAVE}, 3")
        a(f"s_lshl2_add_u32 s{S_PADR}, s54, {L_CNT + 240}")
    stamp(a, 5)
    a("s_waitcnt lgkmcnt(0)")
    a("s_barrier")
    if PROF and not opt("egx", 0):
        a(f"s_mov_b32 s{preg(12)}, s{S_NS}")
        a(f"s_mov_b32 s{preg(13)}, s{S_NNW}")
    a(f"s_cmp_lg_u32 s{S_NNW}, 0")
    a("s_cbranch_scc1 START")
    a("s_waitcnt vmcnt(0)")
    a("s_barrier")
    stamp(a, 6)
    a("s_branch TAIL")
    a.label("START")
    pipeline_start(a)
    cold = []
    for par in range(2):
        for rho in (0, 2, 1):
            epilogue(a, rho, par, cold)
            step_body(a, rho, "f", par, 1 - par, "n", cold)
            step_body(a, (rho + 1) % 3, "n", 1 - par, par, "e" if rho != 1 else "", cold)
    for rho in range(3):
        step_body(a, rho, "f", 0, 0, "", cold)
        step_body(a, rho, "n", 0, 0, "", cold)
    for l in cold:
        a(l)

    a.label("TAIL")
    a("s_setprio 0")
    WF, PF, D = 0, 80, 188
    if PROF == 4:
        a("v_mov_b32 v183, v219")
    stamp(a, 8, late=True)
    a(f"v_and_b32 v{T0+1}, 15, v{LANE}")
    a(f"s_lshr_b32 s56, s{S_WAVE}, 1")
    a("s_lshl_b32 s56, s56, 4")
    a(f"v_add_u32 v{T0+1}, s56, v{T0+1}")
    a(f"v_lshlrev_b32 v{T0+2}, 2, v{T0+1}")
    a(f"ds_bpermute_b32 v{T0+4}, v{T0+2}, v{NID}")
    a(f"v_lshrrev_b32 v{T0+2}, 4, v{LANE}")
    a(f"v_lshlrev_b32 v{T0+2}, 4, v{T0+2}")
    a("s_waitcnt lgkmcnt(0)")
    a(f"v_lshl_add_u32 v{T0+4}, v{T0+4}, 9, v{T0+2}")
    a(f"v_lshlrev_b32 v{T0}, 4, v{LANE}")
    a(f"s_and_b32 s54, s{S_WAVE}, 1")
    a("s_mul_i32 s55, s54, 20480")
    a(f"s_add_u32 s55, s55, {WS_WSI - WS_WTAB}")
    if NEWTAIL:
        def prework(tag):
            a(f"s_mul_i32 s56, s{S_NNW}, {P_NODE}")
            a(f"s_mul_i32 s57, s{S_NODE0}, {P_NODE}")
            a(f"s_mov_b32 s60, s{S_RB}")
            for k in range(6):
                a(f"v_cmp_gt_u32 vcc, s56, v{T0}")
                a("s_mov_b32 m0, s60")
                a("s_mov_b64 exec, vcc")
                a(f"s_cbranch_execz {tag}")
                a(f"buffer_load_dwordx4 v{T0}, s[{R_P}:{R_P+3}], s57 offen sc1 lds")
                a("s_mov_b64 exec, -1")
                a("s_add_u32 s57, s57, 1024")
                a("s_add_u32 s60, s60, 1024")
                a("s_sub_u32 s56, s56, 1024")
                a("s_max_i32 s56, s56, 0")
            a.label(tag)
            a("s_mov_b64 exec, -1")
            for f in range(20):
                if f % 4 == 0 and f:
                    a("s_add_u32 s55, s55, 4096")
                a(f"buffer_load_dwordx4 {vr(WF+4*f,4)}, v{T0}, s[{R_W}:{R_W+3}], s55 offen offset:{(f%4)*1024}")

        a(f"v_mov_b32 v{T0+5}, {L_CNT + 224}")
        a(f"v_mov_b32 v{T0+6}, 1")
        a(f"s_mul_i32 s56, s{S_NNW}, {P_NODE}")
        a(f"s_add_u32 s60, s56, s{S_RB}")
        a(f"v_add_u32 v{T0+7}, s60, v{POFF}")
        a("s_mov_b64 exec, 1")
        a(f"ds_add_rtn_u32 v{T0+6}, v{T0+5}, v{T0+6}")
        a("s_mov_b64 exec, -1")
        a(f"s_cmp_eq_u32 s{S_NNW}, 0")
        a("s_cbranch_scc1 T_NOREC")
        a("s_waitcnt vmcnt(3)")
        for i in range(3):
            a(f"ds_write_b32 v{T0+7}, v{64+i} offset:{256*i}")
        a.label("T_NOREC")
        a("s_waitcnt lgkmcnt(0)")
        a(f"v_readfirstlane_b32 s{S_OLD}, v{T0+6}")
        a(f"s_cmp_ge_u32 s{S_OLD}, {opt('tlast', 7)}")
        a("s_cbranch_scc1 T_BAR")
        if DRY:
            a("s_mov_b32 s62, 1")
            a(f"s_cmp_eq_u32 s{S_OLD}, 0")
            a("s_cbranch_scc1 T_MM")
            a.label("T_RET")
        prework("T_P1")
        a.label("T_BAR")
        a("s_barrier")
        stamp(a, 9, late=True)
        a(f"s_lshl_b32 s61, s{S_WAVE}, 10")
        a(f"s_add_u32 s61, s61, {P_HALF}")
        for k in range(5):
            if k == 4:
                a(f"s_cmp_ge_u32 s{S_WAVE}, 6")
                a("s_cbranch_scc1 NOP10")
            a("s_mov_b32 m0, s61")
            a(f"buffer_load_dwordx4 v{T0}, s[{R_P}:{R_P+3}], s61 offen sc1 lds")
            a("s_add_u32 s61, s61, 8192")
        a.label("NOP10")
        a(f"s_cmp_lt_u32 s{S_OLD}, {opt('tlast', 7)}")
        a("s_cbranch_scc1 T_DONE")
        prework("T_P2")
        a.label("T_DONE")
    else:
        a("s_waitcnt vmcnt(0)")
        for f in range(20):
            if f % 4 == 0 and f:
                a("s_add_u32 s55, s55, 4096")
            a(f"buffer_load_dwordx4 {vr(WF+4*f,4)}, v{T0}, s[{R_W}:{R_W+3}], s55 offen offset:{(f%4)*1024}")
        a("s_barrier")
        stamp(a, 9, late=True)
        a(f"s_lshl_b32 s55, s{S_WAVE}, 10")
        for k in range(10):
            if k == 9:
                a(f"s_cmp_ge_u32 s{S_WAVE}, 4")
                a("s_cbranch_scc1 NOP10")
            a("s_mov_b32 m0, s55")
            a(f"buffer_load_dwordx4 v{T0}, s[{R_P}:{R_P+3}], s55 offen sc1 lds")
            a("s_add_u32 s55, s55, 8192")
        a.label("NOP10")
    a(f"v_lshlrev_b32 v{T0+8}, 1, v{T0+4}")
    a(f"s_lshl_b32 s57, s54, 9")
    a(f"s_cmp_eq_u32 s{S_R0}, 0")
    a("s_cbranch_scc1 ZEROD")
    for i in range(8):
        a(f"buffer_load_dwordx4 {vr(D+4*i,4)}, v{T0+8}, s[{R_ACC}:{R_ACC+3}], s57 offen offset:{(i//2)*128 + (i%2)*16} sc1")
    a("s_branch HAVED")
    a.label("ZEROD")
    for i in range(32):
        a(f"v_mov_b32 v{D+i}, 0")
    a.label("HAVED")
    if NEWTAIL:
        t = T0 + 9
        a(f"s_cmp_eq_u32 s{S_NN}, {NPB}")
        a(f"s_mov_b32 s58, {-(-8*65536 // (N - 255*NPB))}")
        a(f"s_cmov_b32 s58, {-(-8*65536 // NPB)}")
        a(f"v_mul_u32_u24 v{T0+3}, s58, v{T0+1}")
        a(f"v_lshrrev_b32 v{T0+3}, 16, v{T0+3}")
        a(f"v_min_u32 v{T0+3}, 7, v{T0+3}")
        a(f"v_mad_u32_u24 v{T0+5}, v{T0+3}, s{S_NN}, 7")
        a(f"v_add_u32 v{T0+6}, s{S_NN}, v{T0+5}")
        a(f"v_lshrrev_b32 v{T0+5}, 3, v{T0+5}")
        a(f"v_lshrrev_b32 v{T0+6}, 3, v{T0+6}")
        a(f"v_lshrrev_b32 v{t}, 1, v{T0+3}")
        a(f"v_and_b32 v{T0+3}, 1, v{T0+3}")
        a(f"v_lshl_add_u32 v{t}, v{T0+3}, 2, v{t}")
        a(f"v_mul_u32_u24 v{t}, {RING_W}, v{t}")
        a(f"v_add_u32 v{t}, {L_RING}, v{t}")
        a(f"v_add_u32 v{t}, v{t}, v{T0+2}")
        a(f"v_sub_u32 v{T0+5}, v{T0+1}, v{T0+5}")
        a(f"s_movk_i32 s58, {P_NODE}")
        a(f"v_mad_u32_u24 v{T0+5}, v{T0+5}, s58, v{t}")
        a(f"v_add_u32 v{t+1}, 1, v{T0+1}")
        a(f"v_cmp_eq_u32 vcc, v{t+1}, v{T0+6}")
        a(f"v_mad_u32_u24 v{T0+6}, v{T0+1}, s58, v{T0+2}")
        a(f"v_add_u32 v{T0+6}, {P_HALF}, v{T0+6}")
        a(f"v_add_u32 v{t}, {P_NODE}, v{T0+5}")
        a(f"v_cndmask_b32 v{T0+6}, v{T0+6}, v{t}, vcc")
        a("s_lshl_b32 s54, s54, 6")
    else:
        a(f"v_mul_u32_u24 v{T0+5}, {P_NODE}, v{T0+1}")
        a(f"v_add_u32 v{T0+5}, v{T0+5}, v{T0+2}")
        a(f"v_add_u32 v{T0+6}, {P_HALF}, v{T0+5}")
        a("s_lshl_b32 s54, s54, 6")
    a("s_mov_b32 s62, 0")
    a("s_waitcnt vmcnt(0)")
    a("s_barrier")
    stamp(a, 10, late=True)
    a.label("T_MM")
    seq = []
    for comp, ts in enumerate(([P0, P1], [P2[0], P3[0], P4[0]], [P2[1], P3[1], P4[1]], [P2[2], P3[2], P4[2]])):
        for t in ts:
            for h in range(2):
                seq.append((comp, t, h))
    for i, (comp, t, h) in enumerate(seq):
        a(f"ds_read_b128 {vr(PF+4*i,4)}, v{T0+5+h} offset:{t*64}")
        if i == 14:
            a("s_waitcnt lgkmcnt(7)")
    for i, (comp, t, h) in enumerate(seq):
        if i >= 8:
            a(f"s_waitcnt lgkmcnt({21 - i})")
        for mt in range(2):
            d = vr(D + 8 * comp + 4 * mt, 4)
            a(f"v_mfma_f32_16x16x32_bf16 {d}, {vr(WF + 4*(10*mt + 2*TPATH[t] + h),4)}, {vr(PF+4*i,4)}, {d}")
    if PROF == 7:
        stamp(a, 4)
    a(f"s_or_b32 s63, s{S_LAST}, s62")
    a("s_cbranch_scc0 MORE")
    for i in range(8):
        a(f"v_mul_f32 v{i}, 0xbfb8aa3b, v{D+i}")
    for i in range(8):
        a(f"v_exp_f32 v{i}, v{i}")
    for i in range(8):
        a(f"v_add_f32 v{i}, 1.0, v{i}")
    for i in range(8):
        a(f"v_rcp_f32 v{i}, v{i}")
    a("s_cmp_lg_u32 s62, 0")
    for comp in range(4):
        if comp:
            for i in range(8):
                a(f"v_mul_f32 v{D+8*comp+i}, v{D+8*comp+i}, v{i}")
        for i in range(4):
            a(f"v_cvt_pk_bf16_f32 v{8+4*comp+i}, v{D+8*comp+2*i}, v{D+8*comp+2*i+1}")
        if DRY:
            a(f"s_cbranch_scc1 {'T_RET' if comp == 3 else 'T_S%d' % comp}")
        a(f"buffer_store_dwordx4 {vr(8+4*comp,4)}, v{T0+4}, s[{R_OUT}:{R_OUT+3}], s54 offen offset:{128*comp}{OPOL}")
        if DRY and comp < 3:
            a.label(f"T_S{comp}")
    if PROF == 7:
        stamp(a, 7)
    if PROF:
        a("s_waitcnt vmcnt(0)")
    stamp(a, 11, late=True)
    stamp(a, 15, True)
    prof_dump(a, 98, 1, 3, S_WAVE)
    if opt("amp", 0):
        a("s_cmp_lg_u32 s2, 100")
        a("s_cbranch_scc1 K2_end")
        srd(a, 4, 98, WS_PROF + 100 * 1024, 64)
        a("v_mov_b32 v0, 0")
        a("buffer_load_dword v2, v0, s[4:7], 0 offen")
        a("buffer_load_dword v3, v0, s[4:7], 0 offen offset:60")
        a("s_waitcnt vmcnt(0)")
        a("v_readfirstlane_b32 s60, v2")
        a("v_readfirstlane_b32 s61, v3")
        lo, hi = {1: ("s60", f"s{S_PROF}"), 2: (f"s{S_PROF}", f"s{S_PROF+6}"), 3: (f"s{S_PROF+6}", f"s{S_PROF+9}"),
                  4: ("s60", "s61"), 5: ("s60", "s60")}[opt("amp", 0)]
        a(f"s_sub_u32 s62, {hi}, {lo}")
        a("s_min_u32 s62, s62, 10000")
        a("s_lshl_b32 s62, s62, 2")
        a("s_add_u32 s62, s62, 1000")
        a.label("AMPL")
        a("s_memrealtime s[80:81]")
        a("s_waitcnt lgkmcnt(0)")
        a(f"s_sub_u32 s63, s80, s{S_PROF+15}")
        a("s_cmp_lt_u32 s63, s62")
        a("s_cbranch_scc1 AMPL")
    if PROF == 4:
        a("s_lshl_b32 s80, s2, 3")
        a(f"s_add_u32 s80, s80, s{S_WAVE}")
        a("s_lshl_b32 s80, s80, 8")
        a(f"s_add_u32 s80, s80, {WS_PROF + 0x200000}")
        srd(a, 4, 98, "s80", 256)
        a(f"v_lshlrev_b32 v0, 2, v{LANE}")
        a("buffer_store_dword v183, v0, s[4:7], 0 offen")
    if PROF == 3:
        a("s_load_dwordx2 s[54:55], s[0:1], 80")
        a("s_min_u32 s80, s2, 249")
        a("s_lshl_b32 s80, s80, 10")
        a(f"s_add_u32 s80, s80, {WS_PROF}")
        srd(a, 4, 98, "s80", 64)
        a("v_mov_b32 v0, 0")
        a("buffer_load_dword v2, v0, s[4:7], 0 offen")
        a("buffer_load_dword v3, v0, s[4:7], 0 offen offset:8")
        a("buffer_load_dword v4, v0, s[4:7], 0 offen offset:24")
        a("buffer_load_dword v5, v0, s[4:7], 0 offen offset:60")
        a("s_waitcnt vmcnt(0) lgkmcnt(0)")
        srd(a, 4, 54, 0, 256)
        a("v_not_b32 v2, v2")
        a("s_mov_b64 exec, 1")
        for i in range(4):
            a(f"buffer_atomic_umax v{2+i}, v0, s[4:7], 0 offen offset:{4*i}")
        a(f"v_not_b32 v2, s{S_PROF}")
        a("buffer_atomic_umax v2, v0, s[4:7], 0 offen offset:16")
        for i, st in enumerate((0, 2, 3, 4, 6, 7, 8, 9, 10, 15)):
            a(f"v_mov_b32 v{3+i}, s{S_PROF+st}")
            a(f"buffer_atomic_umax v{3+i}, v0, s[4:7], 0 offen offset:{20+4*i}")
    a("s_endpgm")
    a.label("MORE")
    for i in range(8):
        a(f"buffer_store_dwordx4 {vr(D+4*i,4)}, v{T0+8}, s[{R_ACC}:{R_ACC+3}], s57 offen offset:{(i//2)*128 + (i%2)*16}")
    a(f"s_lshl_b32 s54, s{S_WAVE}, 6")
    a(f"v_add_u32 v{TID}, s54, v{LANE}")
    a(f"s_add_u32 s{S_R0}, s{S_R0}, s{S_LEN}")
    a("s_waitcnt vmcnt(0)")
    a("s_barrier")
    a("s_branch ROUND")
    a.label("K2_end")
    a("s_endpgm")
    return a


def descriptor(name, nv, ns):
    return f""".amdhsa_kernel {name}
  .amdhsa_next_free_vgpr {nv}
  .amdhsa_next_free_sgpr {ns}
  .amdhsa_accum_offset {(nv + 3) // 4 * 4}
  .amdhsa_group_segment_fixed_size 0
  .amdhsa_kernarg_size 96
  .amdhsa_user_sgpr_count 2
  .amdhsa_user_sgpr_kernarg_segment_ptr 1
  .amdhsa_system_sgpr_workgroup_id_x 1
  .amdhsa_float_denorm_mode_32 3
.end_amdhsa_kernel
"""


def main():
    ref = open(os.path.join(os.path.dirname(os.path.abspath(__file__)), "..", "cdna_kernels", NAME + ".s.ref")).read()
    head = [l for l in ref.split("\n") if l.startswith(";") and "@launch" not in l and "Override" not in l
            and "grid=ceil" not in l]
    k1, k2 = "edge_sort_kernel", NAME + "_kernel"
    out = head + ([] if FUSED else [f"; @launch kernel={k1} grid=(255,1,1) block=(1024,1,1) lds={K1_LDS}"]) + [
        f"; @launch kernel={k2} grid=(256,1,1) block=(512,1,1) lds={K2_LDS}",
        ";",
        "; Part 1: each workgroup sorts 3200 edges by destination bin (49 nodes) through LDS and writes the edge",
        ";   attributes, a 12-byte record (source row, node in bin, rhat) and a segment table to d_ws; it also splits",
        ";   x into two 32-channel tables and lays out the weights. Completion is published with tagged flags.",
        "; Part 2: one workgroup per bin. It stages the bin's edges in LDS, sorts them by node, and for each node",
        ";   and channel half accumulates T[k, a, b, c] = sum_e e[k] * (1, rhat)[a] * x[src][b, c] with MFMA",
        ";   (x rows gathered by LDS-DMA), contracts k with w_rad, then applies w_si0 / w_si1 and the gate.",
        ";   Bins that exceed the LDS capacity are processed in several rounds.",
        '.amdgcn_target "amdgcn-amd-amdhsa--gfx950"',
        ".text",
    ]
    for name, fn in ((k1, kernel1), (k2, kernel2))[FUSED:]:
        lines, nops = fn().finish()
        print(name, "instructions:", len(lines), "nops inserted:", nops, file=sys.stderr)
        out += [f".globl {name}", ".p2align 8", f".type {name},@function", f"{name}:"] + lines
    out += ['.section .rodata,"a"'] + ([] if FUSED else [".p2align 6", descriptor(k1, 96, 102)])
    out += [".p2align 6", descriptor(k2, NVGPR, 102)]
    open(sys.argv[1], "w").write("\n".join(out))


if __name__ == "__main__":
    main()
```

```python
import os
import sys

sys.path.insert(0, os.path.dirname(os.path.abspath(__file__)))
from asmlib import Asm, vr, sr

NAME = "gather_scatter__tensor_product_equiv_equiformer__graph"
N, E = 12500, 800000
CHUNK, W = 3200, 250
NPB = 49
NBIN = 256

WS_TAB = 0
WS_WTAB = 0x40000
WS_WSI = 0x48000
WS_META = 0x100000
WS_XP = 0xB00000
WS_EP = 0x1200000
WS_P = 0x2B00000
P_NODE = 784
P_HALF = NPB * P_NODE
P_WG = 0x13000
WS_ACC = 0x4000000
XHALF = N * 256

OPT = dict(a.split("=") for a in sys.argv[2:] if "=" in a)


def opt(name, default):
    return type(default)(OPT.get(name, default))


PROF = opt("prof", 0)
WS_PROF = 0x6000000
S_PROF = 82
FUSED = opt("fused", 1)


def preg(i):
    if FUSED:
        return {0: 82, 6: 83, 9: 90, 10: 91, 11: 92, 12: 93, 13: 94, 15: 95}.get(i)
    return S_PROF + i


def stamp(a, i, real=False, late=False, k1=False):
    if k1:
        i = {2: None, 4: None, 6: 10, 8: 11}[i]
        if i is None or PROF != 5:
            return
    elif PROF == 5 and i not in (0, 15, 6, 9):
        return
    if PROF and not (late and PROF == 2):
        a("s_waitcnt lgkmcnt(0)")
        a(("s_memrealtime" if real or PROF in (3, 5) else "s_memtime") + " s[80:81]")
        a("s_waitcnt lgkmcnt(0)")
        a(f"s_mov_b32 s{preg(i)}, s80")
        if PROF == 4 and i == 7:
            a("s_memrealtime s[80:81]" if opt("rt", 0) else "s_memtime s[80:81]")


def prof_dump(a, wsreg, kern, nwave_shift, wavereg):
    if PROF:
        a(f"s_lshl_b32 s80, s2, {nwave_shift}")
        a(f"s_add_u32 s80, s80, s{wavereg}")
        a("s_lshl_b32 s80, s80, 6")
        a(f"s_add_u32 s80, s80, {WS_PROF + kern * 0x100000}")
        srd(a, 4, wsreg, "s80", 64)
        a("v_mov_b32 v0, 0")
        for i in range(16):
            if preg(i) is None:
                continue
            a(f"v_mov_b32 v1, s{preg(i)}")
            a(f"buffer_store_dword v1, v0, s[4:7], 0 offen offset:{4*i}")


def srd(a, d, b, off, size):
    a(f"s_add_u32 s{d}, s{b}, {off}")
    a(f"s_addc_u32 s{d+1}, s{b+1}, 0")
    a(f"s_mov_b32 s{d+2}, {size}")
    a(f"s_mov_b32 s{d+3}, 0x20000")


def scan64(a, v):
    for sh in (1, 2, 4, 8):
        a(f"v_add_u32_dpp v{v}, v{v}, v{v} row_shr:{sh} row_mask:0xf bank_mask:0xf bound_ctrl:1")
    a(f"v_add_u32_dpp v{v}, v{v}, v{v} row_bcast:15 row_mask:0xa bank_mask:0xf")
    a(f"v_add_u32_dpp v{v}, v{v}, v{v} row_bcast:31 row_mask:0xc bank_mask:0xf")


K1_ERAW = 0
K1_MS = 102400
K1_INV = K1_MS + 38400
K1_HIST = K1_INV + 6400
K1_LDS = 152 * 1024


def prep_tables(a, ST):
    a("v_add_u32 v4, s60, v0")
    a("v_and_b32 v5, 3, v4")
    a("v_bfe_u32 v6, v4, 2, 4")
    a("v_bfe_u32 v7, v4, 6, 2")
    a("v_lshrrev_b32 v8, 8, v4")
    a("v_cmp_le_u32 vcc, 10, v8")
    a("v_cndmask_b32 v9, 0, 1, vcc")
    a("v_mul_u32_u24 v10, 10, v9")
    a("v_sub_u32 v10, v8, v10")
    a("v_lshl_add_u32 v11, v7, 2, v5")
    a("v_mul_u32_u24 v11, 320, v11")
    a("v_lshrrev_b32 v12, 1, v10")
    a("v_lshl_add_u32 v11, v12, 6, v11")
    a("v_lshl_add_u32 v11, v9, 5, v11")
    a("v_and_b32 v12, 1, v10")
    a("v_lshl_add_u32 v11, v12, 4, v11")
    a("v_add_u32 v11, v11, v6")
    a("v_lshlrev_b32 v11, 1, v11")
    a("buffer_load_ushort v13, v11, s[16:19], 0 offen")
    a("v_mov_b32 v30, 0x80000000")
    for t in range(2):
        b = 32 + 8 * t
        a(f"v_add_u32 v14, {20*t}, v8")
        a("v_mul_u32_u24 v15, 26, v14")
        a("v_lshrrev_b32 v15, 8, v15")
        a("v_mul_u32_u24 v16, 10, v15")
        a("v_sub_u32 v16, v14, v16")
        a("v_lshrrev_b32 v17, 1, v16")
        a("v_and_b32 v18, 1, v16")
        a("v_lshl_add_u32 v19, v7, 2, v5")
        a("v_lshl_add_u32 v19, v18, 5, v19")
        a("v_lshl_add_u32 v19, v17, 6, v19")
        a("v_lshrrev_b32 v20, 1, v15")
        a("v_and_b32 v21, 1, v15")
        a("v_lshrrev_b32 v22, 2, v6")
        a("v_lshlrev_b32 v22, 3, v22")
        a("v_lshl_add_u32 v22, v20, 5, v22")
        a("v_lshl_add_u32 v22, v21, 2, v22")
        a("v_and_b32 v23, 3, v6")
        a("v_add_u32 v22, v22, v23")
        a("v_lshl_add_u32 v22, v19, 6, v22")
        a("v_lshlrev_b32 v22, 1, v22")
        a("v_subrev_u32 v23, 16384, v22")
        a("v_cmp_gt_u32 vcc, 2, v17")
        a("v_cndmask_b32 v24, v30, v22, vcc")
        a("v_cndmask_b32 v25, v23, v30, vcc")
        a(f"buffer_load_ushort v{b}, v24, s[20:23], 0 offen")
        a(f"buffer_load_ushort v{b+1}, v24, s[20:23], 0 offen offset:2048")
        a(f"buffer_load_ushort v{b+2}, v25, s[24:27], 0 offen")
        a(f"buffer_load_ushort v{b+3}, v25, s[24:27], 0 offen offset:2048")
    a("v_lshlrev_b32 v4, 2, v4")
    a("s_mov_b32 s61, 20480")
    a("s_waitcnt vmcnt(0)")
    a("v_lshlrev_b32 v13, 16, v13")
    a("buffer_store_dword v13, v4, s[28:31], 0 offen" + ST)
    for t in range(2):
        b = 32 + 8 * t
        a(f"v_or_b32 v{b}, v{b}, v{b+2}")
        a(f"v_or_b32 v{b+1}, v{b+1}, v{b+3}")
        a(f"v_lshl_or_b32 v{b}, v{b+1}, 16, v{b}")
        a(f"buffer_store_dword v{b}, v4, s[32:35], {'0' if t == 0 else 's61'} offen{ST}")


def kernel1():
    a = Asm()
    NT = " nt" if opt("k1nt", 1) else ""
    ST = {0: "", 1: " nt", 2: " sc1"}[opt("k1st", 2)]
    a("s_cmp_ge_u32 s2, 255")
    a("s_cbranch_scc1 K1_end")
    a("s_load_dwordx8 s[4:11], s[0:1], 0")
    a("s_load_dwordx8 s[52:59], s[0:1], 32")
    a("s_load_dwordx2 s[14:15], s[0:1], 88")
    a("v_lshlrev_b32 v1, 4, v0")
    a("v_mul_u32_u24 v2, 24, v0")
    a("v_and_b32 v3, 63, v0")
    a("v_lshlrev_b32 v3, 4, v3")
    a("v_lshrrev_b32 v40, 6, v0")
    a("v_readfirstlane_b32 s3, v40")
    a("s_cmp_ge_u32 s2, 250")
    a("s_cbranch_scc1 K1_prep")
    stamp(a, 0, True)
    stamp(a, 1)
    a("s_mul_i32 s60, s2, 12800")
    a("s_mul_i32 s61, s2, 19200")
    a("s_mul_i32 s62, s2, 25600")
    a("s_mul_i32 s63, s2, 102400")
    a("s_mul_i32 s64, s2, 38400")
    a("s_lshl_b32 s65, s2, 10")
    a("s_waitcnt lgkmcnt(0)")
    srd(a, 16, 52, "s60", 12800)
    a(f"buffer_load_dwordx4 v[4:7], v1, s[16:19], 0 offen{NT}")
    a("v_lshlrev_b32 v41, 2, v0")
    a("v_mov_b32 v42, 0")
    a("s_cmp_ge_u32 s3, 4")
    a("s_cbranch_scc1 K1_nozero")
    a(f"v_add_u32 v41, {K1_HIST}, v41")
    a("ds_write_b32 v41, v42")
    a.label("K1_nozero")
    srd(a, 20, 10, "s60", 12800)
    srd(a, 24, 6, "s61", 19200)
    srd(a, 28, 4, "s62", 25600)
    srd(a, 32, 8, "s63", 102400)
    a("s_mov_b32 s66, 16384")
    a("s_lshl_b32 s67, s3, 10")
    kq = [int(c) for c in opt("kq", "00700")]

    def e_in(i):
        for k in range(sum(kq[:i]), sum(kq[:i + 1])):
            if k == 6:
                a("s_cmp_ge_u32 s3, 4")
                a("s_cbranch_scc1 K1_noe7")
            a("s_mov_b32 m0, s67")
            a(f"buffer_load_dwordx4 v3, s[32:35], s67 offen{NT} lds")
            a("s_add_u32 s67, s67, 16384")
            if k == 6:
                a.label("K1_noe7")

    def n_e(lo, hi):
        return min(sum(kq[:hi + 1]), 6) - min(sum(kq[:lo]), 6)

    e_in(0)
    a("s_waitcnt lgkmcnt(0)")
    a("s_barrier")
    RNT = NT if opt("rnt", 1) else ""
    a(f"buffer_load_dwordx4 v[8:11], v1, s[20:23], 0 offen{NT}")
    a(f"buffer_load_dwordx4 v[12:15], v2, s[24:27], 0 offen{RNT}")
    a(f"buffer_load_dwordx2 v[16:17], v2, s[24:27], 0 offen offset:16{RNT}")
    if opt("k1b2", 1):
        a("s_barrier")
    e_in(1)
    a(f"buffer_load_dwordx4 v[20:23], v1, s[28:31], 0 offen{NT}")
    a(f"buffer_load_dwordx4 v[24:27], v1, s[28:31], s66 offen{NT}")
    e_in(2)
    a("s_add_u32 s68, s64, %d" % WS_META)
    srd(a, 36, 14, "s68", 38400)
    a("s_add_u32 s68, s63, %d" % WS_EP)
    srd(a, 40, 14, "s68", 102400)
    srd(a, 44, 14, WS_XP, 2 * XHALF)
    srd(a, 48, 14, "s65", 1024)
    a("v_cmp_gt_u32 vcc, 800, v0")
    a("s_mov_b64 s[70:71], vcc")
    a("v_mov_b32 v43, 1")
    a(f"s_waitcnt vmcnt({5 + n_e(0, 2)})")
    stamp(a, 2)
    a("s_mov_b64 exec, s[70:71]")
    a("s_cbranch_execz K1_skip_rank")
    for i in range(4):
        a(f"v_mul_u32_u24 v{28+i}, 21400, v{4+i}")
        a(f"v_lshrrev_b32 v{28+i}, 20, v{28+i}")
        a(f"v_mul_u32_u24 v{36+i}, 49, v{28+i}")
        a(f"v_sub_u32 v{36+i}, v{4+i}, v{36+i}")
        a(f"v_lshlrev_b32 v{28+i}, 2, v{28+i}")
        a(f"v_add_u32 v{28+i}, {K1_HIST}, v{28+i}")
        a(f"ds_add_rtn_u32 v{32+i}, v{28+i}, v43")
    a.label("K1_skip_rank")
    a("s_mov_b64 exec, -1")
    a("s_waitcnt lgkmcnt(0)")
    a("s_barrier")
    stamp(a, 3)
    a("s_cmp_lg_u32 s3, 0")
    a("s_cbranch_scc1 K1_noscan")
    a(f"v_add_u32 v41, {K1_HIST}, v3")
    a("ds_read_b128 v[44:47], v41")
    a("s_waitcnt lgkmcnt(0)")
    a("v_add_u32 v49, v44, v45")
    a("v_add_u32 v50, v49, v46")
    a("v_add_u32 v51, v50, v47")
    a("v_mov_b32 v52, v51")
    scan64(a, 52)
    a("v_sub_u32 v52, v52, v51")
    a("v_add_u32 v53, v52, v44")
    a("v_add_u32 v54, v52, v49")
    a("v_add_u32 v55, v52, v50")
    a("ds_write_b128 v41, v[52:55]")
    for i in range(4):
        a(f"v_lshl_or_b32 v{56+i}, v{44+i}, 16, v{52+i}")
    a("buffer_store_dwordx4 v[56:59], v3, s[48:51], 0 offen")
    a("s_waitcnt lgkmcnt(0)")
    a.label("K1_noscan")
    e_in(3)
    a("v_lshrrev_b32 v60, 5, v0")
    a("s_mul_i32 s69, s2, 50")
    a("v_add_u32 v60, s69, v60")
    a("v_lshlrev_b32 v60, 8, v60")
    a("v_bfe_u32 v61, v0, 3, 2")
    a("v_lshl_add_u32 v60, v61, 6, v60")
    a("v_and_b32 v61, 3, v0")
    a("v_lshl_add_u32 v60, v61, 4, v60")
    a("v_bfe_u32 v61, v0, 2, 1")
    a(f"v_mul_u32_u24 v61, {XHALF}, v61")
    a("v_add_u32 v60, v60, v61")
    a("v_add_u32 v61, 8192, v60")
    a("v_cmp_gt_u32 vcc, 576, v0")
    a("v_mov_b32 v62, 0x80000000")
    a("v_cndmask_b32 v61, v62, v61, vcc")
    a("s_barrier")
    a("s_mov_b64 exec, s[70:71]")
    a("s_cbranch_execz K1_skip_scatter")
    for i in range(4):
        a(f"ds_read_b32 v{28+i}, v{28+i}")
    a(f"s_waitcnt vmcnt({2 + n_e(1, 3)})")
    a("s_mov_b32 s72, 0x80000000")
    a("s_mov_b32 s73, 0xffff0000")
    for i in range(4):
        a(f"v_lshl_or_b32 v{8+i}, v{8+i}, 8, v{36+i}")
        a(f"v_or_b32 v{8+i}, s72, v{8+i}")
    a("v_lshlrev_b32 v44, 16, v13")
    a("v_alignbit_b32 v45, v14, v13, 16")
    a("v_and_b32 v46, s73, v14")
    a("v_lshlrev_b32 v47, 16, v16")
    a("v_alignbit_b32 v48, v17, v16, 16")
    a("v_and_b32 v49, s73, v17")
    w1 = [12, 45, 15, 48]
    w2 = [44, 46, 47, 49]
    a("v_lshlrev_b32 v50, 2, v0")
    a("s_waitcnt lgkmcnt(0)")
    for i in range(4):
        a(f"v_add_u32 v{32+i}, v{32+i}, v{28+i}")
        a(f"v_mul_u32_u24 v{28+i}, 12, v{32+i}")
        a(f"v_add_u32 v{28+i}, {K1_MS}, v{28+i}")
        a(f"ds_write2_b32 v{28+i}, v{8+i}, v{w1[i]} offset0:0 offset1:1")
        a(f"ds_write_b32 v{28+i}, v{w2[i]} offset:8")
        a(f"v_lshlrev_b32 v{32+i}, 1, v{32+i}")
        a(f"v_add_u32 v{32+i}, {K1_INV}, v{32+i}")
        a(f"v_add_u32 v{52+i}, {i}, v50")
        a(f"ds_write_b16 v{32+i}, v{52+i}")
    a.label("K1_skip_scatter")
    a("s_mov_b64 exec, -1")
    a(f"s_waitcnt vmcnt({n_e(2, 3)})")
    a(f"buffer_store_dwordx4 v[20:23], v60, s[44:47], 0 offen{ST}")
    a(f"buffer_store_dwordx4 v[24:27], v61, s[44:47], 0 offen{ST}")
    e_in(4)
    a("s_waitcnt lgkmcnt(0)")
    a("s_barrier")
    stamp(a, 4)
    a(f"v_add_u32 v41, {K1_MS}, v1")
    a("ds_read_b128 v[4:7], v41")
    a("ds_read_b128 v[8:11], v41 offset:16384")
    a("ds_read_b128 v[12:15], v41 offset:32768")
    a("v_and_b32 v42, 0x3fe, v0")
    a(f"v_add_u32 v42, {K1_INV}, v42")
    for k in range(7):
        a(f"ds_read_u16 v{28+k}, v42 offset:{1024*k}")
    a("v_and_b32 v43, 1, v0")
    a("v_lshlrev_b32 v43, 4, v43")
    a("s_mov_b32 s74, 32768")
    a("s_waitcnt lgkmcnt(7)")
    a(f"buffer_store_dwordx4 v[4:7], v1, s[36:39], 0 offen{ST}")
    a(f"buffer_store_dwordx4 v[8:11], v1, s[36:39], s66 offen{ST}")
    a(f"buffer_store_dwordx4 v[12:15], v1, s[36:39], s74 offen{ST}")
    a("s_waitcnt lgkmcnt(0)")
    for k in range(7):
        a(f"v_lshl_add_u32 v{28+k}, v{28+k}, 5, v43")
    stamp(a, 5)
    a(f"s_waitcnt vmcnt({3 if kq[4] else 5})")
    a("s_barrier")
    stamp(a, 6)
    for k in range(6):
        a(f"ds_read_b128 v[{64+4*k}:{67+4*k}], v{28+k}")
    a("s_mov_b32 s75, 0")
    for k in range(6):
        a(f"s_waitcnt lgkmcnt({5-k})")
        a(f"buffer_store_dwordx4 v[{64+4*k}:{67+4*k}], v1, s[40:43], s75 offen{ST}")
        a("s_add_u32 s75, s75, 16384")
    a("s_cmp_ge_u32 s3, 4")
    a("s_cbranch_scc1 K1_fin")
    a("ds_read_b128 v[88:91], v34")
    a("s_waitcnt lgkmcnt(0)")
    a(f"buffer_store_dwordx4 v[88:91], v1, s[40:43], s75 offen{ST}")
    a.label("K1_fin")
    if opt("cpf", 2) & 4:
        a(f"s_cmp_ge_u32 s2, {opt('cpn', 8)}")
        a("s_cbranch_scc1 K1_nocpf")
        a("s_getpc_b64 s[76:77]")
        a.label("K1_here2")
        a("s_mov_b32 s78, K2_end-K1_here2")
        a("s_mov_b32 s79, 0x20000")
        a("v_lshlrev_b32 v60, 7, v0")
        a("buffer_load_dword v61, v60, s[76:79], 0 offen")
        a("s_waitcnt vmcnt(0)")
        a.label("K1_nocpf")
    stamp(a, 7)
    if PROF:
        a("s_waitcnt vmcnt(0)")
    stamp(a, 8)
    stamp(a, 15, True)
    prof_dump(a, 14, 0, 4, 3)
    a("s_endpgm")

    a.label("K1_prep")
    a("s_waitcnt lgkmcnt(0)")
    srd(a, 16, 54, 0, 16 * 320 * 2)
    srd(a, 20, 56, 0, 128 * 64 * 2)
    srd(a, 24, 58, 0, 192 * 64 * 2)
    srd(a, 28, 14, WS_WTAB, 20480)
    srd(a, 32, 14, WS_WSI, 40960)
    if opt("cpf", 2) & 2:
        a("s_getpc_b64 s[36:37]")
        a.label("K1_here")
        a("s_mov_b32 s38, K2_end-K1_here")
        a("s_mov_b32 s39, 0x20000")
        a("v_lshlrev_b32 v60, 7, v0")
        a("buffer_load_dword v61, v60, s[36:39], 0 offen")
    a("s_sub_u32 s60, s2, 250")
    a("s_lshl_b32 s60, s60, 10")
    prep_tables(a, "")
    a.label("K1_end")
    a("s_endpgm")
    return a


CAP = 3392
SLOWCAP = 256
MAXSTEPS = 142
MAXWSTEPS = 20
L_E = 0
L_RING = 32 + CAP * 32
RING_W = 6336
SUBB = 2112
L_SA = L_RING
L_SB = L_SA + MAXSTEPS * 128
L_MISC = L_SB + MAXSTEPS * 256
L_CNT = L_MISC
L_FLAG = L_MISC + 256
L_WSUM = L_MISC + 272
L_DUMMY = L_WSUM + 16
L_MAP = 94208
K2_LDS = 163840
assert L_MAP + CAP * 4 <= L_RING and L_DUMMY + 256 <= K2_LDS and L_RING + 8 * RING_W <= L_MISC

ACC = 0
WR = 88
B0 = 128
B1 = 144
GS, G0, G1, G2, N0, N2 = 160, 164, 168, 172, 176, 180
SEL = 184
M0R = 188
MBR = 198
GSP = (160, 252)
NID = 218
Y = 220
REP = 223
XA = 224
XOFF, QQ8, BAE, BAO, POFF, NST = 228, 230, 231, 232, 233, 234
U, PT, T8, EA = 236, 244, 235, 248
T0 = 236
TID, LANE = 250, 251
NVGPR = 256
XBIAS = 2048

S_WAVE = 3
R_XP, R_EP, R_MT, R_TB, R_P, R_W, R_OUT, R_ACC = 4, 8, 12, 16, 20, 24, 28, 32
S_NN, S_T, S_R0, S_LEN, S_CAP = 36, 37, 38, 39, 40
S_NODE0, S_NNW, S_STEP0, S_NS = 41, 42, 43, 44
S_D, S_REM, S_NODE, S_PHASE, S_TAB0, S_TAB1, S_RB, S_POFF = 45, 46, 47, 48, 49, 50, 51, 52
S_HI, S_SGN = 100, 101
S_MASK = 64
S_LAST = 78
S_NEND = 79
S_EM0 = 57
S_EVT = 59
S_OLD = 53
S_LEFT, S_PADR = 58, 63
S_PAT = 58
S_EGN = 63
NEWTAIL = opt('newtail', 0)
DRY = NEWTAIL and opt('dry', 0)
R_DBG = 76
R_FLG = 84
S_EB1, S_EB2, S_TAG = 88, 89, 96

PPOL = ["", " sc1", " nt", " sc0 sc1"][opt("ppol", 0)]
OPOL = ["", " sc1", " nt", " sc0 sc1"][opt("opol", 0)]

VC = opt("vc", 0)
HI = "v219" if VC else f"s{S_HI}"
SGN = f"v{TID}" if VC else f"s{S_SGN}"

TPATH = [0, 1, 2, 2, 2, 3, 3, 3, 4, 4, 4]
P0, P1 = 0, 1
P2 = [2, 3, 4]
P3 = [5, 6, 7]
P4 = [8, 9, 10]


def acc(t, cq):
    return ACC + 4 * (2 * t + cq)


def mfma_list():
    out = []
    for t, A, B, fl in ((P2[0], G0, B0, 1), (P1, G0, B0 + 8, 1), (P0, GS, B0, 1), (P3[0], GS, B0 + 8, 1),
                        (P2[2], G2, B0, 1), (P4[1], G2, B0 + 8, 1), (P2[1], G1, B0, 1), (P4[2], G1, B0 + 8, 1),
                        (P4[2], N0, B1, 0), (P4[1], N0, B1 + 8, 0), (P3[1], GS, B1, 1), (P3[2], GS, B1 + 8, 1),
                        (P4[0], N2, B1, 1), (P1, G2, B1 + 8, 0), (P1, G1, B1, 0), (P4[0], G1, B1 + 8, 0)):
        for cq in range(2):
            out.append((t, cq, A, B + 4 * cq, fl))
    if opt("chain", 1):
        n2, g2p1, g1p1, g1p4 = out[24:26], out[26:28], out[28:30], out[30:32]
        out[16], out[17] = out[17], out[16]
        out[24:32] = [g1p1[0], g2p1[0], g1p1[1], g2p1[1], n2[0], g1p4[0], n2[1], g1p4[1]]
    return out


def emit_mfma(a, m, first, p0, q0):
    t, cq, A, B, fl = m
    if A == GS:
        A = GSP[p0]
    if opt("nomfma", 0):
        return
    d = vr(acc(t, cq), 4)
    c = "0" if (first and fl) else d
    if q0:
        a(f"v_mfma_f32_16x16x16_bf16 {d}, {vr(A,2)}, {vr(B,2)}, {c}")
    else:
        a(f"v_mfma_f32_16x16x32_bf16 {d}, {vr(A,4)}, {vr(B,4)}, {c}")


def b_reads(k, pos):
    B = B0 if k < 2 else B1
    hf = k & 1
    return [f"ds_read_b64_tr_b16 {vr(B + 4*u + 2*hf, 2)}, v{BAE if u % 2 == 0 else BAO} offset:{pos*SUBB + u*32}"
            for u in range(4)]


def vmwait(n):
    return [] if opt("nowait", 0) else [f"s_waitcnt vmcnt({n})"]


def dma(k, pos):
    if opt("nodma", 0):
        return [[], [], []]
    hf, bp = k & 1, k >> 1
    so = S_TAB0 if bp == 0 else S_TAB1
    pol = ["", " sc1", " nt", " sc0 sc1", " sc0"][opt("xpol", 1)]
    return [[f"s_add_u32 m0, s{S_RB}, {pos*SUBB}"],
            [f"buffer_load_dwordx4 v{XA + 2*hf}, s[{R_XP}:{R_XP+3}], s{so} offen{pol} lds"],
            [f"buffer_load_dwordx4 v{XA + 2*hf + 1}, s[{R_XP}:{R_XP+3}], s{so} offen offset:1088{pol} lds"]]


W0_FETCH = [f"s_lshr_b32 s54, s{S_D}, 1",
            "s_set_gpr_idx_on s54, gpr_idx(SRC0)",
            f"v_mov_b32 v{REP}, v{M0R}",
            "s_set_gpr_idx_off"]
W0_REP = [f"v_mov_b32_dpp v{REP}, v{REP} row_shr:4 row_mask:0xf bank_mask:0xa",
          f"v_mov_b32_dpp v{REP}, v{REP} row_shl:4 row_mask:0xf bank_mask:0x5"]
WRAP = [f"s_mov_b32 s{S_D}, 0",
        f"s_add_u32 s{S_TAB0}, s{S_TAB0}, {XHALF}",
        f"s_add_u32 s{S_TAB1}, s{S_TAB1}, {XHALF}"]


def x_addr(q):
    return f"v_add_u32_dpp v{XA+q}, v{REP}, v{XOFF + (q & 1)} quad_perm:[{q},{q},{q},{q}] row_mask:0xf bank_mask:0xf"


META_SET = [f"s_set_gpr_idx_on s{S_D}, gpr_idx(SRC1)",
            f"v_mad_u32_u16 v{T8}, 8, v{MBR+1}, 0",
            f"v_lshlrev_b32 v{Y}, 16, v{MBR}",
            f"v_and_b32 v{Y+1}, {HI}, v{MBR}",
            f"v_and_b32 v{Y+2}, {HI}, v{MBR+1}",
            "s_set_gpr_idx_off"]


def e_addr(p):
    return [f"v_add_u32_dpp v{EA+h}, v{T8}, v{QQ8} quad_perm:[{2*p+h},{2*p+h},{2*p+h},{2*p+h}] "
            "row_mask:0xf bank_mask:0xf" for h in range(2)]


def e_reads(dst):
    return [f"ds_read_b64_tr_b16 {vr(dst + 2*h, 2)}, v{EA+h}" for h in range(2)]


def unpack_valu(aa, p):
    return [f"v_lshlrev_b32 v{U+2*aa}, 16, v{GSP[p]+aa}", f"v_and_b32 v{U+2*aa+1}, {HI}, v{GSP[p]+aa}"]


def gb(j, aa, p):
    if opt("nog", 0):
        return []
    hf, rl = aa >> 1, 2 * (aa & 1)
    pl = PT + 2 * (aa & 1)
    return [f"v_mul_f32_dpp v{pl}, v{Y+j}, v{U+2*aa} row_newbcast:{4*rl+2*p+hf} row_mask:0xf bank_mask:0xf",
            f"v_mul_f32_dpp v{pl+1}, v{Y+j}, v{U+2*aa+1} row_newbcast:{4*rl+4+2*p+hf} row_mask:0xf bank_mask:0xf",
            f"v_cvt_pk_bf16_f32 v{(G0, G1, G2)[j]+aa}, v{pl}, v{pl+1}"]


def neg(dst, src):
    return [f"v_xor_b32 v{dst+i}, {SGN}, v{src+i}" for i in range(4)]


SHORT = opt("short", 0)


def body_name(rho, kind, p0, p1):
    return f"S{rho}{kind}{p0}{p1}"


def goto_next(a, rho, kind, p1, fall=False):
    if p1 == 0:
        a(f"s_cmp_eq_u32 s{S_D}, 0")
        a(f"s_cbranch_scc1 {body_name(rho, kind, 0, 0)}")
    if not fall:
        a(f"s_branch {body_name(rho, kind, p1, 1 - p1)}")


def issue_cost(l):
    op = l.split()[0]
    if op.endswith(":"):
        return 0
    if op.startswith("v_"):
        return 5.3 if "_dpp" in op or op.startswith(("v_cvt_pk", "v_mad")) else 4.2
    return {"d": 8, "b": 14}.get(op[0], 4.1)


def step_body(a, rho, kind, p0, p1, fall, cold):
    tag = body_name(rho, kind, p0, p1)
    first = kind == "f"
    x = 3 if first else 0
    p = lambda k: (rho + k) % 3
    F = [[] for _ in range(32)]

    def event(slot, n, k, pos):
        F[slot] += vmwait(n)
        for i, r in enumerate(b_reads(k, pos)):
            F[slot + i].append(r)

    def refill(slot, k, pos):
        d = dma(k, pos)
        F[slot - 1] += d[0]
        F[slot] += [f"WAIT {k}"] + d[1]
        F[slot + opt("xg", 0)] += d[2]

    event(0, 4 + x, 2, p(2))
    refill(5, 1, p(2))
    event(8, 4 + x, 3, p(0))
    refill(13, 2, p(0))
    event(16, 4 + x, 0, p(1))
    refill(21, 3, p(1))
    event(24, 4, 1, p(2))
    refill(29, 0, p(2))
    F[31] += [f"s_sub_u32 s{S_REM}, s{S_REM}, 1"]
    if PROF == 4:
        F[30] += ["s_memrealtime s[80:81]" if opt("rt", 0) else "s_memtime s[80:81]"]
        F[7] += ["s_mov_b32 m0, s96", "s_add_u32 s96, s96, 1", "v_writelane_b32 v219, s80, m0"]

    qb = 1 - p0
    n0, n2 = neg(N0, G0), neg(N2, G2)
    ea, er = e_addr(p1), e_reads(GSP[qb])
    step = [f"s_add_u32 s{S_D}, s{S_D}, 1", f"s_cmp_lt_u32 s{S_D}, s{S_NS}", f"s_cbranch_scc0 {tag}_w"]
    if p1 == 1:
        fetch = [step + [f"{tag}_b:"] + W0_FETCH]
        rep = [[W0_REP[0]]]
        cold += [f"{tag}_w:"] + WRAP + [f"s_branch {tag}_b"]
    else:
        fetch = [step + W0_FETCH + ["FILL", W0_REP[1], f"{tag}_b:"]]
        rep = []
        cold += [f"{tag}_w:"] + WRAP + W0_FETCH + ["FILL", W0_REP[0], f"s_branch {tag}_b"]
    one = lambda lst: [[l] for l in lst]
    g0 = gb(0, 0, p1) + gb(0, 1, p1) + gb(0, 2, p1) + gb(0, 3, p1)
    g2 = gb(2, 0, p1) + gb(2, 1, p1)
    V = [(0, 6, g) for g in one(gb(2, 2, p0) + gb(2, 3, p0))]
    V += [(0, 10, g) for g in one(gb(1, 0, p0) + gb(1, 1, p0) + gb(1, 2, p0) + gb(1, 3, p0))]
    if p1 == 0:
        V += [(7, 11, META_SET)]
    V += [(0, 14, g) for g in one(n0[:2])]
    V += [(0, 14, [ea[0]]), (0, 14, [ea[1]]), (11, 15, [er[0]]), (11, 15, [er[1]])]
    V += [(0, 14, g) for g in one(n0[2:])]
    V += [(0, 22, g) for g in one(n2)]
    up = sum((unpack_valu(aa, qb) for aa in range(4)), [])
    V += [(opt("upe", 15), 22, ["WAIT e", up[0]])] + [(0, 24, g) for g in one(up[1:])]
    nb = opt("nb", 7)
    V += [(16, 30, g) for g in one(g0[:nb])]
    V += [(22, 26, g) for g in fetch] + [(0, 30, [g0[nb]])] + [(0, 27, g) for g in rep]
    V += [(0, 30, g) for g in one(g0[nb+1:nb+3])]
    V += [(0, 28, [x_addr(0)]), (0, 28, [x_addr(1)])]
    V += [(0, 30, g) for g in one(g0[nb+3:])]
    V += [(0, 31, [x_addr(2)]), (0, 31, [x_addr(3)])]
    if qb != p1:
        V += [(24, 31, [f"v_mov_b32 v{GSP[p1]+i}, v{GSP[qb]+i}" for i in range(4)])]
    V += [(0, 31, g) for g in one(g2[:2])] + [(27, 31, [g2[2]])] + [(27, 31, g) for g in one(g2[3:])]
    filler = g0[nb] if p1 == 0 else None
    if filler:
        V = [v for v in V if v[2] != [filler]]
    cost = lambda grp: sum(issue_cost(l) for l in grp)
    total = sum(cost(f) for f in F) + sum(cost(v[2]) for v in V)
    out, cum, i = [], 0.0, 0
    for sl in range(32):
        cum += cost(F[sl])
        mine = []
        while i < len(V):
            e, late, grp = V[i]
            must = any(V[j][1] <= sl for j in range(i, len(V)))
            if sl < e:
                assert not must, (tag, sl, grp)
                break
            if not must and cum + cost(grp) / 2 > total * (sl + 1) / 32:
                break
            mine += grp
            cum += cost(grp)
            i += 1
        tail = [l for l in F[sl] if l.startswith("s_sub")]
        out.append(mine[:1] + [l for l in F[sl] if l not in tail] + mine[1:] + tail
                   if mine and not mine[0].startswith(("s_", "WAIT", "ds_")) else
                   [l for l in F[sl] if l not in tail] + mine + tail)
    assert i == len(V)
    if opt("sched", 2) == 0:
        F = [[] for _ in range(32)]

        def spread(slot, lst, per=2):
            for i, l in enumerate(lst):
                if l is not None:
                    F[slot + i // per].append(l)

        def event2(slot, n, k, pos):
            r = b_reads(k, pos)
            nd = opt("nd", 4)
            if opt("dsf", 0):
                FIRST[slot] += vmwait(n) + r[:nd]
            else:
                F[slot] += vmwait(n) + r[:nd]
            F[slot + 1] += r[nd:]

        FIRST = [[] for _ in range(32)]
        ev2 = opt("ev2", 8)
        spread(0, gb(2, 2, p0) + gb(2, 3, p0) + gb(1, 0, p0) + gb(1, 1, p0) + gb(1, 2, p0) + gb(1, 3, p0))
        rs = opt("rs", 2)
        event2(0, 4 + x, 2, p(2))
        refill(rs, 1, p(2))
        if ev2 == 8:
            event2(8, 4 + x, 3, p(0))
        if p1 == 0:
            F[9] += META_SET
            spread(10, n0[:2] + ea)
            spread(13, n0[2:] + n2)
        else:
            spread(9, n0[:2] + ea + n0[2:])
            spread(13, n2)
        if ev2 == 8:
            refill(8 + max(rs, opt("rs2", 3)), 2, p(0))
            F[opt("es", 13)] += er
        else:
            event2(ev2, 4 + x, 3, p(0))
            F[ev2] += er
            refill(ev2 + rs, 2, p(0))
        event2(16, 4 + x, 0, p(1))
        F[17] += ["WAIT e"]
        spread(17, up)
        refill(16 + rs, 3, p(1))
        g = g0 + g2
        filler = g[0] if p1 == 0 else None
        F[21] += fetch[0]
        if p1 == 1:
            F[22] += rep[0] + [g[0]]
        spread(23 - (p1 == 0), g[1:3], 2 if p1 == 1 else 1)
        spread(24, [x_addr(0), g[3], x_addr(1), g[4]] + g[5:9] + [x_addr(2), g[9], x_addr(3)], 2)
        spread(28, g[10:12], 1)
        spread(29, g[12:], 2)
        if qb != p1:
            F[24] += [f"v_mov_b32 v{GSP[p1]+i}, v{GSP[qb]+i}" for i in range(4)]
        event2(24, 4, 1, p(2))
        refill(24 + rs, 0, p(2))
        if PROF == 4:
            F[29] += ["s_memrealtime s[80:81]" if opt("rt", 0) else "s_memtime s[80:81]"]
            F[6] += ["s_mov_b32 m0, s96", "s_add_u32 s96, s96, 1", "v_writelane_b32 v219, s80, m0"]
        if PROF == 6 and first:
            F[6] += ["s_sub_u32 s62, s62, s80", f"s_add_u32 s{S_PROF+14}, s{S_PROF+14}, s62"]
        F[31] += [f"s_sub_u32 s{S_REM}, s{S_REM}, 1"]
        F = [FIRST[i] + F[i] for i in range(32)]
        gf = opt("gf", 1)
        out = [sum(F[i - gf + 1:i + 1], []) if i % gf == gf - 1 else [] for i in range(32)]
    if opt("sched", 2) == 2:
        F = [[] for _ in range(32)]
        ev = [int(c) for c in opt("ev", "0,8,16,24").split(",")]
        rs = opt("rs", 2)
        for slot, n, k, pos, k2 in ((ev[0], 4 + x, 2, p(2), 1), (ev[1], 4 + x, 3, p(0), 2),
                                    (ev[2], 4 + x, 0, p(1), 3), (ev[3], 4, 1, p(2), 0)):
            F[slot] += vmwait(n) + b_reads(k, pos)
            refill(slot + rs, k2, pos)
        nb = opt("nb2", 3)
        filler = g0[nb] if p1 == 0 else None
        V = [(0, g) for g in one(gb(2, 2, p0) + gb(2, 3, p0) + gb(1, 0, p0) + gb(1, 1, p0) + gb(1, 2, p0) + gb(1, 3, p0))]
        if p1 == 0:
            V += [(0, META_SET)]
        V += [(0, g) for g in one(n0[:2] + [ea[0]])] + [(0, [ea[1]] + er)]
        V += [(0, g) for g in one(n0[2:] + n2)]
        V += [(0, ["WAIT e", up[0]])] + [(0, g) for g in one(up[1:])]
        V += [(0, g) for g in one(g0[:nb])] + [(ev[2] + rs + 1, g) for g in fetch]
        if p1 == 1:
            V += [(0, [g0[nb]])] + [(0, g) for g in rep]
        V += [(0, g) for g in one(g0[nb+1:nb+3] + [x_addr(0), x_addr(1)] + g0[nb+3:] + [x_addr(2), x_addr(3)])]
        if qb != p1:
            V += [(24, [f"v_mov_b32 v{GSP[p1]+i}, v{GSP[qb]+i}" for i in range(4)])]
        V += [(0, g) for g in one(g2[:2])] + [(27, [g2[2]])] + [(0, g) for g in one(g2[3:])]
        nv = lambda grp: sum(l.startswith("v_") or l == "FILL" for l in grp)
        wt = [opt("cw", 1.0) if any(l[0] in "db" for l in F[sl]) else 1.0 for sl in range(32)]
        tot = sum(nv(g) for _, g in V)
        out, done, i = [], 0, 0
        for sl in range(32):
            mine = []
            while i < len(V) and V[i][0] <= sl and (sl == 31 or done + nv(V[i][1]) / 2 <= tot * sum(wt[:sl+1]) / sum(wt)):
                if V[i][1] is META_SET and any(l.startswith("s_add_u32 m0") for l in F[sl]):
                    out_m0 = [l for l in F[sl] if l.startswith("s_add_u32 m0")]
                    F[sl] = [l for l in F[sl] if l not in out_m0]
                    mine += V[i][1] + out_m0
                else:
                    mine += V[i][1]
                done += nv(V[i][1])
                i += 1
            if any(l.startswith("s_set_gpr_idx_on") for l in mine) and any(l.startswith("buffer") for l in F[sl]):
                out.append(F[sl] + mine)
            else:
                out.append(mine + F[sl])
        out[31] += [f"s_sub_u32 s{S_REM}, s{S_REM}, 1"]
        if opt("bp", 0) == 1 and not first:
            out[opt("bps", 16)] += ["s_setprio 0"]
        if opt("bp", 0) == 2 and not first:
            out[0] += ["s_setprio 2"]
        order = [l for o in out for l in o]
        at = lambda l: next(k for k, o in enumerate(out) if l in o)
        assert at(gb(2, 3, p0)[2]) < 7 and at(gb(1, 3, p0)[2]) < 11 and at(n0[3]) < 15 and at(n2[3]) < 27
        assert order.index(x_addr(1)) < order.index(dma(0, p(2))[1][0])
        if PROF == 6 and first:
            out[6] += ["s_sub_u32 s62, s62, s80", f"s_add_u32 s{S_PROF+14}, s{S_PROF+14}, s62"]
    flat = [(sl, l) for sl in range(32) for l in out[sl]]
    need = {"1": b_reads(2, p(2)), "2": b_reads(3, p(0)), "3": b_reads(0, p(1)), "0": None, "e": er}
    a.label(tag)
    ml = mfma_list()
    for sl in range(32):
        emit_mfma(a, ml[sl], first, p0, 0)
        for l in out[sl]:
            if l.startswith("WAIT"):
                pos = flat.index((sl, l))
                ds = [y for _, y in flat[:pos] if y.startswith("ds_")]
                want = need[l.split()[1]]
                n = 0 if want is None else len(ds) - 1 - max(k for k, y in enumerate(ds) if y in want)
                assert want is None or all(w in ds for w in want)
                l = f"s_waitcnt lgkmcnt({n})"
            if l == "FILL":
                l = filler
            if opt("nods", 0) and (l.startswith("ds_") or l.startswith("s_waitcnt lgkm")):
                continue
            if opt("novalu", 0) and l.startswith("v_") and not l.startswith(("v_writelane", "v_mfma")):
                continue
            a(l)
    for k, l in enumerate(cold):
        if l == "FILL":
            cold[k] = filler
    nr = (rho + 1) % 3
    if fall == "n":
        a(f"s_cbranch_scc1 EP{nr}{p1}")
        goto_next(a, nr, "n", p1, True)
    else:
        if p1 == 1:
            a(f"s_cbranch_scc0 {body_name(nr, 'n', 1, 0)}")
        else:
            a(f"s_cbranch_scc0 {tag}_c")
            cold += [f"{tag}_c:", f"s_cmp_lg_u32 s{S_D}, 0", f"s_cbranch_scc1 {body_name(nr, 'n', 0, 1)}",
                     f"s_branch {body_name(nr, 'n', 0, 0)}"]
        if fall != "e":
            a(f"s_branch EP{nr}{p1}")


def node_steps(lane):
    return [f"v_readlane_b32 s{S_REM}, v{NST}, s{lane}"]


def load_w(a, h):
    a(f"s_mov_b32 s57, {10240*h}")
    a(f"v_lshlrev_b32 v67, 4, v{LANE}")
    for pc in range(10):
        if pc % 4 == 0 and pc:
            a("s_add_u32 s57, s57, 4096")
        a(f"buffer_load_dwordx4 {vr(WR+4*pc,4)}, v67, s[{R_W}:{R_W+3}], s57 offen offset:{(pc%4)*1024}")


def pipeline_start(a):
    def run(lst):
        for l in lst:
            a(l)

    def dma_now(k, pos):
        for g in dma(k, pos):
            run(g)

    if VC:
        a("v_mov_b32 v219, 0xffff0000")
        a(f"v_mov_b32 v{TID}, 0x80008000")
    run(W0_FETCH + [W0_REP[0]] + [x_addr(q) for q in range(4)])
    dma_now(0, 0)
    dma_now(1, 1)
    dma_now(2, 2)
    run(META_SET + e_addr(0))
    a(f"s_waitcnt vmcnt({0 if opt('nodma', 0) else 6})")
    a("s_barrier")
    stamp(a, 6)
    run(e_reads(GSP[0]))
    run(["s_waitcnt vmcnt(4)"] + b_reads(0, 0) + ["s_waitcnt lgkmcnt(0)"])
    dma_now(3, 0)
    for aa in range(4):
        run(unpack_valu(aa, 0))
    run([f"s_mov_b32 s{S_D}, 1", f"s_cmp_lt_u32 s{S_D}, s{S_NS}", "s_cbranch_scc0 I_w"] + W0_FETCH + [W0_REP[1]])
    a("s_branch I_b")
    run(["I_w:"] + WRAP + W0_FETCH + [W0_REP[0], "I_b:"])
    run([x_addr(q) for q in range(4)])
    run(["s_waitcnt vmcnt(4)"] + b_reads(1, 1))
    run(gb(0, 0, 0) + gb(0, 1, 0) + gb(0, 2, 0) + gb(0, 3, 0) + gb(2, 0, 0) + gb(2, 1, 0))
    if PROF == 6:
        a("s_mov_b32 s62, 0")
        a("s_mov_b32 s80, 0")
        a(f"s_mov_b32 s{S_PROF+14}, 0")
    if PROF == 4:
        a("s_memrealtime s[80:81]" if opt("rt", 0) else "s_memtime s[80:81]")
        a("s_mov_b32 s96, 0")
        a("v_mov_b32 v219, 0")
    a("s_waitcnt lgkmcnt(0)")
    dma_now(0, 1)
    load_w(a, 0)
    if opt("prio", 3) == 3:
        pat = opt("pat", "110100000000")
        a(f"s_mov_b32 s{S_PAT}, {int(pat[::-1], 2)}")
        a(f"s_cmp_eq_u32 s{S_NNW}, 7")
        a(f"s_cmov_b32 s{S_PAT}, {int(opt('pat7', '11010100000000')[::-1], 2)}")
        if opt("epp", 3) == 3:
            a(f"s_cmp_ge_u32 s{S_WAVE}, 4")
            a(f"s_cmov_b32 s{S_PAT}, -1")
        a(f"s_setprio {2 * int(pat[0])}")
    if opt("prio", 3) in (1, 3):
        a(f"s_cmp_lt_u32 s{S_WAVE}, 4")
        a("s_cbranch_scc1 I_p")
        a("s_setprio 1")
        a.label("I_p")
    goto_next(a, 0, "f", 0)


def epilogue(a, rho, p1, cold):
    tag = f"EP{rho}{p1}"
    a.label(tag)
    if PROF == 6:
        a("s_memtime s[80:81]")
    order = [P2[0], P0, P3[0], P2[2], P2[1], P4[2], P4[1], P3[1], P3[2], P1, P4[0]]
    book = [f"s_mul_i32 s55, s{S_NODE}, {P_NODE}",
            f"s_add_u32 s55, s55, s{S_POFF}",
            f"s_add_u32 s{S_NODE}, s{S_NODE}, 1",
            f"s_cmp_lt_u32 s{S_NODE}, s{S_NEND}",
            f"s_cselect_b32 s56, s{S_NODE}, -2",
            f"s_cselect_b32 s{S_NODE}, s{S_NODE}, s{S_NODE0}",
            *node_steps(S_NODE),
            *([f"s_lshl1_add_u32 s54, s{S_REM}, 2", f"s_sub_u32 s{S_LEFT}, s{S_LEFT}, s54"]
              if opt("prio", 3) == 2 else []),
            f"s_cmp_ge_u32 s56, s{S_EVT}"]
    if opt("prio", 3) == 2:
        a(f"v_mov_b32 v{B1+12}, s{S_PADR}")
        a(f"v_mov_b32 v{B1+13}, s{S_LEFT}")
        a(f"ds_wrxchg_rtn_b32 v{B1+14}, v{B1+12}, v{B1+13}")
    EPP = opt("epp", 3)

    def pattern_prio():
        if EPP == 3:
            a(f"s_ashr_i32 s{S_PAT}, s{S_PAT}, 1")
            a(f"s_bitcmp1_b32 s{S_PAT}, 0")
            a(f"s_cbranch_scc0 {tag}_p")
            a("s_setprio 1")
            a.label(f"{tag}_p")
            return
        if EPP:
            a("s_setprio 1")
        a(f"s_cmp_lt_u32 s{S_WAVE}, 4")
        a(f"s_cbranch_scc0 {tag}_p")
        a(f"s_lshr_b32 s{S_PAT}, s{S_PAT}, 1")
        a(f"s_bitcmp1_b32 s{S_PAT}, 0")
        a("s_setprio 0")
        a(f"s_cbranch_scc0 {tag}_p")
        a("s_setprio 2")
        a.label(f"{tag}_p")

    EG = opt("eg", 0)
    if opt("prio", 3) == 3:
        if EG:
            a(f"s_cmp_ge_u32 s{S_NODE}, s{S_EGN}")
            a(f"s_cbranch_scc1 {tag}_eg")
            cold += [f"{tag}_eg:",
                     f"s_sub_u32 s54, s{S_NS}, s{S_D}",
                     f"s_cmp_ge_u32 s{S_TAB0}, {2*XHALF}",
                     "s_cselect_b32 s54, 0, s54",
                     f"s_lshr_b32 s57, s{S_WAVE}, 2",
                     "s_lshl1_add_u32 s54, s54, s57",
                     "s_add_u32 s54, s54, 2",
                     f"s_and_b32 s57, s{S_WAVE}, 3",
                     f"s_lshl2_add_u32 s57, s57, {L_CNT + 240}",
                     f"v_mov_b32 v{B1+12}, s57",
                     f"v_mov_b32 v{B1+13}, s54",
                     f"ds_wrxchg_rtn_b32 v{B1+14}, v{B1+12}, v{B1+13}",
                     "s_waitcnt lgkmcnt(0)",
                     f"v_readfirstlane_b32 s57, v{B1+14}",
                     "s_cmp_eq_u32 s57, 0",
                     "s_cselect_b32 s57, 1000, s57",
                     "s_xor_b32 s55, s57, s54",
                     "s_bitcmp1_b32 s55, 0",
                     "s_cselect_b32 s55, 1, 0",
                     "s_cmp_eq_u32 s57, 1000",
                     "s_cselect_b32 s55, 1, s55",
                     "s_cmp_eq_u32 s55, 0",
                     f"s_cbranch_scc1 {tag}_p",
                     "s_cmp_gt_u32 s54, s57",
                     "s_setprio 0",
                     f"s_cbranch_scc0 {tag}_p",
                     "s_setprio 3",
                     f"s_branch {tag}_p"]
        if EPP:
            a(f"s_setprio {3 if EPP == 1 else 0}")
        else:
            pattern_prio()
    if opt("prio", 3) == 1:
        a(f"s_cmp_lt_u32 s{S_WAVE}, 4")
        a(f"s_cbranch_scc0 {tag}_p")
        a(f"s_setprio {2 if int(opt('prpat', '110110')[2 * rho + p1]) else 0}")
        a.label(f"{tag}_p")
    fb = []
    if opt("prio", 3) == 2:
        fb = ["s_waitcnt lgkmcnt(0)",
              f"v_readfirstlane_b32 s57, v{B1+14}",
              f"s_xor_b32 s54, s57, s{S_LEFT}",
              "s_bitcmp1_b32 s54, 0",
              f"s_cbranch_scc0 {tag}_p",
              f"s_cmp_gt_u32 s{S_LEFT}, s57",
              "s_setprio 0",
              f"s_cbranch_scc0 {tag}_p",
              "s_setprio 2",
              f"{tag}_p:"]
    eo = opt("eo", 1)
    groups = [order[i:i + eo] for i in range(0, len(order), eo)] if opt("noep", 0) < 2 else []
    for grp in groups:
        for r in range(0 if opt("noep", 0) else 4):
            for t in grp:
                for cq in range(2):
                    d, w = acc(t, cq), WR + 4 * (2 * TPATH[t] + cq)
                    if r == 0:
                        a(f"v_mul_f32 v{d}, v{d}, v{w}")
                    else:
                        a(f"v_fmac_f32 v{d}, v{d+r}, v{w+r}")
        for t in grp:
            n = "-" if t == P4[2] else ""
            a(f"v_cvt_pk_bf16_f32 v{B1+t}, {n}v{acc(t,0)}, {n}v{acc(t,1)}")
            if t == P0:
                a(f"v_mov_b32 v{B1+11}, 0")
            if t == P3[0]:
                for l in fb:
                    a(l)
        if P1 in grp:
            a(f"v_mfma_f32_16x16x32_bf16 {vr(20,4)}, {vr(SEL,4)}, {vr(B1+4,4)}, 0")
    if opt("prio", 3) == 3 and EPP:
        pattern_prio()
    a(book[0])
    a(f"v_mfma_f32_16x16x32_bf16 {vr(16,4)}, {vr(SEL,4)}, {vr(B1,4)}, 0")
    a(f"v_mfma_f32_16x16x32_bf16 {vr(24,4)}, {vr(SEL,4)}, {vr(B1+8,4)}, 0")
    a(f"v_cvt_pk_bf16_f32 v65, v20, v21")
    for l in book[1:]:
        a(l)
    a(f"buffer_store_dword v65, v{POFF}, s[{R_P}:{R_P+3}], s55 offen offset:256{PPOL}")
    for i in (0, 2):
        a(f"v_cvt_pk_bf16_f32 v{64+i}, v{16+4*i}, v{17+4*i}")
    for i in (0, 2):
        a(f"buffer_store_dword v{64+i}, v{POFF}, s[{R_P}:{R_P+3}], s55 offen offset:{256*i}{PPOL}")
    if opt("egx", 0):
        a("s_cselect_b32 s57, 1, 0")
        a(f"s_cmp_lg_u32 s{S_PHASE}, 0")
        a(f"s_cbranch_scc1 {tag}_noeg")
        for i in range(2):
            a("v_mul_lo_u32 v218, v218, s97")
            a("v_add_u32 v218, 12345, v218")
            a("v_mul_hi_u32 v67, v218, s96")
            a("v_lshlrev_b32 v67, 5, v67")
            a(f"s_mov_b32 m0, {L_DUMMY}")
            a(f"buffer_load_dword v67, s[92:95], 0 offen{['', ' nt', ' sc1'][opt('egx', 0) - 1]} lds")
        a.label(f"{tag}_noeg")
        a("s_cmp_lg_u32 s57, 0")
    if PROF == 6:
        a("s_memtime s[62:63]")
    a(f"s_cbranch_scc1 {tag}_evt")
    a.label(f"{tag}_go")
    goto_next(a, rho, "f", p1, True)
    c = Asm()
    c.label(f"{tag}_evt")
    c("s_cmp_eq_u32 s56, -2")
    c(f"s_cbranch_scc1 {tag}_end")
    c(f"s_mov_b32 s{S_EVT}, -2")
    c("s_and_b32 s54, s2, 31")
    c("s_lshl_b32 s54, s54, 3")
    c(f"s_add_u32 s54, s54, s{S_WAVE}")
    c(f"s_mul_i32 s54, s54, {98*128}")
    c(f"s_add_u32 s54, s54, {XHALF + XBIAS}")
    c(f"v_lshlrev_b32 v67, 7, v{LANE}")
    c(f"s_mov_b32 m0, {L_DUMMY}")
    if opt("pfm", 64) < 64:
        c(f"s_bfm_b64 exec, {opt('pfm', 64)}, 0")
    c(f"buffer_load_dword v67, s[{R_XP}:{R_XP+3}], s54 offen lds")
    c("s_mov_b64 exec, -1")
    c(f"s_branch {tag}_go")
    c.label(f"{tag}_end")
    c(f"s_cmp_lg_u32 s{S_PHASE}, 0")
    c("s_cbranch_scc1 TAIL")
    if PROF not in (6, 7):
        stamp(c, 7, late=True)
    c(f"s_mov_b32 s{S_EVT}, -2")
    if opt("otlb", 0):
        c("v_mov_b32 v67, 0")
        c(f"s_mov_b32 m0, {L_DUMMY}")
        c(f"buffer_load_dword v67, s[{R_OUT}:{R_OUT+3}], 0 offen lds")
    if opt("eg", 0):
        c(f"s_sub_u32 s{S_EGN}, s{S_NEND}, {opt('eg', 0) + 1}")
        c(f"s_max_i32 s{S_EGN}, s{S_EGN}, 0")
    c(f"s_mov_b32 s{S_PHASE}, 1")
    c(f"s_mov_b32 s{S_POFF}, {P_HALF}")
    load_w(c, 1)
    c(f"s_branch {tag}_go")
    cold += c.lines


NREP = opt("nrep", 16)
WS_FLAG = 0x60000


def get_nonce(a, tag):
    a("s_mov_b32 s62, 0x100000")
    a("v_mov_b32 v111, 0")
    a.label(f"{tag}_l")
    a(f"buffer_load_dword v110, v111, s[{R_DBG}:{R_DBG+3}], 0 offen sc1")
    a("s_sub_u32 s62, s62, 1")
    a(f"s_cbranch_scc1 {tag}_d")
    a("s_waitcnt vmcnt(0)")
    a(f"v_readfirstlane_b32 s{S_TAG}, v110")
    a(f"s_cmp_eq_u32 s{S_TAG}, 0")
    a(f"s_cbranch_scc1 {tag}_l")
    a.label(f"{tag}_d")


def signal(a, which, tag, wave=0):
    a(f"s_cmp_lg_u32 s{S_WAVE}, {wave}")
    a(f"s_cbranch_scc1 {tag}")
    a(f"s_cmp_lg_u32 s{S_TAG}, 0")
    a(f"s_cbranch_scc1 {tag}_n_d")
    get_nonce(a, tag + "_n")
    a("v_and_b32 v111, 63, v0")
    a("v_lshlrev_b32 v111, 10, v111")
    a(f"v_mov_b32 v110, s{S_TAG}")
    a("s_lshl_b32 s62, s2, 2")
    a(f"s_add_u32 s62, s62, {which * NREP * 1024}")
    a(f"s_bfm_b64 exec, {NREP}, 0")
    a(f"buffer_store_dword v110, v111, s[{R_FLG}:{R_FLG+3}], s62 offen sc1")
    a("s_mov_b64 exec, -1")
    a.label(tag)


def flag_load(a, which, mask=None):
    if opt("repx", 0):
        a(f"s_lshr_b32 s62, s2, {8 - (NREP - 1).bit_length()}")
    else:
        a(f"s_and_b32 s62, s2, {NREP - 1}")
    a("s_lshl_b32 s62, s62, 10")
    a(f"s_add_u32 s62, s62, {which * NREP * 1024}")
    a(f"v_lshlrev_b32 v111, 4, v{LANE}")
    if mask:
        a(f"s_mov_b64 exec, {mask}")
    a(f"buffer_load_dwordx4 v[112:115], v111, s[{R_FLG}:{R_FLG+3}], s62 offen sc1")
    if mask:
        a("s_mov_b64 exec, -1")


def flag_test(a):
    a(f"v_xor_b32 v112, s{S_TAG}, v112")
    a(f"v_xor_b32 v113, s{S_TAG}, v113")
    a(f"v_xor_b32 v114, s{S_TAG}, v114")
    a(f"v_xor_b32 v115, s{S_TAG}, v115")
    a("v_or3_b32 v112, v112, v113, v114")
    a("v_or_b32 v112, v112, v115")
    a("v_cmp_ne_u32 vcc, 0, v112")
    a("s_cmp_eq_u64 vcc, 0")


def poll(a, which, tag):
    a(f"s_cmp_lg_u32 s{S_WAVE}, 0")
    a(f"s_cbranch_scc1 {tag}_d")
    a("s_mov_b32 s61, 0x100000")
    a.label(f"{tag}_l")
    flag_load(a, which)
    a("s_sub_u32 s61, s61, 1")
    a(f"s_cbranch_scc1 {tag}_d")
    a("s_waitcnt vmcnt(0)")
    flag_test(a)
    a(f"s_cbranch_scc1 {tag}_d")
    if opt("slp", 0):
        a(f"s_sleep {opt('slp', 0)}")
    a(f"s_branch {tag}_l")
    a.label(f"{tag}_d")


def part1(a):
    NT, ST = " nt", " sc1"
    D, SRC, RH, X, BA, RK, DL = 4, 12, 20, 32, 48, 56, 64
    a("s_load_dwordx8 s[4:11], s[0:1], 0")
    a("s_load_dwordx8 s[52:59], s[0:1], 32")
    a("s_load_dwordx4 s[12:15], s[0:1], 80")
    a("v_lshlrev_b32 v1, 4, v0")
    a("v_mul_u32_u24 v2, 24, v0")
    a("v_and_b32 v3, 63, v0")
    a("v_lshlrev_b32 v3, 4, v3")
    a("v_lshrrev_b32 v72, 6, v0")
    a(f"v_readfirstlane_b32 s{S_WAVE}, v72")
    a("s_mul_i32 s60, s2, 12800")
    a("s_mul_i32 s61, s2, 19200")
    a("s_mul_i32 s62, s2, 25600")
    a("s_mul_i32 s63, s2, 102400")
    a("s_mul_i32 s64, s2, 38400")
    a("s_lshl_b32 s65, s2, 10")
    a("s_mov_b32 s66, 8192")
    a("s_waitcnt lgkmcnt(0)")
    srd(a, R_DBG, 12, 0, 256)
    srd(a, R_FLG, 14, WS_FLAG, 2 * NREP * 1024)
    a(f"v_and_b32 v{LANE}, 63, v0")
    a(f"s_or_b32 s74, s2, s{S_WAVE}")
    a("s_cbranch_scc1 P1_notag")
    a("s_memrealtime s[74:75]")
    a("s_waitcnt lgkmcnt(0)")
    a("s_or_b32 s74, s74, 1")
    a("v_mov_b32 v110, s74")
    a("v_mov_b32 v111, 0")
    a("s_mov_b64 exec, 1")
    a(f"buffer_store_dword v110, v111, s[{R_DBG}:{R_DBG+3}], 0 offen sc1")
    a("s_mov_b64 exec, -1")
    a.label("P1_notag")
    a(f"s_mov_b32 s{S_TAG}, 0")
    a("s_cmp_ge_u32 s2, 250")
    a("s_cbranch_scc1 P1_prep")
    if opt("cpf", 2) & 8:
        a("s_getpc_b64 s[36:37]")
        a.label("P1_here2")
        a("s_mov_b32 s38, K2_end-P1_here2")
        a("s_mov_b32 s39, 0x20000")
        a("v_lshlrev_b32 v60, 7, v0")
        a("s_and_b32 s75, s2, 31")
        a("s_cbranch_scc1 P1_nocp")
        a("buffer_load_dword v61, v60, s[36:39], 0 offen")
        a.label("P1_nocp")
    srd(a, 16, 52, "s60", 12800)
    a(f"buffer_load_dwordx4 {vr(D,4)}, v1, s[16:19], 0 offen{NT}")
    a(f"buffer_load_dwordx4 {vr(D+4,4)}, v1, s[16:19], s66 offen{NT}")
    a("v_lshlrev_b32 v73, 2, v0")
    a("v_mov_b32 v74, 0")
    a(f"s_cmp_ge_u32 s{S_WAVE}, 4")
    a("s_cbranch_scc1 P1_nozero")
    a(f"v_add_u32 v73, {K1_HIST}, v73")
    a("ds_write_b32 v73, v74")
    a.label("P1_nozero")
    srd(a, 20, 10, "s60", 12800)
    srd(a, 24, 6, "s61", 19200)
    srd(a, 28, 4, "s62", 25600)
    srd(a, 32, 8, "s63", 102400)
    a("s_mov_b32 s69, 12288")
    a(f"s_lshl_b32 s67, s{S_WAVE}, 10")
    a("s_waitcnt lgkmcnt(0)")
    a("s_barrier")
    a(f"buffer_load_dwordx4 {vr(SRC,4)}, v1, s[20:23], 0 offen{NT}")
    a(f"buffer_load_dwordx4 {vr(SRC+4,4)}, v1, s[20:23], s66 offen{NT}")
    for r, so in ((0, "0"), (1, "s69")):
        a(f"buffer_load_dwordx4 {vr(RH+6*r,4)}, v2, s[24:27], {so} offen{NT}")
        a(f"buffer_load_dwordx2 {vr(RH+6*r+4,2)}, v2, s[24:27], {so} offen offset:16{NT}")
    a("s_mov_b32 s68, 0")
    for k in range(4):
        a(f"buffer_load_dwordx4 {vr(X+4*k,4)}, v1, s[28:31], s68 offen{NT}")
        a("s_add_u32 s68, s68, 8192")
    kb = [int(c, 16) for c in opt("kb", "d000")]

    def e_in(i):
        for k in range(sum(kb[:i]), sum(kb[:i + 1])):
            if k == 12:
                a(f"s_cmp_ge_u32 s{S_WAVE}, 4")
                a("s_cbranch_scc1 P1_noe13")
            a("s_mov_b32 m0, s67")
            a(f"buffer_load_dwordx4 v3, s[32:35], s67 offen{NT} lds")
            a("s_add_u32 s67, s67, 8192")
            if k == 12:
                a.label("P1_noe13")

    def n_e(i):
        return min(sum(kb[:i + 1]), 12)

    e_in(0)
    a("s_add_u32 s68, s64, %d" % WS_META)
    srd(a, 36, 14, "s68", 38400)
    a("s_add_u32 s68, s63, %d" % WS_EP)
    srd(a, 40, 14, "s68", 102400)
    srd(a, 44, 14, WS_XP, 2 * XHALF)
    srd(a, 48, 14, "s65", 1024)
    a("v_cmp_gt_u32 vcc, 288, v0")
    a("s_mov_b64 s[70:71], vcc")
    a("v_mov_b32 v75, 1")
    a(f"s_waitcnt vmcnt({10 + n_e(0)})")
    stamp(a, 2, k1=True)
    for i in range(8):
        if i == 4:
            a("s_mov_b64 exec, s[70:71]")
            a("s_cbranch_execz P1_skip_rank")
        a(f"v_mul_u32_u24 v{BA+i}, 21400, v{D+i}")
        a(f"v_lshrrev_b32 v{BA+i}, 20, v{BA+i}")
        a(f"v_mul_u32_u24 v{DL+i}, 49, v{BA+i}")
        a(f"v_sub_u32 v{DL+i}, v{D+i}, v{DL+i}")
        a(f"v_lshlrev_b32 v{BA+i}, 2, v{BA+i}")
        a(f"v_add_u32 v{BA+i}, {K1_HIST}, v{BA+i}")
        a(f"ds_add_rtn_u32 v{RK+i}, v{BA+i}, v75")
    a.label("P1_skip_rank")
    a("s_mov_b64 exec, -1")
    a("s_waitcnt lgkmcnt(0)")
    a("s_barrier")
    a(f"s_cmp_lg_u32 s{S_WAVE}, 0")
    a("s_cbranch_scc1 P1_noscan")
    a(f"v_add_u32 v73, {K1_HIST}, v3")
    a("ds_read_b128 v[76:79], v73")
    a("s_waitcnt lgkmcnt(0)")
    a("v_add_u32 v81, v76, v77")
    a("v_add_u32 v82, v81, v78")
    a("v_add_u32 v83, v82, v79")
    a("v_mov_b32 v84, v83")
    scan64(a, 84)
    a("v_sub_u32 v84, v84, v83")
    a("v_add_u32 v85, v84, v76")
    a("v_add_u32 v86, v84, v81")
    a("v_add_u32 v87, v84, v82")
    a("ds_write_b128 v73, v[84:87]")
    for i in range(4):
        a(f"v_lshl_or_b32 v{88+i}, v{76+i}, 16, v{84+i}")
    a(f"buffer_store_dwordx4 v[88:91], v3, s[48:51], 0 offen{ST}")
    a("s_waitcnt lgkmcnt(0)")
    a.label("P1_noscan")
    e_in(1)
    a("v_lshrrev_b32 v92, 5, v0")
    a("s_mul_i32 s69, s2, 50")
    a("v_add_u32 v92, s69, v92")
    a("v_lshlrev_b32 v92, 8, v92")
    a("v_bfe_u32 v93, v0, 3, 2")
    a("v_lshl_add_u32 v92, v93, 6, v92")
    a("v_and_b32 v93, 3, v0")
    a("v_lshl_add_u32 v92, v93, 4, v92")
    a("v_bfe_u32 v93, v0, 2, 1")
    a(f"v_mul_u32_u24 v93, {XHALF}, v93")
    a("v_add_u32 v92, v92, v93")
    a("v_cmp_gt_u32 vcc, 64, v0")
    a("v_mov_b32 v94, 0x80000000")
    a("v_cndmask_b32 v93, v94, v92, vcc")
    a("s_mov_b32 s72, 0x80000000")
    a("s_mov_b32 s73, 0xffff0000")
    a("v_lshlrev_b32 v95, 2, v0")
    a("s_barrier")
    for r in range(2):
        if r == 1:
            a("s_mov_b64 exec, s[70:71]")
            a("s_cbranch_execz P1_skip_scatter")
        for i in range(4):
            a(f"ds_read_b32 v{BA+4*r+i}, v{BA+4*r+i}")
        if r == 0:
            a(f"s_waitcnt vmcnt({4 + n_e(1)})")
        R = RH + 6 * r
        for i in range(4):
            a(f"v_lshl_or_b32 v{SRC+4*r+i}, v{SRC+4*r+i}, 8, v{DL+4*r+i}")
            a(f"v_or_b32 v{SRC+4*r+i}, s72, v{SRC+4*r+i}")
        a(f"v_lshlrev_b32 v76, 16, v{R+1}")
        a(f"v_alignbit_b32 v77, v{R+2}, v{R+1}, 16")
        a(f"v_and_b32 v78, s73, v{R+2}")
        a(f"v_lshlrev_b32 v79, 16, v{R+4}")
        a(f"v_alignbit_b32 v80, v{R+5}, v{R+4}, 16")
        a(f"v_and_b32 v81, s73, v{R+5}")
        w1 = [R, 77, R + 3, 80]
        w2 = [76, 78, 79, 81]
        a("s_waitcnt lgkmcnt(0)")
        for i in range(4):
            b, k = BA + 4 * r + i, RK + 4 * r + i
            a(f"v_add_u32 v{k}, v{k}, v{b}")
            a(f"v_mul_u32_u24 v{b}, 12, v{k}")
            a(f"v_add_u32 v{b}, {K1_MS}, v{b}")
            a(f"ds_write2_b32 v{b}, v{SRC+4*r+i}, v{w1[i]} offset0:0 offset1:1")
            a(f"ds_write_b32 v{b}, v{w2[i]} offset:8")
            a(f"v_lshlrev_b32 v{k}, 1, v{k}")
            a(f"v_add_u32 v{k}, {K1_INV}, v{k}")
            a(f"v_add_u32 v{82+i}, {2048*r + i}, v95")
            a(f"ds_write_b16 v{k}, v{82+i}")
    a.label("P1_skip_scatter")
    a("s_mov_b64 exec, -1")
    a(f"s_waitcnt vmcnt({n_e(1)})")
    a("s_mov_b32 s68, 0")
    for k in range(4):
        a(f"buffer_store_dwordx4 {vr(X+4*k,4)}, v{92 if k < 3 else 93}, s[44:47], s68 offen{ST}")
        a("s_add_u32 s68, s68, 4096")
    e_in(2)
    a("s_waitcnt lgkmcnt(0)")
    a("s_barrier")
    stamp(a, 4, k1=True)
    a(f"v_add_u32 v73, {K1_MS}, v1")
    for k in range(5):
        a(f"ds_read_b128 {vr(4+4*k,4)}, v73 offset:{8192*k}")
    a("v_and_b32 v74, 0x1fe, v0")
    a(f"v_add_u32 v74, {K1_INV}, v74")
    a("s_mov_b32 s68, 0")
    for k in range(5):
        a(f"s_waitcnt lgkmcnt({4-k})")
        a(f"buffer_store_dwordx4 {vr(4+4*k,4)}, v1, s[36:39], s68 offen{ST}")
        a("s_add_u32 s68, s68, 8192")
    for k in range(13):
        a(f"ds_read_u16 v{48+k}, v74 offset:{512*k}")
    a("v_mov_b32 v111, 0")
    a(f"buffer_load_dword v110, v111, s[{R_DBG}:{R_DBG+3}], 0 offen sc1")
    e_in(3)
    a("v_and_b32 v75, 1, v0")
    a("v_lshlrev_b32 v75, 4, v75")
    a("s_waitcnt lgkmcnt(0)")
    for k in range(13):
        a(f"v_lshl_add_u32 v{48+k}, v{48+k}, 5, v75")
    if opt("siga", 0) == 3:
        a(f"s_waitcnt vmcnt({12 - n_e(2)})")
        a(f"v_readfirstlane_b32 s{S_TAG}, v110")
        a("s_barrier")
        stamp(a, 6, k1=True)
        signal(a, 0, "P1_sa", wave=7)
    a("s_waitcnt vmcnt(0)")
    if opt("siga", 0) == 0:
        a(f"v_readfirstlane_b32 s{S_TAG}, v110")
    a("s_barrier")
    if opt("siga", 0) == 0:
        stamp(a, 6, k1=True)
        signal(a, 0, "P1_sa", wave=7)
    for k in range(12):
        a(f"ds_read_b128 {vr(128+4*k,4)}, v{48+k}")
    a("s_mov_b32 s68, 0")
    for k in range(12):
        a(f"s_waitcnt lgkmcnt({11-k})")
        a(f"buffer_store_dwordx4 {vr(128+4*k,4)}, v1, s[40:43], s68 offen{ST}")
        a("s_add_u32 s68, s68, 8192")
    a(f"s_cmp_ge_u32 s{S_WAVE}, 4")
    a("s_cbranch_scc1 P1_fin" if opt("siga", 0) in (0, 3) else "s_cbranch_scc1 P1_fin2")
    a("ds_read_b128 v[176:179], v60")
    a("s_waitcnt lgkmcnt(0)")
    a(f"buffer_store_dwordx4 v[176:179], v1, s[40:43], s68 offen{ST}")
    a("s_branch P1_fin" if opt("siga", 0) in (0, 3) else "s_branch P1_fin2")

    if opt("siga", 0) == 1:
        a.label("P1_fin2")
        signal(a, 0, "P1_sa")
        a(f"s_cmp_lg_u32 s{S_WAVE}, 0")
        a("s_cbranch_scc1 P1_fin")
        a("s_waitcnt vmcnt(1)")
        a("s_branch P1_fin3")
    if opt("siga", 0) == 2:
        a.label("P1_fin2")
        a("s_waitcnt vmcnt(0)")
        a("s_barrier")
        stamp(a, 8, k1=True)
        signal(a, 0, "P1_sa")
        a("s_branch P1_fin4")
    a.label("P1_prep")
    if opt("cpf", 2) & 2:
        a("s_getpc_b64 s[36:37]")
        a.label("P1_here")
        a("s_mov_b32 s38, K2_end-P1_here")
        a("s_mov_b32 s39, 0x20000")
        a("v_lshlrev_b32 v60, 7, v0")
        a("buffer_load_dword v61, v60, s[36:39], 0 offen")
    a("s_cmp_eq_u32 s2, 255")
    a("s_cbranch_scc1 P1_prepd")
    srd(a, 16, 54, 0, 16 * 320 * 2)
    srd(a, 20, 56, 0, 128 * 64 * 2)
    srd(a, 24, 58, 0, 192 * 64 * 2)
    srd(a, 28, 14, WS_WTAB, 20480)
    srd(a, 32, 14, WS_WSI, 40960)
    a("s_sub_u32 s60, s2, 250")
    a("s_lshl_b32 s60, s60, 10")
    for it in range(2):
        prep_tables(a, ST)
        a("s_add_u32 s60, s60, 512")
    a.label("P1_prepd")
    a("s_waitcnt vmcnt(0)")
    a("s_barrier")
    signal(a, 0, "P1_sa2")
    a.label("P1_fin")
    a("s_waitcnt vmcnt(0)")
    a.label("P1_fin3")
    a("s_barrier")
    stamp(a, 8, k1=True)
    a.label("P1_fin4")
    signal(a, 1, "P1_sb")


BAL = opt("bal", 1)


def meta_set_addresses(a):
    a(f"v_lshrrev_b32 v164, 4, v{LANE}")
    a("v_lshlrev_b32 v164, 2, v164")
    a(f"v_bfe_u32 v165, v{LANE}, 2, 1")
    a("v_lshl_add_u32 v160, v165, 5, v164")
    a(f"v_bfe_u32 v165, v{LANE}, 1, 1")
    a("v_lshl_add_u32 v160, v165, 4, v160")
    a("v_lshl_add_u32 v161, v165, 5, v164")
    a(f"v_and_b32 v165, 1, v{LANE}")
    a("v_lshl_add_u32 v160, v165, 1, v160")
    a("v_lshl_add_u32 v161, v165, 4, v161")
    a(f"v_bfe_u32 v165, v{LANE}, 3, 1")
    a("v_add_u32 v160, v160, v165")
    a(f"v_bfe_u32 v165, v{LANE}, 2, 2")
    a("v_add_u32 v161, v161, v165")
    a(f"v_mov_b32 v162, {L_SB}")
    a(f"v_mov_b32 v163, {L_SA}")
    a("v_lshl_add_u32 v160, v160, 2, v163")
    a("v_lshl_add_u32 v161, v161, 3, v162")


def balanced_partition(a):
    L = LANE
    a("v_add_u32 v14, 31, v14")
    a("v_lshrrev_b32 v14, 5, v14")
    a("v_max_u32 v14, 1, v14")
    a(f"v_cmp_gt_u32 s[60:61], s{S_NN}, v{L}")
    a("v_cndmask_b32 v14, 0, v14, s[60:61]")
    a("v_cmp_lt_u32 vcc, 2, v14")
    a("s_andn2_b64 s[60:61], s[60:61], vcc")
    a("s_bcnt1_i32_b64 s62, vcc")
    a("s_bcnt1_i32_b64 s63, s[60:61]")
    a("v_mbcnt_lo_u32_b32 v32, vcc_lo, 0")
    a("v_mbcnt_hi_u32_b32 v32, vcc_hi, v32")
    a("v_mov_b32 v33, s62")
    a("v_mbcnt_lo_u32_b32 v33, s60, v33")
    a("v_mbcnt_hi_u32_b32 v33, s61, v33")
    a("v_cndmask_b32 v32, v33, v32, vcc")
    a(f"v_cmp_gt_u32 vcc, s{S_NN}, v{L}")
    a(f"v_cndmask_b32 v32, v{L}, v32, vcc")
    a("v_lshlrev_b32 v32, 2, v32")
    a(f"v_lshl_or_b32 v33, v{L}, 8, v14")
    a("ds_permute_b32 v34, v32, v33")
    a(f"v_mad_u32_u24 v36, v{L}, s{S_NN}, 7")
    a("v_lshrrev_b32 v36, 3, v36")
    a("s_mul_i32 s58, s62, 10")
    a(f"s_mul_i32 s59, s{S_NN}, 26")
    a("s_add_u32 s58, s58, s59")
    a(f"v_mad_u32_u24 v37, v{L}, s58, 40")
    a("v_mul_u32_u24 v40, 208, v36")
    a("v_sub_u32 v37, v37, v40")
    a("v_max_i32 v37, 0, v37")
    a("v_mul_u32_u24 v37, 3277, v37")
    a("v_lshrrev_b32 v37, 18, v37")
    a("v_subrev_u32 v40, s63, v36")
    a("v_max_i32 v37, v37, v40")
    a("v_min_u32 v37, s62, v37")
    a("v_min_u32 v37, v37, v36")
    for sh in (1, 2, 4, 8):
        a(f"v_max_u32_dpp v37, v37, v37 row_shr:{sh} row_mask:0xf bank_mask:0xf bound_ctrl:1")
    a("v_sub_u32 v40, v36, v37")
    for sh in (1, 2, 4, 8):
        a(f"v_max_u32_dpp v40, v40, v40 row_shr:{sh} row_mask:0xf bank_mask:0xf bound_ctrl:1")
    a("v_sub_u32 v37, v36, v40")
    a("v_lshl_or_b32 v37, v36, 8, v37")
    a(f"s_cmp_eq_u32 s{S_NN}, {NPB}")
    a(f"s_mov_b32 s58, {-(-8*65536 // (N - 255*NPB))}")
    a(f"s_cmov_b32 s58, {-(-8*65536 // NPB)}")
    a(f"v_mul_u32_u24 v40, s58, v{L}")
    a("v_lshrrev_b32 v40, 16, v40")
    a("v_min_u32 v40, 7, v40")
    a("v_lshlrev_b32 v40, 2, v40")
    a("ds_bpermute_b32 v41, v40, v37")
    a("ds_bpermute_b32 v42, v40, v37 offset:4")
    a(f"s_and_b32 s60, s{S_WAVE}, 3")
    a("s_lshl_b32 s60, s60, 1")
    a(f"s_lshr_b32 s61, s{S_WAVE}, 2")
    a("s_add_u32 s59, s60, s61")
    a(f"s_mul_i32 s60, s59, s{S_NN}")
    a(f"s_add_u32 s61, s60, s{S_NN}")
    a("s_add_u32 s60, s60, 7")
    a("s_add_u32 s61, s61, 7")
    a(f"s_lshr_b32 s{S_NODE0}, s60, 3")
    a(f"s_lshr_b32 s{S_NEND}, s61, 3")
    a(f"s_sub_u32 s{S_NNW}, s{S_NEND}, s{S_NODE0}")
    a("s_waitcnt lgkmcnt(0)")
    a("v_lshrrev_b32 v43, 8, v41")
    PP = L
    if opt("mir", 1):
        PP = 33
        a("v_lshrrev_b32 v33, 8, v42")
        a("v_add3_u32 v33, v33, v43, -1")
        a(f"v_sub_u32 v33, v33, v{L}")
        a("v_and_b32 v40, 4, v40")
        a("v_cmp_eq_u32 vcc, 0, v40")
        a(f"v_cndmask_b32 v33, v33, v{L}, vcc")
    a("v_and_b32 v41, 0xff, v41")
    a("v_and_b32 v42, 0xff, v42")
    a(f"v_sub_u32 v43, v{PP}, v43")
    a("v_add_u32 v43, v43, v41")
    a(f"v_sub_u32 v40, v{PP}, v42")
    a("v_add_u32 v40, s62, v40")
    a("v_cmp_lt_u32 vcc, v43, v42")
    a("v_cndmask_b32 v40, v40, v43, vcc")
    a(f"v_cmp_gt_u32 vcc, s{S_NN}, v{L}")
    a(f"v_cndmask_b32 v40, v{L}, v40, vcc")
    a("v_lshlrev_b32 v40, 2, v40")
    a("ds_bpermute_b32 v41, v40, v34")
    a("s_waitcnt lgkmcnt(0)")
    a("v_and_b32 v14, 0xff, v41")
    a(f"v_subrev_u32 v{NST}, 1, v14")
    a(f"v_lshrrev_b32 v{NID}, 8, v41")
    a(f"v_lshlrev_b32 v41, 2, v{NID}")
    a("v_mov_b32 v19, v14")
    scan64(a, 19)
    a("v_sub_u32 v42, v19, v14")
    a("ds_permute_b32 v18, v41, v42")
    a("v_min_u32 v36, 63, v36")
    a("v_lshlrev_b32 v36, 2, v36")
    a("ds_bpermute_b32 v43, v36, v42")
    a("v_readlane_b32 s58, v19, 63")
    a("s_waitcnt lgkmcnt(0)")
    a("v_mov_b32 v40, v43")
    a("v_sub_u32_dpp v40, v43, v43 row_shl:1 row_mask:0xf bank_mask:0xf")
    a(f"v_readlane_b32 s{S_STEP0}, v43, s59")
    a(f"v_cmp_lt_u32 vcc, {MAXWSTEPS}, v40")
    a(f"v_readlane_b32 s{S_NS}, v40, s59")
    a("s_and_b32 s60, vcc_lo, 0xff")


def kernel2():
    a = Asm()
    a("s_cmp_ge_u32 s2, 256")
    a("s_cbranch_scc1 K2_end")
    if opt("xcdmap", 1) == 2:
        a("s_load_dwordx2 s[54:55], s[0:1], 80")
        a("s_getreg_b32 s58, hwreg(HW_REG_XCC_ID, 0, 3)")
        a("v_lshrrev_b32 v1, 6, v0")
        a("v_readfirstlane_b32 s3, v1")
        a(f"v_mov_b32 v3, {L_WSUM}")
        a("s_cmp_lg_u32 s3, 0")
        a("s_cbranch_scc1 CLAIMED")
        a("s_waitcnt lgkmcnt(0)")
        srd(a, 4, 54, 0, 256)
        a("s_mov_b64 exec, 1")
        a.label("CLAIM")
        a("v_mov_b32 v1, 1")
        a("s_lshl_b32 s59, s58, 5")
        a("v_mov_b32 v2, s59")
        a("buffer_atomic_add v1, v2, s[4:7], 0 offen sc0")
        a("s_add_u32 s58, s58, 1")
        a("s_and_b32 s58, s58, 7")
        a("s_waitcnt vmcnt(0)")
        a("v_readfirstlane_b32 s60, v1")
        a("s_cmp_ge_u32 s60, 32")
        a("s_cbranch_scc1 CLAIM")
        a("v_add_u32 v1, v1, v2")
        a("ds_write_b32 v3, v1")
        a("s_mov_b64 exec, -1")
        a.label("CLAIMED")
        a("s_waitcnt lgkmcnt(0)")
        a("s_barrier")
        a("ds_read_b32 v1, v3")
        a("s_waitcnt lgkmcnt(0)")
        a("v_readfirstlane_b32 s2, v1")
        a("s_and_b32 s2, s2, 255")
        a("s_barrier")
    if opt("xcdmap", 1) == 1:
        a("s_and_b32 s3, s2, 7")
        a("s_lshl_b32 s3, s3, 5")
        a("s_lshr_b32 s2, s2, 3")
        a("s_or_b32 s2, s2, s3")
    a(f"v_mov_b32 v{TID}, v0")
    a(f"s_mov_b32 s{S_R0}, 0")
    a(f"s_mov_b32 s{S_CAP}, {CAP}")
    stamp(a, 0, True)
    stamp(a, 1)
    if FUSED:
        part1(a)
        a(f"s_mov_b32 s{S_R0}, 0")
        a(f"s_mov_b32 s{S_CAP}, {CAP}")
        a("s_load_dwordx2 s[56:57], s[0:1], 88")
        a("s_load_dwordx2 s[54:55], s[0:1], 72")
        poll(a, 0, "POLL_A")
        a(f"v_mov_b32 v110, {L_DUMMY}")
        a(f"v_mov_b32 v111, s{S_TAG}")
        a(f"s_cmp_lg_u32 s{S_WAVE}, 0")
        a("s_cbranch_scc1 TAG_W")
        a("ds_write_b32 v110, v111")
        a("s_waitcnt lgkmcnt(0)")
        a.label("TAG_W")
        a("s_barrier")
        a("ds_read_b32 v111, v110")
        a("s_waitcnt lgkmcnt(0)")
        a(f"v_readfirstlane_b32 s{S_TAG}, v111")
        a("s_branch ROUND0")
    a.label("ROUND")
    a("s_load_dwordx2 s[56:57], s[0:1], 88")
    a("s_load_dwordx2 s[54:55], s[0:1], 72")
    a.label("ROUND0")
    a(f"v_and_b32 v2, 255, v{TID}")
    a("v_lshlrev_b32 v3, 10, v2")
    a(f"v_and_b32 v{LANE}, 63, v{TID}")
    a(f"v_lshrrev_b32 v1, 6, v{TID}")
    a(f"v_readfirstlane_b32 s{S_WAVE}, v1")
    a("s_lshl_b32 s58, s2, 2")
    a("s_cmp_eq_u32 s2, 255")
    a(f"s_cselect_b32 s{S_NN}, {N - 255*NPB}, {NPB}")
    a("s_waitcnt lgkmcnt(0)")
    srd(a, R_TB, 56, WS_TAB, W * 1024)
    DSH = opt("dsh", 1)
    if DSH:
        a(f"s_cmp_ge_u32 s{S_WAVE}, 4")
        a("s_cbranch_scc1 NODESC")
    a(f"buffer_load_dword v20, v3, s[{R_TB}:{R_TB+3}], s58 offen")
    if DSH:
        a.label("NODESC")
    if opt("cpf", 2) & 1:
        a("s_getpc_b64 s[60:61]")
        a.label("K2_here")
        a("s_mov_b32 s62, K2_end-K2_here")
        a("s_mov_b32 s63, 0x20000")
        a(f"v_lshlrev_b32 v21, 7, v{TID}")
        a("buffer_load_dword v75, v21, s[60:63], 0 offen")
    if PROF:
        a("s_mov_b64 s[98:99], s[56:57]")
    if opt("egx", 0):
        a("s_load_dwordx2 s[92:93], s[0:1], 16")
        a("s_mov_b32 s94, 25600000")
        a("s_mov_b32 s95, 0x20000")
        a("s_mov_b32 s96, 800000")
        a("s_mov_b32 s97, 1664525")
        a(f"v_lshrrev_b32 v218, 1, v{TID}")
        a("s_lshl_b32 s59, s2, 8")
        a("v_add_u32 v218, s59, v218")
        a("s_mov_b32 s59, 0x9E3779B1")
        a("v_mul_lo_u32 v218, v218, s59")
        a("s_waitcnt lgkmcnt(0)")
    srd(a, R_W, 56, WS_WTAB, 0x12000)
    srd(a, R_MT, 56, WS_META, E * 12)
    srd(a, R_EP, 56, WS_EP, E * 32)
    srd(a, R_XP, 56, WS_XP - XBIAS, 2 * XHALF + XBIAS)
    if opt("pf00", 0):
        a("s_and_b32 s59, s2, 31")
        a("s_lshl_b32 s59, s59, 3")
        a(f"s_add_u32 s59, s59, s{S_WAVE}")
        a(f"s_mul_i32 s59, s59, {98*128}")
        a(f"s_add_u32 s59, s59, {XBIAS}")
        a(f"v_lshlrev_b32 v76, 7, v{LANE}")
        if opt("pf00", 0) < 64:
            a(f"s_bfm_b64 exec, {opt('pf00', 0)}, 0")
        a(f"buffer_load_dword v77, v76, s[{R_XP}:{R_XP+3}], s59 offen")
        a("s_mov_b64 exec, -1")
    a(f"s_mul_i32 s59, s2, {P_WG}")
    a(f"s_add_u32 s59, s59, {WS_P}")
    srd(a, R_P, 56, "s59", 2 * P_HALF)
    a("s_lshl_b32 s59, s2, 16")
    a(f"s_add_u32 s59, s59, {WS_ACC}")
    srd(a, R_ACC, 56, "s59", 65536)
    a(f"s_mul_i32 s59, s2, {NPB*512}")
    a(f"s_lshl_b32 s60, s{S_NN}, 9")
    srd(a, R_OUT, 54, "s59", "s60")
    a(f"s_mul_i32 s{S_RB}, s{S_WAVE}, {RING_W}")
    a(f"s_add_u32 s{S_RB}, s{S_RB}, {L_RING}")
    a(f"s_mov_b32 s{S_HI}, 0xffff0000")
    a(f"s_mov_b32 s{S_SGN}, 0x80008000")
    L = LANE
    a(f"v_bfe_u32 v3, v{L}, 4, 1")
    a(f"v_and_b32 v4, 7, v{L}")
    a("v_lshlrev_b32 v5, 1, v3")
    a("v_xor_b32 v4, v4, v5")
    a("v_lshlrev_b32 v4, 4, v4")
    a(f"v_add_u32 v{XOFF}, {0x80000000 + XBIAS}, v4")
    a(f"v_add_u32 v{XOFF+1}, {0x80000000 + XBIAS - 1088}, v4")
    a(f"v_and_b32 v4, 3, v{L}")
    a(f"v_lshlrev_b32 v{QQ8}, 3, v4")
    a(f"v_bfe_u32 v5, v{L}, 3, 1")
    a("v_mul_u32_u24 v5, 1088, v5")
    a(f"v_lshrrev_b32 v6, 4, v{L}")
    a("v_lshl_add_u32 v5, v6, 8, v5")
    a(f"v_bfe_u32 v7, v{L}, 2, 1")
    a("v_lshl_add_u32 v5, v7, 7, v5")
    a(f"v_add_u32 v5, v5, v{QQ8}")
    a(f"v_add_u32 v5, s{S_RB}, v5")
    a("v_lshlrev_b32 v7, 5, v3")
    a(f"v_add_u32 v{BAE}, v5, v7")
    a(f"v_sub_u32 v{BAO}, v5, v7")
    a(f"v_and_b32 v7, 15, v{L}")
    a("v_lshlrev_b32 v8, 2, v7")
    a(f"v_lshl_add_u32 v{POFF}, v6, 6, v8")
    a("v_and_b32 v8, 1, v7")
    a("v_lshlrev_b32 v8, 4, v8")
    a("v_mov_b32 v9, 0x3f80")
    a("v_lshlrev_b32 v8, v8, v9")
    a("v_and_b32 v9, 14, v7")
    for i in range(4):
        a(f"v_cmp_eq_u32 vcc, {4*i}, v9")
        a(f"v_cndmask_b32 v{SEL+i}, 0, v8, vcc")
    a(f"v_lshlrev_b32 v6, 2, v{TID}")
    a("v_mov_b32 v7, 0")
    a(f"v_add_u32 v8, {L_MISC}, v6")
    a(f"v_cmp_gt_u32 vcc, 68, v{TID}")
    a("s_and_saveexec_b64 s[58:59], vcc")
    a("ds_write_b32 v8, v7")
    a(f"v_cmp_gt_u32 vcc, 8, v{TID}")
    a("s_and_b64 exec, exec, vcc")
    a("ds_write_b32 v6, v7")
    a("s_mov_b64 exec, -1")
    a(f"v_lshlrev_b32 v13, 4, v{TID}")
    a(f"v_add_u32 v13, {L_SA}, v13")
    for i in range(4):
        a(f"v_mov_b32 v{28+i}, 0")
    nz = MAXSTEPS * 384 // 16
    for k in range(6):
        a(f"ds_write_b128 v13, v[28:31] offset:{8192*k}")
    a(f"v_cmp_gt_u32 vcc, {nz - 6*512}, v{TID}")
    a("s_mov_b64 exec, vcc")
    a(f"ds_write_b128 v13, v[28:31] offset:{8192*6}")
    a("s_mov_b64 exec, -1")
    a("v_mul_u32_u24 v14, 3200, v2")
    a(f"v_lshrrev_b32 v15, 8, v{TID}")
    a("v_mov_b32 v16, 0x80000000")
    a(f"s_and_b32 s59, s{S_WAVE}, 3")
    a("v_lshlrev_b32 v22, 3, v2")
    a("v_add_u32 v22, 1024, v22")
    if DSH:
        a(f"s_cmp_ge_u32 s{S_WAVE}, 4")
        a("s_cbranch_scc1 NOSCAN")
    a(f"s_waitcnt vmcnt({(opt('cpf', 2) & 1) + (opt('pf00', 0) > 0)})")
    stamp(a, 2)
    a("v_lshrrev_b32 v9, 16, v20")
    a("v_mov_b32 v21, v9")
    scan64(a, 21)
    a("v_readlane_b32 s58, v21, 63")
    a("s_lshl_b32 s60, s59, 2")
    a(f"s_add_u32 s60, s60, {L_WSUM}")
    a("v_mov_b32 v12, s60")
    a("v_mov_b32 v13, s58")
    a("ds_write_b32 v12, v13")
    a("v_sub_u32 v21, v21, v9")
    if DSH:
        a("ds_write_b64 v22, v[20:21]")
        a.label("NOSCAN")
    a(f"v_mov_b32 v12, {L_WSUM}")
    a("s_waitcnt lgkmcnt(0)")
    a("s_barrier")
    a("ds_read_b128 v[16:19], v12")
    if DSH:
        a("ds_read_b64 v[20:21], v22")
    a("s_waitcnt lgkmcnt(0)")
    a("v_lshrrev_b32 v9, 16, v20")
    a("v_and_b32 v10, 0xffff, v20")
    a("v_add_u32 v14, v14, v10")
    a("v_mov_b32 v11, v21")
    for i in range(4):
        a(f"v_readfirstlane_b32 s{60+i}, v{16+i}")
    a("s_add_u32 s61, s61, s60")
    a("s_add_u32 s62, s62, s61")
    a(f"s_add_u32 s{S_T}, s63, s62")
    a("s_cmp_eq_u32 s59, 0")
    a("s_cselect_b32 s58, 0, s60")
    a("s_cmp_eq_u32 s59, 2")
    a("s_cselect_b32 s58, s61, s58")
    a("s_cmp_eq_u32 s59, 3")
    a("s_cselect_b32 s58, s62, s58")
    a("v_mov_b32 v16, 0x80000000")
    a(f"s_sub_u32 s{S_LEN}, s{S_T}, s{S_R0}")
    a(f"s_cmp_le_u32 s{S_LEN}, s{S_CAP}")
    a(f"s_cselect_b32 s{S_LAST}, 1, 0")
    a(f"s_min_u32 s{S_LEN}, s{S_LEN}, s{S_CAP}")
    a(f"s_sub_u32 s58, s58, s{S_R0}")
    a("v_add_u32 v11, s58, v11")
    a("v_sub_u32 v12, 0, v11")
    a("v_max_i32 v12, 0, v12")
    a(f"v_sub_u32 v13, s{S_LEN}, v11")
    a("v_min_i32 v13, v13, v9")
    a("v_add_u32 v12, v12, v15")
    a("v_sub_u32 v9, v13, v12")
    a("v_add_u32 v14, v14, v12")
    a("v_add_u32 v11, v11, v12")
    a("v_lshlrev_b32 v12, 2, v11")
    a(f"v_add_u32 v12, {L_MAP}, v12")
    a.label("MAPL")
    for i in range(16):
        a(f"v_cmp_lt_i32 vcc, {2*i}, v9")
        if i:
            a("v_add_u32 v14, 2, v14")
        a("s_and_b64 exec, exec, vcc")
        if i % 4 == 0:
            a("s_cbranch_execz MAPD")
        a(f"ds_write_b32 v12, v14 offset:{8*i}")
    a("v_add_u32 v14, 2, v14")
    a("v_add_u32 v12, 128, v12")
    a("v_subrev_u32 v9, 32, v9")
    a("s_branch MAPL")
    a.label("MAPD")
    a("s_mov_b64 exec, -1")
    a(f"v_add_u32 v12, {L_MAP}, v6")
    a(f"v_lshrrev_b32 v13, 1, v{LANE}")
    a(f"s_lshl_b32 s58, s{S_WAVE}, 5")
    a("v_add_u32 v13, s58, v13")
    a(f"v_lshl_add_u32 v14, v13, 2, v7")
    a(f"v_add_u32 v14, {L_MAP}, v14")
    a(f"v_and_b32 v15, 1, v{LANE}")
    a("v_lshlrev_b32 v15, 4, v15")
    a("s_waitcnt lgkmcnt(0)")
    a("s_barrier")
    stamp(a, 3)
    for k in range(7):
        a(f"ds_read_b32 v{20+k}, v12 offset:{2048*k}")
    for k in range(14):
        a(f"ds_read_b32 v{28+k}, v14 offset:{1024*k}")
    MREC = 44
    EPOL = ["", " sc1", " nt"][opt("epol", 1)]
    for k in range(7):
        a(f"v_add_u32 v17, {512*k}, v{TID}")
        a(f"v_cmp_gt_u32 s[{S_MASK+2*k}:{S_MASK+2*k+1}], s{S_LEN}, v17")
        a(f"s_waitcnt lgkmcnt({min(15, 20-k)})")
        a(f"v_mul_u32_u24 v{20+k}, 12, v{20+k}")
        a(f"v_cndmask_b32 v{20+k}, v16, v{20+k}, s[{S_MASK+2*k}:{S_MASK+2*k+1}]")
    if PROF == 2:
        stamp(a, 7)
    for k in range(7):
        a(f"buffer_load_dwordx3 {vr(MREC+4*k,3)}, v{20+k}, s[{R_MT}:{R_MT+3}], 0 offen{EPOL}")
    a("s_waitcnt lgkmcnt(0)")
    a(f"s_lshl_b32 s{S_EM0}, s{S_WAVE}, 10")
    a(f"s_add_u32 s{S_EM0}, s{S_EM0}, {L_E + 32}")
    EREG = 128
    for k in range(14):
        a(f"v_cmp_gt_u32 vcc, s{S_LEN}, v13")
        a(f"v_lshl_add_u32 v{28+k}, v{28+k}, 5, v15")
        a("v_add_u32 v13, 256, v13")
        a(f"v_cndmask_b32 v{EREG+k}, v16, v{28+k}, vcc")
    eb = [int(c, 16) for c in opt("eb", "0554" if FUSED else "3551")]

    assert sum(eb[:1]) <= 10

    def e_batch(i, tag=""):
        for k in range(sum(eb[:i]), sum(eb[:i + 1])):
            if k == 13:
                a(f"s_cmp_ge_u32 s{S_WAVE}, 2")
                a("s_cbranch_scc1 NOE14")
            a(f"s_mov_b32 m0, s{S_EM0}")
            a(f"s_add_u32 s{S_EM0}, s{S_EM0}, 8192")
            a(f"buffer_load_dwordx4 v{EREG+k}, s[{R_EP}:{R_EP+3}], 0 offen{EPOL} lds")
            if k == 13:
                a.label("NOE14")

    if PROF == 2:
        stamp(a, 8)
    e_batch(0)
    FK = opt("fk", 0)
    ONEW = opt("onew", 0)
    if FUSED and FK == 0:
        if ONEW:
            a(f"s_cmp_eq_u32 s{S_WAVE}, 0")
            a("s_cselect_b64 s[60:61], -1, 1")
            flag_load(a, 1, "s[60:61]")
        else:
            flag_load(a, 1)
    if PROF == 2:
        stamp(a, 9)
    a("v_mov_b32 v17, 1")
    for k in range(7):
        a(f"s_waitcnt vmcnt({min(eb[0], 13) + 6 - k + (FUSED and k >= FK)})")
        if FUSED and FK and k == FK - 1:
            flag_load(a, 1)
        if PROF == 2 and k in (0, 6):
            stamp(a, 10 if k == 0 else 11)
        a(f"v_and_b32 v{20+k}, 0xff, v{MREC+4*k}")
        a(f"v_lshlrev_b32 v{20+k}, 2, v{20+k}")
        a(f"v_add_u32 v18, {L_CNT}, v{20+k}")
        a(f"s_mov_b64 exec, s[{S_MASK+2*k}:{S_MASK+2*k+1}]")
        a(f"ds_add_rtn_u32 v{MREC+4*k+3}, v18, v17")
        a("s_mov_b64 exec, -1")
    a(f"v_lshlrev_b32 v12, 2, v{LANE}")
    a(f"v_add_u32 v12, {L_CNT}, v12")
    a(f"v_lshlrev_b32 v35, 2, v{TID}")
    a("v_add_u32 v35, 4, v35")
    RP = 144
    for k in range(7):
        r = MREC + 4 * k
        a(f"v_and_b32 v{r}, 0xffffff00, v{r}")
        a(f"v_add_u32 v36, {2048*k}, v35")
        a(f"v_or_b32 v{RP+2*k+1}, v{r+2}, v36")
        a(f"v_mov_b32 v{RP+2*k}, v{r+1}")
    meta_set_addresses(a)
    if FUSED:
        a("s_waitcnt vmcnt(0)")
        flag_test(a)
        a(f"s_cselect_b32 s{S_EB1}, 1, 0")
        if ONEW:
            a(f"s_cmp_lg_u32 s{S_WAVE}, 0")
            a("s_cbranch_scc1 EB_nw")
            a(f"v_mov_b32 v110, {L_FLAG}")
            a(f"v_mov_b32 v112, s{S_EB1}")
            a("ds_write_b32 v110, v112")
            a.label("EB_nw")
    a("s_waitcnt lgkmcnt(0)")
    a("s_barrier")
    stamp(a, 4)
    if FUSED and ONEW:
        a(f"v_mov_b32 v110, {L_FLAG}")
        a("ds_read_b32 v112, v110")
        a("s_waitcnt lgkmcnt(0)")
        a(f"v_readfirstlane_b32 s{S_EB1}, v112")
    if FUSED:
        a(f"s_mov_b32 s{S_EB2}, s{S_EB1}")
        a(f"s_cmp_eq_u32 s{S_EB1}, 0")
        a("s_cbranch_scc1 EB1_skip")
        e_batch(1)
        a("s_branch EB1_done")
        a.label("EB1_skip")
        flag_load(a, 1)
        a.label("EB1_done")
    else:
        e_batch(1)
    a("ds_read_b32 v14, v12")
    a("s_waitcnt lgkmcnt(0)")
    if BAL:
        balanced_partition(a)
    else:
        a("v_add_u32 v14, 31, v14")
        a("v_lshrrev_b32 v14, 5, v14")
        a("v_max_u32 v14, 1, v14")
        a(f"v_cmp_gt_u32 vcc, s{S_NN}, v{LANE}")
        a(f"v_mad_u32_u24 v15, v14, 10, {opt('epc', 6)}")
        a("v_cndmask_b32 v15, 0, v15, vcc")
        a("v_cndmask_b32 v14, 0, v14, vcc")
        a("v_lshl_or_b32 v18, v15, 16, v14")
        a(f"v_subrev_u32 v{NST}, 1, v14")
        a("v_mov_b32 v19, v18")
        scan64(a, 19)
        a("v_readlane_b32 s58, v19, 63")
        a("v_sub_u32 v18, v19, v18")
        a("v_and_b32 v19, 0xffff, v19")
        a("v_lshrrev_b32 v32, 16, v18")
        a("v_and_b32 v18, 0xffff, v18")
        a("v_lshl_add_u32 v32, v32, 1, v15")
        a("v_lshlrev_b32 v32, 2, v32")
        a("s_lshr_b32 s59, s58, 16")
        a("s_and_b32 s58, s58, 0xffff")
        a(f"s_and_b32 s60, s{S_WAVE}, 3")
        a("s_lshl_b32 s60, s60, 1")
        a(f"s_lshr_b32 s61, s{S_WAVE}, 2")
        a("s_add_u32 s60, s60, s61")
        a("s_mul_i32 s60, s60, s59")
        a("s_add_u32 s61, s60, s59")
        a("v_cmp_le_u32 vcc, s60, v32")
        a("v_cmp_gt_u32 s[62:63], s61, v32")
        a("s_and_b64 vcc, vcc, s[62:63]")
        a(f"s_bcnt1_i32_b64 s{S_NNW}, vcc")
        a(f"s_ff1_i32_b64 s{S_NODE0}, vcc")
        a(f"s_max_i32 s{S_NODE0}, s{S_NODE0}, 0")
        a(f"s_add_u32 s{S_NEND}, s{S_NODE0}, s{S_NNW}")
        a(f"s_sub_u32 s60, s{S_NEND}, 1")
        a("s_max_i32 s60, s60, 0")
        a(f"v_readlane_b32 s{S_STEP0}, v18, s{S_NODE0}")
        a(f"v_readlane_b32 s{S_NS}, v19, s60")
        a(f"s_sub_u32 s{S_NS}, s{S_NS}, s{S_STEP0}")
    assert BAL
    for k in range(7):
        a(f"ds_bpermute_b32 v{20+k}, v{20+k}, v18")
    a(f"s_lshl_b32 s59, s{S_STEP0}, 7")
    a("v_add_u32 v160, s59, v160")
    a("s_lshl_b32 s59, s59, 1")
    a("v_add_u32 v161, s59, v161")
    a(f"s_cmp_gt_u32 s58, {MAXSTEPS}")
    a("s_cselect_b32 s60, 1, s60")
    a("s_cmp_eq_u32 s60, 0")
    a("s_cbranch_scc1 SCATTER")
    a(f"s_mov_b32 s{S_CAP}, {SLOWCAP}")
    a("s_waitcnt vmcnt(0) lgkmcnt(0)")
    a("s_barrier")
    a("s_branch ROUND")
    a.label("SCATTER")
    if FUSED:
        a(f"s_cmp_lg_u32 s{S_EB1}, 0")
        a("s_cbranch_scc1 EB2_go")
        a("s_waitcnt vmcnt(0)")
        flag_test(a)
        a(f"s_cselect_b32 s{S_EB2}, 1, 0")
        a("s_cbranch_scc0 EB2_skip")
        e_batch(1)
        a.label("EB2_go")
        e_batch(2)
        a.label("EB2_skip")
    else:
        e_batch(2)
    for k in range(7):
        r = MREC + 4 * k
        a(f"s_waitcnt lgkmcnt({6 - k + 2 * k if 6 + k <= 15 else 15})")
        a(f"v_lshl_add_u32 v{20+k}, v{20+k}, 5, v{r+3}")
        a(f"v_lshl_add_u32 v{r+1}, v{20+k}, 3, v162")
        a(f"v_lshl_add_u32 v{20+k}, v{20+k}, 2, v163")
        a(f"s_mov_b64 exec, s[{S_MASK+2*k}:{S_MASK+2*k+1}]")
        a(f"ds_write_b32 v{20+k}, v{r}")
        a(f"ds_write_b64 v{r+1}, {vr(RP+2*k,2)}")
        a("s_mov_b64 exec, -1")
    if FUSED:
        a(f"s_cmp_lg_u32 s{S_EB2}, 0")
        a("s_cbranch_scc1 EB3_nopoll")
        poll(a, 1, "POLL_B")
        a.label("EB3_nopoll")
    a("s_waitcnt lgkmcnt(0)")
    a("s_barrier")
    if FUSED:
        a(f"s_cmp_lg_u32 s{S_EB2}, 0")
        a("s_cbranch_scc1 EB3_go")
        e_batch(1)
        e_batch(2)
        a.label("EB3_go")
    e_batch(3)
    for s in range(10):
        a(f"ds_read_b32 v{M0R+s}, v160 offset:{256*s}")
        a(f"ds_read_b64 {vr(MBR+2*s,2)}, v161 offset:{512*s}")
    a(f"s_mov_b32 s{S_D}, 0")
    pfn = opt("pfn", 0)
    if pfn:
        a(f"s_sub_u32 s{S_EVT}, s{S_NEND}, {pfn}")
        a(f"s_max_i32 s{S_EVT}, s{S_EVT}, 0")
    else:
        a(f"s_mov_b32 s{S_EVT}, -2")
    a(f"s_mov_b32 s{S_PHASE}, 0")
    if opt("eg", 0):
        a(f"s_mov_b32 s{S_EGN}, -1")
    a(f"s_mov_b32 s{S_POFF}, 0")
    a(f"s_mov_b32 s{S_TAB0}, 0")
    a(f"s_mov_b32 s{S_TAB1}, 128")
    a(f"s_mov_b32 s{S_NODE}, s{S_NODE0}")
    for l in node_steps(S_NODE):
        a(l)
    if opt("prio", 3) == 2:
        a(f"s_lshr_b32 s54, s{S_WAVE}, 2")
        a(f"s_lshl2_add_u32 s{S_LEFT}, s{S_NS}, s54")
        a(f"s_add_u32 s{S_LEFT}, s{S_LEFT}, 256")
        a(f"s_lshl1_add_u32 s54, s{S_REM}, 2")
        a(f"s_sub_u32 s{S_LEFT}, s{S_LEFT}, s54")
        a(f"s_and_b32 s54, s{S_WAVE}, 3")
        a(f"s_lshl2_add_u32 s{S_PADR}, s54, {L_CNT + 240}")
    stamp(a, 5)
    a("s_waitcnt lgkmcnt(0)")
    a("s_barrier")
    if PROF and not opt("egx", 0):
        a(f"s_mov_b32 s{preg(12)}, s{S_NS}")
        a(f"s_mov_b32 s{preg(13)}, s{S_NNW}")
    a(f"s_cmp_lg_u32 s{S_NNW}, 0")
    a("s_cbranch_scc1 START")
    a("s_waitcnt vmcnt(0)")
    a("s_barrier")
    stamp(a, 6)
    a("s_branch TAIL")
    a.label("START")
    pipeline_start(a)
    cold = []
    for par in range(2):
        for rho in (0, 2, 1):
            epilogue(a, rho, par, cold)
            step_body(a, rho, "f", par, 1 - par, "n", cold)
            step_body(a, (rho + 1) % 3, "n", 1 - par, par, "e" if rho != 1 else "", cold)
    for rho in range(3):
        step_body(a, rho, "f", 0, 0, "", cold)
        step_body(a, rho, "n", 0, 0, "", cold)
    for l in cold:
        a(l)

    a.label("TAIL")
    a("s_setprio 0")
    WF, PF, D = 0, 80, 188
    if PROF == 4:
        a("v_mov_b32 v183, v219")
    stamp(a, 8, late=True)
    a(f"v_and_b32 v{T0+1}, 15, v{LANE}")
    a(f"s_lshr_b32 s56, s{S_WAVE}, 1")
    a("s_lshl_b32 s56, s56, 4")
    a(f"v_add_u32 v{T0+1}, s56, v{T0+1}")
    a(f"v_lshlrev_b32 v{T0+2}, 2, v{T0+1}")
    a(f"ds_bpermute_b32 v{T0+4}, v{T0+2}, v{NID}")
    a(f"v_lshrrev_b32 v{T0+2}, 4, v{LANE}")
    a(f"v_lshlrev_b32 v{T0+2}, 4, v{T0+2}")
    a("s_waitcnt lgkmcnt(0)")
    a(f"v_lshl_add_u32 v{T0+4}, v{T0+4}, 9, v{T0+2}")
    a(f"v_lshlrev_b32 v{T0}, 4, v{LANE}")
    a(f"s_and_b32 s54, s{S_WAVE}, 1")
    a("s_mul_i32 s55, s54, 20480")
    a(f"s_add_u32 s55, s55, {WS_WSI - WS_WTAB}")
    if NEWTAIL:
        def prework(tag):
            a(f"s_mul_i32 s56, s{S_NNW}, {P_NODE}")
            a(f"s_mul_i32 s57, s{S_NODE0}, {P_NODE}")
            a(f"s_mov_b32 s60, s{S_RB}")
            for k in range(6):
                a(f"v_cmp_gt_u32 vcc, s56, v{T0}")
                a("s_mov_b32 m0, s60")
                a("s_mov_b64 exec, vcc")
                a(f"s_cbranch_execz {tag}")
                a(f"buffer_load_dwordx4 v{T0}, s[{R_P}:{R_P+3}], s57 offen sc1 lds")
                a("s_mov_b64 exec, -1")
                a("s_add_u32 s57, s57, 1024")
                a("s_add_u32 s60, s60, 1024")
                a("s_sub_u32 s56, s56, 1024")
                a("s_max_i32 s56, s56, 0")
            a.label(tag)
            a("s_mov_b64 exec, -1")
            for f in range(20):
                if f % 4 == 0 and f:
                    a("s_add_u32 s55, s55, 4096")
                a(f"buffer_load_dwordx4 {vr(WF+4*f,4)}, v{T0}, s[{R_W}:{R_W+3}], s55 offen offset:{(f%4)*1024}")

        a(f"v_mov_b32 v{T0+5}, {L_CNT + 224}")
        a(f"v_mov_b32 v{T0+6}, 1")
        a(f"s_mul_i32 s56, s{S_NNW}, {P_NODE}")
        a(f"s_add_u32 s60, s56, s{S_RB}")
        a(f"v_add_u32 v{T0+7}, s60, v{POFF}")
        a("s_mov_b64 exec, 1")
        a(f"ds_add_rtn_u32 v{T0+6}, v{T0+5}, v{T0+6}")
        a("s_mov_b64 exec, -1")
        a(f"s_cmp_eq_u32 s{S_NNW}, 0")
        a("s_cbranch_scc1 T_NOREC")
        a("s_waitcnt vmcnt(3)")
        for i in range(3):
            a(f"ds_write_b32 v{T0+7}, v{64+i} offset:{256*i}")
        a.label("T_NOREC")
        a("s_waitcnt lgkmcnt(0)")
        a(f"v_readfirstlane_b32 s{S_OLD}, v{T0+6}")
        a(f"s_cmp_ge_u32 s{S_OLD}, {opt('tlast', 7)}")
        a("s_cbranch_scc1 T_BAR")
        if DRY:
            a("s_mov_b32 s62, 1")
            a(f"s_cmp_eq_u32 s{S_OLD}, 0")
            a("s_cbranch_scc1 T_MM")
            a.label("T_RET")
        prework("T_P1")
        a.label("T_BAR")
        a("s_barrier")
        stamp(a, 9, late=True)
        a(f"s_lshl_b32 s61, s{S_WAVE}, 10")
        a(f"s_add_u32 s61, s61, {P_HALF}")
        for k in range(5):
            if k == 4:
                a(f"s_cmp_ge_u32 s{S_WAVE}, 6")
                a("s_cbranch_scc1 NOP10")
            a("s_mov_b32 m0, s61")
            a(f"buffer_load_dwordx4 v{T0}, s[{R_P}:{R_P+3}], s61 offen sc1 lds")
            a("s_add_u32 s61, s61, 8192")
        a.label("NOP10")
        a(f"s_cmp_lt_u32 s{S_OLD}, {opt('tlast', 7)}")
        a("s_cbranch_scc1 T_DONE")
        prework("T_P2")
        a.label("T_DONE")
    else:
        a("s_waitcnt vmcnt(0)")
        for f in range(20):
            if f % 4 == 0 and f:
                a("s_add_u32 s55, s55, 4096")
            a(f"buffer_load_dwordx4 {vr(WF+4*f,4)}, v{T0}, s[{R_W}:{R_W+3}], s55 offen offset:{(f%4)*1024}")
        a("s_barrier")
        stamp(a, 9, late=True)
        a(f"s_lshl_b32 s55, s{S_WAVE}, 10")
        for k in range(10):
            if k == 9:
                a(f"s_cmp_ge_u32 s{S_WAVE}, 4")
                a("s_cbranch_scc1 NOP10")
            a("s_mov_b32 m0, s55")
            a(f"buffer_load_dwordx4 v{T0}, s[{R_P}:{R_P+3}], s55 offen sc1 lds")
            a("s_add_u32 s55, s55, 8192")
        a.label("NOP10")
    a(f"v_lshlrev_b32 v{T0+8}, 1, v{T0+4}")
    a(f"s_lshl_b32 s57, s54, 9")
    a(f"s_cmp_eq_u32 s{S_R0}, 0")
    a("s_cbranch_scc1 ZEROD")
    for i in range(8):
        a(f"buffer_load_dwordx4 {vr(D+4*i,4)}, v{T0+8}, s[{R_ACC}:{R_ACC+3}], s57 offen offset:{(i//2)*128 + (i%2)*16} sc1")
    a("s_branch HAVED")
    a.label("ZEROD")
    for i in range(32):
        a(f"v_mov_b32 v{D+i}, 0")
    a.label("HAVED")
    if NEWTAIL:
        t = T0 + 9
        a(f"s_cmp_eq_u32 s{S_NN}, {NPB}")
        a(f"s_mov_b32 s58, {-(-8*65536 // (N - 255*NPB))}")
        a(f"s_cmov_b32 s58, {-(-8*65536 // NPB)}")
        a(f"v_mul_u32_u24 v{T0+3}, s58, v{T0+1}")
        a(f"v_lshrrev_b32 v{T0+3}, 16, v{T0+3}")
        a(f"v_min_u32 v{T0+3}, 7, v{T0+3}")
        a(f"v_mad_u32_u24 v{T0+5}, v{T0+3}, s{S_NN}, 7")
        a(f"v_add_u32 v{T0+6}, s{S_NN}, v{T0+5}")
        a(f"v_lshrrev_b32 v{T0+5}, 3, v{T0+5}")
        a(f"v_lshrrev_b32 v{T0+6}, 3, v{T0+6}")
        a(f"v_lshrrev_b32 v{t}, 1, v{T0+3}")
        a(f"v_and_b32 v{T0+3}, 1, v{T0+3}")
        a(f"v_lshl_add_u32 v{t}, v{T0+3}, 2, v{t}")
        a(f"v_mul_u32_u24 v{t}, {RING_W}, v{t}")
        a(f"v_add_u32 v{t}, {L_RING}, v{t}")
        a(f"v_add_u32 v{t}, v{t}, v{T0+2}")
        a(f"v_sub_u32 v{T0+5}, v{T0+1}, v{T0+5}")
        a(f"s_movk_i32 s58, {P_NODE}")
        a(f"v_mad_u32_u24 v{T0+5}, v{T0+5}, s58, v{t}")
        a(f"v_add_u32 v{t+1}, 1, v{T0+1}")
        a(f"v_cmp_eq_u32 vcc, v{t+1}, v{T0+6}")
        a(f"v_mad_u32_u24 v{T0+6}, v{T0+1}, s58, v{T0+2}")
        a(f"v_add_u32 v{T0+6}, {P_HALF}, v{T0+6}")
        a(f"v_add_u32 v{t}, {P_NODE}, v{T0+5}")
        a(f"v_cndmask_b32 v{T0+6}, v{T0+6}, v{t}, vcc")
        a("s_lshl_b32 s54, s54, 6")
    else:
        a(f"v_mul_u32_u24 v{T0+5}, {P_NODE}, v{T0+1}")
        a(f"v_add_u32 v{T0+5}, v{T0+5}, v{T0+2}")
        a(f"v_add_u32 v{T0+6}, {P_HALF}, v{T0+5}")
        a("s_lshl_b32 s54, s54, 6")
    a("s_mov_b32 s62, 0")
    a("s_waitcnt vmcnt(0)")
    a("s_barrier")
    stamp(a, 10, late=True)
    a.label("T_MM")
    seq = []
    for comp, ts in enumerate(([P0, P1], [P2[0], P3[0], P4[0]], [P2[1], P3[1], P4[1]], [P2[2], P3[2], P4[2]])):
        for t in ts:
            for h in range(2):
                seq.append((comp, t, h))
    for i, (comp, t, h) in enumerate(seq):
        a(f"ds_read_b128 {vr(PF+4*i,4)}, v{T0+5+h} offset:{t*64}")
        if i == 14:
            a("s_waitcnt lgkmcnt(7)")
    for i, (comp, t, h) in enumerate(seq):
        if i >= 8:
            a(f"s_waitcnt lgkmcnt({21 - i})")
        for mt in range(2):
            d = vr(D + 8 * comp + 4 * mt, 4)
            a(f"v_mfma_f32_16x16x32_bf16 {d}, {vr(WF + 4*(10*mt + 2*TPATH[t] + h),4)}, {vr(PF+4*i,4)}, {d}")
    if PROF == 7:
        stamp(a, 4)
    a(f"s_or_b32 s63, s{S_LAST}, s62")
    a("s_cbranch_scc0 MORE")
    for i in range(8):
        a(f"v_mul_f32 v{i}, 0xbfb8aa3b, v{D+i}")
    for i in range(8):
        a(f"v_exp_f32 v{i}, v{i}")
    for i in range(8):
        a(f"v_add_f32 v{i}, 1.0, v{i}")
    for i in range(8):
        a(f"v_rcp_f32 v{i}, v{i}")
    a("s_cmp_lg_u32 s62, 0")
    for comp in range(4):
        if comp:
            for i in range(8):
                a(f"v_mul_f32 v{D+8*comp+i}, v{D+8*comp+i}, v{i}")
        for i in range(4):
            a(f"v_cvt_pk_bf16_f32 v{8+4*comp+i}, v{D+8*comp+2*i}, v{D+8*comp+2*i+1}")
        if DRY:
            a(f"s_cbranch_scc1 {'T_RET' if comp == 3 else 'T_S%d' % comp}")
        a(f"buffer_store_dwordx4 {vr(8+4*comp,4)}, v{T0+4}, s[{R_OUT}:{R_OUT+3}], s54 offen offset:{128*comp}{OPOL}")
        if DRY and comp < 3:
            a.label(f"T_S{comp}")
    if PROF == 7:
        stamp(a, 7)
    if PROF:
        a("s_waitcnt vmcnt(0)")
    stamp(a, 11, late=True)
    stamp(a, 15, True)
    prof_dump(a, 98, 1, 3, S_WAVE)
    if opt("amp", 0):
        a("s_cmp_lg_u32 s2, 100")
        a("s_cbranch_scc1 K2_end")
        srd(a, 4, 98, WS_PROF + 100 * 1024, 64)
        a("v_mov_b32 v0, 0")
        a("buffer_load_dword v2, v0, s[4:7], 0 offen")
        a("buffer_load_dword v3, v0, s[4:7], 0 offen offset:60")
        a("s_waitcnt vmcnt(0)")
        a("v_readfirstlane_b32 s60, v2")
        a("v_readfirstlane_b32 s61, v3")
        lo, hi = {1: ("s60", f"s{S_PROF}"), 2: (f"s{S_PROF}", f"s{S_PROF+6}"), 3: (f"s{S_PROF+6}", f"s{S_PROF+9}"),
                  4: ("s60", "s61"), 5: ("s60", "s60")}[opt("amp", 0)]
        a(f"s_sub_u32 s62, {hi}, {lo}")
        a("s_min_u32 s62, s62, 10000")
        a("s_lshl_b32 s62, s62, 2")
        a("s_add_u32 s62, s62, 1000")
        a.label("AMPL")
        a("s_memrealtime s[80:81]")
        a("s_waitcnt lgkmcnt(0)")
        a(f"s_sub_u32 s63, s80, s{S_PROF+15}")
        a("s_cmp_lt_u32 s63, s62")
        a("s_cbranch_scc1 AMPL")
    if PROF == 4:
        a("s_lshl_b32 s80, s2, 3")
        a(f"s_add_u32 s80, s80, s{S_WAVE}")
        a("s_lshl_b32 s80, s80, 8")
        a(f"s_add_u32 s80, s80, {WS_PROF + 0x200000}")
        srd(a, 4, 98, "s80", 256)
        a(f"v_lshlrev_b32 v0, 2, v{LANE}")
        a("buffer_store_dword v183, v0, s[4:7], 0 offen")
    if PROF == 3:
        a("s_load_dwordx2 s[54:55], s[0:1], 80")
        a("s_min_u32 s80, s2, 249")
        a("s_lshl_b32 s80, s80, 10")
        a(f"s_add_u32 s80, s80, {WS_PROF}")
        srd(a, 4, 98, "s80", 64)
        a("v_mov_b32 v0, 0")
        a("buffer_load_dword v2, v0, s[4:7], 0 offen")
        a("buffer_load_dword v3, v0, s[4:7], 0 offen offset:8")
        a("buffer_load_dword v4, v0, s[4:7], 0 offen offset:24")
        a("buffer_load_dword v5, v0, s[4:7], 0 offen offset:60")
        a("s_waitcnt vmcnt(0) lgkmcnt(0)")
        srd(a, 4, 54, 0, 256)
        a("v_not_b32 v2, v2")
        a("s_mov_b64 exec, 1")
        for i in range(4):
            a(f"buffer_atomic_umax v{2+i}, v0, s[4:7], 0 offen offset:{4*i}")
        a(f"v_not_b32 v2, s{S_PROF}")
        a("buffer_atomic_umax v2, v0, s[4:7], 0 offen offset:16")
        for i, st in enumerate((0, 2, 3, 4, 6, 7, 8, 9, 10, 15)):
            a(f"v_mov_b32 v{3+i}, s{S_PROF+st}")
            a(f"buffer_atomic_umax v{3+i}, v0, s[4:7], 0 offen offset:{20+4*i}")
    a("s_endpgm")
    a.label("MORE")
    for i in range(8):
        a(f"buffer_store_dwordx4 {vr(D+4*i,4)}, v{T0+8}, s[{R_ACC}:{R_ACC+3}], s57 offen offset:{(i//2)*128 + (i%2)*16}")
    a(f"s_lshl_b32 s54, s{S_WAVE}, 6")
    a(f"v_add_u32 v{TID}, s54, v{LANE}")
    a(f"s_add_u32 s{S_R0}, s{S_R0}, s{S_LEN}")
    a("s_waitcnt vmcnt(0)")
    a("s_barrier")
    a("s_branch ROUND")
    a.label("K2_end")
    a("s_endpgm")
    return a


def descriptor(name, nv, ns):
    return f""".amdhsa_kernel {name}
  .amdhsa_next_free_vgpr {nv}
  .amdhsa_next_free_sgpr {ns}
  .amdhsa_accum_offset {(nv + 3) // 4 * 4}
  .amdhsa_group_segment_fixed_size 0
  .amdhsa_kernarg_size 96
  .amdhsa_user_sgpr_count 2
  .amdhsa_user_sgpr_kernarg_segment_ptr 1
  .amdhsa_system_sgpr_workgroup_id_x 1
  .amdhsa_float_denorm_mode_32 3
.end_amdhsa_kernel
"""


def main():
    ref = open(os.path.join(os.path.dirname(os.path.abspath(__file__)), "..", "cdna_kernels", NAME + ".s.ref")).read()
    head = [l for l in ref.split("\n") if l.startswith(";") and "@launch" not in l and "Override" not in l
            and "grid=ceil" not in l]
    k1, k2 = "edge_sort_kernel", NAME + "_kernel"
    out = head + ([] if FUSED else [f"; @launch kernel={k1} grid=(255,1,1) block=(1024,1,1) lds={K1_LDS}"]) + [
        f"; @launch kernel={k2} grid=(256,1,1) block=(512,1,1) lds={K2_LDS}",
        ";",
        "; Part 1: each workgroup sorts 3200 edges by destination bin (49 nodes) through LDS and writes the edge",
        ";   attributes, a 12-byte record (source row, node in bin, rhat) and a segment table to d_ws; it also splits",
        ";   x into two 32-channel tables and lays out the weights. Completion is published with tagged flags.",
        "; Part 2: one workgroup per bin. It stages the bin's edges in LDS, sorts them by node, and for each node",
        ";   and channel half accumulates T[k, a, b, c] = sum_e e[k] * (1, rhat)[a] * x[src][b, c] with MFMA",
        ";   (x rows gathered by LDS-DMA), contracts k with w_rad, then applies w_si0 / w_si1 and the gate.",
        ";   Bins that exceed the LDS capacity are processed in several rounds.",
        '.amdgcn_target "amdgcn-amd-amdhsa--gfx950"',
        ".text",
    ]
    for name, fn in ((k1, kernel1), (k2, kernel2))[FUSED:]:
        lines, nops = fn().finish()
        print(name, "instructions:", len(lines), "nops inserted:", nops, file=sys.stderr)
        out += [f".globl {name}", ".p2align 8", f".type {name},@function", f"{name}:"] + lines
    out += ['.section .rodata,"a"'] + ([] if FUSED else [".p2align 6", descriptor(k1, 96, 102)])
    out += [".p2align 6", descriptor(k2, NVGPR, 102)]
    open(sys.argv[1], "w").write("\n".join(out))


if __name__ == "__main__":
    main()
```

```python
import os
import sys

sys.path.insert(0, os.path.dirname(os.path.abspath(__file__)))
from asmlib import Asm, vr, sr

NAME = "gather_scatter__tensor_product_equiv_equiformer__graph"
N, E = 12500, 800000
CHUNK, W = 3200, 250
NPB = 49
NBIN = 256

WS_TAB = 0
WS_WTAB = 0x40000
WS_WSI = 0x48000
WS_META = 0x100000
WS_XP = 0xB00000
WS_EP = 0x1200000
WS_P = 0x2B00000
P_NODE = 784
P_HALF = NPB * P_NODE
P_WG = 0x13000
WS_ACC = 0x4000000
XHALF = N * 256

OPT = dict(a.split("=") for a in sys.argv[2:] if "=" in a)


def opt(name, default):
    return type(default)(OPT.get(name, default))


PROF = opt("prof", 0)
WS_PROF = 0x6000000
S_PROF = 82
FUSED = opt("fused", 1)


def preg(i):
    if FUSED:
        return {0: 82, 6: 83, 9: 90, 10: 91, 11: 92, 12: 93, 13: 94, 15: 95}.get(i)
    return S_PROF + i


def stamp(a, i, real=False, late=False, k1=False):
    if k1:
        i = {2: None, 4: None, 6: 10, 8: 11}[i]
        if i is None or PROF != 5:
            return
    elif PROF == 5 and i not in (0, 15, 6, 9):
        return
    if PROF and not (late and PROF == 2):
        a("s_waitcnt lgkmcnt(0)")
        a(("s_memrealtime" if real or PROF in (3, 5) else "s_memtime") + " s[80:81]")
        a("s_waitcnt lgkmcnt(0)")
        a(f"s_mov_b32 s{preg(i)}, s80")
        if PROF == 4 and i == 7:
            a("s_memrealtime s[80:81]" if opt("rt", 0) else "s_memtime s[80:81]")


def prof_dump(a, wsreg, kern, nwave_shift, wavereg):
    if PROF:
        a(f"s_lshl_b32 s80, s2, {nwave_shift}")
        a(f"s_add_u32 s80, s80, s{wavereg}")
        a("s_lshl_b32 s80, s80, 6")
        a(f"s_add_u32 s80, s80, {WS_PROF + kern * 0x100000}")
        srd(a, 4, wsreg, "s80", 64)
        a("v_mov_b32 v0, 0")
        for i in range(16):
            if preg(i) is None:
                continue
            a(f"v_mov_b32 v1, s{preg(i)}")
            a(f"buffer_store_dword v1, v0, s[4:7], 0 offen offset:{4*i}")


def srd(a, d, b, off, size):
    a(f"s_add_u32 s{d}, s{b}, {off}")
    a(f"s_addc_u32 s{d+1}, s{b+1}, 0")
    a(f"s_mov_b32 s{d+2}, {size}")
    a(f"s_mov_b32 s{d+3}, 0x20000")


def scan64(a, v):
    for sh in (1, 2, 4, 8):
        a(f"v_add_u32_dpp v{v}, v{v}, v{v} row_shr:{sh} row_mask:0xf bank_mask:0xf bound_ctrl:1")
    a(f"v_add_u32_dpp v{v}, v{v}, v{v} row_bcast:15 row_mask:0xa bank_mask:0xf")
    a(f"v_add_u32_dpp v{v}, v{v}, v{v} row_bcast:31 row_mask:0xc bank_mask:0xf")


K1_ERAW = 0
K1_MS = 102400
K1_INV = K1_MS + 38400
K1_HIST = K1_INV + 6400
K1_LDS = 152 * 1024


def prep_tables(a, ST):
    a("v_add_u32 v4, s60, v0")
    a("v_and_b32 v5, 3, v4")
    a("v_bfe_u32 v6, v4, 2, 4")
    a("v_bfe_u32 v7, v4, 6, 2")
    a("v_lshrrev_b32 v8, 8, v4")
    a("v_cmp_le_u32 vcc, 10, v8")
    a("v_cndmask_b32 v9, 0, 1, vcc")
    a("v_mul_u32_u24 v10, 10, v9")
    a("v_sub_u32 v10, v8, v10")
    a("v_lshl_add_u32 v11, v7, 2, v5")
    a("v_mul_u32_u24 v11, 320, v11")
    a("v_lshrrev_b32 v12, 1, v10")
    a("v_lshl_add_u32 v11, v12, 6, v11")
    a("v_lshl_add_u32 v11, v9, 5, v11")
    a("v_and_b32 v12, 1, v10")
    a("v_lshl_add_u32 v11, v12, 4, v11")
    a("v_add_u32 v11, v11, v6")
    a("v_lshlrev_b32 v11, 1, v11")
    a("buffer_load_ushort v13, v11, s[16:19], 0 offen")
    a("v_mov_b32 v30, 0x80000000")
    for t in range(2):
        b = 32 + 8 * t
        a(f"v_add_u32 v14, {20*t}, v8")
        a("v_mul_u32_u24 v15, 26, v14")
        a("v_lshrrev_b32 v15, 8, v15")
        a("v_mul_u32_u24 v16, 10, v15")
        a("v_sub_u32 v16, v14, v16")
        a("v_lshrrev_b32 v17, 1, v16")
        a("v_and_b32 v18, 1, v16")
        a("v_lshl_add_u32 v19, v7, 2, v5")
        a("v_lshl_add_u32 v19, v18, 5, v19")
        a("v_lshl_add_u32 v19, v17, 6, v19")
        a("v_lshrrev_b32 v20, 1, v15")
        a("v_and_b32 v21, 1, v15")
        a("v_lshrrev_b32 v22, 2, v6")
        a("v_lshlrev_b32 v22, 3, v22")
        a("v_lshl_add_u32 v22, v20, 5, v22")
        a("v_lshl_add_u32 v22, v21, 2, v22")
        a("v_and_b32 v23, 3, v6")
        a("v_add_u32 v22, v22, v23")
        a("v_lshl_add_u32 v22, v19, 6, v22")
        a("v_lshlrev_b32 v22, 1, v22")
        a("v_subrev_u32 v23, 16384, v22")
        a("v_cmp_gt_u32 vcc, 2, v17")
        a("v_cndmask_b32 v24, v30, v22, vcc")
        a("v_cndmask_b32 v25, v23, v30, vcc")
        a(f"buffer_load_ushort v{b}, v24, s[20:23], 0 offen")
        a(f"buffer_load_ushort v{b+1}, v24, s[20:23], 0 offen offset:2048")
        a(f"buffer_load_ushort v{b+2}, v25, s[24:27], 0 offen")
        a(f"buffer_load_ushort v{b+3}, v25, s[24:27], 0 offen offset:2048")
    a("v_lshlrev_b32 v4, 2, v4")
    a("s_mov_b32 s61, 20480")
    a("s_waitcnt vmcnt(0)")
    a("v_lshlrev_b32 v13, 16, v13")
    a("buffer_store_dword v13, v4, s[28:31], 0 offen" + ST)
    for t in range(2):
        b = 32 + 8 * t
        a(f"v_or_b32 v{b}, v{b}, v{b+2}")
        a(f"v_or_b32 v{b+1}, v{b+1}, v{b+3}")
        a(f"v_lshl_or_b32 v{b}, v{b+1}, 16, v{b}")
        a(f"buffer_store_dword v{b}, v4, s[32:35], {'0' if t == 0 else 's61'} offen{ST}")


def kernel1():
    a = Asm()
    NT = " nt" if opt("k1nt", 1) else ""
    ST = {0: "", 1: " nt", 2: " sc1"}[opt("k1st", 2)]
    a("s_cmp_ge_u32 s2, 255")
    a("s_cbranch_scc1 K1_end")
    a("s_load_dwordx8 s[4:11], s[0:1], 0")
    a("s_load_dwordx8 s[52:59], s[0:1], 32")
    a("s_load_dwordx2 s[14:15], s[0:1], 88")
    a("v_lshlrev_b32 v1, 4, v0")
    a("v_mul_u32_u24 v2, 24, v0")
    a("v_and_b32 v3, 63, v0")
    a("v_lshlrev_b32 v3, 4, v3")
    a("v_lshrrev_b32 v40, 6, v0")
    a("v_readfirstlane_b32 s3, v40")
    a("s_cmp_ge_u32 s2, 250")
    a("s_cbranch_scc1 K1_prep")
    stamp(a, 0, True)
    stamp(a, 1)
    a("s_mul_i32 s60, s2, 12800")
    a("s_mul_i32 s61, s2, 19200")
    a("s_mul_i32 s62, s2, 25600")
    a("s_mul_i32 s63, s2, 102400")
    a("s_mul_i32 s64, s2, 38400")
    a("s_lshl_b32 s65, s2, 10")
    a("s_waitcnt lgkmcnt(0)")
    srd(a, 16, 52, "s60", 12800)
    a(f"buffer_load_dwordx4 v[4:7], v1, s[16:19], 0 offen{NT}")
    a("v_lshlrev_b32 v41, 2, v0")
    a("v_mov_b32 v42, 0")
    a("s_cmp_ge_u32 s3, 4")
    a("s_cbranch_scc1 K1_nozero")
    a(f"v_add_u32 v41, {K1_HIST}, v41")
    a("ds_write_b32 v41, v42")
    a.label("K1_nozero")
    srd(a, 20, 10, "s60", 12800)
    srd(a, 24, 6, "s61", 19200)
    srd(a, 28, 4, "s62", 25600)
    srd(a, 32, 8, "s63", 102400)
    a("s_mov_b32 s66, 16384")
    a("s_lshl_b32 s67, s3, 10")
    kq = [int(c) for c in opt("kq", "00700")]

    def e_in(i):
        for k in range(sum(kq[:i]), sum(kq[:i + 1])):
            if k == 6:
                a("s_cmp_ge_u32 s3, 4")
                a("s_cbranch_scc1 K1_noe7")
            a("s_mov_b32 m0, s67")
            a(f"buffer_load_dwordx4 v3, s[32:35], s67 offen{NT} lds")
            a("s_add_u32 s67, s67, 16384")
            if k == 6:
                a.label("K1_noe7")

    def n_e(lo, hi):
        return min(sum(kq[:hi + 1]), 6) - min(sum(kq[:lo]), 6)

    e_in(0)
    a("s_waitcnt lgkmcnt(0)")
    a("s_barrier")
    RNT = NT if opt("rnt", 1) else ""
    a(f"buffer_load_dwordx4 v[8:11], v1, s[20:23], 0 offen{NT}")
    a(f"buffer_load_dwordx4 v[12:15], v2, s[24:27], 0 offen{RNT}")
    a(f"buffer_load_dwordx2 v[16:17], v2, s[24:27], 0 offen offset:16{RNT}")
    if opt("k1b2", 1):
        a("s_barrier")
    e_in(1)
    a(f"buffer_load_dwordx4 v[20:23], v1, s[28:31], 0 offen{NT}")
    a(f"buffer_load_dwordx4 v[24:27], v1, s[28:31], s66 offen{NT}")
    e_in(2)
    a("s_add_u32 s68, s64, %d" % WS_META)
    srd(a, 36, 14, "s68", 38400)
    a("s_add_u32 s68, s63, %d" % WS_EP)
    srd(a, 40, 14, "s68", 102400)
    srd(a, 44, 14, WS_XP, 2 * XHALF)
    srd(a, 48, 14, "s65", 1024)
    a("v_cmp_gt_u32 vcc, 800, v0")
    a("s_mov_b64 s[70:71], vcc")
    a("v_mov_b32 v43, 1")
    a(f"s_waitcnt vmcnt({5 + n_e(0, 2)})")
    stamp(a, 2)
    a("s_mov_b64 exec, s[70:71]")
    a("s_cbranch_execz K1_skip_rank")
    for i in range(4):
        a(f"v_mul_u32_u24 v{28+i}, 21400, v{4+i}")
        a(f"v_lshrrev_b32 v{28+i}, 20, v{28+i}")
        a(f"v_mul_u32_u24 v{36+i}, 49, v{28+i}")
        a(f"v_sub_u32 v{36+i}, v{4+i}, v{36+i}")
        a(f"v_lshlrev_b32 v{28+i}, 2, v{28+i}")
        a(f"v_add_u32 v{28+i}, {K1_HIST}, v{28+i}")
        a(f"ds_add_rtn_u32 v{32+i}, v{28+i}, v43")
    a.label("K1_skip_rank")
    a("s_mov_b64 exec, -1")
    a("s_waitcnt lgkmcnt(0)")
    a("s_barrier")
    stamp(a, 3)
    a("s_cmp_lg_u32 s3, 0")
    a("s_cbranch_scc1 K1_noscan")
    a(f"v_add_u32 v41, {K1_HIST}, v3")
    a("ds_read_b128 v[44:47], v41")
    a("s_waitcnt lgkmcnt(0)")
    a("v_add_u32 v49, v44, v45")
    a("v_add_u32 v50, v49, v46")
    a("v_add_u32 v51, v50, v47")
    a("v_mov_b32 v52, v51")
    scan64(a, 52)
    a("v_sub_u32 v52, v52, v51")
    a("v_add_u32 v53, v52, v44")
    a("v_add_u32 v54, v52, v49")
    a("v_add_u32 v55, v52, v50")
    a("ds_write_b128 v41, v[52:55]")
    for i in range(4):
        a(f"v_lshl_or_b32 v{56+i}, v{44+i}, 16, v{52+i}")
    a("buffer_store_dwordx4 v[56:59], v3, s[48:51], 0 offen")
    a("s_waitcnt lgkmcnt(0)")
    a.label("K1_noscan")
    e_in(3)
    a("v_lshrrev_b32 v60, 5, v0")
    a("s_mul_i32 s69, s2, 50")
    a("v_add_u32 v60, s69, v60")
    a("v_lshlrev_b32 v60, 8, v60")
    a("v_bfe_u32 v61, v0, 3, 2")
    a("v_lshl_add_u32 v60, v61, 6, v60")
    a("v_and_b32 v61, 3, v0")
    a("v_lshl_add_u32 v60, v61, 4, v60")
    a("v_bfe_u32 v61, v0, 2, 1")
    a(f"v_mul_u32_u24 v61, {XHALF}, v61")
    a("v_add_u32 v60, v60, v61")
    a("v_add_u32 v61, 8192, v60")
    a("v_cmp_gt_u32 vcc, 576, v0")
    a("v_mov_b32 v62, 0x80000000")
    a("v_cndmask_b32 v61, v62, v61, vcc")
    a("s_barrier")
    a("s_mov_b64 exec, s[70:71]")
    a("s_cbranch_execz K1_skip_scatter")
    for i in range(4):
        a(f"ds_read_b32 v{28+i}, v{28+i}")
    a(f"s_waitcnt vmcnt({2 + n_e(1, 3)})")
    a("s_mov_b32 s72, 0x80000000")
    a("s_mov_b32 s73, 0xffff0000")
    for i in range(4):
        a(f"v_lshl_or_b32 v{8+i}, v{8+i}, 8, v{36+i}")
        a(f"v_or_b32 v{8+i}, s72, v{8+i}")
    a("v_lshlrev_b32 v44, 16, v13")
    a("v_alignbit_b32 v45, v14, v13, 16")
    a("v_and_b32 v46, s73, v14")
    a("v_lshlrev_b32 v47, 16, v16")
    a("v_alignbit_b32 v48, v17, v16, 16")
    a("v_and_b32 v49, s73, v17")
    w1 = [12, 45, 15, 48]
    w2 = [44, 46, 47, 49]
    a("v_lshlrev_b32 v50, 2, v0")
    a("s_waitcnt lgkmcnt(0)")
    for i in range(4):
        a(f"v_add_u32 v{32+i}, v{32+i}, v{28+i}")
        a(f"v_mul_u32_u24 v{28+i}, 12, v{32+i}")
        a(f"v_add_u32 v{28+i}, {K1_MS}, v{28+i}")
        a(f"ds_write2_b32 v{28+i}, v{8+i}, v{w1[i]} offset0:0 offset1:1")
        a(f"ds_write_b32 v{28+i}, v{w2[i]} offset:8")
        a(f"v_lshlrev_b32 v{32+i}, 1, v{32+i}")
        a(f"v_add_u32 v{32+i}, {K1_INV}, v{32+i}")
        a(f"v_add_u32 v{52+i}, {i}, v50")
        a(f"ds_write_b16 v{32+i}, v{52+i}")
    a.label("K1_skip_scatter")
    a("s_mov_b64 exec, -1")
    a(f"s_waitcnt vmcnt({n_e(2, 3)})")
    a(f"buffer_store_dwordx4 v[20:23], v60, s[44:47], 0 offen{ST}")
    a(f"buffer_store_dwordx4 v[24:27], v61, s[44:47], 0 offen{ST}")
    e_in(4)
    a("s_waitcnt lgkmcnt(0)")
    a("s_barrier")
    stamp(a, 4)
    a(f"v_add_u32 v41, {K1_MS}, v1")
    a("ds_read_b128 v[4:7], v41")
    a("ds_read_b128 v[8:11], v41 offset:16384")
    a("ds_read_b128 v[12:15], v41 offset:32768")
    a("v_and_b32 v42, 0x3fe, v0")
    a(f"v_add_u32 v42, {K1_INV}, v42")
    for k in range(7):
        a(f"ds_read_u16 v{28+k}, v42 offset:{1024*k}")
    a("v_and_b32 v43, 1, v0")
    a("v_lshlrev_b32 v43, 4, v43")
    a("s_mov_b32 s74, 32768")
    a("s_waitcnt lgkmcnt(7)")
    a(f"buffer_store_dwordx4 v[4:7], v1, s[36:39], 0 offen{ST}")
    a(f"buffer_store_dwordx4 v[8:11], v1, s[36:39], s66 offen{ST}")
    a(f"buffer_store_dwordx4 v[12:15], v1, s[36:39], s74 offen{ST}")
    a("s_waitcnt lgkmcnt(0)")
    for k in range(7):
        a(f"v_lshl_add_u32 v{28+k}, v{28+k}, 5, v43")
    stamp(a, 5)
    a(f"s_waitcnt vmcnt({3 if kq[4] else 5})")
    a("s_barrier")
    stamp(a, 6)
    for k in range(6):
        a(f"ds_read_b128 v[{64+4*k}:{67+4*k}], v{28+k}")
    a("s_mov_b32 s75, 0")
    for k in range(6):
        a(f"s_waitcnt lgkmcnt({5-k})")
        a(f"buffer_store_dwordx4 v[{64+4*k}:{67+4*k}], v1, s[40:43], s75 offen{ST}")
        a("s_add_u32 s75, s75, 16384")
    a("s_cmp_ge_u32 s3, 4")
    a("s_cbranch_scc1 K1_fin")
    a("ds_read_b128 v[88:91], v34")
    a("s_waitcnt lgkmcnt(0)")
    a(f"buffer_store_dwordx4 v[88:91], v1, s[40:43], s75 offen{ST}")
    a.label("K1_fin")
    if opt("cpf", 2) & 4:
        a(f"s_cmp_ge_u32 s2, {opt('cpn', 8)}")
        a("s_cbranch_scc1 K1_nocpf")
        a("s_getpc_b64 s[76:77]")
        a.label("K1_here2")
        a("s_mov_b32 s78, K2_end-K1_here2")
        a("s_mov_b32 s79, 0x20000")
        a("v_lshlrev_b32 v60, 7, v0")
        a("buffer_load_dword v61, v60, s[76:79], 0 offen")
        a("s_waitcnt vmcnt(0)")
        a.label("K1_nocpf")
    stamp(a, 7)
    if PROF:
        a("s_waitcnt vmcnt(0)")
    stamp(a, 8)
    stamp(a, 15, True)
    prof_dump(a, 14, 0, 4, 3)
    a("s_endpgm")

    a.label("K1_prep")
    a("s_waitcnt lgkmcnt(0)")
    srd(a, 16, 54, 0, 16 * 320 * 2)
    srd(a, 20, 56, 0, 128 * 64 * 2)
    srd(a, 24, 58, 0, 192 * 64 * 2)
    srd(a, 28, 14, WS_WTAB, 20480)
    srd(a, 32, 14, WS_WSI, 40960)
    if opt("cpf", 2) & 2:
        a("s_getpc_b64 s[36:37]")
        a.label("K1_here")
        a("s_mov_b32 s38, K2_end-K1_here")
        a("s_mov_b32 s39, 0x20000")
        a("v_lshlrev_b32 v60, 7, v0")
        a("buffer_load_dword v61, v60, s[36:39], 0 offen")
    a("s_sub_u32 s60, s2, 250")
    a("s_lshl_b32 s60, s60, 10")
    prep_tables(a, "")
    a.label("K1_end")
    a("s_endpgm")
    return a


CAP = 3392
SLOWCAP = 256
MAXSTEPS = 142
MAXWSTEPS = 20
L_E = 0
L_RING = 32 + CAP * 32
RING_W = 6336
SUBB = 2112
L_SA = L_RING
L_SB = L_SA + MAXSTEPS * 128
L_MISC = L_SB + MAXSTEPS * 256
L_CNT = L_MISC
L_FLAG = L_MISC + 256
L_WSUM = L_MISC + 272
L_DUMMY = L_WSUM + 16
L_MAP = 94208
K2_LDS = 163840
assert L_MAP + CAP * 4 <= L_RING and L_DUMMY + 256 <= K2_LDS and L_RING + 8 * RING_W <= L_MISC

ACC = 0
WR = 88
B0 = 128
B1 = 144
GS, G0, G1, G2, N0, N2 = 160, 164, 168, 172, 176, 180
SEL = 184
M0R = 188
MBR = 198
GSP = (160, 252)
NID = 218
Y = 220
REP = 223
XA = 224
XOFF, QQ8, BAE, BAO, POFF, NST = 228, 230, 231, 232, 233, 234
U, PT, T8, EA = 236, 244, 235, 248
T0 = 236
TID, LANE = 250, 251
NVGPR = 256
XBIAS = 2048

S_WAVE = 3
R_XP, R_EP, R_MT, R_TB, R_P, R_W, R_OUT, R_ACC = 4, 8, 12, 16, 20, 24, 28, 32
S_NN, S_T, S_R0, S_LEN, S_CAP = 36, 37, 38, 39, 40
S_NODE0, S_NNW, S_STEP0, S_NS = 41, 42, 43, 44
S_D, S_REM, S_NODE, S_PHASE, S_TAB0, S_TAB1, S_RB, S_POFF = 45, 46, 47, 48, 49, 50, 51, 52
S_HI, S_SGN = 100, 101
S_MASK = 64
S_LAST = 78
S_NEND = 79
S_EM0 = 57
S_EVT = 59
S_OLD = 53
S_LEFT, S_PADR = 58, 63
S_PAT = 58
S_EGN = 63
NEWTAIL = opt('newtail', 0)
DRY = NEWTAIL and opt('dry', 0)
R_DBG = 76
R_FLG = 84
S_EB1, S_EB2, S_TAG = 88, 89, 96

PPOL = ["", " sc1", " nt", " sc0 sc1"][opt("ppol", 0)]
OPOL = ["", " sc1", " nt", " sc0 sc1"][opt("opol", 0)]

VC = opt("vc", 0)
HI = "v219" if VC else f"s{S_HI}"
SGN = f"v{TID}" if VC else f"s{S_SGN}"

TPATH = [0, 1, 2, 2, 2, 3, 3, 3, 4, 4, 4]
P0, P1 = 0, 1
P2 = [2, 3, 4]
P3 = [5, 6, 7]
P4 = [8, 9, 10]


def acc(t, cq):
    return ACC + 4 * (2 * t + cq)


def mfma_list():
    out = []
    for t, A, B, fl in ((P2[0], G0, B0, 1), (P1, G0, B0 + 8, 1), (P0, GS, B0, 1), (P3[0], GS, B0 + 8, 1),
                        (P2[2], G2, B0, 1), (P4[1], G2, B0 + 8, 1), (P2[1], G1, B0, 1), (P4[2], G1, B0 + 8, 1),
                        (P4[2], N0, B1, 0), (P4[1], N0, B1 + 8, 0), (P3[1], GS, B1, 1), (P3[2], GS, B1 + 8, 1),
                        (P4[0], N2, B1, 1), (P1, G2, B1 + 8, 0), (P1, G1, B1, 0), (P4[0], G1, B1 + 8, 0)):
        for cq in range(2):
            out.append((t, cq, A, B + 4 * cq, fl))
    if opt("chain", 1):
        n2, g2p1, g1p1, g1p4 = out[24:26], out[26:28], out[28:30], out[30:32]
        out[16], out[17] = out[17], out[16]
        out[24:32] = [g1p1[0], g2p1[0], g1p1[1], g2p1[1], n2[0], g1p4[0], n2[1], g1p4[1]]
    return out


def emit_mfma(a, m, first, p0, q0):
    t, cq, A, B, fl = m
    if A == GS:
        A = GSP[p0]
    if opt("nomfma", 0):
        return
    d = vr(acc(t, cq), 4)
    c = "0" if (first and fl) else d
    if q0:
        a(f"v_mfma_f32_16x16x16_bf16 {d}, {vr(A,2)}, {vr(B,2)}, {c}")
    else:
        a(f"v_mfma_f32_16x16x32_bf16 {d}, {vr(A,4)}, {vr(B,4)}, {c}")


def b_reads(k, pos):
    B = B0 if k < 2 else B1
    hf = k & 1
    return [f"ds_read_b64_tr_b16 {vr(B + 4*u + 2*hf, 2)}, v{BAE if u % 2 == 0 else BAO} offset:{pos*SUBB + u*32}"
            for u in range(4)]


def vmwait(n):
    return [] if opt("nowait", 0) else [f"s_waitcnt vmcnt({n})"]


def dma(k, pos):
    if opt("nodma", 0):
        return [[], [], []]
    hf, bp = k & 1, k >> 1
    so = S_TAB0 if bp == 0 else S_TAB1
    pol = ["", " sc1", " nt", " sc0 sc1", " sc0"][opt("xpol", 1)]
    return [[f"s_add_u32 m0, s{S_RB}, {pos*SUBB}"],
            [f"buffer_load_dwordx4 v{XA + 2*hf}, s[{R_XP}:{R_XP+3}], s{so} offen{pol} lds"],
            [f"buffer_load_dwordx4 v{XA + 2*hf + 1}, s[{R_XP}:{R_XP+3}], s{so} offen offset:1088{pol} lds"]]


W0_FETCH = [f"s_lshr_b32 s54, s{S_D}, 1",
            "s_set_gpr_idx_on s54, gpr_idx(SRC0)",
            f"v_mov_b32 v{REP}, v{M0R}",
            "s_set_gpr_idx_off"]
W0_REP = [f"v_mov_b32_dpp v{REP}, v{REP} row_shr:4 row_mask:0xf bank_mask:0xa",
          f"v_mov_b32_dpp v{REP}, v{REP} row_shl:4 row_mask:0xf bank_mask:0x5"]
WRAP = [f"s_mov_b32 s{S_D}, 0",
        f"s_add_u32 s{S_TAB0}, s{S_TAB0}, {XHALF}",
        f"s_add_u32 s{S_TAB1}, s{S_TAB1}, {XHALF}"]


def x_addr(q):
    return f"v_add_u32_dpp v{XA+q}, v{REP}, v{XOFF + (q & 1)} quad_perm:[{q},{q},{q},{q}] row_mask:0xf bank_mask:0xf"


META_SET = [f"s_set_gpr_idx_on s{S_D}, gpr_idx(SRC1)",
            f"v_mad_u32_u16 v{T8}, 8, v{MBR+1}, 0",
            f"v_lshlrev_b32 v{Y}, 16, v{MBR}",
            f"v_and_b32 v{Y+1}, {HI}, v{MBR}",
            f"v_and_b32 v{Y+2}, {HI}, v{MBR+1}",
            "s_set_gpr_idx_off"]


def e_addr(p):
    return [f"v_add_u32_dpp v{EA+h}, v{T8}, v{QQ8} quad_perm:[{2*p+h},{2*p+h},{2*p+h},{2*p+h}] "
            "row_mask:0xf bank_mask:0xf" for h in range(2)]


def e_reads(dst):
    return [f"ds_read_b64_tr_b16 {vr(dst + 2*h, 2)}, v{EA+h}" for h in range(2)]


def unpack_valu(aa, p):
    return [f"v_lshlrev_b32 v{U+2*aa}, 16, v{GSP[p]+aa}", f"v_and_b32 v{U+2*aa+1}, {HI}, v{GSP[p]+aa}"]


def gb(j, aa, p):
    if opt("nog", 0):
        return []
    hf, rl = aa >> 1, 2 * (aa & 1)
    pl = PT + 2 * (aa & 1)
    return [f"v_mul_f32_dpp v{pl}, v{Y+j}, v{U+2*aa} row_newbcast:{4*rl+2*p+hf} row_mask:0xf bank_mask:0xf",
            f"v_mul_f32_dpp v{pl+1}, v{Y+j}, v{U+2*aa+1} row_newbcast:{4*rl+4+2*p+hf} row_mask:0xf bank_mask:0xf",
            f"v_cvt_pk_bf16_f32 v{(G0, G1, G2)[j]+aa}, v{pl}, v{pl+1}"]


def neg(dst, src):
    return [f"v_xor_b32 v{dst+i}, {SGN}, v{src+i}" for i in range(4)]


SHORT = opt("short", 0)


def body_name(rho, kind, p0, p1):
    return f"S{rho}{kind}{p0}{p1}"


def goto_next(a, rho, kind, p1, fall=False):
    if p1 == 0:
        a(f"s_cmp_eq_u32 s{S_D}, 0")
        a(f"s_cbranch_scc1 {body_name(rho, kind, 0, 0)}")
    if not fall:
        a(f"s_branch {body_name(rho, kind, p1, 1 - p1)}")


def issue_cost(l):
    op = l.split()[0]
    if op.endswith(":"):
        return 0
    if op.startswith("v_"):
        return 5.3 if "_dpp" in op or op.startswith(("v_cvt_pk", "v_mad")) else 4.2
    return {"d": 8, "b": 14}.get(op[0], 4.1)


def step_body(a, rho, kind, p0, p1, fall, cold):
    tag = body_name(rho, kind, p0, p1)
    first = kind == "f"
    x = 3 if first else 0
    p = lambda k: (rho + k) % 3
    F = [[] for _ in range(32)]

    def event(slot, n, k, pos):
        F[slot] += vmwait(n)
        for i, r in enumerate(b_reads(k, pos)):
            F[slot + i].append(r)

    def refill(slot, k, pos):
        d = dma(k, pos)
        F[slot - 1] += d[0]
        F[slot] += [f"WAIT {k}"] + d[1]
        F[slot + opt("xg", 0)] += d[2]

    event(0, 4 + x, 2, p(2))
    refill(5, 1, p(2))
    event(8, 4 + x, 3, p(0))
    refill(13, 2, p(0))
    event(16, 4 + x, 0, p(1))
    refill(21, 3, p(1))
    event(24, 4, 1, p(2))
    refill(29, 0, p(2))
    F[31] += [f"s_sub_u32 s{S_REM}, s{S_REM}, 1"]
    if PROF == 4:
        F[30] += ["s_memrealtime s[80:81]" if opt("rt", 0) else "s_memtime s[80:81]"]
        F[7] += ["s_mov_b32 m0, s96", "s_add_u32 s96, s96, 1", "v_writelane_b32 v219, s80, m0"]

    qb = 1 - p0
    n0, n2 = neg(N0, G0), neg(N2, G2)
    ea, er = e_addr(p1), e_reads(GSP[qb])
    step = [f"s_add_u32 s{S_D}, s{S_D}, 1", f"s_cmp_lt_u32 s{S_D}, s{S_NS}", f"s_cbranch_scc0 {tag}_w"]
    if p1 == 1:
        fetch = [step + [f"{tag}_b:"] + W0_FETCH]
        rep = [[W0_REP[0]]]
        cold += [f"{tag}_w:"] + WRAP + [f"s_branch {tag}_b"]
    else:
        fetch = [step + W0_FETCH + ["FILL", W0_REP[1], f"{tag}_b:"]]
        rep = []
        cold += [f"{tag}_w:"] + WRAP + W0_FETCH + ["FILL", W0_REP[0], f"s_branch {tag}_b"]
    one = lambda lst: [[l] for l in lst]
    g0 = gb(0, 0, p1) + gb(0, 1, p1) + gb(0, 2, p1) + gb(0, 3, p1)
    g2 = gb(2, 0, p1) + gb(2, 1, p1)
    V = [(0, 6, g) for g in one(gb(2, 2, p0) + gb(2, 3, p0))]
    V += [(0, 10, g) for g in one(gb(1, 0, p0) + gb(1, 1, p0) + gb(1, 2, p0) + gb(1, 3, p0))]
    if p1 == 0:
        V += [(7, 11, META_SET)]
    V += [(0, 14, g) for g in one(n0[:2])]
    V += [(0, 14, [ea[0]]), (0, 14, [ea[1]]), (11, 15, [er[0]]), (11, 15, [er[1]])]
    V += [(0, 14, g) for g in one(n0[2:])]
    V += [(0, 22, g) for g in one(n2)]
    up = sum((unpack_valu(aa, qb) for aa in range(4)), [])
    V += [(opt("upe", 15), 22, ["WAIT e", up[0]])] + [(0, 24, g) for g in one(up[1:])]
    nb = opt("nb", 7)
    V += [(16, 30, g) for g in one(g0[:nb])]
    V += [(22, 26, g) for g in fetch] + [(0, 30, [g0[nb]])] + [(0, 27, g) for g in rep]
    V += [(0, 30, g) for g in one(g0[nb+1:nb+3])]
    V += [(0, 28, [x_addr(0)]), (0, 28, [x_addr(1)])]
    V += [(0, 30, g) for g in one(g0[nb+3:])]
    V += [(0, 31, [x_addr(2)]), (0, 31, [x_addr(3)])]
    if qb != p1:
        V += [(24, 31, [f"v_mov_b32 v{GSP[p1]+i}, v{GSP[qb]+i}" for i in range(4)])]
    V += [(0, 31, g) for g in one(g2[:2])] + [(27, 31, [g2[2]])] + [(27, 31, g) for g in one(g2[3:])]
    filler = g0[nb] if p1 == 0 else None
    if filler:
        V = [v for v in V if v[2] != [filler]]
    cost = lambda grp: sum(issue_cost(l) for l in grp)
    total = sum(cost(f) for f in F) + sum(cost(v[2]) for v in V)
    out, cum, i = [], 0.0, 0
    for sl in range(32):
        cum += cost(F[sl])
        mine = []
        while i < len(V):
            e, late, grp = V[i]
            must = any(V[j][1] <= sl for j in range(i, len(V)))
            if sl < e:
                assert not must, (tag, sl, grp)
                break
            if not must and cum + cost(grp) / 2 > total * (sl + 1) / 32:
                break
            mine += grp
            cum += cost(grp)
            i += 1
        tail = [l for l in F[sl] if l.startswith("s_sub")]
        out.append(mine[:1] + [l for l in F[sl] if l not in tail] + mine[1:] + tail
                   if mine and not mine[0].startswith(("s_", "WAIT", "ds_")) else
                   [l for l in F[sl] if l not in tail] + mine + tail)
    assert i == len(V)
    if opt("sched", 2) == 0:
        F = [[] for _ in range(32)]

        def spread(slot, lst, per=2):
            for i, l in enumerate(lst):
                if l is not None:
                    F[slot + i // per].append(l)

        def event2(slot, n, k, pos):
            r = b_reads(k, pos)
            nd = opt("nd", 4)
            if opt("dsf", 0):
                FIRST[slot] += vmwait(n) + r[:nd]
            else:
                F[slot] += vmwait(n) + r[:nd]
            F[slot + 1] += r[nd:]

        FIRST = [[] for _ in range(32)]
        ev2 = opt("ev2", 8)
        spread(0, gb(2, 2, p0) + gb(2, 3, p0) + gb(1, 0, p0) + gb(1, 1, p0) + gb(1, 2, p0) + gb(1, 3, p0))
        rs = opt("rs", 2)
        event2(0, 4 + x, 2, p(2))
        refill(rs, 1, p(2))
        if ev2 == 8:
            event2(8, 4 + x, 3, p(0))
        if p1 == 0:
            F[9] += META_SET
            spread(10, n0[:2] + ea)
            spread(13, n0[2:] + n2)
        else:
            spread(9, n0[:2] + ea + n0[2:])
            spread(13, n2)
        if ev2 == 8:
            refill(8 + max(rs, opt("rs2", 3)), 2, p(0))
            F[opt("es", 13)] += er
        else:
            event2(ev2, 4 + x, 3, p(0))
            F[ev2] += er
            refill(ev2 + rs, 2, p(0))
        event2(16, 4 + x, 0, p(1))
        F[17] += ["WAIT e"]
        spread(17, up)
        refill(16 + rs, 3, p(1))
        g = g0 + g2
        filler = g[0] if p1 == 0 else None
        F[21] += fetch[0]
        if p1 == 1:
            F[22] += rep[0] + [g[0]]
        spread(23 - (p1 == 0), g[1:3], 2 if p1 == 1 else 1)
        spread(24, [x_addr(0), g[3], x_addr(1), g[4]] + g[5:9] + [x_addr(2), g[9], x_addr(3)], 2)
        spread(28, g[10:12], 1)
        spread(29, g[12:], 2)
        if qb != p1:
            F[24] += [f"v_mov_b32 v{GSP[p1]+i}, v{GSP[qb]+i}" for i in range(4)]
        event2(24, 4, 1, p(2))
        refill(24 + rs, 0, p(2))
        if PROF == 4:
            F[29] += ["s_memrealtime s[80:81]" if opt("rt", 0) else "s_memtime s[80:81]"]
            F[6] += ["s_mov_b32 m0, s96", "s_add_u32 s96, s96, 1", "v_writelane_b32 v219, s80, m0"]
        if PROF == 6 and first:
            F[6] += ["s_sub_u32 s62, s62, s80", f"s_add_u32 s{S_PROF+14}, s{S_PROF+14}, s62"]
        F[31] += [f"s_sub_u32 s{S_REM}, s{S_REM}, 1"]
        F = [FIRST[i] + F[i] for i in range(32)]
        gf = opt("gf", 1)
        out = [sum(F[i - gf + 1:i + 1], []) if i % gf == gf - 1 else [] for i in range(32)]
    if opt("sched", 2) == 2:
        F = [[] for _ in range(32)]
        ev = [int(c) for c in opt("ev", "0,8,16,24").split(",")]
        rs = opt("rs", 2)
        for slot, n, k, pos, k2 in ((ev[0], 4 + x, 2, p(2), 1), (ev[1], 4 + x, 3, p(0), 2),
                                    (ev[2], 4 + x, 0, p(1), 3), (ev[3], 4, 1, p(2), 0)):
            F[slot] += vmwait(n) + b_reads(k, pos)
            refill(slot + rs, k2, pos)
        nb = opt("nb2", 3)
        filler = g0[nb] if p1 == 0 else None
        V = [(0, g) for g in one(gb(2, 2, p0) + gb(2, 3, p0) + gb(1, 0, p0) + gb(1, 1, p0) + gb(1, 2, p0) + gb(1, 3, p0))]
        if p1 == 0:
            V += [(0, META_SET)]
        V += [(0, g) for g in one(n0[:2] + [ea[0]])] + [(0, [ea[1]] + er)]
        V += [(0, g) for g in one(n0[2:] + n2)]
        V += [(0, ["WAIT e", up[0]])] + [(0, g) for g in one(up[1:])]
        V += [(0, g) for g in one(g0[:nb])] + [(ev[2] + rs + 1, g) for g in fetch]
        if p1 == 1:
            V += [(0, [g0[nb]])] + [(0, g) for g in rep]
        V += [(0, g) for g in one(g0[nb+1:nb+3] + [x_addr(0), x_addr(1)] + g0[nb+3:] + [x_addr(2), x_addr(3)])]
        if qb != p1:
            V += [(24, [f"v_mov_b32 v{GSP[p1]+i}, v{GSP[qb]+i}" for i in range(4)])]
        V += [(0, g) for g in one(g2[:2])] + [(27, [g2[2]])] + [(0, g) for g in one(g2[3:])]
        nv = lambda grp: sum(l.startswith("v_") or l == "FILL" for l in grp)
        wt = [opt("cw", 1.0) if any(l[0] in "db" for l in F[sl]) else 1.0 for sl in range(32)]
        tot = sum(nv(g) for _, g in V)
        out, done, i = [], 0, 0
        for sl in range(32):
            mine = []
            while i < len(V) and V[i][0] <= sl and (sl == 31 or done + nv(V[i][1]) / 2 <= tot * sum(wt[:sl+1]) / sum(wt)):
                if V[i][1] is META_SET and any(l.startswith("s_add_u32 m0") for l in F[sl]):
                    out_m0 = [l for l in F[sl] if l.startswith("s_add_u32 m0")]
                    F[sl] = [l for l in F[sl] if l not in out_m0]
                    mine += V[i][1] + out_m0
                else:
                    mine += V[i][1]
                done += nv(V[i][1])
                i += 1
            if any(l.startswith("s_set_gpr_idx_on") for l in mine) and any(l.startswith("buffer") for l in F[sl]):
                out.append(F[sl] + mine)
            else:
                out.append(mine + F[sl])
        out[31] += [f"s_sub_u32 s{S_REM}, s{S_REM}, 1"]
        if opt("bp", 0) == 1 and not first:
            out[opt("bps", 16)] += ["s_setprio 0"]
        if opt("bp", 0) == 2 and not first:
            out[0] += ["s_setprio 2"]
        order = [l for o in out for l in o]
        at = lambda l: next(k for k, o in enumerate(out) if l in o)
        assert at(gb(2, 3, p0)[2]) < 7 and at(gb(1, 3, p0)[2]) < 11 and at(n0[3]) < 15 and at(n2[3]) < 27
        assert order.index(x_addr(1)) < order.index(dma(0, p(2))[1][0])
        if PROF == 6 and first:
            out[6] += ["s_sub_u32 s62, s62, s80", f"s_add_u32 s{S_PROF+14}, s{S_PROF+14}, s62"]
    flat = [(sl, l) for sl in range(32) for l in out[sl]]
    need = {"1": b_reads(2, p(2)), "2": b_reads(3, p(0)), "3": b_reads(0, p(1)), "0": None, "e": er}
    a.label(tag)
    ml = mfma_list()
    for sl in range(32):
        emit_mfma(a, ml[sl], first, p0, 0)
        for l in out[sl]:
            if l.startswith("WAIT"):
                pos = flat.index((sl, l))
                ds = [y for _, y in flat[:pos] if y.startswith("ds_")]
                want = need[l.split()[1]]
                n = 0 if want is None else len(ds) - 1 - max(k for k, y in enumerate(ds) if y in want)
                assert want is None or all(w in ds for w in want)
                l = f"s_waitcnt lgkmcnt({n})"
            if l == "FILL":
                l = filler
            if opt("nods", 0) and (l.startswith("ds_") or l.startswith("s_waitcnt lgkm")):
                continue
            if opt("novalu", 0) and l.startswith("v_") and not l.startswith(("v_writelane", "v_mfma")):
                continue
            a(l)
    for k, l in enumerate(cold):
        if l == "FILL":
            cold[k] = filler
    nr = (rho + 1) % 3
    if fall == "n":
        a(f"s_cbranch_scc1 EP{nr}{p1}")
        goto_next(a, nr, "n", p1, True)
    else:
        if p1 == 1:
            a(f"s_cbranch_scc0 {body_name(nr, 'n', 1, 0)}")
        else:
            a(f"s_cbranch_scc0 {tag}_c")
            cold += [f"{tag}_c:", f"s_cmp_lg_u32 s{S_D}, 0", f"s_cbranch_scc1 {body_name(nr, 'n', 0, 1)}",
                     f"s_branch {body_name(nr, 'n', 0, 0)}"]
        if fall != "e":
            a(f"s_branch EP{nr}{p1}")


def node_steps(lane):
    return [f"v_readlane_b32 s{S_REM}, v{NST}, s{lane}"]


def load_w(a, h):
    a(f"s_mov_b32 s57, {10240*h}")
    a(f"v_lshlrev_b32 v67, 4, v{LANE}")
    for pc in range(10):
        if pc % 4 == 0 and pc:
            a("s_add_u32 s57, s57, 4096")
        a(f"buffer_load_dwordx4 {vr(WR+4*pc,4)}, v67, s[{R_W}:{R_W+3}], s57 offen offset:{(pc%4)*1024}")


def pipeline_start(a):
    def run(lst):
        for l in lst:
            a(l)

    def dma_now(k, pos):
        for g in dma(k, pos):
            run(g)

    if VC:
        a("v_mov_b32 v219, 0xffff0000")
        a(f"v_mov_b32 v{TID}, 0x80008000")
    run(W0_FETCH + [W0_REP[0]] + [x_addr(q) for q in range(4)])
    dma_now(0, 0)
    dma_now(1, 1)
    dma_now(2, 2)
    run(META_SET + e_addr(0))
    a(f"s_waitcnt vmcnt({0 if opt('nodma', 0) else 6})")
    a("s_barrier")
    stamp(a, 6)
    run(e_reads(GSP[0]))
    run(["s_waitcnt vmcnt(4)"] + b_reads(0, 0) + ["s_waitcnt lgkmcnt(0)"])
    dma_now(3, 0)
    for aa in range(4):
        run(unpack_valu(aa, 0))
    run([f"s_mov_b32 s{S_D}, 1", f"s_cmp_lt_u32 s{S_D}, s{S_NS}", "s_cbranch_scc0 I_w"] + W0_FETCH + [W0_REP[1]])
    a("s_branch I_b")
    run(["I_w:"] + WRAP + W0_FETCH + [W0_REP[0], "I_b:"])
    run([x_addr(q) for q in range(4)])
    run(["s_waitcnt vmcnt(4)"] + b_reads(1, 1))
    run(gb(0, 0, 0) + gb(0, 1, 0) + gb(0, 2, 0) + gb(0, 3, 0) + gb(2, 0, 0) + gb(2, 1, 0))
    if PROF == 6:
        a("s_mov_b32 s62, 0")
        a("s_mov_b32 s80, 0")
        a(f"s_mov_b32 s{S_PROF+14}, 0")
    if PROF == 4:
        a("s_memrealtime s[80:81]" if opt("rt", 0) else "s_memtime s[80:81]")
        a("s_mov_b32 s96, 0")
        a("v_mov_b32 v219, 0")
    a("s_waitcnt lgkmcnt(0)")
    dma_now(0, 1)
    load_w(a, 0)
    if opt("prio", 3) == 3:
        pat = opt("pat", "110100000000")
        a(f"s_mov_b32 s{S_PAT}, {int(pat[::-1], 2)}")
        a(f"s_cmp_eq_u32 s{S_NNW}, 7")
        a(f"s_cmov_b32 s{S_PAT}, {int(opt('pat7', '11010100000000')[::-1], 2)}")
        if opt("epp", 3) == 3:
            a(f"s_cmp_ge_u32 s{S_WAVE}, 4")
            a(f"s_cmov_b32 s{S_PAT}, -1")
        a(f"s_setprio {2 * int(pat[0])}")
    if opt("prio", 3) in (1, 3):
        a(f"s_cmp_lt_u32 s{S_WAVE}, 4")
        a("s_cbranch_scc1 I_p")
        a("s_setprio 1")
        a.label("I_p")
    goto_next(a, 0, "f", 0)


def epilogue(a, rho, p1, cold):
    tag = f"EP{rho}{p1}"
    a.label(tag)
    if PROF == 6:
        a("s_memtime s[80:81]")
    order = [P2[0], P0, P3[0], P2[2], P2[1], P4[2], P4[1], P3[1], P3[2], P1, P4[0]]
    book = [f"s_mul_i32 s55, s{S_NODE}, {P_NODE}",
            f"s_add_u32 s55, s55, s{S_POFF}",
            f"s_add_u32 s{S_NODE}, s{S_NODE}, 1",
            f"s_cmp_lt_u32 s{S_NODE}, s{S_NEND}",
            f"s_cselect_b32 s56, s{S_NODE}, -2",
            f"s_cselect_b32 s{S_NODE}, s{S_NODE}, s{S_NODE0}",
            *node_steps(S_NODE),
            *([f"s_lshl1_add_u32 s54, s{S_REM}, 2", f"s_sub_u32 s{S_LEFT}, s{S_LEFT}, s54"]
              if opt("prio", 3) == 2 else []),
            f"s_cmp_ge_u32 s56, s{S_EVT}"]
    if opt("prio", 3) == 2:
        a(f"v_mov_b32 v{B1+12}, s{S_PADR}")
        a(f"v_mov_b32 v{B1+13}, s{S_LEFT}")
        a(f"ds_wrxchg_rtn_b32 v{B1+14}, v{B1+12}, v{B1+13}")
    EPP = opt("epp", 3)

    def pattern_prio():
        if EPP == 3:
            a(f"s_ashr_i32 s{S_PAT}, s{S_PAT}, 1")
            a(f"s_bitcmp1_b32 s{S_PAT}, 0")
            a(f"s_cbranch_scc0 {tag}_p")
            a("s_setprio 1")
            a.label(f"{tag}_p")
            return
        if EPP:
            a("s_setprio 1")
        a(f"s_cmp_lt_u32 s{S_WAVE}, 4")
        a(f"s_cbranch_scc0 {tag}_p")
        a(f"s_lshr_b32 s{S_PAT}, s{S_PAT}, 1")
        a(f"s_bitcmp1_b32 s{S_PAT}, 0")
        a("s_setprio 0")
        a(f"s_cbranch_scc0 {tag}_p")
        a("s_setprio 2")
        a.label(f"{tag}_p")

    EG = opt("eg", 0)
    if opt("prio", 3) == 3:
        if EG:
            a(f"s_cmp_ge_u32 s{S_NODE}, s{S_EGN}")
            a(f"s_cbranch_scc1 {tag}_eg")
            cold += [f"{tag}_eg:",
                     f"s_sub_u32 s54, s{S_NS}, s{S_D}",
                     f"s_cmp_ge_u32 s{S_TAB0}, {2*XHALF}",
                     "s_cselect_b32 s54, 0, s54",
                     f"s_lshr_b32 s57, s{S_WAVE}, 2",
                     "s_lshl1_add_u32 s54, s54, s57",
                     "s_add_u32 s54, s54, 2",
                     f"s_and_b32 s57, s{S_WAVE}, 3",
                     f"s_lshl2_add_u32 s57, s57, {L_CNT + 240}",
                     f"v_mov_b32 v{B1+12}, s57",
                     f"v_mov_b32 v{B1+13}, s54",
                     f"ds_wrxchg_rtn_b32 v{B1+14}, v{B1+12}, v{B1+13}",
                     "s_waitcnt lgkmcnt(0)",
                     f"v_readfirstlane_b32 s57, v{B1+14}",
                     "s_cmp_eq_u32 s57, 0",
                     "s_cselect_b32 s57, 1000, s57",
                     "s_xor_b32 s55, s57, s54",
                     "s_bitcmp1_b32 s55, 0",
                     "s_cselect_b32 s55, 1, 0",
                     "s_cmp_eq_u32 s57, 1000",
                     "s_cselect_b32 s55, 1, s55",
                     "s_cmp_eq_u32 s55, 0",
                     f"s_cbranch_scc1 {tag}_p",
                     "s_cmp_gt_u32 s54, s57",
                     "s_setprio 0",
                     f"s_cbranch_scc0 {tag}_p",
                     "s_setprio 3",
                     f"s_branch {tag}_p"]
        if EPP:
            a(f"s_setprio {3 if EPP == 1 else 0}")
        else:
            pattern_prio()
    if opt("prio", 3) == 1:
        a(f"s_cmp_lt_u32 s{S_WAVE}, 4")
        a(f"s_cbranch_scc0 {tag}_p")
        a(f"s_setprio {2 if int(opt('prpat', '110110')[2 * rho + p1]) else 0}")
        a.label(f"{tag}_p")
    fb = []
    if opt("prio", 3) == 2:
        fb = ["s_waitcnt lgkmcnt(0)",
              f"v_readfirstlane_b32 s57, v{B1+14}",
              f"s_xor_b32 s54, s57, s{S_LEFT}",
              "s_bitcmp1_b32 s54, 0",
              f"s_cbranch_scc0 {tag}_p",
              f"s_cmp_gt_u32 s{S_LEFT}, s57",
              "s_setprio 0",
              f"s_cbranch_scc0 {tag}_p",
              "s_setprio 2",
              f"{tag}_p:"]
    eo = opt("eo", 1)
    groups = [order[i:i + eo] for i in range(0, len(order), eo)] if opt("noep", 0) < 2 else []
    for grp in groups:
        for r in range(0 if opt("noep", 0) else 4):
            for t in grp:
                for cq in range(2):
                    d, w = acc(t, cq), WR + 4 * (2 * TPATH[t] + cq)
                    if r == 0:
                        a(f"v_mul_f32 v{d}, v{d}, v{w}")
                    else:
                        a(f"v_fmac_f32 v{d}, v{d+r}, v{w+r}")
        for t in grp:
            n = "-" if t == P4[2] else ""
            a(f"v_cvt_pk_bf16_f32 v{B1+t}, {n}v{acc(t,0)}, {n}v{acc(t,1)}")
            if t == P0:
                a(f"v_mov_b32 v{B1+11}, 0")
            if t == P3[0]:
                for l in fb:
                    a(l)
        if P1 in grp:
            a(f"v_mfma_f32_16x16x32_bf16 {vr(20,4)}, {vr(SEL,4)}, {vr(B1+4,4)}, 0")
    if opt("prio", 3) == 3 and EPP:
        pattern_prio()
    a(book[0])
    a(f"v_mfma_f32_16x16x32_bf16 {vr(16,4)}, {vr(SEL,4)}, {vr(B1,4)}, 0")
    a(f"v_mfma_f32_16x16x32_bf16 {vr(24,4)}, {vr(SEL,4)}, {vr(B1+8,4)}, 0")
    a(f"v_cvt_pk_bf16_f32 v65, v20, v21")
    for l in book[1:]:
        a(l)
    a(f"buffer_store_dword v65, v{POFF}, s[{R_P}:{R_P+3}], s55 offen offset:256{PPOL}")
    for i in (0, 2):
        a(f"v_cvt_pk_bf16_f32 v{64+i}, v{16+4*i}, v{17+4*i}")
    for i in (0, 2):
        a(f"buffer_store_dword v{64+i}, v{POFF}, s[{R_P}:{R_P+3}], s55 offen offset:{256*i}{PPOL}")
    if opt("egx", 0):
        a("s_cselect_b32 s57, 1, 0")
        a(f"s_cmp_lg_u32 s{S_PHASE}, 0")
        a(f"s_cbranch_scc1 {tag}_noeg")
        for i in range(2):
            a("v_mul_lo_u32 v218, v218, s97")
            a("v_add_u32 v218, 12345, v218")
            a("v_mul_hi_u32 v67, v218, s96")
            a("v_lshlrev_b32 v67, 5, v67")
            a(f"s_mov_b32 m0, {L_DUMMY}")
            a(f"buffer_load_dword v67, s[92:95], 0 offen{['', ' nt', ' sc1'][opt('egx', 0) - 1]} lds")
        a.label(f"{tag}_noeg")
        a("s_cmp_lg_u32 s57, 0")
    if PROF == 6:
        a("s_memtime s[62:63]")
    a(f"s_cbranch_scc1 {tag}_evt")
    a.label(f"{tag}_go")
    goto_next(a, rho, "f", p1, True)
    c = Asm()
    c.label(f"{tag}_evt")
    c("s_cmp_eq_u32 s56, -2")
    c(f"s_cbranch_scc1 {tag}_end")
    c(f"s_mov_b32 s{S_EVT}, -2")
    c("s_and_b32 s54, s2, 31")
    c("s_lshl_b32 s54, s54, 3")
    c(f"s_add_u32 s54, s54, s{S_WAVE}")
    c(f"s_mul_i32 s54, s54, {98*128}")
    c(f"s_add_u32 s54, s54, {XHALF + XBIAS}")
    c(f"v_lshlrev_b32 v67, 7, v{LANE}")
    c(f"s_mov_b32 m0, {L_DUMMY}")
    if opt("pfm", 64) < 64:
        c(f"s_bfm_b64 exec, {opt('pfm', 64)}, 0")
    c(f"buffer_load_dword v67, s[{R_XP}:{R_XP+3}], s54 offen lds")
    c("s_mov_b64 exec, -1")
    c(f"s_branch {tag}_go")
    c.label(f"{tag}_end")
    c(f"s_cmp_lg_u32 s{S_PHASE}, 0")
    c("s_cbranch_scc1 TAIL")
    if PROF not in (6, 7):
        stamp(c, 7, late=True)
    c(f"s_mov_b32 s{S_EVT}, -2")
    if opt("otlb", 0):
        c("v_mov_b32 v67, 0")
        c(f"s_mov_b32 m0, {L_DUMMY}")
        c(f"buffer_load_dword v67, s[{R_OUT}:{R_OUT+3}], 0 offen lds")
    if opt("eg", 0):
        c(f"s_sub_u32 s{S_EGN}, s{S_NEND}, {opt('eg', 0) + 1}")
        c(f"s_max_i32 s{S_EGN}, s{S_EGN}, 0")
    c(f"s_mov_b32 s{S_PHASE}, 1")
    c(f"s_mov_b32 s{S_POFF}, {P_HALF}")
    load_w(c, 1)
    c(f"s_branch {tag}_go")
    cold += c.lines


NREP = opt("nrep", 16)
WS_FLAG = 0x60000


def get_nonce(a, tag):
    a("s_mov_b32 s62, 0x100000")
    a("v_mov_b32 v111, 0")
    a.label(f"{tag}_l")
    a(f"buffer_load_dword v110, v111, s[{R_DBG}:{R_DBG+3}], 0 offen sc1")
    a("s_sub_u32 s62, s62, 1")
    a(f"s_cbranch_scc1 {tag}_d")
    a("s_waitcnt vmcnt(0)")
    a(f"v_readfirstlane_b32 s{S_TAG}, v110")
    a(f"s_cmp_eq_u32 s{S_TAG}, 0")
    a(f"s_cbranch_scc1 {tag}_l")
    a.label(f"{tag}_d")


def signal(a, which, tag, wave=0):
    a(f"s_cmp_lg_u32 s{S_WAVE}, {wave}")
    a(f"s_cbranch_scc1 {tag}")
    a(f"s_cmp_lg_u32 s{S_TAG}, 0")
    a(f"s_cbranch_scc1 {tag}_n_d")
    get_nonce(a, tag + "_n")
    a("v_and_b32 v111, 63, v0")
    a("v_lshlrev_b32 v111, 10, v111")
    a(f"v_mov_b32 v110, s{S_TAG}")
    a("s_lshl_b32 s62, s2, 2")
    a(f"s_add_u32 s62, s62, {which * NREP * 1024}")
    a(f"s_bfm_b64 exec, {NREP}, 0")
    a(f"buffer_store_dword v110, v111, s[{R_FLG}:{R_FLG+3}], s62 offen sc1")
    a("s_mov_b64 exec, -1")
    a.label(tag)


def flag_load(a, which, mask=None):
    if opt("repx", 0):
        a(f"s_lshr_b32 s62, s2, {8 - (NREP - 1).bit_length()}")
    else:
        a(f"s_and_b32 s62, s2, {NREP - 1}")
    a("s_lshl_b32 s62, s62, 10")
    a(f"s_add_u32 s62, s62, {which * NREP * 1024}")
    a(f"v_lshlrev_b32 v111, 4, v{LANE}")
    if mask:
        a(f"s_mov_b64 exec, {mask}")
    a(f"buffer_load_dwordx4 v[112:115], v111, s[{R_FLG}:{R_FLG+3}], s62 offen sc1")
    if mask:
        a("s_mov_b64 exec, -1")


def flag_test(a):
    a(f"v_xor_b32 v112, s{S_TAG}, v112")
    a(f"v_xor_b32 v113, s{S_TAG}, v113")
    a(f"v_xor_b32 v114, s{S_TAG}, v114")
    a(f"v_xor_b32 v115, s{S_TAG}, v115")
    a("v_or3_b32 v112, v112, v113, v114")
    a("v_or_b32 v112, v112, v115")
    a("v_cmp_ne_u32 vcc, 0, v112")
    a("s_cmp_eq_u64 vcc, 0")


def poll(a, which, tag):
    a(f"s_cmp_lg_u32 s{S_WAVE}, 0")
    a(f"s_cbranch_scc1 {tag}_d")
    a("s_mov_b32 s61, 0x100000")
    a.label(f"{tag}_l")
    flag_load(a, which)
    a("s_sub_u32 s61, s61, 1")
    a(f"s_cbranch_scc1 {tag}_d")
    a("s_waitcnt vmcnt(0)")
    flag_test(a)
    a(f"s_cbranch_scc1 {tag}_d")
    if opt("slp", 0):
        a(f"s_sleep {opt('slp', 0)}")
    a(f"s_branch {tag}_l")
    a.label(f"{tag}_d")


def part1(a):
    NT, ST = " nt", " sc1"
    D, SRC, RH, X, BA, RK, DL = 4, 12, 20, 32, 48, 56, 64
    a("s_load_dwordx8 s[4:11], s[0:1], 0")
    a("s_load_dwordx8 s[52:59], s[0:1], 32")
    a("s_load_dwordx4 s[12:15], s[0:1], 80")
    a("v_lshlrev_b32 v1, 4, v0")
    a("v_mul_u32_u24 v2, 24, v0")
    a("v_and_b32 v3, 63, v0")
    a("v_lshlrev_b32 v3, 4, v3")
    a("v_lshrrev_b32 v72, 6, v0")
    a(f"v_readfirstlane_b32 s{S_WAVE}, v72")
    a("s_mul_i32 s60, s2, 12800")
    a("s_mul_i32 s61, s2, 19200")
    a("s_mul_i32 s62, s2, 25600")
    a("s_mul_i32 s63, s2, 102400")
    a("s_mul_i32 s64, s2, 38400")
    a("s_lshl_b32 s65, s2, 10")
    a("s_mov_b32 s66, 8192")
    a("s_waitcnt lgkmcnt(0)")
    srd(a, R_DBG, 12, 0, 256)
    srd(a, R_FLG, 14, WS_FLAG, 2 * NREP * 1024)
    a(f"v_and_b32 v{LANE}, 63, v0")
    a(f"s_or_b32 s74, s2, s{S_WAVE}")
    a("s_cbranch_scc1 P1_notag")
    a("s_memrealtime s[74:75]")
    a("s_waitcnt lgkmcnt(0)")
    a("s_or_b32 s74, s74, 1")
    a("v_mov_b32 v110, s74")
    a("v_mov_b32 v111, 0")
    a("s_mov_b64 exec, 1")
    a(f"buffer_store_dword v110, v111, s[{R_DBG}:{R_DBG+3}], 0 offen sc1")
    a("s_mov_b64 exec, -1")
    a.label("P1_notag")
    a(f"s_mov_b32 s{S_TAG}, 0")
    a("s_cmp_ge_u32 s2, 250")
    a("s_cbranch_scc1 P1_prep")
    if opt("cpf", 2) & 8:
        a("s_getpc_b64 s[36:37]")
        a.label("P1_here2")
        a("s_mov_b32 s38, K2_end-P1_here2")
        a("s_mov_b32 s39, 0x20000")
        a("v_lshlrev_b32 v60, 7, v0")
        a("s_and_b32 s75, s2, 31")
        a("s_cbranch_scc1 P1_nocp")
        a("buffer_load_dword v61, v60, s[36:39], 0 offen")
        a.label("P1_nocp")
    srd(a, 16, 52, "s60", 12800)
    a(f"buffer_load_dwordx4 {vr(D,4)}, v1, s[16:19], 0 offen{NT}")
    a(f"buffer_load_dwordx4 {vr(D+4,4)}, v1, s[16:19], s66 offen{NT}")
    a("v_lshlrev_b32 v73, 2, v0")
    a("v_mov_b32 v74, 0")
    a(f"s_cmp_ge_u32 s{S_WAVE}, 4")
    a("s_cbranch_scc1 P1_nozero")
    a(f"v_add_u32 v73, {K1_HIST}, v73")
    a("ds_write_b32 v73, v74")
    a.label("P1_nozero")
    srd(a, 20, 10, "s60", 12800)
    srd(a, 24, 6, "s61", 19200)
    srd(a, 28, 4, "s62", 25600)
    srd(a, 32, 8, "s63", 102400)
    a("s_mov_b32 s69, 12288")
    a(f"s_lshl_b32 s67, s{S_WAVE}, 10")
    if not opt("nb1", 0):
        a("s_waitcnt lgkmcnt(0)")
        a("s_barrier")
    a(f"buffer_load_dwordx4 {vr(SRC,4)}, v1, s[20:23], 0 offen{NT}")
    a(f"buffer_load_dwordx4 {vr(SRC+4,4)}, v1, s[20:23], s66 offen{NT}")
    for r, so in ((0, "0"), (1, "s69")):
        a(f"buffer_load_dwordx4 {vr(RH+6*r,4)}, v2, s[24:27], {so} offen{NT}")
        a(f"buffer_load_dwordx2 {vr(RH+6*r+4,2)}, v2, s[24:27], {so} offen offset:16{NT}")
    XL = opt("xl", 0)

    def x_in():
        a("s_mov_b32 s68, 0")
        for k in range(4):
            a(f"buffer_load_dwordx4 {vr(X+4*k,4)}, v1, s[28:31], s68 offen{NT}")
            a("s_add_u32 s68, s68, 8192")

    if not XL:
        x_in()
    kb = [int(c, 16) for c in opt("kb", "d000")]

    def e_in(i):
        for k in range(sum(kb[:i]), sum(kb[:i + 1])):
            if k == 12:
                a(f"s_cmp_ge_u32 s{S_WAVE}, 4")
                a("s_cbranch_scc1 P1_noe13")
            a("s_mov_b32 m0, s67")
            a(f"buffer_load_dwordx4 v3, s[32:35], s67 offen{NT} lds")
            a("s_add_u32 s67, s67, 8192")
            if k == 12:
                a.label("P1_noe13")

    def n_e(i):
        return min(sum(kb[:i + 1]), 12)

    e_in(0)
    a("s_add_u32 s68, s64, %d" % WS_META)
    srd(a, 36, 14, "s68", 38400)
    a("s_add_u32 s68, s63, %d" % WS_EP)
    srd(a, 40, 14, "s68", 102400)
    srd(a, 44, 14, WS_XP, 2 * XHALF)
    srd(a, 48, 14, "s65", 1024)
    a("v_cmp_gt_u32 vcc, 288, v0")
    a("s_mov_b64 s[70:71], vcc")
    a("v_mov_b32 v75, 1")
    if opt("nb1", 0):
        a("s_waitcnt lgkmcnt(0)")
        a("s_barrier")
    a(f"s_waitcnt vmcnt({10 - 4 * XL + n_e(0)})")
    stamp(a, 2, k1=True)
    for i in range(8):
        if i == 4:
            a("s_mov_b64 exec, s[70:71]")
            a("s_cbranch_execz P1_skip_rank")
        a(f"v_mul_u32_u24 v{BA+i}, 21400, v{D+i}")
        a(f"v_lshrrev_b32 v{BA+i}, 20, v{BA+i}")
        a(f"v_mul_u32_u24 v{DL+i}, 49, v{BA+i}")
        a(f"v_sub_u32 v{DL+i}, v{D+i}, v{DL+i}")
        a(f"v_lshlrev_b32 v{BA+i}, 2, v{BA+i}")
        a(f"v_add_u32 v{BA+i}, {K1_HIST}, v{BA+i}")
        a(f"ds_add_rtn_u32 v{RK+i}, v{BA+i}, v75")
    a.label("P1_skip_rank")
    a("s_mov_b64 exec, -1")
    if XL:
        x_in()
    a("s_waitcnt lgkmcnt(0)")
    a("s_barrier")
    a(f"s_cmp_lg_u32 s{S_WAVE}, 0")
    a("s_cbranch_scc1 P1_noscan")
    a(f"v_add_u32 v73, {K1_HIST}, v3")
    a("ds_read_b128 v[76:79], v73")
    a("s_waitcnt lgkmcnt(0)")
    a("v_add_u32 v81, v76, v77")
    a("v_add_u32 v82, v81, v78")
    a("v_add_u32 v83, v82, v79")
    a("v_mov_b32 v84, v83")
    scan64(a, 84)
    a("v_sub_u32 v84, v84, v83")
    a("v_add_u32 v85, v84, v76")
    a("v_add_u32 v86, v84, v81")
    a("v_add_u32 v87, v84, v82")
    a("ds_write_b128 v73, v[84:87]")
    for i in range(4):
        a(f"v_lshl_or_b32 v{88+i}, v{76+i}, 16, v{84+i}")
    a(f"buffer_store_dwordx4 v[88:91], v3, s[48:51], 0 offen{ST}")
    a("s_waitcnt lgkmcnt(0)")
    a.label("P1_noscan")
    e_in(1)
    a("v_lshrrev_b32 v92, 5, v0")
    a("s_mul_i32 s69, s2, 50")
    a("v_add_u32 v92, s69, v92")
    a("v_lshlrev_b32 v92, 8, v92")
    a("v_bfe_u32 v93, v0, 3, 2")
    a("v_lshl_add_u32 v92, v93, 6, v92")
    a("v_and_b32 v93, 3, v0")
    a("v_lshl_add_u32 v92, v93, 4, v92")
    a("v_bfe_u32 v93, v0, 2, 1")
    a(f"v_mul_u32_u24 v93, {XHALF}, v93")
    a("v_add_u32 v92, v92, v93")
    a("v_cmp_gt_u32 vcc, 64, v0")
    a("v_mov_b32 v94, 0x80000000")
    a("v_cndmask_b32 v93, v94, v92, vcc")
    a("s_mov_b32 s72, 0x80000000")
    a("s_mov_b32 s73, 0xffff0000")
    a("v_lshlrev_b32 v95, 2, v0")
    a("s_barrier")
    for r in range(2):
        if r == 1:
            a("s_mov_b64 exec, s[70:71]")
            a("s_cbranch_execz P1_skip_scatter")
        for i in range(4):
            a(f"ds_read_b32 v{BA+4*r+i}, v{BA+4*r+i}")
        if r == 0:
            a(f"s_waitcnt vmcnt({4 + n_e(1)})")
        R = RH + 6 * r
        for i in range(4):
            a(f"v_lshl_or_b32 v{SRC+4*r+i}, v{SRC+4*r+i}, 8, v{DL+4*r+i}")
            a(f"v_or_b32 v{SRC+4*r+i}, s72, v{SRC+4*r+i}")
        a(f"v_lshlrev_b32 v76, 16, v{R+1}")
        a(f"v_alignbit_b32 v77, v{R+2}, v{R+1}, 16")
        a(f"v_and_b32 v78, s73, v{R+2}")
        a(f"v_lshlrev_b32 v79, 16, v{R+4}")
        a(f"v_alignbit_b32 v80, v{R+5}, v{R+4}, 16")
        a(f"v_and_b32 v81, s73, v{R+5}")
        w1 = [R, 77, R + 3, 80]
        w2 = [76, 78, 79, 81]
        a("s_waitcnt lgkmcnt(0)")
        for i in range(4):
            b, k = BA + 4 * r + i, RK + 4 * r + i
            a(f"v_add_u32 v{k}, v{k}, v{b}")
            a(f"v_mul_u32_u24 v{b}, 12, v{k}")
            a(f"v_add_u32 v{b}, {K1_MS}, v{b}")
            a(f"ds_write2_b32 v{b}, v{SRC+4*r+i}, v{w1[i]} offset0:0 offset1:1")
            a(f"ds_write_b32 v{b}, v{w2[i]} offset:8")
            a(f"v_lshlrev_b32 v{k}, 1, v{k}")
            a(f"v_add_u32 v{k}, {K1_INV}, v{k}")
            a(f"v_add_u32 v{82+i}, {2048*r + i}, v95")
            a(f"ds_write_b16 v{k}, v{82+i}")
    a.label("P1_skip_scatter")
    a("s_mov_b64 exec, -1")
    a(f"s_waitcnt vmcnt({n_e(1) - XL * n_e(0)})")
    a("s_mov_b32 s68, 0")
    for k in range(4):
        a(f"buffer_store_dwordx4 {vr(X+4*k,4)}, v{92 if k < 3 else 93}, s[44:47], s68 offen{ST}")
        a("s_add_u32 s68, s68, 4096")
    e_in(2)
    a("s_waitcnt lgkmcnt(0)")
    a("s_barrier")
    stamp(a, 4, k1=True)
    a(f"v_add_u32 v73, {K1_MS}, v1")
    for k in range(5):
        a(f"ds_read_b128 {vr(4+4*k,4)}, v73 offset:{8192*k}")
    a("v_and_b32 v74, 0x1fe, v0")
    a(f"v_add_u32 v74, {K1_INV}, v74")
    a("s_mov_b32 s68, 0")
    for k in range(5):
        a(f"s_waitcnt lgkmcnt({4-k})")
        a(f"buffer_store_dwordx4 {vr(4+4*k,4)}, v1, s[36:39], s68 offen{ST}")
        a("s_add_u32 s68, s68, 8192")
    for k in range(13):
        a(f"ds_read_u16 v{48+k}, v74 offset:{512*k}")
    a("v_mov_b32 v111, 0")
    a(f"buffer_load_dword v110, v111, s[{R_DBG}:{R_DBG+3}], 0 offen sc1")
    e_in(3)
    a("v_and_b32 v75, 1, v0")
    a("v_lshlrev_b32 v75, 4, v75")
    a("s_waitcnt lgkmcnt(0)")
    for k in range(13):
        a(f"v_lshl_add_u32 v{48+k}, v{48+k}, 5, v75")
    if opt("siga", 0) == 3:
        a(f"s_waitcnt vmcnt({12 - n_e(2)})")
        a(f"v_readfirstlane_b32 s{S_TAG}, v110")
        a("s_barrier")
        stamp(a, 6, k1=True)
        signal(a, 0, "P1_sa", wave=7)
    a("s_waitcnt vmcnt(0)")
    if opt("siga", 0) == 0:
        a(f"v_readfirstlane_b32 s{S_TAG}, v110")
    a("s_barrier")
    if opt("siga", 0) == 0:
        stamp(a, 6, k1=True)
        signal(a, 0, "P1_sa", wave=7)
    for k in range(12):
        a(f"ds_read_b128 {vr(128+4*k,4)}, v{48+k}")
    a("s_mov_b32 s68, 0")
    for k in range(12):
        a(f"s_waitcnt lgkmcnt({11-k})")
        a(f"buffer_store_dwordx4 {vr(128+4*k,4)}, v1, s[40:43], s68 offen{ST}")
        a("s_add_u32 s68, s68, 8192")
    a(f"s_cmp_ge_u32 s{S_WAVE}, 4")
    a("s_cbranch_scc1 P1_fin" if opt("siga", 0) in (0, 3) else "s_cbranch_scc1 P1_fin2")
    a("ds_read_b128 v[176:179], v60")
    a("s_waitcnt lgkmcnt(0)")
    a(f"buffer_store_dwordx4 v[176:179], v1, s[40:43], s68 offen{ST}")
    a("s_branch P1_fin" if opt("siga", 0) in (0, 3) else "s_branch P1_fin2")

    if opt("siga", 0) == 1:
        a.label("P1_fin2")
        signal(a, 0, "P1_sa")
        a(f"s_cmp_lg_u32 s{S_WAVE}, 0")
        a("s_cbranch_scc1 P1_fin")
        a("s_waitcnt vmcnt(1)")
        a("s_branch P1_fin3")
    if opt("siga", 0) == 2:
        a.label("P1_fin2")
        a("s_waitcnt vmcnt(0)")
        a("s_barrier")
        stamp(a, 8, k1=True)
        signal(a, 0, "P1_sa")
        a("s_branch P1_fin4")
    a.label("P1_prep")
    if opt("cpf", 2) & 2:
        a("s_getpc_b64 s[36:37]")
        a.label("P1_here")
        a("s_mov_b32 s38, K2_end-P1_here")
        a("s_mov_b32 s39, 0x20000")
        a("v_lshlrev_b32 v60, 7, v0")
        a("buffer_load_dword v61, v60, s[36:39], 0 offen")
    a("s_cmp_eq_u32 s2, 255")
    a("s_cbranch_scc1 P1_prepd")
    srd(a, 16, 54, 0, 16 * 320 * 2)
    srd(a, 20, 56, 0, 128 * 64 * 2)
    srd(a, 24, 58, 0, 192 * 64 * 2)
    srd(a, 28, 14, WS_WTAB, 20480)
    srd(a, 32, 14, WS_WSI, 40960)
    a("s_sub_u32 s60, s2, 250")
    a("s_lshl_b32 s60, s60, 10")
    for it in range(2):
        prep_tables(a, ST)
        a("s_add_u32 s60, s60, 512")
    a.label("P1_prepd")
    a("s_waitcnt vmcnt(0)")
    a("s_barrier")
    signal(a, 0, "P1_sa2")
    a.label("P1_fin")
    a("s_waitcnt vmcnt(0)")
    a.label("P1_fin3")
    a("s_barrier")
    stamp(a, 8, k1=True)
    a.label("P1_fin4")
    signal(a, 1, "P1_sb")


BAL = opt("bal", 1)


def meta_set_addresses(a):
    a(f"v_lshrrev_b32 v164, 4, v{LANE}")
    a("v_lshlrev_b32 v164, 2, v164")
    a(f"v_bfe_u32 v165, v{LANE}, 2, 1")
    a("v_lshl_add_u32 v160, v165, 5, v164")
    a(f"v_bfe_u32 v165, v{LANE}, 1, 1")
    a("v_lshl_add_u32 v160, v165, 4, v160")
    a("v_lshl_add_u32 v161, v165, 5, v164")
    a(f"v_and_b32 v165, 1, v{LANE}")
    a("v_lshl_add_u32 v160, v165, 1, v160")
    a("v_lshl_add_u32 v161, v165, 4, v161")
    a(f"v_bfe_u32 v165, v{LANE}, 3, 1")
    a("v_add_u32 v160, v160, v165")
    a(f"v_bfe_u32 v165, v{LANE}, 2, 2")
    a("v_add_u32 v161, v161, v165")
    a(f"v_mov_b32 v162, {L_SB}")
    a(f"v_mov_b32 v163, {L_SA}")
    a("v_lshl_add_u32 v160, v160, 2, v163")
    a("v_lshl_add_u32 v161, v161, 3, v162")


def balanced_partition(a):
    L = LANE
    a("v_add_u32 v14, 31, v14")
    a("v_lshrrev_b32 v14, 5, v14")
    a("v_max_u32 v14, 1, v14")
    a(f"v_cmp_gt_u32 s[60:61], s{S_NN}, v{L}")
    a("v_cndmask_b32 v14, 0, v14, s[60:61]")
    a("v_cmp_lt_u32 vcc, 2, v14")
    a("s_andn2_b64 s[60:61], s[60:61], vcc")
    a("s_bcnt1_i32_b64 s62, vcc")
    a("s_bcnt1_i32_b64 s63, s[60:61]")
    a("v_mbcnt_lo_u32_b32 v32, vcc_lo, 0")
    a("v_mbcnt_hi_u32_b32 v32, vcc_hi, v32")
    a("v_mov_b32 v33, s62")
    a("v_mbcnt_lo_u32_b32 v33, s60, v33")
    a("v_mbcnt_hi_u32_b32 v33, s61, v33")
    a("v_cndmask_b32 v32, v33, v32, vcc")
    a(f"v_cmp_gt_u32 vcc, s{S_NN}, v{L}")
    a(f"v_cndmask_b32 v32, v{L}, v32, vcc")
    a("v_lshlrev_b32 v32, 2, v32")
    a(f"v_lshl_or_b32 v33, v{L}, 8, v14")
    a("ds_permute_b32 v34, v32, v33")
    a(f"v_mad_u32_u24 v36, v{L}, s{S_NN}, 7")
    a("v_lshrrev_b32 v36, 3, v36")
    a("s_mul_i32 s58, s62, 10")
    a(f"s_mul_i32 s59, s{S_NN}, 26")
    a("s_add_u32 s58, s58, s59")
    a(f"v_mad_u32_u24 v37, v{L}, s58, 40")
    a("v_mul_u32_u24 v40, 208, v36")
    a("v_sub_u32 v37, v37, v40")
    a("v_max_i32 v37, 0, v37")
    a("v_mul_u32_u24 v37, 3277, v37")
    a("v_lshrrev_b32 v37, 18, v37")
    a("v_subrev_u32 v40, s63, v36")
    a("v_max_i32 v37, v37, v40")
    a("v_min_u32 v37, s62, v37")
    a("v_min_u32 v37, v37, v36")
    for sh in (1, 2, 4, 8):
        a(f"v_max_u32_dpp v37, v37, v37 row_shr:{sh} row_mask:0xf bank_mask:0xf bound_ctrl:1")
    a("v_sub_u32 v40, v36, v37")
    for sh in (1, 2, 4, 8):
        a(f"v_max_u32_dpp v40, v40, v40 row_shr:{sh} row_mask:0xf bank_mask:0xf bound_ctrl:1")
    a("v_sub_u32 v37, v36, v40")
    a("v_lshl_or_b32 v37, v36, 8, v37")
    a(f"s_cmp_eq_u32 s{S_NN}, {NPB}")
    a(f"s_mov_b32 s58, {-(-8*65536 // (N - 255*NPB))}")
    a(f"s_cmov_b32 s58, {-(-8*65536 // NPB)}")
    a(f"v_mul_u32_u24 v40, s58, v{L}")
    a("v_lshrrev_b32 v40, 16, v40")
    a("v_min_u32 v40, 7, v40")
    a("v_lshlrev_b32 v40, 2, v40")
    a("ds_bpermute_b32 v41, v40, v37")
    a("ds_bpermute_b32 v42, v40, v37 offset:4")
    a(f"s_and_b32 s60, s{S_WAVE}, 3")
    a("s_lshl_b32 s60, s60, 1")
    a(f"s_lshr_b32 s61, s{S_WAVE}, 2")
    a("s_add_u32 s59, s60, s61")
    a(f"s_mul_i32 s60, s59, s{S_NN}")
    a(f"s_add_u32 s61, s60, s{S_NN}")
    a("s_add_u32 s60, s60, 7")
    a("s_add_u32 s61, s61, 7")
    a(f"s_lshr_b32 s{S_NODE0}, s60, 3")
    a(f"s_lshr_b32 s{S_NEND}, s61, 3")
    a(f"s_sub_u32 s{S_NNW}, s{S_NEND}, s{S_NODE0}")
    a("s_waitcnt lgkmcnt(0)")
    a("v_lshrrev_b32 v43, 8, v41")
    PP = L
    if opt("mir", 1):
        PP = 33
        a("v_lshrrev_b32 v33, 8, v42")
        a("v_add3_u32 v33, v33, v43, -1")
        a(f"v_sub_u32 v33, v33, v{L}")
        a("v_and_b32 v40, 4, v40")
        a("v_cmp_eq_u32 vcc, 0, v40")
        a(f"v_cndmask_b32 v33, v33, v{L}, vcc")
    a("v_and_b32 v41, 0xff, v41")
    a("v_and_b32 v42, 0xff, v42")
    a(f"v_sub_u32 v43, v{PP}, v43")
    a("v_add_u32 v43, v43, v41")
    a(f"v_sub_u32 v40, v{PP}, v42")
    a("v_add_u32 v40, s62, v40")
    a("v_cmp_lt_u32 vcc, v43, v42")
    a("v_cndmask_b32 v40, v40, v43, vcc")
    a(f"v_cmp_gt_u32 vcc, s{S_NN}, v{L}")
    a(f"v_cndmask_b32 v40, v{L}, v40, vcc")
    a("v_lshlrev_b32 v40, 2, v40")
    a("ds_bpermute_b32 v41, v40, v34")
    a("s_waitcnt lgkmcnt(0)")
    a("v_and_b32 v14, 0xff, v41")
    a(f"v_subrev_u32 v{NST}, 1, v14")
    a(f"v_lshrrev_b32 v{NID}, 8, v41")
    a(f"v_lshlrev_b32 v41, 2, v{NID}")
    a("v_mov_b32 v19, v14")
    scan64(a, 19)
    a("v_sub_u32 v42, v19, v14")
    a("ds_permute_b32 v18, v41, v42")
    a("v_min_u32 v36, 63, v36")
    a("v_lshlrev_b32 v36, 2, v36")
    a("ds_bpermute_b32 v43, v36, v42")
    a("v_readlane_b32 s58, v19, 63")
    a("s_waitcnt lgkmcnt(0)")
    a("v_mov_b32 v40, v43")
    a("v_sub_u32_dpp v40, v43, v43 row_shl:1 row_mask:0xf bank_mask:0xf")
    a(f"v_readlane_b32 s{S_STEP0}, v43, s59")
    a(f"v_cmp_lt_u32 vcc, {MAXWSTEPS}, v40")
    a(f"v_readlane_b32 s{S_NS}, v40, s59")
    a("s_and_b32 s60, vcc_lo, 0xff")


def kernel2():
    a = Asm()
    a("s_cmp_ge_u32 s2, 256")
    a("s_cbranch_scc1 K2_end")
    if opt("xcdmap", 1) == 2:
        a("s_load_dwordx2 s[54:55], s[0:1], 80")
        a("s_getreg_b32 s58, hwreg(HW_REG_XCC_ID, 0, 3)")
        a("v_lshrrev_b32 v1, 6, v0")
        a("v_readfirstlane_b32 s3, v1")
        a(f"v_mov_b32 v3, {L_WSUM}")
        a("s_cmp_lg_u32 s3, 0")
        a("s_cbranch_scc1 CLAIMED")
        a("s_waitcnt lgkmcnt(0)")
        srd(a, 4, 54, 0, 256)
        a("s_mov_b64 exec, 1")
        a.label("CLAIM")
        a("v_mov_b32 v1, 1")
        a("s_lshl_b32 s59, s58, 5")
        a("v_mov_b32 v2, s59")
        a("buffer_atomic_add v1, v2, s[4:7], 0 offen sc0")
        a("s_add_u32 s58, s58, 1")
        a("s_and_b32 s58, s58, 7")
        a("s_waitcnt vmcnt(0)")
        a("v_readfirstlane_b32 s60, v1")
        a("s_cmp_ge_u32 s60, 32")
        a("s_cbranch_scc1 CLAIM")
        a("v_add_u32 v1, v1, v2")
        a("ds_write_b32 v3, v1")
        a("s_mov_b64 exec, -1")
        a.label("CLAIMED")
        a("s_waitcnt lgkmcnt(0)")
        a("s_barrier")
        a("ds_read_b32 v1, v3")
        a("s_waitcnt lgkmcnt(0)")
        a("v_readfirstlane_b32 s2, v1")
        a("s_and_b32 s2, s2, 255")
        a("s_barrier")
    if opt("xcdmap", 1) == 1:
        a("s_and_b32 s3, s2, 7")
        a("s_lshl_b32 s3, s3, 5")
        a("s_lshr_b32 s2, s2, 3")
        a("s_or_b32 s2, s2, s3")
    a(f"v_mov_b32 v{TID}, v0")
    a(f"s_mov_b32 s{S_R0}, 0")
    a(f"s_mov_b32 s{S_CAP}, {CAP}")
    stamp(a, 0, True)
    stamp(a, 1)
    if FUSED:
        part1(a)
        a(f"s_mov_b32 s{S_R0}, 0")
        a(f"s_mov_b32 s{S_CAP}, {CAP}")
        a("s_load_dwordx2 s[56:57], s[0:1], 88")
        a("s_load_dwordx2 s[54:55], s[0:1], 72")
        poll(a, 0, "POLL_A")
        a(f"v_mov_b32 v110, {L_DUMMY}")
        a(f"v_mov_b32 v111, s{S_TAG}")
        a(f"s_cmp_lg_u32 s{S_WAVE}, 0")
        a("s_cbranch_scc1 TAG_W")
        a("ds_write_b32 v110, v111")
        a("s_waitcnt lgkmcnt(0)")
        a.label("TAG_W")
        a("s_barrier")
        a("ds_read_b32 v111, v110")
        a("s_waitcnt lgkmcnt(0)")
        a(f"v_readfirstlane_b32 s{S_TAG}, v111")
        a("s_branch ROUND0")
    a.label("ROUND")
    a("s_load_dwordx2 s[56:57], s[0:1], 88")
    a("s_load_dwordx2 s[54:55], s[0:1], 72")
    a.label("ROUND0")
    a(f"v_and_b32 v2, 255, v{TID}")
    a("v_lshlrev_b32 v3, 10, v2")
    a(f"v_and_b32 v{LANE}, 63, v{TID}")
    a(f"v_lshrrev_b32 v1, 6, v{TID}")
    a(f"v_readfirstlane_b32 s{S_WAVE}, v1")
    a("s_lshl_b32 s58, s2, 2")
    a("s_cmp_eq_u32 s2, 255")
    a(f"s_cselect_b32 s{S_NN}, {N - 255*NPB}, {NPB}")
    a("s_waitcnt lgkmcnt(0)")
    srd(a, R_TB, 56, WS_TAB, W * 1024)
    DSH = opt("dsh", 1)
    if DSH:
        a(f"s_cmp_ge_u32 s{S_WAVE}, 4")
        a("s_cbranch_scc1 NODESC")
    a(f"buffer_load_dword v20, v3, s[{R_TB}:{R_TB+3}], s58 offen")
    if DSH:
        a.label("NODESC")
    if opt("cpf", 2) & 1:
        a("s_getpc_b64 s[60:61]")
        a.label("K2_here")
        a("s_mov_b32 s62, K2_end-K2_here")
        a("s_mov_b32 s63, 0x20000")
        a(f"v_lshlrev_b32 v21, 7, v{TID}")
        a("buffer_load_dword v75, v21, s[60:63], 0 offen")
    if PROF:
        a("s_mov_b64 s[98:99], s[56:57]")
    if opt("egx", 0):
        a("s_load_dwordx2 s[92:93], s[0:1], 16")
        a("s_mov_b32 s94, 25600000")
        a("s_mov_b32 s95, 0x20000")
        a("s_mov_b32 s96, 800000")
        a("s_mov_b32 s97, 1664525")
        a(f"v_lshrrev_b32 v218, 1, v{TID}")
        a("s_lshl_b32 s59, s2, 8")
        a("v_add_u32 v218, s59, v218")
        a("s_mov_b32 s59, 0x9E3779B1")
        a("v_mul_lo_u32 v218, v218, s59")
        a("s_waitcnt lgkmcnt(0)")
    srd(a, R_W, 56, WS_WTAB, 0x12000)
    srd(a, R_MT, 56, WS_META, E * 12)
    srd(a, R_EP, 56, WS_EP, E * 32)
    srd(a, R_XP, 56, WS_XP - XBIAS, 2 * XHALF + XBIAS)
    if opt("pf00", 0):
        a("s_and_b32 s59, s2, 31")
        a("s_lshl_b32 s59, s59, 3")
        a(f"s_add_u32 s59, s59, s{S_WAVE}")
        a(f"s_mul_i32 s59, s59, {98*128}")
        a(f"s_add_u32 s59, s59, {XBIAS}")
        a(f"v_lshlrev_b32 v76, 7, v{LANE}")
        if opt("pf00", 0) < 64:
            a(f"s_bfm_b64 exec, {opt('pf00', 0)}, 0")
        a(f"buffer_load_dword v77, v76, s[{R_XP}:{R_XP+3}], s59 offen")
        a("s_mov_b64 exec, -1")
    a(f"s_mul_i32 s59, s2, {P_WG}")
    a(f"s_add_u32 s59, s59, {WS_P}")
    srd(a, R_P, 56, "s59", 2 * P_HALF)
    a("s_lshl_b32 s59, s2, 16")
    a(f"s_add_u32 s59, s59, {WS_ACC}")
    srd(a, R_ACC, 56, "s59", 65536)
    a(f"s_mul_i32 s59, s2, {NPB*512}")
    a(f"s_lshl_b32 s60, s{S_NN}, 9")
    srd(a, R_OUT, 54, "s59", "s60")
    a(f"s_mul_i32 s{S_RB}, s{S_WAVE}, {RING_W}")
    a(f"s_add_u32 s{S_RB}, s{S_RB}, {L_RING}")
    a(f"s_mov_b32 s{S_HI}, 0xffff0000")
    a(f"s_mov_b32 s{S_SGN}, 0x80008000")
    L = LANE
    a(f"v_bfe_u32 v3, v{L}, 4, 1")
    a(f"v_and_b32 v4, 7, v{L}")
    a("v_lshlrev_b32 v5, 1, v3")
    a("v_xor_b32 v4, v4, v5")
    a("v_lshlrev_b32 v4, 4, v4")
    a(f"v_add_u32 v{XOFF}, {0x80000000 + XBIAS}, v4")
    a(f"v_add_u32 v{XOFF+1}, {0x80000000 + XBIAS - 1088}, v4")
    a(f"v_and_b32 v4, 3, v{L}")
    a(f"v_lshlrev_b32 v{QQ8}, 3, v4")
    a(f"v_bfe_u32 v5, v{L}, 3, 1")
    a("v_mul_u32_u24 v5, 1088, v5")
    a(f"v_lshrrev_b32 v6, 4, v{L}")
    a("v_lshl_add_u32 v5, v6, 8, v5")
    a(f"v_bfe_u32 v7, v{L}, 2, 1")
    a("v_lshl_add_u32 v5, v7, 7, v5")
    a(f"v_add_u32 v5, v5, v{QQ8}")
    a(f"v_add_u32 v5, s{S_RB}, v5")
    a("v_lshlrev_b32 v7, 5, v3")
    a(f"v_add_u32 v{BAE}, v5, v7")
    a(f"v_sub_u32 v{BAO}, v5, v7")
    a(f"v_and_b32 v7, 15, v{L}")
    a("v_lshlrev_b32 v8, 2, v7")
    a(f"v_lshl_add_u32 v{POFF}, v6, 6, v8")
    a("v_and_b32 v8, 1, v7")
    a("v_lshlrev_b32 v8, 4, v8")
    a("v_mov_b32 v9, 0x3f80")
    a("v_lshlrev_b32 v8, v8, v9")
    a("v_and_b32 v9, 14, v7")
    for i in range(4):
        a(f"v_cmp_eq_u32 vcc, {4*i}, v9")
        a(f"v_cndmask_b32 v{SEL+i}, 0, v8, vcc")
    a(f"v_lshlrev_b32 v6, 2, v{TID}")
    a("v_mov_b32 v7, 0")
    a(f"v_add_u32 v8, {L_MISC}, v6")
    a(f"v_cmp_gt_u32 vcc, 68, v{TID}")
    a("s_and_saveexec_b64 s[58:59], vcc")
    a("ds_write_b32 v8, v7")
    a(f"v_cmp_gt_u32 vcc, 8, v{TID}")
    a("s_and_b64 exec, exec, vcc")
    a("ds_write_b32 v6, v7")
    a("s_mov_b64 exec, -1")
    a(f"v_lshlrev_b32 v13, 4, v{TID}")
    a(f"v_add_u32 v13, {L_SA}, v13")
    for i in range(4):
        a(f"v_mov_b32 v{28+i}, 0")
    nz = MAXSTEPS * 384 // 16
    for k in range(6):
        a(f"ds_write_b128 v13, v[28:31] offset:{8192*k}")
    a(f"v_cmp_gt_u32 vcc, {nz - 6*512}, v{TID}")
    a("s_mov_b64 exec, vcc")
    a(f"ds_write_b128 v13, v[28:31] offset:{8192*6}")
    a("s_mov_b64 exec, -1")
    a("v_mul_u32_u24 v14, 3200, v2")
    a(f"v_lshrrev_b32 v15, 8, v{TID}")
    a("v_mov_b32 v16, 0x80000000")
    a(f"s_and_b32 s59, s{S_WAVE}, 3")
    a("v_lshlrev_b32 v22, 3, v2")
    a("v_add_u32 v22, 1024, v22")
    if DSH:
        a(f"s_cmp_ge_u32 s{S_WAVE}, 4")
        a("s_cbranch_scc1 NOSCAN")
    a(f"s_waitcnt vmcnt({(opt('cpf', 2) & 1) + (opt('pf00', 0) > 0)})")
    stamp(a, 2)
    a("v_lshrrev_b32 v9, 16, v20")
    a("v_mov_b32 v21, v9")
    scan64(a, 21)
    a("v_readlane_b32 s58, v21, 63")
    a("s_lshl_b32 s60, s59, 2")
    a(f"s_add_u32 s60, s60, {L_WSUM}")
    a("v_mov_b32 v12, s60")
    a("v_mov_b32 v13, s58")
    a("ds_write_b32 v12, v13")
    a("v_sub_u32 v21, v21, v9")
    if DSH:
        a("ds_write_b64 v22, v[20:21]")
        a.label("NOSCAN")
    a(f"v_mov_b32 v12, {L_WSUM}")
    a("s_waitcnt lgkmcnt(0)")
    a("s_barrier")
    a("ds_read_b128 v[16:19], v12")
    if DSH:
        a("ds_read_b64 v[20:21], v22")
    a("s_waitcnt lgkmcnt(0)")
    a("v_lshrrev_b32 v9, 16, v20")
    a("v_and_b32 v10, 0xffff, v20")
    a("v_add_u32 v14, v14, v10")
    a("v_mov_b32 v11, v21")
    for i in range(4):
        a(f"v_readfirstlane_b32 s{60+i}, v{16+i}")
    a("s_add_u32 s61, s61, s60")
    a("s_add_u32 s62, s62, s61")
    a(f"s_add_u32 s{S_T}, s63, s62")
    a("s_cmp_eq_u32 s59, 0")
    a("s_cselect_b32 s58, 0, s60")
    a("s_cmp_eq_u32 s59, 2")
    a("s_cselect_b32 s58, s61, s58")
    a("s_cmp_eq_u32 s59, 3")
    a("s_cselect_b32 s58, s62, s58")
    a("v_mov_b32 v16, 0x80000000")
    a(f"s_sub_u32 s{S_LEN}, s{S_T}, s{S_R0}")
    a(f"s_cmp_le_u32 s{S_LEN}, s{S_CAP}")
    a(f"s_cselect_b32 s{S_LAST}, 1, 0")
    a(f"s_min_u32 s{S_LEN}, s{S_LEN}, s{S_CAP}")
    a(f"s_sub_u32 s58, s58, s{S_R0}")
    a("v_add_u32 v11, s58, v11")
    a("v_sub_u32 v12, 0, v11")
    a("v_max_i32 v12, 0, v12")
    a(f"v_sub_u32 v13, s{S_LEN}, v11")
    a("v_min_i32 v13, v13, v9")
    a("v_add_u32 v12, v12, v15")
    a("v_sub_u32 v9, v13, v12")
    a("v_add_u32 v14, v14, v12")
    a("v_add_u32 v11, v11, v12")
    a("v_lshlrev_b32 v12, 2, v11")
    a(f"v_add_u32 v12, {L_MAP}, v12")
    a.label("MAPL")
    for i in range(16):
        a(f"v_cmp_lt_i32 vcc, {2*i}, v9")
        if i:
            a("v_add_u32 v14, 2, v14")
        a("s_and_b64 exec, exec, vcc")
        if i % 4 == 0:
            a("s_cbranch_execz MAPD")
        a(f"ds_write_b32 v12, v14 offset:{8*i}")
    a("v_add_u32 v14, 2, v14")
    a("v_add_u32 v12, 128, v12")
    a("v_subrev_u32 v9, 32, v9")
    a("s_branch MAPL")
    a.label("MAPD")
    a("s_mov_b64 exec, -1")
    a(f"v_add_u32 v12, {L_MAP}, v6")
    a(f"v_lshrrev_b32 v13, 1, v{LANE}")
    a(f"s_lshl_b32 s58, s{S_WAVE}, 5")
    a("v_add_u32 v13, s58, v13")
    a(f"v_lshl_add_u32 v14, v13, 2, v7")
    a(f"v_add_u32 v14, {L_MAP}, v14")
    a(f"v_and_b32 v15, 1, v{LANE}")
    a("v_lshlrev_b32 v15, 4, v15")
    a("s_waitcnt lgkmcnt(0)")
    a("s_barrier")
    stamp(a, 3)
    for k in range(7):
        a(f"ds_read_b32 v{20+k}, v12 offset:{2048*k}")
    for k in range(14):
        a(f"ds_read_b32 v{28+k}, v14 offset:{1024*k}")
    MREC = 44
    EPOL = ["", " sc1", " nt"][opt("epol", 1)]
    for k in range(7):
        a(f"v_add_u32 v17, {512*k}, v{TID}")
        a(f"v_cmp_gt_u32 s[{S_MASK+2*k}:{S_MASK+2*k+1}], s{S_LEN}, v17")
        a(f"s_waitcnt lgkmcnt({min(15, 20-k)})")
        a(f"v_mul_u32_u24 v{20+k}, 12, v{20+k}")
        a(f"v_cndmask_b32 v{20+k}, v16, v{20+k}, s[{S_MASK+2*k}:{S_MASK+2*k+1}]")
    if PROF == 2:
        stamp(a, 7)
    for k in range(7):
        a(f"buffer_load_dwordx3 {vr(MREC+4*k,3)}, v{20+k}, s[{R_MT}:{R_MT+3}], 0 offen{EPOL}")
    a("s_waitcnt lgkmcnt(0)")
    a(f"s_lshl_b32 s{S_EM0}, s{S_WAVE}, 10")
    a(f"s_add_u32 s{S_EM0}, s{S_EM0}, {L_E + 32}")
    EREG = 128
    for k in range(14):
        a(f"v_cmp_gt_u32 vcc, s{S_LEN}, v13")
        a(f"v_lshl_add_u32 v{28+k}, v{28+k}, 5, v15")
        a("v_add_u32 v13, 256, v13")
        a(f"v_cndmask_b32 v{EREG+k}, v16, v{28+k}, vcc")
    eb = [int(c, 16) for c in opt("eb", "0554" if FUSED else "3551")]

    assert sum(eb[:1]) <= 10

    def e_batch(i, tag=""):
        for k in range(sum(eb[:i]), sum(eb[:i + 1])):
            if k == 13:
                a(f"s_cmp_ge_u32 s{S_WAVE}, 2")
                a("s_cbranch_scc1 NOE14")
            a(f"s_mov_b32 m0, s{S_EM0}")
            a(f"s_add_u32 s{S_EM0}, s{S_EM0}, 8192")
            a(f"buffer_load_dwordx4 v{EREG+k}, s[{R_EP}:{R_EP+3}], 0 offen{EPOL} lds")
            if k == 13:
                a.label("NOE14")

    if PROF == 2:
        stamp(a, 8)
    e_batch(0)
    FK = opt("fk", 0)
    ONEW = opt("onew", 0)
    if FUSED and FK == 0:
        if ONEW:
            a(f"s_cmp_eq_u32 s{S_WAVE}, 0")
            a("s_cselect_b64 s[60:61], -1, 1")
            flag_load(a, 1, "s[60:61]")
        else:
            flag_load(a, 1)
    if PROF == 2:
        stamp(a, 9)
    a("v_mov_b32 v17, 1")
    for k in range(7):
        a(f"s_waitcnt vmcnt({min(eb[0], 13) + 6 - k + (FUSED and k >= FK)})")
        if FUSED and FK and k == FK - 1:
            flag_load(a, 1)
        if PROF == 2 and k in (0, 6):
            stamp(a, 10 if k == 0 else 11)
        a(f"v_and_b32 v{20+k}, 0xff, v{MREC+4*k}")
        a(f"v_lshlrev_b32 v{20+k}, 2, v{20+k}")
        a(f"v_add_u32 v18, {L_CNT}, v{20+k}")
        a(f"s_mov_b64 exec, s[{S_MASK+2*k}:{S_MASK+2*k+1}]")
        a(f"ds_add_rtn_u32 v{MREC+4*k+3}, v18, v17")
        a("s_mov_b64 exec, -1")
    a(f"v_lshlrev_b32 v12, 2, v{LANE}")
    a(f"v_add_u32 v12, {L_CNT}, v12")
    a(f"v_lshlrev_b32 v35, 2, v{TID}")
    a("v_add_u32 v35, 4, v35")
    RP = 144
    for k in range(7):
        r = MREC + 4 * k
        a(f"v_and_b32 v{r}, 0xffffff00, v{r}")
        a(f"v_add_u32 v36, {2048*k}, v35")
        a(f"v_or_b32 v{RP+2*k+1}, v{r+2}, v36")
        a(f"v_mov_b32 v{RP+2*k}, v{r+1}")
    meta_set_addresses(a)
    if FUSED:
        a("s_waitcnt vmcnt(0)")
        flag_test(a)
        a(f"s_cselect_b32 s{S_EB1}, 1, 0")
        if ONEW:
            a(f"s_cmp_lg_u32 s{S_WAVE}, 0")
            a("s_cbranch_scc1 EB_nw")
            a(f"v_mov_b32 v110, {L_FLAG}")
            a(f"v_mov_b32 v112, s{S_EB1}")
            a("ds_write_b32 v110, v112")
            a.label("EB_nw")
    a("s_waitcnt lgkmcnt(0)")
    a("s_barrier")
    stamp(a, 4)
    if FUSED and ONEW:
        a(f"v_mov_b32 v110, {L_FLAG}")
        a("ds_read_b32 v112, v110")
        a("s_waitcnt lgkmcnt(0)")
        a(f"v_readfirstlane_b32 s{S_EB1}, v112")
    if FUSED:
        a(f"s_mov_b32 s{S_EB2}, s{S_EB1}")
        a(f"s_cmp_eq_u32 s{S_EB1}, 0")
        a("s_cbranch_scc1 EB1_skip")
        e_batch(1)
        a("s_branch EB1_done")
        a.label("EB1_skip")
        flag_load(a, 1)
        a.label("EB1_done")
    else:
        e_batch(1)
    a("ds_read_b32 v14, v12")
    a("s_waitcnt lgkmcnt(0)")
    if BAL:
        balanced_partition(a)
    else:
        a("v_add_u32 v14, 31, v14")
        a("v_lshrrev_b32 v14, 5, v14")
        a("v_max_u32 v14, 1, v14")
        a(f"v_cmp_gt_u32 vcc, s{S_NN}, v{LANE}")
        a(f"v_mad_u32_u24 v15, v14, 10, {opt('epc', 6)}")
        a("v_cndmask_b32 v15, 0, v15, vcc")
        a("v_cndmask_b32 v14, 0, v14, vcc")
        a("v_lshl_or_b32 v18, v15, 16, v14")
        a(f"v_subrev_u32 v{NST}, 1, v14")
        a("v_mov_b32 v19, v18")
        scan64(a, 19)
        a("v_readlane_b32 s58, v19, 63")
        a("v_sub_u32 v18, v19, v18")
        a("v_and_b32 v19, 0xffff, v19")
        a("v_lshrrev_b32 v32, 16, v18")
        a("v_and_b32 v18, 0xffff, v18")
        a("v_lshl_add_u32 v32, v32, 1, v15")
        a("v_lshlrev_b32 v32, 2, v32")
        a("s_lshr_b32 s59, s58, 16")
        a("s_and_b32 s58, s58, 0xffff")
        a(f"s_and_b32 s60, s{S_WAVE}, 3")
        a("s_lshl_b32 s60, s60, 1")
        a(f"s_lshr_b32 s61, s{S_WAVE}, 2")
        a("s_add_u32 s60, s60, s61")
        a("s_mul_i32 s60, s60, s59")
        a("s_add_u32 s61, s60, s59")
        a("v_cmp_le_u32 vcc, s60, v32")
        a("v_cmp_gt_u32 s[62:63], s61, v32")
        a("s_and_b64 vcc, vcc, s[62:63]")
        a(f"s_bcnt1_i32_b64 s{S_NNW}, vcc")
        a(f"s_ff1_i32_b64 s{S_NODE0}, vcc")
        a(f"s_max_i32 s{S_NODE0}, s{S_NODE0}, 0")
        a(f"s_add_u32 s{S_NEND}, s{S_NODE0}, s{S_NNW}")
        a(f"s_sub_u32 s60, s{S_NEND}, 1")
        a("s_max_i32 s60, s60, 0")
        a(f"v_readlane_b32 s{S_STEP0}, v18, s{S_NODE0}")
        a(f"v_readlane_b32 s{S_NS}, v19, s60")
        a(f"s_sub_u32 s{S_NS}, s{S_NS}, s{S_STEP0}")
    assert BAL
    for k in range(7):
        a(f"ds_bpermute_b32 v{20+k}, v{20+k}, v18")
    a(f"s_lshl_b32 s59, s{S_STEP0}, 7")
    a("v_add_u32 v160, s59, v160")
    a("s_lshl_b32 s59, s59, 1")
    a("v_add_u32 v161, s59, v161")
    a(f"s_cmp_gt_u32 s58, {MAXSTEPS}")
    a("s_cselect_b32 s60, 1, s60")
    a("s_cmp_eq_u32 s60, 0")
    a("s_cbranch_scc1 SCATTER")
    a(f"s_mov_b32 s{S_CAP}, {SLOWCAP}")
    a("s_waitcnt vmcnt(0) lgkmcnt(0)")
    a("s_barrier")
    a("s_branch ROUND")
    a.label("SCATTER")
    if FUSED:
        a(f"s_cmp_lg_u32 s{S_EB1}, 0")
        a("s_cbranch_scc1 EB2_go")
        a("s_waitcnt vmcnt(0)")
        flag_test(a)
        a(f"s_cselect_b32 s{S_EB2}, 1, 0")
        a("s_cbranch_scc0 EB2_skip")
        e_batch(1)
        a.label("EB2_go")
        e_batch(2)
        a.label("EB2_skip")
    else:
        e_batch(2)
    for k in range(7):
        r = MREC + 4 * k
        a(f"s_waitcnt lgkmcnt({6 - k + 2 * k if 6 + k <= 15 else 15})")
        a(f"v_lshl_add_u32 v{20+k}, v{20+k}, 5, v{r+3}")
        a(f"v_lshl_add_u32 v{r+1}, v{20+k}, 3, v162")
        a(f"v_lshl_add_u32 v{20+k}, v{20+k}, 2, v163")
        a(f"s_mov_b64 exec, s[{S_MASK+2*k}:{S_MASK+2*k+1}]")
        a(f"ds_write_b32 v{20+k}, v{r}")
        a(f"ds_write_b64 v{r+1}, {vr(RP+2*k,2)}")
        a("s_mov_b64 exec, -1")
    if FUSED:
        a(f"s_cmp_lg_u32 s{S_EB2}, 0")
        a("s_cbranch_scc1 EB3_nopoll")
        poll(a, 1, "POLL_B")
        a.label("EB3_nopoll")
    a("s_waitcnt lgkmcnt(0)")
    a("s_barrier")
    if FUSED:
        a(f"s_cmp_lg_u32 s{S_EB2}, 0")
        a("s_cbranch_scc1 EB3_go")
        e_batch(1)
        e_batch(2)
        a.label("EB3_go")
    e_batch(3)
    for s in range(10):
        a(f"ds_read_b32 v{M0R+s}, v160 offset:{256*s}")
        a(f"ds_read_b64 {vr(MBR+2*s,2)}, v161 offset:{512*s}")
    a(f"s_mov_b32 s{S_D}, 0")
    pfn = opt("pfn", 0)
    if pfn:
        a(f"s_sub_u32 s{S_EVT}, s{S_NEND}, {pfn}")
        a(f"s_max_i32 s{S_EVT}, s{S_EVT}, 0")
    else:
        a(f"s_mov_b32 s{S_EVT}, -2")
    a(f"s_mov_b32 s{S_PHASE}, 0")
    if opt("eg", 0):
        a(f"s_mov_b32 s{S_EGN}, -1")
    a(f"s_mov_b32 s{S_POFF}, 0")
    a(f"s_mov_b32 s{S_TAB0}, 0")
    a(f"s_mov_b32 s{S_TAB1}, 128")
    a(f"s_mov_b32 s{S_NODE}, s{S_NODE0}")
    for l in node_steps(S_NODE):
        a(l)
    if opt("prio", 3) == 2:
        a(f"s_lshr_b32 s54, s{S_WAVE}, 2")
        a(f"s_lshl2_add_u32 s{S_LEFT}, s{S_NS}, s54")
        a(f"s_add_u32 s{S_LEFT}, s{S_LEFT}, 256")
        a(f"s_lshl1_add_u32 s54, s{S_REM}, 2")
        a(f"s_sub_u32 s{S_LEFT}, s{S_LEFT}, s54")
        a(f"s_and_b32 s54, s{S_WAVE}, 3")
        a(f"s_lshl2_add_u32 s{S_PADR}, s54, {L_CNT + 240}")
    stamp(a, 5)
    a("s_waitcnt lgkmcnt(0)")
    a("s_barrier")
    if PROF and not opt("egx", 0):
        a(f"s_mov_b32 s{preg(12)}, s{S_NS}")
        a(f"s_mov_b32 s{preg(13)}, s{S_NNW}")
    a(f"s_cmp_lg_u32 s{S_NNW}, 0")
    a("s_cbranch_scc1 START")
    a("s_waitcnt vmcnt(0)")
    a("s_barrier")
    stamp(a, 6)
    a("s_branch TAIL")
    a.label("START")
    pipeline_start(a)
    cold = []
    for par in range(2):
        for rho in (0, 2, 1):
            epilogue(a, rho, par, cold)
            step_body(a, rho, "f", par, 1 - par, "n", cold)
            step_body(a, (rho + 1) % 3, "n", 1 - par, par, "e" if rho != 1 else "", cold)
    for rho in range(3):
        step_body(a, rho, "f", 0, 0, "", cold)
        step_body(a, rho, "n", 0, 0, "", cold)
    for l in cold:
        a(l)

    a.label("TAIL")
    a("s_setprio 0")
    WF, PF, D = 0, 80, 188
    if PROF == 4:
        a("v_mov_b32 v183, v219")
    stamp(a, 8, late=True)
    a(f"v_and_b32 v{T0+1}, 15, v{LANE}")
    a(f"s_lshr_b32 s56, s{S_WAVE}, 1")
    a("s_lshl_b32 s56, s56, 4")
    a(f"v_add_u32 v{T0+1}, s56, v{T0+1}")
    a(f"v_lshlrev_b32 v{T0+2}, 2, v{T0+1}")
    a(f"ds_bpermute_b32 v{T0+4}, v{T0+2}, v{NID}")
    a(f"v_lshrrev_b32 v{T0+2}, 4, v{LANE}")
    a(f"v_lshlrev_b32 v{T0+2}, 4, v{T0+2}")
    a("s_waitcnt lgkmcnt(0)")
    a(f"v_lshl_add_u32 v{T0+4}, v{T0+4}, 9, v{T0+2}")
    a(f"v_lshlrev_b32 v{T0}, 4, v{LANE}")
    a(f"s_and_b32 s54, s{S_WAVE}, 1")
    a("s_mul_i32 s55, s54, 20480")
    a(f"s_add_u32 s55, s55, {WS_WSI - WS_WTAB}")
    if NEWTAIL:
        def prework(tag):
            a(f"s_mul_i32 s56, s{S_NNW}, {P_NODE}")
            a(f"s_mul_i32 s57, s{S_NODE0}, {P_NODE}")
            a(f"s_mov_b32 s60, s{S_RB}")
            for k in range(6):
                a(f"v_cmp_gt_u32 vcc, s56, v{T0}")
                a("s_mov_b32 m0, s60")
                a("s_mov_b64 exec, vcc")
                a(f"s_cbranch_execz {tag}")
                a(f"buffer_load_dwordx4 v{T0}, s[{R_P}:{R_P+3}], s57 offen sc1 lds")
                a("s_mov_b64 exec, -1")
                a("s_add_u32 s57, s57, 1024")
                a("s_add_u32 s60, s60, 1024")
                a("s_sub_u32 s56, s56, 1024")
                a("s_max_i32 s56, s56, 0")
            a.label(tag)
            a("s_mov_b64 exec, -1")
            for f in range(20):
                if f % 4 == 0 and f:
                    a("s_add_u32 s55, s55, 4096")
                a(f"buffer_load_dwordx4 {vr(WF+4*f,4)}, v{T0}, s[{R_W}:{R_W+3}], s55 offen offset:{(f%4)*1024}")

        a(f"v_mov_b32 v{T0+5}, {L_CNT + 224}")
        a(f"v_mov_b32 v{T0+6}, 1")
        a(f"s_mul_i32 s56, s{S_NNW}, {P_NODE}")
        a(f"s_add_u32 s60, s56, s{S_RB}")
        a(f"v_add_u32 v{T0+7}, s60, v{POFF}")
        a("s_mov_b64 exec, 1")
        a(f"ds_add_rtn_u32 v{T0+6}, v{T0+5}, v{T0+6}")
        a("s_mov_b64 exec, -1")
        a(f"s_cmp_eq_u32 s{S_NNW}, 0")
        a("s_cbranch_scc1 T_NOREC")
        a("s_waitcnt vmcnt(3)")
        for i in range(3):
            a(f"ds_write_b32 v{T0+7}, v{64+i} offset:{256*i}")
        a.label("T_NOREC")
        a("s_waitcnt lgkmcnt(0)")
        a(f"v_readfirstlane_b32 s{S_OLD}, v{T0+6}")
        a(f"s_cmp_ge_u32 s{S_OLD}, {opt('tlast', 7)}")
        a("s_cbranch_scc1 T_BAR")
        if DRY:
            a("s_mov_b32 s62, 1")
            a(f"s_cmp_eq_u32 s{S_OLD}, 0")
            a("s_cbranch_scc1 T_MM")
            a.label("T_RET")
        prework("T_P1")
        a.label("T_BAR")
        a("s_barrier")
        stamp(a, 9, late=True)
        a(f"s_lshl_b32 s61, s{S_WAVE}, 10")
        a(f"s_add_u32 s61, s61, {P_HALF}")
        for k in range(5):
            if k == 4:
                a(f"s_cmp_ge_u32 s{S_WAVE}, 6")
                a("s_cbranch_scc1 NOP10")
            a("s_mov_b32 m0, s61")
            a(f"buffer_load_dwordx4 v{T0}, s[{R_P}:{R_P+3}], s61 offen sc1 lds")
            a("s_add_u32 s61, s61, 8192")
        a.label("NOP10")
        a(f"s_cmp_lt_u32 s{S_OLD}, {opt('tlast', 7)}")
        a("s_cbranch_scc1 T_DONE")
        prework("T_P2")
        a.label("T_DONE")
    else:
        if not opt("wfirst", 1):
            a("s_waitcnt vmcnt(0)")
        for f in range(20):
            if f % 4 == 0 and f:
                a("s_add_u32 s55, s55, 4096")
            a(f"buffer_load_dwordx4 {vr(WF+4*f,4)}, v{T0}, s[{R_W}:{R_W+3}], s55 offen offset:{(f%4)*1024}")
        if opt("wfirst", 1):
            a("s_waitcnt vmcnt(20)")
        a("s_barrier")
        stamp(a, 9, late=True)
        a(f"s_lshl_b32 s55, s{S_WAVE}, 10")
        for k in range(10):
            if k == 9:
                a(f"s_cmp_ge_u32 s{S_WAVE}, 4")
                a("s_cbranch_scc1 NOP10")
            a("s_mov_b32 m0, s55")
            a(f"buffer_load_dwordx4 v{T0}, s[{R_P}:{R_P+3}], s55 offen sc1 lds")
            a("s_add_u32 s55, s55, 8192")
        a.label("NOP10")
    a(f"v_lshlrev_b32 v{T0+8}, 1, v{T0+4}")
    a(f"s_lshl_b32 s57, s54, 9")
    a(f"s_cmp_eq_u32 s{S_R0}, 0")
    a("s_cbranch_scc1 ZEROD")
    for i in range(8):
        a(f"buffer_load_dwordx4 {vr(D+4*i,4)}, v{T0+8}, s[{R_ACC}:{R_ACC+3}], s57 offen offset:{(i//2)*128 + (i%2)*16} sc1")
    a("s_branch HAVED")
    a.label("ZEROD")
    for i in range(32):
        a(f"v_mov_b32 v{D+i}, 0")
    a.label("HAVED")
    if NEWTAIL:
        t = T0 + 9
        a(f"s_cmp_eq_u32 s{S_NN}, {NPB}")
        a(f"s_mov_b32 s58, {-(-8*65536 // (N - 255*NPB))}")
        a(f"s_cmov_b32 s58, {-(-8*65536 // NPB)}")
        a(f"v_mul_u32_u24 v{T0+3}, s58, v{T0+1}")
        a(f"v_lshrrev_b32 v{T0+3}, 16, v{T0+3}")
        a(f"v_min_u32 v{T0+3}, 7, v{T0+3}")
        a(f"v_mad_u32_u24 v{T0+5}, v{T0+3}, s{S_NN}, 7")
        a(f"v_add_u32 v{T0+6}, s{S_NN}, v{T0+5}")
        a(f"v_lshrrev_b32 v{T0+5}, 3, v{T0+5}")
        a(f"v_lshrrev_b32 v{T0+6}, 3, v{T0+6}")
        a(f"v_lshrrev_b32 v{t}, 1, v{T0+3}")
        a(f"v_and_b32 v{T0+3}, 1, v{T0+3}")
        a(f"v_lshl_add_u32 v{t}, v{T0+3}, 2, v{t}")
        a(f"v_mul_u32_u24 v{t}, {RING_W}, v{t}")
        a(f"v_add_u32 v{t}, {L_RING}, v{t}")
        a(f"v_add_u32 v{t}, v{t}, v{T0+2}")
        a(f"v_sub_u32 v{T0+5}, v{T0+1}, v{T0+5}")
        a(f"s_movk_i32 s58, {P_NODE}")
        a(f"v_mad_u32_u24 v{T0+5}, v{T0+5}, s58, v{t}")
        a(f"v_add_u32 v{t+1}, 1, v{T0+1}")
        a(f"v_cmp_eq_u32 vcc, v{t+1}, v{T0+6}")
        a(f"v_mad_u32_u24 v{T0+6}, v{T0+1}, s58, v{T0+2}")
        a(f"v_add_u32 v{T0+6}, {P_HALF}, v{T0+6}")
        a(f"v_add_u32 v{t}, {P_NODE}, v{T0+5}")
        a(f"v_cndmask_b32 v{T0+6}, v{T0+6}, v{t}, vcc")
        a("s_lshl_b32 s54, s54, 6")
    else:
        a(f"v_mul_u32_u24 v{T0+5}, {P_NODE}, v{T0+1}")
        a(f"v_add_u32 v{T0+5}, v{T0+5}, v{T0+2}")
        a(f"v_add_u32 v{T0+6}, {P_HALF}, v{T0+5}")
        a("s_lshl_b32 s54, s54, 6")
    a("s_mov_b32 s62, 0")
    a("s_waitcnt vmcnt(0)")
    a("s_barrier")
    stamp(a, 10, late=True)
    a.label("T_MM")
    seq = []
    for comp, ts in enumerate(([P0, P1], [P2[0], P3[0], P4[0]], [P2[1], P3[1], P4[1]], [P2[2], P3[2], P4[2]])):
        for t in ts:
            for h in range(2):
                seq.append((comp, t, h))
    def gemm(fill):
        rd = lambda i: f"ds_read_b128 {vr(PF+4*i,4)}, v{T0+5+seq[i][2]} offset:{seq[i][1]*64}"
        issued = 12
        for i in range(issued):
            a(rd(i))
        for i, (comp, t, h) in enumerate(seq):
            a(f"s_waitcnt lgkmcnt({issued - 1 - i})")
            for mt in range(2):
                d = vr(D + 8 * comp + 4 * mt, 4)
                a(f"v_mfma_f32_16x16x32_bf16 {d}, {vr(WF + 4*(10*mt + 2*TPATH[t] + h),4)}, {vr(PF+4*i,4)}, {d}")
                for l in fill.get(2 * i + mt, []):
                    a(l)
            if issued < len(seq):
                a(rd(issued))
                issued += 1

    def finish(comp):
        o = (8, 12, 40, 44)[comp]
        out = [f"v_mul_f32 v{D+8*comp+i}, v{D+8*comp+i}, v{i}" for i in range(8)] if comp else []
        out += [f"v_cvt_pk_bf16_f32 v{o+i}, v{D+8*comp+2*i}, v{D+8*comp+2*i+1}" for i in range(4)]
        out += [f"buffer_store_dwordx4 {vr(o,4)}, v{T0+4}, s[{R_OUT}:{R_OUT+3}], s54 offen offset:{128*comp}{OPOL}"]
        return out

    if opt("ptail", 1) and not DRY:
        a(f"s_cmp_eq_u32 s{S_LAST}, 0")
        a("s_cbranch_scc1 MORE0")
        gate = finish(0) + [f"v_mul_f32 v{i}, 0xbfb8aa3b, v{D+i}" for i in range(8)]
        gate += [f"v_exp_f32 v{i}, v{i}" for i in range(8)] + [f"v_add_f32 v{i}, 1.0, v{i}" for i in range(8)]
        gate += [f"v_rcp_f32 v{i}, v{i}" for i in range(8)]
        fill = {}
        for start, lst in ((11, gate), (29, finish(1)), (36, finish(2))):
            for k, l in enumerate(lst):
                fill.setdefault(start + k // 2, []).append(l)
        gemm(fill)
        for l in finish(3):
            a(l)
    else:
        for i, (comp, t, h) in enumerate(seq):
            a(f"ds_read_b128 {vr(PF+4*i,4)}, v{T0+5+h} offset:{t*64}")
            if i == 14:
                a("s_waitcnt lgkmcnt(7)")
        for i, (comp, t, h) in enumerate(seq):
            if i >= 8:
                a(f"s_waitcnt lgkmcnt({21 - i})")
            for mt in range(2):
                d = vr(D + 8 * comp + 4 * mt, 4)
                a(f"v_mfma_f32_16x16x32_bf16 {d}, {vr(WF + 4*(10*mt + 2*TPATH[t] + h),4)}, {vr(PF+4*i,4)}, {d}")
        if PROF == 7:
            stamp(a, 4)
        a(f"s_or_b32 s63, s{S_LAST}, s62")
        a("s_cbranch_scc0 MORE")
        for i in range(8):
            a(f"v_mul_f32 v{i}, 0xbfb8aa3b, v{D+i}")
        for i in range(8):
            a(f"v_exp_f32 v{i}, v{i}")
        for i in range(8):
            a(f"v_add_f32 v{i}, 1.0, v{i}")
        for i in range(8):
            a(f"v_rcp_f32 v{i}, v{i}")
        a("s_cmp_lg_u32 s62, 0")
        for comp in range(4):
            if comp:
                for i in range(8):
                    a(f"v_mul_f32 v{D+8*comp+i}, v{D+8*comp+i}, v{i}")
            for i in range(4):
                a(f"v_cvt_pk_bf16_f32 v{8+4*comp+i}, v{D+8*comp+2*i}, v{D+8*comp+2*i+1}")
            if DRY:
                a(f"s_cbranch_scc1 {'T_RET' if comp == 3 else 'T_S%d' % comp}")
            a(f"buffer_store_dwordx4 {vr(8+4*comp,4)}, v{T0+4}, s[{R_OUT}:{R_OUT+3}], s54 offen offset:{128*comp}{OPOL}")
            if DRY and comp < 3:
                a.label(f"T_S{comp}")
    if PROF == 7:
        stamp(a, 7)
    if PROF:
        a("s_waitcnt vmcnt(0)")
    stamp(a, 11, late=True)
    stamp(a, 15, True)
    prof_dump(a, 98, 1, 3, S_WAVE)
    if opt("amp", 0):
        a("s_cmp_lg_u32 s2, 100")
        a("s_cbranch_scc1 K2_end")
        srd(a, 4, 98, WS_PROF + 100 * 1024, 64)
        a("v_mov_b32 v0, 0")
        a("buffer_load_dword v2, v0, s[4:7], 0 offen")
        a("buffer_load_dword v3, v0, s[4:7], 0 offen offset:60")
        a("s_waitcnt vmcnt(0)")
        a("v_readfirstlane_b32 s60, v2")
        a("v_readfirstlane_b32 s61, v3")
        lo, hi = {1: ("s60", f"s{S_PROF}"), 2: (f"s{S_PROF}", f"s{S_PROF+6}"), 3: (f"s{S_PROF+6}", f"s{S_PROF+9}"),
                  4: ("s60", "s61"), 5: ("s60", "s60")}[opt("amp", 0)]
        a(f"s_sub_u32 s62, {hi}, {lo}")
        a("s_min_u32 s62, s62, 10000")
        a("s_lshl_b32 s62, s62, 2")
        a("s_add_u32 s62, s62, 1000")
        a.label("AMPL")
        a("s_memrealtime s[80:81]")
        a("s_waitcnt lgkmcnt(0)")
        a(f"s_sub_u32 s63, s80, s{S_PROF+15}")
        a("s_cmp_lt_u32 s63, s62")
        a("s_cbranch_scc1 AMPL")
    if PROF == 4:
        a("s_lshl_b32 s80, s2, 3")
        a(f"s_add_u32 s80, s80, s{S_WAVE}")
        a("s_lshl_b32 s80, s80, 8")
        a(f"s_add_u32 s80, s80, {WS_PROF + 0x200000}")
        srd(a, 4, 98, "s80", 256)
        a(f"v_lshlrev_b32 v0, 2, v{LANE}")
        a("buffer_store_dword v183, v0, s[4:7], 0 offen")
    if PROF == 3:
        a("s_load_dwordx2 s[54:55], s[0:1], 80")
        a("s_min_u32 s80, s2, 249")
        a("s_lshl_b32 s80, s80, 10")
        a(f"s_add_u32 s80, s80, {WS_PROF}")
        srd(a, 4, 98, "s80", 64)
        a("v_mov_b32 v0, 0")
        a("buffer_load_dword v2, v0, s[4:7], 0 offen")
        a("buffer_load_dword v3, v0, s[4:7], 0 offen offset:8")
        a("buffer_load_dword v4, v0, s[4:7], 0 offen offset:24")
        a("buffer_load_dword v5, v0, s[4:7], 0 offen offset:60")
        a("s_waitcnt vmcnt(0) lgkmcnt(0)")
        srd(a, 4, 54, 0, 256)
        a("v_not_b32 v2, v2")
        a("s_mov_b64 exec, 1")
        for i in range(4):
            a(f"buffer_atomic_umax v{2+i}, v0, s[4:7], 0 offen offset:{4*i}")
        a(f"v_not_b32 v2, s{S_PROF}")
        a("buffer_atomic_umax v2, v0, s[4:7], 0 offen offset:16")
        for i, st in enumerate((0, 2, 3, 4, 6, 7, 8, 9, 10, 15)):
            a(f"v_mov_b32 v{3+i}, s{S_PROF+st}")
            a(f"buffer_atomic_umax v{3+i}, v0, s[4:7], 0 offen offset:{20+4*i}")
    a("s_endpgm")
    if opt("ptail", 1) and not DRY:
        a.label("MORE0")
        gemm({})
    a.label("MORE")
    for i in range(8):
        a(f"buffer_store_dwordx4 {vr(D+4*i,4)}, v{T0+8}, s[{R_ACC}:{R_ACC+3}], s57 offen offset:{(i//2)*128 + (i%2)*16}")
    a(f"s_lshl_b32 s54, s{S_WAVE}, 6")
    a(f"v_add_u32 v{TID}, s54, v{LANE}")
    a(f"s_add_u32 s{S_R0}, s{S_R0}, s{S_LEN}")
    a("s_waitcnt vmcnt(0)")
    a("s_barrier")
    a("s_branch ROUND")
    a.label("K2_end")
    a("s_endpgm")
    return a


def descriptor(name, nv, ns):
    return f""".amdhsa_kernel {name}
  .amdhsa_next_free_vgpr {nv}
  .amdhsa_next_free_sgpr {ns}
  .amdhsa_accum_offset {(nv + 3) // 4 * 4}
  .amdhsa_group_segment_fixed_size 0
  .amdhsa_kernarg_size 96
  .amdhsa_user_sgpr_count 2
  .amdhsa_user_sgpr_kernarg_segment_ptr 1
  .amdhsa_system_sgpr_workgroup_id_x 1
  .amdhsa_float_denorm_mode_32 3
.end_amdhsa_kernel
"""


def main():
    ref = open(os.path.join(os.path.dirname(os.path.abspath(__file__)), "..", "cdna_kernels", NAME + ".s.ref")).read()
    head = [l for l in ref.split("\n") if l.startswith(";") and "@launch" not in l and "Override" not in l
            and "grid=ceil" not in l]
    k1, k2 = "edge_sort_kernel", NAME + "_kernel"
    out = head + ([] if FUSED else [f"; @launch kernel={k1} grid=(255,1,1) block=(1024,1,1) lds={K1_LDS}"]) + [
        f"; @launch kernel={k2} grid=(256,1,1) block=(512,1,1) lds={K2_LDS}",
        ";",
        "; Part 1: each workgroup sorts 3200 edges by destination bin (49 nodes) through LDS and writes the edge",
        ";   attributes, a 12-byte record (source row, node in bin, rhat) and a segment table to d_ws; it also splits",
        ";   x into two 32-channel tables and lays out the weights. Completion is published with tagged flags.",
        "; Part 2: one workgroup per bin. It stages the bin's edges in LDS, sorts them by node, and for each node",
        ";   and channel half accumulates T[k, a, b, c] = sum_e e[k] * (1, rhat)[a] * x[src][b, c] with MFMA",
        ";   (x rows gathered by LDS-DMA), contracts k with w_rad, then applies w_si0 / w_si1 and the gate.",
        ";   Bins that exceed the LDS capacity are processed in several rounds.",
        '.amdgcn_target "amdgcn-amd-amdhsa--gfx950"',
        ".text",
    ]
    for name, fn in ((k1, kernel1), (k2, kernel2))[FUSED:]:
        lines, nops = fn().finish()
        print(name, "instructions:", len(lines), "nops inserted:", nops, file=sys.stderr)
        out += [f".globl {name}", ".p2align 8", f".type {name},@function", f"{name}:"] + lines
    out += ['.section .rodata,"a"'] + ([] if FUSED else [".p2align 6", descriptor(k1, 96, 102)])
    out += [".p2align 6", descriptor(k2, NVGPR, 102)]
    open(sys.argv[1], "w").write("\n".join(out))


if __name__ == "__main__":
    main()
```

```python
import os
import sys

sys.path.insert(0, os.path.dirname(os.path.abspath(__file__)))
from asmlib import Asm, vr, sr

NAME = "gather_scatter__tensor_product_equiv_equiformer__graph"
N, E = 12500, 800000
CHUNK, W = 3200, 250
NPB = 49
NBIN = 256

WS_TAB = 0
WS_WTAB = 0x40000
WS_WSI = 0x48000
WS_META = 0x100000
WS_XP = 0xB00000
WS_EP = 0x1200000
WS_P = 0x2B00000
P_NODE = 784
P_HALF = NPB * P_NODE
P_WG = 0x13000
WS_ACC = 0x4000000
XHALF = N * 256

OPT = dict(a.split("=") for a in sys.argv[2:] if "=" in a)


def opt(name, default):
    return type(default)(OPT.get(name, default))


PROF = opt("prof", 0)
WS_PROF = 0x6000000
S_PROF = 82
FUSED = opt("fused", 1)


def preg(i):
    if FUSED:
        return {0: 82, 6: 83, 9: 90, 10: 91, 11: 92, 12: 93, 13: 94, 15: 95}.get(i)
    return S_PROF + i


def stamp(a, i, real=False, late=False, k1=False):
    if k1:
        i = {2: None, 4: None, 6: 10, 8: 11}[i]
        if i is None or PROF != 5:
            return
    elif PROF == 5 and i not in (0, 15, 6, 9):
        return
    if PROF and not (late and PROF == 2):
        a("s_waitcnt lgkmcnt(0)")
        a(("s_memrealtime" if real or PROF in (3, 5) else "s_memtime") + " s[80:81]")
        a("s_waitcnt lgkmcnt(0)")
        a(f"s_mov_b32 s{preg(i)}, s80")
        if PROF == 4 and i == 7:
            a("s_memrealtime s[80:81]" if opt("rt", 0) else "s_memtime s[80:81]")


def prof_dump(a, wsreg, kern, nwave_shift, wavereg):
    if PROF:
        a(f"s_lshl_b32 s80, s2, {nwave_shift}")
        a(f"s_add_u32 s80, s80, s{wavereg}")
        a("s_lshl_b32 s80, s80, 6")
        a(f"s_add_u32 s80, s80, {WS_PROF + kern * 0x100000}")
        srd(a, 4, wsreg, "s80", 64)
        a("v_mov_b32 v0, 0")
        for i in range(16):
            if preg(i) is None:
                continue
            a(f"v_mov_b32 v1, s{preg(i)}")
            a(f"buffer_store_dword v1, v0, s[4:7], 0 offen offset:{4*i}")


def srd(a, d, b, off, size):
    a(f"s_add_u32 s{d}, s{b}, {off}")
    a(f"s_addc_u32 s{d+1}, s{b+1}, 0")
    a(f"s_mov_b32 s{d+2}, {size}")
    a(f"s_mov_b32 s{d+3}, 0x20000")


def scan64(a, v):
    for sh in (1, 2, 4, 8):
        a(f"v_add_u32_dpp v{v}, v{v}, v{v} row_shr:{sh} row_mask:0xf bank_mask:0xf bound_ctrl:1")
    a(f"v_add_u32_dpp v{v}, v{v}, v{v} row_bcast:15 row_mask:0xa bank_mask:0xf")
    a(f"v_add_u32_dpp v{v}, v{v}, v{v} row_bcast:31 row_mask:0xc bank_mask:0xf")


K1_ERAW = 0
K1_MS = 102400
K1_INV = K1_MS + 38400
K1_HIST = K1_INV + 6400
K1_LDS = 152 * 1024


def prep_tables(a, ST):
    a("v_add_u32 v4, s60, v0")
    a("v_and_b32 v5, 3, v4")
    a("v_bfe_u32 v6, v4, 2, 4")
    a("v_bfe_u32 v7, v4, 6, 2")
    a("v_lshrrev_b32 v8, 8, v4")
    a("v_cmp_le_u32 vcc, 10, v8")
    a("v_cndmask_b32 v9, 0, 1, vcc")
    a("v_mul_u32_u24 v10, 10, v9")
    a("v_sub_u32 v10, v8, v10")
    a("v_lshl_add_u32 v11, v7, 2, v5")
    a("v_mul_u32_u24 v11, 320, v11")
    a("v_lshrrev_b32 v12, 1, v10")
    a("v_lshl_add_u32 v11, v12, 6, v11")
    a("v_lshl_add_u32 v11, v9, 5, v11")
    a("v_and_b32 v12, 1, v10")
    a("v_lshl_add_u32 v11, v12, 4, v11")
    a("v_add_u32 v11, v11, v6")
    a("v_lshlrev_b32 v11, 1, v11")
    a("buffer_load_ushort v13, v11, s[16:19], 0 offen")
    a("v_mov_b32 v30, 0x80000000")
    for t in range(2):
        b = 32 + 8 * t
        a(f"v_add_u32 v14, {20*t}, v8")
        a("v_mul_u32_u24 v15, 26, v14")
        a("v_lshrrev_b32 v15, 8, v15")
        a("v_mul_u32_u24 v16, 10, v15")
        a("v_sub_u32 v16, v14, v16")
        a("v_lshrrev_b32 v17, 1, v16")
        a("v_and_b32 v18, 1, v16")
        a("v_lshl_add_u32 v19, v7, 2, v5")
        a("v_lshl_add_u32 v19, v18, 5, v19")
        a("v_lshl_add_u32 v19, v17, 6, v19")
        a("v_lshrrev_b32 v20, 1, v15")
        a("v_and_b32 v21, 1, v15")
        a("v_lshrrev_b32 v22, 2, v6")
        a("v_lshlrev_b32 v22, 3, v22")
        a("v_lshl_add_u32 v22, v20, 5, v22")
        a("v_lshl_add_u32 v22, v21, 2, v22")
        a("v_and_b32 v23, 3, v6")
        a("v_add_u32 v22, v22, v23")
        a("v_lshl_add_u32 v22, v19, 6, v22")
        a("v_lshlrev_b32 v22, 1, v22")
        a("v_subrev_u32 v23, 16384, v22")
        a("v_cmp_gt_u32 vcc, 2, v17")
        a("v_cndmask_b32 v24, v30, v22, vcc")
        a("v_cndmask_b32 v25, v23, v30, vcc")
        a(f"buffer_load_ushort v{b}, v24, s[20:23], 0 offen")
        a(f"buffer_load_ushort v{b+1}, v24, s[20:23], 0 offen offset:2048")
        a(f"buffer_load_ushort v{b+2}, v25, s[24:27], 0 offen")
        a(f"buffer_load_ushort v{b+3}, v25, s[24:27], 0 offen offset:2048")
    a("v_lshlrev_b32 v4, 2, v4")
    a("s_mov_b32 s61, 20480")
    a("s_waitcnt vmcnt(0)")
    a("v_lshlrev_b32 v13, 16, v13")
    a("buffer_store_dword v13, v4, s[28:31], 0 offen" + ST)
    for t in range(2):
        b = 32 + 8 * t
        a(f"v_or_b32 v{b}, v{b}, v{b+2}")
        a(f"v_or_b32 v{b+1}, v{b+1}, v{b+3}")
        a(f"v_lshl_or_b32 v{b}, v{b+1}, 16, v{b}")
        a(f"buffer_store_dword v{b}, v4, s[32:35], {'0' if t == 0 else 's61'} offen{ST}")


def kernel1():
    a = Asm()
    NT = " nt" if opt("k1nt", 1) else ""
    ST = {0: "", 1: " nt", 2: " sc1"}[opt("k1st", 2)]
    a("s_cmp_ge_u32 s2, 255")
    a("s_cbranch_scc1 K1_end")
    a("s_load_dwordx8 s[4:11], s[0:1], 0")
    a("s_load_dwordx8 s[52:59], s[0:1], 32")
    a("s_load_dwordx2 s[14:15], s[0:1], 88")
    a("v_lshlrev_b32 v1, 4, v0")
    a("v_mul_u32_u24 v2, 24, v0")
    a("v_and_b32 v3, 63, v0")
    a("v_lshlrev_b32 v3, 4, v3")
    a("v_lshrrev_b32 v40, 6, v0")
    a("v_readfirstlane_b32 s3, v40")
    a("s_cmp_ge_u32 s2, 250")
    a("s_cbranch_scc1 K1_prep")
    stamp(a, 0, True)
    stamp(a, 1)
    a("s_mul_i32 s60, s2, 12800")
    a("s_mul_i32 s61, s2, 19200")
    a("s_mul_i32 s62, s2, 25600")
    a("s_mul_i32 s63, s2, 102400")
    a("s_mul_i32 s64, s2, 38400")
    a("s_lshl_b32 s65, s2, 10")
    a("s_waitcnt lgkmcnt(0)")
    srd(a, 16, 52, "s60", 12800)
    a(f"buffer_load_dwordx4 v[4:7], v1, s[16:19], 0 offen{NT}")
    a("v_lshlrev_b32 v41, 2, v0")
    a("v_mov_b32 v42, 0")
    a("s_cmp_ge_u32 s3, 4")
    a("s_cbranch_scc1 K1_nozero")
    a(f"v_add_u32 v41, {K1_HIST}, v41")
    a("ds_write_b32 v41, v42")
    a.label("K1_nozero")
    srd(a, 20, 10, "s60", 12800)
    srd(a, 24, 6, "s61", 19200)
    srd(a, 28, 4, "s62", 25600)
    srd(a, 32, 8, "s63", 102400)
    a("s_mov_b32 s66, 16384")
    a("s_lshl_b32 s67, s3, 10")
    kq = [int(c) for c in opt("kq", "00700")]

    def e_in(i):
        for k in range(sum(kq[:i]), sum(kq[:i + 1])):
            if k == 6:
                a("s_cmp_ge_u32 s3, 4")
                a("s_cbranch_scc1 K1_noe7")
            a("s_mov_b32 m0, s67")
            a(f"buffer_load_dwordx4 v3, s[32:35], s67 offen{NT} lds")
            a("s_add_u32 s67, s67, 16384")
            if k == 6:
                a.label("K1_noe7")

    def n_e(lo, hi):
        return min(sum(kq[:hi + 1]), 6) - min(sum(kq[:lo]), 6)

    e_in(0)
    a("s_waitcnt lgkmcnt(0)")
    a("s_barrier")
    RNT = NT if opt("rnt", 1) else ""
    a(f"buffer_load_dwordx4 v[8:11], v1, s[20:23], 0 offen{NT}")
    a(f"buffer_load_dwordx4 v[12:15], v2, s[24:27], 0 offen{RNT}")
    a(f"buffer_load_dwordx2 v[16:17], v2, s[24:27], 0 offen offset:16{RNT}")
    if opt("k1b2", 1):
        a("s_barrier")
    e_in(1)
    a(f"buffer_load_dwordx4 v[20:23], v1, s[28:31], 0 offen{NT}")
    a(f"buffer_load_dwordx4 v[24:27], v1, s[28:31], s66 offen{NT}")
    e_in(2)
    a("s_add_u32 s68, s64, %d" % WS_META)
    srd(a, 36, 14, "s68", 38400)
    a("s_add_u32 s68, s63, %d" % WS_EP)
    srd(a, 40, 14, "s68", 102400)
    srd(a, 44, 14, WS_XP, 2 * XHALF)
    srd(a, 48, 14, "s65", 1024)
    a("v_cmp_gt_u32 vcc, 800, v0")
    a("s_mov_b64 s[70:71], vcc")
    a("v_mov_b32 v43, 1")
    a(f"s_waitcnt vmcnt({5 + n_e(0, 2)})")
    stamp(a, 2)
    a("s_mov_b64 exec, s[70:71]")
    a("s_cbranch_execz K1_skip_rank")
    for i in range(4):
        a(f"v_mul_u32_u24 v{28+i}, 21400, v{4+i}")
        a(f"v_lshrrev_b32 v{28+i}, 20, v{28+i}")
        a(f"v_mul_u32_u24 v{36+i}, 49, v{28+i}")
        a(f"v_sub_u32 v{36+i}, v{4+i}, v{36+i}")
        a(f"v_lshlrev_b32 v{28+i}, 2, v{28+i}")
        a(f"v_add_u32 v{28+i}, {K1_HIST}, v{28+i}")
        a(f"ds_add_rtn_u32 v{32+i}, v{28+i}, v43")
    a.label("K1_skip_rank")
    a("s_mov_b64 exec, -1")
    a("s_waitcnt lgkmcnt(0)")
    a("s_barrier")
    stamp(a, 3)
    a("s_cmp_lg_u32 s3, 0")
    a("s_cbranch_scc1 K1_noscan")
    a(f"v_add_u32 v41, {K1_HIST}, v3")
    a("ds_read_b128 v[44:47], v41")
    a("s_waitcnt lgkmcnt(0)")
    a("v_add_u32 v49, v44, v45")
    a("v_add_u32 v50, v49, v46")
    a("v_add_u32 v51, v50, v47")
    a("v_mov_b32 v52, v51")
    scan64(a, 52)
    a("v_sub_u32 v52, v52, v51")
    a("v_add_u32 v53, v52, v44")
    a("v_add_u32 v54, v52, v49")
    a("v_add_u32 v55, v52, v50")
    a("ds_write_b128 v41, v[52:55]")
    for i in range(4):
        a(f"v_lshl_or_b32 v{56+i}, v{44+i}, 16, v{52+i}")
    a("buffer_store_dwordx4 v[56:59], v3, s[48:51], 0 offen")
    a("s_waitcnt lgkmcnt(0)")
    a.label("K1_noscan")
    e_in(3)
    a("v_lshrrev_b32 v60, 5, v0")
    a("s_mul_i32 s69, s2, 50")
    a("v_add_u32 v60, s69, v60")
    a("v_lshlrev_b32 v60, 8, v60")
    a("v_bfe_u32 v61, v0, 3, 2")
    a("v_lshl_add_u32 v60, v61, 6, v60")
    a("v_and_b32 v61, 3, v0")
    a("v_lshl_add_u32 v60, v61, 4, v60")
    a("v_bfe_u32 v61, v0, 2, 1")
    a(f"v_mul_u32_u24 v61, {XHALF}, v61")
    a("v_add_u32 v60, v60, v61")
    a("v_add_u32 v61, 8192, v60")
    a("v_cmp_gt_u32 vcc, 576, v0")
    a("v_mov_b32 v62, 0x80000000")
    a("v_cndmask_b32 v61, v62, v61, vcc")
    a("s_barrier")
    a("s_mov_b64 exec, s[70:71]")
    a("s_cbranch_execz K1_skip_scatter")
    for i in range(4):
        a(f"ds_read_b32 v{28+i}, v{28+i}")
    a(f"s_waitcnt vmcnt({2 + n_e(1, 3)})")
    a("s_mov_b32 s72, 0x80000000")
    a("s_mov_b32 s73, 0xffff0000")
    for i in range(4):
        a(f"v_lshl_or_b32 v{8+i}, v{8+i}, 8, v{36+i}")
        a(f"v_or_b32 v{8+i}, s72, v{8+i}")
    a("v_lshlrev_b32 v44, 16, v13")
    a("v_alignbit_b32 v45, v14, v13, 16")
    a("v_and_b32 v46, s73, v14")
    a("v_lshlrev_b32 v47, 16, v16")
    a("v_alignbit_b32 v48, v17, v16, 16")
    a("v_and_b32 v49, s73, v17")
    w1 = [12, 45, 15, 48]
    w2 = [44, 46, 47, 49]
    a("v_lshlrev_b32 v50, 2, v0")
    a("s_waitcnt lgkmcnt(0)")
    for i in range(4):
        a(f"v_add_u32 v{32+i}, v{32+i}, v{28+i}")
        a(f"v_mul_u32_u24 v{28+i}, 12, v{32+i}")
        a(f"v_add_u32 v{28+i}, {K1_MS}, v{28+i}")
        a(f"ds_write2_b32 v{28+i}, v{8+i}, v{w1[i]} offset0:0 offset1:1")
        a(f"ds_write_b32 v{28+i}, v{w2[i]} offset:8")
        a(f"v_lshlrev_b32 v{32+i}, 1, v{32+i}")
        a(f"v_add_u32 v{32+i}, {K1_INV}, v{32+i}")
        a(f"v_add_u32 v{52+i}, {i}, v50")
        a(f"ds_write_b16 v{32+i}, v{52+i}")
    a.label("K1_skip_scatter")
    a("s_mov_b64 exec, -1")
    a(f"s_waitcnt vmcnt({n_e(2, 3)})")
    a(f"buffer_store_dwordx4 v[20:23], v60, s[44:47], 0 offen{ST}")
    a(f"buffer_store_dwordx4 v[24:27], v61, s[44:47], 0 offen{ST}")
    e_in(4)
    a("s_waitcnt lgkmcnt(0)")
    a("s_barrier")
    stamp(a, 4)
    a(f"v_add_u32 v41, {K1_MS}, v1")
    a("ds_read_b128 v[4:7], v41")
    a("ds_read_b128 v[8:11], v41 offset:16384")
    a("ds_read_b128 v[12:15], v41 offset:32768")
    a("v_and_b32 v42, 0x3fe, v0")
    a(f"v_add_u32 v42, {K1_INV}, v42")
    for k in range(7):
        a(f"ds_read_u16 v{28+k}, v42 offset:{1024*k}")
    a("v_and_b32 v43, 1, v0")
    a("v_lshlrev_b32 v43, 4, v43")
    a("s_mov_b32 s74, 32768")
    a("s_waitcnt lgkmcnt(7)")
    a(f"buffer_store_dwordx4 v[4:7], v1, s[36:39], 0 offen{ST}")
    a(f"buffer_store_dwordx4 v[8:11], v1, s[36:39], s66 offen{ST}")
    a(f"buffer_store_dwordx4 v[12:15], v1, s[36:39], s74 offen{ST}")
    a("s_waitcnt lgkmcnt(0)")
    for k in range(7):
        a(f"v_lshl_add_u32 v{28+k}, v{28+k}, 5, v43")
    stamp(a, 5)
    a(f"s_waitcnt vmcnt({3 if kq[4] else 5})")
    a("s_barrier")
    stamp(a, 6)
    for k in range(6):
        a(f"ds_read_b128 v[{64+4*k}:{67+4*k}], v{28+k}")
    a("s_mov_b32 s75, 0")
    for k in range(6):
        a(f"s_waitcnt lgkmcnt({5-k})")
        a(f"buffer_store_dwordx4 v[{64+4*k}:{67+4*k}], v1, s[40:43], s75 offen{ST}")
        a("s_add_u32 s75, s75, 16384")
    a("s_cmp_ge_u32 s3, 4")
    a("s_cbranch_scc1 K1_fin")
    a("ds_read_b128 v[88:91], v34")
    a("s_waitcnt lgkmcnt(0)")
    a(f"buffer_store_dwordx4 v[88:91], v1, s[40:43], s75 offen{ST}")
    a.label("K1_fin")
    if opt("cpf", 2) & 4:
        a(f"s_cmp_ge_u32 s2, {opt('cpn', 8)}")
        a("s_cbranch_scc1 K1_nocpf")
        a("s_getpc_b64 s[76:77]")
        a.label("K1_here2")
        a("s_mov_b32 s78, K2_end-K1_here2")
        a("s_mov_b32 s79, 0x20000")
        a("v_lshlrev_b32 v60, 7, v0")
        a("buffer_load_dword v61, v60, s[76:79], 0 offen")
        a("s_waitcnt vmcnt(0)")
        a.label("K1_nocpf")
    stamp(a, 7)
    if PROF:
        a("s_waitcnt vmcnt(0)")
    stamp(a, 8)
    stamp(a, 15, True)
    prof_dump(a, 14, 0, 4, 3)
    a("s_endpgm")

    a.label("K1_prep")
    a("s_waitcnt lgkmcnt(0)")
    srd(a, 16, 54, 0, 16 * 320 * 2)
    srd(a, 20, 56, 0, 128 * 64 * 2)
    srd(a, 24, 58, 0, 192 * 64 * 2)
    srd(a, 28, 14, WS_WTAB, 20480)
    srd(a, 32, 14, WS_WSI, 40960)
    if opt("cpf", 2) & 2:
        a("s_getpc_b64 s[36:37]")
        a.label("K1_here")
        a("s_mov_b32 s38, K2_end-K1_here")
        a("s_mov_b32 s39, 0x20000")
        a("v_lshlrev_b32 v60, 7, v0")
        a("buffer_load_dword v61, v60, s[36:39], 0 offen")
    a("s_sub_u32 s60, s2, 250")
    a("s_lshl_b32 s60, s60, 10")
    prep_tables(a, "")
    a.label("K1_end")
    a("s_endpgm")
    return a


CAP = 3392
SLOWCAP = 256
MAXSTEPS = 142
MAXWSTEPS = 20
L_E = 0
L_RING = 32 + CAP * 32
RING_W = 6336
SUBB = 2112
L_SA = L_RING
L_SB = L_SA + MAXSTEPS * 128
L_MISC = L_SB + MAXSTEPS * 256
L_CNT = L_MISC
L_FLAG = L_MISC + 256
L_WSUM = L_MISC + 272
L_DUMMY = L_WSUM + 16
L_MAP = 94208
K2_LDS = 163840
assert L_MAP + CAP * 4 <= L_RING and L_DUMMY + 256 <= K2_LDS and L_RING + 8 * RING_W <= L_MISC

ACC = 0
WR = 88
B0 = 128
B1 = 144
GS, G0, G1, G2, N0, N2 = 160, 164, 168, 172, 176, 180
SEL = 184
M0R = 188
MBR = 198
GSP = (160, 252)
NID = 218
Y = 220
REP = 223
XA = 224
XOFF, QQ8, BAE, BAO, POFF, NST = 228, 230, 231, 232, 233, 234
U, PT, T8, EA = 236, 244, 235, 248
T0 = 236
TID, LANE = 250, 251
NVGPR = 256
XBIAS = 2048

S_WAVE = 3
R_XP, R_EP, R_MT, R_TB, R_P, R_W, R_OUT, R_ACC = 4, 8, 12, 16, 20, 24, 28, 32
S_NN, S_T, S_R0, S_LEN, S_CAP = 36, 37, 38, 39, 40
S_NODE0, S_NNW, S_STEP0, S_NS = 41, 42, 43, 44
S_D, S_REM, S_NODE, S_PHASE, S_TAB0, S_TAB1, S_RB, S_POFF = 45, 46, 47, 48, 49, 50, 51, 52
S_HI, S_SGN = 100, 101
S_MASK = 64
S_LAST = 78
S_NEND = 79
S_EM0 = 57
S_EVT = 59
S_OLD = 53
S_LEFT, S_PADR = 58, 63
S_PAT = 58
S_EGN = 63
NEWTAIL = opt('newtail', 0)
DRY = NEWTAIL and opt('dry', 0)
R_DBG = 76
R_FLG = 84
S_EB1, S_EB2, S_TAG = 88, 89, 96

PPOL = ["", " sc1", " nt", " sc0 sc1"][opt("ppol", 0)]
OPOL = ["", " sc1", " nt", " sc0 sc1"][opt("opol", 0)]

VC = opt("vc", 0)
HI = "v219" if VC else f"s{S_HI}"
SGN = f"v{TID}" if VC else f"s{S_SGN}"

TPATH = [0, 1, 2, 2, 2, 3, 3, 3, 4, 4, 4]
P0, P1 = 0, 1
P2 = [2, 3, 4]
P3 = [5, 6, 7]
P4 = [8, 9, 10]


def acc(t, cq):
    return ACC + 4 * (2 * t + cq)


def mfma_list():
    out = []
    for t, A, B, fl in ((P2[0], G0, B0, 1), (P1, G0, B0 + 8, 1), (P0, GS, B0, 1), (P3[0], GS, B0 + 8, 1),
                        (P2[2], G2, B0, 1), (P4[1], G2, B0 + 8, 1), (P2[1], G1, B0, 1), (P4[2], G1, B0 + 8, 1),
                        (P4[2], N0, B1, 0), (P4[1], N0, B1 + 8, 0), (P3[1], GS, B1, 1), (P3[2], GS, B1 + 8, 1),
                        (P4[0], N2, B1, 1), (P1, G2, B1 + 8, 0), (P1, G1, B1, 0), (P4[0], G1, B1 + 8, 0)):
        for cq in range(2):
            out.append((t, cq, A, B + 4 * cq, fl))
    if opt("chain", 1):
        n2, g2p1, g1p1, g1p4 = out[24:26], out[26:28], out[28:30], out[30:32]
        out[16], out[17] = out[17], out[16]
        out[24:32] = [g1p1[0], g2p1[0], g1p1[1], g2p1[1], n2[0], g1p4[0], n2[1], g1p4[1]]
    return out


def emit_mfma(a, m, first, p0, q0):
    t, cq, A, B, fl = m
    if A == GS:
        A = GSP[p0]
    if opt("nomfma", 0):
        return
    d = vr(acc(t, cq), 4)
    c = "0" if (first and fl) else d
    if q0:
        a(f"v_mfma_f32_16x16x16_bf16 {d}, {vr(A,2)}, {vr(B,2)}, {c}")
    else:
        a(f"v_mfma_f32_16x16x32_bf16 {d}, {vr(A,4)}, {vr(B,4)}, {c}")


def b_reads(k, pos):
    B = B0 if k < 2 else B1
    hf = k & 1
    return [f"ds_read_b64_tr_b16 {vr(B + 4*u + 2*hf, 2)}, v{BAE if u % 2 == 0 else BAO} offset:{pos*SUBB + u*32}"
            for u in range(4)]


def vmwait(n):
    return [] if opt("nowait", 0) else [f"s_waitcnt vmcnt({n})"]


def dma(k, pos):
    if opt("nodma", 0):
        return [[], [], []]
    hf, bp = k & 1, k >> 1
    so = S_TAB0 if bp == 0 else S_TAB1
    pol = ["", " sc1", " nt", " sc0 sc1", " sc0"][opt("xpol", 1)]
    return [[f"s_add_u32 m0, s{S_RB}, {pos*SUBB}"],
            [f"buffer_load_dwordx4 v{XA + 2*hf}, s[{R_XP}:{R_XP+3}], s{so} offen{pol} lds"],
            [f"buffer_load_dwordx4 v{XA + 2*hf + 1}, s[{R_XP}:{R_XP+3}], s{so} offen offset:1088{pol} lds"]]


W0_FETCH = [f"s_lshr_b32 s54, s{S_D}, 1",
            "s_set_gpr_idx_on s54, gpr_idx(SRC0)",
            f"v_mov_b32 v{REP}, v{M0R}",
            "s_set_gpr_idx_off"]
W0_REP = [f"v_mov_b32_dpp v{REP}, v{REP} row_shr:4 row_mask:0xf bank_mask:0xa",
          f"v_mov_b32_dpp v{REP}, v{REP} row_shl:4 row_mask:0xf bank_mask:0x5"]
WRAP = [f"s_mov_b32 s{S_D}, 0",
        f"s_add_u32 s{S_TAB0}, s{S_TAB0}, {XHALF}",
        f"s_add_u32 s{S_TAB1}, s{S_TAB1}, {XHALF}"]


def x_addr(q):
    return f"v_add_u32_dpp v{XA+q}, v{REP}, v{XOFF + (q & 1)} quad_perm:[{q},{q},{q},{q}] row_mask:0xf bank_mask:0xf"


META_SET = [f"s_set_gpr_idx_on s{S_D}, gpr_idx(SRC1)",
            f"v_mad_u32_u16 v{T8}, 8, v{MBR+1}, 0",
            f"v_lshlrev_b32 v{Y}, 16, v{MBR}",
            f"v_and_b32 v{Y+1}, {HI}, v{MBR}",
            f"v_and_b32 v{Y+2}, {HI}, v{MBR+1}",
            "s_set_gpr_idx_off"]


def e_addr(p):
    return [f"v_add_u32_dpp v{EA+h}, v{T8}, v{QQ8} quad_perm:[{2*p+h},{2*p+h},{2*p+h},{2*p+h}] "
            "row_mask:0xf bank_mask:0xf" for h in range(2)]


def e_reads(dst):
    return [f"ds_read_b64_tr_b16 {vr(dst + 2*h, 2)}, v{EA+h}" for h in range(2)]


def unpack_valu(aa, p):
    return [f"v_lshlrev_b32 v{U+2*aa}, 16, v{GSP[p]+aa}", f"v_and_b32 v{U+2*aa+1}, {HI}, v{GSP[p]+aa}"]


def gb(j, aa, p):
    if opt("nog", 0):
        return []
    hf, rl = aa >> 1, 2 * (aa & 1)
    pl = PT + 2 * (aa & 1)
    return [f"v_mul_f32_dpp v{pl}, v{Y+j}, v{U+2*aa} row_newbcast:{4*rl+2*p+hf} row_mask:0xf bank_mask:0xf",
            f"v_mul_f32_dpp v{pl+1}, v{Y+j}, v{U+2*aa+1} row_newbcast:{4*rl+4+2*p+hf} row_mask:0xf bank_mask:0xf",
            f"v_cvt_pk_bf16_f32 v{(G0, G1, G2)[j]+aa}, v{pl}, v{pl+1}"]


def neg(dst, src):
    return [f"v_xor_b32 v{dst+i}, {SGN}, v{src+i}" for i in range(4)]


SHORT = opt("short", 0)


def body_name(rho, kind, p0, p1):
    return f"S{rho}{kind}{p0}{p1}"


def goto_next(a, rho, kind, p1, fall=False):
    if p1 == 0:
        a(f"s_cmp_eq_u32 s{S_D}, 0")
        a(f"s_cbranch_scc1 {body_name(rho, kind, 0, 0)}")
    if not fall:
        a(f"s_branch {body_name(rho, kind, p1, 1 - p1)}")


def issue_cost(l):
    op = l.split()[0]
    if op.endswith(":"):
        return 0
    if op.startswith("v_"):
        return 5.3 if "_dpp" in op or op.startswith(("v_cvt_pk", "v_mad")) else 4.2
    return {"d": 8, "b": 14}.get(op[0], 4.1)


def step_body(a, rho, kind, p0, p1, fall, cold):
    tag = body_name(rho, kind, p0, p1)
    first = kind == "f"
    x = 3 if first else 0
    p = lambda k: (rho + k) % 3
    F = [[] for _ in range(32)]

    def event(slot, n, k, pos):
        F[slot] += vmwait(n)
        for i, r in enumerate(b_reads(k, pos)):
            F[slot + i].append(r)

    def refill(slot, k, pos):
        d = dma(k, pos)
        F[slot - 1] += d[0]
        F[slot] += [f"WAIT {k}"] + d[1]
        F[slot + opt("xg", 0)] += d[2]

    event(0, 4 + x, 2, p(2))
    refill(5, 1, p(2))
    event(8, 4 + x, 3, p(0))
    refill(13, 2, p(0))
    event(16, 4 + x, 0, p(1))
    refill(21, 3, p(1))
    event(24, 4, 1, p(2))
    refill(29, 0, p(2))
    F[31] += [f"s_sub_u32 s{S_REM}, s{S_REM}, 1"]
    if PROF == 4:
        F[30] += ["s_memrealtime s[80:81]" if opt("rt", 0) else "s_memtime s[80:81]"]
        F[7] += ["s_mov_b32 m0, s96", "s_add_u32 s96, s96, 1", "v_writelane_b32 v219, s80, m0"]

    qb = 1 - p0
    n0, n2 = neg(N0, G0), neg(N2, G2)
    ea, er = e_addr(p1), e_reads(GSP[qb])
    step = [f"s_add_u32 s{S_D}, s{S_D}, 1", f"s_cmp_lt_u32 s{S_D}, s{S_NS}", f"s_cbranch_scc0 {tag}_w"]
    if p1 == 1:
        fetch = [step + [f"{tag}_b:"] + W0_FETCH]
        rep = [[W0_REP[0]]]
        cold += [f"{tag}_w:"] + WRAP + [f"s_branch {tag}_b"]
    else:
        fetch = [step + W0_FETCH + ["FILL", W0_REP[1], f"{tag}_b:"]]
        rep = []
        cold += [f"{tag}_w:"] + WRAP + W0_FETCH + ["FILL", W0_REP[0], f"s_branch {tag}_b"]
    one = lambda lst: [[l] for l in lst]
    g0 = gb(0, 0, p1) + gb(0, 1, p1) + gb(0, 2, p1) + gb(0, 3, p1)
    g2 = gb(2, 0, p1) + gb(2, 1, p1)
    V = [(0, 6, g) for g in one(gb(2, 2, p0) + gb(2, 3, p0))]
    V += [(0, 10, g) for g in one(gb(1, 0, p0) + gb(1, 1, p0) + gb(1, 2, p0) + gb(1, 3, p0))]
    if p1 == 0:
        V += [(7, 11, META_SET)]
    V += [(0, 14, g) for g in one(n0[:2])]
    V += [(0, 14, [ea[0]]), (0, 14, [ea[1]]), (11, 15, [er[0]]), (11, 15, [er[1]])]
    V += [(0, 14, g) for g in one(n0[2:])]
    V += [(0, 22, g) for g in one(n2)]
    up = sum((unpack_valu(aa, qb) for aa in range(4)), [])
    V += [(opt("upe", 15), 22, ["WAIT e", up[0]])] + [(0, 24, g) for g in one(up[1:])]
    nb = opt("nb", 7)
    V += [(16, 30, g) for g in one(g0[:nb])]
    V += [(22, 26, g) for g in fetch] + [(0, 30, [g0[nb]])] + [(0, 27, g) for g in rep]
    V += [(0, 30, g) for g in one(g0[nb+1:nb+3])]
    V += [(0, 28, [x_addr(0)]), (0, 28, [x_addr(1)])]
    V += [(0, 30, g) for g in one(g0[nb+3:])]
    V += [(0, 31, [x_addr(2)]), (0, 31, [x_addr(3)])]
    if qb != p1:
        V += [(24, 31, [f"v_mov_b32 v{GSP[p1]+i}, v{GSP[qb]+i}" for i in range(4)])]
    V += [(0, 31, g) for g in one(g2[:2])] + [(27, 31, [g2[2]])] + [(27, 31, g) for g in one(g2[3:])]
    filler = g0[nb] if p1 == 0 else None
    if filler:
        V = [v for v in V if v[2] != [filler]]
    cost = lambda grp: sum(issue_cost(l) for l in grp)
    total = sum(cost(f) for f in F) + sum(cost(v[2]) for v in V)
    out, cum, i = [], 0.0, 0
    for sl in range(32):
        cum += cost(F[sl])
        mine = []
        while i < len(V):
            e, late, grp = V[i]
            must = any(V[j][1] <= sl for j in range(i, len(V)))
            if sl < e:
                assert not must, (tag, sl, grp)
                break
            if not must and cum + cost(grp) / 2 > total * (sl + 1) / 32:
                break
            mine += grp
            cum += cost(grp)
            i += 1
        tail = [l for l in F[sl] if l.startswith("s_sub")]
        out.append(mine[:1] + [l for l in F[sl] if l not in tail] + mine[1:] + tail
                   if mine and not mine[0].startswith(("s_", "WAIT", "ds_")) else
                   [l for l in F[sl] if l not in tail] + mine + tail)
    assert i == len(V)
    if opt("sched", 2) == 0:
        F = [[] for _ in range(32)]

        def spread(slot, lst, per=2):
            for i, l in enumerate(lst):
                if l is not None:
                    F[slot + i // per].append(l)

        def event2(slot, n, k, pos):
            r = b_reads(k, pos)
            nd = opt("nd", 4)
            if opt("dsf", 0):
                FIRST[slot] += vmwait(n) + r[:nd]
            else:
                F[slot] += vmwait(n) + r[:nd]
            F[slot + 1] += r[nd:]

        FIRST = [[] for _ in range(32)]
        ev2 = opt("ev2", 8)
        spread(0, gb(2, 2, p0) + gb(2, 3, p0) + gb(1, 0, p0) + gb(1, 1, p0) + gb(1, 2, p0) + gb(1, 3, p0))
        rs = opt("rs", 2)
        event2(0, 4 + x, 2, p(2))
        refill(rs, 1, p(2))
        if ev2 == 8:
            event2(8, 4 + x, 3, p(0))
        if p1 == 0:
            F[9] += META_SET
            spread(10, n0[:2] + ea)
            spread(13, n0[2:] + n2)
        else:
            spread(9, n0[:2] + ea + n0[2:])
            spread(13, n2)
        if ev2 == 8:
            refill(8 + max(rs, opt("rs2", 3)), 2, p(0))
            F[opt("es", 13)] += er
        else:
            event2(ev2, 4 + x, 3, p(0))
            F[ev2] += er
            refill(ev2 + rs, 2, p(0))
        event2(16, 4 + x, 0, p(1))
        F[17] += ["WAIT e"]
        spread(17, up)
        refill(16 + rs, 3, p(1))
        g = g0 + g2
        filler = g[0] if p1 == 0 else None
        F[21] += fetch[0]
        if p1 == 1:
            F[22] += rep[0] + [g[0]]
        spread(23 - (p1 == 0), g[1:3], 2 if p1 == 1 else 1)
        spread(24, [x_addr(0), g[3], x_addr(1), g[4]] + g[5:9] + [x_addr(2), g[9], x_addr(3)], 2)
        spread(28, g[10:12], 1)
        spread(29, g[12:], 2)
        if qb != p1:
            F[24] += [f"v_mov_b32 v{GSP[p1]+i}, v{GSP[qb]+i}" for i in range(4)]
        event2(24, 4, 1, p(2))
        refill(24 + rs, 0, p(2))
        if PROF == 4:
            F[29] += ["s_memrealtime s[80:81]" if opt("rt", 0) else "s_memtime s[80:81]"]
            F[6] += ["s_mov_b32 m0, s96", "s_add_u32 s96, s96, 1", "v_writelane_b32 v219, s80, m0"]
        if PROF == 6 and first:
            F[6] += ["s_sub_u32 s62, s62, s80", f"s_add_u32 s{S_PROF+14}, s{S_PROF+14}, s62"]
        F[31] += [f"s_sub_u32 s{S_REM}, s{S_REM}, 1"]
        F = [FIRST[i] + F[i] for i in range(32)]
        gf = opt("gf", 1)
        out = [sum(F[i - gf + 1:i + 1], []) if i % gf == gf - 1 else [] for i in range(32)]
    if opt("sched", 2) == 2:
        F = [[] for _ in range(32)]
        ev = [int(c) for c in opt("ev", "0,8,16,24").split(",")]
        rs = opt("rs", 2)
        for slot, n, k, pos, k2 in ((ev[0], 4 + x, 2, p(2), 1), (ev[1], 4 + x, 3, p(0), 2),
                                    (ev[2], 4 + x, 0, p(1), 3), (ev[3], 4, 1, p(2), 0)):
            F[slot] += vmwait(n) + b_reads(k, pos)
            refill(slot + rs, k2, pos)
        nb = opt("nb2", 3)
        filler = g0[nb] if p1 == 0 else None
        V = [(0, g) for g in one(gb(2, 2, p0) + gb(2, 3, p0) + gb(1, 0, p0) + gb(1, 1, p0) + gb(1, 2, p0) + gb(1, 3, p0))]
        if p1 == 0:
            V += [(0, META_SET)]
        V += [(0, g) for g in one(n0[:2] + [ea[0]])] + [(0, [ea[1]] + er)]
        V += [(0, g) for g in one(n0[2:] + n2)]
        V += [(0, ["WAIT e", up[0]])] + [(0, g) for g in one(up[1:])]
        V += [(0, g) for g in one(g0[:nb])] + [(ev[2] + rs + 1, g) for g in fetch]
        if p1 == 1:
            V += [(0, [g0[nb]])] + [(0, g) for g in rep]
        V += [(0, g) for g in one(g0[nb+1:nb+3] + [x_addr(0), x_addr(1)] + g0[nb+3:] + [x_addr(2), x_addr(3)])]
        if qb != p1:
            V += [(24, [f"v_mov_b32 v{GSP[p1]+i}, v{GSP[qb]+i}" for i in range(4)])]
        V += [(0, g) for g in one(g2[:2])] + [(27, [g2[2]])] + [(0, g) for g in one(g2[3:])]
        nv = lambda grp: sum(l.startswith("v_") or l == "FILL" for l in grp)
        wt = [opt("cw", 1.0) if any(l[0] in "db" for l in F[sl]) else 1.0 for sl in range(32)]
        tot = sum(nv(g) for _, g in V)
        out, done, i = [], 0, 0
        for sl in range(32):
            mine = []
            while i < len(V) and V[i][0] <= sl and (sl == 31 or done + nv(V[i][1]) / 2 <= tot * sum(wt[:sl+1]) / sum(wt)):
                if V[i][1] is META_SET and any(l.startswith("s_add_u32 m0") for l in F[sl]):
                    out_m0 = [l for l in F[sl] if l.startswith("s_add_u32 m0")]
                    F[sl] = [l for l in F[sl] if l not in out_m0]
                    mine += V[i][1] + out_m0
                else:
                    mine += V[i][1]
                done += nv(V[i][1])
                i += 1
            if any(l.startswith("s_set_gpr_idx_on") for l in mine) and any(l.startswith("buffer") for l in F[sl]):
                out.append(F[sl] + mine)
            else:
                out.append(mine + F[sl])
        out[31] += [f"s_sub_u32 s{S_REM}, s{S_REM}, 1"]
        if opt("bp", 0) == 1 and not first:
            out[opt("bps", 16)] += ["s_setprio 0"]
        if opt("bp", 0) == 2 and not first:
            out[0] += ["s_setprio 2"]
        order = [l for o in out for l in o]
        at = lambda l: next(k for k, o in enumerate(out) if l in o)
        assert at(gb(2, 3, p0)[2]) < 7 and at(gb(1, 3, p0)[2]) < 11 and at(n0[3]) < 15 and at(n2[3]) < 27
        assert order.index(x_addr(1)) < order.index(dma(0, p(2))[1][0])
        if PROF == 6 and first:
            out[6] += ["s_sub_u32 s62, s62, s80", f"s_add_u32 s{S_PROF+14}, s{S_PROF+14}, s62"]
    flat = [(sl, l) for sl in range(32) for l in out[sl]]
    need = {"1": b_reads(2, p(2)), "2": b_reads(3, p(0)), "3": b_reads(0, p(1)), "0": None, "e": er}
    a.label(tag)
    ml = mfma_list()
    for sl in range(32):
        emit_mfma(a, ml[sl], first, p0, 0)
        for l in out[sl]:
            if l.startswith("WAIT"):
                pos = flat.index((sl, l))
                ds = [y for _, y in flat[:pos] if y.startswith("ds_")]
                want = need[l.split()[1]]
                n = 0 if want is None else len(ds) - 1 - max(k for k, y in enumerate(ds) if y in want)
                assert want is None or all(w in ds for w in want)
                l = f"s_waitcnt lgkmcnt({n})"
            if l == "FILL":
                l = filler
            if opt("nods", 0) and (l.startswith("ds_") or l.startswith("s_waitcnt lgkm")):
                continue
            if opt("novalu", 0) and l.startswith("v_") and not l.startswith(("v_writelane", "v_mfma")):
                continue
            a(l)
    for k, l in enumerate(cold):
        if l == "FILL":
            cold[k] = filler
    nr = (rho + 1) % 3
    if fall == "n":
        a(f"s_cbranch_scc1 EP{nr}{p1}")
        goto_next(a, nr, "n", p1, True)
    else:
        if p1 == 1:
            a(f"s_cbranch_scc0 {body_name(nr, 'n', 1, 0)}")
        else:
            a(f"s_cbranch_scc0 {tag}_c")
            cold += [f"{tag}_c:", f"s_cmp_lg_u32 s{S_D}, 0", f"s_cbranch_scc1 {body_name(nr, 'n', 0, 1)}",
                     f"s_branch {body_name(nr, 'n', 0, 0)}"]
        if fall != "e":
            a(f"s_branch EP{nr}{p1}")


def node_steps(lane):
    return [f"v_readlane_b32 s{S_REM}, v{NST}, s{lane}"]


def load_w(a, h):
    a(f"s_mov_b32 s57, {10240*h}")
    a(f"v_lshlrev_b32 v67, 4, v{LANE}")
    for pc in range(10):
        if pc % 4 == 0 and pc:
            a("s_add_u32 s57, s57, 4096")
        a(f"buffer_load_dwordx4 {vr(WR+4*pc,4)}, v67, s[{R_W}:{R_W+3}], s57 offen offset:{(pc%4)*1024}")


def pipeline_start(a):
    def run(lst):
        for l in lst:
            a(l)

    def dma_now(k, pos):
        for g in dma(k, pos):
            run(g)

    if VC:
        a("v_mov_b32 v219, 0xffff0000")
        a(f"v_mov_b32 v{TID}, 0x80008000")
    run(W0_FETCH + [W0_REP[0]] + [x_addr(q) for q in range(4)])
    dma_now(0, 0)
    dma_now(1, 1)
    dma_now(2, 2)
    run(META_SET + e_addr(0))
    a(f"s_waitcnt vmcnt({0 if opt('nodma', 0) else 6})")
    a("s_barrier")
    stamp(a, 6)
    run(e_reads(GSP[0]))
    run(["s_waitcnt vmcnt(4)"] + b_reads(0, 0) + ["s_waitcnt lgkmcnt(0)"])
    dma_now(3, 0)
    for aa in range(4):
        run(unpack_valu(aa, 0))
    run([f"s_mov_b32 s{S_D}, 1", f"s_cmp_lt_u32 s{S_D}, s{S_NS}", "s_cbranch_scc0 I_w"] + W0_FETCH + [W0_REP[1]])
    a("s_branch I_b")
    run(["I_w:"] + WRAP + W0_FETCH + [W0_REP[0], "I_b:"])
    run([x_addr(q) for q in range(4)])
    run(["s_waitcnt vmcnt(4)"] + b_reads(1, 1))
    run(gb(0, 0, 0) + gb(0, 1, 0) + gb(0, 2, 0) + gb(0, 3, 0) + gb(2, 0, 0) + gb(2, 1, 0))
    if PROF == 6:
        a("s_mov_b32 s62, 0")
        a("s_mov_b32 s80, 0")
        a(f"s_mov_b32 s{S_PROF+14}, 0")
    if PROF == 4:
        a("s_memrealtime s[80:81]" if opt("rt", 0) else "s_memtime s[80:81]")
        a("s_mov_b32 s96, 0")
        a("v_mov_b32 v219, 0")
    a("s_waitcnt lgkmcnt(0)")
    dma_now(0, 1)
    load_w(a, 0)
    if opt("prio", 3) == 3:
        pat = opt("pat", "110100000000")
        a(f"s_mov_b32 s{S_PAT}, {int(pat[::-1], 2)}")
        a(f"s_cmp_eq_u32 s{S_NNW}, 7")
        a(f"s_cmov_b32 s{S_PAT}, {int(opt('pat7', '11010100000000')[::-1], 2)}")
        if opt("epp", 3) == 3:
            a(f"s_cmp_ge_u32 s{S_WAVE}, 4")
            a(f"s_cmov_b32 s{S_PAT}, -1")
        a(f"s_setprio {2 * int(pat[0])}")
    if opt("prio", 3) in (1, 3):
        a(f"s_cmp_lt_u32 s{S_WAVE}, 4")
        a("s_cbranch_scc1 I_p")
        a("s_setprio 1")
        a.label("I_p")
    goto_next(a, 0, "f", 0)


def epilogue(a, rho, p1, cold):
    tag = f"EP{rho}{p1}"
    a.label(tag)
    if PROF == 6:
        a("s_memtime s[80:81]")
    order = [P2[0], P0, P3[0], P2[2], P2[1], P4[2], P4[1], P3[1], P3[2], P1, P4[0]]
    book = [f"s_mul_i32 s55, s{S_NODE}, {P_NODE}",
            f"s_add_u32 s55, s55, s{S_POFF}",
            f"s_add_u32 s{S_NODE}, s{S_NODE}, 1",
            f"s_cmp_lt_u32 s{S_NODE}, s{S_NEND}",
            f"s_cselect_b32 s56, s{S_NODE}, -2",
            f"s_cselect_b32 s{S_NODE}, s{S_NODE}, s{S_NODE0}",
            *node_steps(S_NODE),
            *([f"s_lshl1_add_u32 s54, s{S_REM}, 2", f"s_sub_u32 s{S_LEFT}, s{S_LEFT}, s54"]
              if opt("prio", 3) == 2 else []),
            f"s_cmp_ge_u32 s56, s{S_EVT}"]
    if opt("prio", 3) == 2:
        a(f"v_mov_b32 v{B1+12}, s{S_PADR}")
        a(f"v_mov_b32 v{B1+13}, s{S_LEFT}")
        a(f"ds_wrxchg_rtn_b32 v{B1+14}, v{B1+12}, v{B1+13}")
    EPP = opt("epp", 3)

    def pattern_prio():
        if EPP == 3:
            a(f"s_ashr_i32 s{S_PAT}, s{S_PAT}, 1")
            a(f"s_bitcmp1_b32 s{S_PAT}, 0")
            a(f"s_cbranch_scc0 {tag}_p")
            a("s_setprio 1")
            a.label(f"{tag}_p")
            return
        if EPP:
            a("s_setprio 1")
        a(f"s_cmp_lt_u32 s{S_WAVE}, 4")
        a(f"s_cbranch_scc0 {tag}_p")
        a(f"s_lshr_b32 s{S_PAT}, s{S_PAT}, 1")
        a(f"s_bitcmp1_b32 s{S_PAT}, 0")
        a("s_setprio 0")
        a(f"s_cbranch_scc0 {tag}_p")
        a("s_setprio 2")
        a.label(f"{tag}_p")

    EG = opt("eg", 0)
    if opt("prio", 3) == 3:
        if EG:
            a(f"s_cmp_ge_u32 s{S_NODE}, s{S_EGN}")
            a(f"s_cbranch_scc1 {tag}_eg")
            cold += [f"{tag}_eg:",
                     f"s_sub_u32 s54, s{S_NS}, s{S_D}",
                     f"s_cmp_ge_u32 s{S_TAB0}, {2*XHALF}",
                     "s_cselect_b32 s54, 0, s54",
                     f"s_lshr_b32 s57, s{S_WAVE}, 2",
                     "s_lshl1_add_u32 s54, s54, s57",
                     "s_add_u32 s54, s54, 2",
                     f"s_and_b32 s57, s{S_WAVE}, 3",
                     f"s_lshl2_add_u32 s57, s57, {L_CNT + 240}",
                     f"v_mov_b32 v{B1+12}, s57",
                     f"v_mov_b32 v{B1+13}, s54",
                     f"ds_wrxchg_rtn_b32 v{B1+14}, v{B1+12}, v{B1+13}",
                     "s_waitcnt lgkmcnt(0)",
                     f"v_readfirstlane_b32 s57, v{B1+14}",
                     "s_cmp_eq_u32 s57, 0",
                     "s_cselect_b32 s57, 1000, s57",
                     "s_xor_b32 s55, s57, s54",
                     "s_bitcmp1_b32 s55, 0",
                     "s_cselect_b32 s55, 1, 0",
                     "s_cmp_eq_u32 s57, 1000",
                     "s_cselect_b32 s55, 1, s55",
                     "s_cmp_eq_u32 s55, 0",
                     f"s_cbranch_scc1 {tag}_p",
                     "s_cmp_gt_u32 s54, s57",
                     "s_setprio 0",
                     f"s_cbranch_scc0 {tag}_p",
                     "s_setprio 3",
                     f"s_branch {tag}_p"]
        if EPP:
            a(f"s_setprio {3 if EPP == 1 else 0}")
        else:
            pattern_prio()
    if opt("prio", 3) == 1:
        a(f"s_cmp_lt_u32 s{S_WAVE}, 4")
        a(f"s_cbranch_scc0 {tag}_p")
        a(f"s_setprio {2 if int(opt('prpat', '110110')[2 * rho + p1]) else 0}")
        a.label(f"{tag}_p")
    fb = []
    if opt("prio", 3) == 2:
        fb = ["s_waitcnt lgkmcnt(0)",
              f"v_readfirstlane_b32 s57, v{B1+14}",
              f"s_xor_b32 s54, s57, s{S_LEFT}",
              "s_bitcmp1_b32 s54, 0",
              f"s_cbranch_scc0 {tag}_p",
              f"s_cmp_gt_u32 s{S_LEFT}, s57",
              "s_setprio 0",
              f"s_cbranch_scc0 {tag}_p",
              "s_setprio 2",
              f"{tag}_p:"]
    eo = opt("eo", 1)
    groups = [order[i:i + eo] for i in range(0, len(order), eo)] if opt("noep", 0) < 2 else []
    for grp in groups:
        for r in range(0 if opt("noep", 0) else 4):
            for t in grp:
                for cq in range(2):
                    d, w = acc(t, cq), WR + 4 * (2 * TPATH[t] + cq)
                    if r == 0:
                        a(f"v_mul_f32 v{d}, v{d}, v{w}")
                    else:
                        a(f"v_fmac_f32 v{d}, v{d+r}, v{w+r}")
        for t in grp:
            n = "-" if t == P4[2] else ""
            a(f"v_cvt_pk_bf16_f32 v{B1+t}, {n}v{acc(t,0)}, {n}v{acc(t,1)}")
            if t == P0:
                a(f"v_mov_b32 v{B1+11}, 0")
            if t == P3[0]:
                for l in fb:
                    a(l)
        if P1 in grp:
            a(f"v_mfma_f32_16x16x32_bf16 {vr(20,4)}, {vr(SEL,4)}, {vr(B1+4,4)}, 0")
    if opt("prio", 3) == 3 and EPP:
        pattern_prio()
    a(book[0])
    a(f"v_mfma_f32_16x16x32_bf16 {vr(16,4)}, {vr(SEL,4)}, {vr(B1,4)}, 0")
    a(f"v_mfma_f32_16x16x32_bf16 {vr(24,4)}, {vr(SEL,4)}, {vr(B1+8,4)}, 0")
    a(f"v_cvt_pk_bf16_f32 v65, v20, v21")
    for l in book[1:]:
        a(l)
    a(f"buffer_store_dword v65, v{POFF}, s[{R_P}:{R_P+3}], s55 offen offset:256{PPOL}")
    for i in (0, 2):
        a(f"v_cvt_pk_bf16_f32 v{64+i}, v{16+4*i}, v{17+4*i}")
    for i in (0, 2):
        a(f"buffer_store_dword v{64+i}, v{POFF}, s[{R_P}:{R_P+3}], s55 offen offset:{256*i}{PPOL}")
    if opt("egx", 0):
        a("s_cselect_b32 s57, 1, 0")
        a(f"s_cmp_lg_u32 s{S_PHASE}, 0")
        a(f"s_cbranch_scc1 {tag}_noeg")
        for i in range(2):
            a("v_mul_lo_u32 v218, v218, s97")
            a("v_add_u32 v218, 12345, v218")
            a("v_mul_hi_u32 v67, v218, s96")
            a("v_lshlrev_b32 v67, 5, v67")
            a(f"s_mov_b32 m0, {L_DUMMY}")
            a(f"buffer_load_dword v67, s[92:95], 0 offen{['', ' nt', ' sc1'][opt('egx', 0) - 1]} lds")
        a.label(f"{tag}_noeg")
        a("s_cmp_lg_u32 s57, 0")
    if PROF == 6:
        a("s_memtime s[62:63]")
    a(f"s_cbranch_scc1 {tag}_evt")
    a.label(f"{tag}_go")
    goto_next(a, rho, "f", p1, True)
    c = Asm()
    c.label(f"{tag}_evt")
    c("s_cmp_eq_u32 s56, -2")
    c(f"s_cbranch_scc1 {tag}_end")
    c(f"s_mov_b32 s{S_EVT}, -2")
    c("s_and_b32 s54, s2, 31")
    c("s_lshl_b32 s54, s54, 3")
    c(f"s_add_u32 s54, s54, s{S_WAVE}")
    c(f"s_mul_i32 s54, s54, {98*128}")
    c(f"s_add_u32 s54, s54, {XHALF + XBIAS}")
    c(f"v_lshlrev_b32 v67, 7, v{LANE}")
    c(f"s_mov_b32 m0, {L_DUMMY}")
    if opt("pfm", 64) < 64:
        c(f"s_bfm_b64 exec, {opt('pfm', 64)}, 0")
    c(f"buffer_load_dword v67, s[{R_XP}:{R_XP+3}], s54 offen lds")
    c("s_mov_b64 exec, -1")
    c(f"s_branch {tag}_go")
    c.label(f"{tag}_end")
    c(f"s_cmp_lg_u32 s{S_PHASE}, 0")
    c("s_cbranch_scc1 TAIL")
    if PROF not in (6, 7):
        stamp(c, 7, late=True)
    c(f"s_mov_b32 s{S_EVT}, -2")
    if opt("otlb", 0):
        c("v_mov_b32 v67, 0")
        c(f"s_mov_b32 m0, {L_DUMMY}")
        c(f"buffer_load_dword v67, s[{R_OUT}:{R_OUT+3}], 0 offen lds")
    if opt("eg", 0):
        c(f"s_sub_u32 s{S_EGN}, s{S_NEND}, {opt('eg', 0) + 1}")
        c(f"s_max_i32 s{S_EGN}, s{S_EGN}, 0")
    c(f"s_mov_b32 s{S_PHASE}, 1")
    c(f"s_mov_b32 s{S_POFF}, {P_HALF}")
    load_w(c, 1)
    c(f"s_branch {tag}_go")
    cold += c.lines


NREP = opt("nrep", 16)
WS_FLAG = 0x60000


def get_nonce(a, tag):
    a("s_mov_b32 s62, 0x100000")
    a("v_mov_b32 v111, 0")
    a.label(f"{tag}_l")
    a(f"buffer_load_dword v110, v111, s[{R_DBG}:{R_DBG+3}], 0 offen sc1")
    a("s_sub_u32 s62, s62, 1")
    a(f"s_cbranch_scc1 {tag}_d")
    a("s_waitcnt vmcnt(0)")
    a(f"v_readfirstlane_b32 s{S_TAG}, v110")
    a(f"s_cmp_eq_u32 s{S_TAG}, 0")
    a(f"s_cbranch_scc1 {tag}_l")
    a.label(f"{tag}_d")


def signal(a, which, tag, wave=0):
    a(f"s_cmp_lg_u32 s{S_WAVE}, {wave}")
    a(f"s_cbranch_scc1 {tag}")
    a(f"s_cmp_lg_u32 s{S_TAG}, 0")
    a(f"s_cbranch_scc1 {tag}_n_d")
    get_nonce(a, tag + "_n")
    a("v_and_b32 v111, 63, v0")
    a("v_lshlrev_b32 v111, 10, v111")
    a(f"v_mov_b32 v110, s{S_TAG}")
    a("s_lshl_b32 s62, s2, 2")
    a(f"s_add_u32 s62, s62, {which * NREP * 1024}")
    a(f"s_bfm_b64 exec, {NREP}, 0")
    a(f"buffer_store_dword v110, v111, s[{R_FLG}:{R_FLG+3}], s62 offen sc1")
    a("s_mov_b64 exec, -1")
    a.label(tag)


def flag_load(a, which, mask=None):
    if opt("repx", 0):
        a(f"s_lshr_b32 s62, s2, {8 - (NREP - 1).bit_length()}")
    else:
        a(f"s_and_b32 s62, s2, {NREP - 1}")
    a("s_lshl_b32 s62, s62, 10")
    a(f"s_add_u32 s62, s62, {which * NREP * 1024}")
    a(f"v_lshlrev_b32 v111, 4, v{LANE}")
    if mask:
        a(f"s_mov_b64 exec, {mask}")
    a(f"buffer_load_dwordx4 v[112:115], v111, s[{R_FLG}:{R_FLG+3}], s62 offen sc1")
    if mask:
        a("s_mov_b64 exec, -1")


def flag_test(a):
    a(f"v_xor_b32 v112, s{S_TAG}, v112")
    a(f"v_xor_b32 v113, s{S_TAG}, v113")
    a(f"v_xor_b32 v114, s{S_TAG}, v114")
    a(f"v_xor_b32 v115, s{S_TAG}, v115")
    a("v_or3_b32 v112, v112, v113, v114")
    a("v_or_b32 v112, v112, v115")
    a("v_cmp_ne_u32 vcc, 0, v112")
    a("s_cmp_eq_u64 vcc, 0")


def poll(a, which, tag):
    a(f"s_cmp_lg_u32 s{S_WAVE}, 0")
    a(f"s_cbranch_scc1 {tag}_d")
    a("s_mov_b32 s61, 0x100000")
    a.label(f"{tag}_l")
    flag_load(a, which)
    a("s_sub_u32 s61, s61, 1")
    a(f"s_cbranch_scc1 {tag}_d")
    a("s_waitcnt vmcnt(0)")
    flag_test(a)
    a(f"s_cbranch_scc1 {tag}_d")
    if opt("slp", 0):
        a(f"s_sleep {opt('slp', 0)}")
    a(f"s_branch {tag}_l")
    a.label(f"{tag}_d")


def part1(a):
    NT, ST = " nt", " sc1"
    D, SRC, RH, X, BA, RK, DL = 4, 12, 20, 32, 48, 56, 64
    a("s_load_dwordx8 s[4:11], s[0:1], 0")
    a("s_load_dwordx8 s[52:59], s[0:1], 32")
    a("s_load_dwordx4 s[12:15], s[0:1], 80")
    a("v_lshlrev_b32 v1, 4, v0")
    a("v_mul_u32_u24 v2, 24, v0")
    a("v_and_b32 v3, 63, v0")
    a("v_lshlrev_b32 v3, 4, v3")
    a("v_lshrrev_b32 v72, 6, v0")
    a(f"v_readfirstlane_b32 s{S_WAVE}, v72")
    a("s_mul_i32 s60, s2, 12800")
    a("s_mul_i32 s61, s2, 19200")
    a("s_mul_i32 s62, s2, 25600")
    a("s_mul_i32 s63, s2, 102400")
    a("s_mul_i32 s64, s2, 38400")
    a("s_lshl_b32 s65, s2, 10")
    a("s_mov_b32 s66, 8192")
    a("s_waitcnt lgkmcnt(0)")
    srd(a, R_DBG, 12, 0, 256)
    srd(a, R_FLG, 14, WS_FLAG, 2 * NREP * 1024)
    a(f"v_and_b32 v{LANE}, 63, v0")
    a(f"s_or_b32 s74, s2, s{S_WAVE}")
    a("s_cbranch_scc1 P1_notag")
    a("s_memrealtime s[74:75]")
    a("s_waitcnt lgkmcnt(0)")
    a("s_or_b32 s74, s74, 1")
    a("v_mov_b32 v110, s74")
    a("v_mov_b32 v111, 0")
    a("s_mov_b64 exec, 1")
    a(f"buffer_store_dword v110, v111, s[{R_DBG}:{R_DBG+3}], 0 offen sc1")
    a("s_mov_b64 exec, -1")
    a.label("P1_notag")
    a(f"s_mov_b32 s{S_TAG}, 0")
    a("s_cmp_ge_u32 s2, 250")
    a("s_cbranch_scc1 P1_prep")
    if opt("cpf", 2) & 8:
        a("s_getpc_b64 s[36:37]")
        a.label("P1_here2")
        a("s_mov_b32 s38, K2_end-P1_here2")
        a("s_mov_b32 s39, 0x20000")
        a("v_lshlrev_b32 v60, 7, v0")
        a("s_and_b32 s75, s2, 31")
        a("s_cbranch_scc1 P1_nocp")
        a("buffer_load_dword v61, v60, s[36:39], 0 offen")
        a.label("P1_nocp")
    srd(a, 16, 52, "s60", 12800)
    a(f"buffer_load_dwordx4 {vr(D,4)}, v1, s[16:19], 0 offen{NT}")
    a(f"buffer_load_dwordx4 {vr(D+4,4)}, v1, s[16:19], s66 offen{NT}")
    a("v_lshlrev_b32 v73, 2, v0")
    a("v_mov_b32 v74, 0")
    a(f"s_cmp_ge_u32 s{S_WAVE}, 4")
    a("s_cbranch_scc1 P1_nozero")
    a(f"v_add_u32 v73, {K1_HIST}, v73")
    a("ds_write_b32 v73, v74")
    a.label("P1_nozero")
    srd(a, 20, 10, "s60", 12800)
    srd(a, 24, 6, "s61", 19200)
    srd(a, 28, 4, "s62", 25600)
    srd(a, 32, 8, "s63", 102400)
    a("s_mov_b32 s69, 12288")
    a(f"s_lshl_b32 s67, s{S_WAVE}, 10")
    if not opt("nb1", 0):
        a("s_waitcnt lgkmcnt(0)")
        a("s_barrier")
    a(f"buffer_load_dwordx4 {vr(SRC,4)}, v1, s[20:23], 0 offen{NT}")
    a(f"buffer_load_dwordx4 {vr(SRC+4,4)}, v1, s[20:23], s66 offen{NT}")
    for r, so in ((0, "0"), (1, "s69")):
        a(f"buffer_load_dwordx4 {vr(RH+6*r,4)}, v2, s[24:27], {so} offen{NT}")
        a(f"buffer_load_dwordx2 {vr(RH+6*r+4,2)}, v2, s[24:27], {so} offen offset:16{NT}")
    XL = opt("xl", 0)

    def x_in():
        a("s_mov_b32 s68, 0")
        for k in range(4):
            a(f"buffer_load_dwordx4 {vr(X+4*k,4)}, v1, s[28:31], s68 offen{NT}")
            a("s_add_u32 s68, s68, 8192")

    if not XL:
        x_in()
    kb = [int(c, 16) for c in opt("kb", "d000")]

    def e_in(i):
        for k in range(sum(kb[:i]), sum(kb[:i + 1])):
            if k == 12:
                a(f"s_cmp_ge_u32 s{S_WAVE}, 4")
                a("s_cbranch_scc1 P1_noe13")
            a("s_mov_b32 m0, s67")
            a(f"buffer_load_dwordx4 v3, s[32:35], s67 offen{NT} lds")
            a("s_add_u32 s67, s67, 8192")
            if k == 12:
                a.label("P1_noe13")

    def n_e(i):
        return min(sum(kb[:i + 1]), 12)

    e_in(0)
    a("s_add_u32 s68, s64, %d" % WS_META)
    srd(a, 36, 14, "s68", 38400)
    a("s_add_u32 s68, s63, %d" % WS_EP)
    srd(a, 40, 14, "s68", 102400)
    srd(a, 44, 14, WS_XP, 2 * XHALF)
    srd(a, 48, 14, "s65", 1024)
    a("v_cmp_gt_u32 vcc, 288, v0")
    a("s_mov_b64 s[70:71], vcc")
    a("v_mov_b32 v75, 1")
    if opt("nb1", 0):
        a("s_waitcnt lgkmcnt(0)")
        a("s_barrier")
    a(f"s_waitcnt vmcnt({10 - 4 * XL + n_e(0)})")
    stamp(a, 2, k1=True)
    for i in range(8):
        if i == 4:
            a("s_mov_b64 exec, s[70:71]")
            a("s_cbranch_execz P1_skip_rank")
        a(f"v_mul_u32_u24 v{BA+i}, 21400, v{D+i}")
        a(f"v_lshrrev_b32 v{BA+i}, 20, v{BA+i}")
        a(f"v_mul_u32_u24 v{DL+i}, 49, v{BA+i}")
        a(f"v_sub_u32 v{DL+i}, v{D+i}, v{DL+i}")
        a(f"v_lshlrev_b32 v{BA+i}, 2, v{BA+i}")
        a(f"v_add_u32 v{BA+i}, {K1_HIST}, v{BA+i}")
        a(f"ds_add_rtn_u32 v{RK+i}, v{BA+i}, v75")
    a.label("P1_skip_rank")
    a("s_mov_b64 exec, -1")
    if XL:
        x_in()
    a("s_waitcnt lgkmcnt(0)")
    a("s_barrier")
    a(f"s_cmp_lg_u32 s{S_WAVE}, 0")
    a("s_cbranch_scc1 P1_noscan")
    a(f"v_add_u32 v73, {K1_HIST}, v3")
    a("ds_read_b128 v[76:79], v73")
    a("s_waitcnt lgkmcnt(0)")
    a("v_add_u32 v81, v76, v77")
    a("v_add_u32 v82, v81, v78")
    a("v_add_u32 v83, v82, v79")
    a("v_mov_b32 v84, v83")
    scan64(a, 84)
    a("v_sub_u32 v84, v84, v83")
    a("v_add_u32 v85, v84, v76")
    a("v_add_u32 v86, v84, v81")
    a("v_add_u32 v87, v84, v82")
    a("ds_write_b128 v73, v[84:87]")
    for i in range(4):
        a(f"v_lshl_or_b32 v{88+i}, v{76+i}, 16, v{84+i}")
    a(f"buffer_store_dwordx4 v[88:91], v3, s[48:51], 0 offen{ST}")
    a("s_waitcnt lgkmcnt(0)")
    a.label("P1_noscan")
    e_in(1)
    a("v_lshrrev_b32 v92, 5, v0")
    a("s_mul_i32 s69, s2, 50")
    a("v_add_u32 v92, s69, v92")
    a("v_lshlrev_b32 v92, 8, v92")
    a("v_bfe_u32 v93, v0, 3, 2")
    a("v_lshl_add_u32 v92, v93, 6, v92")
    a("v_and_b32 v93, 3, v0")
    a("v_lshl_add_u32 v92, v93, 4, v92")
    a("v_bfe_u32 v93, v0, 2, 1")
    a(f"v_mul_u32_u24 v93, {XHALF}, v93")
    a("v_add_u32 v92, v92, v93")
    a("v_cmp_gt_u32 vcc, 64, v0")
    a("v_mov_b32 v94, 0x80000000")
    a("v_cndmask_b32 v93, v94, v92, vcc")
    a("s_mov_b32 s72, 0x80000000")
    a("s_mov_b32 s73, 0xffff0000")
    a("v_lshlrev_b32 v95, 2, v0")
    a("s_barrier")
    for r in range(2):
        if r == 1:
            a("s_mov_b64 exec, s[70:71]")
            a("s_cbranch_execz P1_skip_scatter")
        for i in range(4):
            a(f"ds_read_b32 v{BA+4*r+i}, v{BA+4*r+i}")
        if r == 0:
            a(f"s_waitcnt vmcnt({4 + n_e(1)})")
        R = RH + 6 * r
        for i in range(4):
            a(f"v_lshl_or_b32 v{SRC+4*r+i}, v{SRC+4*r+i}, 8, v{DL+4*r+i}")
            a(f"v_or_b32 v{SRC+4*r+i}, s72, v{SRC+4*r+i}")
        a(f"v_lshlrev_b32 v76, 16, v{R+1}")
        a(f"v_alignbit_b32 v77, v{R+2}, v{R+1}, 16")
        a(f"v_and_b32 v78, s73, v{R+2}")
        a(f"v_lshlrev_b32 v79, 16, v{R+4}")
        a(f"v_alignbit_b32 v80, v{R+5}, v{R+4}, 16")
        a(f"v_and_b32 v81, s73, v{R+5}")
        w1 = [R, 77, R + 3, 80]
        w2 = [76, 78, 79, 81]
        a("s_waitcnt lgkmcnt(0)")
        for i in range(4):
            b, k = BA + 4 * r + i, RK + 4 * r + i
            a(f"v_add_u32 v{k}, v{k}, v{b}")
            a(f"v_mul_u32_u24 v{b}, 12, v{k}")
            a(f"v_add_u32 v{b}, {K1_MS}, v{b}")
            a(f"ds_write2_b32 v{b}, v{SRC+4*r+i}, v{w1[i]} offset0:0 offset1:1")
            a(f"ds_write_b32 v{b}, v{w2[i]} offset:8")
            a(f"v_lshlrev_b32 v{k}, 1, v{k}")
            a(f"v_add_u32 v{k}, {K1_INV}, v{k}")
            a(f"v_add_u32 v{82+i}, {2048*r + i}, v95")
            a(f"ds_write_b16 v{k}, v{82+i}")
    a.label("P1_skip_scatter")
    a("s_mov_b64 exec, -1")
    a(f"s_waitcnt vmcnt({n_e(1) - XL * n_e(0)})")
    a("s_mov_b32 s68, 0")
    for k in range(4):
        a(f"buffer_store_dwordx4 {vr(X+4*k,4)}, v{92 if k < 3 else 93}, s[44:47], s68 offen{ST}")
        a("s_add_u32 s68, s68, 4096")
    e_in(2)
    a("s_waitcnt lgkmcnt(0)")
    a("s_barrier")
    stamp(a, 4, k1=True)
    a(f"v_add_u32 v73, {K1_MS}, v1")
    for k in range(5):
        a(f"ds_read_b128 {vr(4+4*k,4)}, v73 offset:{8192*k}")
    a("v_and_b32 v74, 0x1fe, v0")
    a(f"v_add_u32 v74, {K1_INV}, v74")
    a("s_mov_b32 s68, 0")
    for k in range(5):
        a(f"s_waitcnt lgkmcnt({4-k})")
        a(f"buffer_store_dwordx4 {vr(4+4*k,4)}, v1, s[36:39], s68 offen{ST}")
        a("s_add_u32 s68, s68, 8192")
    for k in range(13):
        a(f"ds_read_u16 v{48+k}, v74 offset:{512*k}")
    a("v_mov_b32 v111, 0")
    a(f"buffer_load_dword v110, v111, s[{R_DBG}:{R_DBG+3}], 0 offen sc1")
    e_in(3)
    a("v_and_b32 v75, 1, v0")
    a("v_lshlrev_b32 v75, 4, v75")
    a("s_waitcnt lgkmcnt(0)")
    for k in range(13):
        a(f"v_lshl_add_u32 v{48+k}, v{48+k}, 5, v75")
    if opt("siga", 0) == 3:
        a(f"s_waitcnt vmcnt({12 - n_e(2)})")
        a(f"v_readfirstlane_b32 s{S_TAG}, v110")
        a("s_barrier")
        stamp(a, 6, k1=True)
        signal(a, 0, "P1_sa", wave=7)
    a("s_waitcnt vmcnt(0)")
    if opt("siga", 0) == 0:
        a(f"v_readfirstlane_b32 s{S_TAG}, v110")
    a("s_barrier")
    if opt("siga", 0) == 0:
        stamp(a, 6, k1=True)
        signal(a, 0, "P1_sa", wave=7)
    for k in range(12):
        a(f"ds_read_b128 {vr(128+4*k,4)}, v{48+k}")
    a("s_mov_b32 s68, 0")
    for k in range(12):
        a(f"s_waitcnt lgkmcnt({11-k})")
        a(f"buffer_store_dwordx4 {vr(128+4*k,4)}, v1, s[40:43], s68 offen{ST}")
        a("s_add_u32 s68, s68, 8192")
    a(f"s_cmp_ge_u32 s{S_WAVE}, 4")
    a("s_cbranch_scc1 P1_fin" if opt("siga", 0) in (0, 3) else "s_cbranch_scc1 P1_fin2")
    a("ds_read_b128 v[176:179], v60")
    a("s_waitcnt lgkmcnt(0)")
    a(f"buffer_store_dwordx4 v[176:179], v1, s[40:43], s68 offen{ST}")
    a("s_branch P1_fin" if opt("siga", 0) in (0, 3) else "s_branch P1_fin2")

    if opt("siga", 0) == 1:
        a.label("P1_fin2")
        signal(a, 0, "P1_sa")
        a(f"s_cmp_lg_u32 s{S_WAVE}, 0")
        a("s_cbranch_scc1 P1_fin")
        a("s_waitcnt vmcnt(1)")
        a("s_branch P1_fin3")
    if opt("siga", 0) == 2:
        a.label("P1_fin2")
        a("s_waitcnt vmcnt(0)")
        a("s_barrier")
        stamp(a, 8, k1=True)
        signal(a, 0, "P1_sa")
        a("s_branch P1_fin4")
    a.label("P1_prep")
    if opt("cpf", 2) & 2:
        a("s_getpc_b64 s[36:37]")
        a.label("P1_here")
        a("s_mov_b32 s38, K2_end-P1_here")
        a("s_mov_b32 s39, 0x20000")
        a("v_lshlrev_b32 v60, 7, v0")
        a("buffer_load_dword v61, v60, s[36:39], 0 offen")
    a("s_cmp_eq_u32 s2, 255")
    a("s_cbranch_scc1 P1_prepd")
    srd(a, 16, 54, 0, 16 * 320 * 2)
    srd(a, 20, 56, 0, 128 * 64 * 2)
    srd(a, 24, 58, 0, 192 * 64 * 2)
    srd(a, 28, 14, WS_WTAB, 20480)
    srd(a, 32, 14, WS_WSI, 40960)
    a("s_sub_u32 s60, s2, 250")
    a("s_lshl_b32 s60, s60, 10")
    for it in range(2):
        prep_tables(a, ST)
        a("s_add_u32 s60, s60, 512")
    a.label("P1_prepd")
    a("s_waitcnt vmcnt(0)")
    a("s_barrier")
    signal(a, 0, "P1_sa2")
    a.label("P1_fin")
    a("s_waitcnt vmcnt(0)")
    a.label("P1_fin3")
    a("s_barrier")
    stamp(a, 8, k1=True)
    a.label("P1_fin4")
    signal(a, 1, "P1_sb")


BAL = opt("bal", 1)


def meta_set_addresses(a):
    a(f"v_lshrrev_b32 v164, 4, v{LANE}")
    a("v_lshlrev_b32 v164, 2, v164")
    a(f"v_bfe_u32 v165, v{LANE}, 2, 1")
    a("v_lshl_add_u32 v160, v165, 5, v164")
    a(f"v_bfe_u32 v165, v{LANE}, 1, 1")
    a("v_lshl_add_u32 v160, v165, 4, v160")
    a("v_lshl_add_u32 v161, v165, 5, v164")
    a(f"v_and_b32 v165, 1, v{LANE}")
    a("v_lshl_add_u32 v160, v165, 1, v160")
    a("v_lshl_add_u32 v161, v165, 4, v161")
    a(f"v_bfe_u32 v165, v{LANE}, 3, 1")
    a("v_add_u32 v160, v160, v165")
    a(f"v_bfe_u32 v165, v{LANE}, 2, 2")
    a("v_add_u32 v161, v161, v165")
    a(f"v_mov_b32 v162, {L_SB}")
    a(f"v_mov_b32 v163, {L_SA}")
    a("v_lshl_add_u32 v160, v160, 2, v163")
    a("v_lshl_add_u32 v161, v161, 3, v162")


def balanced_partition(a):
    L = LANE
    a("v_add_u32 v14, 31, v14")
    a("v_lshrrev_b32 v14, 5, v14")
    a("v_max_u32 v14, 1, v14")
    a(f"v_cmp_gt_u32 s[60:61], s{S_NN}, v{L}")
    a("v_cndmask_b32 v14, 0, v14, s[60:61]")
    a("v_cmp_lt_u32 vcc, 2, v14")
    a("s_andn2_b64 s[60:61], s[60:61], vcc")
    a("s_bcnt1_i32_b64 s62, vcc")
    a("s_bcnt1_i32_b64 s63, s[60:61]")
    a("v_mbcnt_lo_u32_b32 v32, vcc_lo, 0")
    a("v_mbcnt_hi_u32_b32 v32, vcc_hi, v32")
    a("v_mov_b32 v33, s62")
    a("v_mbcnt_lo_u32_b32 v33, s60, v33")
    a("v_mbcnt_hi_u32_b32 v33, s61, v33")
    a("v_cndmask_b32 v32, v33, v32, vcc")
    a(f"v_cmp_gt_u32 vcc, s{S_NN}, v{L}")
    a(f"v_cndmask_b32 v32, v{L}, v32, vcc")
    a("v_lshlrev_b32 v32, 2, v32")
    a(f"v_lshl_or_b32 v33, v{L}, 8, v14")
    a("ds_permute_b32 v34, v32, v33")
    a(f"v_mad_u32_u24 v36, v{L}, s{S_NN}, 7")
    a("v_lshrrev_b32 v36, 3, v36")
    a("s_mul_i32 s58, s62, 10")
    a(f"s_mul_i32 s59, s{S_NN}, 26")
    a("s_add_u32 s58, s58, s59")
    a(f"v_mad_u32_u24 v37, v{L}, s58, 40")
    a("v_mul_u32_u24 v40, 208, v36")
    a("v_sub_u32 v37, v37, v40")
    a("v_max_i32 v37, 0, v37")
    a("v_mul_u32_u24 v37, 3277, v37")
    a("v_lshrrev_b32 v37, 18, v37")
    a("v_subrev_u32 v40, s63, v36")
    a("v_max_i32 v37, v37, v40")
    a("v_min_u32 v37, s62, v37")
    a("v_min_u32 v37, v37, v36")
    for sh in (1, 2, 4, 8):
        a(f"v_max_u32_dpp v37, v37, v37 row_shr:{sh} row_mask:0xf bank_mask:0xf bound_ctrl:1")
    a("v_sub_u32 v40, v36, v37")
    for sh in (1, 2, 4, 8):
        a(f"v_max_u32_dpp v40, v40, v40 row_shr:{sh} row_mask:0xf bank_mask:0xf bound_ctrl:1")
    a("v_sub_u32 v37, v36, v40")
    a("v_lshl_or_b32 v37, v36, 8, v37")
    a(f"s_cmp_eq_u32 s{S_NN}, {NPB}")
    a(f"s_mov_b32 s58, {-(-8*65536 // (N - 255*NPB))}")
    a(f"s_cmov_b32 s58, {-(-8*65536 // NPB)}")
    a(f"v_mul_u32_u24 v40, s58, v{L}")
    a("v_lshrrev_b32 v40, 16, v40")
    a("v_min_u32 v40, 7, v40")
    a("v_lshlrev_b32 v40, 2, v40")
    a("ds_bpermute_b32 v41, v40, v37")
    a("ds_bpermute_b32 v42, v40, v37 offset:4")
    a(f"s_and_b32 s60, s{S_WAVE}, 3")
    a("s_lshl_b32 s60, s60, 1")
    a(f"s_lshr_b32 s61, s{S_WAVE}, 2")
    a("s_add_u32 s59, s60, s61")
    a(f"s_mul_i32 s60, s59, s{S_NN}")
    a(f"s_add_u32 s61, s60, s{S_NN}")
    a("s_add_u32 s60, s60, 7")
    a("s_add_u32 s61, s61, 7")
    a(f"s_lshr_b32 s{S_NODE0}, s60, 3")
    a(f"s_lshr_b32 s{S_NEND}, s61, 3")
    a(f"s_sub_u32 s{S_NNW}, s{S_NEND}, s{S_NODE0}")
    a("s_waitcnt lgkmcnt(0)")
    a("v_lshrrev_b32 v43, 8, v41")
    PP = L
    if opt("mir", 1):
        PP = 33
        a("v_lshrrev_b32 v33, 8, v42")
        a("v_add3_u32 v33, v33, v43, -1")
        a(f"v_sub_u32 v33, v33, v{L}")
        a("v_and_b32 v40, 4, v40")
        a("v_cmp_eq_u32 vcc, 0, v40")
        a(f"v_cndmask_b32 v33, v33, v{L}, vcc")
    a("v_and_b32 v41, 0xff, v41")
    a("v_and_b32 v42, 0xff, v42")
    a(f"v_sub_u32 v43, v{PP}, v43")
    a("v_add_u32 v43, v43, v41")
    a(f"v_sub_u32 v40, v{PP}, v42")
    a("v_add_u32 v40, s62, v40")
    a("v_cmp_lt_u32 vcc, v43, v42")
    a("v_cndmask_b32 v40, v40, v43, vcc")
    a(f"v_cmp_gt_u32 vcc, s{S_NN}, v{L}")
    a(f"v_cndmask_b32 v40, v{L}, v40, vcc")
    a("v_lshlrev_b32 v40, 2, v40")
    a("ds_bpermute_b32 v41, v40, v34")
    a("s_waitcnt lgkmcnt(0)")
    a("v_and_b32 v14, 0xff, v41")
    a(f"v_subrev_u32 v{NST}, 1, v14")
    a(f"v_lshrrev_b32 v{NID}, 8, v41")
    a(f"v_lshlrev_b32 v41, 2, v{NID}")
    a("v_mov_b32 v19, v14")
    scan64(a, 19)
    a("v_sub_u32 v42, v19, v14")
    a("ds_permute_b32 v18, v41, v42")
    a("v_min_u32 v36, 63, v36")
    a("v_lshlrev_b32 v36, 2, v36")
    a("ds_bpermute_b32 v43, v36, v42")
    a("v_readlane_b32 s58, v19, 63")
    a("s_waitcnt lgkmcnt(0)")
    a("v_mov_b32 v40, v43")
    a("v_sub_u32_dpp v40, v43, v43 row_shl:1 row_mask:0xf bank_mask:0xf")
    a(f"v_readlane_b32 s{S_STEP0}, v43, s59")
    a(f"v_cmp_lt_u32 vcc, {MAXWSTEPS}, v40")
    a(f"v_readlane_b32 s{S_NS}, v40, s59")
    a("s_and_b32 s60, vcc_lo, 0xff")


def kernel2():
    a = Asm()
    a("s_cmp_ge_u32 s2, 256")
    a("s_cbranch_scc1 K2_end")
    if opt("xcdmap", 1) == 2:
        a("s_load_dwordx2 s[54:55], s[0:1], 80")
        a("s_getreg_b32 s58, hwreg(HW_REG_XCC_ID, 0, 3)")
        a("v_lshrrev_b32 v1, 6, v0")
        a("v_readfirstlane_b32 s3, v1")
        a(f"v_mov_b32 v3, {L_WSUM}")
        a("s_cmp_lg_u32 s3, 0")
        a("s_cbranch_scc1 CLAIMED")
        a("s_waitcnt lgkmcnt(0)")
        srd(a, 4, 54, 0, 256)
        a("s_mov_b64 exec, 1")
        a.label("CLAIM")
        a("v_mov_b32 v1, 1")
        a("s_lshl_b32 s59, s58, 5")
        a("v_mov_b32 v2, s59")
        a("buffer_atomic_add v1, v2, s[4:7], 0 offen sc0")
        a("s_add_u32 s58, s58, 1")
        a("s_and_b32 s58, s58, 7")
        a("s_waitcnt vmcnt(0)")
        a("v_readfirstlane_b32 s60, v1")
        a("s_cmp_ge_u32 s60, 32")
        a("s_cbranch_scc1 CLAIM")
        a("v_add_u32 v1, v1, v2")
        a("ds_write_b32 v3, v1")
        a("s_mov_b64 exec, -1")
        a.label("CLAIMED")
        a("s_waitcnt lgkmcnt(0)")
        a("s_barrier")
        a("ds_read_b32 v1, v3")
        a("s_waitcnt lgkmcnt(0)")
        a("v_readfirstlane_b32 s2, v1")
        a("s_and_b32 s2, s2, 255")
        a("s_barrier")
    if opt("xcdmap", 1) == 1:
        a("s_and_b32 s3, s2, 7")
        a("s_lshl_b32 s3, s3, 5")
        a("s_lshr_b32 s2, s2, 3")
        a("s_or_b32 s2, s2, s3")
    a(f"v_mov_b32 v{TID}, v0")
    a(f"s_mov_b32 s{S_R0}, 0")
    a(f"s_mov_b32 s{S_CAP}, {CAP}")
    stamp(a, 0, True)
    stamp(a, 1)
    if FUSED:
        part1(a)
        a(f"s_mov_b32 s{S_R0}, 0")
        a(f"s_mov_b32 s{S_CAP}, {CAP}")
        a("s_load_dwordx2 s[56:57], s[0:1], 88")
        a("s_load_dwordx2 s[54:55], s[0:1], 72")
        poll(a, 0, "POLL_A")
        a(f"v_mov_b32 v110, {L_DUMMY}")
        a(f"v_mov_b32 v111, s{S_TAG}")
        a(f"s_cmp_lg_u32 s{S_WAVE}, 0")
        a("s_cbranch_scc1 TAG_W")
        a("ds_write_b32 v110, v111")
        a("s_waitcnt lgkmcnt(0)")
        a.label("TAG_W")
        a("s_barrier")
        a("ds_read_b32 v111, v110")
        a("s_waitcnt lgkmcnt(0)")
        a(f"v_readfirstlane_b32 s{S_TAG}, v111")
        a("s_branch ROUND0")
    a.label("ROUND")
    a("s_load_dwordx2 s[56:57], s[0:1], 88")
    a("s_load_dwordx2 s[54:55], s[0:1], 72")
    a.label("ROUND0")
    a(f"v_and_b32 v2, 255, v{TID}")
    a("v_lshlrev_b32 v3, 10, v2")
    a(f"v_and_b32 v{LANE}, 63, v{TID}")
    a(f"v_lshrrev_b32 v1, 6, v{TID}")
    a(f"v_readfirstlane_b32 s{S_WAVE}, v1")
    a("s_lshl_b32 s58, s2, 2")
    a("s_cmp_eq_u32 s2, 255")
    a(f"s_cselect_b32 s{S_NN}, {N - 255*NPB}, {NPB}")
    a("s_waitcnt lgkmcnt(0)")
    srd(a, R_TB, 56, WS_TAB, W * 1024)
    DSH = opt("dsh", 1)
    if DSH:
        a(f"s_cmp_ge_u32 s{S_WAVE}, 4")
        a("s_cbranch_scc1 NODESC")
    a(f"buffer_load_dword v20, v3, s[{R_TB}:{R_TB+3}], s58 offen")
    if DSH:
        a.label("NODESC")
    if opt("cpf", 2) & 1:
        a("s_getpc_b64 s[60:61]")
        a.label("K2_here")
        a("s_mov_b32 s62, K2_end-K2_here")
        a("s_mov_b32 s63, 0x20000")
        a(f"v_lshlrev_b32 v21, 7, v{TID}")
        a("buffer_load_dword v75, v21, s[60:63], 0 offen")
    if PROF:
        a("s_mov_b64 s[98:99], s[56:57]")
    if opt("egx", 0):
        a("s_load_dwordx2 s[92:93], s[0:1], 16")
        a("s_mov_b32 s94, 25600000")
        a("s_mov_b32 s95, 0x20000")
        a("s_mov_b32 s96, 800000")
        a("s_mov_b32 s97, 1664525")
        a(f"v_lshrrev_b32 v218, 1, v{TID}")
        a("s_lshl_b32 s59, s2, 8")
        a("v_add_u32 v218, s59, v218")
        a("s_mov_b32 s59, 0x9E3779B1")
        a("v_mul_lo_u32 v218, v218, s59")
        a("s_waitcnt lgkmcnt(0)")
    srd(a, R_W, 56, WS_WTAB, 0x12000)
    srd(a, R_MT, 56, WS_META, E * 12)
    srd(a, R_EP, 56, WS_EP, E * 32)
    srd(a, R_XP, 56, WS_XP - XBIAS, 2 * XHALF + XBIAS)
    if opt("pf00", 0):
        a("s_and_b32 s59, s2, 31")
        a("s_lshl_b32 s59, s59, 3")
        a(f"s_add_u32 s59, s59, s{S_WAVE}")
        a(f"s_mul_i32 s59, s59, {98*128}")
        a(f"s_add_u32 s59, s59, {XBIAS}")
        a(f"v_lshlrev_b32 v76, 7, v{LANE}")
        if opt("pf00", 0) < 64:
            a(f"s_bfm_b64 exec, {opt('pf00', 0)}, 0")
        a(f"buffer_load_dword v77, v76, s[{R_XP}:{R_XP+3}], s59 offen")
        a("s_mov_b64 exec, -1")
    a(f"s_mul_i32 s59, s2, {P_WG}")
    a(f"s_add_u32 s59, s59, {WS_P}")
    srd(a, R_P, 56, "s59", 2 * P_HALF)
    a("s_lshl_b32 s59, s2, 16")
    a(f"s_add_u32 s59, s59, {WS_ACC}")
    srd(a, R_ACC, 56, "s59", 65536)
    a(f"s_mul_i32 s59, s2, {NPB*512}")
    a(f"s_lshl_b32 s60, s{S_NN}, 9")
    srd(a, R_OUT, 54, "s59", "s60")
    a(f"s_mul_i32 s{S_RB}, s{S_WAVE}, {RING_W}")
    a(f"s_add_u32 s{S_RB}, s{S_RB}, {L_RING}")
    a(f"s_mov_b32 s{S_HI}, 0xffff0000")
    a(f"s_mov_b32 s{S_SGN}, 0x80008000")
    L = LANE
    a(f"v_bfe_u32 v3, v{L}, 4, 1")
    a(f"v_and_b32 v4, 7, v{L}")
    a("v_lshlrev_b32 v5, 1, v3")
    a("v_xor_b32 v4, v4, v5")
    a("v_lshlrev_b32 v4, 4, v4")
    a(f"v_add_u32 v{XOFF}, {0x80000000 + XBIAS}, v4")
    a(f"v_add_u32 v{XOFF+1}, {0x80000000 + XBIAS - 1088}, v4")
    a(f"v_and_b32 v4, 3, v{L}")
    a(f"v_lshlrev_b32 v{QQ8}, 3, v4")
    a(f"v_bfe_u32 v5, v{L}, 3, 1")
    a("v_mul_u32_u24 v5, 1088, v5")
    a(f"v_lshrrev_b32 v6, 4, v{L}")
    a("v_lshl_add_u32 v5, v6, 8, v5")
    a(f"v_bfe_u32 v7, v{L}, 2, 1")
    a("v_lshl_add_u32 v5, v7, 7, v5")
    a(f"v_add_u32 v5, v5, v{QQ8}")
    a(f"v_add_u32 v5, s{S_RB}, v5")
    a("v_lshlrev_b32 v7, 5, v3")
    a(f"v_add_u32 v{BAE}, v5, v7")
    a(f"v_sub_u32 v{BAO}, v5, v7")
    a(f"v_and_b32 v7, 15, v{L}")
    a("v_lshlrev_b32 v8, 2, v7")
    a(f"v_lshl_add_u32 v{POFF}, v6, 6, v8")
    a("v_and_b32 v8, 1, v7")
    a("v_lshlrev_b32 v8, 4, v8")
    a("v_mov_b32 v9, 0x3f80")
    a("v_lshlrev_b32 v8, v8, v9")
    a("v_and_b32 v9, 14, v7")
    for i in range(4):
        a(f"v_cmp_eq_u32 vcc, {4*i}, v9")
        a(f"v_cndmask_b32 v{SEL+i}, 0, v8, vcc")
    a(f"v_lshlrev_b32 v6, 2, v{TID}")
    a("v_mov_b32 v7, 0")
    a(f"v_add_u32 v8, {L_MISC}, v6")
    a(f"v_cmp_gt_u32 vcc, 68, v{TID}")
    a("s_and_saveexec_b64 s[58:59], vcc")
    a("ds_write_b32 v8, v7")
    a(f"v_cmp_gt_u32 vcc, 8, v{TID}")
    a("s_and_b64 exec, exec, vcc")
    a("ds_write_b32 v6, v7")
    a("s_mov_b64 exec, -1")
    a(f"v_lshlrev_b32 v13, 4, v{TID}")
    a(f"v_add_u32 v13, {L_SA}, v13")
    for i in range(4):
        a(f"v_mov_b32 v{28+i}, 0")
    nz = MAXSTEPS * 384 // 16
    for k in range(6):
        a(f"ds_write_b128 v13, v[28:31] offset:{8192*k}")
    a(f"v_cmp_gt_u32 vcc, {nz - 6*512}, v{TID}")
    a("s_mov_b64 exec, vcc")
    a(f"ds_write_b128 v13, v[28:31] offset:{8192*6}")
    a("s_mov_b64 exec, -1")
    a("v_mul_u32_u24 v14, 3200, v2")
    a(f"v_lshrrev_b32 v15, 8, v{TID}")
    a("v_mov_b32 v16, 0x80000000")
    a(f"s_and_b32 s59, s{S_WAVE}, 3")
    a("v_lshlrev_b32 v22, 3, v2")
    a("v_add_u32 v22, 1024, v22")
    if DSH:
        a(f"s_cmp_ge_u32 s{S_WAVE}, 4")
        a("s_cbranch_scc1 NOSCAN")
    a(f"s_waitcnt vmcnt({(opt('cpf', 2) & 1) + (opt('pf00', 0) > 0)})")
    stamp(a, 2)
    a("v_lshrrev_b32 v9, 16, v20")
    a("v_mov_b32 v21, v9")
    scan64(a, 21)
    a("v_readlane_b32 s58, v21, 63")
    a("s_lshl_b32 s60, s59, 2")
    a(f"s_add_u32 s60, s60, {L_WSUM}")
    a("v_mov_b32 v12, s60")
    a("v_mov_b32 v13, s58")
    a("ds_write_b32 v12, v13")
    a("v_sub_u32 v21, v21, v9")
    if DSH:
        a("ds_write_b64 v22, v[20:21]")
        a.label("NOSCAN")
    a(f"v_mov_b32 v12, {L_WSUM}")
    a("s_waitcnt lgkmcnt(0)")
    a("s_barrier")
    a("ds_read_b128 v[16:19], v12")
    if DSH:
        a("ds_read_b64 v[20:21], v22")
    a("s_waitcnt lgkmcnt(0)")
    a("v_lshrrev_b32 v9, 16, v20")
    a("v_and_b32 v10, 0xffff, v20")
    a("v_add_u32 v14, v14, v10")
    a("v_mov_b32 v11, v21")
    for i in range(4):
        a(f"v_readfirstlane_b32 s{60+i}, v{16+i}")
    a("s_add_u32 s61, s61, s60")
    a("s_add_u32 s62, s62, s61")
    a(f"s_add_u32 s{S_T}, s63, s62")
    a("s_cmp_eq_u32 s59, 0")
    a("s_cselect_b32 s58, 0, s60")
    a("s_cmp_eq_u32 s59, 2")
    a("s_cselect_b32 s58, s61, s58")
    a("s_cmp_eq_u32 s59, 3")
    a("s_cselect_b32 s58, s62, s58")
    a("v_mov_b32 v16, 0x80000000")
    a(f"s_sub_u32 s{S_LEN}, s{S_T}, s{S_R0}")
    a(f"s_cmp_le_u32 s{S_LEN}, s{S_CAP}")
    a(f"s_cselect_b32 s{S_LAST}, 1, 0")
    a(f"s_min_u32 s{S_LEN}, s{S_LEN}, s{S_CAP}")
    a(f"s_sub_u32 s58, s58, s{S_R0}")
    a("v_add_u32 v11, s58, v11")
    a("v_sub_u32 v12, 0, v11")
    a("v_max_i32 v12, 0, v12")
    a(f"v_sub_u32 v13, s{S_LEN}, v11")
    a("v_min_i32 v13, v13, v9")
    a("v_add_u32 v12, v12, v15")
    a("v_sub_u32 v9, v13, v12")
    a("v_add_u32 v14, v14, v12")
    a("v_add_u32 v11, v11, v12")
    a("v_lshlrev_b32 v12, 2, v11")
    a(f"v_add_u32 v12, {L_MAP}, v12")
    a.label("MAPL")
    for i in range(16):
        a(f"v_cmp_lt_i32 vcc, {2*i}, v9")
        if i:
            a("v_add_u32 v14, 2, v14")
        a("s_and_b64 exec, exec, vcc")
        if i % 4 == 0:
            a("s_cbranch_execz MAPD")
        a(f"ds_write_b32 v12, v14 offset:{8*i}")
    a("v_add_u32 v14, 2, v14")
    a("v_add_u32 v12, 128, v12")
    a("v_subrev_u32 v9, 32, v9")
    a("s_branch MAPL")
    a.label("MAPD")
    a("s_mov_b64 exec, -1")
    a(f"v_add_u32 v12, {L_MAP}, v6")
    a(f"v_lshrrev_b32 v13, 1, v{LANE}")
    a(f"s_lshl_b32 s58, s{S_WAVE}, 5")
    a("v_add_u32 v13, s58, v13")
    a(f"v_lshl_add_u32 v14, v13, 2, v7")
    a(f"v_add_u32 v14, {L_MAP}, v14")
    a(f"v_and_b32 v15, 1, v{LANE}")
    a("v_lshlrev_b32 v15, 4, v15")
    a("s_waitcnt lgkmcnt(0)")
    a("s_barrier")
    stamp(a, 3)
    for k in range(7):
        a(f"ds_read_b32 v{20+k}, v12 offset:{2048*k}")
    for k in range(14):
        a(f"ds_read_b32 v{28+k}, v14 offset:{1024*k}")
    MREC = 44
    EPOL = ["", " sc1", " nt"][opt("epol", 1)]
    for k in range(7):
        a(f"v_add_u32 v17, {512*k}, v{TID}")
        a(f"v_cmp_gt_u32 s[{S_MASK+2*k}:{S_MASK+2*k+1}], s{S_LEN}, v17")
        a(f"s_waitcnt lgkmcnt({min(15, 20-k)})")
        a(f"v_mul_u32_u24 v{20+k}, 12, v{20+k}")
        a(f"v_cndmask_b32 v{20+k}, v16, v{20+k}, s[{S_MASK+2*k}:{S_MASK+2*k+1}]")
    if PROF == 2:
        stamp(a, 7)
    for k in range(7):
        a(f"buffer_load_dwordx3 {vr(MREC+4*k,3)}, v{20+k}, s[{R_MT}:{R_MT+3}], 0 offen{EPOL}")
    a("s_waitcnt lgkmcnt(0)")
    a(f"s_lshl_b32 s{S_EM0}, s{S_WAVE}, 10")
    a(f"s_add_u32 s{S_EM0}, s{S_EM0}, {L_E + 32}")
    EREG = 128
    for k in range(14):
        a(f"v_cmp_gt_u32 vcc, s{S_LEN}, v13")
        a(f"v_lshl_add_u32 v{28+k}, v{28+k}, 5, v15")
        a("v_add_u32 v13, 256, v13")
        a(f"v_cndmask_b32 v{EREG+k}, v16, v{28+k}, vcc")
    eb = [int(c, 16) for c in opt("eb", "0554" if FUSED else "3551")]

    assert sum(eb[:1]) <= 10

    def e_batch(i, tag=""):
        for k in range(sum(eb[:i]), sum(eb[:i + 1])):
            if k == 13:
                a(f"s_cmp_ge_u32 s{S_WAVE}, 2")
                a("s_cbranch_scc1 NOE14")
            a(f"s_mov_b32 m0, s{S_EM0}")
            a(f"s_add_u32 s{S_EM0}, s{S_EM0}, 8192")
            a(f"buffer_load_dwordx4 v{EREG+k}, s[{R_EP}:{R_EP+3}], 0 offen{EPOL} lds")
            if k == 13:
                a.label("NOE14")

    if PROF == 2:
        stamp(a, 8)
    e_batch(0)
    FK = opt("fk", 0)
    ONEW = opt("onew", 0)
    if FUSED and FK == 0:
        if ONEW:
            a(f"s_cmp_eq_u32 s{S_WAVE}, 0")
            a("s_cselect_b64 s[60:61], -1, 1")
            flag_load(a, 1, "s[60:61]")
        else:
            flag_load(a, 1)
    if PROF == 2:
        stamp(a, 9)
    a("v_mov_b32 v17, 1")
    for k in range(7):
        a(f"s_waitcnt vmcnt({min(eb[0], 13) + 6 - k + (FUSED and k >= FK)})")
        if FUSED and FK and k == FK - 1:
            flag_load(a, 1)
        if PROF == 2 and k in (0, 6):
            stamp(a, 10 if k == 0 else 11)
        a(f"v_and_b32 v{20+k}, 0xff, v{MREC+4*k}")
        a(f"v_lshlrev_b32 v{20+k}, 2, v{20+k}")
        a(f"v_add_u32 v18, {L_CNT}, v{20+k}")
        a(f"s_mov_b64 exec, s[{S_MASK+2*k}:{S_MASK+2*k+1}]")
        a(f"ds_add_rtn_u32 v{MREC+4*k+3}, v18, v17")
        a("s_mov_b64 exec, -1")
    a(f"v_lshlrev_b32 v12, 2, v{LANE}")
    a(f"v_add_u32 v12, {L_CNT}, v12")
    a(f"v_lshlrev_b32 v35, 2, v{TID}")
    a("v_add_u32 v35, 4, v35")
    RP = 144
    for k in range(7):
        r = MREC + 4 * k
        a(f"v_and_b32 v{r}, 0xffffff00, v{r}")
        a(f"v_add_u32 v36, {2048*k}, v35")
        a(f"v_or_b32 v{RP+2*k+1}, v{r+2}, v36")
        a(f"v_mov_b32 v{RP+2*k}, v{r+1}")
    meta_set_addresses(a)
    if FUSED:
        a("s_waitcnt vmcnt(0)")
        flag_test(a)
        a(f"s_cselect_b32 s{S_EB1}, 1, 0")
        if ONEW:
            a(f"s_cmp_lg_u32 s{S_WAVE}, 0")
            a("s_cbranch_scc1 EB_nw")
            a(f"v_mov_b32 v110, {L_FLAG}")
            a(f"v_mov_b32 v112, s{S_EB1}")
            a("ds_write_b32 v110, v112")
            a.label("EB_nw")
    a("s_waitcnt lgkmcnt(0)")
    a("s_barrier")
    stamp(a, 4)
    if FUSED and ONEW:
        a(f"v_mov_b32 v110, {L_FLAG}")
        a("ds_read_b32 v112, v110")
        a("s_waitcnt lgkmcnt(0)")
        a(f"v_readfirstlane_b32 s{S_EB1}, v112")
    if FUSED:
        a(f"s_mov_b32 s{S_EB2}, s{S_EB1}")
        a(f"s_cmp_eq_u32 s{S_EB1}, 0")
        a("s_cbranch_scc1 EB1_skip")
        e_batch(1)
        a("s_branch EB1_done")
        a.label("EB1_skip")
        flag_load(a, 1)
        a.label("EB1_done")
    else:
        e_batch(1)
    a("ds_read_b32 v14, v12")
    a("s_waitcnt lgkmcnt(0)")
    if BAL:
        balanced_partition(a)
    else:
        a("v_add_u32 v14, 31, v14")
        a("v_lshrrev_b32 v14, 5, v14")
        a("v_max_u32 v14, 1, v14")
        a(f"v_cmp_gt_u32 vcc, s{S_NN}, v{LANE}")
        a(f"v_mad_u32_u24 v15, v14, 10, {opt('epc', 6)}")
        a("v_cndmask_b32 v15, 0, v15, vcc")
        a("v_cndmask_b32 v14, 0, v14, vcc")
        a("v_lshl_or_b32 v18, v15, 16, v14")
        a(f"v_subrev_u32 v{NST}, 1, v14")
        a("v_mov_b32 v19, v18")
        scan64(a, 19)
        a("v_readlane_b32 s58, v19, 63")
        a("v_sub_u32 v18, v19, v18")
        a("v_and_b32 v19, 0xffff, v19")
        a("v_lshrrev_b32 v32, 16, v18")
        a("v_and_b32 v18, 0xffff, v18")
        a("v_lshl_add_u32 v32, v32, 1, v15")
        a("v_lshlrev_b32 v32, 2, v32")
        a("s_lshr_b32 s59, s58, 16")
        a("s_and_b32 s58, s58, 0xffff")
        a(f"s_and_b32 s60, s{S_WAVE}, 3")
        a("s_lshl_b32 s60, s60, 1")
        a(f"s_lshr_b32 s61, s{S_WAVE}, 2")
        a("s_add_u32 s60, s60, s61")
        a("s_mul_i32 s60, s60, s59")
        a("s_add_u32 s61, s60, s59")
        a("v_cmp_le_u32 vcc, s60, v32")
        a("v_cmp_gt_u32 s[62:63], s61, v32")
        a("s_and_b64 vcc, vcc, s[62:63]")
        a(f"s_bcnt1_i32_b64 s{S_NNW}, vcc")
        a(f"s_ff1_i32_b64 s{S_NODE0}, vcc")
        a(f"s_max_i32 s{S_NODE0}, s{S_NODE0}, 0")
        a(f"s_add_u32 s{S_NEND}, s{S_NODE0}, s{S_NNW}")
        a(f"s_sub_u32 s60, s{S_NEND}, 1")
        a("s_max_i32 s60, s60, 0")
        a(f"v_readlane_b32 s{S_STEP0}, v18, s{S_NODE0}")
        a(f"v_readlane_b32 s{S_NS}, v19, s60")
        a(f"s_sub_u32 s{S_NS}, s{S_NS}, s{S_STEP0}")
    assert BAL
    for k in range(7):
        a(f"ds_bpermute_b32 v{20+k}, v{20+k}, v18")
    a(f"s_lshl_b32 s59, s{S_STEP0}, 7")
    a("v_add_u32 v160, s59, v160")
    a("s_lshl_b32 s59, s59, 1")
    a("v_add_u32 v161, s59, v161")
    a(f"s_cmp_gt_u32 s58, {MAXSTEPS}")
    a("s_cselect_b32 s60, 1, s60")
    a("s_cmp_eq_u32 s60, 0")
    a("s_cbranch_scc1 SCATTER")
    a(f"s_mov_b32 s{S_CAP}, {SLOWCAP}")
    a("s_waitcnt vmcnt(0) lgkmcnt(0)")
    a("s_barrier")
    a("s_branch ROUND")
    a.label("SCATTER")
    if FUSED:
        a(f"s_cmp_lg_u32 s{S_EB1}, 0")
        a("s_cbranch_scc1 EB2_go")
        a("s_waitcnt vmcnt(0)")
        flag_test(a)
        a(f"s_cselect_b32 s{S_EB2}, 1, 0")
        a("s_cbranch_scc0 EB2_skip")
        e_batch(1)
        a.label("EB2_go")
        e_batch(2)
        a.label("EB2_skip")
    else:
        e_batch(2)
    for k in range(7):
        r = MREC + 4 * k
        a(f"s_waitcnt lgkmcnt({6 - k + 2 * k if 6 + k <= 15 else 15})")
        a(f"v_lshl_add_u32 v{20+k}, v{20+k}, 5, v{r+3}")
        a(f"v_lshl_add_u32 v{r+1}, v{20+k}, 3, v162")
        a(f"v_lshl_add_u32 v{20+k}, v{20+k}, 2, v163")
        a(f"s_mov_b64 exec, s[{S_MASK+2*k}:{S_MASK+2*k+1}]")
        a(f"ds_write_b32 v{20+k}, v{r}")
        a(f"ds_write_b64 v{r+1}, {vr(RP+2*k,2)}")
        a("s_mov_b64 exec, -1")
    if FUSED:
        a(f"s_cmp_lg_u32 s{S_EB2}, 0")
        a("s_cbranch_scc1 EB3_nopoll")
        poll(a, 1, "POLL_B")
        a.label("EB3_nopoll")
    a("s_waitcnt lgkmcnt(0)")
    a("s_barrier")
    if FUSED:
        a(f"s_cmp_lg_u32 s{S_EB2}, 0")
        a("s_cbranch_scc1 EB3_go")
        e_batch(1)
        e_batch(2)
        a.label("EB3_go")
    e_batch(3)
    for s in range(10):
        a(f"ds_read_b32 v{M0R+s}, v160 offset:{256*s}")
        a(f"ds_read_b64 {vr(MBR+2*s,2)}, v161 offset:{512*s}")
    a(f"s_mov_b32 s{S_D}, 0")
    pfn = opt("pfn", 0)
    if pfn:
        a(f"s_sub_u32 s{S_EVT}, s{S_NEND}, {pfn}")
        a(f"s_max_i32 s{S_EVT}, s{S_EVT}, 0")
    else:
        a(f"s_mov_b32 s{S_EVT}, -2")
    a(f"s_mov_b32 s{S_PHASE}, 0")
    if opt("eg", 0):
        a(f"s_mov_b32 s{S_EGN}, -1")
    a(f"s_mov_b32 s{S_POFF}, 0")
    a(f"s_mov_b32 s{S_TAB0}, 0")
    a(f"s_mov_b32 s{S_TAB1}, 128")
    a(f"s_mov_b32 s{S_NODE}, s{S_NODE0}")
    for l in node_steps(S_NODE):
        a(l)
    if opt("prio", 3) == 2:
        a(f"s_lshr_b32 s54, s{S_WAVE}, 2")
        a(f"s_lshl2_add_u32 s{S_LEFT}, s{S_NS}, s54")
        a(f"s_add_u32 s{S_LEFT}, s{S_LEFT}, 256")
        a(f"s_lshl1_add_u32 s54, s{S_REM}, 2")
        a(f"s_sub_u32 s{S_LEFT}, s{S_LEFT}, s54")
        a(f"s_and_b32 s54, s{S_WAVE}, 3")
        a(f"s_lshl2_add_u32 s{S_PADR}, s54, {L_CNT + 240}")
    stamp(a, 5)
    a("s_waitcnt lgkmcnt(0)")
    a("s_barrier")
    if PROF and not opt("egx", 0):
        a(f"s_mov_b32 s{preg(12)}, s{S_NS}")
        a(f"s_mov_b32 s{preg(13)}, s{S_NNW}")
    a(f"s_cmp_lg_u32 s{S_NNW}, 0")
    a("s_cbranch_scc1 START")
    a("s_waitcnt vmcnt(0)")
    a("s_barrier")
    stamp(a, 6)
    a("s_branch TAIL")
    a.label("START")
    pipeline_start(a)
    cold = []
    for par in range(2):
        for rho in (0, 2, 1):
            epilogue(a, rho, par, cold)
            step_body(a, rho, "f", par, 1 - par, "n", cold)
            step_body(a, (rho + 1) % 3, "n", 1 - par, par, "e" if rho != 1 else "", cold)
    for rho in range(3):
        step_body(a, rho, "f", 0, 0, "", cold)
        step_body(a, rho, "n", 0, 0, "", cold)
    for l in cold:
        a(l)

    a.label("TAIL")
    a("s_setprio 0")
    WF, PF, D = 0, 80, 188
    if PROF == 4:
        a("v_mov_b32 v183, v219")
    stamp(a, 8, late=True)
    a(f"v_and_b32 v{T0+1}, 15, v{LANE}")
    a(f"s_lshr_b32 s56, s{S_WAVE}, 1")
    a("s_lshl_b32 s56, s56, 4")
    a(f"v_add_u32 v{T0+1}, s56, v{T0+1}")
    a(f"v_lshlrev_b32 v{T0+2}, 2, v{T0+1}")
    a(f"ds_bpermute_b32 v{T0+4}, v{T0+2}, v{NID}")
    a(f"v_lshrrev_b32 v{T0+2}, 4, v{LANE}")
    a(f"v_lshlrev_b32 v{T0+2}, 4, v{T0+2}")
    a("s_waitcnt lgkmcnt(0)")
    a(f"v_lshl_add_u32 v{T0+4}, v{T0+4}, 9, v{T0+2}")
    a(f"v_lshlrev_b32 v{T0}, 4, v{LANE}")
    a(f"s_and_b32 s54, s{S_WAVE}, 1")
    a("s_mul_i32 s55, s54, 20480")
    a(f"s_add_u32 s55, s55, {WS_WSI - WS_WTAB}")
    if NEWTAIL:
        def prework(tag):
            a(f"s_mul_i32 s56, s{S_NNW}, {P_NODE}")
            a(f"s_mul_i32 s57, s{S_NODE0}, {P_NODE}")
            a(f"s_mov_b32 s60, s{S_RB}")
            for k in range(6):
                a(f"v_cmp_gt_u32 vcc, s56, v{T0}")
                a("s_mov_b32 m0, s60")
                a("s_mov_b64 exec, vcc")
                a(f"s_cbranch_execz {tag}")
                a(f"buffer_load_dwordx4 v{T0}, s[{R_P}:{R_P+3}], s57 offen sc1 lds")
                a("s_mov_b64 exec, -1")
                a("s_add_u32 s57, s57, 1024")
                a("s_add_u32 s60, s60, 1024")
                a("s_sub_u32 s56, s56, 1024")
                a("s_max_i32 s56, s56, 0")
            a.label(tag)
            a("s_mov_b64 exec, -1")
            for f in range(20):
                if f % 4 == 0 and f:
                    a("s_add_u32 s55, s55, 4096")
                a(f"buffer_load_dwordx4 {vr(WF+4*f,4)}, v{T0}, s[{R_W}:{R_W+3}], s55 offen offset:{(f%4)*1024}")

        a(f"v_mov_b32 v{T0+5}, {L_CNT + 224}")
        a(f"v_mov_b32 v{T0+6}, 1")
        a(f"s_mul_i32 s56, s{S_NNW}, {P_NODE}")
        a(f"s_add_u32 s60, s56, s{S_RB}")
        a(f"v_add_u32 v{T0+7}, s60, v{POFF}")
        a("s_mov_b64 exec, 1")
        a(f"ds_add_rtn_u32 v{T0+6}, v{T0+5}, v{T0+6}")
        a("s_mov_b64 exec, -1")
        a(f"s_cmp_eq_u32 s{S_NNW}, 0")
        a("s_cbranch_scc1 T_NOREC")
        a("s_waitcnt vmcnt(3)")
        for i in range(3):
            a(f"ds_write_b32 v{T0+7}, v{64+i} offset:{256*i}")
        a.label("T_NOREC")
        a("s_waitcnt lgkmcnt(0)")
        a(f"v_readfirstlane_b32 s{S_OLD}, v{T0+6}")
        a(f"s_cmp_ge_u32 s{S_OLD}, {opt('tlast', 7)}")
        a("s_cbranch_scc1 T_BAR")
        if DRY:
            a("s_mov_b32 s62, 1")
            a(f"s_cmp_eq_u32 s{S_OLD}, 0")
            a("s_cbranch_scc1 T_MM")
            a.label("T_RET")
        prework("T_P1")
        a.label("T_BAR")
        a("s_barrier")
        stamp(a, 9, late=True)
        a(f"s_lshl_b32 s61, s{S_WAVE}, 10")
        a(f"s_add_u32 s61, s61, {P_HALF}")
        for k in range(5):
            if k == 4:
                a(f"s_cmp_ge_u32 s{S_WAVE}, 6")
                a("s_cbranch_scc1 NOP10")
            a("s_mov_b32 m0, s61")
            a(f"buffer_load_dwordx4 v{T0}, s[{R_P}:{R_P+3}], s61 offen sc1 lds")
            a("s_add_u32 s61, s61, 8192")
        a.label("NOP10")
        a(f"s_cmp_lt_u32 s{S_OLD}, {opt('tlast', 7)}")
        a("s_cbranch_scc1 T_DONE")
        prework("T_P2")
        a.label("T_DONE")
    else:
        if not opt("wfirst", 1):
            a("s_waitcnt vmcnt(0)")
        for f in range(20):
            if f % 4 == 0 and f:
                a("s_add_u32 s55, s55, 4096")
            a(f"buffer_load_dwordx4 {vr(WF+4*f,4)}, v{T0}, s[{R_W}:{R_W+3}], s55 offen offset:{(f%4)*1024}")
        if opt("wfirst", 1):
            a("s_waitcnt vmcnt(20)")
        a("s_barrier")
        stamp(a, 9, late=True)
        a(f"s_lshl_b32 s55, s{S_WAVE}, 10")
        for k in range(10):
            if k == 9:
                a(f"s_cmp_ge_u32 s{S_WAVE}, 4")
                a("s_cbranch_scc1 NOP10")
            a("s_mov_b32 m0, s55")
            a(f"buffer_load_dwordx4 v{T0}, s[{R_P}:{R_P+3}], s55 offen sc1 lds")
            a("s_add_u32 s55, s55, 8192")
        a.label("NOP10")
    a(f"v_lshlrev_b32 v{T0+8}, 1, v{T0+4}")
    a(f"s_lshl_b32 s57, s54, 9")
    a(f"s_cmp_eq_u32 s{S_R0}, 0")
    a("s_cbranch_scc1 ZEROD")
    for i in range(8):
        a(f"buffer_load_dwordx4 {vr(D+4*i,4)}, v{T0+8}, s[{R_ACC}:{R_ACC+3}], s57 offen offset:{(i//2)*128 + (i%2)*16} sc1")
    a("s_branch HAVED")
    a.label("ZEROD")
    for i in range(32):
        a(f"v_mov_b32 v{D+i}, 0")
    a.label("HAVED")
    if NEWTAIL:
        t = T0 + 9
        a(f"s_cmp_eq_u32 s{S_NN}, {NPB}")
        a(f"s_mov_b32 s58, {-(-8*65536 // (N - 255*NPB))}")
        a(f"s_cmov_b32 s58, {-(-8*65536 // NPB)}")
        a(f"v_mul_u32_u24 v{T0+3}, s58, v{T0+1}")
        a(f"v_lshrrev_b32 v{T0+3}, 16, v{T0+3}")
        a(f"v_min_u32 v{T0+3}, 7, v{T0+3}")
        a(f"v_mad_u32_u24 v{T0+5}, v{T0+3}, s{S_NN}, 7")
        a(f"v_add_u32 v{T0+6}, s{S_NN}, v{T0+5}")
        a(f"v_lshrrev_b32 v{T0+5}, 3, v{T0+5}")
        a(f"v_lshrrev_b32 v{T0+6}, 3, v{T0+6}")
        a(f"v_lshrrev_b32 v{t}, 1, v{T0+3}")
        a(f"v_and_b32 v{T0+3}, 1, v{T0+3}")
        a(f"v_lshl_add_u32 v{t}, v{T0+3}, 2, v{t}")
        a(f"v_mul_u32_u24 v{t}, {RING_W}, v{t}")
        a(f"v_add_u32 v{t}, {L_RING}, v{t}")
        a(f"v_add_u32 v{t}, v{t}, v{T0+2}")
        a(f"v_sub_u32 v{T0+5}, v{T0+1}, v{T0+5}")
        a(f"s_movk_i32 s58, {P_NODE}")
        a(f"v_mad_u32_u24 v{T0+5}, v{T0+5}, s58, v{t}")
        a(f"v_add_u32 v{t+1}, 1, v{T0+1}")
        a(f"v_cmp_eq_u32 vcc, v{t+1}, v{T0+6}")
        a(f"v_mad_u32_u24 v{T0+6}, v{T0+1}, s58, v{T0+2}")
        a(f"v_add_u32 v{T0+6}, {P_HALF}, v{T0+6}")
        a(f"v_add_u32 v{t}, {P_NODE}, v{T0+5}")
        a(f"v_cndmask_b32 v{T0+6}, v{T0+6}, v{t}, vcc")
        a("s_lshl_b32 s54, s54, 6")
    else:
        a(f"v_mul_u32_u24 v{T0+5}, {P_NODE}, v{T0+1}")
        a(f"v_add_u32 v{T0+5}, v{T0+5}, v{T0+2}")
        a(f"v_add_u32 v{T0+6}, {P_HALF}, v{T0+5}")
        a("s_lshl_b32 s54, s54, 6")
    a("s_mov_b32 s62, 0")
    a("s_waitcnt vmcnt(0)")
    a("s_barrier")
    stamp(a, 10, late=True)
    a.label("T_MM")
    seq = []
    for comp, ts in enumerate(([P0, P1], [P2[0], P3[0], P4[0]], [P2[1], P3[1], P4[1]], [P2[2], P3[2], P4[2]])):
        for t in ts:
            for h in range(2):
                seq.append((comp, t, h))
    def gemm(fill):
        rd = lambda i: f"ds_read_b128 {vr(PF+4*i,4)}, v{T0+5+seq[i][2]} offset:{seq[i][1]*64}"
        issued = 12
        for i in range(issued):
            a(rd(i))
        for i, (comp, t, h) in enumerate(seq):
            a(f"s_waitcnt lgkmcnt({issued - 1 - i})")
            for mt in range(2):
                d = vr(D + 8 * comp + 4 * mt, 4)
                a(f"v_mfma_f32_16x16x32_bf16 {d}, {vr(WF + 4*(10*mt + 2*TPATH[t] + h),4)}, {vr(PF+4*i,4)}, {d}")
                for l in fill.get(2 * i + mt, []):
                    a(l)
            if issued < len(seq):
                a(rd(issued))
                issued += 1

    def finish(comp):
        o = (8, 12, 40, 44)[comp]
        out = [f"v_mul_f32 v{D+8*comp+i}, v{D+8*comp+i}, v{i}" for i in range(8)] if comp else []
        out += [f"v_cvt_pk_bf16_f32 v{o+i}, v{D+8*comp+2*i}, v{D+8*comp+2*i+1}" for i in range(4)]
        out += [f"buffer_store_dwordx4 {vr(o,4)}, v{T0+4}, s[{R_OUT}:{R_OUT+3}], s54 offen offset:{128*comp}{OPOL}"]
        return out

    if opt("ptail", 1) and not DRY:
        a(f"s_cmp_eq_u32 s{S_LAST}, 0")
        a("s_cbranch_scc1 MORE0")
        gate = finish(0) + [f"v_mul_f32 v{i}, 0xbfb8aa3b, v{D+i}" for i in range(8)]
        gate += [f"v_exp_f32 v{i}, v{i}" for i in range(8)] + [f"v_add_f32 v{i}, 1.0, v{i}" for i in range(8)]
        gate += [f"v_rcp_f32 v{i}, v{i}" for i in range(8)]
        fill = {}
        for start, lst in ((11, gate), (29, finish(1)), (36, finish(2))):
            for k, l in enumerate(lst):
                fill.setdefault(start + k // 2, []).append(l)
        gemm(fill)
        for l in finish(3):
            a(l)
    else:
        for i, (comp, t, h) in enumerate(seq):
            a(f"ds_read_b128 {vr(PF+4*i,4)}, v{T0+5+h} offset:{t*64}")
            if i == 14:
                a("s_waitcnt lgkmcnt(7)")
        for i, (comp, t, h) in enumerate(seq):
            if i >= 8:
                a(f"s_waitcnt lgkmcnt({21 - i})")
            for mt in range(2):
                d = vr(D + 8 * comp + 4 * mt, 4)
                a(f"v_mfma_f32_16x16x32_bf16 {d}, {vr(WF + 4*(10*mt + 2*TPATH[t] + h),4)}, {vr(PF+4*i,4)}, {d}")
        if PROF == 7:
            stamp(a, 4)
        a(f"s_or_b32 s63, s{S_LAST}, s62")
        a("s_cbranch_scc0 MORE")
        for i in range(8):
            a(f"v_mul_f32 v{i}, 0xbfb8aa3b, v{D+i}")
        for i in range(8):
            a(f"v_exp_f32 v{i}, v{i}")
        for i in range(8):
            a(f"v_add_f32 v{i}, 1.0, v{i}")
        for i in range(8):
            a(f"v_rcp_f32 v{i}, v{i}")
        a("s_cmp_lg_u32 s62, 0")
        for comp in range(4):
            if comp:
                for i in range(8):
                    a(f"v_mul_f32 v{D+8*comp+i}, v{D+8*comp+i}, v{i}")
            for i in range(4):
                a(f"v_cvt_pk_bf16_f32 v{8+4*comp+i}, v{D+8*comp+2*i}, v{D+8*comp+2*i+1}")
            if DRY:
                a(f"s_cbranch_scc1 {'T_RET' if comp == 3 else 'T_S%d' % comp}")
            a(f"buffer_store_dwordx4 {vr(8+4*comp,4)}, v{T0+4}, s[{R_OUT}:{R_OUT+3}], s54 offen offset:{128*comp}{OPOL}")
            if DRY and comp < 3:
                a.label(f"T_S{comp}")
    if PROF == 7:
        stamp(a, 7)
    if PROF:
        a("s_waitcnt vmcnt(0)")
    stamp(a, 11, late=True)
    stamp(a, 15, True)
    prof_dump(a, 98, 1, 3, S_WAVE)
    if opt("amp", 0):
        a("s_cmp_lg_u32 s2, 100")
        a("s_cbranch_scc1 K2_end")
        srd(a, 4, 98, WS_PROF + 100 * 1024, 64)
        a("v_mov_b32 v0, 0")
        a("buffer_load_dword v2, v0, s[4:7], 0 offen")
        a("buffer_load_dword v3, v0, s[4:7], 0 offen offset:60")
        a("s_waitcnt vmcnt(0)")
        a("v_readfirstlane_b32 s60, v2")
        a("v_readfirstlane_b32 s61, v3")
        lo, hi = {1: ("s60", f"s{S_PROF}"), 2: (f"s{S_PROF}", f"s{S_PROF+6}"), 3: (f"s{S_PROF+6}", f"s{S_PROF+9}"),
                  4: ("s60", "s61"), 5: ("s60", "s60"), 6: (f"s{preg(0)}", f"s{preg(10)}"),
                  7: (f"s{preg(0)}", f"s{preg(6)}"), 8: (f"s{preg(6)}", f"s{preg(9)}"),
                  9: (f"s{preg(0)}", f"s{preg(11)}")}[opt("amp", 0)]
        a(f"s_sub_u32 s62, {hi}, {lo}")
        a("s_min_u32 s62, s62, 10000")
        a("s_lshl_b32 s62, s62, 2")
        a("s_add_u32 s62, s62, 1000")
        a.label("AMPL")
        a("s_memrealtime s[80:81]")
        a("s_waitcnt lgkmcnt(0)")
        a(f"s_sub_u32 s63, s80, s{preg(15)}")
        a("s_cmp_lt_u32 s63, s62")
        a("s_cbranch_scc1 AMPL")
    if PROF == 4:
        a("s_lshl_b32 s80, s2, 3")
        a(f"s_add_u32 s80, s80, s{S_WAVE}")
        a("s_lshl_b32 s80, s80, 8")
        a(f"s_add_u32 s80, s80, {WS_PROF + 0x200000}")
        srd(a, 4, 98, "s80", 256)
        a(f"v_lshlrev_b32 v0, 2, v{LANE}")
        a("buffer_store_dword v183, v0, s[4:7], 0 offen")
    if PROF == 3:
        a("s_load_dwordx2 s[54:55], s[0:1], 80")
        a("s_min_u32 s80, s2, 249")
        a("s_lshl_b32 s80, s80, 10")
        a(f"s_add_u32 s80, s80, {WS_PROF}")
        srd(a, 4, 98, "s80", 64)
        a("v_mov_b32 v0, 0")
        a("buffer_load_dword v2, v0, s[4:7], 0 offen")
        a("buffer_load_dword v3, v0, s[4:7], 0 offen offset:8")
        a("buffer_load_dword v4, v0, s[4:7], 0 offen offset:24")
        a("buffer_load_dword v5, v0, s[4:7], 0 offen offset:60")
        a("s_waitcnt vmcnt(0) lgkmcnt(0)")
        srd(a, 4, 54, 0, 256)
        a("v_not_b32 v2, v2")
        a("s_mov_b64 exec, 1")
        for i in range(4):
            a(f"buffer_atomic_umax v{2+i}, v0, s[4:7], 0 offen offset:{4*i}")
        a(f"v_not_b32 v2, s{S_PROF}")
        a("buffer_atomic_umax v2, v0, s[4:7], 0 offen offset:16")
        for i, st in enumerate((0, 2, 3, 4, 6, 7, 8, 9, 10, 15)):
            a(f"v_mov_b32 v{3+i}, s{S_PROF+st}")
            a(f"buffer_atomic_umax v{3+i}, v0, s[4:7], 0 offen offset:{20+4*i}")
    a("s_endpgm")
    if opt("ptail", 1) and not DRY:
        a.label("MORE0")
        gemm({})
    a.label("MORE")
    for i in range(8):
        a(f"buffer_store_dwordx4 {vr(D+4*i,4)}, v{T0+8}, s[{R_ACC}:{R_ACC+3}], s57 offen offset:{(i//2)*128 + (i%2)*16}")
    a(f"s_lshl_b32 s54, s{S_WAVE}, 6")
    a(f"v_add_u32 v{TID}, s54, v{LANE}")
    a(f"s_add_u32 s{S_R0}, s{S_R0}, s{S_LEN}")
    a("s_waitcnt vmcnt(0)")
    a("s_barrier")
    a("s_branch ROUND")
    a.label("K2_end")
    a("s_endpgm")
    return a


def descriptor(name, nv, ns):
    return f""".amdhsa_kernel {name}
  .amdhsa_next_free_vgpr {nv}
  .amdhsa_next_free_sgpr {ns}
  .amdhsa_accum_offset {(nv + 3) // 4 * 4}
  .amdhsa_group_segment_fixed_size 0
  .amdhsa_kernarg_size 96
  .amdhsa_user_sgpr_count 2
  .amdhsa_user_sgpr_kernarg_segment_ptr 1
  .amdhsa_system_sgpr_workgroup_id_x 1
  .amdhsa_float_denorm_mode_32 3
.end_amdhsa_kernel
"""


def main():
    ref = open(os.path.join(os.path.dirname(os.path.abspath(__file__)), "..", "cdna_kernels", NAME + ".s.ref")).read()
    head = [l for l in ref.split("\n") if l.startswith(";") and "@launch" not in l and "Override" not in l
            and "grid=ceil" not in l]
    k1, k2 = "edge_sort_kernel", NAME + "_kernel"
    out = head + ([] if FUSED else [f"; @launch kernel={k1} grid=(255,1,1) block=(1024,1,1) lds={K1_LDS}"]) + [
        f"; @launch kernel={k2} grid=(256,1,1) block=(512,1,1) lds={K2_LDS}",
        ";",
        "; Part 1: each workgroup sorts 3200 edges by destination bin (49 nodes) through LDS and writes the edge",
        ";   attributes, a 12-byte record (source row, node in bin, rhat) and a segment table to d_ws; it also splits",
        ";   x into two 32-channel tables and lays out the weights. Completion is published with tagged flags.",
        "; Part 2: one workgroup per bin. It stages the bin's edges in LDS, sorts them by node, and for each node",
        ";   and channel half accumulates T[k, a, b, c] = sum_e e[k] * (1, rhat)[a] * x[src][b, c] with MFMA",
        ";   (x rows gathered by LDS-DMA), contracts k with w_rad, then applies w_si0 / w_si1 and the gate.",
        ";   Bins that exceed the LDS capacity are processed in several rounds.",
        '.amdgcn_target "amdgcn-amd-amdhsa--gfx950"',
        ".text",
    ]
    for name, fn in ((k1, kernel1), (k2, kernel2))[FUSED:]:
        lines, nops = fn().finish()
        print(name, "instructions:", len(lines), "nops inserted:", nops, file=sys.stderr)
        out += [f".globl {name}", ".p2align 8", f".type {name},@function", f"{name}:"] + lines
    out += ['.section .rodata,"a"'] + ([] if FUSED else [".p2align 6", descriptor(k1, 96, 102)])
    out += [".p2align 6", descriptor(k2, NVGPR, 102)]
    open(sys.argv[1], "w").write("\n".join(out))


if __name__ == "__main__":
    main()
```
